```python
import torch

def _softmax(x, axis=-1):
    return torch.softmax(x, dim=axis)
def _gelu(x):
    return torch.nn.functional.gelu(x, approximate="tanh")
def _silu(x):
    return torch.nn.functional.silu(x)
def _sigmoid(x):
    return torch.sigmoid(x)
def _layernorm(x, axis=-1, eps=1e-5):
    m = x.mean(dim=axis, keepdim=True)
    v = x.var(dim=axis, keepdim=True, unbiased=False)
    return (x - m) / torch.sqrt(v + eps)
def _scatter_add(tgt, idx, src, axis=0):
    return tgt.clone().index_add_(axis, idx, src)
def _segment_sum(src, seg, n):
    out = torch.zeros((n,) + src.shape[1:], dtype=src.dtype)
    return out.index_add_(0, seg, src)
def _pad(x, pw):
    flat = tuple(v for pair in reversed(pw) for v in pair)
    return torch.nn.functional.pad(x, flat)

kernel_name = 'interleave_layers__spectral_fnet__moe_arch_mod__prompt'

def setup_inputs():

    _w = (lambda a: (lambda t: t.to(torch.bfloat16) if t.is_floating_point() else t)(torch.as_tensor(a)))
    def _A_setup():
        B, S, D = 1, 2048, 512
        ns = torch.arange(S)[:, None] * torch.arange(S)[None, :]
        nd = torch.arange(D)[:, None] * torch.arange(D)[None, :]
        Ws_re = torch.cos(-2.0 * torch.pi * ns / S).to(float)
        Ws_im = torch.sin(-2.0 * torch.pi * ns / S).to(float)
        Wd_re = torch.cos(-2.0 * torch.pi * nd / D).to(float)
        Wd_im = torch.sin(-2.0 * torch.pi * nd / D).to(float)
        return {
            "x": _w((lambda *s: torch.randn(*s, dtype=torch.bfloat16) * 0.05)(B, S, D)),
            "dft_seq_re": _w(Ws_re),
            "dft_seq_im": _w(Ws_im),
            "dft_hid_re": _w(Wd_re),
            "dft_hid_im": _w(Wd_im),
        }
    _A_in = _A_setup()

    def _B_setup():
        B, S, D, F, C = 1, 2048, 512, 1376, 1
        return {
            "x": _w((lambda *s: torch.randn(*s, dtype=torch.bfloat16) * 0.05)(B, S, D)),
            "w_r": _w((lambda *s: torch.randn(*s, dtype=torch.bfloat16) * 1.6)(D)),
            "w_gate": _w((lambda *s: torch.randn(*s, dtype=torch.bfloat16) * 0.4)(D, F)),
            "w_up": _w((lambda *s: torch.randn(*s, dtype=torch.bfloat16) * 0.4)(D, F)),
            "w_down": _w((lambda *s: torch.randn(*s, dtype=torch.bfloat16) * 0.4)(F, D)),
        }
    _B_in = _B_setup()

    return {
        "A_x": _A_in["x"],
        "A_dft_seq_re": _A_in["dft_seq_re"],
        "A_dft_seq_im": _A_in["dft_seq_im"],
        "A_dft_hid_re": _A_in["dft_hid_re"],
        "A_dft_hid_im": _A_in["dft_hid_im"],
        "B_x": _B_in["x"],
        "B_w_r": _B_in["w_r"],
        "B_w_gate": _B_in["w_gate"],
        "B_w_up": _B_in["w_up"],
        "B_w_down": _B_in["w_down"],
    }

def reference(A_x, A_dft_seq_re, A_dft_seq_im, A_dft_hid_re, A_dft_hid_im, B_x, B_w_r, B_w_gate, B_w_up, B_w_down):
    def _A_ref(x, dft_seq_re, dft_seq_im, dft_hid_re, dft_hid_im):
        a = torch.einsum("bsd,ed->bse", x, dft_hid_re)
        b = torch.einsum("bsd,ed->bse", x, dft_hid_im)
        y = torch.einsum("ts,bse->bte", dft_seq_re, a) - torch.einsum("ts,bse->bte", dft_seq_im, b)
        return y

    def _B_ref(x, w_r, w_gate, w_up, w_down):
        B, S, D = x.shape
        C = 1
        r = x @ w_r
        idx = torch.argsort(-r, axis=-1)[:, :C]
        idx_e = (lambda x, n, axis: torch.repeat_interleave(x, n, dim=axis))(idx.reshape(B, C, 1), D, axis=2)
        x_sel = (lambda x, i, axis: torch.take_along_dim(x, i, dim=axis))(x, idx_e, axis=1)
        g = _silu(x_sel @ w_gate)
        u = x_sel @ w_up
        y = (g * u) @ w_down
        r_sel = _sigmoid((lambda x, i, axis: torch.take_along_dim(x, i, dim=axis))(r, idx, axis=1))
        y = y * r_sel.reshape(B, C, 1)
        b_off = (torch.arange(B) * S).reshape(B, 1)
        flat_idx = (idx + b_off).reshape(B * C)
        zero = (x * 0.0).reshape(B * S, D)
        upd = _scatter_add(zero, flat_idx, y.reshape(B * C, D), axis=0)
        return x + upd.reshape(B, S, D)

    x = A_x
    x = x + _A_ref(_layernorm(x, axis=-1), A_dft_seq_re, A_dft_seq_im, A_dft_hid_re, A_dft_hid_im)
    x = x + _B_ref(_layernorm(x, axis=-1), B_w_r, B_w_gate, B_w_up, B_w_down)
    x = x + _A_ref(_layernorm(x, axis=-1), A_dft_seq_re, A_dft_seq_im, A_dft_hid_re, A_dft_hid_im)
    x = x + _B_ref(_layernorm(x, axis=-1), B_w_r, B_w_gate, B_w_up, B_w_down)
    return x
```

```python
import re

TRANS = ("v_exp_f32","v_log_f32","v_rcp_f32","v_rsq_f32","v_sqrt_f32","v_sin_f32","v_cos_f32","v_rcp_iflag_f32")

def regs_of(tok):
    tok = tok.strip()
    tok = tok.lstrip('-')
    m = re.fullmatch(r'abs\((.*)\)', tok)
    if m: tok = m.group(1)
    m = re.fullmatch(r'\|(.*)\|', tok)
    if m: tok = m.group(1)
    m = re.fullmatch(r'([vsa])(\d+)', tok)
    if m: return [(m.group(1), int(m.group(2)))]
    m = re.fullmatch(r'([vsa])\[(\d+):(\d+)\]', tok)
    if m: return [(m.group(1), k) for k in range(int(m.group(2)), int(m.group(3))+1)]
    if tok in ('vcc','vcc_lo','vcc_hi'): return [('vcc',0)]
    if tok in ('exec','exec_lo','exec_hi'): return [('exec',0)]
    if tok == 'm0': return [('m0',0)]
    return []

class Ins:
    def __init__(self, text):
        self.text = text
        t = text.split(';')[0].strip()
        self.label = t.endswith(':')
        self.empty = (t == '' or t.startswith('.'))
        self.op = ''
        self.w = []; self.r = []
        if self.label or self.empty: return
        parts = t.split(None, 1)
        self.op = op = parts[0]
        rest = parts[1] if len(parts) > 1 else ''
        ops = []; depth = 0; cur = ''
        for ch in rest:
            if ch == '[': depth += 1
            if ch == ']': depth -= 1
            if ch == ',' and depth == 0: ops.append(cur); cur = ''
            else: cur += ch
        if cur.strip(): ops.append(cur)
        mods = ''
        if ops:
            last = ops[-1].strip().split(None, 1)
            ops[-1] = last[0]
            mods = last[1] if len(last) > 1 else ''
        ops = [o.strip() for o in ops]
        self.ops = ops; self.mods = mods
        self.is_mfma = op.startswith('v_mfma')
        self.is_valu = op.startswith('v_') and not self.is_mfma
        self.is_ds = op.startswith('ds_')
        self.is_vmem = op.startswith('buffer_') or op.startswith('global_')
        self.is_salu = op.startswith('s_')
        self.is_trans = any(op.startswith(x) for x in TRANS)
        self.is_dpp = op.endswith('_dpp') or any(k in mods for k in ('row_','quad_perm','wave_'))
        self.is_perml = op.startswith('v_permlane')
        self.is_rdlane = op.startswith('v_readlane') or op.startswith('v_readfirstlane')
        R = regs_of
        if self.is_mfma:
            self.w = R(ops[0]); self.a = R(ops[1]); self.b = R(ops[2]); self.c = R(ops[3])
            self.r = self.a + self.b + self.c
            self.passes = 4 if '16x16' in op else 8
        elif self.is_valu:
            if self.is_perml or op.startswith('v_swap'):
                self.w = R(ops[0]) + R(ops[1]); self.r = list(self.w)
            elif op.startswith('v_cmp'):
                self.w = R(ops[0]); self.r = sum((R(o) for o in ops[1:]), [])
            else:
                self.w = R(ops[0]); self.r = sum((R(o) for o in ops[1:]), [])
                if op.startswith('v_fmac') or op.startswith('v_writelane') or op.startswith('v_dot2c') or self.is_dpp:
                    self.r += self.w
                if op.startswith('v_cndmask') and len(ops) == 3: self.r += [('vcc',0)]
        elif self.is_ds:
            if op.startswith('ds_read'):
                self.w = R(ops[0]); self.r = R(ops[1])
                if 'd16' in op: self.r += self.w
            else:
                self.r = sum((R(o) for o in ops), [])
        elif self.is_vmem:
            if '_load' in op and 'lds' not in mods.split():
                self.w = R(ops[0]); self.r = sum((R(o) for o in ops[1:]), [])
            elif op.startswith('buffer_wbl2') or op.startswith('buffer_inv'):
                pass
            else:
                self.r = sum((R(o) for o in ops), [])
                self.store_data = R(ops[0]) if op.startswith('buffer_') else R(ops[1])
        elif self.is_salu:
            if op.startswith('s_cmp') or op.startswith('s_waitcnt') or op.startswith('s_nop') or op.startswith('s_cbranch') or op.startswith('s_branch') or op in ('s_barrier','s_endpgm','s_sleep','s_setprio'):
                self.r = sum((R(o) for o in ops), [])
            else:
                self.w = R(ops[0]) if ops else []
                self.r = sum((R(o) for o in ops[1:]), [])
                if 'saveexec' in op: self.w += [('exec',0)]
    def slots(self):
        if self.label or self.empty: return 0
        if self.op == 's_nop': return int(self.ops[0], 0) + 1
        return 1

def need(prev, cur):
    n = 0
    pw = set(prev.w); cr = set(cur.r); cw = set(cur.w)
    pv = {x for x in pw if x[0] == 'v'}
    ps = {x for x in pw if x[0] in ('s','vcc')}
    if prev.is_valu:
        if cur.is_mfma and pv & cr: n = max(n, 2)
        if cur.is_valu and cur.is_dpp and pv & cr: n = max(n, 2)
        if cur.is_valu and cur.is_perml and pv & cr: n = max(n, 2)
        if cur.is_valu and cur.is_rdlane and pv & cr: n = max(n, 1)
        if ps:
            if cur.is_valu and ps & cr:
                n = max(n, 2)
                if cur.op.startswith(('v_readlane','v_writelane')) and len(cur.ops) == 3 and set(regs_of(cur.ops[2])) & ps: n = max(n, 4)
            if cur.is_vmem and ps & cr: n = max(n, 5)
            if cur.is_salu and ps & cr: n = max(n, 1)
        if prev.is_trans and pv & cr and (cur.is_valu or cur.is_mfma or cur.is_vmem or cur.is_ds): n = max(n, 1)
    if prev.is_mfma:
        big = {4: 8, 8: 12}[prev.passes]
        if cur.is_mfma:
            if pw & (set(cur.a) | set(cur.b)): n = max(n, big)
            if pw & set(cur.c):
                if cur.c != prev.w or cur.passes != prev.passes: n = max(n, {4: 6, 8: 10}[prev.passes])
            elif pw & cw: n = max(n, big)
        elif (cur.is_valu or cur.is_ds or cur.is_vmem) and pw & (cr | cw): n = max(n, big)
        if cur.is_valu and set(prev.c) & cw: n = max(n, {4: 3, 8: 7}[prev.passes])
    if prev.is_vmem and hasattr(prev, 'store_data') and len(prev.store_data) >= 3:
        if set(prev.store_data) & cw and (cur.is_valu or cur.is_mfma): n = max(n, 2)
    if prev.is_salu and ('m0',0) in pw and (cur.is_vmem or cur.is_ds): n = max(n, 1)
    return n

def pad(lines):
    ins = [Ins(l) for l in lines]
    out = []
    added = 0
    for cur in ins:
        if cur.label or cur.empty:
            out.append(cur); continue
        dist = 0; req = 0
        for prev in reversed(out):
            if prev.label or prev.empty: continue
            k = need(prev, cur)
            if k > dist: req = max(req, k - dist)
            dist += prev.slots()
            if dist >= 20: break
        while req > 0:
            m = min(req, 16)
            out.append(Ins(f's_nop {m-1}')); added += m; req -= m
        out.append(cur)
    return [i.text for i in out], added

class Alloc:
    def __init__(self, start, limit, kind):
        self.n = start; self.limit = limit; self.kind = kind; self.names = {}
    def __call__(self, name, count=1, align=1):
        while self.n % align: self.n += 1
        a = self.n; self.n += count
        assert self.n <= self.limit, f'out of {self.kind} registers at {name}'
        self.names[name] = (a, count)
        return a
```

```python
import sys, struct, math
from asmlib import pad, Alloc

NAME = "interleave_layers__spectral_fnet__moe_arch_mod__prompt_kernel"
HB0, YB0, HB1, YB1 = 0x000000, 0x100000, 0x200000, 0x300000
CAND0, CAND1 = 0x400000, 0x500000
PART0, PART1 = 0x600000, 0x680000
UPD0 = 0x700000
STAMP = 0x780000
WS_SIZE = 0x800000
NF = 172
LIMIT = 40000
YIMG, NIMG, RIMG, HIMG, CIN, COUT = 0, 8192, 16384, 24576, 28672, 32768
GU, DN, FP, AM, RED = 36864, 53248, 61440, 61952, 62080
LDS_SIZE = 63488

def fbits(x): return '0x%08x' % struct.unpack('<I', struct.pack('<f', x))[0]

class G:
    def __init__(self, stop=None, stamps=False):
        self.L = []; self.stop = stop; self.stamps = stamps; self.uid = 0; self.nstamp = 0
        self.v = Alloc(1, 256, 'v'); self.s = Alloc(3, 100, 's')
    def e(self, text):
        for l in text.strip('\n').split('\n'):
            l = l.strip()
            if l: self.L.append(l)
    def lab(self, p):
        self.uid += 1; return f'L_{p}_{self.uid}'

def vr(a, n=1): return f'v{a}' if n == 1 else f'v[{a}:{a+n-1}]'
def sr(a, n=1): return f's{a}' if n == 1 else f's[{a}:{a+n-1}]'
DPP = 'row_mask:0xf bank_mask:0xf'

def build(stop=None, stamps=False):
    g = G(stop, stamps); e = g.e; V = g.v; S = g.s
    sWS = S('ws', 4, 4); sXS = S('xsrd', 4, 4); sOUT = S('out', 4, 4); sT4 = S('tmpsrd', 4, 4)
    sRho = S('rho'); sW = S('w'); sRow = S('row'); sPar = S('par'); sOff = S('off'); sCnt = S('cnt')
    sC = S('c', 2, 2); sEx = S('exsave', 2, 2); sT = S('t'); sT2 = S('t2'); sT3 = S('t3')
    s16 = S('k16'); sStar = S('star'); sRec = S('rec'); sMine = S('mine'); sWg = S('wg')
    sH = S('h', 8, 2); sTm = S('tm', 2, 2); sPC = S('pc', 2, 2)
    sKA = S('ka', 16, 4); sKB = S('kb', 8, 4); sKC = S('kc', 2, 2)
    vL = V('lane'); vN = V('n'); vQ = V('q')
    X = V('X', 8, 4); WR = V('WR', 8, 2); vSW = V('SW')
    RB1 = V('RB1', 16, 4); RC = V('RC', 8, 2); RS = V('RS', 8, 2); RA2 = V('RA2', 8, 4)
    CB1 = V('CB1', 16, 4); CK = V('CK', 16, 2); CA2 = V('CA2', 4, 4)
    FA = V('FA', 8, 4); FD = V('FD', 8, 2)
    aX = V('aX'); aP8 = V('aP8'); aP4 = V('aP4'); aS8 = V('aS8'); aS16 = V('aS16'); aHdr = V('aHdr')
    lYa = V('lYa'); lYb = V('lYb'); lY = V('lY'); lYr = V('lYr')
    lNw = V('lNw'); lRw = V('lRw'); lNr = V('lNr'); lRr = V('lRr'); lH = V('lH', 4); lG = V('lG')
    lC0 = V('lC0'); lC1 = V('lC1'); lCr = V('lCr'); lCo = V('lCo', 4)
    vRM = V('RM', 2, 2)
    vB = V('B', 2, 2); vM = V('M'); vR = V('R'); vKey = V('key'); vSig = V('sig')
    XN = V('XN', 8, 4); DD = V('D', 8, 4)
    vStamp = V('stamp')
    T = V('T', 64, 4)
    def t(i): return T + i

    def stamp():
        if not g.stamps: return
        e(f'''s_memrealtime {sr(sTm,2)}
        s_waitcnt lgkmcnt(0)
        v_writelane_b32 {vr(vStamp)}, {sr(sTm)}, {g.nstamp}''')
        g.nstamp += 1
    def finish_here(tag):
        if g.stop == tag: e('s_branch L_done')

    def wave_reduce(regs, tmps, op='v_add_f32'):
        for sh in (8, 4, 2, 1):
            for r in regs: e(f'{op}_dpp {vr(r)}, {vr(r)}, {vr(r)} row_ror:{sh} {DPP}')
        for sw in ('v_permlane16_swap_b32', 'v_permlane32_swap_b32'):
            for r, tm in zip(regs, tmps): e(f'v_mov_b32 {vr(tm)}, {vr(r)}')
            for r, tm in zip(regs, tmps): e(f'{sw} {vr(r)}, {vr(tm)}')
            for r, tm in zip(regs, tmps): e(f'{op} {vr(r)}, {vr(r)}, {vr(tm)}')

    def poll(load, regs, backoff=2):
        lp = g.lab('poll'); ok = g.lab('ok')
        e(f's_mov_b32 {sr(sCnt)}, 0')
        e(f'{lp}:')
        e(load)
        e(f'''s_add_u32 {sr(sCnt)}, {sr(sCnt)}, 1
        s_cmp_gt_u32 {sr(sCnt)}, {LIMIT}
        s_cbranch_scc1 L_done
        s_waitcnt vmcnt(0)''')
        regs = list(regs); tm = t(63)
        if len(regs) == 1:
            e(f'v_cmp_eq_u32 vcc, -1, {vr(regs[0])}')
        else:
            e(f'v_max_u32 {vr(tm)}, {vr(regs[0])}, {vr(regs[1])}')
            rest = regs[2:]
            while len(rest) >= 2:
                e(f'v_max3_u32 {vr(tm)}, {vr(tm)}, {vr(rest[0])}, {vr(rest[1])}'); rest = rest[2:]
            if rest: e(f'v_max_u32 {vr(tm)}, {vr(tm)}, {vr(rest[0])}')
            e(f'v_cmp_eq_u32 vcc, -1, {vr(tm)}')
        e(f'''s_cbranch_vccz {ok}
        s_sleep {backoff}
        s_branch {lp}
        {ok}:''')

    e(f's_cmp_ge_u32 s2, 256\ns_cbranch_scc1 L_done')
    e(f'''s_load_dwordx16 {sr(sKA,16)}, s[0:1], 0
    s_load_dwordx8 {sr(sKB,8)}, s[0:1], 64
    s_load_dwordx2 {sr(sKC,2)}, s[0:1], 96
    s_mov_b32 {sr(sWg)}, s2
    s_and_b32 {sr(sT)}, s2, 7
    s_lshl_b32 {sr(sT)}, {sr(sT)}, 5
    s_lshr_b32 {sr(sRho)}, s2, 3
    s_or_b32 {sr(sRho)}, {sr(sRho)}, {sr(sT)}
    v_lshrrev_b32 {vr(t(0))}, 6, v0
    v_and_b32 {vr(vL)}, 63, v0
    v_readfirstlane_b32 {sr(sW)}, {vr(t(0))}
    v_and_b32 {vr(vN)}, 15, {vr(vL)}
    v_lshrrev_b32 {vr(vQ)}, 4, {vr(vL)}
    v_mov_b32 {vr(vStamp)}, 0''')
    e(f'''s_lshl_b32 {sr(sT)}, {sr(sRho)}, 2
    s_add_u32 {sr(sRow)}, {sr(sT)}, {sr(sW)}
    s_sub_u32 {sr(sT2)}, 2040, {sr(sT)}
    s_add_u32 {sr(sT2)}, {sr(sT2)}, {sr(sW)}
    s_sub_u32 {sr(sT3)}, 2048, {sr(sT)}
    s_cmp_eq_u32 {sr(sRho)}, 0
    s_cselect_b32 {sr(sT3)}, 1024, {sr(sT3)}
    s_cmp_eq_u32 {sr(sW)}, 4
    s_cselect_b32 {sr(sT2)}, {sr(sT3)}, {sr(sT2)}
    s_cmp_lt_u32 {sr(sW)}, 4
    s_cselect_b32 {sr(sRow)}, {sr(sRow)}, {sr(sT2)}
    s_sub_u32 {sr(sPar)}, 8, {sr(sW)}
    s_and_b32 {sr(sPar)}, {sr(sPar)}, 7
    s_xor_b32 {sr(sT)}, {sr(sW)}, 4
    s_cmp_eq_u32 {sr(sRho)}, 0
    s_cselect_b32 {sr(sT)}, {sr(sW)}, {sr(sT)}
    s_and_b32 {sr(sT2)}, {sr(sW)}, 3
    s_cmp_eq_u32 {sr(sT2)}, 0
    s_cselect_b32 {sr(sPar)}, {sr(sT)}, {sr(sPar)}''')
    e(f'''s_lshl_b32 {sr(sT)}, {sr(sRow)}, 10
    v_lshlrev_b32 {vr(aX)}, 4, {vr(vL)}
    v_add_u32 {vr(aX)}, {sr(sT)}, {vr(aX)}
    s_lshl_b32 {sr(sT)}, {sr(sRho)}, 12
    v_lshlrev_b32 {vr(aP8)}, 3, v0
    v_add_u32 {vr(aP8)}, {sr(sT)}, {vr(aP8)}
    v_mov_b32 {vr(t(0))}, -1
    v_mov_b32 {vr(t(1))}, -1
    v_mov_b32 {vr(t(2))}, -1
    v_mov_b32 {vr(t(3))}, -1
    s_waitcnt lgkmcnt(0)''')
    kx, kwr, kwg = sKA + 0, sKA + 12, sKA + 14
    kwu, kwd, kout, kdbg = sKB + 0, sKB + 2, sKB + 4, sKB + 6
    def srd(dst, ptr, size):
        e(f'''s_mov_b32 {sr(dst)}, {sr(ptr)}
        s_mov_b32 {sr(dst+1)}, {sr(ptr+1)}
        s_mov_b32 {sr(dst+2)}, {size}
        s_mov_b32 {sr(dst+3)}, 0x00020000''')
    srd(sWS, sKC, WS_SIZE); srd(sXS, kx, 2097152); srd(sOUT, kout, 2097152)
    la = g.lab('nopois')
    e(f'''s_cmp_ge_u32 {sr(sWg)}, 64
    s_cbranch_scc1 {la}
    s_lshl_b32 {sr(sT)}, {sr(sWg)}, 14
    v_lshlrev_b32 {vr(t(4))}, 4, v0
    v_add_u32 {vr(t(4))}, {sr(sT)}, {vr(t(4))}
    s_mov_b32 {sr(sOff)}, {HB0}
    buffer_store_dwordx4 {vr(t(0),4)}, {vr(t(4))}, {sr(sWS,4)}, {sr(sOff)} offen sc1
    s_mov_b32 {sr(sOff)}, {HB0+8192}
    buffer_store_dwordx4 {vr(t(0),4)}, {vr(t(4))}, {sr(sWS,4)}, {sr(sOff)} offen sc1
    {la}:''')
    XRAW = t(8); WRAW = t(12)
    e(f'buffer_load_dwordx4 {vr(XRAW,4)}, {vr(aX)}, {sr(sXS,4)}, 0 offen')
    srd(sT4, kwr, 1024)
    e(f'''v_lshlrev_b32 {vr(t(5))}, 4, {vr(vL)}
    buffer_load_dwordx4 {vr(WRAW,4)}, {vr(t(5))}, {sr(sT4,4)}, 0 offen''')
    e(f'''s_lshl_b32 {sr(sT)}, {sr(sRho)}, 11
    v_lshlrev_b32 {vr(aP4)}, 2, v0
    v_add_u32 {vr(aP4)}, {sr(sT)}, {vr(aP4)}
    s_cmp_lt_u32 {sr(sRho)}, {NF}
    s_cselect_b32 {sr(sT)}, 0, 0x7f000000
    v_add_u32 {vr(aP4)}, {sr(sT)}, {vr(aP4)}''')
    for b in (YB0, HB1, YB1, CAND0, CAND1):
        e(f's_mov_b32 {sr(sOff)}, {b}\nbuffer_store_dwordx2 {vr(t(0),2)}, {vr(aP8)}, {sr(sWS,4)}, {sr(sOff)} offen sc1')
    for b in (PART0, PART1):
        e(f's_mov_b32 {sr(sOff)}, {b}\nbuffer_store_dword {vr(t(0))}, {vr(aP4)}, {sr(sWS,4)}, {sr(sOff)} offen sc1')
    e(f'''s_lshl_b32 {sr(sT)}, {sr(sWg)}, 6
    v_lshlrev_b32 {vr(t(6))}, 2, v0
    v_add_u32 {vr(t(6))}, {sr(sT)}, {vr(t(6))}
    v_cmp_gt_u32 vcc, 16, v0
    s_cmp_lt_u32 {sr(sWg)}, 32
    s_cselect_b64 {sr(sEx,2)}, vcc, 0
    v_mov_b32 {vr(t(7))}, 0x7f000000
    v_cndmask_b32 {vr(t(6))}, {vr(t(7))}, {vr(t(6))}, {sr(sEx,2)}
    s_mov_b32 {sr(sOff)}, {UPD0}
    buffer_store_dword {vr(t(0))}, {vr(t(6))}, {sr(sWS,4)}, {sr(sOff)} offen sc1''')
    e(f'''s_getpc_b64 {sr(sPC,2)}
    L_pc:
    v_lshlrev_b32 {vr(t(6))}, 6, v0
    v_min_u32 {vr(t(6))}, L_code_end-L_pc-4, {vr(t(6))}
    global_load_dword {vr(t(7))}, {vr(t(6))}, {sr(sPC,2)}''')
    GW = t(16); UW = t(20); DW = t(24)
    e(f's_min_u32 {sr(sT)}, {sr(sRho)}, {NF-1}')
    srd(sT4, kwg, 1409024)
    e(f'''s_lshl_b32 {sr(sT2)}, {sr(sT)}, 4
    s_movk_i32 {sr(sT3)}, 2752
    v_mul_lo_u32 {vr(t(6))}, v0, {sr(sT3)}
    v_add_u32 {vr(t(6))}, {sr(sT2)}, {vr(t(6))}
    buffer_load_dwordx4 {vr(GW,4)}, {vr(t(6))}, {sr(sT4,4)}, 0 offen''')
    srd(sT4, kwu, 1409024)
    e(f'buffer_load_dwordx4 {vr(UW,4)}, {vr(t(6))}, {sr(sT4,4)}, 0 offen')
    srd(sT4, kwd, 1409024)
    e(f'''s_lshl_b32 {sr(sT2)}, {sr(sT)}, 13
    s_lshl_b32 {sr(sT3)}, {sr(sW)}, 10
    s_add_u32 {sr(sT2)}, {sr(sT2)}, {sr(sT3)}
    v_lshlrev_b32 {vr(t(5))}, 4, {vr(vL)}
    v_add_u32 {vr(t(5))}, {sr(sT2)}, {vr(t(5))}
    buffer_load_dwordx4 {vr(DW,4)}, {vr(t(5))}, {sr(sT4,4)}, 0 offen''')
    NAFTER_A = 2 + 5 + 2 + 1 + 1 + 3
    NAFTER_B = 5 + 2 + 1 + 1 + 3
    e(f's_mov_b32 {sr(s16)}, {fbits(16.0)}')

    a0, a1, a2, a3 = t(32), t(33), t(34), t(35)
    e(f'''s_lshl_b32 {sr(sT)}, {sr(sRho)}, 4
    v_lshrrev_b32 {vr(a0)}, 1, v0
    v_lshlrev_b32 {vr(aS8)}, 12, {vr(a0)}
    v_and_b32 {vr(a1)}, 1, v0
    v_lshlrev_b32 {vr(a2)}, 3, {vr(a1)}
    v_add3_u32 {vr(aS8)}, {vr(aS8)}, {vr(a2)}, {sr(sT)}
    v_and_b32 {vr(a2)}, 255, v0
    v_lshlrev_b32 {vr(aHdr)}, 12, {vr(a2)}
    v_add_u32 {vr(aS16)}, {sr(sT)}, {vr(aHdr)}''')
    e(f'''v_mov_b32 {vr(a3)}, 256
    v_cmp_eq_u32 vcc, 0, {vr(a2)}
    v_cndmask_b32 {vr(a2)}, {vr(a2)}, {vr(a3)}, vcc
    v_sub_u32 {vr(a3)}, 512, {vr(a2)}
    s_cmp_ge_u32 {sr(sW)}, 4
    s_cselect_b64 vcc, -1, 0
    v_cndmask_b32 {vr(a2)}, {vr(a2)}, {vr(a3)}, vcc
    v_lshlrev_b32 {vr(lY)}, 1, {vr(a2)}
    s_cmp_ge_u32 {sr(sW)}, 4
    s_cselect_b32 {sr(sT)}, 1, 0
    s_cmp_eq_u32 {sr(sRho)}, 0
    s_cselect_b32 {sr(sT)}, 0, {sr(sT)}
    s_lshl_b32 {sr(sT)}, {sr(sT)}, 12
    s_xor_b32 {sr(sT2)}, {sr(sT)}, 4096
    v_add_u32 {vr(lYa)}, {sr(sT)}, {vr(lY)}
    v_add_u32 {vr(lYb)}, {sr(sT2)}, {vr(lY)}
    s_lshl_b32 {sr(sT)}, {sr(sW)}, 10
    v_lshlrev_b32 {vr(a2)}, 4, {vr(vL)}
    v_add_u32 {vr(lYr)}, {sr(sT)}, {vr(a2)}
    v_add_u32 {vr(lNw)}, {NIMG}, {vr(lYr)}
    s_add_u32 {sr(sT2)}, {sr(sT)}, {RIMG+1008}
    v_sub_u32 {vr(lRw)}, {sr(sT2)}, {vr(a2)}''')
    e(f'''v_lshlrev_b32 {vr(a2)}, 3, {vr(vQ)}
    v_lshrrev_b32 {vr(a3)}, 2, {vr(vN)}
    v_add_u32 {vr(a2)}, {vr(a2)}, {vr(a3)}
    v_lshlrev_b32 {vr(a2)}, 5, {vr(a2)}
    v_and_b32 {vr(a3)}, 3, {vr(vN)}
    v_lshlrev_b32 {vr(a3)}, 3, {vr(a3)}
    v_add_u32 {vr(a2)}, {vr(a2)}, {vr(a3)}
    s_add_u32 {sr(sT)}, {sr(sT)}, {NIMG}
    v_add_u32 {vr(lNr)}, {sr(sT)}, {vr(a2)}
    s_lshl_b32 {sr(sT)}, {sr(sPar)}, 10
    s_add_u32 {sr(sT)}, {sr(sT)}, {RIMG}
    v_add_u32 {vr(lRr)}, {sr(sT)}, {vr(a2)}''')
    for i in range(4):
        e(f'''v_and_b32 {vr(a0)}, 1, {vr(vQ)}
        v_lshlrev_b32 {vr(a0)}, 2, {vr(a0)}
        v_add_u32 {vr(a0)}, {i}, {vr(a0)}
        v_lshrrev_b32 {vr(a1)}, 1, {vr(vQ)}
        v_lshlrev_b32 {vr(a1)}, 4, {vr(a1)}
        v_add_u32 {vr(a1)}, {vr(a1)}, {vr(vN)}
        v_lshlrev_b32 {vr(a2)}, 5, {vr(a0)}
        v_add_u32 {vr(a3)}, {vr(a2)}, {vr(a1)}
        v_lshlrev_b32 {vr(a3)}, 4, {vr(a3)}
        s_lshl_b32 {sr(sT)}, {sr(sW)}, 1
        v_add_u32 {vr(a3)}, {sr(sT)}, {vr(a3)}
        v_sub_u32 {vr(a2)}, 256, {vr(a2)}
        v_lshlrev_b32 {vr(a2)}, 4, {vr(a2)}
        s_lshl_b32 {sr(sT)}, {sr(sPar)}, 1
        v_add_u32 {vr(a2)}, {sr(sT)}, {vr(a2)}
        v_cmp_eq_u32 vcc, 0, {vr(a1)}
        v_cmp_ne_u32 {sr(sEx,2)}, 0, {vr(a0)}
        s_and_b64 vcc, vcc, {sr(sEx,2)}
        v_cndmask_b32 {vr(a3)}, {vr(a3)}, {vr(a2)}, vcc
        v_add_u32 {vr(lH+i)}, {HIMG}, {vr(a3)}''')
    e(f'v_lshlrev_b32 {vr(lG)}, 3, v0')
    def caddr(dst, s_reg):
        e(f'''v_and_b32 {vr(a2)}, 15, {vr(s_reg)}
        v_lshlrev_b32 {vr(dst)}, 4, {vr(a2)}
        v_lshrrev_b32 {vr(a2)}, 4, {vr(s_reg)}
        v_and_b32 {vr(a3)}, 7, {vr(a2)}
        v_lshlrev_b32 {vr(a3)}, 1, {vr(a3)}
        v_add_u32 {vr(dst)}, {vr(dst)}, {vr(a3)}
        v_lshrrev_b32 {vr(a2)}, 3, {vr(a2)}
        v_lshlrev_b32 {vr(a2)}, 8, {vr(a2)}
        v_add_u32 {vr(dst)}, {vr(dst)}, {vr(a2)}
        v_add_u32 {vr(dst)}, {CIN}, {vr(dst)}''')
    b0, b1, b2 = t(36), t(37), t(38)
    e(f'''v_lshrrev_b32 {vr(a0)}, 1, v0
    v_lshlrev_b32 {vr(b0)}, 2, {vr(a0)}
    v_sub_u32 {vr(b1)}, 2044, {vr(b0)}
    v_sub_u32 {vr(b2)}, 2048, {vr(b0)}
    v_mov_b32 {vr(a1)}, 1024
    v_cmp_eq_u32 vcc, 0, {vr(b0)}
    v_cndmask_b32 {vr(b2)}, {vr(b2)}, {vr(a1)}, vcc
    v_and_b32 {vr(a1)}, 1, v0
    v_cmp_eq_u32 vcc, 1, {vr(a1)}
    v_cndmask_b32 {vr(b1)}, {vr(b0)}, {vr(b1)}, vcc
    v_cndmask_b32 {vr(b2)}, {vr(b0)}, {vr(b2)}, vcc''')
    caddr(lC0, b2); caddr(lC1, b1)
    e(f'v_lshlrev_b32 {vr(lCr)}, 4, {vr(vL)}\nv_add_u32 {vr(lCr)}, {CIN}, {vr(lCr)}')
    vTau, vTlo = t(40), t(41)
    e(f'''s_lshl_b32 {sr(sT)}, {sr(sW)}, 3
    v_and_b32 {vr(vTau)}, 7, {vr(vN)}
    v_add_u32 {vr(vTau)}, {sr(sT)}, {vr(vTau)}
    v_sub_u32 {vr(a0)}, 128, {vr(vTau)}
    v_mov_b32 {vr(a1)}, 64
    v_cmp_eq_u32 vcc, 0, {vr(vTau)}
    v_cndmask_b32 {vr(a0)}, {vr(a0)}, {vr(a1)}, vcc
    v_cmp_le_u32 vcc, 8, {vr(vN)}
    v_cndmask_b32 {vr(vTlo)}, {vr(vTau)}, {vr(a0)}, vcc''')
    for i in range(4):
        tt = b0
        e(f'''v_lshlrev_b32 {vr(a0)}, 2, {vr(vQ)}
        v_add_u32 {vr(a0)}, {i}, {vr(a0)}
        v_lshlrev_b32 {vr(a0)}, 7, {vr(a0)}
        v_add_u32 {vr(tt)}, {vr(a0)}, {vr(vTlo)}
        v_lshrrev_b32 {vr(a0)}, 2, {vr(tt)}
        v_and_b32 {vr(a1)}, 3, {vr(tt)}
        v_lshlrev_b32 {vr(a2)}, 4, {vr(a0)}
        v_lshlrev_b32 {vr(a3)}, 1, {vr(a1)}
        v_add_u32 {vr(b1)}, {vr(a2)}, {vr(a3)}
        v_sub_u32 {vr(a2)}, 511, {vr(a0)}
        v_lshlrev_b32 {vr(a2)}, 4, {vr(a2)}
        v_add3_u32 {vr(a2)}, {vr(a2)}, {vr(a3)}, 8
        v_sub_u32 {vr(a3)}, 512, {vr(a0)}
        v_and_b32 {vr(a3)}, 255, {vr(a3)}
        v_lshlrev_b32 {vr(a3)}, 4, {vr(a3)}
        v_add_u32 {vr(a3)}, 8, {vr(a3)}
        v_cmp_eq_u32 vcc, 0, {vr(a1)}
        v_cndmask_b32 {vr(a2)}, {vr(a2)}, {vr(a3)}, vcc
        v_cmp_gt_u32 vcc, 1024, {vr(tt)}
        v_cndmask_b32 {vr(a2)}, {vr(a2)}, {vr(b1)}, vcc
        v_add_u32 {vr(lCo+i)}, {COUT}, {vr(a2)}''')
    e(f'''v_mov_b32 {vr(a0)}, 0
    s_lshl_b32 {sr(sT)}, {sr(sW)}, 10
    v_mov_b32 {vr(a1)}, {sr(sT)}
    ds_write_b16 {vr(a1)}, {vr(a0)} offset:{YIMG}''')

    def cos_seq(dst, base, step, n, amp=None):
        c0, c1 = t(50), t(51)
        for j in range(0, n, 2):
            e(f'v_cos_f32 {vr(c0)}, {vr(base)}\nv_add_f32 {vr(base)}, {vr(base)}, {vr(step)}')
            e(f'v_cos_f32 {vr(c1)}, {vr(base)}')
            if j + 2 < n: e(f'v_add_f32 {vr(base)}, {vr(base)}, {vr(step)}')
            if amp is not None:
                e(f'v_mul_f32 {vr(c0)}, {vr(amp)}, {vr(c0)}\nv_mul_f32 {vr(c1)}, {vr(amp)}, {vr(c1)}')
            e(f'v_cvt_pk_f16_f32 {vr(dst + j//2)}, {vr(c0)}, {vr(c1)}')
    fQ, fN, fs, fb, fa = t(44), t(45), t(46), t(47), t(48)
    def row_consts():
        e(f'v_cvt_f32_u32 {vr(fQ)}, {vr(vQ)}\nv_cvt_f32_u32 {vr(fN)}, {vr(vN)}')
        for Tt in range(2):
            for part in range(2):
                e(f'''v_add_f32 {vr(fs)}, {fbits(16.0*Tt)}, {vr(fN)}
                v_mul_f32 {vr(fs)}, {fbits(1/32)}, {vr(fs)}
                v_mul_f32 {vr(fb)}, {vr(fQ)}, {vr(fs)}
                v_mul_f32 {vr(fb)}, {fbits(8.0)}, {vr(fb)}''')
                if part: e(f'v_add_f32 {vr(fb)}, {fbits(0.25)}, {vr(fb)}')
                cos_seq(RB1 + (Tt*2+part)*4, fb, fs, 8)
        for Tt in range(2):
            e(f'v_add_f32 {vr(fs)}, {fbits(16.0*Tt)}, {vr(fN)}')
            if Tt == 0:
                e(f'''v_mov_b32 {vr(fa)}, {fbits(256.0)}
                v_cmp_eq_u32 vcc, 0, {vr(vN)}
                v_cndmask_b32 {vr(fs)}, {vr(fs)}, {vr(fa)}, vcc''')
            e(f'''v_mul_f32 {vr(fs)}, {fbits(1/512)}, {vr(fs)}
            v_mul_f32 {vr(fb)}, {vr(fQ)}, {vr(fs)}
            v_mul_f32 {vr(fb)}, 4.0, {vr(fb)}''')
            for i in range(4):
                e(f'v_cos_f32 {vr(RC+4*Tt+i)}, {vr(fb)}\nv_sin_f32 {vr(RS+4*Tt+i)}, {vr(fb)}')
                if i < 3: e(f'v_add_f32 {vr(fb)}, {vr(fb)}, {vr(fs)}')
        for Tt in range(2):
            e(f'''v_and_b32 {vr(fs)}, 7, {vr(vN)}
            v_cvt_f32_u32 {vr(fs)}, {vr(fs)}
            v_mul_f32 {vr(fs)}, {fbits(1/16)}, {vr(fs)}
            v_lshrrev_b32 {vr(fa)}, 3, {vr(vN)}
            v_cmp_eq_u32 vcc, {Tt}, {vr(fa)}
            v_mov_b32 {vr(fa)}, {fbits(math.sqrt(2))}
            v_cndmask_b32 {vr(fa)}, 0, {vr(fa)}, vcc''')
            for part, ph in ((0, 0.125), (1, -0.125)):
                e(f'''v_mul_f32 {vr(fb)}, {vr(fQ)}, {vr(fs)}
                v_mul_f32 {vr(fb)}, 4.0, {vr(fb)}
                v_add_f32 {vr(fb)}, {fbits(ph)}, {vr(fb)}''')
                cos_seq(RA2 + 4*Tt + 2*part, fb, fs, 4, amp=fa)
    def col_consts():
        e(f'''s_lshl_b32 {sr(sT)}, {sr(sW)}, 3
        v_and_b32 {vr(vTau)}, 7, {vr(vN)}
        v_add_u32 {vr(vTau)}, {sr(sT)}, {vr(vTau)}
        v_sub_u32 {vr(a0)}, 128, {vr(vTau)}
        v_mov_b32 {vr(a1)}, 64
        v_cmp_eq_u32 vcc, 0, {vr(vTau)}
        v_cndmask_b32 {vr(a0)}, {vr(a0)}, {vr(a1)}, vcc
        v_cmp_le_u32 {sr(sEx,2)}, 8, {vr(vN)}
        v_cndmask_b32 {vr(vTlo)}, {vr(vTau)}, {vr(a0)}, {sr(sEx,2)}
        v_cvt_f32_u32 {vr(fQ)}, {vr(vQ)}''')
        e(f'''v_cmp_eq_u32 vcc, 0, {vr(vTau)}
        s_and_b64 {sr(sTm,2)}, vcc, {sr(sEx,2)}
        v_cndmask_b32 {vr(a0)}, {vr(vTau)}, {vr(a1)}, {sr(sTm,2)}
        v_cvt_f32_u32 {vr(fs)}, {vr(a0)}
        v_mul_f32 {vr(fs)}, {fbits(1/128)}, {vr(fs)}
        s_andn2_b64 {sr(sTm,2)}, {sr(sEx,2)}, vcc
        v_mov_b32 {vr(fa)}, {fbits(0.25)}
        v_cndmask_b32 {vr(fa)}, 0, {vr(fa)}, {sr(sTm,2)}''')
        for kap in range(4):
            e(f'''v_mul_f32 {vr(fb)}, {fbits(8.0)}, {vr(fQ)}
            v_add_f32 {vr(fb)}, {fbits(32.0*kap)}, {vr(fb)}
            v_fma_f32 {vr(fb)}, {vr(fb)}, {vr(fs)}, {vr(fa)}''')
            cos_seq(CB1 + 4*kap, fb, fs, 8)
        c, s_, nc, ns = t(52), t(53), t(54), t(55)
        e(f'''v_cvt_f32_u32 {vr(fs)}, {vr(vTlo)}
        v_mul_f32 {vr(fs)}, {fbits(1/2048)}, {vr(fs)}
        v_mul_f32 {vr(fb)}, {vr(fQ)}, {vr(fs)}
        v_mul_f32 {vr(fb)}, 4.0, {vr(fb)}
        v_cmp_eq_u32 vcc, 0, {vr(vTau)}''')
        for i in range(4):
            e(f'''v_cos_f32 {vr(c)}, {vr(fb)}
            v_sin_f32 {vr(s_)}, {vr(fb)}
            v_add_f32 {vr(fb)}, {vr(fb)}, {vr(fs)}
            v_mul_f32 {vr(c)}, {fbits(0.25)}, {vr(c)}
            v_mul_f32 {vr(s_)}, {fbits(0.25)}, {vr(s_)}
            v_sub_f32 {vr(nc)}, 0, {vr(c)}
            v_sub_f32 {vr(ns)}, 0, {vr(s_)}
            v_cndmask_b32 {vr(CK+i)}, {vr(c)}, {vr(ns)}, {sr(sEx,2)}
            v_cndmask_b32 {vr(CK+i)}, {vr(CK+i)}, {vr(c)}, vcc
            v_cndmask_b32 {vr(CK+4+i)}, {vr(s_)}, {vr(c)}, {sr(sEx,2)}
            v_cndmask_b32 {vr(CK+4+i)}, {vr(CK+4+i)}, 0, vcc
            v_cndmask_b32 {vr(CK+8+i)}, {vr(ns)}, {vr(nc)}, {sr(sEx,2)}
            v_cndmask_b32 {vr(CK+8+i)}, {vr(CK+8+i)}, {vr(ns)}, vcc
            v_cndmask_b32 {vr(CK+12+i)}, {vr(c)}, {vr(ns)}, {sr(sEx,2)}
            v_cndmask_b32 {vr(CK+12+i)}, {vr(CK+12+i)}, 0, vcc''')
        e(f'''v_cvt_f32_u32 {vr(fs)}, {vr(vN)}
        v_mul_f32 {vr(fs)}, {fbits(1/16)}, {vr(fs)}
        v_mov_b32 {vr(fa)}, {fbits(math.sqrt(2)/8)}''')
        for part, ph in ((0, -0.125), (1, -0.375)):
            e(f'''v_mul_f32 {vr(fb)}, {vr(fQ)}, {vr(fs)}
            v_mul_f32 {vr(fb)}, 4.0, {vr(fb)}
            v_add_f32 {vr(fb)}, {fbits(ph)}, {vr(fb)}''')
            cos_seq(CA2 + 2*part, fb, fs, 4, amp=fa)
    row_consts()

    la = g.lab('nosig')
    e(f'''s_cmp_ge_u32 {sr(sWg)}, 64
    s_cbranch_scc1 {la}
    s_waitcnt vmcnt({NAFTER_A})
    s_barrier
    s_cmp_lg_u32 {sr(sW)}, 0
    s_cbranch_scc1 {la}''')
    srd(sT4, kdbg, 256)
    e(f'''s_lshl_b32 {sr(sT)}, {sr(sWg)}, 2
    v_mov_b32 {vr(t(4))}, {sr(sT)}
    v_mov_b32 {vr(t(5))}, 1
    s_mov_b64 exec, 1
    buffer_store_dword {vr(t(5))}, {vr(t(4))}, {sr(sT4,4)}, 0 offen sc1
    s_mov_b64 exec, -1
    {la}:''')

    def unpack_bf16(dst, src):
        for k in range(4):
            e(f'v_lshlrev_b32 {vr(dst+2*k)}, 16, {vr(src+k)}\nv_and_b32 {vr(dst+2*k+1)}, 0xffff0000, {vr(src+k)}')
    def stats(with_r):
        S1, S2, S3 = t(16), t(17), t(18); P, P2 = t(20), t(22)
        e(f'v_readfirstlane_b32 {sr(sC)}, {vr(X)}')
        for k in range(4):
            e(f'v_pk_add_f32 {vr(DD+2*k,2)}, {vr(X+2*k,2)}, {sr(sC,2)} op_sel_hi:[1,0] neg_lo:[0,1] neg_hi:[0,1]')
        e(f'''v_pk_add_f32 {vr(P,2)}, {vr(DD,2)}, {vr(DD+2,2)}
        v_pk_add_f32 {vr(P2,2)}, {vr(DD+4,2)}, {vr(DD+6,2)}
        v_pk_add_f32 {vr(P,2)}, {vr(P,2)}, {vr(P2,2)}
        v_add_f32 {vr(S1)}, {vr(P)}, {vr(P+1)}
        v_pk_mul_f32 {vr(P2,2)}, {vr(DD,2)}, {vr(DD,2)}''')
        for k in range(1, 4): e(f'v_pk_fma_f32 {vr(P2,2)}, {vr(DD+2*k,2)}, {vr(DD+2*k,2)}, {vr(P2,2)}')
        e(f'v_add_f32 {vr(S2)}, {vr(P2)}, {vr(P2+1)}')
        regs = [S1, S2]
        if with_r:
            e(f'v_pk_mul_f32 {vr(P,2)}, {vr(DD,2)}, {vr(WR,2)}')
            for k in range(1, 4): e(f'v_pk_fma_f32 {vr(P,2)}, {vr(DD+2*k,2)}, {vr(WR+2*k,2)}, {vr(P,2)}')
            e(f'v_add_f32 {vr(S3)}, {vr(P)}, {vr(P+1)}')
            regs.append(S3)
        wave_reduce(regs, [t(24), t(25), t(26)][:len(regs)])
        e(f'''v_mul_f32 {vr(vM)}, {fbits(1/512)}, {vr(S1)}
        v_mul_f32 {vr(S2)}, {fbits(1/512)}, {vr(S2)}
        v_fma_f32 {vr(S2)}, -{vr(vM)}, {vr(vM)}, {vr(S2)}
        v_max_f32 {vr(S2)}, 0, {vr(S2)}
        v_add_f32 {vr(S2)}, {fbits(1e-5)}, {vr(S2)}
        v_rsq_f32 {vr(vRM)}, {vr(S2)}
        v_mul_f32 {vr(vB)}, -{vr(vM)}, {vr(vRM)}''')
        if with_r:
            e(f'''v_fma_f32 {vr(S3)}, -{vr(vM)}, {vr(vSW)}, {vr(S3)}
            v_mul_f32 {vr(vR)}, {vr(vRM)}, {vr(S3)}''')
        for k in range(4):
            e(f'v_pk_fma_f32 {vr(XN+2*k,2)}, {vr(DD+2*k,2)}, {vr(vRM,2)}, {vr(vB,2)} op_sel_hi:[1,0,0]')

    def transform(dst_off, init_check=False):
        Nn, Rr, rot = t(0), t(4), t(8)
        for k in range(4): e(f'v_cvt_pk_f16_f32 {vr(Nn+k)}, {vr(XN+2*k)}, {vr(XN+2*k+1)}')
        e(f'v_mov_b32_dpp {vr(rot)}, {vr(XN)} wave_rol:1 {DPP}')
        e(f'ds_write_b128 {vr(lNw)}, {vr(Nn,4)}')
        e(f'''v_cvt_pk_f16_f32 {vr(Rr)}, {vr(rot)}, {vr(XN+7)}
        v_cvt_pk_f16_f32 {vr(Rr+1)}, {vr(XN+6)}, {vr(XN+5)}
        v_cvt_pk_f16_f32 {vr(Rr+2)}, {vr(XN+4)}, {vr(XN+3)}
        v_cvt_pk_f16_f32 {vr(Rr+3)}, {vr(XN+2)}, {vr(XN+1)}
        ds_write_b128 {vr(lRw)}, {vr(Rr,4)}
        s_waitcnt lgkmcnt(0)
        s_barrier''')
        A, Bp = t(0), t(4)
        e(f'''ds_read_b64_tr_b16 {vr(A,2)}, {vr(lNr)}
        ds_read_b64_tr_b16 {vr(Bp,2)}, {vr(lRr)}
        ds_read_b64_tr_b16 {vr(A+2,2)}, {vr(lNr)} offset:128
        ds_read_b64_tr_b16 {vr(Bp+2,2)}, {vr(lRr)} offset:128''')
        if init_check:
            lw = g.lab('nochk')
            e(f'v_lshlrev_b32 {vr(t(60))}, 2, {vr(vL)}')
            srd(sT4, kdbg, 256)
            e(f's_cmp_lg_u32 {sr(sW)}, 0\ns_cbranch_scc1 {lw}')
            e(f'''buffer_load_dword {vr(t(61))}, {vr(t(60))}, {sr(sT4,4)}, 0 offen sc1
            {lw}:''')
        e(f'''s_waitcnt lgkmcnt(2)
        v_pk_add_f16 {vr(A)}, {vr(A)}, {vr(Bp)}
        v_pk_add_f16 {vr(A+1)}, {vr(A+1)}, {vr(Bp+1)}
        s_waitcnt lgkmcnt(0)
        v_pk_add_f16 {vr(A+2)}, {vr(A+2)}, {vr(Bp+2)}
        v_pk_add_f16 {vr(A+3)}, {vr(A+3)}, {vr(Bp+3)}''')
        Dr = [t(8), t(16)]; Di = [t(12), t(20)]
        for Tt in range(2):
            e(f'v_mfma_f32_16x16x32_f16 {vr(Dr[Tt],4)}, {vr(A,4)}, {vr(RB1+(2*Tt)*4,4)}, 0')
            e(f'v_mfma_f32_16x16x32_f16 {vr(Di[Tt],4)}, {vr(A,4)}, {vr(RB1+(2*Tt+1)*4,4)}, 0')
        Bo = [t(24), t(28)]; br, bi = t(32), t(36)
        for Tt in range(2):
            for h in range(2):
                c = vr(RC+4*Tt+2*h, 2); s_ = vr(RS+4*Tt+2*h, 2)
                dr = vr(Dr[Tt]+2*h, 2); di = vr(Di[Tt]+2*h, 2)
                e(f'''v_pk_mul_f32 {vr(br+2*h,2)}, {dr}, {c}
                v_pk_mul_f32 {vr(bi+2*h,2)}, {di}, {c}
                v_pk_fma_f32 {vr(br+2*h,2)}, {di}, {s_}, {vr(br+2*h,2)}
                v_pk_fma_f32 {vr(bi+2*h,2)}, {dr}, {s_}, {vr(bi+2*h,2)} neg_lo:[1,0,0] neg_hi:[1,0,0]''')
            e(f'''v_cvt_pk_f16_f32 {vr(Bo[Tt])}, {vr(br)}, {vr(br+1)}
            v_cvt_pk_f16_f32 {vr(Bo[Tt]+1)}, {vr(br+2)}, {vr(br+3)}
            v_cvt_pk_f16_f32 {vr(Bo[Tt]+2)}, {vr(bi)}, {vr(bi+1)}
            v_cvt_pk_f16_f32 {vr(Bo[Tt]+3)}, {vr(bi+2)}, {vr(bi+3)}''')
        O = t(40)
        e(f'''v_mfma_f32_16x16x32_f16 {vr(O,4)}, {vr(RA2,4)}, {vr(Bo[0],4)}, 0
        v_mfma_f32_16x16x32_f16 {vr(O,4)}, {vr(RA2+4,4)}, {vr(Bo[1],4)}, {vr(O,4)}''')
        e(f'''v_cvt_pk_f16_f32 {vr(t(44))}, {vr(O)}, {vr(O+1)}
        v_cvt_pk_f16_f32 {vr(t(45))}, {vr(O+2)}, {vr(O+3)}
        ds_write_b16 {vr(lH)}, {vr(t(44))}
        ds_write_b16_d16_hi {vr(lH+1)}, {vr(t(44))}
        ds_write_b16 {vr(lH+2)}, {vr(t(45))}
        ds_write_b16_d16_hi {vr(lH+3)}, {vr(t(45))}''')
        if init_check:
            lw = g.lab('nochk'); lp = g.lab('chk')
            e(f'''s_cmp_lg_u32 {sr(sW)}, 0
            s_cbranch_scc1 {lw}
            s_mov_b32 {sr(sCnt)}, 0
            s_waitcnt vmcnt(0)
            {lp}:
            v_cmp_ne_u32 vcc, 1, {vr(t(61))}
            s_cbranch_vccz {lw}
            s_add_u32 {sr(sCnt)}, {sr(sCnt)}, 1
            s_cmp_gt_u32 {sr(sCnt)}, {LIMIT}
            s_cbranch_scc1 L_done
            s_sleep 8
            buffer_load_dword {vr(t(61))}, {vr(t(60))}, {sr(sT4,4)}, 0 offen sc1
            s_waitcnt vmcnt(0)
            s_branch {lp}
            {lw}:''')
        e(f'''s_waitcnt vmcnt(0) lgkmcnt(0)
        s_barrier
        ds_read_b64 {vr(t(46),2)}, {vr(lG)} offset:{HIMG}
        s_mov_b32 {sr(sOff)}, {dst_off}
        s_waitcnt lgkmcnt(0)
        buffer_store_dwordx2 {vr(t(46),2)}, {vr(aP8)}, {sr(sWS,4)}, {sr(sOff)} offen sc1''')

    def column(src_off, dst_off):
        P = t(0)
        e(f's_waitcnt vmcnt(0)\ns_mov_b32 {sr(sOff)}, {src_off}')
        poll(f'buffer_load_dwordx2 {vr(P,2)}, {vr(aS8)}, {sr(sWS,4)}, {sr(sOff)} offen sc1', [P, P+1])
        stamp()
        e(f'''ds_write_b16 {vr(lC0)}, {vr(P)}
        ds_write_b16_d16_hi {vr(lC1)}, {vr(P)} offset:16
        ds_write_b16 {vr(lC1)}, {vr(P+1)} offset:32
        ds_write_b16_d16_hi {vr(lC1)}, {vr(P+1)} offset:48
        s_waitcnt lgkmcnt(0)
        s_barrier''')
        A = t(4)
        for kap in range(4): e(f'ds_read_b128 {vr(A+4*kap,4)}, {vr(lCr)} offset:{1024*kap}')
        Dd = t(20)
        for kap in range(4):
            e(f's_waitcnt lgkmcnt({3-kap})')
            e(f'v_mfma_f32_16x16x32_f16 {vr(Dd,4)}, {vr(A+4*kap,4)}, {vr(CB1+4*kap,4)}, {"0" if kap==0 else vr(Dd,4)}')
        Bb = t(24); br, bi = t(28), t(32)
        for i in range(4): e(f'v_mov_b32_dpp {vr(Bb+i)}, {vr(Dd+i)} row_ror:8 {DPP}')
        for h in range(2):
            e(f'''v_pk_mul_f32 {vr(br+2*h,2)}, {vr(Dd+2*h,2)}, {vr(CK+2*h,2)}
            v_pk_mul_f32 {vr(bi+2*h,2)}, {vr(Dd+2*h,2)}, {vr(CK+8+2*h,2)}
            v_pk_fma_f32 {vr(br+2*h,2)}, {vr(Bb+2*h,2)}, {vr(CK+4+2*h,2)}, {vr(br+2*h,2)}
            v_pk_fma_f32 {vr(bi+2*h,2)}, {vr(Bb+2*h,2)}, {vr(CK+12+2*h,2)}, {vr(bi+2*h,2)}''')
        Bo = t(36); O = t(40)
        e(f'''v_cvt_pk_f16_f32 {vr(Bo)}, {vr(br)}, {vr(br+1)}
        v_cvt_pk_f16_f32 {vr(Bo+1)}, {vr(br+2)}, {vr(br+3)}
        v_cvt_pk_f16_f32 {vr(Bo+2)}, {vr(bi)}, {vr(bi+1)}
        v_cvt_pk_f16_f32 {vr(Bo+3)}, {vr(bi+2)}, {vr(bi+3)}
        v_mfma_f32_16x16x32_f16 {vr(O,4)}, {vr(CA2,4)}, {vr(Bo,4)}, 0
        v_cvt_pk_f16_f32 {vr(t(44))}, {vr(O)}, {vr(O+1)}
        v_cvt_pk_f16_f32 {vr(t(45))}, {vr(O+2)}, {vr(O+3)}
        ds_write_b16 {vr(lCo)}, {vr(t(44))}
        ds_write_b16_d16_hi {vr(lCo+1)}, {vr(t(44))}
        ds_write_b16 {vr(lCo+2)}, {vr(t(45))}
        ds_write_b16_d16_hi {vr(lCo+3)}, {vr(t(45))}
        s_waitcnt lgkmcnt(0)
        s_barrier
        ds_read_b64 {vr(t(46),2)}, {vr(lG)} offset:{COUT}
        s_mov_b32 {sr(sOff)}, {dst_off}
        s_waitcnt lgkmcnt(0)
        buffer_store_dwordx2 {vr(t(46),2)}, {vr(aP8)}, {sr(sWS,4)}, {sr(sOff)} offen sc1''')

    def row_input(src_off):
        P = t(0)
        e(f's_waitcnt vmcnt(0)\ns_mov_b32 {sr(sOff)}, {src_off}')
        poll(f'buffer_load_dwordx4 {vr(P,4)}, {vr(aS16)}, {sr(sWS,4)}, {sr(sOff)} offen sc1', [P, P+1, P+2, P+3])
        stamp()
        lm = g.lab('mir'); lj = g.lab('join')
        def wr(slot, areg, off):
            op = 'ds_write_b16' if slot % 2 == 0 else 'ds_write_b16_d16_hi'
            e(f'{op} {vr(areg)}, {vr(P + slot//2)} offset:{YIMG + off}')
        e(f's_cmp_ge_u32 {sr(sW)}, 4\ns_cbranch_scc1 {lm}')
        wr(0, lYa, 0); wr(4, lYb, 0)
        for sl in (1, 2, 3, 5, 6, 7): wr(sl, lY, sl*1024)
        e(f's_branch {lj}\n{lm}:')
        wr(0, lYa, 0); wr(4, lYb, 0)
        for sl in (1, 2, 3, 5, 6, 7): wr(sl, lY, ((8-sl) & 7)*1024)
        e(f'''{lj}:
        s_waitcnt lgkmcnt(0)
        s_barrier
        ds_read_b128 {vr(P,4)}, {vr(lYr)} offset:{YIMG}
        s_waitcnt lgkmcnt(0)''')
        for k in range(4):
            e(f'''v_fma_mix_f32 {vr(X+2*k)}, {vr(P+k)}, {sr(s16)}, {vr(X+2*k)} op_sel:[0,0,0] op_sel_hi:[1,0,0]
            v_fma_mix_f32 {vr(X+2*k+1)}, {vr(P+k)}, {sr(s16)}, {vr(X+2*k+1)} op_sel:[1,0,0] op_sel_hi:[1,0,0]''')

    def publish_candidate(cand):
        k = vKey
        e(f'''v_ashrrev_i32 {vr(t(0))}, 31, {vr(vR)}
        v_or_b32 {vr(t(0))}, 0x80000000, {vr(t(0))}
        v_xor_b32 {vr(k)}, {vr(vR)}, {vr(t(0))}
        v_and_b32 {vr(k)}, 0xfffff800, {vr(k)}
        v_or_b32 {vr(k)}, {sr(sRow)}, {vr(k)}
        s_lshl_b32 {sr(sT)}, {sr(sW)}, 2
        v_mov_b32 {vr(t(1))}, {sr(sT)}
        ds_write_b32 {vr(t(1))}, {vr(k)} offset:{AM}''')
        for j in range(4): e(f'v_pk_add_f32 {vr(X+2*j,2)}, {vr(X+2*j,2)}, {vr(XN+2*j,2)}')
        for j in range(4): e(f'v_cvt_pk_bf16_f32 {vr(t(12)+j)}, {vr(XN+2*j)}, {vr(XN+2*j+1)}')
        e(f'''v_mov_b32 {vr(t(1))}, 0
        s_waitcnt lgkmcnt(0)
        s_barrier
        ds_read_b128 {vr(t(4),4)}, {vr(t(1))} offset:{AM}
        ds_read_b128 {vr(t(8),4)}, {vr(t(1))} offset:{AM+16}
        s_waitcnt lgkmcnt(0)
        v_max3_u32 {vr(t(4))}, {vr(t(4))}, {vr(t(5))}, {vr(t(6))}
        v_max3_u32 {vr(t(4))}, {vr(t(4))}, {vr(t(7))}, {vr(t(8))}
        v_max3_u32 {vr(t(4))}, {vr(t(4))}, {vr(t(9))}, {vr(t(10))}
        v_max_u32 {vr(t(4))}, {vr(t(4))}, {vr(t(11))}
        v_cmp_eq_u32 vcc, {vr(t(4))}, {vr(k)}''')
        ln = g.lab('nopub')
        e(f'''s_cbranch_vccz {ln}
        s_lshl_b32 {sr(sT)}, {sr(sRho)}, 12
        s_add_u32 {sr(sOff)}, {sr(sT)}, {cand}
        v_lshlrev_b32 {vr(t(2))}, 4, {vr(vL)}
        v_lshlrev_b32 {vr(t(3))}, 5, {vr(vL)}
        buffer_store_dwordx4 {vr(t(12),4)}, {vr(t(2))}, {sr(sWS,4)}, {sr(sOff)} offen offset:128 sc1
        buffer_store_dwordx4 {vr(X,4)}, {vr(t(3))}, {sr(sWS,4)}, {sr(sOff)} offen offset:1152 sc1
        buffer_store_dwordx4 {vr(X+4,4)}, {vr(t(3))}, {sr(sWS,4)}, {sr(sOff)} offen offset:1168 sc1
        v_mov_b32 {vr(t(1))}, 0
        s_mov_b64 exec, 1
        buffer_store_dword {vr(k)}, {vr(t(1))}, {sr(sWS,4)}, {sr(sOff)} offen sc1
        s_mov_b64 exec, -1
        {ln}:''')

    def global_argmax(cand):
        K = t(0)
        e(f's_waitcnt vmcnt(0)\ns_mov_b32 {sr(sOff)}, {cand}')
        poll(f'buffer_load_dword {vr(K)}, {vr(aHdr)}, {sr(sWS,4)}, {sr(sOff)} offen sc1', [K])
        wave_reduce([K], [t(1)], op='v_max_u32')
        e(f'''s_lshl_b32 {sr(sT)}, {sr(sW)}, 2
        v_mov_b32 {vr(t(1))}, {sr(sT)}
        ds_write_b32 {vr(t(1))}, {vr(K)} offset:{AM+32}
        v_mov_b32 {vr(t(1))}, 0
        s_waitcnt lgkmcnt(0)
        s_barrier
        ds_read_b128 {vr(t(4),4)}, {vr(t(1))} offset:{AM+32}
        s_waitcnt lgkmcnt(0)
        v_max3_u32 {vr(t(4))}, {vr(t(4))}, {vr(t(5))}, {vr(t(6))}
        v_max_u32 {vr(t(4))}, {vr(t(4))}, {vr(t(7))}
        v_readfirstlane_b32 {sr(sStar)}, {vr(t(4))}''')
        e(f'''v_and_b32 {vr(t(5))}, 0xfffff800, {vr(t(4))}
        v_or_b32 {vr(t(5))}, 0x400, {vr(t(5))}
        v_ashrrev_i32 {vr(t(6))}, 31, {vr(t(5))}
        v_not_b32 {vr(t(6))}, {vr(t(6))}
        v_or_b32 {vr(t(6))}, 0x80000000, {vr(t(6))}
        v_xor_b32 {vr(t(5))}, {vr(t(5))}, {vr(t(6))}
        v_mul_f32 {vr(t(5))}, {fbits(-1.4426950408889634)}, {vr(t(5))}
        v_exp_f32 {vr(t(5))}, {vr(t(5))}
        v_add_f32 {vr(t(5))}, 1.0, {vr(t(5))}
        v_rcp_f32 {vr(vSig)}, {vr(t(5))}''')
        e(f'''s_and_b32 {sr(sStar)}, {sr(sStar)}, 2047
        s_lshr_b32 {sr(sT)}, {sr(sStar)}, 2
        s_sub_u32 {sr(sT2)}, 511, {sr(sT)}
        s_sub_u32 {sr(sT3)}, 512, {sr(sT)}
        s_and_b32 {sr(sT3)}, {sr(sT3)}, 255
        s_and_b32 {sr(sRec)}, {sr(sStar)}, 3
        s_cmp_eq_u32 {sr(sRec)}, 0
        s_cselect_b32 {sr(sT2)}, {sr(sT3)}, {sr(sT2)}
        s_cmp_lt_u32 {sr(sStar)}, 1024
        s_cselect_b32 {sr(sT2)}, {sr(sT)}, {sr(sT2)}
        s_lshl_b32 {sr(sRec)}, {sr(sT2)}, 12
        s_add_u32 {sr(sRec)}, {sr(sRec)}, {cand}''')

    def ffn_setup():
        e(f'''v_lshlrev_b32 {vr(t(40))}, 5, v0
        ds_write_b128 {vr(t(40))}, {vr(GWk,4)} offset:{GU}
        ds_write_b128 {vr(t(40))}, {vr(UWk,4)} offset:{GU+16}
        s_lshl_b32 {sr(sT)}, {sr(sW)}, 10
        v_lshlrev_b32 {vr(t(41))}, 4, {vr(vL)}
        v_add_u32 {vr(t(41))}, {sr(sT)}, {vr(t(41))}
        ds_write_b128 {vr(t(41))}, {vr(DWk,4)} offset:{DN}
        s_waitcnt lgkmcnt(0)
        s_barrier''')
        e(f'''v_lshlrev_b32 {vr(t(40))}, 3, {vr(vQ)}
        v_lshrrev_b32 {vr(t(41))}, 2, {vr(vN)}
        v_add_u32 {vr(t(40))}, {vr(t(40))}, {vr(t(41))}
        s_lshl_b32 {sr(sT)}, {sr(sW)}, 6
        v_add_u32 {vr(t(40))}, {sr(sT)}, {vr(t(40))}
        v_lshlrev_b32 {vr(t(40))}, 5, {vr(t(40))}
        v_and_b32 {vr(t(41))}, 3, {vr(vN)}
        v_lshlrev_b32 {vr(t(41))}, 3, {vr(t(41))}
        v_add_u32 {vr(t(40))}, {vr(t(40))}, {vr(t(41))}''')
        for kap in range(2):
            for h in range(2):
                e(f'ds_read_b64_tr_b16 {vr(FA+4*kap+2*h,2)}, {vr(t(40))} offset:{GU + kap*1024 + h*128}')
        e(f'v_lshlrev_b32 {vr(t(41))}, 1, v0')
        for f in range(8): e(f'v_mov_b32 {vr(FD+f)}, 0')
        for f in range(8): e(f'ds_read_u16_d16_hi {vr(FD+f)}, {vr(t(41))} offset:{DN + f*1024}')
        e('s_waitcnt lgkmcnt(0)')

    def ffn(part):
        ln = g.lab('noffn'); lj = g.lab('ffnj')
        XS = t(0)
        e(f'''s_cmp_ge_u32 {sr(sRho)}, {NF}
        s_cbranch_scc1 {ln}
        s_lshl_b32 {sr(sT)}, {sr(sW)}, 7
        v_lshlrev_b32 {vr(t(20))}, 4, {vr(vQ)}
        v_add_u32 {vr(t(20))}, {sr(sT)}, {vr(t(20))}''')
        poll(f'buffer_load_dwordx4 {vr(XS,4)}, {vr(t(20))}, {sr(sWS,4)}, {sr(sRec)} offen offset:128 sc1\n'
             f'buffer_load_dwordx4 {vr(XS+4,4)}, {vr(t(20))}, {sr(sWS,4)}, {sr(sRec)} offen offset:192 sc1', range(XS, XS+8))
        Pp = t(8)
        e(f'''v_mfma_f32_16x16x32_bf16 {vr(Pp,4)}, {vr(FA,4)}, {vr(XS,4)}, 0
        v_mfma_f32_16x16x32_bf16 {vr(Pp,4)}, {vr(FA+4,4)}, {vr(XS+4,4)}, {vr(Pp,4)}
        v_lshlrev_b32 {vr(t(21))}, 7, {vr(vQ)}
        s_lshl_b32 {sr(sT)}, {sr(sW)}, 2
        v_add_u32 {vr(t(21))}, {sr(sT)}, {vr(t(21))}
        s_mov_b32 exec_lo, 0x00010001
        s_mov_b32 exec_hi, 0x00010001''')
        for i in range(4): e(f'ds_write_b32 {vr(t(21))}, {vr(Pp+i)} offset:{FP + 32*i}')
        e(f'''s_mov_b64 exec, -1
        s_waitcnt lgkmcnt(0)
        s_barrier
        v_lshlrev_b32 {vr(t(21))}, 2, {vr(vL)}
        ds_read_b32 {vr(t(12))}, {vr(t(21))} offset:{FP}
        ds_read_b32 {vr(t(13))}, {vr(t(21))} offset:{FP+256}
        s_waitcnt lgkmcnt(0)''')
        gg, uu = t(12), t(13)
        for mod in ('quad_perm:[1,0,3,2]', 'quad_perm:[2,3,0,1]', 'row_half_mirror'):
            e(f'v_add_f32_dpp {vr(gg)}, {vr(gg)}, {vr(gg)} {mod} {DPP}\nv_add_f32_dpp {vr(uu)}, {vr(uu)}, {vr(uu)} {mod} {DPP}')
        e(f'''v_mul_f32 {vr(t(14))}, {fbits(-1.4426950408889634)}, {vr(gg)}
        v_exp_f32 {vr(t(14))}, {vr(t(14))}
        v_mul_f32 {vr(uu)}, {vr(uu)}, {vr(vSig)}
        v_add_f32 {vr(t(14))}, 1.0, {vr(t(14))}
        v_rcp_f32 {vr(t(14))}, {vr(t(14))}
        v_mul_f32 {vr(gg)}, {vr(gg)}, {vr(uu)}
        v_mul_f32 {vr(gg)}, {vr(gg)}, {vr(t(14))}''')
        for f in range(8): e(f'v_readlane_b32 {sr(sH+f)}, {vr(gg)}, {8*f}')
        e(f'v_mul_f32 {vr(t(15))}, {sr(sH)}, {vr(FD)}')
        for f in range(1, 8): e(f'v_fmac_f32 {vr(t(15))}, {sr(sH+f)}, {vr(FD+f)}')
        e(f'''s_mov_b32 {sr(sOff)}, {part}
        buffer_store_dword {vr(t(15))}, {vr(aP4)}, {sr(sWS,4)}, {sr(sOff)} offen sc1
        s_branch {lj}
        {ln}:
        s_barrier
        {lj}:''')

    def reducer(part, final):
        ln = g.lab('nored')
        e(f'''s_cmp_ge_u32 {sr(sWg)}, 32
        s_cbranch_scc1 {ln}
        s_waitcnt vmcnt(0)
        v_lshrrev_b32 {vr(t(20))}, 2, v0
        v_lshlrev_b32 {vr(t(21))}, 11, {vr(t(20))}
        v_and_b32 {vr(t(22))}, 3, v0
        v_lshlrev_b32 {vr(t(22))}, 4, {vr(t(22))}
        s_lshl_b32 {sr(sT)}, {sr(sWg)}, 6
        v_add3_u32 {vr(t(21))}, {vr(t(21))}, {vr(t(22))}, {sr(sT)}
        v_add_u32 {vr(t(23))}, {128*2048}, {vr(t(21))}
        v_mov_b32 {vr(t(24))}, 0x7f000000
        v_cmp_gt_u32 vcc, {NF-128}, {vr(t(20))}
        v_cndmask_b32 {vr(t(23))}, {vr(t(24))}, {vr(t(23))}, vcc
        s_mov_b32 {sr(sOff)}, {part}''')
        A, B2 = t(0), t(4)
        poll(f'buffer_load_dwordx4 {vr(A,4)}, {vr(t(21))}, {sr(sWS,4)}, {sr(sOff)} offen sc1\n'
             f'buffer_load_dwordx4 {vr(B2,4)}, {vr(t(23))}, {sr(sWS,4)}, {sr(sOff)} offen sc1', range(A, A+8))
        e(f'v_pk_add_f32 {vr(A,2)}, {vr(A,2)}, {vr(B2,2)}\nv_pk_add_f32 {vr(A+2,2)}, {vr(A+2,2)}, {vr(B2+2,2)}')
        for sh in (4, 8):
            for i in range(4): e(f'v_add_f32_dpp {vr(A+i)}, {vr(A+i)}, {vr(A+i)} row_ror:{sh} {DPP}')
        for sw in ('v_permlane16_swap_b32', 'v_permlane32_swap_b32'):
            for i in range(4): e(f'v_mov_b32 {vr(B2+i)}, {vr(A+i)}')
            for i in range(4): e(f'{sw} {vr(A+i)}, {vr(B2+i)}')
            for i in range(4): e(f'v_add_f32 {vr(A+i)}, {vr(A+i)}, {vr(B2+i)}')
        e(f'''s_lshl_b32 {sr(sT)}, {sr(sW)}, 6
        v_add_u32 {vr(t(24))}, {sr(sT)}, {vr(t(22))}
        s_mov_b64 exec, 15
        ds_write_b128 {vr(t(24))}, {vr(A,4)} offset:{RED}
        s_mov_b64 exec, -1
        s_waitcnt lgkmcnt(0)
        s_barrier
        s_cmp_lg_u32 {sr(sW)}, 0
        s_cbranch_scc1 {ln}''')
        for w in range(8): e(f'ds_read_b128 {vr(t(28)+4*w,4)}, {vr(t(22))} offset:{RED + 64*w}')
        if final:
            e(f'''s_lshl_b32 {sr(sT)}, {sr(sWg)}, 6
            v_add_u32 {vr(t(25))}, {sr(sT)}, {vr(t(22))}''')
            poll(f'buffer_load_dwordx4 {vr(B2,4)}, {vr(t(25))}, {sr(sWS,4)}, {sr(sRec)} offen offset:1152 sc1', range(B2, B2+4))
        e('s_waitcnt lgkmcnt(0)')
        for w in range(1, 8):
            e(f'v_pk_add_f32 {vr(t(28),2)}, {vr(t(28),2)}, {vr(t(28)+4*w,2)}\nv_pk_add_f32 {vr(t(30),2)}, {vr(t(30),2)}, {vr(t(30)+4*w,2)}')
        if final:
            e(f'''v_pk_add_f32 {vr(t(28),2)}, {vr(t(28),2)}, {vr(B2,2)}
            v_pk_add_f32 {vr(t(30),2)}, {vr(t(30),2)}, {vr(B2+2,2)}
            v_cvt_pk_bf16_f32 {vr(t(28))}, {vr(t(28))}, {vr(t(29))}
            v_cvt_pk_bf16_f32 {vr(t(29))}, {vr(t(30))}, {vr(t(31))}
            s_lshl_b32 {sr(sT)}, {sr(sStar)}, 10
            s_lshl_b32 {sr(sT2)}, {sr(sWg)}, 5
            s_add_u32 {sr(sT)}, {sr(sT)}, {sr(sT2)}
            v_lshrrev_b32 {vr(t(25))}, 1, {vr(t(22))}
            v_add_u32 {vr(t(25))}, {sr(sT)}, {vr(t(25))}
            s_mov_b64 exec, 15
            buffer_store_dwordx2 {vr(t(28),2)}, {vr(t(25))}, {sr(sOUT,4)}, 0 offen
            s_mov_b64 exec, -1''')
        else:
            e(f'''s_lshl_b32 {sr(sT)}, {sr(sWg)}, 6
            v_add_u32 {vr(t(25))}, {sr(sT)}, {vr(t(22))}
            s_mov_b32 {sr(sOff)}, {UPD0}
            s_mov_b64 exec, 15
            buffer_store_dwordx4 {vr(t(28),4)}, {vr(t(25))}, {sr(sWS,4)}, {sr(sOff)} offen sc1
            s_mov_b64 exec, -1''')
        e(f'{ln}:')

    GWk, UWk, DWk = CB1, CB1 + 4, CB1 + 8
    e(f's_waitcnt vmcnt({NAFTER_B})')
    stamp()
    unpack_bf16(X, XRAW); unpack_bf16(WR, WRAW)
    e(f'''v_pk_add_f32 {vr(t(40),2)}, {vr(WR,2)}, {vr(WR+2,2)}
    v_pk_add_f32 {vr(t(42),2)}, {vr(WR+4,2)}, {vr(WR+6,2)}
    v_pk_add_f32 {vr(t(40),2)}, {vr(t(40),2)}, {vr(t(42),2)}
    v_add_f32 {vr(vSW)}, {vr(t(40))}, {vr(t(41))}''')
    wave_reduce([vSW], [t(40)])
    e('s_waitcnt vmcnt(0)')
    for k in range(4):
        e(f'v_mov_b32 {vr(GWk+k)}, {vr(GW+k)}\nv_mov_b32 {vr(UWk+k)}, {vr(UW+k)}\nv_mov_b32 {vr(DWk+k)}, {vr(DW+k)}')
    stats(False)
    transform(HB0, init_check=True)
    stamp()
    finish_here('P1')
    ffn_setup()
    col_consts()
    column(HB0, YB0)
    stamp()
    finish_here('P2')
    row_input(YB0)
    stats(True)
    publish_candidate(CAND0)
    stamp()
    finish_here('P3a')
    global_argmax(CAND0)
    stamp()
    ffn(PART0)
    stamp()
    reducer(PART0, False)
    stamp()
    e(f'''s_waitcnt vmcnt(0)
    s_sleep 24
    v_lshlrev_b32 {vr(t(20))}, 5, {vr(vL)}
    s_mov_b32 {sr(sOff)}, {UPD0}''')
    poll(f'buffer_load_dwordx4 {vr(t(0),4)}, {vr(t(20))}, {sr(sWS,4)}, {sr(sOff)} offen sc1\n'
         f'buffer_load_dwordx4 {vr(t(4),4)}, {vr(t(20))}, {sr(sWS,4)}, {sr(sOff)} offen offset:16 sc1', range(t(0), t(8)), backoff=8)
    ln = g.lab('notown')
    e(f's_cmp_lg_u32 {sr(sStar)}, {sr(sRow)}\ns_cbranch_scc1 {ln}')
    for k in range(4): e(f'v_pk_add_f32 {vr(X+2*k,2)}, {vr(X+2*k,2)}, {vr(t(2*k),2)}')
    e(f'{ln}:')
    stamp()
    stats(False)
    transform(HB1)
    stamp()
    finish_here('P3')
    column(HB1, YB1)
    stamp()
    finish_here('P4')
    row_input(YB1)
    stats(True)
    publish_candidate(CAND1)
    stamp()
    global_argmax(CAND1)
    stamp()
    ln = g.lab('noout')
    e(f's_cmp_eq_u32 {sr(sStar)}, {sr(sRow)}\ns_cbranch_scc1 {ln}')
    for k in range(4): e(f'v_cvt_pk_bf16_f32 {vr(t(48)+k)}, {vr(X+2*k)}, {vr(X+2*k+1)}')
    e(f'buffer_store_dwordx4 {vr(t(48),4)}, {vr(aX)}, {sr(sOUT,4)}, 0 offen\n{ln}:')
    ffn(PART1)
    stamp()
    reducer(PART1, True)
    stamp()
    e('L_done:')
    if stamps:
        ls = g.lab('nost')
        e(f'''s_cmp_ge_u32 s2, 256
        s_cbranch_scc1 {ls}
        s_waitcnt vmcnt(0)
        s_mov_b64 exec, -1
        s_lshl_b32 {sr(sT)}, {sr(sWg)}, 11
        s_lshl_b32 {sr(sT2)}, {sr(sW)}, 8
        s_add_u32 {sr(sT)}, {sr(sT)}, {sr(sT2)}
        v_lshlrev_b32 {vr(t(0))}, 2, {vr(vL)}
        v_add_u32 {vr(t(0))}, {sr(sT)}, {vr(t(0))}
        s_mov_b32 {sr(sOff)}, {STAMP}
        buffer_store_dword {vr(vStamp)}, {vr(t(0))}, {sr(sWS,4)}, {sr(sOff)} offen
        {ls}:''')
    e('s_endpgm')
    return g

def render(g):
    lines, added = pad(g.L)
    body = '\n'.join(('' if l.endswith(':') else '    ') + l for l in lines)
    ninstr = sum(1 for l in lines if not l.endswith(':'))
    hdr = f"""; FNet (2-D real DFT via Hartley factorisation on MFMA) + top-1 routed SwiGLU, two layers, one persistent launch.
; @launch grid=(256,1,1) block=(512,1,1) lds={LDS_SIZE}
.amdgcn_target "amdgcn-amd-amdhsa--gfx950"
.text
.globl {NAME}
.p2align 8
.type {NAME},@function
{NAME}:
"""
    tail = f"""
L_code_end:
.section .rodata,"a"
.p2align 6
.amdhsa_kernel {NAME}
  .amdhsa_next_free_vgpr 256
  .amdhsa_next_free_sgpr 102
  .amdhsa_accum_offset 256
  .amdhsa_group_segment_fixed_size 0
  .amdhsa_kernarg_size 104
  .amdhsa_user_sgpr_count 2
  .amdhsa_user_sgpr_kernarg_segment_ptr 1
  .amdhsa_system_sgpr_workgroup_id_x 1
.end_amdhsa_kernel
"""
    return hdr + body + tail, ninstr, added

if __name__ == '__main__':
    import argparse
    ap = argparse.ArgumentParser()
    ap.add_argument('-o', default='interleave_layers__spectral_fnet__moe_arch_mod__prompt.s')
    ap.add_argument('--stop'); ap.add_argument('--stamps', action='store_true')
    a = ap.parse_args()
    g = build(a.stop, a.stamps)
    txt, n, added = render(g)
    open(a.o, 'w').write(txt)
    print(f'{n} instructions, {added} nop slots added, vgpr high {g.v.n}, sgpr high {g.s.n}')
```

```python
import sys, struct, math
from asmlib import pad, Alloc

NAME = "interleave_layers__spectral_fnet__moe_arch_mod__prompt_kernel"
HB0, YB0, HB1, YB1 = 0x000000, 0x100000, 0x200000, 0x300000
CAND0, CAND1 = 0x400000, 0x500000
PART0, PART1 = 0x600000, 0x680000
UPD0 = 0x700000
KB0, KB1 = 0x701000, 0x702000
STAMP = 0x780000
WS_SIZE = 0x800000
NF = 172
RED0 = 8
LIMIT = 40000
YIMG = 0
GIMG = 5120
RIMG = 9216
HIMG = 13312
CIN = 17472
COUT = 21568
KIMG = 25664
FP = 26752
AM = 27008
RED = 27072
GU = 27392
DN = GU + 16384
LDS_SIZE = DN + 8192

def fbits(x): return '0x%08x' % struct.unpack('<I', struct.pack('<f', x))[0]

class G:
    def __init__(self, stop=None, stamps=False):
        self.L = []; self.stop = stop; self.stamps = stamps; self.uid = 0; self.nstamp = 0; self.names = []
        self.v = Alloc(1, 256, 'v'); self.s = Alloc(3, 100, 's')
    def e(self, text):
        for l in text.strip('\n').split('\n'):
            l = l.strip()
            if l: self.L.append(l)
    def lab(self, p):
        self.uid += 1; return f'L_{p}_{self.uid}'

def vr(a, n=1): return f'v{a}' if n == 1 else f'v[{a}:{a+n-1}]'
def sr(a, n=1): return f's{a}' if n == 1 else f's[{a}:{a+n-1}]'
DPP = 'row_mask:0xf bank_mask:0xf'
PKB = 'op_sel:[0,0,1] op_sel_hi:[1,0,1]'

def build(stop=None, stamps=False, opt=None):
    opt = opt or {}
    g = G(stop, stamps); e = g.e; V = g.v; S = g.s
    sWS = S('ws', 4, 4); sXS = S('xsrd', 4, 4); sOUT = S('out', 4, 4); sT4 = S('tmpsrd', 4, 4)
    sRho = S('rho'); sW = S('w'); sRowU = S('rowu'); sRowV = S('rowv'); sVs = S('vs'); sOff = S('off'); sCnt = S('cnt')
    sT = S('t'); sT2 = S('t2'); sT3 = S('t3'); s16 = S('k16'); sStar = S('star'); sRec = S('rec'); sWg = S('wg'); sSW = S('sw')
    sCu = S('cu', 2, 2); sCv = S('cv', 2, 2); sEx = S('exsave', 2, 2)
    sAu = S('au', 2, 2); sAv = S('av', 2, 2); sKu = S('ku', 2, 2); sKv = S('kv', 2, 2); sKeyU = S('keyu'); sKeyV = S('keyv'); sKey = S('key')
    sH = S('h', 8, 2); sTm = S('tm', 2, 2); sPC = S('pc', 2, 2); sM2 = S('m2', 2, 2); sPhi = S('phi'); sSgn = S('sgn')
    sKA = S('ka', 16, 4); sKB = S('kb', 8, 4); sKC = S('kc', 2, 2)
    vL = V('lane'); vN = V('n'); vQ = V('q')
    XU = V('XU', 8, 4); XV = V('XV', 8, 4); WU = V('WU', 8, 2); WV = V('WV', 8, 2)
    RB1 = V('RB1', 16, 4); RC = V('RC', 8, 2); RS = V('RS', 8, 2); RA2 = V('RA2', 4, 4)
    CB1 = V('CB1', 8, 4); CK = V('CK', 32, 2); CA2 = V('CA2', 16, 4)
    FA = V('FA', 16, 4); FD = V('FD', 16, 4)
    aU = V('aU'); aV = V('aV'); aP16 = V('aP16'); aS16 = V('aS16'); aHdr = V('aHdr'); aP8 = V('aP8')
    lYd = V('lYd'); lYm = V('lYm'); lYm4 = V('lYm4'); lRow = V('lRow'); lTr = V('lTr'); lRw = V('lRw')
    lH = V('lH', 2); lHf = V('lHf', 2); lG = V('lG')
    lCa = V('lCa'); lCb = V('lCb'); lCc = V('lCc'); lCr = V('lCr'); lCo = V('lCo', 3)
    vRowH = V('rowh'); vSig = V('sig'); vSent = V('sent'); vCa = V('cosa'); vSa = V('sina'); vStamp = V('stamp')
    FX = V('FX', 8, 4); FO = V('FO', 8, 4)
    NT = 256 - ((V.n + 3)//4*4)
    T = V('T', NT, 4)
    def t(i):
        assert i < NT, i
        return T + i
    DU, DV = t(0), t(8)

    def stamp(name=''):
        if not g.stamps: return
        e(f'''s_memrealtime {sr(sTm,2)}
        s_waitcnt lgkmcnt(0)
        v_writelane_b32 {vr(vStamp)}, {sr(sTm)}, {g.nstamp}''')
        g.nstamp += 1; g.names.append(name)
    def finish_here(tag):
        if g.stop == tag: e('s_branch L_done')

    def sentinel(regs):
        regs = list(regs); tm = vSent
        if len(regs) == 1:
            e(f'v_cmp_eq_u32 vcc, -1, {vr(regs[0])}')
        else:
            if len(regs) >= 3:
                e(f'v_max3_u32 {vr(tm)}, {vr(regs[0])}, {vr(regs[1])}, {vr(regs[2])}'); rest = regs[3:]
            else:
                e(f'v_max_u32 {vr(tm)}, {vr(regs[0])}, {vr(regs[1])}'); rest = []
            while len(rest) >= 2:
                e(f'v_max3_u32 {vr(tm)}, {vr(tm)}, {vr(rest[0])}, {vr(rest[1])}'); rest = rest[2:]
            if rest: e(f'v_max_u32 {vr(tm)}, {vr(tm)}, {vr(rest[0])}')
            e(f'v_cmp_eq_u32 vcc, -1, {vr(tm)}')
    def poll(load, regs, backoff=2, preloaded=False):
        lp = g.lab('poll'); ok = g.lab('ok')
        if preloaded:
            sentinel(regs)
            e(f's_cbranch_vccnz {lp}\n{ok}:')
            g.tail.append((lp, ok, load, list(regs), backoff))
        else:
            e(load); e('s_waitcnt vmcnt(0)')
            sentinel(regs)
            e(f's_cbranch_vccnz {lp}\n{ok}:')
            g.tail.append((lp, ok, load, list(regs), backoff))
    g.tail = []
    def emit_tail():
        for lp, ok, load, regs, backoff in g.tail:
            l2 = lp + '_r'
            e(f'{lp}:\ns_mov_b32 {sr(sCnt)}, 0\n{l2}:\ns_sleep {backoff}')
            e(load)
            e(f'''s_add_u32 {sr(sCnt)}, {sr(sCnt)}, 1
            s_cmp_gt_u32 {sr(sCnt)}, {LIMIT}
            s_cbranch_scc1 L_done
            s_waitcnt vmcnt(0)''')
            sentinel(regs)
            e(f's_cbranch_vccnz {l2}\ns_branch {ok}')
    def srd(dst, ptr, size):
        e(f'''s_mov_b32 {sr(dst)}, {sr(ptr)}
        s_mov_b32 {sr(dst+1)}, {sr(ptr+1)}
        s_mov_b32 {sr(dst+2)}, {size}
        s_mov_b32 {sr(dst+3)}, 0x00020000''')
    def ws_store(n, data, areg, region, extra=''):
        op = {1: 'buffer_store_dword', 2: 'buffer_store_dwordx2', 4: 'buffer_store_dwordx4'}[n]
        e(f's_mov_b32 {sr(sOff)}, {region}\n{op} {vr(data,n)}, {vr(areg)}, {sr(sWS,4)}, {sr(sOff)} offen sc1 {extra}')
    def ws_load_text(n, data, areg, soff, extra=''):
        op = {1: 'buffer_load_dword', 2: 'buffer_load_dwordx2', 4: 'buffer_load_dwordx4'}[n]
        return f'{op} {vr(data,n)}, {vr(areg)}, {sr(sWS,4)}, {soff} offen {extra} sc1'
    PZ = t(40)
    def poison_regs():
        for k in range(4): e(f'v_mov_b32 {vr(PZ+k)}, -1')

    e(f's_cmp_ge_u32 s2, 256\ns_cbranch_scc1 L_done')
    if stamps: e(f's_memrealtime {sr(sM2,2)}')
    e(f'''s_load_dwordx16 {sr(sKA,16)}, s[0:1], 0
    s_load_dwordx8 {sr(sKB,8)}, s[0:1], 64
    s_load_dwordx2 {sr(sKC,2)}, s[0:1], 96''')
    e(f'''s_getpc_b64 {sr(sPC,2)}
    L_pc:
    v_lshlrev_b32 {vr(t(0))}, 7, v0
    v_min_u32 {vr(t(0))}, L_code_end-L_pc-4, {vr(t(0))}
    global_load_dword {vr(vSig)}, {vr(t(0))}, {sr(sPC,2)}''')
    e(f'''s_mov_b32 {sr(sWg)}, s2
    s_and_b32 {sr(sT)}, s2, 7
    s_lshl_b32 {sr(sT)}, {sr(sT)}, 5
    s_lshr_b32 {sr(sRho)}, s2, 3
    s_or_b32 {sr(sRho)}, {sr(sRho)}, {sr(sT)}
    v_lshrrev_b32 {vr(t(1))}, 6, v0
    v_and_b32 {vr(vL)}, 63, v0
    v_readfirstlane_b32 {sr(sW)}, {vr(t(1))}
    v_lshlrev_b32 {vr(t(2))}, 4, {vr(vL)}
    v_sub_u32 {vr(t(3))}, 1008, {vr(t(2))}
    s_lshl_b32 {sr(sT)}, {sr(sRho)}, 2
    s_add_u32 {sr(sRowU)}, {sr(sT)}, {sr(sW)}
    s_sub_u32 {sr(sRowV)}, 2048, {sr(sRowU)}
    s_cmp_eq_u32 {sr(sRowU)}, 0
    s_cselect_b32 {sr(sRowV)}, 1024, {sr(sRowV)}
    s_lshl_b32 {sr(sT)}, {sr(sRowU)}, 10
    s_lshl_b32 {sr(sT2)}, {sr(sRowV)}, 10
    v_add_u32 {vr(aU)}, {sr(sT)}, {vr(t(2))}
    v_add_u32 {vr(aV)}, {sr(sT2)}, {vr(t(3))}
    s_lshl_b32 {sr(sT)}, {sr(sRho)}, 12
    v_lshlrev_b32 {vr(lG)}, 4, v0
    v_add_u32 {vr(aP16)}, {sr(sT)}, {vr(lG)}''')
    poison_regs()
    e('s_waitcnt lgkmcnt(0)')
    kx, kwr, kwg = sKA + 0, sKA + 12, sKA + 14
    kwu, kwd, kout, kdbg = sKB + 0, sKB + 2, sKB + 4, sKB + 6
    URAW, VRAW = t(8), t(12)
    WURAW, WVRAW = FX, FX + 4
    srd(sXS, kx, 2097152)
    e(f'''buffer_load_dwordx4 {vr(URAW,4)}, {vr(aU)}, {sr(sXS,4)}, 0 offen
    buffer_load_dwordx4 {vr(VRAW,4)}, {vr(aV)}, {sr(sXS,4)}, 0 offen''')
    srd(sWS, sKC, WS_SIZE)
    if stamps:
        e(f'v_mov_b32 {vr(vStamp)}, 0\nv_writelane_b32 {vr(vStamp)}, {sr(sM2)}, 0'); g.nstamp = 1; g.names.append('start')
    la = g.lab('nopois')
    e(f'''s_cmp_ge_u32 {sr(sWg)}, 64
    s_cbranch_scc1 {la}
    s_lshl_b32 {sr(sT)}, {sr(sWg)}, 14
    v_add_u32 {vr(t(4))}, {sr(sT)}, {vr(lG)}''')
    for k in range(4): ws_store(4, PZ, t(4), HB0 + 4096*k)
    e(f'{la}:')
    ws_store(4, PZ, aP16, YB0)
    e(f'''v_mov_b32 {vr(t(5))}, 0x7f000000
    v_cmp_gt_u32 vcc, 64, v0
    s_cmp_eq_u32 {sr(sRho)}, 0
    s_cselect_b64 {sr(sEx,2)}, vcc, 0
    v_cndmask_b32 {vr(t(5))}, {vr(t(5))}, {vr(lG)}, {sr(sEx,2)}''')
    ws_store(4, PZ, t(5), KB0)
    ws_store(4, PZ, t(5), KB1)
    srd(sT4, kwr, 1024)
    e(f'''buffer_load_dwordx4 {vr(WURAW,4)}, {vr(t(2))}, {sr(sT4,4)}, 0 offen
    buffer_load_dwordx4 {vr(WVRAW,4)}, {vr(t(3))}, {sr(sT4,4)}, 0 offen''')
    e(f'''s_sub_u32 {sr(sPhi)}, {sr(sRho)}, 1
    s_min_u32 {sr(sT)}, {sr(sPhi)}, {NF-1}''')
    srd(sT4, kwg, 1409024)
    e(f'''s_lshl_b32 {sr(sT2)}, {sr(sT)}, 4
    s_movk_i32 {sr(sT3)}, 2752
    v_mul_lo_u32 {vr(t(6))}, v0, {sr(sT3)}
    v_add_u32 {vr(t(6))}, {sr(sT2)}, {vr(t(6))}
    s_mov_b32 {sr(sT3)}, {256*2752}
    buffer_load_dwordx4 {vr(FA,4)}, {vr(t(6))}, {sr(sT4,4)}, 0 offen
    buffer_load_dwordx4 {vr(FA+4,4)}, {vr(t(6))}, {sr(sT4,4)}, {sr(sT3)} offen''')
    srd(sT4, kwu, 1409024)
    e(f'''buffer_load_dwordx4 {vr(FA+8,4)}, {vr(t(6))}, {sr(sT4,4)}, 0 offen
    buffer_load_dwordx4 {vr(FA+12,4)}, {vr(t(6))}, {sr(sT4,4)}, {sr(sT3)} offen''')
    srd(sT4, kwd, 1409024)
    e(f'''s_lshl_b32 {sr(sT2)}, {sr(sT)}, 13
    v_add_u32 {vr(t(6))}, {sr(sT2)}, {vr(lG)}
    s_movk_i32 {sr(sT3)}, 4096
    buffer_load_dwordx4 {vr(FD,4)}, {vr(t(6))}, {sr(sT4,4)}, 0 offen
    buffer_load_dwordx4 {vr(FD+4,4)}, {vr(t(6))}, {sr(sT4,4)}, {sr(sT3)} offen''')
    N_AFTER_POISON = 2 + 6
    N_AFTER_X = 3 + 2 + 6
    srd(sOUT, kout, 2097152)
    e(f'''s_mov_b32 {sr(s16)}, {fbits(16.0)}
    v_and_b32 {vr(vN)}, 15, {vr(vL)}
    v_lshrrev_b32 {vr(vQ)}, 4, {vr(vL)}
    s_sub_u32 {sr(sVs)}, 4, {sr(sW)}
    s_and_b32 {sr(sVs)}, {sr(sVs)}, 3
    s_add_u32 {sr(sVs)}, {sr(sVs)}, 4''')

    a0, a1, a2, a3 = t(20), t(21), t(22), t(23)
    b0, b1, b2 = t(24), t(25), t(26)
    def addr_p1():
        e(f'''s_lshl_b32 {sr(sT)}, {sr(sW)}, 10
        v_lshlrev_b32 {vr(a2)}, 4, {vr(vL)}
        v_add_u32 {vr(lRow)}, {sr(sT)}, {vr(a2)}
        s_add_u32 {sr(sT2)}, {sr(sT)}, {RIMG+1008}
        v_sub_u32 {vr(lRw)}, {sr(sT2)}, {vr(a2)}
        v_lshlrev_b32 {vr(a2)}, 3, {vr(vQ)}
        v_lshrrev_b32 {vr(a3)}, 2, {vr(vN)}
        v_add_lshl_u32 {vr(a2)}, {vr(a2)}, {vr(a3)}, 5
        v_and_b32 {vr(a3)}, 3, {vr(vN)}
        v_lshl_add_u32 {vr(a2)}, {vr(a3)}, 3, {vr(a2)}
        v_add_u32 {vr(lTr)}, {sr(sT)}, {vr(a2)}''')
        e(f'''v_lshlrev_b32 {vr(a0)}, 7, {vr(vQ)}
        v_add_u32 {vr(a1)}, {vr(a0)}, {vr(vN)}
        v_sub_u32 {vr(a2)}, {vr(a0)}, {vr(vN)}
        s_lshl_b32 {sr(sT)}, {sr(sW)}, 1
        s_add_u32 {sr(sT)}, {sr(sT)}, {HIMG}
        s_lshl_b32 {sr(sT2)}, {sr(sVs)}, 1
        s_add_u32 {sr(sT2)}, {sr(sT2)}, {HIMG - 224*16}
        v_lshlrev_b32 {vr(a1)}, 4, {vr(a1)}
        v_lshlrev_b32 {vr(a2)}, 4, {vr(a2)}
        v_add_u32 {vr(a1)}, {sr(sT)}, {vr(a1)}
        v_add_u32 {vr(a2)}, {sr(sT2)}, {vr(a2)}
        v_cmp_gt_u32 vcc, 2, {vr(vQ)}
        v_cndmask_b32 {vr(lH)}, {vr(a2)}, {vr(a1)}, vcc
        v_add_u32 {vr(a1)}, 256, {vr(a1)}
        v_subrev_u32 {vr(a2)}, 256, {vr(a2)}
        v_cndmask_b32 {vr(lH+1)}, {vr(a2)}, {vr(a1)}, vcc
        v_mov_b32 {vr(a0)}, {HIMG+4112}
        v_mov_b32 {vr(a1)}, {sr(sT)}
        s_add_u32 {sr(sT2)}, {sr(sT2)}, {224*16}
        v_mov_b32 {vr(a2)}, {sr(sT2)}
        v_cmp_eq_u32 vcc, 48, {vr(vL)}
        v_cndmask_b32 {vr(lHf)}, {vr(a0)}, {vr(a1)}, vcc
        v_cndmask_b32 {vr(lHf+1)}, {vr(a0)}, {vr(a2)}, vcc''')
    def addr_col():
        e(f'''s_lshl_b32 {sr(sT)}, {sr(sRho)}, 4
        v_lshlrev_b32 {vr(aHdr)}, 12, v0
        v_add_u32 {vr(aS16)}, {sr(sT)}, {vr(aHdr)}''')
        def caddr(dst, s_reg):
            e(f'''v_and_b32 {vr(a2)}, 15, {vr(s_reg)}
            v_lshlrev_b32 {vr(dst)}, 4, {vr(a2)}
            v_bfe_u32 {vr(a3)}, {vr(s_reg)}, 5, 3
            v_lshl_add_u32 {vr(dst)}, {vr(a3)}, 1, {vr(dst)}
            v_lshrrev_b32 {vr(a3)}, 8, {vr(s_reg)}
            v_lshl_add_u32 {vr(dst)}, {vr(a3)}, 8, {vr(dst)}
            v_bfe_u32 {vr(a3)}, {vr(s_reg)}, 4, 1
            v_lshl_add_u32 {vr(dst)}, {vr(a3)}, 11, {vr(dst)}
            v_add_u32 {vr(dst)}, {CIN}, {vr(dst)}''')
        e(f'''v_lshlrev_b32 {vr(b0)}, 2, v0
        v_sub_u32 {vr(b1)}, 2044, {vr(b0)}
        v_sub_u32 {vr(b2)}, 2048, {vr(b0)}
        v_mov_b32 {vr(a2)}, 1024
        v_cmp_eq_u32 vcc, 0, {vr(b0)}
        v_cndmask_b32 {vr(b2)}, {vr(b2)}, {vr(a2)}, vcc''')
        caddr(lCa, b0); caddr(lCb, b2); caddr(lCc, b1)
        e(f'v_lshlrev_b32 {vr(lCr)}, 4, {vr(vL)}\nv_add_u32 {vr(lCr)}, {CIN}, {vr(lCr)}')
    vTau, vTlo = t(28), t(29)
    def tau_tlo():
        e(f'''s_lshl_b32 {sr(sT)}, {sr(sW)}, 3
        v_and_b32 {vr(vTau)}, 7, {vr(vN)}
        v_add_u32 {vr(vTau)}, {sr(sT)}, {vr(vTau)}
        v_sub_u32 {vr(a0)}, 64, {vr(vTau)}
        v_mov_b32 {vr(a1)}, 32
        v_cmp_eq_u32 {sr(sTm,2)}, 0, {vr(vTau)}
        v_cndmask_b32 {vr(a0)}, {vr(a0)}, {vr(a1)}, {sr(sTm,2)}
        v_cmp_le_u32 vcc, 8, {vr(vN)}
        v_cndmask_b32 {vr(vTlo)}, {vr(vTau)}, {vr(a0)}, vcc
        s_andn2_b64 {sr(sEx,2)}, vcc, {sr(sTm,2)}''')
    def addr_colout():
        e(f'''v_lshl_add_u32 {vr(b0)}, {vr(vQ)}, 8, {vr(vTlo)}
        v_lshrrev_b32 {vr(a0)}, 2, {vr(b0)}
        v_and_b32 {vr(a1)}, 3, {vr(b0)}
        v_lshlrev_b32 {vr(a2)}, 1, {vr(a1)}
        v_lshl_add_u32 {vr(b1)}, {vr(a0)}, 4, {vr(a2)}
        v_add_u32 {vr(lCo)}, {COUT}, {vr(b1)}
        v_sub_u32 {vr(a3)}, 255, {vr(a0)}
        v_cmp_eq_u32 vcc, 0, {vr(a1)}
        v_addc_co_u32 {vr(a3)}, vcc, 0, {vr(a3)}, vcc
        v_lshl_add_u32 {vr(a3)}, {vr(a3)}, 4, {vr(a2)}
        v_add_u32 {vr(a3)}, 8, {vr(a3)}
        v_and_b32 {vr(b2)}, 4095, {vr(a3)}
        v_add_u32 {vr(lCo+2)}, {COUT}, {vr(b2)}
        v_add_u32 {vr(lCo+1)}, {COUT-768}, {vr(a3)}''')
    def addr_row():
        e(f'''v_mov_b32 {vr(a3)}, 256
        v_cmp_eq_u32 vcc, 0, v0
        v_cndmask_b32 {vr(a2)}, v0, {vr(a3)}, vcc
        v_lshlrev_b32 {vr(lYd)}, 1, {vr(a2)}
        v_sub_u32 {vr(lYm)}, 1024, {vr(lYd)}
        s_cmp_eq_u32 {sr(sRho)}, 0
        s_cselect_b32 {sr(sT)}, 4096, 0
        v_add_u32 {vr(lYm4)}, {sr(sT)}, {vr(lYm)}
        v_mov_b32 {vr(a0)}, 0
        v_lshlrev_b32 {vr(a1)}, 10, {vr(vL)}
        s_mov_b64 exec, 31
        ds_write_b16 {vr(a1)}, {vr(a0)} offset:{YIMG}
        s_mov_b64 exec, -1
        v_mov_b32 {vr(a0)}, {sr(sRowU)}
        v_mov_b32 {vr(a1)}, {sr(sRowV)}
        v_cmp_gt_u32 vcc, 32, {vr(vL)}
        v_cndmask_b32 {vr(vRowH)}, {vr(a1)}, {vr(a0)}, vcc
        s_lshl_b32 {sr(sT)}, {sr(sPhi)}, 11
        s_cmp_lt_u32 {sr(sPhi)}, {NF}
        s_cselect_b32 {sr(sT)}, {sr(sT)}, 0x7f000000
        v_lshlrev_b32 {vr(aP8)}, 3, v0
        v_add_u32 {vr(aP8)}, {sr(sT)}, {vr(aP8)}''')

    c0, c1 = t(30), t(31)
    def cos_seq(dst, base, step, n, amp=None):
        for j in range(0, n, 2):
            e(f'v_cos_f32 {vr(c0)}, {vr(base)}\nv_add_f32 {vr(base)}, {vr(base)}, {vr(step)}')
            e(f'v_cos_f32 {vr(c1)}, {vr(base)}')
            if j + 2 < n: e(f'v_add_f32 {vr(base)}, {vr(base)}, {vr(step)}')
            if amp is not None:
                e(f'v_mul_f32 {vr(c0)}, {amp}, {vr(c0)}\nv_mul_f32 {vr(c1)}, {amp}, {vr(c1)}')
            e(f'v_cvt_pk_f16_f32 {vr(dst + j//2)}, {vr(c0)}, {vr(c1)}')
    fQ, fN, fs, fb, fa, fb2 = t(32), t(33), t(34), t(35), t(36), t(37)
    def row_consts():
        e(f'v_cvt_f32_u32 {vr(fQ)}, {vr(vQ)}\nv_cvt_f32_u32 {vr(fN)}, {vr(vN)}')
        e(f'v_mul_f32 {vr(fs)}, {fbits(1/32)}, {vr(fN)}\nv_mul_f32 {vr(fa)}, {fbits(8.0)}, {vr(fQ)}')
        for part in range(2):
            e(f'v_mul_f32 {vr(fb)}, {vr(fa)}, {vr(fs)}')
            if part: e(f'v_add_f32 {vr(fb)}, {fbits(0.25)}, {vr(fb)}')
            cos_seq(RB1 + part*4, fb, fs, 8)
        for k in range(8): e(f'v_xor_b32 {vr(RB1+8+k)}, 0x80000000, {vr(RB1+k)}')
        e(f'v_mul_f32 {vr(fa)}, 4.0, {vr(fQ)}')
        for Tt in range(2):
            e(f'''v_add_f32 {vr(fs)}, {fbits(16.0*Tt)}, {vr(fN)}
            v_mul_f32 {vr(fs)}, {fbits(1/512)}, {vr(fs)}
            v_mul_f32 {vr(fb)}, {vr(fa)}, {vr(fs)}''')
            for i in range(4):
                e(f'v_cos_f32 {vr(RC+4*Tt+i)}, {vr(fb)}\nv_sin_f32 {vr(RS+4*Tt+i)}, {vr(fb)}')
                if i < 3: e(f'v_add_f32 {vr(fb)}, {vr(fb)}, {vr(fs)}')
        e(f'''v_sub_u32 {vr(fs)}, 23, {vr(vN)}
        v_cmp_gt_u32 vcc, 8, {vr(vN)}
        v_cndmask_b32 {vr(fs)}, {vr(fs)}, {vr(vN)}, vcc
        v_cvt_f32_u32 {vr(fs)}, {vr(fs)}
        v_mul_f32 {vr(fs)}, {fbits(1/16)}, {vr(fs)}
        v_mul_f32 {vr(fb2)}, {vr(fa)}, {vr(fs)}''')
        for part, ph in ((0, 0.125), (1, -0.125)):
            e(f'v_add_f32 {vr(fb)}, {fbits(ph)}, {vr(fb2)}')
            cos_seq(RA2 + 2*part, fb, fs, 4, amp=fbits(math.sqrt(2)))
    def col_consts():
        tau_tlo()
        addr_colout()
        e(f'''v_cvt_f32_u32 {vr(fQ)}, {vr(vQ)}
        v_cmp_le_u32 vcc, 8, {vr(vN)}
        s_and_b64 vcc, vcc, {sr(sTm,2)}
        v_mov_b32 {vr(a1)}, 32
        v_cndmask_b32 {vr(a0)}, {vr(vTau)}, {vr(a1)}, vcc
        v_cvt_f32_u32 {vr(fs)}, {vr(a0)}
        v_mul_f32 {vr(fs)}, {fbits(1/64)}, {vr(fs)}
        v_mov_b32 {vr(fa)}, {fbits(0.25)}
        v_cndmask_b32 {vr(fa)}, 0, {vr(fa)}, {sr(sEx,2)}
        v_mul_f32 {vr(fb)}, {fbits(8.0)}, {vr(fQ)}
        v_fma_f32 {vr(fb)}, {vr(fb)}, {vr(fs)}, {vr(fa)}''')
        cos_seq(CB1, fb, fs, 8)
        e(f'''v_and_b32 {vr(a0)}, 1, {vr(a0)}
        v_mul_u32_u24 {vr(a0)}, 0x8000, {vr(a0)}
        v_lshl_or_b32 {vr(a0)}, {vr(a0)}, 16, {vr(a0)}''')
        for k in range(4): e(f'v_xor_b32 {vr(CB1+4+k)}, {vr(a0)}, {vr(CB1+k)}')
        e(f'''v_cvt_f32_u32 {vr(fs)}, {vr(vTlo)}
        v_mul_f32 {vr(fs)}, {fbits(1/2048)}, {vr(fs)}
        v_mul_f32 {vr(fb)}, {vr(fQ)}, {vr(fs)}
        v_fma_f32 {vr(fb)}, {vr(fb)}, 4.0, {vr(fa)}
        v_mov_b32 {vr(a1)}, {fbits(0.25)}
        v_cndmask_b32 {vr(a1)}, {vr(a1)}, 0, {sr(sTm,2)}''')
        e(f'v_add_f32 {vr(fb2)}, {fbits(-0.25)}, {vr(fb)}')
        e(f'v_mul_f32 {vr(a2)}, {fbits(12.0)}, {vr(fs)}')
        for Tt in range(2):
            for i in range(4):
                k = CK + 16*Tt
                e(f'''v_cos_f32 {vr(c0)}, {vr(fb)}
                v_cos_f32 {vr(c1)}, {vr(fb2)}
                v_add_f32 {vr(fb)}, {vr(fb)}, {vr(fs)}
                v_add_f32 {vr(fb2)}, {vr(fb2)}, {vr(fs)}
                v_mul_f32 {vr(k+i)}, {fbits(0.25)}, {vr(c0)}
                v_mul_f32 {vr(k+4+i)}, {vr(a1)}, {vr(c1)}
                v_mul_f32 {vr(k+8+i)}, {fbits(-0.25)}, {vr(c1)}
                v_mul_f32 {vr(k+12+i)}, {vr(a1)}, {vr(c0)}''')
            if Tt == 0: e(f'v_add_f32 {vr(fb)}, {vr(fb)}, {vr(a2)}\nv_add_f32 {vr(fb2)}, {vr(fb2)}, {vr(a2)}')
        e(f'''v_cvt_f32_u32 {vr(fs)}, {vr(vN)}
        v_mul_f32 {vr(fs)}, {fbits(1/32)}, {vr(fs)}
        v_mul_f32 {vr(fb2)}, {vr(fQ)}, {vr(fs)}
        v_mul_f32 {vr(fb2)}, 4.0, {vr(fb2)}''')
        for part, ph in ((0, -0.125), (1, -0.375)):
            e(f'v_add_f32 {vr(fb)}, {fbits(ph)}, {vr(fb2)}')
            cos_seq(CA2 + 2*part, fb, fs, 4, amp=fbits(math.sqrt(2)/8))
        e(f'''v_and_b32 {vr(a0)}, 1, {vr(vN)}
        v_mul_u32_u24 {vr(a0)}, 0x8000, {vr(a0)}
        v_lshl_or_b32 {vr(a0)}, {vr(a0)}, 16, {vr(a0)}''')
        for k in range(4):
            e(f'v_xor_b32 {vr(CA2+4+k)}, {vr(a0)}, {vr(CA2+k)}')
        for k in range(8):
            e(f'v_xor_b32 {vr(CA2+8+k)}, 0x80000000, {vr(CA2+k)}')

    def unpack_nat(dst, src):
        for k in range(4):
            e(f'v_lshlrev_b32 {vr(dst+2*k)}, 16, {vr(src+k)}\nv_and_b32 {vr(dst+2*k+1)}, 0xffff0000, {vr(src+k)}')
    def unpack_rev(dst, src, tmp):
        e(f'''v_lshlrev_b32 {vr(tmp)}, 16, {vr(src)}
        v_and_b32 {vr(dst+7)}, 0xffff0000, {vr(src)}
        v_lshlrev_b32 {vr(dst+6)}, 16, {vr(src+1)}
        v_and_b32 {vr(dst+5)}, 0xffff0000, {vr(src+1)}
        v_mov_b32_dpp {vr(dst)}, {vr(tmp)} wave_ror:1 {DPP}
        v_lshlrev_b32 {vr(dst+4)}, 16, {vr(src+2)}
        v_and_b32 {vr(dst+3)}, 0xffff0000, {vr(src+2)}
        v_lshlrev_b32 {vr(dst+2)}, 16, {vr(src+3)}
        v_and_b32 {vr(dst+1)}, 0xffff0000, {vr(src+3)}''')
    def half_reduce(regs, tmps, op='v_add_f32'):
        for sh in (8, 4, 2, 1):
            for r in regs: e(f'{op}_dpp {vr(r)}, {vr(r)}, {vr(r)} row_ror:{sh} {DPP}')
        for r, tm in zip(regs, tmps): e(f'v_mov_b32 {vr(tm)}, {vr(r)}')
        for r, tm in zip(regs, tmps): e(f'v_permlane16_swap_b32 {vr(r)}, {vr(tm)}')
        for r, tm in zip(regs, tmps): e(f'{op} {vr(r)}, {vr(r)}, {vr(tm)}')
    def wave_reduce(regs, tmps, op='v_add_f32'):
        half_reduce(regs, tmps, op)
        for r, tm in zip(regs, tmps): e(f'v_mov_b32 {vr(tm)}, {vr(r)}')
        for r, tm in zip(regs, tmps): e(f'v_permlane32_swap_b32 {vr(r)}, {vr(tm)}')
        for r, tm in zip(regs, tmps): e(f'{op} {vr(r)}, {vr(r)}, {vr(tm)}')
    hM, hVar, hRho, hB, hR = t(40), t(41), t(42), t(43), t(44)
    def partial(Dd, src, sC, w, o1, o2, o3, P):
        e(f'v_readfirstlane_b32 {sr(sC)}, {vr(src)}')
        for k in range(4):
            e(f'v_pk_add_f32 {vr(Dd+2*k,2)}, {vr(src+2*k,2)}, {sr(sC,2)} op_sel_hi:[1,0] neg_lo:[0,1] neg_hi:[0,1]')
        e(f'''v_pk_add_f32 {vr(P,2)}, {vr(Dd,2)}, {vr(Dd+2,2)}
        v_pk_mul_f32 {vr(P+2,2)}, {vr(Dd,2)}, {vr(Dd,2)}
        v_pk_add_f32 {vr(P+4,2)}, {vr(Dd+4,2)}, {vr(Dd+6,2)}''')
        if w is not None: e(f'v_pk_mul_f32 {vr(P+6,2)}, {vr(Dd,2)}, {vr(w,2)}')
        for k in range(1, 4):
            e(f'v_pk_fma_f32 {vr(P+2,2)}, {vr(Dd+2*k,2)}, {vr(Dd+2*k,2)}, {vr(P+2,2)}')
            if w is not None: e(f'v_pk_fma_f32 {vr(P+6,2)}, {vr(Dd+2*k,2)}, {vr(w+2*k,2)}, {vr(P+6,2)}')
            if k == 1: e(f'v_pk_add_f32 {vr(P,2)}, {vr(P,2)}, {vr(P+4,2)}')
        e(f'v_add_f32 {vr(o1)}, {vr(P)}, {vr(P+1)}\nv_add_f32 {vr(o2)}, {vr(P+2)}, {vr(P+3)}')
        if w is not None: e(f'v_add_f32 {vr(o3)}, {vr(P+6)}, {vr(P+7)}')
    def moments(S1, S2):
        e(f'''v_mul_f32 {vr(hM)}, {fbits(1/512)}, {vr(S1)}
        v_mul_f32 {vr(S2)}, {fbits(1/512)}, {vr(S2)}
        v_fma_f32 {vr(hVar)}, -{vr(hM)}, {vr(hM)}, {vr(S2)}
        v_max_f32 {vr(hVar)}, 0, {vr(hVar)}
        v_add_f32 {vr(S2)}, {fbits(1e-5)}, {vr(hVar)}
        v_rsq_f32 {vr(hRho)}, {vr(S2)}''')
    def stats2(with_r):
        a1_, a2_, a3_, b1_, b2_, b3_ = t(16), t(17), t(18), t(19), t(20), t(21)
        partial(DU, XU, sCu, WU if with_r else None, a1_, a2_, a3_, t(24))
        partial(DV, XV, sCv, WV if with_r else None, b1_, b2_, b3_, t(32))
        pairs = [(a1_, b1_), (a2_, b2_)] + ([(a3_, b3_)] if with_r else [])
        for x, y in pairs: e(f'v_permlane32_swap_b32 {vr(x)}, {vr(y)}')
        for x, y in pairs: e(f'v_add_f32 {vr(x)}, {vr(x)}, {vr(y)}')
        half_reduce([x for x, _ in pairs], [y for _, y in pairs])
        moments(a1_, a2_)
        if with_r: e(f'v_fma_f32 {vr(a3_)}, -{vr(hM)}, {sr(sSW)}, {vr(a3_)}')
        e(f'v_mul_f32 {vr(hB)}, -{vr(hM)}, {vr(hRho)}')
        if with_r: e(f'v_mul_f32 {vr(hR)}, {vr(hRho)}, {vr(a3_)}')
    def stats1(src, Dd, dst):
        partial(Dd, src, sCu, None, t(16), t(17), None, t(24))
        wave_reduce([t(16), t(17)], [t(18), t(19)])
        moments(t(16), t(17))
        e(f'''v_readfirstlane_b32 {sr(sKu)}, {vr(hRho)}
        v_mul_f32 {vr(hB)}, -{vr(hM)}, {vr(hRho)}
        v_readfirstlane_b32 {sr(sKu+1)}, {vr(hB)}''')
        for k in range(4): e(f'v_pk_fma_f32 {vr(dst+2*k,2)}, {vr(Dd+2*k,2)}, {sr(sKu,2)}, {sr(sKu,2)} {PKB}')
    def residual_coeffs():
        e(f'''v_mov_b32 {vr(t(22))}, {sr(sCu)}
        v_mov_b32 {vr(t(23))}, {sr(sCv)}
        v_cmp_gt_u32 vcc, 32, {vr(vL)}
        v_add_f32 {vr(t(21))}, 1.0, {vr(hRho)}
        v_cndmask_b32 {vr(t(22))}, {vr(t(23))}, {vr(t(22))}, vcc
        v_add_f32 {vr(t(22))}, {vr(t(22))}, {vr(hB)}
        v_readlane_b32 {sr(sAu)}, {vr(t(21))}, 0
        v_readlane_b32 {sr(sAv)}, {vr(t(21))}, 32
        v_readlane_b32 {sr(sAu+1)}, {vr(t(22))}, 0
        v_readlane_b32 {sr(sAv+1)}, {vr(t(22))}, 32''')
    def residual_update(dU, dV):
        for k in range(4): e(f'v_pk_fma_f32 {vr(dU+2*k,2)}, {vr(DU+2*k,2)}, {sr(sAu,2)}, {sr(sAu,2)} {PKB}')
        for k in range(4): e(f'v_pk_fma_f32 {vr(dV+2*k,2)}, {vr(DV+2*k,2)}, {sr(sAv,2)}, {sr(sAv,2)} {PKB}')
    def norm_coeffs(scale, bias):
        e(f'''v_readlane_b32 {sr(sKu)}, {vr(scale)}, 0
        v_readlane_b32 {sr(sKu+1)}, {vr(bias)}, 0
        v_readlane_b32 {sr(sKv)}, {vr(scale)}, 32
        v_readlane_b32 {sr(sKv+1)}, {vr(bias)}, 32''')
    GG = t(16)
    def make_g():
        for k in range(4): e(f'v_pk_fma_f32 {vr(GG+2*k,2)}, {vr(DU+2*k,2)}, {sr(sKu,2)}, {sr(sKu,2)} {PKB}')
        for k in range(4): e(f'v_pk_fma_f32 {vr(GG+2*k,2)}, {vr(DV+2*k,2)}, {sr(sKv,2)}, {vr(GG+2*k,2)} op_sel_hi:[1,0,1]')
    def write_n(src, tmp):
        for k in range(4): e(f'v_cvt_pk_f16_f32 {vr(tmp+k)}, {vr(src+2*k)}, {vr(src+2*k+1)}')
        e(f'ds_write_b128 {vr(lRow)}, {vr(tmp,4)} offset:{GIMG}')
    def write_r(src, tmp):
        e(f'''v_mov_b32_dpp {vr(tmp+4)}, {vr(src)} wave_rol:1 {DPP}
        v_cvt_pk_f16_f32 {vr(tmp+1)}, {vr(src+6)}, {vr(src+5)}
        v_cvt_pk_f16_f32 {vr(tmp+2)}, {vr(src+4)}, {vr(src+3)}
        v_cvt_pk_f16_f32 {vr(tmp+3)}, {vr(src+2)}, {vr(src+1)}
        v_cvt_pk_f16_f32 {vr(tmp)}, {vr(tmp+4)}, {vr(src+7)}
        ds_write_b128 {vr(lRw)}, {vr(tmp,4)}''')
    def core(A, O):
        Dr = [t(0), t(8)]; Di = [t(4), t(12)]
        for Tt in range(2):
            e(f'v_mfma_f32_16x16x32_f16 {vr(Dr[Tt],4)}, {vr(A,4)}, {vr(RB1+(2*Tt)*4,4)}, 0')
            e(f'v_mfma_f32_16x16x32_f16 {vr(Di[Tt],4)}, {vr(A,4)}, {vr(RB1+(2*Tt+1)*4,4)}, 0')
        Bo = [t(16), t(20)]; br, bi = t(24), t(28)
        for Tt in range(2):
            for h in range(2):
                c = vr(RC+4*Tt+2*h, 2); s_ = vr(RS+4*Tt+2*h, 2)
                dr = vr(Dr[Tt]+2*h, 2); di = vr(Di[Tt]+2*h, 2)
                e(f'''v_pk_mul_f32 {vr(br+2*h,2)}, {dr}, {c}
                v_pk_mul_f32 {vr(bi+2*h,2)}, {di}, {c}
                v_pk_fma_f32 {vr(br+2*h,2)}, {di}, {s_}, {vr(br+2*h,2)}
                v_pk_fma_f32 {vr(bi+2*h,2)}, {dr}, {s_}, {vr(bi+2*h,2)} neg_lo:[1,0,0] neg_hi:[1,0,0]''')
            e(f'''v_cvt_pk_f16_f32 {vr(Bo[Tt])}, {vr(br)}, {vr(br+1)}
            v_cvt_pk_f16_f32 {vr(Bo[Tt]+1)}, {vr(br+2)}, {vr(br+3)}
            v_cvt_pk_f16_f32 {vr(Bo[Tt]+2)}, {vr(bi)}, {vr(bi+1)}
            v_cvt_pk_f16_f32 {vr(Bo[Tt]+3)}, {vr(bi+2)}, {vr(bi+3)}''')
            e(f'v_mfma_f32_16x16x32_f16 {vr(O+4*Tt,4)}, {vr(RA2,4)}, {vr(Bo[Tt],4)}, 0')

    CA, CO = t(32), t(36)
    def transform(dst_off, init_check=False, pre_core=None, post_scatter=None):
        write_n(GG, t(24))
        e(f"""s_waitcnt lgkmcnt(0)
        ds_read_b64_tr_b16 {vr(CA,2)}, {vr(lTr)} offset:{GIMG}
        ds_read_b64_tr_b16 {vr(CA+2,2)}, {vr(lTr)} offset:{GIMG+128}""")
        if init_check:
            lw = g.lab('nochk')
            e(f'v_lshlrev_b32 {vr(FO)}, 2, {vr(vL)}')
            srd(sT4, kdbg, 256)
            e(f's_cmp_lg_u32 {sr(sW)}, 0\ns_cbranch_scc1 {lw}')
            e(f"""buffer_load_dword {vr(FO+1)}, {vr(FO)}, {sr(sT4,4)}, 0 offen sc1
            {lw}:""")
        if pre_core: pre_core()
        e('s_waitcnt lgkmcnt(0)')
        core(CA, CO)
        for k in range(4): e(f'v_cvt_pk_f16_f32 {vr(t(44)+k)}, {vr(CO+2*k)}, {vr(CO+2*k+1)}')
        for Tt in range(2):
            for i in range(4):
                op = 'ds_write_b16' if i % 2 == 0 else 'ds_write_b16_d16_hi'
                e(f'{op} {vr(lH+Tt)}, {vr(t(44) + 2*Tt + i//2)} offset:{512*i}')
        e(f'ds_write_b16_d16_hi {vr(lHf)}, {vr(t(45))}\nds_write_b16_d16_hi {vr(lHf+1)}, {vr(t(45))}')
        if post_scatter: post_scatter()
        if init_check:
            lw = g.lab('nochk'); lp = g.lab('chk')
            e(f"""s_waitcnt vmcnt(0)
            s_cmp_lg_u32 {sr(sW)}, 0
            s_cbranch_scc1 {lw}
            s_mov_b32 {sr(sCnt)}, 0
            {lp}:
            v_cmp_ne_u32 vcc, 1, {vr(FO+1)}
            s_cbranch_vccz {lw}
            s_add_u32 {sr(sCnt)}, {sr(sCnt)}, 1
            s_cmp_gt_u32 {sr(sCnt)}, {LIMIT}
            s_cbranch_scc1 L_done
            s_sleep 8
            buffer_load_dword {vr(FO+1)}, {vr(FO)}, {sr(sT4,4)}, 0 offen sc1
            s_waitcnt vmcnt(0)
            s_branch {lp}
            {lw}:""")
        e(f"""s_waitcnt lgkmcnt(0)
        s_barrier
        ds_read_b128 {vr(t(0),4)}, {vr(lG)} offset:{HIMG}
        s_mov_b32 {sr(sOff)}, {dst_off}
        s_waitcnt lgkmcnt(0)
        buffer_store_dwordx4 {vr(t(0),4)}, {vr(aP16)}, {sr(sWS,4)}, {sr(sOff)} offen sc1""")

    def affine_from_x(sx1x0_u, sx1x0_v, sKu_, sKv_, outU, outV):
        for (xx, cc, kk, oo) in ((sx1x0_u, sCu, sKu_, outU), (sx1x0_v, sCv, sKv_, outV)):
            if xx is None:
                e(f"""v_mov_b32 {vr(t(44))}, {sr(kk)}
                v_mov_b32 {vr(t(45))}, {sr(kk+1)}
                v_fma_f32 {vr(t(45))}, -{vr(t(44))}, {sr(cc)}, {vr(t(45))}""")
            else:
                e(f"""v_rcp_f32 {vr(t(44))}, {sr(xx)}
                v_mov_b32 {vr(t(45))}, {sr(kk+1)}
                v_mul_f32 {vr(t(44))}, {sr(kk)}, {vr(t(44))}
                v_fma_f32 {vr(t(45))}, -{vr(t(44))}, {sr(xx+1)}, {vr(t(45))}""")
            e(f'v_readfirstlane_b32 {sr(oo)}, {vr(t(44))}\nv_readfirstlane_b32 {sr(oo+1)}, {vr(t(45))}')

    def special_k(dst_off, after_residual):
        ln = g.lab('nok')
        e(f's_cmp_lg_u32 {sr(sRowU)}, 0\ns_cbranch_scc1 {ln}')
        affine_from_x(sAu if after_residual else None, sAv if after_residual else None, sKu, sKv, sH, sH+2)
        ZU, ZV = t(0), t(8)
        for k in range(4): e(f'v_pk_fma_f32 {vr(ZU+2*k,2)}, {vr(XU+2*k,2)}, {sr(sH,2)}, {sr(sH,2)} {PKB}')
        for k in range(4): e(f'v_pk_fma_f32 {vr(ZV+2*k,2)}, {vr(XV+2*k,2)}, {sr(sH+2,2)}, {sr(sH+2,2)} {PKB}')
        write_r(ZU, t(16)); write_n(ZV, t(24))
        A, B = CA, t(40)
        e(f"""s_waitcnt lgkmcnt(0)
        ds_read_b64_tr_b16 {vr(A,2)}, {vr(lTr)} offset:{RIMG}
        ds_read_b64_tr_b16 {vr(B,2)}, {vr(lTr)} offset:{GIMG}
        ds_read_b64_tr_b16 {vr(A+2,2)}, {vr(lTr)} offset:{RIMG+128}
        ds_read_b64_tr_b16 {vr(B+2,2)}, {vr(lTr)} offset:{GIMG+128}
        s_waitcnt lgkmcnt(0)""")
        for k in range(4): e(f'v_pk_add_f16 {vr(A+k)}, {vr(A+k)}, {vr(B+k)} neg_lo:[0,1] neg_hi:[0,1]')
        core(A, CO)
        for k in range(4): e(f'v_pk_mul_f32 {vr(CO+2*k,2)}, {vr(CO+2*k,2)}, {sr(sT2 if False else sM2,2)} op_sel_hi:[1,0]' if False else f'v_mul_f32 {vr(CO+2*k)}, {fbits(1/16)}, {vr(CO+2*k)}\nv_mul_f32 {vr(CO+2*k+1)}, {fbits(1/16)}, {vr(CO+2*k+1)}')
        for k in range(4): e(f'v_cvt_pk_f16_f32 {vr(t(44)+k)}, {vr(CO+2*k)}, {vr(CO+2*k+1)}')
        e(f"""v_lshl_add_u32 {vr(t(0))}, {vr(vQ)}, 7, {vr(vN)}
        v_lshlrev_b32 {vr(t(0))}, 1, {vr(t(0))}
        v_sub_u32 {vr(t(1))}, {1024-32-192}, {vr(t(0))}
        v_mov_b32 {vr(t(2))}, 512
        s_mov_b32 exec_lo, -1
        s_mov_b32 exec_hi, 0""")
        for Tt in range(2):
            for i in range(4):
                op = 'ds_write_b16' if i % 2 == 0 else 'ds_write_b16_d16_hi'
                e(f'{op} {vr(t(0))}, {vr(t(44)+2*Tt+i//2)} offset:{KIMG + 32*Tt + 64*i}')
                e(f'{op} {vr(t(1))}, {vr(t(44)+2*Tt+i//2)} offset:{KIMG + 32*(1-Tt) + 64*(3-i)}')
        e(f"""s_mov_b32 exec_lo, 0
        s_mov_b32 exec_hi, 0x00010000
        ds_write_b16_d16_hi {vr(t(2))}, {vr(t(45))} offset:{KIMG}
        s_mov_b64 exec, -1
        v_lshlrev_b32 {vr(t(3))}, 4, {vr(vL)}
        s_waitcnt lgkmcnt(0)
        ds_read_b128 {vr(t(4),4)}, {vr(t(3))} offset:{KIMG}
        s_mov_b32 {sr(sOff)}, {dst_off}
        s_waitcnt lgkmcnt(0)
        buffer_store_dwordx4 {vr(t(4),4)}, {vr(t(3))}, {sr(sWS,4)}, {sr(sOff)} offen sc1
        {ln}:""")

    PC = t(40)
    def column_load(src_off):
        e(f's_mov_b32 {sr(sOff)}, {src_off}')
        e(ws_load_text(4, PC, aS16, sr(sOff)))
    def column(src_off, dst_off, preloaded):
        P = PC
        e(f's_mov_b32 {sr(sOff)}, {src_off}')
        poll(ws_load_text(4, P, aS16, sr(sOff)), range(P, P+4), preloaded=preloaded)
        stamp('col data')
        e(f"""ds_write_b16 {vr(lCa)}, {vr(P)}
        ds_write_b16_d16_hi {vr(lCa)}, {vr(P)} offset:16
        ds_write_b16 {vr(lCa)}, {vr(P+1)} offset:32
        ds_write_b16_d16_hi {vr(lCa)}, {vr(P+1)} offset:48
        ds_write_b16 {vr(lCb)}, {vr(P+2)}
        ds_write_b16_d16_hi {vr(lCc)}, {vr(P+2)} offset:16
        ds_write_b16 {vr(lCc)}, {vr(P+3)} offset:32
        ds_write_b16_d16_hi {vr(lCc)}, {vr(P+3)} offset:48
        s_waitcnt lgkmcnt(0)
        s_barrier""")
        A = t(0)
        for k in range(4): e(f'ds_read_b128 {vr(A+4*k,4)}, {vr(lCr)} offset:{1024*k}')
        D1 = [t(16), t(20)]
        e(f"""s_waitcnt lgkmcnt(3)
        v_mfma_f32_16x16x32_f16 {vr(D1[0],4)}, {vr(A,4)}, {vr(CB1,4)}, 0
        s_waitcnt lgkmcnt(2)
        v_mfma_f32_16x16x32_f16 {vr(D1[0],4)}, {vr(A+4,4)}, {vr(CB1+4,4)}, {vr(D1[0],4)}
        s_waitcnt lgkmcnt(1)
        v_mfma_f32_16x16x32_f16 {vr(D1[1],4)}, {vr(A+8,4)}, {vr(CB1,4)}, 0
        s_waitcnt lgkmcnt(0)
        v_mfma_f32_16x16x32_f16 {vr(D1[1],4)}, {vr(A+12,4)}, {vr(CB1+4,4)}, {vr(D1[1],4)}""")
        Bb = t(24); br, bi = t(28), t(32); Bo = [t(0), t(4)]
        for Tt in range(2):
            k = CK + 16*Tt
            for i in range(4): e(f'v_mov_b32_dpp {vr(Bb+i)}, {vr(D1[Tt]+i)} row_ror:8 {DPP}')
            for h in range(2):
                e(f"""v_pk_mul_f32 {vr(br+2*h,2)}, {vr(D1[Tt]+2*h,2)}, {vr(k+2*h,2)}
                v_pk_mul_f32 {vr(bi+2*h,2)}, {vr(D1[Tt]+2*h,2)}, {vr(k+8+2*h,2)}""")
            for h in range(2):
                e(f"""v_pk_fma_f32 {vr(br+2*h,2)}, {vr(Bb+2*h,2)}, {vr(k+4+2*h,2)}, {vr(br+2*h,2)}
                v_pk_fma_f32 {vr(bi+2*h,2)}, {vr(Bb+2*h,2)}, {vr(k+12+2*h,2)}, {vr(bi+2*h,2)}""")
            e(f"""v_cvt_pk_f16_f32 {vr(Bo[Tt])}, {vr(br)}, {vr(br+1)}
            v_cvt_pk_f16_f32 {vr(Bo[Tt]+1)}, {vr(br+2)}, {vr(br+3)}
            v_cvt_pk_f16_f32 {vr(Bo[Tt]+2)}, {vr(bi)}, {vr(bi+1)}
            v_cvt_pk_f16_f32 {vr(Bo[Tt]+3)}, {vr(bi+2)}, {vr(bi+3)}""")
        O = [t(8), t(12)]
        e(f"""v_mfma_f32_16x16x32_f16 {vr(O[0],4)}, {vr(CA2,4)}, {vr(Bo[0],4)}, 0
        v_mfma_f32_16x16x32_f16 {vr(O[1],4)}, {vr(CA2+8,4)}, {vr(Bo[0],4)}, 0
        v_mfma_f32_16x16x32_f16 {vr(O[0],4)}, {vr(CA2+4,4)}, {vr(Bo[1],4)}, {vr(O[0],4)}
        v_mfma_f32_16x16x32_f16 {vr(O[1],4)}, {vr(CA2+12,4)}, {vr(Bo[1],4)}, {vr(O[1],4)}
        v_cvt_pk_f16_f32 {vr(t(16))}, {vr(O[0])}, {vr(O[0]+1)}
        v_cvt_pk_f16_f32 {vr(t(17))}, {vr(O[0]+2)}, {vr(O[0]+3)}
        ds_write_b16 {vr(lCo)}, {vr(t(16))}
        ds_write_b16_d16_hi {vr(lCo)}, {vr(t(16))} offset:256
        v_cvt_pk_f16_f32 {vr(t(18))}, {vr(O[1])}, {vr(O[1]+1)}
        v_cvt_pk_f16_f32 {vr(t(19))}, {vr(O[1]+2)}, {vr(O[1]+3)}
        ds_write_b16 {vr(lCo)}, {vr(t(17))} offset:512
        ds_write_b16_d16_hi {vr(lCo)}, {vr(t(17))} offset:768
        ds_write_b16 {vr(lCo+2)}, {vr(t(18))}
        ds_write_b16_d16_hi {vr(lCo+1)}, {vr(t(18))} offset:512
        ds_write_b16 {vr(lCo+1)}, {vr(t(19))} offset:256
        ds_write_b16_d16_hi {vr(lCo+1)}, {vr(t(19))}
        s_waitcnt lgkmcnt(0)
        s_barrier
        ds_read_b128 {vr(t(0),4)}, {vr(lG)} offset:{COUT}
        s_mov_b32 {sr(sOff)}, {dst_off}
        s_waitcnt lgkmcnt(0)
        buffer_store_dwordx4 {vr(t(0),4)}, {vr(aP16)}, {sr(sWS,4)}, {sr(sOff)} offen sc1""")

    YH, YV, KT = t(4), t(8), t(12)
    def row_input(src_off, kb):
        P = t(0)
        lk = g.lab('nok')
        e(f's_bitcmp0_b32 {sr(sW)}, 0\ns_cbranch_scc1 {lk}')
        e(f'v_lshlrev_b32 {vr(t(16))}, 4, {vr(vL)}\ns_mov_b32 {sr(sT3)}, {kb}')
        e(ws_load_text(4, KT, t(16), sr(sT3)))
        e(f'{lk}:')
        e(f's_mov_b32 {sr(sOff)}, {src_off}')
        poll(ws_load_text(4, P, aS16, sr(sOff)), range(P, P+4))
        stamp('row data')
        def wr(slot, areg, off):
            op = 'ds_write_b16' if slot % 2 == 0 else 'ds_write_b16_d16_hi'
            e(f'{op} {vr(areg)}, {vr(P + slot//2)} offset:{YIMG + off}')
        for j in range(4): wr(j, lYd, j*1024)
        wr(4, lYm4, 0); wr(5, lYm, 3*1024); wr(6, lYm, 2*1024); wr(7, lYm, 1024)
        l0 = g.lab('not0')
        e(f's_cmp_lg_u32 {sr(sRho)}, 0\ns_cbranch_scc1 {l0}')
        wr(0, lYm, 0); wr(4, lYd, 4096)
        e(f"""{l0}:
        s_waitcnt lgkmcnt(0)
        s_barrier
        ds_read_b128 {vr(YH,4)}, {vr(lRow)} offset:{YIMG}""")
        lv = g.lab('yv')
        e(f"""s_cmp_lg_u32 {sr(sRowU)}, 0
        s_cbranch_scc1 {lv}
        ds_read_b128 {vr(YV,4)}, {vr(lRow)} offset:{YIMG+4096}
        {lv}:""")
        lk = g.lab('nok2')
        e(f's_bitcmp0_b32 {sr(sW)}, 0\ns_cbranch_scc1 {lk}')
        poll(ws_load_text(4, KT, t(16), sr(sT3)), range(KT, KT+4), preloaded=True)
        e('s_waitcnt lgkmcnt(0)')
        for k in range(4): e(f'v_pk_add_f16 {vr(YH+k)}, {vr(YH+k)}, {vr(KT+k)}')
        e(f'{lk}:\ns_waitcnt lgkmcnt(0)')
    def add_y(yu, yv):
        for k in range(4):
            e(f"""v_fma_mix_f32 {vr(XU+2*k)}, {vr(yu+k)}, {sr(s16)}, {vr(XU+2*k)} op_sel:[0,0,0] op_sel_hi:[1,0,0]
            v_fma_mix_f32 {vr(XU+2*k+1)}, {vr(yu+k)}, {sr(s16)}, {vr(XU+2*k+1)} op_sel:[1,0,0] op_sel_hi:[1,0,0]""")
        for k in range(4):
            e(f"""v_fma_mix_f32 {vr(XV+2*k)}, {vr(yv+k)}, {sr(s16)}, {vr(XV+2*k)} op_sel:[0,0,0] op_sel_hi:[1,0,0]
            v_fma_mix_f32 {vr(XV+2*k+1)}, {vr(yv+k)}, {sr(s16)}, {vr(XV+2*k+1)} op_sel:[1,0,0] op_sel_hi:[1,0,0]""")
    def add_y_pair():
        ls = g.lab('ysp'); lj = g.lab('yj')
        e(f's_cmp_eq_u32 {sr(sRowU)}, 0\ns_cbranch_scc1 {ls}')
        add_y(YH, YH)
        e(f'{lj}:')
        g.late.append((ls, lj))
    g.late = []

    def make_key():
        e(f"""v_ashrrev_i32 {vr(t(22))}, 31, {vr(hR)}
        v_or_b32 {vr(t(22))}, 0x80000000, {vr(t(22))}
        v_xor_b32 {vr(t(22))}, {vr(hR)}, {vr(t(22))}
        v_and_b32 {vr(t(22))}, 0xfffff800, {vr(t(22))}
        v_or_b32 {vr(t(22))}, {vr(vRowH)}, {vr(t(22))}
        v_readlane_b32 {sr(sKeyU)}, {vr(t(22))}, 0
        v_readlane_b32 {sr(sKeyV)}, {vr(t(22))}, 32
        s_lshl_b32 {sr(sT)}, {sr(sW)}, 2
        v_mov_b32 {vr(t(23))}, {sr(sT)}
        s_max_u32 {sr(sKey)}, {sr(sKeyU)}, {sr(sKeyV)}
        v_mov_b32 {vr(t(22))}, {sr(sKey)}
        ds_write_b32 {vr(t(23))}, {vr(t(22))} offset:{AM}""")
    def wg_best_read(tmp):
        e(f'v_mov_b32 {vr(tmp+4)}, 0\nds_read_b128 {vr(tmp,4)}, {vr(tmp+4)} offset:{AM}')
    def wg_best_header(cand, tmp):
        ln = g.lab('nohdr')
        e(f"""v_max3_u32 {vr(tmp)}, {vr(tmp)}, {vr(tmp+1)}, {vr(tmp+2)}
        v_max_u32 {vr(tmp)}, {vr(tmp)}, {vr(tmp+3)}
        v_readfirstlane_b32 {sr(sT)}, {vr(tmp)}
        s_cmp_eq_u32 {sr(sT)}, {sr(sKey)}
        s_cselect_b32 {sr(sSgn)}, 1, 0
        s_cbranch_scc0 {ln}
        s_lshl_b32 {sr(sT)}, {sr(sRho)}, 12
        s_add_u32 {sr(sOff)}, {sr(sT)}, {cand}
        v_mov_b32 {vr(tmp+1)}, {sr(sKey)}
        s_mov_b64 exec, 1
        buffer_store_dword {vr(tmp+1)}, {vr(tmp+4)}, {sr(sWS,4)}, {sr(sOff)} offen sc1
        s_mov_b64 exec, -1
        {ln}:""")
    def publish_rows(cand):
        ln = g.lab('nopub'); lv = g.lab('pubv'); lj = g.lab('pubj')
        e(f's_cmp_eq_u32 {sr(sSgn)}, 0\ns_cbranch_scc1 {ln}')
        e(f"""s_lshl_b32 {sr(sT)}, {sr(sRho)}, 12
        s_add_u32 {sr(sOff)}, {sr(sT)}, {cand}
        s_cmp_gt_u32 {sr(sKeyV)}, {sr(sKeyU)}
        s_cbranch_scc1 {lv}""")
        for (lab_, X_, A_, C_) in ((None, XU, sAu, sCu), (lv, XV, sAv, sCv)):
            if lab_: e(f'{lab_}:')
            e(f"""v_rcp_f32 {vr(t(0))}, {sr(A_)}
            v_mov_b32 {vr(t(1))}, {sr(A_+1)}
            v_mov_b32 {vr(t(2))}, {sr(A_)}
            v_add_f32 {vr(t(2))}, -1.0, {vr(t(2))}
            v_subrev_f32 {vr(t(3))}, {sr(C_)}, {vr(t(1))}
            v_mul_f32 {vr(t(4))}, {vr(t(2))}, {vr(t(0))}
            v_fma_f32 {vr(t(6))}, -{vr(t(4))}, {vr(t(1))}, {vr(t(3))}""")
            Z = t(8)
            for k in range(4): e(f'v_pk_fma_f32 {vr(Z+2*k,2)}, {vr(X_+2*k,2)}, {vr(t(4),2)}, {vr(t(6),2)} op_sel_hi:[1,0,0]')
            if X_ == XU:
                for k in range(4): e(f'v_cvt_pk_bf16_f32 {vr(t(16)+k)}, {vr(Z+2*k)}, {vr(Z+2*k+1)}')
                e(f"""v_lshlrev_b32 {vr(t(1))}, 4, {vr(vL)}
                v_lshlrev_b32 {vr(t(2))}, 5, {vr(vL)}
                buffer_store_dwordx4 {vr(t(16),4)}, {vr(t(1))}, {sr(sWS,4)}, {sr(sOff)} offen offset:128 sc1
                buffer_store_dwordx4 {vr(XU,4)}, {vr(t(2))}, {sr(sWS,4)}, {sr(sOff)} offen offset:1152 sc1
                buffer_store_dwordx4 {vr(XU+4,4)}, {vr(t(2))}, {sr(sWS,4)}, {sr(sOff)} offen offset:1168 sc1
                s_branch {lj}""")
            else:
                e(f"""v_mov_b32_dpp {vr(t(20))}, {vr(Z)} wave_rol:1 {DPP}
                v_mov_b32_dpp {vr(t(24))}, {vr(XV)} wave_rol:1 {DPP}
                v_cvt_pk_bf16_f32 {vr(t(17))}, {vr(Z+6)}, {vr(Z+5)}
                v_cvt_pk_bf16_f32 {vr(t(18))}, {vr(Z+4)}, {vr(Z+3)}
                v_cvt_pk_bf16_f32 {vr(t(19))}, {vr(Z+2)}, {vr(Z+1)}
                v_cvt_pk_bf16_f32 {vr(t(16))}, {vr(t(20))}, {vr(Z+7)}""")
                for k in range(1, 8): e(f'v_mov_b32 {vr(t(24)+k)}, {vr(XV+8-k)}')
                e(f"""v_lshlrev_b32 {vr(t(1))}, 4, {vr(vL)}
                v_sub_u32 {vr(t(1))}, 1008, {vr(t(1))}
                v_lshlrev_b32 {vr(t(2))}, 1, {vr(t(1))}
                buffer_store_dwordx4 {vr(t(16),4)}, {vr(t(1))}, {sr(sWS,4)}, {sr(sOff)} offen offset:128 sc1
                buffer_store_dwordx4 {vr(t(24),4)}, {vr(t(2))}, {sr(sWS,4)}, {sr(sOff)} offen offset:1152 sc1
                buffer_store_dwordx4 {vr(t(28),4)}, {vr(t(2))}, {sr(sWS,4)}, {sr(sOff)} offen offset:1168 sc1""")
        e(f'{lj}:\n{ln}:')

    def header_load(cand, K):
        e(f's_mov_b32 {sr(sOff)}, {cand}')
        e(ws_load_text(1, K, aHdr, sr(sOff)))
    def argmax(cand, K, after_check=None):
        e(f's_mov_b32 {sr(sOff)}, {cand}')
        poll(ws_load_text(1, K, aHdr, sr(sOff)), [K], preloaded=True, backoff=4)
        if after_check: after_check()
        wave_reduce([K], [t(1)], op='v_max_u32')
        e(f"""s_lshl_b32 {sr(sT)}, {sr(sW)}, 2
        v_mov_b32 {vr(t(1))}, {sr(sT)}
        ds_write_b32 {vr(t(1))}, {vr(K)} offset:{AM+32}
        v_mov_b32 {vr(t(1))}, 0
        s_waitcnt lgkmcnt(0)
        s_barrier
        ds_read_b128 {vr(t(4),4)}, {vr(t(1))} offset:{AM+32}
        s_waitcnt lgkmcnt(0)
        v_max3_u32 {vr(t(4))}, {vr(t(4))}, {vr(t(5))}, {vr(t(6))}
        v_max_u32 {vr(t(4))}, {vr(t(4))}, {vr(t(7))}
        v_readfirstlane_b32 {sr(sKey)}, {vr(t(4))}""")
        e(f"""s_and_b32 {sr(sStar)}, {sr(sKey)}, 2047
        s_lshr_b32 {sr(sT)}, {sr(sStar)}, 2
        s_sub_u32 {sr(sT2)}, 511, {sr(sT)}
        s_sub_u32 {sr(sT3)}, 512, {sr(sT)}
        s_and_b32 {sr(sT3)}, {sr(sT3)}, 255
        s_and_b32 {sr(sRec)}, {sr(sStar)}, 3
        s_cmp_eq_u32 {sr(sRec)}, 0
        s_cselect_b32 {sr(sT2)}, {sr(sT3)}, {sr(sT2)}
        s_cmp_lt_u32 {sr(sStar)}, 1024
        s_cselect_b32 {sr(sT2)}, {sr(sT)}, {sr(sT2)}
        s_lshl_b32 {sr(sRec)}, {sr(sT2)}, 12
        s_add_u32 {sr(sRec)}, {sr(sRec)}, {cand}""")
    def sigmoid_of_key():
        e(f"""s_and_b32 {sr(sT)}, {sr(sKey)}, 0xfffff800
        s_or_b32 {sr(sT)}, {sr(sT)}, 0x400
        s_ashr_i32 {sr(sT2)}, {sr(sT)}, 31
        s_not_b32 {sr(sT2)}, {sr(sT2)}
        s_or_b32 {sr(sT2)}, {sr(sT2)}, 0x80000000
        s_xor_b32 {sr(sT)}, {sr(sT)}, {sr(sT2)}
        v_mov_b32 {vr(vSig)}, {fbits(-1.4426950408889634)}
        v_mul_f32 {vr(vSig)}, {sr(sT)}, {vr(vSig)}
        v_exp_f32 {vr(vSig)}, {vr(vSig)}
        v_add_f32 {vr(vSig)}, 1.0, {vr(vSig)}
        v_rcp_f32 {vr(vSig)}, {vr(vSig)}""")

    def ffn_setup():
        e(f"""v_lshlrev_b32 {vr(t(0))}, 5, v0
        ds_write_b128 {vr(t(0))}, {vr(FA,4)} offset:{GU}
        ds_write_b128 {vr(t(0))}, {vr(FA+4,4)} offset:{GU+8192}
        ds_write_b128 {vr(t(0))}, {vr(FA+8,4)} offset:{GU+16}
        ds_write_b128 {vr(t(0))}, {vr(FA+12,4)} offset:{GU+8192+16}
        ds_write_b128 {vr(lG)}, {vr(FD,4)} offset:{DN}
        ds_write_b128 {vr(lG)}, {vr(FD+4,4)} offset:{DN+4096}
        s_mul_i32 {sr(sT)}, {sr(sW)}, {4096-1024}
        v_add_u32 {vr(t(1))}, {sr(sT)}, {vr(lTr)}
        v_lshlrev_b32 {vr(t(2))}, 2, v0
        s_waitcnt lgkmcnt(0)
        s_barrier""")
        for kap in range(4):
            for h in range(2):
                e(f'ds_read_b64_tr_b16 {vr(FA+4*kap+2*h,2)}, {vr(t(1))} offset:{GU + kap*1024 + h*128}')
        for f in range(8): e(f'ds_read_b32 {vr(t(8)+f)}, {vr(t(2))} offset:{DN + f*1024}')
        e('s_waitcnt lgkmcnt(0)')
        for f in range(8):
            e(f'v_lshlrev_b32 {vr(FD+2*f)}, 16, {vr(t(8)+f)}\nv_and_b32 {vr(FD+2*f+1)}, 0xffff0000, {vr(t(8)+f)}')

    XS = t(0)
    def xsel_text():
        return '\n'.join(f'buffer_load_dwordx4 {vr(XS+4*k,4)}, {vr(t(20))}, {sr(sWS,4)}, {sr(sRec)} offen offset:{128+64*k} sc1' for k in range(4))
    def xsel_load():
        e(f"""s_lshl_b32 {sr(sT)}, {sr(sW)}, 8
        v_lshlrev_b32 {vr(t(20))}, 4, {vr(vQ)}
        v_add_u32 {vr(t(20))}, {sr(sT)}, {vr(t(20))}""")
        e(xsel_text())
    def ffn(part):
        ln = g.lab('noffn')
        e(f's_cmp_ge_u32 {sr(sPhi)}, {NF}\ns_cbranch_scc1 {ln}')
        poll(xsel_text(), range(XS, XS+16), preloaded=True)
        Pp = t(16)
        for k in range(4):
            e(f'v_mfma_f32_16x16x32_bf16 {vr(Pp,4)}, {vr(FA+4*k,4)}, {vr(XS+4*k,4)}, {"0" if k==0 else vr(Pp,4)}')
        e(f"""v_lshlrev_b32 {vr(t(21))}, 6, {vr(vQ)}
        s_lshl_b32 {sr(sT)}, {sr(sW)}, 2
        v_add_u32 {vr(t(21))}, {sr(sT)}, {vr(t(21))}
        v_and_b32 {vr(t(22))}, 31, {vr(vL)}
        v_lshlrev_b32 {vr(t(22))}, 2, {vr(t(22))}
        s_mov_b32 exec_lo, 0x00010001
        s_mov_b32 exec_hi, 0x00010001""")
        for i in range(4): e(f'ds_write_b32 {vr(t(21))}, {vr(Pp+i)} offset:{FP + 16*i}')
        e(f"""s_mov_b64 exec, -1
        s_waitcnt lgkmcnt(0)
        s_barrier
        ds_read_b32 {vr(t(12))}, {vr(t(22))} offset:{FP}
        ds_read_b32 {vr(t(13))}, {vr(t(22))} offset:{FP+128}
        s_waitcnt lgkmcnt(0)""")
        gg, uu = t(12), t(13)
        for mod in ('quad_perm:[1,0,3,2]', 'quad_perm:[2,3,0,1]'):
            e(f'v_add_f32_dpp {vr(gg)}, {vr(gg)}, {vr(gg)} {mod} {DPP}\nv_add_f32_dpp {vr(uu)}, {vr(uu)}, {vr(uu)} {mod} {DPP}')
        e(f"""v_mul_f32 {vr(t(14))}, {fbits(-1.4426950408889634)}, {vr(gg)}
        v_exp_f32 {vr(t(14))}, {vr(t(14))}
        v_mul_f32 {vr(uu)}, {vr(uu)}, {vr(vSig)}
        v_add_f32 {vr(t(14))}, 1.0, {vr(t(14))}
        v_rcp_f32 {vr(t(14))}, {vr(t(14))}
        v_mul_f32 {vr(gg)}, {vr(gg)}, {vr(uu)}
        v_mul_f32 {vr(gg)}, {vr(gg)}, {vr(t(14))}""")
        for f in range(8): e(f'v_readlane_b32 {sr(sH+f)}, {vr(gg)}, {4*f}')
        acc = t(16)
        for f in range(8):
            sel = 'op_sel_hi:[1,0,1]' if f % 2 == 0 else 'op_sel:[0,1,0] op_sel_hi:[1,1,1]'
            if f == 0: e(f'v_pk_mul_f32 {vr(acc,2)}, {vr(FD,2)}, {sr(sH,2)} op_sel_hi:[1,0]')
            else: e(f'v_pk_fma_f32 {vr(acc,2)}, {vr(FD+2*f,2)}, {sr(sH + (f & ~1),2)}, {vr(acc,2)} {sel}')
        ws_store(2, acc, aP8, part)
        e(f'{ln}:')

    def reducer(part, final):
        ln = g.lab('nored')
        e(f"""s_sub_u32 {sr(sT3)}, {sr(sWg)}, {RED0}
        s_cmp_ge_u32 {sr(sT3)}, 32
        s_cbranch_scc1 {ln}
        v_lshrrev_b32 {vr(t(20))}, 2, v0
        v_lshlrev_b32 {vr(t(21))}, 11, {vr(t(20))}
        v_and_b32 {vr(t(22))}, 3, v0
        v_lshlrev_b32 {vr(t(22))}, 4, {vr(t(22))}
        s_lshl_b32 {sr(sT)}, {sr(sT3)}, 6
        v_add_u32 {vr(t(25))}, {sr(sT)}, {vr(t(22))}
        v_add_u32 {vr(t(21))}, {vr(t(21))}, {vr(t(25))}
        v_add_u32 {vr(t(23))}, {128*2048}, {vr(t(21))}
        v_mov_b32 {vr(t(24))}, 0x7f000000
        v_cmp_gt_u32 vcc, {NF-128}, {vr(t(20))}
        v_cndmask_b32 {vr(t(23))}, {vr(t(24))}, {vr(t(23))}, vcc
        s_mov_b32 {sr(sOff)}, {part}
        s_add_u32 {sr(sT2)}, {sr(sOff)}, {64*2048}""")
        A, B2, B3, B4 = t(0), t(4), t(8), t(12)
        ld = '\n'.join([ws_load_text(4, A, t(21), sr(sOff)), ws_load_text(4, B2, t(21), sr(sT2)), ws_load_text(4, B3, t(23), sr(sOff))])
        regs = list(range(A, A+12))
        if final:
            ld += '\n' + ws_load_text(4, B4, t(25), sr(sRec), 'offset:1152')
            regs += list(range(B4, B4+4))
        poll(ld, regs)
        for X_ in (B2, B3):
            e(f'v_pk_add_f32 {vr(A,2)}, {vr(A,2)}, {vr(X_,2)}\nv_pk_add_f32 {vr(A+2,2)}, {vr(A+2,2)}, {vr(X_+2,2)}')
        for sh in (4, 8):
            for i in range(4): e(f'v_add_f32_dpp {vr(A+i)}, {vr(A+i)}, {vr(A+i)} row_ror:{sh} {DPP}')
        for sw in ('v_permlane16_swap_b32', 'v_permlane32_swap_b32'):
            for i in range(4): e(f'v_mov_b32 {vr(B2+i)}, {vr(A+i)}')
            for i in range(4): e(f'{sw} {vr(A+i)}, {vr(B2+i)}')
            for i in range(4): e(f'v_add_f32 {vr(A+i)}, {vr(A+i)}, {vr(B2+i)}')
        e(f"""s_lshl_b32 {sr(sT)}, {sr(sW)}, 6
        v_add_u32 {vr(t(24))}, {sr(sT)}, {vr(t(22))}
        s_mov_b64 exec, 15
        ds_write_b128 {vr(t(24))}, {vr(A,4)} offset:{RED}
        s_mov_b64 exec, -1
        s_waitcnt lgkmcnt(0)
        s_barrier
        s_cmp_lg_u32 {sr(sW)}, 0
        s_cbranch_scc1 {ln}""")
        R = t(28)
        for w in range(4): e(f'ds_read_b128 {vr(R+4*w,4)}, {vr(t(22))} offset:{RED + 64*w}')
        e('s_waitcnt lgkmcnt(0)')
        e(f"""v_pk_add_f32 {vr(R,2)}, {vr(R,2)}, {vr(R+4,2)}
        v_pk_add_f32 {vr(R+2,2)}, {vr(R+2,2)}, {vr(R+6,2)}
        v_pk_add_f32 {vr(R+8,2)}, {vr(R+8,2)}, {vr(R+12,2)}
        v_pk_add_f32 {vr(R+10,2)}, {vr(R+10,2)}, {vr(R+14,2)}
        v_pk_add_f32 {vr(R,2)}, {vr(R,2)}, {vr(R+8,2)}
        v_pk_add_f32 {vr(R+2,2)}, {vr(R+2,2)}, {vr(R+10,2)}""")
        if final:
            e(f"""v_pk_add_f32 {vr(R,2)}, {vr(R,2)}, {vr(B4,2)}
            v_pk_add_f32 {vr(R+2,2)}, {vr(R+2,2)}, {vr(B4+2,2)}
            v_cvt_pk_bf16_f32 {vr(R)}, {vr(R)}, {vr(R+1)}
            v_cvt_pk_bf16_f32 {vr(R+1)}, {vr(R+2)}, {vr(R+3)}
            s_lshl_b32 {sr(sT)}, {sr(sStar)}, 10
            v_lshrrev_b32 {vr(t(25))}, 1, {vr(t(25))}
            v_add_u32 {vr(t(25))}, {sr(sT)}, {vr(t(25))}
            s_mov_b64 exec, 15
            buffer_store_dwordx2 {vr(R,2)}, {vr(t(25))}, {sr(sOUT,4)}, 0 offen sc1
            s_mov_b64 exec, -1""")
        else:
            e(f"""s_mov_b32 {sr(sOff)}, {UPD0}
            s_mov_b64 exec, 15
            buffer_store_dwordx4 {vr(R,4)}, {vr(t(25))}, {sr(sWS,4)}, {sr(sOff)} offen sc1
            s_mov_b64 exec, -1""")
        e(f'{ln}:')

    addr_p1()
    row_consts()
    la = g.lab('nosig')
    e(f"""s_cmp_ge_u32 {sr(sWg)}, 64
    s_cbranch_scc1 {la}
    s_waitcnt vmcnt({N_AFTER_POISON})
    s_barrier
    s_cmp_lg_u32 {sr(sW)}, 0
    s_cbranch_scc1 {la}""")
    srd(sT4, kdbg, 256)
    e(f"""s_lshl_b32 {sr(sT)}, {sr(sWg)}, 2
    v_mov_b32 {vr(t(4))}, {sr(sT)}
    v_mov_b32 {vr(t(5))}, 1
    s_mov_b64 exec, 1
    buffer_store_dword {vr(t(5))}, {vr(t(4))}, {sr(sT4,4)}, 0 offen sc1
    s_mov_b64 exec, -1
    {la}:""")
    stamp('rowconst')
    addr_col()
    col_consts()
    addr_row()
    stamp('preamble')
    e(f's_waitcnt vmcnt({N_AFTER_X})')
    stamp('x0')
    unpack_nat(XU, URAW); unpack_rev(XV, VRAW, t(16))
    stats2(False)
    norm_coeffs(hRho, hB)
    make_g()
    transform(HB0, init_check=True)
    stamp('P1 stored')
    finish_here('P1')
    special_k(KB0, False)
    poison_regs()
    e(f"""s_sub_u32 {sr(sT3)}, {sr(sWg)}, {RED0}
    s_lshl_b32 {sr(sT)}, {sr(sT3)}, 6
    v_lshlrev_b32 {vr(t(6))}, 2, v0
    v_add_u32 {vr(t(6))}, {sr(sT)}, {vr(t(6))}
    v_cmp_gt_u32 vcc, 16, v0
    s_cmp_lt_u32 {sr(sT3)}, 32
    s_cselect_b64 {sr(sEx,2)}, vcc, 0
    v_mov_b32 {vr(t(7))}, 0x7f000000
    v_cndmask_b32 {vr(t(6))}, {vr(t(7))}, {vr(t(6))}, {sr(sEx,2)}""")
    ws_store(4, PZ, aP16, HB1); ws_store(4, PZ, aP16, CAND0); ws_store(2, PZ, aP8, PART0); ws_store(1, PZ, t(6), UPD0)
    ffn_setup()
    unpack_nat(WU, WURAW); unpack_rev(WV, WVRAW, t(16))
    e(f"""v_pk_add_f32 {vr(t(16),2)}, {vr(WU,2)}, {vr(WU+2,2)}
    v_pk_add_f32 {vr(t(18),2)}, {vr(WU+4,2)}, {vr(WU+6,2)}
    v_pk_add_f32 {vr(t(16),2)}, {vr(t(16),2)}, {vr(t(18),2)}
    v_add_f32 {vr(t(16))}, {vr(t(16))}, {vr(t(17))}""")
    wave_reduce([t(16)], [t(17)])
    e(f'v_readfirstlane_b32 {sr(sSW)}, {vr(t(16))}')
    stamp('shadow1')
    e('s_waitcnt vmcnt(0)')
    column(HB0, YB0, False)
    stamp('P2 stored')
    finish_here('P2')
    poison_regs()
    ws_store(4, PZ, aP16, YB1); ws_store(4, PZ, aP16, CAND1); ws_store(2, PZ, aP8, PART1)
    e('s_waitcnt vmcnt(0)')
    row_input(YB0, KB0)
    add_y_pair()
    stats2(True)
    make_key()
    residual_coeffs()
    e(f"""v_mul_f32 {vr(t(23))}, {vr(t(21))}, {vr(t(21))}
    v_mul_f32 {vr(t(23))}, {vr(t(23))}, {vr(hVar)}
    v_add_f32 {vr(t(23))}, {fbits(1e-5)}, {vr(t(23))}
    v_rsq_f32 {vr(t(23))}, {vr(t(23))}
    s_waitcnt lgkmcnt(0)
    s_barrier""")
    wg_best_read(t(24))
    e(f"""v_mul_f32 {vr(t(22))}, {vr(t(21))}, {vr(t(23))}
    v_mul_f32 {vr(t(23))}, -{vr(hM)}, {vr(t(22))}""")
    norm_coeffs(t(22), t(23))
    e('s_waitcnt lgkmcnt(0)')
    wg_best_header(CAND0, t(24))
    stamp('hdr0')
    make_g()
    residual_update(XU, XV)
    transform(HB1, post_scatter=lambda: publish_rows(CAND0))
    stamp('P3 stored')
    finish_here('P3')
    K = t(0)
    header_load(CAND0, vSig)
    special_k(KB1, True)
    e(f's_waitcnt vmcnt(0)\nv_mov_b32 {vr(K)}, {vr(vSig)}')
    argmax(CAND0, K, after_check=lambda: column_load(HB1))
    stamp('argmax0')
    lb = g.lab('nobase')
    e(f"""s_cmp_ge_u32 {sr(sW)}, 2
    s_cbranch_scc1 {lb}
    v_lshlrev_b32 {vr(t(21))}, 5, {vr(vL)}
    buffer_load_dwordx4 {vr(FX,4)}, {vr(t(21))}, {sr(sWS,4)}, {sr(sRec)} offen offset:1152 sc1
    buffer_load_dwordx4 {vr(FX+4,4)}, {vr(t(21))}, {sr(sWS,4)}, {sr(sRec)} offen offset:1168 sc1
    {lb}:""")
    lb = g.lab('nox')
    e(f's_cmp_ge_u32 {sr(sPhi)}, {NF}\ns_cbranch_scc1 {lb}')
    xsel_load()
    e(f'{lb}:')
    sigmoid_of_key()
    e(f"""s_mul_i32 {sr(sT)}, {sr(sRowU)}, {sr(sStar)}
    s_and_b32 {sr(sT)}, {sr(sT)}, 2047
    v_cvt_f32_u32 {vr(vCa)}, {sr(sT)}
    v_mul_f32 {vr(vCa)}, {fbits(1/2048)}, {vr(vCa)}
    v_sin_f32 {vr(vSa)}, {vr(vCa)}
    v_cos_f32 {vr(vCa)}, {vr(vCa)}
    v_mul_f32 {vr(vSa)}, {fbits(1/32)}, {vr(vSa)}
    v_mul_f32 {vr(vCa)}, {fbits(1/32)}, {vr(vCa)}
    v_cvt_pk_f16_f32 {vr(vSa)}, {vr(vSa)}, {vr(vSa)}
    v_cvt_pk_f16_f32 {vr(vCa)}, {vr(vCa)}, {vr(vCa)}
    s_waitcnt vmcnt(0)""")
    stamp('xsel')
    ffn(PART0)
    stamp('ffn0')
    column(HB1, YB1, True)
    stamp('P4 stored')
    finish_here('P4')
    lb = g.lab('nobase')
    e(f's_cmp_ge_u32 {sr(sW)}, 2\ns_cbranch_scc1 {lb}')
    e(f'v_lshlrev_b32 {vr(t(21))}, 5, {vr(vL)}')
    poll(f'buffer_load_dwordx4 {vr(FX,4)}, {vr(t(21))}, {sr(sWS,4)}, {sr(sRec)} offen offset:1152 sc1\n'
         f'buffer_load_dwordx4 {vr(FX+4,4)}, {vr(t(21))}, {sr(sWS,4)}, {sr(sRec)} offen offset:1168 sc1', range(FX, FX+8), preloaded=True)
    stats1(FX, t(0), FO)
    e(f'{lb}:')
    e('s_waitcnt vmcnt(0)')
    reducer(PART0, False)
    stamp('red0')
    e('s_waitcnt vmcnt(0)')
    row_input(YB1, KB1)
    stamp('y1 read')
    lj = g.lab('fixj'); lq = g.lab('fix'); lu = g.lab('ownu'); lv = g.lab('ownv')
    U = t(16)
    updld = lambda areg: (ws_load_text(4, U, areg, sr(sOff)) + '\n' + ws_load_text(4, U+4, areg, sr(sOff), 'offset:16'))
    def owner_add():
        l1 = g.lab('nu'); l2 = g.lab('nv')
        e(f's_cmp_lg_u32 {sr(sStar)}, {sr(sRowU)}\ns_cbranch_scc1 {l1}')
        for k in range(4): e(f'v_pk_add_f32 {vr(XU+2*k,2)}, {vr(XU+2*k,2)}, {vr(U+2*k,2)}')
        e(f'{l1}:')
    e(f"""v_lshlrev_b32 {vr(t(44))}, 5, {vr(vL)}
    s_mov_b32 {sr(sOff)}, {UPD0}""")
    lnv = g.lab('notv')
    e(f"""s_cmp_lg_u32 {sr(sStar)}, {sr(sRowV)}
    s_cbranch_scc1 {lnv}
    v_sub_u32 {vr(t(45))}, {63*32}, {vr(t(44))}""")
    poll(updld(t(45)), range(U, U+8), backoff=4)
    e(f'v_mov_b32_dpp {vr(t(46))}, {vr(U)} wave_ror:1 {DPP}')
    for k in range(1, 8): e(f'v_add_f32 {vr(XV+k)}, {vr(XV+k)}, {vr(U+8-k)}')
    e(f'v_add_f32 {vr(XV)}, {vr(XV)}, {vr(t(46))}\n{lnv}:')
    e(f"""s_cmp_lt_u32 {sr(sW)}, 2
    s_cbranch_scc1 {lq}
    s_cmp_lg_u32 {sr(sStar)}, {sr(sRowU)}
    s_cbranch_scc1 {lj}""")
    poll(updld(t(44)), range(U, U+8), backoff=4)
    owner_add()
    e(f's_branch {lj}\n{lq}:')
    poll(updld(t(44)), range(U, U+8), backoff=4)
    stamp('upd')
    owner_add()
    for k in range(4): e(f'v_pk_add_f32 {vr(FX+2*k,2)}, {vr(FX+2*k,2)}, {vr(U+2*k,2)}')
    stats1(FX, t(32), FX)
    for k in range(4): e(f'v_pk_add_f32 {vr(FX+2*k,2)}, {vr(FX+2*k,2)}, {vr(FO+2*k,2)} neg_lo:[0,1] neg_hi:[0,1]')
    write_n(FX, t(24)); write_r(FX, t(40))
    A, B = CA, t(40)
    for k in range(8): e(f'v_mov_b32 {vr(FO+k)}, {vr(YH+k)}')
    e(f"""s_mov_b32 {sr(sT)}, 0x3c003c00
    s_cmp_eq_u32 {sr(sW)}, 0
    s_cselect_b32 {sr(sSgn)}, {sr(sT)}, 0xbc00bc00
    s_waitcnt lgkmcnt(0)
    ds_read_b64_tr_b16 {vr(A,2)}, {vr(lTr)} offset:{GIMG}
    ds_read_b64_tr_b16 {vr(B,2)}, {vr(lTr)} offset:{RIMG}
    ds_read_b64_tr_b16 {vr(A+2,2)}, {vr(lTr)} offset:{GIMG+128}
    ds_read_b64_tr_b16 {vr(B+2,2)}, {vr(lTr)} offset:{RIMG+128}
    s_waitcnt lgkmcnt(0)""")
    for k in range(4): e(f'v_pk_fma_f16 {vr(A+k)}, {vr(B+k)}, {sr(sSgn)}, {vr(A+k)}')
    core(A, CO)
    for k in range(4): e(f'v_cvt_pk_f16_f32 {vr(t(44)+k)}, {vr(CO+2*k)}, {vr(CO+2*k+1)}')
    e(f"""v_lshl_add_u32 {vr(t(0))}, {vr(vQ)}, 7, {vr(vN)}
    v_lshlrev_b32 {vr(t(1))}, 7, {vr(vQ)}
    v_sub_u32 {vr(t(1))}, {32*23}, {vr(t(1))}
    v_add_u32 {vr(t(1))}, {vr(t(1))}, {vr(vN)}
    v_cmp_gt_u32 vcc, 2, {vr(vQ)}
    v_cndmask_b32 {vr(t(0))}, {vr(t(1))}, {vr(t(0))}, vcc
    v_lshlrev_b32 {vr(t(0))}, 1, {vr(t(0))}
    s_lshl_b32 {sr(sT)}, {sr(sW)}, 10
    v_add_u32 {vr(t(0))}, {sr(sT)}, {vr(t(0))}
    v_mov_b32 {vr(t(2))}, 64
    v_mov_b32 {vr(t(3))}, -64
    v_cndmask_b32 {vr(t(2))}, {vr(t(3))}, {vr(t(2))}, vcc""")
    for i in range(4):
        op = 'ds_write_b16' if i % 2 == 0 else 'ds_write_b16_d16_hi'
        for Tt in range(2):
            e(f'{op} {vr(t(0))}, {vr(t(44)+2*Tt+i//2)} offset:{RIMG + 2048 + 32*Tt}')
        if i < 3: e(f'v_add_u32 {vr(t(0))}, {vr(t(0))}, {vr(t(2))}')
    for k in range(8): e(f'v_mov_b32 {vr(YH+k)}, {vr(FO+k)}')
    e(f"""{lj}:
    s_waitcnt lgkmcnt(0)
    s_barrier
    v_lshlrev_b32 {vr(t(0))}, 4, {vr(vL)}
    ds_read_b128 {vr(t(16),4)}, {vr(t(0))} offset:{RIMG+2048}
    ds_read_b128 {vr(t(20),4)}, {vr(t(0))} offset:{RIMG+2048+1024}
    s_waitcnt lgkmcnt(1)""")
    lsp = g.lab('fsp')
    for k in range(4): e(f'v_pk_fma_f16 {vr(YH+k)}, {vr(t(16)+k)}, {vr(vCa)}, {vr(YH+k)}')
    e(f'''s_cmp_lg_u32 {sr(sRowU)}, 0
    s_cbranch_scc1 {lsp}
    s_mov_b32 {sr(sT)}, 0x28002800
    s_bitcmp0_b32 {sr(sStar)}, 0
    s_cselect_b32 {sr(sT)}, {sr(sT)}, 0xa800a800''')
    for k in range(4): e(f'v_pk_fma_f16 {vr(YV+k)}, {vr(t(16)+k)}, {sr(sT)}, {vr(YV+k)}')
    e(f'{lsp}:\ns_waitcnt lgkmcnt(0)')
    for k in range(4): e(f'v_pk_fma_f16 {vr(YH+k)}, {vr(t(20)+k)}, {vr(vSa)}, {vr(YH+k)}')
    add_y_pair()
    stamp('fixed')
    stats2(True)
    make_key()
    residual_coeffs()
    e('s_waitcnt lgkmcnt(0)\ns_barrier')
    wg_best_read(t(24))
    residual_update(XU, XV)
    e('s_waitcnt lgkmcnt(0)')
    wg_best_header(CAND1, t(24))
    publish_rows(CAND1)
    e('s_waitcnt vmcnt(0)\ns_barrier')
    stamp('cand1')
    header_load(CAND1, K)
    e('s_waitcnt vmcnt(0)')
    argmax(CAND1, K)
    stamp('argmax1')
    lb = g.lab('nox')
    e(f's_cmp_ge_u32 {sr(sPhi)}, {NF}\ns_cbranch_scc1 {lb}')
    xsel_load()
    e(f'{lb}:')
    sigmoid_of_key()
    ln = g.lab('noout')
    e(f's_cmp_eq_u32 {sr(sStar)}, {sr(sRowU)}\ns_cbranch_scc1 {ln}')
    for k in range(4): e(f'v_cvt_pk_bf16_f32 {vr(t(24)+k)}, {vr(XU+2*k)}, {vr(XU+2*k+1)}')
    e(f'buffer_store_dwordx4 {vr(t(24),4)}, {vr(aU)}, {sr(sOUT,4)}, 0 offen sc1\n{ln}:')
    ln = g.lab('noout')
    e(f's_cmp_eq_u32 {sr(sStar)}, {sr(sRowV)}\ns_cbranch_scc1 {ln}')
    e(f"""v_mov_b32_dpp {vr(t(32))}, {vr(XV)} wave_rol:1 {DPP}
    v_cvt_pk_bf16_f32 {vr(t(29))}, {vr(XV+6)}, {vr(XV+5)}
    v_cvt_pk_bf16_f32 {vr(t(30))}, {vr(XV+4)}, {vr(XV+3)}
    v_cvt_pk_bf16_f32 {vr(t(31))}, {vr(XV+2)}, {vr(XV+1)}
    v_cvt_pk_bf16_f32 {vr(t(28))}, {vr(t(32))}, {vr(XV+7)}
    buffer_store_dwordx4 {vr(t(28),4)}, {vr(aV)}, {sr(sOUT,4)}, 0 offen sc1
    {ln}:""")
    e('s_waitcnt vmcnt(0)')
    ffn(PART1)
    stamp('ffn1')
    e('s_waitcnt vmcnt(0)')
    reducer(PART1, True)
    stamp('end')
    e('L_done:')
    if stamps:
        ls = g.lab('nost')
        e(f"""s_cmp_ge_u32 s2, 256
        s_cbranch_scc1 {ls}
        s_waitcnt vmcnt(0)
        s_mov_b64 exec, -1
        s_lshl_b32 {sr(sT)}, {sr(sWg)}, 11
        s_lshl_b32 {sr(sT2)}, {sr(sW)}, 8
        s_add_u32 {sr(sT)}, {sr(sT)}, {sr(sT2)}
        v_and_b32 {vr(t(0))}, 63, v0
        v_lshlrev_b32 {vr(t(0))}, 2, {vr(t(0))}
        v_add_u32 {vr(t(0))}, {sr(sT)}, {vr(t(0))}
        s_mov_b32 {sr(sOff)}, {STAMP}
        buffer_store_dword {vr(vStamp)}, {vr(t(0))}, {sr(sWS,4)}, {sr(sOff)} offen
        {ls}:""")
    e('s_endpgm')
    for ls, lj in g.late:
        e(f'{ls}:')
        add_y(YH, YV)
        e(f's_branch {lj}')
    emit_tail()
    return g

def render(g):
    lines, added = pad(g.L)
    body = '\n'.join(('' if l.endswith(':') else '    ') + l for l in lines)
    ninstr = sum(1 for l in lines if not l.endswith(':'))
    hdr = f"""; FNet (2-D real DFT via Hartley factorisation on MFMA) + top-1 routed SwiGLU, two layers, one persistent launch.
; @launch grid=(256,1,1) block=(256,1,1) lds={LDS_SIZE}
.amdgcn_target "amdgcn-amd-amdhsa--gfx950"
.text
.globl {NAME}
.p2align 8
.type {NAME},@function
{NAME}:
"""
    tail = f"""
L_code_end:
.section .rodata,"a"
.p2align 6
.amdhsa_kernel {NAME}
  .amdhsa_next_free_vgpr 256
  .amdhsa_next_free_sgpr 102
  .amdhsa_accum_offset 256
  .amdhsa_group_segment_fixed_size 0
  .amdhsa_kernarg_size 104
  .amdhsa_user_sgpr_count 2
  .amdhsa_user_sgpr_kernarg_segment_ptr 1
  .amdhsa_system_sgpr_workgroup_id_x 1
.end_amdhsa_kernel
"""
    return hdr + body + tail, ninstr, added

if __name__ == '__main__':
    import argparse
    ap = argparse.ArgumentParser()
    ap.add_argument('-o', default='interleave_layers__spectral_fnet__moe_arch_mod__prompt.s')
    ap.add_argument('--stop'); ap.add_argument('--stamps', action='store_true')
    a = ap.parse_args()
    g = build(a.stop, a.stamps)
    txt, n, added = render(g)
    open(a.o, 'w').write(txt)
    print(f'{n} instructions, {added} nop slots added, vgpr high {g.v.n}, sgpr high {g.s.n}')
```

```python
import sys, struct, math
from asmlib import pad, Alloc

NAME = "interleave_layers__spectral_fnet__moe_arch_mod__prompt_kernel"
HB0, YB0, HB1, YB1 = 0x000000, 0x100000, 0x200000, 0x300000
CAND0, CAND1 = 0x400000, 0x500000
PART0, PART1 = 0x600000, 0x680000
UPD0 = 0x700000
KB0, KB1 = 0x701000, 0x702000
STAMP = 0x780000
WS_SIZE = 0x800000
NF = 172
RED0 = 8
LIMIT = 40000
NPOIS = 64
YIMG = 0
GIMG = 5120
RIMG = 9216
HIMG = 13312
CIN = 17472
COUT = 21568
KIMG = 25664
FP = 26752
AM = 27008
RED = 27072
GU = 27392
DN = GU + 16384
LDS_SIZE = DN + 8192

def fbits(x): return '0x%08x' % struct.unpack('<I', struct.pack('<f', x))[0]

class G:
    def __init__(self, stop=None, stamps=False):
        self.L = []; self.stop = stop; self.stamps = stamps; self.uid = 0; self.nstamp = 0; self.names = []
        self.v = Alloc(1, 256, 'v'); self.s = Alloc(3, 100, 's')
    def e(self, text):
        for l in text.strip('\n').split('\n'):
            l = l.strip()
            if l: self.L.append(l)
    def lab(self, p):
        self.uid += 1; return f'L_{p}_{self.uid}'

def vr(a, n=1): return f'v{a}' if n == 1 else f'v[{a}:{a+n-1}]'
def sr(a, n=1): return f's{a}' if n == 1 else f's[{a}:{a+n-1}]'
DPP = 'row_mask:0xf bank_mask:0xf'
PKB = 'op_sel:[0,0,1] op_sel_hi:[1,0,1]'

def build(stop=None, stamps=False, opt=None):
    opt = opt or {}
    g = G(stop, stamps); e = g.e; V = g.v; S = g.s
    sWS = S('ws', 4, 4); sXS = S('xsrd', 4, 4); sOUT = S('out', 4, 4); sT4 = S('tmpsrd', 4, 4)
    sRho = S('rho'); sW = S('w'); sRowU = S('rowu'); sRowV = S('rowv'); sVs = S('vs'); sOff = S('off'); sCnt = S('cnt')
    sT = S('t'); sT2 = S('t2'); sT3 = S('t3'); s16 = S('k16'); sStar = S('star'); sRec = S('rec'); sWg = S('wg'); sSW = S('sw')
    sCu = S('cu', 2, 2); sCv = S('cv', 2, 2); sEx = S('exsave', 2, 2)
    sAu = S('au', 2, 2); sAv = S('av', 2, 2); sKu = S('ku', 2, 2); sKv = S('kv', 2, 2); sKeyU = S('keyu'); sKeyV = S('keyv'); sKey = S('key')
    sH = S('h', 8, 2); sTm = S('tm', 2, 2); sPC = S('pc', 2, 2); sM2 = S('m2', 2, 2); sPhi = S('phi'); sSgn = S('sgn')
    sKA = S('ka', 16, 4); sKB = S('kb', 8, 4); sKC = S('kc', 2, 2)
    vL = V('lane'); vN = V('n'); vQ = V('q')
    XU = V('XU', 8, 4); XV = V('XV', 8, 4); WU = V('WU', 8, 2); WV = V('WV', 8, 2)
    RB1 = V('RB1', 16, 4); RC = V('RC', 8, 2); RS = V('RS', 8, 2); RA2 = V('RA2', 4, 4)
    CB1 = V('CB1', 8, 4); CK = V('CK', 32, 2); CA2 = V('CA2', 16, 4)
    FA = V('FA', 16, 4); FD = V('FD', 16, 4)
    aU = V('aU'); aV = V('aV'); aP16 = V('aP16'); aS16 = V('aS16'); aHdr = V('aHdr'); aP8 = V('aP8')
    lYd = V('lYd'); lYm = V('lYm'); lYm4 = V('lYm4'); lRow = V('lRow'); lTr = V('lTr'); lRw = V('lRw')
    lH = V('lH', 2); lHf = V('lHf', 2); lG = V('lG')
    lCa = V('lCa'); lCb = V('lCb'); lCc = V('lCc'); lCr = V('lCr'); lCo = V('lCo', 3)
    vRowH = V('rowh'); vSig = V('sig'); vSent = V('sent'); vCa = V('cosa'); vSa = V('sina'); vStamp = V('stamp')
    FX = V('FX', 8, 4); FO = V('FO', 8, 4)
    NT = 256 - ((V.n + 3)//4*4)
    T = V('T', NT, 4)
    def t(i):
        assert i < NT, i
        return T + i
    DU, DV = t(0), t(8)

    def stamp(name=''):
        if not g.stamps: return
        e(f'''s_memrealtime {sr(sTm,2)}
        s_waitcnt lgkmcnt(0)
        v_writelane_b32 {vr(vStamp)}, {sr(sTm)}, {g.nstamp}''')
        g.nstamp += 1; g.names.append(name)
    def finish_here(tag):
        if g.stop == tag: e('s_branch L_done')

    def sentinel(regs):
        regs = list(regs); tm = vSent
        if len(regs) == 1:
            e(f'v_cmp_eq_u32 vcc, -1, {vr(regs[0])}')
        else:
            if len(regs) >= 3:
                e(f'v_max3_u32 {vr(tm)}, {vr(regs[0])}, {vr(regs[1])}, {vr(regs[2])}'); rest = regs[3:]
            else:
                e(f'v_max_u32 {vr(tm)}, {vr(regs[0])}, {vr(regs[1])}'); rest = []
            while len(rest) >= 2:
                e(f'v_max3_u32 {vr(tm)}, {vr(tm)}, {vr(rest[0])}, {vr(rest[1])}'); rest = rest[2:]
            if rest: e(f'v_max_u32 {vr(tm)}, {vr(tm)}, {vr(rest[0])}')
            e(f'v_cmp_eq_u32 vcc, -1, {vr(tm)}')
    def poll(load, regs, backoff=2, preloaded=False):
        lp = g.lab('poll'); ok = g.lab('ok')
        if preloaded:
            sentinel(regs)
            e(f's_cbranch_vccnz {lp}\n{ok}:')
            g.tail.append((lp, ok, load, list(regs), backoff))
        else:
            e(load); e('s_waitcnt vmcnt(0)')
            sentinel(regs)
            e(f's_cbranch_vccnz {lp}\n{ok}:')
            g.tail.append((lp, ok, load, list(regs), backoff))
    g.tail = []
    def emit_tail():
        for lp, ok, load, regs, backoff in g.tail:
            l2 = lp + '_r'
            e(f'{lp}:\ns_mov_b32 {sr(sCnt)}, 0\n{l2}:\ns_sleep {backoff}')
            e(load)
            e(f'''s_add_u32 {sr(sCnt)}, {sr(sCnt)}, 1
            s_cmp_gt_u32 {sr(sCnt)}, {LIMIT}
            s_cbranch_scc1 L_done
            s_waitcnt vmcnt(0)''')
            sentinel(regs)
            e(f's_cbranch_vccnz {l2}\ns_branch {ok}')
    def srd(dst, ptr, size):
        e(f'''s_mov_b32 {sr(dst)}, {sr(ptr)}
        s_mov_b32 {sr(dst+1)}, {sr(ptr+1)}
        s_mov_b32 {sr(dst+2)}, {size}
        s_mov_b32 {sr(dst+3)}, 0x00020000''')
    def ws_store(n, data, areg, region, extra=''):
        op = {1: 'buffer_store_dword', 2: 'buffer_store_dwordx2', 4: 'buffer_store_dwordx4'}[n]
        e(f's_mov_b32 {sr(sOff)}, {region}\n{op} {vr(data,n)}, {vr(areg)}, {sr(sWS,4)}, {sr(sOff)} offen sc1 {extra}')
    def ws_load_text(n, data, areg, soff, extra=''):
        op = {1: 'buffer_load_dword', 2: 'buffer_load_dwordx2', 4: 'buffer_load_dwordx4'}[n]
        return f'{op} {vr(data,n)}, {vr(areg)}, {sr(sWS,4)}, {soff} offen {extra} sc1'
    PZ = t(40)
    def poison_regs():
        for k in range(4): e(f'v_mov_b32 {vr(PZ+k)}, -1')

    e(f's_cmp_ge_u32 s2, 256\ns_cbranch_scc1 L_done')
    if stamps: e(f's_memrealtime {sr(sM2,2)}')
    e(f'''s_load_dwordx16 {sr(sKA,16)}, s[0:1], 0
    s_load_dwordx8 {sr(sKB,8)}, s[0:1], 64
    s_load_dwordx2 {sr(sKC,2)}, s[0:1], 96''')
    e(f'''s_getpc_b64 {sr(sPC,2)}
    L_pc:
    v_lshlrev_b32 {vr(t(0))}, 7, v0
    v_min_u32 {vr(t(0))}, L_code_end-L_pc-4, {vr(t(0))}
    global_load_dword {vr(vSig)}, {vr(t(0))}, {sr(sPC,2)}''')
    e(f'''s_mov_b32 {sr(sWg)}, s2
    s_and_b32 {sr(sT)}, s2, 7
    s_lshl_b32 {sr(sT)}, {sr(sT)}, 5
    s_lshr_b32 {sr(sRho)}, s2, 3
    s_or_b32 {sr(sRho)}, {sr(sRho)}, {sr(sT)}
    v_lshrrev_b32 {vr(t(1))}, 6, v0
    v_and_b32 {vr(vL)}, 63, v0
    v_readfirstlane_b32 {sr(sW)}, {vr(t(1))}
    v_lshlrev_b32 {vr(t(2))}, 4, {vr(vL)}
    v_sub_u32 {vr(t(3))}, 1008, {vr(t(2))}
    s_lshl_b32 {sr(sT)}, {sr(sRho)}, 2
    s_add_u32 {sr(sRowU)}, {sr(sT)}, {sr(sW)}
    s_sub_u32 {sr(sRowV)}, 2048, {sr(sRowU)}
    s_cmp_eq_u32 {sr(sRowU)}, 0
    s_cselect_b32 {sr(sRowV)}, 1024, {sr(sRowV)}
    s_lshl_b32 {sr(sT)}, {sr(sRowU)}, 10
    s_lshl_b32 {sr(sT2)}, {sr(sRowV)}, 10
    v_add_u32 {vr(aU)}, {sr(sT)}, {vr(t(2))}
    v_add_u32 {vr(aV)}, {sr(sT2)}, {vr(t(3))}
    s_lshl_b32 {sr(sT)}, {sr(sRho)}, 12
    v_lshlrev_b32 {vr(lG)}, 4, v0
    v_add_u32 {vr(aP16)}, {sr(sT)}, {vr(lG)}''')
    poison_regs()
    e('s_waitcnt lgkmcnt(0)')
    kx, kwr, kwg = sKA + 0, sKA + 12, sKA + 14
    kwu, kwd, kout, kdbg = sKB + 0, sKB + 2, sKB + 4, sKB + 6
    URAW, VRAW = t(8), t(12)
    WURAW, WVRAW = FX, FX + 4
    srd(sXS, kx, 2097152)
    e(f'''buffer_load_dwordx4 {vr(URAW,4)}, {vr(aU)}, {sr(sXS,4)}, 0 offen
    buffer_load_dwordx4 {vr(VRAW,4)}, {vr(aV)}, {sr(sXS,4)}, 0 offen''')
    srd(sWS, sKC, WS_SIZE)
    if stamps:
        e(f'v_mov_b32 {vr(vStamp)}, 0\nv_writelane_b32 {vr(vStamp)}, {sr(sM2)}, 0'); g.nstamp = 1; g.names.append('start')
    la = g.lab('nopois')
    e(f'''s_cmp_ge_u32 {sr(sWg)}, 64
    s_cbranch_scc1 {la}
    s_lshl_b32 {sr(sT)}, {sr(sWg)}, 14
    v_add_u32 {vr(t(4))}, {sr(sT)}, {vr(lG)}''')
    for k in range(4): ws_store(4, PZ, t(4), HB0 + 4096*k)
    e(f'{la}:')
    ws_store(4, PZ, aP16, YB0)
    e(f'''v_mov_b32 {vr(t(5))}, 0x7f000000
    v_cmp_gt_u32 vcc, 64, v0
    s_cmp_eq_u32 {sr(sRho)}, 0
    s_cselect_b64 {sr(sEx,2)}, vcc, 0
    v_cndmask_b32 {vr(t(5))}, {vr(t(5))}, {vr(lG)}, {sr(sEx,2)}''')
    ws_store(4, PZ, t(5), KB0)
    ws_store(4, PZ, t(5), KB1)
    srd(sT4, kwr, 1024)
    e(f'''buffer_load_dwordx4 {vr(WURAW,4)}, {vr(t(2))}, {sr(sT4,4)}, 0 offen
    buffer_load_dwordx4 {vr(WVRAW,4)}, {vr(t(3))}, {sr(sT4,4)}, 0 offen''')
    e(f's_sub_u32 {sr(sPhi)}, {sr(sRho)}, 1')
    N_AFTER_POISON = 2
    N_AFTER_X = 6
    def weight_loads():
        e(f's_min_u32 {sr(sT)}, {sr(sPhi)}, {NF-1}')
        srd(sT4, kwg, 1409024)
        e(f'''s_lshl_b32 {sr(sT2)}, {sr(sT)}, 4
        s_movk_i32 {sr(sT3)}, 2752
        v_mul_lo_u32 {vr(t(6))}, v0, {sr(sT3)}
        v_add_u32 {vr(t(6))}, {sr(sT2)}, {vr(t(6))}
        s_mov_b32 {sr(sT3)}, {256*2752}
        buffer_load_dwordx4 {vr(FA,4)}, {vr(t(6))}, {sr(sT4,4)}, 0 offen
        buffer_load_dwordx4 {vr(FA+4,4)}, {vr(t(6))}, {sr(sT4,4)}, {sr(sT3)} offen''')
        srd(sT4, kwu, 1409024)
        e(f'''buffer_load_dwordx4 {vr(FA+8,4)}, {vr(t(6))}, {sr(sT4,4)}, 0 offen
        buffer_load_dwordx4 {vr(FA+12,4)}, {vr(t(6))}, {sr(sT4,4)}, {sr(sT3)} offen''')
        srd(sT4, kwd, 1409024)
        e(f'''s_lshl_b32 {sr(sT2)}, {sr(sT)}, 13
        v_add_u32 {vr(t(6))}, {sr(sT2)}, {vr(lG)}
        s_movk_i32 {sr(sT3)}, 4096
        buffer_load_dwordx4 {vr(FD,4)}, {vr(t(6))}, {sr(sT4,4)}, 0 offen
        buffer_load_dwordx4 {vr(FD+4,4)}, {vr(t(6))}, {sr(sT4,4)}, {sr(sT3)} offen''')

    srd(sOUT, kout, 2097152)
    e(f'''s_mov_b32 {sr(s16)}, {fbits(16.0)}
    v_and_b32 {vr(vN)}, 15, {vr(vL)}
    v_lshrrev_b32 {vr(vQ)}, 4, {vr(vL)}
    s_sub_u32 {sr(sVs)}, 4, {sr(sW)}
    s_and_b32 {sr(sVs)}, {sr(sVs)}, 3
    s_add_u32 {sr(sVs)}, {sr(sVs)}, 4''')

    a0, a1, a2, a3 = t(20), t(21), t(22), t(23)
    b0, b1, b2 = t(24), t(25), t(26)
    def addr_p1():
        e(f'''s_lshl_b32 {sr(sT)}, {sr(sW)}, 10
        v_lshlrev_b32 {vr(a2)}, 4, {vr(vL)}
        v_add_u32 {vr(lRow)}, {sr(sT)}, {vr(a2)}
        s_add_u32 {sr(sT2)}, {sr(sT)}, {RIMG+1008}
        v_sub_u32 {vr(lRw)}, {sr(sT2)}, {vr(a2)}
        v_lshlrev_b32 {vr(a2)}, 3, {vr(vQ)}
        v_lshrrev_b32 {vr(a3)}, 2, {vr(vN)}
        v_add_lshl_u32 {vr(a2)}, {vr(a2)}, {vr(a3)}, 5
        v_and_b32 {vr(a3)}, 3, {vr(vN)}
        v_lshl_add_u32 {vr(a2)}, {vr(a3)}, 3, {vr(a2)}
        v_add_u32 {vr(lTr)}, {sr(sT)}, {vr(a2)}''')
        e(f'''v_lshlrev_b32 {vr(a0)}, 7, {vr(vQ)}
        v_add_u32 {vr(a1)}, {vr(a0)}, {vr(vN)}
        v_sub_u32 {vr(a2)}, {vr(a0)}, {vr(vN)}
        s_lshl_b32 {sr(sT)}, {sr(sW)}, 1
        s_add_u32 {sr(sT)}, {sr(sT)}, {HIMG}
        s_lshl_b32 {sr(sT2)}, {sr(sVs)}, 1
        s_add_u32 {sr(sT2)}, {sr(sT2)}, {HIMG - 224*16}
        v_lshlrev_b32 {vr(a1)}, 4, {vr(a1)}
        v_lshlrev_b32 {vr(a2)}, 4, {vr(a2)}
        v_add_u32 {vr(a1)}, {sr(sT)}, {vr(a1)}
        v_add_u32 {vr(a2)}, {sr(sT2)}, {vr(a2)}
        v_cmp_gt_u32 vcc, 2, {vr(vQ)}
        v_cndmask_b32 {vr(lH)}, {vr(a2)}, {vr(a1)}, vcc
        v_add_u32 {vr(a1)}, 256, {vr(a1)}
        v_subrev_u32 {vr(a2)}, 256, {vr(a2)}
        v_cndmask_b32 {vr(lH+1)}, {vr(a2)}, {vr(a1)}, vcc
        v_mov_b32 {vr(a0)}, {HIMG+4112}
        v_mov_b32 {vr(a1)}, {sr(sT)}
        s_add_u32 {sr(sT2)}, {sr(sT2)}, {224*16}
        v_mov_b32 {vr(a2)}, {sr(sT2)}
        v_cmp_eq_u32 vcc, 48, {vr(vL)}
        v_cndmask_b32 {vr(lHf)}, {vr(a0)}, {vr(a1)}, vcc
        v_cndmask_b32 {vr(lHf+1)}, {vr(a0)}, {vr(a2)}, vcc''')
    def addr_col():
        e(f'''s_lshl_b32 {sr(sT)}, {sr(sRho)}, 4
        v_lshlrev_b32 {vr(aHdr)}, 12, v0
        v_add_u32 {vr(aS16)}, {sr(sT)}, {vr(aHdr)}''')
        def caddr(dst, s_reg):
            e(f'''v_and_b32 {vr(a2)}, 15, {vr(s_reg)}
            v_lshlrev_b32 {vr(dst)}, 4, {vr(a2)}
            v_bfe_u32 {vr(a3)}, {vr(s_reg)}, 5, 3
            v_lshl_add_u32 {vr(dst)}, {vr(a3)}, 1, {vr(dst)}
            v_lshrrev_b32 {vr(a3)}, 8, {vr(s_reg)}
            v_lshl_add_u32 {vr(dst)}, {vr(a3)}, 8, {vr(dst)}
            v_bfe_u32 {vr(a3)}, {vr(s_reg)}, 4, 1
            v_lshl_add_u32 {vr(dst)}, {vr(a3)}, 11, {vr(dst)}
            v_add_u32 {vr(dst)}, {CIN}, {vr(dst)}''')
        e(f'''v_lshlrev_b32 {vr(b0)}, 2, v0
        v_sub_u32 {vr(b1)}, 2044, {vr(b0)}
        v_sub_u32 {vr(b2)}, 2048, {vr(b0)}
        v_mov_b32 {vr(a2)}, 1024
        v_cmp_eq_u32 vcc, 0, {vr(b0)}
        v_cndmask_b32 {vr(b2)}, {vr(b2)}, {vr(a2)}, vcc''')
        caddr(lCa, b0); caddr(lCb, b2); caddr(lCc, b1)
        e(f'v_lshlrev_b32 {vr(lCr)}, 4, {vr(vL)}\nv_add_u32 {vr(lCr)}, {CIN}, {vr(lCr)}')
    vTau, vTlo = t(28), t(29)
    def tau_tlo():
        e(f'''s_lshl_b32 {sr(sT)}, {sr(sW)}, 3
        v_and_b32 {vr(vTau)}, 7, {vr(vN)}
        v_add_u32 {vr(vTau)}, {sr(sT)}, {vr(vTau)}
        v_sub_u32 {vr(a0)}, 64, {vr(vTau)}
        v_mov_b32 {vr(a1)}, 32
        v_cmp_eq_u32 {sr(sTm,2)}, 0, {vr(vTau)}
        v_cndmask_b32 {vr(a0)}, {vr(a0)}, {vr(a1)}, {sr(sTm,2)}
        v_cmp_le_u32 vcc, 8, {vr(vN)}
        v_cndmask_b32 {vr(vTlo)}, {vr(vTau)}, {vr(a0)}, vcc
        s_andn2_b64 {sr(sEx,2)}, vcc, {sr(sTm,2)}''')
    def addr_colout():
        e(f'''v_lshl_add_u32 {vr(b0)}, {vr(vQ)}, 8, {vr(vTlo)}
        v_lshrrev_b32 {vr(a0)}, 2, {vr(b0)}
        v_and_b32 {vr(a1)}, 3, {vr(b0)}
        v_lshlrev_b32 {vr(a2)}, 1, {vr(a1)}
        v_lshl_add_u32 {vr(b1)}, {vr(a0)}, 4, {vr(a2)}
        v_add_u32 {vr(lCo)}, {COUT}, {vr(b1)}
        v_sub_u32 {vr(a3)}, 255, {vr(a0)}
        v_cmp_eq_u32 vcc, 0, {vr(a1)}
        v_addc_co_u32 {vr(a3)}, vcc, 0, {vr(a3)}, vcc
        v_lshl_add_u32 {vr(a3)}, {vr(a3)}, 4, {vr(a2)}
        v_add_u32 {vr(a3)}, 8, {vr(a3)}
        v_and_b32 {vr(b2)}, 4095, {vr(a3)}
        v_add_u32 {vr(lCo+2)}, {COUT}, {vr(b2)}
        v_add_u32 {vr(lCo+1)}, {COUT-768}, {vr(a3)}''')
    def addr_row():
        e(f'''v_mov_b32 {vr(a3)}, 256
        v_cmp_eq_u32 vcc, 0, v0
        v_cndmask_b32 {vr(a2)}, v0, {vr(a3)}, vcc
        v_lshlrev_b32 {vr(lYd)}, 1, {vr(a2)}
        v_sub_u32 {vr(lYm)}, 1024, {vr(lYd)}
        s_cmp_eq_u32 {sr(sRho)}, 0
        s_cselect_b32 {sr(sT)}, 4096, 0
        v_add_u32 {vr(lYm4)}, {sr(sT)}, {vr(lYm)}
        v_mov_b32 {vr(a0)}, 0
        v_lshlrev_b32 {vr(a1)}, 10, {vr(vL)}
        s_mov_b64 exec, 31
        ds_write_b16 {vr(a1)}, {vr(a0)} offset:{YIMG}
        s_mov_b64 exec, -1
        v_mov_b32 {vr(a0)}, {sr(sRowU)}
        v_mov_b32 {vr(a1)}, {sr(sRowV)}
        v_cmp_gt_u32 vcc, 32, {vr(vL)}
        v_cndmask_b32 {vr(vRowH)}, {vr(a1)}, {vr(a0)}, vcc
        s_lshl_b32 {sr(sT)}, {sr(sPhi)}, 11
        s_cmp_lt_u32 {sr(sPhi)}, {NF}
        s_cselect_b32 {sr(sT)}, {sr(sT)}, 0x7f000000
        v_lshlrev_b32 {vr(aP8)}, 3, v0
        v_add_u32 {vr(aP8)}, {sr(sT)}, {vr(aP8)}''')

    c0, c1 = t(30), t(31)
    def cos_seq(dst, base, step, n, amp=None):
        for j in range(0, n, 2):
            e(f'v_cos_f32 {vr(c0)}, {vr(base)}\nv_add_f32 {vr(base)}, {vr(base)}, {vr(step)}')
            e(f'v_cos_f32 {vr(c1)}, {vr(base)}')
            if j + 2 < n: e(f'v_add_f32 {vr(base)}, {vr(base)}, {vr(step)}')
            if amp is not None:
                e(f'v_mul_f32 {vr(c0)}, {amp}, {vr(c0)}\nv_mul_f32 {vr(c1)}, {amp}, {vr(c1)}')
            e(f'v_cvt_pk_f16_f32 {vr(dst + j//2)}, {vr(c0)}, {vr(c1)}')
    fQ, fN, fs, fb, fa, fb2 = t(32), t(33), t(34), t(35), t(36), t(37)
    def row_consts():
        e(f'v_cvt_f32_u32 {vr(fQ)}, {vr(vQ)}\nv_cvt_f32_u32 {vr(fN)}, {vr(vN)}')
        e(f'v_mul_f32 {vr(fs)}, {fbits(1/32)}, {vr(fN)}\nv_mul_f32 {vr(fa)}, {fbits(8.0)}, {vr(fQ)}')
        for part in range(2):
            e(f'v_mul_f32 {vr(fb)}, {vr(fa)}, {vr(fs)}')
            if part: e(f'v_add_f32 {vr(fb)}, {fbits(0.25)}, {vr(fb)}')
            cos_seq(RB1 + part*4, fb, fs, 8)
        for k in range(8): e(f'v_xor_b32 {vr(RB1+8+k)}, 0x80000000, {vr(RB1+k)}')
        e(f'v_mul_f32 {vr(fa)}, 4.0, {vr(fQ)}')
        for Tt in range(2):
            e(f'''v_add_f32 {vr(fs)}, {fbits(16.0*Tt)}, {vr(fN)}
            v_mul_f32 {vr(fs)}, {fbits(1/512)}, {vr(fs)}
            v_mul_f32 {vr(fb)}, {vr(fa)}, {vr(fs)}''')
            for i in range(4):
                e(f'v_cos_f32 {vr(RC+4*Tt+i)}, {vr(fb)}\nv_sin_f32 {vr(RS+4*Tt+i)}, {vr(fb)}')
                if i < 3: e(f'v_add_f32 {vr(fb)}, {vr(fb)}, {vr(fs)}')
        e(f'''v_sub_u32 {vr(fs)}, 23, {vr(vN)}
        v_cmp_gt_u32 vcc, 8, {vr(vN)}
        v_cndmask_b32 {vr(fs)}, {vr(fs)}, {vr(vN)}, vcc
        v_cvt_f32_u32 {vr(fs)}, {vr(fs)}
        v_mul_f32 {vr(fs)}, {fbits(1/16)}, {vr(fs)}
        v_mul_f32 {vr(fb2)}, {vr(fa)}, {vr(fs)}''')
        for part, ph in ((0, 0.125), (1, -0.125)):
            e(f'v_add_f32 {vr(fb)}, {fbits(ph)}, {vr(fb2)}')
            cos_seq(RA2 + 2*part, fb, fs, 4, amp=fbits(math.sqrt(2)))
    def col_consts():
        tau_tlo()
        addr_colout()
        e(f'''v_cvt_f32_u32 {vr(fQ)}, {vr(vQ)}
        v_cmp_le_u32 vcc, 8, {vr(vN)}
        s_and_b64 vcc, vcc, {sr(sTm,2)}
        v_mov_b32 {vr(a1)}, 32
        v_cndmask_b32 {vr(a0)}, {vr(vTau)}, {vr(a1)}, vcc
        v_cvt_f32_u32 {vr(fs)}, {vr(a0)}
        v_mul_f32 {vr(fs)}, {fbits(1/64)}, {vr(fs)}
        v_mov_b32 {vr(fa)}, {fbits(0.25)}
        v_cndmask_b32 {vr(fa)}, 0, {vr(fa)}, {sr(sEx,2)}
        v_mul_f32 {vr(fb)}, {fbits(8.0)}, {vr(fQ)}
        v_fma_f32 {vr(fb)}, {vr(fb)}, {vr(fs)}, {vr(fa)}''')
        cos_seq(CB1, fb, fs, 8)
        e(f'''v_and_b32 {vr(a0)}, 1, {vr(a0)}
        v_mul_u32_u24 {vr(a0)}, 0x8000, {vr(a0)}
        v_lshl_or_b32 {vr(a0)}, {vr(a0)}, 16, {vr(a0)}''')
        for k in range(4): e(f'v_xor_b32 {vr(CB1+4+k)}, {vr(a0)}, {vr(CB1+k)}')
        e(f'''v_cvt_f32_u32 {vr(fs)}, {vr(vTlo)}
        v_mul_f32 {vr(fs)}, {fbits(1/2048)}, {vr(fs)}
        v_mul_f32 {vr(fb)}, {vr(fQ)}, {vr(fs)}
        v_fma_f32 {vr(fb)}, {vr(fb)}, 4.0, {vr(fa)}
        v_mov_b32 {vr(a1)}, {fbits(0.25)}
        v_cndmask_b32 {vr(a1)}, {vr(a1)}, 0, {sr(sTm,2)}''')
        e(f'v_add_f32 {vr(fb2)}, {fbits(-0.25)}, {vr(fb)}')
        e(f'v_mul_f32 {vr(a2)}, {fbits(12.0)}, {vr(fs)}')
        for Tt in range(2):
            for i in range(4):
                k = CK + 16*Tt
                e(f'''v_cos_f32 {vr(c0)}, {vr(fb)}
                v_cos_f32 {vr(c1)}, {vr(fb2)}
                v_add_f32 {vr(fb)}, {vr(fb)}, {vr(fs)}
                v_add_f32 {vr(fb2)}, {vr(fb2)}, {vr(fs)}
                v_mul_f32 {vr(k+i)}, {fbits(0.25)}, {vr(c0)}
                v_mul_f32 {vr(k+4+i)}, {vr(a1)}, {vr(c1)}
                v_mul_f32 {vr(k+8+i)}, {fbits(-0.25)}, {vr(c1)}
                v_mul_f32 {vr(k+12+i)}, {vr(a1)}, {vr(c0)}''')
            if Tt == 0: e(f'v_add_f32 {vr(fb)}, {vr(fb)}, {vr(a2)}\nv_add_f32 {vr(fb2)}, {vr(fb2)}, {vr(a2)}')
        e(f'''v_cvt_f32_u32 {vr(fs)}, {vr(vN)}
        v_mul_f32 {vr(fs)}, {fbits(1/32)}, {vr(fs)}
        v_mul_f32 {vr(fb2)}, {vr(fQ)}, {vr(fs)}
        v_mul_f32 {vr(fb2)}, 4.0, {vr(fb2)}''')
        for part, ph in ((0, -0.125), (1, -0.375)):
            e(f'v_add_f32 {vr(fb)}, {fbits(ph)}, {vr(fb2)}')
            cos_seq(CA2 + 2*part, fb, fs, 4, amp=fbits(math.sqrt(2)/8))
        e(f'''v_and_b32 {vr(a0)}, 1, {vr(vN)}
        v_mul_u32_u24 {vr(a0)}, 0x8000, {vr(a0)}
        v_lshl_or_b32 {vr(a0)}, {vr(a0)}, 16, {vr(a0)}''')
        for k in range(4):
            e(f'v_xor_b32 {vr(CA2+4+k)}, {vr(a0)}, {vr(CA2+k)}')
        for k in range(8):
            e(f'v_xor_b32 {vr(CA2+8+k)}, 0x80000000, {vr(CA2+k)}')

    def unpack_nat(dst, src):
        for k in range(4):
            e(f'v_lshlrev_b32 {vr(dst+2*k)}, 16, {vr(src+k)}\nv_and_b32 {vr(dst+2*k+1)}, 0xffff0000, {vr(src+k)}')
    def unpack_rev(dst, src, tmp):
        e(f'''v_lshlrev_b32 {vr(tmp)}, 16, {vr(src)}
        v_and_b32 {vr(dst+7)}, 0xffff0000, {vr(src)}
        v_lshlrev_b32 {vr(dst+6)}, 16, {vr(src+1)}
        v_and_b32 {vr(dst+5)}, 0xffff0000, {vr(src+1)}
        v_mov_b32_dpp {vr(dst)}, {vr(tmp)} wave_ror:1 {DPP}
        v_lshlrev_b32 {vr(dst+4)}, 16, {vr(src+2)}
        v_and_b32 {vr(dst+3)}, 0xffff0000, {vr(src+2)}
        v_lshlrev_b32 {vr(dst+2)}, 16, {vr(src+3)}
        v_and_b32 {vr(dst+1)}, 0xffff0000, {vr(src+3)}''')
    def half_reduce(regs, tmps, op='v_add_f32'):
        for sh in (8, 4, 2, 1):
            for r in regs: e(f'{op}_dpp {vr(r)}, {vr(r)}, {vr(r)} row_ror:{sh} {DPP}')
        for r, tm in zip(regs, tmps): e(f'v_mov_b32 {vr(tm)}, {vr(r)}')
        for r, tm in zip(regs, tmps): e(f'v_permlane16_swap_b32 {vr(r)}, {vr(tm)}')
        for r, tm in zip(regs, tmps): e(f'{op} {vr(r)}, {vr(r)}, {vr(tm)}')
    def wave_reduce(regs, tmps, op='v_add_f32'):
        half_reduce(regs, tmps, op)
        for r, tm in zip(regs, tmps): e(f'v_mov_b32 {vr(tm)}, {vr(r)}')
        for r, tm in zip(regs, tmps): e(f'v_permlane32_swap_b32 {vr(r)}, {vr(tm)}')
        for r, tm in zip(regs, tmps): e(f'{op} {vr(r)}, {vr(r)}, {vr(tm)}')
    hM, hVar, hRho, hB, hR = t(40), t(41), t(42), t(43), t(44)
    def partial(Dd, src, sC, w, o1, o2, o3, P):
        e(f'v_readfirstlane_b32 {sr(sC)}, {vr(src)}')
        for k in range(4):
            e(f'v_pk_add_f32 {vr(Dd+2*k,2)}, {vr(src+2*k,2)}, {sr(sC,2)} op_sel_hi:[1,0] neg_lo:[0,1] neg_hi:[0,1]')
        e(f'''v_pk_add_f32 {vr(P,2)}, {vr(Dd,2)}, {vr(Dd+2,2)}
        v_pk_mul_f32 {vr(P+2,2)}, {vr(Dd,2)}, {vr(Dd,2)}
        v_pk_add_f32 {vr(P+4,2)}, {vr(Dd+4,2)}, {vr(Dd+6,2)}''')
        if w is not None: e(f'v_pk_mul_f32 {vr(P+6,2)}, {vr(Dd,2)}, {vr(w,2)}')
        for k in range(1, 4):
            e(f'v_pk_fma_f32 {vr(P+2,2)}, {vr(Dd+2*k,2)}, {vr(Dd+2*k,2)}, {vr(P+2,2)}')
            if w is not None: e(f'v_pk_fma_f32 {vr(P+6,2)}, {vr(Dd+2*k,2)}, {vr(w+2*k,2)}, {vr(P+6,2)}')
            if k == 1: e(f'v_pk_add_f32 {vr(P,2)}, {vr(P,2)}, {vr(P+4,2)}')
        e(f'v_add_f32 {vr(o1)}, {vr(P)}, {vr(P+1)}\nv_add_f32 {vr(o2)}, {vr(P+2)}, {vr(P+3)}')
        if w is not None: e(f'v_add_f32 {vr(o3)}, {vr(P+6)}, {vr(P+7)}')
    def moments(S1, S2):
        e(f'''v_mul_f32 {vr(hM)}, {fbits(1/512)}, {vr(S1)}
        v_mul_f32 {vr(S2)}, {fbits(1/512)}, {vr(S2)}
        v_fma_f32 {vr(hVar)}, -{vr(hM)}, {vr(hM)}, {vr(S2)}
        v_max_f32 {vr(hVar)}, 0, {vr(hVar)}
        v_add_f32 {vr(S2)}, {fbits(1e-5)}, {vr(hVar)}
        v_rsq_f32 {vr(hRho)}, {vr(S2)}''')
    def stats2(with_r):
        a1_, a2_, a3_, b1_, b2_, b3_ = t(16), t(17), t(18), t(19), t(20), t(21)
        partial(DU, XU, sCu, WU if with_r else None, a1_, a2_, a3_, t(24))
        partial(DV, XV, sCv, WV if with_r else None, b1_, b2_, b3_, t(32))
        pairs = [(a1_, b1_), (a2_, b2_)] + ([(a3_, b3_)] if with_r else [])
        for x, y in pairs: e(f'v_permlane32_swap_b32 {vr(x)}, {vr(y)}')
        for x, y in pairs: e(f'v_add_f32 {vr(x)}, {vr(x)}, {vr(y)}')
        half_reduce([x for x, _ in pairs], [y for _, y in pairs])
        moments(a1_, a2_)
        if with_r: e(f'v_fma_f32 {vr(a3_)}, -{vr(hM)}, {sr(sSW)}, {vr(a3_)}')
        e(f'v_mul_f32 {vr(hB)}, -{vr(hM)}, {vr(hRho)}')
        if with_r: e(f'v_mul_f32 {vr(hR)}, {vr(hRho)}, {vr(a3_)}')
    def stats1(src, Dd, dst):
        partial(Dd, src, sCu, None, t(16), t(17), None, t(24))
        wave_reduce([t(16), t(17)], [t(18), t(19)])
        moments(t(16), t(17))
        e(f'''v_readfirstlane_b32 {sr(sKu)}, {vr(hRho)}
        v_mul_f32 {vr(hB)}, -{vr(hM)}, {vr(hRho)}
        v_readfirstlane_b32 {sr(sKu+1)}, {vr(hB)}''')
        for k in range(4): e(f'v_pk_fma_f32 {vr(dst+2*k,2)}, {vr(Dd+2*k,2)}, {sr(sKu,2)}, {sr(sKu,2)} {PKB}')
    def residual_coeffs():
        e(f'''v_mov_b32 {vr(t(22))}, {sr(sCu)}
        v_mov_b32 {vr(t(23))}, {sr(sCv)}
        v_cmp_gt_u32 vcc, 32, {vr(vL)}
        v_add_f32 {vr(t(21))}, 1.0, {vr(hRho)}
        v_cndmask_b32 {vr(t(22))}, {vr(t(23))}, {vr(t(22))}, vcc
        v_add_f32 {vr(t(22))}, {vr(t(22))}, {vr(hB)}
        v_readlane_b32 {sr(sAu)}, {vr(t(21))}, 0
        v_readlane_b32 {sr(sAv)}, {vr(t(21))}, 32
        v_readlane_b32 {sr(sAu+1)}, {vr(t(22))}, 0
        v_readlane_b32 {sr(sAv+1)}, {vr(t(22))}, 32''')
    def residual_update(dU, dV):
        for k in range(4): e(f'v_pk_fma_f32 {vr(dU+2*k,2)}, {vr(DU+2*k,2)}, {sr(sAu,2)}, {sr(sAu,2)} {PKB}')
        for k in range(4): e(f'v_pk_fma_f32 {vr(dV+2*k,2)}, {vr(DV+2*k,2)}, {sr(sAv,2)}, {sr(sAv,2)} {PKB}')
    def norm_coeffs(scale, bias):
        e(f'''v_readlane_b32 {sr(sKu)}, {vr(scale)}, 0
        v_readlane_b32 {sr(sKu+1)}, {vr(bias)}, 0
        v_readlane_b32 {sr(sKv)}, {vr(scale)}, 32
        v_readlane_b32 {sr(sKv+1)}, {vr(bias)}, 32''')
    GG = t(16)
    def make_g():
        for k in range(4): e(f'v_pk_fma_f32 {vr(GG+2*k,2)}, {vr(DU+2*k,2)}, {sr(sKu,2)}, {sr(sKu,2)} {PKB}')
        for k in range(4): e(f'v_pk_fma_f32 {vr(GG+2*k,2)}, {vr(DV+2*k,2)}, {sr(sKv,2)}, {vr(GG+2*k,2)} op_sel_hi:[1,0,1]')
    def write_n(src, tmp):
        for k in range(4): e(f'v_cvt_pk_f16_f32 {vr(tmp+k)}, {vr(src+2*k)}, {vr(src+2*k+1)}')
        e(f'ds_write_b128 {vr(lRow)}, {vr(tmp,4)} offset:{GIMG}')
    def write_r(src, tmp):
        e(f'''v_mov_b32_dpp {vr(tmp+4)}, {vr(src)} wave_rol:1 {DPP}
        v_cvt_pk_f16_f32 {vr(tmp+1)}, {vr(src+6)}, {vr(src+5)}
        v_cvt_pk_f16_f32 {vr(tmp+2)}, {vr(src+4)}, {vr(src+3)}
        v_cvt_pk_f16_f32 {vr(tmp+3)}, {vr(src+2)}, {vr(src+1)}
        v_cvt_pk_f16_f32 {vr(tmp)}, {vr(tmp+4)}, {vr(src+7)}
        ds_write_b128 {vr(lRw)}, {vr(tmp,4)}''')
    def core(A, O):
        Dr = [t(0), t(8)]; Di = [t(4), t(12)]
        for Tt in range(2):
            e(f'v_mfma_f32_16x16x32_f16 {vr(Dr[Tt],4)}, {vr(A,4)}, {vr(RB1+(2*Tt)*4,4)}, 0')
            e(f'v_mfma_f32_16x16x32_f16 {vr(Di[Tt],4)}, {vr(A,4)}, {vr(RB1+(2*Tt+1)*4,4)}, 0')
        Bo = [t(16), t(20)]; br, bi = t(24), t(28)
        for Tt in range(2):
            for h in range(2):
                c = vr(RC+4*Tt+2*h, 2); s_ = vr(RS+4*Tt+2*h, 2)
                dr = vr(Dr[Tt]+2*h, 2); di = vr(Di[Tt]+2*h, 2)
                e(f'''v_pk_mul_f32 {vr(br+2*h,2)}, {dr}, {c}
                v_pk_mul_f32 {vr(bi+2*h,2)}, {di}, {c}
                v_pk_fma_f32 {vr(br+2*h,2)}, {di}, {s_}, {vr(br+2*h,2)}
                v_pk_fma_f32 {vr(bi+2*h,2)}, {dr}, {s_}, {vr(bi+2*h,2)} neg_lo:[1,0,0] neg_hi:[1,0,0]''')
            e(f'''v_cvt_pk_f16_f32 {vr(Bo[Tt])}, {vr(br)}, {vr(br+1)}
            v_cvt_pk_f16_f32 {vr(Bo[Tt]+1)}, {vr(br+2)}, {vr(br+3)}
            v_cvt_pk_f16_f32 {vr(Bo[Tt]+2)}, {vr(bi)}, {vr(bi+1)}
            v_cvt_pk_f16_f32 {vr(Bo[Tt]+3)}, {vr(bi+2)}, {vr(bi+3)}''')
            e(f'v_mfma_f32_16x16x32_f16 {vr(O+4*Tt,4)}, {vr(RA2,4)}, {vr(Bo[Tt],4)}, 0')

    CA, CO = t(32), t(36)
    def transform(dst_off, init_check=False, pre_core=None, post_scatter=None):
        write_n(GG, t(24))
        e(f"""s_waitcnt lgkmcnt(0)
        ds_read_b64_tr_b16 {vr(CA,2)}, {vr(lTr)} offset:{GIMG}
        ds_read_b64_tr_b16 {vr(CA+2,2)}, {vr(lTr)} offset:{GIMG+128}""")
        if init_check:
            lw = g.lab('nochk')
            e(f'v_mov_b32 {vr(FO)}, 128')
            srd(sT4, kdbg, 256)
            e(f's_cmp_lg_u32 {sr(sW)}, 0\ns_cbranch_scc1 {lw}')
            e(f"""buffer_load_dword {vr(FO+1)}, {vr(FO)}, {sr(sT4,4)}, 0 offen sc1
            {lw}:""")
        if pre_core: pre_core()
        e('s_waitcnt lgkmcnt(0)')
        core(CA, CO)
        for k in range(4): e(f'v_cvt_pk_f16_f32 {vr(t(44)+k)}, {vr(CO+2*k)}, {vr(CO+2*k+1)}')
        for Tt in range(2):
            for i in range(4):
                op = 'ds_write_b16' if i % 2 == 0 else 'ds_write_b16_d16_hi'
                e(f'{op} {vr(lH+Tt)}, {vr(t(44) + 2*Tt + i//2)} offset:{512*i}')
        e(f'ds_write_b16_d16_hi {vr(lHf)}, {vr(t(45))}\nds_write_b16_d16_hi {vr(lHf+1)}, {vr(t(45))}')
        if post_scatter: post_scatter()
        if init_check:
            lw = g.lab('nochk'); lp = g.lab('chk')
            e(f"""s_waitcnt vmcnt(0)
            s_cmp_lg_u32 {sr(sW)}, 0
            s_cbranch_scc1 {lw}
            s_mov_b32 {sr(sCnt)}, 0
            {lp}:
            v_cmp_ne_u32 vcc, 1, {vr(FO+1)}
            s_cbranch_vccz {lw}
            s_add_u32 {sr(sCnt)}, {sr(sCnt)}, 1
            s_cmp_gt_u32 {sr(sCnt)}, {LIMIT}
            s_cbranch_scc1 L_done
            s_sleep 8
            buffer_load_dword {vr(FO+1)}, {vr(FO)}, {sr(sT4,4)}, 0 offen sc1
            s_waitcnt vmcnt(0)
            s_branch {lp}
            {lw}:""")
        e(f"""s_waitcnt lgkmcnt(0)
        s_barrier
        ds_read_b128 {vr(t(0),4)}, {vr(lG)} offset:{HIMG}
        s_mov_b32 {sr(sOff)}, {dst_off}
        s_waitcnt lgkmcnt(0)
        buffer_store_dwordx4 {vr(t(0),4)}, {vr(aP16)}, {sr(sWS,4)}, {sr(sOff)} offen sc1""")

    def affine_from_x(sx1x0_u, sx1x0_v, sKu_, sKv_, outU, outV):
        for (xx, cc, kk, oo) in ((sx1x0_u, sCu, sKu_, outU), (sx1x0_v, sCv, sKv_, outV)):
            if xx is None:
                e(f"""v_mov_b32 {vr(t(44))}, {sr(kk)}
                v_mov_b32 {vr(t(45))}, {sr(kk+1)}
                v_fma_f32 {vr(t(45))}, -{vr(t(44))}, {sr(cc)}, {vr(t(45))}""")
            else:
                e(f"""v_rcp_f32 {vr(t(44))}, {sr(xx)}
                v_mov_b32 {vr(t(45))}, {sr(kk+1)}
                v_mul_f32 {vr(t(44))}, {sr(kk)}, {vr(t(44))}
                v_fma_f32 {vr(t(45))}, -{vr(t(44))}, {sr(xx+1)}, {vr(t(45))}""")
            e(f'v_readfirstlane_b32 {sr(oo)}, {vr(t(44))}\nv_readfirstlane_b32 {sr(oo+1)}, {vr(t(45))}')

    def special_k(dst_off, after_residual):
        ln = g.lab('nok')
        e(f's_cmp_lg_u32 {sr(sRowU)}, 0\ns_cbranch_scc1 {ln}')
        affine_from_x(sAu if after_residual else None, sAv if after_residual else None, sKu, sKv, sH, sH+2)
        ZU, ZV = t(0), t(8)
        for k in range(4): e(f'v_pk_fma_f32 {vr(ZU+2*k,2)}, {vr(XU+2*k,2)}, {sr(sH,2)}, {sr(sH,2)} {PKB}')
        for k in range(4): e(f'v_pk_fma_f32 {vr(ZV+2*k,2)}, {vr(XV+2*k,2)}, {sr(sH+2,2)}, {sr(sH+2,2)} {PKB}')
        write_r(ZU, t(16)); write_n(ZV, t(24))
        A, B = CA, t(40)
        e(f"""s_waitcnt lgkmcnt(0)
        ds_read_b64_tr_b16 {vr(A,2)}, {vr(lTr)} offset:{RIMG}
        ds_read_b64_tr_b16 {vr(B,2)}, {vr(lTr)} offset:{GIMG}
        ds_read_b64_tr_b16 {vr(A+2,2)}, {vr(lTr)} offset:{RIMG+128}
        ds_read_b64_tr_b16 {vr(B+2,2)}, {vr(lTr)} offset:{GIMG+128}
        s_waitcnt lgkmcnt(0)""")
        for k in range(4): e(f'v_pk_add_f16 {vr(A+k)}, {vr(A+k)}, {vr(B+k)} neg_lo:[0,1] neg_hi:[0,1]')
        core(A, CO)
        for k in range(4): e(f'v_pk_mul_f32 {vr(CO+2*k,2)}, {vr(CO+2*k,2)}, {sr(sT2 if False else sM2,2)} op_sel_hi:[1,0]' if False else f'v_mul_f32 {vr(CO+2*k)}, {fbits(1/16)}, {vr(CO+2*k)}\nv_mul_f32 {vr(CO+2*k+1)}, {fbits(1/16)}, {vr(CO+2*k+1)}')
        for k in range(4): e(f'v_cvt_pk_f16_f32 {vr(t(44)+k)}, {vr(CO+2*k)}, {vr(CO+2*k+1)}')
        e(f"""v_lshl_add_u32 {vr(t(0))}, {vr(vQ)}, 7, {vr(vN)}
        v_lshlrev_b32 {vr(t(0))}, 1, {vr(t(0))}
        v_sub_u32 {vr(t(1))}, {1024-32-192}, {vr(t(0))}
        v_mov_b32 {vr(t(2))}, 512
        s_mov_b32 exec_lo, -1
        s_mov_b32 exec_hi, 0""")
        for Tt in range(2):
            for i in range(4):
                op = 'ds_write_b16' if i % 2 == 0 else 'ds_write_b16_d16_hi'
                e(f'{op} {vr(t(0))}, {vr(t(44)+2*Tt+i//2)} offset:{KIMG + 32*Tt + 64*i}')
                e(f'{op} {vr(t(1))}, {vr(t(44)+2*Tt+i//2)} offset:{KIMG + 32*(1-Tt) + 64*(3-i)}')
        e(f"""s_mov_b32 exec_lo, 0
        s_mov_b32 exec_hi, 0x00010000
        ds_write_b16_d16_hi {vr(t(2))}, {vr(t(45))} offset:{KIMG}
        s_mov_b64 exec, -1
        v_lshlrev_b32 {vr(t(3))}, 4, {vr(vL)}
        s_waitcnt lgkmcnt(0)
        ds_read_b128 {vr(t(4),4)}, {vr(t(3))} offset:{KIMG}
        s_mov_b32 {sr(sOff)}, {dst_off}
        s_waitcnt lgkmcnt(0)
        buffer_store_dwordx4 {vr(t(4),4)}, {vr(t(3))}, {sr(sWS,4)}, {sr(sOff)} offen sc1
        {ln}:""")

    PC = t(40)
    def column_load(src_off):
        e(f's_mov_b32 {sr(sOff)}, {src_off}')
        e(ws_load_text(4, PC, aS16, sr(sOff)))
    def column(src_off, dst_off, preloaded):
        P = PC
        e(f's_mov_b32 {sr(sOff)}, {src_off}')
        poll(ws_load_text(4, P, aS16, sr(sOff)), range(P, P+4), preloaded=preloaded)
        stamp('col data')
        e(f"""ds_write_b16 {vr(lCa)}, {vr(P)}
        ds_write_b16_d16_hi {vr(lCa)}, {vr(P)} offset:16
        ds_write_b16 {vr(lCa)}, {vr(P+1)} offset:32
        ds_write_b16_d16_hi {vr(lCa)}, {vr(P+1)} offset:48
        ds_write_b16 {vr(lCb)}, {vr(P+2)}
        ds_write_b16_d16_hi {vr(lCc)}, {vr(P+2)} offset:16
        ds_write_b16 {vr(lCc)}, {vr(P+3)} offset:32
        ds_write_b16_d16_hi {vr(lCc)}, {vr(P+3)} offset:48
        s_waitcnt lgkmcnt(0)
        s_barrier""")
        A = t(0)
        for k in range(4): e(f'ds_read_b128 {vr(A+4*k,4)}, {vr(lCr)} offset:{1024*k}')
        D1 = [t(16), t(20)]
        e(f"""s_waitcnt lgkmcnt(3)
        v_mfma_f32_16x16x32_f16 {vr(D1[0],4)}, {vr(A,4)}, {vr(CB1,4)}, 0
        s_waitcnt lgkmcnt(2)
        v_mfma_f32_16x16x32_f16 {vr(D1[0],4)}, {vr(A+4,4)}, {vr(CB1+4,4)}, {vr(D1[0],4)}
        s_waitcnt lgkmcnt(1)
        v_mfma_f32_16x16x32_f16 {vr(D1[1],4)}, {vr(A+8,4)}, {vr(CB1,4)}, 0
        s_waitcnt lgkmcnt(0)
        v_mfma_f32_16x16x32_f16 {vr(D1[1],4)}, {vr(A+12,4)}, {vr(CB1+4,4)}, {vr(D1[1],4)}""")
        Bb = t(24); br, bi = t(28), t(32); Bo = [t(0), t(4)]
        for Tt in range(2):
            k = CK + 16*Tt
            for i in range(4): e(f'v_mov_b32_dpp {vr(Bb+i)}, {vr(D1[Tt]+i)} row_ror:8 {DPP}')
            for h in range(2):
                e(f"""v_pk_mul_f32 {vr(br+2*h,2)}, {vr(D1[Tt]+2*h,2)}, {vr(k+2*h,2)}
                v_pk_mul_f32 {vr(bi+2*h,2)}, {vr(D1[Tt]+2*h,2)}, {vr(k+8+2*h,2)}""")
            for h in range(2):
                e(f"""v_pk_fma_f32 {vr(br+2*h,2)}, {vr(Bb+2*h,2)}, {vr(k+4+2*h,2)}, {vr(br+2*h,2)}
                v_pk_fma_f32 {vr(bi+2*h,2)}, {vr(Bb+2*h,2)}, {vr(k+12+2*h,2)}, {vr(bi+2*h,2)}""")
            e(f"""v_cvt_pk_f16_f32 {vr(Bo[Tt])}, {vr(br)}, {vr(br+1)}
            v_cvt_pk_f16_f32 {vr(Bo[Tt]+1)}, {vr(br+2)}, {vr(br+3)}
            v_cvt_pk_f16_f32 {vr(Bo[Tt]+2)}, {vr(bi)}, {vr(bi+1)}
            v_cvt_pk_f16_f32 {vr(Bo[Tt]+3)}, {vr(bi+2)}, {vr(bi+3)}""")
        O = [t(8), t(12)]
        e(f"""v_mfma_f32_16x16x32_f16 {vr(O[0],4)}, {vr(CA2,4)}, {vr(Bo[0],4)}, 0
        v_mfma_f32_16x16x32_f16 {vr(O[1],4)}, {vr(CA2+8,4)}, {vr(Bo[0],4)}, 0
        v_mfma_f32_16x16x32_f16 {vr(O[0],4)}, {vr(CA2+4,4)}, {vr(Bo[1],4)}, {vr(O[0],4)}
        v_mfma_f32_16x16x32_f16 {vr(O[1],4)}, {vr(CA2+12,4)}, {vr(Bo[1],4)}, {vr(O[1],4)}
        v_cvt_pk_f16_f32 {vr(t(16))}, {vr(O[0])}, {vr(O[0]+1)}
        v_cvt_pk_f16_f32 {vr(t(17))}, {vr(O[0]+2)}, {vr(O[0]+3)}
        ds_write_b16 {vr(lCo)}, {vr(t(16))}
        ds_write_b16_d16_hi {vr(lCo)}, {vr(t(16))} offset:256
        v_cvt_pk_f16_f32 {vr(t(18))}, {vr(O[1])}, {vr(O[1]+1)}
        v_cvt_pk_f16_f32 {vr(t(19))}, {vr(O[1]+2)}, {vr(O[1]+3)}
        ds_write_b16 {vr(lCo)}, {vr(t(17))} offset:512
        ds_write_b16_d16_hi {vr(lCo)}, {vr(t(17))} offset:768
        ds_write_b16 {vr(lCo+2)}, {vr(t(18))}
        ds_write_b16_d16_hi {vr(lCo+1)}, {vr(t(18))} offset:512
        ds_write_b16 {vr(lCo+1)}, {vr(t(19))} offset:256
        ds_write_b16_d16_hi {vr(lCo+1)}, {vr(t(19))}
        s_waitcnt lgkmcnt(0)
        s_barrier
        ds_read_b128 {vr(t(0),4)}, {vr(lG)} offset:{COUT}
        s_mov_b32 {sr(sOff)}, {dst_off}
        s_waitcnt lgkmcnt(0)
        buffer_store_dwordx4 {vr(t(0),4)}, {vr(aP16)}, {sr(sWS,4)}, {sr(sOff)} offen sc1""")

    YH, YV, KT = t(4), t(8), t(12)
    def row_input(src_off, kb):
        P = t(0)
        lk = g.lab('nok')
        e(f's_bitcmp0_b32 {sr(sW)}, 0\ns_cbranch_scc1 {lk}')
        e(f'v_lshlrev_b32 {vr(t(16))}, 4, {vr(vL)}\ns_mov_b32 {sr(sT3)}, {kb}')
        e(ws_load_text(4, KT, t(16), sr(sT3)))
        e(f'{lk}:')
        e(f's_mov_b32 {sr(sOff)}, {src_off}')
        poll(ws_load_text(4, P, aS16, sr(sOff)), range(P, P+4))
        stamp('row data')
        def wr(slot, areg, off):
            op = 'ds_write_b16' if slot % 2 == 0 else 'ds_write_b16_d16_hi'
            e(f'{op} {vr(areg)}, {vr(P + slot//2)} offset:{YIMG + off}')
        for j in range(4): wr(j, lYd, j*1024)
        wr(4, lYm4, 0); wr(5, lYm, 3*1024); wr(6, lYm, 2*1024); wr(7, lYm, 1024)
        l0 = g.lab('not0')
        e(f's_cmp_lg_u32 {sr(sRho)}, 0\ns_cbranch_scc1 {l0}')
        wr(0, lYm, 0); wr(4, lYd, 4096)
        e(f"""{l0}:
        s_waitcnt lgkmcnt(0)
        s_barrier
        ds_read_b128 {vr(YH,4)}, {vr(lRow)} offset:{YIMG}""")
        lv = g.lab('yv')
        e(f"""s_cmp_lg_u32 {sr(sRowU)}, 0
        s_cbranch_scc1 {lv}
        ds_read_b128 {vr(YV,4)}, {vr(lRow)} offset:{YIMG+4096}
        {lv}:""")
        lk = g.lab('nok2')
        e(f's_bitcmp0_b32 {sr(sW)}, 0\ns_cbranch_scc1 {lk}')
        poll(ws_load_text(4, KT, t(16), sr(sT3)), range(KT, KT+4), preloaded=True)
        e('s_waitcnt lgkmcnt(0)')
        for k in range(4): e(f'v_pk_add_f16 {vr(YH+k)}, {vr(YH+k)}, {vr(KT+k)}')
        e(f'{lk}:\ns_waitcnt lgkmcnt(0)')
    def add_y(yu, yv):
        for k in range(4):
            e(f"""v_fma_mix_f32 {vr(XU+2*k)}, {vr(yu+k)}, {sr(s16)}, {vr(XU+2*k)} op_sel:[0,0,0] op_sel_hi:[1,0,0]
            v_fma_mix_f32 {vr(XU+2*k+1)}, {vr(yu+k)}, {sr(s16)}, {vr(XU+2*k+1)} op_sel:[1,0,0] op_sel_hi:[1,0,0]""")
        for k in range(4):
            e(f"""v_fma_mix_f32 {vr(XV+2*k)}, {vr(yv+k)}, {sr(s16)}, {vr(XV+2*k)} op_sel:[0,0,0] op_sel_hi:[1,0,0]
            v_fma_mix_f32 {vr(XV+2*k+1)}, {vr(yv+k)}, {sr(s16)}, {vr(XV+2*k+1)} op_sel:[1,0,0] op_sel_hi:[1,0,0]""")
    def add_y_pair():
        ls = g.lab('ysp'); lj = g.lab('yj')
        e(f's_cmp_eq_u32 {sr(sRowU)}, 0\ns_cbranch_scc1 {ls}')
        add_y(YH, YH)
        e(f'{lj}:')
        g.late.append((ls, lj))
    g.late = []

    def make_key():
        e(f"""v_ashrrev_i32 {vr(t(22))}, 31, {vr(hR)}
        v_or_b32 {vr(t(22))}, 0x80000000, {vr(t(22))}
        v_xor_b32 {vr(t(22))}, {vr(hR)}, {vr(t(22))}
        v_and_b32 {vr(t(22))}, 0xfffff800, {vr(t(22))}
        v_or_b32 {vr(t(22))}, {vr(vRowH)}, {vr(t(22))}
        v_readlane_b32 {sr(sKeyU)}, {vr(t(22))}, 0
        v_readlane_b32 {sr(sKeyV)}, {vr(t(22))}, 32
        s_lshl_b32 {sr(sT)}, {sr(sW)}, 2
        v_mov_b32 {vr(t(23))}, {sr(sT)}
        s_max_u32 {sr(sKey)}, {sr(sKeyU)}, {sr(sKeyV)}
        v_mov_b32 {vr(t(22))}, {sr(sKey)}
        ds_write_b32 {vr(t(23))}, {vr(t(22))} offset:{AM}""")
    def wg_best_read(tmp):
        e(f'v_mov_b32 {vr(tmp+4)}, 0\nds_read_b128 {vr(tmp,4)}, {vr(tmp+4)} offset:{AM}')
    def wg_best_header(cand, tmp):
        ln = g.lab('nohdr')
        e(f"""v_max3_u32 {vr(tmp)}, {vr(tmp)}, {vr(tmp+1)}, {vr(tmp+2)}
        v_max_u32 {vr(tmp)}, {vr(tmp)}, {vr(tmp+3)}
        v_readfirstlane_b32 {sr(sT)}, {vr(tmp)}
        s_cmp_eq_u32 {sr(sT)}, {sr(sKey)}
        s_cselect_b32 {sr(sSgn)}, 1, 0
        s_cbranch_scc0 {ln}
        s_lshl_b32 {sr(sT)}, {sr(sRho)}, 12
        s_add_u32 {sr(sOff)}, {sr(sT)}, {cand}
        v_mov_b32 {vr(tmp+1)}, {sr(sKey)}
        s_mov_b64 exec, 1
        buffer_store_dword {vr(tmp+1)}, {vr(tmp+4)}, {sr(sWS,4)}, {sr(sOff)} offen sc1
        s_mov_b64 exec, -1
        {ln}:""")
    def publish_rows(cand):
        ln = g.lab('nopub'); lv = g.lab('pubv'); lj = g.lab('pubj')
        e(f's_cmp_eq_u32 {sr(sSgn)}, 0\ns_cbranch_scc1 {ln}')
        e(f"""s_lshl_b32 {sr(sT)}, {sr(sRho)}, 12
        s_add_u32 {sr(sOff)}, {sr(sT)}, {cand}
        s_cmp_gt_u32 {sr(sKeyV)}, {sr(sKeyU)}
        s_cbranch_scc1 {lv}""")
        for (lab_, X_, A_, C_) in ((None, XU, sAu, sCu), (lv, XV, sAv, sCv)):
            if lab_: e(f'{lab_}:')
            e(f"""v_rcp_f32 {vr(t(0))}, {sr(A_)}
            v_mov_b32 {vr(t(1))}, {sr(A_+1)}
            v_mov_b32 {vr(t(2))}, {sr(A_)}
            v_add_f32 {vr(t(2))}, -1.0, {vr(t(2))}
            v_subrev_f32 {vr(t(3))}, {sr(C_)}, {vr(t(1))}
            v_mul_f32 {vr(t(4))}, {vr(t(2))}, {vr(t(0))}
            v_fma_f32 {vr(t(6))}, -{vr(t(4))}, {vr(t(1))}, {vr(t(3))}""")
            Z = t(8)
            for k in range(4): e(f'v_pk_fma_f32 {vr(Z+2*k,2)}, {vr(X_+2*k,2)}, {vr(t(4),2)}, {vr(t(6),2)} op_sel_hi:[1,0,0]')
            if X_ == XU:
                for k in range(4): e(f'v_cvt_pk_bf16_f32 {vr(t(16)+k)}, {vr(Z+2*k)}, {vr(Z+2*k+1)}')
                e(f"""v_lshlrev_b32 {vr(t(1))}, 4, {vr(vL)}
                v_lshlrev_b32 {vr(t(2))}, 5, {vr(vL)}
                buffer_store_dwordx4 {vr(t(16),4)}, {vr(t(1))}, {sr(sWS,4)}, {sr(sOff)} offen offset:128 sc1
                buffer_store_dwordx4 {vr(XU,4)}, {vr(t(2))}, {sr(sWS,4)}, {sr(sOff)} offen offset:1152 sc1
                buffer_store_dwordx4 {vr(XU+4,4)}, {vr(t(2))}, {sr(sWS,4)}, {sr(sOff)} offen offset:1168 sc1
                s_branch {lj}""")
            else:
                e(f"""v_mov_b32_dpp {vr(t(20))}, {vr(Z)} wave_rol:1 {DPP}
                v_mov_b32_dpp {vr(t(24))}, {vr(XV)} wave_rol:1 {DPP}
                v_cvt_pk_bf16_f32 {vr(t(17))}, {vr(Z+6)}, {vr(Z+5)}
                v_cvt_pk_bf16_f32 {vr(t(18))}, {vr(Z+4)}, {vr(Z+3)}
                v_cvt_pk_bf16_f32 {vr(t(19))}, {vr(Z+2)}, {vr(Z+1)}
                v_cvt_pk_bf16_f32 {vr(t(16))}, {vr(t(20))}, {vr(Z+7)}""")
                for k in range(1, 8): e(f'v_mov_b32 {vr(t(24)+k)}, {vr(XV+8-k)}')
                e(f"""v_lshlrev_b32 {vr(t(1))}, 4, {vr(vL)}
                v_sub_u32 {vr(t(1))}, 1008, {vr(t(1))}
                v_lshlrev_b32 {vr(t(2))}, 1, {vr(t(1))}
                buffer_store_dwordx4 {vr(t(16),4)}, {vr(t(1))}, {sr(sWS,4)}, {sr(sOff)} offen offset:128 sc1
                buffer_store_dwordx4 {vr(t(24),4)}, {vr(t(2))}, {sr(sWS,4)}, {sr(sOff)} offen offset:1152 sc1
                buffer_store_dwordx4 {vr(t(28),4)}, {vr(t(2))}, {sr(sWS,4)}, {sr(sOff)} offen offset:1168 sc1""")
        e(f'{lj}:\n{ln}:')

    def header_load(cand, K):
        e(f's_mov_b32 {sr(sOff)}, {cand}')
        e(ws_load_text(1, K, aHdr, sr(sOff)))
    def argmax(cand, K, after_check=None):
        e(f's_mov_b32 {sr(sOff)}, {cand}')
        poll(ws_load_text(1, K, aHdr, sr(sOff)), [K], preloaded=True, backoff=4)
        if after_check: after_check()
        wave_reduce([K], [t(1)], op='v_max_u32')
        e(f"""s_lshl_b32 {sr(sT)}, {sr(sW)}, 2
        v_mov_b32 {vr(t(1))}, {sr(sT)}
        ds_write_b32 {vr(t(1))}, {vr(K)} offset:{AM+32}
        v_mov_b32 {vr(t(1))}, 0
        s_waitcnt lgkmcnt(0)
        s_barrier
        ds_read_b128 {vr(t(4),4)}, {vr(t(1))} offset:{AM+32}
        s_waitcnt lgkmcnt(0)
        v_max3_u32 {vr(t(4))}, {vr(t(4))}, {vr(t(5))}, {vr(t(6))}
        v_max_u32 {vr(t(4))}, {vr(t(4))}, {vr(t(7))}
        v_readfirstlane_b32 {sr(sKey)}, {vr(t(4))}""")
        e(f"""s_and_b32 {sr(sStar)}, {sr(sKey)}, 2047
        s_lshr_b32 {sr(sT)}, {sr(sStar)}, 2
        s_sub_u32 {sr(sT2)}, 511, {sr(sT)}
        s_sub_u32 {sr(sT3)}, 512, {sr(sT)}
        s_and_b32 {sr(sT3)}, {sr(sT3)}, 255
        s_and_b32 {sr(sRec)}, {sr(sStar)}, 3
        s_cmp_eq_u32 {sr(sRec)}, 0
        s_cselect_b32 {sr(sT2)}, {sr(sT3)}, {sr(sT2)}
        s_cmp_lt_u32 {sr(sStar)}, 1024
        s_cselect_b32 {sr(sT2)}, {sr(sT)}, {sr(sT2)}
        s_lshl_b32 {sr(sRec)}, {sr(sT2)}, 12
        s_add_u32 {sr(sRec)}, {sr(sRec)}, {cand}""")
    def sigmoid_of_key():
        e(f"""s_and_b32 {sr(sT)}, {sr(sKey)}, 0xfffff800
        s_or_b32 {sr(sT)}, {sr(sT)}, 0x400
        s_ashr_i32 {sr(sT2)}, {sr(sT)}, 31
        s_not_b32 {sr(sT2)}, {sr(sT2)}
        s_or_b32 {sr(sT2)}, {sr(sT2)}, 0x80000000
        s_xor_b32 {sr(sT)}, {sr(sT)}, {sr(sT2)}
        v_mov_b32 {vr(vSig)}, {fbits(-1.4426950408889634)}
        v_mul_f32 {vr(vSig)}, {sr(sT)}, {vr(vSig)}
        v_exp_f32 {vr(vSig)}, {vr(vSig)}
        v_add_f32 {vr(vSig)}, 1.0, {vr(vSig)}
        v_rcp_f32 {vr(vSig)}, {vr(vSig)}""")

    def ffn_setup():
        e(f"""v_lshlrev_b32 {vr(t(0))}, 5, v0
        ds_write_b128 {vr(t(0))}, {vr(FA,4)} offset:{GU}
        ds_write_b128 {vr(t(0))}, {vr(FA+4,4)} offset:{GU+8192}
        ds_write_b128 {vr(t(0))}, {vr(FA+8,4)} offset:{GU+16}
        ds_write_b128 {vr(t(0))}, {vr(FA+12,4)} offset:{GU+8192+16}
        ds_write_b128 {vr(lG)}, {vr(FD,4)} offset:{DN}
        ds_write_b128 {vr(lG)}, {vr(FD+4,4)} offset:{DN+4096}
        s_mul_i32 {sr(sT)}, {sr(sW)}, {4096-1024}
        v_add_u32 {vr(t(1))}, {sr(sT)}, {vr(lTr)}
        v_lshlrev_b32 {vr(t(2))}, 2, v0
        s_waitcnt lgkmcnt(0)
        s_barrier""")
        for kap in range(4):
            for h in range(2):
                e(f'ds_read_b64_tr_b16 {vr(FA+4*kap+2*h,2)}, {vr(t(1))} offset:{GU + kap*1024 + h*128}')
        for f in range(8): e(f'ds_read_b32 {vr(t(8)+f)}, {vr(t(2))} offset:{DN + f*1024}')
        e('s_waitcnt lgkmcnt(0)')
        for f in range(8):
            e(f'v_lshlrev_b32 {vr(FD+2*f)}, 16, {vr(t(8)+f)}\nv_and_b32 {vr(FD+2*f+1)}, 0xffff0000, {vr(t(8)+f)}')

    XS = t(0)
    def xsel_text():
        return '\n'.join(f'buffer_load_dwordx4 {vr(XS+4*k,4)}, {vr(t(20))}, {sr(sWS,4)}, {sr(sRec)} offen offset:{128+64*k} sc1' for k in range(4))
    def xsel_load():
        e(f"""s_lshl_b32 {sr(sT)}, {sr(sW)}, 8
        v_lshlrev_b32 {vr(t(20))}, 4, {vr(vQ)}
        v_add_u32 {vr(t(20))}, {sr(sT)}, {vr(t(20))}""")
        e(xsel_text())
    def ffn(part):
        ln = g.lab('noffn')
        e(f's_cmp_ge_u32 {sr(sPhi)}, {NF}\ns_cbranch_scc1 {ln}')
        poll(xsel_text(), range(XS, XS+16), preloaded=True)
        Pp = t(16)
        for k in range(4):
            e(f'v_mfma_f32_16x16x32_bf16 {vr(Pp,4)}, {vr(FA+4*k,4)}, {vr(XS+4*k,4)}, {"0" if k==0 else vr(Pp,4)}')
        e(f"""v_lshlrev_b32 {vr(t(21))}, 6, {vr(vQ)}
        s_lshl_b32 {sr(sT)}, {sr(sW)}, 2
        v_add_u32 {vr(t(21))}, {sr(sT)}, {vr(t(21))}
        v_and_b32 {vr(t(22))}, 31, {vr(vL)}
        v_lshlrev_b32 {vr(t(22))}, 2, {vr(t(22))}
        s_mov_b32 exec_lo, 0x00010001
        s_mov_b32 exec_hi, 0x00010001""")
        for i in range(4): e(f'ds_write_b32 {vr(t(21))}, {vr(Pp+i)} offset:{FP + 16*i}')
        e(f"""s_mov_b64 exec, -1
        s_waitcnt lgkmcnt(0)
        s_barrier
        ds_read_b32 {vr(t(12))}, {vr(t(22))} offset:{FP}
        ds_read_b32 {vr(t(13))}, {vr(t(22))} offset:{FP+128}
        s_waitcnt lgkmcnt(0)""")
        gg, uu = t(12), t(13)
        for mod in ('quad_perm:[1,0,3,2]', 'quad_perm:[2,3,0,1]'):
            e(f'v_add_f32_dpp {vr(gg)}, {vr(gg)}, {vr(gg)} {mod} {DPP}\nv_add_f32_dpp {vr(uu)}, {vr(uu)}, {vr(uu)} {mod} {DPP}')
        e(f"""v_mul_f32 {vr(t(14))}, {fbits(-1.4426950408889634)}, {vr(gg)}
        v_exp_f32 {vr(t(14))}, {vr(t(14))}
        v_mul_f32 {vr(uu)}, {vr(uu)}, {vr(vSig)}
        v_add_f32 {vr(t(14))}, 1.0, {vr(t(14))}
        v_rcp_f32 {vr(t(14))}, {vr(t(14))}
        v_mul_f32 {vr(gg)}, {vr(gg)}, {vr(uu)}
        v_mul_f32 {vr(gg)}, {vr(gg)}, {vr(t(14))}""")
        for f in range(8): e(f'v_readlane_b32 {sr(sH+f)}, {vr(gg)}, {4*f}')
        acc = t(16)
        for f in range(8):
            sel = 'op_sel_hi:[1,0,1]' if f % 2 == 0 else 'op_sel:[0,1,0] op_sel_hi:[1,1,1]'
            if f == 0: e(f'v_pk_mul_f32 {vr(acc,2)}, {vr(FD,2)}, {sr(sH,2)} op_sel_hi:[1,0]')
            else: e(f'v_pk_fma_f32 {vr(acc,2)}, {vr(FD+2*f,2)}, {sr(sH + (f & ~1),2)}, {vr(acc,2)} {sel}')
        ws_store(2, acc, aP8, part)
        e(f'{ln}:')

    def reducer(part, final):
        ln = g.lab('nored')
        e(f"""s_sub_u32 {sr(sT3)}, {sr(sWg)}, {RED0}
        s_cmp_ge_u32 {sr(sT3)}, 32
        s_cbranch_scc1 {ln}
        v_lshrrev_b32 {vr(t(20))}, 2, v0
        v_lshlrev_b32 {vr(t(21))}, 11, {vr(t(20))}
        v_and_b32 {vr(t(22))}, 3, v0
        v_lshlrev_b32 {vr(t(22))}, 4, {vr(t(22))}
        s_lshl_b32 {sr(sT)}, {sr(sT3)}, 6
        v_add_u32 {vr(t(25))}, {sr(sT)}, {vr(t(22))}
        v_add_u32 {vr(t(21))}, {vr(t(21))}, {vr(t(25))}
        v_add_u32 {vr(t(23))}, {128*2048}, {vr(t(21))}
        v_mov_b32 {vr(t(24))}, 0x7f000000
        v_cmp_gt_u32 vcc, {NF-128}, {vr(t(20))}
        v_cndmask_b32 {vr(t(23))}, {vr(t(24))}, {vr(t(23))}, vcc
        s_mov_b32 {sr(sOff)}, {part}
        s_add_u32 {sr(sT2)}, {sr(sOff)}, {64*2048}""")
        A, B2, B3, B4 = t(0), t(4), t(8), t(12)
        ld = '\n'.join([ws_load_text(4, A, t(21), sr(sOff)), ws_load_text(4, B2, t(21), sr(sT2)), ws_load_text(4, B3, t(23), sr(sOff))])
        regs = list(range(A, A+12))
        if final:
            ld += '\n' + ws_load_text(4, B4, t(25), sr(sRec), 'offset:1152')
            regs += list(range(B4, B4+4))
        poll(ld, regs)
        for X_ in (B2, B3):
            e(f'v_pk_add_f32 {vr(A,2)}, {vr(A,2)}, {vr(X_,2)}\nv_pk_add_f32 {vr(A+2,2)}, {vr(A+2,2)}, {vr(X_+2,2)}')
        for sh in (4, 8):
            for i in range(4): e(f'v_add_f32_dpp {vr(A+i)}, {vr(A+i)}, {vr(A+i)} row_ror:{sh} {DPP}')
        for sw in ('v_permlane16_swap_b32', 'v_permlane32_swap_b32'):
            for i in range(4): e(f'v_mov_b32 {vr(B2+i)}, {vr(A+i)}')
            for i in range(4): e(f'{sw} {vr(A+i)}, {vr(B2+i)}')
            for i in range(4): e(f'v_add_f32 {vr(A+i)}, {vr(A+i)}, {vr(B2+i)}')
        e(f"""s_lshl_b32 {sr(sT)}, {sr(sW)}, 6
        v_add_u32 {vr(t(24))}, {sr(sT)}, {vr(t(22))}
        s_mov_b64 exec, 15
        ds_write_b128 {vr(t(24))}, {vr(A,4)} offset:{RED}
        s_mov_b64 exec, -1
        s_waitcnt lgkmcnt(0)
        s_barrier
        s_cmp_lg_u32 {sr(sW)}, 0
        s_cbranch_scc1 {ln}""")
        R = t(28)
        for w in range(4): e(f'ds_read_b128 {vr(R+4*w,4)}, {vr(t(22))} offset:{RED + 64*w}')
        e('s_waitcnt lgkmcnt(0)')
        e(f"""v_pk_add_f32 {vr(R,2)}, {vr(R,2)}, {vr(R+4,2)}
        v_pk_add_f32 {vr(R+2,2)}, {vr(R+2,2)}, {vr(R+6,2)}
        v_pk_add_f32 {vr(R+8,2)}, {vr(R+8,2)}, {vr(R+12,2)}
        v_pk_add_f32 {vr(R+10,2)}, {vr(R+10,2)}, {vr(R+14,2)}
        v_pk_add_f32 {vr(R,2)}, {vr(R,2)}, {vr(R+8,2)}
        v_pk_add_f32 {vr(R+2,2)}, {vr(R+2,2)}, {vr(R+10,2)}""")
        if final:
            e(f"""v_pk_add_f32 {vr(R,2)}, {vr(R,2)}, {vr(B4,2)}
            v_pk_add_f32 {vr(R+2,2)}, {vr(R+2,2)}, {vr(B4+2,2)}
            v_cvt_pk_bf16_f32 {vr(R)}, {vr(R)}, {vr(R+1)}
            v_cvt_pk_bf16_f32 {vr(R+1)}, {vr(R+2)}, {vr(R+3)}
            s_lshl_b32 {sr(sT)}, {sr(sStar)}, 10
            v_lshrrev_b32 {vr(t(25))}, 1, {vr(t(25))}
            v_add_u32 {vr(t(25))}, {sr(sT)}, {vr(t(25))}
            s_mov_b64 exec, 15
            buffer_store_dwordx2 {vr(R,2)}, {vr(t(25))}, {sr(sOUT,4)}, 0 offen sc1
            s_mov_b64 exec, -1""")
        else:
            e(f"""s_mov_b32 {sr(sOff)}, {UPD0}
            s_mov_b64 exec, 15
            buffer_store_dwordx4 {vr(R,4)}, {vr(t(25))}, {sr(sWS,4)}, {sr(sOff)} offen sc1
            s_mov_b64 exec, -1""")
        e(f'{ln}:')

    addr_p1()
    row_consts()
    la = g.lab('nosig')
    e(f"""s_cmp_ge_u32 {sr(sWg)}, 64
    s_cbranch_scc1 {la}
    s_waitcnt vmcnt({N_AFTER_POISON})
    s_barrier
    s_cmp_lg_u32 {sr(sW)}, 0
    s_cbranch_scc1 {la}""")
    srd(sT4, kdbg, 256)
    e(f"""v_mov_b32 {vr(t(4))}, 0
    v_mov_b32 {vr(t(5))}, 1
    s_mov_b64 exec, 1
    buffer_atomic_add {vr(t(5))}, {vr(t(4))}, {sr(sT4,4)}, 0 offen sc0 sc1
    s_waitcnt vmcnt(0)
    v_cmp_eq_u32 vcc, {NPOIS-1}, {vr(t(5))}
    s_cbranch_vccz {la}_x
    v_mov_b32 {vr(t(5))}, 1
    buffer_store_dword {vr(t(5))}, {vr(t(4))}, {sr(sT4,4)}, 0 offen offset:128 sc1
    {la}_x:
    s_mov_b64 exec, -1
    {la}:""")
    weight_loads()
    stamp('rowconst')
    addr_col()
    col_consts()
    addr_row()
    stamp('preamble')
    e(f's_waitcnt vmcnt({N_AFTER_X})')
    stamp('x0')
    unpack_nat(XU, URAW); unpack_rev(XV, VRAW, t(16))
    stats2(False)
    norm_coeffs(hRho, hB)
    make_g()
    transform(HB0, init_check=True)
    stamp('P1 stored')
    finish_here('P1')
    special_k(KB0, False)
    poison_regs()
    e(f"""s_sub_u32 {sr(sT3)}, {sr(sWg)}, {RED0}
    s_lshl_b32 {sr(sT)}, {sr(sT3)}, 6
    v_lshlrev_b32 {vr(t(6))}, 2, v0
    v_add_u32 {vr(t(6))}, {sr(sT)}, {vr(t(6))}
    v_cmp_gt_u32 vcc, 16, v0
    s_cmp_lt_u32 {sr(sT3)}, 32
    s_cselect_b64 {sr(sEx,2)}, vcc, 0
    v_mov_b32 {vr(t(7))}, 0x7f000000
    v_cndmask_b32 {vr(t(6))}, {vr(t(7))}, {vr(t(6))}, {sr(sEx,2)}""")
    ws_store(4, PZ, aP16, HB1); ws_store(4, PZ, aP16, CAND0); ws_store(2, PZ, aP8, PART0); ws_store(1, PZ, t(6), UPD0)
    ffn_setup()
    unpack_nat(WU, WURAW); unpack_rev(WV, WVRAW, t(16))
    e(f"""v_pk_add_f32 {vr(t(16),2)}, {vr(WU,2)}, {vr(WU+2,2)}
    v_pk_add_f32 {vr(t(18),2)}, {vr(WU+4,2)}, {vr(WU+6,2)}
    v_pk_add_f32 {vr(t(16),2)}, {vr(t(16),2)}, {vr(t(18),2)}
    v_add_f32 {vr(t(16))}, {vr(t(16))}, {vr(t(17))}""")
    wave_reduce([t(16)], [t(17)])
    e(f'v_readfirstlane_b32 {sr(sSW)}, {vr(t(16))}')
    stamp('shadow1')
    e('s_waitcnt vmcnt(0)')
    column(HB0, YB0, False)
    stamp('P2 stored')
    finish_here('P2')
    poison_regs()
    ws_store(4, PZ, aP16, YB1); ws_store(4, PZ, aP16, CAND1); ws_store(2, PZ, aP8, PART1)
    e('s_waitcnt vmcnt(0)')
    row_input(YB0, KB0)
    add_y_pair()
    stats2(True)
    make_key()
    residual_coeffs()
    e(f"""v_mul_f32 {vr(t(23))}, {vr(t(21))}, {vr(t(21))}
    v_mul_f32 {vr(t(23))}, {vr(t(23))}, {vr(hVar)}
    v_add_f32 {vr(t(23))}, {fbits(1e-5)}, {vr(t(23))}
    v_rsq_f32 {vr(t(23))}, {vr(t(23))}
    s_waitcnt lgkmcnt(0)
    s_barrier""")
    wg_best_read(t(24))
    e(f"""v_mul_f32 {vr(t(22))}, {vr(t(21))}, {vr(t(23))}
    v_mul_f32 {vr(t(23))}, -{vr(hM)}, {vr(t(22))}""")
    norm_coeffs(t(22), t(23))
    e('s_waitcnt lgkmcnt(0)')
    wg_best_header(CAND0, t(24))
    stamp('hdr0')
    make_g()
    residual_update(XU, XV)
    transform(HB1, post_scatter=lambda: publish_rows(CAND0))
    stamp('P3 stored')
    finish_here('P3')
    K = t(0)
    header_load(CAND0, vSig)
    special_k(KB1, True)
    e(f's_waitcnt vmcnt(0)\nv_mov_b32 {vr(K)}, {vr(vSig)}')
    argmax(CAND0, K, after_check=lambda: column_load(HB1))
    stamp('argmax0')
    lb = g.lab('nobase')
    e(f"""s_cmp_ge_u32 {sr(sW)}, 2
    s_cbranch_scc1 {lb}
    v_lshlrev_b32 {vr(t(21))}, 5, {vr(vL)}
    buffer_load_dwordx4 {vr(FX,4)}, {vr(t(21))}, {sr(sWS,4)}, {sr(sRec)} offen offset:1152 sc1
    buffer_load_dwordx4 {vr(FX+4,4)}, {vr(t(21))}, {sr(sWS,4)}, {sr(sRec)} offen offset:1168 sc1
    {lb}:""")
    lb = g.lab('nox')
    e(f's_cmp_ge_u32 {sr(sPhi)}, {NF}\ns_cbranch_scc1 {lb}')
    xsel_load()
    e(f'{lb}:')
    sigmoid_of_key()
    e(f"""s_mul_i32 {sr(sT)}, {sr(sRowU)}, {sr(sStar)}
    s_and_b32 {sr(sT)}, {sr(sT)}, 2047
    v_cvt_f32_u32 {vr(vCa)}, {sr(sT)}
    v_mul_f32 {vr(vCa)}, {fbits(1/2048)}, {vr(vCa)}
    v_sin_f32 {vr(vSa)}, {vr(vCa)}
    v_cos_f32 {vr(vCa)}, {vr(vCa)}
    v_mul_f32 {vr(vSa)}, {fbits(1/32)}, {vr(vSa)}
    v_mul_f32 {vr(vCa)}, {fbits(1/32)}, {vr(vCa)}
    v_cvt_pk_f16_f32 {vr(vSa)}, {vr(vSa)}, {vr(vSa)}
    v_cvt_pk_f16_f32 {vr(vCa)}, {vr(vCa)}, {vr(vCa)}
    s_waitcnt vmcnt(0)""")
    stamp('xsel')
    ffn(PART0)
    stamp('ffn0')
    column(HB1, YB1, True)
    stamp('P4 stored')
    finish_here('P4')
    lb = g.lab('nobase')
    e(f's_cmp_ge_u32 {sr(sW)}, 2\ns_cbranch_scc1 {lb}')
    e(f'v_lshlrev_b32 {vr(t(21))}, 5, {vr(vL)}')
    poll(f'buffer_load_dwordx4 {vr(FX,4)}, {vr(t(21))}, {sr(sWS,4)}, {sr(sRec)} offen offset:1152 sc1\n'
         f'buffer_load_dwordx4 {vr(FX+4,4)}, {vr(t(21))}, {sr(sWS,4)}, {sr(sRec)} offen offset:1168 sc1', range(FX, FX+8), preloaded=True)
    stats1(FX, t(0), FO)
    e(f'{lb}:')
    e('s_waitcnt vmcnt(0)')
    reducer(PART0, False)
    stamp('red0')
    e('s_waitcnt vmcnt(0)')
    row_input(YB1, KB1)
    stamp('y1 read')
    lj = g.lab('fixj'); lq = g.lab('fix'); lu = g.lab('ownu'); lv = g.lab('ownv')
    U = t(16)
    updld = lambda areg: (ws_load_text(4, U, areg, sr(sOff)) + '\n' + ws_load_text(4, U+4, areg, sr(sOff), 'offset:16'))
    def owner_add():
        l1 = g.lab('nu'); l2 = g.lab('nv')
        e(f's_cmp_lg_u32 {sr(sStar)}, {sr(sRowU)}\ns_cbranch_scc1 {l1}')
        for k in range(4): e(f'v_pk_add_f32 {vr(XU+2*k,2)}, {vr(XU+2*k,2)}, {vr(U+2*k,2)}')
        e(f'{l1}:')
    e(f"""v_lshlrev_b32 {vr(t(44))}, 5, {vr(vL)}
    s_mov_b32 {sr(sOff)}, {UPD0}""")
    lnv = g.lab('notv')
    e(f"""s_cmp_lg_u32 {sr(sStar)}, {sr(sRowV)}
    s_cbranch_scc1 {lnv}
    v_sub_u32 {vr(t(45))}, {63*32}, {vr(t(44))}""")
    poll(updld(t(45)), range(U, U+8), backoff=4)
    e(f'v_mov_b32_dpp {vr(t(46))}, {vr(U)} wave_ror:1 {DPP}')
    for k in range(1, 8): e(f'v_add_f32 {vr(XV+k)}, {vr(XV+k)}, {vr(U+8-k)}')
    e(f'v_add_f32 {vr(XV)}, {vr(XV)}, {vr(t(46))}\n{lnv}:')
    e(f"""s_cmp_lt_u32 {sr(sW)}, 2
    s_cbranch_scc1 {lq}
    s_cmp_lg_u32 {sr(sStar)}, {sr(sRowU)}
    s_cbranch_scc1 {lj}""")
    poll(updld(t(44)), range(U, U+8), backoff=4)
    owner_add()
    e(f's_branch {lj}\n{lq}:')
    poll(updld(t(44)), range(U, U+8), backoff=4)
    stamp('upd')
    owner_add()
    for k in range(4): e(f'v_pk_add_f32 {vr(FX+2*k,2)}, {vr(FX+2*k,2)}, {vr(U+2*k,2)}')
    stats1(FX, t(32), FX)
    for k in range(4): e(f'v_pk_add_f32 {vr(FX+2*k,2)}, {vr(FX+2*k,2)}, {vr(FO+2*k,2)} neg_lo:[0,1] neg_hi:[0,1]')
    write_n(FX, t(24)); write_r(FX, t(40))
    A, B = CA, t(40)
    for k in range(8): e(f'v_mov_b32 {vr(FO+k)}, {vr(YH+k)}')
    e(f"""s_mov_b32 {sr(sT)}, 0x3c003c00
    s_cmp_eq_u32 {sr(sW)}, 0
    s_cselect_b32 {sr(sSgn)}, {sr(sT)}, 0xbc00bc00
    s_waitcnt lgkmcnt(0)
    ds_read_b64_tr_b16 {vr(A,2)}, {vr(lTr)} offset:{GIMG}
    ds_read_b64_tr_b16 {vr(B,2)}, {vr(lTr)} offset:{RIMG}
    ds_read_b64_tr_b16 {vr(A+2,2)}, {vr(lTr)} offset:{GIMG+128}
    ds_read_b64_tr_b16 {vr(B+2,2)}, {vr(lTr)} offset:{RIMG+128}
    s_waitcnt lgkmcnt(0)""")
    for k in range(4): e(f'v_pk_fma_f16 {vr(A+k)}, {vr(B+k)}, {sr(sSgn)}, {vr(A+k)}')
    core(A, CO)
    for k in range(4): e(f'v_cvt_pk_f16_f32 {vr(t(44)+k)}, {vr(CO+2*k)}, {vr(CO+2*k+1)}')
    e(f"""v_lshl_add_u32 {vr(t(0))}, {vr(vQ)}, 7, {vr(vN)}
    v_lshlrev_b32 {vr(t(1))}, 7, {vr(vQ)}
    v_sub_u32 {vr(t(1))}, {32*23}, {vr(t(1))}
    v_add_u32 {vr(t(1))}, {vr(t(1))}, {vr(vN)}
    v_cmp_gt_u32 vcc, 2, {vr(vQ)}
    v_cndmask_b32 {vr(t(0))}, {vr(t(1))}, {vr(t(0))}, vcc
    v_lshlrev_b32 {vr(t(0))}, 1, {vr(t(0))}
    s_lshl_b32 {sr(sT)}, {sr(sW)}, 10
    v_add_u32 {vr(t(0))}, {sr(sT)}, {vr(t(0))}
    v_mov_b32 {vr(t(2))}, 64
    v_mov_b32 {vr(t(3))}, -64
    v_cndmask_b32 {vr(t(2))}, {vr(t(3))}, {vr(t(2))}, vcc""")
    for i in range(4):
        op = 'ds_write_b16' if i % 2 == 0 else 'ds_write_b16_d16_hi'
        for Tt in range(2):
            e(f'{op} {vr(t(0))}, {vr(t(44)+2*Tt+i//2)} offset:{RIMG + 2048 + 32*Tt}')
        if i < 3: e(f'v_add_u32 {vr(t(0))}, {vr(t(0))}, {vr(t(2))}')
    for k in range(8): e(f'v_mov_b32 {vr(YH+k)}, {vr(FO+k)}')
    e(f"""{lj}:
    s_waitcnt lgkmcnt(0)
    s_barrier
    v_lshlrev_b32 {vr(t(0))}, 4, {vr(vL)}
    ds_read_b128 {vr(t(16),4)}, {vr(t(0))} offset:{RIMG+2048}
    ds_read_b128 {vr(t(20),4)}, {vr(t(0))} offset:{RIMG+2048+1024}
    s_waitcnt lgkmcnt(1)""")
    lsp = g.lab('fsp')
    for k in range(4): e(f'v_pk_fma_f16 {vr(YH+k)}, {vr(t(16)+k)}, {vr(vCa)}, {vr(YH+k)}')
    e(f'''s_cmp_lg_u32 {sr(sRowU)}, 0
    s_cbranch_scc1 {lsp}
    s_mov_b32 {sr(sT)}, 0x28002800
    s_bitcmp0_b32 {sr(sStar)}, 0
    s_cselect_b32 {sr(sT)}, {sr(sT)}, 0xa800a800''')
    for k in range(4): e(f'v_pk_fma_f16 {vr(YV+k)}, {vr(t(16)+k)}, {sr(sT)}, {vr(YV+k)}')
    e(f'{lsp}:\ns_waitcnt lgkmcnt(0)')
    for k in range(4): e(f'v_pk_fma_f16 {vr(YH+k)}, {vr(t(20)+k)}, {vr(vSa)}, {vr(YH+k)}')
    add_y_pair()
    stamp('fixed')
    stats2(True)
    make_key()
    residual_coeffs()
    e('s_waitcnt lgkmcnt(0)\ns_barrier')
    wg_best_read(t(24))
    residual_update(XU, XV)
    e('s_waitcnt lgkmcnt(0)')
    wg_best_header(CAND1, t(24))
    publish_rows(CAND1)
    e('s_waitcnt vmcnt(0)\ns_barrier')
    stamp('cand1')
    header_load(CAND1, K)
    e('s_waitcnt vmcnt(0)')
    argmax(CAND1, K)
    stamp('argmax1')
    lb = g.lab('nox')
    e(f's_cmp_ge_u32 {sr(sPhi)}, {NF}\ns_cbranch_scc1 {lb}')
    xsel_load()
    e(f'{lb}:')
    sigmoid_of_key()
    ln = g.lab('noout')
    e(f's_cmp_eq_u32 {sr(sStar)}, {sr(sRowU)}\ns_cbranch_scc1 {ln}')
    for k in range(4): e(f'v_cvt_pk_bf16_f32 {vr(t(24)+k)}, {vr(XU+2*k)}, {vr(XU+2*k+1)}')
    e(f'buffer_store_dwordx4 {vr(t(24),4)}, {vr(aU)}, {sr(sOUT,4)}, 0 offen sc1\n{ln}:')
    ln = g.lab('noout')
    e(f's_cmp_eq_u32 {sr(sStar)}, {sr(sRowV)}\ns_cbranch_scc1 {ln}')
    e(f"""v_mov_b32_dpp {vr(t(32))}, {vr(XV)} wave_rol:1 {DPP}
    v_cvt_pk_bf16_f32 {vr(t(29))}, {vr(XV+6)}, {vr(XV+5)}
    v_cvt_pk_bf16_f32 {vr(t(30))}, {vr(XV+4)}, {vr(XV+3)}
    v_cvt_pk_bf16_f32 {vr(t(31))}, {vr(XV+2)}, {vr(XV+1)}
    v_cvt_pk_bf16_f32 {vr(t(28))}, {vr(t(32))}, {vr(XV+7)}
    buffer_store_dwordx4 {vr(t(28),4)}, {vr(aV)}, {sr(sOUT,4)}, 0 offen sc1
    {ln}:""")
    e('s_waitcnt vmcnt(0)')
    ffn(PART1)
    stamp('ffn1')
    e('s_waitcnt vmcnt(0)')
    reducer(PART1, True)
    stamp('end')
    e('L_done:')
    if stamps:
        ls = g.lab('nost')
        e(f"""s_cmp_ge_u32 s2, 256
        s_cbranch_scc1 {ls}
        s_waitcnt vmcnt(0)
        s_mov_b64 exec, -1
        s_lshl_b32 {sr(sT)}, {sr(sWg)}, 11
        s_lshl_b32 {sr(sT2)}, {sr(sW)}, 8
        s_add_u32 {sr(sT)}, {sr(sT)}, {sr(sT2)}
        v_and_b32 {vr(t(0))}, 63, v0
        v_lshlrev_b32 {vr(t(0))}, 2, {vr(t(0))}
        v_add_u32 {vr(t(0))}, {sr(sT)}, {vr(t(0))}
        s_mov_b32 {sr(sOff)}, {STAMP}
        buffer_store_dword {vr(vStamp)}, {vr(t(0))}, {sr(sWS,4)}, {sr(sOff)} offen
        {ls}:""")
    e('s_endpgm')
    for ls, lj in g.late:
        e(f'{ls}:')
        add_y(YH, YV)
        e(f's_branch {lj}')
    emit_tail()
    return g

def render(g):
    lines, added = pad(g.L)
    body = '\n'.join(('' if l.endswith(':') else '    ') + l for l in lines)
    ninstr = sum(1 for l in lines if not l.endswith(':'))
    hdr = f"""; FNet (2-D real DFT via Hartley factorisation on MFMA) + top-1 routed SwiGLU, two layers, one persistent launch.
; @launch grid=(256,1,1) block=(256,1,1) lds={LDS_SIZE}
.amdgcn_target "amdgcn-amd-amdhsa--gfx950"
.text
.globl {NAME}
.p2align 8
.type {NAME},@function
{NAME}:
"""
    tail = f"""
L_code_end:
.section .rodata,"a"
.p2align 6
.amdhsa_kernel {NAME}
  .amdhsa_next_free_vgpr 256
  .amdhsa_next_free_sgpr 102
  .amdhsa_accum_offset 256
  .amdhsa_group_segment_fixed_size 0
  .amdhsa_kernarg_size 104
  .amdhsa_user_sgpr_count 2
  .amdhsa_user_sgpr_kernarg_segment_ptr 1
  .amdhsa_system_sgpr_workgroup_id_x 1
.end_amdhsa_kernel
"""
    return hdr + body + tail, ninstr, added

if __name__ == '__main__':
    import argparse
    ap = argparse.ArgumentParser()
    ap.add_argument('-o', default='interleave_layers__spectral_fnet__moe_arch_mod__prompt.s')
    ap.add_argument('--stop'); ap.add_argument('--stamps', action='store_true')
    a = ap.parse_args()
    g = build(a.stop, a.stamps)
    txt, n, added = render(g)
    open(a.o, 'w').write(txt)
    print(f'{n} instructions, {added} nop slots added, vgpr high {g.v.n}, sgpr high {g.s.n}')
```

```python
import sys, struct, math
from asmlib import pad, Alloc

NAME = "interleave_layers__spectral_fnet__moe_arch_mod__prompt_kernel"
HB0, YB0, HB1, YB1 = 0x000000, 0x100000, 0x200000, 0x300000
CAND0, CAND1 = 0x400000, 0x500000
PART0, PART1 = 0x600000, 0x680000
UPD0 = 0x700000
KB0, KB1 = 0x701000, 0x702000
STAMP = 0x780000
WS_SIZE = 0x800000
NF = 172
RED0 = 8
LIMIT = 40000
NPOIS = 64
YIMG = 0
GIMG = 5120
RIMG = 9216
HIMG = 13312
CIN = 17472
COUT = 21568
KIMG = 25664
FP = 26752
AM = 27008
RED = 27072
GU = 27392
DN = GU + 16384
LDS_SIZE = DN + 8192

def fbits(x): return '0x%08x' % struct.unpack('<I', struct.pack('<f', x))[0]

class G:
    def __init__(self, stop=None, stamps=False):
        self.L = []; self.stop = stop; self.stamps = stamps; self.uid = 0; self.nstamp = 0; self.names = []
        self.v = Alloc(1, 256, 'v'); self.s = Alloc(3, 100, 's')
    def e(self, text):
        for l in text.strip('\n').split('\n'):
            l = l.strip()
            if l: self.L.append(l)
    def lab(self, p):
        self.uid += 1; return f'L_{p}_{self.uid}'

def vr(a, n=1): return f'v{a}' if n == 1 else f'v[{a}:{a+n-1}]'
def sr(a, n=1): return f's{a}' if n == 1 else f's[{a}:{a+n-1}]'
DPP = 'row_mask:0xf bank_mask:0xf'
PKB = 'op_sel:[0,0,1] op_sel_hi:[1,0,1]'

def build(stop=None, stamps=False, opt=None):
    opt = opt or {}
    g = G(stop, stamps); e = g.e; V = g.v; S = g.s
    sWS = S('ws', 4, 4); sXS = S('xsrd', 4, 4); sOUT = S('out', 4, 4); sT4 = S('tmpsrd', 4, 4)
    sRho = S('rho'); sW = S('w'); sRowU = S('rowu'); sRowV = S('rowv'); sVs = S('vs'); sOff = S('off'); sCnt = S('cnt')
    sT = S('t'); sT2 = S('t2'); sT3 = S('t3'); s16 = S('k16'); sStar = S('star'); sRec = S('rec'); sWg = S('wg'); sSW = S('sw')
    sCu = S('cu', 2, 2); sCv = S('cv', 2, 2); sEx = S('exsave', 2, 2)
    sAu = S('au', 2, 2); sAv = S('av', 2, 2); sKu = S('ku', 2, 2); sKv = S('kv', 2, 2); sKeyU = S('keyu'); sKeyV = S('keyv'); sKey = S('key')
    sH = S('h', 8, 2); sTm = S('tm', 2, 2); sPC = S('pc', 2, 2); sM2 = S('m2', 2, 2); sPhi = S('phi'); sSgn = S('sgn')
    sKA = S('ka', 16, 4); sKB = S('kb', 8, 4); sKC = S('kc', 2, 2)
    vL = V('lane'); vN = V('n'); vQ = V('q')
    XU = V('XU', 8, 4); XV = V('XV', 8, 4); WU = V('WU', 8, 2); WV = V('WV', 8, 2)
    RB1 = V('RB1', 16, 4); RC = V('RC', 8, 2); RS = V('RS', 8, 2); RA2 = V('RA2', 4, 4)
    CB1 = V('CB1', 8, 4); CK = V('CK', 32, 2); CA2 = V('CA2', 16, 4)
    FA = V('FA', 16, 4); FD = V('FD', 16, 4)
    aU = V('aU'); aV = V('aV'); aP16 = V('aP16'); aS16 = V('aS16'); aHdr = V('aHdr'); aP8 = V('aP8')
    lYd = V('lYd'); lYm = V('lYm'); lYm4 = V('lYm4'); lRow = V('lRow'); lTr = V('lTr'); lRw = V('lRw')
    lH = V('lH', 2); lHf = V('lHf', 2); lG = V('lG')
    lCa = V('lCa'); lCb = V('lCb'); lCc = V('lCc'); lCr = V('lCr'); lCo = V('lCo', 3)
    vRowH = V('rowh'); vSig = V('sig'); vSent = V('sent'); vCa = V('cosa'); vSa = V('sina'); vStamp = V('stamp')
    FX = V('FX', 8, 4); FO = V('FO', 8, 4)
    NT = 256 - ((V.n + 3)//4*4)
    T = V('T', NT, 4)
    def t(i):
        assert i < NT, i
        return T + i
    DU, DV = t(0), t(8)

    def stamp(name=''):
        if not g.stamps: return
        e(f'''s_memrealtime {sr(sTm,2)}
        s_waitcnt lgkmcnt(0)
        v_writelane_b32 {vr(vStamp)}, {sr(sTm)}, {g.nstamp}''')
        g.nstamp += 1; g.names.append(name)
    def finish_here(tag):
        if g.stop == tag: e('s_branch L_done')

    def sentinel(regs):
        regs = list(regs); tm = vSent
        if len(regs) == 1:
            e(f'v_cmp_eq_u32 vcc, -1, {vr(regs[0])}')
        else:
            if len(regs) >= 3:
                e(f'v_max3_u32 {vr(tm)}, {vr(regs[0])}, {vr(regs[1])}, {vr(regs[2])}'); rest = regs[3:]
            else:
                e(f'v_max_u32 {vr(tm)}, {vr(regs[0])}, {vr(regs[1])}'); rest = []
            while len(rest) >= 2:
                e(f'v_max3_u32 {vr(tm)}, {vr(tm)}, {vr(rest[0])}, {vr(rest[1])}'); rest = rest[2:]
            if rest: e(f'v_max_u32 {vr(tm)}, {vr(tm)}, {vr(rest[0])}')
            e(f'v_cmp_eq_u32 vcc, -1, {vr(tm)}')
    def poll(load, regs, backoff=2, preloaded=False):
        lp = g.lab('poll'); ok = g.lab('ok')
        if preloaded:
            sentinel(regs)
            e(f's_cbranch_vccnz {lp}\n{ok}:')
            g.tail.append((lp, ok, load, list(regs), backoff))
        else:
            e(load); e('s_waitcnt vmcnt(0)')
            sentinel(regs)
            e(f's_cbranch_vccnz {lp}\n{ok}:')
            g.tail.append((lp, ok, load, list(regs), backoff))
    g.tail = []
    def emit_tail():
        for lp, ok, load, regs, backoff in g.tail:
            l2 = lp + '_r'
            e(f'{lp}:\ns_mov_b32 {sr(sCnt)}, 0\n{l2}:\ns_sleep {backoff}')
            e(load)
            e(f'''s_add_u32 {sr(sCnt)}, {sr(sCnt)}, 1
            s_cmp_gt_u32 {sr(sCnt)}, {LIMIT}
            s_cbranch_scc1 L_done
            s_waitcnt vmcnt(0)''')
            sentinel(regs)
            e(f's_cbranch_vccnz {l2}\ns_branch {ok}')
    def srd(dst, ptr, size):
        e(f'''s_mov_b32 {sr(dst)}, {sr(ptr)}
        s_mov_b32 {sr(dst+1)}, {sr(ptr+1)}
        s_mov_b32 {sr(dst+2)}, {size}
        s_mov_b32 {sr(dst+3)}, 0x00020000''')
    def ws_store(n, data, areg, region, extra=''):
        op = {1: 'buffer_store_dword', 2: 'buffer_store_dwordx2', 4: 'buffer_store_dwordx4'}[n]
        e(f's_mov_b32 {sr(sOff)}, {region}\n{op} {vr(data,n)}, {vr(areg)}, {sr(sWS,4)}, {sr(sOff)} offen sc1 {extra}')
    def ws_load_text(n, data, areg, soff, extra=''):
        op = {1: 'buffer_load_dword', 2: 'buffer_load_dwordx2', 4: 'buffer_load_dwordx4'}[n]
        return f'{op} {vr(data,n)}, {vr(areg)}, {sr(sWS,4)}, {soff} offen {extra} sc1'
    PZ = t(40)
    def poison_regs():
        for k in range(4): e(f'v_mov_b32 {vr(PZ+k)}, -1')

    e(f's_cmp_ge_u32 s2, 256\ns_cbranch_scc1 L_done')
    if stamps: e(f's_memrealtime {sr(sM2,2)}')
    e(f'''s_load_dwordx16 {sr(sKA,16)}, s[0:1], 0
    s_load_dwordx8 {sr(sKB,8)}, s[0:1], 64
    s_load_dwordx2 {sr(sKC,2)}, s[0:1], 96''')
    if not opt.get('nopf'):
        e(f'''s_getpc_b64 {sr(sPC,2)}
        L_pc:
        v_lshlrev_b32 {vr(t(0))}, 7, v0
        v_min_u32 {vr(t(0))}, L_code_end-L_pc-4, {vr(t(0))}
        global_load_dword {vr(vSig)}, {vr(t(0))}, {sr(sPC,2)}''')
    e(f'''s_mov_b32 {sr(sWg)}, s2
    s_and_b32 {sr(sT)}, s2, 7
    s_lshl_b32 {sr(sT)}, {sr(sT)}, 5
    s_lshr_b32 {sr(sRho)}, s2, 3
    s_or_b32 {sr(sRho)}, {sr(sRho)}, {sr(sT)}
    v_lshrrev_b32 {vr(t(1))}, 6, v0
    v_and_b32 {vr(vL)}, 63, v0
    v_readfirstlane_b32 {sr(sW)}, {vr(t(1))}
    v_lshlrev_b32 {vr(t(2))}, 4, {vr(vL)}
    v_sub_u32 {vr(t(3))}, 1008, {vr(t(2))}
    s_lshl_b32 {sr(sT)}, {sr(sRho)}, 2
    s_add_u32 {sr(sRowU)}, {sr(sT)}, {sr(sW)}
    s_sub_u32 {sr(sRowV)}, 2048, {sr(sRowU)}
    s_cmp_eq_u32 {sr(sRowU)}, 0
    s_cselect_b32 {sr(sRowV)}, 1024, {sr(sRowV)}
    s_lshl_b32 {sr(sT)}, {sr(sRowU)}, 10
    s_lshl_b32 {sr(sT2)}, {sr(sRowV)}, 10
    v_add_u32 {vr(aU)}, {sr(sT)}, {vr(t(2))}
    v_add_u32 {vr(aV)}, {sr(sT2)}, {vr(t(3))}
    s_lshl_b32 {sr(sT)}, {sr(sRho)}, 12
    v_lshlrev_b32 {vr(lG)}, 4, v0
    v_add_u32 {vr(aP16)}, {sr(sT)}, {vr(lG)}''')
    poison_regs()
    e('s_waitcnt lgkmcnt(0)')
    kx, kwr, kwg = sKA + 0, sKA + 12, sKA + 14
    kwu, kwd, kout, kdbg = sKB + 0, sKB + 2, sKB + 4, sKB + 6
    URAW, VRAW = t(8), t(12)
    WURAW, WVRAW = FX, FX + 4
    srd(sXS, kx, 2097152)
    e(f'''buffer_load_dwordx4 {vr(URAW,4)}, {vr(aU)}, {sr(sXS,4)}, 0 offen
    buffer_load_dwordx4 {vr(VRAW,4)}, {vr(aV)}, {sr(sXS,4)}, 0 offen''')
    srd(sWS, sKC, WS_SIZE)
    if stamps:
        e(f'v_mov_b32 {vr(vStamp)}, 0\nv_writelane_b32 {vr(vStamp)}, {sr(sM2)}, 0'); g.nstamp = 1; g.names.append('start')
    la = g.lab('nopois')
    e(f'''s_cmp_ge_u32 {sr(sWg)}, 64
    s_cbranch_scc1 {la}
    s_lshl_b32 {sr(sT)}, {sr(sWg)}, 14
    v_add_u32 {vr(t(4))}, {sr(sT)}, {vr(lG)}''')
    for k in range(4): ws_store(4, PZ, t(4), HB0 + 4096*k)
    e(f'{la}:')
    ws_store(4, PZ, aP16, YB0)
    e(f'''v_mov_b32 {vr(t(5))}, 0x7f000000
    v_cmp_gt_u32 vcc, 64, v0
    s_cmp_eq_u32 {sr(sRho)}, 0
    s_cselect_b64 {sr(sEx,2)}, vcc, 0
    v_cndmask_b32 {vr(t(5))}, {vr(t(5))}, {vr(lG)}, {sr(sEx,2)}''')
    ws_store(4, PZ, t(5), KB0)
    ws_store(4, PZ, t(5), KB1)
    srd(sT4, kwr, 1024)
    e(f'''buffer_load_dwordx4 {vr(WURAW,4)}, {vr(t(2))}, {sr(sT4,4)}, 0 offen
    buffer_load_dwordx4 {vr(WVRAW,4)}, {vr(t(3))}, {sr(sT4,4)}, 0 offen''')
    e(f's_sub_u32 {sr(sPhi)}, {sr(sRho)}, 1')
    N_AFTER_POISON = 2 + (2 if opt.get('touch') else 0)
    N_AFTER_X = 6
    def weight_loads():
        e(f's_min_u32 {sr(sT)}, {sr(sPhi)}, {NF-1}')
        srd(sT4, kwg, 1409024)
        e(f'''s_lshl_b32 {sr(sT2)}, {sr(sT)}, 4
        s_movk_i32 {sr(sT3)}, 2752
        v_mul_lo_u32 {vr(t(6))}, v0, {sr(sT3)}
        v_add_u32 {vr(t(6))}, {sr(sT2)}, {vr(t(6))}
        s_mov_b32 {sr(sT3)}, {256*2752}
        buffer_load_dwordx4 {vr(FA,4)}, {vr(t(6))}, {sr(sT4,4)}, 0 offen
        buffer_load_dwordx4 {vr(FA+4,4)}, {vr(t(6))}, {sr(sT4,4)}, {sr(sT3)} offen''')
        srd(sT4, kwu, 1409024)
        e(f'''buffer_load_dwordx4 {vr(FA+8,4)}, {vr(t(6))}, {sr(sT4,4)}, 0 offen
        buffer_load_dwordx4 {vr(FA+12,4)}, {vr(t(6))}, {sr(sT4,4)}, {sr(sT3)} offen''')
        srd(sT4, kwd, 1409024)
        e(f'''s_lshl_b32 {sr(sT2)}, {sr(sT)}, 13
        v_add_u32 {vr(t(6))}, {sr(sT2)}, {vr(lG)}
        s_movk_i32 {sr(sT3)}, 4096
        buffer_load_dwordx4 {vr(FD,4)}, {vr(t(6))}, {sr(sT4,4)}, 0 offen
        buffer_load_dwordx4 {vr(FD+4,4)}, {vr(t(6))}, {sr(sT4,4)}, {sr(sT3)} offen''')

    srd(sOUT, kout, 2097152)
    if opt.get('touch'):
        e(f'''v_lshlrev_b32 {vr(t(7))}, 15, v0
        buffer_load_dword {vr(vCa)}, {vr(t(7))}, {sr(sWS,4)}, 0 offen
        v_lshlrev_b32 {vr(t(7))}, 13, v0
        buffer_load_dword {vr(vSa)}, {vr(t(7))}, {sr(sOUT,4)}, 0 offen''')
    e(f'''s_mov_b32 {sr(s16)}, {fbits(16.0)}
    v_and_b32 {vr(vN)}, 15, {vr(vL)}
    v_lshrrev_b32 {vr(vQ)}, 4, {vr(vL)}
    s_sub_u32 {sr(sVs)}, 4, {sr(sW)}
    s_and_b32 {sr(sVs)}, {sr(sVs)}, 3
    s_add_u32 {sr(sVs)}, {sr(sVs)}, 4''')

    a0, a1, a2, a3 = t(20), t(21), t(22), t(23)
    b0, b1, b2 = t(24), t(25), t(26)
    def addr_p1():
        e(f'''s_lshl_b32 {sr(sT)}, {sr(sW)}, 10
        v_lshlrev_b32 {vr(a2)}, 4, {vr(vL)}
        v_add_u32 {vr(lRow)}, {sr(sT)}, {vr(a2)}
        s_add_u32 {sr(sT2)}, {sr(sT)}, {RIMG+1008}
        v_sub_u32 {vr(lRw)}, {sr(sT2)}, {vr(a2)}
        v_lshlrev_b32 {vr(a2)}, 3, {vr(vQ)}
        v_lshrrev_b32 {vr(a3)}, 2, {vr(vN)}
        v_add_lshl_u32 {vr(a2)}, {vr(a2)}, {vr(a3)}, 5
        v_and_b32 {vr(a3)}, 3, {vr(vN)}
        v_lshl_add_u32 {vr(a2)}, {vr(a3)}, 3, {vr(a2)}
        v_add_u32 {vr(lTr)}, {sr(sT)}, {vr(a2)}''')
        e(f'''v_lshlrev_b32 {vr(a0)}, 7, {vr(vQ)}
        v_add_u32 {vr(a1)}, {vr(a0)}, {vr(vN)}
        v_sub_u32 {vr(a2)}, {vr(a0)}, {vr(vN)}
        s_lshl_b32 {sr(sT)}, {sr(sW)}, 1
        s_add_u32 {sr(sT)}, {sr(sT)}, {HIMG}
        s_lshl_b32 {sr(sT2)}, {sr(sVs)}, 1
        s_add_u32 {sr(sT2)}, {sr(sT2)}, {HIMG - 224*16}
        v_lshlrev_b32 {vr(a1)}, 4, {vr(a1)}
        v_lshlrev_b32 {vr(a2)}, 4, {vr(a2)}
        v_add_u32 {vr(a1)}, {sr(sT)}, {vr(a1)}
        v_add_u32 {vr(a2)}, {sr(sT2)}, {vr(a2)}
        v_cmp_gt_u32 vcc, 2, {vr(vQ)}
        v_cndmask_b32 {vr(lH)}, {vr(a2)}, {vr(a1)}, vcc
        v_add_u32 {vr(a1)}, 256, {vr(a1)}
        v_subrev_u32 {vr(a2)}, 256, {vr(a2)}
        v_cndmask_b32 {vr(lH+1)}, {vr(a2)}, {vr(a1)}, vcc
        v_mov_b32 {vr(a0)}, {HIMG+4112}
        v_mov_b32 {vr(a1)}, {sr(sT)}
        s_add_u32 {sr(sT2)}, {sr(sT2)}, {224*16}
        v_mov_b32 {vr(a2)}, {sr(sT2)}
        v_cmp_eq_u32 vcc, 48, {vr(vL)}
        v_cndmask_b32 {vr(lHf)}, {vr(a0)}, {vr(a1)}, vcc
        v_cndmask_b32 {vr(lHf+1)}, {vr(a0)}, {vr(a2)}, vcc''')
    def addr_col():
        e(f'''s_lshl_b32 {sr(sT)}, {sr(sRho)}, 4
        v_lshlrev_b32 {vr(aHdr)}, 12, v0
        v_add_u32 {vr(aS16)}, {sr(sT)}, {vr(aHdr)}''')
        def caddr(dst, s_reg):
            e(f'''v_and_b32 {vr(a2)}, 15, {vr(s_reg)}
            v_lshlrev_b32 {vr(dst)}, 4, {vr(a2)}
            v_bfe_u32 {vr(a3)}, {vr(s_reg)}, 5, 3
            v_lshl_add_u32 {vr(dst)}, {vr(a3)}, 1, {vr(dst)}
            v_lshrrev_b32 {vr(a3)}, 8, {vr(s_reg)}
            v_lshl_add_u32 {vr(dst)}, {vr(a3)}, 8, {vr(dst)}
            v_bfe_u32 {vr(a3)}, {vr(s_reg)}, 4, 1
            v_lshl_add_u32 {vr(dst)}, {vr(a3)}, 11, {vr(dst)}
            v_add_u32 {vr(dst)}, {CIN}, {vr(dst)}''')
        e(f'''v_lshlrev_b32 {vr(b0)}, 2, v0
        v_sub_u32 {vr(b1)}, 2044, {vr(b0)}
        v_sub_u32 {vr(b2)}, 2048, {vr(b0)}
        v_mov_b32 {vr(a2)}, 1024
        v_cmp_eq_u32 vcc, 0, {vr(b0)}
        v_cndmask_b32 {vr(b2)}, {vr(b2)}, {vr(a2)}, vcc''')
        caddr(lCa, b0); caddr(lCb, b2); caddr(lCc, b1)
        e(f'v_lshlrev_b32 {vr(lCr)}, 4, {vr(vL)}\nv_add_u32 {vr(lCr)}, {CIN}, {vr(lCr)}')
    vTau, vTlo = t(28), t(29)
    def tau_tlo():
        e(f'''s_lshl_b32 {sr(sT)}, {sr(sW)}, 3
        v_and_b32 {vr(vTau)}, 7, {vr(vN)}
        v_add_u32 {vr(vTau)}, {sr(sT)}, {vr(vTau)}
        v_sub_u32 {vr(a0)}, 64, {vr(vTau)}
        v_mov_b32 {vr(a1)}, 32
        v_cmp_eq_u32 {sr(sTm,2)}, 0, {vr(vTau)}
        v_cndmask_b32 {vr(a0)}, {vr(a0)}, {vr(a1)}, {sr(sTm,2)}
        v_cmp_le_u32 vcc, 8, {vr(vN)}
        v_cndmask_b32 {vr(vTlo)}, {vr(vTau)}, {vr(a0)}, vcc
        s_andn2_b64 {sr(sEx,2)}, vcc, {sr(sTm,2)}''')
    def addr_colout():
        e(f'''v_lshl_add_u32 {vr(b0)}, {vr(vQ)}, 8, {vr(vTlo)}
        v_lshrrev_b32 {vr(a0)}, 2, {vr(b0)}
        v_and_b32 {vr(a1)}, 3, {vr(b0)}
        v_lshlrev_b32 {vr(a2)}, 1, {vr(a1)}
        v_lshl_add_u32 {vr(b1)}, {vr(a0)}, 4, {vr(a2)}
        v_add_u32 {vr(lCo)}, {COUT}, {vr(b1)}
        v_sub_u32 {vr(a3)}, 255, {vr(a0)}
        v_cmp_eq_u32 vcc, 0, {vr(a1)}
        v_addc_co_u32 {vr(a3)}, vcc, 0, {vr(a3)}, vcc
        v_lshl_add_u32 {vr(a3)}, {vr(a3)}, 4, {vr(a2)}
        v_add_u32 {vr(a3)}, 8, {vr(a3)}
        v_and_b32 {vr(b2)}, 4095, {vr(a3)}
        v_add_u32 {vr(lCo+2)}, {COUT}, {vr(b2)}
        v_add_u32 {vr(lCo+1)}, {COUT-768}, {vr(a3)}''')
    def addr_row():
        e(f'''v_mov_b32 {vr(a3)}, 256
        v_cmp_eq_u32 vcc, 0, v0
        v_cndmask_b32 {vr(a2)}, v0, {vr(a3)}, vcc
        v_lshlrev_b32 {vr(lYd)}, 1, {vr(a2)}
        v_sub_u32 {vr(lYm)}, 1024, {vr(lYd)}
        s_cmp_eq_u32 {sr(sRho)}, 0
        s_cselect_b32 {sr(sT)}, 4096, 0
        v_add_u32 {vr(lYm4)}, {sr(sT)}, {vr(lYm)}
        v_mov_b32 {vr(a0)}, 0
        v_lshlrev_b32 {vr(a1)}, 10, {vr(vL)}
        s_mov_b64 exec, 31
        ds_write_b16 {vr(a1)}, {vr(a0)} offset:{YIMG}
        s_mov_b64 exec, -1
        v_mov_b32 {vr(a0)}, {sr(sRowU)}
        v_mov_b32 {vr(a1)}, {sr(sRowV)}
        v_cmp_gt_u32 vcc, 32, {vr(vL)}
        v_cndmask_b32 {vr(vRowH)}, {vr(a1)}, {vr(a0)}, vcc
        s_lshl_b32 {sr(sT)}, {sr(sPhi)}, 11
        s_cmp_lt_u32 {sr(sPhi)}, {NF}
        s_cselect_b32 {sr(sT)}, {sr(sT)}, 0x7f000000
        v_lshlrev_b32 {vr(aP8)}, 3, v0
        v_add_u32 {vr(aP8)}, {sr(sT)}, {vr(aP8)}''')

    c0, c1 = t(30), t(31)
    def cos_seq(dst, base, step, n, amp=None):
        for j in range(0, n, 2):
            e(f'v_cos_f32 {vr(c0)}, {vr(base)}\nv_add_f32 {vr(base)}, {vr(base)}, {vr(step)}')
            e(f'v_cos_f32 {vr(c1)}, {vr(base)}')
            if j + 2 < n: e(f'v_add_f32 {vr(base)}, {vr(base)}, {vr(step)}')
            if amp is not None:
                e(f'v_mul_f32 {vr(c0)}, {amp}, {vr(c0)}\nv_mul_f32 {vr(c1)}, {amp}, {vr(c1)}')
            e(f'v_cvt_pk_f16_f32 {vr(dst + j//2)}, {vr(c0)}, {vr(c1)}')
    fQ, fN, fs, fb, fa, fb2 = t(32), t(33), t(34), t(35), t(36), t(37)
    def row_consts():
        e(f'v_cvt_f32_u32 {vr(fQ)}, {vr(vQ)}\nv_cvt_f32_u32 {vr(fN)}, {vr(vN)}')
        e(f'v_mul_f32 {vr(fs)}, {fbits(1/32)}, {vr(fN)}\nv_mul_f32 {vr(fa)}, {fbits(8.0)}, {vr(fQ)}')
        for part in range(2):
            e(f'v_mul_f32 {vr(fb)}, {vr(fa)}, {vr(fs)}')
            if part: e(f'v_add_f32 {vr(fb)}, {fbits(0.25)}, {vr(fb)}')
            cos_seq(RB1 + part*4, fb, fs, 8)
        for k in range(8): e(f'v_xor_b32 {vr(RB1+8+k)}, 0x80000000, {vr(RB1+k)}')
        e(f'v_mul_f32 {vr(fa)}, 4.0, {vr(fQ)}')
        for Tt in range(2):
            e(f'''v_add_f32 {vr(fs)}, {fbits(16.0*Tt)}, {vr(fN)}
            v_mul_f32 {vr(fs)}, {fbits(1/512)}, {vr(fs)}
            v_mul_f32 {vr(fb)}, {vr(fa)}, {vr(fs)}''')
            for i in range(4):
                e(f'v_cos_f32 {vr(RC+4*Tt+i)}, {vr(fb)}\nv_sin_f32 {vr(RS+4*Tt+i)}, {vr(fb)}')
                if i < 3: e(f'v_add_f32 {vr(fb)}, {vr(fb)}, {vr(fs)}')
        e(f'''v_sub_u32 {vr(fs)}, 23, {vr(vN)}
        v_cmp_gt_u32 vcc, 8, {vr(vN)}
        v_cndmask_b32 {vr(fs)}, {vr(fs)}, {vr(vN)}, vcc
        v_cvt_f32_u32 {vr(fs)}, {vr(fs)}
        v_mul_f32 {vr(fs)}, {fbits(1/16)}, {vr(fs)}
        v_mul_f32 {vr(fb2)}, {vr(fa)}, {vr(fs)}''')
        for part, ph in ((0, 0.125), (1, -0.125)):
            e(f'v_add_f32 {vr(fb)}, {fbits(ph)}, {vr(fb2)}')
            cos_seq(RA2 + 2*part, fb, fs, 4, amp=fbits(math.sqrt(2)))
    def col_consts():
        tau_tlo()
        addr_colout()
        e(f'''v_cvt_f32_u32 {vr(fQ)}, {vr(vQ)}
        v_cmp_le_u32 vcc, 8, {vr(vN)}
        s_and_b64 vcc, vcc, {sr(sTm,2)}
        v_mov_b32 {vr(a1)}, 32
        v_cndmask_b32 {vr(a0)}, {vr(vTau)}, {vr(a1)}, vcc
        v_cvt_f32_u32 {vr(fs)}, {vr(a0)}
        v_mul_f32 {vr(fs)}, {fbits(1/64)}, {vr(fs)}
        v_mov_b32 {vr(fa)}, {fbits(0.25)}
        v_cndmask_b32 {vr(fa)}, 0, {vr(fa)}, {sr(sEx,2)}
        v_mul_f32 {vr(fb)}, {fbits(8.0)}, {vr(fQ)}
        v_fma_f32 {vr(fb)}, {vr(fb)}, {vr(fs)}, {vr(fa)}''')
        cos_seq(CB1, fb, fs, 8)
        e(f'''v_and_b32 {vr(a0)}, 1, {vr(a0)}
        v_mul_u32_u24 {vr(a0)}, 0x8000, {vr(a0)}
        v_lshl_or_b32 {vr(a0)}, {vr(a0)}, 16, {vr(a0)}''')
        for k in range(4): e(f'v_xor_b32 {vr(CB1+4+k)}, {vr(a0)}, {vr(CB1+k)}')
        e(f'''v_cvt_f32_u32 {vr(fs)}, {vr(vTlo)}
        v_mul_f32 {vr(fs)}, {fbits(1/2048)}, {vr(fs)}
        v_mul_f32 {vr(fb)}, {vr(fQ)}, {vr(fs)}
        v_fma_f32 {vr(fb)}, {vr(fb)}, 4.0, {vr(fa)}
        v_mov_b32 {vr(a1)}, {fbits(0.25)}
        v_cndmask_b32 {vr(a1)}, {vr(a1)}, 0, {sr(sTm,2)}''')
        e(f'v_add_f32 {vr(fb2)}, {fbits(-0.25)}, {vr(fb)}')
        e(f'v_mul_f32 {vr(a2)}, {fbits(12.0)}, {vr(fs)}')
        for Tt in range(2):
            for i in range(4):
                k = CK + 16*Tt
                e(f'''v_cos_f32 {vr(c0)}, {vr(fb)}
                v_cos_f32 {vr(c1)}, {vr(fb2)}
                v_add_f32 {vr(fb)}, {vr(fb)}, {vr(fs)}
                v_add_f32 {vr(fb2)}, {vr(fb2)}, {vr(fs)}
                v_mul_f32 {vr(k+i)}, {fbits(0.25)}, {vr(c0)}
                v_mul_f32 {vr(k+4+i)}, {vr(a1)}, {vr(c1)}
                v_mul_f32 {vr(k+8+i)}, {fbits(-0.25)}, {vr(c1)}
                v_mul_f32 {vr(k+12+i)}, {vr(a1)}, {vr(c0)}''')
            if Tt == 0: e(f'v_add_f32 {vr(fb)}, {vr(fb)}, {vr(a2)}\nv_add_f32 {vr(fb2)}, {vr(fb2)}, {vr(a2)}')
        e(f'''v_cvt_f32_u32 {vr(fs)}, {vr(vN)}
        v_mul_f32 {vr(fs)}, {fbits(1/32)}, {vr(fs)}
        v_mul_f32 {vr(fb2)}, {vr(fQ)}, {vr(fs)}
        v_mul_f32 {vr(fb2)}, 4.0, {vr(fb2)}''')
        for part, ph in ((0, -0.125), (1, -0.375)):
            e(f'v_add_f32 {vr(fb)}, {fbits(ph)}, {vr(fb2)}')
            cos_seq(CA2 + 2*part, fb, fs, 4, amp=fbits(math.sqrt(2)/8))
        e(f'''v_and_b32 {vr(a0)}, 1, {vr(vN)}
        v_mul_u32_u24 {vr(a0)}, 0x8000, {vr(a0)}
        v_lshl_or_b32 {vr(a0)}, {vr(a0)}, 16, {vr(a0)}''')
        for k in range(4):
            e(f'v_xor_b32 {vr(CA2+4+k)}, {vr(a0)}, {vr(CA2+k)}')
        for k in range(8):
            e(f'v_xor_b32 {vr(CA2+8+k)}, 0x80000000, {vr(CA2+k)}')

    def unpack_nat(dst, src):
        for k in range(4):
            e(f'v_lshlrev_b32 {vr(dst+2*k)}, 16, {vr(src+k)}\nv_and_b32 {vr(dst+2*k+1)}, 0xffff0000, {vr(src+k)}')
    def unpack_rev(dst, src, tmp):
        e(f'''v_lshlrev_b32 {vr(tmp)}, 16, {vr(src)}
        v_and_b32 {vr(dst+7)}, 0xffff0000, {vr(src)}
        v_lshlrev_b32 {vr(dst+6)}, 16, {vr(src+1)}
        v_and_b32 {vr(dst+5)}, 0xffff0000, {vr(src+1)}
        v_mov_b32_dpp {vr(dst)}, {vr(tmp)} wave_ror:1 {DPP}
        v_lshlrev_b32 {vr(dst+4)}, 16, {vr(src+2)}
        v_and_b32 {vr(dst+3)}, 0xffff0000, {vr(src+2)}
        v_lshlrev_b32 {vr(dst+2)}, 16, {vr(src+3)}
        v_and_b32 {vr(dst+1)}, 0xffff0000, {vr(src+3)}''')
    def half_reduce(regs, tmps, op='v_add_f32'):
        for sh in (8, 4, 2, 1):
            for r in regs: e(f'{op}_dpp {vr(r)}, {vr(r)}, {vr(r)} row_ror:{sh} {DPP}')
        for r, tm in zip(regs, tmps): e(f'v_mov_b32 {vr(tm)}, {vr(r)}')
        for r, tm in zip(regs, tmps): e(f'v_permlane16_swap_b32 {vr(r)}, {vr(tm)}')
        for r, tm in zip(regs, tmps): e(f'{op} {vr(r)}, {vr(r)}, {vr(tm)}')
    def wave_reduce(regs, tmps, op='v_add_f32'):
        half_reduce(regs, tmps, op)
        for r, tm in zip(regs, tmps): e(f'v_mov_b32 {vr(tm)}, {vr(r)}')
        for r, tm in zip(regs, tmps): e(f'v_permlane32_swap_b32 {vr(r)}, {vr(tm)}')
        for r, tm in zip(regs, tmps): e(f'{op} {vr(r)}, {vr(r)}, {vr(tm)}')
    hM, hVar, hRho, hB, hR = t(40), t(41), t(42), t(43), t(44)
    def partial(Dd, src, sC, w, o1, o2, o3, P):
        e(f'v_readfirstlane_b32 {sr(sC)}, {vr(src)}')
        for k in range(4):
            e(f'v_pk_add_f32 {vr(Dd+2*k,2)}, {vr(src+2*k,2)}, {sr(sC,2)} op_sel_hi:[1,0] neg_lo:[0,1] neg_hi:[0,1]')
        e(f'''v_pk_add_f32 {vr(P,2)}, {vr(Dd,2)}, {vr(Dd+2,2)}
        v_pk_mul_f32 {vr(P+2,2)}, {vr(Dd,2)}, {vr(Dd,2)}
        v_pk_add_f32 {vr(P+4,2)}, {vr(Dd+4,2)}, {vr(Dd+6,2)}''')
        if w is not None: e(f'v_pk_mul_f32 {vr(P+6,2)}, {vr(Dd,2)}, {vr(w,2)}')
        for k in range(1, 4):
            e(f'v_pk_fma_f32 {vr(P+2,2)}, {vr(Dd+2*k,2)}, {vr(Dd+2*k,2)}, {vr(P+2,2)}')
            if w is not None: e(f'v_pk_fma_f32 {vr(P+6,2)}, {vr(Dd+2*k,2)}, {vr(w+2*k,2)}, {vr(P+6,2)}')
            if k == 1: e(f'v_pk_add_f32 {vr(P,2)}, {vr(P,2)}, {vr(P+4,2)}')
        e(f'v_add_f32 {vr(o1)}, {vr(P)}, {vr(P+1)}\nv_add_f32 {vr(o2)}, {vr(P+2)}, {vr(P+3)}')
        if w is not None: e(f'v_add_f32 {vr(o3)}, {vr(P+6)}, {vr(P+7)}')
    def moments(S1, S2):
        e(f'''v_mul_f32 {vr(hM)}, {fbits(1/512)}, {vr(S1)}
        v_mul_f32 {vr(S2)}, {fbits(1/512)}, {vr(S2)}
        v_fma_f32 {vr(hVar)}, -{vr(hM)}, {vr(hM)}, {vr(S2)}
        v_max_f32 {vr(hVar)}, 0, {vr(hVar)}
        v_add_f32 {vr(S2)}, {fbits(1e-5)}, {vr(hVar)}
        v_rsq_f32 {vr(hRho)}, {vr(S2)}''')
    def stats2(with_r):
        a1_, a2_, a3_, b1_, b2_, b3_ = t(16), t(17), t(18), t(19), t(20), t(21)
        partial(DU, XU, sCu, WU if with_r else None, a1_, a2_, a3_, t(24))
        partial(DV, XV, sCv, WV if with_r else None, b1_, b2_, b3_, t(32))
        pairs = [(a1_, b1_), (a2_, b2_)] + ([(a3_, b3_)] if with_r else [])
        for x, y in pairs: e(f'v_permlane32_swap_b32 {vr(x)}, {vr(y)}')
        for x, y in pairs: e(f'v_add_f32 {vr(x)}, {vr(x)}, {vr(y)}')
        half_reduce([x for x, _ in pairs], [y for _, y in pairs])
        moments(a1_, a2_)
        if with_r: e(f'v_fma_f32 {vr(a3_)}, -{vr(hM)}, {sr(sSW)}, {vr(a3_)}')
        e(f'v_mul_f32 {vr(hB)}, -{vr(hM)}, {vr(hRho)}')
        if with_r: e(f'v_mul_f32 {vr(hR)}, {vr(hRho)}, {vr(a3_)}')
    def stats1(src, Dd, dst):
        partial(Dd, src, sCu, None, t(16), t(17), None, t(24))
        wave_reduce([t(16), t(17)], [t(18), t(19)])
        moments(t(16), t(17))
        e(f'''v_readfirstlane_b32 {sr(sKu)}, {vr(hRho)}
        v_mul_f32 {vr(hB)}, -{vr(hM)}, {vr(hRho)}
        v_readfirstlane_b32 {sr(sKu+1)}, {vr(hB)}''')
        for k in range(4): e(f'v_pk_fma_f32 {vr(dst+2*k,2)}, {vr(Dd+2*k,2)}, {sr(sKu,2)}, {sr(sKu,2)} {PKB}')
    def residual_coeffs():
        e(f'''v_mov_b32 {vr(t(22))}, {sr(sCu)}
        v_mov_b32 {vr(t(23))}, {sr(sCv)}
        v_cmp_gt_u32 vcc, 32, {vr(vL)}
        v_add_f32 {vr(t(21))}, 1.0, {vr(hRho)}
        v_cndmask_b32 {vr(t(22))}, {vr(t(23))}, {vr(t(22))}, vcc
        v_add_f32 {vr(t(22))}, {vr(t(22))}, {vr(hB)}
        v_readlane_b32 {sr(sAu)}, {vr(t(21))}, 0
        v_readlane_b32 {sr(sAv)}, {vr(t(21))}, 32
        v_readlane_b32 {sr(sAu+1)}, {vr(t(22))}, 0
        v_readlane_b32 {sr(sAv+1)}, {vr(t(22))}, 32''')
    def residual_update(dU, dV):
        for k in range(4): e(f'v_pk_fma_f32 {vr(dU+2*k,2)}, {vr(DU+2*k,2)}, {sr(sAu,2)}, {sr(sAu,2)} {PKB}')
        for k in range(4): e(f'v_pk_fma_f32 {vr(dV+2*k,2)}, {vr(DV+2*k,2)}, {sr(sAv,2)}, {sr(sAv,2)} {PKB}')
    def norm_coeffs(scale, bias):
        e(f'''v_readlane_b32 {sr(sKu)}, {vr(scale)}, 0
        v_readlane_b32 {sr(sKu+1)}, {vr(bias)}, 0
        v_readlane_b32 {sr(sKv)}, {vr(scale)}, 32
        v_readlane_b32 {sr(sKv+1)}, {vr(bias)}, 32''')
    GG = t(16)
    def make_g():
        for k in range(4): e(f'v_pk_fma_f32 {vr(GG+2*k,2)}, {vr(DU+2*k,2)}, {sr(sKu,2)}, {sr(sKu,2)} {PKB}')
        for k in range(4): e(f'v_pk_fma_f32 {vr(GG+2*k,2)}, {vr(DV+2*k,2)}, {sr(sKv,2)}, {vr(GG+2*k,2)} op_sel_hi:[1,0,1]')
    def write_n(src, tmp):
        for k in range(4): e(f'v_cvt_pk_f16_f32 {vr(tmp+k)}, {vr(src+2*k)}, {vr(src+2*k+1)}')
        e(f'ds_write_b128 {vr(lRow)}, {vr(tmp,4)} offset:{GIMG}')
    def write_r(src, tmp):
        e(f'''v_mov_b32_dpp {vr(tmp+4)}, {vr(src)} wave_rol:1 {DPP}
        v_cvt_pk_f16_f32 {vr(tmp+1)}, {vr(src+6)}, {vr(src+5)}
        v_cvt_pk_f16_f32 {vr(tmp+2)}, {vr(src+4)}, {vr(src+3)}
        v_cvt_pk_f16_f32 {vr(tmp+3)}, {vr(src+2)}, {vr(src+1)}
        v_cvt_pk_f16_f32 {vr(tmp)}, {vr(tmp+4)}, {vr(src+7)}
        ds_write_b128 {vr(lRw)}, {vr(tmp,4)}''')
    def core(A, O):
        Dr = [t(0), t(8)]; Di = [t(4), t(12)]
        for Tt in range(2):
            e(f'v_mfma_f32_16x16x32_f16 {vr(Dr[Tt],4)}, {vr(A,4)}, {vr(RB1+(2*Tt)*4,4)}, 0')
            e(f'v_mfma_f32_16x16x32_f16 {vr(Di[Tt],4)}, {vr(A,4)}, {vr(RB1+(2*Tt+1)*4,4)}, 0')
        Bo = [t(16), t(20)]; br, bi = t(24), t(28)
        for Tt in range(2):
            for h in range(2):
                c = vr(RC+4*Tt+2*h, 2); s_ = vr(RS+4*Tt+2*h, 2)
                dr = vr(Dr[Tt]+2*h, 2); di = vr(Di[Tt]+2*h, 2)
                e(f'''v_pk_mul_f32 {vr(br+2*h,2)}, {dr}, {c}
                v_pk_mul_f32 {vr(bi+2*h,2)}, {di}, {c}
                v_pk_fma_f32 {vr(br+2*h,2)}, {di}, {s_}, {vr(br+2*h,2)}
                v_pk_fma_f32 {vr(bi+2*h,2)}, {dr}, {s_}, {vr(bi+2*h,2)} neg_lo:[1,0,0] neg_hi:[1,0,0]''')
            e(f'''v_cvt_pk_f16_f32 {vr(Bo[Tt])}, {vr(br)}, {vr(br+1)}
            v_cvt_pk_f16_f32 {vr(Bo[Tt]+1)}, {vr(br+2)}, {vr(br+3)}
            v_cvt_pk_f16_f32 {vr(Bo[Tt]+2)}, {vr(bi)}, {vr(bi+1)}
            v_cvt_pk_f16_f32 {vr(Bo[Tt]+3)}, {vr(bi+2)}, {vr(bi+3)}''')
            e(f'v_mfma_f32_16x16x32_f16 {vr(O+4*Tt,4)}, {vr(RA2,4)}, {vr(Bo[Tt],4)}, 0')

    CA, CO = t(32), t(36)
    def transform(dst_off, init_check=False, pre_core=None, post_scatter=None):
        write_n(GG, t(24))
        e(f"""s_waitcnt lgkmcnt(0)
        ds_read_b64_tr_b16 {vr(CA,2)}, {vr(lTr)} offset:{GIMG}
        ds_read_b64_tr_b16 {vr(CA+2,2)}, {vr(lTr)} offset:{GIMG+128}""")
        if init_check:
            lw = g.lab('nochk')
            e(f'v_mov_b32 {vr(FO)}, 128')
            srd(sT4, kdbg, 256)
            e(f's_cmp_lg_u32 {sr(sW)}, 0\ns_cbranch_scc1 {lw}')
            e(f"""buffer_load_dword {vr(FO+1)}, {vr(FO)}, {sr(sT4,4)}, 0 offen sc1
            {lw}:""")
        if pre_core: pre_core()
        e('s_waitcnt lgkmcnt(0)')
        core(CA, CO)
        for k in range(4): e(f'v_cvt_pk_f16_f32 {vr(t(44)+k)}, {vr(CO+2*k)}, {vr(CO+2*k+1)}')
        for Tt in range(2):
            for i in range(4):
                op = 'ds_write_b16' if i % 2 == 0 else 'ds_write_b16_d16_hi'
                e(f'{op} {vr(lH+Tt)}, {vr(t(44) + 2*Tt + i//2)} offset:{512*i}')
        e(f'ds_write_b16_d16_hi {vr(lHf)}, {vr(t(45))}\nds_write_b16_d16_hi {vr(lHf+1)}, {vr(t(45))}')
        if post_scatter: post_scatter()
        if init_check:
            lw = g.lab('nochk'); lp = g.lab('chk')
            e(f"""s_waitcnt vmcnt(0)
            s_cmp_lg_u32 {sr(sW)}, 0
            s_cbranch_scc1 {lw}
            s_mov_b32 {sr(sCnt)}, 0
            {lp}:
            v_cmp_ne_u32 vcc, 1, {vr(FO+1)}
            s_cbranch_vccz {lw}
            s_add_u32 {sr(sCnt)}, {sr(sCnt)}, 1
            s_cmp_gt_u32 {sr(sCnt)}, {LIMIT}
            s_cbranch_scc1 L_done
            s_sleep 8
            buffer_load_dword {vr(FO+1)}, {vr(FO)}, {sr(sT4,4)}, 0 offen sc1
            s_waitcnt vmcnt(0)
            s_branch {lp}
            {lw}:""")
        e(f"""s_waitcnt lgkmcnt(0)
        s_barrier
        ds_read_b128 {vr(t(0),4)}, {vr(lG)} offset:{HIMG}
        s_mov_b32 {sr(sOff)}, {dst_off}
        s_waitcnt lgkmcnt(0)
        buffer_store_dwordx4 {vr(t(0),4)}, {vr(aP16)}, {sr(sWS,4)}, {sr(sOff)} offen sc1""")

    def affine_from_x(sx1x0_u, sx1x0_v, sKu_, sKv_, outU, outV):
        for (xx, cc, kk, oo) in ((sx1x0_u, sCu, sKu_, outU), (sx1x0_v, sCv, sKv_, outV)):
            if xx is None:
                e(f"""v_mov_b32 {vr(t(44))}, {sr(kk)}
                v_mov_b32 {vr(t(45))}, {sr(kk+1)}
                v_fma_f32 {vr(t(45))}, -{vr(t(44))}, {sr(cc)}, {vr(t(45))}""")
            else:
                e(f"""v_rcp_f32 {vr(t(44))}, {sr(xx)}
                v_mov_b32 {vr(t(45))}, {sr(kk+1)}
                v_mul_f32 {vr(t(44))}, {sr(kk)}, {vr(t(44))}
                v_fma_f32 {vr(t(45))}, -{vr(t(44))}, {sr(xx+1)}, {vr(t(45))}""")
            e(f'v_readfirstlane_b32 {sr(oo)}, {vr(t(44))}\nv_readfirstlane_b32 {sr(oo+1)}, {vr(t(45))}')

    def special_k(dst_off, after_residual):
        ln = g.lab('nok')
        e(f's_cmp_lg_u32 {sr(sRowU)}, 0\ns_cbranch_scc1 {ln}')
        affine_from_x(sAu if after_residual else None, sAv if after_residual else None, sKu, sKv, sH, sH+2)
        ZU, ZV = t(0), t(8)
        for k in range(4): e(f'v_pk_fma_f32 {vr(ZU+2*k,2)}, {vr(XU+2*k,2)}, {sr(sH,2)}, {sr(sH,2)} {PKB}')
        for k in range(4): e(f'v_pk_fma_f32 {vr(ZV+2*k,2)}, {vr(XV+2*k,2)}, {sr(sH+2,2)}, {sr(sH+2,2)} {PKB}')
        write_r(ZU, t(16)); write_n(ZV, t(24))
        A, B = CA, t(40)
        e(f"""s_waitcnt lgkmcnt(0)
        ds_read_b64_tr_b16 {vr(A,2)}, {vr(lTr)} offset:{RIMG}
        ds_read_b64_tr_b16 {vr(B,2)}, {vr(lTr)} offset:{GIMG}
        ds_read_b64_tr_b16 {vr(A+2,2)}, {vr(lTr)} offset:{RIMG+128}
        ds_read_b64_tr_b16 {vr(B+2,2)}, {vr(lTr)} offset:{GIMG+128}
        s_waitcnt lgkmcnt(0)""")
        for k in range(4): e(f'v_pk_add_f16 {vr(A+k)}, {vr(A+k)}, {vr(B+k)} neg_lo:[0,1] neg_hi:[0,1]')
        core(A, CO)
        for k in range(4): e(f'v_pk_mul_f32 {vr(CO+2*k,2)}, {vr(CO+2*k,2)}, {sr(sT2 if False else sM2,2)} op_sel_hi:[1,0]' if False else f'v_mul_f32 {vr(CO+2*k)}, {fbits(1/16)}, {vr(CO+2*k)}\nv_mul_f32 {vr(CO+2*k+1)}, {fbits(1/16)}, {vr(CO+2*k+1)}')
        for k in range(4): e(f'v_cvt_pk_f16_f32 {vr(t(44)+k)}, {vr(CO+2*k)}, {vr(CO+2*k+1)}')
        e(f"""v_lshl_add_u32 {vr(t(0))}, {vr(vQ)}, 7, {vr(vN)}
        v_lshlrev_b32 {vr(t(0))}, 1, {vr(t(0))}
        v_sub_u32 {vr(t(1))}, {1024-32-192}, {vr(t(0))}
        v_mov_b32 {vr(t(2))}, 512
        s_mov_b32 exec_lo, -1
        s_mov_b32 exec_hi, 0""")
        for Tt in range(2):
            for i in range(4):
                op = 'ds_write_b16' if i % 2 == 0 else 'ds_write_b16_d16_hi'
                e(f'{op} {vr(t(0))}, {vr(t(44)+2*Tt+i//2)} offset:{KIMG + 32*Tt + 64*i}')
                e(f'{op} {vr(t(1))}, {vr(t(44)+2*Tt+i//2)} offset:{KIMG + 32*(1-Tt) + 64*(3-i)}')
        e(f"""s_mov_b32 exec_lo, 0
        s_mov_b32 exec_hi, 0x00010000
        ds_write_b16_d16_hi {vr(t(2))}, {vr(t(45))} offset:{KIMG}
        s_mov_b64 exec, -1
        v_lshlrev_b32 {vr(t(3))}, 4, {vr(vL)}
        s_waitcnt lgkmcnt(0)
        ds_read_b128 {vr(t(4),4)}, {vr(t(3))} offset:{KIMG}
        s_mov_b32 {sr(sOff)}, {dst_off}
        s_waitcnt lgkmcnt(0)
        buffer_store_dwordx4 {vr(t(4),4)}, {vr(t(3))}, {sr(sWS,4)}, {sr(sOff)} offen sc1
        {ln}:""")

    PC = t(40)
    def column_load(src_off):
        e(f's_mov_b32 {sr(sOff)}, {src_off}')
        e(ws_load_text(4, PC, aS16, sr(sOff)))
    def column(src_off, dst_off, preloaded):
        P = PC
        e(f's_mov_b32 {sr(sOff)}, {src_off}')
        poll(ws_load_text(4, P, aS16, sr(sOff)), range(P, P+4), preloaded=preloaded)
        stamp('col data')
        e(f"""ds_write_b16 {vr(lCa)}, {vr(P)}
        ds_write_b16_d16_hi {vr(lCa)}, {vr(P)} offset:16
        ds_write_b16 {vr(lCa)}, {vr(P+1)} offset:32
        ds_write_b16_d16_hi {vr(lCa)}, {vr(P+1)} offset:48
        ds_write_b16 {vr(lCb)}, {vr(P+2)}
        ds_write_b16_d16_hi {vr(lCc)}, {vr(P+2)} offset:16
        ds_write_b16 {vr(lCc)}, {vr(P+3)} offset:32
        ds_write_b16_d16_hi {vr(lCc)}, {vr(P+3)} offset:48
        s_waitcnt lgkmcnt(0)
        s_barrier""")
        A = t(0)
        for k in range(4): e(f'ds_read_b128 {vr(A+4*k,4)}, {vr(lCr)} offset:{1024*k}')
        D1 = [t(16), t(20)]
        e(f"""s_waitcnt lgkmcnt(3)
        v_mfma_f32_16x16x32_f16 {vr(D1[0],4)}, {vr(A,4)}, {vr(CB1,4)}, 0
        s_waitcnt lgkmcnt(2)
        v_mfma_f32_16x16x32_f16 {vr(D1[0],4)}, {vr(A+4,4)}, {vr(CB1+4,4)}, {vr(D1[0],4)}
        s_waitcnt lgkmcnt(1)
        v_mfma_f32_16x16x32_f16 {vr(D1[1],4)}, {vr(A+8,4)}, {vr(CB1,4)}, 0
        s_waitcnt lgkmcnt(0)
        v_mfma_f32_16x16x32_f16 {vr(D1[1],4)}, {vr(A+12,4)}, {vr(CB1+4,4)}, {vr(D1[1],4)}""")
        Bb = t(24); br, bi = t(28), t(32); Bo = [t(0), t(4)]
        for Tt in range(2):
            k = CK + 16*Tt
            for i in range(4): e(f'v_mov_b32_dpp {vr(Bb+i)}, {vr(D1[Tt]+i)} row_ror:8 {DPP}')
            for h in range(2):
                e(f"""v_pk_mul_f32 {vr(br+2*h,2)}, {vr(D1[Tt]+2*h,2)}, {vr(k+2*h,2)}
                v_pk_mul_f32 {vr(bi+2*h,2)}, {vr(D1[Tt]+2*h,2)}, {vr(k+8+2*h,2)}""")
            for h in range(2):
                e(f"""v_pk_fma_f32 {vr(br+2*h,2)}, {vr(Bb+2*h,2)}, {vr(k+4+2*h,2)}, {vr(br+2*h,2)}
                v_pk_fma_f32 {vr(bi+2*h,2)}, {vr(Bb+2*h,2)}, {vr(k+12+2*h,2)}, {vr(bi+2*h,2)}""")
            e(f"""v_cvt_pk_f16_f32 {vr(Bo[Tt])}, {vr(br)}, {vr(br+1)}
            v_cvt_pk_f16_f32 {vr(Bo[Tt]+1)}, {vr(br+2)}, {vr(br+3)}
            v_cvt_pk_f16_f32 {vr(Bo[Tt]+2)}, {vr(bi)}, {vr(bi+1)}
            v_cvt_pk_f16_f32 {vr(Bo[Tt]+3)}, {vr(bi+2)}, {vr(bi+3)}""")
        O = [t(8), t(12)]
        e(f"""v_mfma_f32_16x16x32_f16 {vr(O[0],4)}, {vr(CA2,4)}, {vr(Bo[0],4)}, 0
        v_mfma_f32_16x16x32_f16 {vr(O[1],4)}, {vr(CA2+8,4)}, {vr(Bo[0],4)}, 0
        v_mfma_f32_16x16x32_f16 {vr(O[0],4)}, {vr(CA2+4,4)}, {vr(Bo[1],4)}, {vr(O[0],4)}
        v_mfma_f32_16x16x32_f16 {vr(O[1],4)}, {vr(CA2+12,4)}, {vr(Bo[1],4)}, {vr(O[1],4)}
        v_cvt_pk_f16_f32 {vr(t(16))}, {vr(O[0])}, {vr(O[0]+1)}
        v_cvt_pk_f16_f32 {vr(t(17))}, {vr(O[0]+2)}, {vr(O[0]+3)}
        ds_write_b16 {vr(lCo)}, {vr(t(16))}
        ds_write_b16_d16_hi {vr(lCo)}, {vr(t(16))} offset:256
        v_cvt_pk_f16_f32 {vr(t(18))}, {vr(O[1])}, {vr(O[1]+1)}
        v_cvt_pk_f16_f32 {vr(t(19))}, {vr(O[1]+2)}, {vr(O[1]+3)}
        ds_write_b16 {vr(lCo)}, {vr(t(17))} offset:512
        ds_write_b16_d16_hi {vr(lCo)}, {vr(t(17))} offset:768
        ds_write_b16 {vr(lCo+2)}, {vr(t(18))}
        ds_write_b16_d16_hi {vr(lCo+1)}, {vr(t(18))} offset:512
        ds_write_b16 {vr(lCo+1)}, {vr(t(19))} offset:256
        ds_write_b16_d16_hi {vr(lCo+1)}, {vr(t(19))}
        s_waitcnt lgkmcnt(0)
        s_barrier
        ds_read_b128 {vr(t(0),4)}, {vr(lG)} offset:{COUT}
        s_mov_b32 {sr(sOff)}, {dst_off}
        s_waitcnt lgkmcnt(0)
        buffer_store_dwordx4 {vr(t(0),4)}, {vr(aP16)}, {sr(sWS,4)}, {sr(sOff)} offen sc1""")

    YH, YV, KT = t(4), t(8), t(12)
    def row_input(src_off, kb):
        P = t(0)
        lk = g.lab('nok')
        e(f's_bitcmp0_b32 {sr(sW)}, 0\ns_cbranch_scc1 {lk}')
        e(f'v_lshlrev_b32 {vr(t(16))}, 4, {vr(vL)}\ns_mov_b32 {sr(sT3)}, {kb}')
        e(ws_load_text(4, KT, t(16), sr(sT3)))
        e(f'{lk}:')
        e(f's_mov_b32 {sr(sOff)}, {src_off}')
        poll(ws_load_text(4, P, aS16, sr(sOff)), range(P, P+4))
        stamp('row data')
        def wr(slot, areg, off):
            op = 'ds_write_b16' if slot % 2 == 0 else 'ds_write_b16_d16_hi'
            e(f'{op} {vr(areg)}, {vr(P + slot//2)} offset:{YIMG + off}')
        for j in range(4): wr(j, lYd, j*1024)
        wr(4, lYm4, 0); wr(5, lYm, 3*1024); wr(6, lYm, 2*1024); wr(7, lYm, 1024)
        l0 = g.lab('not0')
        e(f's_cmp_lg_u32 {sr(sRho)}, 0\ns_cbranch_scc1 {l0}')
        wr(0, lYm, 0); wr(4, lYd, 4096)
        e(f"""{l0}:
        s_waitcnt lgkmcnt(0)
        s_barrier
        ds_read_b128 {vr(YH,4)}, {vr(lRow)} offset:{YIMG}""")
        lv = g.lab('yv')
        e(f"""s_cmp_lg_u32 {sr(sRowU)}, 0
        s_cbranch_scc1 {lv}
        ds_read_b128 {vr(YV,4)}, {vr(lRow)} offset:{YIMG+4096}
        {lv}:""")
        lk = g.lab('nok2')
        e(f's_bitcmp0_b32 {sr(sW)}, 0\ns_cbranch_scc1 {lk}')
        poll(ws_load_text(4, KT, t(16), sr(sT3)), range(KT, KT+4), preloaded=True)
        e('s_waitcnt lgkmcnt(0)')
        for k in range(4): e(f'v_pk_add_f16 {vr(YH+k)}, {vr(YH+k)}, {vr(KT+k)}')
        e(f'{lk}:\ns_waitcnt lgkmcnt(0)')
    def add_y(yu, yv):
        for k in range(4):
            e(f"""v_fma_mix_f32 {vr(XU+2*k)}, {vr(yu+k)}, {sr(s16)}, {vr(XU+2*k)} op_sel:[0,0,0] op_sel_hi:[1,0,0]
            v_fma_mix_f32 {vr(XU+2*k+1)}, {vr(yu+k)}, {sr(s16)}, {vr(XU+2*k+1)} op_sel:[1,0,0] op_sel_hi:[1,0,0]""")
        for k in range(4):
            e(f"""v_fma_mix_f32 {vr(XV+2*k)}, {vr(yv+k)}, {sr(s16)}, {vr(XV+2*k)} op_sel:[0,0,0] op_sel_hi:[1,0,0]
            v_fma_mix_f32 {vr(XV+2*k+1)}, {vr(yv+k)}, {sr(s16)}, {vr(XV+2*k+1)} op_sel:[1,0,0] op_sel_hi:[1,0,0]""")
    def add_y_pair():
        ls = g.lab('ysp'); lj = g.lab('yj')
        e(f's_cmp_eq_u32 {sr(sRowU)}, 0\ns_cbranch_scc1 {ls}')
        add_y(YH, YH)
        e(f'{lj}:')
        g.late.append((ls, lj))
    g.late = []

    def make_key():
        e(f"""v_ashrrev_i32 {vr(t(22))}, 31, {vr(hR)}
        v_or_b32 {vr(t(22))}, 0x80000000, {vr(t(22))}
        v_xor_b32 {vr(t(22))}, {vr(hR)}, {vr(t(22))}
        v_and_b32 {vr(t(22))}, 0xfffff800, {vr(t(22))}
        v_or_b32 {vr(t(22))}, {vr(vRowH)}, {vr(t(22))}
        v_readlane_b32 {sr(sKeyU)}, {vr(t(22))}, 0
        v_readlane_b32 {sr(sKeyV)}, {vr(t(22))}, 32
        s_lshl_b32 {sr(sT)}, {sr(sW)}, 2
        v_mov_b32 {vr(t(23))}, {sr(sT)}
        s_max_u32 {sr(sKey)}, {sr(sKeyU)}, {sr(sKeyV)}
        v_mov_b32 {vr(t(22))}, {sr(sKey)}
        ds_write_b32 {vr(t(23))}, {vr(t(22))} offset:{AM}""")
    def wg_best_read(tmp):
        e(f'v_mov_b32 {vr(tmp+4)}, 0\nds_read_b128 {vr(tmp,4)}, {vr(tmp+4)} offset:{AM}')
    def wg_best_header(cand, tmp):
        ln = g.lab('nohdr')
        e(f"""v_max3_u32 {vr(tmp)}, {vr(tmp)}, {vr(tmp+1)}, {vr(tmp+2)}
        v_max_u32 {vr(tmp)}, {vr(tmp)}, {vr(tmp+3)}
        v_readfirstlane_b32 {sr(sT)}, {vr(tmp)}
        s_cmp_eq_u32 {sr(sT)}, {sr(sKey)}
        s_cselect_b32 {sr(sSgn)}, 1, 0
        s_cbranch_scc0 {ln}
        s_lshl_b32 {sr(sT)}, {sr(sRho)}, 12
        s_add_u32 {sr(sOff)}, {sr(sT)}, {cand}
        v_mov_b32 {vr(tmp+1)}, {sr(sKey)}
        s_mov_b64 exec, 1
        buffer_store_dword {vr(tmp+1)}, {vr(tmp+4)}, {sr(sWS,4)}, {sr(sOff)} offen sc1
        s_mov_b64 exec, -1
        {ln}:""")
    def publish_rows(cand):
        ln = g.lab('nopub'); lv = g.lab('pubv'); lj = g.lab('pubj')
        e(f's_cmp_eq_u32 {sr(sSgn)}, 0\ns_cbranch_scc1 {ln}')
        e(f"""s_lshl_b32 {sr(sT)}, {sr(sRho)}, 12
        s_add_u32 {sr(sOff)}, {sr(sT)}, {cand}
        s_cmp_gt_u32 {sr(sKeyV)}, {sr(sKeyU)}
        s_cbranch_scc1 {lv}""")
        for (lab_, X_, A_, C_) in ((None, XU, sAu, sCu), (lv, XV, sAv, sCv)):
            if lab_: e(f'{lab_}:')
            e(f"""v_rcp_f32 {vr(t(0))}, {sr(A_)}
            v_mov_b32 {vr(t(1))}, {sr(A_+1)}
            v_mov_b32 {vr(t(2))}, {sr(A_)}
            v_add_f32 {vr(t(2))}, -1.0, {vr(t(2))}
            v_subrev_f32 {vr(t(3))}, {sr(C_)}, {vr(t(1))}
            v_mul_f32 {vr(t(4))}, {vr(t(2))}, {vr(t(0))}
            v_fma_f32 {vr(t(6))}, -{vr(t(4))}, {vr(t(1))}, {vr(t(3))}""")
            Z = t(8)
            for k in range(4): e(f'v_pk_fma_f32 {vr(Z+2*k,2)}, {vr(X_+2*k,2)}, {vr(t(4),2)}, {vr(t(6),2)} op_sel_hi:[1,0,0]')
            if X_ == XU:
                for k in range(4): e(f'v_cvt_pk_bf16_f32 {vr(t(16)+k)}, {vr(Z+2*k)}, {vr(Z+2*k+1)}')
                e(f"""v_lshlrev_b32 {vr(t(1))}, 4, {vr(vL)}
                v_lshlrev_b32 {vr(t(2))}, 5, {vr(vL)}
                buffer_store_dwordx4 {vr(t(16),4)}, {vr(t(1))}, {sr(sWS,4)}, {sr(sOff)} offen offset:128 sc1
                buffer_store_dwordx4 {vr(XU,4)}, {vr(t(2))}, {sr(sWS,4)}, {sr(sOff)} offen offset:1152 sc1
                buffer_store_dwordx4 {vr(XU+4,4)}, {vr(t(2))}, {sr(sWS,4)}, {sr(sOff)} offen offset:1168 sc1
                s_branch {lj}""")
            else:
                e(f"""v_mov_b32_dpp {vr(t(20))}, {vr(Z)} wave_rol:1 {DPP}
                v_mov_b32_dpp {vr(t(24))}, {vr(XV)} wave_rol:1 {DPP}
                v_cvt_pk_bf16_f32 {vr(t(17))}, {vr(Z+6)}, {vr(Z+5)}
                v_cvt_pk_bf16_f32 {vr(t(18))}, {vr(Z+4)}, {vr(Z+3)}
                v_cvt_pk_bf16_f32 {vr(t(19))}, {vr(Z+2)}, {vr(Z+1)}
                v_cvt_pk_bf16_f32 {vr(t(16))}, {vr(t(20))}, {vr(Z+7)}""")
                for k in range(1, 8): e(f'v_mov_b32 {vr(t(24)+k)}, {vr(XV+8-k)}')
                e(f"""v_lshlrev_b32 {vr(t(1))}, 4, {vr(vL)}
                v_sub_u32 {vr(t(1))}, 1008, {vr(t(1))}
                v_lshlrev_b32 {vr(t(2))}, 1, {vr(t(1))}
                buffer_store_dwordx4 {vr(t(16),4)}, {vr(t(1))}, {sr(sWS,4)}, {sr(sOff)} offen offset:128 sc1
                buffer_store_dwordx4 {vr(t(24),4)}, {vr(t(2))}, {sr(sWS,4)}, {sr(sOff)} offen offset:1152 sc1
                buffer_store_dwordx4 {vr(t(28),4)}, {vr(t(2))}, {sr(sWS,4)}, {sr(sOff)} offen offset:1168 sc1""")
        e(f'{lj}:\n{ln}:')

    def header_load(cand, K):
        e(f's_mov_b32 {sr(sOff)}, {cand}')
        e(ws_load_text(1, K, aHdr, sr(sOff)))
    def argmax(cand, K, after_check=None):
        e(f's_mov_b32 {sr(sOff)}, {cand}')
        poll(ws_load_text(1, K, aHdr, sr(sOff)), [K], preloaded=True, backoff=4)
        if after_check: after_check()
        wave_reduce([K], [t(1)], op='v_max_u32')
        e(f"""s_lshl_b32 {sr(sT)}, {sr(sW)}, 2
        v_mov_b32 {vr(t(1))}, {sr(sT)}
        ds_write_b32 {vr(t(1))}, {vr(K)} offset:{AM+32}
        v_mov_b32 {vr(t(1))}, 0
        s_waitcnt lgkmcnt(0)
        s_barrier
        ds_read_b128 {vr(t(4),4)}, {vr(t(1))} offset:{AM+32}
        s_waitcnt lgkmcnt(0)
        v_max3_u32 {vr(t(4))}, {vr(t(4))}, {vr(t(5))}, {vr(t(6))}
        v_max_u32 {vr(t(4))}, {vr(t(4))}, {vr(t(7))}
        v_readfirstlane_b32 {sr(sKey)}, {vr(t(4))}""")
        e(f"""s_and_b32 {sr(sStar)}, {sr(sKey)}, 2047
        s_lshr_b32 {sr(sT)}, {sr(sStar)}, 2
        s_sub_u32 {sr(sT2)}, 511, {sr(sT)}
        s_sub_u32 {sr(sT3)}, 512, {sr(sT)}
        s_and_b32 {sr(sT3)}, {sr(sT3)}, 255
        s_and_b32 {sr(sRec)}, {sr(sStar)}, 3
        s_cmp_eq_u32 {sr(sRec)}, 0
        s_cselect_b32 {sr(sT2)}, {sr(sT3)}, {sr(sT2)}
        s_cmp_lt_u32 {sr(sStar)}, 1024
        s_cselect_b32 {sr(sT2)}, {sr(sT)}, {sr(sT2)}
        s_lshl_b32 {sr(sRec)}, {sr(sT2)}, 12
        s_add_u32 {sr(sRec)}, {sr(sRec)}, {cand}""")
    def sigmoid_of_key():
        e(f"""s_and_b32 {sr(sT)}, {sr(sKey)}, 0xfffff800
        s_or_b32 {sr(sT)}, {sr(sT)}, 0x400
        s_ashr_i32 {sr(sT2)}, {sr(sT)}, 31
        s_not_b32 {sr(sT2)}, {sr(sT2)}
        s_or_b32 {sr(sT2)}, {sr(sT2)}, 0x80000000
        s_xor_b32 {sr(sT)}, {sr(sT)}, {sr(sT2)}
        v_mov_b32 {vr(vSig)}, {fbits(-1.4426950408889634)}
        v_mul_f32 {vr(vSig)}, {sr(sT)}, {vr(vSig)}
        v_exp_f32 {vr(vSig)}, {vr(vSig)}
        v_add_f32 {vr(vSig)}, 1.0, {vr(vSig)}
        v_rcp_f32 {vr(vSig)}, {vr(vSig)}""")

    def ffn_setup():
        e(f"""v_lshlrev_b32 {vr(t(0))}, 5, v0
        ds_write_b128 {vr(t(0))}, {vr(FA,4)} offset:{GU}
        ds_write_b128 {vr(t(0))}, {vr(FA+4,4)} offset:{GU+8192}
        ds_write_b128 {vr(t(0))}, {vr(FA+8,4)} offset:{GU+16}
        ds_write_b128 {vr(t(0))}, {vr(FA+12,4)} offset:{GU+8192+16}
        ds_write_b128 {vr(lG)}, {vr(FD,4)} offset:{DN}
        ds_write_b128 {vr(lG)}, {vr(FD+4,4)} offset:{DN+4096}
        s_mul_i32 {sr(sT)}, {sr(sW)}, {4096-1024}
        v_add_u32 {vr(t(1))}, {sr(sT)}, {vr(lTr)}
        v_lshlrev_b32 {vr(t(2))}, 2, v0
        s_waitcnt lgkmcnt(0)
        s_barrier""")
        for kap in range(4):
            for h in range(2):
                e(f'ds_read_b64_tr_b16 {vr(FA+4*kap+2*h,2)}, {vr(t(1))} offset:{GU + kap*1024 + h*128}')
        for f in range(8): e(f'ds_read_b32 {vr(t(8)+f)}, {vr(t(2))} offset:{DN + f*1024}')
        e('s_waitcnt lgkmcnt(0)')
        for f in range(8):
            e(f'v_lshlrev_b32 {vr(FD+2*f)}, 16, {vr(t(8)+f)}\nv_and_b32 {vr(FD+2*f+1)}, 0xffff0000, {vr(t(8)+f)}')

    XS = t(0)
    def xsel_text():
        return '\n'.join(f'buffer_load_dwordx4 {vr(XS+4*k,4)}, {vr(t(20))}, {sr(sWS,4)}, {sr(sRec)} offen offset:{128+64*k} sc1' for k in range(4))
    def xsel_load():
        e(f"""s_lshl_b32 {sr(sT)}, {sr(sW)}, 8
        v_lshlrev_b32 {vr(t(20))}, 4, {vr(vQ)}
        v_add_u32 {vr(t(20))}, {sr(sT)}, {vr(t(20))}""")
        e(xsel_text())
    def ffn(part):
        ln = g.lab('noffn')
        e(f's_cmp_ge_u32 {sr(sPhi)}, {NF}\ns_cbranch_scc1 {ln}')
        poll(xsel_text(), range(XS, XS+16), preloaded=True)
        Pp = t(16)
        for k in range(4):
            e(f'v_mfma_f32_16x16x32_bf16 {vr(Pp,4)}, {vr(FA+4*k,4)}, {vr(XS+4*k,4)}, {"0" if k==0 else vr(Pp,4)}')
        e(f"""v_lshlrev_b32 {vr(t(21))}, 6, {vr(vQ)}
        s_lshl_b32 {sr(sT)}, {sr(sW)}, 2
        v_add_u32 {vr(t(21))}, {sr(sT)}, {vr(t(21))}
        v_and_b32 {vr(t(22))}, 31, {vr(vL)}
        v_lshlrev_b32 {vr(t(22))}, 2, {vr(t(22))}
        s_mov_b32 exec_lo, 0x00010001
        s_mov_b32 exec_hi, 0x00010001""")
        for i in range(4): e(f'ds_write_b32 {vr(t(21))}, {vr(Pp+i)} offset:{FP + 16*i}')
        e(f"""s_mov_b64 exec, -1
        s_waitcnt lgkmcnt(0)
        s_barrier
        ds_read_b32 {vr(t(12))}, {vr(t(22))} offset:{FP}
        ds_read_b32 {vr(t(13))}, {vr(t(22))} offset:{FP+128}
        s_waitcnt lgkmcnt(0)""")
        gg, uu = t(12), t(13)
        for mod in ('quad_perm:[1,0,3,2]', 'quad_perm:[2,3,0,1]'):
            e(f'v_add_f32_dpp {vr(gg)}, {vr(gg)}, {vr(gg)} {mod} {DPP}\nv_add_f32_dpp {vr(uu)}, {vr(uu)}, {vr(uu)} {mod} {DPP}')
        e(f"""v_mul_f32 {vr(t(14))}, {fbits(-1.4426950408889634)}, {vr(gg)}
        v_exp_f32 {vr(t(14))}, {vr(t(14))}
        v_mul_f32 {vr(uu)}, {vr(uu)}, {vr(vSig)}
        v_add_f32 {vr(t(14))}, 1.0, {vr(t(14))}
        v_rcp_f32 {vr(t(14))}, {vr(t(14))}
        v_mul_f32 {vr(gg)}, {vr(gg)}, {vr(uu)}
        v_mul_f32 {vr(gg)}, {vr(gg)}, {vr(t(14))}""")
        for f in range(8): e(f'v_readlane_b32 {sr(sH+f)}, {vr(gg)}, {4*f}')
        acc = t(16)
        for f in range(8):
            sel = 'op_sel_hi:[1,0,1]' if f % 2 == 0 else 'op_sel:[0,1,0] op_sel_hi:[1,1,1]'
            if f == 0: e(f'v_pk_mul_f32 {vr(acc,2)}, {vr(FD,2)}, {sr(sH,2)} op_sel_hi:[1,0]')
            else: e(f'v_pk_fma_f32 {vr(acc,2)}, {vr(FD+2*f,2)}, {sr(sH + (f & ~1),2)}, {vr(acc,2)} {sel}')
        ws_store(2, acc, aP8, part)
        e(f'{ln}:')

    def reducer(part, final):
        ln = g.lab('nored')
        e(f"""s_sub_u32 {sr(sT3)}, {sr(sWg)}, {RED0}
        s_cmp_ge_u32 {sr(sT3)}, 32
        s_cbranch_scc1 {ln}
        v_lshrrev_b32 {vr(t(20))}, 2, v0
        v_lshlrev_b32 {vr(t(21))}, 11, {vr(t(20))}
        v_and_b32 {vr(t(22))}, 3, v0
        v_lshlrev_b32 {vr(t(22))}, 4, {vr(t(22))}
        s_lshl_b32 {sr(sT)}, {sr(sT3)}, 6
        v_add_u32 {vr(t(25))}, {sr(sT)}, {vr(t(22))}
        v_add_u32 {vr(t(21))}, {vr(t(21))}, {vr(t(25))}
        v_add_u32 {vr(t(23))}, {128*2048}, {vr(t(21))}
        v_mov_b32 {vr(t(24))}, 0x7f000000
        v_cmp_gt_u32 vcc, {NF-128}, {vr(t(20))}
        v_cndmask_b32 {vr(t(23))}, {vr(t(24))}, {vr(t(23))}, vcc
        s_mov_b32 {sr(sOff)}, {part}
        s_add_u32 {sr(sT2)}, {sr(sOff)}, {64*2048}""")
        A, B2, B3, B4 = t(0), t(4), t(8), t(12)
        ld = '\n'.join([ws_load_text(4, A, t(21), sr(sOff)), ws_load_text(4, B2, t(21), sr(sT2)), ws_load_text(4, B3, t(23), sr(sOff))])
        regs = list(range(A, A+12))
        if final:
            ld += '\n' + ws_load_text(4, B4, t(25), sr(sRec), 'offset:1152')
            regs += list(range(B4, B4+4))
        poll(ld, regs)
        for X_ in (B2, B3):
            e(f'v_pk_add_f32 {vr(A,2)}, {vr(A,2)}, {vr(X_,2)}\nv_pk_add_f32 {vr(A+2,2)}, {vr(A+2,2)}, {vr(X_+2,2)}')
        for sh in (4, 8):
            for i in range(4): e(f'v_add_f32_dpp {vr(A+i)}, {vr(A+i)}, {vr(A+i)} row_ror:{sh} {DPP}')
        for sw in ('v_permlane16_swap_b32', 'v_permlane32_swap_b32'):
            for i in range(4): e(f'v_mov_b32 {vr(B2+i)}, {vr(A+i)}')
            for i in range(4): e(f'{sw} {vr(A+i)}, {vr(B2+i)}')
            for i in range(4): e(f'v_add_f32 {vr(A+i)}, {vr(A+i)}, {vr(B2+i)}')
        e(f"""s_lshl_b32 {sr(sT)}, {sr(sW)}, 6
        v_add_u32 {vr(t(24))}, {sr(sT)}, {vr(t(22))}
        s_mov_b64 exec, 15
        ds_write_b128 {vr(t(24))}, {vr(A,4)} offset:{RED}
        s_mov_b64 exec, -1
        s_waitcnt lgkmcnt(0)
        s_barrier
        s_cmp_lg_u32 {sr(sW)}, 0
        s_cbranch_scc1 {ln}""")
        R = t(28)
        for w in range(4): e(f'ds_read_b128 {vr(R+4*w,4)}, {vr(t(22))} offset:{RED + 64*w}')
        e('s_waitcnt lgkmcnt(0)')
        e(f"""v_pk_add_f32 {vr(R,2)}, {vr(R,2)}, {vr(R+4,2)}
        v_pk_add_f32 {vr(R+2,2)}, {vr(R+2,2)}, {vr(R+6,2)}
        v_pk_add_f32 {vr(R+8,2)}, {vr(R+8,2)}, {vr(R+12,2)}
        v_pk_add_f32 {vr(R+10,2)}, {vr(R+10,2)}, {vr(R+14,2)}
        v_pk_add_f32 {vr(R,2)}, {vr(R,2)}, {vr(R+8,2)}
        v_pk_add_f32 {vr(R+2,2)}, {vr(R+2,2)}, {vr(R+10,2)}""")
        if final:
            e(f"""v_pk_add_f32 {vr(R,2)}, {vr(R,2)}, {vr(B4,2)}
            v_pk_add_f32 {vr(R+2,2)}, {vr(R+2,2)}, {vr(B4+2,2)}
            v_cvt_pk_bf16_f32 {vr(R)}, {vr(R)}, {vr(R+1)}
            v_cvt_pk_bf16_f32 {vr(R+1)}, {vr(R+2)}, {vr(R+3)}
            s_lshl_b32 {sr(sT)}, {sr(sStar)}, 10
            v_lshrrev_b32 {vr(t(25))}, 1, {vr(t(25))}
            v_add_u32 {vr(t(25))}, {sr(sT)}, {vr(t(25))}
            s_mov_b64 exec, 15
            buffer_store_dwordx2 {vr(R,2)}, {vr(t(25))}, {sr(sOUT,4)}, 0 offen sc1
            s_mov_b64 exec, -1""")
        else:
            e(f"""s_mov_b32 {sr(sOff)}, {UPD0}
            s_mov_b64 exec, 15
            buffer_store_dwordx4 {vr(R,4)}, {vr(t(25))}, {sr(sWS,4)}, {sr(sOff)} offen sc1
            s_mov_b64 exec, -1""")
        e(f'{ln}:')

    addr_p1()
    row_consts()
    la = g.lab('nosig')
    e(f"""s_cmp_ge_u32 {sr(sWg)}, 64
    s_cbranch_scc1 {la}
    s_waitcnt vmcnt({N_AFTER_POISON})
    s_barrier
    s_cmp_lg_u32 {sr(sW)}, 0
    s_cbranch_scc1 {la}""")
    srd(sT4, kdbg, 256)
    e(f"""v_mov_b32 {vr(t(4))}, 0
    v_mov_b32 {vr(t(5))}, 1
    s_mov_b64 exec, 1
    buffer_atomic_add {vr(t(5))}, {vr(t(4))}, {sr(sT4,4)}, 0 offen sc0 sc1
    s_waitcnt vmcnt(0)
    v_cmp_eq_u32 vcc, {NPOIS-1}, {vr(t(5))}
    s_cbranch_vccz {la}_x
    v_mov_b32 {vr(t(5))}, 1
    buffer_store_dword {vr(t(5))}, {vr(t(4))}, {sr(sT4,4)}, 0 offen offset:128 sc1
    {la}_x:
    s_mov_b64 exec, -1
    {la}:""")
    weight_loads()
    stamp('rowconst')
    addr_col()
    col_consts()
    addr_row()
    stamp('preamble')
    e(f's_waitcnt vmcnt({N_AFTER_X})')
    stamp('x0')
    unpack_nat(XU, URAW); unpack_rev(XV, VRAW, t(16))
    stats2(False)
    norm_coeffs(hRho, hB)
    make_g()
    transform(HB0, init_check=True)
    stamp('P1 stored')
    finish_here('P1')
    special_k(KB0, False)
    poison_regs()
    e(f"""s_sub_u32 {sr(sT3)}, {sr(sWg)}, {RED0}
    s_lshl_b32 {sr(sT)}, {sr(sT3)}, 6
    v_lshlrev_b32 {vr(t(6))}, 2, v0
    v_add_u32 {vr(t(6))}, {sr(sT)}, {vr(t(6))}
    v_cmp_gt_u32 vcc, 16, v0
    s_cmp_lt_u32 {sr(sT3)}, 32
    s_cselect_b64 {sr(sEx,2)}, vcc, 0
    v_mov_b32 {vr(t(7))}, 0x7f000000
    v_cndmask_b32 {vr(t(6))}, {vr(t(7))}, {vr(t(6))}, {sr(sEx,2)}""")
    ws_store(4, PZ, aP16, HB1); ws_store(4, PZ, aP16, CAND0); ws_store(2, PZ, aP8, PART0); ws_store(1, PZ, t(6), UPD0)
    ffn_setup()
    unpack_nat(WU, WURAW); unpack_rev(WV, WVRAW, t(16))
    e(f"""v_pk_add_f32 {vr(t(16),2)}, {vr(WU,2)}, {vr(WU+2,2)}
    v_pk_add_f32 {vr(t(18),2)}, {vr(WU+4,2)}, {vr(WU+6,2)}
    v_pk_add_f32 {vr(t(16),2)}, {vr(t(16),2)}, {vr(t(18),2)}
    v_add_f32 {vr(t(16))}, {vr(t(16))}, {vr(t(17))}""")
    wave_reduce([t(16)], [t(17)])
    e(f'v_readfirstlane_b32 {sr(sSW)}, {vr(t(16))}')
    stamp('shadow1')
    e('s_waitcnt vmcnt(0)')
    column(HB0, YB0, False)
    stamp('P2 stored')
    finish_here('P2')
    poison_regs()
    ws_store(4, PZ, aP16, YB1); ws_store(4, PZ, aP16, CAND1); ws_store(2, PZ, aP8, PART1)
    e('s_waitcnt vmcnt(0)')
    row_input(YB0, KB0)
    add_y_pair()
    stats2(True)
    make_key()
    residual_coeffs()
    e(f"""v_mul_f32 {vr(t(23))}, {vr(t(21))}, {vr(t(21))}
    v_mul_f32 {vr(t(23))}, {vr(t(23))}, {vr(hVar)}
    v_add_f32 {vr(t(23))}, {fbits(1e-5)}, {vr(t(23))}
    v_rsq_f32 {vr(t(23))}, {vr(t(23))}
    s_waitcnt lgkmcnt(0)
    s_barrier""")
    wg_best_read(t(24))
    e(f"""v_mul_f32 {vr(t(22))}, {vr(t(21))}, {vr(t(23))}
    v_mul_f32 {vr(t(23))}, -{vr(hM)}, {vr(t(22))}""")
    norm_coeffs(t(22), t(23))
    e('s_waitcnt lgkmcnt(0)')
    wg_best_header(CAND0, t(24))
    stamp('hdr0')
    make_g()
    residual_update(XU, XV)
    transform(HB1, post_scatter=lambda: publish_rows(CAND0))
    stamp('P3 stored')
    finish_here('P3')
    K = t(0)
    header_load(CAND0, vSig)
    special_k(KB1, True)
    e(f's_waitcnt vmcnt(0)\nv_mov_b32 {vr(K)}, {vr(vSig)}')
    argmax(CAND0, K, after_check=lambda: column_load(HB1))
    stamp('argmax0')
    lb = g.lab('nobase')
    e(f"""s_cmp_ge_u32 {sr(sW)}, 2
    s_cbranch_scc1 {lb}
    v_lshlrev_b32 {vr(t(21))}, 5, {vr(vL)}
    buffer_load_dwordx4 {vr(FX,4)}, {vr(t(21))}, {sr(sWS,4)}, {sr(sRec)} offen offset:1152 sc1
    buffer_load_dwordx4 {vr(FX+4,4)}, {vr(t(21))}, {sr(sWS,4)}, {sr(sRec)} offen offset:1168 sc1
    {lb}:""")
    lb = g.lab('nox')
    e(f's_cmp_ge_u32 {sr(sPhi)}, {NF}\ns_cbranch_scc1 {lb}')
    xsel_load()
    e(f'{lb}:')
    sigmoid_of_key()
    e(f"""s_mul_i32 {sr(sT)}, {sr(sRowU)}, {sr(sStar)}
    s_and_b32 {sr(sT)}, {sr(sT)}, 2047
    v_cvt_f32_u32 {vr(vCa)}, {sr(sT)}
    v_mul_f32 {vr(vCa)}, {fbits(1/2048)}, {vr(vCa)}
    v_sin_f32 {vr(vSa)}, {vr(vCa)}
    v_cos_f32 {vr(vCa)}, {vr(vCa)}
    v_mul_f32 {vr(vSa)}, {fbits(1/32)}, {vr(vSa)}
    v_mul_f32 {vr(vCa)}, {fbits(1/32)}, {vr(vCa)}
    v_cvt_pk_f16_f32 {vr(vSa)}, {vr(vSa)}, {vr(vSa)}
    v_cvt_pk_f16_f32 {vr(vCa)}, {vr(vCa)}, {vr(vCa)}
    s_waitcnt vmcnt(0)""")
    stamp('xsel')
    ffn(PART0)
    stamp('ffn0')
    column(HB1, YB1, True)
    stamp('P4 stored')
    finish_here('P4')
    lb = g.lab('nobase')
    e(f's_cmp_ge_u32 {sr(sW)}, 2\ns_cbranch_scc1 {lb}')
    e(f'v_lshlrev_b32 {vr(t(21))}, 5, {vr(vL)}')
    poll(f'buffer_load_dwordx4 {vr(FX,4)}, {vr(t(21))}, {sr(sWS,4)}, {sr(sRec)} offen offset:1152 sc1\n'
         f'buffer_load_dwordx4 {vr(FX+4,4)}, {vr(t(21))}, {sr(sWS,4)}, {sr(sRec)} offen offset:1168 sc1', range(FX, FX+8), preloaded=True)
    stats1(FX, t(0), FO)
    e(f'{lb}:')
    e('s_waitcnt vmcnt(0)')
    reducer(PART0, False)
    stamp('red0')
    e('s_waitcnt vmcnt(0)')
    row_input(YB1, KB1)
    stamp('y1 read')
    lj = g.lab('fixj'); lq = g.lab('fix'); lu = g.lab('ownu'); lv = g.lab('ownv')
    U = t(16)
    updld = lambda areg: (ws_load_text(4, U, areg, sr(sOff)) + '\n' + ws_load_text(4, U+4, areg, sr(sOff), 'offset:16'))
    def owner_add():
        l1 = g.lab('nu'); l2 = g.lab('nv')
        e(f's_cmp_lg_u32 {sr(sStar)}, {sr(sRowU)}\ns_cbranch_scc1 {l1}')
        for k in range(4): e(f'v_pk_add_f32 {vr(XU+2*k,2)}, {vr(XU+2*k,2)}, {vr(U+2*k,2)}')
        e(f'{l1}:')
    e(f"""v_lshlrev_b32 {vr(t(44))}, 5, {vr(vL)}
    s_mov_b32 {sr(sOff)}, {UPD0}""")
    lnv = g.lab('notv')
    e(f"""s_cmp_lg_u32 {sr(sStar)}, {sr(sRowV)}
    s_cbranch_scc1 {lnv}
    v_sub_u32 {vr(t(45))}, {63*32}, {vr(t(44))}""")
    poll(updld(t(45)), range(U, U+8), backoff=4)
    e(f'v_mov_b32_dpp {vr(t(46))}, {vr(U)} wave_ror:1 {DPP}')
    for k in range(1, 8): e(f'v_add_f32 {vr(XV+k)}, {vr(XV+k)}, {vr(U+8-k)}')
    e(f'v_add_f32 {vr(XV)}, {vr(XV)}, {vr(t(46))}\n{lnv}:')
    e(f"""s_cmp_lt_u32 {sr(sW)}, 2
    s_cbranch_scc1 {lq}
    s_cmp_lg_u32 {sr(sStar)}, {sr(sRowU)}
    s_cbranch_scc1 {lj}""")
    poll(updld(t(44)), range(U, U+8), backoff=4)
    owner_add()
    e(f's_branch {lj}\n{lq}:')
    poll(updld(t(44)), range(U, U+8), backoff=4)
    stamp('upd')
    owner_add()
    for k in range(4): e(f'v_pk_add_f32 {vr(FX+2*k,2)}, {vr(FX+2*k,2)}, {vr(U+2*k,2)}')
    stats1(FX, t(32), FX)
    for k in range(4): e(f'v_pk_add_f32 {vr(FX+2*k,2)}, {vr(FX+2*k,2)}, {vr(FO+2*k,2)} neg_lo:[0,1] neg_hi:[0,1]')
    write_n(FX, t(24)); write_r(FX, t(40))
    A, B = CA, t(40)
    for k in range(8): e(f'v_mov_b32 {vr(FO+k)}, {vr(YH+k)}')
    e(f"""s_mov_b32 {sr(sT)}, 0x3c003c00
    s_cmp_eq_u32 {sr(sW)}, 0
    s_cselect_b32 {sr(sSgn)}, {sr(sT)}, 0xbc00bc00
    s_waitcnt lgkmcnt(0)
    ds_read_b64_tr_b16 {vr(A,2)}, {vr(lTr)} offset:{GIMG}
    ds_read_b64_tr_b16 {vr(B,2)}, {vr(lTr)} offset:{RIMG}
    ds_read_b64_tr_b16 {vr(A+2,2)}, {vr(lTr)} offset:{GIMG+128}
    ds_read_b64_tr_b16 {vr(B+2,2)}, {vr(lTr)} offset:{RIMG+128}
    s_waitcnt lgkmcnt(0)""")
    for k in range(4): e(f'v_pk_fma_f16 {vr(A+k)}, {vr(B+k)}, {sr(sSgn)}, {vr(A+k)}')
    core(A, CO)
    for k in range(4): e(f'v_cvt_pk_f16_f32 {vr(t(44)+k)}, {vr(CO+2*k)}, {vr(CO+2*k+1)}')
    e(f"""v_lshl_add_u32 {vr(t(0))}, {vr(vQ)}, 7, {vr(vN)}
    v_lshlrev_b32 {vr(t(1))}, 7, {vr(vQ)}
    v_sub_u32 {vr(t(1))}, {32*23}, {vr(t(1))}
    v_add_u32 {vr(t(1))}, {vr(t(1))}, {vr(vN)}
    v_cmp_gt_u32 vcc, 2, {vr(vQ)}
    v_cndmask_b32 {vr(t(0))}, {vr(t(1))}, {vr(t(0))}, vcc
    v_lshlrev_b32 {vr(t(0))}, 1, {vr(t(0))}
    s_lshl_b32 {sr(sT)}, {sr(sW)}, 10
    v_add_u32 {vr(t(0))}, {sr(sT)}, {vr(t(0))}
    v_mov_b32 {vr(t(2))}, 64
    v_mov_b32 {vr(t(3))}, -64
    v_cndmask_b32 {vr(t(2))}, {vr(t(3))}, {vr(t(2))}, vcc""")
    for i in range(4):
        op = 'ds_write_b16' if i % 2 == 0 else 'ds_write_b16_d16_hi'
        for Tt in range(2):
            e(f'{op} {vr(t(0))}, {vr(t(44)+2*Tt+i//2)} offset:{RIMG + 2048 + 32*Tt}')
        if i < 3: e(f'v_add_u32 {vr(t(0))}, {vr(t(0))}, {vr(t(2))}')
    for k in range(8): e(f'v_mov_b32 {vr(YH+k)}, {vr(FO+k)}')
    e(f"""{lj}:
    s_waitcnt lgkmcnt(0)
    s_barrier
    v_lshlrev_b32 {vr(t(0))}, 4, {vr(vL)}
    ds_read_b128 {vr(t(16),4)}, {vr(t(0))} offset:{RIMG+2048}
    ds_read_b128 {vr(t(20),4)}, {vr(t(0))} offset:{RIMG+2048+1024}
    s_waitcnt lgkmcnt(1)""")
    lsp = g.lab('fsp')
    for k in range(4): e(f'v_pk_fma_f16 {vr(YH+k)}, {vr(t(16)+k)}, {vr(vCa)}, {vr(YH+k)}')
    e(f'''s_cmp_lg_u32 {sr(sRowU)}, 0
    s_cbranch_scc1 {lsp}
    s_mov_b32 {sr(sT)}, 0x28002800
    s_bitcmp0_b32 {sr(sStar)}, 0
    s_cselect_b32 {sr(sT)}, {sr(sT)}, 0xa800a800''')
    for k in range(4): e(f'v_pk_fma_f16 {vr(YV+k)}, {vr(t(16)+k)}, {sr(sT)}, {vr(YV+k)}')
    e(f'{lsp}:\ns_waitcnt lgkmcnt(0)')
    for k in range(4): e(f'v_pk_fma_f16 {vr(YH+k)}, {vr(t(20)+k)}, {vr(vSa)}, {vr(YH+k)}')
    add_y_pair()
    stamp('fixed')
    stats2(True)
    make_key()
    residual_coeffs()
    e('s_waitcnt lgkmcnt(0)\ns_barrier')
    wg_best_read(t(24))
    residual_update(XU, XV)
    e('s_waitcnt lgkmcnt(0)')
    wg_best_header(CAND1, t(24))
    publish_rows(CAND1)
    e('s_waitcnt vmcnt(0)\ns_barrier')
    stamp('cand1')
    header_load(CAND1, K)
    e('s_waitcnt vmcnt(0)')
    argmax(CAND1, K)
    stamp('argmax1')
    lb = g.lab('nox')
    e(f's_cmp_ge_u32 {sr(sPhi)}, {NF}\ns_cbranch_scc1 {lb}')
    xsel_load()
    e(f'{lb}:')
    sigmoid_of_key()
    ln = g.lab('noout')
    e(f's_cmp_eq_u32 {sr(sStar)}, {sr(sRowU)}\ns_cbranch_scc1 {ln}')
    for k in range(4): e(f'v_cvt_pk_bf16_f32 {vr(t(24)+k)}, {vr(XU+2*k)}, {vr(XU+2*k+1)}')
    e(f'buffer_store_dwordx4 {vr(t(24),4)}, {vr(aU)}, {sr(sOUT,4)}, 0 offen sc1\n{ln}:')
    ln = g.lab('noout')
    e(f's_cmp_eq_u32 {sr(sStar)}, {sr(sRowV)}\ns_cbranch_scc1 {ln}')
    e(f"""v_mov_b32_dpp {vr(t(32))}, {vr(XV)} wave_rol:1 {DPP}
    v_cvt_pk_bf16_f32 {vr(t(29))}, {vr(XV+6)}, {vr(XV+5)}
    v_cvt_pk_bf16_f32 {vr(t(30))}, {vr(XV+4)}, {vr(XV+3)}
    v_cvt_pk_bf16_f32 {vr(t(31))}, {vr(XV+2)}, {vr(XV+1)}
    v_cvt_pk_bf16_f32 {vr(t(28))}, {vr(t(32))}, {vr(XV+7)}
    buffer_store_dwordx4 {vr(t(28),4)}, {vr(aV)}, {sr(sOUT,4)}, 0 offen sc1
    {ln}:""")
    e('s_waitcnt vmcnt(0)')
    ffn(PART1)
    stamp('ffn1')
    e('s_waitcnt vmcnt(0)')
    reducer(PART1, True)
    stamp('end')
    e('L_done:')
    if stamps:
        ls = g.lab('nost')
        e(f"""s_cmp_ge_u32 s2, 256
        s_cbranch_scc1 {ls}
        s_waitcnt vmcnt(0)
        s_mov_b64 exec, -1
        s_lshl_b32 {sr(sT)}, {sr(sWg)}, 11
        s_lshl_b32 {sr(sT2)}, {sr(sW)}, 8
        s_add_u32 {sr(sT)}, {sr(sT)}, {sr(sT2)}
        v_and_b32 {vr(t(0))}, 63, v0
        v_lshlrev_b32 {vr(t(0))}, 2, {vr(t(0))}
        v_add_u32 {vr(t(0))}, {sr(sT)}, {vr(t(0))}
        s_mov_b32 {sr(sOff)}, {STAMP}
        buffer_store_dword {vr(vStamp)}, {vr(t(0))}, {sr(sWS,4)}, {sr(sOff)} offen
        {ls}:""")
    e('s_endpgm')
    for ls, lj in g.late:
        e(f'{ls}:')
        add_y(YH, YV)
        e(f's_branch {lj}')
    emit_tail()
    return g

def render(g):
    lines, added = pad(g.L)
    body = '\n'.join(('' if l.endswith(':') else '    ') + l for l in lines)
    ninstr = sum(1 for l in lines if not l.endswith(':'))
    hdr = f"""; FNet (2-D real DFT via Hartley factorisation on MFMA) + top-1 routed SwiGLU, two layers, one persistent launch.
; @launch grid=(256,1,1) block=(256,1,1) lds={LDS_SIZE}
.amdgcn_target "amdgcn-amd-amdhsa--gfx950"
.text
.globl {NAME}
.p2align 8
.type {NAME},@function
{NAME}:
"""
    tail = f"""
L_code_end:
.section .rodata,"a"
.p2align 6
.amdhsa_kernel {NAME}
  .amdhsa_next_free_vgpr 256
  .amdhsa_next_free_sgpr 102
  .amdhsa_accum_offset 256
  .amdhsa_group_segment_fixed_size 0
  .amdhsa_kernarg_size 104
  .amdhsa_user_sgpr_count 2
  .amdhsa_user_sgpr_kernarg_segment_ptr 1
  .amdhsa_system_sgpr_workgroup_id_x 1
.end_amdhsa_kernel
"""
    return hdr + body + tail, ninstr, added

if __name__ == '__main__':
    import argparse
    ap = argparse.ArgumentParser()
    ap.add_argument('-o', default='interleave_layers__spectral_fnet__moe_arch_mod__prompt.s')
    ap.add_argument('--stop'); ap.add_argument('--stamps', action='store_true'); ap.add_argument('--opt', default='')
    a = ap.parse_args()
    g = build(a.stop, a.stamps, {k.split('=')[0]: (k.split('=')+['1'])[1] for k in a.opt.split(',') if k})
    txt, n, added = render(g)
    open(a.o, 'w').write(txt)
    print(f'{n} instructions, {added} nop slots added, vgpr high {g.v.n}, sgpr high {g.s.n}')
```

```python
import numpy as np
L = np.arange(64); N = L & 15; Q = L >> 4; J = np.arange(8); I4 = np.arange(4)
def pk16(v):
    h = np.asarray(v, dtype=np.float64).astype(np.float16).view(np.uint16).astype(np.uint32)
    return h[:, 0::2] | (h[:, 1::2] << 16)
def f32(v): return np.asarray(v, dtype=np.float32).view(np.uint32)

def row_table():
    regs = []
    k = 8*Q[:,None] + J[None,:]
    for T in range(2):
        elo = 16*T + N
        regs.append(pk16(np.cos(2*np.pi*k*elo[:,None]/32)))
        regs.append(pk16(-np.sin(2*np.pi*k*elo[:,None]/32)))
    c = []; s = []
    for T in range(2):
        elo = 16*T + N; dlo = 4*Q[:,None] + I4[None,:]
        c.append(f32(np.cos(2*np.pi*dlo*elo[:,None]/512))); s.append(f32(np.sin(2*np.pi*dlo*elo[:,None]/512)))
    regs += c + s
    ehi = np.where(N < 8, N, 23-N)
    dlo = 4*Q[:,None] + (J[None,:] & 3); part = J[None,:] >> 2
    regs.append(pk16(np.sqrt(2)*np.cos(2*np.pi*(dlo*ehi[:,None]/16 + np.where(part == 0, 1/8, -1/8)))))
    return np.concatenate(regs, axis=1).T

def col_lane(w):
    tau = 8*w + (N & 7); hi = N >> 3; z = tau == 0
    tlo = np.where(hi == 0, tau, np.where(z, 32, 64-tau))
    return tau, hi, z, tlo
def col_table(w):
    tau, hi, z, tlo = col_lane(w)
    taup = np.where((hi == 1) & z, 32, tau); ph0 = np.where((hi == 1) & ~z, 0.25, 0.0)
    regs = [pk16(np.cos(2*np.pi*((32*kap + 8*Q[:,None] + J[None,:])*taup[:,None]/64 + ph0[:,None]))) for kap in range(2)]
    conj = ((hi == 1) & ~z)[:,None]
    for T in range(2):
        th = (16*T + 4*Q[:,None] + I4[None,:])*tlo[:,None]/2048
        c1 = np.cos(2*np.pi*(th + np.where(conj, 0.25, 0))); c2 = np.cos(2*np.pi*(th + np.where(conj, 0, -0.25)))
        sc = 0.25; amp2 = np.where(z, 0, sc)[:,None]
        regs += [f32(sc*c1), f32(amp2*c2), f32(-sc*c2), f32(amp2*c1)]
    return np.concatenate(regs, axis=1).T
def ca2_table():
    regs = []
    for U in range(2):
        for T in range(2):
            slo = 16*T + 4*Q[:,None] + (J[None,:] & 3); part = J[None,:] >> 2
            regs.append(pk16(np.sqrt(2)/8*np.cos(2*np.pi*(slo*(16*U+N)[:,None]/32 + np.where(part == 0, -1/8, -3/8)))))
    return np.concatenate(regs, axis=1).T

def addr_table(M):
    tid = np.arange(256); w = tid >> 6; l = tid & 63; n = l & 15; q = l >> 4
    vs = 4 + ((4 - w) & 3)
    lRow = w*1024 + 16*l
    lTr = w*1024 + (8*q + (n >> 2))*32 + (n & 3)*8
    lRw = M['RIMG'] + w*1024 + 1008 - 16*l
    lCr = M['CIN'] + 16*l
    lH0 = M['HIMG'] + np.where(q < 2, 16*(n + 128*q) + 2*w, 16*(-224 + 128*q - n) + 2*vs)
    lH1 = M['HIMG'] + np.where(q < 2, 16*(16 + n + 128*q) + 2*w, 16*(-224 + 128*q - 16 - n) + 2*vs)
    dummy = M['HIMG'] + 4112
    lHf0 = np.where(l == 48, M['HIMG'] + 2*w, dummy); lHf1 = np.where(l == 48, M['HIMG'] + 2*vs, dummy)
    def caddr(s): return M['CIN'] + (((s >> 4) & 1)*2 + (s >> 10))*1024 + (((s >> 8) & 3)*16 + (s & 15))*16 + 2*((s >> 5) & 7)
    lCa = caddr(4*tid); lCb = caddr(np.where(tid == 0, 1024, 2048 - 4*tid)); lCc = caddr(2044 - 4*tid)
    c = np.where(tid == 0, 256, tid)
    lYd = M['YIMG'] + 2*c; lYm = M['YIMG'] + 1024 - 2*c
    tlo = np.zeros(256, dtype=np.int64)
    for ww in range(4): tlo[64*ww:64*ww+64] = col_lane(ww)[3]
    t0 = tlo + 256*q
    lCo0 = M['COUT'] + 16*(t0 >> 2) + 2*(t0 & 3)
    a3 = (255 - (t0 >> 2) + ((t0 & 3) == 0))*16 + 2*(t0 & 3) + 8
    lCo1 = M['COUT'] - 768 + a3; lCo2 = M['COUT'] + (a3 & 4095)
    regs = [lRow, lTr, lRw, lCr, lH0, lH1, lHf0, lHf1, lCa, lCb, lCc, lYd, lCo0, lCo1, lCo2, lYm]
    return np.array(regs).astype(np.int64).astype(np.uint32)

def addr2_table(M):
    tid = np.arange(256)
    def caddr(s): return M['CIN'] + (((s >> 4) & 1)*2 + (s >> 10))*1024 + (((s >> 8) & 3)*16 + (s & 15))*16 + 2*((s >> 5) & 7)
    regs = []
    for k in range(2):
        i = 128*k + (tid >> 1); h = tid & 1
        regs.append(np.where(h == 0, caddr(4*i), caddr(np.where(i == 0, 1024, 2048 - 4*i))))
        regs.append(np.where(h == 0, caddr(4*i), caddr(2044 - 4*i)))
    return np.array(regs).astype(np.int64).astype(np.uint32)

def as_loads(regs):
    r, n = regs.shape
    return regs.reshape(r//4, 4, n).transpose(0, 2, 1).reshape(-1)

def build_tables(M):
    parts = []; off = {}; pos = 0
    def add(name, arr):
        nonlocal pos
        off[name] = pos; parts.append(arr.astype(np.uint32)); pos += arr.size*4
    add('addr', as_loads(addr_table(M)))
    add('addr2', as_loads(addr2_table(M)))
    add('row', as_loads(row_table()))
    return np.concatenate(parts), off
```

```python
import sys, struct, math
from asmlib import pad, Alloc
import tables

NAME = "interleave_layers__spectral_fnet__moe_arch_mod__prompt_kernel"
NONCE = 0x000000
HB0, YB0, HB1, YB1 = 0x100000, 0x300000, 0x400000, 0x500000
CAND0, CAND1 = 0x600000, 0x700000
PART0, PART1 = 0x800000, 0x880000
UPD0 = 0x900000
KB0, KB1 = 0x901000, 0x902000
HINT = 0x903000
STAMP = 0x980000
WS_SIZE = 0xA00000
NF = 172
RED0 = 8
LIMIT = 40000
NPOIS = 64
YIMG = 0
GIMG = 5120
RIMG = 9216
HIMG = 13312
CIN = 17472
COUT = 21568
KIMG = 25664
FP = 26752
AM = 27008
RED = 27072
GU = 27392
DN = GU + 16384
LDS_SIZE = DN + 8192
LMAP = dict(YIMG=YIMG, GIMG=GIMG, RIMG=RIMG, HIMG=HIMG, CIN=CIN, COUT=COUT)
TAB, TOFF = tables.build_tables(LMAP)

def fbits(x): return '0x%08x' % struct.unpack('<I', struct.pack('<f', x))[0]

class G:
    def __init__(self, stop=None, stamps=False):
        self.L = []; self.stop = stop; self.stamps = stamps; self.uid = 0; self.nstamp = 0; self.names = []
        self.v = Alloc(1, 256, 'v'); self.s = Alloc(3, 100, 's')
    def e(self, text):
        for l in text.strip('\n').split('\n'):
            l = l.strip()
            if l: self.L.append(l)
    def lab(self, p):
        self.uid += 1; return f'L_{p}_{self.uid}'

def vr(a, n=1): return f'v{a}' if n == 1 else f'v[{a}:{a+n-1}]'
def sr(a, n=1): return f's{a}' if n == 1 else f's[{a}:{a+n-1}]'
DPP = 'row_mask:0xf bank_mask:0xf'
PKB = 'op_sel:[0,0,1] op_sel_hi:[1,0,1]'

def build(stop=None, stamps=False, opt=None):
    opt = opt or {}
    g = G(stop, stamps); e = g.e; V = g.v; S = g.s
    sWS = S('ws', 4, 4); sXS = S('xsrd', 4, 4); sOUT = S('out', 4, 4); sT4 = S('tmpsrd', 4, 4)
    sRho = S('rho'); sW = S('w'); sRowU = S('rowu'); sRowV = S('rowv'); sVs = S('vs'); sOff = S('off'); sCnt = S('cnt')
    sT = S('t'); sT2 = S('t2'); sT3 = S('t3'); s16 = S('k16'); sStar = S('star'); sRec = S('rec'); sWg = S('wg'); sSW = S('sw')
    sCu = S('cu', 2, 2); sCv = S('cv', 2, 2); sEx = S('exsave', 2, 2)
    sAu = S('au', 2, 2); sAv = S('av', 2, 2); sKu = S('ku', 2, 2); sKv = S('kv', 2, 2); sKeyU = S('keyu'); sKeyV = S('keyv'); sKey = S('key')
    sTag = S('tag'); sH = S('h', 8, 2); sTm = S('tm', 2, 2); sPC = S('pc', 2, 2); sM2 = S('m2', 2, 2); sPhi = S('phi'); sSgn = S('sgn')
    sKA = S('ka', 16, 4); sKB = S('kb', 8, 4); sKC = S('kc', 2, 2)
    vL = V('lane'); vN = V('n'); vQ = V('q')
    XU = V('XU', 8, 4); XV = V('XV', 8, 4); WU = V('WU', 8, 2); WV = V('WV', 8, 2)
    RB1 = V('RB1', 16, 4); RC = V('RC', 8, 2); RS = V('RS', 8, 2); RA2 = V('RA2', 4, 4)
    CB1 = V('CB1', 8, 4); CK = V('CK', 32, 2); CA2 = V('CA2', 16, 4)
    assert RC == RB1+16 and RS == RB1+24 and RA2 == RB1+32 and CK == CB1+8
    FA = V('FA', 16, 4); FD = V('FD', 16, 4)
    AD = V('addr', 16, 4)
    lRow, lTr, lRw, lCr, lH, _, lHf, _, lCa, lCb, lCc, lYd = range(AD, AD+12)
    lCo = AD + 12; lYm = AD + 15
    aU = V('aU'); aV = V('aV'); aP16 = V('aP16'); aS16 = V('aS16'); aHdr = V('aHdr'); aP8 = V('aP8')
    lYm4 = V('lYm4'); lG = V('lG')
    vRowH = V('rowh'); vSig = V('sig'); vSent = V('sent'); vCa = V('cosa'); vSa = V('sina'); vStamp = V('stamp')
    FX = V('FX', 8, 4); FO = V('FO', 8, 4)
    NT = 256 - ((V.n + 3)//4*4)
    T = V('T', NT, 4)
    def t(i):
        assert i < NT, i
        return T + i
    DU, DV = t(0), t(8)

    def stamp(name=''):
        if not g.stamps: return
        if opt.get('only') and name not in opt['only'].split('+'): return
        e(f'''s_memrealtime {sr(sTm,2)}
        s_waitcnt lgkmcnt(0)
        v_writelane_b32 {vr(vStamp)}, {sr(sTm)}, {g.nstamp}''')
        g.nstamp += 1; g.names.append(name)
    def finish_here(tag):
        if g.stop == tag: e('s_branch L_done')

    def sentinel(regs):
        if isinstance(regs, tuple) and regs[0] == 'tag':
            P = regs[1]
            e(f'''v_bitop3_b32 {vr(vSent)}, {vr(P+1)}, {vr(P+3)}, {sr(sTag)} bitop3:0x7e
            v_bitop3_b32 {vr(P+1)}, {vr(P+5)}, {vr(P+7)}, {sr(sTag)} bitop3:0x7e
            v_or_b32 {vr(vSent)}, {vr(vSent)}, {vr(P+1)}
            v_cmp_ne_u32 vcc, 0, {vr(vSent)}''')
            return
        regs = list(regs); tm = vSent
        if len(regs) == 1:
            e(f'v_cmp_eq_u32 vcc, -1, {vr(regs[0])}')
        else:
            if len(regs) >= 3:
                e(f'v_max3_u32 {vr(tm)}, {vr(regs[0])}, {vr(regs[1])}, {vr(regs[2])}'); rest = regs[3:]
            else:
                e(f'v_max_u32 {vr(tm)}, {vr(regs[0])}, {vr(regs[1])}'); rest = []
            while len(rest) >= 2:
                e(f'v_max3_u32 {vr(tm)}, {vr(tm)}, {vr(rest[0])}, {vr(rest[1])}'); rest = rest[2:]
            if rest: e(f'v_max_u32 {vr(tm)}, {vr(tm)}, {vr(rest[0])}')
            e(f'v_cmp_eq_u32 vcc, -1, {vr(tm)}')
    def poll(load, regs, backoff=2, preloaded=False):
        lp = g.lab('poll'); ok = g.lab('ok')
        if preloaded:
            sentinel(regs)
            e(f's_cbranch_vccnz {lp}\n{ok}:')
            g.tail.append((lp, ok, load, regs if isinstance(regs, tuple) else list(regs), backoff))
        else:
            e(load); e('s_waitcnt vmcnt(0)')
            sentinel(regs)
            e(f's_cbranch_vccnz {lp}\n{ok}:')
            g.tail.append((lp, ok, load, regs if isinstance(regs, tuple) else list(regs), backoff))
    g.tail = []
    def emit_tail():
        for lp, ok, load, regs, backoff in g.tail:
            l2 = lp + '_r'
            e(f'{lp}:\ns_mov_b32 {sr(sCnt)}, 0\n{l2}:\ns_sleep {backoff}')
            e(load)
            e(f'''s_add_u32 {sr(sCnt)}, {sr(sCnt)}, 1
            s_cmp_gt_u32 {sr(sCnt)}, {LIMIT}
            s_cbranch_scc1 L_done
            s_waitcnt vmcnt(0)''')
            sentinel(regs)
            e(f's_cbranch_vccnz {l2}\ns_branch {ok}')
    def srd(dst, ptr, size):
        e(f'''s_mov_b32 {sr(dst)}, {sr(ptr)}
        s_mov_b32 {sr(dst+1)}, {sr(ptr+1)}
        s_mov_b32 {sr(dst+2)}, {size}
        s_mov_b32 {sr(dst+3)}, 0x00020000''')
    def ws_store(n, data, areg, region, extra=''):
        op = {1: 'buffer_store_dword', 2: 'buffer_store_dwordx2', 4: 'buffer_store_dwordx4'}[n]
        e(f's_mov_b32 {sr(sOff)}, {region}\n{op} {vr(data,n)}, {vr(areg)}, {sr(sWS,4)}, {sr(sOff)} offen sc1 {extra}')
    def ws_load_text(n, data, areg, soff, extra=''):
        op = {1: 'buffer_load_dword', 2: 'buffer_load_dwordx2', 4: 'buffer_load_dwordx4'}[n]
        return f'{op} {vr(data,n)}, {vr(areg)}, {sr(sWS,4)}, {soff} offen {extra} sc1'
    PZ = t(40)
    def poison_regs():
        for k in range(4): e(f'v_mov_b32 {vr(PZ+k)}, -1')

    e(f's_cmp_ge_u32 s2, 256\ns_cbranch_scc1 L_done')
    if stamps: e(f's_memrealtime {sr(sM2,2)}')
    e(f'''s_load_dwordx16 {sr(sKA,16)}, s[0:1], 0
    s_load_dwordx8 {sr(sKB,8)}, s[0:1], 64
    s_load_dwordx2 {sr(sKC,2)}, s[0:1], 96''')
    e(f'''s_getpc_b64 {sr(sPC,2)}
    L_pc:
    v_lshlrev_b32 {vr(t(0))}, 7, v0
    v_min_u32 {vr(t(0))}, L_code_end-L_pc-4, {vr(t(0))}
    global_load_dword {vr(vSig)}, {vr(t(0))}, {sr(sPC,2)}
    s_add_u32 {sr(sPC)}, {sr(sPC)}, L_tab-L_pc
    s_addc_u32 {sr(sPC+1)}, {sr(sPC+1)}, 0''')
    e(f'''s_mov_b32 {sr(sWg)}, s2
    s_and_b32 {sr(sT)}, s2, 7
    s_lshl_b32 {sr(sT)}, {sr(sT)}, 5
    s_lshr_b32 {sr(sRho)}, s2, 3
    s_or_b32 {sr(sRho)}, {sr(sRho)}, {sr(sT)}
    v_lshrrev_b32 {vr(t(1))}, 6, v0
    v_and_b32 {vr(vL)}, 63, v0
    v_readfirstlane_b32 {sr(sW)}, {vr(t(1))}
    v_lshlrev_b32 {vr(t(2))}, 4, {vr(vL)}
    v_sub_u32 {vr(t(3))}, 1008, {vr(t(2))}
    s_lshl_b32 {sr(sT)}, {sr(sRho)}, 2
    s_add_u32 {sr(sRowU)}, {sr(sT)}, {sr(sW)}
    s_sub_u32 {sr(sRowV)}, 2048, {sr(sRowU)}
    s_cmp_eq_u32 {sr(sRowU)}, 0
    s_cselect_b32 {sr(sRowV)}, 1024, {sr(sRowV)}
    s_lshl_b32 {sr(sT)}, {sr(sRowU)}, 10
    s_lshl_b32 {sr(sT2)}, {sr(sRowV)}, 10
    v_add_u32 {vr(aU)}, {sr(sT)}, {vr(t(2))}
    v_add_u32 {vr(aV)}, {sr(sT2)}, {vr(t(3))}
    v_lshlrev_b32 {vr(lG)}, 4, v0
    s_waitcnt lgkmcnt(0)''')
    kx, kwr, kwg = sKA + 0, sKA + 12, sKA + 14
    kwu, kwd, kout, kdbg = sKB + 0, sKB + 2, sKB + 4, sKB + 6
    URAW, VRAW = t(8), t(12)
    WURAW, WVRAW = FX, FX + 4
    srd(sXS, kx, 2097152)
    e(f'''buffer_load_dwordx4 {vr(URAW,4)}, {vr(aU)}, {sr(sXS,4)}, 0 offen
    buffer_load_dwordx4 {vr(VRAW,4)}, {vr(aV)}, {sr(sXS,4)}, 0 offen''')
    srd(sWS, sKC, WS_SIZE)
    e(f'v_mov_b32 {vr(vCa)}, {NONCE}\nbuffer_load_dword {vr(vCa)}, {vr(vCa)}, {sr(sWS,4)}, 0 offen')
    nvm = [1]
    def tab_loads(dst, n, areg, off, stride):
        k = 0
        while k < n:
            base = off + k*stride
            per = {1024: 4, 4096: 1}[stride]
            e(f'v_add_u32 {vr(t(4))}, {base}, {vr(areg)}')
            for kk in range(min(per, n-k)):
                e(f'global_load_dwordx4 {vr(dst+4*(k+kk),4)}, {vr(t(4))}, {sr(sPC,2)} offset:{kk*stride}')
                nvm[0] += 1
            k += per
    tab_loads(AD, 4, lG, TOFF['addr'], 4096)
    tab_loads(RB1, 9, t(2), TOFF['row'], 1024)
    N_ROWTAB = nvm[0]
    if stamps:
        e(f'v_mov_b32 {vr(vStamp)}, 0\nv_writelane_b32 {vr(vStamp)}, {sr(sM2)}, 0'); g.nstamp = 1; g.names.append('start')
    poison_regs()
    e(f'''s_lshl_b32 {sr(sT)}, {sr(sRho)}, 12
    v_add_u32 {vr(aP16)}, {sr(sT)}, {vr(lG)}''')
    ws_store(4, PZ, aP16, YB0)
    e(f'''v_mov_b32 {vr(t(5))}, 0x7f000000
    v_cmp_gt_u32 vcc, 64, v0
    s_cmp_eq_u32 {sr(sRho)}, 0
    s_cselect_b64 {sr(sEx,2)}, vcc, 0
    v_cndmask_b32 {vr(t(5))}, {vr(t(5))}, {vr(lG)}, {sr(sEx,2)}''')
    ws_store(4, PZ, t(5), KB0)
    ws_store(4, PZ, t(5), KB1)
    nvm[0] += 3
    N_POISON = nvm[0]
    srd(sT4, kwr, 1024)
    e(f'''buffer_load_dwordx4 {vr(WURAW,4)}, {vr(t(2))}, {sr(sT4,4)}, 0 offen
    buffer_load_dwordx4 {vr(WVRAW,4)}, {vr(t(3))}, {sr(sT4,4)}, 0 offen''')
    nvm[0] += 2
    e(f's_sub_u32 {sr(sPhi)}, {sr(sRho)}, 1')
    def weight_loads():
        e(f's_min_u32 {sr(sT)}, {sr(sPhi)}, {NF-1}')
        srd(sT4, kwg, 1409024)
        e(f'''s_lshl_b32 {sr(sT2)}, {sr(sT)}, 4
        s_movk_i32 {sr(sT3)}, 2752
        v_mul_lo_u32 {vr(t(44))}, v0, {sr(sT3)}
        v_add_u32 {vr(t(44))}, {sr(sT2)}, {vr(t(44))}
        s_mov_b32 {sr(sT3)}, {256*2752}
        buffer_load_dwordx4 {vr(FA,4)}, {vr(t(44))}, {sr(sT4,4)}, 0 offen
        buffer_load_dwordx4 {vr(FA+4,4)}, {vr(t(44))}, {sr(sT4,4)}, {sr(sT3)} offen''')
        srd(sT4, kwu, 1409024)
        e(f'''buffer_load_dwordx4 {vr(FA+8,4)}, {vr(t(44))}, {sr(sT4,4)}, 0 offen
        buffer_load_dwordx4 {vr(FA+12,4)}, {vr(t(44))}, {sr(sT4,4)}, {sr(sT3)} offen''')
        srd(sT4, kwd, 1409024)
        e(f'''s_lshl_b32 {sr(sT2)}, {sr(sT)}, 13
        v_add_u32 {vr(t(45))}, {sr(sT2)}, {vr(lG)}
        s_movk_i32 {sr(sT3)}, 4096
        buffer_load_dwordx4 {vr(FD,4)}, {vr(t(45))}, {sr(sT4,4)}, 0 offen
        buffer_load_dwordx4 {vr(FD+4,4)}, {vr(t(45))}, {sr(sT4,4)}, {sr(sT3)} offen''')
    WPOS = opt.get('wpos', 'hop2')
    if WPOS == 'start':
        weight_loads(); nvm[0] += 6
    N_ALL = nvm[0]
    srd(sOUT, kout, 2097152)
    e(f'''s_mov_b32 {sr(s16)}, {fbits(16.0)}
    v_and_b32 {vr(vN)}, 15, {vr(vL)}
    v_lshrrev_b32 {vr(vQ)}, 4, {vr(vL)}''')

    a0, a1, a2, a3 = t(20), t(21), t(22), t(23)
    def addr_misc():
        e(f'''s_lshl_b32 {sr(sT)}, {sr(sRho)}, 4
        v_lshlrev_b32 {vr(aHdr)}, 12, v0
        v_add_u32 {vr(aS16)}, {sr(sT)}, {vr(aHdr)}
        v_mov_b32 {vr(a0)}, {sr(sRowU)}
        v_mov_b32 {vr(a1)}, {sr(sRowV)}
        v_cmp_gt_u32 vcc, 32, {vr(vL)}
        s_lshl_b32 {sr(sT)}, {sr(sPhi)}, 11
        s_cmp_lt_u32 {sr(sPhi)}, {NF}
        s_cselect_b32 {sr(sT)}, {sr(sT)}, 0x7f000000
        v_cndmask_b32 {vr(vRowH)}, {vr(a1)}, {vr(a0)}, vcc
        v_lshlrev_b32 {vr(aP8)}, 3, v0
        v_add_u32 {vr(aP8)}, {sr(sT)}, {vr(aP8)}
        v_mov_b32 {vr(a0)}, 0
        v_lshlrev_b32 {vr(a1)}, 10, {vr(vL)}
        s_mov_b64 exec, 31
        ds_write_b16 {vr(a1)}, {vr(a0)} offset:{YIMG}
        s_mov_b64 exec, -1''')
    def addr_ym4():
        e(f'''s_cmp_eq_u32 {sr(sRho)}, 0
        s_cselect_b32 {sr(sT)}, 4096, 0
        v_add_u32 {vr(lYm4)}, {sr(sT)}, {vr(lYm)}''')

    b0, b1, b2 = t(24), t(25), t(26)
    vTau, vTlo = t(28), t(29)
    def tau_tlo():
        e(f'''s_lshl_b32 {sr(sT)}, {sr(sW)}, 3
        v_and_b32 {vr(vTau)}, 7, {vr(vN)}
        v_add_u32 {vr(vTau)}, {sr(sT)}, {vr(vTau)}
        v_sub_u32 {vr(a0)}, 64, {vr(vTau)}
        v_mov_b32 {vr(a1)}, 32
        v_cmp_eq_u32 {sr(sTm,2)}, 0, {vr(vTau)}
        v_cndmask_b32 {vr(a0)}, {vr(a0)}, {vr(a1)}, {sr(sTm,2)}
        v_cmp_le_u32 vcc, 8, {vr(vN)}
        v_cndmask_b32 {vr(vTlo)}, {vr(vTau)}, {vr(a0)}, vcc
        s_andn2_b64 {sr(sEx,2)}, vcc, {sr(sTm,2)}''')
    c0, c1 = t(30), t(31)
    def cos_seq(dst, base, step, n, amp=None):
        for j in range(0, n, 2):
            e(f'v_cos_f32 {vr(c0)}, {vr(base)}\nv_add_f32 {vr(base)}, {vr(base)}, {vr(step)}')
            e(f'v_cos_f32 {vr(c1)}, {vr(base)}')
            if j + 2 < n: e(f'v_add_f32 {vr(base)}, {vr(base)}, {vr(step)}')
            if amp is not None:
                e(f'v_mul_f32 {vr(c0)}, {amp}, {vr(c0)}\nv_mul_f32 {vr(c1)}, {amp}, {vr(c1)}')
            e(f'v_cvt_pk_f16_f32 {vr(dst + j//2)}, {vr(c0)}, {vr(c1)}')
    fQ, fN, fs, fb, fa, fb2 = t(32), t(33), t(34), t(35), t(36), t(37)
    def col_consts():
        tau_tlo()
        e(f'''v_cvt_f32_u32 {vr(fQ)}, {vr(vQ)}
        v_cmp_le_u32 vcc, 8, {vr(vN)}
        s_and_b64 vcc, vcc, {sr(sTm,2)}
        v_mov_b32 {vr(a1)}, 32
        v_cndmask_b32 {vr(a0)}, {vr(vTau)}, {vr(a1)}, vcc
        v_cvt_f32_u32 {vr(fs)}, {vr(a0)}
        v_mul_f32 {vr(fs)}, {fbits(1/64)}, {vr(fs)}
        v_mov_b32 {vr(fa)}, {fbits(0.25)}
        v_cndmask_b32 {vr(fa)}, 0, {vr(fa)}, {sr(sEx,2)}
        v_mul_f32 {vr(fb)}, {fbits(8.0)}, {vr(fQ)}
        v_fma_f32 {vr(fb)}, {vr(fb)}, {vr(fs)}, {vr(fa)}''')
        cos_seq(CB1, fb, fs, 8)
        e(f'''v_and_b32 {vr(a0)}, 1, {vr(a0)}
        v_mul_u32_u24 {vr(a0)}, 0x8000, {vr(a0)}
        v_lshl_or_b32 {vr(a0)}, {vr(a0)}, 16, {vr(a0)}''')
        for k in range(4): e(f'v_xor_b32 {vr(CB1+4+k)}, {vr(a0)}, {vr(CB1+k)}')
        e(f'''v_cvt_f32_u32 {vr(fs)}, {vr(vTlo)}
        v_mul_f32 {vr(fs)}, {fbits(1/2048)}, {vr(fs)}
        v_mul_f32 {vr(fb)}, {vr(fQ)}, {vr(fs)}
        v_fma_f32 {vr(fb)}, {vr(fb)}, 4.0, {vr(fa)}
        v_mov_b32 {vr(a1)}, {fbits(0.25)}
        v_cndmask_b32 {vr(a1)}, {vr(a1)}, 0, {sr(sTm,2)}''')
        e(f'v_add_f32 {vr(fb2)}, {fbits(-0.25)}, {vr(fb)}')
        e(f'v_mul_f32 {vr(a2)}, {fbits(12.0)}, {vr(fs)}')
        for Tt in range(2):
            for i in range(4):
                k = CK + 16*Tt
                e(f'''v_cos_f32 {vr(c0)}, {vr(fb)}
                v_cos_f32 {vr(c1)}, {vr(fb2)}
                v_add_f32 {vr(fb)}, {vr(fb)}, {vr(fs)}
                v_add_f32 {vr(fb2)}, {vr(fb2)}, {vr(fs)}
                v_mul_f32 {vr(k+i)}, {fbits(0.25)}, {vr(c0)}
                v_mul_f32 {vr(k+4+i)}, {vr(a1)}, {vr(c1)}
                v_mul_f32 {vr(k+8+i)}, {fbits(-0.25)}, {vr(c1)}
                v_mul_f32 {vr(k+12+i)}, {vr(a1)}, {vr(c0)}''')
            if Tt == 0: e(f'v_add_f32 {vr(fb)}, {vr(fb)}, {vr(a2)}\nv_add_f32 {vr(fb2)}, {vr(fb2)}, {vr(a2)}')
        e(f'''v_cvt_f32_u32 {vr(fs)}, {vr(vN)}
        v_mul_f32 {vr(fs)}, {fbits(1/32)}, {vr(fs)}
        v_mul_f32 {vr(fb2)}, {vr(fQ)}, {vr(fs)}
        v_mul_f32 {vr(fb2)}, 4.0, {vr(fb2)}''')
        for part, ph in ((0, -0.125), (1, -0.375)):
            e(f'v_add_f32 {vr(fb)}, {fbits(ph)}, {vr(fb2)}')
            cos_seq(CA2 + 2*part, fb, fs, 4, amp=fbits(math.sqrt(2)/8))
        e(f'''v_and_b32 {vr(a0)}, 1, {vr(vN)}
        v_mul_u32_u24 {vr(a0)}, 0x8000, {vr(a0)}
        v_lshl_or_b32 {vr(a0)}, {vr(a0)}, 16, {vr(a0)}''')
        for k in range(4):
            e(f'v_xor_b32 {vr(CA2+4+k)}, {vr(a0)}, {vr(CA2+k)}')
        for k in range(8):
            e(f'v_xor_b32 {vr(CA2+8+k)}, 0x80000000, {vr(CA2+k)}')

    def unpack_nat(dst, src):
        for k in range(4):
            e(f'v_lshlrev_b32 {vr(dst+2*k)}, 16, {vr(src+k)}\nv_and_b32 {vr(dst+2*k+1)}, 0xffff0000, {vr(src+k)}')
    def unpack_rev(dst, src, tmp):
        e(f'''v_lshlrev_b32 {vr(tmp)}, 16, {vr(src)}
        v_and_b32 {vr(dst+7)}, 0xffff0000, {vr(src)}
        v_lshlrev_b32 {vr(dst+6)}, 16, {vr(src+1)}
        v_and_b32 {vr(dst+5)}, 0xffff0000, {vr(src+1)}
        v_mov_b32_dpp {vr(dst)}, {vr(tmp)} wave_ror:1 {DPP}
        v_lshlrev_b32 {vr(dst+4)}, 16, {vr(src+2)}
        v_and_b32 {vr(dst+3)}, 0xffff0000, {vr(src+2)}
        v_lshlrev_b32 {vr(dst+2)}, 16, {vr(src+3)}
        v_and_b32 {vr(dst+1)}, 0xffff0000, {vr(src+3)}''')
    def half_reduce(regs, tmps, op='v_add_f32'):
        for sh in (8, 4, 2, 1):
            for r in regs: e(f'{op}_dpp {vr(r)}, {vr(r)}, {vr(r)} row_ror:{sh} {DPP}')
        for r, tm in zip(regs, tmps): e(f'v_mov_b32 {vr(tm)}, {vr(r)}')
        for r, tm in zip(regs, tmps): e(f'v_permlane16_swap_b32 {vr(r)}, {vr(tm)}')
        for r, tm in zip(regs, tmps): e(f'{op} {vr(r)}, {vr(r)}, {vr(tm)}')
    def wave_reduce(regs, tmps, op='v_add_f32'):
        half_reduce(regs, tmps, op)
        for r, tm in zip(regs, tmps): e(f'v_mov_b32 {vr(tm)}, {vr(r)}')
        for r, tm in zip(regs, tmps): e(f'v_permlane32_swap_b32 {vr(r)}, {vr(tm)}')
        for r, tm in zip(regs, tmps): e(f'{op} {vr(r)}, {vr(r)}, {vr(tm)}')
    hM, hVar, hRho, hB, hR = t(40), t(41), t(42), t(43), t(44)
    def partial(Dd, src, sC, w, o1, o2, o3, P):
        e(f'v_readfirstlane_b32 {sr(sC)}, {vr(src)}')
        for k in range(4):
            e(f'v_pk_add_f32 {vr(Dd+2*k,2)}, {vr(src+2*k,2)}, {sr(sC,2)} op_sel_hi:[1,0] neg_lo:[0,1] neg_hi:[0,1]')
        e(f'''v_pk_add_f32 {vr(P,2)}, {vr(Dd,2)}, {vr(Dd+2,2)}
        v_pk_mul_f32 {vr(P+2,2)}, {vr(Dd,2)}, {vr(Dd,2)}
        v_pk_add_f32 {vr(P+4,2)}, {vr(Dd+4,2)}, {vr(Dd+6,2)}''')
        if w is not None: e(f'v_pk_mul_f32 {vr(P+6,2)}, {vr(Dd,2)}, {vr(w,2)}')
        for k in range(1, 4):
            e(f'v_pk_fma_f32 {vr(P+2,2)}, {vr(Dd+2*k,2)}, {vr(Dd+2*k,2)}, {vr(P+2,2)}')
            if w is not None: e(f'v_pk_fma_f32 {vr(P+6,2)}, {vr(Dd+2*k,2)}, {vr(w+2*k,2)}, {vr(P+6,2)}')
            if k == 1: e(f'v_pk_add_f32 {vr(P,2)}, {vr(P,2)}, {vr(P+4,2)}')
        e(f'v_add_f32 {vr(o1)}, {vr(P)}, {vr(P+1)}\nv_add_f32 {vr(o2)}, {vr(P+2)}, {vr(P+3)}')
        if w is not None: e(f'v_add_f32 {vr(o3)}, {vr(P+6)}, {vr(P+7)}')
    def moments(S1, S2):
        e(f'''v_mul_f32 {vr(hM)}, {fbits(1/512)}, {vr(S1)}
        v_mul_f32 {vr(S2)}, {fbits(1/512)}, {vr(S2)}
        v_fma_f32 {vr(hVar)}, -{vr(hM)}, {vr(hM)}, {vr(S2)}
        v_max_f32 {vr(hVar)}, 0, {vr(hVar)}
        v_add_f32 {vr(S2)}, {fbits(1e-5)}, {vr(hVar)}
        v_rsq_f32 {vr(hRho)}, {vr(S2)}''')
    def stats2(with_r):
        a1_, a2_, a3_, b1_, b2_, b3_ = t(16), t(17), t(18), t(19), t(20), t(21)
        partial(DU, XU, sCu, WU if with_r else None, a1_, a2_, a3_, t(24))
        partial(DV, XV, sCv, WV if with_r else None, b1_, b2_, b3_, t(32))
        pairs = [(a1_, b1_), (a2_, b2_)] + ([(a3_, b3_)] if with_r else [])
        for x, y in pairs: e(f'v_permlane32_swap_b32 {vr(x)}, {vr(y)}')
        for x, y in pairs: e(f'v_add_f32 {vr(x)}, {vr(x)}, {vr(y)}')
        half_reduce([x for x, _ in pairs], [y for _, y in pairs])
        moments(a1_, a2_)
        if with_r: e(f'v_fma_f32 {vr(a3_)}, -{vr(hM)}, {sr(sSW)}, {vr(a3_)}')
        e(f'v_mul_f32 {vr(hB)}, -{vr(hM)}, {vr(hRho)}')
        if with_r: e(f'v_mul_f32 {vr(hR)}, {vr(hRho)}, {vr(a3_)}')
    def stats1(src, Dd, dst):
        partial(Dd, src, sCu, None, t(16), t(17), None, t(24))
        wave_reduce([t(16), t(17)], [t(18), t(19)])
        moments(t(16), t(17))
        e(f'''v_readfirstlane_b32 {sr(sKu)}, {vr(hRho)}
        v_mul_f32 {vr(hB)}, -{vr(hM)}, {vr(hRho)}
        v_readfirstlane_b32 {sr(sKu+1)}, {vr(hB)}''')
        for k in range(4): e(f'v_pk_fma_f32 {vr(dst+2*k,2)}, {vr(Dd+2*k,2)}, {sr(sKu,2)}, {sr(sKu,2)} {PKB}')
    def residual_coeffs():
        e(f'''v_mov_b32 {vr(t(22))}, {sr(sCu)}
        v_mov_b32 {vr(t(23))}, {sr(sCv)}
        v_cmp_gt_u32 vcc, 32, {vr(vL)}
        v_add_f32 {vr(t(21))}, 1.0, {vr(hRho)}
        v_cndmask_b32 {vr(t(22))}, {vr(t(23))}, {vr(t(22))}, vcc
        v_add_f32 {vr(t(22))}, {vr(t(22))}, {vr(hB)}
        v_readlane_b32 {sr(sAu)}, {vr(t(21))}, 0
        v_readlane_b32 {sr(sAv)}, {vr(t(21))}, 32
        v_readlane_b32 {sr(sAu+1)}, {vr(t(22))}, 0
        v_readlane_b32 {sr(sAv+1)}, {vr(t(22))}, 32''')
    def residual_update(dU, dV):
        for k in range(4): e(f'v_pk_fma_f32 {vr(dU+2*k,2)}, {vr(DU+2*k,2)}, {sr(sAu,2)}, {sr(sAu,2)} {PKB}')
        for k in range(4): e(f'v_pk_fma_f32 {vr(dV+2*k,2)}, {vr(DV+2*k,2)}, {sr(sAv,2)}, {sr(sAv,2)} {PKB}')
    def norm_coeffs(scale, bias):
        e(f'''v_readlane_b32 {sr(sKu)}, {vr(scale)}, 0
        v_readlane_b32 {sr(sKu+1)}, {vr(bias)}, 0
        v_readlane_b32 {sr(sKv)}, {vr(scale)}, 32
        v_readlane_b32 {sr(sKv+1)}, {vr(bias)}, 32''')
    GG = t(16)
    def make_g():
        for k in range(4): e(f'v_pk_fma_f32 {vr(GG+2*k,2)}, {vr(DU+2*k,2)}, {sr(sKu,2)}, {sr(sKu,2)} {PKB}')
        for k in range(4): e(f'v_pk_fma_f32 {vr(GG+2*k,2)}, {vr(DV+2*k,2)}, {sr(sKv,2)}, {vr(GG+2*k,2)} op_sel_hi:[1,0,1]')
    def write_n(src, tmp):
        for k in range(4): e(f'v_cvt_pk_f16_f32 {vr(tmp+k)}, {vr(src+2*k)}, {vr(src+2*k+1)}')
        e(f'ds_write_b128 {vr(lRow)}, {vr(tmp,4)} offset:{GIMG}')
    def write_r(src, tmp):
        e(f'''v_mov_b32_dpp {vr(tmp+4)}, {vr(src)} wave_rol:1 {DPP}
        v_cvt_pk_f16_f32 {vr(tmp+1)}, {vr(src+6)}, {vr(src+5)}
        v_cvt_pk_f16_f32 {vr(tmp+2)}, {vr(src+4)}, {vr(src+3)}
        v_cvt_pk_f16_f32 {vr(tmp+3)}, {vr(src+2)}, {vr(src+1)}
        v_cvt_pk_f16_f32 {vr(tmp)}, {vr(tmp+4)}, {vr(src+7)}
        ds_write_b128 {vr(lRw)}, {vr(tmp,4)}''')
    def core(A, O):
        Dr = [t(0), t(8)]; Di = [t(4), t(12)]
        for Tt in range(2):
            e(f'v_mfma_f32_16x16x32_f16 {vr(Dr[Tt],4)}, {vr(A,4)}, {vr(RB1+(2*Tt)*4,4)}, 0')
            e(f'v_mfma_f32_16x16x32_f16 {vr(Di[Tt],4)}, {vr(A,4)}, {vr(RB1+(2*Tt+1)*4,4)}, 0')
        Bo = [t(16), t(20)]; br, bi = t(24), t(28)
        for Tt in range(2):
            for h in range(2):
                c = vr(RC+4*Tt+2*h, 2); s_ = vr(RS+4*Tt+2*h, 2)
                dr = vr(Dr[Tt]+2*h, 2); di = vr(Di[Tt]+2*h, 2)
                e(f'''v_pk_mul_f32 {vr(br+2*h,2)}, {dr}, {c}
                v_pk_mul_f32 {vr(bi+2*h,2)}, {di}, {c}
                v_pk_fma_f32 {vr(br+2*h,2)}, {di}, {s_}, {vr(br+2*h,2)}
                v_pk_fma_f32 {vr(bi+2*h,2)}, {dr}, {s_}, {vr(bi+2*h,2)} neg_lo:[1,0,0] neg_hi:[1,0,0]''')
            e(f'''v_cvt_pk_f16_f32 {vr(Bo[Tt])}, {vr(br)}, {vr(br+1)}
            v_cvt_pk_f16_f32 {vr(Bo[Tt]+1)}, {vr(br+2)}, {vr(br+3)}
            v_cvt_pk_f16_f32 {vr(Bo[Tt]+2)}, {vr(bi)}, {vr(bi+1)}
            v_cvt_pk_f16_f32 {vr(Bo[Tt]+3)}, {vr(bi+2)}, {vr(bi+3)}''')
            e(f'v_mfma_f32_16x16x32_f16 {vr(O+4*Tt,4)}, {vr(RA2,4)}, {vr(Bo[Tt],4)}, 0')

    CA, CO = t(32), t(36)
    def transform(dst_off, tagged=False, pre_core=None, post_scatter=None, pre_store=None):
        write_n(GG, t(24))
        e(f"""s_waitcnt lgkmcnt(0)
        ds_read_b64_tr_b16 {vr(CA,2)}, {vr(lTr)} offset:{GIMG}
        ds_read_b64_tr_b16 {vr(CA+2,2)}, {vr(lTr)} offset:{GIMG+128}""")
        if pre_core: pre_core()
        e('s_waitcnt lgkmcnt(0)')
        core(CA, CO)
        for k in range(4): e(f'v_cvt_pk_f16_f32 {vr(t(44)+k)}, {vr(CO+2*k)}, {vr(CO+2*k+1)}')
        for Tt in range(2):
            for i in range(4):
                op = 'ds_write_b16' if i % 2 == 0 else 'ds_write_b16_d16_hi'
                e(f'{op} {vr(lH+Tt)}, {vr(t(44) + 2*Tt + i//2)} offset:{512*i}')
        e(f'ds_write_b16_d16_hi {vr(lHf)}, {vr(t(45))}\nds_write_b16_d16_hi {vr(lHf+1)}, {vr(t(45))}')
        if post_scatter: post_scatter()
        if tagged:
            e(f"""v_lshlrev_b32 {vr(t(8))}, 3, v0
            s_lshl_b32 {sr(sT)}, {sr(sRho)}, 13
            v_add_u32 {vr(t(9))}, {sr(sT)}, {vr(lG)}""")
            for k in (1, 3, 5, 7): e(f'v_mov_b32 {vr(t(k))}, {sr(sTag)}')
            if pre_store: pre_store()
            e(f"""s_waitcnt lgkmcnt(0)
            s_barrier
            ds_read_b32 {vr(t(0))}, {vr(t(8))} offset:{HIMG}
            ds_read_b32 {vr(t(2))}, {vr(t(8))} offset:{HIMG+4}
            ds_read_b32 {vr(t(4))}, {vr(t(8))} offset:{HIMG+2048}
            ds_read_b32 {vr(t(6))}, {vr(t(8))} offset:{HIMG+2052}
            s_mov_b32 {sr(sOff)}, {dst_off}
            s_mov_b32 {sr(sT)}, {dst_off+4096}
            s_waitcnt lgkmcnt(2)
            buffer_store_dwordx4 {vr(t(0),4)}, {vr(t(9))}, {sr(sWS,4)}, {sr(sOff)} offen sc1
            s_waitcnt lgkmcnt(0)
            buffer_store_dwordx4 {vr(t(4),4)}, {vr(t(9))}, {sr(sWS,4)}, {sr(sT)} offen sc1""")
        else:
            if pre_store: pre_store()
            e(f"""s_waitcnt lgkmcnt(0)
            s_barrier
            ds_read_b128 {vr(t(0),4)}, {vr(lG)} offset:{HIMG}
            s_mov_b32 {sr(sOff)}, {dst_off}
            s_waitcnt lgkmcnt(0)
            buffer_store_dwordx4 {vr(t(0),4)}, {vr(aP16)}, {sr(sWS,4)}, {sr(sOff)} offen sc1""")

    def affine_from_x(sx1x0_u, sx1x0_v, sKu_, sKv_, outU, outV):
        for (xx, cc, kk, oo) in ((sx1x0_u, sCu, sKu_, outU), (sx1x0_v, sCv, sKv_, outV)):
            if xx is None:
                e(f"""v_mov_b32 {vr(t(44))}, {sr(kk)}
                v_mov_b32 {vr(t(45))}, {sr(kk+1)}
                v_fma_f32 {vr(t(45))}, -{vr(t(44))}, {sr(cc)}, {vr(t(45))}""")
            else:
                e(f"""v_rcp_f32 {vr(t(44))}, {sr(xx)}
                v_mov_b32 {vr(t(45))}, {sr(kk+1)}
                v_mul_f32 {vr(t(44))}, {sr(kk)}, {vr(t(44))}
                v_fma_f32 {vr(t(45))}, -{vr(t(44))}, {sr(xx+1)}, {vr(t(45))}""")
            e(f'v_readfirstlane_b32 {sr(oo)}, {vr(t(44))}\nv_readfirstlane_b32 {sr(oo+1)}, {vr(t(45))}')

    def special_k(dst_off, after_residual):
        ln = g.lab('nok')
        e(f's_cmp_lg_u32 {sr(sRowU)}, 0\ns_cbranch_scc1 {ln}')
        affine_from_x(sAu if after_residual else None, sAv if after_residual else None, sKu, sKv, sH, sH+2)
        ZU, ZV = t(0), t(8)
        for k in range(4): e(f'v_pk_fma_f32 {vr(ZU+2*k,2)}, {vr(XU+2*k,2)}, {sr(sH,2)}, {sr(sH,2)} {PKB}')
        for k in range(4): e(f'v_pk_fma_f32 {vr(ZV+2*k,2)}, {vr(XV+2*k,2)}, {sr(sH+2,2)}, {sr(sH+2,2)} {PKB}')
        write_r(ZU, t(16)); write_n(ZV, t(24))
        A, B = CA, t(40)
        e(f"""s_waitcnt lgkmcnt(0)
        ds_read_b64_tr_b16 {vr(A,2)}, {vr(lTr)} offset:{RIMG}
        ds_read_b64_tr_b16 {vr(B,2)}, {vr(lTr)} offset:{GIMG}
        ds_read_b64_tr_b16 {vr(A+2,2)}, {vr(lTr)} offset:{RIMG+128}
        ds_read_b64_tr_b16 {vr(B+2,2)}, {vr(lTr)} offset:{GIMG+128}
        s_waitcnt lgkmcnt(0)""")
        for k in range(4): e(f'v_pk_add_f16 {vr(A+k)}, {vr(A+k)}, {vr(B+k)} neg_lo:[0,1] neg_hi:[0,1]')
        core(A, CO)
        for k in range(4): e(f'v_pk_mul_f32 {vr(CO+2*k,2)}, {vr(CO+2*k,2)}, {sr(sT2 if False else sM2,2)} op_sel_hi:[1,0]' if False else f'v_mul_f32 {vr(CO+2*k)}, {fbits(1/16)}, {vr(CO+2*k)}\nv_mul_f32 {vr(CO+2*k+1)}, {fbits(1/16)}, {vr(CO+2*k+1)}')
        for k in range(4): e(f'v_cvt_pk_f16_f32 {vr(t(44)+k)}, {vr(CO+2*k)}, {vr(CO+2*k+1)}')
        e(f"""v_lshl_add_u32 {vr(t(0))}, {vr(vQ)}, 7, {vr(vN)}
        v_lshlrev_b32 {vr(t(0))}, 1, {vr(t(0))}
        v_sub_u32 {vr(t(1))}, {1024-32-192}, {vr(t(0))}
        v_mov_b32 {vr(t(2))}, 512
        s_mov_b32 exec_lo, -1
        s_mov_b32 exec_hi, 0""")
        for Tt in range(2):
            for i in range(4):
                op = 'ds_write_b16' if i % 2 == 0 else 'ds_write_b16_d16_hi'
                e(f'{op} {vr(t(0))}, {vr(t(44)+2*Tt+i//2)} offset:{KIMG + 32*Tt + 64*i}')
                e(f'{op} {vr(t(1))}, {vr(t(44)+2*Tt+i//2)} offset:{KIMG + 32*(1-Tt) + 64*(3-i)}')
        e(f"""s_mov_b32 exec_lo, 0
        s_mov_b32 exec_hi, 0x00010000
        ds_write_b16_d16_hi {vr(t(2))}, {vr(t(45))} offset:{KIMG}
        s_mov_b64 exec, -1
        v_lshlrev_b32 {vr(t(3))}, 4, {vr(vL)}
        s_waitcnt lgkmcnt(0)
        ds_read_b128 {vr(t(4),4)}, {vr(t(3))} offset:{KIMG}
        s_mov_b32 {sr(sOff)}, {dst_off}
        s_waitcnt lgkmcnt(0)
        buffer_store_dwordx4 {vr(t(4),4)}, {vr(t(3))}, {sr(sWS,4)}, {sr(sOff)} offen sc1
        {ln}:""")

    PC = t(40)
    def column_load(src_off):
        e(f's_mov_b32 {sr(sOff)}, {src_off}')
        e(ws_load_text(4, PC, aS16, sr(sOff)))
    def column(src_off, dst_off, preloaded, tagged=False):
        P = PC
        e(f's_mov_b32 {sr(sOff)}, {src_off}')
        if tagged:
            P = t(32); A2 = t(44)
            e(f'''v_lshrrev_b32 {vr(t(31))}, 1, v0
            v_lshlrev_b32 {vr(t(31))}, 13, {vr(t(31))}
            v_and_b32 {vr(t(30))}, 1, v0
            v_lshl_add_u32 {vr(t(31))}, {vr(t(30))}, 4, {vr(t(31))}
            s_lshl_b32 {sr(sT)}, {sr(sRho)}, 5
            v_add_u32 {vr(t(31))}, {sr(sT)}, {vr(t(31))}
            s_add_u32 {sr(sT3)}, {sr(sOff)}, {128*8192}''')
            poll(ws_load_text(4, P, t(31), sr(sOff)) + '\n' + ws_load_text(4, P+4, t(31), sr(sT3)), ('tag', P))
            stamp('col data')
            for k in range(2):
                e(f'''ds_write_b16 {vr(A2+2*k)}, {vr(P+4*k)}
                ds_write_b16_d16_hi {vr(A2+2*k+1)}, {vr(P+4*k)} offset:16
                ds_write_b16 {vr(A2+2*k+1)}, {vr(P+4*k+2)} offset:32
                ds_write_b16_d16_hi {vr(A2+2*k+1)}, {vr(P+4*k+2)} offset:48''')
            e('s_waitcnt lgkmcnt(0)\ns_barrier')
        else:
            poll(ws_load_text(4, P, aS16, sr(sOff)), range(P, P+4), preloaded=preloaded)
            d = [P, P+1, P+2, P+3]
            stamp('col data')
            e(f"""ds_write_b16 {vr(lCa)}, {vr(d[0])}
            ds_write_b16_d16_hi {vr(lCa)}, {vr(d[0])} offset:16
            ds_write_b16 {vr(lCa)}, {vr(d[1])} offset:32
            ds_write_b16_d16_hi {vr(lCa)}, {vr(d[1])} offset:48
            ds_write_b16 {vr(lCb)}, {vr(d[2])}
            ds_write_b16_d16_hi {vr(lCc)}, {vr(d[2])} offset:16
            ds_write_b16 {vr(lCc)}, {vr(d[3])} offset:32
            ds_write_b16_d16_hi {vr(lCc)}, {vr(d[3])} offset:48
            s_waitcnt lgkmcnt(0)
            s_barrier""")
        A = t(0)
        for k in range(4): e(f'ds_read_b128 {vr(A+4*k,4)}, {vr(lCr)} offset:{1024*k}')
        D1 = [t(16), t(20)]
        e(f"""s_waitcnt lgkmcnt(3)
        v_mfma_f32_16x16x32_f16 {vr(D1[0],4)}, {vr(A,4)}, {vr(CB1,4)}, 0
        s_waitcnt lgkmcnt(2)
        v_mfma_f32_16x16x32_f16 {vr(D1[0],4)}, {vr(A+4,4)}, {vr(CB1+4,4)}, {vr(D1[0],4)}
        s_waitcnt lgkmcnt(1)
        v_mfma_f32_16x16x32_f16 {vr(D1[1],4)}, {vr(A+8,4)}, {vr(CB1,4)}, 0
        s_waitcnt lgkmcnt(0)
        v_mfma_f32_16x16x32_f16 {vr(D1[1],4)}, {vr(A+12,4)}, {vr(CB1+4,4)}, {vr(D1[1],4)}""")
        Bb = t(24); br, bi = t(28), t(32); Bo = [t(0), t(4)]
        for Tt in range(2):
            k = CK + 16*Tt
            for i in range(4): e(f'v_mov_b32_dpp {vr(Bb+i)}, {vr(D1[Tt]+i)} row_ror:8 {DPP}')
            for h in range(2):
                e(f"""v_pk_mul_f32 {vr(br+2*h,2)}, {vr(D1[Tt]+2*h,2)}, {vr(k+2*h,2)}
                v_pk_mul_f32 {vr(bi+2*h,2)}, {vr(D1[Tt]+2*h,2)}, {vr(k+8+2*h,2)}""")
            for h in range(2):
                e(f"""v_pk_fma_f32 {vr(br+2*h,2)}, {vr(Bb+2*h,2)}, {vr(k+4+2*h,2)}, {vr(br+2*h,2)}
                v_pk_fma_f32 {vr(bi+2*h,2)}, {vr(Bb+2*h,2)}, {vr(k+12+2*h,2)}, {vr(bi+2*h,2)}""")
            e(f"""v_cvt_pk_f16_f32 {vr(Bo[Tt])}, {vr(br)}, {vr(br+1)}
            v_cvt_pk_f16_f32 {vr(Bo[Tt]+1)}, {vr(br+2)}, {vr(br+3)}
            v_cvt_pk_f16_f32 {vr(Bo[Tt]+2)}, {vr(bi)}, {vr(bi+1)}
            v_cvt_pk_f16_f32 {vr(Bo[Tt]+3)}, {vr(bi+2)}, {vr(bi+3)}""")
        O = [t(8), t(12)]
        e(f"""v_mfma_f32_16x16x32_f16 {vr(O[0],4)}, {vr(CA2,4)}, {vr(Bo[0],4)}, 0
        v_mfma_f32_16x16x32_f16 {vr(O[1],4)}, {vr(CA2+8,4)}, {vr(Bo[0],4)}, 0
        v_mfma_f32_16x16x32_f16 {vr(O[0],4)}, {vr(CA2+4,4)}, {vr(Bo[1],4)}, {vr(O[0],4)}
        v_mfma_f32_16x16x32_f16 {vr(O[1],4)}, {vr(CA2+12,4)}, {vr(Bo[1],4)}, {vr(O[1],4)}
        v_cvt_pk_f16_f32 {vr(t(16))}, {vr(O[0])}, {vr(O[0]+1)}
        v_cvt_pk_f16_f32 {vr(t(17))}, {vr(O[0]+2)}, {vr(O[0]+3)}
        ds_write_b16 {vr(lCo)}, {vr(t(16))}
        ds_write_b16_d16_hi {vr(lCo)}, {vr(t(16))} offset:256
        v_cvt_pk_f16_f32 {vr(t(18))}, {vr(O[1])}, {vr(O[1]+1)}
        v_cvt_pk_f16_f32 {vr(t(19))}, {vr(O[1]+2)}, {vr(O[1]+3)}
        ds_write_b16 {vr(lCo)}, {vr(t(17))} offset:512
        ds_write_b16_d16_hi {vr(lCo)}, {vr(t(17))} offset:768
        ds_write_b16 {vr(lCo+2)}, {vr(t(18))}
        ds_write_b16_d16_hi {vr(lCo+1)}, {vr(t(18))} offset:512
        ds_write_b16 {vr(lCo+1)}, {vr(t(19))} offset:256
        ds_write_b16_d16_hi {vr(lCo+1)}, {vr(t(19))}
        s_waitcnt lgkmcnt(0)
        s_barrier
        ds_read_b128 {vr(t(0),4)}, {vr(lG)} offset:{COUT}
        s_mov_b32 {sr(sOff)}, {dst_off}
        s_waitcnt lgkmcnt(0)
        buffer_store_dwordx4 {vr(t(0),4)}, {vr(aP16)}, {sr(sWS,4)}, {sr(sOff)} offen sc1""")

    YH, YV, KT = t(4), t(8), t(12)
    def row_input(src_off, kb, with_weights=False):
        P = t(0)
        lk = g.lab('nok')
        e(f's_bitcmp0_b32 {sr(sW)}, 0\ns_cbranch_scc1 {lk}')
        e(f'v_lshlrev_b32 {vr(t(16))}, 4, {vr(vL)}\ns_mov_b32 {sr(sT3)}, {kb}')
        e(ws_load_text(4, KT, t(16), sr(sT3)))
        e(f'{lk}:')
        e(f's_mov_b32 {sr(sOff)}, {src_off}')
        ld = ws_load_text(4, P, aS16, sr(sOff))
        if with_weights:
            lw = g.lab('now'); lw2 = g.lab('now2')
            e(ld)
            e(f's_cmp_ge_u32 {sr(sPhi)}, {NF}\ns_cbranch_scc1 {lw}')
            e(f's_mov_b32 {sr(sCnt)}, {sr(sT3)}')
            weight_loads()
            e(f's_mov_b32 {sr(sT3)}, {sr(sCnt)}\ns_mov_b32 {sr(sOff)}, {src_off}\ns_waitcnt vmcnt(6)\ns_branch {lw2}\n{lw}:\ns_waitcnt vmcnt(0)\n{lw2}:')
            poll(ld, range(P, P+4), preloaded=True)
        else:
            poll(ld, range(P, P+4))
        stamp('row data')
        def wr(slot, areg, off):
            op = 'ds_write_b16' if slot % 2 == 0 else 'ds_write_b16_d16_hi'
            e(f'{op} {vr(areg)}, {vr(P + slot//2)} offset:{YIMG + off}')
        for j in range(4): wr(j, lYd, j*1024)
        wr(4, lYm4, 0); wr(5, lYm, 3*1024); wr(6, lYm, 2*1024); wr(7, lYm, 1024)
        l0 = g.lab('not0')
        e(f's_cmp_lg_u32 {sr(sRho)}, 0\ns_cbranch_scc1 {l0}')
        wr(0, lYm, 0); wr(4, lYd, 4096)
        e(f"""{l0}:
        s_waitcnt lgkmcnt(0)
        s_barrier
        ds_read_b128 {vr(YH,4)}, {vr(lRow)} offset:{YIMG}""")
        lv = g.lab('yv')
        e(f"""s_cmp_lg_u32 {sr(sRowU)}, 0
        s_cbranch_scc1 {lv}
        ds_read_b128 {vr(YV,4)}, {vr(lRow)} offset:{YIMG+4096}
        {lv}:""")
        lk = g.lab('nok2')
        e(f's_bitcmp0_b32 {sr(sW)}, 0\ns_cbranch_scc1 {lk}')
        poll(ws_load_text(4, KT, t(16), sr(sT3)), range(KT, KT+4), preloaded=True)
        e('s_waitcnt lgkmcnt(0)')
        for k in range(4): e(f'v_pk_add_f16 {vr(YH+k)}, {vr(YH+k)}, {vr(KT+k)}')
        e(f'{lk}:\ns_waitcnt lgkmcnt(0)')
    def add_y(yu, yv):
        for k in range(4):
            e(f"""v_fma_mix_f32 {vr(XU+2*k)}, {vr(yu+k)}, {sr(s16)}, {vr(XU+2*k)} op_sel:[0,0,0] op_sel_hi:[1,0,0]
            v_fma_mix_f32 {vr(XU+2*k+1)}, {vr(yu+k)}, {sr(s16)}, {vr(XU+2*k+1)} op_sel:[1,0,0] op_sel_hi:[1,0,0]""")
        for k in range(4):
            e(f"""v_fma_mix_f32 {vr(XV+2*k)}, {vr(yv+k)}, {sr(s16)}, {vr(XV+2*k)} op_sel:[0,0,0] op_sel_hi:[1,0,0]
            v_fma_mix_f32 {vr(XV+2*k+1)}, {vr(yv+k)}, {sr(s16)}, {vr(XV+2*k+1)} op_sel:[1,0,0] op_sel_hi:[1,0,0]""")
    def add_y_pair():
        ls = g.lab('ysp'); lj = g.lab('yj')
        e(f's_cmp_eq_u32 {sr(sRowU)}, 0\ns_cbranch_scc1 {ls}')
        add_y(YH, YH)
        e(f'{lj}:')
        g.late.append((ls, lj))
    g.late = []

    def make_key():
        e(f"""v_ashrrev_i32 {vr(t(22))}, 31, {vr(hR)}
        v_or_b32 {vr(t(22))}, 0x80000000, {vr(t(22))}
        v_xor_b32 {vr(t(22))}, {vr(hR)}, {vr(t(22))}
        v_and_b32 {vr(t(22))}, 0xfffff800, {vr(t(22))}
        v_or_b32 {vr(t(22))}, {vr(vRowH)}, {vr(t(22))}
        v_readlane_b32 {sr(sKeyU)}, {vr(t(22))}, 0
        v_readlane_b32 {sr(sKeyV)}, {vr(t(22))}, 32
        s_lshl_b32 {sr(sT)}, {sr(sW)}, 2
        v_mov_b32 {vr(t(23))}, {sr(sT)}
        s_max_u32 {sr(sKey)}, {sr(sKeyU)}, {sr(sKeyV)}
        v_mov_b32 {vr(t(22))}, {sr(sKey)}
        ds_write_b32 {vr(t(23))}, {vr(t(22))} offset:{AM}""")
    def wg_best_read(tmp):
        e(f'v_mov_b32 {vr(tmp+4)}, 0\nds_read_b128 {vr(tmp,4)}, {vr(tmp+4)} offset:{AM}')
    def wg_best_header(cand, tmp):
        ln = g.lab('nohdr')
        e(f"""v_max3_u32 {vr(tmp)}, {vr(tmp)}, {vr(tmp+1)}, {vr(tmp+2)}
        v_max_u32 {vr(tmp)}, {vr(tmp)}, {vr(tmp+3)}
        v_readfirstlane_b32 {sr(sT)}, {vr(tmp)}
        s_cmp_eq_u32 {sr(sT)}, {sr(sKey)}
        s_cselect_b32 {sr(sSgn)}, 1, 0
        s_cbranch_scc0 {ln}
        s_lshl_b32 {sr(sT)}, {sr(sRho)}, 12
        s_add_u32 {sr(sOff)}, {sr(sT)}, {cand}
        v_mov_b32 {vr(tmp+1)}, {sr(sKey)}
        s_mov_b64 exec, 1
        buffer_store_dword {vr(tmp+1)}, {vr(tmp+4)}, {sr(sWS,4)}, {sr(sOff)} offen sc1
        s_mov_b64 exec, -1
        {ln}:""")
    def publish_rows(cand):
        ln = g.lab('nopub'); lv = g.lab('pubv'); lj = g.lab('pubj')
        e(f's_cmp_eq_u32 {sr(sSgn)}, 0\ns_cbranch_scc1 {ln}')
        e(f"""s_lshl_b32 {sr(sT)}, {sr(sRho)}, 12
        s_add_u32 {sr(sOff)}, {sr(sT)}, {cand}
        s_cmp_gt_u32 {sr(sKeyV)}, {sr(sKeyU)}
        s_cbranch_scc1 {lv}""")
        for (lab_, X_, A_, C_) in ((None, XU, sAu, sCu), (lv, XV, sAv, sCv)):
            if lab_: e(f'{lab_}:')
            e(f"""v_rcp_f32 {vr(t(0))}, {sr(A_)}
            v_mov_b32 {vr(t(1))}, {sr(A_+1)}
            v_mov_b32 {vr(t(2))}, {sr(A_)}
            v_add_f32 {vr(t(2))}, -1.0, {vr(t(2))}
            v_subrev_f32 {vr(t(3))}, {sr(C_)}, {vr(t(1))}
            v_mul_f32 {vr(t(4))}, {vr(t(2))}, {vr(t(0))}
            v_fma_f32 {vr(t(6))}, -{vr(t(4))}, {vr(t(1))}, {vr(t(3))}""")
            Z = t(8)
            for k in range(4): e(f'v_pk_fma_f32 {vr(Z+2*k,2)}, {vr(X_+2*k,2)}, {vr(t(4),2)}, {vr(t(6),2)} op_sel_hi:[1,0,0]')
            if X_ == XU:
                for k in range(4): e(f'v_cvt_pk_bf16_f32 {vr(t(16)+k)}, {vr(Z+2*k)}, {vr(Z+2*k+1)}')
                e(f"""v_lshlrev_b32 {vr(t(1))}, 4, {vr(vL)}
                v_lshlrev_b32 {vr(t(2))}, 5, {vr(vL)}
                buffer_store_dwordx4 {vr(t(16),4)}, {vr(t(1))}, {sr(sWS,4)}, {sr(sOff)} offen offset:128 sc1
                buffer_store_dwordx4 {vr(XU,4)}, {vr(t(2))}, {sr(sWS,4)}, {sr(sOff)} offen offset:1152 sc1
                buffer_store_dwordx4 {vr(XU+4,4)}, {vr(t(2))}, {sr(sWS,4)}, {sr(sOff)} offen offset:1168 sc1
                s_branch {lj}""")
            else:
                e(f"""v_mov_b32_dpp {vr(t(20))}, {vr(Z)} wave_rol:1 {DPP}
                v_mov_b32_dpp {vr(t(24))}, {vr(XV)} wave_rol:1 {DPP}
                v_cvt_pk_bf16_f32 {vr(t(17))}, {vr(Z+6)}, {vr(Z+5)}
                v_cvt_pk_bf16_f32 {vr(t(18))}, {vr(Z+4)}, {vr(Z+3)}
                v_cvt_pk_bf16_f32 {vr(t(19))}, {vr(Z+2)}, {vr(Z+1)}
                v_cvt_pk_bf16_f32 {vr(t(16))}, {vr(t(20))}, {vr(Z+7)}""")
                for k in range(1, 8): e(f'v_mov_b32 {vr(t(24)+k)}, {vr(XV+8-k)}')
                e(f"""v_lshlrev_b32 {vr(t(1))}, 4, {vr(vL)}
                v_sub_u32 {vr(t(1))}, 1008, {vr(t(1))}
                v_lshlrev_b32 {vr(t(2))}, 1, {vr(t(1))}
                buffer_store_dwordx4 {vr(t(16),4)}, {vr(t(1))}, {sr(sWS,4)}, {sr(sOff)} offen offset:128 sc1
                buffer_store_dwordx4 {vr(t(24),4)}, {vr(t(2))}, {sr(sWS,4)}, {sr(sOff)} offen offset:1152 sc1
                buffer_store_dwordx4 {vr(t(28),4)}, {vr(t(2))}, {sr(sWS,4)}, {sr(sOff)} offen offset:1168 sc1""")
        e(f'{lj}:\n{ln}:')

    def header_load(cand, K):
        e(f's_mov_b32 {sr(sOff)}, {cand}')
        e(ws_load_text(1, K, aHdr, sr(sOff)))
    def argmax(cand, K, after_check=None):
        e(f's_mov_b32 {sr(sOff)}, {cand}')
        poll(ws_load_text(1, K, aHdr, sr(sOff)), [K], preloaded=True, backoff=4)
        if after_check: after_check()
        wave_reduce([K], [t(1)], op='v_max_u32')
        e(f"""s_lshl_b32 {sr(sT)}, {sr(sW)}, 2
        v_mov_b32 {vr(t(1))}, {sr(sT)}
        ds_write_b32 {vr(t(1))}, {vr(K)} offset:{AM+32}
        v_mov_b32 {vr(t(1))}, 0
        s_waitcnt lgkmcnt(0)
        s_barrier
        ds_read_b128 {vr(t(4),4)}, {vr(t(1))} offset:{AM+32}
        s_waitcnt lgkmcnt(0)
        v_max3_u32 {vr(t(4))}, {vr(t(4))}, {vr(t(5))}, {vr(t(6))}
        v_max_u32 {vr(t(4))}, {vr(t(4))}, {vr(t(7))}
        v_readfirstlane_b32 {sr(sKey)}, {vr(t(4))}""")
        e(f"""s_and_b32 {sr(sStar)}, {sr(sKey)}, 2047
        s_lshr_b32 {sr(sT)}, {sr(sStar)}, 2
        s_sub_u32 {sr(sT2)}, 511, {sr(sT)}
        s_sub_u32 {sr(sT3)}, 512, {sr(sT)}
        s_and_b32 {sr(sT3)}, {sr(sT3)}, 255
        s_and_b32 {sr(sRec)}, {sr(sStar)}, 3
        s_cmp_eq_u32 {sr(sRec)}, 0
        s_cselect_b32 {sr(sT2)}, {sr(sT3)}, {sr(sT2)}
        s_cmp_lt_u32 {sr(sStar)}, 1024
        s_cselect_b32 {sr(sT2)}, {sr(sT)}, {sr(sT2)}
        s_lshl_b32 {sr(sRec)}, {sr(sT2)}, 12
        s_add_u32 {sr(sRec)}, {sr(sRec)}, {cand}""")
    def sigmoid_of_key():
        e(f"""s_and_b32 {sr(sT)}, {sr(sKey)}, 0xfffff800
        s_or_b32 {sr(sT)}, {sr(sT)}, 0x400
        s_ashr_i32 {sr(sT2)}, {sr(sT)}, 31
        s_not_b32 {sr(sT2)}, {sr(sT2)}
        s_or_b32 {sr(sT2)}, {sr(sT2)}, 0x80000000
        s_xor_b32 {sr(sT)}, {sr(sT)}, {sr(sT2)}
        v_mov_b32 {vr(vSig)}, {fbits(-1.4426950408889634)}
        v_mul_f32 {vr(vSig)}, {sr(sT)}, {vr(vSig)}
        v_exp_f32 {vr(vSig)}, {vr(vSig)}
        v_add_f32 {vr(vSig)}, 1.0, {vr(vSig)}
        v_rcp_f32 {vr(vSig)}, {vr(vSig)}""")

    def ffn_setup():
        e(f"""v_lshlrev_b32 {vr(t(0))}, 5, v0
        ds_write_b128 {vr(t(0))}, {vr(FA,4)} offset:{GU}
        ds_write_b128 {vr(t(0))}, {vr(FA+4,4)} offset:{GU+8192}
        ds_write_b128 {vr(t(0))}, {vr(FA+8,4)} offset:{GU+16}
        ds_write_b128 {vr(t(0))}, {vr(FA+12,4)} offset:{GU+8192+16}
        ds_write_b128 {vr(lG)}, {vr(FD,4)} offset:{DN}
        ds_write_b128 {vr(lG)}, {vr(FD+4,4)} offset:{DN+4096}
        s_mul_i32 {sr(sT)}, {sr(sW)}, {4096-1024}
        v_add_u32 {vr(t(1))}, {sr(sT)}, {vr(lTr)}
        v_lshlrev_b32 {vr(t(2))}, 2, v0
        s_waitcnt lgkmcnt(0)
        s_barrier""")
        for kap in range(4):
            for h in range(2):
                e(f'ds_read_b64_tr_b16 {vr(FA+4*kap+2*h,2)}, {vr(t(1))} offset:{GU + kap*1024 + h*128}')
        for f in range(8): e(f'ds_read_b32 {vr(t(8)+f)}, {vr(t(2))} offset:{DN + f*1024}')
        e('s_waitcnt lgkmcnt(0)')
        for f in range(8):
            e(f'v_lshlrev_b32 {vr(FD+2*f)}, 16, {vr(t(8)+f)}\nv_and_b32 {vr(FD+2*f+1)}, 0xffff0000, {vr(t(8)+f)}')

    XS = t(0)
    def xsel_text():
        return '\n'.join(f'buffer_load_dwordx4 {vr(XS+4*k,4)}, {vr(t(20))}, {sr(sWS,4)}, {sr(sRec)} offen offset:{128+64*k} sc1' for k in range(4))
    def xsel_load():
        e(f"""s_lshl_b32 {sr(sT)}, {sr(sW)}, 8
        v_lshlrev_b32 {vr(t(20))}, 4, {vr(vQ)}
        v_add_u32 {vr(t(20))}, {sr(sT)}, {vr(t(20))}""")
        e(xsel_text())
    def ffn(part):
        ln = g.lab('noffn')
        e(f's_cmp_ge_u32 {sr(sPhi)}, {NF}\ns_cbranch_scc1 {ln}')
        poll(xsel_text(), range(XS, XS+16), preloaded=True)
        Pp = t(16)
        for k in range(4):
            e(f'v_mfma_f32_16x16x32_bf16 {vr(Pp,4)}, {vr(FA+4*k,4)}, {vr(XS+4*k,4)}, {"0" if k==0 else vr(Pp,4)}')
        e(f"""v_lshlrev_b32 {vr(t(21))}, 6, {vr(vQ)}
        s_lshl_b32 {sr(sT)}, {sr(sW)}, 2
        v_add_u32 {vr(t(21))}, {sr(sT)}, {vr(t(21))}
        v_and_b32 {vr(t(22))}, 31, {vr(vL)}
        v_lshlrev_b32 {vr(t(22))}, 2, {vr(t(22))}
        s_mov_b32 exec_lo, 0x00010001
        s_mov_b32 exec_hi, 0x00010001""")
        for i in range(4): e(f'ds_write_b32 {vr(t(21))}, {vr(Pp+i)} offset:{FP + 16*i}')
        e(f"""s_mov_b64 exec, -1
        s_waitcnt lgkmcnt(0)
        s_barrier
        ds_read_b32 {vr(t(12))}, {vr(t(22))} offset:{FP}
        ds_read_b32 {vr(t(13))}, {vr(t(22))} offset:{FP+128}
        s_waitcnt lgkmcnt(0)""")
        gg, uu = t(12), t(13)
        for mod in ('quad_perm:[1,0,3,2]', 'quad_perm:[2,3,0,1]'):
            e(f'v_add_f32_dpp {vr(gg)}, {vr(gg)}, {vr(gg)} {mod} {DPP}\nv_add_f32_dpp {vr(uu)}, {vr(uu)}, {vr(uu)} {mod} {DPP}')
        e(f"""v_mul_f32 {vr(t(14))}, {fbits(-1.4426950408889634)}, {vr(gg)}
        v_exp_f32 {vr(t(14))}, {vr(t(14))}
        v_mul_f32 {vr(uu)}, {vr(uu)}, {vr(vSig)}
        v_add_f32 {vr(t(14))}, 1.0, {vr(t(14))}
        v_rcp_f32 {vr(t(14))}, {vr(t(14))}
        v_mul_f32 {vr(gg)}, {vr(gg)}, {vr(uu)}
        v_mul_f32 {vr(gg)}, {vr(gg)}, {vr(t(14))}""")
        for f in range(8): e(f'v_readlane_b32 {sr(sH+f)}, {vr(gg)}, {4*f}')
        acc = t(16)
        for f in range(8):
            sel = 'op_sel_hi:[1,0,1]' if f % 2 == 0 else 'op_sel:[0,1,0] op_sel_hi:[1,1,1]'
            if f == 0: e(f'v_pk_mul_f32 {vr(acc,2)}, {vr(FD,2)}, {sr(sH,2)} op_sel_hi:[1,0]')
            else: e(f'v_pk_fma_f32 {vr(acc,2)}, {vr(FD+2*f,2)}, {sr(sH + (f & ~1),2)}, {vr(acc,2)} {sel}')
        ws_store(2, acc, aP8, part)
        e(f'{ln}:')

    def reducer(part, final):
        ln = g.lab('nored')
        e(f"""s_sub_u32 {sr(sT3)}, {sr(sWg)}, {RED0}
        s_cmp_ge_u32 {sr(sT3)}, 32
        s_cbranch_scc1 {ln}
        v_lshrrev_b32 {vr(t(20))}, 2, v0
        v_lshlrev_b32 {vr(t(21))}, 11, {vr(t(20))}
        v_and_b32 {vr(t(22))}, 3, v0
        v_lshlrev_b32 {vr(t(22))}, 4, {vr(t(22))}
        s_lshl_b32 {sr(sT)}, {sr(sT3)}, 6
        v_add_u32 {vr(t(25))}, {sr(sT)}, {vr(t(22))}
        v_add_u32 {vr(t(21))}, {vr(t(21))}, {vr(t(25))}
        v_add_u32 {vr(t(23))}, {128*2048}, {vr(t(21))}
        v_mov_b32 {vr(t(24))}, 0x7f000000
        v_cmp_gt_u32 vcc, {NF-128}, {vr(t(20))}
        v_cndmask_b32 {vr(t(23))}, {vr(t(24))}, {vr(t(23))}, vcc
        s_mov_b32 {sr(sOff)}, {part}
        s_add_u32 {sr(sT2)}, {sr(sOff)}, {64*2048}""")
        A, B2, B3, B4 = t(0), t(4), t(8), t(12)
        ld = '\n'.join([ws_load_text(4, A, t(21), sr(sOff)), ws_load_text(4, B2, t(21), sr(sT2)), ws_load_text(4, B3, t(23), sr(sOff))])
        regs = list(range(A, A+12))
        if final:
            ld += '\n' + ws_load_text(4, B4, t(25), sr(sRec), 'offset:1152')
            regs += list(range(B4, B4+4))
        poll(ld, regs)
        for X_ in (B2, B3):
            e(f'v_pk_add_f32 {vr(A,2)}, {vr(A,2)}, {vr(X_,2)}\nv_pk_add_f32 {vr(A+2,2)}, {vr(A+2,2)}, {vr(X_+2,2)}')
        for sh in (4, 8):
            for i in range(4): e(f'v_add_f32_dpp {vr(A+i)}, {vr(A+i)}, {vr(A+i)} row_ror:{sh} {DPP}')
        for sw in ('v_permlane16_swap_b32', 'v_permlane32_swap_b32'):
            for i in range(4): e(f'v_mov_b32 {vr(B2+i)}, {vr(A+i)}')
            for i in range(4): e(f'{sw} {vr(A+i)}, {vr(B2+i)}')
            for i in range(4): e(f'v_add_f32 {vr(A+i)}, {vr(A+i)}, {vr(B2+i)}')
        e(f"""s_lshl_b32 {sr(sT)}, {sr(sW)}, 6
        v_add_u32 {vr(t(24))}, {sr(sT)}, {vr(t(22))}
        s_mov_b64 exec, 15
        ds_write_b128 {vr(t(24))}, {vr(A,4)} offset:{RED}
        s_mov_b64 exec, -1
        s_waitcnt lgkmcnt(0)
        s_barrier
        s_cmp_lg_u32 {sr(sW)}, 0
        s_cbranch_scc1 {ln}""")
        R = t(28)
        for w in range(4): e(f'ds_read_b128 {vr(R+4*w,4)}, {vr(t(22))} offset:{RED + 64*w}')
        e('s_waitcnt lgkmcnt(0)')
        e(f"""v_pk_add_f32 {vr(R,2)}, {vr(R,2)}, {vr(R+4,2)}
        v_pk_add_f32 {vr(R+2,2)}, {vr(R+2,2)}, {vr(R+6,2)}
        v_pk_add_f32 {vr(R+8,2)}, {vr(R+8,2)}, {vr(R+12,2)}
        v_pk_add_f32 {vr(R+10,2)}, {vr(R+10,2)}, {vr(R+14,2)}
        v_pk_add_f32 {vr(R,2)}, {vr(R,2)}, {vr(R+8,2)}
        v_pk_add_f32 {vr(R+2,2)}, {vr(R+2,2)}, {vr(R+10,2)}""")
        if final:
            e(f"""v_pk_add_f32 {vr(R,2)}, {vr(R,2)}, {vr(B4,2)}
            v_pk_add_f32 {vr(R+2,2)}, {vr(R+2,2)}, {vr(B4+2,2)}
            v_cvt_pk_bf16_f32 {vr(R)}, {vr(R)}, {vr(R+1)}
            v_cvt_pk_bf16_f32 {vr(R+1)}, {vr(R+2)}, {vr(R+3)}
            s_lshl_b32 {sr(sT)}, {sr(sStar)}, 10
            v_lshrrev_b32 {vr(t(25))}, 1, {vr(t(25))}
            v_add_u32 {vr(t(25))}, {sr(sT)}, {vr(t(25))}
            s_mov_b64 exec, 15
            buffer_store_dwordx2 {vr(R,2)}, {vr(t(25))}, {sr(sOUT,4)}, 0 offen sc1
            s_mov_b64 exec, -1""")
        else:
            e(f"""s_mov_b32 {sr(sOff)}, {UPD0}
            s_mov_b64 exec, 15
            buffer_store_dwordx4 {vr(R,4)}, {vr(t(25))}, {sr(sWS,4)}, {sr(sOff)} offen sc1
            s_mov_b64 exec, -1""")
        e(f'{ln}:')

    addr_misc()
    stamp('preamble')
    e(f's_waitcnt vmcnt({N_ALL-1})\nv_readfirstlane_b32 {sr(sTag)}, {vr(vCa)}\ns_add_u32 {sr(sTag)}, {sr(sTag)}, 1')
    if not opt.get('nohint'):
        lh = g.lab('nohint')
        e(f'''s_cmp_lt_u32 {sr(sWg)}, 248
        s_cbranch_scc1 {lh}
        s_cmp_lg_u32 {sr(sW)}, 0
        s_cbranch_scc1 {lh}
        s_and_b32 {sr(sT)}, {sr(sWg)}, 7
        s_lshl_b32 {sr(sT)}, {sr(sT)}, 8
        v_mov_b32 {vr(t(16))}, {sr(sT)}
        v_mov_b32 {vr(t(17))}, {sr(sTag)}
        s_mov_b64 exec, 1''')
        ws_store(1, t(17), t(16), HINT)
        e(f's_mov_b64 exec, -1\n{lh}:')
    stamp('x0')
    unpack_nat(XU, URAW); unpack_rev(XV, VRAW, t(16))
    stats2(False)
    norm_coeffs(hRho, hB)
    make_g()
    e(f's_waitcnt vmcnt({N_ALL - N_ROWTAB})')
    transform(HB0, tagged=True, pre_store=lambda: e(f's_waitcnt vmcnt({N_ALL - N_POISON})'))
    stamp('P1 stored')
    finish_here('P1')
    special_k(KB0, False)
    addr_ym4()
    poison_regs()
    e(f"""s_sub_u32 {sr(sT3)}, {sr(sWg)}, {RED0}
    s_lshl_b32 {sr(sT)}, {sr(sT3)}, 6
    v_lshlrev_b32 {vr(t(6))}, 2, v0
    v_add_u32 {vr(t(6))}, {sr(sT)}, {vr(t(6))}
    v_cmp_gt_u32 vcc, 16, v0
    s_cmp_lt_u32 {sr(sT3)}, 32
    s_cselect_b64 {sr(sEx,2)}, vcc, 0
    v_mov_b32 {vr(t(7))}, 0x7f000000
    v_cndmask_b32 {vr(t(6))}, {vr(t(7))}, {vr(t(6))}, {sr(sEx,2)}""")
    ws_store(4, PZ, aP16, HB1); ws_store(4, PZ, aP16, CAND0); ws_store(2, PZ, aP8, PART0); ws_store(1, PZ, t(6), UPD0)
    e(f'v_add_u32 {vr(t(39))}, {TOFF["addr2"]}, {vr(lG)}\nglobal_load_dwordx4 {vr(t(44),4)}, {vr(t(39))}, {sr(sPC,2)}')
    if not opt.get('nohint'):
        lh = g.lab('hw')
        e(f'''v_and_b32 {vr(vCa)}, 7, {vr(vL)}
        v_lshlrev_b32 {vr(vCa)}, 8, {vr(vCa)}
        s_cmp_lg_u32 {sr(sW)}, 0
        s_cbranch_scc1 {lh}
        s_mov_b32 {sr(sOff)}, {HINT}''')
        e(ws_load_text(1, vSa, vCa, sr(sOff)))
        e(f'{lh}:')
    col_consts()
    stamp('shadow1')
    if not opt.get('nohint'):
        lh = g.lab('hw2'); lp = g.lab('hp')
        e(f'''s_cmp_lg_u32 {sr(sW)}, 0
        s_cbranch_scc1 {lh}
        s_mov_b32 {sr(sCnt)}, 0
        s_mov_b32 {sr(sOff)}, {HINT}
        {lp}:
        s_waitcnt vmcnt(0)
        v_cmp_ne_u32 vcc, {sr(sTag)}, {vr(vSa)}
        s_cbranch_vccz {lh}
        s_add_u32 {sr(sCnt)}, {sr(sCnt)}, 1
        s_cmp_gt_u32 {sr(sCnt)}, {LIMIT}
        s_cbranch_scc1 {lh}
        s_sleep 4''')
        e(ws_load_text(1, vSa, vCa, sr(sOff)))
        e(f's_branch {lp}\n{lh}:\ns_waitcnt vmcnt(0)\ns_barrier')
    if opt.get('ack1'): e('s_waitcnt vmcnt(0)')
    stamp('hint')
    column(HB0, YB0, False, tagged=True)
    stamp('P2 stored')
    finish_here('P2')
    poison_regs()
    ws_store(4, PZ, aP16, YB1); ws_store(4, PZ, aP16, CAND1); ws_store(2, PZ, aP8, PART1)
    lnn = g.lab('nononce')
    e(f'''s_cmp_lg_u32 {sr(sRowU)}, 0
    s_cbranch_scc1 {lnn}
    v_mov_b32 {vr(t(0))}, {sr(sTag)}
    v_mov_b32 {vr(t(1))}, 0
    s_mov_b64 exec, 1''')
    ws_store(1, t(0), t(1), NONCE)
    e(f's_mov_b64 exec, -1\n{lnn}:')
    unpack_nat(WU, WURAW); unpack_rev(WV, WVRAW, t(16))
    e(f"""v_pk_add_f32 {vr(t(16),2)}, {vr(WU,2)}, {vr(WU+2,2)}
    v_pk_add_f32 {vr(t(18),2)}, {vr(WU+4,2)}, {vr(WU+6,2)}
    v_pk_add_f32 {vr(t(16),2)}, {vr(t(16),2)}, {vr(t(18),2)}
    v_add_f32 {vr(t(16))}, {vr(t(16))}, {vr(t(17))}""")
    wave_reduce([t(16)], [t(17)])
    e(f'v_readfirstlane_b32 {sr(sSW)}, {vr(t(16))}')
    stamp('shadow2')
    e('s_waitcnt vmcnt(0)')
    row_input(YB0, KB0, with_weights=(WPOS == 'hop2'))
    add_y_pair()
    stats2(True)
    make_key()
    residual_coeffs()
    e(f"""v_mul_f32 {vr(t(23))}, {vr(t(21))}, {vr(t(21))}
    v_mul_f32 {vr(t(23))}, {vr(t(23))}, {vr(hVar)}
    v_add_f32 {vr(t(23))}, {fbits(1e-5)}, {vr(t(23))}
    v_rsq_f32 {vr(t(23))}, {vr(t(23))}
    s_waitcnt lgkmcnt(0)
    s_barrier""")
    wg_best_read(t(24))
    e(f"""v_mul_f32 {vr(t(22))}, {vr(t(21))}, {vr(t(23))}
    v_mul_f32 {vr(t(23))}, -{vr(hM)}, {vr(t(22))}""")
    norm_coeffs(t(22), t(23))
    e('s_waitcnt lgkmcnt(0)')
    wg_best_header(CAND0, t(24))
    stamp('hdr0')
    make_g()
    residual_update(XU, XV)
    transform(HB1, post_scatter=lambda: publish_rows(CAND0))
    stamp('P3 stored')
    finish_here('P3')
    K = t(0)
    header_load(CAND0, vSig)
    lfs = g.lab('nosetup')
    e(f's_cmp_ge_u32 {sr(sPhi)}, {NF}\ns_cbranch_scc1 {lfs}')
    e('s_waitcnt vmcnt(2)')
    ffn_setup()
    e(f'{lfs}:')
    special_k(KB1, True)
    e(f's_waitcnt vmcnt(0)\nv_mov_b32 {vr(K)}, {vr(vSig)}')
    argmax(CAND0, K, after_check=lambda: column_load(HB1))
    stamp('argmax0')
    lb = g.lab('nobase')
    e(f"""s_cmp_ge_u32 {sr(sW)}, 2
    s_cbranch_scc1 {lb}
    v_lshlrev_b32 {vr(t(21))}, 5, {vr(vL)}
    buffer_load_dwordx4 {vr(FX,4)}, {vr(t(21))}, {sr(sWS,4)}, {sr(sRec)} offen offset:1152 sc1
    buffer_load_dwordx4 {vr(FX+4,4)}, {vr(t(21))}, {sr(sWS,4)}, {sr(sRec)} offen offset:1168 sc1
    {lb}:""")
    lb = g.lab('nox')
    e(f's_cmp_ge_u32 {sr(sPhi)}, {NF}\ns_cbranch_scc1 {lb}')
    xsel_load()
    e(f'{lb}:')
    sigmoid_of_key()
    e(f"""s_mul_i32 {sr(sT)}, {sr(sRowU)}, {sr(sStar)}
    s_and_b32 {sr(sT)}, {sr(sT)}, 2047
    v_cvt_f32_u32 {vr(vCa)}, {sr(sT)}
    v_mul_f32 {vr(vCa)}, {fbits(1/2048)}, {vr(vCa)}
    v_sin_f32 {vr(vSa)}, {vr(vCa)}
    v_cos_f32 {vr(vCa)}, {vr(vCa)}
    v_mul_f32 {vr(vSa)}, {fbits(1/32)}, {vr(vSa)}
    v_mul_f32 {vr(vCa)}, {fbits(1/32)}, {vr(vCa)}
    v_cvt_pk_f16_f32 {vr(vSa)}, {vr(vSa)}, {vr(vSa)}
    v_cvt_pk_f16_f32 {vr(vCa)}, {vr(vCa)}, {vr(vCa)}
    s_waitcnt vmcnt(0)""")
    stamp('xsel')
    ffn(PART0)
    stamp('ffn0')
    column(HB1, YB1, True)
    stamp('P4 stored')
    finish_here('P4')
    reducer(PART0, False)
    stamp('red0')
    lb = g.lab('nobase')
    e(f's_cmp_ge_u32 {sr(sW)}, 2\ns_cbranch_scc1 {lb}')
    e(f'v_lshlrev_b32 {vr(t(21))}, 5, {vr(vL)}')
    poll(f'buffer_load_dwordx4 {vr(FX,4)}, {vr(t(21))}, {sr(sWS,4)}, {sr(sRec)} offen offset:1152 sc1\n'
         f'buffer_load_dwordx4 {vr(FX+4,4)}, {vr(t(21))}, {sr(sWS,4)}, {sr(sRec)} offen offset:1168 sc1', range(FX, FX+8), preloaded=True)
    stats1(FX, t(0), FO)
    e(f'{lb}:')
    e('s_waitcnt vmcnt(0)')
    row_input(YB1, KB1)
    stamp('y1 read')
    lj = g.lab('fixj'); lq = g.lab('fix'); lu = g.lab('ownu'); lv = g.lab('ownv')
    U = t(16)
    updld = lambda areg: (ws_load_text(4, U, areg, sr(sOff)) + '\n' + ws_load_text(4, U+4, areg, sr(sOff), 'offset:16'))
    def owner_add():
        l1 = g.lab('nu'); l2 = g.lab('nv')
        e(f's_cmp_lg_u32 {sr(sStar)}, {sr(sRowU)}\ns_cbranch_scc1 {l1}')
        for k in range(4): e(f'v_pk_add_f32 {vr(XU+2*k,2)}, {vr(XU+2*k,2)}, {vr(U+2*k,2)}')
        e(f'{l1}:')
    e(f"""v_lshlrev_b32 {vr(t(44))}, 5, {vr(vL)}
    s_mov_b32 {sr(sOff)}, {UPD0}""")
    lnv = g.lab('notv')
    e(f"""s_cmp_lg_u32 {sr(sStar)}, {sr(sRowV)}
    s_cbranch_scc1 {lnv}
    v_sub_u32 {vr(t(45))}, {63*32}, {vr(t(44))}""")
    poll(updld(t(45)), range(U, U+8), backoff=4)
    e(f'v_mov_b32_dpp {vr(t(46))}, {vr(U)} wave_ror:1 {DPP}')
    for k in range(1, 8): e(f'v_add_f32 {vr(XV+k)}, {vr(XV+k)}, {vr(U+8-k)}')
    e(f'v_add_f32 {vr(XV)}, {vr(XV)}, {vr(t(46))}\n{lnv}:')
    e(f"""s_cmp_lt_u32 {sr(sW)}, 2
    s_cbranch_scc1 {lq}
    s_cmp_lg_u32 {sr(sStar)}, {sr(sRowU)}
    s_cbranch_scc1 {lj}""")
    poll(updld(t(44)), range(U, U+8), backoff=4)
    owner_add()
    e(f's_branch {lj}\n{lq}:')
    poll(updld(t(44)), range(U, U+8), backoff=4)
    stamp('upd')
    owner_add()
    for k in range(4): e(f'v_pk_add_f32 {vr(FX+2*k,2)}, {vr(FX+2*k,2)}, {vr(U+2*k,2)}')
    stats1(FX, t(32), FX)
    for k in range(4): e(f'v_pk_add_f32 {vr(FX+2*k,2)}, {vr(FX+2*k,2)}, {vr(FO+2*k,2)} neg_lo:[0,1] neg_hi:[0,1]')
    write_n(FX, t(24)); write_r(FX, t(40))
    A, B = CA, t(40)
    for k in range(8): e(f'v_mov_b32 {vr(FO+k)}, {vr(YH+k)}')
    e(f"""s_mov_b32 {sr(sT)}, 0x3c003c00
    s_cmp_eq_u32 {sr(sW)}, 0
    s_cselect_b32 {sr(sSgn)}, {sr(sT)}, 0xbc00bc00
    s_waitcnt lgkmcnt(0)
    ds_read_b64_tr_b16 {vr(A,2)}, {vr(lTr)} offset:{GIMG}
    ds_read_b64_tr_b16 {vr(B,2)}, {vr(lTr)} offset:{RIMG}
    ds_read_b64_tr_b16 {vr(A+2,2)}, {vr(lTr)} offset:{GIMG+128}
    ds_read_b64_tr_b16 {vr(B+2,2)}, {vr(lTr)} offset:{RIMG+128}
    s_waitcnt lgkmcnt(0)""")
    for k in range(4): e(f'v_pk_fma_f16 {vr(A+k)}, {vr(B+k)}, {sr(sSgn)}, {vr(A+k)}')
    core(A, CO)
    for k in range(4): e(f'v_cvt_pk_f16_f32 {vr(t(44)+k)}, {vr(CO+2*k)}, {vr(CO+2*k+1)}')
    e(f"""v_lshl_add_u32 {vr(t(0))}, {vr(vQ)}, 7, {vr(vN)}
    v_lshlrev_b32 {vr(t(1))}, 7, {vr(vQ)}
    v_sub_u32 {vr(t(1))}, {32*23}, {vr(t(1))}
    v_add_u32 {vr(t(1))}, {vr(t(1))}, {vr(vN)}
    v_cmp_gt_u32 vcc, 2, {vr(vQ)}
    v_cndmask_b32 {vr(t(0))}, {vr(t(1))}, {vr(t(0))}, vcc
    v_lshlrev_b32 {vr(t(0))}, 1, {vr(t(0))}
    s_lshl_b32 {sr(sT)}, {sr(sW)}, 10
    v_add_u32 {vr(t(0))}, {sr(sT)}, {vr(t(0))}
    v_mov_b32 {vr(t(2))}, 64
    v_mov_b32 {vr(t(3))}, -64
    v_cndmask_b32 {vr(t(2))}, {vr(t(3))}, {vr(t(2))}, vcc""")
    for i in range(4):
        op = 'ds_write_b16' if i % 2 == 0 else 'ds_write_b16_d16_hi'
        for Tt in range(2):
            e(f'{op} {vr(t(0))}, {vr(t(44)+2*Tt+i//2)} offset:{RIMG + 2048 + 32*Tt}')
        if i < 3: e(f'v_add_u32 {vr(t(0))}, {vr(t(0))}, {vr(t(2))}')
    for k in range(8): e(f'v_mov_b32 {vr(YH+k)}, {vr(FO+k)}')
    e(f"""{lj}:
    s_waitcnt lgkmcnt(0)
    s_barrier
    v_lshlrev_b32 {vr(t(0))}, 4, {vr(vL)}
    ds_read_b128 {vr(t(16),4)}, {vr(t(0))} offset:{RIMG+2048}
    ds_read_b128 {vr(t(20),4)}, {vr(t(0))} offset:{RIMG+2048+1024}
    s_waitcnt lgkmcnt(1)""")
    lsp = g.lab('fsp')
    for k in range(4): e(f'v_pk_fma_f16 {vr(YH+k)}, {vr(t(16)+k)}, {vr(vCa)}, {vr(YH+k)}')
    e(f'''s_cmp_lg_u32 {sr(sRowU)}, 0
    s_cbranch_scc1 {lsp}
    s_mov_b32 {sr(sT)}, 0x28002800
    s_bitcmp0_b32 {sr(sStar)}, 0
    s_cselect_b32 {sr(sT)}, {sr(sT)}, 0xa800a800''')
    for k in range(4): e(f'v_pk_fma_f16 {vr(YV+k)}, {vr(t(16)+k)}, {sr(sT)}, {vr(YV+k)}')
    e(f'{lsp}:\ns_waitcnt lgkmcnt(0)')
    for k in range(4): e(f'v_pk_fma_f16 {vr(YH+k)}, {vr(t(20)+k)}, {vr(vSa)}, {vr(YH+k)}')
    add_y_pair()
    stamp('fixed')
    stats2(True)
    make_key()
    residual_coeffs()
    e('s_waitcnt lgkmcnt(0)\ns_barrier')
    wg_best_read(t(24))
    residual_update(XU, XV)
    e('s_waitcnt lgkmcnt(0)')
    wg_best_header(CAND1, t(24))
    publish_rows(CAND1)
    e('s_waitcnt vmcnt(0)\ns_barrier')
    stamp('cand1')
    header_load(CAND1, K)
    e('s_waitcnt vmcnt(0)')
    argmax(CAND1, K)
    stamp('argmax1')
    lb = g.lab('nox')
    e(f's_cmp_ge_u32 {sr(sPhi)}, {NF}\ns_cbranch_scc1 {lb}')
    xsel_load()
    e(f'{lb}:')
    sigmoid_of_key()
    ln = g.lab('noout')
    e(f's_cmp_eq_u32 {sr(sStar)}, {sr(sRowU)}\ns_cbranch_scc1 {ln}')
    for k in range(4): e(f'v_cvt_pk_bf16_f32 {vr(t(24)+k)}, {vr(XU+2*k)}, {vr(XU+2*k+1)}')
    e(f'buffer_store_dwordx4 {vr(t(24),4)}, {vr(aU)}, {sr(sOUT,4)}, 0 offen sc1\n{ln}:')
    ln = g.lab('noout')
    e(f's_cmp_eq_u32 {sr(sStar)}, {sr(sRowV)}\ns_cbranch_scc1 {ln}')
    e(f"""v_mov_b32_dpp {vr(t(32))}, {vr(XV)} wave_rol:1 {DPP}
    v_cvt_pk_bf16_f32 {vr(t(29))}, {vr(XV+6)}, {vr(XV+5)}
    v_cvt_pk_bf16_f32 {vr(t(30))}, {vr(XV+4)}, {vr(XV+3)}
    v_cvt_pk_bf16_f32 {vr(t(31))}, {vr(XV+2)}, {vr(XV+1)}
    v_cvt_pk_bf16_f32 {vr(t(28))}, {vr(t(32))}, {vr(XV+7)}
    buffer_store_dwordx4 {vr(t(28),4)}, {vr(aV)}, {sr(sOUT,4)}, 0 offen sc1
    {ln}:""")
    e('s_waitcnt vmcnt(0)')
    ffn(PART1)
    stamp('ffn1')
    e('s_waitcnt vmcnt(0)')
    reducer(PART1, True)
    stamp('end')
    e('L_done:')
    if stamps:
        ls = g.lab('nost')
        e(f"""s_cmp_ge_u32 s2, 256
        s_cbranch_scc1 {ls}
        s_waitcnt vmcnt(0)
        s_mov_b64 exec, -1
        s_lshl_b32 {sr(sT)}, {sr(sWg)}, 11
        s_lshl_b32 {sr(sT2)}, {sr(sW)}, 8
        s_add_u32 {sr(sT)}, {sr(sT)}, {sr(sT2)}
        v_and_b32 {vr(t(0))}, 63, v0
        v_lshlrev_b32 {vr(t(0))}, 2, {vr(t(0))}
        v_add_u32 {vr(t(0))}, {sr(sT)}, {vr(t(0))}
        s_mov_b32 {sr(sOff)}, {STAMP}
        buffer_store_dword {vr(vStamp)}, {vr(t(0))}, {sr(sWS,4)}, {sr(sOff)} offen
        {ls}:""")
    e('s_endpgm')
    for ls, lj in g.late:
        e(f'{ls}:')
        add_y(YH, YV)
        e(f's_branch {lj}')
    emit_tail()
    return g

def render(g):
    lines, added = pad(g.L)
    body = '\n'.join(('' if l.endswith(':') else '    ') + l for l in lines)
    ninstr = sum(1 for l in lines if not l.endswith(':'))
    hdr = f"""; FNet (2-D real DFT via Hartley factorisation on MFMA) + top-1 routed SwiGLU, two layers, one persistent launch.
; @launch grid=(256,1,1) block=(256,1,1) lds={LDS_SIZE}
.amdgcn_target "amdgcn-amd-amdhsa--gfx950"
.text
.globl {NAME}
.p2align 8
.type {NAME},@function
{NAME}:
"""
    tab = '\n'.join('.long ' + ','.join('0x%08x' % x for x in TAB[i:i+8]) for i in range(0, len(TAB), 8))
    tail = f"""
L_code_end:
.p2align 8
L_tab:
{tab}
.section .rodata,"a"
.p2align 6
.amdhsa_kernel {NAME}
  .amdhsa_next_free_vgpr 256
  .amdhsa_next_free_sgpr 102
  .amdhsa_accum_offset 256
  .amdhsa_group_segment_fixed_size 0
  .amdhsa_kernarg_size 104
  .amdhsa_user_sgpr_count 2
  .amdhsa_user_sgpr_kernarg_segment_ptr 1
  .amdhsa_system_sgpr_workgroup_id_x 1
.end_amdhsa_kernel
"""
    return hdr + body + tail, ninstr, added

if __name__ == '__main__':
    import argparse
    ap = argparse.ArgumentParser()
    ap.add_argument('-o', default='interleave_layers__spectral_fnet__moe_arch_mod__prompt.s')
    ap.add_argument('--stop'); ap.add_argument('--stamps', action='store_true'); ap.add_argument('--opt', default='')
    a = ap.parse_args()
    g = build(a.stop, a.stamps, {k.split('=')[0]: (k.split('=')+['1'])[1] for k in a.opt.split(',') if k})
    txt, n, added = render(g)
    open(a.o, 'w').write(txt)
    print(f'{n} instructions, {added} nop slots added, vgpr high {g.v.n}, sgpr high {g.s.n}')
```

```python
import sys, struct, math
from asmlib import pad, Alloc
import tables

NAME = "interleave_layers__spectral_fnet__moe_arch_mod__prompt_kernel"
NONCE = 0x000000
HB0, YB0, HB1, YB1 = 0x100000, 0x300000, 0x400000, 0x500000
CAND0, CAND1 = 0x600000, 0x700000
PART0, PART1 = 0x800000, 0x880000
UPD0 = 0x900000
KB0, KB1 = 0x901000, 0x902000
HINT = 0x903000
STAMP = 0x980000
WS_SIZE = 0xA00000
NF = 172
RED0 = 8
LIMIT = 40000
NPOIS = 64
YIMG = 0
GIMG = 5120
RIMG = 9216
HIMG = 13312
CIN = 17472
COUT = 21568
KIMG = 25664
FP = 26752
AM = 27008
RED = 27072
GU = 27392
DN = GU + 16384
LDS_SIZE = DN + 8192
LMAP = dict(YIMG=YIMG, GIMG=GIMG, RIMG=RIMG, HIMG=HIMG, CIN=CIN, COUT=COUT)
TAB, TOFF = tables.build_tables(LMAP)

def fbits(x): return '0x%08x' % struct.unpack('<I', struct.pack('<f', x))[0]

class G:
    def __init__(self, stop=None, stamps=False):
        self.L = []; self.stop = stop; self.stamps = stamps; self.uid = 0; self.nstamp = 0; self.names = []
        self.v = Alloc(1, 256, 'v'); self.s = Alloc(3, 100, 's')
    def e(self, text):
        for l in text.strip('\n').split('\n'):
            l = l.strip()
            if l: self.L.append(l)
    def lab(self, p):
        self.uid += 1; return f'L_{p}_{self.uid}'

def vr(a, n=1): return f'v{a}' if n == 1 else f'v[{a}:{a+n-1}]'
def sr(a, n=1): return f's{a}' if n == 1 else f's[{a}:{a+n-1}]'
DPP = 'row_mask:0xf bank_mask:0xf'
PKB = 'op_sel:[0,0,1] op_sel_hi:[1,0,1]'

def build(stop=None, stamps=False, opt=None):
    opt = opt or {}
    g = G(stop, stamps); e = g.e; V = g.v; S = g.s
    sWS = S('ws', 4, 4); sXS = S('xsrd', 4, 4); sOUT = S('out', 4, 4); sT4 = S('tmpsrd', 4, 4)
    sRho = S('rho'); sW = S('w'); sRowU = S('rowu'); sRowV = S('rowv'); sVs = S('vs'); sOff = S('off'); sCnt = S('cnt')
    sT = S('t'); sT2 = S('t2'); sT3 = S('t3'); s16 = S('k16'); sStar = S('star'); sRec = S('rec'); sWg = S('wg'); sSW = S('sw')
    sCu = S('cu', 2, 2); sCv = S('cv', 2, 2); sEx = S('exsave', 2, 2)
    sAu = S('au', 2, 2); sAv = S('av', 2, 2); sKu = S('ku', 2, 2); sKv = S('kv', 2, 2); sKeyU = S('keyu'); sKeyV = S('keyv'); sKey = S('key')
    sTag = S('tag'); sH = S('h', 8, 2); sTm = S('tm', 2, 2); sPC = S('pc', 2, 2); sM2 = S('m2', 2, 2); sPhi = S('phi'); sSgn = S('sgn')
    sKA = S('ka', 16, 4); sKB = S('kb', 8, 4); sKC = S('kc', 2, 2)
    vL = V('lane'); vN = V('n'); vQ = V('q')
    XU = V('XU', 8, 4); XV = V('XV', 8, 4); WU = V('WU', 8, 2); WV = V('WV', 8, 2)
    RB1 = V('RB1', 16, 4); RC = V('RC', 8, 2); RS = V('RS', 8, 2); RA2 = V('RA2', 4, 4)
    CB1 = V('CB1', 8, 4); CK = V('CK', 32, 2); CA2 = V('CA2', 16, 4)
    assert RC == RB1+16 and RS == RB1+24 and RA2 == RB1+32 and CK == CB1+8
    FA = V('FA', 16, 4); FD = V('FD', 16, 4)
    AD = V('addr', 16, 4)
    lRow, lTr, lRw, lCr, lH, _, lHf, _, lCa, lCb, lCc, lYd = range(AD, AD+12)
    lCo = AD + 12; lYm = AD + 15
    aU = V('aU'); aV = V('aV'); aP16 = V('aP16'); aS16 = V('aS16'); aHdr = V('aHdr'); aP8 = V('aP8')
    lYm4 = V('lYm4'); lG = V('lG')
    vRowH = V('rowh'); vSig = V('sig'); vSent = V('sent'); vCa = V('cosa'); vSa = V('sina'); vStamp = V('stamp')
    FX = V('FX', 8, 4); FO = V('FO', 8, 4)
    NT = 256 - ((V.n + 3)//4*4)
    T = V('T', NT, 4)
    def t(i):
        assert i < NT, i
        return T + i
    DU, DV = t(0), t(8)

    def stamp(name=''):
        if not g.stamps: return
        if opt.get('only') and name not in opt['only'].split('+'): return
        e(f'''s_memrealtime {sr(sTm,2)}
        s_waitcnt lgkmcnt(0)
        v_writelane_b32 {vr(vStamp)}, {sr(sTm)}, {g.nstamp}''')
        g.nstamp += 1; g.names.append(name)
    def finish_here(tag):
        if g.stop == tag: e('s_branch L_done')

    def sentinel(regs):
        if isinstance(regs, tuple) and regs[0] == 'tag':
            P = regs[1]
            e(f'''v_bitop3_b32 {vr(vSent)}, {vr(P+1)}, {vr(P+3)}, {sr(sTag)} bitop3:0x7e
            v_bitop3_b32 {vr(P+1)}, {vr(P+5)}, {vr(P+7)}, {sr(sTag)} bitop3:0x7e
            v_or_b32 {vr(vSent)}, {vr(vSent)}, {vr(P+1)}
            v_cmp_ne_u32 vcc, 0, {vr(vSent)}''')
            return
        regs = list(regs); tm = vSent
        if len(regs) == 1:
            e(f'v_cmp_eq_u32 vcc, -1, {vr(regs[0])}')
        else:
            if len(regs) >= 3:
                e(f'v_max3_u32 {vr(tm)}, {vr(regs[0])}, {vr(regs[1])}, {vr(regs[2])}'); rest = regs[3:]
            else:
                e(f'v_max_u32 {vr(tm)}, {vr(regs[0])}, {vr(regs[1])}'); rest = []
            while len(rest) >= 2:
                e(f'v_max3_u32 {vr(tm)}, {vr(tm)}, {vr(rest[0])}, {vr(rest[1])}'); rest = rest[2:]
            if rest: e(f'v_max_u32 {vr(tm)}, {vr(tm)}, {vr(rest[0])}')
            e(f'v_cmp_eq_u32 vcc, -1, {vr(tm)}')
    def poll(load, regs, backoff=2, preloaded=False):
        lp = g.lab('poll'); ok = g.lab('ok')
        if preloaded:
            sentinel(regs)
            e(f's_cbranch_vccnz {lp}\n{ok}:')
            g.tail.append((lp, ok, load, regs if isinstance(regs, tuple) else list(regs), backoff))
        else:
            e(load); e('s_waitcnt vmcnt(0)')
            sentinel(regs)
            e(f's_cbranch_vccnz {lp}\n{ok}:')
            g.tail.append((lp, ok, load, regs if isinstance(regs, tuple) else list(regs), backoff))
    g.tail = []
    g.nbar_mark = None
    def emit_tail():
        for lp, ok, load, regs, backoff in g.tail:
            l2 = lp + '_r'
            e(f'{lp}:\ns_mov_b32 {sr(sCnt)}, 0\n{l2}:\ns_sleep {backoff}')
            e(load)
            e(f'''s_add_u32 {sr(sCnt)}, {sr(sCnt)}, 1
            s_cmp_gt_u32 {sr(sCnt)}, {LIMIT}
            s_cbranch_scc1 L_done
            s_waitcnt vmcnt(0)''')
            sentinel(regs)
            e(f's_cbranch_vccnz {l2}\ns_branch {ok}')
    def srd(dst, ptr, size):
        e(f'''s_mov_b32 {sr(dst)}, {sr(ptr)}
        s_mov_b32 {sr(dst+1)}, {sr(ptr+1)}
        s_mov_b32 {sr(dst+2)}, {size}
        s_mov_b32 {sr(dst+3)}, 0x00020000''')
    def ws_store(n, data, areg, region, extra=''):
        op = {1: 'buffer_store_dword', 2: 'buffer_store_dwordx2', 4: 'buffer_store_dwordx4'}[n]
        e(f's_mov_b32 {sr(sOff)}, {region}\n{op} {vr(data,n)}, {vr(areg)}, {sr(sWS,4)}, {sr(sOff)} offen sc1 {extra}')
    def ws_load_text(n, data, areg, soff, extra=''):
        op = {1: 'buffer_load_dword', 2: 'buffer_load_dwordx2', 4: 'buffer_load_dwordx4'}[n]
        return f'{op} {vr(data,n)}, {vr(areg)}, {sr(sWS,4)}, {soff} offen {extra} sc1'
    PZ = t(40)
    def poison_regs():
        for k in range(4): e(f'v_mov_b32 {vr(PZ+k)}, -1')

    e(f's_cmp_ge_u32 s2, 256\ns_cbranch_scc1 L_done')
    if stamps: e(f's_memrealtime {sr(sM2,2)}')
    e(f'''s_load_dwordx16 {sr(sKA,16)}, s[0:1], 0
    s_load_dwordx8 {sr(sKB,8)}, s[0:1], 64
    s_load_dwordx2 {sr(sKC,2)}, s[0:1], 96''')
    e(f'''s_getpc_b64 {sr(sPC,2)}
    L_pc:
    v_lshlrev_b32 {vr(t(0))}, 7, v0
    v_min_u32 {vr(t(0))}, L_code_end-L_pc-4, {vr(t(0))}
    global_load_dword {vr(vSig)}, {vr(t(0))}, {sr(sPC,2)}
    s_add_u32 {sr(sPC)}, {sr(sPC)}, L_tab-L_pc
    s_addc_u32 {sr(sPC+1)}, {sr(sPC+1)}, 0''')
    e(f'''s_mov_b32 {sr(sWg)}, s2
    s_and_b32 {sr(sT)}, s2, 7
    s_lshl_b32 {sr(sT)}, {sr(sT)}, 5
    s_lshr_b32 {sr(sRho)}, s2, 3
    s_or_b32 {sr(sRho)}, {sr(sRho)}, {sr(sT)}
    v_lshrrev_b32 {vr(t(1))}, 6, v0
    v_and_b32 {vr(vL)}, 63, v0
    v_readfirstlane_b32 {sr(sW)}, {vr(t(1))}
    v_lshlrev_b32 {vr(t(2))}, 4, {vr(vL)}
    v_sub_u32 {vr(t(3))}, 1008, {vr(t(2))}
    s_lshl_b32 {sr(sT)}, {sr(sRho)}, 2
    s_add_u32 {sr(sRowU)}, {sr(sT)}, {sr(sW)}
    s_sub_u32 {sr(sRowV)}, 2048, {sr(sRowU)}
    s_cmp_eq_u32 {sr(sRowU)}, 0
    s_cselect_b32 {sr(sRowV)}, 1024, {sr(sRowV)}
    s_lshl_b32 {sr(sT)}, {sr(sRowU)}, 10
    s_lshl_b32 {sr(sT2)}, {sr(sRowV)}, 10
    v_add_u32 {vr(aU)}, {sr(sT)}, {vr(t(2))}
    v_add_u32 {vr(aV)}, {sr(sT2)}, {vr(t(3))}
    v_lshlrev_b32 {vr(lG)}, 4, v0
    s_waitcnt lgkmcnt(0)''')
    kx, kwr, kwg = sKA + 0, sKA + 12, sKA + 14
    kwu, kwd, kout, kdbg = sKB + 0, sKB + 2, sKB + 4, sKB + 6
    URAW, VRAW = t(8), t(12)
    WURAW, WVRAW = FX, FX + 4
    e(f's_sub_u32 {sr(sPhi)}, {sr(sRho)}, 1\ns_cmp_eq_u32 {sr(sW)}, 4\ns_cbranch_scc1 L_loader')
    srd(sXS, kx, 2097152)
    e(f'''buffer_load_dwordx4 {vr(URAW,4)}, {vr(aU)}, {sr(sXS,4)}, 0 offen
    buffer_load_dwordx4 {vr(VRAW,4)}, {vr(aV)}, {sr(sXS,4)}, 0 offen''')
    srd(sWS, sKC, WS_SIZE)
    e(f'v_mov_b32 {vr(vCa)}, {NONCE}\nbuffer_load_dword {vr(vCa)}, {vr(vCa)}, {sr(sWS,4)}, 0 offen')
    nvm = [1]
    def tab_loads(dst, n, areg, off, stride):
        k = 0
        while k < n:
            base = off + k*stride
            per = {1024: 4, 4096: 1}[stride]
            e(f'v_add_u32 {vr(t(4))}, {base}, {vr(areg)}')
            for kk in range(min(per, n-k)):
                e(f'global_load_dwordx4 {vr(dst+4*(k+kk),4)}, {vr(t(4))}, {sr(sPC,2)} offset:{kk*stride}')
                nvm[0] += 1
            k += per
    tab_loads(AD, 4, lG, TOFF['addr'], 4096)
    tab_loads(RB1, 9, t(2), TOFF['row'], 1024)
    N_ROWTAB = nvm[0]
    if stamps:
        e(f'v_mov_b32 {vr(vStamp)}, 0\nv_writelane_b32 {vr(vStamp)}, {sr(sM2)}, 0'); g.nstamp = 1; g.names.append('start')
    poison_regs()
    e(f'''s_lshl_b32 {sr(sT)}, {sr(sRho)}, 12
    v_add_u32 {vr(aP16)}, {sr(sT)}, {vr(lG)}''')
    ws_store(4, PZ, aP16, YB0)
    e(f'''v_mov_b32 {vr(t(5))}, 0x7f000000
    v_cmp_gt_u32 vcc, 64, v0
    s_cmp_eq_u32 {sr(sRho)}, 0
    s_cselect_b64 {sr(sEx,2)}, vcc, 0
    v_cndmask_b32 {vr(t(5))}, {vr(t(5))}, {vr(lG)}, {sr(sEx,2)}''')
    ws_store(4, PZ, t(5), KB0)
    ws_store(4, PZ, t(5), KB1)
    nvm[0] += 3
    N_POISON = nvm[0]
    srd(sT4, kwr, 1024)
    e(f'''buffer_load_dwordx4 {vr(WURAW,4)}, {vr(t(2))}, {sr(sT4,4)}, 0 offen
    buffer_load_dwordx4 {vr(WVRAW,4)}, {vr(t(3))}, {sr(sT4,4)}, 0 offen''')
    nvm[0] += 2
    N_ALL = nvm[0]
    srd(sOUT, kout, 2097152)
    e(f'''s_mov_b32 {sr(s16)}, {fbits(16.0)}
    v_and_b32 {vr(vN)}, 15, {vr(vL)}
    v_lshrrev_b32 {vr(vQ)}, 4, {vr(vL)}''')

    a0, a1, a2, a3 = t(20), t(21), t(22), t(23)
    def addr_misc():
        e(f'''s_lshl_b32 {sr(sT)}, {sr(sRho)}, 4
        v_lshlrev_b32 {vr(aHdr)}, 12, v0
        v_add_u32 {vr(aS16)}, {sr(sT)}, {vr(aHdr)}
        v_mov_b32 {vr(a0)}, {sr(sRowU)}
        v_mov_b32 {vr(a1)}, {sr(sRowV)}
        v_cmp_gt_u32 vcc, 32, {vr(vL)}
        s_lshl_b32 {sr(sT)}, {sr(sPhi)}, 11
        s_cmp_lt_u32 {sr(sPhi)}, {NF}
        s_cselect_b32 {sr(sT)}, {sr(sT)}, 0x7f000000
        v_cndmask_b32 {vr(vRowH)}, {vr(a1)}, {vr(a0)}, vcc
        v_lshlrev_b32 {vr(aP8)}, 3, v0
        v_add_u32 {vr(aP8)}, {sr(sT)}, {vr(aP8)}
        v_mov_b32 {vr(a0)}, 0
        v_lshlrev_b32 {vr(a1)}, 10, {vr(vL)}
        s_mov_b64 exec, 31
        ds_write_b16 {vr(a1)}, {vr(a0)} offset:{YIMG}
        s_mov_b64 exec, -1''')
    def addr_ym4():
        e(f'''s_cmp_eq_u32 {sr(sRho)}, 0
        s_cselect_b32 {sr(sT)}, 4096, 0
        v_add_u32 {vr(lYm4)}, {sr(sT)}, {vr(lYm)}''')

    b0, b1, b2 = t(24), t(25), t(26)
    vTau, vTlo = t(28), t(29)
    def tau_tlo():
        e(f'''s_lshl_b32 {sr(sT)}, {sr(sW)}, 3
        v_and_b32 {vr(vTau)}, 7, {vr(vN)}
        v_add_u32 {vr(vTau)}, {sr(sT)}, {vr(vTau)}
        v_sub_u32 {vr(a0)}, 64, {vr(vTau)}
        v_mov_b32 {vr(a1)}, 32
        v_cmp_eq_u32 {sr(sTm,2)}, 0, {vr(vTau)}
        v_cndmask_b32 {vr(a0)}, {vr(a0)}, {vr(a1)}, {sr(sTm,2)}
        v_cmp_le_u32 vcc, 8, {vr(vN)}
        v_cndmask_b32 {vr(vTlo)}, {vr(vTau)}, {vr(a0)}, vcc
        s_andn2_b64 {sr(sEx,2)}, vcc, {sr(sTm,2)}''')
    c0, c1 = t(30), t(31)
    def cos_seq(dst, base, step, n, amp=None):
        for j in range(0, n, 2):
            e(f'v_cos_f32 {vr(c0)}, {vr(base)}\nv_add_f32 {vr(base)}, {vr(base)}, {vr(step)}')
            e(f'v_cos_f32 {vr(c1)}, {vr(base)}')
            if j + 2 < n: e(f'v_add_f32 {vr(base)}, {vr(base)}, {vr(step)}')
            if amp is not None:
                e(f'v_mul_f32 {vr(c0)}, {amp}, {vr(c0)}\nv_mul_f32 {vr(c1)}, {amp}, {vr(c1)}')
            e(f'v_cvt_pk_f16_f32 {vr(dst + j//2)}, {vr(c0)}, {vr(c1)}')
    fQ, fN, fs, fb, fa, fb2 = t(32), t(33), t(34), t(35), t(36), t(37)
    def col_consts():
        tau_tlo()
        e(f'''v_cvt_f32_u32 {vr(fQ)}, {vr(vQ)}
        v_cmp_le_u32 vcc, 8, {vr(vN)}
        s_and_b64 vcc, vcc, {sr(sTm,2)}
        v_mov_b32 {vr(a1)}, 32
        v_cndmask_b32 {vr(a0)}, {vr(vTau)}, {vr(a1)}, vcc
        v_cvt_f32_u32 {vr(fs)}, {vr(a0)}
        v_mul_f32 {vr(fs)}, {fbits(1/64)}, {vr(fs)}
        v_mov_b32 {vr(fa)}, {fbits(0.25)}
        v_cndmask_b32 {vr(fa)}, 0, {vr(fa)}, {sr(sEx,2)}
        v_mul_f32 {vr(fb)}, {fbits(8.0)}, {vr(fQ)}
        v_fma_f32 {vr(fb)}, {vr(fb)}, {vr(fs)}, {vr(fa)}''')
        cos_seq(CB1, fb, fs, 8)
        e(f'''v_and_b32 {vr(a0)}, 1, {vr(a0)}
        v_mul_u32_u24 {vr(a0)}, 0x8000, {vr(a0)}
        v_lshl_or_b32 {vr(a0)}, {vr(a0)}, 16, {vr(a0)}''')
        for k in range(4): e(f'v_xor_b32 {vr(CB1+4+k)}, {vr(a0)}, {vr(CB1+k)}')
        e(f'''v_cvt_f32_u32 {vr(fs)}, {vr(vTlo)}
        v_mul_f32 {vr(fs)}, {fbits(1/2048)}, {vr(fs)}
        v_mul_f32 {vr(fb)}, {vr(fQ)}, {vr(fs)}
        v_fma_f32 {vr(fb)}, {vr(fb)}, 4.0, {vr(fa)}
        v_mov_b32 {vr(a1)}, {fbits(0.25)}
        v_cndmask_b32 {vr(a1)}, {vr(a1)}, 0, {sr(sTm,2)}''')
        e(f'v_add_f32 {vr(fb2)}, {fbits(-0.25)}, {vr(fb)}')
        e(f'v_mul_f32 {vr(a2)}, {fbits(12.0)}, {vr(fs)}')
        for Tt in range(2):
            for i in range(4):
                k = CK + 16*Tt
                e(f'''v_cos_f32 {vr(c0)}, {vr(fb)}
                v_cos_f32 {vr(c1)}, {vr(fb2)}
                v_add_f32 {vr(fb)}, {vr(fb)}, {vr(fs)}
                v_add_f32 {vr(fb2)}, {vr(fb2)}, {vr(fs)}
                v_mul_f32 {vr(k+i)}, {fbits(0.25)}, {vr(c0)}
                v_mul_f32 {vr(k+4+i)}, {vr(a1)}, {vr(c1)}
                v_mul_f32 {vr(k+8+i)}, {fbits(-0.25)}, {vr(c1)}
                v_mul_f32 {vr(k+12+i)}, {vr(a1)}, {vr(c0)}''')
            if Tt == 0: e(f'v_add_f32 {vr(fb)}, {vr(fb)}, {vr(a2)}\nv_add_f32 {vr(fb2)}, {vr(fb2)}, {vr(a2)}')
        e(f'''v_cvt_f32_u32 {vr(fs)}, {vr(vN)}
        v_mul_f32 {vr(fs)}, {fbits(1/32)}, {vr(fs)}
        v_mul_f32 {vr(fb2)}, {vr(fQ)}, {vr(fs)}
        v_mul_f32 {vr(fb2)}, 4.0, {vr(fb2)}''')
        for part, ph in ((0, -0.125), (1, -0.375)):
            e(f'v_add_f32 {vr(fb)}, {fbits(ph)}, {vr(fb2)}')
            cos_seq(CA2 + 2*part, fb, fs, 4, amp=fbits(math.sqrt(2)/8))
        e(f'''v_and_b32 {vr(a0)}, 1, {vr(vN)}
        v_mul_u32_u24 {vr(a0)}, 0x8000, {vr(a0)}
        v_lshl_or_b32 {vr(a0)}, {vr(a0)}, 16, {vr(a0)}''')
        for k in range(4):
            e(f'v_xor_b32 {vr(CA2+4+k)}, {vr(a0)}, {vr(CA2+k)}')
        for k in range(8):
            e(f'v_xor_b32 {vr(CA2+8+k)}, 0x80000000, {vr(CA2+k)}')

    def unpack_nat(dst, src):
        for k in range(4):
            e(f'v_lshlrev_b32 {vr(dst+2*k)}, 16, {vr(src+k)}\nv_and_b32 {vr(dst+2*k+1)}, 0xffff0000, {vr(src+k)}')
    def unpack_rev(dst, src, tmp):
        e(f'''v_lshlrev_b32 {vr(tmp)}, 16, {vr(src)}
        v_and_b32 {vr(dst+7)}, 0xffff0000, {vr(src)}
        v_lshlrev_b32 {vr(dst+6)}, 16, {vr(src+1)}
        v_and_b32 {vr(dst+5)}, 0xffff0000, {vr(src+1)}
        v_mov_b32_dpp {vr(dst)}, {vr(tmp)} wave_ror:1 {DPP}
        v_lshlrev_b32 {vr(dst+4)}, 16, {vr(src+2)}
        v_and_b32 {vr(dst+3)}, 0xffff0000, {vr(src+2)}
        v_lshlrev_b32 {vr(dst+2)}, 16, {vr(src+3)}
        v_and_b32 {vr(dst+1)}, 0xffff0000, {vr(src+3)}''')
    def half_reduce(regs, tmps, op='v_add_f32'):
        for sh in (8, 4, 2, 1):
            for r in regs: e(f'{op}_dpp {vr(r)}, {vr(r)}, {vr(r)} row_ror:{sh} {DPP}')
        for r, tm in zip(regs, tmps): e(f'v_mov_b32 {vr(tm)}, {vr(r)}')
        for r, tm in zip(regs, tmps): e(f'v_permlane16_swap_b32 {vr(r)}, {vr(tm)}')
        for r, tm in zip(regs, tmps): e(f'{op} {vr(r)}, {vr(r)}, {vr(tm)}')
    def wave_reduce(regs, tmps, op='v_add_f32'):
        half_reduce(regs, tmps, op)
        for r, tm in zip(regs, tmps): e(f'v_mov_b32 {vr(tm)}, {vr(r)}')
        for r, tm in zip(regs, tmps): e(f'v_permlane32_swap_b32 {vr(r)}, {vr(tm)}')
        for r, tm in zip(regs, tmps): e(f'{op} {vr(r)}, {vr(r)}, {vr(tm)}')
    hM, hVar, hRho, hB, hR = t(40), t(41), t(42), t(43), t(44)
    def partial(Dd, src, sC, w, o1, o2, o3, P):
        e(f'v_readfirstlane_b32 {sr(sC)}, {vr(src)}')
        for k in range(4):
            e(f'v_pk_add_f32 {vr(Dd+2*k,2)}, {vr(src+2*k,2)}, {sr(sC,2)} op_sel_hi:[1,0] neg_lo:[0,1] neg_hi:[0,1]')
        e(f'''v_pk_add_f32 {vr(P,2)}, {vr(Dd,2)}, {vr(Dd+2,2)}
        v_pk_mul_f32 {vr(P+2,2)}, {vr(Dd,2)}, {vr(Dd,2)}
        v_pk_add_f32 {vr(P+4,2)}, {vr(Dd+4,2)}, {vr(Dd+6,2)}''')
        if w is not None: e(f'v_pk_mul_f32 {vr(P+6,2)}, {vr(Dd,2)}, {vr(w,2)}')
        for k in range(1, 4):
            e(f'v_pk_fma_f32 {vr(P+2,2)}, {vr(Dd+2*k,2)}, {vr(Dd+2*k,2)}, {vr(P+2,2)}')
            if w is not None: e(f'v_pk_fma_f32 {vr(P+6,2)}, {vr(Dd+2*k,2)}, {vr(w+2*k,2)}, {vr(P+6,2)}')
            if k == 1: e(f'v_pk_add_f32 {vr(P,2)}, {vr(P,2)}, {vr(P+4,2)}')
        e(f'v_add_f32 {vr(o1)}, {vr(P)}, {vr(P+1)}\nv_add_f32 {vr(o2)}, {vr(P+2)}, {vr(P+3)}')
        if w is not None: e(f'v_add_f32 {vr(o3)}, {vr(P+6)}, {vr(P+7)}')
    def moments(S1, S2):
        e(f'''v_mul_f32 {vr(hM)}, {fbits(1/512)}, {vr(S1)}
        v_mul_f32 {vr(S2)}, {fbits(1/512)}, {vr(S2)}
        v_fma_f32 {vr(hVar)}, -{vr(hM)}, {vr(hM)}, {vr(S2)}
        v_max_f32 {vr(hVar)}, 0, {vr(hVar)}
        v_add_f32 {vr(S2)}, {fbits(1e-5)}, {vr(hVar)}
        v_rsq_f32 {vr(hRho)}, {vr(S2)}''')
    def stats2(with_r):
        a1_, a2_, a3_, b1_, b2_, b3_ = t(16), t(17), t(18), t(19), t(20), t(21)
        partial(DU, XU, sCu, WU if with_r else None, a1_, a2_, a3_, t(24))
        partial(DV, XV, sCv, WV if with_r else None, b1_, b2_, b3_, t(32))
        pairs = [(a1_, b1_), (a2_, b2_)] + ([(a3_, b3_)] if with_r else [])
        for x, y in pairs: e(f'v_permlane32_swap_b32 {vr(x)}, {vr(y)}')
        for x, y in pairs: e(f'v_add_f32 {vr(x)}, {vr(x)}, {vr(y)}')
        half_reduce([x for x, _ in pairs], [y for _, y in pairs])
        moments(a1_, a2_)
        if with_r: e(f'v_fma_f32 {vr(a3_)}, -{vr(hM)}, {sr(sSW)}, {vr(a3_)}')
        e(f'v_mul_f32 {vr(hB)}, -{vr(hM)}, {vr(hRho)}')
        if with_r: e(f'v_mul_f32 {vr(hR)}, {vr(hRho)}, {vr(a3_)}')
    def stats1(src, Dd, dst):
        partial(Dd, src, sCu, None, t(16), t(17), None, t(24))
        wave_reduce([t(16), t(17)], [t(18), t(19)])
        moments(t(16), t(17))
        e(f'''v_readfirstlane_b32 {sr(sKu)}, {vr(hRho)}
        v_mul_f32 {vr(hB)}, -{vr(hM)}, {vr(hRho)}
        v_readfirstlane_b32 {sr(sKu+1)}, {vr(hB)}''')
        for k in range(4): e(f'v_pk_fma_f32 {vr(dst+2*k,2)}, {vr(Dd+2*k,2)}, {sr(sKu,2)}, {sr(sKu,2)} {PKB}')
    def residual_coeffs():
        e(f'''v_mov_b32 {vr(t(22))}, {sr(sCu)}
        v_mov_b32 {vr(t(23))}, {sr(sCv)}
        v_cmp_gt_u32 vcc, 32, {vr(vL)}
        v_add_f32 {vr(t(21))}, 1.0, {vr(hRho)}
        v_cndmask_b32 {vr(t(22))}, {vr(t(23))}, {vr(t(22))}, vcc
        v_add_f32 {vr(t(22))}, {vr(t(22))}, {vr(hB)}
        v_readlane_b32 {sr(sAu)}, {vr(t(21))}, 0
        v_readlane_b32 {sr(sAv)}, {vr(t(21))}, 32
        v_readlane_b32 {sr(sAu+1)}, {vr(t(22))}, 0
        v_readlane_b32 {sr(sAv+1)}, {vr(t(22))}, 32''')
    def residual_update(dU, dV):
        for k in range(4): e(f'v_pk_fma_f32 {vr(dU+2*k,2)}, {vr(DU+2*k,2)}, {sr(sAu,2)}, {sr(sAu,2)} {PKB}')
        for k in range(4): e(f'v_pk_fma_f32 {vr(dV+2*k,2)}, {vr(DV+2*k,2)}, {sr(sAv,2)}, {sr(sAv,2)} {PKB}')
    def norm_coeffs(scale, bias):
        e(f'''v_readlane_b32 {sr(sKu)}, {vr(scale)}, 0
        v_readlane_b32 {sr(sKu+1)}, {vr(bias)}, 0
        v_readlane_b32 {sr(sKv)}, {vr(scale)}, 32
        v_readlane_b32 {sr(sKv+1)}, {vr(bias)}, 32''')
    GG = t(16)
    def make_g():
        for k in range(4): e(f'v_pk_fma_f32 {vr(GG+2*k,2)}, {vr(DU+2*k,2)}, {sr(sKu,2)}, {sr(sKu,2)} {PKB}')
        for k in range(4): e(f'v_pk_fma_f32 {vr(GG+2*k,2)}, {vr(DV+2*k,2)}, {sr(sKv,2)}, {vr(GG+2*k,2)} op_sel_hi:[1,0,1]')
    def write_n(src, tmp):
        for k in range(4): e(f'v_cvt_pk_f16_f32 {vr(tmp+k)}, {vr(src+2*k)}, {vr(src+2*k+1)}')
        e(f'ds_write_b128 {vr(lRow)}, {vr(tmp,4)} offset:{GIMG}')
    def write_r(src, tmp):
        e(f'''v_mov_b32_dpp {vr(tmp+4)}, {vr(src)} wave_rol:1 {DPP}
        v_cvt_pk_f16_f32 {vr(tmp+1)}, {vr(src+6)}, {vr(src+5)}
        v_cvt_pk_f16_f32 {vr(tmp+2)}, {vr(src+4)}, {vr(src+3)}
        v_cvt_pk_f16_f32 {vr(tmp+3)}, {vr(src+2)}, {vr(src+1)}
        v_cvt_pk_f16_f32 {vr(tmp)}, {vr(tmp+4)}, {vr(src+7)}
        ds_write_b128 {vr(lRw)}, {vr(tmp,4)}''')
    def core(A, O):
        Dr = [t(0), t(8)]; Di = [t(4), t(12)]
        for Tt in range(2):
            e(f'v_mfma_f32_16x16x32_f16 {vr(Dr[Tt],4)}, {vr(A,4)}, {vr(RB1+(2*Tt)*4,4)}, 0')
            e(f'v_mfma_f32_16x16x32_f16 {vr(Di[Tt],4)}, {vr(A,4)}, {vr(RB1+(2*Tt+1)*4,4)}, 0')
        Bo = [t(16), t(20)]; br, bi = t(24), t(28)
        for Tt in range(2):
            for h in range(2):
                c = vr(RC+4*Tt+2*h, 2); s_ = vr(RS+4*Tt+2*h, 2)
                dr = vr(Dr[Tt]+2*h, 2); di = vr(Di[Tt]+2*h, 2)
                e(f'''v_pk_mul_f32 {vr(br+2*h,2)}, {dr}, {c}
                v_pk_mul_f32 {vr(bi+2*h,2)}, {di}, {c}
                v_pk_fma_f32 {vr(br+2*h,2)}, {di}, {s_}, {vr(br+2*h,2)}
                v_pk_fma_f32 {vr(bi+2*h,2)}, {dr}, {s_}, {vr(bi+2*h,2)} neg_lo:[1,0,0] neg_hi:[1,0,0]''')
            e(f'''v_cvt_pk_f16_f32 {vr(Bo[Tt])}, {vr(br)}, {vr(br+1)}
            v_cvt_pk_f16_f32 {vr(Bo[Tt]+1)}, {vr(br+2)}, {vr(br+3)}
            v_cvt_pk_f16_f32 {vr(Bo[Tt]+2)}, {vr(bi)}, {vr(bi+1)}
            v_cvt_pk_f16_f32 {vr(Bo[Tt]+3)}, {vr(bi+2)}, {vr(bi+3)}''')
            e(f'v_mfma_f32_16x16x32_f16 {vr(O+4*Tt,4)}, {vr(RA2,4)}, {vr(Bo[Tt],4)}, 0')

    CA, CO = t(32), t(36)
    def transform(dst_off, tagged=False, pre_core=None, post_scatter=None, pre_store=None):
        write_n(GG, t(24))
        e(f"""s_waitcnt lgkmcnt(0)
        ds_read_b64_tr_b16 {vr(CA,2)}, {vr(lTr)} offset:{GIMG}
        ds_read_b64_tr_b16 {vr(CA+2,2)}, {vr(lTr)} offset:{GIMG+128}""")
        if pre_core: pre_core()
        e('s_waitcnt lgkmcnt(0)')
        core(CA, CO)
        for k in range(4): e(f'v_cvt_pk_f16_f32 {vr(t(44)+k)}, {vr(CO+2*k)}, {vr(CO+2*k+1)}')
        for Tt in range(2):
            for i in range(4):
                op = 'ds_write_b16' if i % 2 == 0 else 'ds_write_b16_d16_hi'
                e(f'{op} {vr(lH+Tt)}, {vr(t(44) + 2*Tt + i//2)} offset:{512*i}')
        e(f'ds_write_b16_d16_hi {vr(lHf)}, {vr(t(45))}\nds_write_b16_d16_hi {vr(lHf+1)}, {vr(t(45))}')
        if post_scatter: post_scatter()
        if tagged:
            e(f"""v_lshlrev_b32 {vr(t(8))}, 3, v0
            s_lshl_b32 {sr(sT)}, {sr(sRho)}, 13
            v_add_u32 {vr(t(9))}, {sr(sT)}, {vr(lG)}""")
            for k in (1, 3, 5, 7): e(f'v_mov_b32 {vr(t(k))}, {sr(sTag)}')
            if pre_store: pre_store()
            e(f"""s_waitcnt lgkmcnt(0)
            s_barrier
            ds_read_b32 {vr(t(0))}, {vr(t(8))} offset:{HIMG}
            ds_read_b32 {vr(t(2))}, {vr(t(8))} offset:{HIMG+4}
            ds_read_b32 {vr(t(4))}, {vr(t(8))} offset:{HIMG+2048}
            ds_read_b32 {vr(t(6))}, {vr(t(8))} offset:{HIMG+2052}
            s_mov_b32 {sr(sOff)}, {dst_off}
            s_mov_b32 {sr(sT)}, {dst_off+4096}
            s_waitcnt lgkmcnt(2)
            buffer_store_dwordx4 {vr(t(0),4)}, {vr(t(9))}, {sr(sWS,4)}, {sr(sOff)} offen sc1
            s_waitcnt lgkmcnt(0)
            buffer_store_dwordx4 {vr(t(4),4)}, {vr(t(9))}, {sr(sWS,4)}, {sr(sT)} offen sc1""")
        else:
            if pre_store: pre_store()
            e(f"""s_waitcnt lgkmcnt(0)
            s_barrier
            ds_read_b128 {vr(t(0),4)}, {vr(lG)} offset:{HIMG}
            s_mov_b32 {sr(sOff)}, {dst_off}
            s_waitcnt lgkmcnt(0)
            buffer_store_dwordx4 {vr(t(0),4)}, {vr(aP16)}, {sr(sWS,4)}, {sr(sOff)} offen sc1""")

    def affine_from_x(sx1x0_u, sx1x0_v, sKu_, sKv_, outU, outV):
        for (xx, cc, kk, oo) in ((sx1x0_u, sCu, sKu_, outU), (sx1x0_v, sCv, sKv_, outV)):
            if xx is None:
                e(f"""v_mov_b32 {vr(t(44))}, {sr(kk)}
                v_mov_b32 {vr(t(45))}, {sr(kk+1)}
                v_fma_f32 {vr(t(45))}, -{vr(t(44))}, {sr(cc)}, {vr(t(45))}""")
            else:
                e(f"""v_rcp_f32 {vr(t(44))}, {sr(xx)}
                v_mov_b32 {vr(t(45))}, {sr(kk+1)}
                v_mul_f32 {vr(t(44))}, {sr(kk)}, {vr(t(44))}
                v_fma_f32 {vr(t(45))}, -{vr(t(44))}, {sr(xx+1)}, {vr(t(45))}""")
            e(f'v_readfirstlane_b32 {sr(oo)}, {vr(t(44))}\nv_readfirstlane_b32 {sr(oo+1)}, {vr(t(45))}')

    def special_k(dst_off, after_residual):
        ln = g.lab('nok')
        e(f's_cmp_lg_u32 {sr(sRowU)}, 0\ns_cbranch_scc1 {ln}')
        affine_from_x(sAu if after_residual else None, sAv if after_residual else None, sKu, sKv, sH, sH+2)
        ZU, ZV = t(0), t(8)
        for k in range(4): e(f'v_pk_fma_f32 {vr(ZU+2*k,2)}, {vr(XU+2*k,2)}, {sr(sH,2)}, {sr(sH,2)} {PKB}')
        for k in range(4): e(f'v_pk_fma_f32 {vr(ZV+2*k,2)}, {vr(XV+2*k,2)}, {sr(sH+2,2)}, {sr(sH+2,2)} {PKB}')
        write_r(ZU, t(16)); write_n(ZV, t(24))
        A, B = CA, t(40)
        e(f"""s_waitcnt lgkmcnt(0)
        ds_read_b64_tr_b16 {vr(A,2)}, {vr(lTr)} offset:{RIMG}
        ds_read_b64_tr_b16 {vr(B,2)}, {vr(lTr)} offset:{GIMG}
        ds_read_b64_tr_b16 {vr(A+2,2)}, {vr(lTr)} offset:{RIMG+128}
        ds_read_b64_tr_b16 {vr(B+2,2)}, {vr(lTr)} offset:{GIMG+128}
        s_waitcnt lgkmcnt(0)""")
        for k in range(4): e(f'v_pk_add_f16 {vr(A+k)}, {vr(A+k)}, {vr(B+k)} neg_lo:[0,1] neg_hi:[0,1]')
        core(A, CO)
        for k in range(4): e(f'v_pk_mul_f32 {vr(CO+2*k,2)}, {vr(CO+2*k,2)}, {sr(sT2 if False else sM2,2)} op_sel_hi:[1,0]' if False else f'v_mul_f32 {vr(CO+2*k)}, {fbits(1/16)}, {vr(CO+2*k)}\nv_mul_f32 {vr(CO+2*k+1)}, {fbits(1/16)}, {vr(CO+2*k+1)}')
        for k in range(4): e(f'v_cvt_pk_f16_f32 {vr(t(44)+k)}, {vr(CO+2*k)}, {vr(CO+2*k+1)}')
        e(f"""v_lshl_add_u32 {vr(t(0))}, {vr(vQ)}, 7, {vr(vN)}
        v_lshlrev_b32 {vr(t(0))}, 1, {vr(t(0))}
        v_sub_u32 {vr(t(1))}, {1024-32-192}, {vr(t(0))}
        v_mov_b32 {vr(t(2))}, 512
        s_mov_b32 exec_lo, -1
        s_mov_b32 exec_hi, 0""")
        for Tt in range(2):
            for i in range(4):
                op = 'ds_write_b16' if i % 2 == 0 else 'ds_write_b16_d16_hi'
                e(f'{op} {vr(t(0))}, {vr(t(44)+2*Tt+i//2)} offset:{KIMG + 32*Tt + 64*i}')
                e(f'{op} {vr(t(1))}, {vr(t(44)+2*Tt+i//2)} offset:{KIMG + 32*(1-Tt) + 64*(3-i)}')
        e(f"""s_mov_b32 exec_lo, 0
        s_mov_b32 exec_hi, 0x00010000
        ds_write_b16_d16_hi {vr(t(2))}, {vr(t(45))} offset:{KIMG}
        s_mov_b64 exec, -1
        v_lshlrev_b32 {vr(t(3))}, 4, {vr(vL)}
        s_waitcnt lgkmcnt(0)
        ds_read_b128 {vr(t(4),4)}, {vr(t(3))} offset:{KIMG}
        s_mov_b32 {sr(sOff)}, {dst_off}
        s_waitcnt lgkmcnt(0)
        buffer_store_dwordx4 {vr(t(4),4)}, {vr(t(3))}, {sr(sWS,4)}, {sr(sOff)} offen sc1
        {ln}:""")

    PC = t(40)
    def column_load(src_off):
        e(f's_mov_b32 {sr(sOff)}, {src_off}')
        e(ws_load_text(4, PC, aS16, sr(sOff)))
    def column(src_off, dst_off, preloaded, tagged=False):
        P = PC
        e(f's_mov_b32 {sr(sOff)}, {src_off}')
        if tagged:
            P = t(32); A2 = t(44)
            e(f'''v_lshrrev_b32 {vr(t(31))}, 1, v0
            v_lshlrev_b32 {vr(t(31))}, 13, {vr(t(31))}
            v_and_b32 {vr(t(30))}, 1, v0
            v_lshl_add_u32 {vr(t(31))}, {vr(t(30))}, 4, {vr(t(31))}
            s_lshl_b32 {sr(sT)}, {sr(sRho)}, 5
            v_add_u32 {vr(t(31))}, {sr(sT)}, {vr(t(31))}
            s_add_u32 {sr(sT3)}, {sr(sOff)}, {128*8192}''')
            poll(ws_load_text(4, P, t(31), sr(sOff)) + '\n' + ws_load_text(4, P+4, t(31), sr(sT3)), ('tag', P))
            stamp('col data')
            for k in range(2):
                e(f'''ds_write_b16 {vr(A2+2*k)}, {vr(P+4*k)}
                ds_write_b16_d16_hi {vr(A2+2*k+1)}, {vr(P+4*k)} offset:16
                ds_write_b16 {vr(A2+2*k+1)}, {vr(P+4*k+2)} offset:32
                ds_write_b16_d16_hi {vr(A2+2*k+1)}, {vr(P+4*k+2)} offset:48''')
            e('s_waitcnt lgkmcnt(0)\ns_barrier')
        else:
            poll(ws_load_text(4, P, aS16, sr(sOff)), range(P, P+4), preloaded=preloaded)
            d = [P, P+1, P+2, P+3]
            stamp('col data')
            e(f"""ds_write_b16 {vr(lCa)}, {vr(d[0])}
            ds_write_b16_d16_hi {vr(lCa)}, {vr(d[0])} offset:16
            ds_write_b16 {vr(lCa)}, {vr(d[1])} offset:32
            ds_write_b16_d16_hi {vr(lCa)}, {vr(d[1])} offset:48
            ds_write_b16 {vr(lCb)}, {vr(d[2])}
            ds_write_b16_d16_hi {vr(lCc)}, {vr(d[2])} offset:16
            ds_write_b16 {vr(lCc)}, {vr(d[3])} offset:32
            ds_write_b16_d16_hi {vr(lCc)}, {vr(d[3])} offset:48
            s_waitcnt lgkmcnt(0)
            s_barrier""")
        A = t(0)
        for k in range(4): e(f'ds_read_b128 {vr(A+4*k,4)}, {vr(lCr)} offset:{1024*k}')
        D1 = [t(16), t(20)]
        e(f"""s_waitcnt lgkmcnt(3)
        v_mfma_f32_16x16x32_f16 {vr(D1[0],4)}, {vr(A,4)}, {vr(CB1,4)}, 0
        s_waitcnt lgkmcnt(2)
        v_mfma_f32_16x16x32_f16 {vr(D1[0],4)}, {vr(A+4,4)}, {vr(CB1+4,4)}, {vr(D1[0],4)}
        s_waitcnt lgkmcnt(1)
        v_mfma_f32_16x16x32_f16 {vr(D1[1],4)}, {vr(A+8,4)}, {vr(CB1,4)}, 0
        s_waitcnt lgkmcnt(0)
        v_mfma_f32_16x16x32_f16 {vr(D1[1],4)}, {vr(A+12,4)}, {vr(CB1+4,4)}, {vr(D1[1],4)}""")
        Bb = t(24); br, bi = t(28), t(32); Bo = [t(0), t(4)]
        for Tt in range(2):
            k = CK + 16*Tt
            for i in range(4): e(f'v_mov_b32_dpp {vr(Bb+i)}, {vr(D1[Tt]+i)} row_ror:8 {DPP}')
            for h in range(2):
                e(f"""v_pk_mul_f32 {vr(br+2*h,2)}, {vr(D1[Tt]+2*h,2)}, {vr(k+2*h,2)}
                v_pk_mul_f32 {vr(bi+2*h,2)}, {vr(D1[Tt]+2*h,2)}, {vr(k+8+2*h,2)}""")
            for h in range(2):
                e(f"""v_pk_fma_f32 {vr(br+2*h,2)}, {vr(Bb+2*h,2)}, {vr(k+4+2*h,2)}, {vr(br+2*h,2)}
                v_pk_fma_f32 {vr(bi+2*h,2)}, {vr(Bb+2*h,2)}, {vr(k+12+2*h,2)}, {vr(bi+2*h,2)}""")
            e(f"""v_cvt_pk_f16_f32 {vr(Bo[Tt])}, {vr(br)}, {vr(br+1)}
            v_cvt_pk_f16_f32 {vr(Bo[Tt]+1)}, {vr(br+2)}, {vr(br+3)}
            v_cvt_pk_f16_f32 {vr(Bo[Tt]+2)}, {vr(bi)}, {vr(bi+1)}
            v_cvt_pk_f16_f32 {vr(Bo[Tt]+3)}, {vr(bi+2)}, {vr(bi+3)}""")
        O = [t(8), t(12)]
        e(f"""v_mfma_f32_16x16x32_f16 {vr(O[0],4)}, {vr(CA2,4)}, {vr(Bo[0],4)}, 0
        v_mfma_f32_16x16x32_f16 {vr(O[1],4)}, {vr(CA2+8,4)}, {vr(Bo[0],4)}, 0
        v_mfma_f32_16x16x32_f16 {vr(O[0],4)}, {vr(CA2+4,4)}, {vr(Bo[1],4)}, {vr(O[0],4)}
        v_mfma_f32_16x16x32_f16 {vr(O[1],4)}, {vr(CA2+12,4)}, {vr(Bo[1],4)}, {vr(O[1],4)}
        v_cvt_pk_f16_f32 {vr(t(16))}, {vr(O[0])}, {vr(O[0]+1)}
        v_cvt_pk_f16_f32 {vr(t(17))}, {vr(O[0]+2)}, {vr(O[0]+3)}
        ds_write_b16 {vr(lCo)}, {vr(t(16))}
        ds_write_b16_d16_hi {vr(lCo)}, {vr(t(16))} offset:256
        v_cvt_pk_f16_f32 {vr(t(18))}, {vr(O[1])}, {vr(O[1]+1)}
        v_cvt_pk_f16_f32 {vr(t(19))}, {vr(O[1]+2)}, {vr(O[1]+3)}
        ds_write_b16 {vr(lCo)}, {vr(t(17))} offset:512
        ds_write_b16_d16_hi {vr(lCo)}, {vr(t(17))} offset:768
        ds_write_b16 {vr(lCo+2)}, {vr(t(18))}
        ds_write_b16_d16_hi {vr(lCo+1)}, {vr(t(18))} offset:512
        ds_write_b16 {vr(lCo+1)}, {vr(t(19))} offset:256
        ds_write_b16_d16_hi {vr(lCo+1)}, {vr(t(19))}
        s_waitcnt lgkmcnt(0)
        s_barrier
        ds_read_b128 {vr(t(0),4)}, {vr(lG)} offset:{COUT}
        s_mov_b32 {sr(sOff)}, {dst_off}
        s_waitcnt lgkmcnt(0)
        buffer_store_dwordx4 {vr(t(0),4)}, {vr(aP16)}, {sr(sWS,4)}, {sr(sOff)} offen sc1""")

    YH, YV, KT = t(4), t(8), t(12)
    def row_input(src_off, kb, with_weights=False):
        P = t(0)
        lk = g.lab('nok')
        e(f's_bitcmp0_b32 {sr(sW)}, 0\ns_cbranch_scc1 {lk}')
        e(f'v_lshlrev_b32 {vr(t(16))}, 4, {vr(vL)}\ns_mov_b32 {sr(sT3)}, {kb}')
        e(ws_load_text(4, KT, t(16), sr(sT3)))
        e(f'{lk}:')
        e(f's_mov_b32 {sr(sOff)}, {src_off}')
        ld = ws_load_text(4, P, aS16, sr(sOff))
        if with_weights:
            lw = g.lab('now'); lw2 = g.lab('now2')
            e(ld)
            e(f's_cmp_ge_u32 {sr(sPhi)}, {NF}\ns_cbranch_scc1 {lw}')
            e(f's_mov_b32 {sr(sCnt)}, {sr(sT3)}')
            weight_loads()
            e(f's_mov_b32 {sr(sT3)}, {sr(sCnt)}\ns_mov_b32 {sr(sOff)}, {src_off}\ns_waitcnt vmcnt(6)\ns_branch {lw2}\n{lw}:\ns_waitcnt vmcnt(0)\n{lw2}:')
            poll(ld, range(P, P+4), preloaded=True)
        else:
            poll(ld, range(P, P+4))
        stamp('row data')
        def wr(slot, areg, off):
            op = 'ds_write_b16' if slot % 2 == 0 else 'ds_write_b16_d16_hi'
            e(f'{op} {vr(areg)}, {vr(P + slot//2)} offset:{YIMG + off}')
        for j in range(4): wr(j, lYd, j*1024)
        wr(4, lYm4, 0); wr(5, lYm, 3*1024); wr(6, lYm, 2*1024); wr(7, lYm, 1024)
        l0 = g.lab('not0')
        e(f's_cmp_lg_u32 {sr(sRho)}, 0\ns_cbranch_scc1 {l0}')
        wr(0, lYm, 0); wr(4, lYd, 4096)
        e(f"""{l0}:
        s_waitcnt lgkmcnt(0)
        s_barrier
        ds_read_b128 {vr(YH,4)}, {vr(lRow)} offset:{YIMG}""")
        lv = g.lab('yv')
        e(f"""s_cmp_lg_u32 {sr(sRowU)}, 0
        s_cbranch_scc1 {lv}
        ds_read_b128 {vr(YV,4)}, {vr(lRow)} offset:{YIMG+4096}
        {lv}:""")
        lk = g.lab('nok2')
        e(f's_bitcmp0_b32 {sr(sW)}, 0\ns_cbranch_scc1 {lk}')
        poll(ws_load_text(4, KT, t(16), sr(sT3)), range(KT, KT+4), preloaded=True)
        e('s_waitcnt lgkmcnt(0)')
        for k in range(4): e(f'v_pk_add_f16 {vr(YH+k)}, {vr(YH+k)}, {vr(KT+k)}')
        e(f'{lk}:\ns_waitcnt lgkmcnt(0)')
    def add_y(yu, yv):
        for k in range(4):
            e(f"""v_fma_mix_f32 {vr(XU+2*k)}, {vr(yu+k)}, {sr(s16)}, {vr(XU+2*k)} op_sel:[0,0,0] op_sel_hi:[1,0,0]
            v_fma_mix_f32 {vr(XU+2*k+1)}, {vr(yu+k)}, {sr(s16)}, {vr(XU+2*k+1)} op_sel:[1,0,0] op_sel_hi:[1,0,0]""")
        for k in range(4):
            e(f"""v_fma_mix_f32 {vr(XV+2*k)}, {vr(yv+k)}, {sr(s16)}, {vr(XV+2*k)} op_sel:[0,0,0] op_sel_hi:[1,0,0]
            v_fma_mix_f32 {vr(XV+2*k+1)}, {vr(yv+k)}, {sr(s16)}, {vr(XV+2*k+1)} op_sel:[1,0,0] op_sel_hi:[1,0,0]""")
    def add_y_pair():
        ls = g.lab('ysp'); lj = g.lab('yj')
        e(f's_cmp_eq_u32 {sr(sRowU)}, 0\ns_cbranch_scc1 {ls}')
        add_y(YH, YH)
        e(f'{lj}:')
        g.late.append((ls, lj))
    g.late = []

    def make_key():
        e(f"""v_ashrrev_i32 {vr(t(22))}, 31, {vr(hR)}
        v_or_b32 {vr(t(22))}, 0x80000000, {vr(t(22))}
        v_xor_b32 {vr(t(22))}, {vr(hR)}, {vr(t(22))}
        v_and_b32 {vr(t(22))}, 0xfffff800, {vr(t(22))}
        v_or_b32 {vr(t(22))}, {vr(vRowH)}, {vr(t(22))}
        v_readlane_b32 {sr(sKeyU)}, {vr(t(22))}, 0
        v_readlane_b32 {sr(sKeyV)}, {vr(t(22))}, 32
        s_lshl_b32 {sr(sT)}, {sr(sW)}, 2
        v_mov_b32 {vr(t(23))}, {sr(sT)}
        s_max_u32 {sr(sKey)}, {sr(sKeyU)}, {sr(sKeyV)}
        v_mov_b32 {vr(t(22))}, {sr(sKey)}
        ds_write_b32 {vr(t(23))}, {vr(t(22))} offset:{AM}""")
    def wg_best_read(tmp):
        e(f'v_mov_b32 {vr(tmp+4)}, 0\nds_read_b128 {vr(tmp,4)}, {vr(tmp+4)} offset:{AM}')
    def wg_best_header(cand, tmp):
        ln = g.lab('nohdr')
        e(f"""v_max3_u32 {vr(tmp)}, {vr(tmp)}, {vr(tmp+1)}, {vr(tmp+2)}
        v_max_u32 {vr(tmp)}, {vr(tmp)}, {vr(tmp+3)}
        v_readfirstlane_b32 {sr(sT)}, {vr(tmp)}
        s_cmp_eq_u32 {sr(sT)}, {sr(sKey)}
        s_cselect_b32 {sr(sSgn)}, 1, 0
        s_cbranch_scc0 {ln}
        s_lshl_b32 {sr(sT)}, {sr(sRho)}, 12
        s_add_u32 {sr(sOff)}, {sr(sT)}, {cand}
        v_mov_b32 {vr(tmp+1)}, {sr(sKey)}
        s_mov_b64 exec, 1
        buffer_store_dword {vr(tmp+1)}, {vr(tmp+4)}, {sr(sWS,4)}, {sr(sOff)} offen sc1
        s_mov_b64 exec, -1
        {ln}:""")
    def publish_rows(cand):
        ln = g.lab('nopub'); lv = g.lab('pubv'); lj = g.lab('pubj')
        e(f's_cmp_eq_u32 {sr(sSgn)}, 0\ns_cbranch_scc1 {ln}')
        e(f"""s_lshl_b32 {sr(sT)}, {sr(sRho)}, 12
        s_add_u32 {sr(sOff)}, {sr(sT)}, {cand}
        s_cmp_gt_u32 {sr(sKeyV)}, {sr(sKeyU)}
        s_cbranch_scc1 {lv}""")
        for (lab_, X_, A_, C_) in ((None, XU, sAu, sCu), (lv, XV, sAv, sCv)):
            if lab_: e(f'{lab_}:')
            e(f"""v_rcp_f32 {vr(t(0))}, {sr(A_)}
            v_mov_b32 {vr(t(1))}, {sr(A_+1)}
            v_mov_b32 {vr(t(2))}, {sr(A_)}
            v_add_f32 {vr(t(2))}, -1.0, {vr(t(2))}
            v_subrev_f32 {vr(t(3))}, {sr(C_)}, {vr(t(1))}
            v_mul_f32 {vr(t(4))}, {vr(t(2))}, {vr(t(0))}
            v_fma_f32 {vr(t(6))}, -{vr(t(4))}, {vr(t(1))}, {vr(t(3))}""")
            Z = t(8)
            for k in range(4): e(f'v_pk_fma_f32 {vr(Z+2*k,2)}, {vr(X_+2*k,2)}, {vr(t(4),2)}, {vr(t(6),2)} op_sel_hi:[1,0,0]')
            if X_ == XU:
                for k in range(4): e(f'v_cvt_pk_bf16_f32 {vr(t(16)+k)}, {vr(Z+2*k)}, {vr(Z+2*k+1)}')
                e(f"""v_lshlrev_b32 {vr(t(1))}, 4, {vr(vL)}
                v_lshlrev_b32 {vr(t(2))}, 5, {vr(vL)}
                buffer_store_dwordx4 {vr(t(16),4)}, {vr(t(1))}, {sr(sWS,4)}, {sr(sOff)} offen offset:128 sc1
                buffer_store_dwordx4 {vr(XU,4)}, {vr(t(2))}, {sr(sWS,4)}, {sr(sOff)} offen offset:1152 sc1
                buffer_store_dwordx4 {vr(XU+4,4)}, {vr(t(2))}, {sr(sWS,4)}, {sr(sOff)} offen offset:1168 sc1
                s_branch {lj}""")
            else:
                e(f"""v_mov_b32_dpp {vr(t(20))}, {vr(Z)} wave_rol:1 {DPP}
                v_mov_b32_dpp {vr(t(24))}, {vr(XV)} wave_rol:1 {DPP}
                v_cvt_pk_bf16_f32 {vr(t(17))}, {vr(Z+6)}, {vr(Z+5)}
                v_cvt_pk_bf16_f32 {vr(t(18))}, {vr(Z+4)}, {vr(Z+3)}
                v_cvt_pk_bf16_f32 {vr(t(19))}, {vr(Z+2)}, {vr(Z+1)}
                v_cvt_pk_bf16_f32 {vr(t(16))}, {vr(t(20))}, {vr(Z+7)}""")
                for k in range(1, 8): e(f'v_mov_b32 {vr(t(24)+k)}, {vr(XV+8-k)}')
                e(f"""v_lshlrev_b32 {vr(t(1))}, 4, {vr(vL)}
                v_sub_u32 {vr(t(1))}, 1008, {vr(t(1))}
                v_lshlrev_b32 {vr(t(2))}, 1, {vr(t(1))}
                buffer_store_dwordx4 {vr(t(16),4)}, {vr(t(1))}, {sr(sWS,4)}, {sr(sOff)} offen offset:128 sc1
                buffer_store_dwordx4 {vr(t(24),4)}, {vr(t(2))}, {sr(sWS,4)}, {sr(sOff)} offen offset:1152 sc1
                buffer_store_dwordx4 {vr(t(28),4)}, {vr(t(2))}, {sr(sWS,4)}, {sr(sOff)} offen offset:1168 sc1""")
        e(f'{lj}:\n{ln}:')

    def header_load(cand, K):
        e(f's_mov_b32 {sr(sOff)}, {cand}')
        e(ws_load_text(1, K, aHdr, sr(sOff)))
    def argmax(cand, K, after_check=None):
        e(f's_mov_b32 {sr(sOff)}, {cand}')
        poll(ws_load_text(1, K, aHdr, sr(sOff)), [K], preloaded=True, backoff=4)
        if after_check: after_check()
        wave_reduce([K], [t(1)], op='v_max_u32')
        e(f"""s_lshl_b32 {sr(sT)}, {sr(sW)}, 2
        v_mov_b32 {vr(t(1))}, {sr(sT)}
        ds_write_b32 {vr(t(1))}, {vr(K)} offset:{AM+32}
        v_mov_b32 {vr(t(1))}, 0
        s_waitcnt lgkmcnt(0)
        s_barrier
        ds_read_b128 {vr(t(4),4)}, {vr(t(1))} offset:{AM+32}
        s_waitcnt lgkmcnt(0)
        v_max3_u32 {vr(t(4))}, {vr(t(4))}, {vr(t(5))}, {vr(t(6))}
        v_max_u32 {vr(t(4))}, {vr(t(4))}, {vr(t(7))}
        v_readfirstlane_b32 {sr(sKey)}, {vr(t(4))}""")
        e(f"""s_and_b32 {sr(sStar)}, {sr(sKey)}, 2047
        s_lshr_b32 {sr(sT)}, {sr(sStar)}, 2
        s_sub_u32 {sr(sT2)}, 511, {sr(sT)}
        s_sub_u32 {sr(sT3)}, 512, {sr(sT)}
        s_and_b32 {sr(sT3)}, {sr(sT3)}, 255
        s_and_b32 {sr(sRec)}, {sr(sStar)}, 3
        s_cmp_eq_u32 {sr(sRec)}, 0
        s_cselect_b32 {sr(sT2)}, {sr(sT3)}, {sr(sT2)}
        s_cmp_lt_u32 {sr(sStar)}, 1024
        s_cselect_b32 {sr(sT2)}, {sr(sT)}, {sr(sT2)}
        s_lshl_b32 {sr(sRec)}, {sr(sT2)}, 12
        s_add_u32 {sr(sRec)}, {sr(sRec)}, {cand}""")
    def sigmoid_of_key():
        e(f"""s_and_b32 {sr(sT)}, {sr(sKey)}, 0xfffff800
        s_or_b32 {sr(sT)}, {sr(sT)}, 0x400
        s_ashr_i32 {sr(sT2)}, {sr(sT)}, 31
        s_not_b32 {sr(sT2)}, {sr(sT2)}
        s_or_b32 {sr(sT2)}, {sr(sT2)}, 0x80000000
        s_xor_b32 {sr(sT)}, {sr(sT)}, {sr(sT2)}
        v_mov_b32 {vr(vSig)}, {fbits(-1.4426950408889634)}
        v_mul_f32 {vr(vSig)}, {sr(sT)}, {vr(vSig)}
        v_exp_f32 {vr(vSig)}, {vr(vSig)}
        v_add_f32 {vr(vSig)}, 1.0, {vr(vSig)}
        v_rcp_f32 {vr(vSig)}, {vr(vSig)}""")

    def ffn_setup():
        e(f"""v_and_b32 {vr(t(0))}, 3, {vr(vN)}
        v_lshrrev_b32 {vr(t(1))}, 2, {vr(vN)}
        v_lshl_add_u32 {vr(t(1))}, {vr(vQ)}, 3, {vr(t(1))}
        s_lshl_b32 {sr(sT)}, {sr(sW)}, 7
        v_add_u32 {vr(t(1))}, {sr(sT)}, {vr(t(1))}
        v_lshlrev_b32 {vr(t(1))}, 4, {vr(t(1))}
        v_and_b32 {vr(t(3))}, 1, {vr(t(0))}
        v_lshl_add_u32 {vr(t(1))}, {vr(t(3))}, 3, {vr(t(1))}
        v_lshrrev_b32 {vr(t(3))}, 1, {vr(t(0))}
        v_lshl_add_u32 {vr(t(1))}, {vr(t(3))}, 13, {vr(t(1))}
        v_lshlrev_b32 {vr(t(2))}, 2, v0""")
        g.nbar_mark = sum(1 for l in g.L if l == 's_barrier')
        e('s_barrier')
        for kap in range(4):
            for h in range(2):
                e(f'ds_read_b64_tr_b16 {vr(FA+4*kap+2*h,2)}, {vr(t(1))} offset:{GU + kap*512 + h*64}')
        for f in range(8): e(f'ds_read_b32 {vr(t(8)+f)}, {vr(t(2))} offset:{DN + f*1024}')
        e('s_waitcnt lgkmcnt(0)')
        for f in range(8):
            e(f'v_lshlrev_b32 {vr(FD+2*f)}, 16, {vr(t(8)+f)}\nv_and_b32 {vr(FD+2*f+1)}, 0xffff0000, {vr(t(8)+f)}')
    def loader():
        e(f"""L_loader:
        s_cmp_ge_u32 {sr(sPhi)}, {NF}
        s_cbranch_scc1 L_end""")
        e(f"""s_movk_i32 {sr(sT3)}, 2752
        v_mul_lo_u32 {vr(t(0))}, {vr(vL)}, {sr(sT3)}
        s_lshl_b32 {sr(sT2)}, {sr(sPhi)}, 4
        v_add_u32 {vr(t(0))}, {sr(sT2)}, {vr(t(0))}
        v_lshlrev_b32 {vr(t(1))}, 4, {vr(vL)}
        s_sleep {opt.get('lsleep', 2)}""")
        for (ptr, lds) in ((kwg, GU), (kwu, GU + 8192)):
            srd(sT4, ptr, 1409024)
            for k in range(8):
                e(f"""s_mov_b32 m0, {lds + 1024*k}
                s_mov_b32 {sr(sOff)}, {64*2752*k}
                buffer_load_dwordx4 {vr(t(0))}, {sr(sT4,4)}, {sr(sOff)} offen lds""")
        srd(sT4, kwd, 1409024)
        e(f's_lshl_b32 {sr(sT2)}, {sr(sPhi)}, 13')
        for f in range(8):
            e(f"""s_mov_b32 m0, {DN + 1024*f}
            s_add_u32 {sr(sOff)}, {sr(sT2)}, {1024*f}
            buffer_load_dwordx4 {vr(t(1))}, {sr(sT4,4)}, {sr(sOff)} offen lds""")
        for k in range(g.nbar_mark): e('s_barrier')
        e('s_waitcnt vmcnt(0)\ns_barrier\nL_end:\ns_endpgm')

    XS = t(0)
    def xsel_text():
        return '\n'.join(f'buffer_load_dwordx4 {vr(XS+4*k,4)}, {vr(t(20))}, {sr(sWS,4)}, {sr(sRec)} offen offset:{128+64*k} sc1' for k in range(4))
    def xsel_load():
        e(f"""s_lshl_b32 {sr(sT)}, {sr(sW)}, 8
        v_lshlrev_b32 {vr(t(20))}, 4, {vr(vQ)}
        v_add_u32 {vr(t(20))}, {sr(sT)}, {vr(t(20))}""")
        e(xsel_text())
    def ffn(part):
        ln = g.lab('noffn')
        e(f's_cmp_ge_u32 {sr(sPhi)}, {NF}\ns_cbranch_scc1 {ln}')
        poll(xsel_text(), range(XS, XS+16), preloaded=True)
        Pp = t(16)
        for k in range(4):
            e(f'v_mfma_f32_16x16x32_bf16 {vr(Pp,4)}, {vr(FA+4*k,4)}, {vr(XS+4*k,4)}, {"0" if k==0 else vr(Pp,4)}')
        e(f"""v_lshlrev_b32 {vr(t(21))}, 6, {vr(vQ)}
        s_lshl_b32 {sr(sT)}, {sr(sW)}, 2
        v_add_u32 {vr(t(21))}, {sr(sT)}, {vr(t(21))}
        v_and_b32 {vr(t(22))}, 31, {vr(vL)}
        v_lshlrev_b32 {vr(t(22))}, 2, {vr(t(22))}
        s_mov_b32 exec_lo, 0x00010001
        s_mov_b32 exec_hi, 0x00010001""")
        for i in range(4): e(f'ds_write_b32 {vr(t(21))}, {vr(Pp+i)} offset:{FP + 16*i}')
        e(f"""s_mov_b64 exec, -1
        s_waitcnt lgkmcnt(0)
        s_barrier
        ds_read_b32 {vr(t(12))}, {vr(t(22))} offset:{FP}
        ds_read_b32 {vr(t(13))}, {vr(t(22))} offset:{FP+128}
        s_waitcnt lgkmcnt(0)""")
        gg, uu = t(12), t(13)
        for mod in ('quad_perm:[1,0,3,2]', 'quad_perm:[2,3,0,1]'):
            e(f'v_add_f32_dpp {vr(gg)}, {vr(gg)}, {vr(gg)} {mod} {DPP}\nv_add_f32_dpp {vr(uu)}, {vr(uu)}, {vr(uu)} {mod} {DPP}')
        e(f"""v_mul_f32 {vr(t(14))}, {fbits(-1.4426950408889634)}, {vr(gg)}
        v_exp_f32 {vr(t(14))}, {vr(t(14))}
        v_mul_f32 {vr(uu)}, {vr(uu)}, {vr(vSig)}
        v_add_f32 {vr(t(14))}, 1.0, {vr(t(14))}
        v_rcp_f32 {vr(t(14))}, {vr(t(14))}
        v_mul_f32 {vr(gg)}, {vr(gg)}, {vr(uu)}
        v_mul_f32 {vr(gg)}, {vr(gg)}, {vr(t(14))}""")
        for f in range(8): e(f'v_readlane_b32 {sr(sH+f)}, {vr(gg)}, {4*f}')
        acc = t(16)
        for f in range(8):
            sel = 'op_sel_hi:[1,0,1]' if f % 2 == 0 else 'op_sel:[0,1,0] op_sel_hi:[1,1,1]'
            if f == 0: e(f'v_pk_mul_f32 {vr(acc,2)}, {vr(FD,2)}, {sr(sH,2)} op_sel_hi:[1,0]')
            else: e(f'v_pk_fma_f32 {vr(acc,2)}, {vr(FD+2*f,2)}, {sr(sH + (f & ~1),2)}, {vr(acc,2)} {sel}')
        ws_store(2, acc, aP8, part)
        e(f'{ln}:')

    def reducer(part, final):
        ln = g.lab('nored')
        e(f"""s_sub_u32 {sr(sT3)}, {sr(sWg)}, {RED0}
        s_cmp_ge_u32 {sr(sT3)}, 32
        s_cbranch_scc1 {ln}
        v_lshrrev_b32 {vr(t(20))}, 2, v0
        v_lshlrev_b32 {vr(t(21))}, 11, {vr(t(20))}
        v_and_b32 {vr(t(22))}, 3, v0
        v_lshlrev_b32 {vr(t(22))}, 4, {vr(t(22))}
        s_lshl_b32 {sr(sT)}, {sr(sT3)}, 6
        v_add_u32 {vr(t(25))}, {sr(sT)}, {vr(t(22))}
        v_add_u32 {vr(t(21))}, {vr(t(21))}, {vr(t(25))}
        v_add_u32 {vr(t(23))}, {128*2048}, {vr(t(21))}
        v_mov_b32 {vr(t(24))}, 0x7f000000
        v_cmp_gt_u32 vcc, {NF-128}, {vr(t(20))}
        v_cndmask_b32 {vr(t(23))}, {vr(t(24))}, {vr(t(23))}, vcc
        s_mov_b32 {sr(sOff)}, {part}
        s_add_u32 {sr(sT2)}, {sr(sOff)}, {64*2048}""")
        A, B2, B3, B4 = t(0), t(4), t(8), t(12)
        ld = '\n'.join([ws_load_text(4, A, t(21), sr(sOff)), ws_load_text(4, B2, t(21), sr(sT2)), ws_load_text(4, B3, t(23), sr(sOff))])
        regs = list(range(A, A+12))
        if final:
            ld += '\n' + ws_load_text(4, B4, t(25), sr(sRec), 'offset:1152')
            regs += list(range(B4, B4+4))
        poll(ld, regs)
        for X_ in (B2, B3):
            e(f'v_pk_add_f32 {vr(A,2)}, {vr(A,2)}, {vr(X_,2)}\nv_pk_add_f32 {vr(A+2,2)}, {vr(A+2,2)}, {vr(X_+2,2)}')
        for sh in (4, 8):
            for i in range(4): e(f'v_add_f32_dpp {vr(A+i)}, {vr(A+i)}, {vr(A+i)} row_ror:{sh} {DPP}')
        for sw in ('v_permlane16_swap_b32', 'v_permlane32_swap_b32'):
            for i in range(4): e(f'v_mov_b32 {vr(B2+i)}, {vr(A+i)}')
            for i in range(4): e(f'{sw} {vr(A+i)}, {vr(B2+i)}')
            for i in range(4): e(f'v_add_f32 {vr(A+i)}, {vr(A+i)}, {vr(B2+i)}')
        e(f"""s_lshl_b32 {sr(sT)}, {sr(sW)}, 6
        v_add_u32 {vr(t(24))}, {sr(sT)}, {vr(t(22))}
        s_mov_b64 exec, 15
        ds_write_b128 {vr(t(24))}, {vr(A,4)} offset:{RED}
        s_mov_b64 exec, -1
        s_waitcnt lgkmcnt(0)
        s_barrier
        s_cmp_lg_u32 {sr(sW)}, 0
        s_cbranch_scc1 {ln}""")
        R = t(28)
        for w in range(4): e(f'ds_read_b128 {vr(R+4*w,4)}, {vr(t(22))} offset:{RED + 64*w}')
        e('s_waitcnt lgkmcnt(0)')
        e(f"""v_pk_add_f32 {vr(R,2)}, {vr(R,2)}, {vr(R+4,2)}
        v_pk_add_f32 {vr(R+2,2)}, {vr(R+2,2)}, {vr(R+6,2)}
        v_pk_add_f32 {vr(R+8,2)}, {vr(R+8,2)}, {vr(R+12,2)}
        v_pk_add_f32 {vr(R+10,2)}, {vr(R+10,2)}, {vr(R+14,2)}
        v_pk_add_f32 {vr(R,2)}, {vr(R,2)}, {vr(R+8,2)}
        v_pk_add_f32 {vr(R+2,2)}, {vr(R+2,2)}, {vr(R+10,2)}""")
        if final:
            e(f"""v_pk_add_f32 {vr(R,2)}, {vr(R,2)}, {vr(B4,2)}
            v_pk_add_f32 {vr(R+2,2)}, {vr(R+2,2)}, {vr(B4+2,2)}
            v_cvt_pk_bf16_f32 {vr(R)}, {vr(R)}, {vr(R+1)}
            v_cvt_pk_bf16_f32 {vr(R+1)}, {vr(R+2)}, {vr(R+3)}
            s_lshl_b32 {sr(sT)}, {sr(sStar)}, 10
            v_lshrrev_b32 {vr(t(25))}, 1, {vr(t(25))}
            v_add_u32 {vr(t(25))}, {sr(sT)}, {vr(t(25))}
            s_mov_b64 exec, 15
            buffer_store_dwordx2 {vr(R,2)}, {vr(t(25))}, {sr(sOUT,4)}, 0 offen sc1
            s_mov_b64 exec, -1""")
        else:
            e(f"""s_mov_b32 {sr(sOff)}, {UPD0}
            s_mov_b64 exec, 15
            buffer_store_dwordx4 {vr(R,4)}, {vr(t(25))}, {sr(sWS,4)}, {sr(sOff)} offen sc1
            s_mov_b64 exec, -1""")
        e(f'{ln}:')

    addr_misc()
    stamp('preamble')
    e(f's_waitcnt vmcnt({N_ALL-1})\nv_readfirstlane_b32 {sr(sTag)}, {vr(vCa)}\ns_add_u32 {sr(sTag)}, {sr(sTag)}, 1')
    if not opt.get('nohint'):
        lh = g.lab('nohint')
        e(f'''s_cmp_lt_u32 {sr(sWg)}, 248
        s_cbranch_scc1 {lh}
        s_cmp_lg_u32 {sr(sW)}, 0
        s_cbranch_scc1 {lh}
        s_and_b32 {sr(sT)}, {sr(sWg)}, 7
        s_lshl_b32 {sr(sT)}, {sr(sT)}, 8
        v_mov_b32 {vr(t(16))}, {sr(sT)}
        v_mov_b32 {vr(t(17))}, {sr(sTag)}
        s_mov_b64 exec, 1''')
        ws_store(1, t(17), t(16), HINT)
        e(f's_mov_b64 exec, -1\n{lh}:')
    stamp('x0')
    unpack_nat(XU, URAW); unpack_rev(XV, VRAW, t(16))
    stats2(False)
    norm_coeffs(hRho, hB)
    make_g()
    e(f's_waitcnt vmcnt({N_ALL - N_ROWTAB})')
    transform(HB0, tagged=True, pre_store=lambda: e(f's_waitcnt vmcnt({N_ALL - N_POISON})'))
    stamp('P1 stored')
    finish_here('P1')
    special_k(KB0, False)
    addr_ym4()
    poison_regs()
    e(f"""s_sub_u32 {sr(sT3)}, {sr(sWg)}, {RED0}
    s_lshl_b32 {sr(sT)}, {sr(sT3)}, 6
    v_lshlrev_b32 {vr(t(6))}, 2, v0
    v_add_u32 {vr(t(6))}, {sr(sT)}, {vr(t(6))}
    v_cmp_gt_u32 vcc, 16, v0
    s_cmp_lt_u32 {sr(sT3)}, 32
    s_cselect_b64 {sr(sEx,2)}, vcc, 0
    v_mov_b32 {vr(t(7))}, 0x7f000000
    v_cndmask_b32 {vr(t(6))}, {vr(t(7))}, {vr(t(6))}, {sr(sEx,2)}""")
    ws_store(4, PZ, aP16, HB1); ws_store(4, PZ, aP16, CAND0); ws_store(2, PZ, aP8, PART0); ws_store(1, PZ, t(6), UPD0)
    e(f'v_add_u32 {vr(t(39))}, {TOFF["addr2"]}, {vr(lG)}\nglobal_load_dwordx4 {vr(t(44),4)}, {vr(t(39))}, {sr(sPC,2)}')
    if not opt.get('nohint'):
        lh = g.lab('hw')
        e(f'''v_and_b32 {vr(vCa)}, 7, {vr(vL)}
        v_lshlrev_b32 {vr(vCa)}, 8, {vr(vCa)}
        s_cmp_lg_u32 {sr(sW)}, 0
        s_cbranch_scc1 {lh}
        s_mov_b32 {sr(sOff)}, {HINT}''')
        e(ws_load_text(1, vSa, vCa, sr(sOff)))
        e(f'{lh}:')
    col_consts()
    stamp('shadow1')
    if not opt.get('nohint'):
        lh = g.lab('hw2'); lp = g.lab('hp')
        e(f'''s_cmp_lg_u32 {sr(sW)}, 0
        s_cbranch_scc1 {lh}
        s_mov_b32 {sr(sCnt)}, 0
        s_mov_b32 {sr(sOff)}, {HINT}
        {lp}:
        s_waitcnt vmcnt(0)
        v_cmp_ne_u32 vcc, {sr(sTag)}, {vr(vSa)}
        s_cbranch_vccz {lh}
        s_add_u32 {sr(sCnt)}, {sr(sCnt)}, 1
        s_cmp_gt_u32 {sr(sCnt)}, {LIMIT}
        s_cbranch_scc1 {lh}
        s_sleep 4''')
        e(ws_load_text(1, vSa, vCa, sr(sOff)))
        e(f's_branch {lp}\n{lh}:\ns_waitcnt vmcnt(0)\ns_barrier')
    if opt.get('ack1'): e('s_waitcnt vmcnt(0)')
    stamp('hint')
    column(HB0, YB0, False, tagged=True)
    stamp('P2 stored')
    finish_here('P2')
    poison_regs()
    ws_store(4, PZ, aP16, YB1); ws_store(4, PZ, aP16, CAND1); ws_store(2, PZ, aP8, PART1)
    lnn = g.lab('nononce')
    e(f'''s_cmp_lg_u32 {sr(sRowU)}, 0
    s_cbranch_scc1 {lnn}
    v_mov_b32 {vr(t(0))}, {sr(sTag)}
    v_mov_b32 {vr(t(1))}, 0
    s_mov_b64 exec, 1''')
    ws_store(1, t(0), t(1), NONCE)
    e(f's_mov_b64 exec, -1\n{lnn}:')
    unpack_nat(WU, WURAW); unpack_rev(WV, WVRAW, t(16))
    e(f"""v_pk_add_f32 {vr(t(16),2)}, {vr(WU,2)}, {vr(WU+2,2)}
    v_pk_add_f32 {vr(t(18),2)}, {vr(WU+4,2)}, {vr(WU+6,2)}
    v_pk_add_f32 {vr(t(16),2)}, {vr(t(16),2)}, {vr(t(18),2)}
    v_add_f32 {vr(t(16))}, {vr(t(16))}, {vr(t(17))}""")
    wave_reduce([t(16)], [t(17)])
    e(f'v_readfirstlane_b32 {sr(sSW)}, {vr(t(16))}')
    stamp('shadow2')
    e('s_waitcnt vmcnt(0)')
    row_input(YB0, KB0)
    add_y_pair()
    stats2(True)
    make_key()
    residual_coeffs()
    e(f"""v_mul_f32 {vr(t(23))}, {vr(t(21))}, {vr(t(21))}
    v_mul_f32 {vr(t(23))}, {vr(t(23))}, {vr(hVar)}
    v_add_f32 {vr(t(23))}, {fbits(1e-5)}, {vr(t(23))}
    v_rsq_f32 {vr(t(23))}, {vr(t(23))}
    s_waitcnt lgkmcnt(0)
    s_barrier""")
    wg_best_read(t(24))
    e(f"""v_mul_f32 {vr(t(22))}, {vr(t(21))}, {vr(t(23))}
    v_mul_f32 {vr(t(23))}, -{vr(hM)}, {vr(t(22))}""")
    norm_coeffs(t(22), t(23))
    e('s_waitcnt lgkmcnt(0)')
    wg_best_header(CAND0, t(24))
    stamp('hdr0')
    make_g()
    residual_update(XU, XV)
    transform(HB1, post_scatter=lambda: publish_rows(CAND0))
    stamp('P3 stored')
    finish_here('P3')
    K = t(0)
    header_load(CAND0, vSig)
    lfs = g.lab('nosetup')
    e(f's_cmp_ge_u32 {sr(sPhi)}, {NF}\ns_cbranch_scc1 {lfs}')
    ffn_setup()
    e(f'{lfs}:')
    special_k(KB1, True)
    e(f's_waitcnt vmcnt(0)\nv_mov_b32 {vr(K)}, {vr(vSig)}')
    argmax(CAND0, K, after_check=lambda: column_load(HB1))
    stamp('argmax0')
    lb = g.lab('nobase')
    e(f"""s_cmp_ge_u32 {sr(sW)}, 2
    s_cbranch_scc1 {lb}
    v_lshlrev_b32 {vr(t(21))}, 5, {vr(vL)}
    buffer_load_dwordx4 {vr(FX,4)}, {vr(t(21))}, {sr(sWS,4)}, {sr(sRec)} offen offset:1152 sc1
    buffer_load_dwordx4 {vr(FX+4,4)}, {vr(t(21))}, {sr(sWS,4)}, {sr(sRec)} offen offset:1168 sc1
    {lb}:""")
    lb = g.lab('nox')
    e(f's_cmp_ge_u32 {sr(sPhi)}, {NF}\ns_cbranch_scc1 {lb}')
    xsel_load()
    e(f'{lb}:')
    sigmoid_of_key()
    e(f"""s_mul_i32 {sr(sT)}, {sr(sRowU)}, {sr(sStar)}
    s_and_b32 {sr(sT)}, {sr(sT)}, 2047
    v_cvt_f32_u32 {vr(vCa)}, {sr(sT)}
    v_mul_f32 {vr(vCa)}, {fbits(1/2048)}, {vr(vCa)}
    v_sin_f32 {vr(vSa)}, {vr(vCa)}
    v_cos_f32 {vr(vCa)}, {vr(vCa)}
    v_mul_f32 {vr(vSa)}, {fbits(1/32)}, {vr(vSa)}
    v_mul_f32 {vr(vCa)}, {fbits(1/32)}, {vr(vCa)}
    v_cvt_pk_f16_f32 {vr(vSa)}, {vr(vSa)}, {vr(vSa)}
    v_cvt_pk_f16_f32 {vr(vCa)}, {vr(vCa)}, {vr(vCa)}
    s_waitcnt vmcnt(0)""")
    stamp('xsel')
    ffn(PART0)
    stamp('ffn0')
    column(HB1, YB1, True)
    stamp('P4 stored')
    finish_here('P4')
    reducer(PART0, False)
    stamp('red0')
    lb = g.lab('nobase')
    e(f's_cmp_ge_u32 {sr(sW)}, 2\ns_cbranch_scc1 {lb}')
    e(f'v_lshlrev_b32 {vr(t(21))}, 5, {vr(vL)}')
    poll(f'buffer_load_dwordx4 {vr(FX,4)}, {vr(t(21))}, {sr(sWS,4)}, {sr(sRec)} offen offset:1152 sc1\n'
         f'buffer_load_dwordx4 {vr(FX+4,4)}, {vr(t(21))}, {sr(sWS,4)}, {sr(sRec)} offen offset:1168 sc1', range(FX, FX+8), preloaded=True)
    stats1(FX, t(0), FO)
    e(f'{lb}:')
    e('s_waitcnt vmcnt(0)')
    row_input(YB1, KB1)
    stamp('y1 read')
    lj = g.lab('fixj'); lq = g.lab('fix'); lu = g.lab('ownu'); lv = g.lab('ownv')
    U = t(16)
    updld = lambda areg: (ws_load_text(4, U, areg, sr(sOff)) + '\n' + ws_load_text(4, U+4, areg, sr(sOff), 'offset:16'))
    def owner_add():
        l1 = g.lab('nu'); l2 = g.lab('nv')
        e(f's_cmp_lg_u32 {sr(sStar)}, {sr(sRowU)}\ns_cbranch_scc1 {l1}')
        for k in range(4): e(f'v_pk_add_f32 {vr(XU+2*k,2)}, {vr(XU+2*k,2)}, {vr(U+2*k,2)}')
        e(f'{l1}:')
    e(f"""v_lshlrev_b32 {vr(t(44))}, 5, {vr(vL)}
    s_mov_b32 {sr(sOff)}, {UPD0}""")
    lnv = g.lab('notv')
    e(f"""s_cmp_lg_u32 {sr(sStar)}, {sr(sRowV)}
    s_cbranch_scc1 {lnv}
    v_sub_u32 {vr(t(45))}, {63*32}, {vr(t(44))}""")
    poll(updld(t(45)), range(U, U+8), backoff=4)
    e(f'v_mov_b32_dpp {vr(t(46))}, {vr(U)} wave_ror:1 {DPP}')
    for k in range(1, 8): e(f'v_add_f32 {vr(XV+k)}, {vr(XV+k)}, {vr(U+8-k)}')
    e(f'v_add_f32 {vr(XV)}, {vr(XV)}, {vr(t(46))}\n{lnv}:')
    e(f"""s_cmp_lt_u32 {sr(sW)}, 2
    s_cbranch_scc1 {lq}
    s_cmp_lg_u32 {sr(sStar)}, {sr(sRowU)}
    s_cbranch_scc1 {lj}""")
    poll(updld(t(44)), range(U, U+8), backoff=4)
    owner_add()
    e(f's_branch {lj}\n{lq}:')
    poll(updld(t(44)), range(U, U+8), backoff=4)
    stamp('upd')
    owner_add()
    for k in range(4): e(f'v_pk_add_f32 {vr(FX+2*k,2)}, {vr(FX+2*k,2)}, {vr(U+2*k,2)}')
    stats1(FX, t(32), FX)
    for k in range(4): e(f'v_pk_add_f32 {vr(FX+2*k,2)}, {vr(FX+2*k,2)}, {vr(FO+2*k,2)} neg_lo:[0,1] neg_hi:[0,1]')
    write_n(FX, t(24)); write_r(FX, t(40))
    A, B = CA, t(40)
    for k in range(8): e(f'v_mov_b32 {vr(FO+k)}, {vr(YH+k)}')
    e(f"""s_mov_b32 {sr(sT)}, 0x3c003c00
    s_cmp_eq_u32 {sr(sW)}, 0
    s_cselect_b32 {sr(sSgn)}, {sr(sT)}, 0xbc00bc00
    s_waitcnt lgkmcnt(0)
    ds_read_b64_tr_b16 {vr(A,2)}, {vr(lTr)} offset:{GIMG}
    ds_read_b64_tr_b16 {vr(B,2)}, {vr(lTr)} offset:{RIMG}
    ds_read_b64_tr_b16 {vr(A+2,2)}, {vr(lTr)} offset:{GIMG+128}
    ds_read_b64_tr_b16 {vr(B+2,2)}, {vr(lTr)} offset:{RIMG+128}
    s_waitcnt lgkmcnt(0)""")
    for k in range(4): e(f'v_pk_fma_f16 {vr(A+k)}, {vr(B+k)}, {sr(sSgn)}, {vr(A+k)}')
    core(A, CO)
    for k in range(4): e(f'v_cvt_pk_f16_f32 {vr(t(44)+k)}, {vr(CO+2*k)}, {vr(CO+2*k+1)}')
    e(f"""v_lshl_add_u32 {vr(t(0))}, {vr(vQ)}, 7, {vr(vN)}
    v_lshlrev_b32 {vr(t(1))}, 7, {vr(vQ)}
    v_sub_u32 {vr(t(1))}, {32*23}, {vr(t(1))}
    v_add_u32 {vr(t(1))}, {vr(t(1))}, {vr(vN)}
    v_cmp_gt_u32 vcc, 2, {vr(vQ)}
    v_cndmask_b32 {vr(t(0))}, {vr(t(1))}, {vr(t(0))}, vcc
    v_lshlrev_b32 {vr(t(0))}, 1, {vr(t(0))}
    s_lshl_b32 {sr(sT)}, {sr(sW)}, 10
    v_add_u32 {vr(t(0))}, {sr(sT)}, {vr(t(0))}
    v_mov_b32 {vr(t(2))}, 64
    v_mov_b32 {vr(t(3))}, -64
    v_cndmask_b32 {vr(t(2))}, {vr(t(3))}, {vr(t(2))}, vcc""")
    for i in range(4):
        op = 'ds_write_b16' if i % 2 == 0 else 'ds_write_b16_d16_hi'
        for Tt in range(2):
            e(f'{op} {vr(t(0))}, {vr(t(44)+2*Tt+i//2)} offset:{RIMG + 2048 + 32*Tt}')
        if i < 3: e(f'v_add_u32 {vr(t(0))}, {vr(t(0))}, {vr(t(2))}')
    for k in range(8): e(f'v_mov_b32 {vr(YH+k)}, {vr(FO+k)}')
    e(f"""{lj}:
    s_waitcnt lgkmcnt(0)
    s_barrier
    v_lshlrev_b32 {vr(t(0))}, 4, {vr(vL)}
    ds_read_b128 {vr(t(16),4)}, {vr(t(0))} offset:{RIMG+2048}
    ds_read_b128 {vr(t(20),4)}, {vr(t(0))} offset:{RIMG+2048+1024}
    s_waitcnt lgkmcnt(1)""")
    lsp = g.lab('fsp')
    for k in range(4): e(f'v_pk_fma_f16 {vr(YH+k)}, {vr(t(16)+k)}, {vr(vCa)}, {vr(YH+k)}')
    e(f'''s_cmp_lg_u32 {sr(sRowU)}, 0
    s_cbranch_scc1 {lsp}
    s_mov_b32 {sr(sT)}, 0x28002800
    s_bitcmp0_b32 {sr(sStar)}, 0
    s_cselect_b32 {sr(sT)}, {sr(sT)}, 0xa800a800''')
    for k in range(4): e(f'v_pk_fma_f16 {vr(YV+k)}, {vr(t(16)+k)}, {sr(sT)}, {vr(YV+k)}')
    e(f'{lsp}:\ns_waitcnt lgkmcnt(0)')
    for k in range(4): e(f'v_pk_fma_f16 {vr(YH+k)}, {vr(t(20)+k)}, {vr(vSa)}, {vr(YH+k)}')
    add_y_pair()
    stamp('fixed')
    stats2(True)
    make_key()
    residual_coeffs()
    e('s_waitcnt lgkmcnt(0)\ns_barrier')
    wg_best_read(t(24))
    residual_update(XU, XV)
    e('s_waitcnt lgkmcnt(0)')
    wg_best_header(CAND1, t(24))
    publish_rows(CAND1)
    e('s_waitcnt vmcnt(0)\ns_barrier')
    stamp('cand1')
    header_load(CAND1, K)
    e('s_waitcnt vmcnt(0)')
    argmax(CAND1, K)
    stamp('argmax1')
    lb = g.lab('nox')
    e(f's_cmp_ge_u32 {sr(sPhi)}, {NF}\ns_cbranch_scc1 {lb}')
    xsel_load()
    e(f'{lb}:')
    sigmoid_of_key()
    ln = g.lab('noout')
    e(f's_cmp_eq_u32 {sr(sStar)}, {sr(sRowU)}\ns_cbranch_scc1 {ln}')
    for k in range(4): e(f'v_cvt_pk_bf16_f32 {vr(t(24)+k)}, {vr(XU+2*k)}, {vr(XU+2*k+1)}')
    e(f'buffer_store_dwordx4 {vr(t(24),4)}, {vr(aU)}, {sr(sOUT,4)}, 0 offen sc1\n{ln}:')
    ln = g.lab('noout')
    e(f's_cmp_eq_u32 {sr(sStar)}, {sr(sRowV)}\ns_cbranch_scc1 {ln}')
    e(f"""v_mov_b32_dpp {vr(t(32))}, {vr(XV)} wave_rol:1 {DPP}
    v_cvt_pk_bf16_f32 {vr(t(29))}, {vr(XV+6)}, {vr(XV+5)}
    v_cvt_pk_bf16_f32 {vr(t(30))}, {vr(XV+4)}, {vr(XV+3)}
    v_cvt_pk_bf16_f32 {vr(t(31))}, {vr(XV+2)}, {vr(XV+1)}
    v_cvt_pk_bf16_f32 {vr(t(28))}, {vr(t(32))}, {vr(XV+7)}
    buffer_store_dwordx4 {vr(t(28),4)}, {vr(aV)}, {sr(sOUT,4)}, 0 offen sc1
    {ln}:""")
    e('s_waitcnt vmcnt(0)')
    ffn(PART1)
    stamp('ffn1')
    e('s_waitcnt vmcnt(0)')
    reducer(PART1, True)
    stamp('end')
    e('L_done:')
    if stamps:
        ls = g.lab('nost')
        e(f"""s_cmp_ge_u32 s2, 256
        s_cbranch_scc1 {ls}
        s_waitcnt vmcnt(0)
        s_mov_b64 exec, -1
        s_lshl_b32 {sr(sT)}, {sr(sWg)}, 11
        s_lshl_b32 {sr(sT2)}, {sr(sW)}, 8
        s_add_u32 {sr(sT)}, {sr(sT)}, {sr(sT2)}
        v_and_b32 {vr(t(0))}, 63, v0
        v_lshlrev_b32 {vr(t(0))}, 2, {vr(t(0))}
        v_add_u32 {vr(t(0))}, {sr(sT)}, {vr(t(0))}
        s_mov_b32 {sr(sOff)}, {STAMP}
        buffer_store_dword {vr(vStamp)}, {vr(t(0))}, {sr(sWS,4)}, {sr(sOff)} offen
        {ls}:""")
    e('s_endpgm')
    loader()
    for ls, lj in g.late:
        e(f'{ls}:')
        add_y(YH, YV)
        e(f's_branch {lj}')
    emit_tail()
    return g

def render(g):
    lines, added = pad(g.L)
    body = '\n'.join(('' if l.endswith(':') else '    ') + l for l in lines)
    ninstr = sum(1 for l in lines if not l.endswith(':'))
    hdr = f"""; FNet (2-D real DFT via Hartley factorisation on MFMA) + top-1 routed SwiGLU, two layers, one persistent launch.
; @launch grid=(256,1,1) block=(320,1,1) lds={LDS_SIZE}
.amdgcn_target "amdgcn-amd-amdhsa--gfx950"
.text
.globl {NAME}
.p2align 8
.type {NAME},@function
{NAME}:
"""
    tab = '\n'.join('.long ' + ','.join('0x%08x' % x for x in TAB[i:i+8]) for i in range(0, len(TAB), 8))
    tail = f"""
L_code_end:
.p2align 8
L_tab:
{tab}
.section .rodata,"a"
.p2align 6
.amdhsa_kernel {NAME}
  .amdhsa_next_free_vgpr 256
  .amdhsa_next_free_sgpr 102
  .amdhsa_accum_offset 256
  .amdhsa_group_segment_fixed_size 0
  .amdhsa_kernarg_size 104
  .amdhsa_user_sgpr_count 2
  .amdhsa_user_sgpr_kernarg_segment_ptr 1
  .amdhsa_system_sgpr_workgroup_id_x 1
.end_amdhsa_kernel
"""
    return hdr + body + tail, ninstr, added

if __name__ == '__main__':
    import argparse
    ap = argparse.ArgumentParser()
    ap.add_argument('-o', default='interleave_layers__spectral_fnet__moe_arch_mod__prompt.s')
    ap.add_argument('--stop'); ap.add_argument('--stamps', action='store_true'); ap.add_argument('--opt', default='')
    a = ap.parse_args()
    g = build(a.stop, a.stamps, {k.split('=')[0]: (k.split('=')+['1'])[1] for k in a.opt.split(',') if k})
    txt, n, added = render(g)
    open(a.o, 'w').write(txt)
    print(f'{n} instructions, {added} nop slots added, vgpr high {g.v.n}, sgpr high {g.s.n}')
```

```python
import sys, struct, math
from asmlib import pad, Alloc
import tables

NAME = "interleave_layers__spectral_fnet__moe_arch_mod__prompt_kernel"
NONCE = 0x000000
HB0, YB0, HB1, YB1 = 0x100000, 0x300000, 0x400000, 0x500000
CAND0, CAND1 = 0x600000, 0x700000
PART0, PART1 = 0x800000, 0x880000
UPD0 = 0x900000
KB0, KB1 = 0x901000, 0x902000
HINT = 0x903000
STAMP = 0x980000
WS_SIZE = 0xA00000
NF = 172
RED0 = 8
LIMIT = 40000
NPOIS = 64
YIMG = 0
GIMG = 5120
RIMG = 9216
HIMG = 13312
CIN = 17472
COUT = 21568
KIMG = 25664
FP = 26752
AM = 27008
RED = 27072
GU = 27392
DN = GU + 16384
LDS_SIZE = DN + 8192
LMAP = dict(YIMG=YIMG, GIMG=GIMG, RIMG=RIMG, HIMG=HIMG, CIN=CIN, COUT=COUT)
TAB, TOFF = tables.build_tables(LMAP)

def fbits(x): return '0x%08x' % struct.unpack('<I', struct.pack('<f', x))[0]

class G:
    def __init__(self, stop=None, stamps=False):
        self.L = []; self.stop = stop; self.stamps = stamps; self.uid = 0; self.nstamp = 0; self.names = []
        self.v = Alloc(1, 256, 'v'); self.s = Alloc(3, 100, 's')
    def e(self, text):
        for l in text.strip('\n').split('\n'):
            l = l.strip()
            if l: self.L.append(l)
    def lab(self, p):
        self.uid += 1; return f'L_{p}_{self.uid}'

def vr(a, n=1): return f'v{a}' if n == 1 else f'v[{a}:{a+n-1}]'
def sr(a, n=1): return f's{a}' if n == 1 else f's[{a}:{a+n-1}]'
DPP = 'row_mask:0xf bank_mask:0xf'
PKB = 'op_sel:[0,0,1] op_sel_hi:[1,0,1]'

def build(stop=None, stamps=False, opt=None):
    opt = opt or {}
    g = G(stop, stamps); e = g.e; V = g.v; S = g.s
    sWS = S('ws', 4, 4); sXS = S('xsrd', 4, 4); sOUT = S('out', 4, 4); sT4 = S('tmpsrd', 4, 4)
    sRho = S('rho'); sW = S('w'); sRowU = S('rowu'); sRowV = S('rowv'); sVs = S('vs'); sOff = S('off'); sCnt = S('cnt')
    sT = S('t'); sT2 = S('t2'); sT3 = S('t3'); s16 = S('k16'); sStar = S('star'); sRec = S('rec'); sWg = S('wg'); sSW = S('sw')
    sCu = S('cu', 2, 2); sCv = S('cv', 2, 2); sEx = S('exsave', 2, 2)
    sAu = S('au', 2, 2); sAv = S('av', 2, 2); sKu = S('ku', 2, 2); sKv = S('kv', 2, 2); sKeyU = S('keyu'); sKeyV = S('keyv'); sKey = S('key')
    sTag = S('tag'); sH = S('h', 8, 2); sTm = S('tm', 2, 2); sPC = S('pc', 2, 2); sM2 = S('m2', 2, 2); sPhi = S('phi'); sSgn = S('sgn')
    sKA = S('ka', 16, 4); sKB = S('kb', 8, 4); sKC = S('kc', 2, 2)
    vL = V('lane'); vN = V('n'); vQ = V('q')
    XU = V('XU', 8, 4); XV = V('XV', 8, 4); WU = V('WU', 8, 2); WV = V('WV', 8, 2)
    RB1 = V('RB1', 16, 4); RC = V('RC', 8, 2); RS = V('RS', 8, 2); RA2 = V('RA2', 4, 4)
    CB1 = V('CB1', 8, 4); CK = V('CK', 32, 2); CA2 = V('CA2', 16, 4)
    assert RC == RB1+16 and RS == RB1+24 and RA2 == RB1+32 and CK == CB1+8
    FA = V('FA', 16, 4); FD = V('FD', 16, 4)
    AD = V('addr', 16, 4)
    lRow, lTr, lRw, lCr, lH, _, lHf, _, lCa, lCb, lCc, lYd = range(AD, AD+12)
    lCo = AD + 12; lYm = AD + 15
    aU = V('aU'); aV = V('aV'); aP16 = V('aP16'); aS16 = V('aS16'); aHdr = V('aHdr'); aP8 = V('aP8')
    lYm4 = V('lYm4'); lG = V('lG')
    vRowH = V('rowh'); vSig = V('sig'); vSent = V('sent'); vCa = V('cosa'); vSa = V('sina'); vStamp = V('stamp')
    FX = V('FX', 8, 4); FO = V('FO', 8, 4)
    NT = 256 - ((V.n + 3)//4*4)
    T = V('T', NT, 4)
    def t(i):
        assert i < NT, i
        return T + i
    DU, DV = t(0), t(8)

    def stamp(name=''):
        if not g.stamps: return
        if opt.get('only') and name not in opt['only'].split('+'): return
        e(f'''s_memrealtime {sr(sTm,2)}
        s_waitcnt lgkmcnt(0)
        v_writelane_b32 {vr(vStamp)}, {sr(sTm)}, {g.nstamp}''')
        g.nstamp += 1; g.names.append(name)
    def finish_here(tag):
        if g.stop == tag: e('s_branch L_done')

    def sentinel(regs):
        if isinstance(regs, tuple) and regs[0] == 'tag':
            P = regs[1]
            e(f'''v_bitop3_b32 {vr(vSent)}, {vr(P+1)}, {vr(P+3)}, {sr(sTag)} bitop3:0x7e
            v_bitop3_b32 {vr(P+1)}, {vr(P+5)}, {vr(P+7)}, {sr(sTag)} bitop3:0x7e
            v_or_b32 {vr(vSent)}, {vr(vSent)}, {vr(P+1)}
            v_cmp_ne_u32 vcc, 0, {vr(vSent)}''')
            return
        regs = list(regs); tm = vSent
        if len(regs) == 1:
            e(f'v_cmp_eq_u32 vcc, -1, {vr(regs[0])}')
        else:
            if len(regs) >= 3:
                e(f'v_max3_u32 {vr(tm)}, {vr(regs[0])}, {vr(regs[1])}, {vr(regs[2])}'); rest = regs[3:]
            else:
                e(f'v_max_u32 {vr(tm)}, {vr(regs[0])}, {vr(regs[1])}'); rest = []
            while len(rest) >= 2:
                e(f'v_max3_u32 {vr(tm)}, {vr(tm)}, {vr(rest[0])}, {vr(rest[1])}'); rest = rest[2:]
            if rest: e(f'v_max_u32 {vr(tm)}, {vr(tm)}, {vr(rest[0])}')
            e(f'v_cmp_eq_u32 vcc, -1, {vr(tm)}')
    def poll(load, regs, backoff=2, preloaded=False):
        lp = g.lab('poll'); ok = g.lab('ok')
        if preloaded:
            sentinel(regs)
            e(f's_cbranch_vccnz {lp}\n{ok}:')
            g.tail.append((lp, ok, load, regs if isinstance(regs, tuple) else list(regs), backoff))
        else:
            e(load); e('s_waitcnt vmcnt(0)')
            sentinel(regs)
            e(f's_cbranch_vccnz {lp}\n{ok}:')
            g.tail.append((lp, ok, load, regs if isinstance(regs, tuple) else list(regs), backoff))
    g.tail = []
    g.nbar_mark = None
    def emit_tail():
        for lp, ok, load, regs, backoff in g.tail:
            l2 = lp + '_r'
            e(f'{lp}:\ns_mov_b32 {sr(sCnt)}, 0\n{l2}:\ns_sleep {backoff}')
            e(load)
            e(f'''s_add_u32 {sr(sCnt)}, {sr(sCnt)}, 1
            s_cmp_gt_u32 {sr(sCnt)}, {LIMIT}
            s_cbranch_scc1 L_done
            s_waitcnt vmcnt(0)''')
            sentinel(regs)
            e(f's_cbranch_vccnz {l2}\ns_branch {ok}')
    def srd(dst, ptr, size):
        e(f'''s_mov_b32 {sr(dst)}, {sr(ptr)}
        s_mov_b32 {sr(dst+1)}, {sr(ptr+1)}
        s_mov_b32 {sr(dst+2)}, {size}
        s_mov_b32 {sr(dst+3)}, 0x00020000''')
    def ws_store(n, data, areg, region, extra=''):
        op = {1: 'buffer_store_dword', 2: 'buffer_store_dwordx2', 4: 'buffer_store_dwordx4'}[n]
        e(f's_mov_b32 {sr(sOff)}, {region}\n{op} {vr(data,n)}, {vr(areg)}, {sr(sWS,4)}, {sr(sOff)} offen sc1 {extra}')
    def ws_load_text(n, data, areg, soff, extra=''):
        op = {1: 'buffer_load_dword', 2: 'buffer_load_dwordx2', 4: 'buffer_load_dwordx4'}[n]
        return f'{op} {vr(data,n)}, {vr(areg)}, {sr(sWS,4)}, {soff} offen {extra} sc1'
    PZ = t(40)
    def poison_regs():
        for k in range(4): e(f'v_mov_b32 {vr(PZ+k)}, -1')

    e(f's_cmp_ge_u32 s2, 256\ns_cbranch_scc1 L_done')
    if stamps: e(f's_memrealtime {sr(sM2,2)}')
    e(f'''s_load_dwordx16 {sr(sKA,16)}, s[0:1], 0
    s_load_dwordx8 {sr(sKB,8)}, s[0:1], 64
    s_load_dwordx2 {sr(sKC,2)}, s[0:1], 96''')
    e(f'''s_getpc_b64 {sr(sPC,2)}
    L_pc:
    v_lshlrev_b32 {vr(t(0))}, 7, v0
    v_min_u32 {vr(t(0))}, L_code_end-L_pc-4, {vr(t(0))}
    global_load_dword {vr(vSig)}, {vr(t(0))}, {sr(sPC,2)}
    s_add_u32 {sr(sPC)}, {sr(sPC)}, L_tab-L_pc
    s_addc_u32 {sr(sPC+1)}, {sr(sPC+1)}, 0''')
    e(f'''s_mov_b32 {sr(sWg)}, s2
    s_and_b32 {sr(sT)}, s2, 7
    s_lshl_b32 {sr(sT)}, {sr(sT)}, 5
    s_lshr_b32 {sr(sRho)}, s2, 3
    s_or_b32 {sr(sRho)}, {sr(sRho)}, {sr(sT)}
    v_lshrrev_b32 {vr(t(1))}, 6, v0
    v_and_b32 {vr(vL)}, 63, v0
    v_readfirstlane_b32 {sr(sW)}, {vr(t(1))}
    v_lshlrev_b32 {vr(t(2))}, 4, {vr(vL)}
    v_sub_u32 {vr(t(3))}, 1008, {vr(t(2))}
    s_lshl_b32 {sr(sT)}, {sr(sRho)}, 2
    s_add_u32 {sr(sRowU)}, {sr(sT)}, {sr(sW)}
    s_sub_u32 {sr(sRowV)}, 2048, {sr(sRowU)}
    s_cmp_eq_u32 {sr(sRowU)}, 0
    s_cselect_b32 {sr(sRowV)}, 1024, {sr(sRowV)}
    s_lshl_b32 {sr(sT)}, {sr(sRowU)}, 10
    s_lshl_b32 {sr(sT2)}, {sr(sRowV)}, 10
    v_add_u32 {vr(aU)}, {sr(sT)}, {vr(t(2))}
    v_add_u32 {vr(aV)}, {sr(sT2)}, {vr(t(3))}
    v_lshlrev_b32 {vr(lG)}, 4, v0
    s_waitcnt lgkmcnt(0)''')
    kx, kwr, kwg = sKA + 0, sKA + 12, sKA + 14
    kwu, kwd, kout, kdbg = sKB + 0, sKB + 2, sKB + 4, sKB + 6
    URAW, VRAW = t(8), t(12)
    WURAW, WVRAW = FX, FX + 4
    e(f's_sub_u32 {sr(sPhi)}, {sr(sRho)}, 1\ns_cmp_eq_u32 {sr(sW)}, 4\ns_cbranch_scc1 L_loader')
    srd(sXS, kx, 2097152)
    e(f'''buffer_load_dwordx4 {vr(URAW,4)}, {vr(aU)}, {sr(sXS,4)}, 0 offen
    buffer_load_dwordx4 {vr(VRAW,4)}, {vr(aV)}, {sr(sXS,4)}, 0 offen''')
    srd(sWS, sKC, WS_SIZE)
    e(f'v_mov_b32 {vr(vCa)}, {NONCE}\nbuffer_load_dword {vr(vCa)}, {vr(vCa)}, {sr(sWS,4)}, 0 offen')
    nvm = [1]
    def tab_loads(dst, n, areg, off, stride):
        k = 0
        while k < n:
            base = off + k*stride
            per = {1024: 4, 4096: 1}[stride]
            e(f'v_add_u32 {vr(t(4))}, {base}, {vr(areg)}')
            for kk in range(min(per, n-k)):
                e(f'global_load_dwordx4 {vr(dst+4*(k+kk),4)}, {vr(t(4))}, {sr(sPC,2)} offset:{kk*stride}')
                nvm[0] += 1
            k += per
    tab_loads(AD, 4, lG, TOFF['addr'], 4096)
    tab_loads(RB1, 9, t(2), TOFF['row'], 1024)
    N_ROWTAB = nvm[0]
    if stamps:
        e(f'v_mov_b32 {vr(vStamp)}, 0\nv_writelane_b32 {vr(vStamp)}, {sr(sM2)}, 0'); g.nstamp = 1; g.names.append('start')
    poison_regs()
    e(f'''s_lshl_b32 {sr(sT)}, {sr(sRho)}, 12
    v_add_u32 {vr(aP16)}, {sr(sT)}, {vr(lG)}''')
    ws_store(4, PZ, aP16, YB0)
    e(f'''v_mov_b32 {vr(t(5))}, 0x7f000000
    v_cmp_gt_u32 vcc, 64, v0
    s_cmp_eq_u32 {sr(sRho)}, 0
    s_cselect_b64 {sr(sEx,2)}, vcc, 0
    v_cndmask_b32 {vr(t(5))}, {vr(t(5))}, {vr(lG)}, {sr(sEx,2)}''')
    ws_store(4, PZ, t(5), KB0)
    ws_store(4, PZ, t(5), KB1)
    nvm[0] += 3
    N_POISON = nvm[0]
    srd(sT4, kwr, 1024)
    e(f'''buffer_load_dwordx4 {vr(WURAW,4)}, {vr(t(2))}, {sr(sT4,4)}, 0 offen
    buffer_load_dwordx4 {vr(WVRAW,4)}, {vr(t(3))}, {sr(sT4,4)}, 0 offen''')
    nvm[0] += 2
    N_ALL = nvm[0]
    srd(sOUT, kout, 2097152)
    e(f'''s_mov_b32 {sr(s16)}, {fbits(16.0)}
    v_and_b32 {vr(vN)}, 15, {vr(vL)}
    v_lshrrev_b32 {vr(vQ)}, 4, {vr(vL)}''')

    a0, a1, a2, a3 = t(20), t(21), t(22), t(23)
    def addr_misc():
        e(f'''s_lshl_b32 {sr(sT)}, {sr(sRho)}, 4
        v_lshlrev_b32 {vr(aHdr)}, 12, v0
        v_add_u32 {vr(aS16)}, {sr(sT)}, {vr(aHdr)}
        v_mov_b32 {vr(a0)}, {sr(sRowU)}
        v_mov_b32 {vr(a1)}, {sr(sRowV)}
        v_cmp_gt_u32 vcc, 32, {vr(vL)}
        s_lshl_b32 {sr(sT)}, {sr(sPhi)}, 11
        s_cmp_lt_u32 {sr(sPhi)}, {NF}
        s_cselect_b32 {sr(sT)}, {sr(sT)}, 0x7f000000
        v_cndmask_b32 {vr(vRowH)}, {vr(a1)}, {vr(a0)}, vcc
        v_lshlrev_b32 {vr(aP8)}, 3, v0
        v_add_u32 {vr(aP8)}, {sr(sT)}, {vr(aP8)}
        v_mov_b32 {vr(a0)}, 0
        v_lshlrev_b32 {vr(a1)}, 10, {vr(vL)}
        s_mov_b64 exec, 31
        ds_write_b16 {vr(a1)}, {vr(a0)} offset:{YIMG}
        s_mov_b64 exec, -1''')
    def addr_ym4():
        e(f'''s_cmp_eq_u32 {sr(sRho)}, 0
        s_cselect_b32 {sr(sT)}, 4096, 0
        v_add_u32 {vr(lYm4)}, {sr(sT)}, {vr(lYm)}''')

    b0, b1, b2 = t(24), t(25), t(26)
    vTau, vTlo = t(28), t(29)
    def tau_tlo():
        e(f'''s_lshl_b32 {sr(sT)}, {sr(sW)}, 3
        v_and_b32 {vr(vTau)}, 7, {vr(vN)}
        v_add_u32 {vr(vTau)}, {sr(sT)}, {vr(vTau)}
        v_sub_u32 {vr(a0)}, 64, {vr(vTau)}
        v_mov_b32 {vr(a1)}, 32
        v_cmp_eq_u32 {sr(sTm,2)}, 0, {vr(vTau)}
        v_cndmask_b32 {vr(a0)}, {vr(a0)}, {vr(a1)}, {sr(sTm,2)}
        v_cmp_le_u32 vcc, 8, {vr(vN)}
        v_cndmask_b32 {vr(vTlo)}, {vr(vTau)}, {vr(a0)}, vcc
        s_andn2_b64 {sr(sEx,2)}, vcc, {sr(sTm,2)}''')
    c0, c1 = t(30), t(31)
    def cos_seq(dst, base, step, n, amp=None):
        for j in range(0, n, 2):
            e(f'v_cos_f32 {vr(c0)}, {vr(base)}\nv_add_f32 {vr(base)}, {vr(base)}, {vr(step)}')
            e(f'v_cos_f32 {vr(c1)}, {vr(base)}')
            if j + 2 < n: e(f'v_add_f32 {vr(base)}, {vr(base)}, {vr(step)}')
            if amp is not None:
                e(f'v_mul_f32 {vr(c0)}, {amp}, {vr(c0)}\nv_mul_f32 {vr(c1)}, {amp}, {vr(c1)}')
            e(f'v_cvt_pk_f16_f32 {vr(dst + j//2)}, {vr(c0)}, {vr(c1)}')
    fQ, fN, fs, fb, fa, fb2 = t(32), t(33), t(34), t(35), t(36), t(37)
    def col_consts():
        tau_tlo()
        e(f'''v_cvt_f32_u32 {vr(fQ)}, {vr(vQ)}
        v_cmp_le_u32 vcc, 8, {vr(vN)}
        s_and_b64 vcc, vcc, {sr(sTm,2)}
        v_mov_b32 {vr(a1)}, 32
        v_cndmask_b32 {vr(a0)}, {vr(vTau)}, {vr(a1)}, vcc
        v_cvt_f32_u32 {vr(fs)}, {vr(a0)}
        v_mul_f32 {vr(fs)}, {fbits(1/64)}, {vr(fs)}
        v_mov_b32 {vr(fa)}, {fbits(0.25)}
        v_cndmask_b32 {vr(fa)}, 0, {vr(fa)}, {sr(sEx,2)}
        v_mul_f32 {vr(fb)}, {fbits(8.0)}, {vr(fQ)}
        v_fma_f32 {vr(fb)}, {vr(fb)}, {vr(fs)}, {vr(fa)}''')
        cos_seq(CB1, fb, fs, 8)
        e(f'''v_and_b32 {vr(a0)}, 1, {vr(a0)}
        v_mul_u32_u24 {vr(a0)}, 0x8000, {vr(a0)}
        v_lshl_or_b32 {vr(a0)}, {vr(a0)}, 16, {vr(a0)}''')
        for k in range(4): e(f'v_xor_b32 {vr(CB1+4+k)}, {vr(a0)}, {vr(CB1+k)}')
        e(f'''v_cvt_f32_u32 {vr(fs)}, {vr(vTlo)}
        v_mul_f32 {vr(fs)}, {fbits(1/2048)}, {vr(fs)}
        v_mul_f32 {vr(fb)}, {vr(fQ)}, {vr(fs)}
        v_fma_f32 {vr(fb)}, {vr(fb)}, 4.0, {vr(fa)}
        v_mov_b32 {vr(a1)}, {fbits(0.25)}
        v_cndmask_b32 {vr(a1)}, {vr(a1)}, 0, {sr(sTm,2)}''')
        e(f'v_add_f32 {vr(fb2)}, {fbits(-0.25)}, {vr(fb)}')
        e(f'v_mul_f32 {vr(a2)}, {fbits(12.0)}, {vr(fs)}')
        for Tt in range(2):
            for i in range(4):
                k = CK + 16*Tt
                e(f'''v_cos_f32 {vr(c0)}, {vr(fb)}
                v_cos_f32 {vr(c1)}, {vr(fb2)}
                v_add_f32 {vr(fb)}, {vr(fb)}, {vr(fs)}
                v_add_f32 {vr(fb2)}, {vr(fb2)}, {vr(fs)}
                v_mul_f32 {vr(k+i)}, {fbits(0.25)}, {vr(c0)}
                v_mul_f32 {vr(k+4+i)}, {vr(a1)}, {vr(c1)}
                v_mul_f32 {vr(k+8+i)}, {fbits(-0.25)}, {vr(c1)}
                v_mul_f32 {vr(k+12+i)}, {vr(a1)}, {vr(c0)}''')
            if Tt == 0: e(f'v_add_f32 {vr(fb)}, {vr(fb)}, {vr(a2)}\nv_add_f32 {vr(fb2)}, {vr(fb2)}, {vr(a2)}')
        e(f'''v_cvt_f32_u32 {vr(fs)}, {vr(vN)}
        v_mul_f32 {vr(fs)}, {fbits(1/32)}, {vr(fs)}
        v_mul_f32 {vr(fb2)}, {vr(fQ)}, {vr(fs)}
        v_mul_f32 {vr(fb2)}, 4.0, {vr(fb2)}''')
        for part, ph in ((0, -0.125), (1, -0.375)):
            e(f'v_add_f32 {vr(fb)}, {fbits(ph)}, {vr(fb2)}')
            cos_seq(CA2 + 2*part, fb, fs, 4, amp=fbits(math.sqrt(2)/8))
        e(f'''v_and_b32 {vr(a0)}, 1, {vr(vN)}
        v_mul_u32_u24 {vr(a0)}, 0x8000, {vr(a0)}
        v_lshl_or_b32 {vr(a0)}, {vr(a0)}, 16, {vr(a0)}''')
        for k in range(4):
            e(f'v_xor_b32 {vr(CA2+4+k)}, {vr(a0)}, {vr(CA2+k)}')
        for k in range(8):
            e(f'v_xor_b32 {vr(CA2+8+k)}, 0x80000000, {vr(CA2+k)}')

    def unpack_nat(dst, src):
        for k in range(4):
            e(f'v_lshlrev_b32 {vr(dst+2*k)}, 16, {vr(src+k)}\nv_and_b32 {vr(dst+2*k+1)}, 0xffff0000, {vr(src+k)}')
    def unpack_rev(dst, src, tmp):
        e(f'''v_lshlrev_b32 {vr(tmp)}, 16, {vr(src)}
        v_and_b32 {vr(dst+7)}, 0xffff0000, {vr(src)}
        v_lshlrev_b32 {vr(dst+6)}, 16, {vr(src+1)}
        v_and_b32 {vr(dst+5)}, 0xffff0000, {vr(src+1)}
        v_mov_b32_dpp {vr(dst)}, {vr(tmp)} wave_ror:1 {DPP}
        v_lshlrev_b32 {vr(dst+4)}, 16, {vr(src+2)}
        v_and_b32 {vr(dst+3)}, 0xffff0000, {vr(src+2)}
        v_lshlrev_b32 {vr(dst+2)}, 16, {vr(src+3)}
        v_and_b32 {vr(dst+1)}, 0xffff0000, {vr(src+3)}''')
    def half_reduce(regs, tmps, op='v_add_f32'):
        for sh in (8, 4, 2, 1):
            for r in regs: e(f'{op}_dpp {vr(r)}, {vr(r)}, {vr(r)} row_ror:{sh} {DPP}')
        for r, tm in zip(regs, tmps): e(f'v_mov_b32 {vr(tm)}, {vr(r)}')
        for r, tm in zip(regs, tmps): e(f'v_permlane16_swap_b32 {vr(r)}, {vr(tm)}')
        for r, tm in zip(regs, tmps): e(f'{op} {vr(r)}, {vr(r)}, {vr(tm)}')
    def wave_reduce(regs, tmps, op='v_add_f32'):
        half_reduce(regs, tmps, op)
        for r, tm in zip(regs, tmps): e(f'v_mov_b32 {vr(tm)}, {vr(r)}')
        for r, tm in zip(regs, tmps): e(f'v_permlane32_swap_b32 {vr(r)}, {vr(tm)}')
        for r, tm in zip(regs, tmps): e(f'{op} {vr(r)}, {vr(r)}, {vr(tm)}')
    hM, hVar, hRho, hB, hR = t(40), t(41), t(42), t(43), t(44)
    def partial(Dd, src, sC, w, o1, o2, o3, P):
        e(f'v_readfirstlane_b32 {sr(sC)}, {vr(src)}')
        for k in range(4):
            e(f'v_pk_add_f32 {vr(Dd+2*k,2)}, {vr(src+2*k,2)}, {sr(sC,2)} op_sel_hi:[1,0] neg_lo:[0,1] neg_hi:[0,1]')
        e(f'''v_pk_add_f32 {vr(P,2)}, {vr(Dd,2)}, {vr(Dd+2,2)}
        v_pk_mul_f32 {vr(P+2,2)}, {vr(Dd,2)}, {vr(Dd,2)}
        v_pk_add_f32 {vr(P+4,2)}, {vr(Dd+4,2)}, {vr(Dd+6,2)}''')
        if w is not None: e(f'v_pk_mul_f32 {vr(P+6,2)}, {vr(Dd,2)}, {vr(w,2)}')
        for k in range(1, 4):
            e(f'v_pk_fma_f32 {vr(P+2,2)}, {vr(Dd+2*k,2)}, {vr(Dd+2*k,2)}, {vr(P+2,2)}')
            if w is not None: e(f'v_pk_fma_f32 {vr(P+6,2)}, {vr(Dd+2*k,2)}, {vr(w+2*k,2)}, {vr(P+6,2)}')
            if k == 1: e(f'v_pk_add_f32 {vr(P,2)}, {vr(P,2)}, {vr(P+4,2)}')
        e(f'v_add_f32 {vr(o1)}, {vr(P)}, {vr(P+1)}\nv_add_f32 {vr(o2)}, {vr(P+2)}, {vr(P+3)}')
        if w is not None: e(f'v_add_f32 {vr(o3)}, {vr(P+6)}, {vr(P+7)}')
    def moments(S1, S2):
        e(f'''v_mul_f32 {vr(hM)}, {fbits(1/512)}, {vr(S1)}
        v_mul_f32 {vr(S2)}, {fbits(1/512)}, {vr(S2)}
        v_fma_f32 {vr(hVar)}, -{vr(hM)}, {vr(hM)}, {vr(S2)}
        v_max_f32 {vr(hVar)}, 0, {vr(hVar)}
        v_add_f32 {vr(S2)}, {fbits(1e-5)}, {vr(hVar)}
        v_rsq_f32 {vr(hRho)}, {vr(S2)}''')
    def stats2(with_r):
        a1_, a2_, a3_, b1_, b2_, b3_ = t(16), t(17), t(18), t(19), t(20), t(21)
        partial(DU, XU, sCu, WU if with_r else None, a1_, a2_, a3_, t(24))
        partial(DV, XV, sCv, WV if with_r else None, b1_, b2_, b3_, t(32))
        pairs = [(a1_, b1_), (a2_, b2_)] + ([(a3_, b3_)] if with_r else [])
        for x, y in pairs: e(f'v_permlane32_swap_b32 {vr(x)}, {vr(y)}')
        for x, y in pairs: e(f'v_add_f32 {vr(x)}, {vr(x)}, {vr(y)}')
        half_reduce([x for x, _ in pairs], [y for _, y in pairs])
        moments(a1_, a2_)
        if with_r: e(f'v_fma_f32 {vr(a3_)}, -{vr(hM)}, {sr(sSW)}, {vr(a3_)}')
        e(f'v_mul_f32 {vr(hB)}, -{vr(hM)}, {vr(hRho)}')
        if with_r: e(f'v_mul_f32 {vr(hR)}, {vr(hRho)}, {vr(a3_)}')
    def stats1(src, Dd, dst):
        partial(Dd, src, sCu, None, t(16), t(17), None, t(24))
        wave_reduce([t(16), t(17)], [t(18), t(19)])
        moments(t(16), t(17))
        e(f'''v_readfirstlane_b32 {sr(sKu)}, {vr(hRho)}
        v_mul_f32 {vr(hB)}, -{vr(hM)}, {vr(hRho)}
        v_readfirstlane_b32 {sr(sKu+1)}, {vr(hB)}''')
        for k in range(4): e(f'v_pk_fma_f32 {vr(dst+2*k,2)}, {vr(Dd+2*k,2)}, {sr(sKu,2)}, {sr(sKu,2)} {PKB}')
    def residual_coeffs():
        e(f'''v_mov_b32 {vr(t(22))}, {sr(sCu)}
        v_mov_b32 {vr(t(23))}, {sr(sCv)}
        v_cmp_gt_u32 vcc, 32, {vr(vL)}
        v_add_f32 {vr(t(21))}, 1.0, {vr(hRho)}
        v_cndmask_b32 {vr(t(22))}, {vr(t(23))}, {vr(t(22))}, vcc
        v_add_f32 {vr(t(22))}, {vr(t(22))}, {vr(hB)}
        v_readlane_b32 {sr(sAu)}, {vr(t(21))}, 0
        v_readlane_b32 {sr(sAv)}, {vr(t(21))}, 32
        v_readlane_b32 {sr(sAu+1)}, {vr(t(22))}, 0
        v_readlane_b32 {sr(sAv+1)}, {vr(t(22))}, 32''')
    def residual_update(dU, dV):
        for k in range(4): e(f'v_pk_fma_f32 {vr(dU+2*k,2)}, {vr(DU+2*k,2)}, {sr(sAu,2)}, {sr(sAu,2)} {PKB}')
        for k in range(4): e(f'v_pk_fma_f32 {vr(dV+2*k,2)}, {vr(DV+2*k,2)}, {sr(sAv,2)}, {sr(sAv,2)} {PKB}')
    def norm_coeffs(scale, bias):
        e(f'''v_readlane_b32 {sr(sKu)}, {vr(scale)}, 0
        v_readlane_b32 {sr(sKu+1)}, {vr(bias)}, 0
        v_readlane_b32 {sr(sKv)}, {vr(scale)}, 32
        v_readlane_b32 {sr(sKv+1)}, {vr(bias)}, 32''')
    GG = t(16)
    def make_g():
        for k in range(4): e(f'v_pk_fma_f32 {vr(GG+2*k,2)}, {vr(DU+2*k,2)}, {sr(sKu,2)}, {sr(sKu,2)} {PKB}')
        for k in range(4): e(f'v_pk_fma_f32 {vr(GG+2*k,2)}, {vr(DV+2*k,2)}, {sr(sKv,2)}, {vr(GG+2*k,2)} op_sel_hi:[1,0,1]')
    def write_n(src, tmp):
        for k in range(4): e(f'v_cvt_pk_f16_f32 {vr(tmp+k)}, {vr(src+2*k)}, {vr(src+2*k+1)}')
        e(f'ds_write_b128 {vr(lRow)}, {vr(tmp,4)} offset:{GIMG}')
    def write_r(src, tmp):
        e(f'''v_mov_b32_dpp {vr(tmp+4)}, {vr(src)} wave_rol:1 {DPP}
        v_cvt_pk_f16_f32 {vr(tmp+1)}, {vr(src+6)}, {vr(src+5)}
        v_cvt_pk_f16_f32 {vr(tmp+2)}, {vr(src+4)}, {vr(src+3)}
        v_cvt_pk_f16_f32 {vr(tmp+3)}, {vr(src+2)}, {vr(src+1)}
        v_cvt_pk_f16_f32 {vr(tmp)}, {vr(tmp+4)}, {vr(src+7)}
        ds_write_b128 {vr(lRw)}, {vr(tmp,4)}''')
    def core(A, O):
        Dr = [t(0), t(8)]; Di = [t(4), t(12)]
        for Tt in range(2):
            e(f'v_mfma_f32_16x16x32_f16 {vr(Dr[Tt],4)}, {vr(A,4)}, {vr(RB1+(2*Tt)*4,4)}, 0')
            e(f'v_mfma_f32_16x16x32_f16 {vr(Di[Tt],4)}, {vr(A,4)}, {vr(RB1+(2*Tt+1)*4,4)}, 0')
        Bo = [t(16), t(20)]; br, bi = t(24), t(28)
        for Tt in range(2):
            for h in range(2):
                c = vr(RC+4*Tt+2*h, 2); s_ = vr(RS+4*Tt+2*h, 2)
                dr = vr(Dr[Tt]+2*h, 2); di = vr(Di[Tt]+2*h, 2)
                e(f'''v_pk_mul_f32 {vr(br+2*h,2)}, {dr}, {c}
                v_pk_mul_f32 {vr(bi+2*h,2)}, {di}, {c}
                v_pk_fma_f32 {vr(br+2*h,2)}, {di}, {s_}, {vr(br+2*h,2)}
                v_pk_fma_f32 {vr(bi+2*h,2)}, {dr}, {s_}, {vr(bi+2*h,2)} neg_lo:[1,0,0] neg_hi:[1,0,0]''')
            e(f'''v_cvt_pk_f16_f32 {vr(Bo[Tt])}, {vr(br)}, {vr(br+1)}
            v_cvt_pk_f16_f32 {vr(Bo[Tt]+1)}, {vr(br+2)}, {vr(br+3)}
            v_cvt_pk_f16_f32 {vr(Bo[Tt]+2)}, {vr(bi)}, {vr(bi+1)}
            v_cvt_pk_f16_f32 {vr(Bo[Tt]+3)}, {vr(bi+2)}, {vr(bi+3)}''')
            e(f'v_mfma_f32_16x16x32_f16 {vr(O+4*Tt,4)}, {vr(RA2,4)}, {vr(Bo[Tt],4)}, 0')

    CA, CO = t(32), t(36)
    def transform(dst_off, tagged=False, pre_core=None, post_scatter=None, pre_store=None):
        write_n(GG, t(24))
        e(f"""s_waitcnt lgkmcnt(0)
        ds_read_b64_tr_b16 {vr(CA,2)}, {vr(lTr)} offset:{GIMG}
        ds_read_b64_tr_b16 {vr(CA+2,2)}, {vr(lTr)} offset:{GIMG+128}""")
        if pre_core: pre_core()
        e('s_waitcnt lgkmcnt(0)')
        core(CA, CO)
        for k in range(4): e(f'v_cvt_pk_f16_f32 {vr(t(44)+k)}, {vr(CO+2*k)}, {vr(CO+2*k+1)}')
        for Tt in range(2):
            for i in range(4):
                op = 'ds_write_b16' if i % 2 == 0 else 'ds_write_b16_d16_hi'
                e(f'{op} {vr(lH+Tt)}, {vr(t(44) + 2*Tt + i//2)} offset:{512*i}')
        e(f'ds_write_b16_d16_hi {vr(lHf)}, {vr(t(45))}\nds_write_b16_d16_hi {vr(lHf+1)}, {vr(t(45))}')
        if post_scatter: post_scatter()
        if tagged:
            e(f"""v_lshlrev_b32 {vr(t(8))}, 3, v0
            s_lshl_b32 {sr(sT)}, {sr(sRho)}, 13
            v_add_u32 {vr(t(9))}, {sr(sT)}, {vr(lG)}""")
            for k in (1, 3, 5, 7): e(f'v_mov_b32 {vr(t(k))}, {sr(sTag)}')
            if pre_store: pre_store()
            e(f"""s_waitcnt lgkmcnt(0)
            s_barrier
            ds_read_b32 {vr(t(0))}, {vr(t(8))} offset:{HIMG}
            ds_read_b32 {vr(t(2))}, {vr(t(8))} offset:{HIMG+4}
            ds_read_b32 {vr(t(4))}, {vr(t(8))} offset:{HIMG+2048}
            ds_read_b32 {vr(t(6))}, {vr(t(8))} offset:{HIMG+2052}
            s_mov_b32 {sr(sOff)}, {dst_off}
            s_mov_b32 {sr(sT)}, {dst_off+4096}
            s_waitcnt lgkmcnt(2)
            buffer_store_dwordx4 {vr(t(0),4)}, {vr(t(9))}, {sr(sWS,4)}, {sr(sOff)} offen sc1
            s_waitcnt lgkmcnt(0)
            buffer_store_dwordx4 {vr(t(4),4)}, {vr(t(9))}, {sr(sWS,4)}, {sr(sT)} offen sc1""")
        else:
            if pre_store: pre_store()
            e(f"""s_waitcnt lgkmcnt(0)
            s_barrier
            ds_read_b128 {vr(t(0),4)}, {vr(lG)} offset:{HIMG}
            s_mov_b32 {sr(sOff)}, {dst_off}
            s_waitcnt lgkmcnt(0)
            buffer_store_dwordx4 {vr(t(0),4)}, {vr(aP16)}, {sr(sWS,4)}, {sr(sOff)} offen sc1""")

    def affine_from_x(sx1x0_u, sx1x0_v, sKu_, sKv_, outU, outV):
        for (xx, cc, kk, oo) in ((sx1x0_u, sCu, sKu_, outU), (sx1x0_v, sCv, sKv_, outV)):
            if xx is None:
                e(f"""v_mov_b32 {vr(t(44))}, {sr(kk)}
                v_mov_b32 {vr(t(45))}, {sr(kk+1)}
                v_fma_f32 {vr(t(45))}, -{vr(t(44))}, {sr(cc)}, {vr(t(45))}""")
            else:
                e(f"""v_rcp_f32 {vr(t(44))}, {sr(xx)}
                v_mov_b32 {vr(t(45))}, {sr(kk+1)}
                v_mul_f32 {vr(t(44))}, {sr(kk)}, {vr(t(44))}
                v_fma_f32 {vr(t(45))}, -{vr(t(44))}, {sr(xx+1)}, {vr(t(45))}""")
            e(f'v_readfirstlane_b32 {sr(oo)}, {vr(t(44))}\nv_readfirstlane_b32 {sr(oo+1)}, {vr(t(45))}')

    def special_k(dst_off, after_residual):
        ln = g.lab('nok')
        e(f's_cmp_lg_u32 {sr(sRowU)}, 0\ns_cbranch_scc1 {ln}')
        affine_from_x(sAu if after_residual else None, sAv if after_residual else None, sKu, sKv, sH, sH+2)
        ZU, ZV = t(0), t(8)
        for k in range(4): e(f'v_pk_fma_f32 {vr(ZU+2*k,2)}, {vr(XU+2*k,2)}, {sr(sH,2)}, {sr(sH,2)} {PKB}')
        for k in range(4): e(f'v_pk_fma_f32 {vr(ZV+2*k,2)}, {vr(XV+2*k,2)}, {sr(sH+2,2)}, {sr(sH+2,2)} {PKB}')
        write_r(ZU, t(16)); write_n(ZV, t(24))
        A, B = CA, t(40)
        e(f"""s_waitcnt lgkmcnt(0)
        ds_read_b64_tr_b16 {vr(A,2)}, {vr(lTr)} offset:{RIMG}
        ds_read_b64_tr_b16 {vr(B,2)}, {vr(lTr)} offset:{GIMG}
        ds_read_b64_tr_b16 {vr(A+2,2)}, {vr(lTr)} offset:{RIMG+128}
        ds_read_b64_tr_b16 {vr(B+2,2)}, {vr(lTr)} offset:{GIMG+128}
        s_waitcnt lgkmcnt(0)""")
        for k in range(4): e(f'v_pk_add_f16 {vr(A+k)}, {vr(A+k)}, {vr(B+k)} neg_lo:[0,1] neg_hi:[0,1]')
        core(A, CO)
        for k in range(4): e(f'v_pk_mul_f32 {vr(CO+2*k,2)}, {vr(CO+2*k,2)}, {sr(sT2 if False else sM2,2)} op_sel_hi:[1,0]' if False else f'v_mul_f32 {vr(CO+2*k)}, {fbits(1/16)}, {vr(CO+2*k)}\nv_mul_f32 {vr(CO+2*k+1)}, {fbits(1/16)}, {vr(CO+2*k+1)}')
        for k in range(4): e(f'v_cvt_pk_f16_f32 {vr(t(44)+k)}, {vr(CO+2*k)}, {vr(CO+2*k+1)}')
        e(f"""v_lshl_add_u32 {vr(t(0))}, {vr(vQ)}, 7, {vr(vN)}
        v_lshlrev_b32 {vr(t(0))}, 1, {vr(t(0))}
        v_sub_u32 {vr(t(1))}, {1024-32-192}, {vr(t(0))}
        v_mov_b32 {vr(t(2))}, 512
        s_mov_b32 exec_lo, -1
        s_mov_b32 exec_hi, 0""")
        for Tt in range(2):
            for i in range(4):
                op = 'ds_write_b16' if i % 2 == 0 else 'ds_write_b16_d16_hi'
                e(f'{op} {vr(t(0))}, {vr(t(44)+2*Tt+i//2)} offset:{KIMG + 32*Tt + 64*i}')
                e(f'{op} {vr(t(1))}, {vr(t(44)+2*Tt+i//2)} offset:{KIMG + 32*(1-Tt) + 64*(3-i)}')
        e(f"""s_mov_b32 exec_lo, 0
        s_mov_b32 exec_hi, 0x00010000
        ds_write_b16_d16_hi {vr(t(2))}, {vr(t(45))} offset:{KIMG}
        s_mov_b64 exec, -1
        v_lshlrev_b32 {vr(t(3))}, 4, {vr(vL)}
        s_waitcnt lgkmcnt(0)
        ds_read_b128 {vr(t(4),4)}, {vr(t(3))} offset:{KIMG}
        s_mov_b32 {sr(sOff)}, {dst_off}
        s_waitcnt lgkmcnt(0)
        buffer_store_dwordx4 {vr(t(4),4)}, {vr(t(3))}, {sr(sWS,4)}, {sr(sOff)} offen sc1
        {ln}:""")

    PC = t(40)
    def column_load(src_off):
        e(f's_mov_b32 {sr(sOff)}, {src_off}')
        e(ws_load_text(4, PC, aS16, sr(sOff)))
    def column(src_off, dst_off, preloaded, tagged=False):
        P = PC
        e(f's_mov_b32 {sr(sOff)}, {src_off}')
        if tagged:
            P = t(32); A2 = t(44)
            e(f'''v_lshrrev_b32 {vr(t(31))}, 1, v0
            v_lshlrev_b32 {vr(t(31))}, 13, {vr(t(31))}
            v_and_b32 {vr(t(30))}, 1, v0
            v_lshl_add_u32 {vr(t(31))}, {vr(t(30))}, 4, {vr(t(31))}
            s_lshl_b32 {sr(sT)}, {sr(sRho)}, 5
            v_add_u32 {vr(t(31))}, {sr(sT)}, {vr(t(31))}
            s_add_u32 {sr(sT3)}, {sr(sOff)}, {128*8192}''')
            poll(ws_load_text(4, P, t(31), sr(sOff)) + '\n' + ws_load_text(4, P+4, t(31), sr(sT3)), ('tag', P))
            stamp('col data')
            for k in range(2):
                e(f'''ds_write_b16 {vr(A2+2*k)}, {vr(P+4*k)}
                ds_write_b16_d16_hi {vr(A2+2*k+1)}, {vr(P+4*k)} offset:16
                ds_write_b16 {vr(A2+2*k+1)}, {vr(P+4*k+2)} offset:32
                ds_write_b16_d16_hi {vr(A2+2*k+1)}, {vr(P+4*k+2)} offset:48''')
            e('s_waitcnt lgkmcnt(0)\ns_barrier')
        else:
            poll(ws_load_text(4, P, aS16, sr(sOff)), range(P, P+4), preloaded=preloaded)
            d = [P, P+1, P+2, P+3]
            stamp('col data')
            e(f"""ds_write_b16 {vr(lCa)}, {vr(d[0])}
            ds_write_b16_d16_hi {vr(lCa)}, {vr(d[0])} offset:16
            ds_write_b16 {vr(lCa)}, {vr(d[1])} offset:32
            ds_write_b16_d16_hi {vr(lCa)}, {vr(d[1])} offset:48
            ds_write_b16 {vr(lCb)}, {vr(d[2])}
            ds_write_b16_d16_hi {vr(lCc)}, {vr(d[2])} offset:16
            ds_write_b16 {vr(lCc)}, {vr(d[3])} offset:32
            ds_write_b16_d16_hi {vr(lCc)}, {vr(d[3])} offset:48
            s_waitcnt lgkmcnt(0)
            s_barrier""")
        A = t(0)
        for k in range(4): e(f'ds_read_b128 {vr(A+4*k,4)}, {vr(lCr)} offset:{1024*k}')
        D1 = [t(16), t(20)]
        e(f"""s_waitcnt lgkmcnt(3)
        v_mfma_f32_16x16x32_f16 {vr(D1[0],4)}, {vr(A,4)}, {vr(CB1,4)}, 0
        s_waitcnt lgkmcnt(2)
        v_mfma_f32_16x16x32_f16 {vr(D1[0],4)}, {vr(A+4,4)}, {vr(CB1+4,4)}, {vr(D1[0],4)}
        s_waitcnt lgkmcnt(1)
        v_mfma_f32_16x16x32_f16 {vr(D1[1],4)}, {vr(A+8,4)}, {vr(CB1,4)}, 0
        s_waitcnt lgkmcnt(0)
        v_mfma_f32_16x16x32_f16 {vr(D1[1],4)}, {vr(A+12,4)}, {vr(CB1+4,4)}, {vr(D1[1],4)}""")
        Bb = t(24); br, bi = t(28), t(32); Bo = [t(0), t(4)]
        for Tt in range(2):
            k = CK + 16*Tt
            for i in range(4): e(f'v_mov_b32_dpp {vr(Bb+i)}, {vr(D1[Tt]+i)} row_ror:8 {DPP}')
            for h in range(2):
                e(f"""v_pk_mul_f32 {vr(br+2*h,2)}, {vr(D1[Tt]+2*h,2)}, {vr(k+2*h,2)}
                v_pk_mul_f32 {vr(bi+2*h,2)}, {vr(D1[Tt]+2*h,2)}, {vr(k+8+2*h,2)}""")
            for h in range(2):
                e(f"""v_pk_fma_f32 {vr(br+2*h,2)}, {vr(Bb+2*h,2)}, {vr(k+4+2*h,2)}, {vr(br+2*h,2)}
                v_pk_fma_f32 {vr(bi+2*h,2)}, {vr(Bb+2*h,2)}, {vr(k+12+2*h,2)}, {vr(bi+2*h,2)}""")
            e(f"""v_cvt_pk_f16_f32 {vr(Bo[Tt])}, {vr(br)}, {vr(br+1)}
            v_cvt_pk_f16_f32 {vr(Bo[Tt]+1)}, {vr(br+2)}, {vr(br+3)}
            v_cvt_pk_f16_f32 {vr(Bo[Tt]+2)}, {vr(bi)}, {vr(bi+1)}
            v_cvt_pk_f16_f32 {vr(Bo[Tt]+3)}, {vr(bi+2)}, {vr(bi+3)}""")
        O = [t(8), t(12)]
        e(f"""v_mfma_f32_16x16x32_f16 {vr(O[0],4)}, {vr(CA2,4)}, {vr(Bo[0],4)}, 0
        v_mfma_f32_16x16x32_f16 {vr(O[1],4)}, {vr(CA2+8,4)}, {vr(Bo[0],4)}, 0
        v_mfma_f32_16x16x32_f16 {vr(O[0],4)}, {vr(CA2+4,4)}, {vr(Bo[1],4)}, {vr(O[0],4)}
        v_mfma_f32_16x16x32_f16 {vr(O[1],4)}, {vr(CA2+12,4)}, {vr(Bo[1],4)}, {vr(O[1],4)}
        v_cvt_pk_f16_f32 {vr(t(16))}, {vr(O[0])}, {vr(O[0]+1)}
        v_cvt_pk_f16_f32 {vr(t(17))}, {vr(O[0]+2)}, {vr(O[0]+3)}
        ds_write_b16 {vr(lCo)}, {vr(t(16))}
        ds_write_b16_d16_hi {vr(lCo)}, {vr(t(16))} offset:256
        v_cvt_pk_f16_f32 {vr(t(18))}, {vr(O[1])}, {vr(O[1]+1)}
        v_cvt_pk_f16_f32 {vr(t(19))}, {vr(O[1]+2)}, {vr(O[1]+3)}
        ds_write_b16 {vr(lCo)}, {vr(t(17))} offset:512
        ds_write_b16_d16_hi {vr(lCo)}, {vr(t(17))} offset:768
        ds_write_b16 {vr(lCo+2)}, {vr(t(18))}
        ds_write_b16_d16_hi {vr(lCo+1)}, {vr(t(18))} offset:512
        ds_write_b16 {vr(lCo+1)}, {vr(t(19))} offset:256
        ds_write_b16_d16_hi {vr(lCo+1)}, {vr(t(19))}
        s_waitcnt lgkmcnt(0)
        s_barrier
        ds_read_b128 {vr(t(0),4)}, {vr(lG)} offset:{COUT}
        s_mov_b32 {sr(sOff)}, {dst_off}
        s_waitcnt lgkmcnt(0)
        buffer_store_dwordx4 {vr(t(0),4)}, {vr(aP16)}, {sr(sWS,4)}, {sr(sOff)} offen sc1""")

    YH, YV, KT = t(4), t(8), t(12)
    def row_input(src_off, kb, with_weights=False):
        P = t(0)
        lk = g.lab('nok')
        e(f's_bitcmp0_b32 {sr(sW)}, 0\ns_cbranch_scc1 {lk}')
        e(f'v_lshlrev_b32 {vr(t(16))}, 4, {vr(vL)}\ns_mov_b32 {sr(sT3)}, {kb}')
        e(ws_load_text(4, KT, t(16), sr(sT3)))
        e(f'{lk}:')
        e(f's_mov_b32 {sr(sOff)}, {src_off}')
        ld = ws_load_text(4, P, aS16, sr(sOff))
        if with_weights:
            lw = g.lab('now'); lw2 = g.lab('now2')
            e(ld)
            e(f's_cmp_ge_u32 {sr(sPhi)}, {NF}\ns_cbranch_scc1 {lw}')
            e(f's_mov_b32 {sr(sCnt)}, {sr(sT3)}')
            weight_loads()
            e(f's_mov_b32 {sr(sT3)}, {sr(sCnt)}\ns_mov_b32 {sr(sOff)}, {src_off}\ns_waitcnt vmcnt(6)\ns_branch {lw2}\n{lw}:\ns_waitcnt vmcnt(0)\n{lw2}:')
            poll(ld, range(P, P+4), preloaded=True)
        else:
            poll(ld, range(P, P+4))
        stamp('row data')
        def wr(slot, areg, off):
            op = 'ds_write_b16' if slot % 2 == 0 else 'ds_write_b16_d16_hi'
            e(f'{op} {vr(areg)}, {vr(P + slot//2)} offset:{YIMG + off}')
        for j in range(4): wr(j, lYd, j*1024)
        wr(4, lYm4, 0); wr(5, lYm, 3*1024); wr(6, lYm, 2*1024); wr(7, lYm, 1024)
        l0 = g.lab('not0')
        e(f's_cmp_lg_u32 {sr(sRho)}, 0\ns_cbranch_scc1 {l0}')
        wr(0, lYm, 0); wr(4, lYd, 4096)
        e(f"""{l0}:
        s_waitcnt lgkmcnt(0)
        s_barrier
        ds_read_b128 {vr(YH,4)}, {vr(lRow)} offset:{YIMG}""")
        lv = g.lab('yv')
        e(f"""s_cmp_lg_u32 {sr(sRowU)}, 0
        s_cbranch_scc1 {lv}
        ds_read_b128 {vr(YV,4)}, {vr(lRow)} offset:{YIMG+4096}
        {lv}:""")
        lk = g.lab('nok2')
        e(f's_bitcmp0_b32 {sr(sW)}, 0\ns_cbranch_scc1 {lk}')
        poll(ws_load_text(4, KT, t(16), sr(sT3)), range(KT, KT+4), preloaded=True)
        e('s_waitcnt lgkmcnt(0)')
        for k in range(4): e(f'v_pk_add_f16 {vr(YH+k)}, {vr(YH+k)}, {vr(KT+k)}')
        e(f'{lk}:\ns_waitcnt lgkmcnt(0)')
    def add_y(yu, yv):
        for k in range(4):
            e(f"""v_fma_mix_f32 {vr(XU+2*k)}, {vr(yu+k)}, {sr(s16)}, {vr(XU+2*k)} op_sel:[0,0,0] op_sel_hi:[1,0,0]
            v_fma_mix_f32 {vr(XU+2*k+1)}, {vr(yu+k)}, {sr(s16)}, {vr(XU+2*k+1)} op_sel:[1,0,0] op_sel_hi:[1,0,0]""")
        for k in range(4):
            e(f"""v_fma_mix_f32 {vr(XV+2*k)}, {vr(yv+k)}, {sr(s16)}, {vr(XV+2*k)} op_sel:[0,0,0] op_sel_hi:[1,0,0]
            v_fma_mix_f32 {vr(XV+2*k+1)}, {vr(yv+k)}, {sr(s16)}, {vr(XV+2*k+1)} op_sel:[1,0,0] op_sel_hi:[1,0,0]""")
    def add_y_pair():
        ls = g.lab('ysp'); lj = g.lab('yj')
        e(f's_cmp_eq_u32 {sr(sRowU)}, 0\ns_cbranch_scc1 {ls}')
        add_y(YH, YH)
        e(f'{lj}:')
        g.late.append((ls, lj))
    g.late = []

    def make_key():
        e(f"""v_ashrrev_i32 {vr(t(22))}, 31, {vr(hR)}
        v_or_b32 {vr(t(22))}, 0x80000000, {vr(t(22))}
        v_xor_b32 {vr(t(22))}, {vr(hR)}, {vr(t(22))}
        v_and_b32 {vr(t(22))}, 0xfffff800, {vr(t(22))}
        v_or_b32 {vr(t(22))}, {vr(vRowH)}, {vr(t(22))}
        v_readlane_b32 {sr(sKeyU)}, {vr(t(22))}, 0
        v_readlane_b32 {sr(sKeyV)}, {vr(t(22))}, 32
        s_lshl_b32 {sr(sT)}, {sr(sW)}, 2
        v_mov_b32 {vr(t(23))}, {sr(sT)}
        s_max_u32 {sr(sKey)}, {sr(sKeyU)}, {sr(sKeyV)}
        v_mov_b32 {vr(t(22))}, {sr(sKey)}
        ds_write_b32 {vr(t(23))}, {vr(t(22))} offset:{AM}""")
    def wg_best_read(tmp):
        e(f'v_mov_b32 {vr(tmp+4)}, 0\nds_read_b128 {vr(tmp,4)}, {vr(tmp+4)} offset:{AM}')
    def wg_best_header(cand, tmp):
        ln = g.lab('nohdr')
        e(f"""v_max3_u32 {vr(tmp)}, {vr(tmp)}, {vr(tmp+1)}, {vr(tmp+2)}
        v_max_u32 {vr(tmp)}, {vr(tmp)}, {vr(tmp+3)}
        v_readfirstlane_b32 {sr(sT)}, {vr(tmp)}
        s_cmp_eq_u32 {sr(sT)}, {sr(sKey)}
        s_cselect_b32 {sr(sSgn)}, 1, 0
        s_cbranch_scc0 {ln}
        s_lshl_b32 {sr(sT)}, {sr(sRho)}, 12
        s_add_u32 {sr(sOff)}, {sr(sT)}, {cand}
        v_mov_b32 {vr(tmp+1)}, {sr(sKey)}
        s_mov_b64 exec, 1
        buffer_store_dword {vr(tmp+1)}, {vr(tmp+4)}, {sr(sWS,4)}, {sr(sOff)} offen sc1
        s_mov_b64 exec, -1
        {ln}:""")
    def publish_rows(cand):
        ln = g.lab('nopub'); lv = g.lab('pubv'); lj = g.lab('pubj')
        e(f's_cmp_eq_u32 {sr(sSgn)}, 0\ns_cbranch_scc1 {ln}')
        e(f"""s_lshl_b32 {sr(sT)}, {sr(sRho)}, 12
        s_add_u32 {sr(sOff)}, {sr(sT)}, {cand}
        s_cmp_gt_u32 {sr(sKeyV)}, {sr(sKeyU)}
        s_cbranch_scc1 {lv}""")
        for (lab_, X_, A_, C_) in ((None, XU, sAu, sCu), (lv, XV, sAv, sCv)):
            if lab_: e(f'{lab_}:')
            e(f"""v_rcp_f32 {vr(t(0))}, {sr(A_)}
            v_mov_b32 {vr(t(1))}, {sr(A_+1)}
            v_mov_b32 {vr(t(2))}, {sr(A_)}
            v_add_f32 {vr(t(2))}, -1.0, {vr(t(2))}
            v_subrev_f32 {vr(t(3))}, {sr(C_)}, {vr(t(1))}
            v_mul_f32 {vr(t(4))}, {vr(t(2))}, {vr(t(0))}
            v_fma_f32 {vr(t(6))}, -{vr(t(4))}, {vr(t(1))}, {vr(t(3))}""")
            Z = t(8)
            for k in range(4): e(f'v_pk_fma_f32 {vr(Z+2*k,2)}, {vr(X_+2*k,2)}, {vr(t(4),2)}, {vr(t(6),2)} op_sel_hi:[1,0,0]')
            if X_ == XU:
                for k in range(4): e(f'v_cvt_pk_bf16_f32 {vr(t(16)+k)}, {vr(Z+2*k)}, {vr(Z+2*k+1)}')
                e(f"""v_lshlrev_b32 {vr(t(1))}, 4, {vr(vL)}
                v_lshlrev_b32 {vr(t(2))}, 5, {vr(vL)}
                buffer_store_dwordx4 {vr(t(16),4)}, {vr(t(1))}, {sr(sWS,4)}, {sr(sOff)} offen offset:128 sc1
                buffer_store_dwordx4 {vr(XU,4)}, {vr(t(2))}, {sr(sWS,4)}, {sr(sOff)} offen offset:1152 sc1
                buffer_store_dwordx4 {vr(XU+4,4)}, {vr(t(2))}, {sr(sWS,4)}, {sr(sOff)} offen offset:1168 sc1
                s_branch {lj}""")
            else:
                e(f"""v_mov_b32_dpp {vr(t(20))}, {vr(Z)} wave_rol:1 {DPP}
                v_mov_b32_dpp {vr(t(24))}, {vr(XV)} wave_rol:1 {DPP}
                v_cvt_pk_bf16_f32 {vr(t(17))}, {vr(Z+6)}, {vr(Z+5)}
                v_cvt_pk_bf16_f32 {vr(t(18))}, {vr(Z+4)}, {vr(Z+3)}
                v_cvt_pk_bf16_f32 {vr(t(19))}, {vr(Z+2)}, {vr(Z+1)}
                v_cvt_pk_bf16_f32 {vr(t(16))}, {vr(t(20))}, {vr(Z+7)}""")
                for k in range(1, 8): e(f'v_mov_b32 {vr(t(24)+k)}, {vr(XV+8-k)}')
                e(f"""v_lshlrev_b32 {vr(t(1))}, 4, {vr(vL)}
                v_sub_u32 {vr(t(1))}, 1008, {vr(t(1))}
                v_lshlrev_b32 {vr(t(2))}, 1, {vr(t(1))}
                buffer_store_dwordx4 {vr(t(16),4)}, {vr(t(1))}, {sr(sWS,4)}, {sr(sOff)} offen offset:128 sc1
                buffer_store_dwordx4 {vr(t(24),4)}, {vr(t(2))}, {sr(sWS,4)}, {sr(sOff)} offen offset:1152 sc1
                buffer_store_dwordx4 {vr(t(28),4)}, {vr(t(2))}, {sr(sWS,4)}, {sr(sOff)} offen offset:1168 sc1""")
        e(f'{lj}:\n{ln}:')

    def header_load(cand, K):
        e(f's_mov_b32 {sr(sOff)}, {cand}')
        e(ws_load_text(1, K, aHdr, sr(sOff)))
    def argmax(cand, K, after_check=None):
        e(f's_mov_b32 {sr(sOff)}, {cand}')
        poll(ws_load_text(1, K, aHdr, sr(sOff)), [K], preloaded=True, backoff=4)
        if after_check: after_check()
        wave_reduce([K], [t(1)], op='v_max_u32')
        e(f"""s_lshl_b32 {sr(sT)}, {sr(sW)}, 2
        v_mov_b32 {vr(t(1))}, {sr(sT)}
        ds_write_b32 {vr(t(1))}, {vr(K)} offset:{AM+32}
        v_mov_b32 {vr(t(1))}, 0
        s_waitcnt lgkmcnt(0)
        s_barrier
        ds_read_b128 {vr(t(4),4)}, {vr(t(1))} offset:{AM+32}
        s_waitcnt lgkmcnt(0)
        v_max3_u32 {vr(t(4))}, {vr(t(4))}, {vr(t(5))}, {vr(t(6))}
        v_max_u32 {vr(t(4))}, {vr(t(4))}, {vr(t(7))}
        v_readfirstlane_b32 {sr(sKey)}, {vr(t(4))}""")
        e(f"""s_and_b32 {sr(sStar)}, {sr(sKey)}, 2047
        s_lshr_b32 {sr(sT)}, {sr(sStar)}, 2
        s_sub_u32 {sr(sT2)}, 511, {sr(sT)}
        s_sub_u32 {sr(sT3)}, 512, {sr(sT)}
        s_and_b32 {sr(sT3)}, {sr(sT3)}, 255
        s_and_b32 {sr(sRec)}, {sr(sStar)}, 3
        s_cmp_eq_u32 {sr(sRec)}, 0
        s_cselect_b32 {sr(sT2)}, {sr(sT3)}, {sr(sT2)}
        s_cmp_lt_u32 {sr(sStar)}, 1024
        s_cselect_b32 {sr(sT2)}, {sr(sT)}, {sr(sT2)}
        s_lshl_b32 {sr(sRec)}, {sr(sT2)}, 12
        s_add_u32 {sr(sRec)}, {sr(sRec)}, {cand}""")
    def sigmoid_of_key():
        e(f"""s_and_b32 {sr(sT)}, {sr(sKey)}, 0xfffff800
        s_or_b32 {sr(sT)}, {sr(sT)}, 0x400
        s_ashr_i32 {sr(sT2)}, {sr(sT)}, 31
        s_not_b32 {sr(sT2)}, {sr(sT2)}
        s_or_b32 {sr(sT2)}, {sr(sT2)}, 0x80000000
        s_xor_b32 {sr(sT)}, {sr(sT)}, {sr(sT2)}
        v_mov_b32 {vr(vSig)}, {fbits(-1.4426950408889634)}
        v_mul_f32 {vr(vSig)}, {sr(sT)}, {vr(vSig)}
        v_exp_f32 {vr(vSig)}, {vr(vSig)}
        v_add_f32 {vr(vSig)}, 1.0, {vr(vSig)}
        v_rcp_f32 {vr(vSig)}, {vr(vSig)}""")

    def ffn_setup():
        e(f"""v_and_b32 {vr(t(0))}, 3, {vr(vN)}
        v_lshrrev_b32 {vr(t(1))}, 2, {vr(vN)}
        v_lshl_add_u32 {vr(t(1))}, {vr(vQ)}, 3, {vr(t(1))}
        s_lshl_b32 {sr(sT)}, {sr(sW)}, 7
        v_add_u32 {vr(t(1))}, {sr(sT)}, {vr(t(1))}
        v_lshlrev_b32 {vr(t(1))}, 4, {vr(t(1))}
        v_and_b32 {vr(t(3))}, 1, {vr(t(0))}
        v_lshl_add_u32 {vr(t(1))}, {vr(t(3))}, 3, {vr(t(1))}
        v_lshrrev_b32 {vr(t(3))}, 1, {vr(t(0))}
        v_lshl_add_u32 {vr(t(1))}, {vr(t(3))}, 13, {vr(t(1))}
        v_lshlrev_b32 {vr(t(2))}, 2, v0""")
        g.nbar_mark = sum(1 for l in g.L if l == 's_barrier')
        e('s_barrier')
        for kap in range(4):
            for h in range(2):
                e(f'ds_read_b64_tr_b16 {vr(FA+4*kap+2*h,2)}, {vr(t(1))} offset:{GU + kap*512 + h*64}')
        for f in range(8): e(f'ds_read_b32 {vr(t(8)+f)}, {vr(t(2))} offset:{DN + f*1024}')
        e('s_waitcnt lgkmcnt(0)')
        for f in range(8):
            e(f'v_lshlrev_b32 {vr(FD+2*f)}, 16, {vr(t(8)+f)}\nv_and_b32 {vr(FD+2*f+1)}, 0xffff0000, {vr(t(8)+f)}')
    def loader():
        e(f"""L_loader:
        s_cmp_ge_u32 {sr(sPhi)}, {NF}
        s_cbranch_scc1 L_end""")
        e(f"""s_movk_i32 {sr(sT3)}, 2752
        v_mul_lo_u32 {vr(t(0))}, {vr(vL)}, {sr(sT3)}
        s_lshl_b32 {sr(sT2)}, {sr(sPhi)}, 4
        v_add_u32 {vr(t(0))}, {sr(sT2)}, {vr(t(0))}
        v_lshlrev_b32 {vr(t(1))}, 4, {vr(vL)}""")
        def gu(ptr, lds):
            srd(sT4, ptr, 1409024)
            for k in range(8):
                e(f"""s_mov_b32 m0, {lds + 1024*k}
                s_mov_b32 {sr(sOff)}, {64*2752*k}
                buffer_load_dwordx4 {vr(t(0))}, {sr(sT4,4)}, {sr(sOff)} offen lds""")
        def dn():
            srd(sT4, kwd, 1409024)
            e(f's_lshl_b32 {sr(sT2)}, {sr(sPhi)}, 13')
            for f in range(8):
                e(f"""s_mov_b32 m0, {DN + 1024*f}
                s_add_u32 {sr(sOff)}, {sr(sT2)}, {1024*f}
                buffer_load_dwordx4 {vr(t(1))}, {sr(sT4,4)}, {sr(sOff)} offen lds""")
        plan = {int(x.split(':')[0]): x.split(':')[1] for x in opt.get('lplan', '3:g/5:u/6:d').split('/')}
        for k in range(g.nbar_mark + 1):
            for c in plan.get(k, ''):
                {'g': lambda: gu(kwg, GU), 'u': lambda: gu(kwu, GU + 8192), 'd': dn}[c]()
            if k < g.nbar_mark: e('s_barrier')
        e('s_waitcnt vmcnt(0)\ns_barrier\nL_end:\ns_endpgm')

    XS = t(0)
    def xsel_text():
        return '\n'.join(f'buffer_load_dwordx4 {vr(XS+4*k,4)}, {vr(t(20))}, {sr(sWS,4)}, {sr(sRec)} offen offset:{128+64*k} sc1' for k in range(4))
    def xsel_load():
        e(f"""s_lshl_b32 {sr(sT)}, {sr(sW)}, 8
        v_lshlrev_b32 {vr(t(20))}, 4, {vr(vQ)}
        v_add_u32 {vr(t(20))}, {sr(sT)}, {vr(t(20))}""")
        e(xsel_text())
    def ffn(part):
        ln = g.lab('noffn')
        e(f's_cmp_ge_u32 {sr(sPhi)}, {NF}\ns_cbranch_scc1 {ln}')
        poll(xsel_text(), range(XS, XS+16), preloaded=True)
        Pp = t(16)
        for k in range(4):
            e(f'v_mfma_f32_16x16x32_bf16 {vr(Pp,4)}, {vr(FA+4*k,4)}, {vr(XS+4*k,4)}, {"0" if k==0 else vr(Pp,4)}')
        e(f"""v_lshlrev_b32 {vr(t(21))}, 6, {vr(vQ)}
        s_lshl_b32 {sr(sT)}, {sr(sW)}, 2
        v_add_u32 {vr(t(21))}, {sr(sT)}, {vr(t(21))}
        v_and_b32 {vr(t(22))}, 31, {vr(vL)}
        v_lshlrev_b32 {vr(t(22))}, 2, {vr(t(22))}
        s_mov_b32 exec_lo, 0x00010001
        s_mov_b32 exec_hi, 0x00010001""")
        for i in range(4): e(f'ds_write_b32 {vr(t(21))}, {vr(Pp+i)} offset:{FP + 16*i}')
        e(f"""s_mov_b64 exec, -1
        s_waitcnt lgkmcnt(0)
        s_barrier
        ds_read_b32 {vr(t(12))}, {vr(t(22))} offset:{FP}
        ds_read_b32 {vr(t(13))}, {vr(t(22))} offset:{FP+128}
        s_waitcnt lgkmcnt(0)""")
        gg, uu = t(12), t(13)
        for mod in ('quad_perm:[1,0,3,2]', 'quad_perm:[2,3,0,1]'):
            e(f'v_add_f32_dpp {vr(gg)}, {vr(gg)}, {vr(gg)} {mod} {DPP}\nv_add_f32_dpp {vr(uu)}, {vr(uu)}, {vr(uu)} {mod} {DPP}')
        e(f"""v_mul_f32 {vr(t(14))}, {fbits(-1.4426950408889634)}, {vr(gg)}
        v_exp_f32 {vr(t(14))}, {vr(t(14))}
        v_mul_f32 {vr(uu)}, {vr(uu)}, {vr(vSig)}
        v_add_f32 {vr(t(14))}, 1.0, {vr(t(14))}
        v_rcp_f32 {vr(t(14))}, {vr(t(14))}
        v_mul_f32 {vr(gg)}, {vr(gg)}, {vr(uu)}
        v_mul_f32 {vr(gg)}, {vr(gg)}, {vr(t(14))}""")
        for f in range(8): e(f'v_readlane_b32 {sr(sH+f)}, {vr(gg)}, {4*f}')
        acc = t(16)
        for f in range(8):
            sel = 'op_sel_hi:[1,0,1]' if f % 2 == 0 else 'op_sel:[0,1,0] op_sel_hi:[1,1,1]'
            if f == 0: e(f'v_pk_mul_f32 {vr(acc,2)}, {vr(FD,2)}, {sr(sH,2)} op_sel_hi:[1,0]')
            else: e(f'v_pk_fma_f32 {vr(acc,2)}, {vr(FD+2*f,2)}, {sr(sH + (f & ~1),2)}, {vr(acc,2)} {sel}')
        ws_store(2, acc, aP8, part)
        e(f'{ln}:')

    def reducer(part, final):
        ln = g.lab('nored')
        e(f"""s_sub_u32 {sr(sT3)}, {sr(sWg)}, {RED0}
        s_cmp_ge_u32 {sr(sT3)}, 32
        s_cbranch_scc1 {ln}
        v_lshrrev_b32 {vr(t(20))}, 2, v0
        v_lshlrev_b32 {vr(t(21))}, 11, {vr(t(20))}
        v_and_b32 {vr(t(22))}, 3, v0
        v_lshlrev_b32 {vr(t(22))}, 4, {vr(t(22))}
        s_lshl_b32 {sr(sT)}, {sr(sT3)}, 6
        v_add_u32 {vr(t(25))}, {sr(sT)}, {vr(t(22))}
        v_add_u32 {vr(t(21))}, {vr(t(21))}, {vr(t(25))}
        v_add_u32 {vr(t(23))}, {128*2048}, {vr(t(21))}
        v_mov_b32 {vr(t(24))}, 0x7f000000
        v_cmp_gt_u32 vcc, {NF-128}, {vr(t(20))}
        v_cndmask_b32 {vr(t(23))}, {vr(t(24))}, {vr(t(23))}, vcc
        s_mov_b32 {sr(sOff)}, {part}
        s_add_u32 {sr(sT2)}, {sr(sOff)}, {64*2048}""")
        A, B2, B3, B4 = t(0), t(4), t(8), t(12)
        ld = '\n'.join([ws_load_text(4, A, t(21), sr(sOff)), ws_load_text(4, B2, t(21), sr(sT2)), ws_load_text(4, B3, t(23), sr(sOff))])
        regs = list(range(A, A+12))
        if final:
            ld += '\n' + ws_load_text(4, B4, t(25), sr(sRec), 'offset:1152')
            regs += list(range(B4, B4+4))
        poll(ld, regs)
        for X_ in (B2, B3):
            e(f'v_pk_add_f32 {vr(A,2)}, {vr(A,2)}, {vr(X_,2)}\nv_pk_add_f32 {vr(A+2,2)}, {vr(A+2,2)}, {vr(X_+2,2)}')
        for sh in (4, 8):
            for i in range(4): e(f'v_add_f32_dpp {vr(A+i)}, {vr(A+i)}, {vr(A+i)} row_ror:{sh} {DPP}')
        for sw in ('v_permlane16_swap_b32', 'v_permlane32_swap_b32'):
            for i in range(4): e(f'v_mov_b32 {vr(B2+i)}, {vr(A+i)}')
            for i in range(4): e(f'{sw} {vr(A+i)}, {vr(B2+i)}')
            for i in range(4): e(f'v_add_f32 {vr(A+i)}, {vr(A+i)}, {vr(B2+i)}')
        e(f"""s_lshl_b32 {sr(sT)}, {sr(sW)}, 6
        v_add_u32 {vr(t(24))}, {sr(sT)}, {vr(t(22))}
        s_mov_b64 exec, 15
        ds_write_b128 {vr(t(24))}, {vr(A,4)} offset:{RED}
        s_mov_b64 exec, -1
        s_waitcnt lgkmcnt(0)
        s_barrier
        s_cmp_lg_u32 {sr(sW)}, 0
        s_cbranch_scc1 {ln}""")
        R = t(28)
        for w in range(4): e(f'ds_read_b128 {vr(R+4*w,4)}, {vr(t(22))} offset:{RED + 64*w}')
        e('s_waitcnt lgkmcnt(0)')
        e(f"""v_pk_add_f32 {vr(R,2)}, {vr(R,2)}, {vr(R+4,2)}
        v_pk_add_f32 {vr(R+2,2)}, {vr(R+2,2)}, {vr(R+6,2)}
        v_pk_add_f32 {vr(R+8,2)}, {vr(R+8,2)}, {vr(R+12,2)}
        v_pk_add_f32 {vr(R+10,2)}, {vr(R+10,2)}, {vr(R+14,2)}
        v_pk_add_f32 {vr(R,2)}, {vr(R,2)}, {vr(R+8,2)}
        v_pk_add_f32 {vr(R+2,2)}, {vr(R+2,2)}, {vr(R+10,2)}""")
        if final:
            e(f"""v_pk_add_f32 {vr(R,2)}, {vr(R,2)}, {vr(B4,2)}
            v_pk_add_f32 {vr(R+2,2)}, {vr(R+2,2)}, {vr(B4+2,2)}
            v_cvt_pk_bf16_f32 {vr(R)}, {vr(R)}, {vr(R+1)}
            v_cvt_pk_bf16_f32 {vr(R+1)}, {vr(R+2)}, {vr(R+3)}
            s_lshl_b32 {sr(sT)}, {sr(sStar)}, 10
            v_lshrrev_b32 {vr(t(25))}, 1, {vr(t(25))}
            v_add_u32 {vr(t(25))}, {sr(sT)}, {vr(t(25))}
            s_mov_b64 exec, 15
            buffer_store_dwordx2 {vr(R,2)}, {vr(t(25))}, {sr(sOUT,4)}, 0 offen sc1
            s_mov_b64 exec, -1""")
        else:
            e(f"""s_mov_b32 {sr(sOff)}, {UPD0}
            s_mov_b64 exec, 15
            buffer_store_dwordx4 {vr(R,4)}, {vr(t(25))}, {sr(sWS,4)}, {sr(sOff)} offen sc1
            s_mov_b64 exec, -1""")
        e(f'{ln}:')

    addr_misc()
    stamp('preamble')
    e(f's_waitcnt vmcnt({N_ALL-1})\nv_readfirstlane_b32 {sr(sTag)}, {vr(vCa)}\ns_add_u32 {sr(sTag)}, {sr(sTag)}, 1')
    if not opt.get('nohint'):
        lh = g.lab('nohint')
        e(f'''s_cmp_lt_u32 {sr(sWg)}, 248
        s_cbranch_scc1 {lh}
        s_cmp_lg_u32 {sr(sW)}, 0
        s_cbranch_scc1 {lh}
        s_and_b32 {sr(sT)}, {sr(sWg)}, 7
        s_lshl_b32 {sr(sT)}, {sr(sT)}, 8
        v_mov_b32 {vr(t(16))}, {sr(sT)}
        v_mov_b32 {vr(t(17))}, {sr(sTag)}
        s_mov_b64 exec, 1''')
        ws_store(1, t(17), t(16), HINT)
        e(f's_mov_b64 exec, -1\n{lh}:')
    stamp('x0')
    unpack_nat(XU, URAW); unpack_rev(XV, VRAW, t(16))
    stats2(False)
    norm_coeffs(hRho, hB)
    make_g()
    e(f's_waitcnt vmcnt({N_ALL - N_ROWTAB})')
    transform(HB0, tagged=True, pre_store=lambda: e(f's_waitcnt vmcnt({N_ALL - N_POISON})'))
    stamp('P1 stored')
    finish_here('P1')
    special_k(KB0, False)
    addr_ym4()
    poison_regs()
    e(f"""s_sub_u32 {sr(sT3)}, {sr(sWg)}, {RED0}
    s_lshl_b32 {sr(sT)}, {sr(sT3)}, 6
    v_lshlrev_b32 {vr(t(6))}, 2, v0
    v_add_u32 {vr(t(6))}, {sr(sT)}, {vr(t(6))}
    v_cmp_gt_u32 vcc, 16, v0
    s_cmp_lt_u32 {sr(sT3)}, 32
    s_cselect_b64 {sr(sEx,2)}, vcc, 0
    v_mov_b32 {vr(t(7))}, 0x7f000000
    v_cndmask_b32 {vr(t(6))}, {vr(t(7))}, {vr(t(6))}, {sr(sEx,2)}""")
    ws_store(4, PZ, aP16, HB1); ws_store(4, PZ, aP16, CAND0); ws_store(2, PZ, aP8, PART0); ws_store(1, PZ, t(6), UPD0)
    e(f'v_add_u32 {vr(t(39))}, {TOFF["addr2"]}, {vr(lG)}\nglobal_load_dwordx4 {vr(t(44),4)}, {vr(t(39))}, {sr(sPC,2)}')
    if not opt.get('nohint'):
        lh = g.lab('hw')
        e(f'''v_and_b32 {vr(vCa)}, 7, {vr(vL)}
        v_lshlrev_b32 {vr(vCa)}, 8, {vr(vCa)}
        s_cmp_lg_u32 {sr(sW)}, 0
        s_cbranch_scc1 {lh}
        s_mov_b32 {sr(sOff)}, {HINT}''')
        e(ws_load_text(1, vSa, vCa, sr(sOff)))
        e(f'{lh}:')
    col_consts()
    stamp('shadow1')
    if not opt.get('nohint'):
        lh = g.lab('hw2'); lp = g.lab('hp')
        e(f'''s_cmp_lg_u32 {sr(sW)}, 0
        s_cbranch_scc1 {lh}
        s_mov_b32 {sr(sCnt)}, 0
        s_mov_b32 {sr(sOff)}, {HINT}
        {lp}:
        s_waitcnt vmcnt(0)
        v_cmp_ne_u32 vcc, {sr(sTag)}, {vr(vSa)}
        s_cbranch_vccz {lh}
        s_add_u32 {sr(sCnt)}, {sr(sCnt)}, 1
        s_cmp_gt_u32 {sr(sCnt)}, {LIMIT}
        s_cbranch_scc1 {lh}
        s_sleep 4''')
        e(ws_load_text(1, vSa, vCa, sr(sOff)))
        e(f's_branch {lp}\n{lh}:\ns_waitcnt vmcnt(0)\ns_barrier')
    if opt.get('ack1'): e('s_waitcnt vmcnt(0)')
    stamp('hint')
    column(HB0, YB0, False, tagged=True)
    stamp('P2 stored')
    finish_here('P2')
    poison_regs()
    ws_store(4, PZ, aP16, YB1); ws_store(4, PZ, aP16, CAND1); ws_store(2, PZ, aP8, PART1)
    lnn = g.lab('nononce')
    e(f'''s_cmp_lg_u32 {sr(sRowU)}, 0
    s_cbranch_scc1 {lnn}
    v_mov_b32 {vr(t(0))}, {sr(sTag)}
    v_mov_b32 {vr(t(1))}, 0
    s_mov_b64 exec, 1''')
    ws_store(1, t(0), t(1), NONCE)
    e(f's_mov_b64 exec, -1\n{lnn}:')
    unpack_nat(WU, WURAW); unpack_rev(WV, WVRAW, t(16))
    e(f"""v_pk_add_f32 {vr(t(16),2)}, {vr(WU,2)}, {vr(WU+2,2)}
    v_pk_add_f32 {vr(t(18),2)}, {vr(WU+4,2)}, {vr(WU+6,2)}
    v_pk_add_f32 {vr(t(16),2)}, {vr(t(16),2)}, {vr(t(18),2)}
    v_add_f32 {vr(t(16))}, {vr(t(16))}, {vr(t(17))}""")
    wave_reduce([t(16)], [t(17)])
    e(f'v_readfirstlane_b32 {sr(sSW)}, {vr(t(16))}')
    stamp('shadow2')
    e('s_waitcnt vmcnt(0)')
    row_input(YB0, KB0)
    add_y_pair()
    stats2(True)
    make_key()
    residual_coeffs()
    e(f"""v_mul_f32 {vr(t(23))}, {vr(t(21))}, {vr(t(21))}
    v_mul_f32 {vr(t(23))}, {vr(t(23))}, {vr(hVar)}
    v_add_f32 {vr(t(23))}, {fbits(1e-5)}, {vr(t(23))}
    v_rsq_f32 {vr(t(23))}, {vr(t(23))}
    s_waitcnt lgkmcnt(0)
    s_barrier""")
    wg_best_read(t(24))
    e(f"""v_mul_f32 {vr(t(22))}, {vr(t(21))}, {vr(t(23))}
    v_mul_f32 {vr(t(23))}, -{vr(hM)}, {vr(t(22))}""")
    norm_coeffs(t(22), t(23))
    e('s_waitcnt lgkmcnt(0)')
    wg_best_header(CAND0, t(24))
    stamp('hdr0')
    make_g()
    residual_update(XU, XV)
    transform(HB1, post_scatter=lambda: publish_rows(CAND0))
    stamp('P3 stored')
    finish_here('P3')
    K = t(0)
    header_load(CAND0, vSig)
    lfs = g.lab('nosetup')
    e(f's_cmp_ge_u32 {sr(sPhi)}, {NF}\ns_cbranch_scc1 {lfs}')
    ffn_setup()
    e(f'{lfs}:')
    special_k(KB1, True)
    e(f's_waitcnt vmcnt(0)\nv_mov_b32 {vr(K)}, {vr(vSig)}')
    argmax(CAND0, K, after_check=lambda: column_load(HB1))
    stamp('argmax0')
    lb = g.lab('nobase')
    e(f"""s_cmp_ge_u32 {sr(sW)}, 2
    s_cbranch_scc1 {lb}
    v_lshlrev_b32 {vr(t(21))}, 5, {vr(vL)}
    buffer_load_dwordx4 {vr(FX,4)}, {vr(t(21))}, {sr(sWS,4)}, {sr(sRec)} offen offset:1152 sc1
    buffer_load_dwordx4 {vr(FX+4,4)}, {vr(t(21))}, {sr(sWS,4)}, {sr(sRec)} offen offset:1168 sc1
    {lb}:""")
    lb = g.lab('nox')
    e(f's_cmp_ge_u32 {sr(sPhi)}, {NF}\ns_cbranch_scc1 {lb}')
    xsel_load()
    e(f'{lb}:')
    sigmoid_of_key()
    e(f"""s_mul_i32 {sr(sT)}, {sr(sRowU)}, {sr(sStar)}
    s_and_b32 {sr(sT)}, {sr(sT)}, 2047
    v_cvt_f32_u32 {vr(vCa)}, {sr(sT)}
    v_mul_f32 {vr(vCa)}, {fbits(1/2048)}, {vr(vCa)}
    v_sin_f32 {vr(vSa)}, {vr(vCa)}
    v_cos_f32 {vr(vCa)}, {vr(vCa)}
    v_mul_f32 {vr(vSa)}, {fbits(1/32)}, {vr(vSa)}
    v_mul_f32 {vr(vCa)}, {fbits(1/32)}, {vr(vCa)}
    v_cvt_pk_f16_f32 {vr(vSa)}, {vr(vSa)}, {vr(vSa)}
    v_cvt_pk_f16_f32 {vr(vCa)}, {vr(vCa)}, {vr(vCa)}
    s_waitcnt vmcnt(0)""")
    stamp('xsel')
    ffn(PART0)
    stamp('ffn0')
    column(HB1, YB1, True)
    stamp('P4 stored')
    finish_here('P4')
    reducer(PART0, False)
    stamp('red0')
    lb = g.lab('nobase')
    e(f's_cmp_ge_u32 {sr(sW)}, 2\ns_cbranch_scc1 {lb}')
    e(f'v_lshlrev_b32 {vr(t(21))}, 5, {vr(vL)}')
    poll(f'buffer_load_dwordx4 {vr(FX,4)}, {vr(t(21))}, {sr(sWS,4)}, {sr(sRec)} offen offset:1152 sc1\n'
         f'buffer_load_dwordx4 {vr(FX+4,4)}, {vr(t(21))}, {sr(sWS,4)}, {sr(sRec)} offen offset:1168 sc1', range(FX, FX+8), preloaded=True)
    stats1(FX, t(0), FO)
    e(f'{lb}:')
    e('s_waitcnt vmcnt(0)')
    row_input(YB1, KB1)
    stamp('y1 read')
    lj = g.lab('fixj'); lq = g.lab('fix'); lu = g.lab('ownu'); lv = g.lab('ownv')
    U = t(16)
    updld = lambda areg: (ws_load_text(4, U, areg, sr(sOff)) + '\n' + ws_load_text(4, U+4, areg, sr(sOff), 'offset:16'))
    def owner_add():
        l1 = g.lab('nu'); l2 = g.lab('nv')
        e(f's_cmp_lg_u32 {sr(sStar)}, {sr(sRowU)}\ns_cbranch_scc1 {l1}')
        for k in range(4): e(f'v_pk_add_f32 {vr(XU+2*k,2)}, {vr(XU+2*k,2)}, {vr(U+2*k,2)}')
        e(f'{l1}:')
    e(f"""v_lshlrev_b32 {vr(t(44))}, 5, {vr(vL)}
    s_mov_b32 {sr(sOff)}, {UPD0}""")
    lnv = g.lab('notv')
    e(f"""s_cmp_lg_u32 {sr(sStar)}, {sr(sRowV)}
    s_cbranch_scc1 {lnv}
    v_sub_u32 {vr(t(45))}, {63*32}, {vr(t(44))}""")
    poll(updld(t(45)), range(U, U+8), backoff=4)
    e(f'v_mov_b32_dpp {vr(t(46))}, {vr(U)} wave_ror:1 {DPP}')
    for k in range(1, 8): e(f'v_add_f32 {vr(XV+k)}, {vr(XV+k)}, {vr(U+8-k)}')
    e(f'v_add_f32 {vr(XV)}, {vr(XV)}, {vr(t(46))}\n{lnv}:')
    e(f"""s_cmp_lt_u32 {sr(sW)}, 2
    s_cbranch_scc1 {lq}
    s_cmp_lg_u32 {sr(sStar)}, {sr(sRowU)}
    s_cbranch_scc1 {lj}""")
    poll(updld(t(44)), range(U, U+8), backoff=4)
    owner_add()
    e(f's_branch {lj}\n{lq}:')
    poll(updld(t(44)), range(U, U+8), backoff=4)
    stamp('upd')
    owner_add()
    for k in range(4): e(f'v_pk_add_f32 {vr(FX+2*k,2)}, {vr(FX+2*k,2)}, {vr(U+2*k,2)}')
    stats1(FX, t(32), FX)
    for k in range(4): e(f'v_pk_add_f32 {vr(FX+2*k,2)}, {vr(FX+2*k,2)}, {vr(FO+2*k,2)} neg_lo:[0,1] neg_hi:[0,1]')
    write_n(FX, t(24)); write_r(FX, t(40))
    A, B = CA, t(40)
    for k in range(8): e(f'v_mov_b32 {vr(FO+k)}, {vr(YH+k)}')
    e(f"""s_mov_b32 {sr(sT)}, 0x3c003c00
    s_cmp_eq_u32 {sr(sW)}, 0
    s_cselect_b32 {sr(sSgn)}, {sr(sT)}, 0xbc00bc00
    s_waitcnt lgkmcnt(0)
    ds_read_b64_tr_b16 {vr(A,2)}, {vr(lTr)} offset:{GIMG}
    ds_read_b64_tr_b16 {vr(B,2)}, {vr(lTr)} offset:{RIMG}
    ds_read_b64_tr_b16 {vr(A+2,2)}, {vr(lTr)} offset:{GIMG+128}
    ds_read_b64_tr_b16 {vr(B+2,2)}, {vr(lTr)} offset:{RIMG+128}
    s_waitcnt lgkmcnt(0)""")
    for k in range(4): e(f'v_pk_fma_f16 {vr(A+k)}, {vr(B+k)}, {sr(sSgn)}, {vr(A+k)}')
    core(A, CO)
    for k in range(4): e(f'v_cvt_pk_f16_f32 {vr(t(44)+k)}, {vr(CO+2*k)}, {vr(CO+2*k+1)}')
    e(f"""v_lshl_add_u32 {vr(t(0))}, {vr(vQ)}, 7, {vr(vN)}
    v_lshlrev_b32 {vr(t(1))}, 7, {vr(vQ)}
    v_sub_u32 {vr(t(1))}, {32*23}, {vr(t(1))}
    v_add_u32 {vr(t(1))}, {vr(t(1))}, {vr(vN)}
    v_cmp_gt_u32 vcc, 2, {vr(vQ)}
    v_cndmask_b32 {vr(t(0))}, {vr(t(1))}, {vr(t(0))}, vcc
    v_lshlrev_b32 {vr(t(0))}, 1, {vr(t(0))}
    s_lshl_b32 {sr(sT)}, {sr(sW)}, 10
    v_add_u32 {vr(t(0))}, {sr(sT)}, {vr(t(0))}
    v_mov_b32 {vr(t(2))}, 64
    v_mov_b32 {vr(t(3))}, -64
    v_cndmask_b32 {vr(t(2))}, {vr(t(3))}, {vr(t(2))}, vcc""")
    for i in range(4):
        op = 'ds_write_b16' if i % 2 == 0 else 'ds_write_b16_d16_hi'
        for Tt in range(2):
            e(f'{op} {vr(t(0))}, {vr(t(44)+2*Tt+i//2)} offset:{RIMG + 2048 + 32*Tt}')
        if i < 3: e(f'v_add_u32 {vr(t(0))}, {vr(t(0))}, {vr(t(2))}')
    for k in range(8): e(f'v_mov_b32 {vr(YH+k)}, {vr(FO+k)}')
    e(f"""{lj}:
    s_waitcnt lgkmcnt(0)
    s_barrier
    v_lshlrev_b32 {vr(t(0))}, 4, {vr(vL)}
    ds_read_b128 {vr(t(16),4)}, {vr(t(0))} offset:{RIMG+2048}
    ds_read_b128 {vr(t(20),4)}, {vr(t(0))} offset:{RIMG+2048+1024}
    s_waitcnt lgkmcnt(1)""")
    lsp = g.lab('fsp')
    for k in range(4): e(f'v_pk_fma_f16 {vr(YH+k)}, {vr(t(16)+k)}, {vr(vCa)}, {vr(YH+k)}')
    e(f'''s_cmp_lg_u32 {sr(sRowU)}, 0
    s_cbranch_scc1 {lsp}
    s_mov_b32 {sr(sT)}, 0x28002800
    s_bitcmp0_b32 {sr(sStar)}, 0
    s_cselect_b32 {sr(sT)}, {sr(sT)}, 0xa800a800''')
    for k in range(4): e(f'v_pk_fma_f16 {vr(YV+k)}, {vr(t(16)+k)}, {sr(sT)}, {vr(YV+k)}')
    e(f'{lsp}:\ns_waitcnt lgkmcnt(0)')
    for k in range(4): e(f'v_pk_fma_f16 {vr(YH+k)}, {vr(t(20)+k)}, {vr(vSa)}, {vr(YH+k)}')
    add_y_pair()
    stamp('fixed')
    stats2(True)
    make_key()
    residual_coeffs()
    e('s_waitcnt lgkmcnt(0)\ns_barrier')
    wg_best_read(t(24))
    residual_update(XU, XV)
    e('s_waitcnt lgkmcnt(0)')
    wg_best_header(CAND1, t(24))
    publish_rows(CAND1)
    e('s_waitcnt vmcnt(0)\ns_barrier')
    stamp('cand1')
    header_load(CAND1, K)
    e('s_waitcnt vmcnt(0)')
    argmax(CAND1, K)
    stamp('argmax1')
    lb = g.lab('nox')
    e(f's_cmp_ge_u32 {sr(sPhi)}, {NF}\ns_cbranch_scc1 {lb}')
    xsel_load()
    e(f'{lb}:')
    sigmoid_of_key()
    ln = g.lab('noout')
    e(f's_cmp_eq_u32 {sr(sStar)}, {sr(sRowU)}\ns_cbranch_scc1 {ln}')
    for k in range(4): e(f'v_cvt_pk_bf16_f32 {vr(t(24)+k)}, {vr(XU+2*k)}, {vr(XU+2*k+1)}')
    e(f'buffer_store_dwordx4 {vr(t(24),4)}, {vr(aU)}, {sr(sOUT,4)}, 0 offen sc1\n{ln}:')
    ln = g.lab('noout')
    e(f's_cmp_eq_u32 {sr(sStar)}, {sr(sRowV)}\ns_cbranch_scc1 {ln}')
    e(f"""v_mov_b32_dpp {vr(t(32))}, {vr(XV)} wave_rol:1 {DPP}
    v_cvt_pk_bf16_f32 {vr(t(29))}, {vr(XV+6)}, {vr(XV+5)}
    v_cvt_pk_bf16_f32 {vr(t(30))}, {vr(XV+4)}, {vr(XV+3)}
    v_cvt_pk_bf16_f32 {vr(t(31))}, {vr(XV+2)}, {vr(XV+1)}
    v_cvt_pk_bf16_f32 {vr(t(28))}, {vr(t(32))}, {vr(XV+7)}
    buffer_store_dwordx4 {vr(t(28),4)}, {vr(aV)}, {sr(sOUT,4)}, 0 offen sc1
    {ln}:""")
    e('s_waitcnt vmcnt(0)')
    ffn(PART1)
    stamp('ffn1')
    e('s_waitcnt vmcnt(0)')
    reducer(PART1, True)
    stamp('end')
    e('L_done:')
    if stamps:
        ls = g.lab('nost')
        e(f"""s_cmp_ge_u32 s2, 256
        s_cbranch_scc1 {ls}
        s_waitcnt vmcnt(0)
        s_mov_b64 exec, -1
        s_lshl_b32 {sr(sT)}, {sr(sWg)}, 11
        s_lshl_b32 {sr(sT2)}, {sr(sW)}, 8
        s_add_u32 {sr(sT)}, {sr(sT)}, {sr(sT2)}
        v_and_b32 {vr(t(0))}, 63, v0
        v_lshlrev_b32 {vr(t(0))}, 2, {vr(t(0))}
        v_add_u32 {vr(t(0))}, {sr(sT)}, {vr(t(0))}
        s_mov_b32 {sr(sOff)}, {STAMP}
        buffer_store_dword {vr(vStamp)}, {vr(t(0))}, {sr(sWS,4)}, {sr(sOff)} offen
        {ls}:""")
    e('s_endpgm')
    loader()
    for ls, lj in g.late:
        e(f'{ls}:')
        add_y(YH, YV)
        e(f's_branch {lj}')
    emit_tail()
    return g

def render(g):
    lines, added = pad(g.L)
    body = '\n'.join(('' if l.endswith(':') else '    ') + l for l in lines)
    ninstr = sum(1 for l in lines if not l.endswith(':'))
    hdr = f"""; FNet (2-D real DFT via Hartley factorisation on MFMA) + top-1 routed SwiGLU, two layers, one persistent launch.
; @launch grid=(256,1,1) block=(320,1,1) lds={LDS_SIZE}
.amdgcn_target "amdgcn-amd-amdhsa--gfx950"
.text
.globl {NAME}
.p2align 8
.type {NAME},@function
{NAME}:
"""
    tab = '\n'.join('.long ' + ','.join('0x%08x' % x for x in TAB[i:i+8]) for i in range(0, len(TAB), 8))
    tail = f"""
L_code_end:
.p2align 8
L_tab:
{tab}
.section .rodata,"a"
.p2align 6
.amdhsa_kernel {NAME}
  .amdhsa_next_free_vgpr 256
  .amdhsa_next_free_sgpr 102
  .amdhsa_accum_offset 256
  .amdhsa_group_segment_fixed_size 0
  .amdhsa_kernarg_size 104
  .amdhsa_user_sgpr_count 2
  .amdhsa_user_sgpr_kernarg_segment_ptr 1
  .amdhsa_system_sgpr_workgroup_id_x 1
.end_amdhsa_kernel
"""
    return hdr + body + tail, ninstr, added

if __name__ == '__main__':
    import argparse
    ap = argparse.ArgumentParser()
    ap.add_argument('-o', default='interleave_layers__spectral_fnet__moe_arch_mod__prompt.s')
    ap.add_argument('--stop'); ap.add_argument('--stamps', action='store_true'); ap.add_argument('--opt', default='')
    a = ap.parse_args()
    g = build(a.stop, a.stamps, {k.split('=')[0]: (k.split('=')+['1'])[1] for k in a.opt.split(',') if k})
    txt, n, added = render(g)
    open(a.o, 'w').write(txt)
    print(f'{n} instructions, {added} nop slots added, vgpr high {g.v.n}, sgpr high {g.s.n}')
```

```python
import sys, struct, math
from asmlib import pad, Alloc
import tables

NAME = "interleave_layers__spectral_fnet__moe_arch_mod__prompt_kernel"
NONCE = 0x000000
HB0, YB0, HB1, YB1 = 0x100000, 0x300000, 0x400000, 0x500000
CAND0, CAND1 = 0x600000, 0x700000
PART0, PART1 = 0x800000, 0x880000
UPD0 = 0x900000
KB0, KB1 = 0x901000, 0x902000
HINT = 0x903000
STAMP = 0x980000
WS_SIZE = 0xA00000
NF = 172
RED0 = 8
LIMIT = 40000
NPOIS = 64
YIMG = 0
GIMG = 5120
RIMG = 9216
HIMG = 13312
CIN = 17472
COUT = 21568
KIMG = 25664
FP = 26752
AM = 27008
RED = 27072
GU = 27392
DN = GU + 16384
LDS_SIZE = DN + 8192
LMAP = dict(YIMG=YIMG, GIMG=GIMG, RIMG=RIMG, HIMG=HIMG, CIN=CIN, COUT=COUT)
TAB, TOFF = tables.build_tables(LMAP)

def fbits(x): return '0x%08x' % struct.unpack('<I', struct.pack('<f', x))[0]

class G:
    def __init__(self, stop=None, stamps=False):
        self.L = []; self.stop = stop; self.stamps = stamps; self.uid = 0; self.nstamp = 0; self.names = []
        self.v = Alloc(1, 256, 'v'); self.s = Alloc(3, 100, 's')
    def e(self, text):
        for l in text.strip('\n').split('\n'):
            l = l.strip()
            if l: self.L.append(l)
    def lab(self, p):
        self.uid += 1; return f'L_{p}_{self.uid}'

def vr(a, n=1): return f'v{a}' if n == 1 else f'v[{a}:{a+n-1}]'
def sr(a, n=1): return f's{a}' if n == 1 else f's[{a}:{a+n-1}]'
DPP = 'row_mask:0xf bank_mask:0xf'
PKB = 'op_sel:[0,0,1] op_sel_hi:[1,0,1]'

def build(stop=None, stamps=False, opt=None):
    opt = opt or {}
    g = G(stop, stamps); e = g.e; V = g.v; S = g.s
    sWS = S('ws', 4, 4); sXS = S('xsrd', 4, 4); sOUT = S('out', 4, 4); sT4 = S('tmpsrd', 4, 4)
    sRho = S('rho'); sW = S('w'); sRowU = S('rowu'); sRowV = S('rowv'); sVs = S('vs'); sOff = S('off'); sCnt = S('cnt')
    sT = S('t'); sT2 = S('t2'); sT3 = S('t3'); s16 = S('k16'); sStar = S('star'); sRec = S('rec'); sWg = S('wg'); sSW = S('sw')
    sCu = S('cu', 2, 2); sCv = S('cv', 2, 2); sEx = S('exsave', 2, 2)
    sAu = S('au', 2, 2); sAv = S('av', 2, 2); sKu = S('ku', 2, 2); sKv = S('kv', 2, 2); sKeyU = S('keyu'); sKeyV = S('keyv'); sKey = S('key')
    sTag = S('tag'); sH = S('h', 8, 2); sTm = S('tm', 2, 2); sPC = S('pc', 2, 2); sM2 = S('m2', 2, 2); sPhi = S('phi'); sSgn = S('sgn')
    sKA = S('ka', 16, 4); sKB = S('kb', 8, 4); sKC = S('kc', 2, 2)
    vL = V('lane'); vN = V('n'); vQ = V('q')
    XU = V('XU', 8, 4); XV = V('XV', 8, 4); WU = V('WU', 8, 2); WV = V('WV', 8, 2)
    RB1 = V('RB1', 16, 4); RC = V('RC', 8, 2); RS = V('RS', 8, 2); RA2 = V('RA2', 4, 4)
    CB1 = V('CB1', 8, 4); CK = V('CK', 32, 2); CA2 = V('CA2', 16, 4)
    assert RC == RB1+16 and RS == RB1+24 and RA2 == RB1+32 and CK == CB1+8
    FA = V('FA', 16, 4); FD = V('FD', 16, 4)
    AD = V('addr', 16, 4)
    lRow, lTr, lRw, lCr, lH, _, lHf, _, lCa, lCb, lCc, lYd = range(AD, AD+12)
    lCo = AD + 12; lYm = AD + 15
    aU = V('aU'); aV = V('aV'); aP16 = V('aP16'); aS16 = V('aS16'); aHdr = V('aHdr'); aP8 = V('aP8')
    lYm4 = V('lYm4'); lG = V('lG')
    vRowH = V('rowh'); vSig = V('sig'); vSent = V('sent'); vCa = V('cosa'); vSa = V('sina'); vStamp = V('stamp')
    FX = V('FX', 8, 4); FO = V('FO', 8, 4)
    NT = 256 - ((V.n + 3)//4*4)
    T = V('T', NT, 4)
    def t(i):
        assert i < NT, i
        return T + i
    DU, DV = t(0), t(8)

    def stamp(name=''):
        if not g.stamps: return
        if opt.get('only') and name not in opt['only'].split('+'): return
        e(f'''s_memrealtime {sr(sTm,2)}
        s_waitcnt lgkmcnt(0)
        v_writelane_b32 {vr(vStamp)}, {sr(sTm)}, {g.nstamp}''')
        g.nstamp += 1; g.names.append(name)
    def finish_here(tag):
        if g.stop == tag: e('s_branch L_done')

    def sentinel(regs):
        if isinstance(regs, tuple) and regs[0] == 'tag':
            P = regs[1]
            e(f'''v_bitop3_b32 {vr(vSent)}, {vr(P+1)}, {vr(P+3)}, {sr(sTag)} bitop3:0x7e
            v_bitop3_b32 {vr(P+1)}, {vr(P+5)}, {vr(P+7)}, {sr(sTag)} bitop3:0x7e
            v_or_b32 {vr(vSent)}, {vr(vSent)}, {vr(P+1)}
            v_cmp_ne_u32 vcc, 0, {vr(vSent)}''')
            return
        regs = list(regs); tm = vSent
        if len(regs) == 1:
            e(f'v_cmp_eq_u32 vcc, -1, {vr(regs[0])}')
        else:
            if len(regs) >= 3:
                e(f'v_max3_u32 {vr(tm)}, {vr(regs[0])}, {vr(regs[1])}, {vr(regs[2])}'); rest = regs[3:]
            else:
                e(f'v_max_u32 {vr(tm)}, {vr(regs[0])}, {vr(regs[1])}'); rest = []
            while len(rest) >= 2:
                e(f'v_max3_u32 {vr(tm)}, {vr(tm)}, {vr(rest[0])}, {vr(rest[1])}'); rest = rest[2:]
            if rest: e(f'v_max_u32 {vr(tm)}, {vr(tm)}, {vr(rest[0])}')
            e(f'v_cmp_eq_u32 vcc, -1, {vr(tm)}')
    def poll(load, regs, backoff=2, preloaded=False):
        lp = g.lab('poll'); ok = g.lab('ok')
        if preloaded:
            sentinel(regs)
            e(f's_cbranch_vccnz {lp}\n{ok}:')
            g.tail.append((lp, ok, load, regs if isinstance(regs, tuple) else list(regs), backoff))
        else:
            e(load); e('s_waitcnt vmcnt(0)')
            sentinel(regs)
            e(f's_cbranch_vccnz {lp}\n{ok}:')
            g.tail.append((lp, ok, load, regs if isinstance(regs, tuple) else list(regs), backoff))
    g.tail = []
    g.nbar_mark = None
    def emit_tail():
        for lp, ok, load, regs, backoff in g.tail:
            l2 = lp + '_r'
            e(f'{lp}:\ns_mov_b32 {sr(sCnt)}, 0\n{l2}:\ns_sleep {backoff}')
            e(load)
            e(f'''s_add_u32 {sr(sCnt)}, {sr(sCnt)}, 1
            s_cmp_gt_u32 {sr(sCnt)}, {LIMIT}
            s_cbranch_scc1 L_done
            s_waitcnt vmcnt(0)''')
            sentinel(regs)
            e(f's_cbranch_vccnz {l2}\ns_branch {ok}')
    def srd(dst, ptr, size):
        e(f'''s_mov_b32 {sr(dst)}, {sr(ptr)}
        s_mov_b32 {sr(dst+1)}, {sr(ptr+1)}
        s_mov_b32 {sr(dst+2)}, {size}
        s_mov_b32 {sr(dst+3)}, 0x00020000''')
    def ws_store(n, data, areg, region, extra=''):
        op = {1: 'buffer_store_dword', 2: 'buffer_store_dwordx2', 4: 'buffer_store_dwordx4'}[n]
        e(f's_mov_b32 {sr(sOff)}, {region}\n{op} {vr(data,n)}, {vr(areg)}, {sr(sWS,4)}, {sr(sOff)} offen sc1 {extra}')
    def ws_load_text(n, data, areg, soff, extra=''):
        op = {1: 'buffer_load_dword', 2: 'buffer_load_dwordx2', 4: 'buffer_load_dwordx4'}[n]
        return f'{op} {vr(data,n)}, {vr(areg)}, {sr(sWS,4)}, {soff} offen {extra} sc1'
    PZ = t(40)
    def poison_regs():
        for k in range(4): e(f'v_mov_b32 {vr(PZ+k)}, -1')

    e(f's_cmp_ge_u32 s2, 256\ns_cbranch_scc1 L_done')
    if stamps: e(f's_memrealtime {sr(sM2,2)}')
    e(f'''s_load_dwordx16 {sr(sKA,16)}, s[0:1], 0
    s_load_dwordx8 {sr(sKB,8)}, s[0:1], 64
    s_load_dwordx2 {sr(sKC,2)}, s[0:1], 96''')
    e(f'''s_getpc_b64 {sr(sPC,2)}
    L_pc:
    v_lshlrev_b32 {vr(t(0))}, 7, v0
    v_min_u32 {vr(t(0))}, L_code_end-L_pc-4, {vr(t(0))}
    global_load_dword {vr(vSig)}, {vr(t(0))}, {sr(sPC,2)}
    s_add_u32 {sr(sPC)}, {sr(sPC)}, L_tab-L_pc
    s_addc_u32 {sr(sPC+1)}, {sr(sPC+1)}, 0''')
    e(f'''s_mov_b32 {sr(sWg)}, s2
    s_and_b32 {sr(sT)}, s2, 7
    s_lshl_b32 {sr(sT)}, {sr(sT)}, 5
    s_lshr_b32 {sr(sRho)}, s2, 3
    s_or_b32 {sr(sRho)}, {sr(sRho)}, {sr(sT)}
    v_lshrrev_b32 {vr(t(1))}, 6, v0
    v_and_b32 {vr(vL)}, 63, v0
    v_readfirstlane_b32 {sr(sW)}, {vr(t(1))}
    v_lshlrev_b32 {vr(t(2))}, 4, {vr(vL)}
    v_sub_u32 {vr(t(3))}, 1008, {vr(t(2))}
    s_lshl_b32 {sr(sT)}, {sr(sRho)}, 2
    s_add_u32 {sr(sRowU)}, {sr(sT)}, {sr(sW)}
    s_sub_u32 {sr(sRowV)}, 2048, {sr(sRowU)}
    s_cmp_eq_u32 {sr(sRowU)}, 0
    s_cselect_b32 {sr(sRowV)}, 1024, {sr(sRowV)}
    s_lshl_b32 {sr(sT)}, {sr(sRowU)}, 10
    s_lshl_b32 {sr(sT2)}, {sr(sRowV)}, 10
    v_add_u32 {vr(aU)}, {sr(sT)}, {vr(t(2))}
    v_add_u32 {vr(aV)}, {sr(sT2)}, {vr(t(3))}
    v_lshlrev_b32 {vr(lG)}, 4, v0
    s_waitcnt lgkmcnt(0)''')
    kx, kwr, kwg = sKA + 0, sKA + 12, sKA + 14
    kwu, kwd, kout, kdbg = sKB + 0, sKB + 2, sKB + 4, sKB + 6
    URAW, VRAW = t(8), t(12)
    WURAW, WVRAW = FX, FX + 4
    e(f's_sub_u32 {sr(sPhi)}, {sr(sRho)}, 1\ns_cmp_eq_u32 {sr(sW)}, 4\ns_cbranch_scc1 L_loader')
    srd(sXS, kx, 2097152)
    e(f'''buffer_load_dwordx4 {vr(URAW,4)}, {vr(aU)}, {sr(sXS,4)}, 0 offen
    buffer_load_dwordx4 {vr(VRAW,4)}, {vr(aV)}, {sr(sXS,4)}, 0 offen''')
    srd(sWS, sKC, WS_SIZE)
    e(f'v_mov_b32 {vr(vCa)}, {NONCE}\nbuffer_load_dword {vr(vCa)}, {vr(vCa)}, {sr(sWS,4)}, 0 offen')
    nvm = [1]
    def tab_loads(dst, n, areg, off, stride):
        k = 0
        while k < n:
            base = off + k*stride
            per = {1024: 4, 4096: 1}[stride]
            e(f'v_add_u32 {vr(t(4))}, {base}, {vr(areg)}')
            for kk in range(min(per, n-k)):
                e(f'global_load_dwordx4 {vr(dst+4*(k+kk),4)}, {vr(t(4))}, {sr(sPC,2)} offset:{kk*stride}')
                nvm[0] += 1
            k += per
    tab_loads(AD, 4, lG, TOFF['addr'], 4096)
    tab_loads(RB1, 9, t(2), TOFF['row'], 1024)
    N_ROWTAB = nvm[0]
    if stamps:
        e(f'v_mov_b32 {vr(vStamp)}, 0\nv_writelane_b32 {vr(vStamp)}, {sr(sM2)}, 0'); g.nstamp = 1; g.names.append('start')
    poison_regs()
    e(f'''s_lshl_b32 {sr(sT)}, {sr(sRho)}, 12
    v_add_u32 {vr(aP16)}, {sr(sT)}, {vr(lG)}''')
    ws_store(4, PZ, aP16, YB0)
    e(f'''v_mov_b32 {vr(t(5))}, 0x7f000000
    v_cmp_gt_u32 vcc, 64, v0
    s_cmp_eq_u32 {sr(sRho)}, 0
    s_cselect_b64 {sr(sEx,2)}, vcc, 0
    v_cndmask_b32 {vr(t(5))}, {vr(t(5))}, {vr(lG)}, {sr(sEx,2)}''')
    ws_store(4, PZ, t(5), KB0)
    ws_store(4, PZ, t(5), KB1)
    nvm[0] += 3
    N_POISON = nvm[0]
    srd(sT4, kwr, 1024)
    e(f'''buffer_load_dwordx4 {vr(WURAW,4)}, {vr(t(2))}, {sr(sT4,4)}, 0 offen
    buffer_load_dwordx4 {vr(WVRAW,4)}, {vr(t(3))}, {sr(sT4,4)}, 0 offen''')
    nvm[0] += 2
    N_ALL = nvm[0]
    srd(sOUT, kout, 2097152)
    e(f'''s_mov_b32 {sr(s16)}, {fbits(16.0)}
    v_and_b32 {vr(vN)}, 15, {vr(vL)}
    v_lshrrev_b32 {vr(vQ)}, 4, {vr(vL)}''')

    a0, a1, a2, a3 = t(20), t(21), t(22), t(23)
    def addr_misc():
        e(f'''s_lshl_b32 {sr(sT)}, {sr(sRho)}, 4
        v_lshlrev_b32 {vr(aHdr)}, 12, v0
        v_add_u32 {vr(aS16)}, {sr(sT)}, {vr(aHdr)}
        v_mov_b32 {vr(a0)}, {sr(sRowU)}
        v_mov_b32 {vr(a1)}, {sr(sRowV)}
        v_cmp_gt_u32 vcc, 32, {vr(vL)}
        s_lshl_b32 {sr(sT)}, {sr(sPhi)}, 11
        s_cmp_lt_u32 {sr(sPhi)}, {NF}
        s_cselect_b32 {sr(sT)}, {sr(sT)}, 0x7f000000
        v_cndmask_b32 {vr(vRowH)}, {vr(a1)}, {vr(a0)}, vcc
        v_lshlrev_b32 {vr(aP8)}, 3, v0
        v_add_u32 {vr(aP8)}, {sr(sT)}, {vr(aP8)}
        v_mov_b32 {vr(a0)}, 0
        v_lshlrev_b32 {vr(a1)}, 10, {vr(vL)}
        s_mov_b64 exec, 31
        ds_write_b16 {vr(a1)}, {vr(a0)} offset:{YIMG}
        s_mov_b64 exec, -1''')
    def addr_ym4():
        e(f'''s_cmp_eq_u32 {sr(sRho)}, 0
        s_cselect_b32 {sr(sT)}, 4096, 0
        v_add_u32 {vr(lYm4)}, {sr(sT)}, {vr(lYm)}''')

    b0, b1, b2 = t(24), t(25), t(26)
    vTau, vTlo = t(28), t(29)
    def tau_tlo():
        e(f'''s_lshl_b32 {sr(sT)}, {sr(sW)}, 3
        v_and_b32 {vr(vTau)}, 7, {vr(vN)}
        v_add_u32 {vr(vTau)}, {sr(sT)}, {vr(vTau)}
        v_sub_u32 {vr(a0)}, 64, {vr(vTau)}
        v_mov_b32 {vr(a1)}, 32
        v_cmp_eq_u32 {sr(sTm,2)}, 0, {vr(vTau)}
        v_cndmask_b32 {vr(a0)}, {vr(a0)}, {vr(a1)}, {sr(sTm,2)}
        v_cmp_le_u32 vcc, 8, {vr(vN)}
        v_cndmask_b32 {vr(vTlo)}, {vr(vTau)}, {vr(a0)}, vcc
        s_andn2_b64 {sr(sEx,2)}, vcc, {sr(sTm,2)}''')
    c0, c1 = t(30), t(31)
    def cos_seq(dst, base, step, n, amp=None):
        for j in range(0, n, 2):
            e(f'v_cos_f32 {vr(c0)}, {vr(base)}\nv_add_f32 {vr(base)}, {vr(base)}, {vr(step)}')
            e(f'v_cos_f32 {vr(c1)}, {vr(base)}')
            if j + 2 < n: e(f'v_add_f32 {vr(base)}, {vr(base)}, {vr(step)}')
            if amp is not None:
                e(f'v_mul_f32 {vr(c0)}, {amp}, {vr(c0)}\nv_mul_f32 {vr(c1)}, {amp}, {vr(c1)}')
            e(f'v_cvt_pk_f16_f32 {vr(dst + j//2)}, {vr(c0)}, {vr(c1)}')
    fQ, fN, fs, fb, fa, fb2 = t(32), t(33), t(34), t(35), t(36), t(37)
    def col_consts():
        tau_tlo()
        e(f'''v_cvt_f32_u32 {vr(fQ)}, {vr(vQ)}
        v_cmp_le_u32 vcc, 8, {vr(vN)}
        s_and_b64 vcc, vcc, {sr(sTm,2)}
        v_mov_b32 {vr(a1)}, 32
        v_cndmask_b32 {vr(a0)}, {vr(vTau)}, {vr(a1)}, vcc
        v_cvt_f32_u32 {vr(fs)}, {vr(a0)}
        v_mul_f32 {vr(fs)}, {fbits(1/64)}, {vr(fs)}
        v_mov_b32 {vr(fa)}, {fbits(0.25)}
        v_cndmask_b32 {vr(fa)}, 0, {vr(fa)}, {sr(sEx,2)}
        v_mul_f32 {vr(fb)}, {fbits(8.0)}, {vr(fQ)}
        v_fma_f32 {vr(fb)}, {vr(fb)}, {vr(fs)}, {vr(fa)}''')
        cos_seq(CB1, fb, fs, 8)
        e(f'''v_and_b32 {vr(a0)}, 1, {vr(a0)}
        v_mul_u32_u24 {vr(a0)}, 0x8000, {vr(a0)}
        v_lshl_or_b32 {vr(a0)}, {vr(a0)}, 16, {vr(a0)}''')
        for k in range(4): e(f'v_xor_b32 {vr(CB1+4+k)}, {vr(a0)}, {vr(CB1+k)}')
        e(f'''v_cvt_f32_u32 {vr(fs)}, {vr(vTlo)}
        v_mul_f32 {vr(fs)}, {fbits(1/2048)}, {vr(fs)}
        v_mul_f32 {vr(fb)}, {vr(fQ)}, {vr(fs)}
        v_fma_f32 {vr(fb)}, {vr(fb)}, 4.0, {vr(fa)}
        v_mov_b32 {vr(a1)}, {fbits(0.25)}
        v_cndmask_b32 {vr(a1)}, {vr(a1)}, 0, {sr(sTm,2)}''')
        e(f'v_add_f32 {vr(fb2)}, {fbits(-0.25)}, {vr(fb)}')
        e(f'v_mul_f32 {vr(a2)}, {fbits(12.0)}, {vr(fs)}')
        for Tt in range(2):
            for i in range(4):
                k = CK + 16*Tt
                e(f'''v_cos_f32 {vr(c0)}, {vr(fb)}
                v_cos_f32 {vr(c1)}, {vr(fb2)}
                v_add_f32 {vr(fb)}, {vr(fb)}, {vr(fs)}
                v_add_f32 {vr(fb2)}, {vr(fb2)}, {vr(fs)}
                v_mul_f32 {vr(k+i)}, {fbits(0.25)}, {vr(c0)}
                v_mul_f32 {vr(k+4+i)}, {vr(a1)}, {vr(c1)}
                v_mul_f32 {vr(k+8+i)}, {fbits(-0.25)}, {vr(c1)}
                v_mul_f32 {vr(k+12+i)}, {vr(a1)}, {vr(c0)}''')
            if Tt == 0: e(f'v_add_f32 {vr(fb)}, {vr(fb)}, {vr(a2)}\nv_add_f32 {vr(fb2)}, {vr(fb2)}, {vr(a2)}')
        e(f'''v_cvt_f32_u32 {vr(fs)}, {vr(vN)}
        v_mul_f32 {vr(fs)}, {fbits(1/32)}, {vr(fs)}
        v_mul_f32 {vr(fb2)}, {vr(fQ)}, {vr(fs)}
        v_mul_f32 {vr(fb2)}, 4.0, {vr(fb2)}''')
        for part, ph in ((0, -0.125), (1, -0.375)):
            e(f'v_add_f32 {vr(fb)}, {fbits(ph)}, {vr(fb2)}')
            cos_seq(CA2 + 2*part, fb, fs, 4, amp=fbits(math.sqrt(2)/8))
        e(f'''v_and_b32 {vr(a0)}, 1, {vr(vN)}
        v_mul_u32_u24 {vr(a0)}, 0x8000, {vr(a0)}
        v_lshl_or_b32 {vr(a0)}, {vr(a0)}, 16, {vr(a0)}''')
        for k in range(4):
            e(f'v_xor_b32 {vr(CA2+4+k)}, {vr(a0)}, {vr(CA2+k)}')
        for k in range(8):
            e(f'v_xor_b32 {vr(CA2+8+k)}, 0x80000000, {vr(CA2+k)}')

    def unpack_nat(dst, src):
        for k in range(4):
            e(f'v_lshlrev_b32 {vr(dst+2*k)}, 16, {vr(src+k)}\nv_and_b32 {vr(dst+2*k+1)}, 0xffff0000, {vr(src+k)}')
    def unpack_rev(dst, src, tmp):
        e(f'''v_lshlrev_b32 {vr(tmp)}, 16, {vr(src)}
        v_and_b32 {vr(dst+7)}, 0xffff0000, {vr(src)}
        v_lshlrev_b32 {vr(dst+6)}, 16, {vr(src+1)}
        v_and_b32 {vr(dst+5)}, 0xffff0000, {vr(src+1)}
        v_mov_b32_dpp {vr(dst)}, {vr(tmp)} wave_ror:1 {DPP}
        v_lshlrev_b32 {vr(dst+4)}, 16, {vr(src+2)}
        v_and_b32 {vr(dst+3)}, 0xffff0000, {vr(src+2)}
        v_lshlrev_b32 {vr(dst+2)}, 16, {vr(src+3)}
        v_and_b32 {vr(dst+1)}, 0xffff0000, {vr(src+3)}''')
    def half_reduce(regs, tmps, op='v_add_f32'):
        for sh in (8, 4, 2, 1):
            for r in regs: e(f'{op}_dpp {vr(r)}, {vr(r)}, {vr(r)} row_ror:{sh} {DPP}')
        for r, tm in zip(regs, tmps): e(f'v_mov_b32 {vr(tm)}, {vr(r)}')
        for r, tm in zip(regs, tmps): e(f'v_permlane16_swap_b32 {vr(r)}, {vr(tm)}')
        for r, tm in zip(regs, tmps): e(f'{op} {vr(r)}, {vr(r)}, {vr(tm)}')
    def wave_reduce(regs, tmps, op='v_add_f32'):
        half_reduce(regs, tmps, op)
        for r, tm in zip(regs, tmps): e(f'v_mov_b32 {vr(tm)}, {vr(r)}')
        for r, tm in zip(regs, tmps): e(f'v_permlane32_swap_b32 {vr(r)}, {vr(tm)}')
        for r, tm in zip(regs, tmps): e(f'{op} {vr(r)}, {vr(r)}, {vr(tm)}')
    hM, hVar, hRho, hB, hR = t(40), t(41), t(42), t(43), t(44)
    def partial(Dd, src, sC, w, o1, o2, o3, P):
        e(f'v_readfirstlane_b32 {sr(sC)}, {vr(src)}')
        for k in range(4):
            e(f'v_pk_add_f32 {vr(Dd+2*k,2)}, {vr(src+2*k,2)}, {sr(sC,2)} op_sel_hi:[1,0] neg_lo:[0,1] neg_hi:[0,1]')
        e(f'''v_pk_add_f32 {vr(P,2)}, {vr(Dd,2)}, {vr(Dd+2,2)}
        v_pk_mul_f32 {vr(P+2,2)}, {vr(Dd,2)}, {vr(Dd,2)}
        v_pk_add_f32 {vr(P+4,2)}, {vr(Dd+4,2)}, {vr(Dd+6,2)}''')
        if w is not None: e(f'v_pk_mul_f32 {vr(P+6,2)}, {vr(Dd,2)}, {vr(w,2)}')
        for k in range(1, 4):
            e(f'v_pk_fma_f32 {vr(P+2,2)}, {vr(Dd+2*k,2)}, {vr(Dd+2*k,2)}, {vr(P+2,2)}')
            if w is not None: e(f'v_pk_fma_f32 {vr(P+6,2)}, {vr(Dd+2*k,2)}, {vr(w+2*k,2)}, {vr(P+6,2)}')
            if k == 1: e(f'v_pk_add_f32 {vr(P,2)}, {vr(P,2)}, {vr(P+4,2)}')
        e(f'v_add_f32 {vr(o1)}, {vr(P)}, {vr(P+1)}\nv_add_f32 {vr(o2)}, {vr(P+2)}, {vr(P+3)}')
        if w is not None: e(f'v_add_f32 {vr(o3)}, {vr(P+6)}, {vr(P+7)}')
    def moments(S1, S2):
        e(f'''v_mul_f32 {vr(hM)}, {fbits(1/512)}, {vr(S1)}
        v_mul_f32 {vr(S2)}, {fbits(1/512)}, {vr(S2)}
        v_fma_f32 {vr(hVar)}, -{vr(hM)}, {vr(hM)}, {vr(S2)}
        v_max_f32 {vr(hVar)}, 0, {vr(hVar)}
        v_add_f32 {vr(S2)}, {fbits(1e-5)}, {vr(hVar)}
        v_rsq_f32 {vr(hRho)}, {vr(S2)}''')
    def stats2(with_r):
        a1_, a2_, a3_, b1_, b2_, b3_ = t(16), t(17), t(18), t(19), t(20), t(21)
        partial(DU, XU, sCu, WU if with_r else None, a1_, a2_, a3_, t(24))
        partial(DV, XV, sCv, WV if with_r else None, b1_, b2_, b3_, t(32))
        pairs = [(a1_, b1_), (a2_, b2_)] + ([(a3_, b3_)] if with_r else [])
        for x, y in pairs: e(f'v_permlane32_swap_b32 {vr(x)}, {vr(y)}')
        for x, y in pairs: e(f'v_add_f32 {vr(x)}, {vr(x)}, {vr(y)}')
        half_reduce([x for x, _ in pairs], [y for _, y in pairs])
        moments(a1_, a2_)
        if with_r: e(f'v_fma_f32 {vr(a3_)}, -{vr(hM)}, {sr(sSW)}, {vr(a3_)}')
        e(f'v_mul_f32 {vr(hB)}, -{vr(hM)}, {vr(hRho)}')
        if with_r: e(f'v_mul_f32 {vr(hR)}, {vr(hRho)}, {vr(a3_)}')
    def stats1(src, Dd, dst):
        partial(Dd, src, sCu, None, t(16), t(17), None, t(24))
        wave_reduce([t(16), t(17)], [t(18), t(19)])
        moments(t(16), t(17))
        e(f'''v_readfirstlane_b32 {sr(sKu)}, {vr(hRho)}
        v_mul_f32 {vr(hB)}, -{vr(hM)}, {vr(hRho)}
        v_readfirstlane_b32 {sr(sKu+1)}, {vr(hB)}''')
        for k in range(4): e(f'v_pk_fma_f32 {vr(dst+2*k,2)}, {vr(Dd+2*k,2)}, {sr(sKu,2)}, {sr(sKu,2)} {PKB}')
    def residual_coeffs():
        e(f'''v_mov_b32 {vr(t(22))}, {sr(sCu)}
        v_mov_b32 {vr(t(23))}, {sr(sCv)}
        v_cmp_gt_u32 vcc, 32, {vr(vL)}
        v_add_f32 {vr(t(21))}, 1.0, {vr(hRho)}
        v_cndmask_b32 {vr(t(22))}, {vr(t(23))}, {vr(t(22))}, vcc
        v_add_f32 {vr(t(22))}, {vr(t(22))}, {vr(hB)}
        v_readlane_b32 {sr(sAu)}, {vr(t(21))}, 0
        v_readlane_b32 {sr(sAv)}, {vr(t(21))}, 32
        v_readlane_b32 {sr(sAu+1)}, {vr(t(22))}, 0
        v_readlane_b32 {sr(sAv+1)}, {vr(t(22))}, 32''')
    def residual_update(dU, dV):
        for k in range(4): e(f'v_pk_fma_f32 {vr(dU+2*k,2)}, {vr(DU+2*k,2)}, {sr(sAu,2)}, {sr(sAu,2)} {PKB}')
        for k in range(4): e(f'v_pk_fma_f32 {vr(dV+2*k,2)}, {vr(DV+2*k,2)}, {sr(sAv,2)}, {sr(sAv,2)} {PKB}')
    def norm_coeffs(scale, bias):
        e(f'''v_readlane_b32 {sr(sKu)}, {vr(scale)}, 0
        v_readlane_b32 {sr(sKu+1)}, {vr(bias)}, 0
        v_readlane_b32 {sr(sKv)}, {vr(scale)}, 32
        v_readlane_b32 {sr(sKv+1)}, {vr(bias)}, 32''')
    GG = t(16)
    def make_g():
        for k in range(4): e(f'v_pk_fma_f32 {vr(GG+2*k,2)}, {vr(DU+2*k,2)}, {sr(sKu,2)}, {sr(sKu,2)} {PKB}')
        for k in range(4): e(f'v_pk_fma_f32 {vr(GG+2*k,2)}, {vr(DV+2*k,2)}, {sr(sKv,2)}, {vr(GG+2*k,2)} op_sel_hi:[1,0,1]')
    def write_n(src, tmp):
        for k in range(4): e(f'v_cvt_pk_f16_f32 {vr(tmp+k)}, {vr(src+2*k)}, {vr(src+2*k+1)}')
        e(f'ds_write_b128 {vr(lRow)}, {vr(tmp,4)} offset:{GIMG}')
    def write_r(src, tmp):
        e(f'''v_mov_b32_dpp {vr(tmp+4)}, {vr(src)} wave_rol:1 {DPP}
        v_cvt_pk_f16_f32 {vr(tmp+1)}, {vr(src+6)}, {vr(src+5)}
        v_cvt_pk_f16_f32 {vr(tmp+2)}, {vr(src+4)}, {vr(src+3)}
        v_cvt_pk_f16_f32 {vr(tmp+3)}, {vr(src+2)}, {vr(src+1)}
        v_cvt_pk_f16_f32 {vr(tmp)}, {vr(tmp+4)}, {vr(src+7)}
        ds_write_b128 {vr(lRw)}, {vr(tmp,4)}''')
    def core(A, O):
        Dr = [t(0), t(8)]; Di = [t(4), t(12)]
        for Tt in range(2):
            e(f'v_mfma_f32_16x16x32_f16 {vr(Dr[Tt],4)}, {vr(A,4)}, {vr(RB1+(2*Tt)*4,4)}, 0')
            e(f'v_mfma_f32_16x16x32_f16 {vr(Di[Tt],4)}, {vr(A,4)}, {vr(RB1+(2*Tt+1)*4,4)}, 0')
        Bo = [t(16), t(20)]; br, bi = t(24), t(28)
        for Tt in range(2):
            for h in range(2):
                c = vr(RC+4*Tt+2*h, 2); s_ = vr(RS+4*Tt+2*h, 2)
                dr = vr(Dr[Tt]+2*h, 2); di = vr(Di[Tt]+2*h, 2)
                e(f'''v_pk_mul_f32 {vr(br+2*h,2)}, {dr}, {c}
                v_pk_mul_f32 {vr(bi+2*h,2)}, {di}, {c}
                v_pk_fma_f32 {vr(br+2*h,2)}, {di}, {s_}, {vr(br+2*h,2)}
                v_pk_fma_f32 {vr(bi+2*h,2)}, {dr}, {s_}, {vr(bi+2*h,2)} neg_lo:[1,0,0] neg_hi:[1,0,0]''')
            e(f'''v_cvt_pk_f16_f32 {vr(Bo[Tt])}, {vr(br)}, {vr(br+1)}
            v_cvt_pk_f16_f32 {vr(Bo[Tt]+1)}, {vr(br+2)}, {vr(br+3)}
            v_cvt_pk_f16_f32 {vr(Bo[Tt]+2)}, {vr(bi)}, {vr(bi+1)}
            v_cvt_pk_f16_f32 {vr(Bo[Tt]+3)}, {vr(bi+2)}, {vr(bi+3)}''')
            e(f'v_mfma_f32_16x16x32_f16 {vr(O+4*Tt,4)}, {vr(RA2,4)}, {vr(Bo[Tt],4)}, 0')

    CA, CO = t(32), t(36)
    def transform(dst_off, tagged=False, pre_core=None, post_scatter=None, pre_store=None):
        write_n(GG, t(24))
        e(f"""s_waitcnt lgkmcnt(0)
        ds_read_b64_tr_b16 {vr(CA,2)}, {vr(lTr)} offset:{GIMG}
        ds_read_b64_tr_b16 {vr(CA+2,2)}, {vr(lTr)} offset:{GIMG+128}""")
        if pre_core: pre_core()
        e('s_waitcnt lgkmcnt(0)')
        core(CA, CO)
        for k in range(4): e(f'v_cvt_pk_f16_f32 {vr(t(44)+k)}, {vr(CO+2*k)}, {vr(CO+2*k+1)}')
        for Tt in range(2):
            for i in range(4):
                op = 'ds_write_b16' if i % 2 == 0 else 'ds_write_b16_d16_hi'
                e(f'{op} {vr(lH+Tt)}, {vr(t(44) + 2*Tt + i//2)} offset:{512*i}')
        e(f'ds_write_b16_d16_hi {vr(lHf)}, {vr(t(45))}\nds_write_b16_d16_hi {vr(lHf+1)}, {vr(t(45))}')
        if post_scatter: post_scatter()
        if tagged:
            e(f"""v_lshlrev_b32 {vr(t(8))}, 3, v0
            s_lshl_b32 {sr(sT)}, {sr(sRho)}, 13
            v_add_u32 {vr(t(9))}, {sr(sT)}, {vr(lG)}""")
            for k in (1, 3, 5, 7): e(f'v_mov_b32 {vr(t(k))}, {sr(sTag)}')
            if pre_store: pre_store()
            e(f"""s_waitcnt lgkmcnt(0)
            s_barrier
            ds_read_b32 {vr(t(0))}, {vr(t(8))} offset:{HIMG}
            ds_read_b32 {vr(t(2))}, {vr(t(8))} offset:{HIMG+4}
            ds_read_b32 {vr(t(4))}, {vr(t(8))} offset:{HIMG+2048}
            ds_read_b32 {vr(t(6))}, {vr(t(8))} offset:{HIMG+2052}
            s_mov_b32 {sr(sOff)}, {dst_off}
            s_mov_b32 {sr(sT)}, {dst_off+4096}
            s_waitcnt lgkmcnt(2)
            buffer_store_dwordx4 {vr(t(0),4)}, {vr(t(9))}, {sr(sWS,4)}, {sr(sOff)} offen sc1
            s_waitcnt lgkmcnt(0)
            buffer_store_dwordx4 {vr(t(4),4)}, {vr(t(9))}, {sr(sWS,4)}, {sr(sT)} offen sc1""")
        else:
            if pre_store: pre_store()
            e(f"""s_waitcnt lgkmcnt(0)
            s_barrier
            ds_read_b128 {vr(t(0),4)}, {vr(lG)} offset:{HIMG}
            s_mov_b32 {sr(sOff)}, {dst_off}
            s_waitcnt lgkmcnt(0)
            buffer_store_dwordx4 {vr(t(0),4)}, {vr(aP16)}, {sr(sWS,4)}, {sr(sOff)} offen sc1""")

    def affine_from_x(sx1x0_u, sx1x0_v, sKu_, sKv_, outU, outV):
        for (xx, cc, kk, oo) in ((sx1x0_u, sCu, sKu_, outU), (sx1x0_v, sCv, sKv_, outV)):
            if xx is None:
                e(f"""v_mov_b32 {vr(t(44))}, {sr(kk)}
                v_mov_b32 {vr(t(45))}, {sr(kk+1)}
                v_fma_f32 {vr(t(45))}, -{vr(t(44))}, {sr(cc)}, {vr(t(45))}""")
            else:
                e(f"""v_rcp_f32 {vr(t(44))}, {sr(xx)}
                v_mov_b32 {vr(t(45))}, {sr(kk+1)}
                v_mul_f32 {vr(t(44))}, {sr(kk)}, {vr(t(44))}
                v_fma_f32 {vr(t(45))}, -{vr(t(44))}, {sr(xx+1)}, {vr(t(45))}""")
            e(f'v_readfirstlane_b32 {sr(oo)}, {vr(t(44))}\nv_readfirstlane_b32 {sr(oo+1)}, {vr(t(45))}')

    def special_k(dst_off, after_residual):
        ln = g.lab('nok')
        e(f's_cmp_lg_u32 {sr(sRowU)}, 0\ns_cbranch_scc1 {ln}')
        affine_from_x(sAu if after_residual else None, sAv if after_residual else None, sKu, sKv, sH, sH+2)
        ZU, ZV = t(0), t(8)
        for k in range(4): e(f'v_pk_fma_f32 {vr(ZU+2*k,2)}, {vr(XU+2*k,2)}, {sr(sH,2)}, {sr(sH,2)} {PKB}')
        for k in range(4): e(f'v_pk_fma_f32 {vr(ZV+2*k,2)}, {vr(XV+2*k,2)}, {sr(sH+2,2)}, {sr(sH+2,2)} {PKB}')
        write_r(ZU, t(16)); write_n(ZV, t(24))
        A, B = CA, t(40)
        e(f"""s_waitcnt lgkmcnt(0)
        ds_read_b64_tr_b16 {vr(A,2)}, {vr(lTr)} offset:{RIMG}
        ds_read_b64_tr_b16 {vr(B,2)}, {vr(lTr)} offset:{GIMG}
        ds_read_b64_tr_b16 {vr(A+2,2)}, {vr(lTr)} offset:{RIMG+128}
        ds_read_b64_tr_b16 {vr(B+2,2)}, {vr(lTr)} offset:{GIMG+128}
        s_waitcnt lgkmcnt(0)""")
        for k in range(4): e(f'v_pk_add_f16 {vr(A+k)}, {vr(A+k)}, {vr(B+k)} neg_lo:[0,1] neg_hi:[0,1]')
        core(A, CO)
        for k in range(4): e(f'v_pk_mul_f32 {vr(CO+2*k,2)}, {vr(CO+2*k,2)}, {sr(sT2 if False else sM2,2)} op_sel_hi:[1,0]' if False else f'v_mul_f32 {vr(CO+2*k)}, {fbits(1/16)}, {vr(CO+2*k)}\nv_mul_f32 {vr(CO+2*k+1)}, {fbits(1/16)}, {vr(CO+2*k+1)}')
        for k in range(4): e(f'v_cvt_pk_f16_f32 {vr(t(44)+k)}, {vr(CO+2*k)}, {vr(CO+2*k+1)}')
        e(f"""v_lshl_add_u32 {vr(t(0))}, {vr(vQ)}, 7, {vr(vN)}
        v_lshlrev_b32 {vr(t(0))}, 1, {vr(t(0))}
        v_sub_u32 {vr(t(1))}, {1024-32-192}, {vr(t(0))}
        v_mov_b32 {vr(t(2))}, 512
        s_mov_b32 exec_lo, -1
        s_mov_b32 exec_hi, 0""")
        for Tt in range(2):
            for i in range(4):
                op = 'ds_write_b16' if i % 2 == 0 else 'ds_write_b16_d16_hi'
                e(f'{op} {vr(t(0))}, {vr(t(44)+2*Tt+i//2)} offset:{KIMG + 32*Tt + 64*i}')
                e(f'{op} {vr(t(1))}, {vr(t(44)+2*Tt+i//2)} offset:{KIMG + 32*(1-Tt) + 64*(3-i)}')
        e(f"""s_mov_b32 exec_lo, 0
        s_mov_b32 exec_hi, 0x00010000
        ds_write_b16_d16_hi {vr(t(2))}, {vr(t(45))} offset:{KIMG}
        s_mov_b64 exec, -1
        v_lshlrev_b32 {vr(t(3))}, 4, {vr(vL)}
        s_waitcnt lgkmcnt(0)
        ds_read_b128 {vr(t(4),4)}, {vr(t(3))} offset:{KIMG}
        s_mov_b32 {sr(sOff)}, {dst_off}
        s_waitcnt lgkmcnt(0)
        buffer_store_dwordx4 {vr(t(4),4)}, {vr(t(3))}, {sr(sWS,4)}, {sr(sOff)} offen sc1
        {ln}:""")

    PC = t(40)
    def column_load(src_off):
        e(f's_mov_b32 {sr(sOff)}, {src_off}')
        e(ws_load_text(4, PC, aS16, sr(sOff)))
    def column(src_off, dst_off, preloaded, tagged=False):
        P = PC
        e(f's_mov_b32 {sr(sOff)}, {src_off}')
        if tagged:
            P = t(32); A2 = t(44)
            e(f'''v_lshrrev_b32 {vr(t(31))}, 1, v0
            v_lshlrev_b32 {vr(t(31))}, 13, {vr(t(31))}
            v_and_b32 {vr(t(30))}, 1, v0
            v_lshl_add_u32 {vr(t(31))}, {vr(t(30))}, 4, {vr(t(31))}
            s_lshl_b32 {sr(sT)}, {sr(sRho)}, 5
            v_add_u32 {vr(t(31))}, {sr(sT)}, {vr(t(31))}
            s_add_u32 {sr(sT3)}, {sr(sOff)}, {128*8192}''')
            poll(ws_load_text(4, P, t(31), sr(sOff)) + '\n' + ws_load_text(4, P+4, t(31), sr(sT3)), ('tag', P))
            stamp('col data')
            for k in range(2):
                e(f'''ds_write_b16 {vr(A2+2*k)}, {vr(P+4*k)}
                ds_write_b16_d16_hi {vr(A2+2*k+1)}, {vr(P+4*k)} offset:16
                ds_write_b16 {vr(A2+2*k+1)}, {vr(P+4*k+2)} offset:32
                ds_write_b16_d16_hi {vr(A2+2*k+1)}, {vr(P+4*k+2)} offset:48''')
            e('s_waitcnt lgkmcnt(0)\ns_barrier')
        else:
            poll(ws_load_text(4, P, aS16, sr(sOff)), range(P, P+4), preloaded=preloaded)
            d = [P, P+1, P+2, P+3]
            stamp('col data')
            e(f"""ds_write_b16 {vr(lCa)}, {vr(d[0])}
            ds_write_b16_d16_hi {vr(lCa)}, {vr(d[0])} offset:16
            ds_write_b16 {vr(lCa)}, {vr(d[1])} offset:32
            ds_write_b16_d16_hi {vr(lCa)}, {vr(d[1])} offset:48
            ds_write_b16 {vr(lCb)}, {vr(d[2])}
            ds_write_b16_d16_hi {vr(lCc)}, {vr(d[2])} offset:16
            ds_write_b16 {vr(lCc)}, {vr(d[3])} offset:32
            ds_write_b16_d16_hi {vr(lCc)}, {vr(d[3])} offset:48
            s_waitcnt lgkmcnt(0)
            s_barrier""")
        A = t(0)
        for k in range(4): e(f'ds_read_b128 {vr(A+4*k,4)}, {vr(lCr)} offset:{1024*k}')
        D1 = [t(16), t(20)]
        e(f"""s_waitcnt lgkmcnt(3)
        v_mfma_f32_16x16x32_f16 {vr(D1[0],4)}, {vr(A,4)}, {vr(CB1,4)}, 0
        s_waitcnt lgkmcnt(2)
        v_mfma_f32_16x16x32_f16 {vr(D1[0],4)}, {vr(A+4,4)}, {vr(CB1+4,4)}, {vr(D1[0],4)}
        s_waitcnt lgkmcnt(1)
        v_mfma_f32_16x16x32_f16 {vr(D1[1],4)}, {vr(A+8,4)}, {vr(CB1,4)}, 0
        s_waitcnt lgkmcnt(0)
        v_mfma_f32_16x16x32_f16 {vr(D1[1],4)}, {vr(A+12,4)}, {vr(CB1+4,4)}, {vr(D1[1],4)}""")
        Bb = t(24); br, bi = t(28), t(32); Bo = [t(0), t(4)]
        for Tt in range(2):
            k = CK + 16*Tt
            for i in range(4): e(f'v_mov_b32_dpp {vr(Bb+i)}, {vr(D1[Tt]+i)} row_ror:8 {DPP}')
            for h in range(2):
                e(f"""v_pk_mul_f32 {vr(br+2*h,2)}, {vr(D1[Tt]+2*h,2)}, {vr(k+2*h,2)}
                v_pk_mul_f32 {vr(bi+2*h,2)}, {vr(D1[Tt]+2*h,2)}, {vr(k+8+2*h,2)}""")
            for h in range(2):
                e(f"""v_pk_fma_f32 {vr(br+2*h,2)}, {vr(Bb+2*h,2)}, {vr(k+4+2*h,2)}, {vr(br+2*h,2)}
                v_pk_fma_f32 {vr(bi+2*h,2)}, {vr(Bb+2*h,2)}, {vr(k+12+2*h,2)}, {vr(bi+2*h,2)}""")
            e(f"""v_cvt_pk_f16_f32 {vr(Bo[Tt])}, {vr(br)}, {vr(br+1)}
            v_cvt_pk_f16_f32 {vr(Bo[Tt]+1)}, {vr(br+2)}, {vr(br+3)}
            v_cvt_pk_f16_f32 {vr(Bo[Tt]+2)}, {vr(bi)}, {vr(bi+1)}
            v_cvt_pk_f16_f32 {vr(Bo[Tt]+3)}, {vr(bi+2)}, {vr(bi+3)}""")
        O = [t(8), t(12)]
        e(f"""v_mfma_f32_16x16x32_f16 {vr(O[0],4)}, {vr(CA2,4)}, {vr(Bo[0],4)}, 0
        v_mfma_f32_16x16x32_f16 {vr(O[1],4)}, {vr(CA2+8,4)}, {vr(Bo[0],4)}, 0
        v_mfma_f32_16x16x32_f16 {vr(O[0],4)}, {vr(CA2+4,4)}, {vr(Bo[1],4)}, {vr(O[0],4)}
        v_mfma_f32_16x16x32_f16 {vr(O[1],4)}, {vr(CA2+12,4)}, {vr(Bo[1],4)}, {vr(O[1],4)}
        v_cvt_pk_f16_f32 {vr(t(16))}, {vr(O[0])}, {vr(O[0]+1)}
        v_cvt_pk_f16_f32 {vr(t(17))}, {vr(O[0]+2)}, {vr(O[0]+3)}
        ds_write_b16 {vr(lCo)}, {vr(t(16))}
        ds_write_b16_d16_hi {vr(lCo)}, {vr(t(16))} offset:256
        v_cvt_pk_f16_f32 {vr(t(18))}, {vr(O[1])}, {vr(O[1]+1)}
        v_cvt_pk_f16_f32 {vr(t(19))}, {vr(O[1]+2)}, {vr(O[1]+3)}
        ds_write_b16 {vr(lCo)}, {vr(t(17))} offset:512
        ds_write_b16_d16_hi {vr(lCo)}, {vr(t(17))} offset:768
        ds_write_b16 {vr(lCo+2)}, {vr(t(18))}
        ds_write_b16_d16_hi {vr(lCo+1)}, {vr(t(18))} offset:512
        ds_write_b16 {vr(lCo+1)}, {vr(t(19))} offset:256
        ds_write_b16_d16_hi {vr(lCo+1)}, {vr(t(19))}
        s_waitcnt lgkmcnt(0)
        s_barrier
        ds_read_b128 {vr(t(0),4)}, {vr(lG)} offset:{COUT}
        s_mov_b32 {sr(sOff)}, {dst_off}
        s_waitcnt lgkmcnt(0)
        buffer_store_dwordx4 {vr(t(0),4)}, {vr(aP16)}, {sr(sWS,4)}, {sr(sOff)} offen sc1""")

    YH, YV, KT = t(4), t(8), t(12)
    def row_input(src_off, kb, with_weights=False):
        P = t(0)
        lk = g.lab('nok')
        e(f's_bitcmp0_b32 {sr(sW)}, 0\ns_cbranch_scc1 {lk}')
        e(f'v_lshlrev_b32 {vr(t(16))}, 4, {vr(vL)}\ns_mov_b32 {sr(sT3)}, {kb}')
        e(ws_load_text(4, KT, t(16), sr(sT3)))
        e(f'{lk}:')
        e(f's_mov_b32 {sr(sOff)}, {src_off}')
        ld = ws_load_text(4, P, aS16, sr(sOff))
        if with_weights:
            lw = g.lab('now'); lw2 = g.lab('now2')
            e(ld)
            e(f's_cmp_ge_u32 {sr(sPhi)}, {NF}\ns_cbranch_scc1 {lw}')
            e(f's_mov_b32 {sr(sCnt)}, {sr(sT3)}')
            weight_loads()
            e(f's_mov_b32 {sr(sT3)}, {sr(sCnt)}\ns_mov_b32 {sr(sOff)}, {src_off}\ns_waitcnt vmcnt(6)\ns_branch {lw2}\n{lw}:\ns_waitcnt vmcnt(0)\n{lw2}:')
            poll(ld, range(P, P+4), preloaded=True)
        else:
            poll(ld, range(P, P+4))
        stamp('row data')
        def wr(slot, areg, off):
            op = 'ds_write_b16' if slot % 2 == 0 else 'ds_write_b16_d16_hi'
            e(f'{op} {vr(areg)}, {vr(P + slot//2)} offset:{YIMG + off}')
        for j in range(4): wr(j, lYd, j*1024)
        wr(4, lYm4, 0); wr(5, lYm, 3*1024); wr(6, lYm, 2*1024); wr(7, lYm, 1024)
        l0 = g.lab('not0')
        e(f's_cmp_lg_u32 {sr(sRho)}, 0\ns_cbranch_scc1 {l0}')
        wr(0, lYm, 0); wr(4, lYd, 4096)
        e(f"""{l0}:
        s_waitcnt lgkmcnt(0)
        s_barrier
        ds_read_b128 {vr(YH,4)}, {vr(lRow)} offset:{YIMG}""")
        lv = g.lab('yv')
        e(f"""s_cmp_lg_u32 {sr(sRowU)}, 0
        s_cbranch_scc1 {lv}
        ds_read_b128 {vr(YV,4)}, {vr(lRow)} offset:{YIMG+4096}
        {lv}:""")
        lk = g.lab('nok2')
        e(f's_bitcmp0_b32 {sr(sW)}, 0\ns_cbranch_scc1 {lk}')
        poll(ws_load_text(4, KT, t(16), sr(sT3)), range(KT, KT+4), preloaded=True)
        e('s_waitcnt lgkmcnt(0)')
        for k in range(4): e(f'v_pk_add_f16 {vr(YH+k)}, {vr(YH+k)}, {vr(KT+k)}')
        e(f'{lk}:\ns_waitcnt lgkmcnt(0)')
    def add_y(yu, yv):
        for k in range(4):
            e(f"""v_fma_mix_f32 {vr(XU+2*k)}, {vr(yu+k)}, {sr(s16)}, {vr(XU+2*k)} op_sel:[0,0,0] op_sel_hi:[1,0,0]
            v_fma_mix_f32 {vr(XU+2*k+1)}, {vr(yu+k)}, {sr(s16)}, {vr(XU+2*k+1)} op_sel:[1,0,0] op_sel_hi:[1,0,0]""")
        for k in range(4):
            e(f"""v_fma_mix_f32 {vr(XV+2*k)}, {vr(yv+k)}, {sr(s16)}, {vr(XV+2*k)} op_sel:[0,0,0] op_sel_hi:[1,0,0]
            v_fma_mix_f32 {vr(XV+2*k+1)}, {vr(yv+k)}, {sr(s16)}, {vr(XV+2*k+1)} op_sel:[1,0,0] op_sel_hi:[1,0,0]""")
    def add_y_pair():
        ls = g.lab('ysp'); lj = g.lab('yj')
        e(f's_cmp_eq_u32 {sr(sRowU)}, 0\ns_cbranch_scc1 {ls}')
        add_y(YH, YH)
        e(f'{lj}:')
        g.late.append((ls, lj))
    g.late = []

    def make_key():
        e(f"""v_ashrrev_i32 {vr(t(22))}, 31, {vr(hR)}
        v_or_b32 {vr(t(22))}, 0x80000000, {vr(t(22))}
        v_xor_b32 {vr(t(22))}, {vr(hR)}, {vr(t(22))}
        v_and_b32 {vr(t(22))}, 0xfffff800, {vr(t(22))}
        v_or_b32 {vr(t(22))}, {vr(vRowH)}, {vr(t(22))}
        v_readlane_b32 {sr(sKeyU)}, {vr(t(22))}, 0
        v_readlane_b32 {sr(sKeyV)}, {vr(t(22))}, 32
        s_lshl_b32 {sr(sT)}, {sr(sW)}, 2
        v_mov_b32 {vr(t(23))}, {sr(sT)}
        s_max_u32 {sr(sKey)}, {sr(sKeyU)}, {sr(sKeyV)}
        v_mov_b32 {vr(t(22))}, {sr(sKey)}
        ds_write_b32 {vr(t(23))}, {vr(t(22))} offset:{AM}""")
    def wg_best_read(tmp):
        e(f'v_mov_b32 {vr(tmp+4)}, 0\nds_read_b128 {vr(tmp,4)}, {vr(tmp+4)} offset:{AM}')
    def wg_best_header(cand, tmp):
        ln = g.lab('nohdr')
        e(f"""v_max3_u32 {vr(tmp)}, {vr(tmp)}, {vr(tmp+1)}, {vr(tmp+2)}
        v_max_u32 {vr(tmp)}, {vr(tmp)}, {vr(tmp+3)}
        v_readfirstlane_b32 {sr(sT)}, {vr(tmp)}
        s_cmp_eq_u32 {sr(sT)}, {sr(sKey)}
        s_cselect_b32 {sr(sSgn)}, 1, 0
        s_cbranch_scc0 {ln}
        s_lshl_b32 {sr(sT)}, {sr(sRho)}, 12
        s_add_u32 {sr(sOff)}, {sr(sT)}, {cand}
        v_mov_b32 {vr(tmp+1)}, {sr(sKey)}
        s_mov_b64 exec, 1
        buffer_store_dword {vr(tmp+1)}, {vr(tmp+4)}, {sr(sWS,4)}, {sr(sOff)} offen sc1
        s_mov_b64 exec, -1
        {ln}:""")
    def publish_rows(cand):
        ln = g.lab('nopub'); lv = g.lab('pubv'); lj = g.lab('pubj')
        e(f's_cmp_eq_u32 {sr(sSgn)}, 0\ns_cbranch_scc1 {ln}')
        e(f"""s_lshl_b32 {sr(sT)}, {sr(sRho)}, 12
        s_add_u32 {sr(sOff)}, {sr(sT)}, {cand}
        s_cmp_gt_u32 {sr(sKeyV)}, {sr(sKeyU)}
        s_cbranch_scc1 {lv}""")
        for (lab_, X_, A_, C_) in ((None, XU, sAu, sCu), (lv, XV, sAv, sCv)):
            if lab_: e(f'{lab_}:')
            e(f"""v_rcp_f32 {vr(t(0))}, {sr(A_)}
            v_mov_b32 {vr(t(1))}, {sr(A_+1)}
            v_mov_b32 {vr(t(2))}, {sr(A_)}
            v_add_f32 {vr(t(2))}, -1.0, {vr(t(2))}
            v_subrev_f32 {vr(t(3))}, {sr(C_)}, {vr(t(1))}
            v_mul_f32 {vr(t(4))}, {vr(t(2))}, {vr(t(0))}
            v_fma_f32 {vr(t(6))}, -{vr(t(4))}, {vr(t(1))}, {vr(t(3))}""")
            Z = t(8)
            for k in range(4): e(f'v_pk_fma_f32 {vr(Z+2*k,2)}, {vr(X_+2*k,2)}, {vr(t(4),2)}, {vr(t(6),2)} op_sel_hi:[1,0,0]')
            if X_ == XU:
                for k in range(4): e(f'v_cvt_pk_bf16_f32 {vr(t(16)+k)}, {vr(Z+2*k)}, {vr(Z+2*k+1)}')
                e(f"""v_lshlrev_b32 {vr(t(1))}, 4, {vr(vL)}
                v_lshlrev_b32 {vr(t(2))}, 5, {vr(vL)}
                buffer_store_dwordx4 {vr(t(16),4)}, {vr(t(1))}, {sr(sWS,4)}, {sr(sOff)} offen offset:128 sc1
                buffer_store_dwordx4 {vr(XU,4)}, {vr(t(2))}, {sr(sWS,4)}, {sr(sOff)} offen offset:1152 sc1
                buffer_store_dwordx4 {vr(XU+4,4)}, {vr(t(2))}, {sr(sWS,4)}, {sr(sOff)} offen offset:1168 sc1
                s_branch {lj}""")
            else:
                e(f"""v_mov_b32_dpp {vr(t(20))}, {vr(Z)} wave_rol:1 {DPP}
                v_mov_b32_dpp {vr(t(24))}, {vr(XV)} wave_rol:1 {DPP}
                v_cvt_pk_bf16_f32 {vr(t(17))}, {vr(Z+6)}, {vr(Z+5)}
                v_cvt_pk_bf16_f32 {vr(t(18))}, {vr(Z+4)}, {vr(Z+3)}
                v_cvt_pk_bf16_f32 {vr(t(19))}, {vr(Z+2)}, {vr(Z+1)}
                v_cvt_pk_bf16_f32 {vr(t(16))}, {vr(t(20))}, {vr(Z+7)}""")
                for k in range(1, 8): e(f'v_mov_b32 {vr(t(24)+k)}, {vr(XV+8-k)}')
                e(f"""v_lshlrev_b32 {vr(t(1))}, 4, {vr(vL)}
                v_sub_u32 {vr(t(1))}, 1008, {vr(t(1))}
                v_lshlrev_b32 {vr(t(2))}, 1, {vr(t(1))}
                buffer_store_dwordx4 {vr(t(16),4)}, {vr(t(1))}, {sr(sWS,4)}, {sr(sOff)} offen offset:128 sc1
                buffer_store_dwordx4 {vr(t(24),4)}, {vr(t(2))}, {sr(sWS,4)}, {sr(sOff)} offen offset:1152 sc1
                buffer_store_dwordx4 {vr(t(28),4)}, {vr(t(2))}, {sr(sWS,4)}, {sr(sOff)} offen offset:1168 sc1""")
        e(f'{lj}:\n{ln}:')

    def header_load(cand, K):
        e(f's_mov_b32 {sr(sOff)}, {cand}')
        e(ws_load_text(1, K, aHdr, sr(sOff)))
    def argmax(cand, K, after_check=None):
        e(f's_mov_b32 {sr(sOff)}, {cand}')
        poll(ws_load_text(1, K, aHdr, sr(sOff)), [K], preloaded=True, backoff=4)
        if after_check: after_check()
        wave_reduce([K], [t(1)], op='v_max_u32')
        e(f"""s_lshl_b32 {sr(sT)}, {sr(sW)}, 2
        v_mov_b32 {vr(t(1))}, {sr(sT)}
        ds_write_b32 {vr(t(1))}, {vr(K)} offset:{AM+32}
        v_mov_b32 {vr(t(1))}, 0
        s_waitcnt lgkmcnt(0)
        s_barrier
        ds_read_b128 {vr(t(4),4)}, {vr(t(1))} offset:{AM+32}
        s_waitcnt lgkmcnt(0)
        v_max3_u32 {vr(t(4))}, {vr(t(4))}, {vr(t(5))}, {vr(t(6))}
        v_max_u32 {vr(t(4))}, {vr(t(4))}, {vr(t(7))}
        v_readfirstlane_b32 {sr(sKey)}, {vr(t(4))}""")
        e(f"""s_and_b32 {sr(sStar)}, {sr(sKey)}, 2047
        s_lshr_b32 {sr(sT)}, {sr(sStar)}, 2
        s_sub_u32 {sr(sT2)}, 511, {sr(sT)}
        s_sub_u32 {sr(sT3)}, 512, {sr(sT)}
        s_and_b32 {sr(sT3)}, {sr(sT3)}, 255
        s_and_b32 {sr(sRec)}, {sr(sStar)}, 3
        s_cmp_eq_u32 {sr(sRec)}, 0
        s_cselect_b32 {sr(sT2)}, {sr(sT3)}, {sr(sT2)}
        s_cmp_lt_u32 {sr(sStar)}, 1024
        s_cselect_b32 {sr(sT2)}, {sr(sT)}, {sr(sT2)}
        s_lshl_b32 {sr(sRec)}, {sr(sT2)}, 12
        s_add_u32 {sr(sRec)}, {sr(sRec)}, {cand}""")
    def sigmoid_of_key():
        e(f"""s_and_b32 {sr(sT)}, {sr(sKey)}, 0xfffff800
        s_or_b32 {sr(sT)}, {sr(sT)}, 0x400
        s_ashr_i32 {sr(sT2)}, {sr(sT)}, 31
        s_not_b32 {sr(sT2)}, {sr(sT2)}
        s_or_b32 {sr(sT2)}, {sr(sT2)}, 0x80000000
        s_xor_b32 {sr(sT)}, {sr(sT)}, {sr(sT2)}
        v_mov_b32 {vr(vSig)}, {fbits(-1.4426950408889634)}
        v_mul_f32 {vr(vSig)}, {sr(sT)}, {vr(vSig)}
        v_exp_f32 {vr(vSig)}, {vr(vSig)}
        v_add_f32 {vr(vSig)}, 1.0, {vr(vSig)}
        v_rcp_f32 {vr(vSig)}, {vr(vSig)}""")

    def ffn_setup():
        e(f"""v_and_b32 {vr(t(0))}, 3, {vr(vN)}
        v_lshrrev_b32 {vr(t(1))}, 2, {vr(vN)}
        v_lshl_add_u32 {vr(t(1))}, {vr(vQ)}, 3, {vr(t(1))}
        s_lshl_b32 {sr(sT)}, {sr(sW)}, 7
        v_add_u32 {vr(t(1))}, {sr(sT)}, {vr(t(1))}
        v_lshlrev_b32 {vr(t(1))}, 4, {vr(t(1))}
        v_and_b32 {vr(t(3))}, 1, {vr(t(0))}
        v_lshl_add_u32 {vr(t(1))}, {vr(t(3))}, 3, {vr(t(1))}
        v_lshrrev_b32 {vr(t(3))}, 1, {vr(t(0))}
        v_lshl_add_u32 {vr(t(1))}, {vr(t(3))}, 13, {vr(t(1))}
        v_lshlrev_b32 {vr(t(2))}, 2, v0""")
        g.nbar_mark = sum(1 for l in g.L if l == 's_barrier')
        e('s_barrier')
        for kap in range(4):
            for h in range(2):
                e(f'ds_read_b64_tr_b16 {vr(FA+4*kap+2*h,2)}, {vr(t(1))} offset:{GU + kap*512 + h*64}')
        for f in range(8): e(f'ds_read_b32 {vr(t(8)+f)}, {vr(t(2))} offset:{DN + f*1024}')
        e('s_waitcnt lgkmcnt(0)')
        for f in range(8):
            e(f'v_lshlrev_b32 {vr(FD+2*f)}, 16, {vr(t(8)+f)}\nv_and_b32 {vr(FD+2*f+1)}, 0xffff0000, {vr(t(8)+f)}')
    def loader():
        e(f"""L_loader:
        s_cmp_ge_u32 {sr(sPhi)}, {NF}
        s_cbranch_scc1 L_end""")
        e(f"""s_movk_i32 {sr(sT3)}, 2752
        v_mul_lo_u32 {vr(t(0))}, {vr(vL)}, {sr(sT3)}
        s_lshl_b32 {sr(sT2)}, {sr(sPhi)}, 4
        v_add_u32 {vr(t(0))}, {sr(sT2)}, {vr(t(0))}
        v_lshlrev_b32 {vr(t(1))}, 4, {vr(vL)}""")
        def gu(ptr, lds):
            srd(sT4, ptr, 1409024)
            for k in range(8):
                e(f"""s_add_u32 {sr(sT)}, {sr(sPhi)}, {k}
                s_and_b32 {sr(sT)}, {sr(sT)}, 7
                s_lshl_b32 {sr(sT2)}, {sr(sT)}, 10
                s_add_u32 m0, {sr(sT2)}, {lds}
                s_mul_i32 {sr(sOff)}, {sr(sT)}, {64*2752}
                buffer_load_dwordx4 {vr(t(0))}, {sr(sT4,4)}, {sr(sOff)} offen lds""")
        def dn():
            srd(sT4, kwd, 1409024)
            e(f's_lshl_b32 {sr(sT2)}, {sr(sPhi)}, 13')
            for f in range(8):
                e(f"""s_mov_b32 m0, {DN + 1024*f}
                s_add_u32 {sr(sOff)}, {sr(sT2)}, {1024*f}
                buffer_load_dwordx4 {vr(t(1))}, {sr(sT4,4)}, {sr(sOff)} offen lds""")
        if opt.get('lwait'):
            srd(sT4, kx, 2097152)
            e(f's_lshl_b32 {sr(sT)}, {sr(sRho)}, 12\nv_add_u32 {vr(t(2))}, {sr(sT)}, {vr(t(1))}\nbuffer_load_dword {vr(t(3))}, {vr(t(2))}, {sr(sT4,4)}, 0 offen\ns_waitcnt vmcnt(0)')
        plan = {int(x.split(':')[0]): x.split(':')[1] for x in opt.get('lplan', '0:gud').split('/')}
        for k in range(g.nbar_mark + 1):
            for c in plan.get(k, ''):
                {'g': lambda: gu(kwg, GU), 'u': lambda: gu(kwu, GU + 8192), 'd': dn}[c]()
            if k < g.nbar_mark: e('s_barrier')
        e('s_waitcnt vmcnt(0)\ns_barrier\nL_end:\ns_endpgm')

    XS = t(0)
    def xsel_text():
        return '\n'.join(f'buffer_load_dwordx4 {vr(XS+4*k,4)}, {vr(t(20))}, {sr(sWS,4)}, {sr(sRec)} offen offset:{128+64*k} sc1' for k in range(4))
    def xsel_load():
        e(f"""s_lshl_b32 {sr(sT)}, {sr(sW)}, 8
        v_lshlrev_b32 {vr(t(20))}, 4, {vr(vQ)}
        v_add_u32 {vr(t(20))}, {sr(sT)}, {vr(t(20))}""")
        e(xsel_text())
    def ffn(part):
        ln = g.lab('noffn')
        e(f's_cmp_ge_u32 {sr(sPhi)}, {NF}\ns_cbranch_scc1 {ln}')
        poll(xsel_text(), range(XS, XS+16), preloaded=True)
        Pp = t(16)
        for k in range(4):
            e(f'v_mfma_f32_16x16x32_bf16 {vr(Pp,4)}, {vr(FA+4*k,4)}, {vr(XS+4*k,4)}, {"0" if k==0 else vr(Pp,4)}')
        e(f"""v_lshlrev_b32 {vr(t(21))}, 6, {vr(vQ)}
        s_lshl_b32 {sr(sT)}, {sr(sW)}, 2
        v_add_u32 {vr(t(21))}, {sr(sT)}, {vr(t(21))}
        v_and_b32 {vr(t(22))}, 31, {vr(vL)}
        v_lshlrev_b32 {vr(t(22))}, 2, {vr(t(22))}
        s_mov_b32 exec_lo, 0x00010001
        s_mov_b32 exec_hi, 0x00010001""")
        for i in range(4): e(f'ds_write_b32 {vr(t(21))}, {vr(Pp+i)} offset:{FP + 16*i}')
        e(f"""s_mov_b64 exec, -1
        s_waitcnt lgkmcnt(0)
        s_barrier
        ds_read_b32 {vr(t(12))}, {vr(t(22))} offset:{FP}
        ds_read_b32 {vr(t(13))}, {vr(t(22))} offset:{FP+128}
        s_waitcnt lgkmcnt(0)""")
        gg, uu = t(12), t(13)
        for mod in ('quad_perm:[1,0,3,2]', 'quad_perm:[2,3,0,1]'):
            e(f'v_add_f32_dpp {vr(gg)}, {vr(gg)}, {vr(gg)} {mod} {DPP}\nv_add_f32_dpp {vr(uu)}, {vr(uu)}, {vr(uu)} {mod} {DPP}')
        e(f"""v_mul_f32 {vr(t(14))}, {fbits(-1.4426950408889634)}, {vr(gg)}
        v_exp_f32 {vr(t(14))}, {vr(t(14))}
        v_mul_f32 {vr(uu)}, {vr(uu)}, {vr(vSig)}
        v_add_f32 {vr(t(14))}, 1.0, {vr(t(14))}
        v_rcp_f32 {vr(t(14))}, {vr(t(14))}
        v_mul_f32 {vr(gg)}, {vr(gg)}, {vr(uu)}
        v_mul_f32 {vr(gg)}, {vr(gg)}, {vr(t(14))}""")
        for f in range(8): e(f'v_readlane_b32 {sr(sH+f)}, {vr(gg)}, {4*f}')
        acc = t(16)
        for f in range(8):
            sel = 'op_sel_hi:[1,0,1]' if f % 2 == 0 else 'op_sel:[0,1,0] op_sel_hi:[1,1,1]'
            if f == 0: e(f'v_pk_mul_f32 {vr(acc,2)}, {vr(FD,2)}, {sr(sH,2)} op_sel_hi:[1,0]')
            else: e(f'v_pk_fma_f32 {vr(acc,2)}, {vr(FD+2*f,2)}, {sr(sH + (f & ~1),2)}, {vr(acc,2)} {sel}')
        ws_store(2, acc, aP8, part)
        e(f'{ln}:')

    def reducer(part, final):
        ln = g.lab('nored')
        e(f"""s_sub_u32 {sr(sT3)}, {sr(sWg)}, {RED0}
        s_cmp_ge_u32 {sr(sT3)}, 32
        s_cbranch_scc1 {ln}
        v_lshrrev_b32 {vr(t(20))}, 2, v0
        v_lshlrev_b32 {vr(t(21))}, 11, {vr(t(20))}
        v_and_b32 {vr(t(22))}, 3, v0
        v_lshlrev_b32 {vr(t(22))}, 4, {vr(t(22))}
        s_lshl_b32 {sr(sT)}, {sr(sT3)}, 6
        v_add_u32 {vr(t(25))}, {sr(sT)}, {vr(t(22))}
        v_add_u32 {vr(t(21))}, {vr(t(21))}, {vr(t(25))}
        v_add_u32 {vr(t(23))}, {128*2048}, {vr(t(21))}
        v_mov_b32 {vr(t(24))}, 0x7f000000
        v_cmp_gt_u32 vcc, {NF-128}, {vr(t(20))}
        v_cndmask_b32 {vr(t(23))}, {vr(t(24))}, {vr(t(23))}, vcc
        s_mov_b32 {sr(sOff)}, {part}
        s_add_u32 {sr(sT2)}, {sr(sOff)}, {64*2048}""")
        A, B2, B3, B4 = t(0), t(4), t(8), t(12)
        ld = '\n'.join([ws_load_text(4, A, t(21), sr(sOff)), ws_load_text(4, B2, t(21), sr(sT2)), ws_load_text(4, B3, t(23), sr(sOff))])
        regs = list(range(A, A+12))
        if final:
            ld += '\n' + ws_load_text(4, B4, t(25), sr(sRec), 'offset:1152')
            regs += list(range(B4, B4+4))
        poll(ld, regs)
        for X_ in (B2, B3):
            e(f'v_pk_add_f32 {vr(A,2)}, {vr(A,2)}, {vr(X_,2)}\nv_pk_add_f32 {vr(A+2,2)}, {vr(A+2,2)}, {vr(X_+2,2)}')
        for sh in (4, 8):
            for i in range(4): e(f'v_add_f32_dpp {vr(A+i)}, {vr(A+i)}, {vr(A+i)} row_ror:{sh} {DPP}')
        for sw in ('v_permlane16_swap_b32', 'v_permlane32_swap_b32'):
            for i in range(4): e(f'v_mov_b32 {vr(B2+i)}, {vr(A+i)}')
            for i in range(4): e(f'{sw} {vr(A+i)}, {vr(B2+i)}')
            for i in range(4): e(f'v_add_f32 {vr(A+i)}, {vr(A+i)}, {vr(B2+i)}')
        e(f"""s_lshl_b32 {sr(sT)}, {sr(sW)}, 6
        v_add_u32 {vr(t(24))}, {sr(sT)}, {vr(t(22))}
        s_mov_b64 exec, 15
        ds_write_b128 {vr(t(24))}, {vr(A,4)} offset:{RED}
        s_mov_b64 exec, -1
        s_waitcnt lgkmcnt(0)
        s_barrier
        s_cmp_lg_u32 {sr(sW)}, 0
        s_cbranch_scc1 {ln}""")
        R = t(28)
        for w in range(4): e(f'ds_read_b128 {vr(R+4*w,4)}, {vr(t(22))} offset:{RED + 64*w}')
        e('s_waitcnt lgkmcnt(0)')
        e(f"""v_pk_add_f32 {vr(R,2)}, {vr(R,2)}, {vr(R+4,2)}
        v_pk_add_f32 {vr(R+2,2)}, {vr(R+2,2)}, {vr(R+6,2)}
        v_pk_add_f32 {vr(R+8,2)}, {vr(R+8,2)}, {vr(R+12,2)}
        v_pk_add_f32 {vr(R+10,2)}, {vr(R+10,2)}, {vr(R+14,2)}
        v_pk_add_f32 {vr(R,2)}, {vr(R,2)}, {vr(R+8,2)}
        v_pk_add_f32 {vr(R+2,2)}, {vr(R+2,2)}, {vr(R+10,2)}""")
        if final:
            e(f"""v_pk_add_f32 {vr(R,2)}, {vr(R,2)}, {vr(B4,2)}
            v_pk_add_f32 {vr(R+2,2)}, {vr(R+2,2)}, {vr(B4+2,2)}
            v_cvt_pk_bf16_f32 {vr(R)}, {vr(R)}, {vr(R+1)}
            v_cvt_pk_bf16_f32 {vr(R+1)}, {vr(R+2)}, {vr(R+3)}
            s_lshl_b32 {sr(sT)}, {sr(sStar)}, 10
            v_lshrrev_b32 {vr(t(25))}, 1, {vr(t(25))}
            v_add_u32 {vr(t(25))}, {sr(sT)}, {vr(t(25))}
            s_mov_b64 exec, 15
            buffer_store_dwordx2 {vr(R,2)}, {vr(t(25))}, {sr(sOUT,4)}, 0 offen sc1
            s_mov_b64 exec, -1""")
        else:
            e(f"""s_mov_b32 {sr(sOff)}, {UPD0}
            s_mov_b64 exec, 15
            buffer_store_dwordx4 {vr(R,4)}, {vr(t(25))}, {sr(sWS,4)}, {sr(sOff)} offen sc1
            s_mov_b64 exec, -1""")
        e(f'{ln}:')

    addr_misc()
    stamp('preamble')
    e(f's_waitcnt vmcnt({N_ALL-1})\nv_readfirstlane_b32 {sr(sTag)}, {vr(vCa)}\ns_add_u32 {sr(sTag)}, {sr(sTag)}, 1')
    if not opt.get('nohint'):
        lh = g.lab('nohint')
        e(f'''s_cmp_lt_u32 {sr(sWg)}, 248
        s_cbranch_scc1 {lh}
        s_cmp_lg_u32 {sr(sW)}, 0
        s_cbranch_scc1 {lh}
        s_and_b32 {sr(sT)}, {sr(sWg)}, 7
        s_lshl_b32 {sr(sT)}, {sr(sT)}, 8
        v_mov_b32 {vr(t(16))}, {sr(sT)}
        v_mov_b32 {vr(t(17))}, {sr(sTag)}
        s_mov_b64 exec, 1''')
        ws_store(1, t(17), t(16), HINT)
        e(f's_mov_b64 exec, -1\n{lh}:')
    stamp('x0')
    unpack_nat(XU, URAW); unpack_rev(XV, VRAW, t(16))
    stats2(False)
    norm_coeffs(hRho, hB)
    make_g()
    e(f's_waitcnt vmcnt({N_ALL - N_ROWTAB})')
    transform(HB0, tagged=True, pre_store=lambda: e(f's_waitcnt vmcnt({N_ALL - N_POISON})'))
    stamp('P1 stored')
    finish_here('P1')
    special_k(KB0, False)
    addr_ym4()
    poison_regs()
    e(f"""s_sub_u32 {sr(sT3)}, {sr(sWg)}, {RED0}
    s_lshl_b32 {sr(sT)}, {sr(sT3)}, 6
    v_lshlrev_b32 {vr(t(6))}, 2, v0
    v_add_u32 {vr(t(6))}, {sr(sT)}, {vr(t(6))}
    v_cmp_gt_u32 vcc, 16, v0
    s_cmp_lt_u32 {sr(sT3)}, 32
    s_cselect_b64 {sr(sEx,2)}, vcc, 0
    v_mov_b32 {vr(t(7))}, 0x7f000000
    v_cndmask_b32 {vr(t(6))}, {vr(t(7))}, {vr(t(6))}, {sr(sEx,2)}""")
    ws_store(4, PZ, aP16, HB1); ws_store(4, PZ, aP16, CAND0); ws_store(2, PZ, aP8, PART0); ws_store(1, PZ, t(6), UPD0)
    e(f'v_add_u32 {vr(t(39))}, {TOFF["addr2"]}, {vr(lG)}\nglobal_load_dwordx4 {vr(t(44),4)}, {vr(t(39))}, {sr(sPC,2)}')
    if not opt.get('nohint'):
        lh = g.lab('hw')
        e(f'''v_and_b32 {vr(vCa)}, 7, {vr(vL)}
        v_lshlrev_b32 {vr(vCa)}, 8, {vr(vCa)}
        s_cmp_lg_u32 {sr(sW)}, 0
        s_cbranch_scc1 {lh}
        s_mov_b32 {sr(sOff)}, {HINT}''')
        e(ws_load_text(1, vSa, vCa, sr(sOff)))
        e(f'{lh}:')
    col_consts()
    stamp('shadow1')
    if not opt.get('nohint'):
        lh = g.lab('hw2'); lp = g.lab('hp')
        e(f'''s_cmp_lg_u32 {sr(sW)}, 0
        s_cbranch_scc1 {lh}
        s_mov_b32 {sr(sCnt)}, 0
        s_mov_b32 {sr(sOff)}, {HINT}
        {lp}:
        s_waitcnt vmcnt(0)
        v_cmp_ne_u32 vcc, {sr(sTag)}, {vr(vSa)}
        s_cbranch_vccz {lh}
        s_add_u32 {sr(sCnt)}, {sr(sCnt)}, 1
        s_cmp_gt_u32 {sr(sCnt)}, {LIMIT}
        s_cbranch_scc1 {lh}
        s_sleep 4''')
        e(ws_load_text(1, vSa, vCa, sr(sOff)))
        e(f's_branch {lp}\n{lh}:\ns_waitcnt vmcnt(0)\ns_barrier')
    if opt.get('ack1'): e('s_waitcnt vmcnt(0)')
    stamp('hint')
    column(HB0, YB0, False, tagged=True)
    stamp('P2 stored')
    finish_here('P2')
    poison_regs()
    ws_store(4, PZ, aP16, YB1); ws_store(4, PZ, aP16, CAND1); ws_store(2, PZ, aP8, PART1)
    lnn = g.lab('nononce')
    e(f'''s_cmp_lg_u32 {sr(sRowU)}, 0
    s_cbranch_scc1 {lnn}
    v_mov_b32 {vr(t(0))}, {sr(sTag)}
    v_mov_b32 {vr(t(1))}, 0
    s_mov_b64 exec, 1''')
    ws_store(1, t(0), t(1), NONCE)
    e(f's_mov_b64 exec, -1\n{lnn}:')
    unpack_nat(WU, WURAW); unpack_rev(WV, WVRAW, t(16))
    e(f"""v_pk_add_f32 {vr(t(16),2)}, {vr(WU,2)}, {vr(WU+2,2)}
    v_pk_add_f32 {vr(t(18),2)}, {vr(WU+4,2)}, {vr(WU+6,2)}
    v_pk_add_f32 {vr(t(16),2)}, {vr(t(16),2)}, {vr(t(18),2)}
    v_add_f32 {vr(t(16))}, {vr(t(16))}, {vr(t(17))}""")
    wave_reduce([t(16)], [t(17)])
    e(f'v_readfirstlane_b32 {sr(sSW)}, {vr(t(16))}')
    stamp('shadow2')
    e('s_waitcnt vmcnt(0)')
    row_input(YB0, KB0)
    add_y_pair()
    stats2(True)
    make_key()
    residual_coeffs()
    e(f"""v_mul_f32 {vr(t(23))}, {vr(t(21))}, {vr(t(21))}
    v_mul_f32 {vr(t(23))}, {vr(t(23))}, {vr(hVar)}
    v_add_f32 {vr(t(23))}, {fbits(1e-5)}, {vr(t(23))}
    v_rsq_f32 {vr(t(23))}, {vr(t(23))}
    s_waitcnt lgkmcnt(0)
    s_barrier""")
    wg_best_read(t(24))
    e(f"""v_mul_f32 {vr(t(22))}, {vr(t(21))}, {vr(t(23))}
    v_mul_f32 {vr(t(23))}, -{vr(hM)}, {vr(t(22))}""")
    norm_coeffs(t(22), t(23))
    e('s_waitcnt lgkmcnt(0)')
    wg_best_header(CAND0, t(24))
    stamp('hdr0')
    make_g()
    residual_update(XU, XV)
    transform(HB1, post_scatter=lambda: publish_rows(CAND0))
    stamp('P3 stored')
    finish_here('P3')
    K = t(0)
    header_load(CAND0, vSig)
    lfs = g.lab('nosetup')
    e(f's_cmp_ge_u32 {sr(sPhi)}, {NF}\ns_cbranch_scc1 {lfs}')
    ffn_setup()
    e(f'{lfs}:')
    special_k(KB1, True)
    e(f's_waitcnt vmcnt(0)\nv_mov_b32 {vr(K)}, {vr(vSig)}')
    argmax(CAND0, K, after_check=lambda: column_load(HB1))
    stamp('argmax0')
    lb = g.lab('nobase')
    e(f"""s_cmp_ge_u32 {sr(sW)}, 2
    s_cbranch_scc1 {lb}
    v_lshlrev_b32 {vr(t(21))}, 5, {vr(vL)}
    buffer_load_dwordx4 {vr(FX,4)}, {vr(t(21))}, {sr(sWS,4)}, {sr(sRec)} offen offset:1152 sc1
    buffer_load_dwordx4 {vr(FX+4,4)}, {vr(t(21))}, {sr(sWS,4)}, {sr(sRec)} offen offset:1168 sc1
    {lb}:""")
    lb = g.lab('nox')
    e(f's_cmp_ge_u32 {sr(sPhi)}, {NF}\ns_cbranch_scc1 {lb}')
    xsel_load()
    e(f'{lb}:')
    sigmoid_of_key()
    e(f"""s_mul_i32 {sr(sT)}, {sr(sRowU)}, {sr(sStar)}
    s_and_b32 {sr(sT)}, {sr(sT)}, 2047
    v_cvt_f32_u32 {vr(vCa)}, {sr(sT)}
    v_mul_f32 {vr(vCa)}, {fbits(1/2048)}, {vr(vCa)}
    v_sin_f32 {vr(vSa)}, {vr(vCa)}
    v_cos_f32 {vr(vCa)}, {vr(vCa)}
    v_mul_f32 {vr(vSa)}, {fbits(1/32)}, {vr(vSa)}
    v_mul_f32 {vr(vCa)}, {fbits(1/32)}, {vr(vCa)}
    v_cvt_pk_f16_f32 {vr(vSa)}, {vr(vSa)}, {vr(vSa)}
    v_cvt_pk_f16_f32 {vr(vCa)}, {vr(vCa)}, {vr(vCa)}
    s_waitcnt vmcnt(0)""")
    stamp('xsel')
    ffn(PART0)
    stamp('ffn0')
    column(HB1, YB1, True)
    stamp('P4 stored')
    finish_here('P4')
    reducer(PART0, False)
    stamp('red0')
    lb = g.lab('nobase')
    e(f's_cmp_ge_u32 {sr(sW)}, 2\ns_cbranch_scc1 {lb}')
    e(f'v_lshlrev_b32 {vr(t(21))}, 5, {vr(vL)}')
    poll(f'buffer_load_dwordx4 {vr(FX,4)}, {vr(t(21))}, {sr(sWS,4)}, {sr(sRec)} offen offset:1152 sc1\n'
         f'buffer_load_dwordx4 {vr(FX+4,4)}, {vr(t(21))}, {sr(sWS,4)}, {sr(sRec)} offen offset:1168 sc1', range(FX, FX+8), preloaded=True)
    stats1(FX, t(0), FO)
    e(f'{lb}:')
    e('s_waitcnt vmcnt(0)')
    row_input(YB1, KB1)
    stamp('y1 read')
    lj = g.lab('fixj'); lq = g.lab('fix'); lu = g.lab('ownu'); lv = g.lab('ownv')
    U = t(16)
    updld = lambda areg: (ws_load_text(4, U, areg, sr(sOff)) + '\n' + ws_load_text(4, U+4, areg, sr(sOff), 'offset:16'))
    def owner_add():
        l1 = g.lab('nu'); l2 = g.lab('nv')
        e(f's_cmp_lg_u32 {sr(sStar)}, {sr(sRowU)}\ns_cbranch_scc1 {l1}')
        for k in range(4): e(f'v_pk_add_f32 {vr(XU+2*k,2)}, {vr(XU+2*k,2)}, {vr(U+2*k,2)}')
        e(f'{l1}:')
    e(f"""v_lshlrev_b32 {vr(t(44))}, 5, {vr(vL)}
    s_mov_b32 {sr(sOff)}, {UPD0}""")
    lnv = g.lab('notv')
    e(f"""s_cmp_lg_u32 {sr(sStar)}, {sr(sRowV)}
    s_cbranch_scc1 {lnv}
    v_sub_u32 {vr(t(45))}, {63*32}, {vr(t(44))}""")
    poll(updld(t(45)), range(U, U+8), backoff=4)
    e(f'v_mov_b32_dpp {vr(t(46))}, {vr(U)} wave_ror:1 {DPP}')
    for k in range(1, 8): e(f'v_add_f32 {vr(XV+k)}, {vr(XV+k)}, {vr(U+8-k)}')
    e(f'v_add_f32 {vr(XV)}, {vr(XV)}, {vr(t(46))}\n{lnv}:')
    e(f"""s_cmp_lt_u32 {sr(sW)}, 2
    s_cbranch_scc1 {lq}
    s_cmp_lg_u32 {sr(sStar)}, {sr(sRowU)}
    s_cbranch_scc1 {lj}""")
    poll(updld(t(44)), range(U, U+8), backoff=4)
    owner_add()
    e(f's_branch {lj}\n{lq}:')
    poll(updld(t(44)), range(U, U+8), backoff=4)
    stamp('upd')
    owner_add()
    for k in range(4): e(f'v_pk_add_f32 {vr(FX+2*k,2)}, {vr(FX+2*k,2)}, {vr(U+2*k,2)}')
    stats1(FX, t(32), FX)
    for k in range(4): e(f'v_pk_add_f32 {vr(FX+2*k,2)}, {vr(FX+2*k,2)}, {vr(FO+2*k,2)} neg_lo:[0,1] neg_hi:[0,1]')
    write_n(FX, t(24)); write_r(FX, t(40))
    A, B = CA, t(40)
    for k in range(8): e(f'v_mov_b32 {vr(FO+k)}, {vr(YH+k)}')
    e(f"""s_mov_b32 {sr(sT)}, 0x3c003c00
    s_cmp_eq_u32 {sr(sW)}, 0
    s_cselect_b32 {sr(sSgn)}, {sr(sT)}, 0xbc00bc00
    s_waitcnt lgkmcnt(0)
    ds_read_b64_tr_b16 {vr(A,2)}, {vr(lTr)} offset:{GIMG}
    ds_read_b64_tr_b16 {vr(B,2)}, {vr(lTr)} offset:{RIMG}
    ds_read_b64_tr_b16 {vr(A+2,2)}, {vr(lTr)} offset:{GIMG+128}
    ds_read_b64_tr_b16 {vr(B+2,2)}, {vr(lTr)} offset:{RIMG+128}
    s_waitcnt lgkmcnt(0)""")
    for k in range(4): e(f'v_pk_fma_f16 {vr(A+k)}, {vr(B+k)}, {sr(sSgn)}, {vr(A+k)}')
    core(A, CO)
    for k in range(4): e(f'v_cvt_pk_f16_f32 {vr(t(44)+k)}, {vr(CO+2*k)}, {vr(CO+2*k+1)}')
    e(f"""v_lshl_add_u32 {vr(t(0))}, {vr(vQ)}, 7, {vr(vN)}
    v_lshlrev_b32 {vr(t(1))}, 7, {vr(vQ)}
    v_sub_u32 {vr(t(1))}, {32*23}, {vr(t(1))}
    v_add_u32 {vr(t(1))}, {vr(t(1))}, {vr(vN)}
    v_cmp_gt_u32 vcc, 2, {vr(vQ)}
    v_cndmask_b32 {vr(t(0))}, {vr(t(1))}, {vr(t(0))}, vcc
    v_lshlrev_b32 {vr(t(0))}, 1, {vr(t(0))}
    s_lshl_b32 {sr(sT)}, {sr(sW)}, 10
    v_add_u32 {vr(t(0))}, {sr(sT)}, {vr(t(0))}
    v_mov_b32 {vr(t(2))}, 64
    v_mov_b32 {vr(t(3))}, -64
    v_cndmask_b32 {vr(t(2))}, {vr(t(3))}, {vr(t(2))}, vcc""")
    for i in range(4):
        op = 'ds_write_b16' if i % 2 == 0 else 'ds_write_b16_d16_hi'
        for Tt in range(2):
            e(f'{op} {vr(t(0))}, {vr(t(44)+2*Tt+i//2)} offset:{RIMG + 2048 + 32*Tt}')
        if i < 3: e(f'v_add_u32 {vr(t(0))}, {vr(t(0))}, {vr(t(2))}')
    for k in range(8): e(f'v_mov_b32 {vr(YH+k)}, {vr(FO+k)}')
    e(f"""{lj}:
    s_waitcnt lgkmcnt(0)
    s_barrier
    v_lshlrev_b32 {vr(t(0))}, 4, {vr(vL)}
    ds_read_b128 {vr(t(16),4)}, {vr(t(0))} offset:{RIMG+2048}
    ds_read_b128 {vr(t(20),4)}, {vr(t(0))} offset:{RIMG+2048+1024}
    s_waitcnt lgkmcnt(1)""")
    lsp = g.lab('fsp')
    for k in range(4): e(f'v_pk_fma_f16 {vr(YH+k)}, {vr(t(16)+k)}, {vr(vCa)}, {vr(YH+k)}')
    e(f'''s_cmp_lg_u32 {sr(sRowU)}, 0
    s_cbranch_scc1 {lsp}
    s_mov_b32 {sr(sT)}, 0x28002800
    s_bitcmp0_b32 {sr(sStar)}, 0
    s_cselect_b32 {sr(sT)}, {sr(sT)}, 0xa800a800''')
    for k in range(4): e(f'v_pk_fma_f16 {vr(YV+k)}, {vr(t(16)+k)}, {sr(sT)}, {vr(YV+k)}')
    e(f'{lsp}:\ns_waitcnt lgkmcnt(0)')
    for k in range(4): e(f'v_pk_fma_f16 {vr(YH+k)}, {vr(t(20)+k)}, {vr(vSa)}, {vr(YH+k)}')
    add_y_pair()
    stamp('fixed')
    stats2(True)
    make_key()
    residual_coeffs()
    e('s_waitcnt lgkmcnt(0)\ns_barrier')
    wg_best_read(t(24))
    residual_update(XU, XV)
    e('s_waitcnt lgkmcnt(0)')
    wg_best_header(CAND1, t(24))
    publish_rows(CAND1)
    e('s_waitcnt vmcnt(0)\ns_barrier')
    stamp('cand1')
    header_load(CAND1, K)
    e('s_waitcnt vmcnt(0)')
    argmax(CAND1, K)
    stamp('argmax1')
    lb = g.lab('nox')
    e(f's_cmp_ge_u32 {sr(sPhi)}, {NF}\ns_cbranch_scc1 {lb}')
    xsel_load()
    e(f'{lb}:')
    sigmoid_of_key()
    ln = g.lab('noout')
    e(f's_cmp_eq_u32 {sr(sStar)}, {sr(sRowU)}\ns_cbranch_scc1 {ln}')
    for k in range(4): e(f'v_cvt_pk_bf16_f32 {vr(t(24)+k)}, {vr(XU+2*k)}, {vr(XU+2*k+1)}')
    e(f'buffer_store_dwordx4 {vr(t(24),4)}, {vr(aU)}, {sr(sOUT,4)}, 0 offen sc1\n{ln}:')
    ln = g.lab('noout')
    e(f's_cmp_eq_u32 {sr(sStar)}, {sr(sRowV)}\ns_cbranch_scc1 {ln}')
    e(f"""v_mov_b32_dpp {vr(t(32))}, {vr(XV)} wave_rol:1 {DPP}
    v_cvt_pk_bf16_f32 {vr(t(29))}, {vr(XV+6)}, {vr(XV+5)}
    v_cvt_pk_bf16_f32 {vr(t(30))}, {vr(XV+4)}, {vr(XV+3)}
    v_cvt_pk_bf16_f32 {vr(t(31))}, {vr(XV+2)}, {vr(XV+1)}
    v_cvt_pk_bf16_f32 {vr(t(28))}, {vr(t(32))}, {vr(XV+7)}
    buffer_store_dwordx4 {vr(t(28),4)}, {vr(aV)}, {sr(sOUT,4)}, 0 offen sc1
    {ln}:""")
    e('s_waitcnt vmcnt(0)')
    ffn(PART1)
    stamp('ffn1')
    e('s_waitcnt vmcnt(0)')
    reducer(PART1, True)
    stamp('end')
    e('L_done:')
    if stamps:
        ls = g.lab('nost')
        e(f"""s_cmp_ge_u32 s2, 256
        s_cbranch_scc1 {ls}
        s_waitcnt vmcnt(0)
        s_mov_b64 exec, -1
        s_lshl_b32 {sr(sT)}, {sr(sWg)}, 11
        s_lshl_b32 {sr(sT2)}, {sr(sW)}, 8
        s_add_u32 {sr(sT)}, {sr(sT)}, {sr(sT2)}
        v_and_b32 {vr(t(0))}, 63, v0
        v_lshlrev_b32 {vr(t(0))}, 2, {vr(t(0))}
        v_add_u32 {vr(t(0))}, {sr(sT)}, {vr(t(0))}
        s_mov_b32 {sr(sOff)}, {STAMP}
        buffer_store_dword {vr(vStamp)}, {vr(t(0))}, {sr(sWS,4)}, {sr(sOff)} offen
        {ls}:""")
    e('s_endpgm')
    loader()
    for ls, lj in g.late:
        e(f'{ls}:')
        add_y(YH, YV)
        e(f's_branch {lj}')
    emit_tail()
    return g

def render(g):
    lines, added = pad(g.L)
    body = '\n'.join(('' if l.endswith(':') else '    ') + l for l in lines)
    ninstr = sum(1 for l in lines if not l.endswith(':'))
    hdr = f"""; FNet (2-D real DFT via Hartley factorisation on MFMA) + top-1 routed SwiGLU, two layers, one persistent launch.
; @launch grid=(256,1,1) block=(320,1,1) lds={LDS_SIZE}
.amdgcn_target "amdgcn-amd-amdhsa--gfx950"
.text
.globl {NAME}
.p2align 8
.type {NAME},@function
{NAME}:
"""
    tab = '\n'.join('.long ' + ','.join('0x%08x' % x for x in TAB[i:i+8]) for i in range(0, len(TAB), 8))
    tail = f"""
L_code_end:
.p2align 8
L_tab:
{tab}
.section .rodata,"a"
.p2align 6
.amdhsa_kernel {NAME}
  .amdhsa_next_free_vgpr 256
  .amdhsa_next_free_sgpr 102
  .amdhsa_accum_offset 256
  .amdhsa_group_segment_fixed_size 0
  .amdhsa_kernarg_size 104
  .amdhsa_user_sgpr_count 2
  .amdhsa_user_sgpr_kernarg_segment_ptr 1
  .amdhsa_system_sgpr_workgroup_id_x 1
.end_amdhsa_kernel
"""
    return hdr + body + tail, ninstr, added

if __name__ == '__main__':
    import argparse
    ap = argparse.ArgumentParser()
    ap.add_argument('-o', default='interleave_layers__spectral_fnet__moe_arch_mod__prompt.s')
    ap.add_argument('--stop'); ap.add_argument('--stamps', action='store_true'); ap.add_argument('--opt', default='')
    a = ap.parse_args()
    g = build(a.stop, a.stamps, {k.split('=')[0]: (k.split('=')+['1'])[1] for k in a.opt.split(',') if k})
    txt, n, added = render(g)
    open(a.o, 'w').write(txt)
    print(f'{n} instructions, {added} nop slots added, vgpr high {g.v.n}, sgpr high {g.s.n}')
```

```python
import sys, struct, math
from asmlib import pad, Alloc
import tables

NAME = "interleave_layers__spectral_fnet__moe_arch_mod__prompt_kernel"
NONCE = 0x000000
HB0, YB0, HB1, YB1 = 0x100000, 0x300000, 0x400000, 0x500000
CAND0, CAND1 = 0x600000, 0x700000
PART0, PART1 = 0x800000, 0x880000
UPD0 = 0x900000
KB0, KB1 = 0x901000, 0x902000
HINT = 0x903000
STAMP = 0x980000
WS_SIZE = 0xA00000
NF = 172
RED0 = 8
LIMIT = 40000
NPOIS = 64
YIMG = 0
GIMG = 5120
RIMG = 9216
HIMG = 13312
CIN = 17472
COUT = 21568
KIMG = 25664
FP = 26752
AM = 27008
RED = 27072
GU = 27392
DN = GU + 16384
LDS_SIZE = DN + 8192
LMAP = dict(YIMG=YIMG, GIMG=GIMG, RIMG=RIMG, HIMG=HIMG, CIN=CIN, COUT=COUT)
TAB, TOFF = tables.build_tables(LMAP)

def fbits(x): return '0x%08x' % struct.unpack('<I', struct.pack('<f', x))[0]

class G:
    def __init__(self, stop=None, stamps=False):
        self.L = []; self.stop = stop; self.stamps = stamps; self.uid = 0; self.nstamp = 0; self.names = []
        self.v = Alloc(1, 256, 'v'); self.s = Alloc(3, 100, 's')
    def e(self, text):
        for l in text.strip('\n').split('\n'):
            l = l.strip()
            if l: self.L.append(l)
    def lab(self, p):
        self.uid += 1; return f'L_{p}_{self.uid}'

def vr(a, n=1): return f'v{a}' if n == 1 else f'v[{a}:{a+n-1}]'
def sr(a, n=1): return f's{a}' if n == 1 else f's[{a}:{a+n-1}]'
DPP = 'row_mask:0xf bank_mask:0xf'
PKB = 'op_sel:[0,0,1] op_sel_hi:[1,0,1]'

def build(stop=None, stamps=False, opt=None):
    opt = opt or {}
    g = G(stop, stamps); e = g.e; V = g.v; S = g.s
    sWS = S('ws', 4, 4); sXS = S('xsrd', 4, 4); sOUT = S('out', 4, 4); sT4 = S('tmpsrd', 4, 4)
    sRho = S('rho'); sW = S('w'); sRowU = S('rowu'); sRowV = S('rowv'); sVs = S('vs'); sOff = S('off'); sCnt = S('cnt')
    sT = S('t'); sT2 = S('t2'); sT3 = S('t3'); s16 = S('k16'); sStar = S('star'); sRec = S('rec'); sWg = S('wg'); sSW = S('sw')
    sCu = S('cu', 2, 2); sCv = S('cv', 2, 2); sEx = S('exsave', 2, 2)
    sAu = S('au', 2, 2); sAv = S('av', 2, 2); sKu = S('ku', 2, 2); sKv = S('kv', 2, 2); sKeyU = S('keyu'); sKeyV = S('keyv'); sKey = S('key')
    sTag = S('tag'); sH = S('h', 8, 2); sTm = S('tm', 2, 2); sPC = S('pc', 2, 2); sM2 = S('m2', 2, 2); sPhi = S('phi'); sSgn = S('sgn')
    sKA = S('ka', 16, 4); sKB = S('kb', 8, 4); sKC = S('kc', 2, 2)
    vL = V('lane'); vN = V('n'); vQ = V('q')
    XU = V('XU', 8, 4); XV = V('XV', 8, 4); WU = V('WU', 8, 2); WV = V('WV', 8, 2)
    RB1 = V('RB1', 16, 4); RC = V('RC', 8, 2); RS = V('RS', 8, 2); RA2 = V('RA2', 4, 4)
    CB1 = V('CB1', 8, 4); CK = V('CK', 32, 2); CA2 = V('CA2', 16, 4)
    assert RC == RB1+16 and RS == RB1+24 and RA2 == RB1+32 and CK == CB1+8
    FA = V('FA', 16, 4); FD = V('FD', 16, 4)
    AD = V('addr', 16, 4)
    lRow, lTr, lRw, lCr, lH, _, lHf, _, lCa, lCb, lCc, lYd = range(AD, AD+12)
    lCo = AD + 12; lYm = AD + 15
    aU = V('aU'); aV = V('aV'); aP16 = V('aP16'); aS16 = V('aS16'); aHdr = V('aHdr'); aP8 = V('aP8')
    lYm4 = V('lYm4'); lG = V('lG')
    vRowH = V('rowh'); vSig = V('sig'); vSent = V('sent'); vCa = V('cosa'); vSa = V('sina'); vStamp = V('stamp')
    FX = V('FX', 8, 4); FO = V('FO', 8, 4)
    NT = 256 - ((V.n + 3)//4*4)
    T = V('T', NT, 4)
    def t(i):
        assert i < NT, i
        return T + i
    DU, DV = t(0), t(8)

    def stamp(name=''):
        if not g.stamps: return
        if opt.get('only') and name not in opt['only'].split('+'): return
        e(f'''s_memrealtime {sr(sTm,2)}
        s_waitcnt lgkmcnt(0)
        v_writelane_b32 {vr(vStamp)}, {sr(sTm)}, {g.nstamp}''')
        g.nstamp += 1; g.names.append(name)
    def finish_here(tag):
        if g.stop == tag: e('s_branch L_done')

    def sentinel(regs):
        if isinstance(regs, tuple) and regs[0] == 'tag':
            P = regs[1]
            e(f'''v_bitop3_b32 {vr(vSent)}, {vr(P+1)}, {vr(P+3)}, {sr(sTag)} bitop3:0x7e
            v_bitop3_b32 {vr(P+1)}, {vr(P+5)}, {vr(P+7)}, {sr(sTag)} bitop3:0x7e
            v_or_b32 {vr(vSent)}, {vr(vSent)}, {vr(P+1)}
            v_cmp_ne_u32 vcc, 0, {vr(vSent)}''')
            return
        regs = list(regs); tm = vSent
        if len(regs) == 1:
            e(f'v_cmp_eq_u32 vcc, -1, {vr(regs[0])}')
        else:
            if len(regs) >= 3:
                e(f'v_max3_u32 {vr(tm)}, {vr(regs[0])}, {vr(regs[1])}, {vr(regs[2])}'); rest = regs[3:]
            else:
                e(f'v_max_u32 {vr(tm)}, {vr(regs[0])}, {vr(regs[1])}'); rest = []
            while len(rest) >= 2:
                e(f'v_max3_u32 {vr(tm)}, {vr(tm)}, {vr(rest[0])}, {vr(rest[1])}'); rest = rest[2:]
            if rest: e(f'v_max_u32 {vr(tm)}, {vr(tm)}, {vr(rest[0])}')
            e(f'v_cmp_eq_u32 vcc, -1, {vr(tm)}')
    def poll(load, regs, backoff=2, preloaded=False):
        lp = g.lab('poll'); ok = g.lab('ok')
        if preloaded:
            sentinel(regs)
            e(f's_cbranch_vccnz {lp}\n{ok}:')
            g.tail.append((lp, ok, load, regs if isinstance(regs, tuple) else list(regs), backoff))
        else:
            e(load); e('s_waitcnt vmcnt(0)')
            sentinel(regs)
            e(f's_cbranch_vccnz {lp}\n{ok}:')
            g.tail.append((lp, ok, load, regs if isinstance(regs, tuple) else list(regs), backoff))
    g.tail = []
    g.nbar_mark = None
    def emit_tail():
        for lp, ok, load, regs, backoff in g.tail:
            l2 = lp + '_r'
            e(f'{lp}:\ns_mov_b32 {sr(sCnt)}, 0\n{l2}:\ns_sleep {backoff}')
            e(load)
            e(f'''s_add_u32 {sr(sCnt)}, {sr(sCnt)}, 1
            s_cmp_gt_u32 {sr(sCnt)}, {LIMIT}
            s_cbranch_scc1 L_done
            s_waitcnt vmcnt(0)''')
            sentinel(regs)
            e(f's_cbranch_vccnz {l2}\ns_branch {ok}')
    def srd(dst, ptr, size):
        e(f'''s_mov_b32 {sr(dst)}, {sr(ptr)}
        s_mov_b32 {sr(dst+1)}, {sr(ptr+1)}
        s_mov_b32 {sr(dst+2)}, {size}
        s_mov_b32 {sr(dst+3)}, 0x00020000''')
    def ws_store(n, data, areg, region, extra=''):
        op = {1: 'buffer_store_dword', 2: 'buffer_store_dwordx2', 4: 'buffer_store_dwordx4'}[n]
        e(f's_mov_b32 {sr(sOff)}, {region}\n{op} {vr(data,n)}, {vr(areg)}, {sr(sWS,4)}, {sr(sOff)} offen sc1 {extra}')
    def ws_load_text(n, data, areg, soff, extra=''):
        op = {1: 'buffer_load_dword', 2: 'buffer_load_dwordx2', 4: 'buffer_load_dwordx4'}[n]
        return f'{op} {vr(data,n)}, {vr(areg)}, {sr(sWS,4)}, {soff} offen {extra} sc1'
    PZ = t(40)
    def poison_regs():
        for k in range(4): e(f'v_mov_b32 {vr(PZ+k)}, -1')

    e(f's_cmp_ge_u32 s2, 256\ns_cbranch_scc1 L_done')
    if stamps: e(f's_memrealtime {sr(sM2,2)}')
    e(f'''s_load_dwordx16 {sr(sKA,16)}, s[0:1], 0
    s_load_dwordx8 {sr(sKB,8)}, s[0:1], 64
    s_load_dwordx2 {sr(sKC,2)}, s[0:1], 96''')
    e(f'''s_getpc_b64 {sr(sPC,2)}
    L_pc:
    v_lshlrev_b32 {vr(t(0))}, 7, v0
    v_min_u32 {vr(t(0))}, L_code_end-L_pc-4, {vr(t(0))}
    global_load_dword {vr(vSig)}, {vr(t(0))}, {sr(sPC,2)}
    s_add_u32 {sr(sPC)}, {sr(sPC)}, L_tab-L_pc
    s_addc_u32 {sr(sPC+1)}, {sr(sPC+1)}, 0''')
    e(f'''s_mov_b32 {sr(sWg)}, s2
    s_and_b32 {sr(sT)}, s2, 7
    s_lshl_b32 {sr(sT)}, {sr(sT)}, 5
    s_lshr_b32 {sr(sRho)}, s2, 3
    s_or_b32 {sr(sRho)}, {sr(sRho)}, {sr(sT)}
    v_lshrrev_b32 {vr(t(1))}, 6, v0
    v_and_b32 {vr(vL)}, 63, v0
    v_readfirstlane_b32 {sr(sW)}, {vr(t(1))}
    v_lshlrev_b32 {vr(t(2))}, 4, {vr(vL)}
    v_sub_u32 {vr(t(3))}, 1008, {vr(t(2))}
    s_lshl_b32 {sr(sT)}, {sr(sRho)}, 2
    s_add_u32 {sr(sRowU)}, {sr(sT)}, {sr(sW)}
    s_sub_u32 {sr(sRowV)}, 2048, {sr(sRowU)}
    s_cmp_eq_u32 {sr(sRowU)}, 0
    s_cselect_b32 {sr(sRowV)}, 1024, {sr(sRowV)}
    s_lshl_b32 {sr(sT)}, {sr(sRowU)}, 10
    s_lshl_b32 {sr(sT2)}, {sr(sRowV)}, 10
    v_add_u32 {vr(aU)}, {sr(sT)}, {vr(t(2))}
    v_add_u32 {vr(aV)}, {sr(sT2)}, {vr(t(3))}
    v_lshlrev_b32 {vr(lG)}, 4, v0
    s_waitcnt lgkmcnt(0)''')
    kx, kwr, kwg = sKA + 0, sKA + 12, sKA + 14
    kwu, kwd, kout, kdbg = sKB + 0, sKB + 2, sKB + 4, sKB + 6
    URAW, VRAW = t(8), t(12)
    WURAW, WVRAW = FX, FX + 4
    e(f's_sub_u32 {sr(sPhi)}, {sr(sRho)}, 1\ns_cmp_eq_u32 {sr(sW)}, 4\ns_cbranch_scc1 L_loader')
    srd(sXS, kx, 2097152)
    e(f'''buffer_load_dwordx4 {vr(URAW,4)}, {vr(aU)}, {sr(sXS,4)}, 0 offen
    buffer_load_dwordx4 {vr(VRAW,4)}, {vr(aV)}, {sr(sXS,4)}, 0 offen''')
    srd(sWS, sKC, WS_SIZE)
    e(f'v_mov_b32 {vr(vCa)}, {NONCE}\nbuffer_load_dword {vr(vCa)}, {vr(vCa)}, {sr(sWS,4)}, 0 offen')
    nvm = [1]
    def tab_loads(dst, n, areg, off, stride):
        k = 0
        while k < n:
            base = off + k*stride
            per = {1024: 4, 4096: 1}[stride]
            e(f'v_add_u32 {vr(t(4))}, {base}, {vr(areg)}')
            for kk in range(min(per, n-k)):
                e(f'global_load_dwordx4 {vr(dst+4*(k+kk),4)}, {vr(t(4))}, {sr(sPC,2)} offset:{kk*stride}')
                nvm[0] += 1
            k += per
    tab_loads(AD, 4, lG, TOFF['addr'], 4096)
    tab_loads(RB1, 9, t(2), TOFF['row'], 1024)
    N_ROWTAB = nvm[0]
    if stamps:
        e(f'v_mov_b32 {vr(vStamp)}, 0\nv_writelane_b32 {vr(vStamp)}, {sr(sM2)}, 0'); g.nstamp = 1; g.names.append('start')
    poison_regs()
    e(f'''s_lshl_b32 {sr(sT)}, {sr(sRho)}, 12
    v_add_u32 {vr(aP16)}, {sr(sT)}, {vr(lG)}''')
    ws_store(4, PZ, aP16, YB0)
    e(f'''v_mov_b32 {vr(t(5))}, 0x7f000000
    v_cmp_gt_u32 vcc, 64, v0
    s_cmp_eq_u32 {sr(sRho)}, 0
    s_cselect_b64 {sr(sEx,2)}, vcc, 0
    v_cndmask_b32 {vr(t(5))}, {vr(t(5))}, {vr(lG)}, {sr(sEx,2)}''')
    ws_store(4, PZ, t(5), KB0)
    ws_store(4, PZ, t(5), KB1)
    nvm[0] += 3
    N_POISON = nvm[0]
    srd(sT4, kwr, 1024)
    e(f'''buffer_load_dwordx4 {vr(WURAW,4)}, {vr(t(2))}, {sr(sT4,4)}, 0 offen
    buffer_load_dwordx4 {vr(WVRAW,4)}, {vr(t(3))}, {sr(sT4,4)}, 0 offen''')
    nvm[0] += 2
    N_ALL = nvm[0]
    srd(sOUT, kout, 2097152)
    e(f'''s_mov_b32 {sr(s16)}, {fbits(16.0)}
    v_and_b32 {vr(vN)}, 15, {vr(vL)}
    v_lshrrev_b32 {vr(vQ)}, 4, {vr(vL)}''')

    a0, a1, a2, a3 = t(20), t(21), t(22), t(23)
    def addr_misc():
        e(f'''s_lshl_b32 {sr(sT)}, {sr(sRho)}, 4
        v_lshlrev_b32 {vr(aHdr)}, 12, v0
        v_add_u32 {vr(aS16)}, {sr(sT)}, {vr(aHdr)}
        v_mov_b32 {vr(a0)}, {sr(sRowU)}
        v_mov_b32 {vr(a1)}, {sr(sRowV)}
        v_cmp_gt_u32 vcc, 32, {vr(vL)}
        s_lshl_b32 {sr(sT)}, {sr(sPhi)}, 11
        s_cmp_lt_u32 {sr(sPhi)}, {NF}
        s_cselect_b32 {sr(sT)}, {sr(sT)}, 0x7f000000
        v_cndmask_b32 {vr(vRowH)}, {vr(a1)}, {vr(a0)}, vcc
        v_lshlrev_b32 {vr(aP8)}, 3, v0
        v_add_u32 {vr(aP8)}, {sr(sT)}, {vr(aP8)}
        v_mov_b32 {vr(a0)}, 0
        v_lshlrev_b32 {vr(a1)}, 10, {vr(vL)}
        s_mov_b64 exec, 31
        ds_write_b16 {vr(a1)}, {vr(a0)} offset:{YIMG}
        s_mov_b64 exec, -1''')
    def addr_ym4():
        e(f'''s_cmp_eq_u32 {sr(sRho)}, 0
        s_cselect_b32 {sr(sT)}, 4096, 0
        v_add_u32 {vr(lYm4)}, {sr(sT)}, {vr(lYm)}''')

    b0, b1, b2 = t(24), t(25), t(26)
    vTau, vTlo = t(28), t(29)
    def tau_tlo():
        e(f'''s_lshl_b32 {sr(sT)}, {sr(sW)}, 3
        v_and_b32 {vr(vTau)}, 7, {vr(vN)}
        v_add_u32 {vr(vTau)}, {sr(sT)}, {vr(vTau)}
        v_sub_u32 {vr(a0)}, 64, {vr(vTau)}
        v_mov_b32 {vr(a1)}, 32
        v_cmp_eq_u32 {sr(sTm,2)}, 0, {vr(vTau)}
        v_cndmask_b32 {vr(a0)}, {vr(a0)}, {vr(a1)}, {sr(sTm,2)}
        v_cmp_le_u32 vcc, 8, {vr(vN)}
        v_cndmask_b32 {vr(vTlo)}, {vr(vTau)}, {vr(a0)}, vcc
        s_andn2_b64 {sr(sEx,2)}, vcc, {sr(sTm,2)}''')
    c0, c1 = t(30), t(31)
    def cos_seq(dst, base, step, n, amp=None):
        for j in range(0, n, 2):
            e(f'v_cos_f32 {vr(c0)}, {vr(base)}\nv_add_f32 {vr(base)}, {vr(base)}, {vr(step)}')
            e(f'v_cos_f32 {vr(c1)}, {vr(base)}')
            if j + 2 < n: e(f'v_add_f32 {vr(base)}, {vr(base)}, {vr(step)}')
            if amp is not None:
                e(f'v_mul_f32 {vr(c0)}, {amp}, {vr(c0)}\nv_mul_f32 {vr(c1)}, {amp}, {vr(c1)}')
            e(f'v_cvt_pk_f16_f32 {vr(dst + j//2)}, {vr(c0)}, {vr(c1)}')
    fQ, fN, fs, fb, fa, fb2 = t(32), t(33), t(34), t(35), t(36), t(37)
    def col_consts():
        tau_tlo()
        e(f'''v_cvt_f32_u32 {vr(fQ)}, {vr(vQ)}
        v_cmp_le_u32 vcc, 8, {vr(vN)}
        s_and_b64 vcc, vcc, {sr(sTm,2)}
        v_mov_b32 {vr(a1)}, 32
        v_cndmask_b32 {vr(a0)}, {vr(vTau)}, {vr(a1)}, vcc
        v_cvt_f32_u32 {vr(fs)}, {vr(a0)}
        v_mul_f32 {vr(fs)}, {fbits(1/64)}, {vr(fs)}
        v_mov_b32 {vr(fa)}, {fbits(0.25)}
        v_cndmask_b32 {vr(fa)}, 0, {vr(fa)}, {sr(sEx,2)}
        v_mul_f32 {vr(fb)}, {fbits(8.0)}, {vr(fQ)}
        v_fma_f32 {vr(fb)}, {vr(fb)}, {vr(fs)}, {vr(fa)}''')
        cos_seq(CB1, fb, fs, 8)
        e(f'''v_and_b32 {vr(a0)}, 1, {vr(a0)}
        v_mul_u32_u24 {vr(a0)}, 0x8000, {vr(a0)}
        v_lshl_or_b32 {vr(a0)}, {vr(a0)}, 16, {vr(a0)}''')
        for k in range(4): e(f'v_xor_b32 {vr(CB1+4+k)}, {vr(a0)}, {vr(CB1+k)}')
        e(f'''v_cvt_f32_u32 {vr(fs)}, {vr(vTlo)}
        v_mul_f32 {vr(fs)}, {fbits(1/2048)}, {vr(fs)}
        v_mul_f32 {vr(fb)}, {vr(fQ)}, {vr(fs)}
        v_fma_f32 {vr(fb)}, {vr(fb)}, 4.0, {vr(fa)}
        v_mov_b32 {vr(a1)}, {fbits(0.25)}
        v_cndmask_b32 {vr(a1)}, {vr(a1)}, 0, {sr(sTm,2)}''')
        e(f'v_add_f32 {vr(fb2)}, {fbits(-0.25)}, {vr(fb)}')
        e(f'v_mul_f32 {vr(a2)}, {fbits(12.0)}, {vr(fs)}')
        for Tt in range(2):
            for i in range(4):
                k = CK + 16*Tt
                e(f'''v_cos_f32 {vr(c0)}, {vr(fb)}
                v_cos_f32 {vr(c1)}, {vr(fb2)}
                v_add_f32 {vr(fb)}, {vr(fb)}, {vr(fs)}
                v_add_f32 {vr(fb2)}, {vr(fb2)}, {vr(fs)}
                v_mul_f32 {vr(k+i)}, {fbits(0.25)}, {vr(c0)}
                v_mul_f32 {vr(k+4+i)}, {vr(a1)}, {vr(c1)}
                v_mul_f32 {vr(k+8+i)}, {fbits(-0.25)}, {vr(c1)}
                v_mul_f32 {vr(k+12+i)}, {vr(a1)}, {vr(c0)}''')
            if Tt == 0: e(f'v_add_f32 {vr(fb)}, {vr(fb)}, {vr(a2)}\nv_add_f32 {vr(fb2)}, {vr(fb2)}, {vr(a2)}')
        e(f'''v_cvt_f32_u32 {vr(fs)}, {vr(vN)}
        v_mul_f32 {vr(fs)}, {fbits(1/32)}, {vr(fs)}
        v_mul_f32 {vr(fb2)}, {vr(fQ)}, {vr(fs)}
        v_mul_f32 {vr(fb2)}, 4.0, {vr(fb2)}''')
        for part, ph in ((0, -0.125), (1, -0.375)):
            e(f'v_add_f32 {vr(fb)}, {fbits(ph)}, {vr(fb2)}')
            cos_seq(CA2 + 2*part, fb, fs, 4, amp=fbits(math.sqrt(2)/8))
        e(f'''v_and_b32 {vr(a0)}, 1, {vr(vN)}
        v_mul_u32_u24 {vr(a0)}, 0x8000, {vr(a0)}
        v_lshl_or_b32 {vr(a0)}, {vr(a0)}, 16, {vr(a0)}''')
        for k in range(4):
            e(f'v_xor_b32 {vr(CA2+4+k)}, {vr(a0)}, {vr(CA2+k)}')
        for k in range(8):
            e(f'v_xor_b32 {vr(CA2+8+k)}, 0x80000000, {vr(CA2+k)}')

    def unpack_nat(dst, src):
        for k in range(4):
            e(f'v_lshlrev_b32 {vr(dst+2*k)}, 16, {vr(src+k)}\nv_and_b32 {vr(dst+2*k+1)}, 0xffff0000, {vr(src+k)}')
    def unpack_rev(dst, src, tmp):
        e(f'''v_lshlrev_b32 {vr(tmp)}, 16, {vr(src)}
        v_and_b32 {vr(dst+7)}, 0xffff0000, {vr(src)}
        v_lshlrev_b32 {vr(dst+6)}, 16, {vr(src+1)}
        v_and_b32 {vr(dst+5)}, 0xffff0000, {vr(src+1)}
        v_mov_b32_dpp {vr(dst)}, {vr(tmp)} wave_ror:1 {DPP}
        v_lshlrev_b32 {vr(dst+4)}, 16, {vr(src+2)}
        v_and_b32 {vr(dst+3)}, 0xffff0000, {vr(src+2)}
        v_lshlrev_b32 {vr(dst+2)}, 16, {vr(src+3)}
        v_and_b32 {vr(dst+1)}, 0xffff0000, {vr(src+3)}''')
    def half_reduce(regs, tmps, op='v_add_f32'):
        for sh in (8, 4, 2, 1):
            for r in regs: e(f'{op}_dpp {vr(r)}, {vr(r)}, {vr(r)} row_ror:{sh} {DPP}')
        for r, tm in zip(regs, tmps): e(f'v_mov_b32 {vr(tm)}, {vr(r)}')
        for r, tm in zip(regs, tmps): e(f'v_permlane16_swap_b32 {vr(r)}, {vr(tm)}')
        for r, tm in zip(regs, tmps): e(f'{op} {vr(r)}, {vr(r)}, {vr(tm)}')
    def wave_reduce(regs, tmps, op='v_add_f32'):
        half_reduce(regs, tmps, op)
        for r, tm in zip(regs, tmps): e(f'v_mov_b32 {vr(tm)}, {vr(r)}')
        for r, tm in zip(regs, tmps): e(f'v_permlane32_swap_b32 {vr(r)}, {vr(tm)}')
        for r, tm in zip(regs, tmps): e(f'{op} {vr(r)}, {vr(r)}, {vr(tm)}')
    hM, hVar, hRho, hB, hR = t(40), t(41), t(42), t(43), t(44)
    def partial(Dd, src, sC, w, o1, o2, o3, P):
        e(f'v_readfirstlane_b32 {sr(sC)}, {vr(src)}')
        for k in range(4):
            e(f'v_pk_add_f32 {vr(Dd+2*k,2)}, {vr(src+2*k,2)}, {sr(sC,2)} op_sel_hi:[1,0] neg_lo:[0,1] neg_hi:[0,1]')
        e(f'''v_pk_add_f32 {vr(P,2)}, {vr(Dd,2)}, {vr(Dd+2,2)}
        v_pk_mul_f32 {vr(P+2,2)}, {vr(Dd,2)}, {vr(Dd,2)}
        v_pk_add_f32 {vr(P+4,2)}, {vr(Dd+4,2)}, {vr(Dd+6,2)}''')
        if w is not None: e(f'v_pk_mul_f32 {vr(P+6,2)}, {vr(Dd,2)}, {vr(w,2)}')
        for k in range(1, 4):
            e(f'v_pk_fma_f32 {vr(P+2,2)}, {vr(Dd+2*k,2)}, {vr(Dd+2*k,2)}, {vr(P+2,2)}')
            if w is not None: e(f'v_pk_fma_f32 {vr(P+6,2)}, {vr(Dd+2*k,2)}, {vr(w+2*k,2)}, {vr(P+6,2)}')
            if k == 1: e(f'v_pk_add_f32 {vr(P,2)}, {vr(P,2)}, {vr(P+4,2)}')
        e(f'v_add_f32 {vr(o1)}, {vr(P)}, {vr(P+1)}\nv_add_f32 {vr(o2)}, {vr(P+2)}, {vr(P+3)}')
        if w is not None: e(f'v_add_f32 {vr(o3)}, {vr(P+6)}, {vr(P+7)}')
    def moments(S1, S2):
        e(f'''v_mul_f32 {vr(hM)}, {fbits(1/512)}, {vr(S1)}
        v_mul_f32 {vr(S2)}, {fbits(1/512)}, {vr(S2)}
        v_fma_f32 {vr(hVar)}, -{vr(hM)}, {vr(hM)}, {vr(S2)}
        v_max_f32 {vr(hVar)}, 0, {vr(hVar)}
        v_add_f32 {vr(S2)}, {fbits(1e-5)}, {vr(hVar)}
        v_rsq_f32 {vr(hRho)}, {vr(S2)}''')
    def stats2(with_r):
        a1_, a2_, a3_, b1_, b2_, b3_ = t(16), t(17), t(18), t(19), t(20), t(21)
        partial(DU, XU, sCu, WU if with_r else None, a1_, a2_, a3_, t(24))
        partial(DV, XV, sCv, WV if with_r else None, b1_, b2_, b3_, t(32))
        pairs = [(a1_, b1_), (a2_, b2_)] + ([(a3_, b3_)] if with_r else [])
        for x, y in pairs: e(f'v_permlane32_swap_b32 {vr(x)}, {vr(y)}')
        for x, y in pairs: e(f'v_add_f32 {vr(x)}, {vr(x)}, {vr(y)}')
        half_reduce([x for x, _ in pairs], [y for _, y in pairs])
        moments(a1_, a2_)
        if with_r: e(f'v_fma_f32 {vr(a3_)}, -{vr(hM)}, {sr(sSW)}, {vr(a3_)}')
        e(f'v_mul_f32 {vr(hB)}, -{vr(hM)}, {vr(hRho)}')
        if with_r: e(f'v_mul_f32 {vr(hR)}, {vr(hRho)}, {vr(a3_)}')
    def stats1(src, Dd, dst):
        partial(Dd, src, sCu, None, t(16), t(17), None, t(24))
        wave_reduce([t(16), t(17)], [t(18), t(19)])
        moments(t(16), t(17))
        e(f'''v_readfirstlane_b32 {sr(sKu)}, {vr(hRho)}
        v_mul_f32 {vr(hB)}, -{vr(hM)}, {vr(hRho)}
        v_readfirstlane_b32 {sr(sKu+1)}, {vr(hB)}''')
        for k in range(4): e(f'v_pk_fma_f32 {vr(dst+2*k,2)}, {vr(Dd+2*k,2)}, {sr(sKu,2)}, {sr(sKu,2)} {PKB}')
    def residual_coeffs():
        e(f'''v_mov_b32 {vr(t(22))}, {sr(sCu)}
        v_mov_b32 {vr(t(23))}, {sr(sCv)}
        v_cmp_gt_u32 vcc, 32, {vr(vL)}
        v_add_f32 {vr(t(21))}, 1.0, {vr(hRho)}
        v_cndmask_b32 {vr(t(22))}, {vr(t(23))}, {vr(t(22))}, vcc
        v_add_f32 {vr(t(22))}, {vr(t(22))}, {vr(hB)}
        v_readlane_b32 {sr(sAu)}, {vr(t(21))}, 0
        v_readlane_b32 {sr(sAv)}, {vr(t(21))}, 32
        v_readlane_b32 {sr(sAu+1)}, {vr(t(22))}, 0
        v_readlane_b32 {sr(sAv+1)}, {vr(t(22))}, 32''')
    def residual_update(dU, dV):
        for k in range(4): e(f'v_pk_fma_f32 {vr(dU+2*k,2)}, {vr(DU+2*k,2)}, {sr(sAu,2)}, {sr(sAu,2)} {PKB}')
        for k in range(4): e(f'v_pk_fma_f32 {vr(dV+2*k,2)}, {vr(DV+2*k,2)}, {sr(sAv,2)}, {sr(sAv,2)} {PKB}')
    def norm_coeffs(scale, bias):
        e(f'''v_readlane_b32 {sr(sKu)}, {vr(scale)}, 0
        v_readlane_b32 {sr(sKu+1)}, {vr(bias)}, 0
        v_readlane_b32 {sr(sKv)}, {vr(scale)}, 32
        v_readlane_b32 {sr(sKv+1)}, {vr(bias)}, 32''')
    GG = t(16)
    def make_g():
        for k in range(4): e(f'v_pk_fma_f32 {vr(GG+2*k,2)}, {vr(DU+2*k,2)}, {sr(sKu,2)}, {sr(sKu,2)} {PKB}')
        for k in range(4): e(f'v_pk_fma_f32 {vr(GG+2*k,2)}, {vr(DV+2*k,2)}, {sr(sKv,2)}, {vr(GG+2*k,2)} op_sel_hi:[1,0,1]')
    def write_n(src, tmp):
        for k in range(4): e(f'v_cvt_pk_f16_f32 {vr(tmp+k)}, {vr(src+2*k)}, {vr(src+2*k+1)}')
        e(f'ds_write_b128 {vr(lRow)}, {vr(tmp,4)} offset:{GIMG}')
    def write_r(src, tmp):
        e(f'''v_mov_b32_dpp {vr(tmp+4)}, {vr(src)} wave_rol:1 {DPP}
        v_cvt_pk_f16_f32 {vr(tmp+1)}, {vr(src+6)}, {vr(src+5)}
        v_cvt_pk_f16_f32 {vr(tmp+2)}, {vr(src+4)}, {vr(src+3)}
        v_cvt_pk_f16_f32 {vr(tmp+3)}, {vr(src+2)}, {vr(src+1)}
        v_cvt_pk_f16_f32 {vr(tmp)}, {vr(tmp+4)}, {vr(src+7)}
        ds_write_b128 {vr(lRw)}, {vr(tmp,4)}''')
    def core(A, O):
        Dr = [t(0), t(8)]; Di = [t(4), t(12)]
        for Tt in range(2):
            e(f'v_mfma_f32_16x16x32_f16 {vr(Dr[Tt],4)}, {vr(A,4)}, {vr(RB1+(2*Tt)*4,4)}, 0')
            e(f'v_mfma_f32_16x16x32_f16 {vr(Di[Tt],4)}, {vr(A,4)}, {vr(RB1+(2*Tt+1)*4,4)}, 0')
        Bo = [t(16), t(20)]; br, bi = t(24), t(28)
        for Tt in range(2):
            for h in range(2):
                c = vr(RC+4*Tt+2*h, 2); s_ = vr(RS+4*Tt+2*h, 2)
                dr = vr(Dr[Tt]+2*h, 2); di = vr(Di[Tt]+2*h, 2)
                e(f'''v_pk_mul_f32 {vr(br+2*h,2)}, {dr}, {c}
                v_pk_mul_f32 {vr(bi+2*h,2)}, {di}, {c}
                v_pk_fma_f32 {vr(br+2*h,2)}, {di}, {s_}, {vr(br+2*h,2)}
                v_pk_fma_f32 {vr(bi+2*h,2)}, {dr}, {s_}, {vr(bi+2*h,2)} neg_lo:[1,0,0] neg_hi:[1,0,0]''')
            e(f'''v_cvt_pk_f16_f32 {vr(Bo[Tt])}, {vr(br)}, {vr(br+1)}
            v_cvt_pk_f16_f32 {vr(Bo[Tt]+1)}, {vr(br+2)}, {vr(br+3)}
            v_cvt_pk_f16_f32 {vr(Bo[Tt]+2)}, {vr(bi)}, {vr(bi+1)}
            v_cvt_pk_f16_f32 {vr(Bo[Tt]+3)}, {vr(bi+2)}, {vr(bi+3)}''')
            e(f'v_mfma_f32_16x16x32_f16 {vr(O+4*Tt,4)}, {vr(RA2,4)}, {vr(Bo[Tt],4)}, 0')

    CA, CO = t(32), t(36)
    def transform(dst_off, tagged=False, pre_core=None, post_scatter=None, pre_store=None):
        write_n(GG, t(24))
        e(f"""s_waitcnt lgkmcnt(0)
        ds_read_b64_tr_b16 {vr(CA,2)}, {vr(lTr)} offset:{GIMG}
        ds_read_b64_tr_b16 {vr(CA+2,2)}, {vr(lTr)} offset:{GIMG+128}""")
        if pre_core: pre_core()
        e('s_waitcnt lgkmcnt(0)')
        core(CA, CO)
        for k in range(4): e(f'v_cvt_pk_f16_f32 {vr(t(44)+k)}, {vr(CO+2*k)}, {vr(CO+2*k+1)}')
        for Tt in range(2):
            for i in range(4):
                op = 'ds_write_b16' if i % 2 == 0 else 'ds_write_b16_d16_hi'
                e(f'{op} {vr(lH+Tt)}, {vr(t(44) + 2*Tt + i//2)} offset:{512*i}')
        e(f'ds_write_b16_d16_hi {vr(lHf)}, {vr(t(45))}\nds_write_b16_d16_hi {vr(lHf+1)}, {vr(t(45))}')
        if post_scatter: post_scatter()
        if tagged:
            e(f"""v_lshlrev_b32 {vr(t(8))}, 3, v0
            s_lshl_b32 {sr(sT)}, {sr(sRho)}, 13
            v_add_u32 {vr(t(9))}, {sr(sT)}, {vr(lG)}""")
            for k in (1, 3, 5, 7): e(f'v_mov_b32 {vr(t(k))}, {sr(sTag)}')
            if pre_store: pre_store()
            e(f"""s_waitcnt lgkmcnt(0)
            s_barrier
            ds_read_b32 {vr(t(0))}, {vr(t(8))} offset:{HIMG}
            ds_read_b32 {vr(t(2))}, {vr(t(8))} offset:{HIMG+4}
            ds_read_b32 {vr(t(4))}, {vr(t(8))} offset:{HIMG+2048}
            ds_read_b32 {vr(t(6))}, {vr(t(8))} offset:{HIMG+2052}
            s_mov_b32 {sr(sOff)}, {dst_off}
            s_mov_b32 {sr(sT)}, {dst_off+4096}
            s_waitcnt lgkmcnt(2)
            buffer_store_dwordx4 {vr(t(0),4)}, {vr(t(9))}, {sr(sWS,4)}, {sr(sOff)} offen sc1
            s_waitcnt lgkmcnt(0)
            buffer_store_dwordx4 {vr(t(4),4)}, {vr(t(9))}, {sr(sWS,4)}, {sr(sT)} offen sc1""")
        else:
            if pre_store: pre_store()
            e(f"""s_waitcnt lgkmcnt(0)
            s_barrier
            ds_read_b128 {vr(t(0),4)}, {vr(lG)} offset:{HIMG}
            s_mov_b32 {sr(sOff)}, {dst_off}
            s_waitcnt lgkmcnt(0)
            buffer_store_dwordx4 {vr(t(0),4)}, {vr(aP16)}, {sr(sWS,4)}, {sr(sOff)} offen sc1""")

    def affine_from_x(sx1x0_u, sx1x0_v, sKu_, sKv_, outU, outV):
        for (xx, cc, kk, oo) in ((sx1x0_u, sCu, sKu_, outU), (sx1x0_v, sCv, sKv_, outV)):
            if xx is None:
                e(f"""v_mov_b32 {vr(t(44))}, {sr(kk)}
                v_mov_b32 {vr(t(45))}, {sr(kk+1)}
                v_fma_f32 {vr(t(45))}, -{vr(t(44))}, {sr(cc)}, {vr(t(45))}""")
            else:
                e(f"""v_rcp_f32 {vr(t(44))}, {sr(xx)}
                v_mov_b32 {vr(t(45))}, {sr(kk+1)}
                v_mul_f32 {vr(t(44))}, {sr(kk)}, {vr(t(44))}
                v_fma_f32 {vr(t(45))}, -{vr(t(44))}, {sr(xx+1)}, {vr(t(45))}""")
            e(f'v_readfirstlane_b32 {sr(oo)}, {vr(t(44))}\nv_readfirstlane_b32 {sr(oo+1)}, {vr(t(45))}')

    def special_k(dst_off, after_residual):
        ln = g.lab('nok')
        e(f's_cmp_lg_u32 {sr(sRowU)}, 0\ns_cbranch_scc1 {ln}')
        affine_from_x(sAu if after_residual else None, sAv if after_residual else None, sKu, sKv, sH, sH+2)
        ZU, ZV = t(0), t(8)
        for k in range(4): e(f'v_pk_fma_f32 {vr(ZU+2*k,2)}, {vr(XU+2*k,2)}, {sr(sH,2)}, {sr(sH,2)} {PKB}')
        for k in range(4): e(f'v_pk_fma_f32 {vr(ZV+2*k,2)}, {vr(XV+2*k,2)}, {sr(sH+2,2)}, {sr(sH+2,2)} {PKB}')
        write_r(ZU, t(16)); write_n(ZV, t(24))
        A, B = CA, t(40)
        e(f"""s_waitcnt lgkmcnt(0)
        ds_read_b64_tr_b16 {vr(A,2)}, {vr(lTr)} offset:{RIMG}
        ds_read_b64_tr_b16 {vr(B,2)}, {vr(lTr)} offset:{GIMG}
        ds_read_b64_tr_b16 {vr(A+2,2)}, {vr(lTr)} offset:{RIMG+128}
        ds_read_b64_tr_b16 {vr(B+2,2)}, {vr(lTr)} offset:{GIMG+128}
        s_waitcnt lgkmcnt(0)""")
        for k in range(4): e(f'v_pk_add_f16 {vr(A+k)}, {vr(A+k)}, {vr(B+k)} neg_lo:[0,1] neg_hi:[0,1]')
        core(A, CO)
        for k in range(4): e(f'v_pk_mul_f32 {vr(CO+2*k,2)}, {vr(CO+2*k,2)}, {sr(sT2 if False else sM2,2)} op_sel_hi:[1,0]' if False else f'v_mul_f32 {vr(CO+2*k)}, {fbits(1/16)}, {vr(CO+2*k)}\nv_mul_f32 {vr(CO+2*k+1)}, {fbits(1/16)}, {vr(CO+2*k+1)}')
        for k in range(4): e(f'v_cvt_pk_f16_f32 {vr(t(44)+k)}, {vr(CO+2*k)}, {vr(CO+2*k+1)}')
        e(f"""v_lshl_add_u32 {vr(t(0))}, {vr(vQ)}, 7, {vr(vN)}
        v_lshlrev_b32 {vr(t(0))}, 1, {vr(t(0))}
        v_sub_u32 {vr(t(1))}, {1024-32-192}, {vr(t(0))}
        v_mov_b32 {vr(t(2))}, 512
        s_mov_b32 exec_lo, -1
        s_mov_b32 exec_hi, 0""")
        for Tt in range(2):
            for i in range(4):
                op = 'ds_write_b16' if i % 2 == 0 else 'ds_write_b16_d16_hi'
                e(f'{op} {vr(t(0))}, {vr(t(44)+2*Tt+i//2)} offset:{KIMG + 32*Tt + 64*i}')
                e(f'{op} {vr(t(1))}, {vr(t(44)+2*Tt+i//2)} offset:{KIMG + 32*(1-Tt) + 64*(3-i)}')
        e(f"""s_mov_b32 exec_lo, 0
        s_mov_b32 exec_hi, 0x00010000
        ds_write_b16_d16_hi {vr(t(2))}, {vr(t(45))} offset:{KIMG}
        s_mov_b64 exec, -1
        v_lshlrev_b32 {vr(t(3))}, 4, {vr(vL)}
        s_waitcnt lgkmcnt(0)
        ds_read_b128 {vr(t(4),4)}, {vr(t(3))} offset:{KIMG}
        s_mov_b32 {sr(sOff)}, {dst_off}
        s_waitcnt lgkmcnt(0)
        buffer_store_dwordx4 {vr(t(4),4)}, {vr(t(3))}, {sr(sWS,4)}, {sr(sOff)} offen sc1
        {ln}:""")

    PC = t(40)
    def column_load(src_off):
        e(f's_mov_b32 {sr(sOff)}, {src_off}')
        e(ws_load_text(4, PC, aS16, sr(sOff)))
    def column(src_off, dst_off, preloaded, tagged=False):
        P = PC
        e(f's_mov_b32 {sr(sOff)}, {src_off}')
        if tagged:
            P = t(32); A2 = t(44)
            e(f'''v_lshrrev_b32 {vr(t(31))}, 1, v0
            v_lshlrev_b32 {vr(t(31))}, 13, {vr(t(31))}
            v_and_b32 {vr(t(30))}, 1, v0
            v_lshl_add_u32 {vr(t(31))}, {vr(t(30))}, 4, {vr(t(31))}
            s_lshl_b32 {sr(sT)}, {sr(sRho)}, 5
            v_add_u32 {vr(t(31))}, {sr(sT)}, {vr(t(31))}
            s_add_u32 {sr(sT3)}, {sr(sOff)}, {128*8192}''')
            poll(ws_load_text(4, P, t(31), sr(sOff)) + '\n' + ws_load_text(4, P+4, t(31), sr(sT3)), ('tag', P))
            stamp('col data')
            for k in range(2):
                e(f'''ds_write_b16 {vr(A2+2*k)}, {vr(P+4*k)}
                ds_write_b16_d16_hi {vr(A2+2*k+1)}, {vr(P+4*k)} offset:16
                ds_write_b16 {vr(A2+2*k+1)}, {vr(P+4*k+2)} offset:32
                ds_write_b16_d16_hi {vr(A2+2*k+1)}, {vr(P+4*k+2)} offset:48''')
            e('s_waitcnt lgkmcnt(0)\ns_barrier')
        else:
            poll(ws_load_text(4, P, aS16, sr(sOff)), range(P, P+4), preloaded=preloaded)
            d = [P, P+1, P+2, P+3]
            stamp('col data')
            e(f"""ds_write_b16 {vr(lCa)}, {vr(d[0])}
            ds_write_b16_d16_hi {vr(lCa)}, {vr(d[0])} offset:16
            ds_write_b16 {vr(lCa)}, {vr(d[1])} offset:32
            ds_write_b16_d16_hi {vr(lCa)}, {vr(d[1])} offset:48
            ds_write_b16 {vr(lCb)}, {vr(d[2])}
            ds_write_b16_d16_hi {vr(lCc)}, {vr(d[2])} offset:16
            ds_write_b16 {vr(lCc)}, {vr(d[3])} offset:32
            ds_write_b16_d16_hi {vr(lCc)}, {vr(d[3])} offset:48
            s_waitcnt lgkmcnt(0)
            s_barrier""")
        A = t(0)
        for k in range(4): e(f'ds_read_b128 {vr(A+4*k,4)}, {vr(lCr)} offset:{1024*k}')
        D1 = [t(16), t(20)]
        e(f"""s_waitcnt lgkmcnt(3)
        v_mfma_f32_16x16x32_f16 {vr(D1[0],4)}, {vr(A,4)}, {vr(CB1,4)}, 0
        s_waitcnt lgkmcnt(2)
        v_mfma_f32_16x16x32_f16 {vr(D1[0],4)}, {vr(A+4,4)}, {vr(CB1+4,4)}, {vr(D1[0],4)}
        s_waitcnt lgkmcnt(1)
        v_mfma_f32_16x16x32_f16 {vr(D1[1],4)}, {vr(A+8,4)}, {vr(CB1,4)}, 0
        s_waitcnt lgkmcnt(0)
        v_mfma_f32_16x16x32_f16 {vr(D1[1],4)}, {vr(A+12,4)}, {vr(CB1+4,4)}, {vr(D1[1],4)}""")
        Bb = t(24); br, bi = t(28), t(32); Bo = [t(0), t(4)]
        for Tt in range(2):
            k = CK + 16*Tt
            for i in range(4): e(f'v_mov_b32_dpp {vr(Bb+i)}, {vr(D1[Tt]+i)} row_ror:8 {DPP}')
            for h in range(2):
                e(f"""v_pk_mul_f32 {vr(br+2*h,2)}, {vr(D1[Tt]+2*h,2)}, {vr(k+2*h,2)}
                v_pk_mul_f32 {vr(bi+2*h,2)}, {vr(D1[Tt]+2*h,2)}, {vr(k+8+2*h,2)}""")
            for h in range(2):
                e(f"""v_pk_fma_f32 {vr(br+2*h,2)}, {vr(Bb+2*h,2)}, {vr(k+4+2*h,2)}, {vr(br+2*h,2)}
                v_pk_fma_f32 {vr(bi+2*h,2)}, {vr(Bb+2*h,2)}, {vr(k+12+2*h,2)}, {vr(bi+2*h,2)}""")
            e(f"""v_cvt_pk_f16_f32 {vr(Bo[Tt])}, {vr(br)}, {vr(br+1)}
            v_cvt_pk_f16_f32 {vr(Bo[Tt]+1)}, {vr(br+2)}, {vr(br+3)}
            v_cvt_pk_f16_f32 {vr(Bo[Tt]+2)}, {vr(bi)}, {vr(bi+1)}
            v_cvt_pk_f16_f32 {vr(Bo[Tt]+3)}, {vr(bi+2)}, {vr(bi+3)}""")
        O = [t(8), t(12)]
        e(f"""v_mfma_f32_16x16x32_f16 {vr(O[0],4)}, {vr(CA2,4)}, {vr(Bo[0],4)}, 0
        v_mfma_f32_16x16x32_f16 {vr(O[1],4)}, {vr(CA2+8,4)}, {vr(Bo[0],4)}, 0
        v_mfma_f32_16x16x32_f16 {vr(O[0],4)}, {vr(CA2+4,4)}, {vr(Bo[1],4)}, {vr(O[0],4)}
        v_mfma_f32_16x16x32_f16 {vr(O[1],4)}, {vr(CA2+12,4)}, {vr(Bo[1],4)}, {vr(O[1],4)}
        v_cvt_pk_f16_f32 {vr(t(16))}, {vr(O[0])}, {vr(O[0]+1)}
        v_cvt_pk_f16_f32 {vr(t(17))}, {vr(O[0]+2)}, {vr(O[0]+3)}
        ds_write_b16 {vr(lCo)}, {vr(t(16))}
        ds_write_b16_d16_hi {vr(lCo)}, {vr(t(16))} offset:256
        v_cvt_pk_f16_f32 {vr(t(18))}, {vr(O[1])}, {vr(O[1]+1)}
        v_cvt_pk_f16_f32 {vr(t(19))}, {vr(O[1]+2)}, {vr(O[1]+3)}
        ds_write_b16 {vr(lCo)}, {vr(t(17))} offset:512
        ds_write_b16_d16_hi {vr(lCo)}, {vr(t(17))} offset:768
        ds_write_b16 {vr(lCo+2)}, {vr(t(18))}
        ds_write_b16_d16_hi {vr(lCo+1)}, {vr(t(18))} offset:512
        ds_write_b16 {vr(lCo+1)}, {vr(t(19))} offset:256
        ds_write_b16_d16_hi {vr(lCo+1)}, {vr(t(19))}
        s_waitcnt lgkmcnt(0)
        s_barrier
        ds_read_b128 {vr(t(0),4)}, {vr(lG)} offset:{COUT}
        s_mov_b32 {sr(sOff)}, {dst_off}
        s_waitcnt lgkmcnt(0)
        buffer_store_dwordx4 {vr(t(0),4)}, {vr(aP16)}, {sr(sWS,4)}, {sr(sOff)} offen sc1""")

    YH, YV, KT = t(4), t(8), t(12)
    def row_input(src_off, kb, with_weights=False):
        P = t(0)
        lk = g.lab('nok')
        e(f's_bitcmp0_b32 {sr(sW)}, 0\ns_cbranch_scc1 {lk}')
        e(f'v_lshlrev_b32 {vr(t(16))}, 4, {vr(vL)}\ns_mov_b32 {sr(sT3)}, {kb}')
        e(ws_load_text(4, KT, t(16), sr(sT3)))
        e(f'{lk}:')
        e(f's_mov_b32 {sr(sOff)}, {src_off}')
        ld = ws_load_text(4, P, aS16, sr(sOff))
        if with_weights:
            lw = g.lab('now'); lw2 = g.lab('now2')
            e(ld)
            e(f's_cmp_ge_u32 {sr(sPhi)}, {NF}\ns_cbranch_scc1 {lw}')
            e(f's_mov_b32 {sr(sCnt)}, {sr(sT3)}')
            weight_loads()
            e(f's_mov_b32 {sr(sT3)}, {sr(sCnt)}\ns_mov_b32 {sr(sOff)}, {src_off}\ns_waitcnt vmcnt(6)\ns_branch {lw2}\n{lw}:\ns_waitcnt vmcnt(0)\n{lw2}:')
            poll(ld, range(P, P+4), preloaded=True)
        else:
            poll(ld, range(P, P+4))
        stamp('row data')
        def wr(slot, areg, off):
            op = 'ds_write_b16' if slot % 2 == 0 else 'ds_write_b16_d16_hi'
            e(f'{op} {vr(areg)}, {vr(P + slot//2)} offset:{YIMG + off}')
        for j in range(4): wr(j, lYd, j*1024)
        wr(4, lYm4, 0); wr(5, lYm, 3*1024); wr(6, lYm, 2*1024); wr(7, lYm, 1024)
        l0 = g.lab('not0')
        e(f's_cmp_lg_u32 {sr(sRho)}, 0\ns_cbranch_scc1 {l0}')
        wr(0, lYm, 0); wr(4, lYd, 4096)
        e(f"""{l0}:
        s_waitcnt lgkmcnt(0)
        s_barrier
        ds_read_b128 {vr(YH,4)}, {vr(lRow)} offset:{YIMG}""")
        lv = g.lab('yv')
        e(f"""s_cmp_lg_u32 {sr(sRowU)}, 0
        s_cbranch_scc1 {lv}
        ds_read_b128 {vr(YV,4)}, {vr(lRow)} offset:{YIMG+4096}
        {lv}:""")
        lk = g.lab('nok2')
        e(f's_bitcmp0_b32 {sr(sW)}, 0\ns_cbranch_scc1 {lk}')
        poll(ws_load_text(4, KT, t(16), sr(sT3)), range(KT, KT+4), preloaded=True)
        e('s_waitcnt lgkmcnt(0)')
        for k in range(4): e(f'v_pk_add_f16 {vr(YH+k)}, {vr(YH+k)}, {vr(KT+k)}')
        e(f'{lk}:\ns_waitcnt lgkmcnt(0)')
    def add_y(yu, yv):
        for k in range(4):
            e(f"""v_fma_mix_f32 {vr(XU+2*k)}, {vr(yu+k)}, {sr(s16)}, {vr(XU+2*k)} op_sel:[0,0,0] op_sel_hi:[1,0,0]
            v_fma_mix_f32 {vr(XU+2*k+1)}, {vr(yu+k)}, {sr(s16)}, {vr(XU+2*k+1)} op_sel:[1,0,0] op_sel_hi:[1,0,0]""")
        for k in range(4):
            e(f"""v_fma_mix_f32 {vr(XV+2*k)}, {vr(yv+k)}, {sr(s16)}, {vr(XV+2*k)} op_sel:[0,0,0] op_sel_hi:[1,0,0]
            v_fma_mix_f32 {vr(XV+2*k+1)}, {vr(yv+k)}, {sr(s16)}, {vr(XV+2*k+1)} op_sel:[1,0,0] op_sel_hi:[1,0,0]""")
    def add_y_pair():
        ls = g.lab('ysp'); lj = g.lab('yj')
        e(f's_cmp_eq_u32 {sr(sRowU)}, 0\ns_cbranch_scc1 {ls}')
        add_y(YH, YH)
        e(f'{lj}:')
        g.late.append((ls, lj))
    g.late = []

    def make_key():
        e(f"""v_ashrrev_i32 {vr(t(22))}, 31, {vr(hR)}
        v_or_b32 {vr(t(22))}, 0x80000000, {vr(t(22))}
        v_xor_b32 {vr(t(22))}, {vr(hR)}, {vr(t(22))}
        v_and_b32 {vr(t(22))}, 0xfffff800, {vr(t(22))}
        v_or_b32 {vr(t(22))}, {vr(vRowH)}, {vr(t(22))}
        v_readlane_b32 {sr(sKeyU)}, {vr(t(22))}, 0
        v_readlane_b32 {sr(sKeyV)}, {vr(t(22))}, 32
        s_lshl_b32 {sr(sT)}, {sr(sW)}, 2
        v_mov_b32 {vr(t(23))}, {sr(sT)}
        s_max_u32 {sr(sKey)}, {sr(sKeyU)}, {sr(sKeyV)}
        v_mov_b32 {vr(t(22))}, {sr(sKey)}
        ds_write_b32 {vr(t(23))}, {vr(t(22))} offset:{AM}""")
    def wg_best_read(tmp):
        e(f'v_mov_b32 {vr(tmp+4)}, 0\nds_read_b128 {vr(tmp,4)}, {vr(tmp+4)} offset:{AM}')
    def wg_best_header(cand, tmp):
        ln = g.lab('nohdr')
        e(f"""v_max3_u32 {vr(tmp)}, {vr(tmp)}, {vr(tmp+1)}, {vr(tmp+2)}
        v_max_u32 {vr(tmp)}, {vr(tmp)}, {vr(tmp+3)}
        v_readfirstlane_b32 {sr(sT)}, {vr(tmp)}
        s_cmp_eq_u32 {sr(sT)}, {sr(sKey)}
        s_cselect_b32 {sr(sSgn)}, 1, 0
        s_cbranch_scc0 {ln}
        s_lshl_b32 {sr(sT)}, {sr(sRho)}, 12
        s_add_u32 {sr(sOff)}, {sr(sT)}, {cand}
        v_mov_b32 {vr(tmp+1)}, {sr(sKey)}
        s_mov_b64 exec, 1
        buffer_store_dword {vr(tmp+1)}, {vr(tmp+4)}, {sr(sWS,4)}, {sr(sOff)} offen sc1
        s_mov_b64 exec, -1
        {ln}:""")
    def publish_rows(cand):
        ln = g.lab('nopub'); lv = g.lab('pubv'); lj = g.lab('pubj')
        e(f's_cmp_eq_u32 {sr(sSgn)}, 0\ns_cbranch_scc1 {ln}')
        e(f"""s_lshl_b32 {sr(sT)}, {sr(sRho)}, 12
        s_add_u32 {sr(sOff)}, {sr(sT)}, {cand}
        s_cmp_gt_u32 {sr(sKeyV)}, {sr(sKeyU)}
        s_cbranch_scc1 {lv}""")
        for (lab_, X_, A_, C_) in ((None, XU, sAu, sCu), (lv, XV, sAv, sCv)):
            if lab_: e(f'{lab_}:')
            e(f"""v_rcp_f32 {vr(t(0))}, {sr(A_)}
            v_mov_b32 {vr(t(1))}, {sr(A_+1)}
            v_mov_b32 {vr(t(2))}, {sr(A_)}
            v_add_f32 {vr(t(2))}, -1.0, {vr(t(2))}
            v_subrev_f32 {vr(t(3))}, {sr(C_)}, {vr(t(1))}
            v_mul_f32 {vr(t(4))}, {vr(t(2))}, {vr(t(0))}
            v_fma_f32 {vr(t(6))}, -{vr(t(4))}, {vr(t(1))}, {vr(t(3))}""")
            Z = t(8)
            for k in range(4): e(f'v_pk_fma_f32 {vr(Z+2*k,2)}, {vr(X_+2*k,2)}, {vr(t(4),2)}, {vr(t(6),2)} op_sel_hi:[1,0,0]')
            if X_ == XU:
                for k in range(4): e(f'v_cvt_pk_bf16_f32 {vr(t(16)+k)}, {vr(Z+2*k)}, {vr(Z+2*k+1)}')
                e(f"""v_lshlrev_b32 {vr(t(1))}, 4, {vr(vL)}
                v_lshlrev_b32 {vr(t(2))}, 5, {vr(vL)}
                buffer_store_dwordx4 {vr(t(16),4)}, {vr(t(1))}, {sr(sWS,4)}, {sr(sOff)} offen offset:128 sc1
                buffer_store_dwordx4 {vr(XU,4)}, {vr(t(2))}, {sr(sWS,4)}, {sr(sOff)} offen offset:1152 sc1
                buffer_store_dwordx4 {vr(XU+4,4)}, {vr(t(2))}, {sr(sWS,4)}, {sr(sOff)} offen offset:1168 sc1
                s_branch {lj}""")
            else:
                e(f"""v_mov_b32_dpp {vr(t(20))}, {vr(Z)} wave_rol:1 {DPP}
                v_mov_b32_dpp {vr(t(24))}, {vr(XV)} wave_rol:1 {DPP}
                v_cvt_pk_bf16_f32 {vr(t(17))}, {vr(Z+6)}, {vr(Z+5)}
                v_cvt_pk_bf16_f32 {vr(t(18))}, {vr(Z+4)}, {vr(Z+3)}
                v_cvt_pk_bf16_f32 {vr(t(19))}, {vr(Z+2)}, {vr(Z+1)}
                v_cvt_pk_bf16_f32 {vr(t(16))}, {vr(t(20))}, {vr(Z+7)}""")
                for k in range(1, 8): e(f'v_mov_b32 {vr(t(24)+k)}, {vr(XV+8-k)}')
                e(f"""v_lshlrev_b32 {vr(t(1))}, 4, {vr(vL)}
                v_sub_u32 {vr(t(1))}, 1008, {vr(t(1))}
                v_lshlrev_b32 {vr(t(2))}, 1, {vr(t(1))}
                buffer_store_dwordx4 {vr(t(16),4)}, {vr(t(1))}, {sr(sWS,4)}, {sr(sOff)} offen offset:128 sc1
                buffer_store_dwordx4 {vr(t(24),4)}, {vr(t(2))}, {sr(sWS,4)}, {sr(sOff)} offen offset:1152 sc1
                buffer_store_dwordx4 {vr(t(28),4)}, {vr(t(2))}, {sr(sWS,4)}, {sr(sOff)} offen offset:1168 sc1""")
        e(f'{lj}:\n{ln}:')

    def header_load(cand, K):
        e(f's_mov_b32 {sr(sOff)}, {cand}')
        e(ws_load_text(1, K, aHdr, sr(sOff)))
    def argmax(cand, K, after_check=None):
        e(f's_mov_b32 {sr(sOff)}, {cand}')
        poll(ws_load_text(1, K, aHdr, sr(sOff)), [K], preloaded=True, backoff=4)
        if after_check: after_check()
        wave_reduce([K], [t(1)], op='v_max_u32')
        e(f"""s_lshl_b32 {sr(sT)}, {sr(sW)}, 2
        v_mov_b32 {vr(t(1))}, {sr(sT)}
        ds_write_b32 {vr(t(1))}, {vr(K)} offset:{AM+32}
        v_mov_b32 {vr(t(1))}, 0
        s_waitcnt lgkmcnt(0)
        s_barrier
        ds_read_b128 {vr(t(4),4)}, {vr(t(1))} offset:{AM+32}
        s_waitcnt lgkmcnt(0)
        v_max3_u32 {vr(t(4))}, {vr(t(4))}, {vr(t(5))}, {vr(t(6))}
        v_max_u32 {vr(t(4))}, {vr(t(4))}, {vr(t(7))}
        v_readfirstlane_b32 {sr(sKey)}, {vr(t(4))}""")
        e(f"""s_and_b32 {sr(sStar)}, {sr(sKey)}, 2047
        s_lshr_b32 {sr(sT)}, {sr(sStar)}, 2
        s_sub_u32 {sr(sT2)}, 511, {sr(sT)}
        s_sub_u32 {sr(sT3)}, 512, {sr(sT)}
        s_and_b32 {sr(sT3)}, {sr(sT3)}, 255
        s_and_b32 {sr(sRec)}, {sr(sStar)}, 3
        s_cmp_eq_u32 {sr(sRec)}, 0
        s_cselect_b32 {sr(sT2)}, {sr(sT3)}, {sr(sT2)}
        s_cmp_lt_u32 {sr(sStar)}, 1024
        s_cselect_b32 {sr(sT2)}, {sr(sT)}, {sr(sT2)}
        s_lshl_b32 {sr(sRec)}, {sr(sT2)}, 12
        s_add_u32 {sr(sRec)}, {sr(sRec)}, {cand}""")
    def sigmoid_of_key():
        e(f"""s_and_b32 {sr(sT)}, {sr(sKey)}, 0xfffff800
        s_or_b32 {sr(sT)}, {sr(sT)}, 0x400
        s_ashr_i32 {sr(sT2)}, {sr(sT)}, 31
        s_not_b32 {sr(sT2)}, {sr(sT2)}
        s_or_b32 {sr(sT2)}, {sr(sT2)}, 0x80000000
        s_xor_b32 {sr(sT)}, {sr(sT)}, {sr(sT2)}
        v_mov_b32 {vr(vSig)}, {fbits(-1.4426950408889634)}
        v_mul_f32 {vr(vSig)}, {sr(sT)}, {vr(vSig)}
        v_exp_f32 {vr(vSig)}, {vr(vSig)}
        v_add_f32 {vr(vSig)}, 1.0, {vr(vSig)}
        v_rcp_f32 {vr(vSig)}, {vr(vSig)}""")

    def ffn_setup():
        e(f"""v_and_b32 {vr(t(0))}, 3, {vr(vN)}
        v_lshrrev_b32 {vr(t(1))}, 2, {vr(vN)}
        v_lshl_add_u32 {vr(t(1))}, {vr(vQ)}, 3, {vr(t(1))}
        s_lshl_b32 {sr(sT)}, {sr(sW)}, 7
        v_add_u32 {vr(t(1))}, {sr(sT)}, {vr(t(1))}
        v_lshlrev_b32 {vr(t(1))}, 4, {vr(t(1))}
        v_and_b32 {vr(t(3))}, 1, {vr(t(0))}
        v_lshl_add_u32 {vr(t(1))}, {vr(t(3))}, 3, {vr(t(1))}
        v_lshrrev_b32 {vr(t(3))}, 1, {vr(t(0))}
        v_lshl_add_u32 {vr(t(1))}, {vr(t(3))}, 13, {vr(t(1))}
        v_lshlrev_b32 {vr(t(2))}, 2, v0""")
        g.nbar_mark = sum(1 for l in g.L if l == 's_barrier')
        e('s_barrier')
        for kap in range(4):
            for h in range(2):
                e(f'ds_read_b64_tr_b16 {vr(FA+4*kap+2*h,2)}, {vr(t(1))} offset:{GU + kap*512 + h*64}')
        for f in range(8): e(f'ds_read_b32 {vr(t(8)+f)}, {vr(t(2))} offset:{DN + f*1024}')
        e('s_waitcnt lgkmcnt(0)')
        for f in range(8):
            e(f'v_lshlrev_b32 {vr(FD+2*f)}, 16, {vr(t(8)+f)}\nv_and_b32 {vr(FD+2*f+1)}, 0xffff0000, {vr(t(8)+f)}')
    def loader():
        e('L_loader:')
        if opt.get('lpf'):
            e(f"""s_lshr_b32 {sr(sT)}, {sr(sRho)}, 5
            s_cmp_ge_u32 {sr(sT)}, 6
            s_cbranch_scc1 L_end
            v_lshlrev_b32 {vr(t(1))}, 4, {vr(vL)}""")
            srd(sT4, kx, 2097152)
            e(f"""s_lshl_b32 {sr(sT2)}, {sr(sRho)}, 12
            v_add_u32 {vr(t(2))}, {sr(sT2)}, {vr(t(1))}
            buffer_load_dword {vr(t(3))}, {vr(t(2))}, {sr(sT4,4)}, 0 offen
            s_lshl_b32 {sr(sT)}, {sr(sT)}, 9
            s_and_b32 {sr(sT2)}, {sr(sRho)}, 31
            s_lshl_b32 {sr(sT2)}, {sr(sT2)}, 4
            v_lshrrev_b32 {vr(t(4))}, 2, {vr(vL)}
            v_add_u32 {vr(t(4))}, {sr(sT2)}, {vr(t(4))}
            s_movk_i32 {sr(sT3)}, 2752
            v_mul_lo_u32 {vr(t(4))}, {vr(t(4))}, {sr(sT3)}
            v_and_b32 {vr(t(5))}, 3, {vr(vL)}
            v_lshlrev_b32 {vr(t(5))}, 7, {vr(t(5))}
            s_max_u32 {sr(sT)}, {sr(sT)}, 16
            s_sub_u32 {sr(sT)}, {sr(sT)}, 16
            v_add3_u32 {vr(t(4))}, {vr(t(4))}, {vr(t(5))}, {sr(sT)}
            v_sub_u32 {vr(t(5))}, {vr(t(4))}, {vr(t(5))}
            v_add_u32 {vr(t(5))}, 512, {vr(t(5))}
            s_waitcnt vmcnt(0)""")
            for ptr in (kwg, kwu):
                srd(sT4, ptr, 1409024)
                e(f"""buffer_load_dword {vr(t(6))}, {vr(t(4))}, {sr(sT4,4)}, 0 offen
                buffer_load_dword {vr(t(7))}, {vr(t(5))}, {sr(sT4,4)}, 0 offen""")
        e(f"""s_cmp_ge_u32 {sr(sPhi)}, {NF}
        s_cbranch_scc1 L_end""")
        e(f"""s_movk_i32 {sr(sT3)}, 2752
        v_mul_lo_u32 {vr(t(0))}, {vr(vL)}, {sr(sT3)}
        s_lshl_b32 {sr(sT2)}, {sr(sPhi)}, 4
        v_add_u32 {vr(t(0))}, {sr(sT2)}, {vr(t(0))}
        v_lshlrev_b32 {vr(t(1))}, 4, {vr(vL)}""")
        def gu(ptr, lds):
            srd(sT4, ptr, 1409024)
            for k in range(8):
                e(f"""s_add_u32 {sr(sT)}, {sr(sPhi)}, {k}
                s_and_b32 {sr(sT)}, {sr(sT)}, 7
                s_lshl_b32 {sr(sT2)}, {sr(sT)}, 10
                s_add_u32 m0, {sr(sT2)}, {lds}
                s_mul_i32 {sr(sOff)}, {sr(sT)}, {64*2752}
                buffer_load_dwordx4 {vr(t(0))}, {sr(sT4,4)}, {sr(sOff)} offen lds""")
        def dn():
            srd(sT4, kwd, 1409024)
            e(f's_lshl_b32 {sr(sT2)}, {sr(sPhi)}, 13')
            for f in range(8):
                e(f"""s_mov_b32 m0, {DN + 1024*f}
                s_add_u32 {sr(sOff)}, {sr(sT2)}, {1024*f}
                buffer_load_dwordx4 {vr(t(1))}, {sr(sT4,4)}, {sr(sOff)} offen lds""")
        if opt.get('lwait'):
            srd(sT4, kx, 2097152)
            e(f's_lshl_b32 {sr(sT)}, {sr(sRho)}, 12\nv_add_u32 {vr(t(2))}, {sr(sT)}, {vr(t(1))}\nbuffer_load_dword {vr(t(3))}, {vr(t(2))}, {sr(sT4,4)}, 0 offen\ns_waitcnt vmcnt(0)')
        plan = {int(x.split(':')[0]): x.split(':')[1] for x in opt.get('lplan', '0:gud').split('/')}
        for k in range(g.nbar_mark + 1):
            for c in plan.get(k, ''):
                {'g': lambda: gu(kwg, GU), 'u': lambda: gu(kwu, GU + 8192), 'd': dn}[c]()
            if k < g.nbar_mark: e('s_barrier')
        e('s_waitcnt vmcnt(0)\ns_barrier\nL_end:\ns_endpgm')

    XS = t(0)
    def xsel_text():
        return '\n'.join(f'buffer_load_dwordx4 {vr(XS+4*k,4)}, {vr(t(20))}, {sr(sWS,4)}, {sr(sRec)} offen offset:{128+64*k} sc1' for k in range(4))
    def xsel_load():
        e(f"""s_lshl_b32 {sr(sT)}, {sr(sW)}, 8
        v_lshlrev_b32 {vr(t(20))}, 4, {vr(vQ)}
        v_add_u32 {vr(t(20))}, {sr(sT)}, {vr(t(20))}""")
        e(xsel_text())
    def ffn(part):
        ln = g.lab('noffn')
        e(f's_cmp_ge_u32 {sr(sPhi)}, {NF}\ns_cbranch_scc1 {ln}')
        poll(xsel_text(), range(XS, XS+16), preloaded=True)
        Pp = t(16)
        for k in range(4):
            e(f'v_mfma_f32_16x16x32_bf16 {vr(Pp,4)}, {vr(FA+4*k,4)}, {vr(XS+4*k,4)}, {"0" if k==0 else vr(Pp,4)}')
        e(f"""v_lshlrev_b32 {vr(t(21))}, 6, {vr(vQ)}
        s_lshl_b32 {sr(sT)}, {sr(sW)}, 2
        v_add_u32 {vr(t(21))}, {sr(sT)}, {vr(t(21))}
        v_and_b32 {vr(t(22))}, 31, {vr(vL)}
        v_lshlrev_b32 {vr(t(22))}, 2, {vr(t(22))}
        s_mov_b32 exec_lo, 0x00010001
        s_mov_b32 exec_hi, 0x00010001""")
        for i in range(4): e(f'ds_write_b32 {vr(t(21))}, {vr(Pp+i)} offset:{FP + 16*i}')
        e(f"""s_mov_b64 exec, -1
        s_waitcnt lgkmcnt(0)
        s_barrier
        ds_read_b32 {vr(t(12))}, {vr(t(22))} offset:{FP}
        ds_read_b32 {vr(t(13))}, {vr(t(22))} offset:{FP+128}
        s_waitcnt lgkmcnt(0)""")
        gg, uu = t(12), t(13)
        for mod in ('quad_perm:[1,0,3,2]', 'quad_perm:[2,3,0,1]'):
            e(f'v_add_f32_dpp {vr(gg)}, {vr(gg)}, {vr(gg)} {mod} {DPP}\nv_add_f32_dpp {vr(uu)}, {vr(uu)}, {vr(uu)} {mod} {DPP}')
        e(f"""v_mul_f32 {vr(t(14))}, {fbits(-1.4426950408889634)}, {vr(gg)}
        v_exp_f32 {vr(t(14))}, {vr(t(14))}
        v_mul_f32 {vr(uu)}, {vr(uu)}, {vr(vSig)}
        v_add_f32 {vr(t(14))}, 1.0, {vr(t(14))}
        v_rcp_f32 {vr(t(14))}, {vr(t(14))}
        v_mul_f32 {vr(gg)}, {vr(gg)}, {vr(uu)}
        v_mul_f32 {vr(gg)}, {vr(gg)}, {vr(t(14))}""")
        for f in range(8): e(f'v_readlane_b32 {sr(sH+f)}, {vr(gg)}, {4*f}')
        acc = t(16)
        for f in range(8):
            sel = 'op_sel_hi:[1,0,1]' if f % 2 == 0 else 'op_sel:[0,1,0] op_sel_hi:[1,1,1]'
            if f == 0: e(f'v_pk_mul_f32 {vr(acc,2)}, {vr(FD,2)}, {sr(sH,2)} op_sel_hi:[1,0]')
            else: e(f'v_pk_fma_f32 {vr(acc,2)}, {vr(FD+2*f,2)}, {sr(sH + (f & ~1),2)}, {vr(acc,2)} {sel}')
        ws_store(2, acc, aP8, part)
        e(f'{ln}:')

    def reducer(part, final):
        ln = g.lab('nored')
        e(f"""s_sub_u32 {sr(sT3)}, {sr(sWg)}, {RED0}
        s_cmp_ge_u32 {sr(sT3)}, 32
        s_cbranch_scc1 {ln}
        v_lshrrev_b32 {vr(t(20))}, 2, v0
        v_lshlrev_b32 {vr(t(21))}, 11, {vr(t(20))}
        v_and_b32 {vr(t(22))}, 3, v0
        v_lshlrev_b32 {vr(t(22))}, 4, {vr(t(22))}
        s_lshl_b32 {sr(sT)}, {sr(sT3)}, 6
        v_add_u32 {vr(t(25))}, {sr(sT)}, {vr(t(22))}
        v_add_u32 {vr(t(21))}, {vr(t(21))}, {vr(t(25))}
        v_add_u32 {vr(t(23))}, {128*2048}, {vr(t(21))}
        v_mov_b32 {vr(t(24))}, 0x7f000000
        v_cmp_gt_u32 vcc, {NF-128}, {vr(t(20))}
        v_cndmask_b32 {vr(t(23))}, {vr(t(24))}, {vr(t(23))}, vcc
        s_mov_b32 {sr(sOff)}, {part}
        s_add_u32 {sr(sT2)}, {sr(sOff)}, {64*2048}""")
        A, B2, B3, B4 = t(0), t(4), t(8), t(12)
        ld = '\n'.join([ws_load_text(4, A, t(21), sr(sOff)), ws_load_text(4, B2, t(21), sr(sT2)), ws_load_text(4, B3, t(23), sr(sOff))])
        regs = list(range(A, A+12))
        if final:
            ld += '\n' + ws_load_text(4, B4, t(25), sr(sRec), 'offset:1152')
            regs += list(range(B4, B4+4))
        poll(ld, regs)
        for X_ in (B2, B3):
            e(f'v_pk_add_f32 {vr(A,2)}, {vr(A,2)}, {vr(X_,2)}\nv_pk_add_f32 {vr(A+2,2)}, {vr(A+2,2)}, {vr(X_+2,2)}')
        for sh in (4, 8):
            for i in range(4): e(f'v_add_f32_dpp {vr(A+i)}, {vr(A+i)}, {vr(A+i)} row_ror:{sh} {DPP}')
        for sw in ('v_permlane16_swap_b32', 'v_permlane32_swap_b32'):
            for i in range(4): e(f'v_mov_b32 {vr(B2+i)}, {vr(A+i)}')
            for i in range(4): e(f'{sw} {vr(A+i)}, {vr(B2+i)}')
            for i in range(4): e(f'v_add_f32 {vr(A+i)}, {vr(A+i)}, {vr(B2+i)}')
        e(f"""s_lshl_b32 {sr(sT)}, {sr(sW)}, 6
        v_add_u32 {vr(t(24))}, {sr(sT)}, {vr(t(22))}
        s_mov_b64 exec, 15
        ds_write_b128 {vr(t(24))}, {vr(A,4)} offset:{RED}
        s_mov_b64 exec, -1
        s_waitcnt lgkmcnt(0)
        s_barrier
        s_cmp_lg_u32 {sr(sW)}, 0
        s_cbranch_scc1 {ln}""")
        R = t(28)
        for w in range(4): e(f'ds_read_b128 {vr(R+4*w,4)}, {vr(t(22))} offset:{RED + 64*w}')
        e('s_waitcnt lgkmcnt(0)')
        e(f"""v_pk_add_f32 {vr(R,2)}, {vr(R,2)}, {vr(R+4,2)}
        v_pk_add_f32 {vr(R+2,2)}, {vr(R+2,2)}, {vr(R+6,2)}
        v_pk_add_f32 {vr(R+8,2)}, {vr(R+8,2)}, {vr(R+12,2)}
        v_pk_add_f32 {vr(R+10,2)}, {vr(R+10,2)}, {vr(R+14,2)}
        v_pk_add_f32 {vr(R,2)}, {vr(R,2)}, {vr(R+8,2)}
        v_pk_add_f32 {vr(R+2,2)}, {vr(R+2,2)}, {vr(R+10,2)}""")
        if final:
            e(f"""v_pk_add_f32 {vr(R,2)}, {vr(R,2)}, {vr(B4,2)}
            v_pk_add_f32 {vr(R+2,2)}, {vr(R+2,2)}, {vr(B4+2,2)}
            v_cvt_pk_bf16_f32 {vr(R)}, {vr(R)}, {vr(R+1)}
            v_cvt_pk_bf16_f32 {vr(R+1)}, {vr(R+2)}, {vr(R+3)}
            s_lshl_b32 {sr(sT)}, {sr(sStar)}, 10
            v_lshrrev_b32 {vr(t(25))}, 1, {vr(t(25))}
            v_add_u32 {vr(t(25))}, {sr(sT)}, {vr(t(25))}
            s_mov_b64 exec, 15
            buffer_store_dwordx2 {vr(R,2)}, {vr(t(25))}, {sr(sOUT,4)}, 0 offen sc1
            s_mov_b64 exec, -1""")
        else:
            e(f"""s_mov_b32 {sr(sOff)}, {UPD0}
            s_mov_b64 exec, 15
            buffer_store_dwordx4 {vr(R,4)}, {vr(t(25))}, {sr(sWS,4)}, {sr(sOff)} offen sc1
            s_mov_b64 exec, -1""")
        e(f'{ln}:')

    addr_misc()
    stamp('preamble')
    e(f's_waitcnt vmcnt({N_ALL-1})\nv_readfirstlane_b32 {sr(sTag)}, {vr(vCa)}\ns_add_u32 {sr(sTag)}, {sr(sTag)}, 1')
    if not opt.get('nohint'):
        lh = g.lab('nohint')
        e(f'''s_cmp_lt_u32 {sr(sWg)}, 248
        s_cbranch_scc1 {lh}
        s_cmp_lg_u32 {sr(sW)}, 0
        s_cbranch_scc1 {lh}
        s_and_b32 {sr(sT)}, {sr(sWg)}, 7
        s_lshl_b32 {sr(sT)}, {sr(sT)}, 8
        v_mov_b32 {vr(t(16))}, {sr(sT)}
        v_mov_b32 {vr(t(17))}, {sr(sTag)}
        s_mov_b64 exec, 1''')
        ws_store(1, t(17), t(16), HINT)
        e(f's_mov_b64 exec, -1\n{lh}:')
    stamp('x0')
    unpack_nat(XU, URAW); unpack_rev(XV, VRAW, t(16))
    stats2(False)
    norm_coeffs(hRho, hB)
    make_g()
    e(f's_waitcnt vmcnt({N_ALL - N_ROWTAB})')
    transform(HB0, tagged=True, pre_store=lambda: e(f's_waitcnt vmcnt({N_ALL - N_POISON})'))
    stamp('P1 stored')
    finish_here('P1')
    special_k(KB0, False)
    addr_ym4()
    poison_regs()
    e(f"""s_sub_u32 {sr(sT3)}, {sr(sWg)}, {RED0}
    s_lshl_b32 {sr(sT)}, {sr(sT3)}, 6
    v_lshlrev_b32 {vr(t(6))}, 2, v0
    v_add_u32 {vr(t(6))}, {sr(sT)}, {vr(t(6))}
    v_cmp_gt_u32 vcc, 16, v0
    s_cmp_lt_u32 {sr(sT3)}, 32
    s_cselect_b64 {sr(sEx,2)}, vcc, 0
    v_mov_b32 {vr(t(7))}, 0x7f000000
    v_cndmask_b32 {vr(t(6))}, {vr(t(7))}, {vr(t(6))}, {sr(sEx,2)}""")
    ws_store(4, PZ, aP16, HB1); ws_store(4, PZ, aP16, CAND0); ws_store(2, PZ, aP8, PART0); ws_store(1, PZ, t(6), UPD0)
    e(f'v_add_u32 {vr(t(39))}, {TOFF["addr2"]}, {vr(lG)}\nglobal_load_dwordx4 {vr(t(44),4)}, {vr(t(39))}, {sr(sPC,2)}')
    if not opt.get('nohint'):
        lh = g.lab('hw')
        e(f'''v_and_b32 {vr(vCa)}, 7, {vr(vL)}
        v_lshlrev_b32 {vr(vCa)}, 8, {vr(vCa)}
        s_cmp_lg_u32 {sr(sW)}, 0
        s_cbranch_scc1 {lh}
        s_mov_b32 {sr(sOff)}, {HINT}''')
        e(ws_load_text(1, vSa, vCa, sr(sOff)))
        e(f'{lh}:')
    col_consts()
    stamp('shadow1')
    if not opt.get('nohint'):
        lh = g.lab('hw2'); lp = g.lab('hp')
        e(f'''s_cmp_lg_u32 {sr(sW)}, 0
        s_cbranch_scc1 {lh}
        s_mov_b32 {sr(sCnt)}, 0
        s_mov_b32 {sr(sOff)}, {HINT}
        {lp}:
        s_waitcnt vmcnt(0)
        v_cmp_ne_u32 vcc, {sr(sTag)}, {vr(vSa)}
        s_cbranch_vccz {lh}
        s_add_u32 {sr(sCnt)}, {sr(sCnt)}, 1
        s_cmp_gt_u32 {sr(sCnt)}, {LIMIT}
        s_cbranch_scc1 {lh}
        s_sleep 4''')
        e(ws_load_text(1, vSa, vCa, sr(sOff)))
        e(f's_branch {lp}\n{lh}:\ns_waitcnt vmcnt(0)\ns_barrier')
    if opt.get('ack1'): e('s_waitcnt vmcnt(0)')
    stamp('hint')
    column(HB0, YB0, False, tagged=True)
    stamp('P2 stored')
    finish_here('P2')
    poison_regs()
    ws_store(4, PZ, aP16, YB1); ws_store(4, PZ, aP16, CAND1); ws_store(2, PZ, aP8, PART1)
    lnn = g.lab('nononce')
    e(f'''s_cmp_lg_u32 {sr(sRowU)}, 0
    s_cbranch_scc1 {lnn}
    v_mov_b32 {vr(t(0))}, {sr(sTag)}
    v_mov_b32 {vr(t(1))}, 0
    s_mov_b64 exec, 1''')
    ws_store(1, t(0), t(1), NONCE)
    e(f's_mov_b64 exec, -1\n{lnn}:')
    unpack_nat(WU, WURAW); unpack_rev(WV, WVRAW, t(16))
    e(f"""v_pk_add_f32 {vr(t(16),2)}, {vr(WU,2)}, {vr(WU+2,2)}
    v_pk_add_f32 {vr(t(18),2)}, {vr(WU+4,2)}, {vr(WU+6,2)}
    v_pk_add_f32 {vr(t(16),2)}, {vr(t(16),2)}, {vr(t(18),2)}
    v_add_f32 {vr(t(16))}, {vr(t(16))}, {vr(t(17))}""")
    wave_reduce([t(16)], [t(17)])
    e(f'v_readfirstlane_b32 {sr(sSW)}, {vr(t(16))}')
    stamp('shadow2')
    e('s_waitcnt vmcnt(0)')
    row_input(YB0, KB0)
    add_y_pair()
    stats2(True)
    make_key()
    residual_coeffs()
    e(f"""v_mul_f32 {vr(t(23))}, {vr(t(21))}, {vr(t(21))}
    v_mul_f32 {vr(t(23))}, {vr(t(23))}, {vr(hVar)}
    v_add_f32 {vr(t(23))}, {fbits(1e-5)}, {vr(t(23))}
    v_rsq_f32 {vr(t(23))}, {vr(t(23))}
    s_waitcnt lgkmcnt(0)
    s_barrier""")
    wg_best_read(t(24))
    e(f"""v_mul_f32 {vr(t(22))}, {vr(t(21))}, {vr(t(23))}
    v_mul_f32 {vr(t(23))}, -{vr(hM)}, {vr(t(22))}""")
    norm_coeffs(t(22), t(23))
    e('s_waitcnt lgkmcnt(0)')
    wg_best_header(CAND0, t(24))
    stamp('hdr0')
    make_g()
    residual_update(XU, XV)
    transform(HB1, post_scatter=lambda: publish_rows(CAND0))
    stamp('P3 stored')
    finish_here('P3')
    K = t(0)
    header_load(CAND0, vSig)
    lfs = g.lab('nosetup')
    e(f's_cmp_ge_u32 {sr(sPhi)}, {NF}\ns_cbranch_scc1 {lfs}')
    ffn_setup()
    e(f'{lfs}:')
    special_k(KB1, True)
    e(f's_waitcnt vmcnt(0)\nv_mov_b32 {vr(K)}, {vr(vSig)}')
    argmax(CAND0, K, after_check=lambda: column_load(HB1))
    stamp('argmax0')
    lb = g.lab('nobase')
    e(f"""s_cmp_ge_u32 {sr(sW)}, 2
    s_cbranch_scc1 {lb}
    v_lshlrev_b32 {vr(t(21))}, 5, {vr(vL)}
    buffer_load_dwordx4 {vr(FX,4)}, {vr(t(21))}, {sr(sWS,4)}, {sr(sRec)} offen offset:1152 sc1
    buffer_load_dwordx4 {vr(FX+4,4)}, {vr(t(21))}, {sr(sWS,4)}, {sr(sRec)} offen offset:1168 sc1
    {lb}:""")
    lb = g.lab('nox')
    e(f's_cmp_ge_u32 {sr(sPhi)}, {NF}\ns_cbranch_scc1 {lb}')
    xsel_load()
    e(f'{lb}:')
    sigmoid_of_key()
    e(f"""s_mul_i32 {sr(sT)}, {sr(sRowU)}, {sr(sStar)}
    s_and_b32 {sr(sT)}, {sr(sT)}, 2047
    v_cvt_f32_u32 {vr(vCa)}, {sr(sT)}
    v_mul_f32 {vr(vCa)}, {fbits(1/2048)}, {vr(vCa)}
    v_sin_f32 {vr(vSa)}, {vr(vCa)}
    v_cos_f32 {vr(vCa)}, {vr(vCa)}
    v_mul_f32 {vr(vSa)}, {fbits(1/32)}, {vr(vSa)}
    v_mul_f32 {vr(vCa)}, {fbits(1/32)}, {vr(vCa)}
    v_cvt_pk_f16_f32 {vr(vSa)}, {vr(vSa)}, {vr(vSa)}
    v_cvt_pk_f16_f32 {vr(vCa)}, {vr(vCa)}, {vr(vCa)}
    s_waitcnt vmcnt(0)""")
    stamp('xsel')
    ffn(PART0)
    stamp('ffn0')
    column(HB1, YB1, True)
    stamp('P4 stored')
    finish_here('P4')
    reducer(PART0, False)
    stamp('red0')
    lb = g.lab('nobase')
    e(f's_cmp_ge_u32 {sr(sW)}, 2\ns_cbranch_scc1 {lb}')
    e(f'v_lshlrev_b32 {vr(t(21))}, 5, {vr(vL)}')
    poll(f'buffer_load_dwordx4 {vr(FX,4)}, {vr(t(21))}, {sr(sWS,4)}, {sr(sRec)} offen offset:1152 sc1\n'
         f'buffer_load_dwordx4 {vr(FX+4,4)}, {vr(t(21))}, {sr(sWS,4)}, {sr(sRec)} offen offset:1168 sc1', range(FX, FX+8), preloaded=True)
    stats1(FX, t(0), FO)
    e(f'{lb}:')
    e('s_waitcnt vmcnt(0)')
    row_input(YB1, KB1)
    stamp('y1 read')
    lj = g.lab('fixj'); lq = g.lab('fix'); lu = g.lab('ownu'); lv = g.lab('ownv')
    U = t(16)
    updld = lambda areg: (ws_load_text(4, U, areg, sr(sOff)) + '\n' + ws_load_text(4, U+4, areg, sr(sOff), 'offset:16'))
    def owner_add():
        l1 = g.lab('nu'); l2 = g.lab('nv')
        e(f's_cmp_lg_u32 {sr(sStar)}, {sr(sRowU)}\ns_cbranch_scc1 {l1}')
        for k in range(4): e(f'v_pk_add_f32 {vr(XU+2*k,2)}, {vr(XU+2*k,2)}, {vr(U+2*k,2)}')
        e(f'{l1}:')
    e(f"""v_lshlrev_b32 {vr(t(44))}, 5, {vr(vL)}
    s_mov_b32 {sr(sOff)}, {UPD0}""")
    lnv = g.lab('notv')
    e(f"""s_cmp_lg_u32 {sr(sStar)}, {sr(sRowV)}
    s_cbranch_scc1 {lnv}
    v_sub_u32 {vr(t(45))}, {63*32}, {vr(t(44))}""")
    poll(updld(t(45)), range(U, U+8), backoff=4)
    e(f'v_mov_b32_dpp {vr(t(46))}, {vr(U)} wave_ror:1 {DPP}')
    for k in range(1, 8): e(f'v_add_f32 {vr(XV+k)}, {vr(XV+k)}, {vr(U+8-k)}')
    e(f'v_add_f32 {vr(XV)}, {vr(XV)}, {vr(t(46))}\n{lnv}:')
    e(f"""s_cmp_lt_u32 {sr(sW)}, 2
    s_cbranch_scc1 {lq}
    s_cmp_lg_u32 {sr(sStar)}, {sr(sRowU)}
    s_cbranch_scc1 {lj}""")
    poll(updld(t(44)), range(U, U+8), backoff=4)
    owner_add()
    e(f's_branch {lj}\n{lq}:')
    poll(updld(t(44)), range(U, U+8), backoff=4)
    stamp('upd')
    owner_add()
    for k in range(4): e(f'v_pk_add_f32 {vr(FX+2*k,2)}, {vr(FX+2*k,2)}, {vr(U+2*k,2)}')
    stats1(FX, t(32), FX)
    for k in range(4): e(f'v_pk_add_f32 {vr(FX+2*k,2)}, {vr(FX+2*k,2)}, {vr(FO+2*k,2)} neg_lo:[0,1] neg_hi:[0,1]')
    write_n(FX, t(24)); write_r(FX, t(40))
    A, B = CA, t(40)
    for k in range(8): e(f'v_mov_b32 {vr(FO+k)}, {vr(YH+k)}')
    e(f"""s_mov_b32 {sr(sT)}, 0x3c003c00
    s_cmp_eq_u32 {sr(sW)}, 0
    s_cselect_b32 {sr(sSgn)}, {sr(sT)}, 0xbc00bc00
    s_waitcnt lgkmcnt(0)
    ds_read_b64_tr_b16 {vr(A,2)}, {vr(lTr)} offset:{GIMG}
    ds_read_b64_tr_b16 {vr(B,2)}, {vr(lTr)} offset:{RIMG}
    ds_read_b64_tr_b16 {vr(A+2,2)}, {vr(lTr)} offset:{GIMG+128}
    ds_read_b64_tr_b16 {vr(B+2,2)}, {vr(lTr)} offset:{RIMG+128}
    s_waitcnt lgkmcnt(0)""")
    for k in range(4): e(f'v_pk_fma_f16 {vr(A+k)}, {vr(B+k)}, {sr(sSgn)}, {vr(A+k)}')
    core(A, CO)
    for k in range(4): e(f'v_cvt_pk_f16_f32 {vr(t(44)+k)}, {vr(CO+2*k)}, {vr(CO+2*k+1)}')
    e(f"""v_lshl_add_u32 {vr(t(0))}, {vr(vQ)}, 7, {vr(vN)}
    v_lshlrev_b32 {vr(t(1))}, 7, {vr(vQ)}
    v_sub_u32 {vr(t(1))}, {32*23}, {vr(t(1))}
    v_add_u32 {vr(t(1))}, {vr(t(1))}, {vr(vN)}
    v_cmp_gt_u32 vcc, 2, {vr(vQ)}
    v_cndmask_b32 {vr(t(0))}, {vr(t(1))}, {vr(t(0))}, vcc
    v_lshlrev_b32 {vr(t(0))}, 1, {vr(t(0))}
    s_lshl_b32 {sr(sT)}, {sr(sW)}, 10
    v_add_u32 {vr(t(0))}, {sr(sT)}, {vr(t(0))}
    v_mov_b32 {vr(t(2))}, 64
    v_mov_b32 {vr(t(3))}, -64
    v_cndmask_b32 {vr(t(2))}, {vr(t(3))}, {vr(t(2))}, vcc""")
    for i in range(4):
        op = 'ds_write_b16' if i % 2 == 0 else 'ds_write_b16_d16_hi'
        for Tt in range(2):
            e(f'{op} {vr(t(0))}, {vr(t(44)+2*Tt+i//2)} offset:{RIMG + 2048 + 32*Tt}')
        if i < 3: e(f'v_add_u32 {vr(t(0))}, {vr(t(0))}, {vr(t(2))}')
    for k in range(8): e(f'v_mov_b32 {vr(YH+k)}, {vr(FO+k)}')
    e(f"""{lj}:
    s_waitcnt lgkmcnt(0)
    s_barrier
    v_lshlrev_b32 {vr(t(0))}, 4, {vr(vL)}
    ds_read_b128 {vr(t(16),4)}, {vr(t(0))} offset:{RIMG+2048}
    ds_read_b128 {vr(t(20),4)}, {vr(t(0))} offset:{RIMG+2048+1024}
    s_waitcnt lgkmcnt(1)""")
    lsp = g.lab('fsp')
    for k in range(4): e(f'v_pk_fma_f16 {vr(YH+k)}, {vr(t(16)+k)}, {vr(vCa)}, {vr(YH+k)}')
    e(f'''s_cmp_lg_u32 {sr(sRowU)}, 0
    s_cbranch_scc1 {lsp}
    s_mov_b32 {sr(sT)}, 0x28002800
    s_bitcmp0_b32 {sr(sStar)}, 0
    s_cselect_b32 {sr(sT)}, {sr(sT)}, 0xa800a800''')
    for k in range(4): e(f'v_pk_fma_f16 {vr(YV+k)}, {vr(t(16)+k)}, {sr(sT)}, {vr(YV+k)}')
    e(f'{lsp}:\ns_waitcnt lgkmcnt(0)')
    for k in range(4): e(f'v_pk_fma_f16 {vr(YH+k)}, {vr(t(20)+k)}, {vr(vSa)}, {vr(YH+k)}')
    add_y_pair()
    stamp('fixed')
    stats2(True)
    make_key()
    residual_coeffs()
    e('s_waitcnt lgkmcnt(0)\ns_barrier')
    wg_best_read(t(24))
    residual_update(XU, XV)
    e('s_waitcnt lgkmcnt(0)')
    wg_best_header(CAND1, t(24))
    publish_rows(CAND1)
    e('s_waitcnt vmcnt(0)\ns_barrier')
    stamp('cand1')
    header_load(CAND1, K)
    e('s_waitcnt vmcnt(0)')
    argmax(CAND1, K)
    stamp('argmax1')
    lb = g.lab('nox')
    e(f's_cmp_ge_u32 {sr(sPhi)}, {NF}\ns_cbranch_scc1 {lb}')
    xsel_load()
    e(f'{lb}:')
    sigmoid_of_key()
    ln = g.lab('noout')
    e(f's_cmp_eq_u32 {sr(sStar)}, {sr(sRowU)}\ns_cbranch_scc1 {ln}')
    for k in range(4): e(f'v_cvt_pk_bf16_f32 {vr(t(24)+k)}, {vr(XU+2*k)}, {vr(XU+2*k+1)}')
    e(f'buffer_store_dwordx4 {vr(t(24),4)}, {vr(aU)}, {sr(sOUT,4)}, 0 offen sc1\n{ln}:')
    ln = g.lab('noout')
    e(f's_cmp_eq_u32 {sr(sStar)}, {sr(sRowV)}\ns_cbranch_scc1 {ln}')
    e(f"""v_mov_b32_dpp {vr(t(32))}, {vr(XV)} wave_rol:1 {DPP}
    v_cvt_pk_bf16_f32 {vr(t(29))}, {vr(XV+6)}, {vr(XV+5)}
    v_cvt_pk_bf16_f32 {vr(t(30))}, {vr(XV+4)}, {vr(XV+3)}
    v_cvt_pk_bf16_f32 {vr(t(31))}, {vr(XV+2)}, {vr(XV+1)}
    v_cvt_pk_bf16_f32 {vr(t(28))}, {vr(t(32))}, {vr(XV+7)}
    buffer_store_dwordx4 {vr(t(28),4)}, {vr(aV)}, {sr(sOUT,4)}, 0 offen sc1
    {ln}:""")
    e('s_waitcnt vmcnt(0)')
    ffn(PART1)
    stamp('ffn1')
    e('s_waitcnt vmcnt(0)')
    reducer(PART1, True)
    stamp('end')
    e('L_done:')
    if stamps:
        ls = g.lab('nost')
        e(f"""s_cmp_ge_u32 s2, 256
        s_cbranch_scc1 {ls}
        s_waitcnt vmcnt(0)
        s_mov_b64 exec, -1
        s_lshl_b32 {sr(sT)}, {sr(sWg)}, 11
        s_lshl_b32 {sr(sT2)}, {sr(sW)}, 8
        s_add_u32 {sr(sT)}, {sr(sT)}, {sr(sT2)}
        v_and_b32 {vr(t(0))}, 63, v0
        v_lshlrev_b32 {vr(t(0))}, 2, {vr(t(0))}
        v_add_u32 {vr(t(0))}, {sr(sT)}, {vr(t(0))}
        s_mov_b32 {sr(sOff)}, {STAMP}
        buffer_store_dword {vr(vStamp)}, {vr(t(0))}, {sr(sWS,4)}, {sr(sOff)} offen
        {ls}:""")
    e('s_endpgm')
    loader()
    for ls, lj in g.late:
        e(f'{ls}:')
        add_y(YH, YV)
        e(f's_branch {lj}')
    emit_tail()
    return g

def render(g):
    lines, added = pad(g.L)
    body = '\n'.join(('' if l.endswith(':') else '    ') + l for l in lines)
    ninstr = sum(1 for l in lines if not l.endswith(':'))
    hdr = f"""; FNet (2-D real DFT via Hartley factorisation on MFMA) + top-1 routed SwiGLU, two layers, one persistent launch.
; @launch grid=(256,1,1) block=(320,1,1) lds={LDS_SIZE}
.amdgcn_target "amdgcn-amd-amdhsa--gfx950"
.text
.globl {NAME}
.p2align 8
.type {NAME},@function
{NAME}:
"""
    tab = '\n'.join('.long ' + ','.join('0x%08x' % x for x in TAB[i:i+8]) for i in range(0, len(TAB), 8))
    tail = f"""
L_code_end:
.p2align 8
L_tab:
{tab}
.section .rodata,"a"
.p2align 6
.amdhsa_kernel {NAME}
  .amdhsa_next_free_vgpr 256
  .amdhsa_next_free_sgpr 102
  .amdhsa_accum_offset 256
  .amdhsa_group_segment_fixed_size 0
  .amdhsa_kernarg_size 104
  .amdhsa_user_sgpr_count 2
  .amdhsa_user_sgpr_kernarg_segment_ptr 1
  .amdhsa_system_sgpr_workgroup_id_x 1
.end_amdhsa_kernel
"""
    return hdr + body + tail, ninstr, added

if __name__ == '__main__':
    import argparse
    ap = argparse.ArgumentParser()
    ap.add_argument('-o', default='interleave_layers__spectral_fnet__moe_arch_mod__prompt.s')
    ap.add_argument('--stop'); ap.add_argument('--stamps', action='store_true'); ap.add_argument('--opt', default='')
    a = ap.parse_args()
    g = build(a.stop, a.stamps, {k.split('=')[0]: (k.split('=')+['1'])[1] for k in a.opt.split(',') if k})
    txt, n, added = render(g)
    open(a.o, 'w').write(txt)
    print(f'{n} instructions, {added} nop slots added, vgpr high {g.v.n}, sgpr high {g.s.n}')
```

```python
import sys, struct, math
from asmlib import pad, Alloc
import tables

NAME = "interleave_layers__spectral_fnet__moe_arch_mod__prompt_kernel"
NONCE = 0x000000
HB0, YB0, HB1, YB1 = 0x100000, 0x300000, 0x400000, 0x500000
CAND0, CAND1 = 0x600000, 0x700000
PART0, PART1 = 0x800000, 0x880000
UPD0 = 0x900000
KB0, KB1 = 0x901000, 0x902000
HINT = 0x903000
STAMP = 0x980000
WS_SIZE = 0xA00000
NF = 172
LIMIT = 40000
NPOIS = 64
YIMG = 0
GIMG = 5120
RIMG = 9216
HIMG = 13312
CIN = 17472
COUT = 21568
KIMG = 25664
FP = 26752
AM = 27008
RED = 27072
GU = 27392
DN = GU + 16384
LDS_SIZE = DN + 8192
LMAP = dict(YIMG=YIMG, GIMG=GIMG, RIMG=RIMG, HIMG=HIMG, CIN=CIN, COUT=COUT)
TAB, TOFF = tables.build_tables(LMAP)

def fbits(x): return '0x%08x' % struct.unpack('<I', struct.pack('<f', x))[0]

class G:
    def __init__(self, stop=None, stamps=False):
        self.L = []; self.stop = stop; self.stamps = stamps; self.uid = 0; self.nstamp = 0; self.names = []
        self.v = Alloc(1, 256, 'v'); self.s = Alloc(3, 100, 's')
    def e(self, text):
        for l in text.strip('\n').split('\n'):
            l = l.strip()
            if l: self.L.append(l)
    def lab(self, p):
        self.uid += 1; return f'L_{p}_{self.uid}'

def vr(a, n=1): return f'v{a}' if n == 1 else f'v[{a}:{a+n-1}]'
def sr(a, n=1): return f's{a}' if n == 1 else f's[{a}:{a+n-1}]'
DPP = 'row_mask:0xf bank_mask:0xf'
PKB = 'op_sel:[0,0,1] op_sel_hi:[1,0,1]'

def build(stop=None, stamps=False, opt=None):
    opt = opt or {}
    g = G(stop, stamps); e = g.e; V = g.v; S = g.s
    sWS = S('ws', 4, 4); sXS = S('xsrd', 4, 4); sOUT = S('out', 4, 4); sT4 = S('tmpsrd', 4, 4)
    sRho = S('rho'); sW = S('w'); sRowU = S('rowu'); sRowV = S('rowv'); sVs = S('vs'); sOff = S('off'); sCnt = S('cnt')
    sT = S('t'); sT2 = S('t2'); sT3 = S('t3'); s16 = S('k16'); sStar = S('star'); sRec = S('rec'); sWg = S('wg'); sSW = S('sw')
    sCu = S('cu', 2, 2); sCv = S('cv', 2, 2); sEx = S('exsave', 2, 2)
    sAu = S('au', 2, 2); sAv = S('av', 2, 2); sKu = S('ku', 2, 2); sKv = S('kv', 2, 2); sKeyU = S('keyu'); sKeyV = S('keyv'); sKey = S('key')
    sTag = S('tag'); sMz, sMc = sAu, sAv; sH = S('h', 8, 2); sTm = S('tm', 2, 2); sPC = S('pc', 2, 2); sM2 = S('m2', 2, 2); sPhi = S('phi'); sSgn = S('sgn')
    sKA = S('ka', 16, 4); sKB = S('kb', 8, 4); sKC = S('kc', 2, 2)
    vL = V('lane'); vN = V('n'); vQ = V('q')
    XU = V('XU', 8, 4); XV = V('XV', 8, 4); WU = V('WU', 8, 2); WV = V('WV', 8, 2)
    RB1 = V('RB1', 16, 4); RC = V('RC', 8, 2); RS = V('RS', 8, 2); RA2 = V('RA2', 4, 4)
    CB1 = V('CB1', 8, 4); CK = V('CK', 32, 2); CA2 = V('CA2', 16, 4)
    assert RC == RB1+16 and RS == RB1+24 and RA2 == RB1+32 and CK == CB1+8
    FA = V('FA', 16, 4); FD = V('FD', 16, 4)
    AD = V('addr', 16, 4)
    lRow, lTr, lRw, lCr, lH, _, lHf, _, lCa, lCb, lCc, lYd = range(AD, AD+12)
    lCo = AD + 12; lYm = AD + 15
    aU = V('aU'); aV = V('aV'); aP16 = V('aP16'); aS16 = V('aS16'); aHdr = V('aHdr'); aP8 = V('aP8')
    lYm4 = V('lYm4'); lG = V('lG')
    vRowH = V('rowh'); vSig = V('sig'); vSent = V('sent'); vCa = V('cosa'); vSa = V('sina'); vStamp = V('stamp')
    FX = V('FX', 8, 4); FO = V('FO', 8, 4)
    NT = 256 - ((V.n + 3)//4*4)
    T = V('T', NT, 4)
    def t(i):
        assert i < NT, i
        return T + i
    DU, DV = t(0), t(8)

    def stamp(name=''):
        if not g.stamps: return
        if opt.get('only') and name not in opt['only'].split('+'): return
        e(f'''s_memrealtime {sr(sTm,2)}
        s_waitcnt lgkmcnt(0)
        v_writelane_b32 {vr(vStamp)}, {sr(sTm)}, {g.nstamp}''')
        g.nstamp += 1; g.names.append(name)
    def finish_here(tag):
        if g.stop == tag: e('s_branch L_done')

    def sentinel(regs):
        if isinstance(regs, tuple) and regs[0] == 'tag':
            P = regs[1]
            e(f'''v_bitop3_b32 {vr(vSent)}, {vr(P+1)}, {vr(P+3)}, {sr(sTag)} bitop3:0x7e
            v_bitop3_b32 {vr(P+1)}, {vr(P+5)}, {vr(P+7)}, {sr(sTag)} bitop3:0x7e
            v_or_b32 {vr(vSent)}, {vr(vSent)}, {vr(P+1)}
            v_cmp_ne_u32 vcc, 0, {vr(vSent)}''')
            return
        regs = list(regs); tm = vSent
        if len(regs) == 1:
            e(f'v_cmp_eq_u32 vcc, -1, {vr(regs[0])}')
        else:
            if len(regs) >= 3:
                e(f'v_max3_u32 {vr(tm)}, {vr(regs[0])}, {vr(regs[1])}, {vr(regs[2])}'); rest = regs[3:]
            else:
                e(f'v_max_u32 {vr(tm)}, {vr(regs[0])}, {vr(regs[1])}'); rest = []
            while len(rest) >= 2:
                e(f'v_max3_u32 {vr(tm)}, {vr(tm)}, {vr(rest[0])}, {vr(rest[1])}'); rest = rest[2:]
            if rest: e(f'v_max_u32 {vr(tm)}, {vr(tm)}, {vr(rest[0])}')
            e(f'v_cmp_eq_u32 vcc, -1, {vr(tm)}')
    def poll(load, regs, backoff=2, preloaded=False):
        lp = g.lab('poll'); ok = g.lab('ok')
        if preloaded:
            sentinel(regs)
            e(f's_cbranch_vccnz {lp}\n{ok}:')
            g.tail.append((lp, ok, load, regs if isinstance(regs, tuple) else list(regs), backoff))
        else:
            e(load); e('s_waitcnt vmcnt(0)')
            sentinel(regs)
            e(f's_cbranch_vccnz {lp}\n{ok}:')
            g.tail.append((lp, ok, load, regs if isinstance(regs, tuple) else list(regs), backoff))
    g.tail = []
    g.nbar_mark = None
    def emit_tail():
        for lp, ok, load, regs, backoff in g.tail:
            l2 = lp + '_r'
            e(f'{lp}:\ns_mov_b32 {sr(sCnt)}, 0\n{l2}:\ns_sleep {backoff}')
            e(load)
            e(f'''s_add_u32 {sr(sCnt)}, {sr(sCnt)}, 1
            s_cmp_gt_u32 {sr(sCnt)}, {LIMIT}
            s_cbranch_scc1 L_done
            s_waitcnt vmcnt(0)''')
            sentinel(regs)
            e(f's_cbranch_vccnz {l2}\ns_branch {ok}')
    def red_index():
        if opt.get('oldred'):
            e(f's_sub_u32 {sr(sT3)}, {sr(sWg)}, 8')
        else:
            e(f'''s_sub_u32 {sr(sT3)}, {sr(sRho)}, 192
            s_bitcmp1_b32 {sr(sRho)}, 0
            s_cselect_b32 {sr(sT3)}, -1, {sr(sT3)}
            s_lshr_b32 {sr(sT3)}, {sr(sT3)}, 1''')
    def srd(dst, ptr, size):
        e(f'''s_mov_b32 {sr(dst)}, {sr(ptr)}
        s_mov_b32 {sr(dst+1)}, {sr(ptr+1)}
        s_mov_b32 {sr(dst+2)}, {size}
        s_mov_b32 {sr(dst+3)}, 0x00020000''')
    def ws_store(n, data, areg, region, extra=''):
        op = {1: 'buffer_store_dword', 2: 'buffer_store_dwordx2', 4: 'buffer_store_dwordx4'}[n]
        e(f's_mov_b32 {sr(sOff)}, {region}\n{op} {vr(data,n)}, {vr(areg)}, {sr(sWS,4)}, {sr(sOff)} offen sc1 {extra}')
    def ws_load_text(n, data, areg, soff, extra=''):
        op = {1: 'buffer_load_dword', 2: 'buffer_load_dwordx2', 4: 'buffer_load_dwordx4'}[n]
        return f'{op} {vr(data,n)}, {vr(areg)}, {sr(sWS,4)}, {soff} offen {extra} sc1'
    PZ = t(40)
    def poison_regs():
        for k in range(4): e(f'v_mov_b32 {vr(PZ+k)}, -1')

    e(f's_cmp_ge_u32 s2, 256\ns_cbranch_scc1 L_done')
    if stamps: e(f's_memrealtime {sr(sM2,2)}')
    e(f'''s_load_dwordx16 {sr(sKA,16)}, s[0:1], 0
    s_load_dwordx8 {sr(sKB,8)}, s[0:1], 64
    s_load_dwordx2 {sr(sKC,2)}, s[0:1], 96''')
    e(f'''s_getpc_b64 {sr(sPC,2)}
    L_pc:
    v_lshlrev_b32 {vr(t(0))}, 7, v0
    v_min_u32 {vr(t(0))}, L_code_end-L_pc-4, {vr(t(0))}
    global_load_dword {vr(vSig)}, {vr(t(0))}, {sr(sPC,2)}
    s_add_u32 {sr(sPC)}, {sr(sPC)}, L_tab-L_pc
    s_addc_u32 {sr(sPC+1)}, {sr(sPC+1)}, 0''')
    e(f'''s_mov_b32 {sr(sWg)}, s2
    s_and_b32 {sr(sT)}, s2, 7
    s_lshl_b32 {sr(sT)}, {sr(sT)}, 5
    s_lshr_b32 {sr(sRho)}, s2, 3
    s_or_b32 {sr(sRho)}, {sr(sRho)}, {sr(sT)}
    v_lshrrev_b32 {vr(t(1))}, 6, v0
    v_and_b32 {vr(vL)}, 63, v0
    v_readfirstlane_b32 {sr(sW)}, {vr(t(1))}
    v_lshlrev_b32 {vr(t(2))}, 4, {vr(vL)}
    v_sub_u32 {vr(t(3))}, 1008, {vr(t(2))}
    s_lshl_b32 {sr(sT)}, {sr(sRho)}, 2
    s_add_u32 {sr(sRowU)}, {sr(sT)}, {sr(sW)}
    s_sub_u32 {sr(sRowV)}, 2048, {sr(sRowU)}
    s_cmp_eq_u32 {sr(sRowU)}, 0
    s_cselect_b32 {sr(sRowV)}, 1024, {sr(sRowV)}
    s_lshl_b32 {sr(sT)}, {sr(sRowU)}, 10
    s_lshl_b32 {sr(sT2)}, {sr(sRowV)}, 10
    v_add_u32 {vr(aU)}, {sr(sT)}, {vr(t(2))}
    v_add_u32 {vr(aV)}, {sr(sT2)}, {vr(t(3))}
    v_lshlrev_b32 {vr(lG)}, 4, v0
    s_waitcnt lgkmcnt(0)''')
    kx, kwr, kwg = sKA + 0, sKA + 12, sKA + 14
    kwu, kwd, kout, kdbg = sKB + 0, sKB + 2, sKB + 4, sKB + 6
    URAW, VRAW = t(8), t(12)
    WURAW, WVRAW = FX, FX + 4
    e(f's_sub_u32 {sr(sPhi)}, {sr(sRho)}, 1\ns_cmp_eq_u32 {sr(sW)}, 4\ns_cbranch_scc1 L_loader')
    srd(sXS, kx, 2097152)
    e(f'''buffer_load_dwordx4 {vr(URAW,4)}, {vr(aU)}, {sr(sXS,4)}, 0 offen
    buffer_load_dwordx4 {vr(VRAW,4)}, {vr(aV)}, {sr(sXS,4)}, 0 offen''')
    srd(sWS, sKC, WS_SIZE)
    e(f'v_mov_b32 {vr(vCa)}, {NONCE}\nbuffer_load_dword {vr(vCa)}, {vr(vCa)}, {sr(sWS,4)}, 0 offen')
    nvm = [1]
    def tab_loads(dst, n, areg, off, stride):
        k = 0
        while k < n:
            base = off + k*stride
            per = {1024: 4, 4096: 1}[stride]
            e(f'v_add_u32 {vr(t(4))}, {base}, {vr(areg)}')
            for kk in range(min(per, n-k)):
                e(f'global_load_dwordx4 {vr(dst+4*(k+kk),4)}, {vr(t(4))}, {sr(sPC,2)} offset:{kk*stride}')
                nvm[0] += 1
            k += per
    tab_loads(AD, 4, lG, TOFF['addr'], 4096)
    tab_loads(RB1, 9, t(2), TOFF['row'], 1024)
    N_ROWTAB = nvm[0]
    if stamps:
        e(f'v_mov_b32 {vr(vStamp)}, 0\nv_writelane_b32 {vr(vStamp)}, {sr(sM2)}, 0'); g.nstamp = 1; g.names.append('start')
    poison_regs()
    e(f'''s_lshl_b32 {sr(sT)}, {sr(sRho)}, 12
    v_add_u32 {vr(aP16)}, {sr(sT)}, {vr(lG)}''')
    ws_store(4, PZ, aP16, YB0)
    e(f'''v_mov_b32 {vr(t(5))}, 0x7f000000
    v_cmp_gt_u32 vcc, 64, v0
    s_cmp_eq_u32 {sr(sRho)}, 0
    s_cselect_b64 {sr(sEx,2)}, vcc, 0
    v_cndmask_b32 {vr(t(5))}, {vr(t(5))}, {vr(lG)}, {sr(sEx,2)}''')
    ws_store(4, PZ, t(5), KB0)
    ws_store(4, PZ, t(5), KB1)
    nvm[0] += 3
    if opt.get('touchhb') == 'w':
        e(f's_lshl_b32 {sr(sT)}, {sr(sRho)}, 13\nv_add_u32 {vr(t(6))}, {sr(sT)}, {vr(lG)}')
        ws_store(4, PZ, t(6), HB0); ws_store(4, PZ, t(6), HB0 + 4096)
        nvm[0] += 2
    if opt.get('touchhb') == 'r':
        e(f's_lshl_b32 {sr(sT)}, {sr(sRho)}, 13\nv_lshlrev_b32 {vr(t(6))}, 5, v0\nv_add_u32 {vr(t(6))}, {sr(sT)}, {vr(t(6))}\ns_mov_b32 {sr(sOff)}, {HB0}')
        e(f'buffer_load_dword {vr(vSa)}, {vr(t(6))}, {sr(sWS,4)}, {sr(sOff)} offen')
        nvm[0] += 1
    N_POISON = nvm[0]
    srd(sT4, kwr, 1024)
    e(f'''buffer_load_dwordx4 {vr(WURAW,4)}, {vr(t(2))}, {sr(sT4,4)}, 0 offen
    buffer_load_dwordx4 {vr(WVRAW,4)}, {vr(t(3))}, {sr(sT4,4)}, 0 offen''')
    nvm[0] += 2
    N_ALL = nvm[0]
    srd(sOUT, kout, 2097152)
    e(f'''s_mov_b32 {sr(s16)}, {fbits(16.0)}
    v_and_b32 {vr(vN)}, 15, {vr(vL)}
    v_lshrrev_b32 {vr(vQ)}, 4, {vr(vL)}''')

    a0, a1, a2, a3 = t(20), t(21), t(22), t(23)
    def addr_misc():
        e(f'''s_lshl_b32 {sr(sT)}, {sr(sRho)}, 4
        v_lshlrev_b32 {vr(aHdr)}, 12, v0
        v_add_u32 {vr(aS16)}, {sr(sT)}, {vr(aHdr)}
        v_mov_b32 {vr(a0)}, {sr(sRowU)}
        v_mov_b32 {vr(a1)}, {sr(sRowV)}
        v_cmp_gt_u32 vcc, 32, {vr(vL)}
        s_lshl_b32 {sr(sT)}, {sr(sPhi)}, 11
        s_cmp_lt_u32 {sr(sPhi)}, {NF}
        s_cselect_b32 {sr(sT)}, {sr(sT)}, 0x7f000000
        v_cndmask_b32 {vr(vRowH)}, {vr(a1)}, {vr(a0)}, vcc
        v_lshlrev_b32 {vr(aP8)}, 3, v0
        v_add_u32 {vr(aP8)}, {sr(sT)}, {vr(aP8)}
        v_mov_b32 {vr(a0)}, 0
        v_lshlrev_b32 {vr(a1)}, 10, {vr(vL)}
        s_mov_b64 exec, 31
        ds_write_b16 {vr(a1)}, {vr(a0)} offset:{YIMG}
        s_mov_b64 exec, -1''')
    def addr_ym4():
        e(f'''s_cmp_eq_u32 {sr(sRho)}, 0
        s_cselect_b32 {sr(sT)}, 4096, 0
        v_add_u32 {vr(lYm4)}, {sr(sT)}, {vr(lYm)}''')

    b0, b1, b2 = t(24), t(25), t(26)
    vTau, vTlo = t(28), t(29)
    def tau_tlo():
        e(f'''s_lshl_b32 {sr(sT)}, {sr(sW)}, 3
        v_and_b32 {vr(vTau)}, 7, {vr(vN)}
        v_add_u32 {vr(vTau)}, {sr(sT)}, {vr(vTau)}
        v_sub_u32 {vr(a0)}, 64, {vr(vTau)}
        v_mov_b32 {vr(a1)}, 32
        v_cmp_eq_u32 {sr(sMz,2)}, 0, {vr(vTau)}
        v_cndmask_b32 {vr(a0)}, {vr(a0)}, {vr(a1)}, {sr(sMz,2)}
        v_cmp_le_u32 vcc, 8, {vr(vN)}
        v_cndmask_b32 {vr(vTlo)}, {vr(vTau)}, {vr(a0)}, vcc
        s_andn2_b64 {sr(sMc,2)}, vcc, {sr(sMz,2)}''')
    c0, c1 = t(30), t(31)
    def cos_seq(dst, base, step, n, amp=None):
        for j in range(0, n, 2):
            e(f'v_cos_f32 {vr(c0)}, {vr(base)}\nv_add_f32 {vr(base)}, {vr(base)}, {vr(step)}')
            e(f'v_cos_f32 {vr(c1)}, {vr(base)}')
            if j + 2 < n: e(f'v_add_f32 {vr(base)}, {vr(base)}, {vr(step)}')
            if amp is not None:
                e(f'v_mul_f32 {vr(c0)}, {amp}, {vr(c0)}\nv_mul_f32 {vr(c1)}, {amp}, {vr(c1)}')
            e(f'v_cvt_pk_f16_f32 {vr(dst + j//2)}, {vr(c0)}, {vr(c1)}')
    fQ, fN, fs, fb, fa, fb2 = t(32), t(33), t(34), t(35), t(36), t(37)
    def col_consts_a():
        tau_tlo()
        e(f'''v_cvt_f32_u32 {vr(fQ)}, {vr(vQ)}
        v_cmp_le_u32 vcc, 8, {vr(vN)}
        s_and_b64 vcc, vcc, {sr(sMz,2)}
        v_mov_b32 {vr(a1)}, 32
        v_cndmask_b32 {vr(a0)}, {vr(vTau)}, {vr(a1)}, vcc
        v_cvt_f32_u32 {vr(fs)}, {vr(a0)}
        v_mul_f32 {vr(fs)}, {fbits(1/64)}, {vr(fs)}
        v_mov_b32 {vr(fa)}, {fbits(0.25)}
        v_cndmask_b32 {vr(fa)}, 0, {vr(fa)}, {sr(sMc,2)}
        v_mul_f32 {vr(fb)}, {fbits(8.0)}, {vr(fQ)}
        v_fma_f32 {vr(fb)}, {vr(fb)}, {vr(fs)}, {vr(fa)}''')
        cos_seq(CB1, fb, fs, 8)
        e(f'''v_and_b32 {vr(a0)}, 1, {vr(a0)}
        v_mul_u32_u24 {vr(a0)}, 0x8000, {vr(a0)}
        v_lshl_or_b32 {vr(a0)}, {vr(a0)}, 16, {vr(a0)}''')
        for k in range(4): e(f'v_xor_b32 {vr(CB1+4+k)}, {vr(a0)}, {vr(CB1+k)}')
    def col_consts_b():
        e(f'v_cvt_f32_u32 {vr(fQ)}, {vr(vQ)}')
        e(f'''v_cvt_f32_u32 {vr(fs)}, {vr(vTlo)}
        v_mul_f32 {vr(fs)}, {fbits(1/2048)}, {vr(fs)}
        v_mul_f32 {vr(fb)}, {vr(fQ)}, {vr(fs)}
        v_fma_f32 {vr(fb)}, {vr(fb)}, 4.0, {vr(fa)}
        v_mov_b32 {vr(a1)}, {fbits(0.25)}
        v_cndmask_b32 {vr(a1)}, {vr(a1)}, 0, {sr(sMz,2)}''')
        e(f'v_add_f32 {vr(fb2)}, {fbits(-0.25)}, {vr(fb)}')
        e(f'v_mul_f32 {vr(a2)}, {fbits(12.0)}, {vr(fs)}')
        for Tt in range(2):
            for i in range(4):
                k = CK + 16*Tt
                e(f'''v_cos_f32 {vr(c0)}, {vr(fb)}
                v_cos_f32 {vr(c1)}, {vr(fb2)}
                v_add_f32 {vr(fb)}, {vr(fb)}, {vr(fs)}
                v_add_f32 {vr(fb2)}, {vr(fb2)}, {vr(fs)}
                v_mul_f32 {vr(k+i)}, {fbits(0.25)}, {vr(c0)}
                v_mul_f32 {vr(k+4+i)}, {vr(a1)}, {vr(c1)}
                v_mul_f32 {vr(k+8+i)}, {fbits(-0.25)}, {vr(c1)}
                v_mul_f32 {vr(k+12+i)}, {vr(a1)}, {vr(c0)}''')
            if Tt == 0: e(f'v_add_f32 {vr(fb)}, {vr(fb)}, {vr(a2)}\nv_add_f32 {vr(fb2)}, {vr(fb2)}, {vr(a2)}')
        e(f'''v_cvt_f32_u32 {vr(fs)}, {vr(vN)}
        v_mul_f32 {vr(fs)}, {fbits(1/32)}, {vr(fs)}
        v_mul_f32 {vr(fb2)}, {vr(fQ)}, {vr(fs)}
        v_mul_f32 {vr(fb2)}, 4.0, {vr(fb2)}''')
        for part, ph in ((0, -0.125), (1, -0.375)):
            e(f'v_add_f32 {vr(fb)}, {fbits(ph)}, {vr(fb2)}')
            cos_seq(CA2 + 2*part, fb, fs, 4, amp=fbits(math.sqrt(2)/8))
        e(f'''v_and_b32 {vr(a0)}, 1, {vr(vN)}
        v_mul_u32_u24 {vr(a0)}, 0x8000, {vr(a0)}
        v_lshl_or_b32 {vr(a0)}, {vr(a0)}, 16, {vr(a0)}''')
        for k in range(4):
            e(f'v_xor_b32 {vr(CA2+4+k)}, {vr(a0)}, {vr(CA2+k)}')
        for k in range(8):
            e(f'v_xor_b32 {vr(CA2+8+k)}, 0x80000000, {vr(CA2+k)}')

    def unpack_nat(dst, src):
        for k in range(4):
            e(f'v_lshlrev_b32 {vr(dst+2*k)}, 16, {vr(src+k)}\nv_and_b32 {vr(dst+2*k+1)}, 0xffff0000, {vr(src+k)}')
    def unpack_rev(dst, src, tmp):
        e(f'''v_lshlrev_b32 {vr(tmp)}, 16, {vr(src)}
        v_and_b32 {vr(dst+7)}, 0xffff0000, {vr(src)}
        v_lshlrev_b32 {vr(dst+6)}, 16, {vr(src+1)}
        v_and_b32 {vr(dst+5)}, 0xffff0000, {vr(src+1)}
        v_mov_b32_dpp {vr(dst)}, {vr(tmp)} wave_ror:1 {DPP}
        v_lshlrev_b32 {vr(dst+4)}, 16, {vr(src+2)}
        v_and_b32 {vr(dst+3)}, 0xffff0000, {vr(src+2)}
        v_lshlrev_b32 {vr(dst+2)}, 16, {vr(src+3)}
        v_and_b32 {vr(dst+1)}, 0xffff0000, {vr(src+3)}''')
    def half_reduce(regs, tmps, op='v_add_f32'):
        for sh in (8, 4, 2, 1):
            for r in regs: e(f'{op}_dpp {vr(r)}, {vr(r)}, {vr(r)} row_ror:{sh} {DPP}')
        for r, tm in zip(regs, tmps): e(f'v_mov_b32 {vr(tm)}, {vr(r)}')
        for r, tm in zip(regs, tmps): e(f'v_permlane16_swap_b32 {vr(r)}, {vr(tm)}')
        for r, tm in zip(regs, tmps): e(f'{op} {vr(r)}, {vr(r)}, {vr(tm)}')
    def wave_reduce(regs, tmps, op='v_add_f32'):
        half_reduce(regs, tmps, op)
        for r, tm in zip(regs, tmps): e(f'v_mov_b32 {vr(tm)}, {vr(r)}')
        for r, tm in zip(regs, tmps): e(f'v_permlane32_swap_b32 {vr(r)}, {vr(tm)}')
        for r, tm in zip(regs, tmps): e(f'{op} {vr(r)}, {vr(r)}, {vr(tm)}')
    hM, hVar, hRho, hB, hR = t(40), t(41), t(42), t(43), t(44)
    def partial(Dd, src, sC, w, o1, o2, o3, P):
        e(f'v_readfirstlane_b32 {sr(sC)}, {vr(src)}')
        for k in range(4):
            e(f'v_pk_add_f32 {vr(Dd+2*k,2)}, {vr(src+2*k,2)}, {sr(sC,2)} op_sel_hi:[1,0] neg_lo:[0,1] neg_hi:[0,1]')
        e(f'''v_pk_add_f32 {vr(P,2)}, {vr(Dd,2)}, {vr(Dd+2,2)}
        v_pk_mul_f32 {vr(P+2,2)}, {vr(Dd,2)}, {vr(Dd,2)}
        v_pk_add_f32 {vr(P+4,2)}, {vr(Dd+4,2)}, {vr(Dd+6,2)}''')
        if w is not None: e(f'v_pk_mul_f32 {vr(P+6,2)}, {vr(Dd,2)}, {vr(w,2)}')
        for k in range(1, 4):
            e(f'v_pk_fma_f32 {vr(P+2,2)}, {vr(Dd+2*k,2)}, {vr(Dd+2*k,2)}, {vr(P+2,2)}')
            if w is not None: e(f'v_pk_fma_f32 {vr(P+6,2)}, {vr(Dd+2*k,2)}, {vr(w+2*k,2)}, {vr(P+6,2)}')
            if k == 1: e(f'v_pk_add_f32 {vr(P,2)}, {vr(P,2)}, {vr(P+4,2)}')
        e(f'v_add_f32 {vr(o1)}, {vr(P)}, {vr(P+1)}\nv_add_f32 {vr(o2)}, {vr(P+2)}, {vr(P+3)}')
        if w is not None: e(f'v_add_f32 {vr(o3)}, {vr(P+6)}, {vr(P+7)}')
    def moments(S1, S2):
        e(f'''v_mul_f32 {vr(hM)}, {fbits(1/512)}, {vr(S1)}
        v_mul_f32 {vr(S2)}, {fbits(1/512)}, {vr(S2)}
        v_fma_f32 {vr(hVar)}, -{vr(hM)}, {vr(hM)}, {vr(S2)}
        v_max_f32 {vr(hVar)}, 0, {vr(hVar)}
        v_add_f32 {vr(S2)}, {fbits(1e-5)}, {vr(hVar)}
        v_rsq_f32 {vr(hRho)}, {vr(S2)}''')
    def stats2(with_r):
        a1_, a2_, a3_, b1_, b2_, b3_ = t(16), t(17), t(18), t(19), t(20), t(21)
        partial(DU, XU, sCu, WU if with_r else None, a1_, a2_, a3_, t(24))
        partial(DV, XV, sCv, WV if with_r else None, b1_, b2_, b3_, t(32))
        pairs = [(a1_, b1_), (a2_, b2_)] + ([(a3_, b3_)] if with_r else [])
        for x, y in pairs: e(f'v_permlane32_swap_b32 {vr(x)}, {vr(y)}')
        for x, y in pairs: e(f'v_add_f32 {vr(x)}, {vr(x)}, {vr(y)}')
        half_reduce([x for x, _ in pairs], [y for _, y in pairs])
        moments(a1_, a2_)
        if with_r: e(f'v_fma_f32 {vr(a3_)}, -{vr(hM)}, {sr(sSW)}, {vr(a3_)}')
        e(f'v_mul_f32 {vr(hB)}, -{vr(hM)}, {vr(hRho)}')
        if with_r: e(f'v_mul_f32 {vr(hR)}, {vr(hRho)}, {vr(a3_)}')
    def stats1(src, Dd, dst):
        partial(Dd, src, sCu, None, t(16), t(17), None, t(24))
        wave_reduce([t(16), t(17)], [t(18), t(19)])
        moments(t(16), t(17))
        e(f'''v_readfirstlane_b32 {sr(sKu)}, {vr(hRho)}
        v_mul_f32 {vr(hB)}, -{vr(hM)}, {vr(hRho)}
        v_readfirstlane_b32 {sr(sKu+1)}, {vr(hB)}''')
        for k in range(4): e(f'v_pk_fma_f32 {vr(dst+2*k,2)}, {vr(Dd+2*k,2)}, {sr(sKu,2)}, {sr(sKu,2)} {PKB}')
    def residual_coeffs():
        e(f'''v_mov_b32 {vr(t(22))}, {sr(sCu)}
        v_mov_b32 {vr(t(23))}, {sr(sCv)}
        v_cmp_gt_u32 vcc, 32, {vr(vL)}
        v_add_f32 {vr(t(21))}, 1.0, {vr(hRho)}
        v_cndmask_b32 {vr(t(22))}, {vr(t(23))}, {vr(t(22))}, vcc
        v_add_f32 {vr(t(22))}, {vr(t(22))}, {vr(hB)}
        v_readlane_b32 {sr(sAu)}, {vr(t(21))}, 0
        v_readlane_b32 {sr(sAv)}, {vr(t(21))}, 32
        v_readlane_b32 {sr(sAu+1)}, {vr(t(22))}, 0
        v_readlane_b32 {sr(sAv+1)}, {vr(t(22))}, 32''')
    def residual_update(dU, dV):
        for k in range(4): e(f'v_pk_fma_f32 {vr(dU+2*k,2)}, {vr(DU+2*k,2)}, {sr(sAu,2)}, {sr(sAu,2)} {PKB}')
        for k in range(4): e(f'v_pk_fma_f32 {vr(dV+2*k,2)}, {vr(DV+2*k,2)}, {sr(sAv,2)}, {sr(sAv,2)} {PKB}')
    def norm_coeffs(scale, bias):
        e(f'''v_readlane_b32 {sr(sKu)}, {vr(scale)}, 0
        v_readlane_b32 {sr(sKu+1)}, {vr(bias)}, 0
        v_readlane_b32 {sr(sKv)}, {vr(scale)}, 32
        v_readlane_b32 {sr(sKv+1)}, {vr(bias)}, 32''')
    GG = t(16)
    def make_g():
        for k in range(4): e(f'v_pk_fma_f32 {vr(GG+2*k,2)}, {vr(DU+2*k,2)}, {sr(sKu,2)}, {sr(sKu,2)} {PKB}')
        for k in range(4): e(f'v_pk_fma_f32 {vr(GG+2*k,2)}, {vr(DV+2*k,2)}, {sr(sKv,2)}, {vr(GG+2*k,2)} op_sel_hi:[1,0,1]')
    def write_n(src, tmp):
        for k in range(4): e(f'v_cvt_pk_f16_f32 {vr(tmp+k)}, {vr(src+2*k)}, {vr(src+2*k+1)}')
        e(f'ds_write_b128 {vr(lRow)}, {vr(tmp,4)} offset:{GIMG}')
    def write_r(src, tmp):
        e(f'''v_mov_b32_dpp {vr(tmp+4)}, {vr(src)} wave_rol:1 {DPP}
        v_cvt_pk_f16_f32 {vr(tmp+1)}, {vr(src+6)}, {vr(src+5)}
        v_cvt_pk_f16_f32 {vr(tmp+2)}, {vr(src+4)}, {vr(src+3)}
        v_cvt_pk_f16_f32 {vr(tmp+3)}, {vr(src+2)}, {vr(src+1)}
        v_cvt_pk_f16_f32 {vr(tmp)}, {vr(tmp+4)}, {vr(src+7)}
        ds_write_b128 {vr(lRw)}, {vr(tmp,4)}''')
    def core(A, O):
        Dr = [t(0), t(8)]; Di = [t(4), t(12)]
        for Tt in range(2):
            e(f'v_mfma_f32_16x16x32_f16 {vr(Dr[Tt],4)}, {vr(A,4)}, {vr(RB1+(2*Tt)*4,4)}, 0')
            e(f'v_mfma_f32_16x16x32_f16 {vr(Di[Tt],4)}, {vr(A,4)}, {vr(RB1+(2*Tt+1)*4,4)}, 0')
        Bo = [t(16), t(20)]; br, bi = t(24), t(28)
        for Tt in range(2):
            for h in range(2):
                c = vr(RC+4*Tt+2*h, 2); s_ = vr(RS+4*Tt+2*h, 2)
                dr = vr(Dr[Tt]+2*h, 2); di = vr(Di[Tt]+2*h, 2)
                e(f'''v_pk_mul_f32 {vr(br+2*h,2)}, {dr}, {c}
                v_pk_mul_f32 {vr(bi+2*h,2)}, {di}, {c}
                v_pk_fma_f32 {vr(br+2*h,2)}, {di}, {s_}, {vr(br+2*h,2)}
                v_pk_fma_f32 {vr(bi+2*h,2)}, {dr}, {s_}, {vr(bi+2*h,2)} neg_lo:[1,0,0] neg_hi:[1,0,0]''')
            e(f'''v_cvt_pk_f16_f32 {vr(Bo[Tt])}, {vr(br)}, {vr(br+1)}
            v_cvt_pk_f16_f32 {vr(Bo[Tt]+1)}, {vr(br+2)}, {vr(br+3)}
            v_cvt_pk_f16_f32 {vr(Bo[Tt]+2)}, {vr(bi)}, {vr(bi+1)}
            v_cvt_pk_f16_f32 {vr(Bo[Tt]+3)}, {vr(bi+2)}, {vr(bi+3)}''')
            e(f'v_mfma_f32_16x16x32_f16 {vr(O+4*Tt,4)}, {vr(RA2,4)}, {vr(Bo[Tt],4)}, 0')

    CA, CO = t(32), t(36)
    def transform(dst_off, tagged=False, pre_core=None, post_scatter=None, pre_store=None):
        write_n(GG, t(24))
        e(f"""s_waitcnt lgkmcnt(0)
        ds_read_b64_tr_b16 {vr(CA,2)}, {vr(lTr)} offset:{GIMG}
        ds_read_b64_tr_b16 {vr(CA+2,2)}, {vr(lTr)} offset:{GIMG+128}""")
        if pre_core: pre_core()
        e('s_waitcnt lgkmcnt(0)')
        core(CA, CO)
        for k in range(4): e(f'v_cvt_pk_f16_f32 {vr(t(44)+k)}, {vr(CO+2*k)}, {vr(CO+2*k+1)}')
        for Tt in range(2):
            for i in range(4):
                op = 'ds_write_b16' if i % 2 == 0 else 'ds_write_b16_d16_hi'
                e(f'{op} {vr(lH+Tt)}, {vr(t(44) + 2*Tt + i//2)} offset:{512*i}')
        e(f'ds_write_b16_d16_hi {vr(lHf)}, {vr(t(45))}\nds_write_b16_d16_hi {vr(lHf+1)}, {vr(t(45))}')
        if post_scatter: post_scatter()
        if tagged:
            e(f"""v_lshlrev_b32 {vr(t(8))}, 3, v0
            s_lshl_b32 {sr(sT)}, {sr(sRho)}, 13
            v_add_u32 {vr(t(9))}, {sr(sT)}, {vr(lG)}""")
            for k in (1, 3, 5, 7): e(f'v_mov_b32 {vr(t(k))}, {sr(sTag)}')
            if pre_store: pre_store()
            e(f"""s_waitcnt lgkmcnt(0)
            s_barrier
            ds_read_b32 {vr(t(0))}, {vr(t(8))} offset:{HIMG}
            ds_read_b32 {vr(t(2))}, {vr(t(8))} offset:{HIMG+4}
            ds_read_b32 {vr(t(4))}, {vr(t(8))} offset:{HIMG+2048}
            ds_read_b32 {vr(t(6))}, {vr(t(8))} offset:{HIMG+2052}
            s_mov_b32 {sr(sOff)}, {dst_off}
            s_mov_b32 {sr(sT)}, {dst_off+4096}
            s_waitcnt lgkmcnt(2)
            buffer_store_dwordx4 {vr(t(0),4)}, {vr(t(9))}, {sr(sWS,4)}, {sr(sOff)} offen sc1
            s_waitcnt lgkmcnt(0)
            buffer_store_dwordx4 {vr(t(4),4)}, {vr(t(9))}, {sr(sWS,4)}, {sr(sT)} offen sc1""")
        else:
            if pre_store: pre_store()
            e(f"""s_waitcnt lgkmcnt(0)
            s_barrier
            ds_read_b128 {vr(t(0),4)}, {vr(lG)} offset:{HIMG}
            s_mov_b32 {sr(sOff)}, {dst_off}
            s_waitcnt lgkmcnt(0)
            buffer_store_dwordx4 {vr(t(0),4)}, {vr(aP16)}, {sr(sWS,4)}, {sr(sOff)} offen sc1""")

    def affine_from_x(sx1x0_u, sx1x0_v, sKu_, sKv_, outU, outV):
        for (xx, cc, kk, oo) in ((sx1x0_u, sCu, sKu_, outU), (sx1x0_v, sCv, sKv_, outV)):
            if xx is None:
                e(f"""v_mov_b32 {vr(t(44))}, {sr(kk)}
                v_mov_b32 {vr(t(45))}, {sr(kk+1)}
                v_fma_f32 {vr(t(45))}, -{vr(t(44))}, {sr(cc)}, {vr(t(45))}""")
            else:
                e(f"""v_rcp_f32 {vr(t(44))}, {sr(xx)}
                v_mov_b32 {vr(t(45))}, {sr(kk+1)}
                v_mul_f32 {vr(t(44))}, {sr(kk)}, {vr(t(44))}
                v_fma_f32 {vr(t(45))}, -{vr(t(44))}, {sr(xx+1)}, {vr(t(45))}""")
            e(f'v_readfirstlane_b32 {sr(oo)}, {vr(t(44))}\nv_readfirstlane_b32 {sr(oo+1)}, {vr(t(45))}')

    def special_k(dst_off, after_residual):
        ln = g.lab('nok')
        e(f's_cmp_lg_u32 {sr(sRowU)}, 0\ns_cbranch_scc1 {ln}')
        affine_from_x(sAu if after_residual else None, sAv if after_residual else None, sKu, sKv, sH, sH+2)
        ZU, ZV = t(0), t(8)
        for k in range(4): e(f'v_pk_fma_f32 {vr(ZU+2*k,2)}, {vr(XU+2*k,2)}, {sr(sH,2)}, {sr(sH,2)} {PKB}')
        for k in range(4): e(f'v_pk_fma_f32 {vr(ZV+2*k,2)}, {vr(XV+2*k,2)}, {sr(sH+2,2)}, {sr(sH+2,2)} {PKB}')
        write_r(ZU, t(16)); write_n(ZV, t(24))
        A, B = CA, t(40)
        e(f"""s_waitcnt lgkmcnt(0)
        ds_read_b64_tr_b16 {vr(A,2)}, {vr(lTr)} offset:{RIMG}
        ds_read_b64_tr_b16 {vr(B,2)}, {vr(lTr)} offset:{GIMG}
        ds_read_b64_tr_b16 {vr(A+2,2)}, {vr(lTr)} offset:{RIMG+128}
        ds_read_b64_tr_b16 {vr(B+2,2)}, {vr(lTr)} offset:{GIMG+128}
        s_waitcnt lgkmcnt(0)""")
        for k in range(4): e(f'v_pk_add_f16 {vr(A+k)}, {vr(A+k)}, {vr(B+k)} neg_lo:[0,1] neg_hi:[0,1]')
        core(A, CO)
        for k in range(4): e(f'v_pk_mul_f32 {vr(CO+2*k,2)}, {vr(CO+2*k,2)}, {sr(sT2 if False else sM2,2)} op_sel_hi:[1,0]' if False else f'v_mul_f32 {vr(CO+2*k)}, {fbits(1/16)}, {vr(CO+2*k)}\nv_mul_f32 {vr(CO+2*k+1)}, {fbits(1/16)}, {vr(CO+2*k+1)}')
        for k in range(4): e(f'v_cvt_pk_f16_f32 {vr(t(44)+k)}, {vr(CO+2*k)}, {vr(CO+2*k+1)}')
        e(f"""v_lshl_add_u32 {vr(t(0))}, {vr(vQ)}, 7, {vr(vN)}
        v_lshlrev_b32 {vr(t(0))}, 1, {vr(t(0))}
        v_sub_u32 {vr(t(1))}, {1024-32-192}, {vr(t(0))}
        v_mov_b32 {vr(t(2))}, 512
        s_mov_b32 exec_lo, -1
        s_mov_b32 exec_hi, 0""")
        for Tt in range(2):
            for i in range(4):
                op = 'ds_write_b16' if i % 2 == 0 else 'ds_write_b16_d16_hi'
                e(f'{op} {vr(t(0))}, {vr(t(44)+2*Tt+i//2)} offset:{KIMG + 32*Tt + 64*i}')
                e(f'{op} {vr(t(1))}, {vr(t(44)+2*Tt+i//2)} offset:{KIMG + 32*(1-Tt) + 64*(3-i)}')
        e(f"""s_mov_b32 exec_lo, 0
        s_mov_b32 exec_hi, 0x00010000
        ds_write_b16_d16_hi {vr(t(2))}, {vr(t(45))} offset:{KIMG}
        s_mov_b64 exec, -1
        v_lshlrev_b32 {vr(t(3))}, 4, {vr(vL)}
        s_waitcnt lgkmcnt(0)
        ds_read_b128 {vr(t(4),4)}, {vr(t(3))} offset:{KIMG}
        s_mov_b32 {sr(sOff)}, {dst_off}
        s_waitcnt lgkmcnt(0)
        buffer_store_dwordx4 {vr(t(4),4)}, {vr(t(3))}, {sr(sWS,4)}, {sr(sOff)} offen sc1
        {ln}:""")

    PC = t(40)
    def column_load(src_off):
        e(f's_mov_b32 {sr(sOff)}, {src_off}')
        e(ws_load_text(4, PC, aS16, sr(sOff)))
    def column(src_off, dst_off, preloaded, tagged=False):
        P = PC
        e(f's_mov_b32 {sr(sOff)}, {src_off}')
        if tagged:
            P = t(0); A2 = t(44); AD1 = t(8)
            e(f'''v_lshrrev_b32 {vr(AD1)}, 1, v0
            v_lshlrev_b32 {vr(AD1)}, 13, {vr(AD1)}
            v_and_b32 {vr(t(9))}, 1, v0
            v_lshl_add_u32 {vr(AD1)}, {vr(t(9))}, 4, {vr(AD1)}
            s_lshl_b32 {sr(sT)}, {sr(sRho)}, 5
            v_add_u32 {vr(AD1)}, {sr(sT)}, {vr(AD1)}
            s_add_u32 {sr(sT3)}, {sr(sOff)}, {128*8192}''')
            ld = ws_load_text(4, P, AD1, sr(sOff)) + '\n' + ws_load_text(4, P+4, AD1, sr(sT3))
            if opt.get('splitc'):
                e(ld); col_consts_b(); e('s_waitcnt vmcnt(0)')
                poll(ld, ('tag', P), preloaded=True)
            else:
                poll(ld, ('tag', P))
            stamp('col data')
            for k in range(2):
                e(f'''ds_write_b16 {vr(A2+2*k)}, {vr(P+4*k)}
                ds_write_b16_d16_hi {vr(A2+2*k+1)}, {vr(P+4*k)} offset:16
                ds_write_b16 {vr(A2+2*k+1)}, {vr(P+4*k+2)} offset:32
                ds_write_b16_d16_hi {vr(A2+2*k+1)}, {vr(P+4*k+2)} offset:48''')
            e('s_waitcnt lgkmcnt(0)\ns_barrier')
        else:
            poll(ws_load_text(4, P, aS16, sr(sOff)), range(P, P+4), preloaded=preloaded)
            d = [P, P+1, P+2, P+3]
            stamp('col data')
            e(f"""ds_write_b16 {vr(lCa)}, {vr(d[0])}
            ds_write_b16_d16_hi {vr(lCa)}, {vr(d[0])} offset:16
            ds_write_b16 {vr(lCa)}, {vr(d[1])} offset:32
            ds_write_b16_d16_hi {vr(lCa)}, {vr(d[1])} offset:48
            ds_write_b16 {vr(lCb)}, {vr(d[2])}
            ds_write_b16_d16_hi {vr(lCc)}, {vr(d[2])} offset:16
            ds_write_b16 {vr(lCc)}, {vr(d[3])} offset:32
            ds_write_b16_d16_hi {vr(lCc)}, {vr(d[3])} offset:48
            s_waitcnt lgkmcnt(0)
            s_barrier""")
        A = t(0)
        for k in range(4): e(f'ds_read_b128 {vr(A+4*k,4)}, {vr(lCr)} offset:{1024*k}')
        D1 = [t(16), t(20)]
        e(f"""s_waitcnt lgkmcnt(3)
        v_mfma_f32_16x16x32_f16 {vr(D1[0],4)}, {vr(A,4)}, {vr(CB1,4)}, 0
        s_waitcnt lgkmcnt(2)
        v_mfma_f32_16x16x32_f16 {vr(D1[0],4)}, {vr(A+4,4)}, {vr(CB1+4,4)}, {vr(D1[0],4)}
        s_waitcnt lgkmcnt(1)
        v_mfma_f32_16x16x32_f16 {vr(D1[1],4)}, {vr(A+8,4)}, {vr(CB1,4)}, 0
        s_waitcnt lgkmcnt(0)
        v_mfma_f32_16x16x32_f16 {vr(D1[1],4)}, {vr(A+12,4)}, {vr(CB1+4,4)}, {vr(D1[1],4)}""")
        Bb = t(24); br, bi = t(28), t(32); Bo = [t(0), t(4)]
        for Tt in range(2):
            k = CK + 16*Tt
            for i in range(4): e(f'v_mov_b32_dpp {vr(Bb+i)}, {vr(D1[Tt]+i)} row_ror:8 {DPP}')
            for h in range(2):
                e(f"""v_pk_mul_f32 {vr(br+2*h,2)}, {vr(D1[Tt]+2*h,2)}, {vr(k+2*h,2)}
                v_pk_mul_f32 {vr(bi+2*h,2)}, {vr(D1[Tt]+2*h,2)}, {vr(k+8+2*h,2)}""")
            for h in range(2):
                e(f"""v_pk_fma_f32 {vr(br+2*h,2)}, {vr(Bb+2*h,2)}, {vr(k+4+2*h,2)}, {vr(br+2*h,2)}
                v_pk_fma_f32 {vr(bi+2*h,2)}, {vr(Bb+2*h,2)}, {vr(k+12+2*h,2)}, {vr(bi+2*h,2)}""")
            e(f"""v_cvt_pk_f16_f32 {vr(Bo[Tt])}, {vr(br)}, {vr(br+1)}
            v_cvt_pk_f16_f32 {vr(Bo[Tt]+1)}, {vr(br+2)}, {vr(br+3)}
            v_cvt_pk_f16_f32 {vr(Bo[Tt]+2)}, {vr(bi)}, {vr(bi+1)}
            v_cvt_pk_f16_f32 {vr(Bo[Tt]+3)}, {vr(bi+2)}, {vr(bi+3)}""")
        O = [t(8), t(12)]
        e(f"""v_mfma_f32_16x16x32_f16 {vr(O[0],4)}, {vr(CA2,4)}, {vr(Bo[0],4)}, 0
        v_mfma_f32_16x16x32_f16 {vr(O[1],4)}, {vr(CA2+8,4)}, {vr(Bo[0],4)}, 0
        v_mfma_f32_16x16x32_f16 {vr(O[0],4)}, {vr(CA2+4,4)}, {vr(Bo[1],4)}, {vr(O[0],4)}
        v_mfma_f32_16x16x32_f16 {vr(O[1],4)}, {vr(CA2+12,4)}, {vr(Bo[1],4)}, {vr(O[1],4)}
        v_cvt_pk_f16_f32 {vr(t(16))}, {vr(O[0])}, {vr(O[0]+1)}
        v_cvt_pk_f16_f32 {vr(t(17))}, {vr(O[0]+2)}, {vr(O[0]+3)}
        ds_write_b16 {vr(lCo)}, {vr(t(16))}
        ds_write_b16_d16_hi {vr(lCo)}, {vr(t(16))} offset:256
        v_cvt_pk_f16_f32 {vr(t(18))}, {vr(O[1])}, {vr(O[1]+1)}
        v_cvt_pk_f16_f32 {vr(t(19))}, {vr(O[1]+2)}, {vr(O[1]+3)}
        ds_write_b16 {vr(lCo)}, {vr(t(17))} offset:512
        ds_write_b16_d16_hi {vr(lCo)}, {vr(t(17))} offset:768
        ds_write_b16 {vr(lCo+2)}, {vr(t(18))}
        ds_write_b16_d16_hi {vr(lCo+1)}, {vr(t(18))} offset:512
        ds_write_b16 {vr(lCo+1)}, {vr(t(19))} offset:256
        ds_write_b16_d16_hi {vr(lCo+1)}, {vr(t(19))}
        s_waitcnt lgkmcnt(0)
        s_barrier
        ds_read_b128 {vr(t(0),4)}, {vr(lG)} offset:{COUT}
        s_mov_b32 {sr(sOff)}, {dst_off}
        s_waitcnt lgkmcnt(0)
        buffer_store_dwordx4 {vr(t(0),4)}, {vr(aP16)}, {sr(sWS,4)}, {sr(sOff)} offen sc1""")

    YH, YV, KT = t(4), t(8), t(12)
    def row_input(src_off, kb, with_weights=False):
        P = t(0)
        lk = g.lab('nok')
        e(f's_bitcmp0_b32 {sr(sW)}, 0\ns_cbranch_scc1 {lk}')
        e(f'v_lshlrev_b32 {vr(t(16))}, 4, {vr(vL)}\ns_mov_b32 {sr(sT3)}, {kb}')
        e(ws_load_text(4, KT, t(16), sr(sT3)))
        e(f'{lk}:')
        e(f's_mov_b32 {sr(sOff)}, {src_off}')
        ld = ws_load_text(4, P, aS16, sr(sOff))
        if with_weights:
            lw = g.lab('now'); lw2 = g.lab('now2')
            e(ld)
            e(f's_cmp_ge_u32 {sr(sPhi)}, {NF}\ns_cbranch_scc1 {lw}')
            e(f's_mov_b32 {sr(sCnt)}, {sr(sT3)}')
            weight_loads()
            e(f's_mov_b32 {sr(sT3)}, {sr(sCnt)}\ns_mov_b32 {sr(sOff)}, {src_off}\ns_waitcnt vmcnt(6)\ns_branch {lw2}\n{lw}:\ns_waitcnt vmcnt(0)\n{lw2}:')
            poll(ld, range(P, P+4), preloaded=True)
        else:
            poll(ld, range(P, P+4))
        stamp('row data')
        def wr(slot, areg, off):
            op = 'ds_write_b16' if slot % 2 == 0 else 'ds_write_b16_d16_hi'
            e(f'{op} {vr(areg)}, {vr(P + slot//2)} offset:{YIMG + off}')
        for j in range(4): wr(j, lYd, j*1024)
        wr(4, lYm4, 0); wr(5, lYm, 3*1024); wr(6, lYm, 2*1024); wr(7, lYm, 1024)
        l0 = g.lab('not0')
        e(f's_cmp_lg_u32 {sr(sRho)}, 0\ns_cbranch_scc1 {l0}')
        wr(0, lYm, 0); wr(4, lYd, 4096)
        e(f"""{l0}:
        s_waitcnt lgkmcnt(0)
        s_barrier
        ds_read_b128 {vr(YH,4)}, {vr(lRow)} offset:{YIMG}""")
        lv = g.lab('yv')
        e(f"""s_cmp_lg_u32 {sr(sRowU)}, 0
        s_cbranch_scc1 {lv}
        ds_read_b128 {vr(YV,4)}, {vr(lRow)} offset:{YIMG+4096}
        {lv}:""")
        lk = g.lab('nok2')
        e(f's_bitcmp0_b32 {sr(sW)}, 0\ns_cbranch_scc1 {lk}')
        poll(ws_load_text(4, KT, t(16), sr(sT3)), range(KT, KT+4), preloaded=True)
        e('s_waitcnt lgkmcnt(0)')
        for k in range(4): e(f'v_pk_add_f16 {vr(YH+k)}, {vr(YH+k)}, {vr(KT+k)}')
        e(f'{lk}:\ns_waitcnt lgkmcnt(0)')
    def add_y(yu, yv):
        for k in range(4):
            e(f"""v_fma_mix_f32 {vr(XU+2*k)}, {vr(yu+k)}, {sr(s16)}, {vr(XU+2*k)} op_sel:[0,0,0] op_sel_hi:[1,0,0]
            v_fma_mix_f32 {vr(XU+2*k+1)}, {vr(yu+k)}, {sr(s16)}, {vr(XU+2*k+1)} op_sel:[1,0,0] op_sel_hi:[1,0,0]""")
        for k in range(4):
            e(f"""v_fma_mix_f32 {vr(XV+2*k)}, {vr(yv+k)}, {sr(s16)}, {vr(XV+2*k)} op_sel:[0,0,0] op_sel_hi:[1,0,0]
            v_fma_mix_f32 {vr(XV+2*k+1)}, {vr(yv+k)}, {sr(s16)}, {vr(XV+2*k+1)} op_sel:[1,0,0] op_sel_hi:[1,0,0]""")
    def add_y_pair():
        ls = g.lab('ysp'); lj = g.lab('yj')
        e(f's_cmp_eq_u32 {sr(sRowU)}, 0\ns_cbranch_scc1 {ls}')
        add_y(YH, YH)
        e(f'{lj}:')
        g.late.append((ls, lj))
    g.late = []

    def make_key():
        e(f"""v_ashrrev_i32 {vr(t(22))}, 31, {vr(hR)}
        v_or_b32 {vr(t(22))}, 0x80000000, {vr(t(22))}
        v_xor_b32 {vr(t(22))}, {vr(hR)}, {vr(t(22))}
        v_and_b32 {vr(t(22))}, 0xfffff800, {vr(t(22))}
        v_or_b32 {vr(t(22))}, {vr(vRowH)}, {vr(t(22))}
        v_readlane_b32 {sr(sKeyU)}, {vr(t(22))}, 0
        v_readlane_b32 {sr(sKeyV)}, {vr(t(22))}, 32
        s_lshl_b32 {sr(sT)}, {sr(sW)}, 2
        v_mov_b32 {vr(t(23))}, {sr(sT)}
        s_max_u32 {sr(sKey)}, {sr(sKeyU)}, {sr(sKeyV)}
        v_mov_b32 {vr(t(22))}, {sr(sKey)}
        ds_write_b32 {vr(t(23))}, {vr(t(22))} offset:{AM}""")
    def wg_best_read(tmp):
        e(f'v_mov_b32 {vr(tmp+4)}, 0\nds_read_b128 {vr(tmp,4)}, {vr(tmp+4)} offset:{AM}')
    def wg_best_header(cand, tmp):
        ln = g.lab('nohdr')
        e(f"""v_max3_u32 {vr(tmp)}, {vr(tmp)}, {vr(tmp+1)}, {vr(tmp+2)}
        v_max_u32 {vr(tmp)}, {vr(tmp)}, {vr(tmp+3)}
        v_readfirstlane_b32 {sr(sT)}, {vr(tmp)}
        s_cmp_eq_u32 {sr(sT)}, {sr(sKey)}
        s_cselect_b32 {sr(sSgn)}, 1, 0
        s_cbranch_scc0 {ln}
        s_lshl_b32 {sr(sT)}, {sr(sRho)}, 12
        s_add_u32 {sr(sOff)}, {sr(sT)}, {cand}
        v_mov_b32 {vr(tmp+1)}, {sr(sKey)}
        s_mov_b64 exec, 1
        buffer_store_dword {vr(tmp+1)}, {vr(tmp+4)}, {sr(sWS,4)}, {sr(sOff)} offen sc1
        s_mov_b64 exec, -1
        {ln}:""")
    def publish_rows(cand):
        ln = g.lab('nopub'); lv = g.lab('pubv'); lj = g.lab('pubj')
        e(f's_cmp_eq_u32 {sr(sSgn)}, 0\ns_cbranch_scc1 {ln}')
        e(f"""s_lshl_b32 {sr(sT)}, {sr(sRho)}, 12
        s_add_u32 {sr(sOff)}, {sr(sT)}, {cand}
        s_cmp_gt_u32 {sr(sKeyV)}, {sr(sKeyU)}
        s_cbranch_scc1 {lv}""")
        for (lab_, X_, A_, C_) in ((None, XU, sAu, sCu), (lv, XV, sAv, sCv)):
            if lab_: e(f'{lab_}:')
            e(f"""v_rcp_f32 {vr(t(0))}, {sr(A_)}
            v_mov_b32 {vr(t(1))}, {sr(A_+1)}
            v_mov_b32 {vr(t(2))}, {sr(A_)}
            v_add_f32 {vr(t(2))}, -1.0, {vr(t(2))}
            v_subrev_f32 {vr(t(3))}, {sr(C_)}, {vr(t(1))}
            v_mul_f32 {vr(t(4))}, {vr(t(2))}, {vr(t(0))}
            v_fma_f32 {vr(t(6))}, -{vr(t(4))}, {vr(t(1))}, {vr(t(3))}""")
            Z = t(8)
            for k in range(4): e(f'v_pk_fma_f32 {vr(Z+2*k,2)}, {vr(X_+2*k,2)}, {vr(t(4),2)}, {vr(t(6),2)} op_sel_hi:[1,0,0]')
            if X_ == XU:
                for k in range(4): e(f'v_cvt_pk_bf16_f32 {vr(t(16)+k)}, {vr(Z+2*k)}, {vr(Z+2*k+1)}')
                e(f"""v_lshlrev_b32 {vr(t(1))}, 4, {vr(vL)}
                v_lshlrev_b32 {vr(t(2))}, 5, {vr(vL)}
                buffer_store_dwordx4 {vr(t(16),4)}, {vr(t(1))}, {sr(sWS,4)}, {sr(sOff)} offen offset:128 sc1
                buffer_store_dwordx4 {vr(XU,4)}, {vr(t(2))}, {sr(sWS,4)}, {sr(sOff)} offen offset:1152 sc1
                buffer_store_dwordx4 {vr(XU+4,4)}, {vr(t(2))}, {sr(sWS,4)}, {sr(sOff)} offen offset:1168 sc1
                s_branch {lj}""")
            else:
                e(f"""v_mov_b32_dpp {vr(t(20))}, {vr(Z)} wave_rol:1 {DPP}
                v_mov_b32_dpp {vr(t(24))}, {vr(XV)} wave_rol:1 {DPP}
                v_cvt_pk_bf16_f32 {vr(t(17))}, {vr(Z+6)}, {vr(Z+5)}
                v_cvt_pk_bf16_f32 {vr(t(18))}, {vr(Z+4)}, {vr(Z+3)}
                v_cvt_pk_bf16_f32 {vr(t(19))}, {vr(Z+2)}, {vr(Z+1)}
                v_cvt_pk_bf16_f32 {vr(t(16))}, {vr(t(20))}, {vr(Z+7)}""")
                for k in range(1, 8): e(f'v_mov_b32 {vr(t(24)+k)}, {vr(XV+8-k)}')
                e(f"""v_lshlrev_b32 {vr(t(1))}, 4, {vr(vL)}
                v_sub_u32 {vr(t(1))}, 1008, {vr(t(1))}
                v_lshlrev_b32 {vr(t(2))}, 1, {vr(t(1))}
                buffer_store_dwordx4 {vr(t(16),4)}, {vr(t(1))}, {sr(sWS,4)}, {sr(sOff)} offen offset:128 sc1
                buffer_store_dwordx4 {vr(t(24),4)}, {vr(t(2))}, {sr(sWS,4)}, {sr(sOff)} offen offset:1152 sc1
                buffer_store_dwordx4 {vr(t(28),4)}, {vr(t(2))}, {sr(sWS,4)}, {sr(sOff)} offen offset:1168 sc1""")
        e(f'{lj}:\n{ln}:')

    def header_load(cand, K):
        e(f's_mov_b32 {sr(sOff)}, {cand}')
        e(ws_load_text(1, K, aHdr, sr(sOff)))
    def argmax(cand, K, after_check=None):
        e(f's_mov_b32 {sr(sOff)}, {cand}')
        poll(ws_load_text(1, K, aHdr, sr(sOff)), [K], preloaded=True, backoff=4)
        if after_check: after_check()
        wave_reduce([K], [t(1)], op='v_max_u32')
        e(f"""s_lshl_b32 {sr(sT)}, {sr(sW)}, 2
        v_mov_b32 {vr(t(1))}, {sr(sT)}
        ds_write_b32 {vr(t(1))}, {vr(K)} offset:{AM+32}
        v_mov_b32 {vr(t(1))}, 0
        s_waitcnt lgkmcnt(0)
        s_barrier
        ds_read_b128 {vr(t(4),4)}, {vr(t(1))} offset:{AM+32}
        s_waitcnt lgkmcnt(0)
        v_max3_u32 {vr(t(4))}, {vr(t(4))}, {vr(t(5))}, {vr(t(6))}
        v_max_u32 {vr(t(4))}, {vr(t(4))}, {vr(t(7))}
        v_readfirstlane_b32 {sr(sKey)}, {vr(t(4))}""")
        e(f"""s_and_b32 {sr(sStar)}, {sr(sKey)}, 2047
        s_lshr_b32 {sr(sT)}, {sr(sStar)}, 2
        s_sub_u32 {sr(sT2)}, 511, {sr(sT)}
        s_sub_u32 {sr(sT3)}, 512, {sr(sT)}
        s_and_b32 {sr(sT3)}, {sr(sT3)}, 255
        s_and_b32 {sr(sRec)}, {sr(sStar)}, 3
        s_cmp_eq_u32 {sr(sRec)}, 0
        s_cselect_b32 {sr(sT2)}, {sr(sT3)}, {sr(sT2)}
        s_cmp_lt_u32 {sr(sStar)}, 1024
        s_cselect_b32 {sr(sT2)}, {sr(sT)}, {sr(sT2)}
        s_lshl_b32 {sr(sRec)}, {sr(sT2)}, 12
        s_add_u32 {sr(sRec)}, {sr(sRec)}, {cand}""")
    def sigmoid_of_key():
        e(f"""s_and_b32 {sr(sT)}, {sr(sKey)}, 0xfffff800
        s_or_b32 {sr(sT)}, {sr(sT)}, 0x400
        s_ashr_i32 {sr(sT2)}, {sr(sT)}, 31
        s_not_b32 {sr(sT2)}, {sr(sT2)}
        s_or_b32 {sr(sT2)}, {sr(sT2)}, 0x80000000
        s_xor_b32 {sr(sT)}, {sr(sT)}, {sr(sT2)}
        v_mov_b32 {vr(vSig)}, {fbits(-1.4426950408889634)}
        v_mul_f32 {vr(vSig)}, {sr(sT)}, {vr(vSig)}
        v_exp_f32 {vr(vSig)}, {vr(vSig)}
        v_add_f32 {vr(vSig)}, 1.0, {vr(vSig)}
        v_rcp_f32 {vr(vSig)}, {vr(vSig)}""")

    def ffn_setup():
        e(f"""v_and_b32 {vr(t(0))}, 3, {vr(vN)}
        v_lshrrev_b32 {vr(t(1))}, 2, {vr(vN)}
        v_lshl_add_u32 {vr(t(1))}, {vr(vQ)}, 3, {vr(t(1))}
        s_lshl_b32 {sr(sT)}, {sr(sW)}, 7
        v_add_u32 {vr(t(1))}, {sr(sT)}, {vr(t(1))}
        v_lshlrev_b32 {vr(t(1))}, 4, {vr(t(1))}
        v_and_b32 {vr(t(3))}, 1, {vr(t(0))}
        v_lshl_add_u32 {vr(t(1))}, {vr(t(3))}, 3, {vr(t(1))}
        v_lshrrev_b32 {vr(t(3))}, 1, {vr(t(0))}
        v_lshl_add_u32 {vr(t(1))}, {vr(t(3))}, 13, {vr(t(1))}
        v_lshlrev_b32 {vr(t(2))}, 2, v0""")
        g.nbar_mark = sum(1 for l in g.L if l == 's_barrier')
        e('s_barrier')
        for kap in range(4):
            for h in range(2):
                e(f'ds_read_b64_tr_b16 {vr(FA+4*kap+2*h,2)}, {vr(t(1))} offset:{GU + kap*512 + h*64}')
        for f in range(8): e(f'ds_read_b32 {vr(t(8)+f)}, {vr(t(2))} offset:{DN + f*1024}')
        e('s_waitcnt lgkmcnt(0)')
        for f in range(8):
            e(f'v_lshlrev_b32 {vr(FD+2*f)}, 16, {vr(t(8)+f)}\nv_and_b32 {vr(FD+2*f+1)}, 0xffff0000, {vr(t(8)+f)}')
    def loader():
        e('L_loader:')
        if opt.get('lpf') == 'lin':
            e(f"""s_mul_i32 {sr(sT)}, {sr(sWg)}, 5632
            v_min_u32 {vr(t(4))}, 43, {vr(vL)}
            v_lshlrev_b32 {vr(t(4))}, 7, {vr(t(4))}
            v_add_u32 {vr(t(4))}, {sr(sT)}, {vr(t(4))}""")
            for ptr in (kwg, kwu):
                srd(sT4, ptr, 1409024)
                e(f'buffer_load_dword {vr(t(6))}, {vr(t(4))}, {sr(sT4,4)}, 0 offen')
        elif opt.get('lpf'):
            e(f"""s_lshr_b32 {sr(sT)}, {sr(sRho)}, 5
            s_cmp_ge_u32 {sr(sT)}, 6
            s_cbranch_scc1 L_end
            v_lshlrev_b32 {vr(t(1))}, 4, {vr(vL)}""")
            srd(sT4, kx, 2097152)
            e(f"""s_lshl_b32 {sr(sT2)}, {sr(sRho)}, 12
            v_add_u32 {vr(t(2))}, {sr(sT2)}, {vr(t(1))}
            buffer_load_dword {vr(t(3))}, {vr(t(2))}, {sr(sT4,4)}, 0 offen
            s_lshl_b32 {sr(sT)}, {sr(sT)}, 9
            s_and_b32 {sr(sT2)}, {sr(sRho)}, 31
            s_lshl_b32 {sr(sT2)}, {sr(sT2)}, 4
            v_lshrrev_b32 {vr(t(4))}, 2, {vr(vL)}
            v_add_u32 {vr(t(4))}, {sr(sT2)}, {vr(t(4))}
            s_movk_i32 {sr(sT3)}, 2752
            v_mul_lo_u32 {vr(t(4))}, {vr(t(4))}, {sr(sT3)}
            v_and_b32 {vr(t(5))}, 3, {vr(vL)}
            v_lshlrev_b32 {vr(t(5))}, 7, {vr(t(5))}
            s_max_u32 {sr(sT)}, {sr(sT)}, 16
            s_sub_u32 {sr(sT)}, {sr(sT)}, 16
            v_add3_u32 {vr(t(4))}, {vr(t(4))}, {vr(t(5))}, {sr(sT)}
            v_sub_u32 {vr(t(5))}, {vr(t(4))}, {vr(t(5))}
            v_add_u32 {vr(t(5))}, 512, {vr(t(5))}""")
            if opt.get('lpf') != 'now': e('s_waitcnt vmcnt(0)')
            for ptr in (kwg, kwu):
                srd(sT4, ptr, 1409024)
                e(f"""buffer_load_dword {vr(t(6))}, {vr(t(4))}, {sr(sT4,4)}, 0 offen
                buffer_load_dword {vr(t(7))}, {vr(t(5))}, {sr(sT4,4)}, 0 offen""")
        e(f"""s_cmp_ge_u32 {sr(sPhi)}, {NF}
        s_cbranch_scc1 L_end""")
        e(f"""s_movk_i32 {sr(sT3)}, 2752
        v_mul_lo_u32 {vr(t(0))}, {vr(vL)}, {sr(sT3)}
        s_lshl_b32 {sr(sT2)}, {sr(sPhi)}, 4
        v_add_u32 {vr(t(0))}, {sr(sT2)}, {vr(t(0))}
        v_lshlrev_b32 {vr(t(1))}, 4, {vr(vL)}""")
        def gu(ptr, lds):
            srd(sT4, ptr, 1409024)
            for k in range(8):
                e(f"""s_add_u32 {sr(sT)}, {sr(sPhi)}, {k}
                s_and_b32 {sr(sT)}, {sr(sT)}, 7
                s_lshl_b32 {sr(sT2)}, {sr(sT)}, 10
                s_add_u32 m0, {sr(sT2)}, {lds}
                s_mul_i32 {sr(sOff)}, {sr(sT)}, {64*2752}
                buffer_load_dwordx4 {vr(t(0))}, {sr(sT4,4)}, {sr(sOff)} offen lds""")
        def dn():
            srd(sT4, kwd, 1409024)
            e(f's_lshl_b32 {sr(sT2)}, {sr(sPhi)}, 13')
            for f in range(8):
                e(f"""s_mov_b32 m0, {DN + 1024*f}
                s_add_u32 {sr(sOff)}, {sr(sT2)}, {1024*f}
                buffer_load_dwordx4 {vr(t(1))}, {sr(sT4,4)}, {sr(sOff)} offen lds""")
        if opt.get('lwait'):
            srd(sT4, kx, 2097152)
            e(f's_lshl_b32 {sr(sT)}, {sr(sRho)}, 12\nv_add_u32 {vr(t(2))}, {sr(sT)}, {vr(t(1))}\nbuffer_load_dword {vr(t(3))}, {vr(t(2))}, {sr(sT4,4)}, 0 offen\ns_waitcnt vmcnt(0)')
        plan = {int(x.split(':')[0]): x.split(':')[1] for x in opt.get('lplan', '0:gud').split('/')}
        for k in range(g.nbar_mark + 1):
            for c in plan.get(k, ''):
                {'g': lambda: gu(kwg, GU), 'u': lambda: gu(kwu, GU + 8192), 'd': dn}[c]()
            if k < g.nbar_mark: e('s_barrier')
        e('s_waitcnt vmcnt(0)\ns_barrier\nL_end:\ns_endpgm')

    XS = t(0)
    def xsel_text():
        return '\n'.join(f'buffer_load_dwordx4 {vr(XS+4*k,4)}, {vr(t(20))}, {sr(sWS,4)}, {sr(sRec)} offen offset:{128+64*k} sc1' for k in range(4))
    def xsel_load():
        e(f"""s_lshl_b32 {sr(sT)}, {sr(sW)}, 8
        v_lshlrev_b32 {vr(t(20))}, 4, {vr(vQ)}
        v_add_u32 {vr(t(20))}, {sr(sT)}, {vr(t(20))}""")
        e(xsel_text())
    def ffn(part):
        ln = g.lab('noffn')
        e(f's_cmp_ge_u32 {sr(sPhi)}, {NF}\ns_cbranch_scc1 {ln}')
        poll(xsel_text(), range(XS, XS+16), preloaded=True)
        Pp = t(16)
        for k in range(4):
            e(f'v_mfma_f32_16x16x32_bf16 {vr(Pp,4)}, {vr(FA+4*k,4)}, {vr(XS+4*k,4)}, {"0" if k==0 else vr(Pp,4)}')
        e(f"""v_lshlrev_b32 {vr(t(21))}, 6, {vr(vQ)}
        s_lshl_b32 {sr(sT)}, {sr(sW)}, 2
        v_add_u32 {vr(t(21))}, {sr(sT)}, {vr(t(21))}
        v_and_b32 {vr(t(22))}, 31, {vr(vL)}
        v_lshlrev_b32 {vr(t(22))}, 2, {vr(t(22))}
        s_mov_b32 exec_lo, 0x00010001
        s_mov_b32 exec_hi, 0x00010001""")
        for i in range(4): e(f'ds_write_b32 {vr(t(21))}, {vr(Pp+i)} offset:{FP + 16*i}')
        e(f"""s_mov_b64 exec, -1
        s_waitcnt lgkmcnt(0)
        s_barrier
        ds_read_b32 {vr(t(12))}, {vr(t(22))} offset:{FP}
        ds_read_b32 {vr(t(13))}, {vr(t(22))} offset:{FP+128}
        s_waitcnt lgkmcnt(0)""")
        gg, uu = t(12), t(13)
        for mod in ('quad_perm:[1,0,3,2]', 'quad_perm:[2,3,0,1]'):
            e(f'v_add_f32_dpp {vr(gg)}, {vr(gg)}, {vr(gg)} {mod} {DPP}\nv_add_f32_dpp {vr(uu)}, {vr(uu)}, {vr(uu)} {mod} {DPP}')
        e(f"""v_mul_f32 {vr(t(14))}, {fbits(-1.4426950408889634)}, {vr(gg)}
        v_exp_f32 {vr(t(14))}, {vr(t(14))}
        v_mul_f32 {vr(uu)}, {vr(uu)}, {vr(vSig)}
        v_add_f32 {vr(t(14))}, 1.0, {vr(t(14))}
        v_rcp_f32 {vr(t(14))}, {vr(t(14))}
        v_mul_f32 {vr(gg)}, {vr(gg)}, {vr(uu)}
        v_mul_f32 {vr(gg)}, {vr(gg)}, {vr(t(14))}""")
        for f in range(8): e(f'v_readlane_b32 {sr(sH+f)}, {vr(gg)}, {4*f}')
        acc = t(16)
        for f in range(8):
            sel = 'op_sel_hi:[1,0,1]' if f % 2 == 0 else 'op_sel:[0,1,0] op_sel_hi:[1,1,1]'
            if f == 0: e(f'v_pk_mul_f32 {vr(acc,2)}, {vr(FD,2)}, {sr(sH,2)} op_sel_hi:[1,0]')
            else: e(f'v_pk_fma_f32 {vr(acc,2)}, {vr(FD+2*f,2)}, {sr(sH + (f & ~1),2)}, {vr(acc,2)} {sel}')
        ws_store(2, acc, aP8, part)
        e(f'{ln}:')

    def reducer(part, final):
        ln = g.lab('nored')
        red_index()
        e(f"""s_cmp_ge_u32 {sr(sT3)}, 32
        s_cbranch_scc1 {ln}""")
        if not final and not opt.get('oldred'): e('s_waitcnt vmcnt(0)')
        e(f"""v_lshrrev_b32 {vr(t(20))}, 2, v0
        v_lshlrev_b32 {vr(t(21))}, 11, {vr(t(20))}
        v_and_b32 {vr(t(22))}, 3, v0
        v_lshlrev_b32 {vr(t(22))}, 4, {vr(t(22))}
        s_lshl_b32 {sr(sT)}, {sr(sT3)}, 6
        v_add_u32 {vr(t(25))}, {sr(sT)}, {vr(t(22))}
        v_add_u32 {vr(t(21))}, {vr(t(21))}, {vr(t(25))}
        v_add_u32 {vr(t(23))}, {128*2048}, {vr(t(21))}
        v_mov_b32 {vr(t(24))}, 0x7f000000
        v_cmp_gt_u32 vcc, {NF-128}, {vr(t(20))}
        v_cndmask_b32 {vr(t(23))}, {vr(t(24))}, {vr(t(23))}, vcc
        s_mov_b32 {sr(sOff)}, {part}
        s_add_u32 {sr(sT2)}, {sr(sOff)}, {64*2048}""")
        A, B2, B3, B4 = t(0), t(4), t(8), t(12)
        ld = '\n'.join([ws_load_text(4, A, t(21), sr(sOff)), ws_load_text(4, B2, t(21), sr(sT2)), ws_load_text(4, B3, t(23), sr(sOff))])
        regs = list(range(A, A+12))
        if final:
            ld += '\n' + ws_load_text(4, B4, t(25), sr(sRec), 'offset:1152')
            regs += list(range(B4, B4+4))
        poll(ld, regs)
        for X_ in (B2, B3):
            e(f'v_pk_add_f32 {vr(A,2)}, {vr(A,2)}, {vr(X_,2)}\nv_pk_add_f32 {vr(A+2,2)}, {vr(A+2,2)}, {vr(X_+2,2)}')
        for sh in (4, 8):
            for i in range(4): e(f'v_add_f32_dpp {vr(A+i)}, {vr(A+i)}, {vr(A+i)} row_ror:{sh} {DPP}')
        for sw in ('v_permlane16_swap_b32', 'v_permlane32_swap_b32'):
            for i in range(4): e(f'v_mov_b32 {vr(B2+i)}, {vr(A+i)}')
            for i in range(4): e(f'{sw} {vr(A+i)}, {vr(B2+i)}')
            for i in range(4): e(f'v_add_f32 {vr(A+i)}, {vr(A+i)}, {vr(B2+i)}')
        e(f"""s_lshl_b32 {sr(sT)}, {sr(sW)}, 6
        v_add_u32 {vr(t(24))}, {sr(sT)}, {vr(t(22))}
        s_mov_b64 exec, 15
        ds_write_b128 {vr(t(24))}, {vr(A,4)} offset:{RED}
        s_mov_b64 exec, -1
        s_waitcnt lgkmcnt(0)
        s_barrier
        s_cmp_lg_u32 {sr(sW)}, 0
        s_cbranch_scc1 {ln}""")
        R = t(28)
        for w in range(4): e(f'ds_read_b128 {vr(R+4*w,4)}, {vr(t(22))} offset:{RED + 64*w}')
        e('s_waitcnt lgkmcnt(0)')
        e(f"""v_pk_add_f32 {vr(R,2)}, {vr(R,2)}, {vr(R+4,2)}
        v_pk_add_f32 {vr(R+2,2)}, {vr(R+2,2)}, {vr(R+6,2)}
        v_pk_add_f32 {vr(R+8,2)}, {vr(R+8,2)}, {vr(R+12,2)}
        v_pk_add_f32 {vr(R+10,2)}, {vr(R+10,2)}, {vr(R+14,2)}
        v_pk_add_f32 {vr(R,2)}, {vr(R,2)}, {vr(R+8,2)}
        v_pk_add_f32 {vr(R+2,2)}, {vr(R+2,2)}, {vr(R+10,2)}""")
        if final:
            e(f"""v_pk_add_f32 {vr(R,2)}, {vr(R,2)}, {vr(B4,2)}
            v_pk_add_f32 {vr(R+2,2)}, {vr(R+2,2)}, {vr(B4+2,2)}
            v_cvt_pk_bf16_f32 {vr(R)}, {vr(R)}, {vr(R+1)}
            v_cvt_pk_bf16_f32 {vr(R+1)}, {vr(R+2)}, {vr(R+3)}
            s_lshl_b32 {sr(sT)}, {sr(sStar)}, 10
            v_lshrrev_b32 {vr(t(25))}, 1, {vr(t(25))}
            v_add_u32 {vr(t(25))}, {sr(sT)}, {vr(t(25))}
            s_mov_b64 exec, 15
            buffer_store_dwordx2 {vr(R,2)}, {vr(t(25))}, {sr(sOUT,4)}, 0 offen sc1
            s_mov_b64 exec, -1""")
        else:
            e(f"""s_mov_b32 {sr(sOff)}, {UPD0}
            s_mov_b64 exec, 15
            buffer_store_dwordx4 {vr(R,4)}, {vr(t(25))}, {sr(sWS,4)}, {sr(sOff)} offen sc1
            s_mov_b64 exec, -1""")
        e(f'{ln}:')

    addr_misc()
    stamp('preamble')
    e(f's_waitcnt vmcnt({N_ALL-1})\nv_readfirstlane_b32 {sr(sTag)}, {vr(vCa)}\ns_add_u32 {sr(sTag)}, {sr(sTag)}, 1')
    if not opt.get('nohint'):
        lh = g.lab('nohint')
        e(f'''s_cmp_lt_u32 {sr(sWg)}, 248
        s_cbranch_scc1 {lh}
        s_cmp_lg_u32 {sr(sW)}, 0
        s_cbranch_scc1 {lh}
        s_and_b32 {sr(sT)}, {sr(sWg)}, 7
        s_lshl_b32 {sr(sT)}, {sr(sT)}, 8
        v_mov_b32 {vr(t(16))}, {sr(sT)}
        v_mov_b32 {vr(t(17))}, {sr(sTag)}
        s_mov_b64 exec, 1''')
        ws_store(1, t(17), t(16), HINT)
        e(f's_mov_b64 exec, -1\n{lh}:')
    stamp('x0')
    unpack_nat(XU, URAW); unpack_rev(XV, VRAW, t(16))
    stats2(False)
    norm_coeffs(hRho, hB)
    make_g()
    e(f's_waitcnt vmcnt({N_ALL - N_ROWTAB})')
    transform(HB0, tagged=True, pre_store=lambda: e(f's_waitcnt vmcnt({N_ALL - N_POISON})'))
    stamp('P1 stored')
    finish_here('P1')
    special_k(KB0, False)
    addr_ym4()
    poison_regs()
    red_index()
    e(f"""s_lshl_b32 {sr(sT)}, {sr(sT3)}, 6
    v_lshlrev_b32 {vr(t(6))}, 2, v0
    v_add_u32 {vr(t(6))}, {sr(sT)}, {vr(t(6))}
    v_cmp_gt_u32 vcc, 16, v0
    s_cmp_lt_u32 {sr(sT3)}, 32
    s_cselect_b64 {sr(sEx,2)}, vcc, 0
    v_mov_b32 {vr(t(7))}, 0x7f000000
    v_cndmask_b32 {vr(t(6))}, {vr(t(7))}, {vr(t(6))}, {sr(sEx,2)}""")
    ws_store(4, PZ, aP16, HB1); ws_store(4, PZ, aP16, CAND0); ws_store(2, PZ, aP8, PART0); ws_store(1, PZ, t(6), UPD0)
    e(f'v_add_u32 {vr(t(39))}, {TOFF["addr2"]}, {vr(lG)}\nglobal_load_dwordx4 {vr(t(44),4)}, {vr(t(39))}, {sr(sPC,2)}')
    if not opt.get('nohint'):
        lh = g.lab('hw')
        e(f'''v_and_b32 {vr(vCa)}, 7, {vr(vL)}
        v_lshlrev_b32 {vr(vCa)}, 8, {vr(vCa)}
        s_cmp_lg_u32 {sr(sW)}, 0
        s_cbranch_scc1 {lh}
        s_mov_b32 {sr(sOff)}, {HINT}''')
        e(ws_load_text(1, vSa, vCa, sr(sOff)))
        e(f'{lh}:')
    col_consts_a()
    if not opt.get('splitc'): col_consts_b()
    stamp('shadow1')
    if not opt.get('nohint'):
        lh = g.lab('hw2'); lp = g.lab('hp')
        e(f'''s_cmp_lg_u32 {sr(sW)}, 0
        s_cbranch_scc1 {lh}
        s_mov_b32 {sr(sCnt)}, 0
        s_mov_b32 {sr(sOff)}, {HINT}
        {lp}:
        s_waitcnt vmcnt(0)
        v_cmp_ne_u32 vcc, {sr(sTag)}, {vr(vSa)}
        s_cbranch_vccz {lh}
        s_add_u32 {sr(sCnt)}, {sr(sCnt)}, 1
        s_cmp_gt_u32 {sr(sCnt)}, {LIMIT}
        s_cbranch_scc1 {lh}
        s_sleep 4''')
        e(ws_load_text(1, vSa, vCa, sr(sOff)))
        e(f's_branch {lp}\n{lh}:\ns_waitcnt vmcnt(0)\ns_barrier')
    if opt.get('ack1'): e('s_waitcnt vmcnt(0)')
    stamp('hint')
    column(HB0, YB0, False, tagged=True)
    stamp('P2 stored')
    finish_here('P2')
    poison_regs()
    ws_store(4, PZ, aP16, YB1); ws_store(4, PZ, aP16, CAND1); ws_store(2, PZ, aP8, PART1)
    lnn = g.lab('nononce')
    e(f'''s_cmp_lg_u32 {sr(sRowU)}, 0
    s_cbranch_scc1 {lnn}
    v_mov_b32 {vr(t(0))}, {sr(sTag)}
    v_mov_b32 {vr(t(1))}, 0
    s_mov_b64 exec, 1''')
    ws_store(1, t(0), t(1), NONCE)
    e(f's_mov_b64 exec, -1\n{lnn}:')
    unpack_nat(WU, WURAW); unpack_rev(WV, WVRAW, t(16))
    e(f"""v_pk_add_f32 {vr(t(16),2)}, {vr(WU,2)}, {vr(WU+2,2)}
    v_pk_add_f32 {vr(t(18),2)}, {vr(WU+4,2)}, {vr(WU+6,2)}
    v_pk_add_f32 {vr(t(16),2)}, {vr(t(16),2)}, {vr(t(18),2)}
    v_add_f32 {vr(t(16))}, {vr(t(16))}, {vr(t(17))}""")
    wave_reduce([t(16)], [t(17)])
    e(f'v_readfirstlane_b32 {sr(sSW)}, {vr(t(16))}')
    stamp('shadow2')
    e('s_waitcnt vmcnt(0)')
    row_input(YB0, KB0)
    add_y_pair()
    stats2(True)
    make_key()
    residual_coeffs()
    e(f"""v_mul_f32 {vr(t(23))}, {vr(t(21))}, {vr(t(21))}
    v_mul_f32 {vr(t(23))}, {vr(t(23))}, {vr(hVar)}
    v_add_f32 {vr(t(23))}, {fbits(1e-5)}, {vr(t(23))}
    v_rsq_f32 {vr(t(23))}, {vr(t(23))}
    s_waitcnt lgkmcnt(0)
    s_barrier""")
    wg_best_read(t(24))
    e(f"""v_mul_f32 {vr(t(22))}, {vr(t(21))}, {vr(t(23))}
    v_mul_f32 {vr(t(23))}, -{vr(hM)}, {vr(t(22))}""")
    norm_coeffs(t(22), t(23))
    e('s_waitcnt lgkmcnt(0)')
    wg_best_header(CAND0, t(24))
    stamp('hdr0')
    make_g()
    residual_update(XU, XV)
    transform(HB1, post_scatter=lambda: publish_rows(CAND0))
    stamp('P3 stored')
    finish_here('P3')
    K = t(0)
    header_load(CAND0, vSig)
    lfs = g.lab('nosetup')
    e(f's_cmp_ge_u32 {sr(sPhi)}, {NF}\ns_cbranch_scc1 {lfs}')
    ffn_setup()
    e(f'{lfs}:')
    special_k(KB1, True)
    e(f's_waitcnt vmcnt(0)\nv_mov_b32 {vr(K)}, {vr(vSig)}')
    argmax(CAND0, K, after_check=lambda: column_load(HB1))
    stamp('argmax0')
    lb = g.lab('nobase')
    e(f"""s_cmp_ge_u32 {sr(sW)}, 2
    s_cbranch_scc1 {lb}
    v_lshlrev_b32 {vr(t(21))}, 5, {vr(vL)}
    buffer_load_dwordx4 {vr(FX,4)}, {vr(t(21))}, {sr(sWS,4)}, {sr(sRec)} offen offset:1152 sc1
    buffer_load_dwordx4 {vr(FX+4,4)}, {vr(t(21))}, {sr(sWS,4)}, {sr(sRec)} offen offset:1168 sc1
    {lb}:""")
    lb = g.lab('nox')
    e(f's_cmp_ge_u32 {sr(sPhi)}, {NF}\ns_cbranch_scc1 {lb}')
    xsel_load()
    e(f'{lb}:')
    sigmoid_of_key()
    e(f"""s_mul_i32 {sr(sT)}, {sr(sRowU)}, {sr(sStar)}
    s_and_b32 {sr(sT)}, {sr(sT)}, 2047
    v_cvt_f32_u32 {vr(vCa)}, {sr(sT)}
    v_mul_f32 {vr(vCa)}, {fbits(1/2048)}, {vr(vCa)}
    v_sin_f32 {vr(vSa)}, {vr(vCa)}
    v_cos_f32 {vr(vCa)}, {vr(vCa)}
    v_mul_f32 {vr(vSa)}, {fbits(1/32)}, {vr(vSa)}
    v_mul_f32 {vr(vCa)}, {fbits(1/32)}, {vr(vCa)}
    v_cvt_pk_f16_f32 {vr(vSa)}, {vr(vSa)}, {vr(vSa)}
    v_cvt_pk_f16_f32 {vr(vCa)}, {vr(vCa)}, {vr(vCa)}
    s_waitcnt vmcnt(0)""")
    stamp('xsel')
    ffn(PART0)
    stamp('ffn0')
    column(HB1, YB1, True)
    stamp('P4 stored')
    finish_here('P4')
    reducer(PART0, False)
    stamp('red0')
    lb = g.lab('nobase')
    e(f's_cmp_ge_u32 {sr(sW)}, 2\ns_cbranch_scc1 {lb}')
    e(f'v_lshlrev_b32 {vr(t(21))}, 5, {vr(vL)}')
    poll(f'buffer_load_dwordx4 {vr(FX,4)}, {vr(t(21))}, {sr(sWS,4)}, {sr(sRec)} offen offset:1152 sc1\n'
         f'buffer_load_dwordx4 {vr(FX+4,4)}, {vr(t(21))}, {sr(sWS,4)}, {sr(sRec)} offen offset:1168 sc1', range(FX, FX+8), preloaded=True)
    stats1(FX, t(0), FO)
    e(f'{lb}:')
    e('s_waitcnt vmcnt(0)')
    row_input(YB1, KB1)
    stamp('y1 read')
    lj = g.lab('fixj'); lq = g.lab('fix'); lu = g.lab('ownu'); lv = g.lab('ownv')
    U = t(16)
    updld = lambda areg: (ws_load_text(4, U, areg, sr(sOff)) + '\n' + ws_load_text(4, U+4, areg, sr(sOff), 'offset:16'))
    def owner_add():
        l1 = g.lab('nu'); l2 = g.lab('nv')
        e(f's_cmp_lg_u32 {sr(sStar)}, {sr(sRowU)}\ns_cbranch_scc1 {l1}')
        for k in range(4): e(f'v_pk_add_f32 {vr(XU+2*k,2)}, {vr(XU+2*k,2)}, {vr(U+2*k,2)}')
        e(f'{l1}:')
    e(f"""v_lshlrev_b32 {vr(t(44))}, 5, {vr(vL)}
    s_mov_b32 {sr(sOff)}, {UPD0}""")
    lnv = g.lab('notv')
    e(f"""s_cmp_lg_u32 {sr(sStar)}, {sr(sRowV)}
    s_cbranch_scc1 {lnv}
    v_sub_u32 {vr(t(45))}, {63*32}, {vr(t(44))}""")
    poll(updld(t(45)), range(U, U+8), backoff=4)
    e(f'v_mov_b32_dpp {vr(t(46))}, {vr(U)} wave_ror:1 {DPP}')
    for k in range(1, 8): e(f'v_add_f32 {vr(XV+k)}, {vr(XV+k)}, {vr(U+8-k)}')
    e(f'v_add_f32 {vr(XV)}, {vr(XV)}, {vr(t(46))}\n{lnv}:')
    e(f"""s_cmp_lt_u32 {sr(sW)}, 2
    s_cbranch_scc1 {lq}
    s_cmp_lg_u32 {sr(sStar)}, {sr(sRowU)}
    s_cbranch_scc1 {lj}""")
    poll(updld(t(44)), range(U, U+8), backoff=4)
    owner_add()
    e(f's_branch {lj}\n{lq}:')
    poll(updld(t(44)), range(U, U+8), backoff=4)
    stamp('upd')
    owner_add()
    for k in range(4): e(f'v_pk_add_f32 {vr(FX+2*k,2)}, {vr(FX+2*k,2)}, {vr(U+2*k,2)}')
    stats1(FX, t(32), FX)
    for k in range(4): e(f'v_pk_add_f32 {vr(FX+2*k,2)}, {vr(FX+2*k,2)}, {vr(FO+2*k,2)} neg_lo:[0,1] neg_hi:[0,1]')
    write_n(FX, t(24)); write_r(FX, t(40))
    A, B = CA, t(40)
    for k in range(8): e(f'v_mov_b32 {vr(FO+k)}, {vr(YH+k)}')
    e(f"""s_mov_b32 {sr(sT)}, 0x3c003c00
    s_cmp_eq_u32 {sr(sW)}, 0
    s_cselect_b32 {sr(sSgn)}, {sr(sT)}, 0xbc00bc00
    s_waitcnt lgkmcnt(0)
    ds_read_b64_tr_b16 {vr(A,2)}, {vr(lTr)} offset:{GIMG}
    ds_read_b64_tr_b16 {vr(B,2)}, {vr(lTr)} offset:{RIMG}
    ds_read_b64_tr_b16 {vr(A+2,2)}, {vr(lTr)} offset:{GIMG+128}
    ds_read_b64_tr_b16 {vr(B+2,2)}, {vr(lTr)} offset:{RIMG+128}
    s_waitcnt lgkmcnt(0)""")
    for k in range(4): e(f'v_pk_fma_f16 {vr(A+k)}, {vr(B+k)}, {sr(sSgn)}, {vr(A+k)}')
    core(A, CO)
    for k in range(4): e(f'v_cvt_pk_f16_f32 {vr(t(44)+k)}, {vr(CO+2*k)}, {vr(CO+2*k+1)}')
    e(f"""v_lshl_add_u32 {vr(t(0))}, {vr(vQ)}, 7, {vr(vN)}
    v_lshlrev_b32 {vr(t(1))}, 7, {vr(vQ)}
    v_sub_u32 {vr(t(1))}, {32*23}, {vr(t(1))}
    v_add_u32 {vr(t(1))}, {vr(t(1))}, {vr(vN)}
    v_cmp_gt_u32 vcc, 2, {vr(vQ)}
    v_cndmask_b32 {vr(t(0))}, {vr(t(1))}, {vr(t(0))}, vcc
    v_lshlrev_b32 {vr(t(0))}, 1, {vr(t(0))}
    s_lshl_b32 {sr(sT)}, {sr(sW)}, 10
    v_add_u32 {vr(t(0))}, {sr(sT)}, {vr(t(0))}
    v_mov_b32 {vr(t(2))}, 64
    v_mov_b32 {vr(t(3))}, -64
    v_cndmask_b32 {vr(t(2))}, {vr(t(3))}, {vr(t(2))}, vcc""")
    for i in range(4):
        op = 'ds_write_b16' if i % 2 == 0 else 'ds_write_b16_d16_hi'
        for Tt in range(2):
            e(f'{op} {vr(t(0))}, {vr(t(44)+2*Tt+i//2)} offset:{RIMG + 2048 + 32*Tt}')
        if i < 3: e(f'v_add_u32 {vr(t(0))}, {vr(t(0))}, {vr(t(2))}')
    for k in range(8): e(f'v_mov_b32 {vr(YH+k)}, {vr(FO+k)}')
    e(f"""{lj}:
    s_waitcnt lgkmcnt(0)
    s_barrier
    v_lshlrev_b32 {vr(t(0))}, 4, {vr(vL)}
    ds_read_b128 {vr(t(16),4)}, {vr(t(0))} offset:{RIMG+2048}
    ds_read_b128 {vr(t(20),4)}, {vr(t(0))} offset:{RIMG+2048+1024}
    s_waitcnt lgkmcnt(1)""")
    lsp = g.lab('fsp')
    for k in range(4): e(f'v_pk_fma_f16 {vr(YH+k)}, {vr(t(16)+k)}, {vr(vCa)}, {vr(YH+k)}')
    e(f'''s_cmp_lg_u32 {sr(sRowU)}, 0
    s_cbranch_scc1 {lsp}
    s_mov_b32 {sr(sT)}, 0x28002800
    s_bitcmp0_b32 {sr(sStar)}, 0
    s_cselect_b32 {sr(sT)}, {sr(sT)}, 0xa800a800''')
    for k in range(4): e(f'v_pk_fma_f16 {vr(YV+k)}, {vr(t(16)+k)}, {sr(sT)}, {vr(YV+k)}')
    e(f'{lsp}:\ns_waitcnt lgkmcnt(0)')
    for k in range(4): e(f'v_pk_fma_f16 {vr(YH+k)}, {vr(t(20)+k)}, {vr(vSa)}, {vr(YH+k)}')
    add_y_pair()
    stamp('fixed')
    stats2(True)
    make_key()
    residual_coeffs()
    e('s_waitcnt lgkmcnt(0)\ns_barrier')
    wg_best_read(t(24))
    residual_update(XU, XV)
    e('s_waitcnt lgkmcnt(0)')
    wg_best_header(CAND1, t(24))
    publish_rows(CAND1)
    e('s_waitcnt vmcnt(0)\ns_barrier')
    stamp('cand1')
    header_load(CAND1, K)
    e('s_waitcnt vmcnt(0)')
    argmax(CAND1, K)
    stamp('argmax1')
    lb = g.lab('nox')
    e(f's_cmp_ge_u32 {sr(sPhi)}, {NF}\ns_cbranch_scc1 {lb}')
    xsel_load()
    e(f'{lb}:')
    sigmoid_of_key()
    ln = g.lab('noout')
    e(f's_cmp_eq_u32 {sr(sStar)}, {sr(sRowU)}\ns_cbranch_scc1 {ln}')
    for k in range(4): e(f'v_cvt_pk_bf16_f32 {vr(t(24)+k)}, {vr(XU+2*k)}, {vr(XU+2*k+1)}')
    e(f'buffer_store_dwordx4 {vr(t(24),4)}, {vr(aU)}, {sr(sOUT,4)}, 0 offen sc1\n{ln}:')
    ln = g.lab('noout')
    e(f's_cmp_eq_u32 {sr(sStar)}, {sr(sRowV)}\ns_cbranch_scc1 {ln}')
    e(f"""v_mov_b32_dpp {vr(t(32))}, {vr(XV)} wave_rol:1 {DPP}
    v_cvt_pk_bf16_f32 {vr(t(29))}, {vr(XV+6)}, {vr(XV+5)}
    v_cvt_pk_bf16_f32 {vr(t(30))}, {vr(XV+4)}, {vr(XV+3)}
    v_cvt_pk_bf16_f32 {vr(t(31))}, {vr(XV+2)}, {vr(XV+1)}
    v_cvt_pk_bf16_f32 {vr(t(28))}, {vr(t(32))}, {vr(XV+7)}
    buffer_store_dwordx4 {vr(t(28),4)}, {vr(aV)}, {sr(sOUT,4)}, 0 offen sc1
    {ln}:""")
    e('s_waitcnt vmcnt(0)')
    ffn(PART1)
    stamp('ffn1')
    e('s_waitcnt vmcnt(0)')
    reducer(PART1, True)
    stamp('end')
    e('L_done:')
    if stamps:
        ls = g.lab('nost')
        e(f"""s_cmp_ge_u32 s2, 256
        s_cbranch_scc1 {ls}
        s_waitcnt vmcnt(0)
        s_mov_b64 exec, -1
        s_lshl_b32 {sr(sT)}, {sr(sWg)}, 11
        s_lshl_b32 {sr(sT2)}, {sr(sW)}, 8
        s_add_u32 {sr(sT)}, {sr(sT)}, {sr(sT2)}
        v_and_b32 {vr(t(0))}, 63, v0
        v_lshlrev_b32 {vr(t(0))}, 2, {vr(t(0))}
        v_add_u32 {vr(t(0))}, {sr(sT)}, {vr(t(0))}
        s_mov_b32 {sr(sOff)}, {STAMP}
        buffer_store_dword {vr(vStamp)}, {vr(t(0))}, {sr(sWS,4)}, {sr(sOff)} offen
        {ls}:""")
    e('s_endpgm')
    loader()
    for ls, lj in g.late:
        e(f'{ls}:')
        add_y(YH, YV)
        e(f's_branch {lj}')
    emit_tail()
    return g

def render(g):
    lines, added = pad(g.L)
    body = '\n'.join(('' if l.endswith(':') else '    ') + l for l in lines)
    ninstr = sum(1 for l in lines if not l.endswith(':'))
    hdr = f"""; FNet (2-D real DFT via Hartley factorisation on MFMA) + top-1 routed SwiGLU, two layers, one persistent launch.
; @launch grid=(256,1,1) block=(320,1,1) lds={LDS_SIZE}
.amdgcn_target "amdgcn-amd-amdhsa--gfx950"
.text
.globl {NAME}
.p2align 8
.type {NAME},@function
{NAME}:
"""
    tab = '\n'.join('.long ' + ','.join('0x%08x' % x for x in TAB[i:i+8]) for i in range(0, len(TAB), 8))
    tail = f"""
L_code_end:
.p2align 8
L_tab:
{tab}
.section .rodata,"a"
.p2align 6
.amdhsa_kernel {NAME}
  .amdhsa_next_free_vgpr 256
  .amdhsa_next_free_sgpr 102
  .amdhsa_accum_offset 256
  .amdhsa_group_segment_fixed_size 0
  .amdhsa_kernarg_size 104
  .amdhsa_user_sgpr_count 2
  .amdhsa_user_sgpr_kernarg_segment_ptr 1
  .amdhsa_system_sgpr_workgroup_id_x 1
.end_amdhsa_kernel
"""
    return hdr + body + tail, ninstr, added

if __name__ == '__main__':
    import argparse
    ap = argparse.ArgumentParser()
    ap.add_argument('-o', default='interleave_layers__spectral_fnet__moe_arch_mod__prompt.s')
    ap.add_argument('--stop'); ap.add_argument('--stamps', action='store_true'); ap.add_argument('--opt', default='')
    a = ap.parse_args()
    g = build(a.stop, a.stamps, {k.split('=')[0]: (k.split('=')+['1'])[1] for k in a.opt.split(',') if k})
    txt, n, added = render(g)
    open(a.o, 'w').write(txt)
    print(f'{n} instructions, {added} nop slots added, vgpr high {g.v.n}, sgpr high {g.s.n}')
```

```python
import sys, struct, math
from asmlib import pad, Alloc
import tables

NAME = "interleave_layers__spectral_fnet__moe_arch_mod__prompt_kernel"
NONCE = 0x000000
HB0, YB0, HB1, YB1 = 0x100000, 0x300000, 0x400000, 0x500000
CAND0, CAND1 = 0x600000, 0x700000
PART0, PART1 = 0x800000, 0x880000
UPD0 = 0x900000
KB0, KB1 = 0x901000, 0x902000
HINT = 0x903000
STAMP = 0x980000
WS_SIZE = 0xA00000
NF = 172
LIMIT = 40000
NPOIS = 64
YIMG = 0
GIMG = 5120
RIMG = 9216
HIMG = 13312
CIN = 17472
COUT = 21568
KIMG = 25664
FP = 26752
AM = 27008
RED = 27072
GU = 27392
DN = GU + 16384
LDS_SIZE = DN + 8192
LMAP = dict(YIMG=YIMG, GIMG=GIMG, RIMG=RIMG, HIMG=HIMG, CIN=CIN, COUT=COUT)
TAB, TOFF = tables.build_tables(LMAP)

def fbits(x): return '0x%08x' % struct.unpack('<I', struct.pack('<f', x))[0]

class G:
    def __init__(self, stop=None, stamps=False):
        self.L = []; self.stop = stop; self.stamps = stamps; self.uid = 0; self.nstamp = 0; self.names = []
        self.v = Alloc(1, 256, 'v'); self.s = Alloc(3, 100, 's')
    def e(self, text):
        for l in text.strip('\n').split('\n'):
            l = l.strip()
            if l: self.L.append(l)
    def lab(self, p):
        self.uid += 1; return f'L_{p}_{self.uid}'

def vr(a, n=1): return f'v{a}' if n == 1 else f'v[{a}:{a+n-1}]'
def sr(a, n=1): return f's{a}' if n == 1 else f's[{a}:{a+n-1}]'
DPP = 'row_mask:0xf bank_mask:0xf'
PKB = 'op_sel:[0,0,1] op_sel_hi:[1,0,1]'

def build(stop=None, stamps=False, opt=None):
    opt = dict(opt or {})
    if not opt.get('nodefault'):
        opt.setdefault('splitc', '1'); opt.setdefault('lplan', '0:da/1:b/4:u')
    g = G(stop, stamps); e = g.e; V = g.v; S = g.s
    sWS = S('ws', 4, 4); sXS = S('xsrd', 4, 4); sOUT = S('out', 4, 4); sT4 = S('tmpsrd', 4, 4)
    sRho = S('rho'); sW = S('w'); sRowU = S('rowu'); sRowV = S('rowv'); sVs = S('vs'); sOff = S('off'); sCnt = S('cnt')
    sT = S('t'); sT2 = S('t2'); sT3 = S('t3'); s16 = S('k16'); sStar = S('star'); sRec = S('rec'); sWg = S('wg'); sSW = S('sw')
    sCu = S('cu', 2, 2); sCv = S('cv', 2, 2); sEx = S('exsave', 2, 2)
    sAu = S('au', 2, 2); sAv = S('av', 2, 2); sKu = S('ku', 2, 2); sKv = S('kv', 2, 2); sKeyU = S('keyu'); sKeyV = S('keyv'); sKey = S('key')
    sTag = S('tag'); sMz, sMc = sAu, sAv; sH = S('h', 8, 2); sTm = S('tm', 2, 2); sPC = S('pc', 2, 2); sM2 = S('m2', 2, 2); sPhi = S('phi'); sSgn = S('sgn')
    sKA = S('ka', 16, 4); sKB = S('kb', 8, 4); sKC = S('kc', 2, 2)
    vL = V('lane'); vN = V('n'); vQ = V('q')
    XU = V('XU', 8, 4); XV = V('XV', 8, 4); WU = V('WU', 8, 2); WV = V('WV', 8, 2)
    RB1 = V('RB1', 16, 4); RC = V('RC', 8, 2); RS = V('RS', 8, 2); RA2 = V('RA2', 4, 4)
    CB1 = V('CB1', 8, 4); CK = V('CK', 32, 2); CA2 = V('CA2', 16, 4)
    assert RC == RB1+16 and RS == RB1+24 and RA2 == RB1+32 and CK == CB1+8
    FA = V('FA', 16, 4); FD = V('FD', 16, 4)
    AD = V('addr', 16, 4)
    lRow, lTr, lRw, lCr, lH, _, lHf, _, lCa, lCb, lCc, lYd = range(AD, AD+12)
    lCo = AD + 12; lYm = AD + 15
    aU = V('aU'); aV = V('aV'); aP16 = V('aP16'); aS16 = V('aS16'); aHdr = V('aHdr'); aP8 = V('aP8')
    lYm4 = V('lYm4'); lG = V('lG')
    vRowH = V('rowh'); vSig = V('sig'); vSent = V('sent'); vCa = V('cosa'); vSa = V('sina'); vStamp = V('stamp')
    FX = V('FX', 8, 4); FO = V('FO', 8, 4)
    NT = 256 - ((V.n + 3)//4*4)
    T = V('T', NT, 4)
    def t(i):
        assert i < NT, i
        return T + i
    DU, DV = t(0), t(8)

    def stamp(name=''):
        if not g.stamps: return
        if opt.get('only') and name not in opt['only'].split('+'): return
        e(f'''s_memrealtime {sr(sTm,2)}
        s_waitcnt lgkmcnt(0)
        v_writelane_b32 {vr(vStamp)}, {sr(sTm)}, {g.nstamp}''')
        g.nstamp += 1; g.names.append(name)
    def finish_here(tag):
        if g.stop == tag: e('s_branch L_done')

    def sentinel(regs):
        if isinstance(regs, tuple) and regs[0] == 'tag':
            P = regs[1]
            e(f'''v_bitop3_b32 {vr(vSent)}, {vr(P+1)}, {vr(P+3)}, {sr(sTag)} bitop3:0x7e
            v_bitop3_b32 {vr(P+1)}, {vr(P+5)}, {vr(P+7)}, {sr(sTag)} bitop3:0x7e
            v_or_b32 {vr(vSent)}, {vr(vSent)}, {vr(P+1)}
            v_cmp_ne_u32 vcc, 0, {vr(vSent)}''')
            return
        regs = list(regs); tm = vSent
        if len(regs) == 1:
            e(f'v_cmp_eq_u32 vcc, -1, {vr(regs[0])}')
        else:
            if len(regs) >= 3:
                e(f'v_max3_u32 {vr(tm)}, {vr(regs[0])}, {vr(regs[1])}, {vr(regs[2])}'); rest = regs[3:]
            else:
                e(f'v_max_u32 {vr(tm)}, {vr(regs[0])}, {vr(regs[1])}'); rest = []
            while len(rest) >= 2:
                e(f'v_max3_u32 {vr(tm)}, {vr(tm)}, {vr(rest[0])}, {vr(rest[1])}'); rest = rest[2:]
            if rest: e(f'v_max_u32 {vr(tm)}, {vr(tm)}, {vr(rest[0])}')
            e(f'v_cmp_eq_u32 vcc, -1, {vr(tm)}')
    def poll(load, regs, backoff=2, preloaded=False):
        lp = g.lab('poll'); ok = g.lab('ok')
        if preloaded:
            sentinel(regs)
            e(f's_cbranch_vccnz {lp}\n{ok}:')
            g.tail.append((lp, ok, load, regs if isinstance(regs, tuple) else list(regs), backoff))
        else:
            e(load); e('s_waitcnt vmcnt(0)')
            sentinel(regs)
            e(f's_cbranch_vccnz {lp}\n{ok}:')
            g.tail.append((lp, ok, load, regs if isinstance(regs, tuple) else list(regs), backoff))
    g.tail = []
    g.nbar_mark = None
    def emit_tail():
        for lp, ok, load, regs, backoff in g.tail:
            l2 = lp + '_r'
            e(f'{lp}:\ns_mov_b32 {sr(sCnt)}, 0\n{l2}:\ns_sleep {backoff}')
            e(load)
            e(f'''s_add_u32 {sr(sCnt)}, {sr(sCnt)}, 1
            s_cmp_gt_u32 {sr(sCnt)}, {LIMIT}
            s_cbranch_scc1 L_done
            s_waitcnt vmcnt(0)''')
            sentinel(regs)
            e(f's_cbranch_vccnz {l2}\ns_branch {ok}')
    def red_index():
        if opt.get('oldred'):
            e(f's_sub_u32 {sr(sT3)}, {sr(sWg)}, 8')
        else:
            e(f'''s_sub_u32 {sr(sT3)}, {sr(sRho)}, 192
            s_bitcmp1_b32 {sr(sRho)}, 0
            s_cselect_b32 {sr(sT3)}, -1, {sr(sT3)}
            s_lshr_b32 {sr(sT3)}, {sr(sT3)}, 1''')
    def srd(dst, ptr, size):
        e(f'''s_mov_b32 {sr(dst)}, {sr(ptr)}
        s_mov_b32 {sr(dst+1)}, {sr(ptr+1)}
        s_mov_b32 {sr(dst+2)}, {size}
        s_mov_b32 {sr(dst+3)}, 0x00020000''')
    def ws_store(n, data, areg, region, extra=''):
        op = {1: 'buffer_store_dword', 2: 'buffer_store_dwordx2', 4: 'buffer_store_dwordx4'}[n]
        e(f's_mov_b32 {sr(sOff)}, {region}\n{op} {vr(data,n)}, {vr(areg)}, {sr(sWS,4)}, {sr(sOff)} offen sc1 {extra}')
    def ws_load_text(n, data, areg, soff, extra=''):
        op = {1: 'buffer_load_dword', 2: 'buffer_load_dwordx2', 4: 'buffer_load_dwordx4'}[n]
        return f'{op} {vr(data,n)}, {vr(areg)}, {sr(sWS,4)}, {soff} offen {extra} sc1'
    PZ = t(40)
    def poison_regs():
        for k in range(4): e(f'v_mov_b32 {vr(PZ+k)}, -1')

    e(f's_cmp_ge_u32 s2, 256\ns_cbranch_scc1 L_done')
    if stamps: e(f's_memrealtime {sr(sM2,2)}')
    e(f'''s_load_dwordx16 {sr(sKA,16)}, s[0:1], 0
    s_load_dwordx8 {sr(sKB,8)}, s[0:1], 64
    s_load_dwordx2 {sr(sKC,2)}, s[0:1], 96''')
    e(f'''s_getpc_b64 {sr(sPC,2)}
    L_pc:
    v_lshlrev_b32 {vr(t(0))}, 7, v0
    v_min_u32 {vr(t(0))}, L_code_end-L_pc-4, {vr(t(0))}
    global_load_dword {vr(vSig)}, {vr(t(0))}, {sr(sPC,2)}
    s_add_u32 {sr(sPC)}, {sr(sPC)}, L_tab-L_pc
    s_addc_u32 {sr(sPC+1)}, {sr(sPC+1)}, 0''')
    e(f'''s_mov_b32 {sr(sWg)}, s2
    s_and_b32 {sr(sT)}, s2, 7
    s_lshl_b32 {sr(sT)}, {sr(sT)}, 5
    s_lshr_b32 {sr(sRho)}, s2, 3
    s_or_b32 {sr(sRho)}, {sr(sRho)}, {sr(sT)}
    v_lshrrev_b32 {vr(t(1))}, 6, v0
    v_and_b32 {vr(vL)}, 63, v0
    v_readfirstlane_b32 {sr(sW)}, {vr(t(1))}
    v_lshlrev_b32 {vr(t(2))}, 4, {vr(vL)}
    v_sub_u32 {vr(t(3))}, 1008, {vr(t(2))}
    s_lshl_b32 {sr(sT)}, {sr(sRho)}, 2
    s_add_u32 {sr(sRowU)}, {sr(sT)}, {sr(sW)}
    s_sub_u32 {sr(sRowV)}, 2048, {sr(sRowU)}
    s_cmp_eq_u32 {sr(sRowU)}, 0
    s_cselect_b32 {sr(sRowV)}, 1024, {sr(sRowV)}
    s_lshl_b32 {sr(sT)}, {sr(sRowU)}, 10
    s_lshl_b32 {sr(sT2)}, {sr(sRowV)}, 10
    v_add_u32 {vr(aU)}, {sr(sT)}, {vr(t(2))}
    v_add_u32 {vr(aV)}, {sr(sT2)}, {vr(t(3))}
    v_lshlrev_b32 {vr(lG)}, 4, v0
    s_waitcnt lgkmcnt(0)''')
    kx, kwr, kwg = sKA + 0, sKA + 12, sKA + 14
    kwu, kwd, kout, kdbg = sKB + 0, sKB + 2, sKB + 4, sKB + 6
    URAW, VRAW = t(8), t(12)
    WURAW, WVRAW = FX, FX + 4
    e(f's_sub_u32 {sr(sPhi)}, {sr(sRho)}, 1\ns_cmp_eq_u32 {sr(sW)}, 4\ns_cbranch_scc1 L_loader')
    srd(sXS, kx, 2097152)
    e(f'''buffer_load_dwordx4 {vr(URAW,4)}, {vr(aU)}, {sr(sXS,4)}, 0 offen
    buffer_load_dwordx4 {vr(VRAW,4)}, {vr(aV)}, {sr(sXS,4)}, 0 offen''')
    srd(sWS, sKC, WS_SIZE)
    e(f'v_mov_b32 {vr(vCa)}, {NONCE}\nbuffer_load_dword {vr(vCa)}, {vr(vCa)}, {sr(sWS,4)}, 0 offen')
    nvm = [1]
    def tab_loads(dst, n, areg, off, stride):
        k = 0
        while k < n:
            base = off + k*stride
            per = {1024: 4, 4096: 1}[stride]
            e(f'v_add_u32 {vr(t(4))}, {base}, {vr(areg)}')
            for kk in range(min(per, n-k)):
                e(f'global_load_dwordx4 {vr(dst+4*(k+kk),4)}, {vr(t(4))}, {sr(sPC,2)} offset:{kk*stride}')
                nvm[0] += 1
            k += per
    tab_loads(AD, 4, lG, TOFF['addr'], 4096)
    tab_loads(RB1, 9, t(2), TOFF['row'], 1024)
    N_ROWTAB = nvm[0]
    if stamps:
        e(f'v_mov_b32 {vr(vStamp)}, 0\nv_writelane_b32 {vr(vStamp)}, {sr(sM2)}, 0'); g.nstamp = 1; g.names.append('start')
    poison_regs()
    e(f'''s_lshl_b32 {sr(sT)}, {sr(sRho)}, 12
    v_add_u32 {vr(aP16)}, {sr(sT)}, {vr(lG)}''')
    ws_store(4, PZ, aP16, YB0)
    nvm[0] += 1
    lkb = g.lab('nokb')
    e(f'''s_cmp_lg_u32 {sr(sRowU)}, 0
    s_cbranch_scc1 {lkb}
    v_lshlrev_b32 {vr(t(5))}, 4, {vr(vL)}''')
    ws_store(4, PZ, t(5), KB0)
    ws_store(4, PZ, t(5), KB1)
    e(f'{lkb}:')
    if opt.get('touchhb') == 'w':
        e(f's_lshl_b32 {sr(sT)}, {sr(sRho)}, 13\nv_add_u32 {vr(t(6))}, {sr(sT)}, {vr(lG)}')
        ws_store(4, PZ, t(6), HB0); ws_store(4, PZ, t(6), HB0 + 4096)
        nvm[0] += 2
    if opt.get('touchhb') == 'r':
        e(f's_lshl_b32 {sr(sT)}, {sr(sRho)}, 13\nv_lshlrev_b32 {vr(t(6))}, 5, v0\nv_add_u32 {vr(t(6))}, {sr(sT)}, {vr(t(6))}\ns_mov_b32 {sr(sOff)}, {HB0}')
        e(f'buffer_load_dword {vr(vSa)}, {vr(t(6))}, {sr(sWS,4)}, {sr(sOff)} offen')
        nvm[0] += 1
    N_POISON = nvm[0]
    N_ALL = nvm[0]
    srd(sOUT, kout, 2097152)
    e(f'''s_mov_b32 {sr(s16)}, {fbits(16.0)}
    v_and_b32 {vr(vN)}, 15, {vr(vL)}
    v_lshrrev_b32 {vr(vQ)}, 4, {vr(vL)}''')

    a0, a1, a2, a3 = t(20), t(21), t(22), t(23)
    def addr_misc():
        e(f'''s_lshl_b32 {sr(sT)}, {sr(sRho)}, 4
        v_lshlrev_b32 {vr(aHdr)}, 12, v0
        v_add_u32 {vr(aS16)}, {sr(sT)}, {vr(aHdr)}
        v_mov_b32 {vr(a0)}, {sr(sRowU)}
        v_mov_b32 {vr(a1)}, {sr(sRowV)}
        v_cmp_gt_u32 vcc, 32, {vr(vL)}
        s_lshl_b32 {sr(sT)}, {sr(sPhi)}, 11
        s_cmp_lt_u32 {sr(sPhi)}, {NF}
        s_cselect_b32 {sr(sT)}, {sr(sT)}, 0x7f000000
        v_cndmask_b32 {vr(vRowH)}, {vr(a1)}, {vr(a0)}, vcc
        v_lshlrev_b32 {vr(aP8)}, 3, v0
        v_add_u32 {vr(aP8)}, {sr(sT)}, {vr(aP8)}
        v_mov_b32 {vr(a0)}, 0
        v_lshlrev_b32 {vr(a1)}, 10, {vr(vL)}
        s_mov_b64 exec, 31
        ds_write_b16 {vr(a1)}, {vr(a0)} offset:{YIMG}
        s_mov_b64 exec, -1''')
    def addr_ym4():
        e(f'''s_cmp_eq_u32 {sr(sRho)}, 0
        s_cselect_b32 {sr(sT)}, 4096, 0
        v_add_u32 {vr(lYm4)}, {sr(sT)}, {vr(lYm)}''')

    b0, b1, b2 = t(24), t(25), t(26)
    vTau, vTlo = t(28), t(29)
    def tau_tlo():
        e(f'''s_lshl_b32 {sr(sT)}, {sr(sW)}, 3
        v_and_b32 {vr(vTau)}, 7, {vr(vN)}
        v_add_u32 {vr(vTau)}, {sr(sT)}, {vr(vTau)}
        v_sub_u32 {vr(a0)}, 64, {vr(vTau)}
        v_mov_b32 {vr(a1)}, 32
        v_cmp_eq_u32 {sr(sMz,2)}, 0, {vr(vTau)}
        v_cndmask_b32 {vr(a0)}, {vr(a0)}, {vr(a1)}, {sr(sMz,2)}
        v_cmp_le_u32 vcc, 8, {vr(vN)}
        v_cndmask_b32 {vr(vTlo)}, {vr(vTau)}, {vr(a0)}, vcc
        s_andn2_b64 {sr(sMc,2)}, vcc, {sr(sMz,2)}''')
    c0, c1 = t(30), t(31)
    def cos_seq(dst, base, step, n, amp=None):
        for j in range(0, n, 2):
            e(f'v_cos_f32 {vr(c0)}, {vr(base)}\nv_add_f32 {vr(base)}, {vr(base)}, {vr(step)}')
            e(f'v_cos_f32 {vr(c1)}, {vr(base)}')
            if j + 2 < n: e(f'v_add_f32 {vr(base)}, {vr(base)}, {vr(step)}')
            if amp is not None:
                e(f'v_mul_f32 {vr(c0)}, {amp}, {vr(c0)}\nv_mul_f32 {vr(c1)}, {amp}, {vr(c1)}')
            e(f'v_cvt_pk_f16_f32 {vr(dst + j//2)}, {vr(c0)}, {vr(c1)}')
    fQ, fN, fs, fb, fa, fb2 = t(32), t(33), t(34), t(35), t(36), t(37)
    def col_consts_a():
        tau_tlo()
        e(f'''v_cvt_f32_u32 {vr(fQ)}, {vr(vQ)}
        v_cmp_le_u32 vcc, 8, {vr(vN)}
        s_and_b64 vcc, vcc, {sr(sMz,2)}
        v_mov_b32 {vr(a1)}, 32
        v_cndmask_b32 {vr(a0)}, {vr(vTau)}, {vr(a1)}, vcc
        v_cvt_f32_u32 {vr(fs)}, {vr(a0)}
        v_mul_f32 {vr(fs)}, {fbits(1/64)}, {vr(fs)}
        v_mov_b32 {vr(fa)}, {fbits(0.25)}
        v_cndmask_b32 {vr(fa)}, 0, {vr(fa)}, {sr(sMc,2)}
        v_mul_f32 {vr(fb)}, {fbits(8.0)}, {vr(fQ)}
        v_fma_f32 {vr(fb)}, {vr(fb)}, {vr(fs)}, {vr(fa)}''')
        cos_seq(CB1, fb, fs, 8)
        e(f'''v_and_b32 {vr(a0)}, 1, {vr(a0)}
        v_mul_u32_u24 {vr(a0)}, 0x8000, {vr(a0)}
        v_lshl_or_b32 {vr(a0)}, {vr(a0)}, 16, {vr(a0)}''')
        for k in range(4): e(f'v_xor_b32 {vr(CB1+4+k)}, {vr(a0)}, {vr(CB1+k)}')
    def col_consts_b():
        e(f'v_cvt_f32_u32 {vr(fQ)}, {vr(vQ)}')
        e(f'''v_cvt_f32_u32 {vr(fs)}, {vr(vTlo)}
        v_mul_f32 {vr(fs)}, {fbits(1/2048)}, {vr(fs)}
        v_mul_f32 {vr(fb)}, {vr(fQ)}, {vr(fs)}
        v_fma_f32 {vr(fb)}, {vr(fb)}, 4.0, {vr(fa)}
        v_mov_b32 {vr(a1)}, {fbits(0.25)}
        v_cndmask_b32 {vr(a1)}, {vr(a1)}, 0, {sr(sMz,2)}''')
        e(f'v_add_f32 {vr(fb2)}, {fbits(-0.25)}, {vr(fb)}')
        e(f'v_mul_f32 {vr(a2)}, {fbits(12.0)}, {vr(fs)}')
        for Tt in range(2):
            for i in range(4):
                k = CK + 16*Tt
                e(f'''v_cos_f32 {vr(c0)}, {vr(fb)}
                v_cos_f32 {vr(c1)}, {vr(fb2)}
                v_add_f32 {vr(fb)}, {vr(fb)}, {vr(fs)}
                v_add_f32 {vr(fb2)}, {vr(fb2)}, {vr(fs)}
                v_mul_f32 {vr(k+i)}, {fbits(0.25)}, {vr(c0)}
                v_mul_f32 {vr(k+4+i)}, {vr(a1)}, {vr(c1)}
                v_mul_f32 {vr(k+8+i)}, {fbits(-0.25)}, {vr(c1)}
                v_mul_f32 {vr(k+12+i)}, {vr(a1)}, {vr(c0)}''')
            if Tt == 0: e(f'v_add_f32 {vr(fb)}, {vr(fb)}, {vr(a2)}\nv_add_f32 {vr(fb2)}, {vr(fb2)}, {vr(a2)}')
        e(f'''v_cvt_f32_u32 {vr(fs)}, {vr(vN)}
        v_mul_f32 {vr(fs)}, {fbits(1/32)}, {vr(fs)}
        v_mul_f32 {vr(fb2)}, {vr(fQ)}, {vr(fs)}
        v_mul_f32 {vr(fb2)}, 4.0, {vr(fb2)}''')
        for part, ph in ((0, -0.125), (1, -0.375)):
            e(f'v_add_f32 {vr(fb)}, {fbits(ph)}, {vr(fb2)}')
            cos_seq(CA2 + 2*part, fb, fs, 4, amp=fbits(math.sqrt(2)/8))
        e(f'''v_and_b32 {vr(a0)}, 1, {vr(vN)}
        v_mul_u32_u24 {vr(a0)}, 0x8000, {vr(a0)}
        v_lshl_or_b32 {vr(a0)}, {vr(a0)}, 16, {vr(a0)}''')
        for k in range(4):
            e(f'v_xor_b32 {vr(CA2+4+k)}, {vr(a0)}, {vr(CA2+k)}')
        for k in range(8):
            e(f'v_xor_b32 {vr(CA2+8+k)}, 0x80000000, {vr(CA2+k)}')

    def unpack_nat(dst, src):
        for k in range(4):
            e(f'v_lshlrev_b32 {vr(dst+2*k)}, 16, {vr(src+k)}\nv_and_b32 {vr(dst+2*k+1)}, 0xffff0000, {vr(src+k)}')
    def unpack_rev(dst, src, tmp):
        e(f'''v_lshlrev_b32 {vr(tmp)}, 16, {vr(src)}
        v_and_b32 {vr(dst+7)}, 0xffff0000, {vr(src)}
        v_lshlrev_b32 {vr(dst+6)}, 16, {vr(src+1)}
        v_and_b32 {vr(dst+5)}, 0xffff0000, {vr(src+1)}
        v_mov_b32_dpp {vr(dst)}, {vr(tmp)} wave_ror:1 {DPP}
        v_lshlrev_b32 {vr(dst+4)}, 16, {vr(src+2)}
        v_and_b32 {vr(dst+3)}, 0xffff0000, {vr(src+2)}
        v_lshlrev_b32 {vr(dst+2)}, 16, {vr(src+3)}
        v_and_b32 {vr(dst+1)}, 0xffff0000, {vr(src+3)}''')
    def half_reduce(regs, tmps, op='v_add_f32'):
        for sh in (8, 4, 2, 1):
            for r in regs: e(f'{op}_dpp {vr(r)}, {vr(r)}, {vr(r)} row_ror:{sh} {DPP}')
        for r, tm in zip(regs, tmps): e(f'v_mov_b32 {vr(tm)}, {vr(r)}')
        for r, tm in zip(regs, tmps): e(f'v_permlane16_swap_b32 {vr(r)}, {vr(tm)}')
        for r, tm in zip(regs, tmps): e(f'{op} {vr(r)}, {vr(r)}, {vr(tm)}')
    def wave_reduce(regs, tmps, op='v_add_f32'):
        half_reduce(regs, tmps, op)
        for r, tm in zip(regs, tmps): e(f'v_mov_b32 {vr(tm)}, {vr(r)}')
        for r, tm in zip(regs, tmps): e(f'v_permlane32_swap_b32 {vr(r)}, {vr(tm)}')
        for r, tm in zip(regs, tmps): e(f'{op} {vr(r)}, {vr(r)}, {vr(tm)}')
    hM, hVar, hRho, hB, hR = t(40), t(41), t(42), t(43), t(44)
    def partial(Dd, src, sC, w, o1, o2, o3, P, read=True):
        if read: e(f'v_readfirstlane_b32 {sr(sC)}, {vr(src)}')
        for k in range(4):
            e(f'v_pk_add_f32 {vr(Dd+2*k,2)}, {vr(src+2*k,2)}, {sr(sC,2)} op_sel_hi:[1,0] neg_lo:[0,1] neg_hi:[0,1]')
        e(f'''v_pk_add_f32 {vr(P,2)}, {vr(Dd,2)}, {vr(Dd+2,2)}
        v_pk_mul_f32 {vr(P+2,2)}, {vr(Dd,2)}, {vr(Dd,2)}
        v_pk_add_f32 {vr(P+4,2)}, {vr(Dd+4,2)}, {vr(Dd+6,2)}''')
        if w is not None: e(f'v_pk_mul_f32 {vr(P+6,2)}, {vr(Dd,2)}, {vr(w,2)}')
        for k in range(1, 4):
            e(f'v_pk_fma_f32 {vr(P+2,2)}, {vr(Dd+2*k,2)}, {vr(Dd+2*k,2)}, {vr(P+2,2)}')
            if w is not None: e(f'v_pk_fma_f32 {vr(P+6,2)}, {vr(Dd+2*k,2)}, {vr(w+2*k,2)}, {vr(P+6,2)}')
            if k == 1: e(f'v_pk_add_f32 {vr(P,2)}, {vr(P,2)}, {vr(P+4,2)}')
        e(f'v_add_f32 {vr(o1)}, {vr(P)}, {vr(P+1)}\nv_add_f32 {vr(o2)}, {vr(P+2)}, {vr(P+3)}')
        if w is not None: e(f'v_add_f32 {vr(o3)}, {vr(P+6)}, {vr(P+7)}')
    def moments(S1, S2):
        e(f'''v_mul_f32 {vr(hM)}, {fbits(1/512)}, {vr(S1)}
        v_mul_f32 {vr(S2)}, {fbits(1/512)}, {vr(S2)}
        v_fma_f32 {vr(hVar)}, -{vr(hM)}, {vr(hM)}, {vr(S2)}
        v_add_f32 {vr(S2)}, {fbits(1e-5)}, {vr(hVar)}
        v_rsq_f32 {vr(hRho)}, {vr(S2)}''')
    def stats2(with_r):
        a1_, a2_, a3_, b1_, b2_, b3_ = t(16), t(17), t(18), t(19), t(20), t(21)
        e(f'v_readfirstlane_b32 {sr(sCu)}, {vr(XU)}\nv_readfirstlane_b32 {sr(sCv)}, {vr(XV)}')
        partial(DV, XV, sCv, WV if with_r else None, b1_, b2_, b3_, t(32), read=False) if False else None
        partial(DU, XU, sCu, WU if with_r else None, a1_, a2_, a3_, t(24), read=False)
        partial(DV, XV, sCv, WV if with_r else None, b1_, b2_, b3_, t(32), read=False)
        pairs = [(a1_, b1_), (a2_, b2_)] + ([(a3_, b3_)] if with_r else [])
        for x, y in pairs: e(f'v_permlane32_swap_b32 {vr(x)}, {vr(y)}')
        for x, y in pairs: e(f'v_add_f32 {vr(x)}, {vr(x)}, {vr(y)}')
        half_reduce([x for x, _ in pairs], [y for _, y in pairs])
        moments(a1_, a2_)
        if with_r: e(f'v_fma_f32 {vr(a3_)}, -{vr(hM)}, {sr(sSW)}, {vr(a3_)}')
        e(f'v_mul_f32 {vr(hB)}, -{vr(hM)}, {vr(hRho)}')
        if with_r: e(f'v_mul_f32 {vr(hR)}, {vr(hRho)}, {vr(a3_)}')
    def stats1(src, Dd, dst):
        partial(Dd, src, sCu, None, t(16), t(17), None, t(24))
        wave_reduce([t(16), t(17)], [t(18), t(19)])
        moments(t(16), t(17))
        e(f'''v_readfirstlane_b32 {sr(sKu)}, {vr(hRho)}
        v_mul_f32 {vr(hB)}, -{vr(hM)}, {vr(hRho)}
        v_readfirstlane_b32 {sr(sKu+1)}, {vr(hB)}''')
        for k in range(4): e(f'v_pk_fma_f32 {vr(dst+2*k,2)}, {vr(Dd+2*k,2)}, {sr(sKu,2)}, {sr(sKu,2)} {PKB}')
    def residual_coeffs():
        e(f'''v_mov_b32 {vr(t(22))}, {sr(sCu)}
        v_mov_b32 {vr(t(23))}, {sr(sCv)}
        v_cmp_gt_u32 vcc, 32, {vr(vL)}
        v_add_f32 {vr(t(21))}, 1.0, {vr(hRho)}
        v_cndmask_b32 {vr(t(22))}, {vr(t(23))}, {vr(t(22))}, vcc
        v_add_f32 {vr(t(22))}, {vr(t(22))}, {vr(hB)}
        v_readlane_b32 {sr(sAu)}, {vr(t(21))}, 0
        v_readlane_b32 {sr(sAv)}, {vr(t(21))}, 32
        v_readlane_b32 {sr(sAu+1)}, {vr(t(22))}, 0
        v_readlane_b32 {sr(sAv+1)}, {vr(t(22))}, 32''')
    def residual_update(dU, dV):
        for k in range(4): e(f'v_pk_fma_f32 {vr(dU+2*k,2)}, {vr(DU+2*k,2)}, {sr(sAu,2)}, {sr(sAu,2)} {PKB}')
        for k in range(4): e(f'v_pk_fma_f32 {vr(dV+2*k,2)}, {vr(DV+2*k,2)}, {sr(sAv,2)}, {sr(sAv,2)} {PKB}')
    def norm_coeffs(scale, bias):
        e(f'''v_readlane_b32 {sr(sKu)}, {vr(scale)}, 0
        v_readlane_b32 {sr(sKu+1)}, {vr(bias)}, 0
        v_readlane_b32 {sr(sKv)}, {vr(scale)}, 32
        v_readlane_b32 {sr(sKv+1)}, {vr(bias)}, 32''')
    GG = t(16)
    def make_g():
        for k in range(4): e(f'v_pk_fma_f32 {vr(GG+2*k,2)}, {vr(DU+2*k,2)}, {sr(sKu,2)}, {sr(sKu,2)} {PKB}')
        for k in range(4): e(f'v_pk_fma_f32 {vr(GG+2*k,2)}, {vr(DV+2*k,2)}, {sr(sKv,2)}, {vr(GG+2*k,2)} op_sel_hi:[1,0,1]')
    def write_n(src, tmp):
        for k in range(4): e(f'v_cvt_pk_f16_f32 {vr(tmp+k)}, {vr(src+2*k)}, {vr(src+2*k+1)}')
        e(f'ds_write_b128 {vr(lRow)}, {vr(tmp,4)} offset:{GIMG}')
    def write_r(src, tmp):
        e(f'''v_mov_b32_dpp {vr(tmp+4)}, {vr(src)} wave_rol:1 {DPP}
        v_cvt_pk_f16_f32 {vr(tmp+1)}, {vr(src+6)}, {vr(src+5)}
        v_cvt_pk_f16_f32 {vr(tmp+2)}, {vr(src+4)}, {vr(src+3)}
        v_cvt_pk_f16_f32 {vr(tmp+3)}, {vr(src+2)}, {vr(src+1)}
        v_cvt_pk_f16_f32 {vr(tmp)}, {vr(tmp+4)}, {vr(src+7)}
        ds_write_b128 {vr(lRw)}, {vr(tmp,4)}''')
    def core(A, O):
        Dr = [t(0), t(8)]; Di = [t(4), t(12)]
        for Tt in range(2):
            e(f'v_mfma_f32_16x16x32_f16 {vr(Dr[Tt],4)}, {vr(A,4)}, {vr(RB1+(2*Tt)*4,4)}, 0')
            e(f'v_mfma_f32_16x16x32_f16 {vr(Di[Tt],4)}, {vr(A,4)}, {vr(RB1+(2*Tt+1)*4,4)}, 0')
        Bo = [t(16), t(20)]; br, bi = t(24), t(28)
        for Tt in range(2):
            for h in range(2):
                c = vr(RC+4*Tt+2*h, 2); s_ = vr(RS+4*Tt+2*h, 2)
                dr = vr(Dr[Tt]+2*h, 2); di = vr(Di[Tt]+2*h, 2)
                e(f'''v_pk_mul_f32 {vr(br+2*h,2)}, {dr}, {c}
                v_pk_mul_f32 {vr(bi+2*h,2)}, {di}, {c}
                v_pk_fma_f32 {vr(br+2*h,2)}, {di}, {s_}, {vr(br+2*h,2)}
                v_pk_fma_f32 {vr(bi+2*h,2)}, {dr}, {s_}, {vr(bi+2*h,2)} neg_lo:[1,0,0] neg_hi:[1,0,0]''')
            e(f'''v_cvt_pk_f16_f32 {vr(Bo[Tt])}, {vr(br)}, {vr(br+1)}
            v_cvt_pk_f16_f32 {vr(Bo[Tt]+1)}, {vr(br+2)}, {vr(br+3)}
            v_cvt_pk_f16_f32 {vr(Bo[Tt]+2)}, {vr(bi)}, {vr(bi+1)}
            v_cvt_pk_f16_f32 {vr(Bo[Tt]+3)}, {vr(bi+2)}, {vr(bi+3)}''')
            e(f'v_mfma_f32_16x16x32_f16 {vr(O+4*Tt,4)}, {vr(RA2,4)}, {vr(Bo[Tt],4)}, 0')

    CA, CO = t(32), t(36)
    def transform(dst_off, tagged=False, pre_core=None, post_scatter=None, pre_store=None):
        write_n(GG, t(24))
        e(f"""ds_read_b64_tr_b16 {vr(CA,2)}, {vr(lTr)} offset:{GIMG}
        ds_read_b64_tr_b16 {vr(CA+2,2)}, {vr(lTr)} offset:{GIMG+128}""")
        if pre_core: pre_core()
        e('s_waitcnt lgkmcnt(0)')
        core(CA, CO)
        for k in range(4): e(f'v_cvt_pk_f16_f32 {vr(t(44)+k)}, {vr(CO+2*k)}, {vr(CO+2*k+1)}')
        for Tt in range(2):
            for i in range(4):
                op = 'ds_write_b16' if i % 2 == 0 else 'ds_write_b16_d16_hi'
                e(f'{op} {vr(lH+Tt)}, {vr(t(44) + 2*Tt + i//2)} offset:{512*i}')
        e(f'ds_write_b16_d16_hi {vr(lHf)}, {vr(t(45))}\nds_write_b16_d16_hi {vr(lHf+1)}, {vr(t(45))}')
        if post_scatter: post_scatter()
        if tagged:
            e(f"""v_lshlrev_b32 {vr(t(8))}, 3, v0
            s_lshl_b32 {sr(sT)}, {sr(sRho)}, 13
            v_add_u32 {vr(t(9))}, {sr(sT)}, {vr(lG)}""")
            for k in (1, 3, 5, 7): e(f'v_mov_b32 {vr(t(k))}, {sr(sTag)}')
            if pre_store: pre_store()
            e(f"""s_waitcnt lgkmcnt(0)
            s_barrier
            ds_read_b32 {vr(t(0))}, {vr(t(8))} offset:{HIMG}
            ds_read_b32 {vr(t(2))}, {vr(t(8))} offset:{HIMG+4}
            ds_read_b32 {vr(t(4))}, {vr(t(8))} offset:{HIMG+2048}
            ds_read_b32 {vr(t(6))}, {vr(t(8))} offset:{HIMG+2052}
            s_mov_b32 {sr(sOff)}, {dst_off}
            s_mov_b32 {sr(sT)}, {dst_off+4096}
            s_waitcnt lgkmcnt(2)
            buffer_store_dwordx4 {vr(t(0),4)}, {vr(t(9))}, {sr(sWS,4)}, {sr(sOff)} offen sc1
            s_waitcnt lgkmcnt(0)
            buffer_store_dwordx4 {vr(t(4),4)}, {vr(t(9))}, {sr(sWS,4)}, {sr(sT)} offen sc1""")
        else:
            if pre_store: pre_store()
            e(f"""s_waitcnt lgkmcnt(0)
            s_barrier
            ds_read_b128 {vr(t(0),4)}, {vr(lG)} offset:{HIMG}
            s_mov_b32 {sr(sOff)}, {dst_off}
            s_waitcnt lgkmcnt(0)
            buffer_store_dwordx4 {vr(t(0),4)}, {vr(aP16)}, {sr(sWS,4)}, {sr(sOff)} offen sc1""")

    def affine_from_x(sx1x0_u, sx1x0_v, sKu_, sKv_, outU, outV):
        for (xx, cc, kk, oo) in ((sx1x0_u, sCu, sKu_, outU), (sx1x0_v, sCv, sKv_, outV)):
            if xx is None:
                e(f"""v_mov_b32 {vr(t(44))}, {sr(kk)}
                v_mov_b32 {vr(t(45))}, {sr(kk+1)}
                v_fma_f32 {vr(t(45))}, -{vr(t(44))}, {sr(cc)}, {vr(t(45))}""")
            else:
                e(f"""v_rcp_f32 {vr(t(44))}, {sr(xx)}
                v_mov_b32 {vr(t(45))}, {sr(kk+1)}
                v_mul_f32 {vr(t(44))}, {sr(kk)}, {vr(t(44))}
                v_fma_f32 {vr(t(45))}, -{vr(t(44))}, {sr(xx+1)}, {vr(t(45))}""")
            e(f'v_readfirstlane_b32 {sr(oo)}, {vr(t(44))}\nv_readfirstlane_b32 {sr(oo+1)}, {vr(t(45))}')

    def special_k(dst_off, after_residual):
        ln = g.lab('nok')
        e(f's_cmp_lg_u32 {sr(sRowU)}, 0\ns_cbranch_scc1 {ln}')
        affine_from_x(sAu if after_residual else None, sAv if after_residual else None, sKu, sKv, sH, sH+2)
        ZU, ZV = t(0), t(8)
        for k in range(4): e(f'v_pk_fma_f32 {vr(ZU+2*k,2)}, {vr(XU+2*k,2)}, {sr(sH,2)}, {sr(sH,2)} {PKB}')
        for k in range(4): e(f'v_pk_fma_f32 {vr(ZV+2*k,2)}, {vr(XV+2*k,2)}, {sr(sH+2,2)}, {sr(sH+2,2)} {PKB}')
        write_r(ZU, t(16)); write_n(ZV, t(24))
        A, B = CA, t(40)
        e(f"""ds_read_b64_tr_b16 {vr(A,2)}, {vr(lTr)} offset:{RIMG}
        ds_read_b64_tr_b16 {vr(B,2)}, {vr(lTr)} offset:{GIMG}
        ds_read_b64_tr_b16 {vr(A+2,2)}, {vr(lTr)} offset:{RIMG+128}
        ds_read_b64_tr_b16 {vr(B+2,2)}, {vr(lTr)} offset:{GIMG+128}
        s_waitcnt lgkmcnt(0)""")
        for k in range(4): e(f'v_pk_add_f16 {vr(A+k)}, {vr(A+k)}, {vr(B+k)} neg_lo:[0,1] neg_hi:[0,1]')
        core(A, CO)
        for k in range(4): e(f'v_pk_mul_f32 {vr(CO+2*k,2)}, {vr(CO+2*k,2)}, {sr(sT2 if False else sM2,2)} op_sel_hi:[1,0]' if False else f'v_mul_f32 {vr(CO+2*k)}, {fbits(1/16)}, {vr(CO+2*k)}\nv_mul_f32 {vr(CO+2*k+1)}, {fbits(1/16)}, {vr(CO+2*k+1)}')
        for k in range(4): e(f'v_cvt_pk_f16_f32 {vr(t(44)+k)}, {vr(CO+2*k)}, {vr(CO+2*k+1)}')
        e(f"""v_lshl_add_u32 {vr(t(0))}, {vr(vQ)}, 7, {vr(vN)}
        v_lshlrev_b32 {vr(t(0))}, 1, {vr(t(0))}
        v_sub_u32 {vr(t(1))}, {1024-32-192}, {vr(t(0))}
        v_mov_b32 {vr(t(2))}, 512
        s_mov_b32 exec_lo, -1
        s_mov_b32 exec_hi, 0""")
        for Tt in range(2):
            for i in range(4):
                op = 'ds_write_b16' if i % 2 == 0 else 'ds_write_b16_d16_hi'
                e(f'{op} {vr(t(0))}, {vr(t(44)+2*Tt+i//2)} offset:{KIMG + 32*Tt + 64*i}')
                e(f'{op} {vr(t(1))}, {vr(t(44)+2*Tt+i//2)} offset:{KIMG + 32*(1-Tt) + 64*(3-i)}')
        e(f"""s_mov_b32 exec_lo, 0
        s_mov_b32 exec_hi, 0x00010000
        ds_write_b16_d16_hi {vr(t(2))}, {vr(t(45))} offset:{KIMG}
        s_mov_b64 exec, -1
        v_lshlrev_b32 {vr(t(3))}, 4, {vr(vL)}
        s_waitcnt lgkmcnt(0)
        ds_read_b128 {vr(t(4),4)}, {vr(t(3))} offset:{KIMG}
        s_mov_b32 {sr(sOff)}, {dst_off}
        s_waitcnt lgkmcnt(0)
        buffer_store_dwordx4 {vr(t(4),4)}, {vr(t(3))}, {sr(sWS,4)}, {sr(sOff)} offen sc1
        {ln}:""")

    PC = t(40)
    def column_load(src_off):
        e(f's_mov_b32 {sr(sOff)}, {src_off}')
        e(ws_load_text(4, PC, aS16, sr(sOff)))
    def column(src_off, dst_off, preloaded, tagged=False):
        P = PC
        e(f's_mov_b32 {sr(sOff)}, {src_off}')
        if tagged:
            P = t(0); A2 = t(44); AD1 = t(8)
            e(f'''v_lshrrev_b32 {vr(AD1)}, 1, v0
            v_lshlrev_b32 {vr(AD1)}, 13, {vr(AD1)}
            v_and_b32 {vr(t(9))}, 1, v0
            v_lshl_add_u32 {vr(AD1)}, {vr(t(9))}, 4, {vr(AD1)}
            s_lshl_b32 {sr(sT)}, {sr(sRho)}, 5
            v_add_u32 {vr(AD1)}, {sr(sT)}, {vr(AD1)}
            s_add_u32 {sr(sT3)}, {sr(sOff)}, {128*8192}''')
            ld = ws_load_text(4, P, AD1, sr(sOff)) + '\n' + ws_load_text(4, P+4, AD1, sr(sT3))
            if opt.get('splitc'):
                e(ld); col_consts_b(); e('s_waitcnt vmcnt(0)')
                poll(ld, ('tag', P), preloaded=True)
            else:
                poll(ld, ('tag', P))
            stamp('col data')
            for k in range(2):
                e(f'''ds_write_b16 {vr(A2+2*k)}, {vr(P+4*k)}
                ds_write_b16_d16_hi {vr(A2+2*k+1)}, {vr(P+4*k)} offset:16
                ds_write_b16 {vr(A2+2*k+1)}, {vr(P+4*k+2)} offset:32
                ds_write_b16_d16_hi {vr(A2+2*k+1)}, {vr(P+4*k+2)} offset:48''')
            e('s_waitcnt lgkmcnt(0)\ns_barrier')
        else:
            poll(ws_load_text(4, P, aS16, sr(sOff)), range(P, P+4), preloaded=preloaded)
            d = [P, P+1, P+2, P+3]
            stamp('col data')
            e(f"""ds_write_b16 {vr(lCa)}, {vr(d[0])}
            ds_write_b16_d16_hi {vr(lCa)}, {vr(d[0])} offset:16
            ds_write_b16 {vr(lCa)}, {vr(d[1])} offset:32
            ds_write_b16_d16_hi {vr(lCa)}, {vr(d[1])} offset:48
            ds_write_b16 {vr(lCb)}, {vr(d[2])}
            ds_write_b16_d16_hi {vr(lCc)}, {vr(d[2])} offset:16
            ds_write_b16 {vr(lCc)}, {vr(d[3])} offset:32
            ds_write_b16_d16_hi {vr(lCc)}, {vr(d[3])} offset:48
            s_waitcnt lgkmcnt(0)
            s_barrier""")
        A = t(0)
        for k in range(4): e(f'ds_read_b128 {vr(A+4*k,4)}, {vr(lCr)} offset:{1024*k}')
        D1 = [t(16), t(20)]
        e(f"""s_waitcnt lgkmcnt(3)
        v_mfma_f32_16x16x32_f16 {vr(D1[0],4)}, {vr(A,4)}, {vr(CB1,4)}, 0
        s_waitcnt lgkmcnt(2)
        v_mfma_f32_16x16x32_f16 {vr(D1[0],4)}, {vr(A+4,4)}, {vr(CB1+4,4)}, {vr(D1[0],4)}
        s_waitcnt lgkmcnt(1)
        v_mfma_f32_16x16x32_f16 {vr(D1[1],4)}, {vr(A+8,4)}, {vr(CB1,4)}, 0
        s_waitcnt lgkmcnt(0)
        v_mfma_f32_16x16x32_f16 {vr(D1[1],4)}, {vr(A+12,4)}, {vr(CB1+4,4)}, {vr(D1[1],4)}""")
        Bb = t(24); br, bi = t(28), t(32); Bo = [t(0), t(4)]
        O = [t(8), t(12)]
        for Tt in range(2):
            k = CK + 16*Tt
            for i in range(4): e(f'v_mov_b32_dpp {vr(Bb+i)}, {vr(D1[Tt]+i)} row_ror:8 {DPP}')
            for h in range(2):
                e(f"""v_pk_mul_f32 {vr(br+2*h,2)}, {vr(D1[Tt]+2*h,2)}, {vr(k+2*h,2)}
                v_pk_mul_f32 {vr(bi+2*h,2)}, {vr(D1[Tt]+2*h,2)}, {vr(k+8+2*h,2)}""")
            for h in range(2):
                e(f"""v_pk_fma_f32 {vr(br+2*h,2)}, {vr(Bb+2*h,2)}, {vr(k+4+2*h,2)}, {vr(br+2*h,2)}
                v_pk_fma_f32 {vr(bi+2*h,2)}, {vr(Bb+2*h,2)}, {vr(k+12+2*h,2)}, {vr(bi+2*h,2)}""")
            e(f"""v_cvt_pk_f16_f32 {vr(Bo[Tt])}, {vr(br)}, {vr(br+1)}
            v_cvt_pk_f16_f32 {vr(Bo[Tt]+1)}, {vr(br+2)}, {vr(br+3)}
            v_cvt_pk_f16_f32 {vr(Bo[Tt]+2)}, {vr(bi)}, {vr(bi+1)}
            v_cvt_pk_f16_f32 {vr(Bo[Tt]+3)}, {vr(bi+2)}, {vr(bi+3)}""")
            e(f"""v_mfma_f32_16x16x32_f16 {vr(O[0],4)}, {vr(CA2+4*Tt,4)}, {vr(Bo[Tt],4)}, {"0" if Tt == 0 else vr(O[0],4)}
            v_mfma_f32_16x16x32_f16 {vr(O[1],4)}, {vr(CA2+8+4*Tt,4)}, {vr(Bo[Tt],4)}, {"0" if Tt == 0 else vr(O[1],4)}""")
        e(f"""        v_cvt_pk_f16_f32 {vr(t(16))}, {vr(O[0])}, {vr(O[0]+1)}
        v_cvt_pk_f16_f32 {vr(t(17))}, {vr(O[0]+2)}, {vr(O[0]+3)}
        ds_write_b16 {vr(lCo)}, {vr(t(16))}
        ds_write_b16_d16_hi {vr(lCo)}, {vr(t(16))} offset:256
        v_cvt_pk_f16_f32 {vr(t(18))}, {vr(O[1])}, {vr(O[1]+1)}
        v_cvt_pk_f16_f32 {vr(t(19))}, {vr(O[1]+2)}, {vr(O[1]+3)}
        ds_write_b16 {vr(lCo)}, {vr(t(17))} offset:512
        ds_write_b16_d16_hi {vr(lCo)}, {vr(t(17))} offset:768
        ds_write_b16 {vr(lCo+2)}, {vr(t(18))}
        ds_write_b16_d16_hi {vr(lCo+1)}, {vr(t(18))} offset:512
        ds_write_b16 {vr(lCo+1)}, {vr(t(19))} offset:256
        ds_write_b16_d16_hi {vr(lCo+1)}, {vr(t(19))}
        s_waitcnt lgkmcnt(0)
        s_barrier
        ds_read_b128 {vr(t(0),4)}, {vr(lG)} offset:{COUT}
        s_mov_b32 {sr(sOff)}, {dst_off}
        s_waitcnt lgkmcnt(0)
        buffer_store_dwordx4 {vr(t(0),4)}, {vr(aP16)}, {sr(sWS,4)}, {sr(sOff)} offen sc1""")

    YH, YV, KT = t(4), t(8), t(12)
    def row_input(src_off, kb, with_weights=False):
        P = t(0)
        lk = g.lab('nok')
        e(f's_bitcmp0_b32 {sr(sW)}, 0\ns_cbranch_scc1 {lk}')
        e(f'v_lshlrev_b32 {vr(t(16))}, 4, {vr(vL)}\ns_mov_b32 {sr(sT3)}, {kb}')
        e(ws_load_text(4, KT, t(16), sr(sT3)))
        e(f'{lk}:')
        e(f's_mov_b32 {sr(sOff)}, {src_off}')
        ld = ws_load_text(4, P, aS16, sr(sOff))
        if with_weights:
            lw = g.lab('now'); lw2 = g.lab('now2')
            e(ld)
            e(f's_cmp_ge_u32 {sr(sPhi)}, {NF}\ns_cbranch_scc1 {lw}')
            e(f's_mov_b32 {sr(sCnt)}, {sr(sT3)}')
            weight_loads()
            e(f's_mov_b32 {sr(sT3)}, {sr(sCnt)}\ns_mov_b32 {sr(sOff)}, {src_off}\ns_waitcnt vmcnt(6)\ns_branch {lw2}\n{lw}:\ns_waitcnt vmcnt(0)\n{lw2}:')
            poll(ld, range(P, P+4), preloaded=True)
        else:
            poll(ld, range(P, P+4))
        stamp('row data')
        def wr(slot, areg, off):
            op = 'ds_write_b16' if slot % 2 == 0 else 'ds_write_b16_d16_hi'
            e(f'{op} {vr(areg)}, {vr(P + slot//2)} offset:{YIMG + off}')
        for j in range(4): wr(j, lYd, j*1024)
        wr(4, lYm4, 0); wr(5, lYm, 3*1024); wr(6, lYm, 2*1024); wr(7, lYm, 1024)
        l0 = g.lab('not0')
        e(f's_cmp_lg_u32 {sr(sRho)}, 0\ns_cbranch_scc1 {l0}')
        wr(0, lYm, 0); wr(4, lYd, 4096)
        e(f"""{l0}:
        s_waitcnt lgkmcnt(0)
        s_barrier
        ds_read_b128 {vr(YH,4)}, {vr(lRow)} offset:{YIMG}""")
        lv = g.lab('yv')
        e(f"""s_cmp_lg_u32 {sr(sRowU)}, 0
        s_cbranch_scc1 {lv}
        ds_read_b128 {vr(YV,4)}, {vr(lRow)} offset:{YIMG+4096}
        {lv}:""")
        lk = g.lab('nok2')
        e(f's_bitcmp0_b32 {sr(sW)}, 0\ns_cbranch_scc1 {lk}')
        poll(ws_load_text(4, KT, t(16), sr(sT3)), range(KT, KT+4), preloaded=True)
        e('s_waitcnt lgkmcnt(0)')
        for k in range(4): e(f'v_pk_add_f16 {vr(YH+k)}, {vr(YH+k)}, {vr(KT+k)}')
        e(f'{lk}:\ns_waitcnt lgkmcnt(0)')
    def add_y(yu, yv):
        for k in range(4):
            e(f"""v_fma_mix_f32 {vr(XU+2*k)}, {vr(yu+k)}, {sr(s16)}, {vr(XU+2*k)} op_sel:[0,0,0] op_sel_hi:[1,0,0]
            v_fma_mix_f32 {vr(XU+2*k+1)}, {vr(yu+k)}, {sr(s16)}, {vr(XU+2*k+1)} op_sel:[1,0,0] op_sel_hi:[1,0,0]""")
        for k in range(4):
            e(f"""v_fma_mix_f32 {vr(XV+2*k)}, {vr(yv+k)}, {sr(s16)}, {vr(XV+2*k)} op_sel:[0,0,0] op_sel_hi:[1,0,0]
            v_fma_mix_f32 {vr(XV+2*k+1)}, {vr(yv+k)}, {sr(s16)}, {vr(XV+2*k+1)} op_sel:[1,0,0] op_sel_hi:[1,0,0]""")
    def add_y_pair():
        ls = g.lab('ysp'); lj = g.lab('yj')
        e(f's_cmp_eq_u32 {sr(sRowU)}, 0\ns_cbranch_scc1 {ls}')
        add_y(YH, YH)
        e(f'{lj}:')
        g.late.append((ls, lj))
    g.late = []

    def make_key():
        e(f"""v_ashrrev_i32 {vr(t(22))}, 31, {vr(hR)}
        v_or_b32 {vr(t(22))}, 0x80000000, {vr(t(22))}
        v_xor_b32 {vr(t(22))}, {vr(hR)}, {vr(t(22))}
        v_and_b32 {vr(t(22))}, 0xfffff800, {vr(t(22))}
        v_or_b32 {vr(t(22))}, {vr(vRowH)}, {vr(t(22))}
        v_readlane_b32 {sr(sKeyU)}, {vr(t(22))}, 0
        v_readlane_b32 {sr(sKeyV)}, {vr(t(22))}, 32
        s_lshl_b32 {sr(sT)}, {sr(sW)}, 2
        v_mov_b32 {vr(t(23))}, {sr(sT)}
        s_max_u32 {sr(sKey)}, {sr(sKeyU)}, {sr(sKeyV)}
        v_mov_b32 {vr(t(22))}, {sr(sKey)}
        ds_write_b32 {vr(t(23))}, {vr(t(22))} offset:{AM}""")
    def wg_best_read(tmp):
        e(f'v_mov_b32 {vr(tmp+4)}, 0\nds_read_b128 {vr(tmp,4)}, {vr(tmp+4)} offset:{AM}')
    def wg_best_header(cand, tmp):
        ln = g.lab('nohdr')
        e(f"""v_max3_u32 {vr(tmp)}, {vr(tmp)}, {vr(tmp+1)}, {vr(tmp+2)}
        v_max_u32 {vr(tmp)}, {vr(tmp)}, {vr(tmp+3)}
        v_readfirstlane_b32 {sr(sT)}, {vr(tmp)}
        s_cmp_eq_u32 {sr(sT)}, {sr(sKey)}
        s_cselect_b32 {sr(sSgn)}, 1, 0
        s_cbranch_scc0 {ln}
        s_lshl_b32 {sr(sT)}, {sr(sRho)}, 12
        s_add_u32 {sr(sOff)}, {sr(sT)}, {cand}
        v_mov_b32 {vr(tmp+1)}, {sr(sKey)}
        s_mov_b64 exec, 1
        buffer_store_dword {vr(tmp+1)}, {vr(tmp+4)}, {sr(sWS,4)}, {sr(sOff)} offen sc1
        s_mov_b64 exec, -1
        {ln}:""")
    def publish_rows(cand):
        ln = g.lab('nopub'); lv = g.lab('pubv'); lj = g.lab('pubj')
        e(f's_cmp_eq_u32 {sr(sSgn)}, 0\ns_cbranch_scc1 {ln}')
        e(f"""s_lshl_b32 {sr(sT)}, {sr(sRho)}, 12
        s_add_u32 {sr(sOff)}, {sr(sT)}, {cand}
        s_cmp_gt_u32 {sr(sKeyV)}, {sr(sKeyU)}
        s_cbranch_scc1 {lv}""")
        for (lab_, X_, A_, C_) in ((None, XU, sAu, sCu), (lv, XV, sAv, sCv)):
            if lab_: e(f'{lab_}:')
            e(f"""v_rcp_f32 {vr(t(0))}, {sr(A_)}
            v_mov_b32 {vr(t(1))}, {sr(A_+1)}
            v_mov_b32 {vr(t(2))}, {sr(A_)}
            v_add_f32 {vr(t(2))}, -1.0, {vr(t(2))}
            v_subrev_f32 {vr(t(3))}, {sr(C_)}, {vr(t(1))}
            v_mul_f32 {vr(t(4))}, {vr(t(2))}, {vr(t(0))}
            v_fma_f32 {vr(t(6))}, -{vr(t(4))}, {vr(t(1))}, {vr(t(3))}""")
            Z = t(8)
            for k in range(4): e(f'v_pk_fma_f32 {vr(Z+2*k,2)}, {vr(X_+2*k,2)}, {vr(t(4),2)}, {vr(t(6),2)} op_sel_hi:[1,0,0]')
            if X_ == XU:
                for k in range(4): e(f'v_cvt_pk_bf16_f32 {vr(t(16)+k)}, {vr(Z+2*k)}, {vr(Z+2*k+1)}')
                e(f"""v_lshlrev_b32 {vr(t(1))}, 4, {vr(vL)}
                v_lshlrev_b32 {vr(t(2))}, 5, {vr(vL)}
                buffer_store_dwordx4 {vr(t(16),4)}, {vr(t(1))}, {sr(sWS,4)}, {sr(sOff)} offen offset:128 sc1
                buffer_store_dwordx4 {vr(XU,4)}, {vr(t(2))}, {sr(sWS,4)}, {sr(sOff)} offen offset:1152 sc1
                buffer_store_dwordx4 {vr(XU+4,4)}, {vr(t(2))}, {sr(sWS,4)}, {sr(sOff)} offen offset:1168 sc1
                s_branch {lj}""")
            else:
                e(f"""v_mov_b32_dpp {vr(t(20))}, {vr(Z)} wave_rol:1 {DPP}
                v_mov_b32_dpp {vr(t(24))}, {vr(XV)} wave_rol:1 {DPP}
                v_cvt_pk_bf16_f32 {vr(t(17))}, {vr(Z+6)}, {vr(Z+5)}
                v_cvt_pk_bf16_f32 {vr(t(18))}, {vr(Z+4)}, {vr(Z+3)}
                v_cvt_pk_bf16_f32 {vr(t(19))}, {vr(Z+2)}, {vr(Z+1)}
                v_cvt_pk_bf16_f32 {vr(t(16))}, {vr(t(20))}, {vr(Z+7)}""")
                for k in range(1, 8): e(f'v_mov_b32 {vr(t(24)+k)}, {vr(XV+8-k)}')
                e(f"""v_lshlrev_b32 {vr(t(1))}, 4, {vr(vL)}
                v_sub_u32 {vr(t(1))}, 1008, {vr(t(1))}
                v_lshlrev_b32 {vr(t(2))}, 1, {vr(t(1))}
                buffer_store_dwordx4 {vr(t(16),4)}, {vr(t(1))}, {sr(sWS,4)}, {sr(sOff)} offen offset:128 sc1
                buffer_store_dwordx4 {vr(t(24),4)}, {vr(t(2))}, {sr(sWS,4)}, {sr(sOff)} offen offset:1152 sc1
                buffer_store_dwordx4 {vr(t(28),4)}, {vr(t(2))}, {sr(sWS,4)}, {sr(sOff)} offen offset:1168 sc1""")
        e(f'{lj}:\n{ln}:')

    def header_load(cand, K):
        e(f's_mov_b32 {sr(sOff)}, {cand}')
        e(ws_load_text(1, K, aHdr, sr(sOff)))
    def argmax(cand, K, after_check=None):
        e(f's_mov_b32 {sr(sOff)}, {cand}')
        poll(ws_load_text(1, K, aHdr, sr(sOff)), [K], preloaded=True, backoff=4)
        if after_check: after_check()
        wave_reduce([K], [t(1)], op='v_max_u32')
        e(f"""s_lshl_b32 {sr(sT)}, {sr(sW)}, 2
        v_mov_b32 {vr(t(1))}, {sr(sT)}
        ds_write_b32 {vr(t(1))}, {vr(K)} offset:{AM+32}
        v_mov_b32 {vr(t(1))}, 0
        s_waitcnt lgkmcnt(0)
        s_barrier
        ds_read_b128 {vr(t(4),4)}, {vr(t(1))} offset:{AM+32}
        s_waitcnt lgkmcnt(0)
        v_max3_u32 {vr(t(4))}, {vr(t(4))}, {vr(t(5))}, {vr(t(6))}
        v_max_u32 {vr(t(4))}, {vr(t(4))}, {vr(t(7))}
        v_readfirstlane_b32 {sr(sKey)}, {vr(t(4))}""")
        e(f"""s_and_b32 {sr(sStar)}, {sr(sKey)}, 2047
        s_lshr_b32 {sr(sT)}, {sr(sStar)}, 2
        s_sub_u32 {sr(sT2)}, 511, {sr(sT)}
        s_sub_u32 {sr(sT3)}, 512, {sr(sT)}
        s_and_b32 {sr(sT3)}, {sr(sT3)}, 255
        s_and_b32 {sr(sRec)}, {sr(sStar)}, 3
        s_cmp_eq_u32 {sr(sRec)}, 0
        s_cselect_b32 {sr(sT2)}, {sr(sT3)}, {sr(sT2)}
        s_cmp_lt_u32 {sr(sStar)}, 1024
        s_cselect_b32 {sr(sT2)}, {sr(sT)}, {sr(sT2)}
        s_lshl_b32 {sr(sRec)}, {sr(sT2)}, 12
        s_add_u32 {sr(sRec)}, {sr(sRec)}, {cand}""")
    def sigmoid_of_key():
        e(f"""s_and_b32 {sr(sT)}, {sr(sKey)}, 0xfffff800
        s_or_b32 {sr(sT)}, {sr(sT)}, 0x400
        s_ashr_i32 {sr(sT2)}, {sr(sT)}, 31
        s_not_b32 {sr(sT2)}, {sr(sT2)}
        s_or_b32 {sr(sT2)}, {sr(sT2)}, 0x80000000
        s_xor_b32 {sr(sT)}, {sr(sT)}, {sr(sT2)}
        v_mov_b32 {vr(vSig)}, {fbits(-1.4426950408889634)}
        v_mul_f32 {vr(vSig)}, {sr(sT)}, {vr(vSig)}
        v_exp_f32 {vr(vSig)}, {vr(vSig)}
        v_add_f32 {vr(vSig)}, 1.0, {vr(vSig)}
        v_rcp_f32 {vr(vSig)}, {vr(vSig)}""")

    def ffn_setup():
        e(f"""v_and_b32 {vr(t(0))}, 3, {vr(vN)}
        v_lshrrev_b32 {vr(t(1))}, 2, {vr(vN)}
        v_lshl_add_u32 {vr(t(1))}, {vr(vQ)}, 3, {vr(t(1))}
        s_lshl_b32 {sr(sT)}, {sr(sW)}, 7
        v_add_u32 {vr(t(1))}, {sr(sT)}, {vr(t(1))}
        v_lshlrev_b32 {vr(t(1))}, 4, {vr(t(1))}
        v_and_b32 {vr(t(3))}, 1, {vr(t(0))}
        v_lshl_add_u32 {vr(t(1))}, {vr(t(3))}, 3, {vr(t(1))}
        v_lshrrev_b32 {vr(t(3))}, 1, {vr(t(0))}
        v_lshl_add_u32 {vr(t(1))}, {vr(t(3))}, 13, {vr(t(1))}
        v_lshlrev_b32 {vr(t(2))}, 2, v0""")
        g.nbar_mark = sum(1 for l in g.L if l == 's_barrier')
        e('s_barrier')
        for kap in range(4):
            for h in range(2):
                e(f'ds_read_b64_tr_b16 {vr(FA+4*kap+2*h,2)}, {vr(t(1))} offset:{GU + kap*512 + h*64}')
        for f in range(8): e(f'ds_read_b32 {vr(t(8)+f)}, {vr(t(2))} offset:{DN + f*1024}')
        e('s_waitcnt lgkmcnt(0)')
        for f in range(8):
            e(f'v_lshlrev_b32 {vr(FD+2*f)}, 16, {vr(t(8)+f)}\nv_and_b32 {vr(FD+2*f+1)}, 0xffff0000, {vr(t(8)+f)}')
    def loader():
        e('L_loader:')
        if opt.get('lpf') == 'lin':
            e(f"""s_mul_i32 {sr(sT)}, {sr(sWg)}, 5632
            v_min_u32 {vr(t(4))}, 43, {vr(vL)}
            v_lshlrev_b32 {vr(t(4))}, 7, {vr(t(4))}
            v_add_u32 {vr(t(4))}, {sr(sT)}, {vr(t(4))}""")
            for ptr in (kwg, kwu):
                srd(sT4, ptr, 1409024)
                e(f'buffer_load_dword {vr(t(6))}, {vr(t(4))}, {sr(sT4,4)}, 0 offen')
        elif opt.get('lpf'):
            e(f"""s_lshr_b32 {sr(sT)}, {sr(sRho)}, 5
            s_cmp_ge_u32 {sr(sT)}, 6
            s_cbranch_scc1 L_end
            v_lshlrev_b32 {vr(t(1))}, 4, {vr(vL)}""")
            srd(sT4, kx, 2097152)
            e(f"""s_lshl_b32 {sr(sT2)}, {sr(sRho)}, 12
            v_add_u32 {vr(t(2))}, {sr(sT2)}, {vr(t(1))}
            buffer_load_dword {vr(t(3))}, {vr(t(2))}, {sr(sT4,4)}, 0 offen
            s_lshl_b32 {sr(sT)}, {sr(sT)}, 9
            s_and_b32 {sr(sT2)}, {sr(sRho)}, 31
            s_lshl_b32 {sr(sT2)}, {sr(sT2)}, 4
            v_lshrrev_b32 {vr(t(4))}, 2, {vr(vL)}
            v_add_u32 {vr(t(4))}, {sr(sT2)}, {vr(t(4))}
            s_movk_i32 {sr(sT3)}, 2752
            v_mul_lo_u32 {vr(t(4))}, {vr(t(4))}, {sr(sT3)}
            v_and_b32 {vr(t(5))}, 3, {vr(vL)}
            v_lshlrev_b32 {vr(t(5))}, 7, {vr(t(5))}
            s_max_u32 {sr(sT)}, {sr(sT)}, 16
            s_sub_u32 {sr(sT)}, {sr(sT)}, 16
            v_add3_u32 {vr(t(4))}, {vr(t(4))}, {vr(t(5))}, {sr(sT)}
            v_sub_u32 {vr(t(5))}, {vr(t(4))}, {vr(t(5))}
            v_add_u32 {vr(t(5))}, 512, {vr(t(5))}""")
            if opt.get('lpf') != 'now': e('s_waitcnt vmcnt(0)')
            for ptr in (kwg, kwu):
                srd(sT4, ptr, 1409024)
                e(f"""buffer_load_dword {vr(t(6))}, {vr(t(4))}, {sr(sT4,4)}, 0 offen
                buffer_load_dword {vr(t(7))}, {vr(t(5))}, {sr(sT4,4)}, 0 offen""")
        e(f"""s_cmp_ge_u32 {sr(sPhi)}, {NF}
        s_cbranch_scc1 L_end""")
        e(f"""s_movk_i32 {sr(sT3)}, 2752
        v_mul_lo_u32 {vr(t(0))}, {vr(vL)}, {sr(sT3)}
        s_lshl_b32 {sr(sT2)}, {sr(sPhi)}, 4
        v_add_u32 {vr(t(0))}, {sr(sT2)}, {vr(t(0))}
        v_lshlrev_b32 {vr(t(1))}, 4, {vr(vL)}""")
        def gu(ptr, lds, ks=range(8)):
            srd(sT4, ptr, 1409024)
            for k in ks:
                e(f"""s_add_u32 {sr(sT)}, {sr(sPhi)}, {k}
                s_and_b32 {sr(sT)}, {sr(sT)}, 7
                s_lshl_b32 {sr(sT2)}, {sr(sT)}, 10
                s_add_u32 m0, {sr(sT2)}, {lds}
                s_mul_i32 {sr(sOff)}, {sr(sT)}, {64*2752}
                buffer_load_dwordx4 {vr(t(0))}, {sr(sT4,4)}, {sr(sOff)} offen lds""")
        def dn():
            srd(sT4, kwd, 1409024)
            e(f's_lshl_b32 {sr(sT2)}, {sr(sPhi)}, 13')
            for f in range(8):
                e(f"""s_mov_b32 m0, {DN + 1024*f}
                s_add_u32 {sr(sOff)}, {sr(sT2)}, {1024*f}
                buffer_load_dwordx4 {vr(t(1))}, {sr(sT4,4)}, {sr(sOff)} offen lds""")
        if opt.get('lwait'):
            srd(sT4, kx, 2097152)
            e(f's_lshl_b32 {sr(sT)}, {sr(sRho)}, 12\nv_add_u32 {vr(t(2))}, {sr(sT)}, {vr(t(1))}\nbuffer_load_dword {vr(t(3))}, {vr(t(2))}, {sr(sT4,4)}, 0 offen\ns_waitcnt vmcnt(0)')
        plan = {int(x.split(':')[0]): x.split(':')[1] for x in opt.get('lplan', '0:gud').split('/')}
        for k in range(g.nbar_mark + 1):
            for c in plan.get(k, ''):
                {'g': lambda: gu(kwg, GU), 'u': lambda: gu(kwu, GU + 8192), 'd': dn,
                 'a': lambda: gu(kwg, GU, range(0, 4)), 'b': lambda: gu(kwg, GU, range(4, 8)),
                 'c': lambda: gu(kwu, GU + 8192, range(0, 4)), 'e': lambda: gu(kwu, GU + 8192, range(4, 8))}[c]()
            if k < g.nbar_mark: e('s_barrier')
        e('s_waitcnt vmcnt(0)\ns_barrier\nL_end:\ns_endpgm')

    XS = t(0)
    def xsel_text():
        return '\n'.join(f'buffer_load_dwordx4 {vr(XS+4*k,4)}, {vr(t(20))}, {sr(sWS,4)}, {sr(sRec)} offen offset:{128+64*k} sc1' for k in range(4))
    def xsel_load():
        e(f"""s_lshl_b32 {sr(sT)}, {sr(sW)}, 8
        v_lshlrev_b32 {vr(t(20))}, 4, {vr(vQ)}
        v_add_u32 {vr(t(20))}, {sr(sT)}, {vr(t(20))}""")
        e(xsel_text())
    def ffn(part):
        ln = g.lab('noffn')
        e(f's_cmp_ge_u32 {sr(sPhi)}, {NF}\ns_cbranch_scc1 {ln}')
        poll(xsel_text(), range(XS, XS+16), preloaded=True)
        Pp = t(16)
        for k in range(4):
            e(f'v_mfma_f32_16x16x32_bf16 {vr(Pp,4)}, {vr(FA+4*k,4)}, {vr(XS+4*k,4)}, {"0" if k==0 else vr(Pp,4)}')
        e(f"""v_lshlrev_b32 {vr(t(21))}, 6, {vr(vQ)}
        s_lshl_b32 {sr(sT)}, {sr(sW)}, 2
        v_add_u32 {vr(t(21))}, {sr(sT)}, {vr(t(21))}
        v_and_b32 {vr(t(22))}, 31, {vr(vL)}
        v_lshlrev_b32 {vr(t(22))}, 2, {vr(t(22))}
        s_mov_b32 exec_lo, 0x00010001
        s_mov_b32 exec_hi, 0x00010001""")
        for i in range(4): e(f'ds_write_b32 {vr(t(21))}, {vr(Pp+i)} offset:{FP + 16*i}')
        e(f"""s_mov_b64 exec, -1
        s_waitcnt lgkmcnt(0)
        s_barrier
        ds_read_b32 {vr(t(12))}, {vr(t(22))} offset:{FP}
        ds_read_b32 {vr(t(13))}, {vr(t(22))} offset:{FP+128}
        s_waitcnt lgkmcnt(0)""")
        gg, uu = t(12), t(13)
        for mod in ('quad_perm:[1,0,3,2]', 'quad_perm:[2,3,0,1]'):
            e(f'v_add_f32_dpp {vr(gg)}, {vr(gg)}, {vr(gg)} {mod} {DPP}\nv_add_f32_dpp {vr(uu)}, {vr(uu)}, {vr(uu)} {mod} {DPP}')
        e(f"""v_mul_f32 {vr(t(14))}, {fbits(-1.4426950408889634)}, {vr(gg)}
        v_exp_f32 {vr(t(14))}, {vr(t(14))}
        v_mul_f32 {vr(uu)}, {vr(uu)}, {vr(vSig)}
        v_add_f32 {vr(t(14))}, 1.0, {vr(t(14))}
        v_rcp_f32 {vr(t(14))}, {vr(t(14))}
        v_mul_f32 {vr(gg)}, {vr(gg)}, {vr(uu)}
        v_mul_f32 {vr(gg)}, {vr(gg)}, {vr(t(14))}""")
        for f in range(8): e(f'v_readlane_b32 {sr(sH+f)}, {vr(gg)}, {4*f}')
        acc = t(16)
        for f in range(8):
            sel = 'op_sel_hi:[1,0,1]' if f % 2 == 0 else 'op_sel:[0,1,0] op_sel_hi:[1,1,1]'
            if f == 0: e(f'v_pk_mul_f32 {vr(acc,2)}, {vr(FD,2)}, {sr(sH,2)} op_sel_hi:[1,0]')
            else: e(f'v_pk_fma_f32 {vr(acc,2)}, {vr(FD+2*f,2)}, {sr(sH + (f & ~1),2)}, {vr(acc,2)} {sel}')
        ws_store(2, acc, aP8, part)
        e(f'{ln}:')

    def reducer(part, final):
        ln = g.lab('nored')
        red_index()
        e(f"""s_cmp_ge_u32 {sr(sT3)}, 32
        s_cbranch_scc1 {ln}""")
        if not final and not opt.get('oldred'): e('s_waitcnt vmcnt(0)')
        NLD = (NF + 15)//16
        e(f"""v_lshrrev_b32 {vr(t(20))}, 4, v0
        v_and_b32 {vr(t(22))}, 15, v0
        v_lshlrev_b32 {vr(t(22))}, 2, {vr(t(22))}
        s_lshl_b32 {sr(sT)}, {sr(sT3)}, 6
        v_add_u32 {vr(t(25))}, {sr(sT)}, {vr(t(22))}
        v_lshl_add_u32 {vr(t(21))}, {vr(t(20))}, 11, {vr(t(25))}
        v_add_u32 {vr(t(23))}, {16*(NLD-1)*2048}, {vr(t(21))}
        v_mov_b32 {vr(t(24))}, 0x7f000000
        v_cmp_gt_u32 vcc, {NF - 16*(NLD-1)}, {vr(t(20))}
        v_cndmask_b32 {vr(t(23))}, {vr(t(24))}, {vr(t(23))}, vcc""")
        A = t(0); B4 = t(12)
        lds_ = []
        for k in range(NLD - 1):
            lds_.append(f's_mov_b32 {sr(sOff)}, {part + 16*k*2048}\n' + ws_load_text(1, A+k, t(21), sr(sOff)))
        lds_.append(f's_mov_b32 {sr(sOff)}, {part}\n' + ws_load_text(1, A+NLD-1, t(23), sr(sOff)))
        regs = list(range(A, A+NLD))
        if final:
            lds_.append(ws_load_text(1, B4, t(25), sr(sRec), 'offset:1152')); regs.append(B4)
        poll('\n'.join(lds_), regs)
        n = NLD
        while n > 1:
            h = n//2
            for k in range(h): e(f'v_add_f32 {vr(A+k)}, {vr(A+k)}, {vr(A+n-1-k)}')
            n -= h
        for sw in ('v_permlane16_swap_b32', 'v_permlane32_swap_b32'):
            e(f'v_mov_b32 {vr(A+1)}, {vr(A)}\n{sw} {vr(A)}, {vr(A+1)}\nv_add_f32 {vr(A)}, {vr(A)}, {vr(A+1)}')
        e(f"""s_lshl_b32 {sr(sT)}, {sr(sW)}, 2
        v_lshl_add_u32 {vr(t(24))}, {vr(t(22))}, 2, {sr(sT)}
        v_lshlrev_b32 {vr(t(26))}, 2, {vr(t(22))}
        s_mov_b64 exec, 0xffff
        ds_write_b32 {vr(t(24))}, {vr(A)} offset:{RED}
        s_mov_b64 exec, -1
        s_waitcnt lgkmcnt(0)
        s_barrier
        s_cmp_lg_u32 {sr(sW)}, 0
        s_cbranch_scc1 {ln}
        ds_read_b128 {vr(t(28),4)}, {vr(t(26))} offset:{RED}
        s_waitcnt lgkmcnt(0)
        v_add_f32 {vr(t(28))}, {vr(t(28))}, {vr(t(29))}
        v_add_f32 {vr(t(30))}, {vr(t(30))}, {vr(t(31))}
        v_add_f32 {vr(t(28))}, {vr(t(28))}, {vr(t(30))}""")
        if final:
            e(f"""v_add_f32 {vr(t(28))}, {vr(t(28))}, {vr(B4)}
            s_lshl_b32 {sr(sT)}, {sr(sStar)}, 10
            v_lshrrev_b32 {vr(t(25))}, 1, {vr(t(25))}
            v_mov_b32_dpp {vr(t(29))}, {vr(t(28))} quad_perm:[1,0,3,2] {DPP}
            v_add_u32 {vr(t(25))}, {sr(sT)}, {vr(t(25))}
            v_cvt_pk_bf16_f32 {vr(t(28))}, {vr(t(28))}, {vr(t(29))}
            s_mov_b64 exec, 0x5555
            buffer_store_dword {vr(t(28))}, {vr(t(25))}, {sr(sOUT,4)}, 0 offen sc1
            s_mov_b64 exec, -1""")
        else:
            e(f"""s_mov_b32 {sr(sOff)}, {UPD0}
            s_mov_b64 exec, 0xffff
            buffer_store_dword {vr(t(28))}, {vr(t(25))}, {sr(sWS,4)}, {sr(sOff)} offen sc1
            s_mov_b64 exec, -1""")
        e(f'{ln}:')

    stamp('preamble')
    e(f's_waitcnt vmcnt({N_ALL-1})\nv_readfirstlane_b32 {sr(sTag)}, {vr(vCa)}\ns_add_u32 {sr(sTag)}, {sr(sTag)}, 1')
    if not opt.get('nohint'):
        lh = g.lab('nohint')
        e(f'''s_cmp_lt_u32 {sr(sWg)}, 248
        s_cbranch_scc1 {lh}
        s_cmp_lg_u32 {sr(sW)}, 0
        s_cbranch_scc1 {lh}
        s_and_b32 {sr(sT)}, {sr(sWg)}, 7
        s_lshl_b32 {sr(sT)}, {sr(sT)}, 8
        v_mov_b32 {vr(t(16))}, {sr(sT)}
        v_mov_b32 {vr(t(17))}, {sr(sTag)}
        s_mov_b64 exec, 1''')
        ws_store(1, t(17), t(16), HINT)
        e(f's_mov_b64 exec, -1\n{lh}:')
    stamp('x0')
    unpack_nat(XU, URAW); unpack_rev(XV, VRAW, t(16))
    stats2(False)
    norm_coeffs(hRho, hB)
    make_g()
    e(f's_waitcnt vmcnt({N_ALL - N_ROWTAB})')
    transform(HB0, tagged=True, pre_store=lambda: e(f's_waitcnt vmcnt({N_ALL - N_POISON})'))
    stamp('P1 stored')
    finish_here('P1')
    special_k(KB0, False)
    srd(sT4, kwr, 1024)
    e(f'''v_lshlrev_b32 {vr(t(2))}, 4, {vr(vL)}
    v_sub_u32 {vr(t(3))}, 1008, {vr(t(2))}
    buffer_load_dwordx4 {vr(WURAW,4)}, {vr(t(2))}, {sr(sT4,4)}, 0 offen
    buffer_load_dwordx4 {vr(WVRAW,4)}, {vr(t(3))}, {sr(sT4,4)}, 0 offen''')
    addr_misc()
    addr_ym4()
    poison_regs()
    red_index()
    e(f"""s_lshl_b32 {sr(sT)}, {sr(sT3)}, 6
    v_lshlrev_b32 {vr(t(6))}, 2, v0
    v_add_u32 {vr(t(6))}, {sr(sT)}, {vr(t(6))}
    v_cmp_gt_u32 vcc, 16, v0
    s_cmp_lt_u32 {sr(sT3)}, 32
    s_cselect_b64 {sr(sEx,2)}, vcc, 0
    v_mov_b32 {vr(t(7))}, 0x7f000000
    v_cndmask_b32 {vr(t(6))}, {vr(t(7))}, {vr(t(6))}, {sr(sEx,2)}""")
    ws_store(4, PZ, aP16, HB1); ws_store(4, PZ, aP16, CAND0); ws_store(2, PZ, aP8, PART0); ws_store(1, PZ, t(6), UPD0)
    e(f'v_add_u32 {vr(t(39))}, {TOFF["addr2"]}, {vr(lG)}\nglobal_load_dwordx4 {vr(t(44),4)}, {vr(t(39))}, {sr(sPC,2)}')
    if not opt.get('nohint'):
        lh = g.lab('hw')
        e(f'''v_and_b32 {vr(vCa)}, 7, {vr(vL)}
        v_lshlrev_b32 {vr(vCa)}, 8, {vr(vCa)}
        s_cmp_lg_u32 {sr(sW)}, 0
        s_cbranch_scc1 {lh}
        s_mov_b32 {sr(sOff)}, {HINT}''')
        e(ws_load_text(1, vSa, vCa, sr(sOff)))
        e(f'{lh}:')
    col_consts_a()
    if not opt.get('splitc'): col_consts_b()
    stamp('shadow1')
    if not opt.get('nohint'):
        lh = g.lab('hw2'); lp = g.lab('hp')
        e(f'''s_cmp_lg_u32 {sr(sW)}, 0
        s_cbranch_scc1 {lh}
        s_mov_b32 {sr(sCnt)}, 0
        s_mov_b32 {sr(sOff)}, {HINT}
        {lp}:
        s_waitcnt vmcnt(0)
        v_cmp_ne_u32 vcc, {sr(sTag)}, {vr(vSa)}
        s_cbranch_vccz {lh}
        s_add_u32 {sr(sCnt)}, {sr(sCnt)}, 1
        s_cmp_gt_u32 {sr(sCnt)}, {LIMIT}
        s_cbranch_scc1 {lh}
        s_sleep 4''')
        e(ws_load_text(1, vSa, vCa, sr(sOff)))
        e(f's_branch {lp}\n{lh}:\ns_waitcnt vmcnt(0)\ns_barrier')
    if opt.get('ack1'): e('s_waitcnt vmcnt(0)')
    stamp('hint')
    column(HB0, YB0, False, tagged=True)
    stamp('P2 stored')
    finish_here('P2')
    poison_regs()
    ws_store(4, PZ, aP16, YB1); ws_store(4, PZ, aP16, CAND1); ws_store(2, PZ, aP8, PART1)
    lnn = g.lab('nononce')
    e(f'''s_cmp_lg_u32 {sr(sRowU)}, 0
    s_cbranch_scc1 {lnn}
    v_mov_b32 {vr(t(0))}, {sr(sTag)}
    v_mov_b32 {vr(t(1))}, 0
    s_mov_b64 exec, 1''')
    ws_store(1, t(0), t(1), NONCE)
    e(f's_mov_b64 exec, -1\n{lnn}:')
    unpack_nat(WU, WURAW); unpack_rev(WV, WVRAW, t(16))
    e(f"""v_pk_add_f32 {vr(t(16),2)}, {vr(WU,2)}, {vr(WU+2,2)}
    v_pk_add_f32 {vr(t(18),2)}, {vr(WU+4,2)}, {vr(WU+6,2)}
    v_pk_add_f32 {vr(t(16),2)}, {vr(t(16),2)}, {vr(t(18),2)}
    v_add_f32 {vr(t(16))}, {vr(t(16))}, {vr(t(17))}""")
    wave_reduce([t(16)], [t(17)])
    e(f'v_readfirstlane_b32 {sr(sSW)}, {vr(t(16))}')
    stamp('shadow2')
    e('s_waitcnt vmcnt(0)')
    row_input(YB0, KB0)
    add_y_pair()
    stats2(True)
    make_key()
    residual_coeffs()
    e(f"""v_mul_f32 {vr(t(23))}, {vr(t(21))}, {vr(t(21))}
    v_mul_f32 {vr(t(23))}, {vr(t(23))}, {vr(hVar)}
    v_add_f32 {vr(t(23))}, {fbits(1e-5)}, {vr(t(23))}
    v_rsq_f32 {vr(t(23))}, {vr(t(23))}
    s_waitcnt lgkmcnt(0)
    s_barrier""")
    wg_best_read(t(24))
    e(f"""v_mul_f32 {vr(t(22))}, {vr(t(21))}, {vr(t(23))}
    v_mul_f32 {vr(t(23))}, -{vr(hM)}, {vr(t(22))}""")
    norm_coeffs(t(22), t(23))
    e('s_waitcnt lgkmcnt(0)')
    wg_best_header(CAND0, t(24))
    stamp('hdr0')
    make_g()
    transform(HB1, pre_core=lambda: residual_update(XU, XV), post_scatter=lambda: publish_rows(CAND0))
    stamp('P3 stored')
    finish_here('P3')
    K = t(0)
    header_load(CAND0, vSig)
    lfs = g.lab('nosetup')
    e(f's_cmp_ge_u32 {sr(sPhi)}, {NF}\ns_cbranch_scc1 {lfs}')
    ffn_setup()
    e(f'{lfs}:')
    special_k(KB1, True)
    e(f's_waitcnt vmcnt(0)\nv_mov_b32 {vr(K)}, {vr(vSig)}')
    argmax(CAND0, K, after_check=lambda: column_load(HB1))
    stamp('argmax0')
    lb = g.lab('nobase')
    e(f"""s_cmp_ge_u32 {sr(sW)}, 2
    s_cbranch_scc1 {lb}
    v_lshlrev_b32 {vr(t(21))}, 5, {vr(vL)}
    buffer_load_dwordx4 {vr(FX,4)}, {vr(t(21))}, {sr(sWS,4)}, {sr(sRec)} offen offset:1152 sc1
    buffer_load_dwordx4 {vr(FX+4,4)}, {vr(t(21))}, {sr(sWS,4)}, {sr(sRec)} offen offset:1168 sc1
    {lb}:""")
    lb = g.lab('nox')
    e(f's_cmp_ge_u32 {sr(sPhi)}, {NF}\ns_cbranch_scc1 {lb}')
    xsel_load()
    e(f'{lb}:')
    sigmoid_of_key()
    e(f"""s_mul_i32 {sr(sT)}, {sr(sRowU)}, {sr(sStar)}
    s_and_b32 {sr(sT)}, {sr(sT)}, 2047
    v_cvt_f32_u32 {vr(vCa)}, {sr(sT)}
    v_mul_f32 {vr(vCa)}, {fbits(1/2048)}, {vr(vCa)}
    v_sin_f32 {vr(vSa)}, {vr(vCa)}
    v_cos_f32 {vr(vCa)}, {vr(vCa)}
    v_mul_f32 {vr(vSa)}, {fbits(1/32)}, {vr(vSa)}
    v_mul_f32 {vr(vCa)}, {fbits(1/32)}, {vr(vCa)}
    v_cvt_pk_f16_f32 {vr(vSa)}, {vr(vSa)}, {vr(vSa)}
    v_cvt_pk_f16_f32 {vr(vCa)}, {vr(vCa)}, {vr(vCa)}
    s_waitcnt vmcnt(0)""")
    stamp('xsel')
    ffn(PART0)
    stamp('ffn0')
    column(HB1, YB1, True)
    stamp('P4 stored')
    finish_here('P4')
    reducer(PART0, False)
    stamp('red0')
    lb = g.lab('nobase')
    e(f's_cmp_ge_u32 {sr(sW)}, 2\ns_cbranch_scc1 {lb}')
    e(f'v_lshlrev_b32 {vr(t(21))}, 5, {vr(vL)}')
    poll(f'buffer_load_dwordx4 {vr(FX,4)}, {vr(t(21))}, {sr(sWS,4)}, {sr(sRec)} offen offset:1152 sc1\n'
         f'buffer_load_dwordx4 {vr(FX+4,4)}, {vr(t(21))}, {sr(sWS,4)}, {sr(sRec)} offen offset:1168 sc1', range(FX, FX+8), preloaded=True)
    stats1(FX, t(0), FO)
    e(f'{lb}:')
    e('s_waitcnt vmcnt(0)')
    row_input(YB1, KB1)
    stamp('y1 read')
    lj = g.lab('fixj'); lq = g.lab('fix'); lu = g.lab('ownu'); lv = g.lab('ownv')
    U = t(16)
    updld = lambda areg: (ws_load_text(4, U, areg, sr(sOff)) + '\n' + ws_load_text(4, U+4, areg, sr(sOff), 'offset:16'))
    def owner_add():
        l1 = g.lab('nu'); l2 = g.lab('nv')
        e(f's_cmp_lg_u32 {sr(sStar)}, {sr(sRowU)}\ns_cbranch_scc1 {l1}')
        for k in range(4): e(f'v_pk_add_f32 {vr(XU+2*k,2)}, {vr(XU+2*k,2)}, {vr(U+2*k,2)}')
        e(f'{l1}:')
    e(f"""v_lshlrev_b32 {vr(t(44))}, 5, {vr(vL)}
    s_mov_b32 {sr(sOff)}, {UPD0}""")
    lnv = g.lab('notv')
    e(f"""s_cmp_lg_u32 {sr(sStar)}, {sr(sRowV)}
    s_cbranch_scc1 {lnv}
    v_sub_u32 {vr(t(45))}, {63*32}, {vr(t(44))}""")
    poll(updld(t(45)), range(U, U+8), backoff=4)
    e(f'v_mov_b32_dpp {vr(t(46))}, {vr(U)} wave_ror:1 {DPP}')
    for k in range(1, 8): e(f'v_add_f32 {vr(XV+k)}, {vr(XV+k)}, {vr(U+8-k)}')
    e(f'v_add_f32 {vr(XV)}, {vr(XV)}, {vr(t(46))}\n{lnv}:')
    e(f"""s_cmp_lt_u32 {sr(sW)}, 2
    s_cbranch_scc1 {lq}
    s_cmp_lg_u32 {sr(sStar)}, {sr(sRowU)}
    s_cbranch_scc1 {lj}""")
    poll(updld(t(44)), range(U, U+8), backoff=4)
    owner_add()
    e(f's_branch {lj}\n{lq}:')
    poll(updld(t(44)), range(U, U+8), backoff=4)
    stamp('upd')
    owner_add()
    for k in range(4): e(f'v_pk_add_f32 {vr(FX+2*k,2)}, {vr(FX+2*k,2)}, {vr(U+2*k,2)}')
    stats1(FX, t(32), FX)
    for k in range(4): e(f'v_pk_add_f32 {vr(FX+2*k,2)}, {vr(FX+2*k,2)}, {vr(FO+2*k,2)} neg_lo:[0,1] neg_hi:[0,1]')
    write_n(FX, t(24)); write_r(FX, t(40))
    A, B = CA, t(40)
    for k in range(8): e(f'v_mov_b32 {vr(FO+k)}, {vr(YH+k)}')
    e(f"""s_mov_b32 {sr(sT)}, 0x3c003c00
    s_cmp_eq_u32 {sr(sW)}, 0
    s_cselect_b32 {sr(sSgn)}, {sr(sT)}, 0xbc00bc00
    ds_read_b64_tr_b16 {vr(A,2)}, {vr(lTr)} offset:{GIMG}
    ds_read_b64_tr_b16 {vr(B,2)}, {vr(lTr)} offset:{RIMG}
    ds_read_b64_tr_b16 {vr(A+2,2)}, {vr(lTr)} offset:{GIMG+128}
    ds_read_b64_tr_b16 {vr(B+2,2)}, {vr(lTr)} offset:{RIMG+128}
    s_waitcnt lgkmcnt(0)""")
    for k in range(4): e(f'v_pk_fma_f16 {vr(A+k)}, {vr(B+k)}, {sr(sSgn)}, {vr(A+k)}')
    core(A, CO)
    for k in range(4): e(f'v_cvt_pk_f16_f32 {vr(t(44)+k)}, {vr(CO+2*k)}, {vr(CO+2*k+1)}')
    e(f"""v_lshl_add_u32 {vr(t(0))}, {vr(vQ)}, 7, {vr(vN)}
    v_lshlrev_b32 {vr(t(1))}, 7, {vr(vQ)}
    v_sub_u32 {vr(t(1))}, {32*23}, {vr(t(1))}
    v_add_u32 {vr(t(1))}, {vr(t(1))}, {vr(vN)}
    v_cmp_gt_u32 vcc, 2, {vr(vQ)}
    v_cndmask_b32 {vr(t(0))}, {vr(t(1))}, {vr(t(0))}, vcc
    v_lshlrev_b32 {vr(t(0))}, 1, {vr(t(0))}
    s_lshl_b32 {sr(sT)}, {sr(sW)}, 10
    v_add_u32 {vr(t(0))}, {sr(sT)}, {vr(t(0))}
    v_mov_b32 {vr(t(2))}, 64
    v_mov_b32 {vr(t(3))}, -64
    v_cndmask_b32 {vr(t(2))}, {vr(t(3))}, {vr(t(2))}, vcc""")
    for i in range(4):
        op = 'ds_write_b16' if i % 2 == 0 else 'ds_write_b16_d16_hi'
        for Tt in range(2):
            e(f'{op} {vr(t(0))}, {vr(t(44)+2*Tt+i//2)} offset:{RIMG + 2048 + 32*Tt}')
        if i < 3: e(f'v_add_u32 {vr(t(0))}, {vr(t(0))}, {vr(t(2))}')
    for k in range(8): e(f'v_mov_b32 {vr(YH+k)}, {vr(FO+k)}')
    e(f"""{lj}:
    s_waitcnt lgkmcnt(0)
    s_barrier
    v_lshlrev_b32 {vr(t(0))}, 4, {vr(vL)}
    ds_read_b128 {vr(t(16),4)}, {vr(t(0))} offset:{RIMG+2048}
    ds_read_b128 {vr(t(20),4)}, {vr(t(0))} offset:{RIMG+2048+1024}
    s_waitcnt lgkmcnt(1)""")
    lsp = g.lab('fsp')
    for k in range(4): e(f'v_pk_fma_f16 {vr(YH+k)}, {vr(t(16)+k)}, {vr(vCa)}, {vr(YH+k)}')
    e(f'''s_cmp_lg_u32 {sr(sRowU)}, 0
    s_cbranch_scc1 {lsp}
    s_mov_b32 {sr(sT)}, 0x28002800
    s_bitcmp0_b32 {sr(sStar)}, 0
    s_cselect_b32 {sr(sT)}, {sr(sT)}, 0xa800a800''')
    for k in range(4): e(f'v_pk_fma_f16 {vr(YV+k)}, {vr(t(16)+k)}, {sr(sT)}, {vr(YV+k)}')
    e(f'{lsp}:\ns_waitcnt lgkmcnt(0)')
    for k in range(4): e(f'v_pk_fma_f16 {vr(YH+k)}, {vr(t(20)+k)}, {vr(vSa)}, {vr(YH+k)}')
    add_y_pair()
    stamp('fixed')
    stats2(True)
    make_key()
    residual_coeffs()
    e('s_waitcnt lgkmcnt(0)\ns_barrier')
    wg_best_read(t(24))
    residual_update(XU, XV)
    e('s_waitcnt lgkmcnt(0)')
    wg_best_header(CAND1, t(24))
    publish_rows(CAND1)
    e('s_waitcnt vmcnt(0)\ns_barrier')
    stamp('cand1')
    header_load(CAND1, K)
    e('s_waitcnt vmcnt(0)')
    argmax(CAND1, K)
    stamp('argmax1')
    lb = g.lab('nox')
    e(f's_cmp_ge_u32 {sr(sPhi)}, {NF}\ns_cbranch_scc1 {lb}')
    xsel_load()
    e(f'{lb}:')
    sigmoid_of_key()
    ln = g.lab('noout')
    e(f's_cmp_eq_u32 {sr(sStar)}, {sr(sRowU)}\ns_cbranch_scc1 {ln}')
    for k in range(4): e(f'v_cvt_pk_bf16_f32 {vr(t(24)+k)}, {vr(XU+2*k)}, {vr(XU+2*k+1)}')
    e(f'buffer_store_dwordx4 {vr(t(24),4)}, {vr(aU)}, {sr(sOUT,4)}, 0 offen sc1\n{ln}:')
    ln = g.lab('noout')
    e(f's_cmp_eq_u32 {sr(sStar)}, {sr(sRowV)}\ns_cbranch_scc1 {ln}')
    e(f"""v_mov_b32_dpp {vr(t(32))}, {vr(XV)} wave_rol:1 {DPP}
    v_cvt_pk_bf16_f32 {vr(t(29))}, {vr(XV+6)}, {vr(XV+5)}
    v_cvt_pk_bf16_f32 {vr(t(30))}, {vr(XV+4)}, {vr(XV+3)}
    v_cvt_pk_bf16_f32 {vr(t(31))}, {vr(XV+2)}, {vr(XV+1)}
    v_cvt_pk_bf16_f32 {vr(t(28))}, {vr(t(32))}, {vr(XV+7)}
    buffer_store_dwordx4 {vr(t(28),4)}, {vr(aV)}, {sr(sOUT,4)}, 0 offen sc1
    {ln}:""")
    e('s_waitcnt vmcnt(0)')
    ffn(PART1)
    stamp('ffn1')
    e('s_waitcnt vmcnt(0)')
    reducer(PART1, True)
    stamp('end')
    e('L_done:')
    if stamps:
        ls = g.lab('nost')
        e(f"""s_cmp_ge_u32 s2, 256
        s_cbranch_scc1 {ls}
        s_waitcnt vmcnt(0)
        s_mov_b64 exec, -1
        s_lshl_b32 {sr(sT)}, {sr(sWg)}, 11
        s_lshl_b32 {sr(sT2)}, {sr(sW)}, 8
        s_add_u32 {sr(sT)}, {sr(sT)}, {sr(sT2)}
        v_and_b32 {vr(t(0))}, 63, v0
        v_lshlrev_b32 {vr(t(0))}, 2, {vr(t(0))}
        v_add_u32 {vr(t(0))}, {sr(sT)}, {vr(t(0))}
        s_mov_b32 {sr(sOff)}, {STAMP}
        buffer_store_dword {vr(vStamp)}, {vr(t(0))}, {sr(sWS,4)}, {sr(sOff)} offen
        {ls}:""")
    e('s_endpgm')
    loader()
    for ls, lj in g.late:
        e(f'{ls}:')
        add_y(YH, YV)
        e(f's_branch {lj}')
    emit_tail()
    return g

def render(g):
    lines, added = pad(g.L)
    body = '\n'.join(('' if l.endswith(':') else '    ') + l for l in lines)
    ninstr = sum(1 for l in lines if not l.endswith(':'))
    hdr = f"""; FNet (2-D real DFT via Hartley factorisation on MFMA) + top-1 routed SwiGLU, two layers, one persistent launch.
; @launch grid=(256,1,1) block=(320,1,1) lds={LDS_SIZE}
.amdgcn_target "amdgcn-amd-amdhsa--gfx950"
.text
.globl {NAME}
.p2align 8
.type {NAME},@function
{NAME}:
"""
    tab = '\n'.join('.long ' + ','.join('0x%08x' % x for x in TAB[i:i+8]) for i in range(0, len(TAB), 8))
    tail = f"""
L_code_end:
.p2align 8
L_tab:
{tab}
.section .rodata,"a"
.p2align 6
.amdhsa_kernel {NAME}
  .amdhsa_next_free_vgpr 256
  .amdhsa_next_free_sgpr 102
  .amdhsa_accum_offset 256
  .amdhsa_group_segment_fixed_size 0
  .amdhsa_kernarg_size 104
  .amdhsa_user_sgpr_count 2
  .amdhsa_user_sgpr_kernarg_segment_ptr 1
  .amdhsa_system_sgpr_workgroup_id_x 1
.end_amdhsa_kernel
"""
    return hdr + body + tail, ninstr, added

if __name__ == '__main__':
    import argparse
    ap = argparse.ArgumentParser()
    ap.add_argument('-o', default='interleave_layers__spectral_fnet__moe_arch_mod__prompt.s')
    ap.add_argument('--stop'); ap.add_argument('--stamps', action='store_true'); ap.add_argument('--opt', default='')
    a = ap.parse_args()
    g = build(a.stop, a.stamps, {k.split('=')[0]: (k.split('=')+['1'])[1] for k in a.opt.split(',') if k})
    txt, n, added = render(g)
    open(a.o, 'w').write(txt)
    print(f'{n} instructions, {added} nop slots added, vgpr high {g.v.n}, sgpr high {g.s.n}')
```

```python
import numpy as np
CIN_QS, CIN_BS = 272, 1088
def cin_addr(M, s):
    Tp = (s >> 4) & 1; kap = s >> 10; q = (s >> 8) & 3; m = s & 15; jj = (s >> 5) & 7
    return M['CIN'] + (Tp*2 + kap)*CIN_BS + 32*Tp + q*CIN_QS + (m + (m >> 3))*16 + 2*jj
def cin_block(k): return k*CIN_BS + 32*(k >> 1)
L = np.arange(64); N = L & 15; Q = L >> 4; J = np.arange(8); I4 = np.arange(4)
def pk16(v):
    h = np.asarray(v, dtype=np.float64).astype(np.float16).view(np.uint16).astype(np.uint32)
    return h[:, 0::2] | (h[:, 1::2] << 16)
def f32(v): return np.asarray(v, dtype=np.float32).view(np.uint32)

def row_table():
    regs = []
    k = 8*Q[:,None] + J[None,:]
    for T in range(2):
        elo = 16*T + N
        regs.append(pk16(np.cos(2*np.pi*k*elo[:,None]/32)))
        regs.append(pk16(-np.sin(2*np.pi*k*elo[:,None]/32)))
    c = []; s = []
    for T in range(2):
        elo = 16*T + N; dlo = 4*Q[:,None] + I4[None,:]
        c.append(f32(np.cos(2*np.pi*dlo*elo[:,None]/512))); s.append(f32(np.sin(2*np.pi*dlo*elo[:,None]/512)))
    regs += c + s
    ehi = np.where(N < 8, N, 23-N)
    dlo = 4*Q[:,None] + (J[None,:] & 3); part = J[None,:] >> 2
    regs.append(pk16(np.sqrt(2)*np.cos(2*np.pi*(dlo*ehi[:,None]/16 + np.where(part == 0, 1/8, -1/8)))))
    return np.concatenate(regs, axis=1).T

def col_lane(w):
    tau = 8*w + (N & 7); hi = N >> 3; z = tau == 0
    tlo = np.where(hi == 0, tau, np.where(z, 32, 64-tau))
    return tau, hi, z, tlo
def col_table(w):
    tau, hi, z, tlo = col_lane(w)
    taup = np.where((hi == 1) & z, 32, tau); ph0 = np.where((hi == 1) & ~z, 0.25, 0.0)
    regs = [pk16(np.cos(2*np.pi*((32*kap + 8*Q[:,None] + J[None,:])*taup[:,None]/64 + ph0[:,None]))) for kap in range(2)]
    conj = ((hi == 1) & ~z)[:,None]
    for T in range(2):
        th = (16*T + 4*Q[:,None] + I4[None,:])*tlo[:,None]/2048
        c1 = np.cos(2*np.pi*(th + np.where(conj, 0.25, 0))); c2 = np.cos(2*np.pi*(th + np.where(conj, 0, -0.25)))
        sc = 0.25; amp2 = np.where(z, 0, sc)[:,None]
        regs += [f32(sc*c1), f32(amp2*c2), f32(-sc*c2), f32(amp2*c1)]
    return np.concatenate(regs, axis=1).T
def ca2_table():
    regs = []
    for U in range(2):
        for T in range(2):
            slo = 16*T + 4*Q[:,None] + (J[None,:] & 3); part = J[None,:] >> 2
            regs.append(pk16(np.sqrt(2)/8*np.cos(2*np.pi*(slo*(16*U+N)[:,None]/32 + np.where(part == 0, -1/8, -3/8)))))
    return np.concatenate(regs, axis=1).T

def addr_table(M):
    tid = np.arange(256); w = tid >> 6; l = tid & 63; n = l & 15; q = l >> 4
    vs = 4 + ((4 - w) & 3)
    lRow = w*1024 + 16*l
    lTr = w*1024 + (8*q + (n >> 2))*32 + (n & 3)*8
    lRw = M['RIMG'] + w*1024 + 1008 - 16*l
    lCr = M['CIN'] + q*CIN_QS + (n + (n >> 3))*16
    sw = 8*np.where(q < 2, (n >> 3) & 1, (((16 - n) & 15) >> 3) & 1)
    lH0 = M['HIMG'] + np.where(q < 2, 16*(n + 128*q) + ((2*w) ^ sw), 16*(-224 + 128*q - n) + ((2*vs) ^ sw))
    lH1 = M['HIMG'] + np.where(q < 2, 16*(16 + n + 128*q) + ((2*w) ^ sw), 16*(-224 + 128*q - 16 - n) + ((2*vs) ^ sw))
    dummy = M['HIMG'] + 4112
    lHf0 = np.where(l == 48, M['HIMG'] + 2*w, dummy); lHf1 = np.where(l == 48, M['HIMG'] + 2*vs, dummy)
    def caddr(s): return cin_addr(M, s)
    lCa = caddr(4*tid); lCb = caddr(np.where(tid == 0, 1024, 2048 - 4*tid)); lCc = caddr(2044 - 4*tid)
    c = np.where(tid == 0, 256, tid)
    lYd = M['YIMG'] + 2*c; lYm = M['YIMG'] + 1024 - 2*c
    tlo = np.zeros(256, dtype=np.int64)
    for ww in range(4): tlo[64*ww:64*ww+64] = col_lane(ww)[3]
    t0 = tlo + 256*q
    lCo0 = M['COUT'] + 16*(t0 >> 2) + 2*(t0 & 3)
    a3 = (255 - (t0 >> 2) + ((t0 & 3) == 0))*16 + 2*(t0 & 3) + 8
    lCo1 = M['COUT'] - 768 + a3; lCo2 = M['COUT'] + (a3 & 4095)
    regs = [lRow, lTr, lRw, lCr, lH0, lH1, lHf0, lHf1, lCa, lCb, lCc, lYd, lCo0, lCo1, lCo2, lYm]
    return np.array(regs).astype(np.int64).astype(np.uint32)

def addr2_table(M):
    tid = np.arange(256)
    def caddr(s): return cin_addr(M, s)
    regs = []
    for k in range(2):
        i = 128*k + (tid >> 1); h = tid & 1
        regs.append(np.where(h == 0, caddr(4*i), caddr(np.where(i == 0, 1024, 2048 - 4*i))))
        regs.append(np.where(h == 0, caddr(4*i), caddr(2044 - 4*i)))
    return np.array(regs).astype(np.int64).astype(np.uint32)

def as_loads(regs):
    r, n = regs.shape
    return regs.reshape(r//4, 4, n).transpose(0, 2, 1).reshape(-1)

def build_tables(M):
    parts = []; off = {}; pos = 0
    def add(name, arr):
        nonlocal pos
        off[name] = pos; parts.append(arr.astype(np.uint32)); pos += arr.size*4
    add('addr', as_loads(addr_table(M)))
    add('addr2', as_loads(addr2_table(M)))
    add('row', as_loads(row_table()))
    return np.concatenate(parts), off
```

```python
import sys, struct, math
from asmlib import pad, Alloc
import tables

NAME = "interleave_layers__spectral_fnet__moe_arch_mod__prompt_kernel"
NONCE = 0x000000
HB0, YB0, HB1, YB1 = 0x100000, 0x300000, 0x400000, 0x500000
CAND0, CAND1 = 0x600000, 0x700000
PART0, PART1 = 0x800000, 0x880000
UPD0 = 0x900000
KB0, KB1 = 0x901000, 0x902000
HINT = 0x903000
STAMP = 0x980000
WS_SIZE = 0xA00000
NF = 172
LIMIT = 40000
NPOIS = 64
YIMG = 0
GIMG = 5120
RIMG = 9216
HIMG = 13312
CIN = 17472
COUT = 21952
KIMG = 26048
FP = 27136
AM = 27392
RED = 27456
GU = 27776
DN = GU + 16384
LDS_SIZE = DN + 8192
LMAP = dict(YIMG=YIMG, GIMG=GIMG, RIMG=RIMG, HIMG=HIMG, CIN=CIN, COUT=COUT)
TAB, TOFF = tables.build_tables(LMAP)

def fbits(x): return '0x%08x' % struct.unpack('<I', struct.pack('<f', x))[0]

class G:
    def __init__(self, stop=None, stamps=False):
        self.L = []; self.stop = stop; self.stamps = stamps; self.uid = 0; self.nstamp = 0; self.names = []
        self.v = Alloc(1, 256, 'v'); self.s = Alloc(3, 100, 's')
    def e(self, text):
        for l in text.strip('\n').split('\n'):
            l = l.strip()
            if l: self.L.append(l)
    def lab(self, p):
        self.uid += 1; return f'L_{p}_{self.uid}'

def vr(a, n=1): return f'v{a}' if n == 1 else f'v[{a}:{a+n-1}]'
def sr(a, n=1): return f's{a}' if n == 1 else f's[{a}:{a+n-1}]'
DPP = 'row_mask:0xf bank_mask:0xf'
PKB = 'op_sel:[0,0,1] op_sel_hi:[1,0,1]'

def build(stop=None, stamps=False, opt=None):
    opt = dict(opt or {})
    if not opt.get('nodefault'):
        opt.setdefault('lpf', 'lin'); opt.setdefault('splitc', '1'); opt.setdefault('lplan', '0:da/1:b/4:u')
    g = G(stop, stamps); e = g.e; V = g.v; S = g.s
    sWS = S('ws', 4, 4); sXS = S('xsrd', 4, 4); sOUT = S('out', 4, 4); sT4 = S('tmpsrd', 4, 4)
    sRho = S('rho'); sW = S('w'); sRowU = S('rowu'); sRowV = S('rowv'); sVs = S('vs'); sOff = S('off'); sCnt = S('cnt')
    sT = S('t'); sT2 = S('t2'); sT3 = S('t3'); s16 = S('k16'); sStar = S('star'); sRec = S('rec'); sWg = S('wg'); sSW = S('sw')
    sCu = S('cu', 2, 2); sCv = S('cv', 2, 2); sEx = S('exsave', 2, 2)
    sAu = S('au', 2, 2); sAv = S('av', 2, 2); sKu = S('ku', 2, 2); sKv = S('kv', 2, 2); sKeyU = S('keyu'); sKeyV = S('keyv'); sKey = S('key')
    sTag = S('tag'); sMz, sMc = sAu, sAv; sH = S('h', 8, 2); sTm = S('tm', 2, 2); sPC = S('pc', 2, 2); sM2 = S('m2', 2, 2); sPhi = S('phi'); sSgn = S('sgn')
    sKA = S('ka', 16, 4); sKB = S('kb', 8, 4); sKC = S('kc', 2, 2)
    vL = V('lane'); vN = V('n'); vQ = V('q')
    XU = V('XU', 8, 4); XV = V('XV', 8, 4); WU = V('WU', 8, 2); WV = V('WV', 8, 2)
    RB1 = V('RB1', 16, 4); RC = V('RC', 8, 2); RS = V('RS', 8, 2); RA2 = V('RA2', 4, 4)
    CB1 = V('CB1', 8, 4); CK = V('CK', 32, 2); CA2 = V('CA2', 16, 4)
    assert RC == RB1+16 and RS == RB1+24 and RA2 == RB1+32 and CK == CB1+8
    FA = V('FA', 16, 4); FD = V('FD', 16, 4)
    AD = V('addr', 16, 4)
    lRow, lTr, lRw, lCr, lH, _, lHf, _, lCa, lCb, lCc, lYd = range(AD, AD+12)
    lCo = AD + 12; lYm = AD + 15
    aU = V('aU'); aV = V('aV'); aP16 = V('aP16'); aS16 = V('aS16'); aHdr = V('aHdr'); aP8 = V('aP8')
    lYm4 = V('lYm4'); lG = V('lG')
    vRowH = V('rowh'); vSig = V('sig'); vSent = V('sent'); vCa = V('cosa'); vSa = V('sina'); vStamp = V('stamp')
    FX = V('FX', 8, 4); FO = V('FO', 8, 4)
    NT = 256 - ((V.n + 3)//4*4)
    T = V('T', NT, 4)
    def t(i):
        assert i < NT, i
        return T + i
    DU, DV = t(0), t(8)

    def stamp(name=''):
        if not g.stamps: return
        if opt.get('only') and name not in opt['only'].split('+'): return
        e(f'''s_memrealtime {sr(sTm,2)}
        s_waitcnt lgkmcnt(0)
        v_writelane_b32 {vr(vStamp)}, {sr(sTm)}, {g.nstamp}''')
        g.nstamp += 1; g.names.append(name)
    def finish_here(tag):
        if g.stop == tag: e('s_branch L_done')

    def sentinel(regs):
        if isinstance(regs, tuple) and regs[0] == 'tag':
            P = regs[1]
            e(f'''v_bitop3_b32 {vr(vSent)}, {vr(P+1)}, {vr(P+3)}, {sr(sTag)} bitop3:0x7e
            v_bitop3_b32 {vr(P+1)}, {vr(P+5)}, {vr(P+7)}, {sr(sTag)} bitop3:0x7e
            v_or_b32 {vr(vSent)}, {vr(vSent)}, {vr(P+1)}
            v_cmp_ne_u32 vcc, 0, {vr(vSent)}''')
            return
        regs = list(regs); tm = vSent
        if len(regs) == 1:
            e(f'v_cmp_eq_u32 vcc, -1, {vr(regs[0])}')
        else:
            if len(regs) >= 3:
                e(f'v_max3_u32 {vr(tm)}, {vr(regs[0])}, {vr(regs[1])}, {vr(regs[2])}'); rest = regs[3:]
            else:
                e(f'v_max_u32 {vr(tm)}, {vr(regs[0])}, {vr(regs[1])}'); rest = []
            while len(rest) >= 2:
                e(f'v_max3_u32 {vr(tm)}, {vr(tm)}, {vr(rest[0])}, {vr(rest[1])}'); rest = rest[2:]
            if rest: e(f'v_max_u32 {vr(tm)}, {vr(tm)}, {vr(rest[0])}')
            e(f'v_cmp_eq_u32 vcc, -1, {vr(tm)}')
    def poll(load, regs, backoff=2, preloaded=False):
        lp = g.lab('poll'); ok = g.lab('ok')
        if preloaded:
            sentinel(regs)
            e(f's_cbranch_vccnz {lp}\n{ok}:')
            g.tail.append((lp, ok, load, regs if isinstance(regs, tuple) else list(regs), backoff))
        else:
            e(load); e('s_waitcnt vmcnt(0)')
            sentinel(regs)
            e(f's_cbranch_vccnz {lp}\n{ok}:')
            g.tail.append((lp, ok, load, regs if isinstance(regs, tuple) else list(regs), backoff))
    g.tail = []
    g.nbar_mark = None
    def emit_tail():
        for lp, ok, load, regs, backoff in g.tail:
            l2 = lp + '_r'
            e(f'{lp}:\ns_mov_b32 {sr(sCnt)}, 0\n{l2}:\ns_sleep {backoff}')
            e(load)
            e(f'''s_add_u32 {sr(sCnt)}, {sr(sCnt)}, 1
            s_cmp_gt_u32 {sr(sCnt)}, {LIMIT}
            s_cbranch_scc1 L_done
            s_waitcnt vmcnt(0)''')
            sentinel(regs)
            e(f's_cbranch_vccnz {l2}\ns_branch {ok}')
    def red_index():
        if opt.get('oldred'):
            e(f's_sub_u32 {sr(sT3)}, {sr(sWg)}, 8')
        else:
            e(f'''s_sub_u32 {sr(sT3)}, {sr(sRho)}, 192
            s_bitcmp1_b32 {sr(sRho)}, 0
            s_cselect_b32 {sr(sT3)}, -1, {sr(sT3)}
            s_lshr_b32 {sr(sT3)}, {sr(sT3)}, 1''')
    def srd(dst, ptr, size):
        e(f'''s_mov_b32 {sr(dst)}, {sr(ptr)}
        s_mov_b32 {sr(dst+1)}, {sr(ptr+1)}
        s_mov_b32 {sr(dst+2)}, {size}
        s_mov_b32 {sr(dst+3)}, 0x00020000''')
    def ws_store(n, data, areg, region, extra=''):
        op = {1: 'buffer_store_dword', 2: 'buffer_store_dwordx2', 4: 'buffer_store_dwordx4'}[n]
        e(f's_mov_b32 {sr(sOff)}, {region}\n{op} {vr(data,n)}, {vr(areg)}, {sr(sWS,4)}, {sr(sOff)} offen sc1 {extra}')
    def ws_load_text(n, data, areg, soff, extra=''):
        op = {1: 'buffer_load_dword', 2: 'buffer_load_dwordx2', 4: 'buffer_load_dwordx4'}[n]
        return f'{op} {vr(data,n)}, {vr(areg)}, {sr(sWS,4)}, {soff} offen {extra} sc1'
    PZ = t(40)
    def poison_regs():
        for k in range(4): e(f'v_mov_b32 {vr(PZ+k)}, -1')

    e(f's_cmp_ge_u32 s2, 256\ns_cbranch_scc1 L_done')
    if stamps: e(f's_memrealtime {sr(sM2,2)}')
    e(f'''s_load_dwordx16 {sr(sKA,16)}, s[0:1], 0
    s_load_dwordx8 {sr(sKB,8)}, s[0:1], 64
    s_load_dwordx2 {sr(sKC,2)}, s[0:1], 96''')
    e(f'''s_getpc_b64 {sr(sPC,2)}
    L_pc:
    v_lshlrev_b32 {vr(t(0))}, 7, v0
    v_min_u32 {vr(t(0))}, L_code_end-L_pc-4, {vr(t(0))}
    global_load_dword {vr(vSig)}, {vr(t(0))}, {sr(sPC,2)}
    s_add_u32 {sr(sPC)}, {sr(sPC)}, L_tab-L_pc
    s_addc_u32 {sr(sPC+1)}, {sr(sPC+1)}, 0''')
    e(f'''s_mov_b32 {sr(sWg)}, s2
    s_and_b32 {sr(sT)}, s2, 7
    s_lshl_b32 {sr(sT)}, {sr(sT)}, 5
    s_lshr_b32 {sr(sRho)}, s2, 3
    s_or_b32 {sr(sRho)}, {sr(sRho)}, {sr(sT)}
    v_lshrrev_b32 {vr(t(1))}, 6, v0
    v_and_b32 {vr(vL)}, 63, v0
    v_readfirstlane_b32 {sr(sW)}, {vr(t(1))}
    v_lshlrev_b32 {vr(t(2))}, 4, {vr(vL)}
    v_sub_u32 {vr(t(3))}, 1008, {vr(t(2))}
    s_lshl_b32 {sr(sT)}, {sr(sRho)}, 2
    s_add_u32 {sr(sRowU)}, {sr(sT)}, {sr(sW)}
    s_sub_u32 {sr(sRowV)}, 2048, {sr(sRowU)}
    s_cmp_eq_u32 {sr(sRowU)}, 0
    s_cselect_b32 {sr(sRowV)}, 1024, {sr(sRowV)}
    s_lshl_b32 {sr(sT)}, {sr(sRowU)}, 10
    s_lshl_b32 {sr(sT2)}, {sr(sRowV)}, 10
    v_add_u32 {vr(aU)}, {sr(sT)}, {vr(t(2))}
    v_add_u32 {vr(aV)}, {sr(sT2)}, {vr(t(3))}
    v_lshlrev_b32 {vr(lG)}, 4, v0
    s_waitcnt lgkmcnt(0)''')
    kx, kwr, kwg = sKA + 0, sKA + 12, sKA + 14
    kwu, kwd, kout, kdbg = sKB + 0, sKB + 2, sKB + 4, sKB + 6
    URAW, VRAW = t(8), t(12)
    WURAW, WVRAW = FX, FX + 4
    e(f's_sub_u32 {sr(sPhi)}, {sr(sRho)}, 1\ns_cmp_eq_u32 {sr(sW)}, 4\ns_cbranch_scc1 L_loader')
    srd(sXS, kx, 2097152)
    e(f'''buffer_load_dwordx4 {vr(URAW,4)}, {vr(aU)}, {sr(sXS,4)}, 0 offen {opt.get('xfl','')}
    buffer_load_dwordx4 {vr(VRAW,4)}, {vr(aV)}, {sr(sXS,4)}, 0 offen {opt.get('xfl','')}''')
    srd(sWS, sKC, WS_SIZE)
    e(f'v_mov_b32 {vr(vCa)}, {NONCE}\nbuffer_load_dword {vr(vCa)}, {vr(vCa)}, {sr(sWS,4)}, 0 offen')
    nvm = [1]
    def tab_loads(dst, n, areg, off, stride):
        k = 0
        while k < n:
            base = off + k*stride
            per = {1024: 4, 4096: 1}[stride]
            e(f'v_add_u32 {vr(t(4))}, {base}, {vr(areg)}')
            for kk in range(min(per, n-k)):
                e(f'global_load_dwordx4 {vr(dst+4*(k+kk),4)}, {vr(t(4))}, {sr(sPC,2)} offset:{kk*stride}')
                nvm[0] += 1
            k += per
    tab_loads(AD, 4, lG, TOFF['addr'], 4096)
    tab_loads(RB1, 9, t(2), TOFF['row'], 1024)
    N_ROWTAB = nvm[0]
    if stamps:
        e(f'v_mov_b32 {vr(vStamp)}, 0\nv_writelane_b32 {vr(vStamp)}, {sr(sM2)}, 0'); g.nstamp = 1; g.names.append('start')
    poison_regs()
    e(f'''s_lshl_b32 {sr(sT)}, {sr(sRho)}, 12
    v_add_u32 {vr(aP16)}, {sr(sT)}, {vr(lG)}''')
    ws_store(4, PZ, aP16, YB0)
    nvm[0] += 1
    lkb = g.lab('nokb')
    e(f'''s_cmp_lg_u32 {sr(sRowU)}, 0
    s_cbranch_scc1 {lkb}
    v_lshlrev_b32 {vr(t(5))}, 4, {vr(vL)}''')
    ws_store(4, PZ, t(5), KB0)
    ws_store(4, PZ, t(5), KB1)
    e(f'{lkb}:')
    if opt.get('touchhb') == 'w':
        e(f's_lshl_b32 {sr(sT)}, {sr(sRho)}, 13\nv_add_u32 {vr(t(6))}, {sr(sT)}, {vr(lG)}')
        ws_store(4, PZ, t(6), HB0); ws_store(4, PZ, t(6), HB0 + 4096)
        nvm[0] += 2
    if opt.get('touchhb') == 'r':
        e(f's_lshl_b32 {sr(sT)}, {sr(sRho)}, 13\nv_lshlrev_b32 {vr(t(6))}, 5, v0\nv_add_u32 {vr(t(6))}, {sr(sT)}, {vr(t(6))}\ns_mov_b32 {sr(sOff)}, {HB0}')
        e(f'buffer_load_dword {vr(vSa)}, {vr(t(6))}, {sr(sWS,4)}, {sr(sOff)} offen')
        nvm[0] += 1
    N_POISON = nvm[0]
    N_ALL = nvm[0]
    srd(sOUT, kout, 2097152)
    e(f'''s_mov_b32 {sr(s16)}, {fbits(16.0)}
    v_and_b32 {vr(vN)}, 15, {vr(vL)}
    v_lshrrev_b32 {vr(vQ)}, 4, {vr(vL)}''')

    a0, a1, a2, a3 = t(20), t(21), t(22), t(23)
    def addr_misc():
        e(f'''s_lshl_b32 {sr(sT)}, {sr(sRho)}, 4
        v_lshlrev_b32 {vr(aHdr)}, 12, v0
        v_add_u32 {vr(aS16)}, {sr(sT)}, {vr(aHdr)}
        v_mov_b32 {vr(a0)}, {sr(sRowU)}
        v_mov_b32 {vr(a1)}, {sr(sRowV)}
        v_cmp_gt_u32 vcc, 32, {vr(vL)}
        s_lshl_b32 {sr(sT)}, {sr(sPhi)}, 11
        s_cmp_lt_u32 {sr(sPhi)}, {NF}
        s_cselect_b32 {sr(sT)}, {sr(sT)}, 0x7f000000
        v_cndmask_b32 {vr(vRowH)}, {vr(a1)}, {vr(a0)}, vcc
        v_lshlrev_b32 {vr(aP8)}, 3, v0
        v_add_u32 {vr(aP8)}, {sr(sT)}, {vr(aP8)}
        v_mov_b32 {vr(a0)}, 0
        v_lshlrev_b32 {vr(a1)}, 10, {vr(vL)}
        s_mov_b64 exec, 31
        ds_write_b16 {vr(a1)}, {vr(a0)} offset:{YIMG}
        s_mov_b64 exec, -1''')
    def addr_ym4():
        e(f'''s_cmp_eq_u32 {sr(sRho)}, 0
        s_cselect_b32 {sr(sT)}, 4096, 0
        v_add_u32 {vr(lYm4)}, {sr(sT)}, {vr(lYm)}''')

    b0, b1, b2 = t(24), t(25), t(26)
    vTau, vTlo = t(28), t(29)
    def tau_tlo():
        e(f'''s_lshl_b32 {sr(sT)}, {sr(sW)}, 3
        v_and_b32 {vr(vTau)}, 7, {vr(vN)}
        v_add_u32 {vr(vTau)}, {sr(sT)}, {vr(vTau)}
        v_sub_u32 {vr(a0)}, 64, {vr(vTau)}
        v_mov_b32 {vr(a1)}, 32
        v_cmp_eq_u32 {sr(sMz,2)}, 0, {vr(vTau)}
        v_cndmask_b32 {vr(a0)}, {vr(a0)}, {vr(a1)}, {sr(sMz,2)}
        v_cmp_le_u32 vcc, 8, {vr(vN)}
        v_cndmask_b32 {vr(vTlo)}, {vr(vTau)}, {vr(a0)}, vcc
        s_andn2_b64 {sr(sMc,2)}, vcc, {sr(sMz,2)}''')
    c0, c1 = t(30), t(31)
    def cos_seq(dst, base, step, n, amp=None):
        for j in range(0, n, 2):
            e(f'v_cos_f32 {vr(c0)}, {vr(base)}\nv_add_f32 {vr(base)}, {vr(base)}, {vr(step)}')
            e(f'v_cos_f32 {vr(c1)}, {vr(base)}')
            if j + 2 < n: e(f'v_add_f32 {vr(base)}, {vr(base)}, {vr(step)}')
            if amp is not None:
                e(f'v_mul_f32 {vr(c0)}, {amp}, {vr(c0)}\nv_mul_f32 {vr(c1)}, {amp}, {vr(c1)}')
            e(f'v_cvt_pk_f16_f32 {vr(dst + j//2)}, {vr(c0)}, {vr(c1)}')
    fQ, fN, fs, fb, fa, fb2 = t(32), t(33), t(34), t(35), t(36), t(37)
    def col_consts_a():
        tau_tlo()
        e(f'''v_cvt_f32_u32 {vr(fQ)}, {vr(vQ)}
        v_cmp_le_u32 vcc, 8, {vr(vN)}
        s_and_b64 vcc, vcc, {sr(sMz,2)}
        v_mov_b32 {vr(a1)}, 32
        v_cndmask_b32 {vr(a0)}, {vr(vTau)}, {vr(a1)}, vcc
        v_cvt_f32_u32 {vr(fs)}, {vr(a0)}
        v_mul_f32 {vr(fs)}, {fbits(1/64)}, {vr(fs)}
        v_mov_b32 {vr(fa)}, {fbits(0.25)}
        v_cndmask_b32 {vr(fa)}, 0, {vr(fa)}, {sr(sMc,2)}
        v_mul_f32 {vr(fb)}, {fbits(8.0)}, {vr(fQ)}
        v_fma_f32 {vr(fb)}, {vr(fb)}, {vr(fs)}, {vr(fa)}''')
        cos_seq(CB1, fb, fs, 8)
        e(f'''v_and_b32 {vr(a0)}, 1, {vr(a0)}
        v_mul_u32_u24 {vr(a0)}, 0x8000, {vr(a0)}
        v_lshl_or_b32 {vr(a0)}, {vr(a0)}, 16, {vr(a0)}''')
        for k in range(4): e(f'v_xor_b32 {vr(CB1+4+k)}, {vr(a0)}, {vr(CB1+k)}')
    def col_consts_b():
        e(f'v_cvt_f32_u32 {vr(fQ)}, {vr(vQ)}')
        e(f'''v_cvt_f32_u32 {vr(fs)}, {vr(vTlo)}
        v_mul_f32 {vr(fs)}, {fbits(1/2048)}, {vr(fs)}
        v_mul_f32 {vr(fb)}, {vr(fQ)}, {vr(fs)}
        v_fma_f32 {vr(fb)}, {vr(fb)}, 4.0, {vr(fa)}
        v_mov_b32 {vr(a1)}, {fbits(0.25)}
        v_cndmask_b32 {vr(a1)}, {vr(a1)}, 0, {sr(sMz,2)}''')
        e(f'v_add_f32 {vr(fb2)}, {fbits(-0.25)}, {vr(fb)}')
        e(f'v_mul_f32 {vr(a2)}, {fbits(12.0)}, {vr(fs)}')
        for Tt in range(2):
            for i in range(4):
                k = CK + 16*Tt
                e(f'''v_cos_f32 {vr(c0)}, {vr(fb)}
                v_cos_f32 {vr(c1)}, {vr(fb2)}
                v_add_f32 {vr(fb)}, {vr(fb)}, {vr(fs)}
                v_add_f32 {vr(fb2)}, {vr(fb2)}, {vr(fs)}
                v_mul_f32 {vr(k+i)}, {fbits(0.25)}, {vr(c0)}
                v_mul_f32 {vr(k+4+i)}, {vr(a1)}, {vr(c1)}
                v_mul_f32 {vr(k+8+i)}, {fbits(-0.25)}, {vr(c1)}
                v_mul_f32 {vr(k+12+i)}, {vr(a1)}, {vr(c0)}''')
            if Tt == 0: e(f'v_add_f32 {vr(fb)}, {vr(fb)}, {vr(a2)}\nv_add_f32 {vr(fb2)}, {vr(fb2)}, {vr(a2)}')
        e(f'''v_cvt_f32_u32 {vr(fs)}, {vr(vN)}
        v_mul_f32 {vr(fs)}, {fbits(1/32)}, {vr(fs)}
        v_mul_f32 {vr(fb2)}, {vr(fQ)}, {vr(fs)}
        v_mul_f32 {vr(fb2)}, 4.0, {vr(fb2)}''')
        for part, ph in ((0, -0.125), (1, -0.375)):
            e(f'v_add_f32 {vr(fb)}, {fbits(ph)}, {vr(fb2)}')
            cos_seq(CA2 + 2*part, fb, fs, 4, amp=fbits(math.sqrt(2)/8))
        e(f'''v_and_b32 {vr(a0)}, 1, {vr(vN)}
        v_mul_u32_u24 {vr(a0)}, 0x8000, {vr(a0)}
        v_lshl_or_b32 {vr(a0)}, {vr(a0)}, 16, {vr(a0)}''')
        for k in range(4):
            e(f'v_xor_b32 {vr(CA2+4+k)}, {vr(a0)}, {vr(CA2+k)}')
        for k in range(8):
            e(f'v_xor_b32 {vr(CA2+8+k)}, 0x80000000, {vr(CA2+k)}')

    def unpack_nat(dst, src):
        for k in range(4):
            e(f'v_lshlrev_b32 {vr(dst+2*k)}, 16, {vr(src+k)}\nv_and_b32 {vr(dst+2*k+1)}, 0xffff0000, {vr(src+k)}')
    def unpack_rev(dst, src, tmp):
        e(f'''v_lshlrev_b32 {vr(tmp)}, 16, {vr(src)}
        v_and_b32 {vr(dst+7)}, 0xffff0000, {vr(src)}
        v_lshlrev_b32 {vr(dst+6)}, 16, {vr(src+1)}
        v_and_b32 {vr(dst+5)}, 0xffff0000, {vr(src+1)}
        v_mov_b32_dpp {vr(dst)}, {vr(tmp)} wave_ror:1 {DPP}
        v_lshlrev_b32 {vr(dst+4)}, 16, {vr(src+2)}
        v_and_b32 {vr(dst+3)}, 0xffff0000, {vr(src+2)}
        v_lshlrev_b32 {vr(dst+2)}, 16, {vr(src+3)}
        v_and_b32 {vr(dst+1)}, 0xffff0000, {vr(src+3)}''')
    def half_reduce(regs, tmps, op='v_add_f32'):
        for sh in (8, 4, 2, 1):
            for r in regs: e(f'{op}_dpp {vr(r)}, {vr(r)}, {vr(r)} row_ror:{sh} {DPP}')
        for r, tm in zip(regs, tmps): e(f'v_mov_b32 {vr(tm)}, {vr(r)}')
        for r, tm in zip(regs, tmps): e(f'v_permlane16_swap_b32 {vr(r)}, {vr(tm)}')
        for r, tm in zip(regs, tmps): e(f'{op} {vr(r)}, {vr(r)}, {vr(tm)}')
    def wave_reduce(regs, tmps, op='v_add_f32'):
        half_reduce(regs, tmps, op)
        for r, tm in zip(regs, tmps): e(f'v_mov_b32 {vr(tm)}, {vr(r)}')
        for r, tm in zip(regs, tmps): e(f'v_permlane32_swap_b32 {vr(r)}, {vr(tm)}')
        for r, tm in zip(regs, tmps): e(f'{op} {vr(r)}, {vr(r)}, {vr(tm)}')
    hM, hVar, hRho, hB, hR = t(40), t(41), t(42), t(43), t(44)
    def partial(Dd, src, sC, w, o1, o2, o3, P, read=True):
        if read: e(f'v_readfirstlane_b32 {sr(sC)}, {vr(src)}')
        for k in range(4):
            e(f'v_pk_add_f32 {vr(Dd+2*k,2)}, {vr(src+2*k,2)}, {sr(sC,2)} op_sel_hi:[1,0] neg_lo:[0,1] neg_hi:[0,1]')
        e(f'''v_pk_add_f32 {vr(P,2)}, {vr(Dd,2)}, {vr(Dd+2,2)}
        v_pk_mul_f32 {vr(P+2,2)}, {vr(Dd,2)}, {vr(Dd,2)}
        v_pk_add_f32 {vr(P+4,2)}, {vr(Dd+4,2)}, {vr(Dd+6,2)}''')
        if w is not None: e(f'v_pk_mul_f32 {vr(P+6,2)}, {vr(Dd,2)}, {vr(w,2)}')
        for k in range(1, 4):
            e(f'v_pk_fma_f32 {vr(P+2,2)}, {vr(Dd+2*k,2)}, {vr(Dd+2*k,2)}, {vr(P+2,2)}')
            if w is not None: e(f'v_pk_fma_f32 {vr(P+6,2)}, {vr(Dd+2*k,2)}, {vr(w+2*k,2)}, {vr(P+6,2)}')
            if k == 1: e(f'v_pk_add_f32 {vr(P,2)}, {vr(P,2)}, {vr(P+4,2)}')
        e(f'v_add_f32 {vr(o1)}, {vr(P)}, {vr(P+1)}\nv_add_f32 {vr(o2)}, {vr(P+2)}, {vr(P+3)}')
        if w is not None: e(f'v_add_f32 {vr(o3)}, {vr(P+6)}, {vr(P+7)}')
    def moments(S1, S2):
        e(f'''v_mul_f32 {vr(hM)}, {fbits(1/512)}, {vr(S1)}
        v_mul_f32 {vr(S2)}, {fbits(1/512)}, {vr(S2)}
        v_fma_f32 {vr(hVar)}, -{vr(hM)}, {vr(hM)}, {vr(S2)}
        v_add_f32 {vr(S2)}, {fbits(1e-5)}, {vr(hVar)}
        v_rsq_f32 {vr(hRho)}, {vr(S2)}''')
    def stats2(with_r):
        a1_, a2_, a3_, b1_, b2_, b3_ = t(16), t(17), t(18), t(19), t(20), t(21)
        e(f'v_readfirstlane_b32 {sr(sCu)}, {vr(XU)}\nv_readfirstlane_b32 {sr(sCv)}, {vr(XV)}')
        partial(DV, XV, sCv, WV if with_r else None, b1_, b2_, b3_, t(32), read=False) if False else None
        partial(DU, XU, sCu, WU if with_r else None, a1_, a2_, a3_, t(24), read=False)
        partial(DV, XV, sCv, WV if with_r else None, b1_, b2_, b3_, t(32), read=False)
        pairs = [(a1_, b1_), (a2_, b2_)] + ([(a3_, b3_)] if with_r else [])
        for x, y in pairs: e(f'v_permlane32_swap_b32 {vr(x)}, {vr(y)}')
        for x, y in pairs: e(f'v_add_f32 {vr(x)}, {vr(x)}, {vr(y)}')
        half_reduce([x for x, _ in pairs], [y for _, y in pairs])
        moments(a1_, a2_)
        if with_r: e(f'v_fma_f32 {vr(a3_)}, -{vr(hM)}, {sr(sSW)}, {vr(a3_)}')
        e(f'v_mul_f32 {vr(hB)}, -{vr(hM)}, {vr(hRho)}')
        if with_r: e(f'v_mul_f32 {vr(hR)}, {vr(hRho)}, {vr(a3_)}')
    def stats1(src, Dd, dst):
        partial(Dd, src, sCu, None, t(16), t(17), None, t(24))
        wave_reduce([t(16), t(17)], [t(18), t(19)])
        moments(t(16), t(17))
        e(f'''v_readfirstlane_b32 {sr(sKu)}, {vr(hRho)}
        v_mul_f32 {vr(hB)}, -{vr(hM)}, {vr(hRho)}
        v_readfirstlane_b32 {sr(sKu+1)}, {vr(hB)}''')
        for k in range(4): e(f'v_pk_fma_f32 {vr(dst+2*k,2)}, {vr(Dd+2*k,2)}, {sr(sKu,2)}, {sr(sKu,2)} {PKB}')
    def residual_coeffs():
        e(f'''v_mov_b32 {vr(t(22))}, {sr(sCu)}
        v_mov_b32 {vr(t(23))}, {sr(sCv)}
        v_cmp_gt_u32 vcc, 32, {vr(vL)}
        v_add_f32 {vr(t(21))}, 1.0, {vr(hRho)}
        v_cndmask_b32 {vr(t(22))}, {vr(t(23))}, {vr(t(22))}, vcc
        v_add_f32 {vr(t(22))}, {vr(t(22))}, {vr(hB)}
        v_readlane_b32 {sr(sAu)}, {vr(t(21))}, 0
        v_readlane_b32 {sr(sAv)}, {vr(t(21))}, 32
        v_readlane_b32 {sr(sAu+1)}, {vr(t(22))}, 0
        v_readlane_b32 {sr(sAv+1)}, {vr(t(22))}, 32''')
    def residual_update(dU, dV):
        for k in range(4): e(f'v_pk_fma_f32 {vr(dU+2*k,2)}, {vr(DU+2*k,2)}, {sr(sAu,2)}, {sr(sAu,2)} {PKB}')
        for k in range(4): e(f'v_pk_fma_f32 {vr(dV+2*k,2)}, {vr(DV+2*k,2)}, {sr(sAv,2)}, {sr(sAv,2)} {PKB}')
    def norm_coeffs(scale, bias):
        e(f'''v_readlane_b32 {sr(sKu)}, {vr(scale)}, 0
        v_readlane_b32 {sr(sKu+1)}, {vr(bias)}, 0
        v_readlane_b32 {sr(sKv)}, {vr(scale)}, 32
        v_readlane_b32 {sr(sKv+1)}, {vr(bias)}, 32''')
    GG = t(16)
    def make_g():
        for k in range(4): e(f'v_pk_fma_f32 {vr(GG+2*k,2)}, {vr(DU+2*k,2)}, {sr(sKu,2)}, {sr(sKu,2)} {PKB}')
        for k in range(4): e(f'v_pk_fma_f32 {vr(GG+2*k,2)}, {vr(DV+2*k,2)}, {sr(sKv,2)}, {vr(GG+2*k,2)} op_sel_hi:[1,0,1]')
    def write_n(src, tmp):
        for k in range(4): e(f'v_cvt_pk_f16_f32 {vr(tmp+k)}, {vr(src+2*k)}, {vr(src+2*k+1)}')
        e(f'ds_write_b128 {vr(lRow)}, {vr(tmp,4)} offset:{GIMG}')
    def write_r(src, tmp):
        e(f'''v_mov_b32_dpp {vr(tmp+4)}, {vr(src)} wave_rol:1 {DPP}
        v_cvt_pk_f16_f32 {vr(tmp+1)}, {vr(src+6)}, {vr(src+5)}
        v_cvt_pk_f16_f32 {vr(tmp+2)}, {vr(src+4)}, {vr(src+3)}
        v_cvt_pk_f16_f32 {vr(tmp+3)}, {vr(src+2)}, {vr(src+1)}
        v_cvt_pk_f16_f32 {vr(tmp)}, {vr(tmp+4)}, {vr(src+7)}
        ds_write_b128 {vr(lRw)}, {vr(tmp,4)}''')
    def core(A, O):
        Dr = [t(0), t(8)]; Di = [t(4), t(12)]
        for Tt in range(2):
            e(f'v_mfma_f32_16x16x32_f16 {vr(Dr[Tt],4)}, {vr(A,4)}, {vr(RB1+(2*Tt)*4,4)}, 0')
            e(f'v_mfma_f32_16x16x32_f16 {vr(Di[Tt],4)}, {vr(A,4)}, {vr(RB1+(2*Tt+1)*4,4)}, 0')
        Bo = [t(16), t(20)]; br, bi = t(24), t(28)
        for Tt in range(2):
            for h in range(2):
                c = vr(RC+4*Tt+2*h, 2); s_ = vr(RS+4*Tt+2*h, 2)
                dr = vr(Dr[Tt]+2*h, 2); di = vr(Di[Tt]+2*h, 2)
                e(f'''v_pk_mul_f32 {vr(br+2*h,2)}, {dr}, {c}
                v_pk_mul_f32 {vr(bi+2*h,2)}, {di}, {c}
                v_pk_fma_f32 {vr(br+2*h,2)}, {di}, {s_}, {vr(br+2*h,2)}
                v_pk_fma_f32 {vr(bi+2*h,2)}, {dr}, {s_}, {vr(bi+2*h,2)} neg_lo:[1,0,0] neg_hi:[1,0,0]''')
            e(f'''v_cvt_pk_f16_f32 {vr(Bo[Tt])}, {vr(br)}, {vr(br+1)}
            v_cvt_pk_f16_f32 {vr(Bo[Tt]+1)}, {vr(br+2)}, {vr(br+3)}
            v_cvt_pk_f16_f32 {vr(Bo[Tt]+2)}, {vr(bi)}, {vr(bi+1)}
            v_cvt_pk_f16_f32 {vr(Bo[Tt]+3)}, {vr(bi+2)}, {vr(bi+3)}''')
            e(f'v_mfma_f32_16x16x32_f16 {vr(O+4*Tt,4)}, {vr(RA2,4)}, {vr(Bo[Tt],4)}, 0')

    CA, CO = t(32), t(36)
    def transform(dst_off, tagged=False, pre_core=None, post_scatter=None, pre_store=None):
        write_n(GG, t(24))
        e(f"""ds_read_b64_tr_b16 {vr(CA,2)}, {vr(lTr)} offset:{GIMG}
        ds_read_b64_tr_b16 {vr(CA+2,2)}, {vr(lTr)} offset:{GIMG+128}""")
        if pre_core: pre_core()
        e('s_waitcnt lgkmcnt(0)')
        core(CA, CO)
        for k in range(4): e(f'v_cvt_pk_f16_f32 {vr(t(44)+k)}, {vr(CO+2*k)}, {vr(CO+2*k+1)}')
        for Tt in range(2):
            for i in range(4):
                op = 'ds_write_b16' if i % 2 == 0 else 'ds_write_b16_d16_hi'
                e(f'{op} {vr(lH+Tt)}, {vr(t(44) + 2*Tt + i//2)} offset:{512*i}')
        e(f'ds_write_b16_d16_hi {vr(lHf)}, {vr(t(45))}\nds_write_b16_d16_hi {vr(lHf+1)}, {vr(t(45))}')
        if post_scatter: post_scatter()
        if tagged:
            e(f"""v_lshlrev_b32 {vr(t(8))}, 3, v0
            s_lshl_b32 {sr(sT)}, {sr(sRho)}, 13
            v_add_u32 {vr(t(9))}, {sr(sT)}, {vr(lG)}""")
            for k in (1, 3, 5, 7): e(f'v_mov_b32 {vr(t(k))}, {sr(sTag)}')
            if pre_store: pre_store()
            e(f"""s_waitcnt lgkmcnt(0)
            s_barrier
            ds_read_b32 {vr(t(0))}, {vr(t(8))} offset:{HIMG}
            ds_read_b32 {vr(t(2))}, {vr(t(8))} offset:{HIMG+4}
            ds_read_b32 {vr(t(4))}, {vr(t(8))} offset:{HIMG+2048}
            ds_read_b32 {vr(t(6))}, {vr(t(8))} offset:{HIMG+2052}
            s_mov_b32 {sr(sOff)}, {dst_off}
            s_mov_b32 {sr(sT)}, {dst_off+4096}
            s_waitcnt lgkmcnt(2)
            buffer_store_dwordx4 {vr(t(0),4)}, {vr(t(9))}, {sr(sWS,4)}, {sr(sOff)} offen sc1
            s_waitcnt lgkmcnt(0)
            buffer_store_dwordx4 {vr(t(4),4)}, {vr(t(9))}, {sr(sWS,4)}, {sr(sT)} offen sc1""")
        else:
            if pre_store: pre_store()
            e(f"""s_waitcnt lgkmcnt(0)
            s_barrier
            ds_read_b128 {vr(t(0),4)}, {vr(lG)} offset:{HIMG}
            s_mov_b32 {sr(sOff)}, {dst_off}
            s_waitcnt lgkmcnt(0)
            buffer_store_dwordx4 {vr(t(0),4)}, {vr(aP16)}, {sr(sWS,4)}, {sr(sOff)} offen sc1""")

    def affine_from_x(sx1x0_u, sx1x0_v, sKu_, sKv_, outU, outV):
        for (xx, cc, kk, oo) in ((sx1x0_u, sCu, sKu_, outU), (sx1x0_v, sCv, sKv_, outV)):
            if xx is None:
                e(f"""v_mov_b32 {vr(t(44))}, {sr(kk)}
                v_mov_b32 {vr(t(45))}, {sr(kk+1)}
                v_fma_f32 {vr(t(45))}, -{vr(t(44))}, {sr(cc)}, {vr(t(45))}""")
            else:
                e(f"""v_rcp_f32 {vr(t(44))}, {sr(xx)}
                v_mov_b32 {vr(t(45))}, {sr(kk+1)}
                v_mul_f32 {vr(t(44))}, {sr(kk)}, {vr(t(44))}
                v_fma_f32 {vr(t(45))}, -{vr(t(44))}, {sr(xx+1)}, {vr(t(45))}""")
            e(f'v_readfirstlane_b32 {sr(oo)}, {vr(t(44))}\nv_readfirstlane_b32 {sr(oo+1)}, {vr(t(45))}')

    def special_k(dst_off, after_residual):
        ln = g.lab('nok')
        e(f's_cmp_lg_u32 {sr(sRowU)}, 0\ns_cbranch_scc1 {ln}')
        affine_from_x(sAu if after_residual else None, sAv if after_residual else None, sKu, sKv, sH, sH+2)
        ZU, ZV = t(0), t(8)
        for k in range(4): e(f'v_pk_fma_f32 {vr(ZU+2*k,2)}, {vr(XU+2*k,2)}, {sr(sH,2)}, {sr(sH,2)} {PKB}')
        for k in range(4): e(f'v_pk_fma_f32 {vr(ZV+2*k,2)}, {vr(XV+2*k,2)}, {sr(sH+2,2)}, {sr(sH+2,2)} {PKB}')
        write_r(ZU, t(16)); write_n(ZV, t(24))
        A, B = CA, t(40)
        e(f"""ds_read_b64_tr_b16 {vr(A,2)}, {vr(lTr)} offset:{RIMG}
        ds_read_b64_tr_b16 {vr(B,2)}, {vr(lTr)} offset:{GIMG}
        ds_read_b64_tr_b16 {vr(A+2,2)}, {vr(lTr)} offset:{RIMG+128}
        ds_read_b64_tr_b16 {vr(B+2,2)}, {vr(lTr)} offset:{GIMG+128}
        s_waitcnt lgkmcnt(0)""")
        for k in range(4): e(f'v_pk_add_f16 {vr(A+k)}, {vr(A+k)}, {vr(B+k)} neg_lo:[0,1] neg_hi:[0,1]')
        core(A, CO)
        for k in range(4): e(f'v_pk_mul_f32 {vr(CO+2*k,2)}, {vr(CO+2*k,2)}, {sr(sT2 if False else sM2,2)} op_sel_hi:[1,0]' if False else f'v_mul_f32 {vr(CO+2*k)}, {fbits(1/16)}, {vr(CO+2*k)}\nv_mul_f32 {vr(CO+2*k+1)}, {fbits(1/16)}, {vr(CO+2*k+1)}')
        for k in range(4): e(f'v_cvt_pk_f16_f32 {vr(t(44)+k)}, {vr(CO+2*k)}, {vr(CO+2*k+1)}')
        e(f"""v_lshl_add_u32 {vr(t(0))}, {vr(vQ)}, 7, {vr(vN)}
        v_lshlrev_b32 {vr(t(0))}, 1, {vr(t(0))}
        v_sub_u32 {vr(t(1))}, {1024-32-192}, {vr(t(0))}
        v_mov_b32 {vr(t(2))}, 512
        s_mov_b32 exec_lo, -1
        s_mov_b32 exec_hi, 0""")
        for Tt in range(2):
            for i in range(4):
                op = 'ds_write_b16' if i % 2 == 0 else 'ds_write_b16_d16_hi'
                e(f'{op} {vr(t(0))}, {vr(t(44)+2*Tt+i//2)} offset:{KIMG + 32*Tt + 64*i}')
                e(f'{op} {vr(t(1))}, {vr(t(44)+2*Tt+i//2)} offset:{KIMG + 32*(1-Tt) + 64*(3-i)}')
        e(f"""s_mov_b32 exec_lo, 0
        s_mov_b32 exec_hi, 0x00010000
        ds_write_b16_d16_hi {vr(t(2))}, {vr(t(45))} offset:{KIMG}
        s_mov_b64 exec, -1
        v_lshlrev_b32 {vr(t(3))}, 4, {vr(vL)}
        s_waitcnt lgkmcnt(0)
        ds_read_b128 {vr(t(4),4)}, {vr(t(3))} offset:{KIMG}
        s_mov_b32 {sr(sOff)}, {dst_off}
        s_waitcnt lgkmcnt(0)
        buffer_store_dwordx4 {vr(t(4),4)}, {vr(t(3))}, {sr(sWS,4)}, {sr(sOff)} offen sc1
        {ln}:""")

    PC = t(40)
    def column_load(src_off):
        e(f's_mov_b32 {sr(sOff)}, {src_off}')
        e(ws_load_text(4, PC, aS16, sr(sOff)))
    def column(src_off, dst_off, preloaded, tagged=False):
        P = PC
        e(f's_mov_b32 {sr(sOff)}, {src_off}')
        if tagged:
            P = t(0); A2 = t(44); AD1 = t(8)
            e(f'''v_lshrrev_b32 {vr(AD1)}, 1, v0
            v_lshlrev_b32 {vr(AD1)}, 13, {vr(AD1)}
            v_and_b32 {vr(t(9))}, 1, v0
            v_lshl_add_u32 {vr(AD1)}, {vr(t(9))}, 4, {vr(AD1)}
            s_lshl_b32 {sr(sT)}, {sr(sRho)}, 5
            v_add_u32 {vr(AD1)}, {sr(sT)}, {vr(AD1)}
            s_add_u32 {sr(sT3)}, {sr(sOff)}, {128*8192}''')
            ld = ws_load_text(4, P, AD1, sr(sOff)) + '\n' + ws_load_text(4, P+4, AD1, sr(sT3))
            if opt.get('splitc'):
                e(ld); col_consts_b(); e('s_waitcnt vmcnt(0)')
                poll(ld, ('tag', P), preloaded=True)
            else:
                poll(ld, ('tag', P))
            stamp('col data')
            for k in range(2):
                e(f'''ds_write_b16 {vr(A2+2*k)}, {vr(P+4*k)}
                ds_write_b16_d16_hi {vr(A2+2*k+1)}, {vr(P+4*k)} offset:16
                ds_write_b16 {vr(A2+2*k+1)}, {vr(P+4*k+2)} offset:32
                ds_write_b16_d16_hi {vr(A2+2*k+1)}, {vr(P+4*k+2)} offset:48''')
            e('s_waitcnt lgkmcnt(0)\ns_barrier')
        else:
            poll(ws_load_text(4, P, aS16, sr(sOff)), range(P, P+4), preloaded=preloaded)
            lsw = g.lab('nosw')
            e(f's_bitcmp0_b32 {sr(sRho)}, 3\ns_cbranch_scc1 {lsw}\nv_swap_b32 {vr(P)}, {vr(P+2)}\nv_swap_b32 {vr(P+1)}, {vr(P+3)}\n{lsw}:')
            d = [P, P+1, P+2, P+3]
            stamp('col data')
            e(f"""ds_write_b16 {vr(lCa)}, {vr(d[0])}
            ds_write_b16_d16_hi {vr(lCa)}, {vr(d[0])} offset:16
            ds_write_b16 {vr(lCa)}, {vr(d[1])} offset:32
            ds_write_b16_d16_hi {vr(lCa)}, {vr(d[1])} offset:48
            ds_write_b16 {vr(lCb)}, {vr(d[2])}
            ds_write_b16_d16_hi {vr(lCc)}, {vr(d[2])} offset:16
            ds_write_b16 {vr(lCc)}, {vr(d[3])} offset:32
            ds_write_b16_d16_hi {vr(lCc)}, {vr(d[3])} offset:48
            s_waitcnt lgkmcnt(0)
            s_barrier""")
        A = t(0)
        for k in range(4): e(f'ds_read_b128 {vr(A+4*k,4)}, {vr(lCr)} offset:{tables.cin_block(k)}')
        D1 = [t(16), t(20)]
        e(f"""s_waitcnt lgkmcnt(3)
        v_mfma_f32_16x16x32_f16 {vr(D1[0],4)}, {vr(A,4)}, {vr(CB1,4)}, 0
        s_waitcnt lgkmcnt(2)
        v_mfma_f32_16x16x32_f16 {vr(D1[0],4)}, {vr(A+4,4)}, {vr(CB1+4,4)}, {vr(D1[0],4)}
        s_waitcnt lgkmcnt(1)
        v_mfma_f32_16x16x32_f16 {vr(D1[1],4)}, {vr(A+8,4)}, {vr(CB1,4)}, 0
        s_waitcnt lgkmcnt(0)
        v_mfma_f32_16x16x32_f16 {vr(D1[1],4)}, {vr(A+12,4)}, {vr(CB1+4,4)}, {vr(D1[1],4)}""")
        Bb = t(24); br, bi = t(28), t(32); Bo = [t(0), t(4)]
        O = [t(8), t(12)]
        for Tt in range(2):
            k = CK + 16*Tt
            for i in range(4): e(f'v_mov_b32_dpp {vr(Bb+i)}, {vr(D1[Tt]+i)} row_ror:8 {DPP}')
            for h in range(2):
                e(f"""v_pk_mul_f32 {vr(br+2*h,2)}, {vr(D1[Tt]+2*h,2)}, {vr(k+2*h,2)}
                v_pk_mul_f32 {vr(bi+2*h,2)}, {vr(D1[Tt]+2*h,2)}, {vr(k+8+2*h,2)}""")
            for h in range(2):
                e(f"""v_pk_fma_f32 {vr(br+2*h,2)}, {vr(Bb+2*h,2)}, {vr(k+4+2*h,2)}, {vr(br+2*h,2)}
                v_pk_fma_f32 {vr(bi+2*h,2)}, {vr(Bb+2*h,2)}, {vr(k+12+2*h,2)}, {vr(bi+2*h,2)}""")
            e(f"""v_cvt_pk_f16_f32 {vr(Bo[Tt])}, {vr(br)}, {vr(br+1)}
            v_cvt_pk_f16_f32 {vr(Bo[Tt]+1)}, {vr(br+2)}, {vr(br+3)}
            v_cvt_pk_f16_f32 {vr(Bo[Tt]+2)}, {vr(bi)}, {vr(bi+1)}
            v_cvt_pk_f16_f32 {vr(Bo[Tt]+3)}, {vr(bi+2)}, {vr(bi+3)}""")
            e(f"""v_mfma_f32_16x16x32_f16 {vr(O[0],4)}, {vr(CA2+4*Tt,4)}, {vr(Bo[Tt],4)}, {"0" if Tt == 0 else vr(O[0],4)}
            v_mfma_f32_16x16x32_f16 {vr(O[1],4)}, {vr(CA2+8+4*Tt,4)}, {vr(Bo[Tt],4)}, {"0" if Tt == 0 else vr(O[1],4)}""")
        e(f"""        v_cvt_pk_f16_f32 {vr(t(16))}, {vr(O[0])}, {vr(O[0]+1)}
        v_cvt_pk_f16_f32 {vr(t(17))}, {vr(O[0]+2)}, {vr(O[0]+3)}
        ds_write_b16 {vr(lCo)}, {vr(t(16))}
        ds_write_b16_d16_hi {vr(lCo)}, {vr(t(16))} offset:256
        v_cvt_pk_f16_f32 {vr(t(18))}, {vr(O[1])}, {vr(O[1]+1)}
        v_cvt_pk_f16_f32 {vr(t(19))}, {vr(O[1]+2)}, {vr(O[1]+3)}
        ds_write_b16 {vr(lCo)}, {vr(t(17))} offset:512
        ds_write_b16_d16_hi {vr(lCo)}, {vr(t(17))} offset:768
        ds_write_b16 {vr(lCo+2)}, {vr(t(18))}
        ds_write_b16_d16_hi {vr(lCo+1)}, {vr(t(18))} offset:512
        ds_write_b16 {vr(lCo+1)}, {vr(t(19))} offset:256
        ds_write_b16_d16_hi {vr(lCo+1)}, {vr(t(19))}
        s_waitcnt lgkmcnt(0)
        s_barrier
        ds_read_b128 {vr(t(0),4)}, {vr(lG)} offset:{COUT}
        s_mov_b32 {sr(sOff)}, {dst_off}
        s_waitcnt lgkmcnt(0)
        buffer_store_dwordx4 {vr(t(0),4)}, {vr(aP16)}, {sr(sWS,4)}, {sr(sOff)} offen sc1""")

    YH, YV, KT = t(4), t(8), t(12)
    def row_input(src_off, kb, with_weights=False):
        P = t(0)
        lk = g.lab('nok')
        e(f's_bitcmp0_b32 {sr(sW)}, 0\ns_cbranch_scc1 {lk}')
        e(f'v_lshlrev_b32 {vr(t(16))}, 4, {vr(vL)}\ns_mov_b32 {sr(sT3)}, {kb}')
        e(ws_load_text(4, KT, t(16), sr(sT3)))
        e(f'{lk}:')
        e(f's_mov_b32 {sr(sOff)}, {src_off}')
        ld = ws_load_text(4, P, aS16, sr(sOff))
        if with_weights:
            lw = g.lab('now'); lw2 = g.lab('now2')
            e(ld)
            e(f's_cmp_ge_u32 {sr(sPhi)}, {NF}\ns_cbranch_scc1 {lw}')
            e(f's_mov_b32 {sr(sCnt)}, {sr(sT3)}')
            weight_loads()
            e(f's_mov_b32 {sr(sT3)}, {sr(sCnt)}\ns_mov_b32 {sr(sOff)}, {src_off}\ns_waitcnt vmcnt(6)\ns_branch {lw2}\n{lw}:\ns_waitcnt vmcnt(0)\n{lw2}:')
            poll(ld, range(P, P+4), preloaded=True)
        else:
            poll(ld, range(P, P+4))
        stamp('row data')
        def wr(slot, areg, off):
            op = 'ds_write_b16' if slot % 2 == 0 else 'ds_write_b16_d16_hi'
            e(f'{op} {vr(areg)}, {vr(P + slot//2)} offset:{YIMG + off}')
        for j in range(4): wr(j, lYd, j*1024)
        wr(4, lYm4, 0); wr(5, lYm, 3*1024); wr(6, lYm, 2*1024); wr(7, lYm, 1024)
        l0 = g.lab('not0')
        e(f's_cmp_lg_u32 {sr(sRho)}, 0\ns_cbranch_scc1 {l0}')
        wr(0, lYm, 0); wr(4, lYd, 4096)
        e(f"""{l0}:
        s_waitcnt lgkmcnt(0)
        s_barrier
        ds_read_b128 {vr(YH,4)}, {vr(lRow)} offset:{YIMG}""")
        lv = g.lab('yv')
        e(f"""s_cmp_lg_u32 {sr(sRowU)}, 0
        s_cbranch_scc1 {lv}
        ds_read_b128 {vr(YV,4)}, {vr(lRow)} offset:{YIMG+4096}
        {lv}:""")
        lk = g.lab('nok2')
        e(f's_bitcmp0_b32 {sr(sW)}, 0\ns_cbranch_scc1 {lk}')
        poll(ws_load_text(4, KT, t(16), sr(sT3)), range(KT, KT+4), preloaded=True)
        e('s_waitcnt lgkmcnt(0)')
        for k in range(4): e(f'v_pk_add_f16 {vr(YH+k)}, {vr(YH+k)}, {vr(KT+k)}')
        e(f'{lk}:\ns_waitcnt lgkmcnt(0)')
    def add_y(yu, yv):
        for k in range(4):
            e(f"""v_fma_mix_f32 {vr(XU+2*k)}, {vr(yu+k)}, {sr(s16)}, {vr(XU+2*k)} op_sel:[0,0,0] op_sel_hi:[1,0,0]
            v_fma_mix_f32 {vr(XU+2*k+1)}, {vr(yu+k)}, {sr(s16)}, {vr(XU+2*k+1)} op_sel:[1,0,0] op_sel_hi:[1,0,0]""")
        for k in range(4):
            e(f"""v_fma_mix_f32 {vr(XV+2*k)}, {vr(yv+k)}, {sr(s16)}, {vr(XV+2*k)} op_sel:[0,0,0] op_sel_hi:[1,0,0]
            v_fma_mix_f32 {vr(XV+2*k+1)}, {vr(yv+k)}, {sr(s16)}, {vr(XV+2*k+1)} op_sel:[1,0,0] op_sel_hi:[1,0,0]""")
    def add_y_pair():
        ls = g.lab('ysp'); lj = g.lab('yj')
        e(f's_cmp_eq_u32 {sr(sRowU)}, 0\ns_cbranch_scc1 {ls}')
        add_y(YH, YH)
        e(f'{lj}:')
        g.late.append((ls, lj))
    g.late = []

    def make_key():
        e(f"""v_ashrrev_i32 {vr(t(22))}, 31, {vr(hR)}
        v_or_b32 {vr(t(22))}, 0x80000000, {vr(t(22))}
        v_xor_b32 {vr(t(22))}, {vr(hR)}, {vr(t(22))}
        v_and_b32 {vr(t(22))}, 0xfffff800, {vr(t(22))}
        v_or_b32 {vr(t(22))}, {vr(vRowH)}, {vr(t(22))}
        v_readlane_b32 {sr(sKeyU)}, {vr(t(22))}, 0
        v_readlane_b32 {sr(sKeyV)}, {vr(t(22))}, 32
        s_lshl_b32 {sr(sT)}, {sr(sW)}, 2
        v_mov_b32 {vr(t(23))}, {sr(sT)}
        s_max_u32 {sr(sKey)}, {sr(sKeyU)}, {sr(sKeyV)}
        v_mov_b32 {vr(t(22))}, {sr(sKey)}
        ds_write_b32 {vr(t(23))}, {vr(t(22))} offset:{AM}""")
    def wg_best_read(tmp):
        e(f'v_mov_b32 {vr(tmp+4)}, 0\nds_read_b128 {vr(tmp,4)}, {vr(tmp+4)} offset:{AM}')
    def wg_best_header(cand, tmp):
        ln = g.lab('nohdr')
        e(f"""v_max3_u32 {vr(tmp)}, {vr(tmp)}, {vr(tmp+1)}, {vr(tmp+2)}
        v_max_u32 {vr(tmp)}, {vr(tmp)}, {vr(tmp+3)}
        v_readfirstlane_b32 {sr(sT)}, {vr(tmp)}
        s_cmp_eq_u32 {sr(sT)}, {sr(sKey)}
        s_cselect_b32 {sr(sSgn)}, 1, 0
        s_cbranch_scc0 {ln}
        s_lshl_b32 {sr(sT)}, {sr(sRho)}, 12
        s_add_u32 {sr(sOff)}, {sr(sT)}, {cand}
        v_mov_b32 {vr(tmp+1)}, {sr(sKey)}
        s_mov_b64 exec, 1
        buffer_store_dword {vr(tmp+1)}, {vr(tmp+4)}, {sr(sWS,4)}, {sr(sOff)} offen sc1
        s_mov_b64 exec, -1
        {ln}:""")
    def publish_rows(cand):
        ln = g.lab('nopub'); lv = g.lab('pubv'); lj = g.lab('pubj')
        e(f's_cmp_eq_u32 {sr(sSgn)}, 0\ns_cbranch_scc1 {ln}')
        e(f"""s_lshl_b32 {sr(sT)}, {sr(sRho)}, 12
        s_add_u32 {sr(sOff)}, {sr(sT)}, {cand}
        s_cmp_gt_u32 {sr(sKeyV)}, {sr(sKeyU)}
        s_cbranch_scc1 {lv}""")
        for (lab_, X_, A_, C_) in ((None, XU, sAu, sCu), (lv, XV, sAv, sCv)):
            if lab_: e(f'{lab_}:')
            e(f"""v_rcp_f32 {vr(t(0))}, {sr(A_)}
            v_mov_b32 {vr(t(1))}, {sr(A_+1)}
            v_mov_b32 {vr(t(2))}, {sr(A_)}
            v_add_f32 {vr(t(2))}, -1.0, {vr(t(2))}
            v_subrev_f32 {vr(t(3))}, {sr(C_)}, {vr(t(1))}
            v_mul_f32 {vr(t(4))}, {vr(t(2))}, {vr(t(0))}
            v_fma_f32 {vr(t(6))}, -{vr(t(4))}, {vr(t(1))}, {vr(t(3))}""")
            Z = t(8)
            for k in range(4): e(f'v_pk_fma_f32 {vr(Z+2*k,2)}, {vr(X_+2*k,2)}, {vr(t(4),2)}, {vr(t(6),2)} op_sel_hi:[1,0,0]')
            if X_ == XU:
                for k in range(4): e(f'v_cvt_pk_bf16_f32 {vr(t(16)+k)}, {vr(Z+2*k)}, {vr(Z+2*k+1)}')
                e(f"""v_lshlrev_b32 {vr(t(1))}, 4, {vr(vL)}
                v_lshlrev_b32 {vr(t(2))}, 5, {vr(vL)}
                buffer_store_dwordx4 {vr(t(16),4)}, {vr(t(1))}, {sr(sWS,4)}, {sr(sOff)} offen offset:128 sc1
                buffer_store_dwordx4 {vr(XU,4)}, {vr(t(2))}, {sr(sWS,4)}, {sr(sOff)} offen offset:1152 sc1
                buffer_store_dwordx4 {vr(XU+4,4)}, {vr(t(2))}, {sr(sWS,4)}, {sr(sOff)} offen offset:1168 sc1
                s_branch {lj}""")
            else:
                e(f"""v_mov_b32_dpp {vr(t(20))}, {vr(Z)} wave_rol:1 {DPP}
                v_mov_b32_dpp {vr(t(24))}, {vr(XV)} wave_rol:1 {DPP}
                v_cvt_pk_bf16_f32 {vr(t(17))}, {vr(Z+6)}, {vr(Z+5)}
                v_cvt_pk_bf16_f32 {vr(t(18))}, {vr(Z+4)}, {vr(Z+3)}
                v_cvt_pk_bf16_f32 {vr(t(19))}, {vr(Z+2)}, {vr(Z+1)}
                v_cvt_pk_bf16_f32 {vr(t(16))}, {vr(t(20))}, {vr(Z+7)}""")
                for k in range(1, 8): e(f'v_mov_b32 {vr(t(24)+k)}, {vr(XV+8-k)}')
                e(f"""v_lshlrev_b32 {vr(t(1))}, 4, {vr(vL)}
                v_sub_u32 {vr(t(1))}, 1008, {vr(t(1))}
                v_lshlrev_b32 {vr(t(2))}, 1, {vr(t(1))}
                buffer_store_dwordx4 {vr(t(16),4)}, {vr(t(1))}, {sr(sWS,4)}, {sr(sOff)} offen offset:128 sc1
                buffer_store_dwordx4 {vr(t(24),4)}, {vr(t(2))}, {sr(sWS,4)}, {sr(sOff)} offen offset:1152 sc1
                buffer_store_dwordx4 {vr(t(28),4)}, {vr(t(2))}, {sr(sWS,4)}, {sr(sOff)} offen offset:1168 sc1""")
        e(f'{lj}:\n{ln}:')

    def header_load(cand, K):
        e(f's_mov_b32 {sr(sOff)}, {cand}')
        e(ws_load_text(1, K, aHdr, sr(sOff)))
    def argmax(cand, K, after_check=None):
        e(f's_mov_b32 {sr(sOff)}, {cand}')
        poll(ws_load_text(1, K, aHdr, sr(sOff)), [K], preloaded=True, backoff=4)
        if after_check: after_check()
        wave_reduce([K], [t(1)], op='v_max_u32')
        e(f"""s_lshl_b32 {sr(sT)}, {sr(sW)}, 2
        v_mov_b32 {vr(t(1))}, {sr(sT)}
        ds_write_b32 {vr(t(1))}, {vr(K)} offset:{AM+32}
        v_mov_b32 {vr(t(1))}, 0
        s_waitcnt lgkmcnt(0)
        s_barrier
        ds_read_b128 {vr(t(4),4)}, {vr(t(1))} offset:{AM+32}
        s_waitcnt lgkmcnt(0)
        v_max3_u32 {vr(t(4))}, {vr(t(4))}, {vr(t(5))}, {vr(t(6))}
        v_max_u32 {vr(t(4))}, {vr(t(4))}, {vr(t(7))}
        v_readfirstlane_b32 {sr(sKey)}, {vr(t(4))}""")
        e(f"""s_and_b32 {sr(sStar)}, {sr(sKey)}, 2047
        s_lshr_b32 {sr(sT)}, {sr(sStar)}, 2
        s_sub_u32 {sr(sT2)}, 511, {sr(sT)}
        s_sub_u32 {sr(sT3)}, 512, {sr(sT)}
        s_and_b32 {sr(sT3)}, {sr(sT3)}, 255
        s_and_b32 {sr(sRec)}, {sr(sStar)}, 3
        s_cmp_eq_u32 {sr(sRec)}, 0
        s_cselect_b32 {sr(sT2)}, {sr(sT3)}, {sr(sT2)}
        s_cmp_lt_u32 {sr(sStar)}, 1024
        s_cselect_b32 {sr(sT2)}, {sr(sT)}, {sr(sT2)}
        s_lshl_b32 {sr(sRec)}, {sr(sT2)}, 12
        s_add_u32 {sr(sRec)}, {sr(sRec)}, {cand}""")
    def sigmoid_of_key():
        e(f"""s_and_b32 {sr(sT)}, {sr(sKey)}, 0xfffff800
        s_or_b32 {sr(sT)}, {sr(sT)}, 0x400
        s_ashr_i32 {sr(sT2)}, {sr(sT)}, 31
        s_not_b32 {sr(sT2)}, {sr(sT2)}
        s_or_b32 {sr(sT2)}, {sr(sT2)}, 0x80000000
        s_xor_b32 {sr(sT)}, {sr(sT)}, {sr(sT2)}
        v_mov_b32 {vr(vSig)}, {fbits(-1.4426950408889634)}
        v_mul_f32 {vr(vSig)}, {sr(sT)}, {vr(vSig)}
        v_exp_f32 {vr(vSig)}, {vr(vSig)}
        v_add_f32 {vr(vSig)}, 1.0, {vr(vSig)}
        v_rcp_f32 {vr(vSig)}, {vr(vSig)}""")

    def ffn_setup():
        e(f"""v_and_b32 {vr(t(0))}, 3, {vr(vN)}
        v_lshrrev_b32 {vr(t(1))}, 2, {vr(vN)}
        v_lshl_add_u32 {vr(t(1))}, {vr(vQ)}, 3, {vr(t(1))}
        s_lshl_b32 {sr(sT)}, {sr(sW)}, 7
        v_add_u32 {vr(t(1))}, {sr(sT)}, {vr(t(1))}
        v_lshlrev_b32 {vr(t(1))}, 4, {vr(t(1))}
        v_and_b32 {vr(t(3))}, 1, {vr(t(0))}
        v_lshl_add_u32 {vr(t(1))}, {vr(t(3))}, 3, {vr(t(1))}
        v_lshrrev_b32 {vr(t(3))}, 1, {vr(t(0))}
        v_lshl_add_u32 {vr(t(1))}, {vr(t(3))}, 13, {vr(t(1))}
        v_lshlrev_b32 {vr(t(2))}, 2, v0""")
        g.nbar_mark = sum(1 for l in g.L if l == 's_barrier')
        e('s_barrier')
        for kap in range(4):
            for h in range(2):
                e(f'ds_read_b64_tr_b16 {vr(FA+4*kap+2*h,2)}, {vr(t(1))} offset:{GU + kap*512 + h*64}')
        for f in range(8): e(f'ds_read_b32 {vr(t(8)+f)}, {vr(t(2))} offset:{DN + f*1024}')
        e('s_waitcnt lgkmcnt(0)')
        for f in range(8):
            e(f'v_lshlrev_b32 {vr(FD+2*f)}, 16, {vr(t(8)+f)}\nv_and_b32 {vr(FD+2*f+1)}, 0xffff0000, {vr(t(8)+f)}')
    def loader():
        e('L_loader:')
        if not opt.get('nohint'):
            lh = g.lab('nohint')
            e(f's_cmp_lt_u32 {sr(sWg)}, 248\ns_cbranch_scc1 {lh}')
            srd(sT4, kx, 2097152); srd(sWS, sKC, WS_SIZE)
            e(f'''s_lshl_b32 {sr(sT2)}, {sr(sRho)}, 12
            v_lshlrev_b32 {vr(t(1))}, 4, {vr(vL)}
            v_add_u32 {vr(t(2))}, {sr(sT2)}, {vr(t(1))}
            v_mov_b32 {vr(t(4))}, {NONCE}
            buffer_load_dword {vr(t(3))}, {vr(t(2))}, {sr(sT4,4)}, 0 offen
            buffer_load_dword {vr(t(4))}, {vr(t(4))}, {sr(sWS,4)}, 0 offen
            s_and_b32 {sr(sT)}, {sr(sWg)}, 7
            s_lshl_b32 {sr(sT)}, {sr(sT)}, 8
            v_mov_b32 {vr(t(5))}, {sr(sT)}
            s_waitcnt vmcnt(0)
            v_add_u32 {vr(t(4))}, 1, {vr(t(4))}
            s_mov_b64 exec, 1''')
            ws_store(1, t(4), t(5), HINT)
            e(f's_mov_b64 exec, -1\n{lh}:')
        if opt.get('lpf') == 'lin':
            e(f"""s_mul_i32 {sr(sT)}, {sr(sWg)}, 5632
            v_min_u32 {vr(t(4))}, 43, {vr(vL)}
            v_lshlrev_b32 {vr(t(4))}, 7, {vr(t(4))}
            v_add_u32 {vr(t(4))}, {sr(sT)}, {vr(t(4))}""")
            for ptr in (kwg, kwu):
                srd(sT4, ptr, 1409024)
                e(f'buffer_load_dword {vr(t(6))}, {vr(t(4))}, {sr(sT4,4)}, 0 offen')
        elif opt.get('lpf'):
            e(f"""s_lshr_b32 {sr(sT)}, {sr(sRho)}, 5
            s_cmp_ge_u32 {sr(sT)}, 6
            s_cbranch_scc1 L_end
            v_lshlrev_b32 {vr(t(1))}, 4, {vr(vL)}""")
            srd(sT4, kx, 2097152)
            e(f"""s_lshl_b32 {sr(sT2)}, {sr(sRho)}, 12
            v_add_u32 {vr(t(2))}, {sr(sT2)}, {vr(t(1))}
            buffer_load_dword {vr(t(3))}, {vr(t(2))}, {sr(sT4,4)}, 0 offen
            s_lshl_b32 {sr(sT)}, {sr(sT)}, 9
            s_and_b32 {sr(sT2)}, {sr(sRho)}, 31
            s_lshl_b32 {sr(sT2)}, {sr(sT2)}, 4
            v_lshrrev_b32 {vr(t(4))}, 2, {vr(vL)}
            v_add_u32 {vr(t(4))}, {sr(sT2)}, {vr(t(4))}
            s_movk_i32 {sr(sT3)}, 2752
            v_mul_lo_u32 {vr(t(4))}, {vr(t(4))}, {sr(sT3)}
            v_and_b32 {vr(t(5))}, 3, {vr(vL)}
            v_lshlrev_b32 {vr(t(5))}, 7, {vr(t(5))}
            s_max_u32 {sr(sT)}, {sr(sT)}, 16
            s_sub_u32 {sr(sT)}, {sr(sT)}, 16
            v_add3_u32 {vr(t(4))}, {vr(t(4))}, {vr(t(5))}, {sr(sT)}
            v_sub_u32 {vr(t(5))}, {vr(t(4))}, {vr(t(5))}
            v_add_u32 {vr(t(5))}, 512, {vr(t(5))}""")
            if opt.get('lpf') != 'now': e('s_waitcnt vmcnt(0)')
            for ptr in (kwg, kwu):
                srd(sT4, ptr, 1409024)
                e(f"""buffer_load_dword {vr(t(6))}, {vr(t(4))}, {sr(sT4,4)}, 0 offen
                buffer_load_dword {vr(t(7))}, {vr(t(5))}, {sr(sT4,4)}, 0 offen""")
        e(f"""s_cmp_ge_u32 {sr(sPhi)}, {NF}
        s_cbranch_scc1 L_end""")
        e(f"""s_movk_i32 {sr(sT3)}, 2752
        v_mul_lo_u32 {vr(t(0))}, {vr(vL)}, {sr(sT3)}
        s_lshl_b32 {sr(sT2)}, {sr(sPhi)}, 4
        v_add_u32 {vr(t(0))}, {sr(sT2)}, {vr(t(0))}
        v_lshlrev_b32 {vr(t(1))}, 4, {vr(vL)}""")
        def gu(ptr, lds, ks=range(8)):
            srd(sT4, ptr, 1409024)
            for k in ks:
                e(f"""s_add_u32 {sr(sT)}, {sr(sPhi)}, {k}
                s_and_b32 {sr(sT)}, {sr(sT)}, 7
                s_lshl_b32 {sr(sT2)}, {sr(sT)}, 10
                s_add_u32 m0, {sr(sT2)}, {lds}
                s_mul_i32 {sr(sOff)}, {sr(sT)}, {64*2752}
                buffer_load_dwordx4 {vr(t(0))}, {sr(sT4,4)}, {sr(sOff)} offen {opt.get('wfl','')} lds""")
        def dn():
            srd(sT4, kwd, 1409024)
            e(f's_lshl_b32 {sr(sT2)}, {sr(sPhi)}, 13')
            for f in range(8):
                e(f"""s_mov_b32 m0, {DN + 1024*f}
                s_add_u32 {sr(sOff)}, {sr(sT2)}, {1024*f}
                buffer_load_dwordx4 {vr(t(1))}, {sr(sT4,4)}, {sr(sOff)} offen {opt.get('wfl','')} lds""")
        if opt.get('lwait'):
            srd(sT4, kx, 2097152)
            e(f's_lshl_b32 {sr(sT)}, {sr(sRho)}, 12\nv_add_u32 {vr(t(2))}, {sr(sT)}, {vr(t(1))}\nbuffer_load_dword {vr(t(3))}, {vr(t(2))}, {sr(sT4,4)}, 0 offen\ns_waitcnt vmcnt(0)')
        plan = {int(x.split(':')[0]): x.split(':')[1] for x in opt.get('lplan', '0:gud').split('/')}
        if opt.get('lcnt'):
            cnt = [int(x) for x in opt['lcnt'].split('.')]; assert sum(cnt) == 16
            dpos = int(opt.get('ldpos', 0)); nxt = 0
            for k in range(g.nbar_mark + 1):
                if k == dpos: dn()
                for j in range(cnt[k] if k < len(cnt) else 0):
                    gu(kwg if nxt < 8 else kwu, GU + (0 if nxt < 8 else 8192), [nxt & 7]); nxt += 1
                if k < g.nbar_mark: e('s_barrier')
            plan = None
        for k in range(g.nbar_mark + 1 if plan is not None else 0):
            for c in plan.get(k, ''):
                {'g': lambda: gu(kwg, GU), 'u': lambda: gu(kwu, GU + 8192), 'd': dn,
                 'a': lambda: gu(kwg, GU, range(0, 4)), 'b': lambda: gu(kwg, GU, range(4, 8)),
                 'c': lambda: gu(kwu, GU + 8192, range(0, 4)), 'e': lambda: gu(kwu, GU + 8192, range(4, 8))}[c]()
            if k < g.nbar_mark: e('s_barrier')
        e('s_waitcnt vmcnt(0)\ns_barrier\nL_end:\ns_endpgm')

    XS = t(0)
    def xsel_text():
        return '\n'.join(f'buffer_load_dwordx4 {vr(XS+4*k,4)}, {vr(t(20))}, {sr(sWS,4)}, {sr(sRec)} offen offset:{128+64*k} sc1' for k in range(4))
    def xsel_load():
        e(f"""s_lshl_b32 {sr(sT)}, {sr(sW)}, 8
        v_lshlrev_b32 {vr(t(20))}, 4, {vr(vQ)}
        v_add_u32 {vr(t(20))}, {sr(sT)}, {vr(t(20))}""")
        e(xsel_text())
    def ffn(part):
        ln = g.lab('noffn')
        e(f's_cmp_ge_u32 {sr(sPhi)}, {NF}\ns_cbranch_scc1 {ln}')
        poll(xsel_text(), range(XS, XS+16), preloaded=True)
        Pp = t(16)
        for k in range(4):
            e(f'v_mfma_f32_16x16x32_bf16 {vr(Pp,4)}, {vr(FA+4*k,4)}, {vr(XS+4*k,4)}, {"0" if k==0 else vr(Pp,4)}')
        e(f"""v_lshlrev_b32 {vr(t(21))}, 6, {vr(vQ)}
        s_lshl_b32 {sr(sT)}, {sr(sW)}, 2
        v_add_u32 {vr(t(21))}, {sr(sT)}, {vr(t(21))}
        v_and_b32 {vr(t(22))}, 31, {vr(vL)}
        v_lshlrev_b32 {vr(t(22))}, 2, {vr(t(22))}
        s_mov_b32 exec_lo, 0x00010001
        s_mov_b32 exec_hi, 0x00010001""")
        for i in range(4): e(f'ds_write_b32 {vr(t(21))}, {vr(Pp+i)} offset:{FP + 16*i}')
        e(f"""s_mov_b64 exec, -1
        s_waitcnt lgkmcnt(0)
        s_barrier
        ds_read_b32 {vr(t(12))}, {vr(t(22))} offset:{FP}
        ds_read_b32 {vr(t(13))}, {vr(t(22))} offset:{FP+128}
        s_waitcnt lgkmcnt(0)""")
        gg, uu = t(12), t(13)
        for mod in ('quad_perm:[1,0,3,2]', 'quad_perm:[2,3,0,1]'):
            e(f'v_add_f32_dpp {vr(gg)}, {vr(gg)}, {vr(gg)} {mod} {DPP}\nv_add_f32_dpp {vr(uu)}, {vr(uu)}, {vr(uu)} {mod} {DPP}')
        e(f"""v_mul_f32 {vr(t(14))}, {fbits(-1.4426950408889634)}, {vr(gg)}
        v_exp_f32 {vr(t(14))}, {vr(t(14))}
        v_mul_f32 {vr(uu)}, {vr(uu)}, {vr(vSig)}
        v_add_f32 {vr(t(14))}, 1.0, {vr(t(14))}
        v_rcp_f32 {vr(t(14))}, {vr(t(14))}
        v_mul_f32 {vr(gg)}, {vr(gg)}, {vr(uu)}
        v_mul_f32 {vr(gg)}, {vr(gg)}, {vr(t(14))}""")
        for f in range(8): e(f'v_readlane_b32 {sr(sH+f)}, {vr(gg)}, {4*f}')
        acc = t(16)
        for f in range(8):
            sel = 'op_sel_hi:[1,0,1]' if f % 2 == 0 else 'op_sel:[0,1,0] op_sel_hi:[1,1,1]'
            if f == 0: e(f'v_pk_mul_f32 {vr(acc,2)}, {vr(FD,2)}, {sr(sH,2)} op_sel_hi:[1,0]')
            else: e(f'v_pk_fma_f32 {vr(acc,2)}, {vr(FD+2*f,2)}, {sr(sH + (f & ~1),2)}, {vr(acc,2)} {sel}')
        ws_store(2, acc, aP8, part)
        e(f'{ln}:')

    def reducer(part, final):
        ln = g.lab('nored')
        red_index()
        e(f"""s_cmp_ge_u32 {sr(sT3)}, 32
        s_cbranch_scc1 {ln}""")
        if not final and not opt.get('oldred'): e('s_waitcnt vmcnt(0)')
        NLD = (NF + 15)//16
        e(f"""v_lshrrev_b32 {vr(t(20))}, 4, v0
        v_and_b32 {vr(t(22))}, 15, v0
        v_lshlrev_b32 {vr(t(22))}, 2, {vr(t(22))}
        s_lshl_b32 {sr(sT)}, {sr(sT3)}, 6
        v_add_u32 {vr(t(25))}, {sr(sT)}, {vr(t(22))}
        v_lshl_add_u32 {vr(t(21))}, {vr(t(20))}, 11, {vr(t(25))}
        v_add_u32 {vr(t(23))}, {16*(NLD-1)*2048}, {vr(t(21))}
        v_mov_b32 {vr(t(24))}, 0x7f000000
        v_cmp_gt_u32 vcc, {NF - 16*(NLD-1)}, {vr(t(20))}
        v_cndmask_b32 {vr(t(23))}, {vr(t(24))}, {vr(t(23))}, vcc""")
        A = t(0); B4 = t(12)
        lds_ = []
        for k in range(NLD - 1):
            lds_.append(f's_mov_b32 {sr(sOff)}, {part + 16*k*2048}\n' + ws_load_text(1, A+k, t(21), sr(sOff)))
        lds_.append(f's_mov_b32 {sr(sOff)}, {part}\n' + ws_load_text(1, A+NLD-1, t(23), sr(sOff)))
        regs = list(range(A, A+NLD))
        if final:
            lds_.append(ws_load_text(1, B4, t(25), sr(sRec), 'offset:1152')); regs.append(B4)
        poll('\n'.join(lds_), regs)
        n = NLD
        while n > 1:
            h = n//2
            for k in range(h): e(f'v_add_f32 {vr(A+k)}, {vr(A+k)}, {vr(A+n-1-k)}')
            n -= h
        for sw in ('v_permlane16_swap_b32', 'v_permlane32_swap_b32'):
            e(f'v_mov_b32 {vr(A+1)}, {vr(A)}\n{sw} {vr(A)}, {vr(A+1)}\nv_add_f32 {vr(A)}, {vr(A)}, {vr(A+1)}')
        e(f"""s_lshl_b32 {sr(sT)}, {sr(sW)}, 2
        v_lshl_add_u32 {vr(t(24))}, {vr(t(22))}, 2, {sr(sT)}
        v_lshlrev_b32 {vr(t(26))}, 2, {vr(t(22))}
        s_mov_b64 exec, 0xffff
        ds_write_b32 {vr(t(24))}, {vr(A)} offset:{RED}
        s_mov_b64 exec, -1
        s_waitcnt lgkmcnt(0)
        s_barrier
        s_cmp_lg_u32 {sr(sW)}, 0
        s_cbranch_scc1 {ln}
        ds_read_b128 {vr(t(28),4)}, {vr(t(26))} offset:{RED}
        s_waitcnt lgkmcnt(0)
        v_add_f32 {vr(t(28))}, {vr(t(28))}, {vr(t(29))}
        v_add_f32 {vr(t(30))}, {vr(t(30))}, {vr(t(31))}
        v_add_f32 {vr(t(28))}, {vr(t(28))}, {vr(t(30))}""")
        if final:
            e(f"""v_add_f32 {vr(t(28))}, {vr(t(28))}, {vr(B4)}
            s_lshl_b32 {sr(sT)}, {sr(sStar)}, 10
            v_lshrrev_b32 {vr(t(25))}, 1, {vr(t(25))}
            v_mov_b32_dpp {vr(t(29))}, {vr(t(28))} quad_perm:[1,0,3,2] {DPP}
            v_add_u32 {vr(t(25))}, {sr(sT)}, {vr(t(25))}
            v_cvt_pk_bf16_f32 {vr(t(28))}, {vr(t(28))}, {vr(t(29))}
            s_mov_b64 exec, 0x5555
            buffer_store_dword {vr(t(28))}, {vr(t(25))}, {sr(sOUT,4)}, 0 offen sc1
            s_mov_b64 exec, -1""")
        else:
            e(f"""s_mov_b32 {sr(sOff)}, {UPD0}
            s_mov_b64 exec, 0xffff
            buffer_store_dword {vr(t(28))}, {vr(t(25))}, {sr(sWS,4)}, {sr(sOff)} offen sc1
            s_mov_b64 exec, -1""")
        e(f'{ln}:')

    stamp('preamble')
    e(f's_waitcnt vmcnt({N_ALL-1})\nv_readfirstlane_b32 {sr(sTag)}, {vr(vCa)}\ns_add_u32 {sr(sTag)}, {sr(sTag)}, 1')
    stamp('x0')
    unpack_nat(XU, URAW); unpack_rev(XV, VRAW, t(16))
    stats2(False)
    norm_coeffs(hRho, hB)
    make_g()
    e(f's_waitcnt vmcnt({N_ALL - N_ROWTAB})')
    transform(HB0, tagged=True, pre_store=lambda: e(f's_waitcnt vmcnt({N_ALL - N_POISON})'))
    stamp('P1 stored')
    finish_here('P1')
    special_k(KB0, False)
    srd(sT4, kwr, 1024)
    e(f'''v_lshlrev_b32 {vr(t(2))}, 4, {vr(vL)}
    v_sub_u32 {vr(t(3))}, 1008, {vr(t(2))}
    buffer_load_dwordx4 {vr(WURAW,4)}, {vr(t(2))}, {sr(sT4,4)}, 0 offen
    buffer_load_dwordx4 {vr(WVRAW,4)}, {vr(t(3))}, {sr(sT4,4)}, 0 offen''')
    addr_misc()
    addr_ym4()
    poison_regs()
    red_index()
    e(f"""s_lshl_b32 {sr(sT)}, {sr(sT3)}, 6
    v_lshlrev_b32 {vr(t(6))}, 2, v0
    v_add_u32 {vr(t(6))}, {sr(sT)}, {vr(t(6))}
    v_cmp_gt_u32 vcc, 16, v0
    s_cmp_lt_u32 {sr(sT3)}, 32
    s_cselect_b64 {sr(sEx,2)}, vcc, 0
    v_mov_b32 {vr(t(7))}, 0x7f000000
    v_cndmask_b32 {vr(t(6))}, {vr(t(7))}, {vr(t(6))}, {sr(sEx,2)}""")
    ws_store(4, PZ, aP16, HB1); ws_store(4, PZ, aP16, CAND0); ws_store(2, PZ, aP8, PART0); ws_store(1, PZ, t(6), UPD0)
    e(f's_bfe_u32 {sr(sT)}, {sr(sRho)}, 0x10003\ns_lshl_b32 {sr(sT)}, {sr(sT)}, 4\nv_xor_b32 {vr(t(39))}, {sr(sT)}, {vr(lG)}')
    e(f'v_add_u32 {vr(t(39))}, {TOFF["addr2"]}, {vr(t(39))}\nglobal_load_dwordx4 {vr(t(44),4)}, {vr(t(39))}, {sr(sPC,2)}')
    if not opt.get('nohint'):
        lh = g.lab('hw')
        e(f'''v_and_b32 {vr(vCa)}, 7, {vr(vL)}
        v_lshlrev_b32 {vr(vCa)}, 8, {vr(vCa)}
        s_cmp_lg_u32 {sr(sW)}, 0
        s_cbranch_scc1 {lh}
        s_mov_b32 {sr(sOff)}, {HINT}''')
        e(ws_load_text(1, vSa, vCa, sr(sOff)))
        e(f'{lh}:')
    col_consts_a()
    if not opt.get('splitc'): col_consts_b()
    stamp('shadow1')
    if not opt.get('nohint'):
        lh = g.lab('hw2'); lp = g.lab('hp')
        e(f'''s_cmp_lg_u32 {sr(sW)}, 0
        s_cbranch_scc1 {lh}
        s_mov_b32 {sr(sCnt)}, 0
        s_mov_b32 {sr(sOff)}, {HINT}
        {lp}:
        s_waitcnt vmcnt(0)
        v_cmp_ne_u32 vcc, {sr(sTag)}, {vr(vSa)}
        s_cbranch_vccz {lh}
        s_add_u32 {sr(sCnt)}, {sr(sCnt)}, 1
        s_cmp_gt_u32 {sr(sCnt)}, {LIMIT}
        s_cbranch_scc1 {lh}
        s_sleep 4''')
        e(ws_load_text(1, vSa, vCa, sr(sOff)))
        e(f's_branch {lp}\n{lh}:\ns_waitcnt vmcnt(0)\ns_barrier')
    if opt.get('ack1'): e('s_waitcnt vmcnt(0)')
    stamp('hint')
    column(HB0, YB0, False, tagged=True)
    stamp('P2 stored')
    finish_here('P2')
    poison_regs()
    ws_store(4, PZ, aP16, YB1); ws_store(4, PZ, aP16, CAND1); ws_store(2, PZ, aP8, PART1)
    lnn = g.lab('nononce')
    e(f'''s_cmp_lg_u32 {sr(sRowU)}, 0
    s_cbranch_scc1 {lnn}
    v_mov_b32 {vr(t(0))}, {sr(sTag)}
    v_mov_b32 {vr(t(1))}, 0
    s_mov_b64 exec, 1''')
    ws_store(1, t(0), t(1), NONCE)
    e(f's_mov_b64 exec, -1\n{lnn}:')
    unpack_nat(WU, WURAW); unpack_rev(WV, WVRAW, t(16))
    e(f"""v_pk_add_f32 {vr(t(16),2)}, {vr(WU,2)}, {vr(WU+2,2)}
    v_pk_add_f32 {vr(t(18),2)}, {vr(WU+4,2)}, {vr(WU+6,2)}
    v_pk_add_f32 {vr(t(16),2)}, {vr(t(16),2)}, {vr(t(18),2)}
    v_add_f32 {vr(t(16))}, {vr(t(16))}, {vr(t(17))}""")
    wave_reduce([t(16)], [t(17)])
    e(f'v_readfirstlane_b32 {sr(sSW)}, {vr(t(16))}')
    stamp('shadow2')
    e('s_waitcnt vmcnt(0)')
    row_input(YB0, KB0)
    add_y_pair()
    stats2(True)
    make_key()
    residual_coeffs()
    e(f"""v_mul_f32 {vr(t(23))}, {vr(t(21))}, {vr(t(21))}
    v_mul_f32 {vr(t(23))}, {vr(t(23))}, {vr(hVar)}
    v_add_f32 {vr(t(23))}, {fbits(1e-5)}, {vr(t(23))}
    v_rsq_f32 {vr(t(23))}, {vr(t(23))}
    s_waitcnt lgkmcnt(0)
    s_barrier""")
    wg_best_read(t(24))
    e(f"""v_mul_f32 {vr(t(22))}, {vr(t(21))}, {vr(t(23))}
    v_mul_f32 {vr(t(23))}, -{vr(hM)}, {vr(t(22))}""")
    norm_coeffs(t(22), t(23))
    e('s_waitcnt lgkmcnt(0)')
    wg_best_header(CAND0, t(24))
    stamp('hdr0')
    make_g()
    transform(HB1, pre_core=lambda: residual_update(XU, XV), post_scatter=lambda: publish_rows(CAND0))
    stamp('P3 stored')
    finish_here('P3')
    K = t(0)
    header_load(CAND0, vSig)
    lfs = g.lab('nosetup')
    e(f's_cmp_ge_u32 {sr(sPhi)}, {NF}\ns_cbranch_scc1 {lfs}')
    ffn_setup()
    e(f'{lfs}:')
    special_k(KB1, True)
    e(f's_waitcnt vmcnt(0)\nv_mov_b32 {vr(K)}, {vr(vSig)}')
    argmax(CAND0, K, after_check=lambda: column_load(HB1))
    stamp('argmax0')
    lb = g.lab('nobase')
    e(f"""s_cmp_ge_u32 {sr(sW)}, 2
    s_cbranch_scc1 {lb}
    v_lshlrev_b32 {vr(t(21))}, 5, {vr(vL)}
    buffer_load_dwordx4 {vr(FX,4)}, {vr(t(21))}, {sr(sWS,4)}, {sr(sRec)} offen offset:1152 sc1
    buffer_load_dwordx4 {vr(FX+4,4)}, {vr(t(21))}, {sr(sWS,4)}, {sr(sRec)} offen offset:1168 sc1
    {lb}:""")
    lb = g.lab('nox')
    e(f's_cmp_ge_u32 {sr(sPhi)}, {NF}\ns_cbranch_scc1 {lb}')
    xsel_load()
    e(f'{lb}:')
    sigmoid_of_key()
    e(f"""s_mul_i32 {sr(sT)}, {sr(sRowU)}, {sr(sStar)}
    s_and_b32 {sr(sT)}, {sr(sT)}, 2047
    v_cvt_f32_u32 {vr(vCa)}, {sr(sT)}
    v_mul_f32 {vr(vCa)}, {fbits(1/2048)}, {vr(vCa)}
    v_sin_f32 {vr(vSa)}, {vr(vCa)}
    v_cos_f32 {vr(vCa)}, {vr(vCa)}
    v_mul_f32 {vr(vSa)}, {fbits(1/32)}, {vr(vSa)}
    v_mul_f32 {vr(vCa)}, {fbits(1/32)}, {vr(vCa)}
    v_cvt_pk_f16_f32 {vr(vSa)}, {vr(vSa)}, {vr(vSa)}
    v_cvt_pk_f16_f32 {vr(vCa)}, {vr(vCa)}, {vr(vCa)}
    s_waitcnt vmcnt(0)""")
    stamp('xsel')
    ffn(PART0)
    stamp('ffn0')
    column(HB1, YB1, True)
    stamp('P4 stored')
    finish_here('P4')
    reducer(PART0, False)
    stamp('red0')
    lb = g.lab('nobase')
    e(f's_cmp_ge_u32 {sr(sW)}, 2\ns_cbranch_scc1 {lb}')
    e(f'v_lshlrev_b32 {vr(t(21))}, 5, {vr(vL)}')
    poll(f'buffer_load_dwordx4 {vr(FX,4)}, {vr(t(21))}, {sr(sWS,4)}, {sr(sRec)} offen offset:1152 sc1\n'
         f'buffer_load_dwordx4 {vr(FX+4,4)}, {vr(t(21))}, {sr(sWS,4)}, {sr(sRec)} offen offset:1168 sc1', range(FX, FX+8), preloaded=True)
    stats1(FX, t(0), FO)
    e(f'{lb}:')
    e('s_waitcnt vmcnt(0)')
    row_input(YB1, KB1)
    stamp('y1 read')
    lj = g.lab('fixj'); lq = g.lab('fix'); lu = g.lab('ownu'); lv = g.lab('ownv')
    U = t(16)
    updld = lambda areg: (ws_load_text(4, U, areg, sr(sOff)) + '\n' + ws_load_text(4, U+4, areg, sr(sOff), 'offset:16'))
    def owner_add():
        l1 = g.lab('nu'); l2 = g.lab('nv')
        e(f's_cmp_lg_u32 {sr(sStar)}, {sr(sRowU)}\ns_cbranch_scc1 {l1}')
        for k in range(4): e(f'v_pk_add_f32 {vr(XU+2*k,2)}, {vr(XU+2*k,2)}, {vr(U+2*k,2)}')
        e(f'{l1}:')
    e(f"""v_lshlrev_b32 {vr(t(44))}, 5, {vr(vL)}
    s_mov_b32 {sr(sOff)}, {UPD0}""")
    lnv = g.lab('notv')
    e(f"""s_cmp_lg_u32 {sr(sStar)}, {sr(sRowV)}
    s_cbranch_scc1 {lnv}
    v_sub_u32 {vr(t(45))}, {63*32}, {vr(t(44))}""")
    poll(updld(t(45)), range(U, U+8), backoff=4)
    e(f'v_mov_b32_dpp {vr(t(46))}, {vr(U)} wave_ror:1 {DPP}')
    for k in range(1, 8): e(f'v_add_f32 {vr(XV+k)}, {vr(XV+k)}, {vr(U+8-k)}')
    e(f'v_add_f32 {vr(XV)}, {vr(XV)}, {vr(t(46))}\n{lnv}:')
    e(f"""s_cmp_lt_u32 {sr(sW)}, 2
    s_cbranch_scc1 {lq}
    s_cmp_lg_u32 {sr(sStar)}, {sr(sRowU)}
    s_cbranch_scc1 {lj}""")
    poll(updld(t(44)), range(U, U+8), backoff=4)
    owner_add()
    e(f's_branch {lj}\n{lq}:')
    poll(updld(t(44)), range(U, U+8), backoff=4)
    stamp('upd')
    owner_add()
    for k in range(4): e(f'v_pk_add_f32 {vr(FX+2*k,2)}, {vr(FX+2*k,2)}, {vr(U+2*k,2)}')
    stats1(FX, t(32), FX)
    for k in range(4): e(f'v_pk_add_f32 {vr(FX+2*k,2)}, {vr(FX+2*k,2)}, {vr(FO+2*k,2)} neg_lo:[0,1] neg_hi:[0,1]')
    write_n(FX, t(24)); write_r(FX, t(40))
    A, B = CA, t(40)
    for k in range(8): e(f'v_mov_b32 {vr(FO+k)}, {vr(YH+k)}')
    e(f"""s_mov_b32 {sr(sT)}, 0x3c003c00
    s_cmp_eq_u32 {sr(sW)}, 0
    s_cselect_b32 {sr(sSgn)}, {sr(sT)}, 0xbc00bc00
    ds_read_b64_tr_b16 {vr(A,2)}, {vr(lTr)} offset:{GIMG}
    ds_read_b64_tr_b16 {vr(B,2)}, {vr(lTr)} offset:{RIMG}
    ds_read_b64_tr_b16 {vr(A+2,2)}, {vr(lTr)} offset:{GIMG+128}
    ds_read_b64_tr_b16 {vr(B+2,2)}, {vr(lTr)} offset:{RIMG+128}
    s_waitcnt lgkmcnt(0)""")
    for k in range(4): e(f'v_pk_fma_f16 {vr(A+k)}, {vr(B+k)}, {sr(sSgn)}, {vr(A+k)}')
    core(A, CO)
    for k in range(4): e(f'v_cvt_pk_f16_f32 {vr(t(44)+k)}, {vr(CO+2*k)}, {vr(CO+2*k+1)}')
    e(f"""v_lshl_add_u32 {vr(t(0))}, {vr(vQ)}, 7, {vr(vN)}
    v_lshlrev_b32 {vr(t(1))}, 7, {vr(vQ)}
    v_sub_u32 {vr(t(1))}, {32*23}, {vr(t(1))}
    v_add_u32 {vr(t(1))}, {vr(t(1))}, {vr(vN)}
    v_cmp_gt_u32 vcc, 2, {vr(vQ)}
    v_cndmask_b32 {vr(t(0))}, {vr(t(1))}, {vr(t(0))}, vcc
    v_lshlrev_b32 {vr(t(0))}, 1, {vr(t(0))}
    s_lshl_b32 {sr(sT)}, {sr(sW)}, 10
    v_add_u32 {vr(t(0))}, {sr(sT)}, {vr(t(0))}
    v_mov_b32 {vr(t(2))}, 64
    v_mov_b32 {vr(t(3))}, -64
    v_cndmask_b32 {vr(t(2))}, {vr(t(3))}, {vr(t(2))}, vcc""")
    for i in range(4):
        op = 'ds_write_b16' if i % 2 == 0 else 'ds_write_b16_d16_hi'
        for Tt in range(2):
            e(f'{op} {vr(t(0))}, {vr(t(44)+2*Tt+i//2)} offset:{RIMG + 2048 + 32*Tt}')
        if i < 3: e(f'v_add_u32 {vr(t(0))}, {vr(t(0))}, {vr(t(2))}')
    for k in range(8): e(f'v_mov_b32 {vr(YH+k)}, {vr(FO+k)}')
    e(f"""{lj}:
    s_waitcnt lgkmcnt(0)
    s_barrier
    v_lshlrev_b32 {vr(t(0))}, 4, {vr(vL)}
    ds_read_b128 {vr(t(16),4)}, {vr(t(0))} offset:{RIMG+2048}
    ds_read_b128 {vr(t(20),4)}, {vr(t(0))} offset:{RIMG+2048+1024}
    s_waitcnt lgkmcnt(1)""")
    lsp = g.lab('fsp')
    for k in range(4): e(f'v_pk_fma_f16 {vr(YH+k)}, {vr(t(16)+k)}, {vr(vCa)}, {vr(YH+k)}')
    e(f'''s_cmp_lg_u32 {sr(sRowU)}, 0
    s_cbranch_scc1 {lsp}
    s_mov_b32 {sr(sT)}, 0x28002800
    s_bitcmp0_b32 {sr(sStar)}, 0
    s_cselect_b32 {sr(sT)}, {sr(sT)}, 0xa800a800''')
    for k in range(4): e(f'v_pk_fma_f16 {vr(YV+k)}, {vr(t(16)+k)}, {sr(sT)}, {vr(YV+k)}')
    e(f'{lsp}:\ns_waitcnt lgkmcnt(0)')
    for k in range(4): e(f'v_pk_fma_f16 {vr(YH+k)}, {vr(t(20)+k)}, {vr(vSa)}, {vr(YH+k)}')
    add_y_pair()
    stamp('fixed')
    stats2(True)
    make_key()
    residual_coeffs()
    e('s_waitcnt lgkmcnt(0)\ns_barrier')
    wg_best_read(t(24))
    residual_update(XU, XV)
    e('s_waitcnt lgkmcnt(0)')
    wg_best_header(CAND1, t(24))
    publish_rows(CAND1)
    e('s_waitcnt vmcnt(0)\ns_barrier')
    stamp('cand1')
    header_load(CAND1, K)
    e('s_waitcnt vmcnt(0)')
    argmax(CAND1, K)
    stamp('argmax1')
    lb = g.lab('nox')
    e(f's_cmp_ge_u32 {sr(sPhi)}, {NF}\ns_cbranch_scc1 {lb}')
    xsel_load()
    e(f'{lb}:')
    sigmoid_of_key()
    ln = g.lab('noout')
    e(f's_cmp_eq_u32 {sr(sStar)}, {sr(sRowU)}\ns_cbranch_scc1 {ln}')
    for k in range(4): e(f'v_cvt_pk_bf16_f32 {vr(t(24)+k)}, {vr(XU+2*k)}, {vr(XU+2*k+1)}')
    e(f'buffer_store_dwordx4 {vr(t(24),4)}, {vr(aU)}, {sr(sOUT,4)}, 0 offen sc1\n{ln}:')
    ln = g.lab('noout')
    e(f's_cmp_eq_u32 {sr(sStar)}, {sr(sRowV)}\ns_cbranch_scc1 {ln}')
    e(f"""v_mov_b32_dpp {vr(t(32))}, {vr(XV)} wave_rol:1 {DPP}
    v_cvt_pk_bf16_f32 {vr(t(29))}, {vr(XV+6)}, {vr(XV+5)}
    v_cvt_pk_bf16_f32 {vr(t(30))}, {vr(XV+4)}, {vr(XV+3)}
    v_cvt_pk_bf16_f32 {vr(t(31))}, {vr(XV+2)}, {vr(XV+1)}
    v_cvt_pk_bf16_f32 {vr(t(28))}, {vr(t(32))}, {vr(XV+7)}
    buffer_store_dwordx4 {vr(t(28),4)}, {vr(aV)}, {sr(sOUT,4)}, 0 offen sc1
    {ln}:""")
    e('s_waitcnt vmcnt(0)')
    ffn(PART1)
    stamp('ffn1')
    e('s_waitcnt vmcnt(0)')
    reducer(PART1, True)
    stamp('end')
    e('L_done:')
    if stamps:
        ls = g.lab('nost')
        e(f"""s_cmp_ge_u32 s2, 256
        s_cbranch_scc1 {ls}
        s_waitcnt vmcnt(0)
        s_mov_b64 exec, -1
        s_lshl_b32 {sr(sT)}, {sr(sWg)}, 11
        s_lshl_b32 {sr(sT2)}, {sr(sW)}, 8
        s_add_u32 {sr(sT)}, {sr(sT)}, {sr(sT2)}
        v_and_b32 {vr(t(0))}, 63, v0
        v_lshlrev_b32 {vr(t(0))}, 2, {vr(t(0))}
        v_add_u32 {vr(t(0))}, {sr(sT)}, {vr(t(0))}
        s_mov_b32 {sr(sOff)}, {STAMP}
        buffer_store_dword {vr(vStamp)}, {vr(t(0))}, {sr(sWS,4)}, {sr(sOff)} offen
        {ls}:""")
    e('s_endpgm')
    loader()
    for ls, lj in g.late:
        e(f'{ls}:')
        add_y(YH, YV)
        e(f's_branch {lj}')
    emit_tail()
    return g

def render(g):
    lines, added = pad(g.L)
    body = '\n'.join(('' if l.endswith(':') else '    ') + l for l in lines)
    ninstr = sum(1 for l in lines if not l.endswith(':'))
    hdr = f"""; FNet (2-D real DFT via Hartley factorisation on MFMA) + top-1 routed SwiGLU, two layers, one persistent launch.
; @launch grid=(256,1,1) block=(320,1,1) lds={LDS_SIZE}
.amdgcn_target "amdgcn-amd-amdhsa--gfx950"
.text
.globl {NAME}
.p2align 8
.type {NAME},@function
{NAME}:
"""
    tab = '\n'.join('.long ' + ','.join('0x%08x' % x for x in TAB[i:i+8]) for i in range(0, len(TAB), 8))
    tail = f"""
L_code_end:
.p2align 8
L_tab:
{tab}
.section .rodata,"a"
.p2align 6
.amdhsa_kernel {NAME}
  .amdhsa_next_free_vgpr 256
  .amdhsa_next_free_sgpr 102
  .amdhsa_accum_offset 256
  .amdhsa_group_segment_fixed_size 0
  .amdhsa_kernarg_size 104
  .amdhsa_user_sgpr_count 2
  .amdhsa_user_sgpr_kernarg_segment_ptr 1
  .amdhsa_system_sgpr_workgroup_id_x 1
.end_amdhsa_kernel
"""
    return hdr + body + tail, ninstr, added

if __name__ == '__main__':
    import argparse
    ap = argparse.ArgumentParser()
    ap.add_argument('-o', default='interleave_layers__spectral_fnet__moe_arch_mod__prompt.s')
    ap.add_argument('--stop'); ap.add_argument('--stamps', action='store_true'); ap.add_argument('--opt', default='')
    a = ap.parse_args()
    g = build(a.stop, a.stamps, {k.split('=')[0]: (k.split('=')+['1'])[1] for k in a.opt.split(',') if k})
    txt, n, added = render(g)
    open(a.o, 'w').write(txt)
    print(f'{n} instructions, {added} nop slots added, vgpr high {g.v.n}, sgpr high {g.s.n}')
```

```python
import sys, struct, math
from asmlib import pad, Alloc
import tables

NAME = "interleave_layers__spectral_fnet__moe_arch_mod__prompt_kernel"
NONCE = 0x000000
HB0, YB0, HB1, YB1 = 0x100000, 0x300000, 0x400000, 0x500000
CAND0, CAND1 = 0x600000, 0x700000
PART0, PART1 = 0x800000, 0x880000
UPD0 = 0x900000
KB0, KB1 = 0x901000, 0x902000
HINT = 0x903000
STAMP = 0x980000
WS_SIZE = 0xA00000
NF = 172
LIMIT = 40000
NPOIS = 64
YIMG = 0
GIMG = 5120
RIMG = 9216
HIMG = 13312
CIN = 17472
COUT = 21952
KIMG = 26048
FP = 27136
AM = 27392
RED = 27456
GU = 27776
DN = GU + 16384
LDS_SIZE = DN + 8192
LMAP = dict(YIMG=YIMG, GIMG=GIMG, RIMG=RIMG, HIMG=HIMG, CIN=CIN, COUT=COUT)
TAB, TOFF = tables.build_tables(LMAP)

def fbits(x): return '0x%08x' % struct.unpack('<I', struct.pack('<f', x))[0]

class G:
    def __init__(self, stop=None, stamps=False):
        self.L = []; self.stop = stop; self.stamps = stamps; self.uid = 0; self.nstamp = 0; self.names = []
        self.v = Alloc(1, 256, 'v'); self.s = Alloc(3, 100, 's')
    def e(self, text):
        for l in text.strip('\n').split('\n'):
            l = l.strip()
            if l: self.L.append(l)
    def lab(self, p):
        self.uid += 1; return f'L_{p}_{self.uid}'

def vr(a, n=1): return f'v{a}' if n == 1 else f'v[{a}:{a+n-1}]'
def sr(a, n=1): return f's{a}' if n == 1 else f's[{a}:{a+n-1}]'
DPP = 'row_mask:0xf bank_mask:0xf'
PKB = 'op_sel:[0,0,1] op_sel_hi:[1,0,1]'

def build(stop=None, stamps=False, opt=None):
    opt_raw = dict(opt or {})
    opt = dict(opt or {})
    if not opt.get('nodefault'):
        opt.setdefault('lpf', 'lin'); opt.setdefault('splitc', '1'); opt.setdefault('rowvalu', '1'); opt.setdefault('addrvalu', '1'); opt.setdefault('lplan', '0:da/1:b/4:u')
        if 'lplan' not in opt_raw: opt.setdefault('lcnt', '0.3.3.2.4.2.2')
    g = G(stop, stamps); e = g.e; V = g.v; S = g.s
    sWS = S('ws', 4, 4); sXS = S('xsrd', 4, 4); sOUT = S('out', 4, 4); sT4 = S('tmpsrd', 4, 4)
    sRho = S('rho'); sW = S('w'); sRowU = S('rowu'); sRowV = S('rowv'); sVs = S('vs'); sOff = S('off'); sCnt = S('cnt')
    sT = S('t'); sT2 = S('t2'); sT3 = S('t3'); s16 = S('k16'); sStar = S('star'); sRec = S('rec'); sWg = S('wg'); sSW = S('sw')
    sCu = S('cu', 2, 2); sCv = S('cv', 2, 2); sEx = S('exsave', 2, 2)
    sAu = S('au', 2, 2); sAv = S('av', 2, 2); sKu = S('ku', 2, 2); sKv = S('kv', 2, 2); sKeyU = S('keyu'); sKeyV = S('keyv'); sKey = S('key')
    sTag = S('tag'); sMz, sMc = sAu, sAv; sH = S('h', 8, 2); sTm = S('tm', 2, 2); sPC = S('pc', 2, 2); sM2 = S('m2', 2, 2); sPhi = S('phi'); sSgn = S('sgn')
    sKA = S('ka', 16, 4); sKB = S('kb', 8, 4); sKC = S('kc', 2, 2)
    vL = V('lane'); vN = V('n'); vQ = V('q')
    XU = V('XU', 8, 4); XV = V('XV', 8, 4); WU = V('WU', 8, 2); WV = V('WV', 8, 2)
    RB1 = V('RB1', 16, 4); RC = V('RC', 8, 2); RS = V('RS', 8, 2); RA2 = V('RA2', 4, 4)
    CB1 = V('CB1', 8, 4); CK = V('CK', 32, 2); CA2 = V('CA2', 16, 4)
    assert RC == RB1+16 and RS == RB1+24 and RA2 == RB1+32 and CK == CB1+8
    FA = V('FA', 16, 4); FD = V('FD', 16, 4)
    AD = V('addr', 16, 4)
    lRow, lTr, lRw, lCr, lH, _, lHf, _, lCa, lCb, lCc, lYd = range(AD, AD+12)
    lCo = AD + 12; lYm = AD + 15
    aU = V('aU'); aV = V('aV'); aP16 = V('aP16'); aS16 = V('aS16'); aHdr = V('aHdr'); aP8 = V('aP8')
    lYm4 = V('lYm4'); lG = V('lG')
    vRowH = V('rowh'); vSig = V('sig'); vSent = V('sent'); vCa = V('cosa'); vSa = V('sina'); vStamp = V('stamp')
    FX = V('FX', 8, 4); FO = V('FO', 8, 4)
    NT = 256 - ((V.n + 3)//4*4)
    T = V('T', NT, 4)
    def t(i):
        assert i < NT, i
        return T + i
    DU, DV = t(0), t(8)

    def stamp(name=''):
        if not g.stamps: return
        if opt.get('only') and name not in opt['only'].split('+'): return
        e(f'''s_memrealtime {sr(sTm,2)}
        s_waitcnt lgkmcnt(0)
        v_writelane_b32 {vr(vStamp)}, {sr(sTm)}, {g.nstamp}''')
        g.nstamp += 1; g.names.append(name)
    def finish_here(tag):
        if g.stop == tag: e('s_branch L_done')

    def sentinel(regs):
        if isinstance(regs, tuple) and regs[0] == 'tag':
            P = regs[1]
            e(f'''v_bitop3_b32 {vr(vSent)}, {vr(P+1)}, {vr(P+3)}, {sr(sTag)} bitop3:0x7e
            v_bitop3_b32 {vr(P+1)}, {vr(P+5)}, {vr(P+7)}, {sr(sTag)} bitop3:0x7e
            v_or_b32 {vr(vSent)}, {vr(vSent)}, {vr(P+1)}
            v_cmp_ne_u32 vcc, 0, {vr(vSent)}''')
            return
        regs = list(regs); tm = vSent
        if len(regs) == 1:
            e(f'v_cmp_eq_u32 vcc, -1, {vr(regs[0])}')
        else:
            if len(regs) >= 3:
                e(f'v_max3_u32 {vr(tm)}, {vr(regs[0])}, {vr(regs[1])}, {vr(regs[2])}'); rest = regs[3:]
            else:
                e(f'v_max_u32 {vr(tm)}, {vr(regs[0])}, {vr(regs[1])}'); rest = []
            while len(rest) >= 2:
                e(f'v_max3_u32 {vr(tm)}, {vr(tm)}, {vr(rest[0])}, {vr(rest[1])}'); rest = rest[2:]
            if rest: e(f'v_max_u32 {vr(tm)}, {vr(tm)}, {vr(rest[0])}')
            e(f'v_cmp_eq_u32 vcc, -1, {vr(tm)}')
    def poll(load, regs, backoff=2, preloaded=False):
        lp = g.lab('poll'); ok = g.lab('ok')
        if preloaded:
            sentinel(regs)
            e(f's_cbranch_vccnz {lp}\n{ok}:')
            g.tail.append((lp, ok, load, regs if isinstance(regs, tuple) else list(regs), backoff))
        else:
            e(load); e('s_waitcnt vmcnt(0)')
            sentinel(regs)
            e(f's_cbranch_vccnz {lp}\n{ok}:')
            g.tail.append((lp, ok, load, regs if isinstance(regs, tuple) else list(regs), backoff))
    g.tail = []
    g.nbar_mark = None
    def emit_tail():
        for lp, ok, load, regs, backoff in g.tail:
            l2 = lp + '_r'
            e(f'{lp}:\ns_mov_b32 {sr(sCnt)}, 0\n{l2}:\ns_sleep {backoff}')
            e(load)
            e(f'''s_add_u32 {sr(sCnt)}, {sr(sCnt)}, 1
            s_cmp_gt_u32 {sr(sCnt)}, {LIMIT}
            s_cbranch_scc1 L_done
            s_waitcnt vmcnt(0)''')
            sentinel(regs)
            e(f's_cbranch_vccnz {l2}\ns_branch {ok}')
    def red_index():
        if opt.get('oldred'):
            e(f's_sub_u32 {sr(sT3)}, {sr(sWg)}, 8')
        else:
            e(f'''s_sub_u32 {sr(sT3)}, {sr(sRho)}, 192
            s_bitcmp1_b32 {sr(sRho)}, 0
            s_cselect_b32 {sr(sT3)}, -1, {sr(sT3)}
            s_lshr_b32 {sr(sT3)}, {sr(sT3)}, 1''')
    def srd(dst, ptr, size):
        e(f'''s_mov_b32 {sr(dst)}, {sr(ptr)}
        s_mov_b32 {sr(dst+1)}, {sr(ptr+1)}
        s_mov_b32 {sr(dst+2)}, {size}
        s_mov_b32 {sr(dst+3)}, 0x00020000''')
    def ws_store(n, data, areg, region, extra=''):
        op = {1: 'buffer_store_dword', 2: 'buffer_store_dwordx2', 4: 'buffer_store_dwordx4'}[n]
        e(f's_mov_b32 {sr(sOff)}, {region}\n{op} {vr(data,n)}, {vr(areg)}, {sr(sWS,4)}, {sr(sOff)} offen sc1 {extra}')
    def ws_load_text(n, data, areg, soff, extra=''):
        op = {1: 'buffer_load_dword', 2: 'buffer_load_dwordx2', 4: 'buffer_load_dwordx4'}[n]
        return f'{op} {vr(data,n)}, {vr(areg)}, {sr(sWS,4)}, {soff} offen {extra} sc1'
    PZ = t(40)
    def poison_regs():
        for k in range(4): e(f'v_mov_b32 {vr(PZ+k)}, -1')

    e(f's_cmp_ge_u32 s2, 256\ns_cbranch_scc1 L_done')
    if stamps: e(f's_memrealtime {sr(sM2,2)}')
    e(f'''s_load_dwordx16 {sr(sKA,16)}, s[0:1], 0
    s_load_dwordx8 {sr(sKB,8)}, s[0:1], 64
    s_load_dwordx2 {sr(sKC,2)}, s[0:1], 96''')
    e(f'''s_getpc_b64 {sr(sPC,2)}
    L_pc:
    v_lshlrev_b32 {vr(t(0))}, 7, v0
    v_min_u32 {vr(t(0))}, L_code_end-L_pc-4, {vr(t(0))}
    global_load_dword {vr(vSig)}, {vr(t(0))}, {sr(sPC,2)}
    s_add_u32 {sr(sPC)}, {sr(sPC)}, L_tab-L_pc
    s_addc_u32 {sr(sPC+1)}, {sr(sPC+1)}, 0''')
    e(f'''s_mov_b32 {sr(sWg)}, s2
    s_and_b32 {sr(sT)}, s2, 7
    s_lshl_b32 {sr(sT)}, {sr(sT)}, 5
    s_lshr_b32 {sr(sRho)}, s2, 3
    s_or_b32 {sr(sRho)}, {sr(sRho)}, {sr(sT)}
    v_lshrrev_b32 {vr(t(1))}, 6, v0
    v_and_b32 {vr(vL)}, 63, v0
    v_readfirstlane_b32 {sr(sW)}, {vr(t(1))}
    v_lshlrev_b32 {vr(t(2))}, 4, {vr(vL)}
    v_sub_u32 {vr(t(3))}, 1008, {vr(t(2))}
    s_lshl_b32 {sr(sT)}, {sr(sRho)}, 2
    s_add_u32 {sr(sRowU)}, {sr(sT)}, {sr(sW)}
    s_sub_u32 {sr(sRowV)}, 2048, {sr(sRowU)}
    s_cmp_eq_u32 {sr(sRowU)}, 0
    s_cselect_b32 {sr(sRowV)}, 1024, {sr(sRowV)}
    s_lshl_b32 {sr(sT)}, {sr(sRowU)}, 10
    s_lshl_b32 {sr(sT2)}, {sr(sRowV)}, 10
    v_add_u32 {vr(aU)}, {sr(sT)}, {vr(t(2))}
    v_add_u32 {vr(aV)}, {sr(sT2)}, {vr(t(3))}
    v_lshlrev_b32 {vr(lG)}, 4, v0
    s_waitcnt lgkmcnt(0)''')
    kx, kwr, kwg = sKA + 0, sKA + 12, sKA + 14
    kwu, kwd, kout, kdbg = sKB + 0, sKB + 2, sKB + 4, sKB + 6
    URAW, VRAW = t(8), t(12)
    WURAW, WVRAW = FX, FX + 4
    e(f's_sub_u32 {sr(sPhi)}, {sr(sRho)}, 1\ns_cmp_eq_u32 {sr(sW)}, 4\ns_cbranch_scc1 L_loader')
    srd(sXS, kx, 2097152)
    e(f'''buffer_load_dwordx4 {vr(URAW,4)}, {vr(aU)}, {sr(sXS,4)}, 0 offen {opt.get('xfl','')}
    buffer_load_dwordx4 {vr(VRAW,4)}, {vr(aV)}, {sr(sXS,4)}, 0 offen {opt.get('xfl','')}''')
    srd(sWS, sKC, WS_SIZE)
    e(f'v_mov_b32 {vr(vCa)}, {NONCE}\nbuffer_load_dword {vr(vCa)}, {vr(vCa)}, {sr(sWS,4)}, 0 offen')
    nvm = [1]
    def tab_loads(dst, n, areg, off, stride):
        k = 0
        while k < n:
            base = off + k*stride
            per = {1024: 4, 4096: 1}[stride]
            e(f'v_add_u32 {vr(t(4))}, {base}, {vr(areg)}')
            for kk in range(min(per, n-k)):
                e(f'global_load_dwordx4 {vr(dst+4*(k+kk),4)}, {vr(t(4))}, {sr(sPC,2)} offset:{kk*stride}')
                nvm[0] += 1
            k += per
    if not opt.get('addrvalu'): tab_loads(AD, 4, lG, TOFF['addr'], 4096)
    if not opt.get('rowvalu'): tab_loads(RB1, 9, t(2), TOFF['row'], 1024)
    N_ROWTAB = nvm[0]
    if stamps:
        e(f'v_mov_b32 {vr(vStamp)}, 0\nv_writelane_b32 {vr(vStamp)}, {sr(sM2)}, 0'); g.nstamp = 1; g.names.append('start')
    poison_regs()
    e(f'''s_lshl_b32 {sr(sT)}, {sr(sRho)}, 12
    v_add_u32 {vr(aP16)}, {sr(sT)}, {vr(lG)}''')
    ws_store(4, PZ, aP16, YB0)
    nvm[0] += 1
    lkb = g.lab('nokb')
    e(f'''s_cmp_lg_u32 {sr(sRowU)}, 0
    s_cbranch_scc1 {lkb}
    v_lshlrev_b32 {vr(t(5))}, 4, {vr(vL)}''')
    ws_store(4, PZ, t(5), KB0)
    ws_store(4, PZ, t(5), KB1)
    e(f'{lkb}:')
    if opt.get('touchhb') == 'w':
        e(f's_lshl_b32 {sr(sT)}, {sr(sRho)}, 13\nv_add_u32 {vr(t(6))}, {sr(sT)}, {vr(lG)}')
        ws_store(4, PZ, t(6), HB0); ws_store(4, PZ, t(6), HB0 + 4096)
        nvm[0] += 2
    if opt.get('touchhb') == 'r':
        e(f's_lshl_b32 {sr(sT)}, {sr(sRho)}, 13\nv_lshlrev_b32 {vr(t(6))}, 5, v0\nv_add_u32 {vr(t(6))}, {sr(sT)}, {vr(t(6))}\ns_mov_b32 {sr(sOff)}, {HB0}')
        e(f'buffer_load_dword {vr(vSa)}, {vr(t(6))}, {sr(sWS,4)}, {sr(sOff)} offen')
        nvm[0] += 1
    N_POISON = nvm[0]
    N_ALL = nvm[0]
    srd(sOUT, kout, 2097152)
    e(f'''s_mov_b32 {sr(s16)}, {fbits(16.0)}
    v_and_b32 {vr(vN)}, 15, {vr(vL)}
    v_lshrrev_b32 {vr(vQ)}, 4, {vr(vL)}''')

    a0, a1, a2, a3 = t(20), t(21), t(22), t(23)
    def addr_misc():
        e(f'''s_lshl_b32 {sr(sT)}, {sr(sRho)}, 4
        v_lshlrev_b32 {vr(aHdr)}, 12, v0
        v_add_u32 {vr(aS16)}, {sr(sT)}, {vr(aHdr)}
        v_mov_b32 {vr(a0)}, {sr(sRowU)}
        v_mov_b32 {vr(a1)}, {sr(sRowV)}
        v_cmp_gt_u32 vcc, 32, {vr(vL)}
        s_lshl_b32 {sr(sT)}, {sr(sPhi)}, 11
        s_cmp_lt_u32 {sr(sPhi)}, {NF}
        s_cselect_b32 {sr(sT)}, {sr(sT)}, 0x7f000000
        v_cndmask_b32 {vr(vRowH)}, {vr(a1)}, {vr(a0)}, vcc
        v_lshlrev_b32 {vr(aP8)}, 3, v0
        v_add_u32 {vr(aP8)}, {sr(sT)}, {vr(aP8)}
        v_mov_b32 {vr(a0)}, 0
        v_lshlrev_b32 {vr(a1)}, 10, {vr(vL)}
        s_mov_b64 exec, 31
        ds_write_b16 {vr(a1)}, {vr(a0)} offset:{YIMG}
        s_mov_b64 exec, -1''')
    def addr_p1():
        x0_, x1_, x2_, x3_, x4_ = t(20), t(21), t(22), t(23), t(24)
        e(f'''s_lshl_b32 {sr(sT)}, {sr(sW)}, 10
        v_lshlrev_b32 {vr(x2_)}, 4, {vr(vL)}
        v_add_u32 {vr(lRow)}, {sr(sT)}, {vr(x2_)}
        s_add_u32 {sr(sT2)}, {sr(sT)}, {RIMG+1008}
        v_sub_u32 {vr(lRw)}, {sr(sT2)}, {vr(x2_)}
        v_lshrrev_b32 {vr(x3_)}, 2, {vr(vN)}
        v_lshl_add_u32 {vr(x2_)}, {vr(vQ)}, 3, {vr(x3_)}
        v_lshlrev_b32 {vr(x2_)}, 5, {vr(x2_)}
        v_and_b32 {vr(x3_)}, 3, {vr(vN)}
        v_lshl_add_u32 {vr(x2_)}, {vr(x3_)}, 3, {vr(x2_)}
        v_add_u32 {vr(lTr)}, {sr(sT)}, {vr(x2_)}
        v_lshrrev_b32 {vr(x3_)}, 3, {vr(vN)}
        v_add_u32 {vr(x3_)}, {vr(x3_)}, {vr(vN)}
        v_lshlrev_b32 {vr(x3_)}, 4, {vr(x3_)}
        v_mul_u32_u24 {vr(x4_)}, {tables.CIN_QS}, {vr(vQ)}
        v_add_u32 {vr(lCr)}, {vr(x3_)}, {vr(x4_)}
        v_add_u32 {vr(lCr)}, {CIN}, {vr(lCr)}''')
        e(f'''s_sub_u32 {sr(sT3)}, 4, {sr(sW)}
        s_and_b32 {sr(sT3)}, {sr(sT3)}, 3
        s_add_u32 {sr(sT3)}, {sr(sT3)}, 4
        s_lshl_b32 {sr(sT3)}, {sr(sT3)}, 1
        s_lshl_b32 {sr(sT2)}, {sr(sW)}, 1
        v_lshlrev_b32 {vr(x0_)}, 7, {vr(vQ)}
        v_add_u32 {vr(x1_)}, {vr(x0_)}, {vr(vN)}
        v_sub_u32 {vr(x2_)}, {vr(x0_)}, {vr(vN)}
        v_and_b32 {vr(x3_)}, 8, {vr(x1_)}
        v_and_b32 {vr(x4_)}, 8, {vr(x2_)}
        v_xor_b32 {vr(x3_)}, {sr(sT2)}, {vr(x3_)}
        v_xor_b32 {vr(x4_)}, {sr(sT3)}, {vr(x4_)}
        v_lshl_add_u32 {vr(x1_)}, {vr(x1_)}, 4, {vr(x3_)}
        v_lshl_add_u32 {vr(x2_)}, {vr(x2_)}, 4, {vr(x4_)}
        v_add_u32 {vr(x1_)}, {HIMG}, {vr(x1_)}
        v_add_u32 {vr(x2_)}, {HIMG - 224*16}, {vr(x2_)}
        v_cmp_gt_u32 vcc, 2, {vr(vQ)}
        v_add_u32 {vr(x3_)}, 256, {vr(x1_)}
        v_subrev_u32 {vr(x4_)}, 256, {vr(x2_)}
        v_cndmask_b32 {vr(lH)}, {vr(x2_)}, {vr(x1_)}, vcc
        v_cndmask_b32 {vr(lH+1)}, {vr(x4_)}, {vr(x3_)}, vcc
        s_add_u32 {sr(sT2)}, {sr(sT2)}, {HIMG}
        s_add_u32 {sr(sT3)}, {sr(sT3)}, {HIMG}
        v_mov_b32 {vr(x0_)}, {HIMG+4112}
        v_mov_b32 {vr(x1_)}, {sr(sT2)}
        v_mov_b32 {vr(x2_)}, {sr(sT3)}
        v_cmp_eq_u32 vcc, 48, {vr(vL)}
        v_cndmask_b32 {vr(lHf)}, {vr(x0_)}, {vr(x1_)}, vcc
        v_cndmask_b32 {vr(lHf+1)}, {vr(x0_)}, {vr(x2_)}, vcc''')
    def addr_ym4():
        e(f'''s_cmp_eq_u32 {sr(sRho)}, 0
        s_cselect_b32 {sr(sT)}, 4096, 0
        v_add_u32 {vr(lYm4)}, {sr(sT)}, {vr(lYm)}''')

    b0, b1, b2 = t(24), t(25), t(26)
    vTau, vTlo = t(28), t(29)
    def tau_tlo():
        e(f'''s_lshl_b32 {sr(sT)}, {sr(sW)}, 3
        v_and_b32 {vr(vTau)}, 7, {vr(vN)}
        v_add_u32 {vr(vTau)}, {sr(sT)}, {vr(vTau)}
        v_sub_u32 {vr(a0)}, 64, {vr(vTau)}
        v_mov_b32 {vr(a1)}, 32
        v_cmp_eq_u32 {sr(sMz,2)}, 0, {vr(vTau)}
        v_cndmask_b32 {vr(a0)}, {vr(a0)}, {vr(a1)}, {sr(sMz,2)}
        v_cmp_le_u32 vcc, 8, {vr(vN)}
        v_cndmask_b32 {vr(vTlo)}, {vr(vTau)}, {vr(a0)}, vcc
        s_andn2_b64 {sr(sMc,2)}, vcc, {sr(sMz,2)}''')
    c0, c1 = t(30), t(31)
    def cos_seq(dst, base, step, n, amp=None):
        for j in range(0, n, 2):
            e(f'v_cos_f32 {vr(c0)}, {vr(base)}\nv_add_f32 {vr(base)}, {vr(base)}, {vr(step)}')
            e(f'v_cos_f32 {vr(c1)}, {vr(base)}')
            if j + 2 < n: e(f'v_add_f32 {vr(base)}, {vr(base)}, {vr(step)}')
            if amp is not None:
                e(f'v_mul_f32 {vr(c0)}, {amp}, {vr(c0)}\nv_mul_f32 {vr(c1)}, {amp}, {vr(c1)}')
            e(f'v_cvt_pk_f16_f32 {vr(dst + j//2)}, {vr(c0)}, {vr(c1)}')
    fQ, fN, fs, fb, fa, fb2 = t(32), t(33), t(34), t(35), t(36), t(37)
    def row_consts():
        e(f'v_cvt_f32_u32 {vr(fQ)}, {vr(vQ)}\nv_cvt_f32_u32 {vr(fN)}, {vr(vN)}')
        e(f'v_mul_f32 {vr(fs)}, {fbits(1/32)}, {vr(fN)}\nv_mul_f32 {vr(fa)}, {fbits(8.0)}, {vr(fQ)}')
        for part in range(2):
            e(f'v_mul_f32 {vr(fb)}, {vr(fa)}, {vr(fs)}')
            if part: e(f'v_add_f32 {vr(fb)}, {fbits(0.25)}, {vr(fb)}')
            cos_seq(RB1 + part*4, fb, fs, 8)
        for k in range(8): e(f'v_xor_b32 {vr(RB1+8+k)}, 0x80000000, {vr(RB1+k)}')
        e(f'v_mul_f32 {vr(fa)}, 4.0, {vr(fQ)}')
        for Tt in range(2):
            e(f'''v_add_f32 {vr(fs)}, {fbits(16.0*Tt)}, {vr(fN)}
            v_mul_f32 {vr(fs)}, {fbits(1/512)}, {vr(fs)}
            v_mul_f32 {vr(fb)}, {vr(fa)}, {vr(fs)}''')
            for i in range(4):
                e(f'v_cos_f32 {vr(RC+4*Tt+i)}, {vr(fb)}\nv_sin_f32 {vr(RS+4*Tt+i)}, {vr(fb)}')
                if i < 3: e(f'v_add_f32 {vr(fb)}, {vr(fb)}, {vr(fs)}')
        e(f'''v_sub_u32 {vr(fs)}, 23, {vr(vN)}
        v_cmp_gt_u32 vcc, 8, {vr(vN)}
        v_cndmask_b32 {vr(fs)}, {vr(fs)}, {vr(vN)}, vcc
        v_cvt_f32_u32 {vr(fs)}, {vr(fs)}
        v_mul_f32 {vr(fs)}, {fbits(1/16)}, {vr(fs)}
        v_mul_f32 {vr(fb2)}, {vr(fa)}, {vr(fs)}''')
        for part, ph in ((0, 0.125), (1, -0.125)):
            e(f'v_add_f32 {vr(fb)}, {fbits(ph)}, {vr(fb2)}')
            cos_seq(RA2 + 2*part, fb, fs, 4, amp=fbits(math.sqrt(2)))
    def col_consts_a():
        tau_tlo()
        e(f'''v_cvt_f32_u32 {vr(fQ)}, {vr(vQ)}
        v_cmp_le_u32 vcc, 8, {vr(vN)}
        s_and_b64 vcc, vcc, {sr(sMz,2)}
        v_mov_b32 {vr(a1)}, 32
        v_cndmask_b32 {vr(a0)}, {vr(vTau)}, {vr(a1)}, vcc
        v_cvt_f32_u32 {vr(fs)}, {vr(a0)}
        v_mul_f32 {vr(fs)}, {fbits(1/64)}, {vr(fs)}
        v_mov_b32 {vr(fa)}, {fbits(0.25)}
        v_cndmask_b32 {vr(fa)}, 0, {vr(fa)}, {sr(sMc,2)}
        v_mul_f32 {vr(fb)}, {fbits(8.0)}, {vr(fQ)}
        v_fma_f32 {vr(fb)}, {vr(fb)}, {vr(fs)}, {vr(fa)}''')
        cos_seq(CB1, fb, fs, 8)
        e(f'''v_and_b32 {vr(a0)}, 1, {vr(a0)}
        v_mul_u32_u24 {vr(a0)}, 0x8000, {vr(a0)}
        v_lshl_or_b32 {vr(a0)}, {vr(a0)}, 16, {vr(a0)}''')
        for k in range(4): e(f'v_xor_b32 {vr(CB1+4+k)}, {vr(a0)}, {vr(CB1+k)}')
    def col_consts_b():
        e(f'v_cvt_f32_u32 {vr(fQ)}, {vr(vQ)}')
        e(f'''v_cvt_f32_u32 {vr(fs)}, {vr(vTlo)}
        v_mul_f32 {vr(fs)}, {fbits(1/2048)}, {vr(fs)}
        v_mul_f32 {vr(fb)}, {vr(fQ)}, {vr(fs)}
        v_fma_f32 {vr(fb)}, {vr(fb)}, 4.0, {vr(fa)}
        v_mov_b32 {vr(a1)}, {fbits(0.25)}
        v_cndmask_b32 {vr(a1)}, {vr(a1)}, 0, {sr(sMz,2)}''')
        e(f'v_add_f32 {vr(fb2)}, {fbits(-0.25)}, {vr(fb)}')
        e(f'v_mul_f32 {vr(a2)}, {fbits(12.0)}, {vr(fs)}')
        for Tt in range(2):
            for i in range(4):
                k = CK + 16*Tt
                e(f'''v_cos_f32 {vr(c0)}, {vr(fb)}
                v_cos_f32 {vr(c1)}, {vr(fb2)}
                v_add_f32 {vr(fb)}, {vr(fb)}, {vr(fs)}
                v_add_f32 {vr(fb2)}, {vr(fb2)}, {vr(fs)}
                v_mul_f32 {vr(k+i)}, {fbits(0.25)}, {vr(c0)}
                v_mul_f32 {vr(k+4+i)}, {vr(a1)}, {vr(c1)}
                v_mul_f32 {vr(k+8+i)}, {fbits(-0.25)}, {vr(c1)}
                v_mul_f32 {vr(k+12+i)}, {vr(a1)}, {vr(c0)}''')
            if Tt == 0: e(f'v_add_f32 {vr(fb)}, {vr(fb)}, {vr(a2)}\nv_add_f32 {vr(fb2)}, {vr(fb2)}, {vr(a2)}')
        e(f'''v_cvt_f32_u32 {vr(fs)}, {vr(vN)}
        v_mul_f32 {vr(fs)}, {fbits(1/32)}, {vr(fs)}
        v_mul_f32 {vr(fb2)}, {vr(fQ)}, {vr(fs)}
        v_mul_f32 {vr(fb2)}, 4.0, {vr(fb2)}''')
        for part, ph in ((0, -0.125), (1, -0.375)):
            e(f'v_add_f32 {vr(fb)}, {fbits(ph)}, {vr(fb2)}')
            cos_seq(CA2 + 2*part, fb, fs, 4, amp=fbits(math.sqrt(2)/8))
        e(f'''v_and_b32 {vr(a0)}, 1, {vr(vN)}
        v_mul_u32_u24 {vr(a0)}, 0x8000, {vr(a0)}
        v_lshl_or_b32 {vr(a0)}, {vr(a0)}, 16, {vr(a0)}''')
        for k in range(4):
            e(f'v_xor_b32 {vr(CA2+4+k)}, {vr(a0)}, {vr(CA2+k)}')
        for k in range(8):
            e(f'v_xor_b32 {vr(CA2+8+k)}, 0x80000000, {vr(CA2+k)}')

    def unpack_nat(dst, src):
        for k in range(4):
            e(f'v_lshlrev_b32 {vr(dst+2*k)}, 16, {vr(src+k)}\nv_and_b32 {vr(dst+2*k+1)}, 0xffff0000, {vr(src+k)}')
    def unpack_rev(dst, src, tmp):
        e(f'''v_lshlrev_b32 {vr(tmp)}, 16, {vr(src)}
        v_and_b32 {vr(dst+7)}, 0xffff0000, {vr(src)}
        v_lshlrev_b32 {vr(dst+6)}, 16, {vr(src+1)}
        v_and_b32 {vr(dst+5)}, 0xffff0000, {vr(src+1)}
        v_mov_b32_dpp {vr(dst)}, {vr(tmp)} wave_ror:1 {DPP}
        v_lshlrev_b32 {vr(dst+4)}, 16, {vr(src+2)}
        v_and_b32 {vr(dst+3)}, 0xffff0000, {vr(src+2)}
        v_lshlrev_b32 {vr(dst+2)}, 16, {vr(src+3)}
        v_and_b32 {vr(dst+1)}, 0xffff0000, {vr(src+3)}''')
    def half_reduce(regs, tmps, op='v_add_f32'):
        for sh in (8, 4, 2, 1):
            for r in regs: e(f'{op}_dpp {vr(r)}, {vr(r)}, {vr(r)} row_ror:{sh} {DPP}')
        for r, tm in zip(regs, tmps): e(f'v_mov_b32 {vr(tm)}, {vr(r)}')
        for r, tm in zip(regs, tmps): e(f'v_permlane16_swap_b32 {vr(r)}, {vr(tm)}')
        for r, tm in zip(regs, tmps): e(f'{op} {vr(r)}, {vr(r)}, {vr(tm)}')
    def wave_reduce(regs, tmps, op='v_add_f32'):
        half_reduce(regs, tmps, op)
        for r, tm in zip(regs, tmps): e(f'v_mov_b32 {vr(tm)}, {vr(r)}')
        for r, tm in zip(regs, tmps): e(f'v_permlane32_swap_b32 {vr(r)}, {vr(tm)}')
        for r, tm in zip(regs, tmps): e(f'{op} {vr(r)}, {vr(r)}, {vr(tm)}')
    hM, hVar, hRho, hB, hR = t(40), t(41), t(42), t(43), t(44)
    def partial(Dd, src, sC, w, o1, o2, o3, P, read=True):
        if read: e(f'v_readfirstlane_b32 {sr(sC)}, {vr(src)}')
        for k in range(4):
            e(f'v_pk_add_f32 {vr(Dd+2*k,2)}, {vr(src+2*k,2)}, {sr(sC,2)} op_sel_hi:[1,0] neg_lo:[0,1] neg_hi:[0,1]')
        e(f'''v_pk_add_f32 {vr(P,2)}, {vr(Dd,2)}, {vr(Dd+2,2)}
        v_pk_mul_f32 {vr(P+2,2)}, {vr(Dd,2)}, {vr(Dd,2)}
        v_pk_add_f32 {vr(P+4,2)}, {vr(Dd+4,2)}, {vr(Dd+6,2)}''')
        if w is not None: e(f'v_pk_mul_f32 {vr(P+6,2)}, {vr(Dd,2)}, {vr(w,2)}')
        for k in range(1, 4):
            e(f'v_pk_fma_f32 {vr(P+2,2)}, {vr(Dd+2*k,2)}, {vr(Dd+2*k,2)}, {vr(P+2,2)}')
            if w is not None: e(f'v_pk_fma_f32 {vr(P+6,2)}, {vr(Dd+2*k,2)}, {vr(w+2*k,2)}, {vr(P+6,2)}')
            if k == 1: e(f'v_pk_add_f32 {vr(P,2)}, {vr(P,2)}, {vr(P+4,2)}')
        e(f'v_add_f32 {vr(o1)}, {vr(P)}, {vr(P+1)}\nv_add_f32 {vr(o2)}, {vr(P+2)}, {vr(P+3)}')
        if w is not None: e(f'v_add_f32 {vr(o3)}, {vr(P+6)}, {vr(P+7)}')
    def moments(S1, S2):
        e(f'''v_mul_f32 {vr(hM)}, {fbits(1/512)}, {vr(S1)}
        v_mul_f32 {vr(S2)}, {fbits(1/512)}, {vr(S2)}
        v_fma_f32 {vr(hVar)}, -{vr(hM)}, {vr(hM)}, {vr(S2)}
        v_add_f32 {vr(S2)}, {fbits(1e-5)}, {vr(hVar)}
        v_rsq_f32 {vr(hRho)}, {vr(S2)}''')
    def stats2(with_r):
        a1_, a2_, a3_, b1_, b2_, b3_ = t(16), t(17), t(18), t(19), t(20), t(21)
        e(f'v_readfirstlane_b32 {sr(sCu)}, {vr(XU)}\nv_readfirstlane_b32 {sr(sCv)}, {vr(XV)}')
        partial(DV, XV, sCv, WV if with_r else None, b1_, b2_, b3_, t(32), read=False) if False else None
        partial(DU, XU, sCu, WU if with_r else None, a1_, a2_, a3_, t(24), read=False)
        partial(DV, XV, sCv, WV if with_r else None, b1_, b2_, b3_, t(32), read=False)
        pairs = [(a1_, b1_), (a2_, b2_)] + ([(a3_, b3_)] if with_r else [])
        for x, y in pairs: e(f'v_permlane32_swap_b32 {vr(x)}, {vr(y)}')
        for x, y in pairs: e(f'v_add_f32 {vr(x)}, {vr(x)}, {vr(y)}')
        half_reduce([x for x, _ in pairs], [y for _, y in pairs])
        moments(a1_, a2_)
        if with_r: e(f'v_fma_f32 {vr(a3_)}, -{vr(hM)}, {sr(sSW)}, {vr(a3_)}')
        e(f'v_mul_f32 {vr(hB)}, -{vr(hM)}, {vr(hRho)}')
        if with_r: e(f'v_mul_f32 {vr(hR)}, {vr(hRho)}, {vr(a3_)}')
    def stats1(src, Dd, dst):
        partial(Dd, src, sCu, None, t(16), t(17), None, t(24))
        wave_reduce([t(16), t(17)], [t(18), t(19)])
        moments(t(16), t(17))
        e(f'''v_readfirstlane_b32 {sr(sKu)}, {vr(hRho)}
        v_mul_f32 {vr(hB)}, -{vr(hM)}, {vr(hRho)}
        v_readfirstlane_b32 {sr(sKu+1)}, {vr(hB)}''')
        for k in range(4): e(f'v_pk_fma_f32 {vr(dst+2*k,2)}, {vr(Dd+2*k,2)}, {sr(sKu,2)}, {sr(sKu,2)} {PKB}')
    def residual_coeffs():
        e(f'''v_mov_b32 {vr(t(22))}, {sr(sCu)}
        v_mov_b32 {vr(t(23))}, {sr(sCv)}
        v_cmp_gt_u32 vcc, 32, {vr(vL)}
        v_add_f32 {vr(t(21))}, 1.0, {vr(hRho)}
        v_cndmask_b32 {vr(t(22))}, {vr(t(23))}, {vr(t(22))}, vcc
        v_add_f32 {vr(t(22))}, {vr(t(22))}, {vr(hB)}
        v_readlane_b32 {sr(sAu)}, {vr(t(21))}, 0
        v_readlane_b32 {sr(sAv)}, {vr(t(21))}, 32
        v_readlane_b32 {sr(sAu+1)}, {vr(t(22))}, 0
        v_readlane_b32 {sr(sAv+1)}, {vr(t(22))}, 32''')
    def residual_update(dU, dV):
        for k in range(4): e(f'v_pk_fma_f32 {vr(dU+2*k,2)}, {vr(DU+2*k,2)}, {sr(sAu,2)}, {sr(sAu,2)} {PKB}')
        for k in range(4): e(f'v_pk_fma_f32 {vr(dV+2*k,2)}, {vr(DV+2*k,2)}, {sr(sAv,2)}, {sr(sAv,2)} {PKB}')
    def norm_coeffs(scale, bias):
        e(f'''v_readlane_b32 {sr(sKu)}, {vr(scale)}, 0
        v_readlane_b32 {sr(sKu+1)}, {vr(bias)}, 0
        v_readlane_b32 {sr(sKv)}, {vr(scale)}, 32
        v_readlane_b32 {sr(sKv+1)}, {vr(bias)}, 32''')
    GG = t(16)
    def make_g():
        for k in range(4): e(f'v_pk_fma_f32 {vr(GG+2*k,2)}, {vr(DU+2*k,2)}, {sr(sKu,2)}, {sr(sKu,2)} {PKB}')
        for k in range(4): e(f'v_pk_fma_f32 {vr(GG+2*k,2)}, {vr(DV+2*k,2)}, {sr(sKv,2)}, {vr(GG+2*k,2)} op_sel_hi:[1,0,1]')
    def write_n(src, tmp):
        for k in range(4): e(f'v_cvt_pk_f16_f32 {vr(tmp+k)}, {vr(src+2*k)}, {vr(src+2*k+1)}')
        e(f'ds_write_b128 {vr(lRow)}, {vr(tmp,4)} offset:{GIMG}')
    def write_r(src, tmp):
        e(f'''v_mov_b32_dpp {vr(tmp+4)}, {vr(src)} wave_rol:1 {DPP}
        v_cvt_pk_f16_f32 {vr(tmp+1)}, {vr(src+6)}, {vr(src+5)}
        v_cvt_pk_f16_f32 {vr(tmp+2)}, {vr(src+4)}, {vr(src+3)}
        v_cvt_pk_f16_f32 {vr(tmp+3)}, {vr(src+2)}, {vr(src+1)}
        v_cvt_pk_f16_f32 {vr(tmp)}, {vr(tmp+4)}, {vr(src+7)}
        ds_write_b128 {vr(lRw)}, {vr(tmp,4)}''')
    def core(A, O):
        Dr = [t(0), t(8)]; Di = [t(4), t(12)]
        for Tt in range(2):
            e(f'v_mfma_f32_16x16x32_f16 {vr(Dr[Tt],4)}, {vr(A,4)}, {vr(RB1+(2*Tt)*4,4)}, 0')
            e(f'v_mfma_f32_16x16x32_f16 {vr(Di[Tt],4)}, {vr(A,4)}, {vr(RB1+(2*Tt+1)*4,4)}, 0')
        Bo = [t(16), t(20)]; br, bi = t(24), t(28)
        for Tt in range(2):
            for h in range(2):
                c = vr(RC+4*Tt+2*h, 2); s_ = vr(RS+4*Tt+2*h, 2)
                dr = vr(Dr[Tt]+2*h, 2); di = vr(Di[Tt]+2*h, 2)
                e(f'''v_pk_mul_f32 {vr(br+2*h,2)}, {dr}, {c}
                v_pk_mul_f32 {vr(bi+2*h,2)}, {di}, {c}
                v_pk_fma_f32 {vr(br+2*h,2)}, {di}, {s_}, {vr(br+2*h,2)}
                v_pk_fma_f32 {vr(bi+2*h,2)}, {dr}, {s_}, {vr(bi+2*h,2)} neg_lo:[1,0,0] neg_hi:[1,0,0]''')
            e(f'''v_cvt_pk_f16_f32 {vr(Bo[Tt])}, {vr(br)}, {vr(br+1)}
            v_cvt_pk_f16_f32 {vr(Bo[Tt]+1)}, {vr(br+2)}, {vr(br+3)}
            v_cvt_pk_f16_f32 {vr(Bo[Tt]+2)}, {vr(bi)}, {vr(bi+1)}
            v_cvt_pk_f16_f32 {vr(Bo[Tt]+3)}, {vr(bi+2)}, {vr(bi+3)}''')
            e(f'v_mfma_f32_16x16x32_f16 {vr(O+4*Tt,4)}, {vr(RA2,4)}, {vr(Bo[Tt],4)}, 0')

    CA, CO = t(32), t(36)
    def transform(dst_off, tagged=False, pre_core=None, post_scatter=None, pre_store=None):
        write_n(GG, t(24))
        e(f"""ds_read_b64_tr_b16 {vr(CA,2)}, {vr(lTr)} offset:{GIMG}
        ds_read_b64_tr_b16 {vr(CA+2,2)}, {vr(lTr)} offset:{GIMG+128}""")
        if pre_core: pre_core()
        e('s_waitcnt lgkmcnt(0)')
        core(CA, CO)
        for k in range(4): e(f'v_cvt_pk_f16_f32 {vr(t(44)+k)}, {vr(CO+2*k)}, {vr(CO+2*k+1)}')
        for Tt in range(2):
            for i in range(4):
                op = 'ds_write_b16' if i % 2 == 0 else 'ds_write_b16_d16_hi'
                e(f'{op} {vr(lH+Tt)}, {vr(t(44) + 2*Tt + i//2)} offset:{512*i}')
        e(f'ds_write_b16_d16_hi {vr(lHf)}, {vr(t(45))}\nds_write_b16_d16_hi {vr(lHf+1)}, {vr(t(45))}')
        if post_scatter: post_scatter()
        if tagged:
            e(f"""v_lshlrev_b32 {vr(t(8))}, 3, v0
            s_lshl_b32 {sr(sT)}, {sr(sRho)}, 13
            v_add_u32 {vr(t(9))}, {sr(sT)}, {vr(lG)}""")
            for k in (1, 3, 5, 7): e(f'v_mov_b32 {vr(t(k))}, {sr(sTag)}')
            if pre_store: pre_store()
            e(f"""s_waitcnt lgkmcnt(0)
            s_barrier
            ds_read_b32 {vr(t(0))}, {vr(t(8))} offset:{HIMG}
            ds_read_b32 {vr(t(2))}, {vr(t(8))} offset:{HIMG+4}
            ds_read_b32 {vr(t(4))}, {vr(t(8))} offset:{HIMG+2048}
            ds_read_b32 {vr(t(6))}, {vr(t(8))} offset:{HIMG+2052}
            s_mov_b32 {sr(sOff)}, {dst_off}
            s_mov_b32 {sr(sT)}, {dst_off+4096}
            s_waitcnt lgkmcnt(2)
            buffer_store_dwordx4 {vr(t(0),4)}, {vr(t(9))}, {sr(sWS,4)}, {sr(sOff)} offen sc1
            s_waitcnt lgkmcnt(0)
            buffer_store_dwordx4 {vr(t(4),4)}, {vr(t(9))}, {sr(sWS,4)}, {sr(sT)} offen sc1""")
        else:
            if pre_store: pre_store()
            e(f"""s_waitcnt lgkmcnt(0)
            s_barrier
            ds_read_b128 {vr(t(0),4)}, {vr(lG)} offset:{HIMG}
            s_mov_b32 {sr(sOff)}, {dst_off}
            s_waitcnt lgkmcnt(0)
            buffer_store_dwordx4 {vr(t(0),4)}, {vr(aP16)}, {sr(sWS,4)}, {sr(sOff)} offen sc1""")

    def affine_from_x(sx1x0_u, sx1x0_v, sKu_, sKv_, outU, outV):
        for (xx, cc, kk, oo) in ((sx1x0_u, sCu, sKu_, outU), (sx1x0_v, sCv, sKv_, outV)):
            if xx is None:
                e(f"""v_mov_b32 {vr(t(44))}, {sr(kk)}
                v_mov_b32 {vr(t(45))}, {sr(kk+1)}
                v_fma_f32 {vr(t(45))}, -{vr(t(44))}, {sr(cc)}, {vr(t(45))}""")
            else:
                e(f"""v_rcp_f32 {vr(t(44))}, {sr(xx)}
                v_mov_b32 {vr(t(45))}, {sr(kk+1)}
                v_mul_f32 {vr(t(44))}, {sr(kk)}, {vr(t(44))}
                v_fma_f32 {vr(t(45))}, -{vr(t(44))}, {sr(xx+1)}, {vr(t(45))}""")
            e(f'v_readfirstlane_b32 {sr(oo)}, {vr(t(44))}\nv_readfirstlane_b32 {sr(oo+1)}, {vr(t(45))}')

    def special_k(dst_off, after_residual):
        ln = g.lab('nok')
        e(f's_cmp_lg_u32 {sr(sRowU)}, 0\ns_cbranch_scc1 {ln}')
        affine_from_x(sAu if after_residual else None, sAv if after_residual else None, sKu, sKv, sH, sH+2)
        ZU, ZV = t(0), t(8)
        for k in range(4): e(f'v_pk_fma_f32 {vr(ZU+2*k,2)}, {vr(XU+2*k,2)}, {sr(sH,2)}, {sr(sH,2)} {PKB}')
        for k in range(4): e(f'v_pk_fma_f32 {vr(ZV+2*k,2)}, {vr(XV+2*k,2)}, {sr(sH+2,2)}, {sr(sH+2,2)} {PKB}')
        write_r(ZU, t(16)); write_n(ZV, t(24))
        A, B = CA, t(40)
        e(f"""ds_read_b64_tr_b16 {vr(A,2)}, {vr(lTr)} offset:{RIMG}
        ds_read_b64_tr_b16 {vr(B,2)}, {vr(lTr)} offset:{GIMG}
        ds_read_b64_tr_b16 {vr(A+2,2)}, {vr(lTr)} offset:{RIMG+128}
        ds_read_b64_tr_b16 {vr(B+2,2)}, {vr(lTr)} offset:{GIMG+128}
        s_waitcnt lgkmcnt(0)""")
        for k in range(4): e(f'v_pk_add_f16 {vr(A+k)}, {vr(A+k)}, {vr(B+k)} neg_lo:[0,1] neg_hi:[0,1]')
        core(A, CO)
        for k in range(4): e(f'v_pk_mul_f32 {vr(CO+2*k,2)}, {vr(CO+2*k,2)}, {sr(sT2 if False else sM2,2)} op_sel_hi:[1,0]' if False else f'v_mul_f32 {vr(CO+2*k)}, {fbits(1/16)}, {vr(CO+2*k)}\nv_mul_f32 {vr(CO+2*k+1)}, {fbits(1/16)}, {vr(CO+2*k+1)}')
        for k in range(4): e(f'v_cvt_pk_f16_f32 {vr(t(44)+k)}, {vr(CO+2*k)}, {vr(CO+2*k+1)}')
        e(f"""v_lshl_add_u32 {vr(t(0))}, {vr(vQ)}, 7, {vr(vN)}
        v_lshlrev_b32 {vr(t(0))}, 1, {vr(t(0))}
        v_sub_u32 {vr(t(1))}, {1024-32-192}, {vr(t(0))}
        v_mov_b32 {vr(t(2))}, 512
        s_mov_b32 exec_lo, -1
        s_mov_b32 exec_hi, 0""")
        for Tt in range(2):
            for i in range(4):
                op = 'ds_write_b16' if i % 2 == 0 else 'ds_write_b16_d16_hi'
                e(f'{op} {vr(t(0))}, {vr(t(44)+2*Tt+i//2)} offset:{KIMG + 32*Tt + 64*i}')
                e(f'{op} {vr(t(1))}, {vr(t(44)+2*Tt+i//2)} offset:{KIMG + 32*(1-Tt) + 64*(3-i)}')
        e(f"""s_mov_b32 exec_lo, 0
        s_mov_b32 exec_hi, 0x00010000
        ds_write_b16_d16_hi {vr(t(2))}, {vr(t(45))} offset:{KIMG}
        s_mov_b64 exec, -1
        v_lshlrev_b32 {vr(t(3))}, 4, {vr(vL)}
        s_waitcnt lgkmcnt(0)
        ds_read_b128 {vr(t(4),4)}, {vr(t(3))} offset:{KIMG}
        s_mov_b32 {sr(sOff)}, {dst_off}
        s_waitcnt lgkmcnt(0)
        buffer_store_dwordx4 {vr(t(4),4)}, {vr(t(3))}, {sr(sWS,4)}, {sr(sOff)} offen sc1
        {ln}:""")

    PC = t(40)
    def column_load(src_off):
        e(f's_mov_b32 {sr(sOff)}, {src_off}')
        e(ws_load_text(4, PC, aS16, sr(sOff)))
    def column(src_off, dst_off, preloaded, tagged=False):
        P = PC
        e(f's_mov_b32 {sr(sOff)}, {src_off}')
        if tagged:
            P = t(0); A2 = t(44); AD1 = t(8)
            e(f'''v_lshrrev_b32 {vr(AD1)}, 1, v0
            v_lshlrev_b32 {vr(AD1)}, 13, {vr(AD1)}
            v_and_b32 {vr(t(9))}, 1, v0
            v_lshl_add_u32 {vr(AD1)}, {vr(t(9))}, 4, {vr(AD1)}
            s_lshl_b32 {sr(sT)}, {sr(sRho)}, 5
            v_add_u32 {vr(AD1)}, {sr(sT)}, {vr(AD1)}
            s_add_u32 {sr(sT3)}, {sr(sOff)}, {128*8192}''')
            ld = ws_load_text(4, P, AD1, sr(sOff)) + '\n' + ws_load_text(4, P+4, AD1, sr(sT3))
            if opt.get('splitc'):
                e(ld); col_consts_b(); e('s_waitcnt vmcnt(0)')
                poll(ld, ('tag', P), preloaded=True)
            else:
                poll(ld, ('tag', P))
            stamp('col data')
            for k in range(2):
                e(f'''ds_write_b16 {vr(A2+2*k)}, {vr(P+4*k)}
                ds_write_b16_d16_hi {vr(A2+2*k+1)}, {vr(P+4*k)} offset:16
                ds_write_b16 {vr(A2+2*k+1)}, {vr(P+4*k+2)} offset:32
                ds_write_b16_d16_hi {vr(A2+2*k+1)}, {vr(P+4*k+2)} offset:48''')
            e('s_waitcnt lgkmcnt(0)\ns_barrier')
        else:
            poll(ws_load_text(4, P, aS16, sr(sOff)), range(P, P+4), preloaded=preloaded)
            lsw = g.lab('nosw')
            e(f's_bitcmp0_b32 {sr(sRho)}, 3\ns_cbranch_scc1 {lsw}\nv_swap_b32 {vr(P)}, {vr(P+2)}\nv_swap_b32 {vr(P+1)}, {vr(P+3)}\n{lsw}:')
            d = [P, P+1, P+2, P+3]
            stamp('col data')
            e(f"""ds_write_b16 {vr(lCa)}, {vr(d[0])}
            ds_write_b16_d16_hi {vr(lCa)}, {vr(d[0])} offset:16
            ds_write_b16 {vr(lCa)}, {vr(d[1])} offset:32
            ds_write_b16_d16_hi {vr(lCa)}, {vr(d[1])} offset:48
            ds_write_b16 {vr(lCb)}, {vr(d[2])}
            ds_write_b16_d16_hi {vr(lCc)}, {vr(d[2])} offset:16
            ds_write_b16 {vr(lCc)}, {vr(d[3])} offset:32
            ds_write_b16_d16_hi {vr(lCc)}, {vr(d[3])} offset:48
            s_waitcnt lgkmcnt(0)
            s_barrier""")
        A = t(0)
        for k in range(4): e(f'ds_read_b128 {vr(A+4*k,4)}, {vr(lCr)} offset:{tables.cin_block(k)}')
        D1 = [t(16), t(20)]
        e(f"""s_waitcnt lgkmcnt(3)
        v_mfma_f32_16x16x32_f16 {vr(D1[0],4)}, {vr(A,4)}, {vr(CB1,4)}, 0
        s_waitcnt lgkmcnt(2)
        v_mfma_f32_16x16x32_f16 {vr(D1[0],4)}, {vr(A+4,4)}, {vr(CB1+4,4)}, {vr(D1[0],4)}
        s_waitcnt lgkmcnt(1)
        v_mfma_f32_16x16x32_f16 {vr(D1[1],4)}, {vr(A+8,4)}, {vr(CB1,4)}, 0
        s_waitcnt lgkmcnt(0)
        v_mfma_f32_16x16x32_f16 {vr(D1[1],4)}, {vr(A+12,4)}, {vr(CB1+4,4)}, {vr(D1[1],4)}""")
        Bb = t(24); br, bi = t(28), t(32); Bo = [t(0), t(4)]
        O = [t(8), t(12)]
        for Tt in range(2):
            k = CK + 16*Tt
            for i in range(4): e(f'v_mov_b32_dpp {vr(Bb+i)}, {vr(D1[Tt]+i)} row_ror:8 {DPP}')
            for h in range(2):
                e(f"""v_pk_mul_f32 {vr(br+2*h,2)}, {vr(D1[Tt]+2*h,2)}, {vr(k+2*h,2)}
                v_pk_mul_f32 {vr(bi+2*h,2)}, {vr(D1[Tt]+2*h,2)}, {vr(k+8+2*h,2)}""")
            for h in range(2):
                e(f"""v_pk_fma_f32 {vr(br+2*h,2)}, {vr(Bb+2*h,2)}, {vr(k+4+2*h,2)}, {vr(br+2*h,2)}
                v_pk_fma_f32 {vr(bi+2*h,2)}, {vr(Bb+2*h,2)}, {vr(k+12+2*h,2)}, {vr(bi+2*h,2)}""")
            e(f"""v_cvt_pk_f16_f32 {vr(Bo[Tt])}, {vr(br)}, {vr(br+1)}
            v_cvt_pk_f16_f32 {vr(Bo[Tt]+1)}, {vr(br+2)}, {vr(br+3)}
            v_cvt_pk_f16_f32 {vr(Bo[Tt]+2)}, {vr(bi)}, {vr(bi+1)}
            v_cvt_pk_f16_f32 {vr(Bo[Tt]+3)}, {vr(bi+2)}, {vr(bi+3)}""")
            e(f"""v_mfma_f32_16x16x32_f16 {vr(O[0],4)}, {vr(CA2+4*Tt,4)}, {vr(Bo[Tt],4)}, {"0" if Tt == 0 else vr(O[0],4)}
            v_mfma_f32_16x16x32_f16 {vr(O[1],4)}, {vr(CA2+8+4*Tt,4)}, {vr(Bo[Tt],4)}, {"0" if Tt == 0 else vr(O[1],4)}""")
        e(f"""        v_cvt_pk_f16_f32 {vr(t(16))}, {vr(O[0])}, {vr(O[0]+1)}
        v_cvt_pk_f16_f32 {vr(t(17))}, {vr(O[0]+2)}, {vr(O[0]+3)}
        ds_write_b16 {vr(lCo)}, {vr(t(16))}
        ds_write_b16_d16_hi {vr(lCo)}, {vr(t(16))} offset:256
        v_cvt_pk_f16_f32 {vr(t(18))}, {vr(O[1])}, {vr(O[1]+1)}
        v_cvt_pk_f16_f32 {vr(t(19))}, {vr(O[1]+2)}, {vr(O[1]+3)}
        ds_write_b16 {vr(lCo)}, {vr(t(17))} offset:512
        ds_write_b16_d16_hi {vr(lCo)}, {vr(t(17))} offset:768
        ds_write_b16 {vr(lCo+2)}, {vr(t(18))}
        ds_write_b16_d16_hi {vr(lCo+1)}, {vr(t(18))} offset:512
        ds_write_b16 {vr(lCo+1)}, {vr(t(19))} offset:256
        ds_write_b16_d16_hi {vr(lCo+1)}, {vr(t(19))}
        s_waitcnt lgkmcnt(0)
        s_barrier
        ds_read_b128 {vr(t(0),4)}, {vr(lG)} offset:{COUT}
        s_mov_b32 {sr(sOff)}, {dst_off}
        s_waitcnt lgkmcnt(0)
        buffer_store_dwordx4 {vr(t(0),4)}, {vr(aP16)}, {sr(sWS,4)}, {sr(sOff)} offen sc1""")

    YH, YV, KT = t(4), t(8), t(12)
    def row_input(src_off, kb, with_weights=False):
        P = t(0)
        lk = g.lab('nok')
        e(f's_bitcmp0_b32 {sr(sW)}, 0\ns_cbranch_scc1 {lk}')
        e(f'v_lshlrev_b32 {vr(t(16))}, 4, {vr(vL)}\ns_mov_b32 {sr(sT3)}, {kb}')
        e(ws_load_text(4, KT, t(16), sr(sT3)))
        e(f'{lk}:')
        e(f's_mov_b32 {sr(sOff)}, {src_off}')
        ld = ws_load_text(4, P, aS16, sr(sOff))
        if with_weights:
            lw = g.lab('now'); lw2 = g.lab('now2')
            e(ld)
            e(f's_cmp_ge_u32 {sr(sPhi)}, {NF}\ns_cbranch_scc1 {lw}')
            e(f's_mov_b32 {sr(sCnt)}, {sr(sT3)}')
            weight_loads()
            e(f's_mov_b32 {sr(sT3)}, {sr(sCnt)}\ns_mov_b32 {sr(sOff)}, {src_off}\ns_waitcnt vmcnt(6)\ns_branch {lw2}\n{lw}:\ns_waitcnt vmcnt(0)\n{lw2}:')
            poll(ld, range(P, P+4), preloaded=True)
        else:
            poll(ld, range(P, P+4))
        stamp('row data')
        def wr(slot, areg, off):
            op = 'ds_write_b16' if slot % 2 == 0 else 'ds_write_b16_d16_hi'
            e(f'{op} {vr(areg)}, {vr(P + slot//2)} offset:{YIMG + off}')
        for j in range(4): wr(j, lYd, j*1024)
        wr(4, lYm4, 0); wr(5, lYm, 3*1024); wr(6, lYm, 2*1024); wr(7, lYm, 1024)
        l0 = g.lab('not0')
        e(f's_cmp_lg_u32 {sr(sRho)}, 0\ns_cbranch_scc1 {l0}')
        wr(0, lYm, 0); wr(4, lYd, 4096)
        e(f"""{l0}:
        s_waitcnt lgkmcnt(0)
        s_barrier
        ds_read_b128 {vr(YH,4)}, {vr(lRow)} offset:{YIMG}""")
        lv = g.lab('yv')
        e(f"""s_cmp_lg_u32 {sr(sRowU)}, 0
        s_cbranch_scc1 {lv}
        ds_read_b128 {vr(YV,4)}, {vr(lRow)} offset:{YIMG+4096}
        {lv}:""")
        lk = g.lab('nok2')
        e(f's_bitcmp0_b32 {sr(sW)}, 0\ns_cbranch_scc1 {lk}')
        poll(ws_load_text(4, KT, t(16), sr(sT3)), range(KT, KT+4), preloaded=True)
        e('s_waitcnt lgkmcnt(0)')
        for k in range(4): e(f'v_pk_add_f16 {vr(YH+k)}, {vr(YH+k)}, {vr(KT+k)}')
        e(f'{lk}:\ns_waitcnt lgkmcnt(0)')
    def add_y(yu, yv):
        for k in range(4):
            e(f"""v_fma_mix_f32 {vr(XU+2*k)}, {vr(yu+k)}, {sr(s16)}, {vr(XU+2*k)} op_sel:[0,0,0] op_sel_hi:[1,0,0]
            v_fma_mix_f32 {vr(XU+2*k+1)}, {vr(yu+k)}, {sr(s16)}, {vr(XU+2*k+1)} op_sel:[1,0,0] op_sel_hi:[1,0,0]""")
        for k in range(4):
            e(f"""v_fma_mix_f32 {vr(XV+2*k)}, {vr(yv+k)}, {sr(s16)}, {vr(XV+2*k)} op_sel:[0,0,0] op_sel_hi:[1,0,0]
            v_fma_mix_f32 {vr(XV+2*k+1)}, {vr(yv+k)}, {sr(s16)}, {vr(XV+2*k+1)} op_sel:[1,0,0] op_sel_hi:[1,0,0]""")
    def add_y_pair():
        ls = g.lab('ysp'); lj = g.lab('yj')
        e(f's_cmp_eq_u32 {sr(sRowU)}, 0\ns_cbranch_scc1 {ls}')
        add_y(YH, YH)
        e(f'{lj}:')
        g.late.append((ls, lj))
    g.late = []

    def make_key():
        e(f"""v_ashrrev_i32 {vr(t(22))}, 31, {vr(hR)}
        v_or_b32 {vr(t(22))}, 0x80000000, {vr(t(22))}
        v_xor_b32 {vr(t(22))}, {vr(hR)}, {vr(t(22))}
        v_and_b32 {vr(t(22))}, 0xfffff800, {vr(t(22))}
        v_or_b32 {vr(t(22))}, {vr(vRowH)}, {vr(t(22))}
        v_readlane_b32 {sr(sKeyU)}, {vr(t(22))}, 0
        v_readlane_b32 {sr(sKeyV)}, {vr(t(22))}, 32
        s_lshl_b32 {sr(sT)}, {sr(sW)}, 2
        v_mov_b32 {vr(t(23))}, {sr(sT)}
        s_max_u32 {sr(sKey)}, {sr(sKeyU)}, {sr(sKeyV)}
        v_mov_b32 {vr(t(22))}, {sr(sKey)}
        ds_write_b32 {vr(t(23))}, {vr(t(22))} offset:{AM}""")
    def wg_best_read(tmp):
        e(f'v_mov_b32 {vr(tmp+4)}, 0\nds_read_b128 {vr(tmp,4)}, {vr(tmp+4)} offset:{AM}')
    def wg_best_header(cand, tmp):
        ln = g.lab('nohdr')
        e(f"""v_max3_u32 {vr(tmp)}, {vr(tmp)}, {vr(tmp+1)}, {vr(tmp+2)}
        v_max_u32 {vr(tmp)}, {vr(tmp)}, {vr(tmp+3)}
        v_readfirstlane_b32 {sr(sT)}, {vr(tmp)}
        s_cmp_eq_u32 {sr(sT)}, {sr(sKey)}
        s_cselect_b32 {sr(sSgn)}, 1, 0
        s_cbranch_scc0 {ln}
        s_lshl_b32 {sr(sT)}, {sr(sRho)}, 12
        s_add_u32 {sr(sOff)}, {sr(sT)}, {cand}
        v_mov_b32 {vr(tmp+1)}, {sr(sKey)}
        s_mov_b64 exec, 1
        buffer_store_dword {vr(tmp+1)}, {vr(tmp+4)}, {sr(sWS,4)}, {sr(sOff)} offen sc1
        s_mov_b64 exec, -1
        {ln}:""")
    def publish_rows(cand):
        ln = g.lab('nopub'); lv = g.lab('pubv'); lj = g.lab('pubj')
        e(f's_cmp_eq_u32 {sr(sSgn)}, 0\ns_cbranch_scc1 {ln}')
        e(f"""s_lshl_b32 {sr(sT)}, {sr(sRho)}, 12
        s_add_u32 {sr(sOff)}, {sr(sT)}, {cand}
        s_cmp_gt_u32 {sr(sKeyV)}, {sr(sKeyU)}
        s_cbranch_scc1 {lv}""")
        for (lab_, X_, A_, C_) in ((None, XU, sAu, sCu), (lv, XV, sAv, sCv)):
            if lab_: e(f'{lab_}:')
            e(f"""v_rcp_f32 {vr(t(0))}, {sr(A_)}
            v_mov_b32 {vr(t(1))}, {sr(A_+1)}
            v_mov_b32 {vr(t(2))}, {sr(A_)}
            v_add_f32 {vr(t(2))}, -1.0, {vr(t(2))}
            v_subrev_f32 {vr(t(3))}, {sr(C_)}, {vr(t(1))}
            v_mul_f32 {vr(t(4))}, {vr(t(2))}, {vr(t(0))}
            v_fma_f32 {vr(t(6))}, -{vr(t(4))}, {vr(t(1))}, {vr(t(3))}""")
            Z = t(8)
            for k in range(4): e(f'v_pk_fma_f32 {vr(Z+2*k,2)}, {vr(X_+2*k,2)}, {vr(t(4),2)}, {vr(t(6),2)} op_sel_hi:[1,0,0]')
            if X_ == XU:
                for k in range(4): e(f'v_cvt_pk_bf16_f32 {vr(t(16)+k)}, {vr(Z+2*k)}, {vr(Z+2*k+1)}')
                e(f"""v_lshlrev_b32 {vr(t(1))}, 4, {vr(vL)}
                v_lshlrev_b32 {vr(t(2))}, 5, {vr(vL)}
                buffer_store_dwordx4 {vr(t(16),4)}, {vr(t(1))}, {sr(sWS,4)}, {sr(sOff)} offen offset:128 sc1
                buffer_store_dwordx4 {vr(XU,4)}, {vr(t(2))}, {sr(sWS,4)}, {sr(sOff)} offen offset:1152 sc1
                buffer_store_dwordx4 {vr(XU+4,4)}, {vr(t(2))}, {sr(sWS,4)}, {sr(sOff)} offen offset:1168 sc1
                s_branch {lj}""")
            else:
                e(f"""v_mov_b32_dpp {vr(t(20))}, {vr(Z)} wave_rol:1 {DPP}
                v_mov_b32_dpp {vr(t(24))}, {vr(XV)} wave_rol:1 {DPP}
                v_cvt_pk_bf16_f32 {vr(t(17))}, {vr(Z+6)}, {vr(Z+5)}
                v_cvt_pk_bf16_f32 {vr(t(18))}, {vr(Z+4)}, {vr(Z+3)}
                v_cvt_pk_bf16_f32 {vr(t(19))}, {vr(Z+2)}, {vr(Z+1)}
                v_cvt_pk_bf16_f32 {vr(t(16))}, {vr(t(20))}, {vr(Z+7)}""")
                for k in range(1, 8): e(f'v_mov_b32 {vr(t(24)+k)}, {vr(XV+8-k)}')
                e(f"""v_lshlrev_b32 {vr(t(1))}, 4, {vr(vL)}
                v_sub_u32 {vr(t(1))}, 1008, {vr(t(1))}
                v_lshlrev_b32 {vr(t(2))}, 1, {vr(t(1))}
                buffer_store_dwordx4 {vr(t(16),4)}, {vr(t(1))}, {sr(sWS,4)}, {sr(sOff)} offen offset:128 sc1
                buffer_store_dwordx4 {vr(t(24),4)}, {vr(t(2))}, {sr(sWS,4)}, {sr(sOff)} offen offset:1152 sc1
                buffer_store_dwordx4 {vr(t(28),4)}, {vr(t(2))}, {sr(sWS,4)}, {sr(sOff)} offen offset:1168 sc1""")
        e(f'{lj}:\n{ln}:')

    def header_load(cand, K):
        e(f's_mov_b32 {sr(sOff)}, {cand}')
        e(ws_load_text(1, K, aHdr, sr(sOff)))
    def argmax(cand, K, after_check=None):
        e(f's_mov_b32 {sr(sOff)}, {cand}')
        poll(ws_load_text(1, K, aHdr, sr(sOff)), [K], preloaded=True, backoff=4)
        if after_check: after_check()
        wave_reduce([K], [t(1)], op='v_max_u32')
        e(f"""s_lshl_b32 {sr(sT)}, {sr(sW)}, 2
        v_mov_b32 {vr(t(1))}, {sr(sT)}
        ds_write_b32 {vr(t(1))}, {vr(K)} offset:{AM+32}
        v_mov_b32 {vr(t(1))}, 0
        s_waitcnt lgkmcnt(0)
        s_barrier
        ds_read_b128 {vr(t(4),4)}, {vr(t(1))} offset:{AM+32}
        s_waitcnt lgkmcnt(0)
        v_max3_u32 {vr(t(4))}, {vr(t(4))}, {vr(t(5))}, {vr(t(6))}
        v_max_u32 {vr(t(4))}, {vr(t(4))}, {vr(t(7))}
        v_readfirstlane_b32 {sr(sKey)}, {vr(t(4))}""")
        e(f"""s_and_b32 {sr(sStar)}, {sr(sKey)}, 2047
        s_lshr_b32 {sr(sT)}, {sr(sStar)}, 2
        s_sub_u32 {sr(sT2)}, 511, {sr(sT)}
        s_sub_u32 {sr(sT3)}, 512, {sr(sT)}
        s_and_b32 {sr(sT3)}, {sr(sT3)}, 255
        s_and_b32 {sr(sRec)}, {sr(sStar)}, 3
        s_cmp_eq_u32 {sr(sRec)}, 0
        s_cselect_b32 {sr(sT2)}, {sr(sT3)}, {sr(sT2)}
        s_cmp_lt_u32 {sr(sStar)}, 1024
        s_cselect_b32 {sr(sT2)}, {sr(sT)}, {sr(sT2)}
        s_lshl_b32 {sr(sRec)}, {sr(sT2)}, 12
        s_add_u32 {sr(sRec)}, {sr(sRec)}, {cand}""")
    def sigmoid_of_key():
        e(f"""s_and_b32 {sr(sT)}, {sr(sKey)}, 0xfffff800
        s_or_b32 {sr(sT)}, {sr(sT)}, 0x400
        s_ashr_i32 {sr(sT2)}, {sr(sT)}, 31
        s_not_b32 {sr(sT2)}, {sr(sT2)}
        s_or_b32 {sr(sT2)}, {sr(sT2)}, 0x80000000
        s_xor_b32 {sr(sT)}, {sr(sT)}, {sr(sT2)}
        v_mov_b32 {vr(vSig)}, {fbits(-1.4426950408889634)}
        v_mul_f32 {vr(vSig)}, {sr(sT)}, {vr(vSig)}
        v_exp_f32 {vr(vSig)}, {vr(vSig)}
        v_add_f32 {vr(vSig)}, 1.0, {vr(vSig)}
        v_rcp_f32 {vr(vSig)}, {vr(vSig)}""")

    def ffn_setup():
        e(f"""v_and_b32 {vr(t(0))}, 3, {vr(vN)}
        v_lshrrev_b32 {vr(t(1))}, 2, {vr(vN)}
        v_lshl_add_u32 {vr(t(1))}, {vr(vQ)}, 3, {vr(t(1))}
        s_lshl_b32 {sr(sT)}, {sr(sW)}, 7
        v_add_u32 {vr(t(1))}, {sr(sT)}, {vr(t(1))}
        v_lshlrev_b32 {vr(t(1))}, 4, {vr(t(1))}
        v_and_b32 {vr(t(3))}, 1, {vr(t(0))}
        v_lshl_add_u32 {vr(t(1))}, {vr(t(3))}, 3, {vr(t(1))}
        v_lshrrev_b32 {vr(t(3))}, 1, {vr(t(0))}
        v_lshl_add_u32 {vr(t(1))}, {vr(t(3))}, 13, {vr(t(1))}
        v_lshlrev_b32 {vr(t(2))}, 2, v0""")
        g.nbar_mark = sum(1 for l in g.L if l == 's_barrier')
        e('s_barrier')
        for kap in range(4):
            for h in range(2):
                e(f'ds_read_b64_tr_b16 {vr(FA+4*kap+2*h,2)}, {vr(t(1))} offset:{GU + kap*512 + h*64}')
        for f in range(8): e(f'ds_read_b32 {vr(t(8)+f)}, {vr(t(2))} offset:{DN + f*1024}')
        e('s_waitcnt lgkmcnt(0)')
        for f in range(8):
            e(f'v_lshlrev_b32 {vr(FD+2*f)}, 16, {vr(t(8)+f)}\nv_and_b32 {vr(FD+2*f+1)}, 0xffff0000, {vr(t(8)+f)}')
    def loader():
        e('L_loader:')
        if not opt.get('nohint'):
            lh = g.lab('nohint')
            e(f's_cmp_lt_u32 {sr(sWg)}, 248\ns_cbranch_scc1 {lh}')
            srd(sT4, kx, 2097152); srd(sWS, sKC, WS_SIZE)
            e(f'''s_lshl_b32 {sr(sT2)}, {sr(sRho)}, 12
            v_lshlrev_b32 {vr(t(1))}, 4, {vr(vL)}
            v_add_u32 {vr(t(2))}, {sr(sT2)}, {vr(t(1))}
            v_mov_b32 {vr(t(4))}, {NONCE}
            buffer_load_dword {vr(t(3))}, {vr(t(2))}, {sr(sT4,4)}, 0 offen
            buffer_load_dword {vr(t(4))}, {vr(t(4))}, {sr(sWS,4)}, 0 offen
            s_and_b32 {sr(sT)}, {sr(sWg)}, 7
            s_lshl_b32 {sr(sT)}, {sr(sT)}, 8
            v_mov_b32 {vr(t(5))}, {sr(sT)}
            s_waitcnt vmcnt(0)
            v_add_u32 {vr(t(4))}, 1, {vr(t(4))}
            s_mov_b64 exec, 1''')
            ws_store(1, t(4), t(5), HINT)
            e(f's_mov_b64 exec, -1\n{lh}:')
        if opt.get('lpf') == 'lin':
            e(f"""s_mul_i32 {sr(sT)}, {sr(sWg)}, 5632
            v_min_u32 {vr(t(4))}, 43, {vr(vL)}
            v_lshlrev_b32 {vr(t(4))}, 7, {vr(t(4))}
            v_add_u32 {vr(t(4))}, {sr(sT)}, {vr(t(4))}""")
            for ptr in (kwg, kwu):
                srd(sT4, ptr, 1409024)
                e(f'buffer_load_dword {vr(t(6))}, {vr(t(4))}, {sr(sT4,4)}, 0 offen')
        elif opt.get('lpf'):
            e(f"""s_lshr_b32 {sr(sT)}, {sr(sRho)}, 5
            s_cmp_ge_u32 {sr(sT)}, 6
            s_cbranch_scc1 L_end
            v_lshlrev_b32 {vr(t(1))}, 4, {vr(vL)}""")
            srd(sT4, kx, 2097152)
            e(f"""s_lshl_b32 {sr(sT2)}, {sr(sRho)}, 12
            v_add_u32 {vr(t(2))}, {sr(sT2)}, {vr(t(1))}
            buffer_load_dword {vr(t(3))}, {vr(t(2))}, {sr(sT4,4)}, 0 offen
            s_lshl_b32 {sr(sT)}, {sr(sT)}, 9
            s_and_b32 {sr(sT2)}, {sr(sRho)}, 31
            s_lshl_b32 {sr(sT2)}, {sr(sT2)}, 4
            v_lshrrev_b32 {vr(t(4))}, 2, {vr(vL)}
            v_add_u32 {vr(t(4))}, {sr(sT2)}, {vr(t(4))}
            s_movk_i32 {sr(sT3)}, 2752
            v_mul_lo_u32 {vr(t(4))}, {vr(t(4))}, {sr(sT3)}
            v_and_b32 {vr(t(5))}, 3, {vr(vL)}
            v_lshlrev_b32 {vr(t(5))}, 7, {vr(t(5))}
            s_max_u32 {sr(sT)}, {sr(sT)}, 16
            s_sub_u32 {sr(sT)}, {sr(sT)}, 16
            v_add3_u32 {vr(t(4))}, {vr(t(4))}, {vr(t(5))}, {sr(sT)}
            v_sub_u32 {vr(t(5))}, {vr(t(4))}, {vr(t(5))}
            v_add_u32 {vr(t(5))}, 512, {vr(t(5))}""")
            if opt.get('lpf') != 'now': e('s_waitcnt vmcnt(0)')
            for ptr in (kwg, kwu):
                srd(sT4, ptr, 1409024)
                e(f"""buffer_load_dword {vr(t(6))}, {vr(t(4))}, {sr(sT4,4)}, 0 offen
                buffer_load_dword {vr(t(7))}, {vr(t(5))}, {sr(sT4,4)}, 0 offen""")
        e(f"""s_cmp_ge_u32 {sr(sPhi)}, {NF}
        s_cbranch_scc1 L_end""")
        e(f"""s_movk_i32 {sr(sT3)}, 2752
        v_mul_lo_u32 {vr(t(0))}, {vr(vL)}, {sr(sT3)}
        s_lshl_b32 {sr(sT2)}, {sr(sPhi)}, 4
        v_add_u32 {vr(t(0))}, {sr(sT2)}, {vr(t(0))}
        v_lshlrev_b32 {vr(t(1))}, 4, {vr(vL)}""")
        def gu(ptr, lds, ks=range(8)):
            srd(sT4, ptr, 1409024)
            for k in ks:
                e(f"""s_add_u32 {sr(sT)}, {sr(sPhi)}, {k}
                s_and_b32 {sr(sT)}, {sr(sT)}, 7
                s_lshl_b32 {sr(sT2)}, {sr(sT)}, 10
                s_add_u32 m0, {sr(sT2)}, {lds}
                s_mul_i32 {sr(sOff)}, {sr(sT)}, {64*2752}
                buffer_load_dwordx4 {vr(t(0))}, {sr(sT4,4)}, {sr(sOff)} offen {opt.get('wfl','')} lds""")
        def dn():
            srd(sT4, kwd, 1409024)
            e(f's_lshl_b32 {sr(sT2)}, {sr(sPhi)}, 13')
            for f in range(8):
                e(f"""s_mov_b32 m0, {DN + 1024*f}
                s_add_u32 {sr(sOff)}, {sr(sT2)}, {1024*f}
                buffer_load_dwordx4 {vr(t(1))}, {sr(sT4,4)}, {sr(sOff)} offen {opt.get('wfl','')} lds""")
        if opt.get('lwait'):
            srd(sT4, kx, 2097152)
            e(f's_lshl_b32 {sr(sT)}, {sr(sRho)}, 12\nv_add_u32 {vr(t(2))}, {sr(sT)}, {vr(t(1))}\nbuffer_load_dword {vr(t(3))}, {vr(t(2))}, {sr(sT4,4)}, 0 offen\ns_waitcnt vmcnt(0)')
        plan = {int(x.split(':')[0]): x.split(':')[1] for x in opt.get('lplan', '0:gud').split('/')}
        if opt.get('lcnt'):
            cnt = [int(x) for x in opt['lcnt'].split('.')]; assert sum(cnt) == 16
            dpos = int(opt.get('ldpos', 0)); nxt = 0
            for k in range(g.nbar_mark + 1):
                if k == dpos: dn()
                for j in range(cnt[k] if k < len(cnt) else 0):
                    gu(kwg if nxt < 8 else kwu, GU + (0 if nxt < 8 else 8192), [nxt & 7]); nxt += 1
                if k < g.nbar_mark: e('s_barrier')
            plan = None
        for k in range(g.nbar_mark + 1 if plan is not None else 0):
            for c in plan.get(k, ''):
                {'g': lambda: gu(kwg, GU), 'u': lambda: gu(kwu, GU + 8192), 'd': dn,
                 'a': lambda: gu(kwg, GU, range(0, 4)), 'b': lambda: gu(kwg, GU, range(4, 8)),
                 'c': lambda: gu(kwu, GU + 8192, range(0, 4)), 'e': lambda: gu(kwu, GU + 8192, range(4, 8))}[c]()
            if k < g.nbar_mark: e('s_barrier')
        e('s_waitcnt vmcnt(0)\ns_barrier\nL_end:\ns_endpgm')

    XS = t(0)
    def xsel_text():
        return '\n'.join(f'buffer_load_dwordx4 {vr(XS+4*k,4)}, {vr(t(20))}, {sr(sWS,4)}, {sr(sRec)} offen offset:{128+64*k} sc1' for k in range(4))
    def xsel_load():
        e(f"""s_lshl_b32 {sr(sT)}, {sr(sW)}, 8
        v_lshlrev_b32 {vr(t(20))}, 4, {vr(vQ)}
        v_add_u32 {vr(t(20))}, {sr(sT)}, {vr(t(20))}""")
        e(xsel_text())
    def ffn(part):
        ln = g.lab('noffn')
        e(f's_cmp_ge_u32 {sr(sPhi)}, {NF}\ns_cbranch_scc1 {ln}')
        poll(xsel_text(), range(XS, XS+16), preloaded=True)
        Pp = t(16)
        for k in range(4):
            e(f'v_mfma_f32_16x16x32_bf16 {vr(Pp,4)}, {vr(FA+4*k,4)}, {vr(XS+4*k,4)}, {"0" if k==0 else vr(Pp,4)}')
        e(f"""v_lshlrev_b32 {vr(t(21))}, 6, {vr(vQ)}
        s_lshl_b32 {sr(sT)}, {sr(sW)}, 2
        v_add_u32 {vr(t(21))}, {sr(sT)}, {vr(t(21))}
        v_and_b32 {vr(t(22))}, 31, {vr(vL)}
        v_lshlrev_b32 {vr(t(22))}, 2, {vr(t(22))}
        s_mov_b32 exec_lo, 0x00010001
        s_mov_b32 exec_hi, 0x00010001""")
        for i in range(4): e(f'ds_write_b32 {vr(t(21))}, {vr(Pp+i)} offset:{FP + 16*i}')
        e(f"""s_mov_b64 exec, -1
        s_waitcnt lgkmcnt(0)
        s_barrier
        ds_read_b32 {vr(t(12))}, {vr(t(22))} offset:{FP}
        ds_read_b32 {vr(t(13))}, {vr(t(22))} offset:{FP+128}
        s_waitcnt lgkmcnt(0)""")
        gg, uu = t(12), t(13)
        for mod in ('quad_perm:[1,0,3,2]', 'quad_perm:[2,3,0,1]'):
            e(f'v_add_f32_dpp {vr(gg)}, {vr(gg)}, {vr(gg)} {mod} {DPP}\nv_add_f32_dpp {vr(uu)}, {vr(uu)}, {vr(uu)} {mod} {DPP}')
        e(f"""v_mul_f32 {vr(t(14))}, {fbits(-1.4426950408889634)}, {vr(gg)}
        v_exp_f32 {vr(t(14))}, {vr(t(14))}
        v_mul_f32 {vr(uu)}, {vr(uu)}, {vr(vSig)}
        v_add_f32 {vr(t(14))}, 1.0, {vr(t(14))}
        v_rcp_f32 {vr(t(14))}, {vr(t(14))}
        v_mul_f32 {vr(gg)}, {vr(gg)}, {vr(uu)}
        v_mul_f32 {vr(gg)}, {vr(gg)}, {vr(t(14))}""")
        for f in range(8): e(f'v_readlane_b32 {sr(sH+f)}, {vr(gg)}, {4*f}')
        acc = t(16)
        for f in range(8):
            sel = 'op_sel_hi:[1,0,1]' if f % 2 == 0 else 'op_sel:[0,1,0] op_sel_hi:[1,1,1]'
            if f == 0: e(f'v_pk_mul_f32 {vr(acc,2)}, {vr(FD,2)}, {sr(sH,2)} op_sel_hi:[1,0]')
            else: e(f'v_pk_fma_f32 {vr(acc,2)}, {vr(FD+2*f,2)}, {sr(sH + (f & ~1),2)}, {vr(acc,2)} {sel}')
        ws_store(2, acc, aP8, part)
        e(f'{ln}:')

    def reducer(part, final):
        ln = g.lab('nored')
        red_index()
        e(f"""s_cmp_ge_u32 {sr(sT3)}, 32
        s_cbranch_scc1 {ln}""")
        if not final and not opt.get('oldred'): e('s_waitcnt vmcnt(0)')
        NLD = (NF + 15)//16
        e(f"""v_lshrrev_b32 {vr(t(20))}, 4, v0
        v_and_b32 {vr(t(22))}, 15, v0
        v_lshlrev_b32 {vr(t(22))}, 2, {vr(t(22))}
        s_lshl_b32 {sr(sT)}, {sr(sT3)}, 6
        v_add_u32 {vr(t(25))}, {sr(sT)}, {vr(t(22))}
        v_lshl_add_u32 {vr(t(21))}, {vr(t(20))}, 11, {vr(t(25))}
        v_add_u32 {vr(t(23))}, {16*(NLD-1)*2048}, {vr(t(21))}
        v_mov_b32 {vr(t(24))}, 0x7f000000
        v_cmp_gt_u32 vcc, {NF - 16*(NLD-1)}, {vr(t(20))}
        v_cndmask_b32 {vr(t(23))}, {vr(t(24))}, {vr(t(23))}, vcc""")
        A = t(0); B4 = t(12)
        lds_ = []
        for k in range(NLD - 1):
            lds_.append(f's_mov_b32 {sr(sOff)}, {part + 16*k*2048}\n' + ws_load_text(1, A+k, t(21), sr(sOff)))
        lds_.append(f's_mov_b32 {sr(sOff)}, {part}\n' + ws_load_text(1, A+NLD-1, t(23), sr(sOff)))
        regs = list(range(A, A+NLD))
        if final:
            lds_.append(ws_load_text(1, B4, t(25), sr(sRec), 'offset:1152')); regs.append(B4)
        poll('\n'.join(lds_), regs)
        n = NLD
        while n > 1:
            h = n//2
            for k in range(h): e(f'v_add_f32 {vr(A+k)}, {vr(A+k)}, {vr(A+n-1-k)}')
            n -= h
        for sw in ('v_permlane16_swap_b32', 'v_permlane32_swap_b32'):
            e(f'v_mov_b32 {vr(A+1)}, {vr(A)}\n{sw} {vr(A)}, {vr(A+1)}\nv_add_f32 {vr(A)}, {vr(A)}, {vr(A+1)}')
        e(f"""s_lshl_b32 {sr(sT)}, {sr(sW)}, 2
        v_lshl_add_u32 {vr(t(24))}, {vr(t(22))}, 2, {sr(sT)}
        v_lshlrev_b32 {vr(t(26))}, 2, {vr(t(22))}
        s_mov_b64 exec, 0xffff
        ds_write_b32 {vr(t(24))}, {vr(A)} offset:{RED}
        s_mov_b64 exec, -1
        s_waitcnt lgkmcnt(0)
        s_barrier
        s_cmp_lg_u32 {sr(sW)}, 0
        s_cbranch_scc1 {ln}
        ds_read_b128 {vr(t(28),4)}, {vr(t(26))} offset:{RED}
        s_waitcnt lgkmcnt(0)
        v_add_f32 {vr(t(28))}, {vr(t(28))}, {vr(t(29))}
        v_add_f32 {vr(t(30))}, {vr(t(30))}, {vr(t(31))}
        v_add_f32 {vr(t(28))}, {vr(t(28))}, {vr(t(30))}""")
        if final:
            e(f"""v_add_f32 {vr(t(28))}, {vr(t(28))}, {vr(B4)}
            s_lshl_b32 {sr(sT)}, {sr(sStar)}, 10
            v_lshrrev_b32 {vr(t(25))}, 1, {vr(t(25))}
            v_mov_b32_dpp {vr(t(29))}, {vr(t(28))} quad_perm:[1,0,3,2] {DPP}
            v_add_u32 {vr(t(25))}, {sr(sT)}, {vr(t(25))}
            v_cvt_pk_bf16_f32 {vr(t(28))}, {vr(t(28))}, {vr(t(29))}
            s_mov_b64 exec, 0x5555
            buffer_store_dword {vr(t(28))}, {vr(t(25))}, {sr(sOUT,4)}, 0 offen sc1
            s_mov_b64 exec, -1""")
        else:
            e(f"""s_mov_b32 {sr(sOff)}, {UPD0}
            s_mov_b64 exec, 0xffff
            buffer_store_dword {vr(t(28))}, {vr(t(25))}, {sr(sWS,4)}, {sr(sOff)} offen sc1
            s_mov_b64 exec, -1""")
        e(f'{ln}:')

    if opt.get('addrvalu'): addr_p1()
    if opt.get('rowvalu'): row_consts()
    stamp('preamble')
    e(f's_waitcnt vmcnt({N_ALL-1})\nv_readfirstlane_b32 {sr(sTag)}, {vr(vCa)}\ns_add_u32 {sr(sTag)}, {sr(sTag)}, 1')
    stamp('x0')
    unpack_nat(XU, URAW); unpack_rev(XV, VRAW, t(16))
    stats2(False)
    norm_coeffs(hRho, hB)
    make_g()
    e(f's_waitcnt vmcnt({N_ALL - N_ROWTAB})')
    transform(HB0, tagged=True, pre_store=lambda: e(f's_waitcnt vmcnt({N_ALL - N_POISON})'))
    stamp('P1 stored')
    finish_here('P1')
    special_k(KB0, False)
    srd(sT4, kwr, 1024)
    e(f'''v_lshlrev_b32 {vr(t(2))}, 4, {vr(vL)}
    v_sub_u32 {vr(t(3))}, 1008, {vr(t(2))}
    buffer_load_dwordx4 {vr(WURAW,4)}, {vr(t(2))}, {sr(sT4,4)}, 0 offen
    buffer_load_dwordx4 {vr(WVRAW,4)}, {vr(t(3))}, {sr(sT4,4)}, 0 offen''')
    if opt.get('addrvalu'):
        for k in (2, 3):
            e(f'v_add_u32 {vr(t(4))}, {TOFF["addr"] + 4096*k}, {vr(lG)}\nglobal_load_dwordx4 {vr(AD+4*k,4)}, {vr(t(4))}, {sr(sPC,2)}')
    addr_misc()
    if not opt.get('addrvalu'): addr_ym4()
    poison_regs()
    red_index()
    e(f"""s_lshl_b32 {sr(sT)}, {sr(sT3)}, 6
    v_lshlrev_b32 {vr(t(6))}, 2, v0
    v_add_u32 {vr(t(6))}, {sr(sT)}, {vr(t(6))}
    v_cmp_gt_u32 vcc, 16, v0
    s_cmp_lt_u32 {sr(sT3)}, 32
    s_cselect_b64 {sr(sEx,2)}, vcc, 0
    v_mov_b32 {vr(t(7))}, 0x7f000000
    v_cndmask_b32 {vr(t(6))}, {vr(t(7))}, {vr(t(6))}, {sr(sEx,2)}""")
    ws_store(4, PZ, aP16, HB1); ws_store(4, PZ, aP16, CAND0); ws_store(2, PZ, aP8, PART0); ws_store(1, PZ, t(6), UPD0)
    e(f's_bfe_u32 {sr(sT)}, {sr(sRho)}, 0x10003\ns_lshl_b32 {sr(sT)}, {sr(sT)}, 4\nv_xor_b32 {vr(t(39))}, {sr(sT)}, {vr(lG)}')
    e(f'v_add_u32 {vr(t(39))}, {TOFF["addr2"]}, {vr(t(39))}\nglobal_load_dwordx4 {vr(t(44),4)}, {vr(t(39))}, {sr(sPC,2)}')
    if not opt.get('nohint'):
        lh = g.lab('hw')
        e(f'''v_and_b32 {vr(vCa)}, 7, {vr(vL)}
        v_lshlrev_b32 {vr(vCa)}, 8, {vr(vCa)}
        s_cmp_lg_u32 {sr(sW)}, 0
        s_cbranch_scc1 {lh}
        s_mov_b32 {sr(sOff)}, {HINT}''')
        e(ws_load_text(1, vSa, vCa, sr(sOff)))
        e(f'{lh}:')
    col_consts_a()
    if not opt.get('splitc'): col_consts_b()
    stamp('shadow1')
    if not opt.get('nohint'):
        lh = g.lab('hw2'); lp = g.lab('hp')
        e(f'''s_cmp_lg_u32 {sr(sW)}, 0
        s_cbranch_scc1 {lh}
        s_mov_b32 {sr(sCnt)}, 0
        s_mov_b32 {sr(sOff)}, {HINT}
        {lp}:
        s_waitcnt vmcnt(0)
        v_cmp_ne_u32 vcc, {sr(sTag)}, {vr(vSa)}
        s_cbranch_vccz {lh}
        s_add_u32 {sr(sCnt)}, {sr(sCnt)}, 1
        s_cmp_gt_u32 {sr(sCnt)}, {LIMIT}
        s_cbranch_scc1 {lh}
        s_sleep 4''')
        e(ws_load_text(1, vSa, vCa, sr(sOff)))
        e(f's_branch {lp}\n{lh}:\ns_waitcnt vmcnt(0)\ns_barrier')
    if opt.get('ack1'): e('s_waitcnt vmcnt(0)')
    stamp('hint')
    column(HB0, YB0, False, tagged=True)
    stamp('P2 stored')
    finish_here('P2')
    poison_regs()
    ws_store(4, PZ, aP16, YB1); ws_store(4, PZ, aP16, CAND1); ws_store(2, PZ, aP8, PART1)
    lnn = g.lab('nononce')
    e(f'''s_cmp_lg_u32 {sr(sRowU)}, 0
    s_cbranch_scc1 {lnn}
    v_mov_b32 {vr(t(0))}, {sr(sTag)}
    v_mov_b32 {vr(t(1))}, 0
    s_mov_b64 exec, 1''')
    ws_store(1, t(0), t(1), NONCE)
    e(f's_mov_b64 exec, -1\n{lnn}:')
    if opt.get('addrvalu'): addr_ym4()
    unpack_nat(WU, WURAW); unpack_rev(WV, WVRAW, t(16))
    e(f"""v_pk_add_f32 {vr(t(16),2)}, {vr(WU,2)}, {vr(WU+2,2)}
    v_pk_add_f32 {vr(t(18),2)}, {vr(WU+4,2)}, {vr(WU+6,2)}
    v_pk_add_f32 {vr(t(16),2)}, {vr(t(16),2)}, {vr(t(18),2)}
    v_add_f32 {vr(t(16))}, {vr(t(16))}, {vr(t(17))}""")
    wave_reduce([t(16)], [t(17)])
    e(f'v_readfirstlane_b32 {sr(sSW)}, {vr(t(16))}')
    stamp('shadow2')
    e('s_waitcnt vmcnt(0)')
    row_input(YB0, KB0)
    add_y_pair()
    stats2(True)
    make_key()
    residual_coeffs()
    e(f"""v_mul_f32 {vr(t(23))}, {vr(t(21))}, {vr(t(21))}
    v_mul_f32 {vr(t(23))}, {vr(t(23))}, {vr(hVar)}
    v_add_f32 {vr(t(23))}, {fbits(1e-5)}, {vr(t(23))}
    v_rsq_f32 {vr(t(23))}, {vr(t(23))}
    s_waitcnt lgkmcnt(0)
    s_barrier""")
    wg_best_read(t(24))
    e(f"""v_mul_f32 {vr(t(22))}, {vr(t(21))}, {vr(t(23))}
    v_mul_f32 {vr(t(23))}, -{vr(hM)}, {vr(t(22))}""")
    norm_coeffs(t(22), t(23))
    e('s_waitcnt lgkmcnt(0)')
    wg_best_header(CAND0, t(24))
    stamp('hdr0')
    make_g()
    transform(HB1, pre_core=lambda: residual_update(XU, XV), post_scatter=lambda: publish_rows(CAND0))
    stamp('P3 stored')
    finish_here('P3')
    K = t(0)
    header_load(CAND0, vSig)
    lfs = g.lab('nosetup')
    e(f's_cmp_ge_u32 {sr(sPhi)}, {NF}\ns_cbranch_scc1 {lfs}')
    ffn_setup()
    e(f'{lfs}:')
    special_k(KB1, True)
    e(f's_waitcnt vmcnt(0)\nv_mov_b32 {vr(K)}, {vr(vSig)}')
    argmax(CAND0, K, after_check=lambda: column_load(HB1))
    stamp('argmax0')
    lb = g.lab('nobase')
    e(f"""s_cmp_ge_u32 {sr(sW)}, 2
    s_cbranch_scc1 {lb}
    v_lshlrev_b32 {vr(t(21))}, 5, {vr(vL)}
    buffer_load_dwordx4 {vr(FX,4)}, {vr(t(21))}, {sr(sWS,4)}, {sr(sRec)} offen offset:1152 sc1
    buffer_load_dwordx4 {vr(FX+4,4)}, {vr(t(21))}, {sr(sWS,4)}, {sr(sRec)} offen offset:1168 sc1
    {lb}:""")
    lb = g.lab('nox')
    e(f's_cmp_ge_u32 {sr(sPhi)}, {NF}\ns_cbranch_scc1 {lb}')
    xsel_load()
    e(f'{lb}:')
    sigmoid_of_key()
    e(f"""s_mul_i32 {sr(sT)}, {sr(sRowU)}, {sr(sStar)}
    s_and_b32 {sr(sT)}, {sr(sT)}, 2047
    v_cvt_f32_u32 {vr(vCa)}, {sr(sT)}
    v_mul_f32 {vr(vCa)}, {fbits(1/2048)}, {vr(vCa)}
    v_sin_f32 {vr(vSa)}, {vr(vCa)}
    v_cos_f32 {vr(vCa)}, {vr(vCa)}
    v_mul_f32 {vr(vSa)}, {fbits(1/32)}, {vr(vSa)}
    v_mul_f32 {vr(vCa)}, {fbits(1/32)}, {vr(vCa)}
    v_cvt_pk_f16_f32 {vr(vSa)}, {vr(vSa)}, {vr(vSa)}
    v_cvt_pk_f16_f32 {vr(vCa)}, {vr(vCa)}, {vr(vCa)}
    s_waitcnt vmcnt(0)""")
    stamp('xsel')
    ffn(PART0)
    stamp('ffn0')
    column(HB1, YB1, True)
    stamp('P4 stored')
    finish_here('P4')
    reducer(PART0, False)
    stamp('red0')
    lb = g.lab('nobase')
    e(f's_cmp_ge_u32 {sr(sW)}, 2\ns_cbranch_scc1 {lb}')
    e(f'v_lshlrev_b32 {vr(t(21))}, 5, {vr(vL)}')
    poll(f'buffer_load_dwordx4 {vr(FX,4)}, {vr(t(21))}, {sr(sWS,4)}, {sr(sRec)} offen offset:1152 sc1\n'
         f'buffer_load_dwordx4 {vr(FX+4,4)}, {vr(t(21))}, {sr(sWS,4)}, {sr(sRec)} offen offset:1168 sc1', range(FX, FX+8), preloaded=True)
    stats1(FX, t(0), FO)
    e(f'{lb}:')
    e('s_waitcnt vmcnt(0)')
    row_input(YB1, KB1)
    stamp('y1 read')
    lj = g.lab('fixj'); lq = g.lab('fix'); lu = g.lab('ownu'); lv = g.lab('ownv')
    U = t(16)
    updld = lambda areg: (ws_load_text(4, U, areg, sr(sOff)) + '\n' + ws_load_text(4, U+4, areg, sr(sOff), 'offset:16'))
    def owner_add():
        l1 = g.lab('nu'); l2 = g.lab('nv')
        e(f's_cmp_lg_u32 {sr(sStar)}, {sr(sRowU)}\ns_cbranch_scc1 {l1}')
        for k in range(4): e(f'v_pk_add_f32 {vr(XU+2*k,2)}, {vr(XU+2*k,2)}, {vr(U+2*k,2)}')
        e(f'{l1}:')
    e(f"""v_lshlrev_b32 {vr(t(44))}, 5, {vr(vL)}
    s_mov_b32 {sr(sOff)}, {UPD0}""")
    lnv = g.lab('notv')
    e(f"""s_cmp_lg_u32 {sr(sStar)}, {sr(sRowV)}
    s_cbranch_scc1 {lnv}
    v_sub_u32 {vr(t(45))}, {63*32}, {vr(t(44))}""")
    poll(updld(t(45)), range(U, U+8), backoff=4)
    e(f'v_mov_b32_dpp {vr(t(46))}, {vr(U)} wave_ror:1 {DPP}')
    for k in range(1, 8): e(f'v_add_f32 {vr(XV+k)}, {vr(XV+k)}, {vr(U+8-k)}')
    e(f'v_add_f32 {vr(XV)}, {vr(XV)}, {vr(t(46))}\n{lnv}:')
    e(f"""s_cmp_lt_u32 {sr(sW)}, 2
    s_cbranch_scc1 {lq}
    s_cmp_lg_u32 {sr(sStar)}, {sr(sRowU)}
    s_cbranch_scc1 {lj}""")
    poll(updld(t(44)), range(U, U+8), backoff=4)
    owner_add()
    e(f's_branch {lj}\n{lq}:')
    poll(updld(t(44)), range(U, U+8), backoff=4)
    stamp('upd')
    owner_add()
    for k in range(4): e(f'v_pk_add_f32 {vr(FX+2*k,2)}, {vr(FX+2*k,2)}, {vr(U+2*k,2)}')
    stats1(FX, t(32), FX)
    for k in range(4): e(f'v_pk_add_f32 {vr(FX+2*k,2)}, {vr(FX+2*k,2)}, {vr(FO+2*k,2)} neg_lo:[0,1] neg_hi:[0,1]')
    write_n(FX, t(24)); write_r(FX, t(40))
    A, B = CA, t(40)
    for k in range(8): e(f'v_mov_b32 {vr(FO+k)}, {vr(YH+k)}')
    e(f"""s_mov_b32 {sr(sT)}, 0x3c003c00
    s_cmp_eq_u32 {sr(sW)}, 0
    s_cselect_b32 {sr(sSgn)}, {sr(sT)}, 0xbc00bc00
    ds_read_b64_tr_b16 {vr(A,2)}, {vr(lTr)} offset:{GIMG}
    ds_read_b64_tr_b16 {vr(B,2)}, {vr(lTr)} offset:{RIMG}
    ds_read_b64_tr_b16 {vr(A+2,2)}, {vr(lTr)} offset:{GIMG+128}
    ds_read_b64_tr_b16 {vr(B+2,2)}, {vr(lTr)} offset:{RIMG+128}
    s_waitcnt lgkmcnt(0)""")
    for k in range(4): e(f'v_pk_fma_f16 {vr(A+k)}, {vr(B+k)}, {sr(sSgn)}, {vr(A+k)}')
    core(A, CO)
    for k in range(4): e(f'v_cvt_pk_f16_f32 {vr(t(44)+k)}, {vr(CO+2*k)}, {vr(CO+2*k+1)}')
    e(f"""v_lshl_add_u32 {vr(t(0))}, {vr(vQ)}, 7, {vr(vN)}
    v_lshlrev_b32 {vr(t(1))}, 7, {vr(vQ)}
    v_sub_u32 {vr(t(1))}, {32*23}, {vr(t(1))}
    v_add_u32 {vr(t(1))}, {vr(t(1))}, {vr(vN)}
    v_cmp_gt_u32 vcc, 2, {vr(vQ)}
    v_cndmask_b32 {vr(t(0))}, {vr(t(1))}, {vr(t(0))}, vcc
    v_lshlrev_b32 {vr(t(0))}, 1, {vr(t(0))}
    s_lshl_b32 {sr(sT)}, {sr(sW)}, 10
    v_add_u32 {vr(t(0))}, {sr(sT)}, {vr(t(0))}
    v_mov_b32 {vr(t(2))}, 64
    v_mov_b32 {vr(t(3))}, -64
    v_cndmask_b32 {vr(t(2))}, {vr(t(3))}, {vr(t(2))}, vcc""")
    for i in range(4):
        op = 'ds_write_b16' if i % 2 == 0 else 'ds_write_b16_d16_hi'
        for Tt in range(2):
            e(f'{op} {vr(t(0))}, {vr(t(44)+2*Tt+i//2)} offset:{RIMG + 2048 + 32*Tt}')
        if i < 3: e(f'v_add_u32 {vr(t(0))}, {vr(t(0))}, {vr(t(2))}')
    for k in range(8): e(f'v_mov_b32 {vr(YH+k)}, {vr(FO+k)}')
    e(f"""{lj}:
    s_waitcnt lgkmcnt(0)
    s_barrier
    v_lshlrev_b32 {vr(t(0))}, 4, {vr(vL)}
    ds_read_b128 {vr(t(16),4)}, {vr(t(0))} offset:{RIMG+2048}
    ds_read_b128 {vr(t(20),4)}, {vr(t(0))} offset:{RIMG+2048+1024}
    s_waitcnt lgkmcnt(1)""")
    lsp = g.lab('fsp')
    for k in range(4): e(f'v_pk_fma_f16 {vr(YH+k)}, {vr(t(16)+k)}, {vr(vCa)}, {vr(YH+k)}')
    e(f'''s_cmp_lg_u32 {sr(sRowU)}, 0
    s_cbranch_scc1 {lsp}
    s_mov_b32 {sr(sT)}, 0x28002800
    s_bitcmp0_b32 {sr(sStar)}, 0
    s_cselect_b32 {sr(sT)}, {sr(sT)}, 0xa800a800''')
    for k in range(4): e(f'v_pk_fma_f16 {vr(YV+k)}, {vr(t(16)+k)}, {sr(sT)}, {vr(YV+k)}')
    e(f'{lsp}:\ns_waitcnt lgkmcnt(0)')
    for k in range(4): e(f'v_pk_fma_f16 {vr(YH+k)}, {vr(t(20)+k)}, {vr(vSa)}, {vr(YH+k)}')
    add_y_pair()
    stamp('fixed')
    stats2(True)
    make_key()
    residual_coeffs()
    e('s_waitcnt lgkmcnt(0)\ns_barrier')
    wg_best_read(t(24))
    residual_update(XU, XV)
    e('s_waitcnt lgkmcnt(0)')
    wg_best_header(CAND1, t(24))
    publish_rows(CAND1)
    def out_u():
        for k in range(4): e(f'v_cvt_pk_bf16_f32 {vr(t(24)+k)}, {vr(XU+2*k)}, {vr(XU+2*k+1)}')
        e(f'buffer_store_dwordx4 {vr(t(24),4)}, {vr(aU)}, {sr(sOUT,4)}, 0 offen sc1')
    def out_v():
        e(f"""v_mov_b32_dpp {vr(t(32))}, {vr(XV)} wave_rol:1 {DPP}
        v_cvt_pk_bf16_f32 {vr(t(29))}, {vr(XV+6)}, {vr(XV+5)}
        v_cvt_pk_bf16_f32 {vr(t(30))}, {vr(XV+4)}, {vr(XV+3)}
        v_cvt_pk_bf16_f32 {vr(t(31))}, {vr(XV+2)}, {vr(XV+1)}
        v_cvt_pk_bf16_f32 {vr(t(28))}, {vr(t(32))}, {vr(XV+7)}
        buffer_store_dwordx4 {vr(t(28),4)}, {vr(aV)}, {sr(sOUT,4)}, 0 offen sc1""")
    EARLY = opt.get('early1')
    if EARLY:
        e(f"""s_cmp_gt_u32 {sr(sKeyV)}, {sr(sKeyU)}
        s_cselect_b32 {sr(sH)}, 2, 1
        s_cmp_eq_u32 {sr(sSgn)}, 0
        s_cselect_b32 {sr(sH)}, 0, {sr(sH)}""")
        l1 = g.lab('du'); l2 = g.lab('dv')
        e(f's_cmp_eq_u32 {sr(sH)}, 1\ns_cbranch_scc1 {l1}'); out_u(); e(f'{l1}:')
        e(f's_cmp_eq_u32 {sr(sH)}, 2\ns_cbranch_scc1 {l2}'); out_v(); e(f'{l2}:')
        e(f's_mov_b32 {sr(sH+1)}, {sr(sH)}')
        if EARLY == 'b': e('s_barrier')
        elif EARLY == 'w': e('s_waitcnt vmcnt(0)\ns_barrier')
    else:
        e('s_waitcnt vmcnt(0)\ns_barrier')
    stamp('cand1')
    header_load(CAND1, K)
    e('s_waitcnt vmcnt(0)')
    argmax(CAND1, K)
    stamp('argmax1')
    lb = g.lab('nox')
    e(f's_cmp_ge_u32 {sr(sPhi)}, {NF}\ns_cbranch_scc1 {lb}')
    xsel_load()
    e(f'{lb}:')
    sigmoid_of_key()
    if EARLY:
        l1 = g.lab('eu'); l2 = g.lab('ev')
        e(f's_cmp_lg_u32 {sr(sH+1)}, 1\ns_cbranch_scc1 {l1}\ns_cmp_eq_u32 {sr(sStar)}, {sr(sRowU)}\ns_cbranch_scc1 {l1}'); out_u(); e(f'{l1}:')
        e(f's_cmp_lg_u32 {sr(sH+1)}, 2\ns_cbranch_scc1 {l2}\ns_cmp_eq_u32 {sr(sStar)}, {sr(sRowV)}\ns_cbranch_scc1 {l2}'); out_v(); e(f'{l2}:')
    else:
        ln = g.lab('noout')
        e(f's_cmp_eq_u32 {sr(sStar)}, {sr(sRowU)}\ns_cbranch_scc1 {ln}'); out_u(); e(f'{ln}:')
        ln = g.lab('noout')
        e(f's_cmp_eq_u32 {sr(sStar)}, {sr(sRowV)}\ns_cbranch_scc1 {ln}'); out_v(); e(f'{ln}:')
    e('s_waitcnt vmcnt(0)')
    ffn(PART1)
    stamp('ffn1')
    e('s_waitcnt vmcnt(0)')
    reducer(PART1, True)
    stamp('end')
    e('L_done:')
    if stamps:
        ls = g.lab('nost')
        e(f"""s_cmp_ge_u32 s2, 256
        s_cbranch_scc1 {ls}
        s_waitcnt vmcnt(0)
        s_mov_b64 exec, -1
        s_lshl_b32 {sr(sT)}, {sr(sWg)}, 11
        s_lshl_b32 {sr(sT2)}, {sr(sW)}, 8
        s_add_u32 {sr(sT)}, {sr(sT)}, {sr(sT2)}
        v_and_b32 {vr(t(0))}, 63, v0
        v_lshlrev_b32 {vr(t(0))}, 2, {vr(t(0))}
        v_add_u32 {vr(t(0))}, {sr(sT)}, {vr(t(0))}
        s_mov_b32 {sr(sOff)}, {STAMP}
        buffer_store_dword {vr(vStamp)}, {vr(t(0))}, {sr(sWS,4)}, {sr(sOff)} offen
        {ls}:""")
    e('s_endpgm')
    loader()
    for ls, lj in g.late:
        e(f'{ls}:')
        add_y(YH, YV)
        e(f's_branch {lj}')
    emit_tail()
    return g

def render(g):
    lines, added = pad(g.L)
    body = '\n'.join(('' if l.endswith(':') else '    ') + l for l in lines)
    ninstr = sum(1 for l in lines if not l.endswith(':'))
    hdr = f"""; FNet (2-D real DFT via Hartley factorisation on MFMA) + top-1 routed SwiGLU, two layers, one persistent launch.
; @launch grid=(256,1,1) block=(320,1,1) lds={LDS_SIZE}
.amdgcn_target "amdgcn-amd-amdhsa--gfx950"
.text
.globl {NAME}
.p2align 8
.type {NAME},@function
{NAME}:
"""
    tab = '\n'.join('.long ' + ','.join('0x%08x' % x for x in TAB[i:i+8]) for i in range(0, len(TAB), 8))
    tail = f"""
L_code_end:
.p2align 8
L_tab:
{tab}
.section .rodata,"a"
.p2align 6
.amdhsa_kernel {NAME}
  .amdhsa_next_free_vgpr 256
  .amdhsa_next_free_sgpr 102
  .amdhsa_accum_offset 256
  .amdhsa_group_segment_fixed_size 0
  .amdhsa_kernarg_size 104
  .amdhsa_user_sgpr_count 2
  .amdhsa_user_sgpr_kernarg_segment_ptr 1
  .amdhsa_system_sgpr_workgroup_id_x 1
.end_amdhsa_kernel
"""
    return hdr + body + tail, ninstr, added

if __name__ == '__main__':
    import argparse
    ap = argparse.ArgumentParser()
    ap.add_argument('-o', default='interleave_layers__spectral_fnet__moe_arch_mod__prompt.s')
    ap.add_argument('--stop'); ap.add_argument('--stamps', action='store_true'); ap.add_argument('--opt', default='')
    a = ap.parse_args()
    g = build(a.stop, a.stamps, {k.split('=')[0]: (k.split('=')+['1'])[1] for k in a.opt.split(',') if k})
    txt, n, added = render(g)
    open(a.o, 'w').write(txt)
    print(f'{n} instructions, {added} nop slots added, vgpr high {g.v.n}, sgpr high {g.s.n}')
```

```python
import numpy as np
CIN_QS, CIN_BS = 272, 1088
def cin_addr(M, s):
    Tp = (s >> 4) & 1; kap = s >> 10; q = (s >> 8) & 3; m = s & 15; jj = (s >> 5) & 7
    return M['CIN'] + (Tp*2 + kap)*CIN_BS + 32*Tp + q*CIN_QS + (m + (m >> 3))*16 + 2*jj
def cin_block(k): return k*CIN_BS + 32*(k >> 1)
L = np.arange(64); N = L & 15; Q = L >> 4; J = np.arange(8); I4 = np.arange(4)
def pk16(v):
    h = np.asarray(v, dtype=np.float64).astype(np.float16).view(np.uint16).astype(np.uint32)
    return h[:, 0::2] | (h[:, 1::2] << 16)
def f32(v): return np.asarray(v, dtype=np.float32).view(np.uint32)

def row_table():
    regs = []
    k = 8*Q[:,None] + J[None,:]
    for T in range(2):
        elo = 16*T + N
        regs.append(pk16(np.cos(2*np.pi*k*elo[:,None]/32)))
        regs.append(pk16(-np.sin(2*np.pi*k*elo[:,None]/32)))
    c = []; s = []
    for T in range(2):
        elo = 16*T + N; dlo = 4*Q[:,None] + I4[None,:]
        c.append(f32(np.cos(2*np.pi*dlo*elo[:,None]/512))); s.append(f32(np.sin(2*np.pi*dlo*elo[:,None]/512)))
    regs += c + s
    ehi = np.where(N < 8, N, 23-N)
    dlo = 4*Q[:,None] + (J[None,:] & 3); part = J[None,:] >> 2
    regs.append(pk16(np.sqrt(2)*np.cos(2*np.pi*(dlo*ehi[:,None]/16 + np.where(part == 0, 1/8, -1/8)))))
    return np.concatenate(regs, axis=1).T

def col_lane(w):
    tau = 8*w + (N & 7); hi = N >> 3; z = tau == 0
    tlo = np.where(hi == 0, tau, np.where(z, 32, 64-tau))
    return tau, hi, z, tlo
def col_table(w):
    tau, hi, z, tlo = col_lane(w)
    taup = np.where((hi == 1) & z, 32, tau); ph0 = np.where((hi == 1) & ~z, 0.25, 0.0)
    regs = [pk16(np.cos(2*np.pi*((32*kap + 8*Q[:,None] + J[None,:])*taup[:,None]/64 + ph0[:,None]))) for kap in range(2)]
    conj = ((hi == 1) & ~z)[:,None]
    for T in range(2):
        th = (16*T + 4*Q[:,None] + I4[None,:])*tlo[:,None]/2048
        c1 = np.cos(2*np.pi*(th + np.where(conj, 0.25, 0))); c2 = np.cos(2*np.pi*(th + np.where(conj, 0, -0.25)))
        sc = 0.25; amp2 = np.where(z, 0, sc)[:,None]
        regs += [f32(sc*c1), f32(amp2*c2), f32(-sc*c2), f32(amp2*c1)]
    return np.concatenate(regs, axis=1).T
def ca2_table():
    regs = []
    for U in range(2):
        for T in range(2):
            slo = 16*T + 4*Q[:,None] + (J[None,:] & 3); part = J[None,:] >> 2
            regs.append(pk16(np.sqrt(2)/8*np.cos(2*np.pi*(slo*(16*U+N)[:,None]/32 + np.where(part == 0, -1/8, -3/8)))))
    return np.concatenate(regs, axis=1).T

def addr_table(M):
    tid = np.arange(256); w = tid >> 6; l = tid & 63; n = l & 15; q = l >> 4
    vs = 4 + ((4 - w) & 3)
    lRow = w*1024 + 16*l
    lTr = w*1024 + (8*q + (n >> 2))*32 + (n & 3)*8
    lRw = M['RIMG'] + w*1024 + 1008 - 16*l
    lCr = M['CIN'] + q*CIN_QS + (n + (n >> 3))*16
    sw = 8*np.where(q < 2, (n >> 3) & 1, (((16 - n) & 15) >> 3) & 1)
    lH0 = M['HIMG'] + np.where(q < 2, 16*(n + 128*q) + ((2*w) ^ sw), 16*(-224 + 128*q - n) + ((2*vs) ^ sw))
    lH1 = M['HIMG'] + np.where(q < 2, 16*(16 + n + 128*q) + ((2*w) ^ sw), 16*(-224 + 128*q - 16 - n) + ((2*vs) ^ sw))
    dummy = M['HIMG'] + 4112
    lHf0 = np.where(l == 48, M['HIMG'] + 2*w, dummy); lHf1 = np.where(l == 48, M['HIMG'] + 2*vs, dummy)
    def caddr(s): return cin_addr(M, s)
    lCa = caddr(4*tid); lCb = caddr(np.where(tid == 0, 1024, 2048 - 4*tid)); lCc = caddr(2044 - 4*tid)
    c = np.where(tid == 0, 256, tid)
    lYd = M['YIMG'] + 2*c; lYm = M['YIMG'] + 1024 - 2*c
    tlo = np.zeros(256, dtype=np.int64)
    for ww in range(4): tlo[64*ww:64*ww+64] = col_lane(ww)[3]
    t0 = tlo + 256*q
    lCo0 = M['COUT'] + 16*(t0 >> 2) + 2*(t0 & 3)
    a3 = (255 - (t0 >> 2) + ((t0 & 3) == 0))*16 + 2*(t0 & 3) + 8
    lCo1 = M['COUT'] - 768 + a3; lCo2 = M['COUT'] + (a3 & 4095)
    regs = [lRow, lTr, lRw, lCr, lH0, lH1, lHf0, lHf1, lCa, lCb, lCc, lYd, lCo0, lCo1, lCo2, lYm]
    return np.array(regs).astype(np.int64).astype(np.uint32)

def addr2_table(M):
    tid = np.arange(256)
    def caddr(s): return cin_addr(M, s)
    regs = []
    for k in range(2):
        i = 128*k + (tid >> 1); h = tid & 1
        regs.append(np.where(h == 0, caddr(4*i), caddr(np.where(i == 0, 1024, 2048 - 4*i))))
        regs.append(np.where(h == 0, caddr(4*i), caddr(2044 - 4*i)))
    return np.array(regs).astype(np.int64).astype(np.uint32)

def as_loads(regs):
    r, n = regs.shape
    return regs.reshape(r//4, 4, n).transpose(0, 2, 1).reshape(-1)

def build_tables(M):
    parts = []; off = {}; pos = 0
    def add(name, arr):
        nonlocal pos
        off[name] = pos; parts.append(arr.astype(np.uint32)); pos += arr.size*4
    A = addr_table(M)
    add('addr', as_loads(A[8:]))
    off['addr'] -= 2*4096
    add('addr2', as_loads(addr2_table(M)))
    return np.concatenate(parts), off
```

```python
import sys, struct, math
from asmlib import pad, Alloc
import tables

NAME = "interleave_layers__spectral_fnet__moe_arch_mod__prompt_kernel"
NONCE = 0x000000
HB0, YB0, HB1, YB1 = 0x100000, 0x300000, 0x400000, 0x500000
CAND0, CAND1 = 0x600000, 0x700000
PART0, PART1 = 0x800000, 0x880000
UPD0 = 0x900000
KB0, KB1 = 0x901000, 0x902000
HINT = 0x903000
STAMP = 0x980000
WS_SIZE = 0xA00000
NF = 172
LIMIT = 40000
NPOIS = 64
YIMG = 0
GIMG = 5120
RIMG = 9216
HIMG = 13312
CIN = 17472
COUT = 21952
KIMG = 26048
FP = 27136
AM = 27392
RED = 27456
GU = 27776
DN = GU + 16384
LDS_SIZE = DN + 8192
LMAP = dict(YIMG=YIMG, GIMG=GIMG, RIMG=RIMG, HIMG=HIMG, CIN=CIN, COUT=COUT)
TAB, TOFF = tables.build_tables(LMAP)

def fbits(x): return '0x%08x' % struct.unpack('<I', struct.pack('<f', x))[0]

class G:
    def __init__(self, stop=None, stamps=False):
        self.L = []; self.stop = stop; self.stamps = stamps; self.uid = 0; self.nstamp = 0; self.names = []
        self.v = Alloc(1, 256, 'v'); self.s = Alloc(3, 100, 's')
    def e(self, text):
        for l in text.strip('\n').split('\n'):
            l = l.strip()
            if l: self.L.append(l)
    def lab(self, p):
        self.uid += 1; return f'L_{p}_{self.uid}'

def vr(a, n=1): return f'v{a}' if n == 1 else f'v[{a}:{a+n-1}]'
def sr(a, n=1): return f's{a}' if n == 1 else f's[{a}:{a+n-1}]'
DPP = 'row_mask:0xf bank_mask:0xf'
PKB = 'op_sel:[0,0,1] op_sel_hi:[1,0,1]'

def build(stop=None, stamps=False, opt=None):
    opt_raw = dict(opt or {})
    opt = dict(opt or {})
    if not opt.get('nodefault'):
        opt.setdefault('lpf', 'lin'); opt.setdefault('splitc', '1'); opt.setdefault('rowvalu', '1'); opt.setdefault('addrvalu', '1'); opt.setdefault('earlyp', '1'); opt.setdefault('lplan', '0:da/1:b/4:u')
        if 'lplan' not in opt_raw: opt.setdefault('lcnt', '0.3.3.2.4.2.2')
    g = G(stop, stamps); e = g.e; V = g.v; S = g.s
    sWS = S('ws', 4, 4); sXS = S('xsrd', 4, 4); sOUT = S('out', 4, 4); sT4 = S('tmpsrd', 4, 4)
    sRho = S('rho'); sW = S('w'); sRowU = S('rowu'); sRowV = S('rowv'); sVs = S('vs'); sOff = S('off'); sCnt = S('cnt')
    sT = S('t'); sT2 = S('t2'); sT3 = S('t3'); s16 = S('k16'); sStar = S('star'); sRec = S('rec'); sWg = S('wg'); sSW = S('sw')
    sCu = S('cu', 2, 2); sCv = S('cv', 2, 2); sEx = S('exsave', 2, 2)
    sAu = S('au', 2, 2); sAv = S('av', 2, 2); sKu = S('ku', 2, 2); sKv = S('kv', 2, 2); sKeyU = S('keyu'); sKeyV = S('keyv'); sKey = S('key')
    sTag = S('tag'); sMz, sMc = sAu, sAv; sH = S('h', 8, 2); sTm = S('tm', 2, 2); sPC = S('pc', 2, 2); sM2 = S('m2', 2, 2); sPhi = S('phi'); sSgn = S('sgn')
    sKA = S('ka', 16, 4); sKB = S('kb', 8, 4); sKC = S('kc', 2, 2)
    vL = V('lane'); vN = V('n'); vQ = V('q')
    XU = V('XU', 8, 4); XV = V('XV', 8, 4); WU = V('WU', 8, 2); WV = V('WV', 8, 2)
    RB1 = V('RB1', 16, 4); RC = V('RC', 8, 2); RS = V('RS', 8, 2); RA2 = V('RA2', 4, 4)
    CB1 = V('CB1', 8, 4); CK = V('CK', 32, 2); CA2 = V('CA2', 16, 4)
    assert RC == RB1+16 and RS == RB1+24 and RA2 == RB1+32 and CK == CB1+8
    FA = V('FA', 16, 4); FD = V('FD', 16, 4)
    AD = V('addr', 16, 4)
    lRow, lTr, lRw, lCr, lH, _, lHf, _, lCa, lCb, lCc, lYd = range(AD, AD+12)
    lCo = AD + 12; lYm = AD + 15
    aU = V('aU'); aV = V('aV'); aP16 = V('aP16'); aS16 = V('aS16'); aHdr = V('aHdr'); aP8 = V('aP8')
    lYm4 = V('lYm4'); lG = V('lG')
    vRowH = V('rowh'); vSig = V('sig'); vSent = V('sent'); vCa = V('cosa'); vSa = V('sina'); vStamp = V('stamp')
    FX = V('FX', 8, 4); FO = V('FO', 8, 4)
    NT = 256 - ((V.n + 3)//4*4)
    T = V('T', NT, 4)
    def t(i):
        assert i < NT, i
        return T + i
    DU, DV = t(0), t(8)

    def stamp(name=''):
        if not g.stamps: return
        if opt.get('only') and name not in opt['only'].split('+'): return
        e(f'''s_memrealtime {sr(sTm,2)}
        s_waitcnt lgkmcnt(0)
        v_writelane_b32 {vr(vStamp)}, {sr(sTm)}, {g.nstamp}''')
        g.nstamp += 1; g.names.append(name)
    def finish_here(tag):
        if g.stop == tag: e('s_branch L_done')

    def sentinel(regs):
        if isinstance(regs, tuple) and regs[0] == 'tag':
            P = regs[1]
            e(f'''v_bitop3_b32 {vr(vSent)}, {vr(P+1)}, {vr(P+3)}, {sr(sTag)} bitop3:0x7e
            v_bitop3_b32 {vr(P+1)}, {vr(P+5)}, {vr(P+7)}, {sr(sTag)} bitop3:0x7e
            v_or_b32 {vr(vSent)}, {vr(vSent)}, {vr(P+1)}
            v_cmp_ne_u32 vcc, 0, {vr(vSent)}''')
            return
        regs = list(regs); tm = vSent
        if len(regs) == 1:
            e(f'v_cmp_eq_u32 vcc, -1, {vr(regs[0])}')
        else:
            if len(regs) >= 3:
                e(f'v_max3_u32 {vr(tm)}, {vr(regs[0])}, {vr(regs[1])}, {vr(regs[2])}'); rest = regs[3:]
            else:
                e(f'v_max_u32 {vr(tm)}, {vr(regs[0])}, {vr(regs[1])}'); rest = []
            while len(rest) >= 2:
                e(f'v_max3_u32 {vr(tm)}, {vr(tm)}, {vr(rest[0])}, {vr(rest[1])}'); rest = rest[2:]
            if rest: e(f'v_max_u32 {vr(tm)}, {vr(tm)}, {vr(rest[0])}')
            e(f'v_cmp_eq_u32 vcc, -1, {vr(tm)}')
    def poll(load, regs, backoff=2, preloaded=False):
        lp = g.lab('poll'); ok = g.lab('ok')
        if preloaded:
            sentinel(regs)
            e(f's_cbranch_vccnz {lp}\n{ok}:')
            g.tail.append((lp, ok, load, regs if isinstance(regs, tuple) else list(regs), backoff))
        else:
            e(load); e('s_waitcnt vmcnt(0)')
            sentinel(regs)
            e(f's_cbranch_vccnz {lp}\n{ok}:')
            g.tail.append((lp, ok, load, regs if isinstance(regs, tuple) else list(regs), backoff))
    g.tail = []
    g.nbar_mark = None
    def emit_tail():
        for lp, ok, load, regs, backoff in g.tail:
            l2 = lp + '_r'
            e(f'{lp}:\ns_mov_b32 {sr(sCnt)}, 0\n{l2}:\ns_sleep {backoff}')
            e(load)
            e(f'''s_add_u32 {sr(sCnt)}, {sr(sCnt)}, 1
            s_cmp_gt_u32 {sr(sCnt)}, {LIMIT}
            s_cbranch_scc1 L_done
            s_waitcnt vmcnt(0)''')
            sentinel(regs)
            e(f's_cbranch_vccnz {l2}\ns_branch {ok}')
    def red_index():
        if opt.get('oldred'):
            e(f's_sub_u32 {sr(sT3)}, {sr(sWg)}, 8')
        else:
            e(f'''s_sub_u32 {sr(sT3)}, {sr(sRho)}, 192
            s_bitcmp1_b32 {sr(sRho)}, 0
            s_cselect_b32 {sr(sT3)}, -1, {sr(sT3)}
            s_lshr_b32 {sr(sT3)}, {sr(sT3)}, 1''')
    def srd(dst, ptr, size):
        e(f'''s_mov_b32 {sr(dst)}, {sr(ptr)}
        s_mov_b32 {sr(dst+1)}, {sr(ptr+1)}
        s_mov_b32 {sr(dst+2)}, {size}
        s_mov_b32 {sr(dst+3)}, 0x00020000''')
    def ws_store(n, data, areg, region, extra=''):
        op = {1: 'buffer_store_dword', 2: 'buffer_store_dwordx2', 4: 'buffer_store_dwordx4'}[n]
        e(f's_mov_b32 {sr(sOff)}, {region}\n{op} {vr(data,n)}, {vr(areg)}, {sr(sWS,4)}, {sr(sOff)} offen sc1 {extra}')
    def ws_load_text(n, data, areg, soff, extra=''):
        op = {1: 'buffer_load_dword', 2: 'buffer_load_dwordx2', 4: 'buffer_load_dwordx4'}[n]
        return f'{op} {vr(data,n)}, {vr(areg)}, {sr(sWS,4)}, {soff} offen {extra} sc1'
    PZ = t(40)
    def poison_regs():
        for k in range(4): e(f'v_mov_b32 {vr(PZ+k)}, -1')

    e(f's_cmp_ge_u32 s2, 256\ns_cbranch_scc1 L_done')
    if stamps: e(f's_memrealtime {sr(sM2,2)}')
    e(f'''s_load_dwordx16 {sr(sKA,16)}, s[0:1], 0
    s_load_dwordx8 {sr(sKB,8)}, s[0:1], 64
    s_load_dwordx2 {sr(sKC,2)}, s[0:1], 96''')
    PFN = opt.get('pfn')
    PFPRE = f's_cmp_ge_u32 s2, {PFN}\ns_cbranch_scc1 L_nopf\n' if PFN else ''
    PFPOST = 'L_nopf:\n' if PFN else ''
    e(f'''s_getpc_b64 {sr(sPC,2)}
    L_pc:
    {PFPRE}v_lshlrev_b32 {vr(t(0))}, 7, v0
    v_min_u32 {vr(t(0))}, L_code_end-L_pc-4, {vr(t(0))}
    global_load_dword {vr(vSig)}, {vr(t(0))}, {sr(sPC,2)}
    {PFPOST}s_add_u32 {sr(sPC)}, {sr(sPC)}, L_tab-L_pc
    s_addc_u32 {sr(sPC+1)}, {sr(sPC+1)}, 0''')
    e(f'''s_mov_b32 {sr(sWg)}, s2
    s_and_b32 {sr(sT)}, s2, 7
    s_lshl_b32 {sr(sT)}, {sr(sT)}, 5
    s_lshr_b32 {sr(sRho)}, s2, 3
    s_or_b32 {sr(sRho)}, {sr(sRho)}, {sr(sT)}
    v_lshrrev_b32 {vr(t(1))}, 6, v0
    v_and_b32 {vr(vL)}, 63, v0
    v_readfirstlane_b32 {sr(sW)}, {vr(t(1))}
    v_lshlrev_b32 {vr(t(2))}, 4, {vr(vL)}
    v_sub_u32 {vr(t(3))}, 1008, {vr(t(2))}
    s_lshl_b32 {sr(sT)}, {sr(sRho)}, 2
    s_add_u32 {sr(sRowU)}, {sr(sT)}, {sr(sW)}
    s_sub_u32 {sr(sRowV)}, 2048, {sr(sRowU)}
    s_cmp_eq_u32 {sr(sRowU)}, 0
    s_cselect_b32 {sr(sRowV)}, 1024, {sr(sRowV)}
    s_lshl_b32 {sr(sT)}, {sr(sRowU)}, 10
    s_lshl_b32 {sr(sT2)}, {sr(sRowV)}, 10
    v_add_u32 {vr(aU)}, {sr(sT)}, {vr(t(2))}
    v_add_u32 {vr(aV)}, {sr(sT2)}, {vr(t(3))}
    v_lshlrev_b32 {vr(lG)}, 4, v0
    s_waitcnt lgkmcnt(0)''')
    kx, kwr, kwg = sKA + 0, sKA + 12, sKA + 14
    kwu, kwd, kout, kdbg = sKB + 0, sKB + 2, sKB + 4, sKB + 6
    URAW, VRAW = t(8), t(12)
    WURAW, WVRAW = FX, FX + 4
    e(f's_sub_u32 {sr(sPhi)}, {sr(sRho)}, 1\ns_cmp_eq_u32 {sr(sW)}, 4\ns_cbranch_scc1 L_loader')
    srd(sXS, kx, 2097152)
    e(f'''buffer_load_dwordx4 {vr(URAW,4)}, {vr(aU)}, {sr(sXS,4)}, 0 offen {opt.get('xfl','')}
    buffer_load_dwordx4 {vr(VRAW,4)}, {vr(aV)}, {sr(sXS,4)}, 0 offen {opt.get('xfl','')}''')
    srd(sWS, sKC, WS_SIZE)
    e(f'v_mov_b32 {vr(vCa)}, {NONCE}\nbuffer_load_dword {vr(vCa)}, {vr(vCa)}, {sr(sWS,4)}, 0 offen')
    nvm = [1]
    def tab_loads(dst, n, areg, off, stride):
        k = 0
        while k < n:
            base = off + k*stride
            per = {1024: 4, 4096: 1}[stride]
            e(f'v_add_u32 {vr(t(4))}, {base}, {vr(areg)}')
            for kk in range(min(per, n-k)):
                e(f'global_load_dwordx4 {vr(dst+4*(k+kk),4)}, {vr(t(4))}, {sr(sPC,2)} offset:{kk*stride}')
                nvm[0] += 1
            k += per
    if not opt.get('addrvalu'): tab_loads(AD, 4, lG, TOFF['addr'], 4096)
    if not opt.get('rowvalu'): tab_loads(RB1, 9, t(2), TOFF['row'], 1024)
    N_ROWTAB = nvm[0]
    if stamps:
        e(f'v_mov_b32 {vr(vStamp)}, 0\nv_writelane_b32 {vr(vStamp)}, {sr(sM2)}, 0'); g.nstamp = 1; g.names.append('start')
    poison_regs()
    e(f'''s_lshl_b32 {sr(sT)}, {sr(sRho)}, 12
    v_add_u32 {vr(aP16)}, {sr(sT)}, {vr(lG)}''')
    ws_store(4, PZ, aP16, YB0)
    nvm[0] += 1
    EP = int(opt.get('earlyp', 0))
    if EP >= 1:
        ws_store(4, PZ, aP16, HB1); ws_store(4, PZ, aP16, CAND0); nvm[0] += 2
    if EP >= 2:
        ws_store(4, PZ, aP16, YB1); ws_store(4, PZ, aP16, CAND1); nvm[0] += 2
    if EP >= 3:
        e(f'''s_sub_u32 {sr(sT2)}, {sr(sRho)}, 1
        s_lshl_b32 {sr(sT)}, {sr(sT2)}, 11
        s_cmp_lt_u32 {sr(sT2)}, {NF}
        s_cselect_b32 {sr(sT)}, {sr(sT)}, 0x7f000000
        v_lshlrev_b32 {vr(aP8)}, 3, v0
        v_add_u32 {vr(aP8)}, {sr(sT)}, {vr(aP8)}''')
        ws_store(2, PZ, aP8, PART0); ws_store(2, PZ, aP8, PART1); nvm[0] += 2
    lkb = g.lab('nokb')
    e(f'''s_cmp_lg_u32 {sr(sRowU)}, 0
    s_cbranch_scc1 {lkb}
    v_lshlrev_b32 {vr(t(5))}, 4, {vr(vL)}''')
    ws_store(4, PZ, t(5), KB0)
    ws_store(4, PZ, t(5), KB1)
    e(f'{lkb}:')
    if opt.get('touchhb') == 'w':
        e(f's_lshl_b32 {sr(sT)}, {sr(sRho)}, 13\nv_add_u32 {vr(t(6))}, {sr(sT)}, {vr(lG)}')
        ws_store(4, PZ, t(6), HB0); ws_store(4, PZ, t(6), HB0 + 4096)
        nvm[0] += 2
    if opt.get('touchhb') == 'r':
        e(f's_lshl_b32 {sr(sT)}, {sr(sRho)}, 13\nv_lshlrev_b32 {vr(t(6))}, 5, v0\nv_add_u32 {vr(t(6))}, {sr(sT)}, {vr(t(6))}\ns_mov_b32 {sr(sOff)}, {HB0}')
        e(f'buffer_load_dword {vr(vSa)}, {vr(t(6))}, {sr(sWS,4)}, {sr(sOff)} offen')
        nvm[0] += 1
    N_POISON = nvm[0]
    N_ALL = nvm[0]
    srd(sOUT, kout, 2097152)
    e(f'''s_mov_b32 {sr(s16)}, {fbits(16.0)}
    v_and_b32 {vr(vN)}, 15, {vr(vL)}
    v_lshrrev_b32 {vr(vQ)}, 4, {vr(vL)}''')

    a0, a1, a2, a3 = t(20), t(21), t(22), t(23)
    def addr_misc():
        e(f'''s_lshl_b32 {sr(sT)}, {sr(sRho)}, 4
        v_lshlrev_b32 {vr(aHdr)}, 12, v0
        v_add_u32 {vr(aS16)}, {sr(sT)}, {vr(aHdr)}
        v_mov_b32 {vr(a0)}, {sr(sRowU)}
        v_mov_b32 {vr(a1)}, {sr(sRowV)}
        v_cmp_gt_u32 vcc, 32, {vr(vL)}
        s_lshl_b32 {sr(sT)}, {sr(sPhi)}, 11
        s_cmp_lt_u32 {sr(sPhi)}, {NF}
        s_cselect_b32 {sr(sT)}, {sr(sT)}, 0x7f000000
        v_cndmask_b32 {vr(vRowH)}, {vr(a1)}, {vr(a0)}, vcc
        v_lshlrev_b32 {vr(aP8)}, 3, v0
        v_add_u32 {vr(aP8)}, {sr(sT)}, {vr(aP8)}
        v_mov_b32 {vr(a0)}, 0
        v_lshlrev_b32 {vr(a1)}, 10, {vr(vL)}
        s_mov_b64 exec, 31
        ds_write_b16 {vr(a1)}, {vr(a0)} offset:{YIMG}
        s_mov_b64 exec, -1''')
    def addr_p1():
        x0_, x1_, x2_, x3_, x4_ = t(20), t(21), t(22), t(23), t(24)
        e(f'''s_lshl_b32 {sr(sT)}, {sr(sW)}, 10
        v_lshlrev_b32 {vr(x2_)}, 4, {vr(vL)}
        v_add_u32 {vr(lRow)}, {sr(sT)}, {vr(x2_)}
        s_add_u32 {sr(sT2)}, {sr(sT)}, {RIMG+1008}
        v_sub_u32 {vr(lRw)}, {sr(sT2)}, {vr(x2_)}
        v_lshrrev_b32 {vr(x3_)}, 2, {vr(vN)}
        v_lshl_add_u32 {vr(x2_)}, {vr(vQ)}, 3, {vr(x3_)}
        v_lshlrev_b32 {vr(x2_)}, 5, {vr(x2_)}
        v_and_b32 {vr(x3_)}, 3, {vr(vN)}
        v_lshl_add_u32 {vr(x2_)}, {vr(x3_)}, 3, {vr(x2_)}
        v_add_u32 {vr(lTr)}, {sr(sT)}, {vr(x2_)}
        v_lshrrev_b32 {vr(x3_)}, 3, {vr(vN)}
        v_add_u32 {vr(x3_)}, {vr(x3_)}, {vr(vN)}
        v_lshlrev_b32 {vr(x3_)}, 4, {vr(x3_)}
        v_mul_u32_u24 {vr(x4_)}, {tables.CIN_QS}, {vr(vQ)}
        v_add_u32 {vr(lCr)}, {vr(x3_)}, {vr(x4_)}
        v_add_u32 {vr(lCr)}, {CIN}, {vr(lCr)}''')
        e(f'''s_sub_u32 {sr(sT3)}, 4, {sr(sW)}
        s_and_b32 {sr(sT3)}, {sr(sT3)}, 3
        s_add_u32 {sr(sT3)}, {sr(sT3)}, 4
        s_lshl_b32 {sr(sT3)}, {sr(sT3)}, 1
        s_lshl_b32 {sr(sT2)}, {sr(sW)}, 1
        v_lshlrev_b32 {vr(x0_)}, 7, {vr(vQ)}
        v_add_u32 {vr(x1_)}, {vr(x0_)}, {vr(vN)}
        v_sub_u32 {vr(x2_)}, {vr(x0_)}, {vr(vN)}
        v_and_b32 {vr(x3_)}, 8, {vr(x1_)}
        v_and_b32 {vr(x4_)}, 8, {vr(x2_)}
        v_xor_b32 {vr(x3_)}, {sr(sT2)}, {vr(x3_)}
        v_xor_b32 {vr(x4_)}, {sr(sT3)}, {vr(x4_)}
        v_lshl_add_u32 {vr(x1_)}, {vr(x1_)}, 4, {vr(x3_)}
        v_lshl_add_u32 {vr(x2_)}, {vr(x2_)}, 4, {vr(x4_)}
        v_add_u32 {vr(x1_)}, {HIMG}, {vr(x1_)}
        v_add_u32 {vr(x2_)}, {HIMG - 224*16}, {vr(x2_)}
        v_cmp_gt_u32 vcc, 2, {vr(vQ)}
        v_add_u32 {vr(x3_)}, 256, {vr(x1_)}
        v_subrev_u32 {vr(x4_)}, 256, {vr(x2_)}
        v_cndmask_b32 {vr(lH)}, {vr(x2_)}, {vr(x1_)}, vcc
        v_cndmask_b32 {vr(lH+1)}, {vr(x4_)}, {vr(x3_)}, vcc
        s_add_u32 {sr(sT2)}, {sr(sT2)}, {HIMG}
        s_add_u32 {sr(sT3)}, {sr(sT3)}, {HIMG}
        v_mov_b32 {vr(x0_)}, {HIMG+4112}
        v_mov_b32 {vr(x1_)}, {sr(sT2)}
        v_mov_b32 {vr(x2_)}, {sr(sT3)}
        v_cmp_eq_u32 vcc, 48, {vr(vL)}
        v_cndmask_b32 {vr(lHf)}, {vr(x0_)}, {vr(x1_)}, vcc
        v_cndmask_b32 {vr(lHf+1)}, {vr(x0_)}, {vr(x2_)}, vcc''')
    def addr_ym4():
        e(f'''s_cmp_eq_u32 {sr(sRho)}, 0
        s_cselect_b32 {sr(sT)}, 4096, 0
        v_add_u32 {vr(lYm4)}, {sr(sT)}, {vr(lYm)}''')

    b0, b1, b2 = t(24), t(25), t(26)
    vTau, vTlo = t(28), t(29)
    def tau_tlo():
        e(f'''s_lshl_b32 {sr(sT)}, {sr(sW)}, 3
        v_and_b32 {vr(vTau)}, 7, {vr(vN)}
        v_add_u32 {vr(vTau)}, {sr(sT)}, {vr(vTau)}
        v_sub_u32 {vr(a0)}, 64, {vr(vTau)}
        v_mov_b32 {vr(a1)}, 32
        v_cmp_eq_u32 {sr(sMz,2)}, 0, {vr(vTau)}
        v_cndmask_b32 {vr(a0)}, {vr(a0)}, {vr(a1)}, {sr(sMz,2)}
        v_cmp_le_u32 vcc, 8, {vr(vN)}
        v_cndmask_b32 {vr(vTlo)}, {vr(vTau)}, {vr(a0)}, vcc
        s_andn2_b64 {sr(sMc,2)}, vcc, {sr(sMz,2)}''')
    c0, c1 = t(30), t(31)
    def cos_seq(dst, base, step, n, amp=None):
        for j in range(0, n, 2):
            e(f'v_cos_f32 {vr(c0)}, {vr(base)}\nv_add_f32 {vr(base)}, {vr(base)}, {vr(step)}')
            e(f'v_cos_f32 {vr(c1)}, {vr(base)}')
            if j + 2 < n: e(f'v_add_f32 {vr(base)}, {vr(base)}, {vr(step)}')
            if amp is not None:
                e(f'v_mul_f32 {vr(c0)}, {amp}, {vr(c0)}\nv_mul_f32 {vr(c1)}, {amp}, {vr(c1)}')
            e(f'v_cvt_pk_f16_f32 {vr(dst + j//2)}, {vr(c0)}, {vr(c1)}')
    fQ, fN, fs, fb, fa, fb2 = t(32), t(33), t(34), t(35), t(36), t(37)
    def row_consts():
        e(f'v_cvt_f32_u32 {vr(fQ)}, {vr(vQ)}\nv_cvt_f32_u32 {vr(fN)}, {vr(vN)}')
        e(f'v_mul_f32 {vr(fs)}, {fbits(1/32)}, {vr(fN)}\nv_mul_f32 {vr(fa)}, {fbits(8.0)}, {vr(fQ)}')
        for part in range(2):
            e(f'v_mul_f32 {vr(fb)}, {vr(fa)}, {vr(fs)}')
            if part: e(f'v_add_f32 {vr(fb)}, {fbits(0.25)}, {vr(fb)}')
            cos_seq(RB1 + part*4, fb, fs, 8)
        for k in range(8): e(f'v_xor_b32 {vr(RB1+8+k)}, 0x80000000, {vr(RB1+k)}')
        e(f'v_mul_f32 {vr(fa)}, 4.0, {vr(fQ)}')
        for Tt in range(2):
            e(f'''v_add_f32 {vr(fs)}, {fbits(16.0*Tt)}, {vr(fN)}
            v_mul_f32 {vr(fs)}, {fbits(1/512)}, {vr(fs)}
            v_mul_f32 {vr(fb)}, {vr(fa)}, {vr(fs)}''')
            for i in range(4):
                e(f'v_cos_f32 {vr(RC+4*Tt+i)}, {vr(fb)}\nv_sin_f32 {vr(RS+4*Tt+i)}, {vr(fb)}')
                if i < 3: e(f'v_add_f32 {vr(fb)}, {vr(fb)}, {vr(fs)}')
        e(f'''v_sub_u32 {vr(fs)}, 23, {vr(vN)}
        v_cmp_gt_u32 vcc, 8, {vr(vN)}
        v_cndmask_b32 {vr(fs)}, {vr(fs)}, {vr(vN)}, vcc
        v_cvt_f32_u32 {vr(fs)}, {vr(fs)}
        v_mul_f32 {vr(fs)}, {fbits(1/16)}, {vr(fs)}
        v_mul_f32 {vr(fb2)}, {vr(fa)}, {vr(fs)}''')
        for part, ph in ((0, 0.125), (1, -0.125)):
            e(f'v_add_f32 {vr(fb)}, {fbits(ph)}, {vr(fb2)}')
            cos_seq(RA2 + 2*part, fb, fs, 4, amp=fbits(math.sqrt(2)))
    def col_consts_a():
        tau_tlo()
        e(f'''v_cvt_f32_u32 {vr(fQ)}, {vr(vQ)}
        v_cmp_le_u32 vcc, 8, {vr(vN)}
        s_and_b64 vcc, vcc, {sr(sMz,2)}
        v_mov_b32 {vr(a1)}, 32
        v_cndmask_b32 {vr(a0)}, {vr(vTau)}, {vr(a1)}, vcc
        v_cvt_f32_u32 {vr(fs)}, {vr(a0)}
        v_mul_f32 {vr(fs)}, {fbits(1/64)}, {vr(fs)}
        v_mov_b32 {vr(fa)}, {fbits(0.25)}
        v_cndmask_b32 {vr(fa)}, 0, {vr(fa)}, {sr(sMc,2)}
        v_mul_f32 {vr(fb)}, {fbits(8.0)}, {vr(fQ)}
        v_fma_f32 {vr(fb)}, {vr(fb)}, {vr(fs)}, {vr(fa)}''')
        cos_seq(CB1, fb, fs, 8)
        e(f'''v_and_b32 {vr(a0)}, 1, {vr(a0)}
        v_mul_u32_u24 {vr(a0)}, 0x8000, {vr(a0)}
        v_lshl_or_b32 {vr(a0)}, {vr(a0)}, 16, {vr(a0)}''')
        for k in range(4): e(f'v_xor_b32 {vr(CB1+4+k)}, {vr(a0)}, {vr(CB1+k)}')
    def col_consts_b():
        e(f'v_cvt_f32_u32 {vr(fQ)}, {vr(vQ)}')
        e(f'''v_cvt_f32_u32 {vr(fs)}, {vr(vTlo)}
        v_mul_f32 {vr(fs)}, {fbits(1/2048)}, {vr(fs)}
        v_mul_f32 {vr(fb)}, {vr(fQ)}, {vr(fs)}
        v_fma_f32 {vr(fb)}, {vr(fb)}, 4.0, {vr(fa)}
        v_mov_b32 {vr(a1)}, {fbits(0.25)}
        v_cndmask_b32 {vr(a1)}, {vr(a1)}, 0, {sr(sMz,2)}''')
        e(f'v_add_f32 {vr(fb2)}, {fbits(-0.25)}, {vr(fb)}')
        e(f'v_mul_f32 {vr(a2)}, {fbits(12.0)}, {vr(fs)}')
        for Tt in range(2):
            for i in range(4):
                k = CK + 16*Tt
                e(f'''v_cos_f32 {vr(c0)}, {vr(fb)}
                v_cos_f32 {vr(c1)}, {vr(fb2)}
                v_add_f32 {vr(fb)}, {vr(fb)}, {vr(fs)}
                v_add_f32 {vr(fb2)}, {vr(fb2)}, {vr(fs)}
                v_mul_f32 {vr(k+i)}, {fbits(0.25)}, {vr(c0)}
                v_mul_f32 {vr(k+4+i)}, {vr(a1)}, {vr(c1)}
                v_mul_f32 {vr(k+8+i)}, {fbits(-0.25)}, {vr(c1)}
                v_mul_f32 {vr(k+12+i)}, {vr(a1)}, {vr(c0)}''')
            if Tt == 0: e(f'v_add_f32 {vr(fb)}, {vr(fb)}, {vr(a2)}\nv_add_f32 {vr(fb2)}, {vr(fb2)}, {vr(a2)}')
        e(f'''v_cvt_f32_u32 {vr(fs)}, {vr(vN)}
        v_mul_f32 {vr(fs)}, {fbits(1/32)}, {vr(fs)}
        v_mul_f32 {vr(fb2)}, {vr(fQ)}, {vr(fs)}
        v_mul_f32 {vr(fb2)}, 4.0, {vr(fb2)}''')
        for part, ph in ((0, -0.125), (1, -0.375)):
            e(f'v_add_f32 {vr(fb)}, {fbits(ph)}, {vr(fb2)}')
            cos_seq(CA2 + 2*part, fb, fs, 4, amp=fbits(math.sqrt(2)/8))
        e(f'''v_and_b32 {vr(a0)}, 1, {vr(vN)}
        v_mul_u32_u24 {vr(a0)}, 0x8000, {vr(a0)}
        v_lshl_or_b32 {vr(a0)}, {vr(a0)}, 16, {vr(a0)}''')
        for k in range(4):
            e(f'v_xor_b32 {vr(CA2+4+k)}, {vr(a0)}, {vr(CA2+k)}')
        for k in range(8):
            e(f'v_xor_b32 {vr(CA2+8+k)}, 0x80000000, {vr(CA2+k)}')

    def unpack_nat(dst, src):
        for k in range(4):
            e(f'v_lshlrev_b32 {vr(dst+2*k)}, 16, {vr(src+k)}\nv_and_b32 {vr(dst+2*k+1)}, 0xffff0000, {vr(src+k)}')
    def unpack_rev(dst, src, tmp):
        e(f'''v_lshlrev_b32 {vr(tmp)}, 16, {vr(src)}
        v_and_b32 {vr(dst+7)}, 0xffff0000, {vr(src)}
        v_lshlrev_b32 {vr(dst+6)}, 16, {vr(src+1)}
        v_and_b32 {vr(dst+5)}, 0xffff0000, {vr(src+1)}
        v_mov_b32_dpp {vr(dst)}, {vr(tmp)} wave_ror:1 {DPP}
        v_lshlrev_b32 {vr(dst+4)}, 16, {vr(src+2)}
        v_and_b32 {vr(dst+3)}, 0xffff0000, {vr(src+2)}
        v_lshlrev_b32 {vr(dst+2)}, 16, {vr(src+3)}
        v_and_b32 {vr(dst+1)}, 0xffff0000, {vr(src+3)}''')
    def half_reduce(regs, tmps, op='v_add_f32'):
        for sh in (8, 4, 2, 1):
            for r in regs: e(f'{op}_dpp {vr(r)}, {vr(r)}, {vr(r)} row_ror:{sh} {DPP}')
        for r, tm in zip(regs, tmps): e(f'v_mov_b32 {vr(tm)}, {vr(r)}')
        for r, tm in zip(regs, tmps): e(f'v_permlane16_swap_b32 {vr(r)}, {vr(tm)}')
        for r, tm in zip(regs, tmps): e(f'{op} {vr(r)}, {vr(r)}, {vr(tm)}')
    def wave_reduce(regs, tmps, op='v_add_f32'):
        half_reduce(regs, tmps, op)
        for r, tm in zip(regs, tmps): e(f'v_mov_b32 {vr(tm)}, {vr(r)}')
        for r, tm in zip(regs, tmps): e(f'v_permlane32_swap_b32 {vr(r)}, {vr(tm)}')
        for r, tm in zip(regs, tmps): e(f'{op} {vr(r)}, {vr(r)}, {vr(tm)}')
    hM, hVar, hRho, hB, hR = t(40), t(41), t(42), t(43), t(44)
    def partial(Dd, src, sC, w, o1, o2, o3, P, read=True):
        if read: e(f'v_readfirstlane_b32 {sr(sC)}, {vr(src)}')
        for k in range(4):
            e(f'v_pk_add_f32 {vr(Dd+2*k,2)}, {vr(src+2*k,2)}, {sr(sC,2)} op_sel_hi:[1,0] neg_lo:[0,1] neg_hi:[0,1]')
        e(f'''v_pk_add_f32 {vr(P,2)}, {vr(Dd,2)}, {vr(Dd+2,2)}
        v_pk_mul_f32 {vr(P+2,2)}, {vr(Dd,2)}, {vr(Dd,2)}
        v_pk_add_f32 {vr(P+4,2)}, {vr(Dd+4,2)}, {vr(Dd+6,2)}''')
        if w is not None: e(f'v_pk_mul_f32 {vr(P+6,2)}, {vr(Dd,2)}, {vr(w,2)}')
        for k in range(1, 4):
            e(f'v_pk_fma_f32 {vr(P+2,2)}, {vr(Dd+2*k,2)}, {vr(Dd+2*k,2)}, {vr(P+2,2)}')
            if w is not None: e(f'v_pk_fma_f32 {vr(P+6,2)}, {vr(Dd+2*k,2)}, {vr(w+2*k,2)}, {vr(P+6,2)}')
            if k == 1: e(f'v_pk_add_f32 {vr(P,2)}, {vr(P,2)}, {vr(P+4,2)}')
        e(f'v_add_f32 {vr(o1)}, {vr(P)}, {vr(P+1)}\nv_add_f32 {vr(o2)}, {vr(P+2)}, {vr(P+3)}')
        if w is not None: e(f'v_add_f32 {vr(o3)}, {vr(P+6)}, {vr(P+7)}')
    def moments(S1, S2):
        e(f'''v_mul_f32 {vr(hM)}, {fbits(1/512)}, {vr(S1)}
        v_mul_f32 {vr(S2)}, {fbits(1/512)}, {vr(S2)}
        v_fma_f32 {vr(hVar)}, -{vr(hM)}, {vr(hM)}, {vr(S2)}
        v_add_f32 {vr(S2)}, {fbits(1e-5)}, {vr(hVar)}
        v_rsq_f32 {vr(hRho)}, {vr(S2)}''')
    def stats2(with_r):
        a1_, a2_, a3_, b1_, b2_, b3_ = t(16), t(17), t(18), t(19), t(20), t(21)
        e(f'v_readfirstlane_b32 {sr(sCu)}, {vr(XU)}\nv_readfirstlane_b32 {sr(sCv)}, {vr(XV)}')
        partial(DV, XV, sCv, WV if with_r else None, b1_, b2_, b3_, t(32), read=False) if False else None
        partial(DU, XU, sCu, WU if with_r else None, a1_, a2_, a3_, t(24), read=False)
        partial(DV, XV, sCv, WV if with_r else None, b1_, b2_, b3_, t(32), read=False)
        pairs = [(a1_, b1_), (a2_, b2_)] + ([(a3_, b3_)] if with_r else [])
        for x, y in pairs: e(f'v_permlane32_swap_b32 {vr(x)}, {vr(y)}')
        for x, y in pairs: e(f'v_add_f32 {vr(x)}, {vr(x)}, {vr(y)}')
        half_reduce([x for x, _ in pairs], [y for _, y in pairs])
        moments(a1_, a2_)
        if with_r: e(f'v_fma_f32 {vr(a3_)}, -{vr(hM)}, {sr(sSW)}, {vr(a3_)}')
        e(f'v_mul_f32 {vr(hB)}, -{vr(hM)}, {vr(hRho)}')
        if with_r: e(f'v_mul_f32 {vr(hR)}, {vr(hRho)}, {vr(a3_)}')
    def stats1(src, Dd, dst):
        partial(Dd, src, sCu, None, t(16), t(17), None, t(24))
        wave_reduce([t(16), t(17)], [t(18), t(19)])
        moments(t(16), t(17))
        e(f'''v_readfirstlane_b32 {sr(sKu)}, {vr(hRho)}
        v_mul_f32 {vr(hB)}, -{vr(hM)}, {vr(hRho)}
        v_readfirstlane_b32 {sr(sKu+1)}, {vr(hB)}''')
        if dst is not None:
            for k in range(4): e(f'v_pk_fma_f32 {vr(dst+2*k,2)}, {vr(Dd+2*k,2)}, {sr(sKu,2)}, {sr(sKu,2)} {PKB}')
    def residual_coeffs():
        e(f'''v_mov_b32 {vr(t(22))}, {sr(sCu)}
        v_mov_b32 {vr(t(23))}, {sr(sCv)}
        v_cmp_gt_u32 vcc, 32, {vr(vL)}
        v_add_f32 {vr(t(21))}, 1.0, {vr(hRho)}
        v_cndmask_b32 {vr(t(22))}, {vr(t(23))}, {vr(t(22))}, vcc
        v_add_f32 {vr(t(22))}, {vr(t(22))}, {vr(hB)}
        v_readlane_b32 {sr(sAu)}, {vr(t(21))}, 0
        v_readlane_b32 {sr(sAv)}, {vr(t(21))}, 32
        v_readlane_b32 {sr(sAu+1)}, {vr(t(22))}, 0
        v_readlane_b32 {sr(sAv+1)}, {vr(t(22))}, 32''')
    def residual_update(dU, dV):
        for k in range(4): e(f'v_pk_fma_f32 {vr(dU+2*k,2)}, {vr(DU+2*k,2)}, {sr(sAu,2)}, {sr(sAu,2)} {PKB}')
        for k in range(4): e(f'v_pk_fma_f32 {vr(dV+2*k,2)}, {vr(DV+2*k,2)}, {sr(sAv,2)}, {sr(sAv,2)} {PKB}')
    def norm_coeffs(scale, bias):
        e(f'''v_readlane_b32 {sr(sKu)}, {vr(scale)}, 0
        v_readlane_b32 {sr(sKu+1)}, {vr(bias)}, 0
        v_readlane_b32 {sr(sKv)}, {vr(scale)}, 32
        v_readlane_b32 {sr(sKv+1)}, {vr(bias)}, 32''')
    GG = t(16)
    def make_g():
        for k in range(4): e(f'v_pk_fma_f32 {vr(GG+2*k,2)}, {vr(DU+2*k,2)}, {sr(sKu,2)}, {sr(sKu,2)} {PKB}')
        for k in range(4): e(f'v_pk_fma_f32 {vr(GG+2*k,2)}, {vr(DV+2*k,2)}, {sr(sKv,2)}, {vr(GG+2*k,2)} op_sel_hi:[1,0,1]')
    def write_n(src, tmp):
        for k in range(4): e(f'v_cvt_pk_f16_f32 {vr(tmp+k)}, {vr(src+2*k)}, {vr(src+2*k+1)}')
        e(f'ds_write_b128 {vr(lRow)}, {vr(tmp,4)} offset:{GIMG}')
    def write_r(src, tmp):
        e(f'''v_mov_b32_dpp {vr(tmp+4)}, {vr(src)} wave_rol:1 {DPP}
        v_cvt_pk_f16_f32 {vr(tmp+1)}, {vr(src+6)}, {vr(src+5)}
        v_cvt_pk_f16_f32 {vr(tmp+2)}, {vr(src+4)}, {vr(src+3)}
        v_cvt_pk_f16_f32 {vr(tmp+3)}, {vr(src+2)}, {vr(src+1)}
        v_cvt_pk_f16_f32 {vr(tmp)}, {vr(tmp+4)}, {vr(src+7)}
        ds_write_b128 {vr(lRw)}, {vr(tmp,4)}''')
    def core(A, O):
        Dr = [t(0), t(8)]; Di = [t(4), t(12)]
        for Tt in range(2):
            e(f'v_mfma_f32_16x16x32_f16 {vr(Dr[Tt],4)}, {vr(A,4)}, {vr(RB1+(2*Tt)*4,4)}, 0')
            e(f'v_mfma_f32_16x16x32_f16 {vr(Di[Tt],4)}, {vr(A,4)}, {vr(RB1+(2*Tt+1)*4,4)}, 0')
        Bo = [t(16), t(20)]; br, bi = t(24), t(28)
        for Tt in range(2):
            for h in range(2):
                c = vr(RC+4*Tt+2*h, 2); s_ = vr(RS+4*Tt+2*h, 2)
                dr = vr(Dr[Tt]+2*h, 2); di = vr(Di[Tt]+2*h, 2)
                e(f'''v_pk_mul_f32 {vr(br+2*h,2)}, {dr}, {c}
                v_pk_mul_f32 {vr(bi+2*h,2)}, {di}, {c}
                v_pk_fma_f32 {vr(br+2*h,2)}, {di}, {s_}, {vr(br+2*h,2)}
                v_pk_fma_f32 {vr(bi+2*h,2)}, {dr}, {s_}, {vr(bi+2*h,2)} neg_lo:[1,0,0] neg_hi:[1,0,0]''')
            e(f'''v_cvt_pk_f16_f32 {vr(Bo[Tt])}, {vr(br)}, {vr(br+1)}
            v_cvt_pk_f16_f32 {vr(Bo[Tt]+1)}, {vr(br+2)}, {vr(br+3)}
            v_cvt_pk_f16_f32 {vr(Bo[Tt]+2)}, {vr(bi)}, {vr(bi+1)}
            v_cvt_pk_f16_f32 {vr(Bo[Tt]+3)}, {vr(bi+2)}, {vr(bi+3)}''')
            e(f'v_mfma_f32_16x16x32_f16 {vr(O+4*Tt,4)}, {vr(RA2,4)}, {vr(Bo[Tt],4)}, 0')

    CA, CO = t(32), t(36)
    def transform(dst_off, tagged=False, pre_core=None, post_scatter=None, pre_store=None):
        write_n(GG, t(24))
        e(f"""ds_read_b64_tr_b16 {vr(CA,2)}, {vr(lTr)} offset:{GIMG}
        ds_read_b64_tr_b16 {vr(CA+2,2)}, {vr(lTr)} offset:{GIMG+128}""")
        if pre_core: pre_core()
        e('s_waitcnt lgkmcnt(0)')
        core(CA, CO)
        for k in range(4): e(f'v_cvt_pk_f16_f32 {vr(t(44)+k)}, {vr(CO+2*k)}, {vr(CO+2*k+1)}')
        for Tt in range(2):
            for i in range(4):
                op = 'ds_write_b16' if i % 2 == 0 else 'ds_write_b16_d16_hi'
                e(f'{op} {vr(lH+Tt)}, {vr(t(44) + 2*Tt + i//2)} offset:{512*i}')
        e(f'ds_write_b16_d16_hi {vr(lHf)}, {vr(t(45))}\nds_write_b16_d16_hi {vr(lHf+1)}, {vr(t(45))}')
        if post_scatter: post_scatter()
        if tagged:
            e(f"""v_lshlrev_b32 {vr(t(8))}, 3, v0
            s_lshl_b32 {sr(sT)}, {sr(sRho)}, 13
            v_add_u32 {vr(t(9))}, {sr(sT)}, {vr(lG)}""")
            for k in (1, 3, 5, 7): e(f'v_mov_b32 {vr(t(k))}, {sr(sTag)}')
            if pre_store: pre_store()
            e(f"""s_waitcnt lgkmcnt(0)
            s_barrier
            ds_read_b32 {vr(t(0))}, {vr(t(8))} offset:{HIMG}
            ds_read_b32 {vr(t(2))}, {vr(t(8))} offset:{HIMG+4}
            ds_read_b32 {vr(t(4))}, {vr(t(8))} offset:{HIMG+2048}
            ds_read_b32 {vr(t(6))}, {vr(t(8))} offset:{HIMG+2052}
            s_mov_b32 {sr(sOff)}, {dst_off}
            s_mov_b32 {sr(sT)}, {dst_off+4096}
            s_waitcnt lgkmcnt(2)
            buffer_store_dwordx4 {vr(t(0),4)}, {vr(t(9))}, {sr(sWS,4)}, {sr(sOff)} offen sc1
            s_waitcnt lgkmcnt(0)
            buffer_store_dwordx4 {vr(t(4),4)}, {vr(t(9))}, {sr(sWS,4)}, {sr(sT)} offen sc1""")
        else:
            if pre_store: pre_store()
            e(f"""s_waitcnt lgkmcnt(0)
            s_barrier
            ds_read_b128 {vr(t(0),4)}, {vr(lG)} offset:{HIMG}
            s_mov_b32 {sr(sOff)}, {dst_off}
            s_waitcnt lgkmcnt(0)
            buffer_store_dwordx4 {vr(t(0),4)}, {vr(aP16)}, {sr(sWS,4)}, {sr(sOff)} offen sc1""")

    def affine_from_x(sx1x0_u, sx1x0_v, sKu_, sKv_, outU, outV):
        for (xx, cc, kk, oo) in ((sx1x0_u, sCu, sKu_, outU), (sx1x0_v, sCv, sKv_, outV)):
            if xx is None:
                e(f"""v_mov_b32 {vr(t(44))}, {sr(kk)}
                v_mov_b32 {vr(t(45))}, {sr(kk+1)}
                v_fma_f32 {vr(t(45))}, -{vr(t(44))}, {sr(cc)}, {vr(t(45))}""")
            else:
                e(f"""v_rcp_f32 {vr(t(44))}, {sr(xx)}
                v_mov_b32 {vr(t(45))}, {sr(kk+1)}
                v_mul_f32 {vr(t(44))}, {sr(kk)}, {vr(t(44))}
                v_fma_f32 {vr(t(45))}, -{vr(t(44))}, {sr(xx+1)}, {vr(t(45))}""")
            e(f'v_readfirstlane_b32 {sr(oo)}, {vr(t(44))}\nv_readfirstlane_b32 {sr(oo+1)}, {vr(t(45))}')

    def special_k(dst_off, after_residual):
        ln = g.lab('nok')
        e(f's_cmp_lg_u32 {sr(sRowU)}, 0\ns_cbranch_scc1 {ln}')
        affine_from_x(sAu if after_residual else None, sAv if after_residual else None, sKu, sKv, sH, sH+2)
        ZU, ZV = t(0), t(8)
        for k in range(4): e(f'v_pk_fma_f32 {vr(ZU+2*k,2)}, {vr(XU+2*k,2)}, {sr(sH,2)}, {sr(sH,2)} {PKB}')
        for k in range(4): e(f'v_pk_fma_f32 {vr(ZV+2*k,2)}, {vr(XV+2*k,2)}, {sr(sH+2,2)}, {sr(sH+2,2)} {PKB}')
        write_r(ZU, t(16)); write_n(ZV, t(24))
        A, B = CA, t(40)
        e(f"""ds_read_b64_tr_b16 {vr(A,2)}, {vr(lTr)} offset:{RIMG}
        ds_read_b64_tr_b16 {vr(B,2)}, {vr(lTr)} offset:{GIMG}
        ds_read_b64_tr_b16 {vr(A+2,2)}, {vr(lTr)} offset:{RIMG+128}
        ds_read_b64_tr_b16 {vr(B+2,2)}, {vr(lTr)} offset:{GIMG+128}
        s_waitcnt lgkmcnt(0)""")
        for k in range(4): e(f'v_pk_add_f16 {vr(A+k)}, {vr(A+k)}, {vr(B+k)} neg_lo:[0,1] neg_hi:[0,1]')
        core(A, CO)
        for k in range(4): e(f'v_pk_mul_f32 {vr(CO+2*k,2)}, {vr(CO+2*k,2)}, {sr(sT2 if False else sM2,2)} op_sel_hi:[1,0]' if False else f'v_mul_f32 {vr(CO+2*k)}, {fbits(1/16)}, {vr(CO+2*k)}\nv_mul_f32 {vr(CO+2*k+1)}, {fbits(1/16)}, {vr(CO+2*k+1)}')
        for k in range(4): e(f'v_cvt_pk_f16_f32 {vr(t(44)+k)}, {vr(CO+2*k)}, {vr(CO+2*k+1)}')
        e(f"""v_lshl_add_u32 {vr(t(0))}, {vr(vQ)}, 7, {vr(vN)}
        v_lshlrev_b32 {vr(t(0))}, 1, {vr(t(0))}
        v_sub_u32 {vr(t(1))}, {1024-32-192}, {vr(t(0))}
        v_mov_b32 {vr(t(2))}, 512
        s_mov_b32 exec_lo, -1
        s_mov_b32 exec_hi, 0""")
        for Tt in range(2):
            for i in range(4):
                op = 'ds_write_b16' if i % 2 == 0 else 'ds_write_b16_d16_hi'
                e(f'{op} {vr(t(0))}, {vr(t(44)+2*Tt+i//2)} offset:{KIMG + 32*Tt + 64*i}')
                e(f'{op} {vr(t(1))}, {vr(t(44)+2*Tt+i//2)} offset:{KIMG + 32*(1-Tt) + 64*(3-i)}')
        e(f"""s_mov_b32 exec_lo, 0
        s_mov_b32 exec_hi, 0x00010000
        ds_write_b16_d16_hi {vr(t(2))}, {vr(t(45))} offset:{KIMG}
        s_mov_b64 exec, -1
        v_lshlrev_b32 {vr(t(3))}, 4, {vr(vL)}
        s_waitcnt lgkmcnt(0)
        ds_read_b128 {vr(t(4),4)}, {vr(t(3))} offset:{KIMG}
        s_mov_b32 {sr(sOff)}, {dst_off}
        s_waitcnt lgkmcnt(0)
        buffer_store_dwordx4 {vr(t(4),4)}, {vr(t(3))}, {sr(sWS,4)}, {sr(sOff)} offen sc1
        {ln}:""")

    PC = t(40)
    def column_load(src_off):
        e(f's_mov_b32 {sr(sOff)}, {src_off}')
        e(ws_load_text(4, PC, aS16, sr(sOff)))
    def column(src_off, dst_off, preloaded, tagged=False, behind_poll=None):
        P = PC
        e(f's_mov_b32 {sr(sOff)}, {src_off}')
        if tagged:
            P = t(0); A2 = t(44); AD1 = t(8)
            e(f'''v_lshrrev_b32 {vr(AD1)}, 1, v0
            v_lshlrev_b32 {vr(AD1)}, 13, {vr(AD1)}
            v_and_b32 {vr(t(9))}, 1, v0
            v_lshl_add_u32 {vr(AD1)}, {vr(t(9))}, 4, {vr(AD1)}
            s_lshl_b32 {sr(sT)}, {sr(sRho)}, 5
            v_add_u32 {vr(AD1)}, {sr(sT)}, {vr(AD1)}
            s_add_u32 {sr(sT3)}, {sr(sOff)}, {128*8192}''')
            ld = ws_load_text(4, P, AD1, sr(sOff)) + '\n' + ws_load_text(4, P+4, AD1, sr(sT3))
            if opt.get('splitc'):
                e(ld)
                nb = 0
                if behind_poll:
                    behind_poll[0](); nb = behind_poll[1]; e(f's_mov_b32 {sr(sOff)}, {src_off}')
                col_consts_b(); e(f's_waitcnt vmcnt({nb})')
                poll(ld, ('tag', P), preloaded=True)
            else:
                poll(ld, ('tag', P))
            stamp('col data')
            for k in range(2):
                e(f'''ds_write_b16 {vr(A2+2*k)}, {vr(P+4*k)}
                ds_write_b16_d16_hi {vr(A2+2*k+1)}, {vr(P+4*k)} offset:16
                ds_write_b16 {vr(A2+2*k+1)}, {vr(P+4*k+2)} offset:32
                ds_write_b16_d16_hi {vr(A2+2*k+1)}, {vr(P+4*k+2)} offset:48''')
            e('s_waitcnt lgkmcnt(0)\ns_barrier')
        else:
            poll(ws_load_text(4, P, aS16, sr(sOff)), range(P, P+4), preloaded=preloaded)
            lsw = g.lab('nosw')
            e(f's_bitcmp0_b32 {sr(sRho)}, 3\ns_cbranch_scc1 {lsw}\nv_swap_b32 {vr(P)}, {vr(P+2)}\nv_swap_b32 {vr(P+1)}, {vr(P+3)}\n{lsw}:')
            d = [P, P+1, P+2, P+3]
            stamp('col data')
            e(f"""ds_write_b16 {vr(lCa)}, {vr(d[0])}
            ds_write_b16_d16_hi {vr(lCa)}, {vr(d[0])} offset:16
            ds_write_b16 {vr(lCa)}, {vr(d[1])} offset:32
            ds_write_b16_d16_hi {vr(lCa)}, {vr(d[1])} offset:48
            ds_write_b16 {vr(lCb)}, {vr(d[2])}
            ds_write_b16_d16_hi {vr(lCc)}, {vr(d[2])} offset:16
            ds_write_b16 {vr(lCc)}, {vr(d[3])} offset:32
            ds_write_b16_d16_hi {vr(lCc)}, {vr(d[3])} offset:48
            s_waitcnt lgkmcnt(0)
            s_barrier""")
        A = t(0)
        for k in range(4): e(f'ds_read_b128 {vr(A+4*k,4)}, {vr(lCr)} offset:{tables.cin_block(k)}')
        D1 = [t(16), t(20)]
        e(f"""s_waitcnt lgkmcnt(3)
        v_mfma_f32_16x16x32_f16 {vr(D1[0],4)}, {vr(A,4)}, {vr(CB1,4)}, 0
        s_waitcnt lgkmcnt(2)
        v_mfma_f32_16x16x32_f16 {vr(D1[0],4)}, {vr(A+4,4)}, {vr(CB1+4,4)}, {vr(D1[0],4)}
        s_waitcnt lgkmcnt(1)
        v_mfma_f32_16x16x32_f16 {vr(D1[1],4)}, {vr(A+8,4)}, {vr(CB1,4)}, 0
        s_waitcnt lgkmcnt(0)
        v_mfma_f32_16x16x32_f16 {vr(D1[1],4)}, {vr(A+12,4)}, {vr(CB1+4,4)}, {vr(D1[1],4)}""")
        Bb = t(24); br, bi = t(28), t(32); Bo = [t(0), t(4)]
        O = [t(8), t(12)]
        for Tt in range(2):
            k = CK + 16*Tt
            for i in range(4): e(f'v_mov_b32_dpp {vr(Bb+i)}, {vr(D1[Tt]+i)} row_ror:8 {DPP}')
            for h in range(2):
                e(f"""v_pk_mul_f32 {vr(br+2*h,2)}, {vr(D1[Tt]+2*h,2)}, {vr(k+2*h,2)}
                v_pk_mul_f32 {vr(bi+2*h,2)}, {vr(D1[Tt]+2*h,2)}, {vr(k+8+2*h,2)}""")
            for h in range(2):
                e(f"""v_pk_fma_f32 {vr(br+2*h,2)}, {vr(Bb+2*h,2)}, {vr(k+4+2*h,2)}, {vr(br+2*h,2)}
                v_pk_fma_f32 {vr(bi+2*h,2)}, {vr(Bb+2*h,2)}, {vr(k+12+2*h,2)}, {vr(bi+2*h,2)}""")
            e(f"""v_cvt_pk_f16_f32 {vr(Bo[Tt])}, {vr(br)}, {vr(br+1)}
            v_cvt_pk_f16_f32 {vr(Bo[Tt]+1)}, {vr(br+2)}, {vr(br+3)}
            v_cvt_pk_f16_f32 {vr(Bo[Tt]+2)}, {vr(bi)}, {vr(bi+1)}
            v_cvt_pk_f16_f32 {vr(Bo[Tt]+3)}, {vr(bi+2)}, {vr(bi+3)}""")
            e(f"""v_mfma_f32_16x16x32_f16 {vr(O[0],4)}, {vr(CA2+4*Tt,4)}, {vr(Bo[Tt],4)}, {"0" if Tt == 0 else vr(O[0],4)}
            v_mfma_f32_16x16x32_f16 {vr(O[1],4)}, {vr(CA2+8+4*Tt,4)}, {vr(Bo[Tt],4)}, {"0" if Tt == 0 else vr(O[1],4)}""")
        e(f"""        v_cvt_pk_f16_f32 {vr(t(16))}, {vr(O[0])}, {vr(O[0]+1)}
        v_cvt_pk_f16_f32 {vr(t(17))}, {vr(O[0]+2)}, {vr(O[0]+3)}
        ds_write_b16 {vr(lCo)}, {vr(t(16))}
        ds_write_b16_d16_hi {vr(lCo)}, {vr(t(16))} offset:256
        v_cvt_pk_f16_f32 {vr(t(18))}, {vr(O[1])}, {vr(O[1]+1)}
        v_cvt_pk_f16_f32 {vr(t(19))}, {vr(O[1]+2)}, {vr(O[1]+3)}
        ds_write_b16 {vr(lCo)}, {vr(t(17))} offset:512
        ds_write_b16_d16_hi {vr(lCo)}, {vr(t(17))} offset:768
        ds_write_b16 {vr(lCo+2)}, {vr(t(18))}
        ds_write_b16_d16_hi {vr(lCo+1)}, {vr(t(18))} offset:512
        ds_write_b16 {vr(lCo+1)}, {vr(t(19))} offset:256
        ds_write_b16_d16_hi {vr(lCo+1)}, {vr(t(19))}
        s_waitcnt lgkmcnt(0)
        s_barrier
        ds_read_b128 {vr(t(0),4)}, {vr(lG)} offset:{COUT}
        s_mov_b32 {sr(sOff)}, {dst_off}
        s_waitcnt {'vmcnt(0) ' if behind_poll else ''}lgkmcnt(0)
        buffer_store_dwordx4 {vr(t(0),4)}, {vr(aP16)}, {sr(sWS,4)}, {sr(sOff)} offen sc1""")

    YY = [t(4), t(8)]; KT = t(12)
    def row_input(src_off, kb, behind_poll=None, ydst=None):
        P = t(0); YH, YV = ydst or YY
        lk = g.lab('nok')
        e(f's_bitcmp0_b32 {sr(sW)}, 0\ns_cbranch_scc1 {lk}')
        e(f'v_lshlrev_b32 {vr(t(16))}, 4, {vr(vL)}\ns_mov_b32 {sr(sT3)}, {kb}')
        e(ws_load_text(4, KT, t(16), sr(sT3)))
        e(f'{lk}:')
        e(f's_mov_b32 {sr(sOff)}, {src_off}')
        ld = ws_load_text(4, P, aS16, sr(sOff))
        if behind_poll:
            e(ld); behind_poll[0](); e(f's_mov_b32 {sr(sOff)}, {src_off}\ns_waitcnt vmcnt({behind_poll[1]})')
            poll(ld, range(P, P+4), preloaded=True)
        else:
            poll(ld, range(P, P+4))
        stamp('row data')
        def wr(slot, areg, off):
            op = 'ds_write_b16' if slot % 2 == 0 else 'ds_write_b16_d16_hi'
            e(f'{op} {vr(areg)}, {vr(P + slot//2)} offset:{YIMG + off}')
        for j in range(4): wr(j, lYd, j*1024)
        wr(4, lYm4, 0); wr(5, lYm, 3*1024); wr(6, lYm, 2*1024); wr(7, lYm, 1024)
        l0 = g.lab('not0')
        e(f's_cmp_lg_u32 {sr(sRho)}, 0\ns_cbranch_scc1 {l0}')
        wr(0, lYm, 0); wr(4, lYd, 4096)
        e(f"""{l0}:
        s_waitcnt lgkmcnt(0)
        s_barrier
        ds_read_b128 {vr(YH,4)}, {vr(lRow)} offset:{YIMG}""")
        lv = g.lab('yv')
        e(f"""s_cmp_lg_u32 {sr(sRowU)}, 0
        s_cbranch_scc1 {lv}
        ds_read_b128 {vr(YV,4)}, {vr(lRow)} offset:{YIMG+4096}
        {lv}:""")
        lk = g.lab('nok2')
        e(f's_bitcmp0_b32 {sr(sW)}, 0\ns_cbranch_scc1 {lk}')
        poll(ws_load_text(4, KT, t(16), sr(sT3)), range(KT, KT+4), preloaded=True)
        e('s_waitcnt lgkmcnt(0)')
        for k in range(4): e(f'v_pk_add_f16 {vr(YH+k)}, {vr(YH+k)}, {vr(KT+k)}')
        e(f'{lk}:\ns_waitcnt lgkmcnt(0)')
    def add_y(yu, yv):
        for k in range(4):
            e(f"""v_fma_mix_f32 {vr(XU+2*k)}, {vr(yu+k)}, {sr(s16)}, {vr(XU+2*k)} op_sel:[0,0,0] op_sel_hi:[1,0,0]
            v_fma_mix_f32 {vr(XU+2*k+1)}, {vr(yu+k)}, {sr(s16)}, {vr(XU+2*k+1)} op_sel:[1,0,0] op_sel_hi:[1,0,0]""")
        for k in range(4):
            e(f"""v_fma_mix_f32 {vr(XV+2*k)}, {vr(yv+k)}, {sr(s16)}, {vr(XV+2*k)} op_sel:[0,0,0] op_sel_hi:[1,0,0]
            v_fma_mix_f32 {vr(XV+2*k+1)}, {vr(yv+k)}, {sr(s16)}, {vr(XV+2*k+1)} op_sel:[1,0,0] op_sel_hi:[1,0,0]""")
    def add_y_pair(y=None):
        YH, YV = y or YY
        ls = g.lab('ysp'); lj = g.lab('yj')
        e(f's_cmp_eq_u32 {sr(sRowU)}, 0\ns_cbranch_scc1 {ls}')
        add_y(YH, YH)
        e(f'{lj}:')
        g.late.append((ls, lj, YH, YV))
    g.late = []

    def make_key():
        e(f"""v_ashrrev_i32 {vr(t(22))}, 31, {vr(hR)}
        v_or_b32 {vr(t(22))}, 0x80000000, {vr(t(22))}
        v_xor_b32 {vr(t(22))}, {vr(hR)}, {vr(t(22))}
        v_and_b32 {vr(t(22))}, 0xfffff800, {vr(t(22))}
        v_or_b32 {vr(t(22))}, {vr(vRowH)}, {vr(t(22))}
        v_readlane_b32 {sr(sKeyU)}, {vr(t(22))}, 0
        v_readlane_b32 {sr(sKeyV)}, {vr(t(22))}, 32
        s_lshl_b32 {sr(sT)}, {sr(sW)}, 2
        v_mov_b32 {vr(t(23))}, {sr(sT)}
        s_max_u32 {sr(sKey)}, {sr(sKeyU)}, {sr(sKeyV)}
        v_mov_b32 {vr(t(22))}, {sr(sKey)}
        ds_write_b32 {vr(t(23))}, {vr(t(22))} offset:{AM}""")
    def wg_best_read(tmp):
        e(f'v_mov_b32 {vr(tmp+4)}, 0\nds_read_b128 {vr(tmp,4)}, {vr(tmp+4)} offset:{AM}')
    def wg_best_header(cand, tmp):
        ln = g.lab('nohdr')
        e(f"""v_max3_u32 {vr(tmp)}, {vr(tmp)}, {vr(tmp+1)}, {vr(tmp+2)}
        v_max_u32 {vr(tmp)}, {vr(tmp)}, {vr(tmp+3)}
        v_readfirstlane_b32 {sr(sT)}, {vr(tmp)}
        s_cmp_eq_u32 {sr(sT)}, {sr(sKey)}
        s_cselect_b32 {sr(sSgn)}, 1, 0
        s_cbranch_scc0 {ln}
        s_lshl_b32 {sr(sT)}, {sr(sRho)}, 12
        s_add_u32 {sr(sOff)}, {sr(sT)}, {cand}
        v_mov_b32 {vr(tmp+1)}, {sr(sKey)}
        s_mov_b64 exec, 1
        buffer_store_dword {vr(tmp+1)}, {vr(tmp+4)}, {sr(sWS,4)}, {sr(sOff)} offen sc1
        s_mov_b64 exec, -1
        {ln}:""")
    def publish_rows(cand):
        ln = g.lab('nopub'); lv = g.lab('pubv'); lj = g.lab('pubj')
        e(f's_cmp_eq_u32 {sr(sSgn)}, 0\ns_cbranch_scc1 {ln}')
        e(f"""s_lshl_b32 {sr(sT)}, {sr(sRho)}, 12
        s_add_u32 {sr(sOff)}, {sr(sT)}, {cand}
        s_cmp_gt_u32 {sr(sKeyV)}, {sr(sKeyU)}
        s_cbranch_scc1 {lv}""")
        for (lab_, X_, A_, C_) in ((None, XU, sAu, sCu), (lv, XV, sAv, sCv)):
            if lab_: e(f'{lab_}:')
            e(f"""v_rcp_f32 {vr(t(0))}, {sr(A_)}
            v_mov_b32 {vr(t(1))}, {sr(A_+1)}
            v_mov_b32 {vr(t(2))}, {sr(A_)}
            v_add_f32 {vr(t(2))}, -1.0, {vr(t(2))}
            v_subrev_f32 {vr(t(3))}, {sr(C_)}, {vr(t(1))}
            v_mul_f32 {vr(t(4))}, {vr(t(2))}, {vr(t(0))}
            v_fma_f32 {vr(t(6))}, -{vr(t(4))}, {vr(t(1))}, {vr(t(3))}""")
            Z = t(8)
            for k in range(4): e(f'v_pk_fma_f32 {vr(Z+2*k,2)}, {vr(X_+2*k,2)}, {vr(t(4),2)}, {vr(t(6),2)} op_sel_hi:[1,0,0]')
            if X_ == XU:
                for k in range(4): e(f'v_cvt_pk_bf16_f32 {vr(t(16)+k)}, {vr(Z+2*k)}, {vr(Z+2*k+1)}')
                e(f"""v_lshlrev_b32 {vr(t(1))}, 4, {vr(vL)}
                v_lshlrev_b32 {vr(t(2))}, 5, {vr(vL)}
                buffer_store_dwordx4 {vr(t(16),4)}, {vr(t(1))}, {sr(sWS,4)}, {sr(sOff)} offen offset:128 sc1
                buffer_store_dwordx4 {vr(XU,4)}, {vr(t(2))}, {sr(sWS,4)}, {sr(sOff)} offen offset:1152 sc1
                buffer_store_dwordx4 {vr(XU+4,4)}, {vr(t(2))}, {sr(sWS,4)}, {sr(sOff)} offen offset:1168 sc1
                s_branch {lj}""")
            else:
                e(f"""v_mov_b32_dpp {vr(t(20))}, {vr(Z)} wave_rol:1 {DPP}
                v_mov_b32_dpp {vr(t(24))}, {vr(XV)} wave_rol:1 {DPP}
                v_cvt_pk_bf16_f32 {vr(t(17))}, {vr(Z+6)}, {vr(Z+5)}
                v_cvt_pk_bf16_f32 {vr(t(18))}, {vr(Z+4)}, {vr(Z+3)}
                v_cvt_pk_bf16_f32 {vr(t(19))}, {vr(Z+2)}, {vr(Z+1)}
                v_cvt_pk_bf16_f32 {vr(t(16))}, {vr(t(20))}, {vr(Z+7)}""")
                for k in range(1, 8): e(f'v_mov_b32 {vr(t(24)+k)}, {vr(XV+8-k)}')
                e(f"""v_lshlrev_b32 {vr(t(1))}, 4, {vr(vL)}
                v_sub_u32 {vr(t(1))}, 1008, {vr(t(1))}
                v_lshlrev_b32 {vr(t(2))}, 1, {vr(t(1))}
                buffer_store_dwordx4 {vr(t(16),4)}, {vr(t(1))}, {sr(sWS,4)}, {sr(sOff)} offen offset:128 sc1
                buffer_store_dwordx4 {vr(t(24),4)}, {vr(t(2))}, {sr(sWS,4)}, {sr(sOff)} offen offset:1152 sc1
                buffer_store_dwordx4 {vr(t(28),4)}, {vr(t(2))}, {sr(sWS,4)}, {sr(sOff)} offen offset:1168 sc1""")
        e(f'{lj}:\n{ln}:')

    def header_load(cand, K):
        e(f's_mov_b32 {sr(sOff)}, {cand}')
        e(ws_load_text(1, K, aHdr, sr(sOff)))
    def argmax(cand, K, after_check=None):
        e(f's_mov_b32 {sr(sOff)}, {cand}')
        poll(ws_load_text(1, K, aHdr, sr(sOff)), [K], preloaded=True, backoff=4)
        if after_check: after_check()
        wave_reduce([K], [t(1)], op='v_max_u32')
        e(f"""s_lshl_b32 {sr(sT)}, {sr(sW)}, 2
        v_mov_b32 {vr(t(1))}, {sr(sT)}
        ds_write_b32 {vr(t(1))}, {vr(K)} offset:{AM+32}
        v_mov_b32 {vr(t(1))}, 0
        s_waitcnt lgkmcnt(0)
        s_barrier
        ds_read_b128 {vr(t(4),4)}, {vr(t(1))} offset:{AM+32}
        s_waitcnt lgkmcnt(0)
        v_max3_u32 {vr(t(4))}, {vr(t(4))}, {vr(t(5))}, {vr(t(6))}
        v_max_u32 {vr(t(4))}, {vr(t(4))}, {vr(t(7))}
        v_readfirstlane_b32 {sr(sKey)}, {vr(t(4))}""")
        e(f"""s_and_b32 {sr(sStar)}, {sr(sKey)}, 2047
        s_lshr_b32 {sr(sT)}, {sr(sStar)}, 2
        s_sub_u32 {sr(sT2)}, 511, {sr(sT)}
        s_sub_u32 {sr(sT3)}, 512, {sr(sT)}
        s_and_b32 {sr(sT3)}, {sr(sT3)}, 255
        s_and_b32 {sr(sRec)}, {sr(sStar)}, 3
        s_cmp_eq_u32 {sr(sRec)}, 0
        s_cselect_b32 {sr(sT2)}, {sr(sT3)}, {sr(sT2)}
        s_cmp_lt_u32 {sr(sStar)}, 1024
        s_cselect_b32 {sr(sT2)}, {sr(sT)}, {sr(sT2)}
        s_lshl_b32 {sr(sRec)}, {sr(sT2)}, 12
        s_add_u32 {sr(sRec)}, {sr(sRec)}, {cand}""")
    def sigmoid_of_key():
        e(f"""s_and_b32 {sr(sT)}, {sr(sKey)}, 0xfffff800
        s_or_b32 {sr(sT)}, {sr(sT)}, 0x400
        s_ashr_i32 {sr(sT2)}, {sr(sT)}, 31
        s_not_b32 {sr(sT2)}, {sr(sT2)}
        s_or_b32 {sr(sT2)}, {sr(sT2)}, 0x80000000
        s_xor_b32 {sr(sT)}, {sr(sT)}, {sr(sT2)}
        v_mov_b32 {vr(vSig)}, {fbits(-1.4426950408889634)}
        v_mul_f32 {vr(vSig)}, {sr(sT)}, {vr(vSig)}
        v_exp_f32 {vr(vSig)}, {vr(vSig)}
        v_add_f32 {vr(vSig)}, 1.0, {vr(vSig)}
        v_rcp_f32 {vr(vSig)}, {vr(vSig)}""")

    def ffn_setup():
        e(f"""v_and_b32 {vr(t(24))}, 3, {vr(vN)}
        v_lshrrev_b32 {vr(t(25))}, 2, {vr(vN)}
        v_lshl_add_u32 {vr(t(25))}, {vr(vQ)}, 3, {vr(t(25))}
        s_lshl_b32 {sr(sT)}, {sr(sW)}, 7
        v_add_u32 {vr(t(25))}, {sr(sT)}, {vr(t(25))}
        v_lshlrev_b32 {vr(t(25))}, 4, {vr(t(25))}
        v_and_b32 {vr(t(27))}, 1, {vr(t(24))}
        v_lshl_add_u32 {vr(t(25))}, {vr(t(27))}, 3, {vr(t(25))}
        v_lshrrev_b32 {vr(t(27))}, 1, {vr(t(24))}
        v_lshl_add_u32 {vr(t(25))}, {vr(t(27))}, 13, {vr(t(25))}
        v_lshlrev_b32 {vr(t(26))}, 2, v0""")
        g.nbar_mark = sum(1 for l in g.L if l == 's_barrier')
        e('s_barrier')
        for kap in range(4):
            for h in range(2):
                e(f'ds_read_b64_tr_b16 {vr(FA+4*kap+2*h,2)}, {vr(t(25))} offset:{GU + kap*512 + h*64}')
        for f in range(8): e(f'ds_read_b32 {vr(t(28)+f)}, {vr(t(26))} offset:{DN + f*1024}')
        e('s_waitcnt lgkmcnt(0)')
        for f in range(8):
            e(f'v_lshlrev_b32 {vr(FD+2*f)}, 16, {vr(t(28)+f)}\nv_and_b32 {vr(FD+2*f+1)}, 0xffff0000, {vr(t(28)+f)}')
    def loader():
        e('L_loader:')
        lst = [0]
        def lstamp():
            if not stamps: return
            e(f's_memrealtime {sr(sTm,2)}\ns_waitcnt lgkmcnt(0)\nv_writelane_b32 {vr(vStamp)}, {sr(sTm)}, {lst[0]}'); lst[0] += 1
        if stamps: e(f'v_mov_b32 {vr(vStamp)}, 0')
        lstamp()
        if not opt.get('nohint'):
            lh = g.lab('nohint')
            e(f's_cmp_lt_u32 {sr(sWg)}, 248\ns_cbranch_scc1 {lh}')
            srd(sT4, kx, 2097152); srd(sWS, sKC, WS_SIZE)
            e(f'''s_lshl_b32 {sr(sT2)}, {sr(sRho)}, 12
            v_lshlrev_b32 {vr(t(1))}, 4, {vr(vL)}
            v_add_u32 {vr(t(2))}, {sr(sT2)}, {vr(t(1))}
            v_mov_b32 {vr(t(4))}, {NONCE}
            buffer_load_dword {vr(t(3))}, {vr(t(2))}, {sr(sT4,4)}, 0 offen
            buffer_load_dword {vr(t(4))}, {vr(t(4))}, {sr(sWS,4)}, 0 offen
            s_and_b32 {sr(sT)}, {sr(sWg)}, 7
            s_lshl_b32 {sr(sT)}, {sr(sT)}, 8
            v_mov_b32 {vr(t(5))}, {sr(sT)}
            s_waitcnt vmcnt(0)
            v_add_u32 {vr(t(4))}, 1, {vr(t(4))}
            s_mov_b64 exec, 1''')
            ws_store(1, t(4), t(5), HINT)
            e(f's_mov_b64 exec, -1\n{lh}:')
        lstamp()
        if opt.get('lpf') == 'lin':
            e(f"""s_mul_i32 {sr(sT)}, {sr(sWg)}, 5632
            v_min_u32 {vr(t(4))}, 43, {vr(vL)}
            v_lshlrev_b32 {vr(t(4))}, 7, {vr(t(4))}
            v_add_u32 {vr(t(4))}, {sr(sT)}, {vr(t(4))}""")
            for ptr in (kwg, kwu):
                srd(sT4, ptr, 1409024)
                e(f'buffer_load_dword {vr(t(6))}, {vr(t(4))}, {sr(sT4,4)}, 0 offen')
        elif opt.get('lpf'):
            e(f"""s_lshr_b32 {sr(sT)}, {sr(sRho)}, 5
            s_cmp_ge_u32 {sr(sT)}, 6
            s_cbranch_scc1 L_end
            v_lshlrev_b32 {vr(t(1))}, 4, {vr(vL)}""")
            srd(sT4, kx, 2097152)
            e(f"""s_lshl_b32 {sr(sT2)}, {sr(sRho)}, 12
            v_add_u32 {vr(t(2))}, {sr(sT2)}, {vr(t(1))}
            buffer_load_dword {vr(t(3))}, {vr(t(2))}, {sr(sT4,4)}, 0 offen
            s_lshl_b32 {sr(sT)}, {sr(sT)}, 9
            s_and_b32 {sr(sT2)}, {sr(sRho)}, 31
            s_lshl_b32 {sr(sT2)}, {sr(sT2)}, 4
            v_lshrrev_b32 {vr(t(4))}, 2, {vr(vL)}
            v_add_u32 {vr(t(4))}, {sr(sT2)}, {vr(t(4))}
            s_movk_i32 {sr(sT3)}, 2752
            v_mul_lo_u32 {vr(t(4))}, {vr(t(4))}, {sr(sT3)}
            v_and_b32 {vr(t(5))}, 3, {vr(vL)}
            v_lshlrev_b32 {vr(t(5))}, 7, {vr(t(5))}
            s_max_u32 {sr(sT)}, {sr(sT)}, 16
            s_sub_u32 {sr(sT)}, {sr(sT)}, 16
            v_add3_u32 {vr(t(4))}, {vr(t(4))}, {vr(t(5))}, {sr(sT)}
            v_sub_u32 {vr(t(5))}, {vr(t(4))}, {vr(t(5))}
            v_add_u32 {vr(t(5))}, 512, {vr(t(5))}""")
            if opt.get('lpf') != 'now': e('s_waitcnt vmcnt(0)')
            for ptr in (kwg, kwu):
                srd(sT4, ptr, 1409024)
                e(f"""buffer_load_dword {vr(t(6))}, {vr(t(4))}, {sr(sT4,4)}, 0 offen
                buffer_load_dword {vr(t(7))}, {vr(t(5))}, {sr(sT4,4)}, 0 offen""")
        e(f"""s_cmp_ge_u32 {sr(sPhi)}, {NF}
        s_cbranch_scc1 L_end""")
        e(f"""s_movk_i32 {sr(sT3)}, 2752
        v_mul_lo_u32 {vr(t(0))}, {vr(vL)}, {sr(sT3)}
        s_lshl_b32 {sr(sT2)}, {sr(sPhi)}, 4
        v_add_u32 {vr(t(0))}, {sr(sT2)}, {vr(t(0))}
        v_lshlrev_b32 {vr(t(1))}, 4, {vr(vL)}""")
        def gu(ptr, lds, ks=range(8)):
            srd(sT4, ptr, 1409024)
            for k in ks:
                e(f"""s_add_u32 {sr(sT)}, {sr(sPhi)}, {k}
                s_and_b32 {sr(sT)}, {sr(sT)}, 7
                s_lshl_b32 {sr(sT2)}, {sr(sT)}, 10
                s_add_u32 m0, {sr(sT2)}, {lds}
                s_mul_i32 {sr(sOff)}, {sr(sT)}, {64*2752}
                buffer_load_dwordx4 {vr(t(0))}, {sr(sT4,4)}, {sr(sOff)} offen {opt.get('wfl','')} lds""")
        def dn():
            srd(sT4, kwd, 1409024)
            e(f's_lshl_b32 {sr(sT2)}, {sr(sPhi)}, 13')
            for f in range(8):
                e(f"""s_mov_b32 m0, {DN + 1024*f}
                s_add_u32 {sr(sOff)}, {sr(sT2)}, {1024*f}
                buffer_load_dwordx4 {vr(t(1))}, {sr(sT4,4)}, {sr(sOff)} offen {opt.get('wfl','')} lds""")
        if opt.get('lwait'):
            srd(sT4, kx, 2097152)
            e(f's_lshl_b32 {sr(sT)}, {sr(sRho)}, 12\nv_add_u32 {vr(t(2))}, {sr(sT)}, {vr(t(1))}\nbuffer_load_dword {vr(t(3))}, {vr(t(2))}, {sr(sT4,4)}, 0 offen\ns_waitcnt vmcnt(0)')
        plan = {int(x.split(':')[0]): x.split(':')[1] for x in opt.get('lplan', '0:gud').split('/')}
        if opt.get('lcnt'):
            cnt = [int(x) for x in opt['lcnt'].split('.')]; assert sum(cnt) == 16
            dpos = int(opt.get('ldpos', 0)); nxt = 0
            for k in range(g.nbar_mark + 1):
                if k == dpos: dn()
                for j in range(cnt[k] if k < len(cnt) else 0):
                    gu(kwg if nxt < 8 else kwu, GU + (0 if nxt < 8 else 8192), [nxt & 7]); nxt += 1
                lstamp()
                if k < g.nbar_mark: e('s_barrier')
            plan = None
        for k in range(g.nbar_mark + 1 if plan is not None else 0):
            for c in plan.get(k, ''):
                {'g': lambda: gu(kwg, GU), 'u': lambda: gu(kwu, GU + 8192), 'd': dn,
                 'a': lambda: gu(kwg, GU, range(0, 4)), 'b': lambda: gu(kwg, GU, range(4, 8)),
                 'c': lambda: gu(kwu, GU + 8192, range(0, 4)), 'e': lambda: gu(kwu, GU + 8192, range(4, 8))}[c]()
            if k < g.nbar_mark: e('s_barrier')
        e('s_waitcnt vmcnt(0)')
        lstamp()
        e('s_barrier\nL_end:')
        if stamps:
            srd(sWS, sKC, WS_SIZE)
            e(f'''s_lshl_b32 {sr(sT)}, {sr(sWg)}, 11
            s_add_u32 {sr(sT)}, {sr(sT)}, 1024
            v_lshlrev_b32 {vr(t(0))}, 2, {vr(vL)}
            v_add_u32 {vr(t(0))}, {sr(sT)}, {vr(t(0))}
            s_mov_b32 {sr(sOff)}, {STAMP}
            buffer_store_dword {vr(vStamp)}, {vr(t(0))}, {sr(sWS,4)}, {sr(sOff)} offen''')
        e('s_endpgm')

    XS = t(0)
    def xsel_text():
        return '\n'.join(f'buffer_load_dwordx4 {vr(XS+4*k,4)}, {vr(t(20))}, {sr(sWS,4)}, {sr(sRec)} offen offset:{128+64*k} sc1' for k in range(4))
    def xsel_load():
        e(f"""s_lshl_b32 {sr(sT)}, {sr(sW)}, 8
        v_lshlrev_b32 {vr(t(20))}, 4, {vr(vQ)}
        v_add_u32 {vr(t(20))}, {sr(sT)}, {vr(t(20))}""")
        e(xsel_text())
    def ffn(part):
        ln = g.lab('noffn')
        e(f's_cmp_ge_u32 {sr(sPhi)}, {NF}\ns_cbranch_scc1 {ln}')
        poll(xsel_text(), range(XS, XS+16), preloaded=True)
        Pp = t(16)
        for k in range(4):
            e(f'v_mfma_f32_16x16x32_bf16 {vr(Pp,4)}, {vr(FA+4*k,4)}, {vr(XS+4*k,4)}, {"0" if k==0 else vr(Pp,4)}')
        e(f"""v_lshlrev_b32 {vr(t(21))}, 6, {vr(vQ)}
        s_lshl_b32 {sr(sT)}, {sr(sW)}, 2
        v_add_u32 {vr(t(21))}, {sr(sT)}, {vr(t(21))}
        v_and_b32 {vr(t(22))}, 31, {vr(vL)}
        v_lshlrev_b32 {vr(t(22))}, 2, {vr(t(22))}
        s_mov_b32 exec_lo, 0x00010001
        s_mov_b32 exec_hi, 0x00010001""")
        for i in range(4): e(f'ds_write_b32 {vr(t(21))}, {vr(Pp+i)} offset:{FP + 16*i}')
        e(f"""s_mov_b64 exec, -1
        s_waitcnt lgkmcnt(0)
        s_barrier
        ds_read_b32 {vr(t(12))}, {vr(t(22))} offset:{FP}
        ds_read_b32 {vr(t(13))}, {vr(t(22))} offset:{FP+128}
        s_waitcnt lgkmcnt(0)""")
        gg, uu = t(12), t(13)
        for mod in ('quad_perm:[1,0,3,2]', 'quad_perm:[2,3,0,1]'):
            e(f'v_add_f32_dpp {vr(gg)}, {vr(gg)}, {vr(gg)} {mod} {DPP}\nv_add_f32_dpp {vr(uu)}, {vr(uu)}, {vr(uu)} {mod} {DPP}')
        e(f"""v_mul_f32 {vr(t(14))}, {fbits(-1.4426950408889634)}, {vr(gg)}
        v_exp_f32 {vr(t(14))}, {vr(t(14))}
        v_mul_f32 {vr(uu)}, {vr(uu)}, {vr(vSig)}
        v_add_f32 {vr(t(14))}, 1.0, {vr(t(14))}
        v_rcp_f32 {vr(t(14))}, {vr(t(14))}
        v_mul_f32 {vr(gg)}, {vr(gg)}, {vr(uu)}
        v_mul_f32 {vr(gg)}, {vr(gg)}, {vr(t(14))}""")
        for f in range(8): e(f'v_readlane_b32 {sr(sH+f)}, {vr(gg)}, {4*f}')
        acc = t(16)
        for f in range(8):
            sel = 'op_sel_hi:[1,0,1]' if f % 2 == 0 else 'op_sel:[0,1,0] op_sel_hi:[1,1,1]'
            if f == 0: e(f'v_pk_mul_f32 {vr(acc,2)}, {vr(FD,2)}, {sr(sH,2)} op_sel_hi:[1,0]')
            else: e(f'v_pk_fma_f32 {vr(acc,2)}, {vr(FD+2*f,2)}, {sr(sH + (f & ~1),2)}, {vr(acc,2)} {sel}')
        ws_store(2, acc, aP8, part)
        e(f'{ln}:')

    def reducer(part, final):
        ln = g.lab('nored')
        red_index()
        e(f"""s_cmp_ge_u32 {sr(sT3)}, 32
        s_cbranch_scc1 {ln}""")
        if not final and not opt.get('oldred'): e('s_waitcnt vmcnt(0)')
        if final and opt.get('redsleep'): e(f's_sleep {opt["redsleep"]}')
        NLD = (NF + 15)//16
        e(f"""v_lshrrev_b32 {vr(t(20))}, 4, v0
        v_and_b32 {vr(t(22))}, 15, v0
        v_lshlrev_b32 {vr(t(22))}, 2, {vr(t(22))}
        s_lshl_b32 {sr(sT)}, {sr(sT3)}, 6
        v_add_u32 {vr(t(25))}, {sr(sT)}, {vr(t(22))}
        v_lshl_add_u32 {vr(t(21))}, {vr(t(20))}, 11, {vr(t(25))}
        v_add_u32 {vr(t(23))}, {16*(NLD-1)*2048}, {vr(t(21))}
        v_mov_b32 {vr(t(24))}, 0x7f000000
        v_cmp_gt_u32 vcc, {NF - 16*(NLD-1)}, {vr(t(20))}
        v_cndmask_b32 {vr(t(23))}, {vr(t(24))}, {vr(t(23))}, vcc""")
        A = t(0); B4 = t(12)
        lds_ = []
        for k in range(NLD - 1):
            lds_.append(f's_mov_b32 {sr(sOff)}, {part + 16*k*2048}\n' + ws_load_text(1, A+k, t(21), sr(sOff)))
        lds_.append(f's_mov_b32 {sr(sOff)}, {part}\n' + ws_load_text(1, A+NLD-1, t(23), sr(sOff)))
        regs = list(range(A, A+NLD))
        if final:
            lds_.append(ws_load_text(1, B4, t(25), sr(sRec), 'offset:1152')); regs.append(B4)
        poll('\n'.join(lds_), regs)
        n = NLD
        while n > 1:
            h = n//2
            for k in range(h): e(f'v_add_f32 {vr(A+k)}, {vr(A+k)}, {vr(A+n-1-k)}')
            n -= h
        for sw in ('v_permlane16_swap_b32', 'v_permlane32_swap_b32'):
            e(f'v_mov_b32 {vr(A+1)}, {vr(A)}\n{sw} {vr(A)}, {vr(A+1)}\nv_add_f32 {vr(A)}, {vr(A)}, {vr(A+1)}')
        e(f"""s_lshl_b32 {sr(sT)}, {sr(sW)}, 2
        v_lshl_add_u32 {vr(t(24))}, {vr(t(22))}, 2, {sr(sT)}
        v_lshlrev_b32 {vr(t(26))}, 2, {vr(t(22))}
        s_mov_b64 exec, 0xffff
        ds_write_b32 {vr(t(24))}, {vr(A)} offset:{RED}
        s_mov_b64 exec, -1
        s_waitcnt lgkmcnt(0)
        s_barrier
        s_cmp_lg_u32 {sr(sW)}, 0
        s_cbranch_scc1 {ln}
        ds_read_b128 {vr(t(28),4)}, {vr(t(26))} offset:{RED}
        s_waitcnt lgkmcnt(0)
        v_add_f32 {vr(t(28))}, {vr(t(28))}, {vr(t(29))}
        v_add_f32 {vr(t(30))}, {vr(t(30))}, {vr(t(31))}
        v_add_f32 {vr(t(28))}, {vr(t(28))}, {vr(t(30))}""")
        if final:
            e(f"""v_add_f32 {vr(t(28))}, {vr(t(28))}, {vr(B4)}
            s_lshl_b32 {sr(sT)}, {sr(sStar)}, 10
            v_lshrrev_b32 {vr(t(25))}, 1, {vr(t(25))}
            v_mov_b32_dpp {vr(t(29))}, {vr(t(28))} quad_perm:[1,0,3,2] {DPP}
            v_add_u32 {vr(t(25))}, {sr(sT)}, {vr(t(25))}
            v_cvt_pk_bf16_f32 {vr(t(28))}, {vr(t(28))}, {vr(t(29))}
            s_mov_b64 exec, 0x5555
            buffer_store_dword {vr(t(28))}, {vr(t(25))}, {sr(sOUT,4)}, 0 offen sc1
            s_mov_b64 exec, -1""")
        else:
            e(f"""s_mov_b32 {sr(sOff)}, {UPD0}
            s_mov_b64 exec, 0xffff
            buffer_store_dword {vr(t(28))}, {vr(t(25))}, {sr(sWS,4)}, {sr(sOff)} offen sc1
            s_mov_b64 exec, -1""")
        e(f'{ln}:')

    if opt.get('addrvalu'): addr_p1()
    if opt.get('rowvalu'): row_consts()
    stamp('preamble')
    e(f's_waitcnt vmcnt({N_ALL-1})\nv_readfirstlane_b32 {sr(sTag)}, {vr(vCa)}\ns_add_u32 {sr(sTag)}, {sr(sTag)}, 1')
    stamp('x0')
    unpack_nat(XU, URAW); unpack_rev(XV, VRAW, t(16))
    stats2(False)
    norm_coeffs(hRho, hB)
    make_g()
    e(f's_waitcnt vmcnt({N_ALL - N_ROWTAB})')
    transform(HB0, tagged=True, pre_store=lambda: e(f's_waitcnt vmcnt({N_ALL - N_POISON})'))
    stamp('P1 stored')
    finish_here('P1')
    special_k(KB0, False)
    srd(sT4, kwr, 1024)
    e(f'''v_lshlrev_b32 {vr(t(2))}, 4, {vr(vL)}
    v_sub_u32 {vr(t(3))}, 1008, {vr(t(2))}
    buffer_load_dwordx4 {vr(WURAW,4)}, {vr(t(2))}, {sr(sT4,4)}, 0 offen
    buffer_load_dwordx4 {vr(WVRAW,4)}, {vr(t(3))}, {sr(sT4,4)}, 0 offen''')
    if opt.get('addrvalu'):
        for k in (2, 3):
            e(f'v_add_u32 {vr(t(4))}, {TOFF["addr"] + 4096*k}, {vr(lG)}\nglobal_load_dwordx4 {vr(AD+4*k,4)}, {vr(t(4))}, {sr(sPC,2)}')
    addr_misc()
    if not opt.get('addrvalu'): addr_ym4()
    LATE = opt.get('latepois', '0') == '1'
    red_index()
    e(f"""s_lshl_b32 {sr(sT)}, {sr(sT3)}, 6
    v_lshlrev_b32 {vr(t(10))}, 2, v0
    v_add_u32 {vr(t(10))}, {sr(sT)}, {vr(t(10))}
    v_cmp_gt_u32 vcc, 16, v0
    s_cmp_lt_u32 {sr(sT3)}, 32
    s_cselect_b64 {sr(sEx,2)}, vcc, 0
    v_mov_b32 {vr(t(11))}, 0x7f000000
    v_cndmask_b32 {vr(t(10))}, {vr(t(11))}, {vr(t(10))}, {sr(sEx,2)}""")
    def poison1():
        poison_regs()
        if EP < 1:
            ws_store(4, PZ, aP16, HB1); ws_store(4, PZ, aP16, CAND0)
        if EP < 3: ws_store(2, PZ, aP8, PART0)
        ws_store(1, PZ, t(10), UPD0)
    def poison2():
        if EP >= 3: return
        poison_regs()
        if EP < 2:
            ws_store(4, PZ, aP16, YB1); ws_store(4, PZ, aP16, CAND1)
        ws_store(2, PZ, aP8, PART1)
    if not LATE: poison1()
    e(f's_bfe_u32 {sr(sT)}, {sr(sRho)}, 0x10003\ns_lshl_b32 {sr(sT)}, {sr(sT)}, 4\nv_xor_b32 {vr(t(39))}, {sr(sT)}, {vr(lG)}')
    e(f'v_add_u32 {vr(t(39))}, {TOFF["addr2"]}, {vr(t(39))}\nglobal_load_dwordx4 {vr(t(44),4)}, {vr(t(39))}, {sr(sPC,2)}')
    if not opt.get('nohint'):
        lh = g.lab('hw')
        e(f'''v_and_b32 {vr(vCa)}, 7, {vr(vL)}
        v_lshlrev_b32 {vr(vCa)}, 8, {vr(vCa)}
        s_cmp_lg_u32 {sr(sW)}, 0
        s_cbranch_scc1 {lh}
        s_mov_b32 {sr(sOff)}, {HINT}''')
        e(ws_load_text(1, vSa, vCa, sr(sOff)))
        e(f'{lh}:')
    col_consts_a()
    if not opt.get('splitc'): col_consts_b()
    stamp('shadow1')
    if not opt.get('nohint'):
        lh = g.lab('hw2'); lp = g.lab('hp')
        e(f'''s_cmp_lg_u32 {sr(sW)}, 0
        s_cbranch_scc1 {lh}
        s_mov_b32 {sr(sCnt)}, 0
        s_mov_b32 {sr(sOff)}, {HINT}
        {lp}:
        s_waitcnt vmcnt(0)
        v_cmp_ne_u32 vcc, {sr(sTag)}, {vr(vSa)}
        s_cbranch_vccz {lh}
        s_add_u32 {sr(sCnt)}, {sr(sCnt)}, 1
        s_cmp_gt_u32 {sr(sCnt)}, {LIMIT}
        s_cbranch_scc1 {lh}
        s_sleep 4''')
        e(ws_load_text(1, vSa, vCa, sr(sOff)))
        e(f's_branch {lp}\n{lh}:\ns_waitcnt vmcnt(0)\ns_barrier')
    if opt.get('ack1'): e('s_waitcnt vmcnt(0)')
    stamp('hint')
    column(HB0, YB0, False, tagged=True, behind_poll=(poison1, 4) if LATE else None)
    stamp('P2 stored')
    finish_here('P2')
    if not LATE: poison2()
    lnn = g.lab('nononce')
    e(f'''s_cmp_lg_u32 {sr(sRowU)}, 0
    s_cbranch_scc1 {lnn}
    v_mov_b32 {vr(t(0))}, {sr(sTag)}
    v_mov_b32 {vr(t(1))}, 0
    s_mov_b64 exec, 1''')
    ws_store(1, t(0), t(1), NONCE)
    e(f's_mov_b64 exec, -1\n{lnn}:')
    if opt.get('addrvalu'): addr_ym4()
    unpack_nat(WU, WURAW); unpack_rev(WV, WVRAW, t(16))
    e(f"""v_pk_add_f32 {vr(t(16),2)}, {vr(WU,2)}, {vr(WU+2,2)}
    v_pk_add_f32 {vr(t(18),2)}, {vr(WU+4,2)}, {vr(WU+6,2)}
    v_pk_add_f32 {vr(t(16),2)}, {vr(t(16),2)}, {vr(t(18),2)}
    v_add_f32 {vr(t(16))}, {vr(t(16))}, {vr(t(17))}""")
    wave_reduce([t(16)], [t(17)])
    e(f'v_readfirstlane_b32 {sr(sSW)}, {vr(t(16))}')
    stamp('shadow2')
    e('s_waitcnt vmcnt(0)')
    row_input(YB0, KB0, behind_poll=(poison2, 3) if LATE else None)
    add_y_pair()
    stats2(True)
    make_key()
    residual_coeffs()
    e(f"""v_mul_f32 {vr(t(23))}, {vr(t(21))}, {vr(t(21))}
    v_mul_f32 {vr(t(23))}, {vr(t(23))}, {vr(hVar)}
    v_add_f32 {vr(t(23))}, {fbits(1e-5)}, {vr(t(23))}
    v_rsq_f32 {vr(t(23))}, {vr(t(23))}
    s_waitcnt lgkmcnt(0)
    s_barrier""")
    wg_best_read(t(24))
    e(f"""v_mul_f32 {vr(t(22))}, {vr(t(21))}, {vr(t(23))}
    v_mul_f32 {vr(t(23))}, -{vr(hM)}, {vr(t(22))}""")
    norm_coeffs(t(22), t(23))
    e('s_waitcnt lgkmcnt(0)')
    if LATE: e('s_waitcnt vmcnt(0)')
    wg_best_header(CAND0, t(24))
    stamp('hdr0')
    make_g()
    transform(HB1, pre_core=lambda: residual_update(XU, XV), post_scatter=lambda: publish_rows(CAND0))
    stamp('P3 stored')
    finish_here('P3')
    K = t(0)
    header_load(CAND0, vSig)
    SETUP_LATE = opt.get('setuplate', '0') == '1'
    if not SETUP_LATE:
        lfs = g.lab('nosetup')
        e(f's_cmp_ge_u32 {sr(sPhi)}, {NF}\ns_cbranch_scc1 {lfs}')
        ffn_setup()
        e(f'{lfs}:')
    special_k(KB1, True)
    e(f's_waitcnt vmcnt(0)\nv_mov_b32 {vr(K)}, {vr(vSig)}')
    argmax(CAND0, K, after_check=lambda: column_load(HB1))
    stamp('argmax0')
    lb = g.lab('nobase')
    e(f"""s_cmp_ge_u32 {sr(sW)}, 2
    s_cbranch_scc1 {lb}
    v_lshlrev_b32 {vr(t(21))}, 5, {vr(vL)}
    buffer_load_dwordx4 {vr(FX,4)}, {vr(t(21))}, {sr(sWS,4)}, {sr(sRec)} offen offset:1152 sc1
    buffer_load_dwordx4 {vr(FX+4,4)}, {vr(t(21))}, {sr(sWS,4)}, {sr(sRec)} offen offset:1168 sc1
    {lb}:""")
    lb = g.lab('nox')
    e(f's_cmp_ge_u32 {sr(sPhi)}, {NF}\ns_cbranch_scc1 {lb}')
    xsel_load()
    if SETUP_LATE: ffn_setup()
    e(f'{lb}:')
    sigmoid_of_key()
    e(f"""s_mul_i32 {sr(sT)}, {sr(sRowU)}, {sr(sStar)}
    s_and_b32 {sr(sT)}, {sr(sT)}, 2047
    v_cvt_f32_u32 {vr(vCa)}, {sr(sT)}
    v_mul_f32 {vr(vCa)}, {fbits(1/2048)}, {vr(vCa)}
    v_sin_f32 {vr(vSa)}, {vr(vCa)}
    v_cos_f32 {vr(vCa)}, {vr(vCa)}
    v_mul_f32 {vr(vSa)}, {fbits(1/32)}, {vr(vSa)}
    v_mul_f32 {vr(vCa)}, {fbits(1/32)}, {vr(vCa)}
    v_cvt_pk_f16_f32 {vr(vSa)}, {vr(vSa)}, {vr(vSa)}
    v_cvt_pk_f16_f32 {vr(vCa)}, {vr(vCa)}, {vr(vCa)}
    s_waitcnt vmcnt(0)""")
    stamp('xsel')
    ffn(PART0)
    stamp('ffn0')
    column(HB1, YB1, True)
    stamp('P4 stored')
    finish_here('P4')
    reducer(PART0, False)
    stamp('red0')
    lb = g.lab('nobase')
    e(f's_cmp_ge_u32 {sr(sW)}, 2\ns_cbranch_scc1 {lb}')
    e(f'v_lshlrev_b32 {vr(t(21))}, 5, {vr(vL)}')
    poll(f'buffer_load_dwordx4 {vr(FX,4)}, {vr(t(21))}, {sr(sWS,4)}, {sr(sRec)} offen offset:1152 sc1\n'
         f'buffer_load_dwordx4 {vr(FX+4,4)}, {vr(t(21))}, {sr(sWS,4)}, {sr(sRec)} offen offset:1168 sc1', range(FX, FX+8), preloaded=True)
    stats1(FX, t(0), None)
    e(f'''v_mov_b32 {vr(t(20))}, {sr(sKu+1)}
    v_mov_b32 {vr(t(21))}, {sr(sKu)}
    v_fma_f32 {vr(t(20))}, -{vr(t(21))}, {sr(sCu)}, {vr(t(20))}
    s_mov_b32 {sr(sKv)}, {sr(sKu)}
    v_readfirstlane_b32 {sr(sKv+1)}, {vr(t(20))}''')
    e(f'{lb}:')
    e('s_waitcnt vmcnt(0)')
    YH, YV = FO, FO + 4
    row_input(YB1, KB1, ydst=(YH, YV))
    FP0, FPS = lCa, lCb
    e(f'''v_lshl_add_u32 {vr(FP0)}, {vr(vQ)}, 7, {vr(vN)}
    v_lshlrev_b32 {vr(t(1))}, 7, {vr(vQ)}
    v_sub_u32 {vr(t(1))}, {32*23}, {vr(t(1))}
    v_add_u32 {vr(t(1))}, {vr(t(1))}, {vr(vN)}
    v_cmp_gt_u32 vcc, 2, {vr(vQ)}
    v_mov_b32 {vr(FPS)}, 64
    v_mov_b32 {vr(t(3))}, -64
    v_cndmask_b32 {vr(FP0)}, {vr(t(1))}, {vr(FP0)}, vcc
    v_cndmask_b32 {vr(FPS)}, {vr(t(3))}, {vr(FPS)}, vcc
    v_lshlrev_b32 {vr(FP0)}, 1, {vr(FP0)}
    s_lshl_b32 {sr(sT)}, {sr(sW)}, 10
    v_add_u32 {vr(FP0)}, {sr(sT)}, {vr(FP0)}''')
    stamp('y1 read')
    lj = g.lab('fixj'); lq = g.lab('fix'); lu = g.lab('ownu'); lv = g.lab('ownv')
    U = t(16)
    updld = lambda areg: (ws_load_text(4, U, areg, sr(sOff)) + '\n' + ws_load_text(4, U+4, areg, sr(sOff), 'offset:16'))
    def owner_add():
        l1 = g.lab('nu'); l2 = g.lab('nv')
        e(f's_cmp_lg_u32 {sr(sStar)}, {sr(sRowU)}\ns_cbranch_scc1 {l1}')
        for k in range(4): e(f'v_pk_add_f32 {vr(XU+2*k,2)}, {vr(XU+2*k,2)}, {vr(U+2*k,2)}')
        e(f'{l1}:')
    e(f"""v_lshlrev_b32 {vr(t(44))}, 5, {vr(vL)}
    s_mov_b32 {sr(sOff)}, {UPD0}""")
    lnv = g.lab('notv')
    e(f"""s_cmp_lg_u32 {sr(sStar)}, {sr(sRowV)}
    s_cbranch_scc1 {lnv}
    v_sub_u32 {vr(t(45))}, {63*32}, {vr(t(44))}""")
    poll(updld(t(45)), range(U, U+8), backoff=4)
    e(f'v_mov_b32_dpp {vr(t(46))}, {vr(U)} wave_ror:1 {DPP}')
    for k in range(1, 8): e(f'v_add_f32 {vr(XV+k)}, {vr(XV+k)}, {vr(U+8-k)}')
    e(f'v_add_f32 {vr(XV)}, {vr(XV)}, {vr(t(46))}\n{lnv}:')
    e(f"""s_cmp_lt_u32 {sr(sW)}, 2
    s_cbranch_scc1 {lq}
    s_cmp_lg_u32 {sr(sStar)}, {sr(sRowU)}
    s_cbranch_scc1 {lj}""")
    poll(updld(t(44)), range(U, U+8), backoff=4)
    owner_add()
    e(f's_branch {lj}\n{lq}:')
    poll(updld(t(44)), range(U, U+8), backoff=4)
    stamp('upd')
    owner_add()
    for k in range(4): e(f'v_pk_add_f32 {vr(U+2*k,2)}, {vr(FX+2*k,2)}, {vr(U+2*k,2)}')
    ZD = t(0)
    partial(t(32), U, sCu, None, t(8), t(9), None, t(24))
    wave_reduce([t(8), t(9)], [t(10), t(11)])
    moments(t(8), t(9))
    e(f'''v_mul_f32 {vr(hB)}, -{vr(hM)}, {vr(hRho)}
    v_subrev_f32 {vr(hB)}, {sr(sKv+1)}, {vr(hB)}
    v_readfirstlane_b32 {sr(sKu)}, {vr(hRho)}
    v_readfirstlane_b32 {sr(sKu+1)}, {vr(hB)}''')
    for k in range(4): e(f'v_pk_fma_f32 {vr(ZD+2*k,2)}, {vr(t(32)+2*k,2)}, {sr(sKu,2)}, {sr(sKu,2)} {PKB}')
    for k in range(4): e(f'v_pk_fma_f32 {vr(ZD+2*k,2)}, {vr(FX+2*k,2)}, {sr(sKv,2)}, {vr(ZD+2*k,2)} op_sel_hi:[1,0,1] neg_lo:[0,1,0] neg_hi:[0,1,0]')
    write_n(ZD, t(24)); write_r(ZD, t(40))
    A, B = CA, t(40)
    e(f"""s_mov_b32 {sr(sT)}, 0x3c003c00
    s_cmp_eq_u32 {sr(sW)}, 0
    s_cselect_b32 {sr(sSgn)}, {sr(sT)}, 0xbc00bc00
    ds_read_b64_tr_b16 {vr(A,2)}, {vr(lTr)} offset:{GIMG}
    ds_read_b64_tr_b16 {vr(B,2)}, {vr(lTr)} offset:{RIMG}
    ds_read_b64_tr_b16 {vr(A+2,2)}, {vr(lTr)} offset:{GIMG+128}
    ds_read_b64_tr_b16 {vr(B+2,2)}, {vr(lTr)} offset:{RIMG+128}
    s_waitcnt lgkmcnt(0)""")
    for k in range(4): e(f'v_pk_fma_f16 {vr(A+k)}, {vr(B+k)}, {sr(sSgn)}, {vr(A+k)}')
    core(A, CO)
    for k in range(4): e(f'v_cvt_pk_f16_f32 {vr(t(44)+k)}, {vr(CO+2*k)}, {vr(CO+2*k+1)}')
    for i in range(4):
        op = 'ds_write_b16' if i % 2 == 0 else 'ds_write_b16_d16_hi'
        for Tt in range(2):
            e(f'{op} {vr(FP0)}, {vr(t(44)+2*Tt+i//2)} offset:{RIMG + 2048 + 32*Tt}')
        if i < 3: e(f'v_add_u32 {vr(FP0)}, {vr(FP0)}, {vr(FPS)}')
    e(f"""{lj}:
    s_waitcnt lgkmcnt(0)
    s_barrier
    v_lshlrev_b32 {vr(t(0))}, 4, {vr(vL)}
    ds_read_b128 {vr(t(16),4)}, {vr(t(0))} offset:{RIMG+2048}
    ds_read_b128 {vr(t(20),4)}, {vr(t(0))} offset:{RIMG+2048+1024}
    s_waitcnt lgkmcnt(1)""")
    lsp = g.lab('fsp')
    for k in range(4): e(f'v_pk_fma_f16 {vr(YH+k)}, {vr(t(16)+k)}, {vr(vCa)}, {vr(YH+k)}')
    e(f'''s_cmp_lg_u32 {sr(sRowU)}, 0
    s_cbranch_scc1 {lsp}
    s_mov_b32 {sr(sT)}, 0x28002800
    s_bitcmp0_b32 {sr(sStar)}, 0
    s_cselect_b32 {sr(sT)}, {sr(sT)}, 0xa800a800''')
    for k in range(4): e(f'v_pk_fma_f16 {vr(YV+k)}, {vr(t(16)+k)}, {sr(sT)}, {vr(YV+k)}')
    e(f'{lsp}:\ns_waitcnt lgkmcnt(0)')
    for k in range(4): e(f'v_pk_fma_f16 {vr(YH+k)}, {vr(t(20)+k)}, {vr(vSa)}, {vr(YH+k)}')
    add_y_pair((YH, YV))
    stamp('fixed')
    stats2(True)
    make_key()
    residual_coeffs()
    e('s_waitcnt lgkmcnt(0)\ns_barrier')
    wg_best_read(t(24))
    residual_update(XU, XV)
    e('s_waitcnt lgkmcnt(0)')
    wg_best_header(CAND1, t(24))
    publish_rows(CAND1)
    def out_u():
        for k in range(4): e(f'v_cvt_pk_bf16_f32 {vr(t(24)+k)}, {vr(XU+2*k)}, {vr(XU+2*k+1)}')
        e(f'buffer_store_dwordx4 {vr(t(24),4)}, {vr(aU)}, {sr(sOUT,4)}, 0 offen sc1')
    def out_v():
        e(f"""v_mov_b32_dpp {vr(t(32))}, {vr(XV)} wave_rol:1 {DPP}
        v_cvt_pk_bf16_f32 {vr(t(29))}, {vr(XV+6)}, {vr(XV+5)}
        v_cvt_pk_bf16_f32 {vr(t(30))}, {vr(XV+4)}, {vr(XV+3)}
        v_cvt_pk_bf16_f32 {vr(t(31))}, {vr(XV+2)}, {vr(XV+1)}
        v_cvt_pk_bf16_f32 {vr(t(28))}, {vr(t(32))}, {vr(XV+7)}
        buffer_store_dwordx4 {vr(t(28),4)}, {vr(aV)}, {sr(sOUT,4)}, 0 offen sc1""")
    EARLY = opt.get('early1')
    if EARLY:
        e(f"""s_cmp_gt_u32 {sr(sKeyV)}, {sr(sKeyU)}
        s_cselect_b32 {sr(sH)}, 2, 1
        s_cmp_eq_u32 {sr(sSgn)}, 0
        s_cselect_b32 {sr(sH)}, 0, {sr(sH)}""")
        l1 = g.lab('du'); l2 = g.lab('dv')
        e(f's_cmp_eq_u32 {sr(sH)}, 1\ns_cbranch_scc1 {l1}'); out_u(); e(f'{l1}:')
        e(f's_cmp_eq_u32 {sr(sH)}, 2\ns_cbranch_scc1 {l2}'); out_v(); e(f'{l2}:')
        e(f's_mov_b32 {sr(sH+1)}, {sr(sH)}')
        if EARLY == 'b': e('s_barrier')
        elif EARLY == 'w': e('s_waitcnt vmcnt(0)\ns_barrier')
    else:
        e('s_waitcnt vmcnt(0)\ns_barrier')
    stamp('cand1')
    header_load(CAND1, K)
    e('s_waitcnt vmcnt(0)')
    argmax(CAND1, K)
    stamp('argmax1')
    lb = g.lab('nox')
    e(f's_cmp_ge_u32 {sr(sPhi)}, {NF}\ns_cbranch_scc1 {lb}')
    xsel_load()
    e(f'{lb}:')
    sigmoid_of_key()
    if EARLY:
        l1 = g.lab('eu'); l2 = g.lab('ev')
        e(f's_cmp_lg_u32 {sr(sH+1)}, 1\ns_cbranch_scc1 {l1}\ns_cmp_eq_u32 {sr(sStar)}, {sr(sRowU)}\ns_cbranch_scc1 {l1}'); out_u(); e(f'{l1}:')
        e(f's_cmp_lg_u32 {sr(sH+1)}, 2\ns_cbranch_scc1 {l2}\ns_cmp_eq_u32 {sr(sStar)}, {sr(sRowV)}\ns_cbranch_scc1 {l2}'); out_v(); e(f'{l2}:')
    else:
        ln = g.lab('noout')
        e(f's_cmp_eq_u32 {sr(sStar)}, {sr(sRowU)}\ns_cbranch_scc1 {ln}'); out_u(); e(f'{ln}:')
        ln = g.lab('noout')
        e(f's_cmp_eq_u32 {sr(sStar)}, {sr(sRowV)}\ns_cbranch_scc1 {ln}'); out_v(); e(f'{ln}:')
    e('s_waitcnt vmcnt(0)')
    ffn(PART1)
    stamp('ffn1')
    e('s_waitcnt vmcnt(0)')
    reducer(PART1, True)
    stamp('end')
    e('L_done:')
    if stamps:
        ls = g.lab('nost')
        e(f"""s_cmp_ge_u32 s2, 256
        s_cbranch_scc1 {ls}
        s_waitcnt vmcnt(0)
        s_mov_b64 exec, -1
        s_lshl_b32 {sr(sT)}, {sr(sWg)}, 11
        s_lshl_b32 {sr(sT2)}, {sr(sW)}, 8
        s_add_u32 {sr(sT)}, {sr(sT)}, {sr(sT2)}
        v_and_b32 {vr(t(0))}, 63, v0
        v_lshlrev_b32 {vr(t(0))}, 2, {vr(t(0))}
        v_add_u32 {vr(t(0))}, {sr(sT)}, {vr(t(0))}
        s_mov_b32 {sr(sOff)}, {STAMP}
        buffer_store_dword {vr(vStamp)}, {vr(t(0))}, {sr(sWS,4)}, {sr(sOff)} offen
        {ls}:""")
    e('s_endpgm')
    loader()
    for ls, lj, yh_, yv_ in g.late:
        e(f'{ls}:')
        add_y(yh_, yv_)
        e(f's_branch {lj}')
    emit_tail()
    return g

def render(g):
    lines, added = pad(g.L)
    body = '\n'.join(('' if l.endswith(':') else '    ') + l for l in lines)
    ninstr = sum(1 for l in lines if not l.endswith(':'))
    hdr = f"""; Two (FNet mixing + top-1 routed SwiGLU) layers in one persistent launch: 256 workgroups, 4 compute waves + 1 weight-loader wave.
;
; Re(FFT2(LN x)) is evaluated as a separable Hartley transform of g[s,d] = xn[s,d] + xn[-s,-d] (point symmetry, real data only):
; a poison word written earlier in the same launch, or (first exchange) by a tag = previous launch's tag + 1.
; (weights staged in LDS by the loader wave), 32 workgroups add the partial rows.  In layer 1 the routed row's effect on
; @launch grid=(256,1,1) block=(320,1,1) lds={LDS_SIZE}
.amdgcn_target "amdgcn-amd-amdhsa--gfx950"
.text
.globl {NAME}
.p2align 8
.type {NAME},@function
{NAME}:
"""
    tab = '\n'.join('.long ' + ','.join('0x%08x' % x for x in TAB[i:i+8]) for i in range(0, len(TAB), 8))
    tail = f"""
L_code_end:
.p2align 8
L_tab:
{tab}
.section .rodata,"a"
.p2align 6
.amdhsa_kernel {NAME}
  .amdhsa_next_free_vgpr 256
  .amdhsa_next_free_sgpr 102
  .amdhsa_accum_offset 256
  .amdhsa_group_segment_fixed_size 0
  .amdhsa_kernarg_size 104
  .amdhsa_user_sgpr_count 2
  .amdhsa_user_sgpr_kernarg_segment_ptr 1
  .amdhsa_system_sgpr_workgroup_id_x 1
.end_amdhsa_kernel
"""
    return hdr + body + tail, ninstr, added

if __name__ == '__main__':
    import argparse
    ap = argparse.ArgumentParser()
    ap.add_argument('-o', default='interleave_layers__spectral_fnet__moe_arch_mod__prompt.s')
    ap.add_argument('--stop'); ap.add_argument('--stamps', action='store_true'); ap.add_argument('--opt', default='')
    a = ap.parse_args()
    g = build(a.stop, a.stamps, {k.split('=')[0]: (k.split('=')+['1'])[1] for k in a.opt.split(',') if k})
    txt, n, added = render(g)
    open(a.o, 'w').write(txt)
    print(f'{n} instructions, {added} nop slots added, vgpr high {g.v.n}, sgpr high {g.s.n}')
```

```python
import sys, struct, math
from asmlib import pad, Alloc
import tables

NAME = "interleave_layers__spectral_fnet__moe_arch_mod__prompt_kernel"
NONCE = 0x000000
HB0, YB0, HB1, YB1 = 0x100000, 0x300000, 0x400000, 0x500000
CAND0, CAND1 = 0x600000, 0x700000
PART0, PART1 = 0x800000, 0x880000
UPD0 = 0x900000
KB0, KB1 = 0x901000, 0x902000
HINT = 0x903000
STAMP = 0x980000
WS_SIZE = 0xA00000
NF = 172
LIMIT = 40000
NPOIS = 64
YIMG = 0
GIMG = 5120
RIMG = 9216
HIMG = 13312
CIN = 17472
COUT = 21952
KIMG = 26048
FP = 27136
AM = 27392
RED = 27456
GU = 27776
DN = GU + 16384
LDS_SIZE = DN + 8192
LMAP = dict(YIMG=YIMG, GIMG=GIMG, RIMG=RIMG, HIMG=HIMG, CIN=CIN, COUT=COUT)
TAB, TOFF = tables.build_tables(LMAP)

def fbits(x): return '0x%08x' % struct.unpack('<I', struct.pack('<f', x))[0]

class G:
    def __init__(self, stop=None, stamps=False):
        self.L = []; self.stop = stop; self.stamps = stamps; self.uid = 0; self.nstamp = 0; self.names = []
        self.v = Alloc(1, 256, 'v'); self.s = Alloc(3, 100, 's')
    def e(self, text):
        for l in text.strip('\n').split('\n'):
            l = l.strip()
            if l: self.L.append(l)
    def lab(self, p):
        self.uid += 1; return f'L_{p}_{self.uid}'

def vr(a, n=1): return f'v{a}' if n == 1 else f'v[{a}:{a+n-1}]'
def sr(a, n=1): return f's{a}' if n == 1 else f's[{a}:{a+n-1}]'
DPP = 'row_mask:0xf bank_mask:0xf'
PKB = 'op_sel:[0,0,1] op_sel_hi:[1,0,1]'

def build(stop=None, stamps=False, opt=None):
    opt_raw = dict(opt or {})
    opt = dict(opt or {})
    if not opt.get('nodefault'):
        opt.setdefault('lpf', 'lin'); opt.setdefault('splitc', '1'); opt.setdefault('rowvalu', '1'); opt.setdefault('addrvalu', '1'); opt.setdefault('earlyp', '1'); opt.setdefault('lplan', '0:da/1:b/4:u')
        if 'lplan' not in opt_raw: opt.setdefault('lcnt', '0.3.3.2.4.2.2')
    g = G(stop, stamps); e = g.e; V = g.v; S = g.s
    sWS = S('ws', 4, 4); sXS = S('xsrd', 4, 4); sOUT = S('out', 4, 4); sT4 = S('tmpsrd', 4, 4)
    sRho = S('rho'); sW = S('w'); sRowU = S('rowu'); sRowV = S('rowv'); sVs = S('vs'); sOff = S('off'); sCnt = S('cnt')
    sT = S('t'); sT2 = S('t2'); sT3 = S('t3'); s16 = S('k16'); sStar = S('star'); sRec = S('rec'); sWg = S('wg'); sSW = S('sw')
    sCu = S('cu', 2, 2); sCv = S('cv', 2, 2); sEx = S('exsave', 2, 2)
    sAu = S('au', 2, 2); sAv = S('av', 2, 2); sKu = S('ku', 2, 2); sKv = S('kv', 2, 2); sKeyU = S('keyu'); sKeyV = S('keyv'); sKey = S('key')
    sTag = S('tag'); sMz, sMc = sAu, sAv; sH = S('h', 8, 2); sTm = S('tm', 2, 2); sPC = S('pc', 2, 2); sM2 = S('m2', 2, 2); sPhi = S('phi'); sSgn = S('sgn')
    sKA = S('ka', 16, 4); sKB = S('kb', 8, 4); sKC = S('kc', 2, 2)
    vL = V('lane'); vN = V('n'); vQ = V('q')
    XU = V('XU', 8, 4); XV = V('XV', 8, 4); WU = V('WU', 8, 2); WV = V('WV', 8, 2)
    RB1 = V('RB1', 16, 4); RC = V('RC', 8, 2); RS = V('RS', 8, 2); RA2 = V('RA2', 4, 4)
    CB1 = V('CB1', 8, 4); CK = V('CK', 32, 2); CA2 = V('CA2', 16, 4)
    assert RC == RB1+16 and RS == RB1+24 and RA2 == RB1+32 and CK == CB1+8
    FA = V('FA', 16, 4); FD = V('FD', 16, 4)
    AD = V('addr', 16, 4)
    lRow, lTr, lRw, lCr, lH, _, lHf, _, lCa, lCb, lCc, lYd = range(AD, AD+12)
    lCo = AD + 12; lYm = AD + 15
    aU = V('aU'); aV = V('aV'); aP16 = V('aP16'); aS16 = V('aS16'); aHdr = V('aHdr'); aP8 = V('aP8')
    lYm4 = V('lYm4'); lG = V('lG')
    vRowH = V('rowh'); vSig = V('sig'); vSent = V('sent'); vCa = V('cosa'); vSa = V('sina'); vStamp = V('stamp')
    FX = V('FX', 8, 4); FO = V('FO', 8, 4)
    NT = 256 - ((V.n + 3)//4*4)
    T = V('T', NT, 4)
    def t(i):
        assert i < NT, i
        return T + i
    DU, DV = t(0), t(8)

    def stamp(name=''):
        if not g.stamps: return
        if opt.get('only') and name not in opt['only'].split('+'): return
        e(f'''s_memrealtime {sr(sTm,2)}
        s_waitcnt lgkmcnt(0)
        v_writelane_b32 {vr(vStamp)}, {sr(sTm)}, {g.nstamp}''')
        g.nstamp += 1; g.names.append(name)
    def finish_here(tag):
        if g.stop == tag: e('s_branch L_done')

    def sentinel(regs):
        if isinstance(regs, tuple) and regs[0] == 'tag':
            P = regs[1]
            e(f'''v_bitop3_b32 {vr(vSent)}, {vr(P+1)}, {vr(P+3)}, {sr(sTag)} bitop3:0x7e
            v_bitop3_b32 {vr(P+1)}, {vr(P+5)}, {vr(P+7)}, {sr(sTag)} bitop3:0x7e
            v_or_b32 {vr(vSent)}, {vr(vSent)}, {vr(P+1)}
            v_cmp_ne_u32 vcc, 0, {vr(vSent)}''')
            return
        regs = list(regs); tm = vSent
        if len(regs) == 1:
            e(f'v_cmp_eq_u32 vcc, -1, {vr(regs[0])}')
        else:
            if len(regs) >= 3:
                e(f'v_max3_u32 {vr(tm)}, {vr(regs[0])}, {vr(regs[1])}, {vr(regs[2])}'); rest = regs[3:]
            else:
                e(f'v_max_u32 {vr(tm)}, {vr(regs[0])}, {vr(regs[1])}'); rest = []
            while len(rest) >= 2:
                e(f'v_max3_u32 {vr(tm)}, {vr(tm)}, {vr(rest[0])}, {vr(rest[1])}'); rest = rest[2:]
            if rest: e(f'v_max_u32 {vr(tm)}, {vr(tm)}, {vr(rest[0])}')
            e(f'v_cmp_eq_u32 vcc, -1, {vr(tm)}')
    def poll(load, regs, backoff=2, preloaded=False):
        lp = g.lab('poll'); ok = g.lab('ok')
        if preloaded:
            sentinel(regs)
            e(f's_cbranch_vccnz {lp}\n{ok}:')
            g.tail.append((lp, ok, load, regs if isinstance(regs, tuple) else list(regs), backoff))
        else:
            e(load); e('s_waitcnt vmcnt(0)')
            sentinel(regs)
            e(f's_cbranch_vccnz {lp}\n{ok}:')
            g.tail.append((lp, ok, load, regs if isinstance(regs, tuple) else list(regs), backoff))
    g.tail = []
    g.nbar_mark = None
    def emit_tail():
        for lp, ok, load, regs, backoff in g.tail:
            l2 = lp + '_r'
            e(f'{lp}:\ns_mov_b32 {sr(sCnt)}, 0\n{l2}:\ns_sleep {backoff}')
            e(load)
            e(f'''s_add_u32 {sr(sCnt)}, {sr(sCnt)}, 1
            s_cmp_gt_u32 {sr(sCnt)}, {LIMIT}
            s_cbranch_scc1 L_done
            s_waitcnt vmcnt(0)''')
            sentinel(regs)
            e(f's_cbranch_vccnz {l2}\ns_branch {ok}')
    def red_index():
        if opt.get('oldred'):
            e(f's_sub_u32 {sr(sT3)}, {sr(sWg)}, 8')
        else:
            e(f'''s_sub_u32 {sr(sT3)}, {sr(sRho)}, 192
            s_bitcmp1_b32 {sr(sRho)}, 0
            s_cselect_b32 {sr(sT3)}, -1, {sr(sT3)}
            s_lshr_b32 {sr(sT3)}, {sr(sT3)}, 1''')
    def srd(dst, ptr, size):
        e(f'''s_mov_b32 {sr(dst)}, {sr(ptr)}
        s_mov_b32 {sr(dst+1)}, {sr(ptr+1)}
        s_mov_b32 {sr(dst+2)}, {size}
        s_mov_b32 {sr(dst+3)}, 0x00020000''')
    def ws_store(n, data, areg, region, extra=''):
        op = {1: 'buffer_store_dword', 2: 'buffer_store_dwordx2', 4: 'buffer_store_dwordx4'}[n]
        e(f's_mov_b32 {sr(sOff)}, {region}\n{op} {vr(data,n)}, {vr(areg)}, {sr(sWS,4)}, {sr(sOff)} offen sc1 {extra}')
    def ws_load_text(n, data, areg, soff, extra=''):
        op = {1: 'buffer_load_dword', 2: 'buffer_load_dwordx2', 4: 'buffer_load_dwordx4'}[n]
        return f'{op} {vr(data,n)}, {vr(areg)}, {sr(sWS,4)}, {soff} offen {extra} sc1'
    PZ = t(40)
    def poison_regs():
        for k in range(4): e(f'v_mov_b32 {vr(PZ+k)}, -1')

    e(f's_cmp_ge_u32 s2, 256\ns_cbranch_scc1 L_done')
    if stamps: e(f's_memrealtime {sr(sM2,2)}')
    e(f'''s_load_dwordx16 {sr(sKA,16)}, s[0:1], 0
    s_load_dwordx8 {sr(sKB,8)}, s[0:1], 64
    s_load_dwordx2 {sr(sKC,2)}, s[0:1], 96''')
    PFN = opt.get('pfn')
    PFPRE = f's_cmp_ge_u32 s2, {PFN}\ns_cbranch_scc1 L_nopf\n' if PFN else ''
    PFPOST = 'L_nopf:\n' if PFN else ''
    e(f'''s_getpc_b64 {sr(sPC,2)}
    L_pc:
    {PFPRE}v_lshlrev_b32 {vr(t(0))}, 7, v0
    v_min_u32 {vr(t(0))}, L_code_end-L_pc-4, {vr(t(0))}
    global_load_dword {vr(vSig)}, {vr(t(0))}, {sr(sPC,2)}
    {PFPOST}s_add_u32 {sr(sPC)}, {sr(sPC)}, L_tab-L_pc
    s_addc_u32 {sr(sPC+1)}, {sr(sPC+1)}, 0''')
    e(f'''s_mov_b32 {sr(sWg)}, s2
    s_and_b32 {sr(sT)}, s2, 7
    s_lshl_b32 {sr(sT)}, {sr(sT)}, 5
    s_lshr_b32 {sr(sRho)}, s2, 3
    s_or_b32 {sr(sRho)}, {sr(sRho)}, {sr(sT)}
    v_lshrrev_b32 {vr(t(1))}, 6, v0
    v_and_b32 {vr(vL)}, 63, v0
    v_readfirstlane_b32 {sr(sW)}, {vr(t(1))}
    v_lshlrev_b32 {vr(t(2))}, 4, {vr(vL)}
    v_sub_u32 {vr(t(3))}, 1008, {vr(t(2))}
    s_lshl_b32 {sr(sT)}, {sr(sRho)}, 2
    s_add_u32 {sr(sRowU)}, {sr(sT)}, {sr(sW)}
    s_sub_u32 {sr(sRowV)}, 2048, {sr(sRowU)}
    s_cmp_eq_u32 {sr(sRowU)}, 0
    s_cselect_b32 {sr(sRowV)}, 1024, {sr(sRowV)}
    s_lshl_b32 {sr(sT)}, {sr(sRowU)}, 10
    s_lshl_b32 {sr(sT2)}, {sr(sRowV)}, 10
    v_add_u32 {vr(aU)}, {sr(sT)}, {vr(t(2))}
    v_add_u32 {vr(aV)}, {sr(sT2)}, {vr(t(3))}
    v_lshlrev_b32 {vr(lG)}, 4, v0
    s_waitcnt lgkmcnt(0)''')
    kx, kwr, kwg = sKA + 0, sKA + 12, sKA + 14
    kwu, kwd, kout, kdbg = sKB + 0, sKB + 2, sKB + 4, sKB + 6
    URAW, VRAW = t(8), t(12)
    WURAW, WVRAW = FX, FX + 4
    e(f's_sub_u32 {sr(sPhi)}, {sr(sRho)}, 1\ns_cmp_eq_u32 {sr(sW)}, 4\ns_cbranch_scc1 L_loader')
    srd(sXS, kx, 2097152)
    e(f'''buffer_load_dwordx4 {vr(URAW,4)}, {vr(aU)}, {sr(sXS,4)}, 0 offen {opt.get('xfl','')}
    buffer_load_dwordx4 {vr(VRAW,4)}, {vr(aV)}, {sr(sXS,4)}, 0 offen {opt.get('xfl','')}''')
    srd(sWS, sKC, WS_SIZE)
    e(f'v_mov_b32 {vr(vCa)}, {NONCE}\nbuffer_load_dword {vr(vCa)}, {vr(vCa)}, {sr(sWS,4)}, 0 offen')
    nvm = [1]
    def tab_loads(dst, n, areg, off, stride):
        k = 0
        while k < n:
            base = off + k*stride
            per = {1024: 4, 4096: 1}[stride]
            e(f'v_add_u32 {vr(t(4))}, {base}, {vr(areg)}')
            for kk in range(min(per, n-k)):
                e(f'global_load_dwordx4 {vr(dst+4*(k+kk),4)}, {vr(t(4))}, {sr(sPC,2)} offset:{kk*stride}')
                nvm[0] += 1
            k += per
    if not opt.get('addrvalu'): tab_loads(AD, 4, lG, TOFF['addr'], 4096)
    if not opt.get('rowvalu'): tab_loads(RB1, 9, t(2), TOFF['row'], 1024)
    N_ROWTAB = nvm[0]
    if stamps:
        e(f'v_mov_b32 {vr(vStamp)}, 0\nv_writelane_b32 {vr(vStamp)}, {sr(sM2)}, 0'); g.nstamp = 1; g.names.append('start')
    poison_regs()
    e(f'''s_lshl_b32 {sr(sT)}, {sr(sRho)}, 12
    v_add_u32 {vr(aP16)}, {sr(sT)}, {vr(lG)}''')
    ws_store(4, PZ, aP16, YB0)
    nvm[0] += 1
    EP = int(opt.get('earlyp', 0))
    if EP >= 1:
        ws_store(4, PZ, aP16, HB1); ws_store(4, PZ, aP16, CAND0); nvm[0] += 2
    if EP >= 2:
        ws_store(4, PZ, aP16, YB1); ws_store(4, PZ, aP16, CAND1); nvm[0] += 2
    if EP >= 3:
        e(f'''s_sub_u32 {sr(sT2)}, {sr(sRho)}, 1
        s_lshl_b32 {sr(sT)}, {sr(sT2)}, 11
        s_cmp_lt_u32 {sr(sT2)}, {NF}
        s_cselect_b32 {sr(sT)}, {sr(sT)}, 0x7f000000
        v_lshlrev_b32 {vr(aP8)}, 3, v0
        v_add_u32 {vr(aP8)}, {sr(sT)}, {vr(aP8)}''')
        ws_store(2, PZ, aP8, PART0); ws_store(2, PZ, aP8, PART1); nvm[0] += 2
    lkb = g.lab('nokb')
    e(f'''s_cmp_lg_u32 {sr(sRowU)}, 0
    s_cbranch_scc1 {lkb}
    v_lshlrev_b32 {vr(t(5))}, 4, {vr(vL)}''')
    ws_store(4, PZ, t(5), KB0)
    ws_store(4, PZ, t(5), KB1)
    e(f'{lkb}:')
    if opt.get('touchhb') == 'w':
        e(f's_lshl_b32 {sr(sT)}, {sr(sRho)}, 13\nv_add_u32 {vr(t(6))}, {sr(sT)}, {vr(lG)}')
        ws_store(4, PZ, t(6), HB0); ws_store(4, PZ, t(6), HB0 + 4096)
        nvm[0] += 2
    if opt.get('touchhb') == 'r':
        e(f's_lshl_b32 {sr(sT)}, {sr(sRho)}, 13\nv_lshlrev_b32 {vr(t(6))}, 5, v0\nv_add_u32 {vr(t(6))}, {sr(sT)}, {vr(t(6))}\ns_mov_b32 {sr(sOff)}, {HB0}')
        e(f'buffer_load_dword {vr(vSa)}, {vr(t(6))}, {sr(sWS,4)}, {sr(sOff)} offen')
        nvm[0] += 1
    N_POISON = nvm[0]
    N_ALL = nvm[0]
    srd(sOUT, kout, 2097152)
    e(f'''s_mov_b32 {sr(s16)}, {fbits(16.0)}
    v_and_b32 {vr(vN)}, 15, {vr(vL)}
    v_lshrrev_b32 {vr(vQ)}, 4, {vr(vL)}''')

    a0, a1, a2, a3 = t(20), t(21), t(22), t(23)
    def addr_misc():
        e(f'''s_lshl_b32 {sr(sT)}, {sr(sRho)}, 4
        v_lshlrev_b32 {vr(aHdr)}, 12, v0
        v_add_u32 {vr(aS16)}, {sr(sT)}, {vr(aHdr)}
        v_mov_b32 {vr(a0)}, {sr(sRowU)}
        v_mov_b32 {vr(a1)}, {sr(sRowV)}
        v_cmp_gt_u32 vcc, 32, {vr(vL)}
        s_lshl_b32 {sr(sT)}, {sr(sPhi)}, 11
        s_cmp_lt_u32 {sr(sPhi)}, {NF}
        s_cselect_b32 {sr(sT)}, {sr(sT)}, 0x7f000000
        v_cndmask_b32 {vr(vRowH)}, {vr(a1)}, {vr(a0)}, vcc
        v_lshlrev_b32 {vr(aP8)}, 3, v0
        v_add_u32 {vr(aP8)}, {sr(sT)}, {vr(aP8)}
        v_mov_b32 {vr(a0)}, 0
        v_lshlrev_b32 {vr(a1)}, 10, {vr(vL)}
        s_mov_b64 exec, 31
        ds_write_b16 {vr(a1)}, {vr(a0)} offset:{YIMG}
        s_mov_b64 exec, -1''')
    def addr_p1():
        x0_, x1_, x2_, x3_, x4_ = t(20), t(21), t(22), t(23), t(24)
        e(f'''s_lshl_b32 {sr(sT)}, {sr(sW)}, 10
        v_lshlrev_b32 {vr(x2_)}, 4, {vr(vL)}
        v_add_u32 {vr(lRow)}, {sr(sT)}, {vr(x2_)}
        s_add_u32 {sr(sT2)}, {sr(sT)}, {RIMG+1008}
        v_sub_u32 {vr(lRw)}, {sr(sT2)}, {vr(x2_)}
        v_lshrrev_b32 {vr(x3_)}, 2, {vr(vN)}
        v_lshl_add_u32 {vr(x2_)}, {vr(vQ)}, 3, {vr(x3_)}
        v_lshlrev_b32 {vr(x2_)}, 5, {vr(x2_)}
        v_and_b32 {vr(x3_)}, 3, {vr(vN)}
        v_lshl_add_u32 {vr(x2_)}, {vr(x3_)}, 3, {vr(x2_)}
        v_add_u32 {vr(lTr)}, {sr(sT)}, {vr(x2_)}
        v_lshrrev_b32 {vr(x3_)}, 3, {vr(vN)}
        v_add_u32 {vr(x3_)}, {vr(x3_)}, {vr(vN)}
        v_lshlrev_b32 {vr(x3_)}, 4, {vr(x3_)}
        v_mul_u32_u24 {vr(x4_)}, {tables.CIN_QS}, {vr(vQ)}
        v_add_u32 {vr(lCr)}, {vr(x3_)}, {vr(x4_)}
        v_add_u32 {vr(lCr)}, {CIN}, {vr(lCr)}''')
        e(f'''s_sub_u32 {sr(sT3)}, 4, {sr(sW)}
        s_and_b32 {sr(sT3)}, {sr(sT3)}, 3
        s_add_u32 {sr(sT3)}, {sr(sT3)}, 4
        s_lshl_b32 {sr(sT3)}, {sr(sT3)}, 1
        s_lshl_b32 {sr(sT2)}, {sr(sW)}, 1
        v_lshlrev_b32 {vr(x0_)}, 7, {vr(vQ)}
        v_add_u32 {vr(x1_)}, {vr(x0_)}, {vr(vN)}
        v_sub_u32 {vr(x2_)}, {vr(x0_)}, {vr(vN)}
        v_and_b32 {vr(x3_)}, 8, {vr(x1_)}
        v_and_b32 {vr(x4_)}, 8, {vr(x2_)}
        v_xor_b32 {vr(x3_)}, {sr(sT2)}, {vr(x3_)}
        v_xor_b32 {vr(x4_)}, {sr(sT3)}, {vr(x4_)}
        v_lshl_add_u32 {vr(x1_)}, {vr(x1_)}, 4, {vr(x3_)}
        v_lshl_add_u32 {vr(x2_)}, {vr(x2_)}, 4, {vr(x4_)}
        v_add_u32 {vr(x1_)}, {HIMG}, {vr(x1_)}
        v_add_u32 {vr(x2_)}, {HIMG - 224*16}, {vr(x2_)}
        v_cmp_gt_u32 vcc, 2, {vr(vQ)}
        v_add_u32 {vr(x3_)}, 256, {vr(x1_)}
        v_subrev_u32 {vr(x4_)}, 256, {vr(x2_)}
        v_cndmask_b32 {vr(lH)}, {vr(x2_)}, {vr(x1_)}, vcc
        v_cndmask_b32 {vr(lH+1)}, {vr(x4_)}, {vr(x3_)}, vcc
        s_add_u32 {sr(sT2)}, {sr(sT2)}, {HIMG}
        s_add_u32 {sr(sT3)}, {sr(sT3)}, {HIMG}
        v_mov_b32 {vr(x0_)}, {HIMG+4112}
        v_mov_b32 {vr(x1_)}, {sr(sT2)}
        v_mov_b32 {vr(x2_)}, {sr(sT3)}
        v_cmp_eq_u32 vcc, 48, {vr(vL)}
        v_cndmask_b32 {vr(lHf)}, {vr(x0_)}, {vr(x1_)}, vcc
        v_cndmask_b32 {vr(lHf+1)}, {vr(x0_)}, {vr(x2_)}, vcc''')
    def addr_ym4():
        e(f'''s_cmp_eq_u32 {sr(sRho)}, 0
        s_cselect_b32 {sr(sT)}, 4096, 0
        v_add_u32 {vr(lYm4)}, {sr(sT)}, {vr(lYm)}''')

    b0, b1, b2 = t(24), t(25), t(26)
    vTau, vTlo = t(28), t(29)
    def tau_tlo():
        e(f'''s_lshl_b32 {sr(sT)}, {sr(sW)}, 3
        v_and_b32 {vr(vTau)}, 7, {vr(vN)}
        v_add_u32 {vr(vTau)}, {sr(sT)}, {vr(vTau)}
        v_sub_u32 {vr(a0)}, 64, {vr(vTau)}
        v_mov_b32 {vr(a1)}, 32
        v_cmp_eq_u32 {sr(sMz,2)}, 0, {vr(vTau)}
        v_cndmask_b32 {vr(a0)}, {vr(a0)}, {vr(a1)}, {sr(sMz,2)}
        v_cmp_le_u32 vcc, 8, {vr(vN)}
        v_cndmask_b32 {vr(vTlo)}, {vr(vTau)}, {vr(a0)}, vcc
        s_andn2_b64 {sr(sMc,2)}, vcc, {sr(sMz,2)}''')
    c0, c1 = t(30), t(31)
    def cos_seq(dst, base, step, n, amp=None):
        for j in range(0, n, 2):
            e(f'v_cos_f32 {vr(c0)}, {vr(base)}\nv_add_f32 {vr(base)}, {vr(base)}, {vr(step)}')
            e(f'v_cos_f32 {vr(c1)}, {vr(base)}')
            if j + 2 < n: e(f'v_add_f32 {vr(base)}, {vr(base)}, {vr(step)}')
            if amp is not None:
                e(f'v_mul_f32 {vr(c0)}, {amp}, {vr(c0)}\nv_mul_f32 {vr(c1)}, {amp}, {vr(c1)}')
            e(f'v_cvt_pk_f16_f32 {vr(dst + j//2)}, {vr(c0)}, {vr(c1)}')
    fQ, fN, fs, fb, fa, fb2 = t(32), t(33), t(34), t(35), t(36), t(37)
    def row_consts():
        e(f'v_cvt_f32_u32 {vr(fQ)}, {vr(vQ)}\nv_cvt_f32_u32 {vr(fN)}, {vr(vN)}')
        e(f'v_mul_f32 {vr(fs)}, {fbits(1/32)}, {vr(fN)}\nv_mul_f32 {vr(fa)}, {fbits(8.0)}, {vr(fQ)}')
        for part in range(2):
            e(f'v_mul_f32 {vr(fb)}, {vr(fa)}, {vr(fs)}')
            if part: e(f'v_add_f32 {vr(fb)}, {fbits(0.25)}, {vr(fb)}')
            cos_seq(RB1 + part*4, fb, fs, 8)
        for k in range(8): e(f'v_xor_b32 {vr(RB1+8+k)}, 0x80000000, {vr(RB1+k)}')
        e(f'v_mul_f32 {vr(fa)}, 4.0, {vr(fQ)}')
        for Tt in range(2):
            e(f'''v_add_f32 {vr(fs)}, {fbits(16.0*Tt)}, {vr(fN)}
            v_mul_f32 {vr(fs)}, {fbits(1/512)}, {vr(fs)}
            v_mul_f32 {vr(fb)}, {vr(fa)}, {vr(fs)}''')
            for i in range(4):
                e(f'v_cos_f32 {vr(RC+4*Tt+i)}, {vr(fb)}\nv_sin_f32 {vr(RS+4*Tt+i)}, {vr(fb)}')
                if i < 3: e(f'v_add_f32 {vr(fb)}, {vr(fb)}, {vr(fs)}')
        e(f'''v_sub_u32 {vr(fs)}, 23, {vr(vN)}
        v_cmp_gt_u32 vcc, 8, {vr(vN)}
        v_cndmask_b32 {vr(fs)}, {vr(fs)}, {vr(vN)}, vcc
        v_cvt_f32_u32 {vr(fs)}, {vr(fs)}
        v_mul_f32 {vr(fs)}, {fbits(1/16)}, {vr(fs)}
        v_mul_f32 {vr(fb2)}, {vr(fa)}, {vr(fs)}''')
        for part, ph in ((0, 0.125), (1, -0.125)):
            e(f'v_add_f32 {vr(fb)}, {fbits(ph)}, {vr(fb2)}')
            cos_seq(RA2 + 2*part, fb, fs, 4, amp=fbits(math.sqrt(2)))
    def col_consts_a():
        tau_tlo()
        e(f'''v_cvt_f32_u32 {vr(fQ)}, {vr(vQ)}
        v_cmp_le_u32 vcc, 8, {vr(vN)}
        s_and_b64 vcc, vcc, {sr(sMz,2)}
        v_mov_b32 {vr(a1)}, 32
        v_cndmask_b32 {vr(a0)}, {vr(vTau)}, {vr(a1)}, vcc
        v_cvt_f32_u32 {vr(fs)}, {vr(a0)}
        v_mul_f32 {vr(fs)}, {fbits(1/64)}, {vr(fs)}
        v_mov_b32 {vr(fa)}, {fbits(0.25)}
        v_cndmask_b32 {vr(fa)}, 0, {vr(fa)}, {sr(sMc,2)}
        v_mul_f32 {vr(fb)}, {fbits(8.0)}, {vr(fQ)}
        v_fma_f32 {vr(fb)}, {vr(fb)}, {vr(fs)}, {vr(fa)}''')
        cos_seq(CB1, fb, fs, 8)
        e(f'''v_and_b32 {vr(a0)}, 1, {vr(a0)}
        v_mul_u32_u24 {vr(a0)}, 0x8000, {vr(a0)}
        v_lshl_or_b32 {vr(a0)}, {vr(a0)}, 16, {vr(a0)}''')
        for k in range(4): e(f'v_xor_b32 {vr(CB1+4+k)}, {vr(a0)}, {vr(CB1+k)}')
    def col_consts_b():
        e(f'v_cvt_f32_u32 {vr(fQ)}, {vr(vQ)}')
        e(f'''v_cvt_f32_u32 {vr(fs)}, {vr(vTlo)}
        v_mul_f32 {vr(fs)}, {fbits(1/2048)}, {vr(fs)}
        v_mul_f32 {vr(fb)}, {vr(fQ)}, {vr(fs)}
        v_fma_f32 {vr(fb)}, {vr(fb)}, 4.0, {vr(fa)}
        v_mov_b32 {vr(a1)}, {fbits(0.25)}
        v_cndmask_b32 {vr(a1)}, {vr(a1)}, 0, {sr(sMz,2)}''')
        e(f'v_add_f32 {vr(fb2)}, {fbits(-0.25)}, {vr(fb)}')
        e(f'v_mul_f32 {vr(a2)}, {fbits(12.0)}, {vr(fs)}')
        for Tt in range(2):
            for i in range(4):
                k = CK + 16*Tt
                e(f'''v_cos_f32 {vr(c0)}, {vr(fb)}
                v_cos_f32 {vr(c1)}, {vr(fb2)}
                v_add_f32 {vr(fb)}, {vr(fb)}, {vr(fs)}
                v_add_f32 {vr(fb2)}, {vr(fb2)}, {vr(fs)}
                v_mul_f32 {vr(k+i)}, {fbits(0.25)}, {vr(c0)}
                v_mul_f32 {vr(k+4+i)}, {vr(a1)}, {vr(c1)}
                v_mul_f32 {vr(k+8+i)}, {fbits(-0.25)}, {vr(c1)}
                v_mul_f32 {vr(k+12+i)}, {vr(a1)}, {vr(c0)}''')
            if Tt == 0: e(f'v_add_f32 {vr(fb)}, {vr(fb)}, {vr(a2)}\nv_add_f32 {vr(fb2)}, {vr(fb2)}, {vr(a2)}')
        e(f'''v_cvt_f32_u32 {vr(fs)}, {vr(vN)}
        v_mul_f32 {vr(fs)}, {fbits(1/32)}, {vr(fs)}
        v_mul_f32 {vr(fb2)}, {vr(fQ)}, {vr(fs)}
        v_mul_f32 {vr(fb2)}, 4.0, {vr(fb2)}''')
        for part, ph in ((0, -0.125), (1, -0.375)):
            e(f'v_add_f32 {vr(fb)}, {fbits(ph)}, {vr(fb2)}')
            cos_seq(CA2 + 2*part, fb, fs, 4, amp=fbits(math.sqrt(2)/8))
        e(f'''v_and_b32 {vr(a0)}, 1, {vr(vN)}
        v_mul_u32_u24 {vr(a0)}, 0x8000, {vr(a0)}
        v_lshl_or_b32 {vr(a0)}, {vr(a0)}, 16, {vr(a0)}''')
        for k in range(4):
            e(f'v_xor_b32 {vr(CA2+4+k)}, {vr(a0)}, {vr(CA2+k)}')
        for k in range(8):
            e(f'v_xor_b32 {vr(CA2+8+k)}, 0x80000000, {vr(CA2+k)}')

    def unpack_nat(dst, src):
        for k in range(4):
            e(f'v_lshlrev_b32 {vr(dst+2*k)}, 16, {vr(src+k)}\nv_and_b32 {vr(dst+2*k+1)}, 0xffff0000, {vr(src+k)}')
    def unpack_rev(dst, src, tmp):
        e(f'''v_lshlrev_b32 {vr(tmp)}, 16, {vr(src)}
        v_and_b32 {vr(dst+7)}, 0xffff0000, {vr(src)}
        v_lshlrev_b32 {vr(dst+6)}, 16, {vr(src+1)}
        v_and_b32 {vr(dst+5)}, 0xffff0000, {vr(src+1)}
        v_mov_b32_dpp {vr(dst)}, {vr(tmp)} wave_ror:1 {DPP}
        v_lshlrev_b32 {vr(dst+4)}, 16, {vr(src+2)}
        v_and_b32 {vr(dst+3)}, 0xffff0000, {vr(src+2)}
        v_lshlrev_b32 {vr(dst+2)}, 16, {vr(src+3)}
        v_and_b32 {vr(dst+1)}, 0xffff0000, {vr(src+3)}''')
    def half_reduce(regs, tmps, op='v_add_f32'):
        for sh in (8, 4, 2, 1):
            for r in regs: e(f'{op}_dpp {vr(r)}, {vr(r)}, {vr(r)} row_ror:{sh} {DPP}')
        for r, tm in zip(regs, tmps): e(f'v_mov_b32 {vr(tm)}, {vr(r)}')
        for r, tm in zip(regs, tmps): e(f'v_permlane16_swap_b32 {vr(r)}, {vr(tm)}')
        for r, tm in zip(regs, tmps): e(f'{op} {vr(r)}, {vr(r)}, {vr(tm)}')
    def wave_reduce(regs, tmps, op='v_add_f32'):
        half_reduce(regs, tmps, op)
        for r, tm in zip(regs, tmps): e(f'v_mov_b32 {vr(tm)}, {vr(r)}')
        for r, tm in zip(regs, tmps): e(f'v_permlane32_swap_b32 {vr(r)}, {vr(tm)}')
        for r, tm in zip(regs, tmps): e(f'{op} {vr(r)}, {vr(r)}, {vr(tm)}')
    hM, hVar, hRho, hB, hR = t(40), t(41), t(42), t(43), t(44)
    def partial(Dd, src, sC, w, o1, o2, o3, P, read=True):
        if read: e(f'v_readfirstlane_b32 {sr(sC)}, {vr(src)}')
        for k in range(4):
            e(f'v_pk_add_f32 {vr(Dd+2*k,2)}, {vr(src+2*k,2)}, {sr(sC,2)} op_sel_hi:[1,0] neg_lo:[0,1] neg_hi:[0,1]')
        e(f'''v_pk_add_f32 {vr(P,2)}, {vr(Dd,2)}, {vr(Dd+2,2)}
        v_pk_mul_f32 {vr(P+2,2)}, {vr(Dd,2)}, {vr(Dd,2)}
        v_pk_add_f32 {vr(P+4,2)}, {vr(Dd+4,2)}, {vr(Dd+6,2)}''')
        if w is not None: e(f'v_pk_mul_f32 {vr(P+6,2)}, {vr(Dd,2)}, {vr(w,2)}')
        for k in range(1, 4):
            e(f'v_pk_fma_f32 {vr(P+2,2)}, {vr(Dd+2*k,2)}, {vr(Dd+2*k,2)}, {vr(P+2,2)}')
            if w is not None: e(f'v_pk_fma_f32 {vr(P+6,2)}, {vr(Dd+2*k,2)}, {vr(w+2*k,2)}, {vr(P+6,2)}')
            if k == 1: e(f'v_pk_add_f32 {vr(P,2)}, {vr(P,2)}, {vr(P+4,2)}')
        e(f'v_add_f32 {vr(o1)}, {vr(P)}, {vr(P+1)}\nv_add_f32 {vr(o2)}, {vr(P+2)}, {vr(P+3)}')
        if w is not None: e(f'v_add_f32 {vr(o3)}, {vr(P+6)}, {vr(P+7)}')
    def moments(S1, S2):
        e(f'''v_mul_f32 {vr(hM)}, {fbits(1/512)}, {vr(S1)}
        v_mul_f32 {vr(S2)}, {fbits(1/512)}, {vr(S2)}
        v_fma_f32 {vr(hVar)}, -{vr(hM)}, {vr(hM)}, {vr(S2)}
        v_add_f32 {vr(S2)}, {fbits(1e-5)}, {vr(hVar)}
        v_rsq_f32 {vr(hRho)}, {vr(S2)}''')
    def stats2(with_r):
        a1_, a2_, a3_, b1_, b2_, b3_ = t(16), t(17), t(18), t(19), t(20), t(21)
        e(f'v_readfirstlane_b32 {sr(sCu)}, {vr(XU)}\nv_readfirstlane_b32 {sr(sCv)}, {vr(XV)}')
        partial(DV, XV, sCv, WV if with_r else None, b1_, b2_, b3_, t(32), read=False) if False else None
        partial(DU, XU, sCu, WU if with_r else None, a1_, a2_, a3_, t(24), read=False)
        partial(DV, XV, sCv, WV if with_r else None, b1_, b2_, b3_, t(32), read=False)
        pairs = [(a1_, b1_), (a2_, b2_)] + ([(a3_, b3_)] if with_r else [])
        for x, y in pairs: e(f'v_permlane32_swap_b32 {vr(x)}, {vr(y)}')
        for x, y in pairs: e(f'v_add_f32 {vr(x)}, {vr(x)}, {vr(y)}')
        half_reduce([x for x, _ in pairs], [y for _, y in pairs])
        moments(a1_, a2_)
        if with_r: e(f'v_fma_f32 {vr(a3_)}, -{vr(hM)}, {sr(sSW)}, {vr(a3_)}')
        e(f'v_mul_f32 {vr(hB)}, -{vr(hM)}, {vr(hRho)}')
        if with_r: e(f'v_mul_f32 {vr(hR)}, {vr(hRho)}, {vr(a3_)}')
    def stats1(src, Dd, dst):
        partial(Dd, src, sCu, None, t(16), t(17), None, t(24))
        wave_reduce([t(16), t(17)], [t(18), t(19)])
        moments(t(16), t(17))
        e(f'''v_readfirstlane_b32 {sr(sKu)}, {vr(hRho)}
        v_mul_f32 {vr(hB)}, -{vr(hM)}, {vr(hRho)}
        v_readfirstlane_b32 {sr(sKu+1)}, {vr(hB)}''')
        for k in range(4): e(f'v_pk_fma_f32 {vr(dst+2*k,2)}, {vr(Dd+2*k,2)}, {sr(sKu,2)}, {sr(sKu,2)} {PKB}')
    def residual_coeffs():
        e(f'''v_mov_b32 {vr(t(22))}, {sr(sCu)}
        v_mov_b32 {vr(t(23))}, {sr(sCv)}
        v_cmp_gt_u32 vcc, 32, {vr(vL)}
        v_add_f32 {vr(t(21))}, 1.0, {vr(hRho)}
        v_cndmask_b32 {vr(t(22))}, {vr(t(23))}, {vr(t(22))}, vcc
        v_add_f32 {vr(t(22))}, {vr(t(22))}, {vr(hB)}
        v_readlane_b32 {sr(sAu)}, {vr(t(21))}, 0
        v_readlane_b32 {sr(sAv)}, {vr(t(21))}, 32
        v_readlane_b32 {sr(sAu+1)}, {vr(t(22))}, 0
        v_readlane_b32 {sr(sAv+1)}, {vr(t(22))}, 32''')
    def residual_update(dU, dV):
        for k in range(4): e(f'v_pk_fma_f32 {vr(dU+2*k,2)}, {vr(DU+2*k,2)}, {sr(sAu,2)}, {sr(sAu,2)} {PKB}')
        for k in range(4): e(f'v_pk_fma_f32 {vr(dV+2*k,2)}, {vr(DV+2*k,2)}, {sr(sAv,2)}, {sr(sAv,2)} {PKB}')
    def norm_coeffs(scale, bias):
        e(f'''v_readlane_b32 {sr(sKu)}, {vr(scale)}, 0
        v_readlane_b32 {sr(sKu+1)}, {vr(bias)}, 0
        v_readlane_b32 {sr(sKv)}, {vr(scale)}, 32
        v_readlane_b32 {sr(sKv+1)}, {vr(bias)}, 32''')
    GG = t(16)
    def make_g():
        for k in range(4): e(f'v_pk_fma_f32 {vr(GG+2*k,2)}, {vr(DU+2*k,2)}, {sr(sKu,2)}, {sr(sKu,2)} {PKB}')
        for k in range(4): e(f'v_pk_fma_f32 {vr(GG+2*k,2)}, {vr(DV+2*k,2)}, {sr(sKv,2)}, {vr(GG+2*k,2)} op_sel_hi:[1,0,1]')
    def write_n(src, tmp):
        for k in range(4): e(f'v_cvt_pk_f16_f32 {vr(tmp+k)}, {vr(src+2*k)}, {vr(src+2*k+1)}')
        e(f'ds_write_b128 {vr(lRow)}, {vr(tmp,4)} offset:{GIMG}')
    def write_r(src, tmp):
        e(f'''v_mov_b32_dpp {vr(tmp+4)}, {vr(src)} wave_rol:1 {DPP}
        v_cvt_pk_f16_f32 {vr(tmp+1)}, {vr(src+6)}, {vr(src+5)}
        v_cvt_pk_f16_f32 {vr(tmp+2)}, {vr(src+4)}, {vr(src+3)}
        v_cvt_pk_f16_f32 {vr(tmp+3)}, {vr(src+2)}, {vr(src+1)}
        v_cvt_pk_f16_f32 {vr(tmp)}, {vr(tmp+4)}, {vr(src+7)}
        ds_write_b128 {vr(lRw)}, {vr(tmp,4)}''')
    def core(A, O):
        Dr = [t(0), t(8)]; Di = [t(4), t(12)]
        for Tt in range(2):
            e(f'v_mfma_f32_16x16x32_f16 {vr(Dr[Tt],4)}, {vr(A,4)}, {vr(RB1+(2*Tt)*4,4)}, 0')
            e(f'v_mfma_f32_16x16x32_f16 {vr(Di[Tt],4)}, {vr(A,4)}, {vr(RB1+(2*Tt+1)*4,4)}, 0')
        Bo = [t(16), t(20)]; br, bi = t(24), t(28)
        for Tt in range(2):
            for h in range(2):
                c = vr(RC+4*Tt+2*h, 2); s_ = vr(RS+4*Tt+2*h, 2)
                dr = vr(Dr[Tt]+2*h, 2); di = vr(Di[Tt]+2*h, 2)
                e(f'''v_pk_mul_f32 {vr(br+2*h,2)}, {dr}, {c}
                v_pk_mul_f32 {vr(bi+2*h,2)}, {di}, {c}
                v_pk_fma_f32 {vr(br+2*h,2)}, {di}, {s_}, {vr(br+2*h,2)}
                v_pk_fma_f32 {vr(bi+2*h,2)}, {dr}, {s_}, {vr(bi+2*h,2)} neg_lo:[1,0,0] neg_hi:[1,0,0]''')
            e(f'''v_cvt_pk_f16_f32 {vr(Bo[Tt])}, {vr(br)}, {vr(br+1)}
            v_cvt_pk_f16_f32 {vr(Bo[Tt]+1)}, {vr(br+2)}, {vr(br+3)}
            v_cvt_pk_f16_f32 {vr(Bo[Tt]+2)}, {vr(bi)}, {vr(bi+1)}
            v_cvt_pk_f16_f32 {vr(Bo[Tt]+3)}, {vr(bi+2)}, {vr(bi+3)}''')
            e(f'v_mfma_f32_16x16x32_f16 {vr(O+4*Tt,4)}, {vr(RA2,4)}, {vr(Bo[Tt],4)}, 0')

    CA, CO = t(32), t(36)
    def transform(dst_off, tagged=False, pre_core=None, post_scatter=None, pre_store=None):
        write_n(GG, t(24))
        e(f"""ds_read_b64_tr_b16 {vr(CA,2)}, {vr(lTr)} offset:{GIMG}
        ds_read_b64_tr_b16 {vr(CA+2,2)}, {vr(lTr)} offset:{GIMG+128}""")
        if pre_core: pre_core()
        e('s_waitcnt lgkmcnt(0)')
        core(CA, CO)
        for k in range(4): e(f'v_cvt_pk_f16_f32 {vr(t(44)+k)}, {vr(CO+2*k)}, {vr(CO+2*k+1)}')
        for Tt in range(2):
            for i in range(4):
                op = 'ds_write_b16' if i % 2 == 0 else 'ds_write_b16_d16_hi'
                e(f'{op} {vr(lH+Tt)}, {vr(t(44) + 2*Tt + i//2)} offset:{512*i}')
        e(f'ds_write_b16_d16_hi {vr(lHf)}, {vr(t(45))}\nds_write_b16_d16_hi {vr(lHf+1)}, {vr(t(45))}')
        if post_scatter: post_scatter()
        if tagged:
            e(f"""v_lshlrev_b32 {vr(t(8))}, 3, v0
            s_lshl_b32 {sr(sT)}, {sr(sRho)}, 13
            v_add_u32 {vr(t(9))}, {sr(sT)}, {vr(lG)}""")
            for k in (1, 3, 5, 7): e(f'v_mov_b32 {vr(t(k))}, {sr(sTag)}')
            if pre_store: pre_store()
            e(f"""s_waitcnt lgkmcnt(0)
            s_barrier
            ds_read_b32 {vr(t(0))}, {vr(t(8))} offset:{HIMG}
            ds_read_b32 {vr(t(2))}, {vr(t(8))} offset:{HIMG+4}
            ds_read_b32 {vr(t(4))}, {vr(t(8))} offset:{HIMG+2048}
            ds_read_b32 {vr(t(6))}, {vr(t(8))} offset:{HIMG+2052}
            s_mov_b32 {sr(sOff)}, {dst_off}
            s_mov_b32 {sr(sT)}, {dst_off+4096}
            s_waitcnt lgkmcnt(2)
            buffer_store_dwordx4 {vr(t(0),4)}, {vr(t(9))}, {sr(sWS,4)}, {sr(sOff)} offen sc1
            s_waitcnt lgkmcnt(0)
            buffer_store_dwordx4 {vr(t(4),4)}, {vr(t(9))}, {sr(sWS,4)}, {sr(sT)} offen sc1""")
        else:
            if pre_store: pre_store()
            e(f"""s_waitcnt lgkmcnt(0)
            s_barrier
            ds_read_b128 {vr(t(0),4)}, {vr(lG)} offset:{HIMG}
            s_mov_b32 {sr(sOff)}, {dst_off}
            s_waitcnt lgkmcnt(0)
            buffer_store_dwordx4 {vr(t(0),4)}, {vr(aP16)}, {sr(sWS,4)}, {sr(sOff)} offen sc1""")

    def affine_from_x(sx1x0_u, sx1x0_v, sKu_, sKv_, outU, outV):
        for (xx, cc, kk, oo) in ((sx1x0_u, sCu, sKu_, outU), (sx1x0_v, sCv, sKv_, outV)):
            if xx is None:
                e(f"""v_mov_b32 {vr(t(44))}, {sr(kk)}
                v_mov_b32 {vr(t(45))}, {sr(kk+1)}
                v_fma_f32 {vr(t(45))}, -{vr(t(44))}, {sr(cc)}, {vr(t(45))}""")
            else:
                e(f"""v_rcp_f32 {vr(t(44))}, {sr(xx)}
                v_mov_b32 {vr(t(45))}, {sr(kk+1)}
                v_mul_f32 {vr(t(44))}, {sr(kk)}, {vr(t(44))}
                v_fma_f32 {vr(t(45))}, -{vr(t(44))}, {sr(xx+1)}, {vr(t(45))}""")
            e(f'v_readfirstlane_b32 {sr(oo)}, {vr(t(44))}\nv_readfirstlane_b32 {sr(oo+1)}, {vr(t(45))}')

    def special_k(dst_off, after_residual):
        ln = g.lab('nok')
        e(f's_cmp_lg_u32 {sr(sRowU)}, 0\ns_cbranch_scc1 {ln}')
        affine_from_x(sAu if after_residual else None, sAv if after_residual else None, sKu, sKv, sH, sH+2)
        ZU, ZV = t(0), t(8)
        for k in range(4): e(f'v_pk_fma_f32 {vr(ZU+2*k,2)}, {vr(XU+2*k,2)}, {sr(sH,2)}, {sr(sH,2)} {PKB}')
        for k in range(4): e(f'v_pk_fma_f32 {vr(ZV+2*k,2)}, {vr(XV+2*k,2)}, {sr(sH+2,2)}, {sr(sH+2,2)} {PKB}')
        write_r(ZU, t(16)); write_n(ZV, t(24))
        A, B = CA, t(40)
        e(f"""ds_read_b64_tr_b16 {vr(A,2)}, {vr(lTr)} offset:{RIMG}
        ds_read_b64_tr_b16 {vr(B,2)}, {vr(lTr)} offset:{GIMG}
        ds_read_b64_tr_b16 {vr(A+2,2)}, {vr(lTr)} offset:{RIMG+128}
        ds_read_b64_tr_b16 {vr(B+2,2)}, {vr(lTr)} offset:{GIMG+128}
        s_waitcnt lgkmcnt(0)""")
        for k in range(4): e(f'v_pk_add_f16 {vr(A+k)}, {vr(A+k)}, {vr(B+k)} neg_lo:[0,1] neg_hi:[0,1]')
        core(A, CO)
        for k in range(4): e(f'v_pk_mul_f32 {vr(CO+2*k,2)}, {vr(CO+2*k,2)}, {sr(sT2 if False else sM2,2)} op_sel_hi:[1,0]' if False else f'v_mul_f32 {vr(CO+2*k)}, {fbits(1/16)}, {vr(CO+2*k)}\nv_mul_f32 {vr(CO+2*k+1)}, {fbits(1/16)}, {vr(CO+2*k+1)}')
        for k in range(4): e(f'v_cvt_pk_f16_f32 {vr(t(44)+k)}, {vr(CO+2*k)}, {vr(CO+2*k+1)}')
        e(f"""v_lshl_add_u32 {vr(t(0))}, {vr(vQ)}, 7, {vr(vN)}
        v_lshlrev_b32 {vr(t(0))}, 1, {vr(t(0))}
        v_sub_u32 {vr(t(1))}, {1024-32-192}, {vr(t(0))}
        v_mov_b32 {vr(t(2))}, 512
        s_mov_b32 exec_lo, -1
        s_mov_b32 exec_hi, 0""")
        for Tt in range(2):
            for i in range(4):
                op = 'ds_write_b16' if i % 2 == 0 else 'ds_write_b16_d16_hi'
                e(f'{op} {vr(t(0))}, {vr(t(44)+2*Tt+i//2)} offset:{KIMG + 32*Tt + 64*i}')
                e(f'{op} {vr(t(1))}, {vr(t(44)+2*Tt+i//2)} offset:{KIMG + 32*(1-Tt) + 64*(3-i)}')
        e(f"""s_mov_b32 exec_lo, 0
        s_mov_b32 exec_hi, 0x00010000
        ds_write_b16_d16_hi {vr(t(2))}, {vr(t(45))} offset:{KIMG}
        s_mov_b64 exec, -1
        v_lshlrev_b32 {vr(t(3))}, 4, {vr(vL)}
        s_waitcnt lgkmcnt(0)
        ds_read_b128 {vr(t(4),4)}, {vr(t(3))} offset:{KIMG}
        s_mov_b32 {sr(sOff)}, {dst_off}
        s_waitcnt lgkmcnt(0)
        buffer_store_dwordx4 {vr(t(4),4)}, {vr(t(3))}, {sr(sWS,4)}, {sr(sOff)} offen sc1
        {ln}:""")

    PC = t(40)
    def column_load(src_off):
        e(f's_mov_b32 {sr(sOff)}, {src_off}')
        e(ws_load_text(4, PC, aS16, sr(sOff)))
    def column(src_off, dst_off, preloaded, tagged=False, behind_poll=None):
        P = PC
        e(f's_mov_b32 {sr(sOff)}, {src_off}')
        if tagged:
            P = t(0); A2 = t(44); AD1 = t(8)
            e(f'''v_lshrrev_b32 {vr(AD1)}, 1, v0
            v_lshlrev_b32 {vr(AD1)}, 13, {vr(AD1)}
            v_and_b32 {vr(t(9))}, 1, v0
            v_lshl_add_u32 {vr(AD1)}, {vr(t(9))}, 4, {vr(AD1)}
            s_lshl_b32 {sr(sT)}, {sr(sRho)}, 5
            v_add_u32 {vr(AD1)}, {sr(sT)}, {vr(AD1)}
            s_add_u32 {sr(sT3)}, {sr(sOff)}, {128*8192}''')
            ld = ws_load_text(4, P, AD1, sr(sOff)) + '\n' + ws_load_text(4, P+4, AD1, sr(sT3))
            if opt.get('splitc'):
                e(ld)
                nb = 0
                if behind_poll:
                    behind_poll[0](); nb = behind_poll[1]; e(f's_mov_b32 {sr(sOff)}, {src_off}')
                col_consts_b(); e(f's_waitcnt vmcnt({nb})')
                poll(ld, ('tag', P), preloaded=True)
            else:
                poll(ld, ('tag', P))
            stamp('col data')
            for k in range(2):
                e(f'''ds_write_b16 {vr(A2+2*k)}, {vr(P+4*k)}
                ds_write_b16_d16_hi {vr(A2+2*k+1)}, {vr(P+4*k)} offset:16
                ds_write_b16 {vr(A2+2*k+1)}, {vr(P+4*k+2)} offset:32
                ds_write_b16_d16_hi {vr(A2+2*k+1)}, {vr(P+4*k+2)} offset:48''')
            e('s_waitcnt lgkmcnt(0)\ns_barrier')
        else:
            poll(ws_load_text(4, P, aS16, sr(sOff)), range(P, P+4), preloaded=preloaded)
            lsw = g.lab('nosw')
            e(f's_bitcmp0_b32 {sr(sRho)}, 3\ns_cbranch_scc1 {lsw}\nv_swap_b32 {vr(P)}, {vr(P+2)}\nv_swap_b32 {vr(P+1)}, {vr(P+3)}\n{lsw}:')
            d = [P, P+1, P+2, P+3]
            stamp('col data')
            e(f"""ds_write_b16 {vr(lCa)}, {vr(d[0])}
            ds_write_b16_d16_hi {vr(lCa)}, {vr(d[0])} offset:16
            ds_write_b16 {vr(lCa)}, {vr(d[1])} offset:32
            ds_write_b16_d16_hi {vr(lCa)}, {vr(d[1])} offset:48
            ds_write_b16 {vr(lCb)}, {vr(d[2])}
            ds_write_b16_d16_hi {vr(lCc)}, {vr(d[2])} offset:16
            ds_write_b16 {vr(lCc)}, {vr(d[3])} offset:32
            ds_write_b16_d16_hi {vr(lCc)}, {vr(d[3])} offset:48
            s_waitcnt lgkmcnt(0)
            s_barrier""")
        A = t(0)
        for k in range(4): e(f'ds_read_b128 {vr(A+4*k,4)}, {vr(lCr)} offset:{tables.cin_block(k)}')
        D1 = [t(16), t(20)]
        e(f"""s_waitcnt lgkmcnt(3)
        v_mfma_f32_16x16x32_f16 {vr(D1[0],4)}, {vr(A,4)}, {vr(CB1,4)}, 0
        s_waitcnt lgkmcnt(2)
        v_mfma_f32_16x16x32_f16 {vr(D1[0],4)}, {vr(A+4,4)}, {vr(CB1+4,4)}, {vr(D1[0],4)}
        s_waitcnt lgkmcnt(1)
        v_mfma_f32_16x16x32_f16 {vr(D1[1],4)}, {vr(A+8,4)}, {vr(CB1,4)}, 0
        s_waitcnt lgkmcnt(0)
        v_mfma_f32_16x16x32_f16 {vr(D1[1],4)}, {vr(A+12,4)}, {vr(CB1+4,4)}, {vr(D1[1],4)}""")
        Bb = t(24); br, bi = t(28), t(32); Bo = [t(0), t(4)]
        O = [t(8), t(12)]
        for Tt in range(2):
            k = CK + 16*Tt
            for i in range(4): e(f'v_mov_b32_dpp {vr(Bb+i)}, {vr(D1[Tt]+i)} row_ror:8 {DPP}')
            for h in range(2):
                e(f"""v_pk_mul_f32 {vr(br+2*h,2)}, {vr(D1[Tt]+2*h,2)}, {vr(k+2*h,2)}
                v_pk_mul_f32 {vr(bi+2*h,2)}, {vr(D1[Tt]+2*h,2)}, {vr(k+8+2*h,2)}""")
            for h in range(2):
                e(f"""v_pk_fma_f32 {vr(br+2*h,2)}, {vr(Bb+2*h,2)}, {vr(k+4+2*h,2)}, {vr(br+2*h,2)}
                v_pk_fma_f32 {vr(bi+2*h,2)}, {vr(Bb+2*h,2)}, {vr(k+12+2*h,2)}, {vr(bi+2*h,2)}""")
            e(f"""v_cvt_pk_f16_f32 {vr(Bo[Tt])}, {vr(br)}, {vr(br+1)}
            v_cvt_pk_f16_f32 {vr(Bo[Tt]+1)}, {vr(br+2)}, {vr(br+3)}
            v_cvt_pk_f16_f32 {vr(Bo[Tt]+2)}, {vr(bi)}, {vr(bi+1)}
            v_cvt_pk_f16_f32 {vr(Bo[Tt]+3)}, {vr(bi+2)}, {vr(bi+3)}""")
            e(f"""v_mfma_f32_16x16x32_f16 {vr(O[0],4)}, {vr(CA2+4*Tt,4)}, {vr(Bo[Tt],4)}, {"0" if Tt == 0 else vr(O[0],4)}
            v_mfma_f32_16x16x32_f16 {vr(O[1],4)}, {vr(CA2+8+4*Tt,4)}, {vr(Bo[Tt],4)}, {"0" if Tt == 0 else vr(O[1],4)}""")
        e(f"""        v_cvt_pk_f16_f32 {vr(t(16))}, {vr(O[0])}, {vr(O[0]+1)}
        v_cvt_pk_f16_f32 {vr(t(17))}, {vr(O[0]+2)}, {vr(O[0]+3)}
        ds_write_b16 {vr(lCo)}, {vr(t(16))}
        ds_write_b16_d16_hi {vr(lCo)}, {vr(t(16))} offset:256
        v_cvt_pk_f16_f32 {vr(t(18))}, {vr(O[1])}, {vr(O[1]+1)}
        v_cvt_pk_f16_f32 {vr(t(19))}, {vr(O[1]+2)}, {vr(O[1]+3)}
        ds_write_b16 {vr(lCo)}, {vr(t(17))} offset:512
        ds_write_b16_d16_hi {vr(lCo)}, {vr(t(17))} offset:768
        ds_write_b16 {vr(lCo+2)}, {vr(t(18))}
        ds_write_b16_d16_hi {vr(lCo+1)}, {vr(t(18))} offset:512
        ds_write_b16 {vr(lCo+1)}, {vr(t(19))} offset:256
        ds_write_b16_d16_hi {vr(lCo+1)}, {vr(t(19))}
        s_waitcnt lgkmcnt(0)
        s_barrier
        ds_read_b128 {vr(t(0),4)}, {vr(lG)} offset:{COUT}
        s_mov_b32 {sr(sOff)}, {dst_off}
        s_waitcnt {'vmcnt(0) ' if behind_poll else ''}lgkmcnt(0)
        buffer_store_dwordx4 {vr(t(0),4)}, {vr(aP16)}, {sr(sWS,4)}, {sr(sOff)} offen sc1""")

    YH, YV, KT = t(4), t(8), t(12)
    def row_input(src_off, kb, behind_poll=None):
        P = t(0)
        lk = g.lab('nok')
        e(f's_bitcmp0_b32 {sr(sW)}, 0\ns_cbranch_scc1 {lk}')
        e(f'v_lshlrev_b32 {vr(t(16))}, 4, {vr(vL)}\ns_mov_b32 {sr(sT3)}, {kb}')
        e(ws_load_text(4, KT, t(16), sr(sT3)))
        e(f'{lk}:')
        e(f's_mov_b32 {sr(sOff)}, {src_off}')
        ld = ws_load_text(4, P, aS16, sr(sOff))
        if behind_poll:
            e(ld); behind_poll[0](); e(f's_mov_b32 {sr(sOff)}, {src_off}\ns_waitcnt vmcnt({behind_poll[1]})')
            poll(ld, range(P, P+4), preloaded=True)
        else:
            poll(ld, range(P, P+4))
        stamp('row data')
        def wr(slot, areg, off):
            op = 'ds_write_b16' if slot % 2 == 0 else 'ds_write_b16_d16_hi'
            e(f'{op} {vr(areg)}, {vr(P + slot//2)} offset:{YIMG + off}')
        for j in range(4): wr(j, lYd, j*1024)
        wr(4, lYm4, 0); wr(5, lYm, 3*1024); wr(6, lYm, 2*1024); wr(7, lYm, 1024)
        l0 = g.lab('not0')
        e(f's_cmp_lg_u32 {sr(sRho)}, 0\ns_cbranch_scc1 {l0}')
        wr(0, lYm, 0); wr(4, lYd, 4096)
        e(f"""{l0}:
        s_waitcnt lgkmcnt(0)
        s_barrier
        ds_read_b128 {vr(YH,4)}, {vr(lRow)} offset:{YIMG}""")
        lv = g.lab('yv')
        e(f"""s_cmp_lg_u32 {sr(sRowU)}, 0
        s_cbranch_scc1 {lv}
        ds_read_b128 {vr(YV,4)}, {vr(lRow)} offset:{YIMG+4096}
        {lv}:""")
        lk = g.lab('nok2')
        e(f's_bitcmp0_b32 {sr(sW)}, 0\ns_cbranch_scc1 {lk}')
        poll(ws_load_text(4, KT, t(16), sr(sT3)), range(KT, KT+4), preloaded=True)
        e('s_waitcnt lgkmcnt(0)')
        for k in range(4): e(f'v_pk_add_f16 {vr(YH+k)}, {vr(YH+k)}, {vr(KT+k)}')
        e(f'{lk}:\ns_waitcnt lgkmcnt(0)')
    def add_y(yu, yv):
        for k in range(4):
            e(f"""v_fma_mix_f32 {vr(XU+2*k)}, {vr(yu+k)}, {sr(s16)}, {vr(XU+2*k)} op_sel:[0,0,0] op_sel_hi:[1,0,0]
            v_fma_mix_f32 {vr(XU+2*k+1)}, {vr(yu+k)}, {sr(s16)}, {vr(XU+2*k+1)} op_sel:[1,0,0] op_sel_hi:[1,0,0]""")
        for k in range(4):
            e(f"""v_fma_mix_f32 {vr(XV+2*k)}, {vr(yv+k)}, {sr(s16)}, {vr(XV+2*k)} op_sel:[0,0,0] op_sel_hi:[1,0,0]
            v_fma_mix_f32 {vr(XV+2*k+1)}, {vr(yv+k)}, {sr(s16)}, {vr(XV+2*k+1)} op_sel:[1,0,0] op_sel_hi:[1,0,0]""")
    def add_y_pair():
        ls = g.lab('ysp'); lj = g.lab('yj')
        e(f's_cmp_eq_u32 {sr(sRowU)}, 0\ns_cbranch_scc1 {ls}')
        add_y(YH, YH)
        e(f'{lj}:')
        g.late.append((ls, lj))
    g.late = []

    def make_key():
        e(f"""v_ashrrev_i32 {vr(t(22))}, 31, {vr(hR)}
        v_or_b32 {vr(t(22))}, 0x80000000, {vr(t(22))}
        v_xor_b32 {vr(t(22))}, {vr(hR)}, {vr(t(22))}
        v_and_b32 {vr(t(22))}, 0xfffff800, {vr(t(22))}
        v_or_b32 {vr(t(22))}, {vr(vRowH)}, {vr(t(22))}
        v_readlane_b32 {sr(sKeyU)}, {vr(t(22))}, 0
        v_readlane_b32 {sr(sKeyV)}, {vr(t(22))}, 32
        s_lshl_b32 {sr(sT)}, {sr(sW)}, 2
        v_mov_b32 {vr(t(23))}, {sr(sT)}
        s_max_u32 {sr(sKey)}, {sr(sKeyU)}, {sr(sKeyV)}
        v_mov_b32 {vr(t(22))}, {sr(sKey)}
        ds_write_b32 {vr(t(23))}, {vr(t(22))} offset:{AM}""")
    def wg_best_read(tmp):
        e(f'v_mov_b32 {vr(tmp+4)}, 0\nds_read_b128 {vr(tmp,4)}, {vr(tmp+4)} offset:{AM}')
    def wg_best_header(cand, tmp):
        ln = g.lab('nohdr')
        e(f"""v_max3_u32 {vr(tmp)}, {vr(tmp)}, {vr(tmp+1)}, {vr(tmp+2)}
        v_max_u32 {vr(tmp)}, {vr(tmp)}, {vr(tmp+3)}
        v_readfirstlane_b32 {sr(sT)}, {vr(tmp)}
        s_cmp_eq_u32 {sr(sT)}, {sr(sKey)}
        s_cselect_b32 {sr(sSgn)}, 1, 0
        s_cbranch_scc0 {ln}
        s_lshl_b32 {sr(sT)}, {sr(sRho)}, 12
        s_add_u32 {sr(sOff)}, {sr(sT)}, {cand}
        v_mov_b32 {vr(tmp+1)}, {sr(sKey)}
        s_mov_b64 exec, 1
        buffer_store_dword {vr(tmp+1)}, {vr(tmp+4)}, {sr(sWS,4)}, {sr(sOff)} offen sc1
        s_mov_b64 exec, -1
        {ln}:""")
    def publish_rows(cand):
        ln = g.lab('nopub'); lv = g.lab('pubv'); lj = g.lab('pubj')
        e(f's_cmp_eq_u32 {sr(sSgn)}, 0\ns_cbranch_scc1 {ln}')
        e(f"""s_lshl_b32 {sr(sT)}, {sr(sRho)}, 12
        s_add_u32 {sr(sOff)}, {sr(sT)}, {cand}
        s_cmp_gt_u32 {sr(sKeyV)}, {sr(sKeyU)}
        s_cbranch_scc1 {lv}""")
        for (lab_, X_, A_, C_) in ((None, XU, sAu, sCu), (lv, XV, sAv, sCv)):
            if lab_: e(f'{lab_}:')
            e(f"""v_rcp_f32 {vr(t(0))}, {sr(A_)}
            v_mov_b32 {vr(t(1))}, {sr(A_+1)}
            v_mov_b32 {vr(t(2))}, {sr(A_)}
            v_add_f32 {vr(t(2))}, -1.0, {vr(t(2))}
            v_subrev_f32 {vr(t(3))}, {sr(C_)}, {vr(t(1))}
            v_mul_f32 {vr(t(4))}, {vr(t(2))}, {vr(t(0))}
            v_fma_f32 {vr(t(6))}, -{vr(t(4))}, {vr(t(1))}, {vr(t(3))}""")
            Z = t(8)
            for k in range(4): e(f'v_pk_fma_f32 {vr(Z+2*k,2)}, {vr(X_+2*k,2)}, {vr(t(4),2)}, {vr(t(6),2)} op_sel_hi:[1,0,0]')
            if X_ == XU:
                for k in range(4): e(f'v_cvt_pk_bf16_f32 {vr(t(16)+k)}, {vr(Z+2*k)}, {vr(Z+2*k+1)}')
                e(f"""v_lshlrev_b32 {vr(t(1))}, 4, {vr(vL)}
                v_lshlrev_b32 {vr(t(2))}, 5, {vr(vL)}
                buffer_store_dwordx4 {vr(t(16),4)}, {vr(t(1))}, {sr(sWS,4)}, {sr(sOff)} offen offset:128 sc1
                buffer_store_dwordx4 {vr(XU,4)}, {vr(t(2))}, {sr(sWS,4)}, {sr(sOff)} offen offset:1152 sc1
                buffer_store_dwordx4 {vr(XU+4,4)}, {vr(t(2))}, {sr(sWS,4)}, {sr(sOff)} offen offset:1168 sc1
                s_branch {lj}""")
            else:
                e(f"""v_mov_b32_dpp {vr(t(20))}, {vr(Z)} wave_rol:1 {DPP}
                v_mov_b32_dpp {vr(t(24))}, {vr(XV)} wave_rol:1 {DPP}
                v_cvt_pk_bf16_f32 {vr(t(17))}, {vr(Z+6)}, {vr(Z+5)}
                v_cvt_pk_bf16_f32 {vr(t(18))}, {vr(Z+4)}, {vr(Z+3)}
                v_cvt_pk_bf16_f32 {vr(t(19))}, {vr(Z+2)}, {vr(Z+1)}
                v_cvt_pk_bf16_f32 {vr(t(16))}, {vr(t(20))}, {vr(Z+7)}""")
                for k in range(1, 8): e(f'v_mov_b32 {vr(t(24)+k)}, {vr(XV+8-k)}')
                e(f"""v_lshlrev_b32 {vr(t(1))}, 4, {vr(vL)}
                v_sub_u32 {vr(t(1))}, 1008, {vr(t(1))}
                v_lshlrev_b32 {vr(t(2))}, 1, {vr(t(1))}
                buffer_store_dwordx4 {vr(t(16),4)}, {vr(t(1))}, {sr(sWS,4)}, {sr(sOff)} offen offset:128 sc1
                buffer_store_dwordx4 {vr(t(24),4)}, {vr(t(2))}, {sr(sWS,4)}, {sr(sOff)} offen offset:1152 sc1
                buffer_store_dwordx4 {vr(t(28),4)}, {vr(t(2))}, {sr(sWS,4)}, {sr(sOff)} offen offset:1168 sc1""")
        e(f'{lj}:\n{ln}:')

    def header_load(cand, K):
        e(f's_mov_b32 {sr(sOff)}, {cand}')
        e(ws_load_text(1, K, aHdr, sr(sOff)))
    def argmax(cand, K, after_check=None):
        e(f's_mov_b32 {sr(sOff)}, {cand}')
        poll(ws_load_text(1, K, aHdr, sr(sOff)), [K], preloaded=True, backoff=4)
        if after_check: after_check()
        wave_reduce([K], [t(1)], op='v_max_u32')
        e(f"""s_lshl_b32 {sr(sT)}, {sr(sW)}, 2
        v_mov_b32 {vr(t(1))}, {sr(sT)}
        ds_write_b32 {vr(t(1))}, {vr(K)} offset:{AM+32}
        v_mov_b32 {vr(t(1))}, 0
        s_waitcnt lgkmcnt(0)
        s_barrier
        ds_read_b128 {vr(t(4),4)}, {vr(t(1))} offset:{AM+32}
        s_waitcnt lgkmcnt(0)
        v_max3_u32 {vr(t(4))}, {vr(t(4))}, {vr(t(5))}, {vr(t(6))}
        v_max_u32 {vr(t(4))}, {vr(t(4))}, {vr(t(7))}
        v_readfirstlane_b32 {sr(sKey)}, {vr(t(4))}""")
        e(f"""s_and_b32 {sr(sStar)}, {sr(sKey)}, 2047
        s_lshr_b32 {sr(sT)}, {sr(sStar)}, 2
        s_sub_u32 {sr(sT2)}, 511, {sr(sT)}
        s_sub_u32 {sr(sT3)}, 512, {sr(sT)}
        s_and_b32 {sr(sT3)}, {sr(sT3)}, 255
        s_and_b32 {sr(sRec)}, {sr(sStar)}, 3
        s_cmp_eq_u32 {sr(sRec)}, 0
        s_cselect_b32 {sr(sT2)}, {sr(sT3)}, {sr(sT2)}
        s_cmp_lt_u32 {sr(sStar)}, 1024
        s_cselect_b32 {sr(sT2)}, {sr(sT)}, {sr(sT2)}
        s_lshl_b32 {sr(sRec)}, {sr(sT2)}, 12
        s_add_u32 {sr(sRec)}, {sr(sRec)}, {cand}""")
    def sigmoid_of_key():
        e(f"""s_and_b32 {sr(sT)}, {sr(sKey)}, 0xfffff800
        s_or_b32 {sr(sT)}, {sr(sT)}, 0x400
        s_ashr_i32 {sr(sT2)}, {sr(sT)}, 31
        s_not_b32 {sr(sT2)}, {sr(sT2)}
        s_or_b32 {sr(sT2)}, {sr(sT2)}, 0x80000000
        s_xor_b32 {sr(sT)}, {sr(sT)}, {sr(sT2)}
        v_mov_b32 {vr(vSig)}, {fbits(-1.4426950408889634)}
        v_mul_f32 {vr(vSig)}, {sr(sT)}, {vr(vSig)}
        v_exp_f32 {vr(vSig)}, {vr(vSig)}
        v_add_f32 {vr(vSig)}, 1.0, {vr(vSig)}
        v_rcp_f32 {vr(vSig)}, {vr(vSig)}""")

    def ffn_setup():
        e(f"""v_and_b32 {vr(t(24))}, 3, {vr(vN)}
        v_lshrrev_b32 {vr(t(25))}, 2, {vr(vN)}
        v_lshl_add_u32 {vr(t(25))}, {vr(vQ)}, 3, {vr(t(25))}
        s_lshl_b32 {sr(sT)}, {sr(sW)}, 7
        v_add_u32 {vr(t(25))}, {sr(sT)}, {vr(t(25))}
        v_lshlrev_b32 {vr(t(25))}, 4, {vr(t(25))}
        v_and_b32 {vr(t(27))}, 1, {vr(t(24))}
        v_lshl_add_u32 {vr(t(25))}, {vr(t(27))}, 3, {vr(t(25))}
        v_lshrrev_b32 {vr(t(27))}, 1, {vr(t(24))}
        v_lshl_add_u32 {vr(t(25))}, {vr(t(27))}, 13, {vr(t(25))}
        v_lshlrev_b32 {vr(t(26))}, 2, v0""")
        g.nbar_mark = sum(1 for l in g.L if l == 's_barrier')
        e('s_barrier')
        for kap in range(4):
            for h in range(2):
                e(f'ds_read_b64_tr_b16 {vr(FA+4*kap+2*h,2)}, {vr(t(25))} offset:{GU + kap*512 + h*64}')
        for f in range(8): e(f'ds_read_b32 {vr(t(28)+f)}, {vr(t(26))} offset:{DN + f*1024}')
        e('s_waitcnt lgkmcnt(0)')
        for f in range(8):
            e(f'v_lshlrev_b32 {vr(FD+2*f)}, 16, {vr(t(28)+f)}\nv_and_b32 {vr(FD+2*f+1)}, 0xffff0000, {vr(t(28)+f)}')
    def loader():
        e('L_loader:')
        lst = [0]
        def lstamp():
            if not stamps: return
            e(f's_memrealtime {sr(sTm,2)}\ns_waitcnt lgkmcnt(0)\nv_writelane_b32 {vr(vStamp)}, {sr(sTm)}, {lst[0]}'); lst[0] += 1
        if stamps: e(f'v_mov_b32 {vr(vStamp)}, 0')
        lstamp()
        if not opt.get('nohint'):
            lh = g.lab('nohint')
            e(f's_cmp_lt_u32 {sr(sWg)}, 248\ns_cbranch_scc1 {lh}')
            srd(sT4, kx, 2097152); srd(sWS, sKC, WS_SIZE)
            e(f'''s_lshl_b32 {sr(sT2)}, {sr(sRho)}, 12
            v_lshlrev_b32 {vr(t(1))}, 4, {vr(vL)}
            v_add_u32 {vr(t(2))}, {sr(sT2)}, {vr(t(1))}
            v_mov_b32 {vr(t(4))}, {NONCE}
            buffer_load_dword {vr(t(3))}, {vr(t(2))}, {sr(sT4,4)}, 0 offen
            buffer_load_dword {vr(t(4))}, {vr(t(4))}, {sr(sWS,4)}, 0 offen
            s_and_b32 {sr(sT)}, {sr(sWg)}, 7
            s_lshl_b32 {sr(sT)}, {sr(sT)}, 8
            v_mov_b32 {vr(t(5))}, {sr(sT)}
            s_waitcnt vmcnt(0)
            v_add_u32 {vr(t(4))}, 1, {vr(t(4))}
            s_mov_b64 exec, 1''')
            ws_store(1, t(4), t(5), HINT)
            e(f's_mov_b64 exec, -1\n{lh}:')
        lstamp()
        if opt.get('lpf') == 'lin':
            e(f"""s_mul_i32 {sr(sT)}, {sr(sWg)}, 5632
            v_min_u32 {vr(t(4))}, 43, {vr(vL)}
            v_lshlrev_b32 {vr(t(4))}, 7, {vr(t(4))}
            v_add_u32 {vr(t(4))}, {sr(sT)}, {vr(t(4))}""")
            for ptr in (kwg, kwu):
                srd(sT4, ptr, 1409024)
                e(f'buffer_load_dword {vr(t(6))}, {vr(t(4))}, {sr(sT4,4)}, 0 offen')
        elif opt.get('lpf'):
            e(f"""s_lshr_b32 {sr(sT)}, {sr(sRho)}, 5
            s_cmp_ge_u32 {sr(sT)}, 6
            s_cbranch_scc1 L_end
            v_lshlrev_b32 {vr(t(1))}, 4, {vr(vL)}""")
            srd(sT4, kx, 2097152)
            e(f"""s_lshl_b32 {sr(sT2)}, {sr(sRho)}, 12
            v_add_u32 {vr(t(2))}, {sr(sT2)}, {vr(t(1))}
            buffer_load_dword {vr(t(3))}, {vr(t(2))}, {sr(sT4,4)}, 0 offen
            s_lshl_b32 {sr(sT)}, {sr(sT)}, 9
            s_and_b32 {sr(sT2)}, {sr(sRho)}, 31
            s_lshl_b32 {sr(sT2)}, {sr(sT2)}, 4
            v_lshrrev_b32 {vr(t(4))}, 2, {vr(vL)}
            v_add_u32 {vr(t(4))}, {sr(sT2)}, {vr(t(4))}
            s_movk_i32 {sr(sT3)}, 2752
            v_mul_lo_u32 {vr(t(4))}, {vr(t(4))}, {sr(sT3)}
            v_and_b32 {vr(t(5))}, 3, {vr(vL)}
            v_lshlrev_b32 {vr(t(5))}, 7, {vr(t(5))}
            s_max_u32 {sr(sT)}, {sr(sT)}, 16
            s_sub_u32 {sr(sT)}, {sr(sT)}, 16
            v_add3_u32 {vr(t(4))}, {vr(t(4))}, {vr(t(5))}, {sr(sT)}
            v_sub_u32 {vr(t(5))}, {vr(t(4))}, {vr(t(5))}
            v_add_u32 {vr(t(5))}, 512, {vr(t(5))}""")
            if opt.get('lpf') != 'now': e('s_waitcnt vmcnt(0)')
            for ptr in (kwg, kwu):
                srd(sT4, ptr, 1409024)
                e(f"""buffer_load_dword {vr(t(6))}, {vr(t(4))}, {sr(sT4,4)}, 0 offen
                buffer_load_dword {vr(t(7))}, {vr(t(5))}, {sr(sT4,4)}, 0 offen""")
        e(f"""s_cmp_ge_u32 {sr(sPhi)}, {NF}
        s_cbranch_scc1 L_end""")
        e(f"""s_movk_i32 {sr(sT3)}, 2752
        v_mul_lo_u32 {vr(t(0))}, {vr(vL)}, {sr(sT3)}
        s_lshl_b32 {sr(sT2)}, {sr(sPhi)}, 4
        v_add_u32 {vr(t(0))}, {sr(sT2)}, {vr(t(0))}
        v_lshlrev_b32 {vr(t(1))}, 4, {vr(vL)}""")
        def gu(ptr, lds, ks=range(8)):
            srd(sT4, ptr, 1409024)
            for k in ks:
                e(f"""s_add_u32 {sr(sT)}, {sr(sPhi)}, {k}
                s_and_b32 {sr(sT)}, {sr(sT)}, 7
                s_lshl_b32 {sr(sT2)}, {sr(sT)}, 10
                s_add_u32 m0, {sr(sT2)}, {lds}
                s_mul_i32 {sr(sOff)}, {sr(sT)}, {64*2752}
                buffer_load_dwordx4 {vr(t(0))}, {sr(sT4,4)}, {sr(sOff)} offen {opt.get('wfl','')} lds""")
        def dn():
            srd(sT4, kwd, 1409024)
            e(f's_lshl_b32 {sr(sT2)}, {sr(sPhi)}, 13')
            for f in range(8):
                e(f"""s_mov_b32 m0, {DN + 1024*f}
                s_add_u32 {sr(sOff)}, {sr(sT2)}, {1024*f}
                buffer_load_dwordx4 {vr(t(1))}, {sr(sT4,4)}, {sr(sOff)} offen {opt.get('wfl','')} lds""")
        if opt.get('lwait'):
            srd(sT4, kx, 2097152)
            e(f's_lshl_b32 {sr(sT)}, {sr(sRho)}, 12\nv_add_u32 {vr(t(2))}, {sr(sT)}, {vr(t(1))}\nbuffer_load_dword {vr(t(3))}, {vr(t(2))}, {sr(sT4,4)}, 0 offen\ns_waitcnt vmcnt(0)')
        plan = {int(x.split(':')[0]): x.split(':')[1] for x in opt.get('lplan', '0:gud').split('/')}
        if opt.get('lcnt'):
            cnt = [int(x) for x in opt['lcnt'].split('.')]; assert sum(cnt) == 16
            dpos = int(opt.get('ldpos', 0)); nxt = 0
            for k in range(g.nbar_mark + 1):
                if k == dpos: dn()
                for j in range(cnt[k] if k < len(cnt) else 0):
                    gu(kwg if nxt < 8 else kwu, GU + (0 if nxt < 8 else 8192), [nxt & 7]); nxt += 1
                lstamp()
                if k < g.nbar_mark: e('s_barrier')
            plan = None
        for k in range(g.nbar_mark + 1 if plan is not None else 0):
            for c in plan.get(k, ''):
                {'g': lambda: gu(kwg, GU), 'u': lambda: gu(kwu, GU + 8192), 'd': dn,
                 'a': lambda: gu(kwg, GU, range(0, 4)), 'b': lambda: gu(kwg, GU, range(4, 8)),
                 'c': lambda: gu(kwu, GU + 8192, range(0, 4)), 'e': lambda: gu(kwu, GU + 8192, range(4, 8))}[c]()
            if k < g.nbar_mark: e('s_barrier')
        e('s_waitcnt vmcnt(0)')
        lstamp()
        e('s_barrier\nL_end:')
        if stamps:
            srd(sWS, sKC, WS_SIZE)
            e(f'''s_lshl_b32 {sr(sT)}, {sr(sWg)}, 11
            s_add_u32 {sr(sT)}, {sr(sT)}, 1024
            v_lshlrev_b32 {vr(t(0))}, 2, {vr(vL)}
            v_add_u32 {vr(t(0))}, {sr(sT)}, {vr(t(0))}
            s_mov_b32 {sr(sOff)}, {STAMP}
            buffer_store_dword {vr(vStamp)}, {vr(t(0))}, {sr(sWS,4)}, {sr(sOff)} offen''')
        e('s_endpgm')

    XS = t(0)
    def xsel_text():
        return '\n'.join(f'buffer_load_dwordx4 {vr(XS+4*k,4)}, {vr(t(20))}, {sr(sWS,4)}, {sr(sRec)} offen offset:{128+64*k} sc1' for k in range(4))
    def xsel_load():
        e(f"""s_lshl_b32 {sr(sT)}, {sr(sW)}, 8
        v_lshlrev_b32 {vr(t(20))}, 4, {vr(vQ)}
        v_add_u32 {vr(t(20))}, {sr(sT)}, {vr(t(20))}""")
        e(xsel_text())
    def ffn(part):
        ln = g.lab('noffn')
        e(f's_cmp_ge_u32 {sr(sPhi)}, {NF}\ns_cbranch_scc1 {ln}')
        poll(xsel_text(), range(XS, XS+16), preloaded=True)
        Pp = t(16)
        for k in range(4):
            e(f'v_mfma_f32_16x16x32_bf16 {vr(Pp,4)}, {vr(FA+4*k,4)}, {vr(XS+4*k,4)}, {"0" if k==0 else vr(Pp,4)}')
        e(f"""v_lshlrev_b32 {vr(t(21))}, 6, {vr(vQ)}
        s_lshl_b32 {sr(sT)}, {sr(sW)}, 2
        v_add_u32 {vr(t(21))}, {sr(sT)}, {vr(t(21))}
        v_and_b32 {vr(t(22))}, 31, {vr(vL)}
        v_lshlrev_b32 {vr(t(22))}, 2, {vr(t(22))}
        s_mov_b32 exec_lo, 0x00010001
        s_mov_b32 exec_hi, 0x00010001""")
        for i in range(4): e(f'ds_write_b32 {vr(t(21))}, {vr(Pp+i)} offset:{FP + 16*i}')
        e(f"""s_mov_b64 exec, -1
        s_waitcnt lgkmcnt(0)
        s_barrier
        ds_read_b32 {vr(t(12))}, {vr(t(22))} offset:{FP}
        ds_read_b32 {vr(t(13))}, {vr(t(22))} offset:{FP+128}
        s_waitcnt lgkmcnt(0)""")
        gg, uu = t(12), t(13)
        for mod in ('quad_perm:[1,0,3,2]', 'quad_perm:[2,3,0,1]'):
            e(f'v_add_f32_dpp {vr(gg)}, {vr(gg)}, {vr(gg)} {mod} {DPP}\nv_add_f32_dpp {vr(uu)}, {vr(uu)}, {vr(uu)} {mod} {DPP}')
        e(f"""v_mul_f32 {vr(t(14))}, {fbits(-1.4426950408889634)}, {vr(gg)}
        v_exp_f32 {vr(t(14))}, {vr(t(14))}
        v_mul_f32 {vr(uu)}, {vr(uu)}, {vr(vSig)}
        v_add_f32 {vr(t(14))}, 1.0, {vr(t(14))}
        v_rcp_f32 {vr(t(14))}, {vr(t(14))}
        v_mul_f32 {vr(gg)}, {vr(gg)}, {vr(uu)}
        v_mul_f32 {vr(gg)}, {vr(gg)}, {vr(t(14))}""")
        for f in range(8): e(f'v_readlane_b32 {sr(sH+f)}, {vr(gg)}, {4*f}')
        acc = t(16)
        for f in range(8):
            sel = 'op_sel_hi:[1,0,1]' if f % 2 == 0 else 'op_sel:[0,1,0] op_sel_hi:[1,1,1]'
            if f == 0: e(f'v_pk_mul_f32 {vr(acc,2)}, {vr(FD,2)}, {sr(sH,2)} op_sel_hi:[1,0]')
            else: e(f'v_pk_fma_f32 {vr(acc,2)}, {vr(FD+2*f,2)}, {sr(sH + (f & ~1),2)}, {vr(acc,2)} {sel}')
        ws_store(2, acc, aP8, part)
        e(f'{ln}:')

    def reducer(part, final):
        ln = g.lab('nored')
        red_index()
        e(f"""s_cmp_ge_u32 {sr(sT3)}, 32
        s_cbranch_scc1 {ln}""")
        if not final and not opt.get('oldred'): e('s_waitcnt vmcnt(0)')
        NLD = (NF + 15)//16
        e(f"""v_lshrrev_b32 {vr(t(20))}, 4, v0
        v_and_b32 {vr(t(22))}, 15, v0
        v_lshlrev_b32 {vr(t(22))}, 2, {vr(t(22))}
        s_lshl_b32 {sr(sT)}, {sr(sT3)}, 6
        v_add_u32 {vr(t(25))}, {sr(sT)}, {vr(t(22))}
        v_lshl_add_u32 {vr(t(21))}, {vr(t(20))}, 11, {vr(t(25))}
        v_add_u32 {vr(t(23))}, {16*(NLD-1)*2048}, {vr(t(21))}
        v_mov_b32 {vr(t(24))}, 0x7f000000
        v_cmp_gt_u32 vcc, {NF - 16*(NLD-1)}, {vr(t(20))}
        v_cndmask_b32 {vr(t(23))}, {vr(t(24))}, {vr(t(23))}, vcc""")
        A = t(0); B4 = t(12)
        lds_ = []
        for k in range(NLD - 1):
            lds_.append(f's_mov_b32 {sr(sOff)}, {part + 16*k*2048}\n' + ws_load_text(1, A+k, t(21), sr(sOff)))
        lds_.append(f's_mov_b32 {sr(sOff)}, {part}\n' + ws_load_text(1, A+NLD-1, t(23), sr(sOff)))
        regs = list(range(A, A+NLD))
        if final:
            lds_.append(ws_load_text(1, B4, t(25), sr(sRec), 'offset:1152')); regs.append(B4)
        poll('\n'.join(lds_), regs)
        n = NLD
        while n > 1:
            h = n//2
            for k in range(h): e(f'v_add_f32 {vr(A+k)}, {vr(A+k)}, {vr(A+n-1-k)}')
            n -= h
        for sw in ('v_permlane16_swap_b32', 'v_permlane32_swap_b32'):
            e(f'v_mov_b32 {vr(A+1)}, {vr(A)}\n{sw} {vr(A)}, {vr(A+1)}\nv_add_f32 {vr(A)}, {vr(A)}, {vr(A+1)}')
        e(f"""s_lshl_b32 {sr(sT)}, {sr(sW)}, 2
        v_lshl_add_u32 {vr(t(24))}, {vr(t(22))}, 2, {sr(sT)}
        v_lshlrev_b32 {vr(t(26))}, 2, {vr(t(22))}
        s_mov_b64 exec, 0xffff
        ds_write_b32 {vr(t(24))}, {vr(A)} offset:{RED}
        s_mov_b64 exec, -1
        s_waitcnt lgkmcnt(0)
        s_barrier
        s_cmp_lg_u32 {sr(sW)}, 0
        s_cbranch_scc1 {ln}
        ds_read_b128 {vr(t(28),4)}, {vr(t(26))} offset:{RED}
        s_waitcnt lgkmcnt(0)
        v_add_f32 {vr(t(28))}, {vr(t(28))}, {vr(t(29))}
        v_add_f32 {vr(t(30))}, {vr(t(30))}, {vr(t(31))}
        v_add_f32 {vr(t(28))}, {vr(t(28))}, {vr(t(30))}""")
        if final:
            e(f"""v_add_f32 {vr(t(28))}, {vr(t(28))}, {vr(B4)}
            s_lshl_b32 {sr(sT)}, {sr(sStar)}, 10
            v_lshrrev_b32 {vr(t(25))}, 1, {vr(t(25))}
            v_mov_b32_dpp {vr(t(29))}, {vr(t(28))} quad_perm:[1,0,3,2] {DPP}
            v_add_u32 {vr(t(25))}, {sr(sT)}, {vr(t(25))}
            v_cvt_pk_bf16_f32 {vr(t(28))}, {vr(t(28))}, {vr(t(29))}
            s_mov_b64 exec, 0x5555
            buffer_store_dword {vr(t(28))}, {vr(t(25))}, {sr(sOUT,4)}, 0 offen sc1
            s_mov_b64 exec, -1""")
        else:
            e(f"""s_mov_b32 {sr(sOff)}, {UPD0}
            s_mov_b64 exec, 0xffff
            buffer_store_dword {vr(t(28))}, {vr(t(25))}, {sr(sWS,4)}, {sr(sOff)} offen sc1
            s_mov_b64 exec, -1""")
        e(f'{ln}:')

    if opt.get('addrvalu'): addr_p1()
    if opt.get('rowvalu'): row_consts()
    stamp('preamble')
    e(f's_waitcnt vmcnt({N_ALL-1})\nv_readfirstlane_b32 {sr(sTag)}, {vr(vCa)}\ns_add_u32 {sr(sTag)}, {sr(sTag)}, 1')
    stamp('x0')
    unpack_nat(XU, URAW); unpack_rev(XV, VRAW, t(16))
    stats2(False)
    norm_coeffs(hRho, hB)
    make_g()
    e(f's_waitcnt vmcnt({N_ALL - N_ROWTAB})')
    transform(HB0, tagged=True, pre_store=lambda: e(f's_waitcnt vmcnt({N_ALL - N_POISON})'))
    stamp('P1 stored')
    finish_here('P1')
    special_k(KB0, False)
    srd(sT4, kwr, 1024)
    e(f'''v_lshlrev_b32 {vr(t(2))}, 4, {vr(vL)}
    v_sub_u32 {vr(t(3))}, 1008, {vr(t(2))}
    buffer_load_dwordx4 {vr(WURAW,4)}, {vr(t(2))}, {sr(sT4,4)}, 0 offen
    buffer_load_dwordx4 {vr(WVRAW,4)}, {vr(t(3))}, {sr(sT4,4)}, 0 offen''')
    if opt.get('addrvalu'):
        for k in (2, 3):
            e(f'v_add_u32 {vr(t(4))}, {TOFF["addr"] + 4096*k}, {vr(lG)}\nglobal_load_dwordx4 {vr(AD+4*k,4)}, {vr(t(4))}, {sr(sPC,2)}')
    addr_misc()
    if not opt.get('addrvalu'): addr_ym4()
    LATE = opt.get('latepois', '0') == '1'
    red_index()
    e(f"""s_lshl_b32 {sr(sT)}, {sr(sT3)}, 6
    v_lshlrev_b32 {vr(t(10))}, 2, v0
    v_add_u32 {vr(t(10))}, {sr(sT)}, {vr(t(10))}
    v_cmp_gt_u32 vcc, 16, v0
    s_cmp_lt_u32 {sr(sT3)}, 32
    s_cselect_b64 {sr(sEx,2)}, vcc, 0
    v_mov_b32 {vr(t(11))}, 0x7f000000
    v_cndmask_b32 {vr(t(10))}, {vr(t(11))}, {vr(t(10))}, {sr(sEx,2)}""")
    def poison1():
        poison_regs()
        if EP < 1:
            ws_store(4, PZ, aP16, HB1); ws_store(4, PZ, aP16, CAND0)
        if EP < 3: ws_store(2, PZ, aP8, PART0)
        ws_store(1, PZ, t(10), UPD0)
    def poison2():
        if EP >= 3: return
        poison_regs()
        if EP < 2:
            ws_store(4, PZ, aP16, YB1); ws_store(4, PZ, aP16, CAND1)
        ws_store(2, PZ, aP8, PART1)
    if not LATE: poison1()
    e(f's_bfe_u32 {sr(sT)}, {sr(sRho)}, 0x10003\ns_lshl_b32 {sr(sT)}, {sr(sT)}, 4\nv_xor_b32 {vr(t(39))}, {sr(sT)}, {vr(lG)}')
    e(f'v_add_u32 {vr(t(39))}, {TOFF["addr2"]}, {vr(t(39))}\nglobal_load_dwordx4 {vr(t(44),4)}, {vr(t(39))}, {sr(sPC,2)}')
    if not opt.get('nohint'):
        lh = g.lab('hw')
        e(f'''v_and_b32 {vr(vCa)}, 7, {vr(vL)}
        v_lshlrev_b32 {vr(vCa)}, 8, {vr(vCa)}
        s_cmp_lg_u32 {sr(sW)}, 0
        s_cbranch_scc1 {lh}
        s_mov_b32 {sr(sOff)}, {HINT}''')
        e(ws_load_text(1, vSa, vCa, sr(sOff)))
        e(f'{lh}:')
    col_consts_a()
    if not opt.get('splitc'): col_consts_b()
    stamp('shadow1')
    if not opt.get('nohint'):
        lh = g.lab('hw2'); lp = g.lab('hp')
        e(f'''s_cmp_lg_u32 {sr(sW)}, 0
        s_cbranch_scc1 {lh}
        s_mov_b32 {sr(sCnt)}, 0
        s_mov_b32 {sr(sOff)}, {HINT}
        {lp}:
        s_waitcnt vmcnt(0)
        v_cmp_ne_u32 vcc, {sr(sTag)}, {vr(vSa)}
        s_cbranch_vccz {lh}
        s_add_u32 {sr(sCnt)}, {sr(sCnt)}, 1
        s_cmp_gt_u32 {sr(sCnt)}, {LIMIT}
        s_cbranch_scc1 {lh}
        s_sleep 4''')
        e(ws_load_text(1, vSa, vCa, sr(sOff)))
        e(f's_branch {lp}\n{lh}:\ns_waitcnt vmcnt(0)\ns_barrier')
    if opt.get('ack1'): e('s_waitcnt vmcnt(0)')
    stamp('hint')
    column(HB0, YB0, False, tagged=True, behind_poll=(poison1, 4) if LATE else None)
    stamp('P2 stored')
    finish_here('P2')
    if not LATE: poison2()
    lnn = g.lab('nononce')
    e(f'''s_cmp_lg_u32 {sr(sRowU)}, 0
    s_cbranch_scc1 {lnn}
    v_mov_b32 {vr(t(0))}, {sr(sTag)}
    v_mov_b32 {vr(t(1))}, 0
    s_mov_b64 exec, 1''')
    ws_store(1, t(0), t(1), NONCE)
    e(f's_mov_b64 exec, -1\n{lnn}:')
    if opt.get('addrvalu'): addr_ym4()
    unpack_nat(WU, WURAW); unpack_rev(WV, WVRAW, t(16))
    e(f"""v_pk_add_f32 {vr(t(16),2)}, {vr(WU,2)}, {vr(WU+2,2)}
    v_pk_add_f32 {vr(t(18),2)}, {vr(WU+4,2)}, {vr(WU+6,2)}
    v_pk_add_f32 {vr(t(16),2)}, {vr(t(16),2)}, {vr(t(18),2)}
    v_add_f32 {vr(t(16))}, {vr(t(16))}, {vr(t(17))}""")
    wave_reduce([t(16)], [t(17)])
    e(f'v_readfirstlane_b32 {sr(sSW)}, {vr(t(16))}')
    stamp('shadow2')
    e('s_waitcnt vmcnt(0)')
    row_input(YB0, KB0, behind_poll=(poison2, 3) if LATE else None)
    add_y_pair()
    stats2(True)
    make_key()
    residual_coeffs()
    e(f"""v_mul_f32 {vr(t(23))}, {vr(t(21))}, {vr(t(21))}
    v_mul_f32 {vr(t(23))}, {vr(t(23))}, {vr(hVar)}
    v_add_f32 {vr(t(23))}, {fbits(1e-5)}, {vr(t(23))}
    v_rsq_f32 {vr(t(23))}, {vr(t(23))}
    s_waitcnt lgkmcnt(0)
    s_barrier""")
    wg_best_read(t(24))
    e(f"""v_mul_f32 {vr(t(22))}, {vr(t(21))}, {vr(t(23))}
    v_mul_f32 {vr(t(23))}, -{vr(hM)}, {vr(t(22))}""")
    norm_coeffs(t(22), t(23))
    e('s_waitcnt lgkmcnt(0)')
    if LATE: e('s_waitcnt vmcnt(0)')
    wg_best_header(CAND0, t(24))
    stamp('hdr0')
    make_g()
    transform(HB1, pre_core=lambda: residual_update(XU, XV), post_scatter=lambda: publish_rows(CAND0))
    stamp('P3 stored')
    finish_here('P3')
    K = t(0)
    header_load(CAND0, vSig)
    SETUP_LATE = opt.get('setuplate', '0') == '1'
    if not SETUP_LATE:
        lfs = g.lab('nosetup')
        e(f's_cmp_ge_u32 {sr(sPhi)}, {NF}\ns_cbranch_scc1 {lfs}')
        ffn_setup()
        e(f'{lfs}:')
    special_k(KB1, True)
    e(f's_waitcnt vmcnt(0)\nv_mov_b32 {vr(K)}, {vr(vSig)}')
    argmax(CAND0, K, after_check=lambda: column_load(HB1))
    stamp('argmax0')
    lb = g.lab('nobase')
    e(f"""s_cmp_ge_u32 {sr(sW)}, 2
    s_cbranch_scc1 {lb}
    v_lshlrev_b32 {vr(t(21))}, 5, {vr(vL)}
    buffer_load_dwordx4 {vr(FX,4)}, {vr(t(21))}, {sr(sWS,4)}, {sr(sRec)} offen offset:1152 sc1
    buffer_load_dwordx4 {vr(FX+4,4)}, {vr(t(21))}, {sr(sWS,4)}, {sr(sRec)} offen offset:1168 sc1
    {lb}:""")
    lb = g.lab('nox')
    e(f's_cmp_ge_u32 {sr(sPhi)}, {NF}\ns_cbranch_scc1 {lb}')
    xsel_load()
    if SETUP_LATE: ffn_setup()
    e(f'{lb}:')
    sigmoid_of_key()
    e(f"""s_mul_i32 {sr(sT)}, {sr(sRowU)}, {sr(sStar)}
    s_and_b32 {sr(sT)}, {sr(sT)}, 2047
    v_cvt_f32_u32 {vr(vCa)}, {sr(sT)}
    v_mul_f32 {vr(vCa)}, {fbits(1/2048)}, {vr(vCa)}
    v_sin_f32 {vr(vSa)}, {vr(vCa)}
    v_cos_f32 {vr(vCa)}, {vr(vCa)}
    v_mul_f32 {vr(vSa)}, {fbits(1/32)}, {vr(vSa)}
    v_mul_f32 {vr(vCa)}, {fbits(1/32)}, {vr(vCa)}
    v_cvt_pk_f16_f32 {vr(vSa)}, {vr(vSa)}, {vr(vSa)}
    v_cvt_pk_f16_f32 {vr(vCa)}, {vr(vCa)}, {vr(vCa)}
    s_waitcnt vmcnt(0)""")
    stamp('xsel')
    ffn(PART0)
    stamp('ffn0')
    column(HB1, YB1, True)
    stamp('P4 stored')
    finish_here('P4')
    reducer(PART0, False)
    stamp('red0')
    lb = g.lab('nobase')
    e(f's_cmp_ge_u32 {sr(sW)}, 2\ns_cbranch_scc1 {lb}')
    e(f'v_lshlrev_b32 {vr(t(21))}, 5, {vr(vL)}')
    poll(f'buffer_load_dwordx4 {vr(FX,4)}, {vr(t(21))}, {sr(sWS,4)}, {sr(sRec)} offen offset:1152 sc1\n'
         f'buffer_load_dwordx4 {vr(FX+4,4)}, {vr(t(21))}, {sr(sWS,4)}, {sr(sRec)} offen offset:1168 sc1', range(FX, FX+8), preloaded=True)
    stats1(FX, t(0), FO)
    e(f'{lb}:')
    e('s_waitcnt vmcnt(0)')
    row_input(YB1, KB1)
    stamp('y1 read')
    lj = g.lab('fixj'); lq = g.lab('fix'); lu = g.lab('ownu'); lv = g.lab('ownv')
    U = t(16)
    updld = lambda areg: (ws_load_text(4, U, areg, sr(sOff)) + '\n' + ws_load_text(4, U+4, areg, sr(sOff), 'offset:16'))
    def owner_add():
        l1 = g.lab('nu'); l2 = g.lab('nv')
        e(f's_cmp_lg_u32 {sr(sStar)}, {sr(sRowU)}\ns_cbranch_scc1 {l1}')
        for k in range(4): e(f'v_pk_add_f32 {vr(XU+2*k,2)}, {vr(XU+2*k,2)}, {vr(U+2*k,2)}')
        e(f'{l1}:')
    e(f"""v_lshlrev_b32 {vr(t(44))}, 5, {vr(vL)}
    s_mov_b32 {sr(sOff)}, {UPD0}""")
    lnv = g.lab('notv')
    e(f"""s_cmp_lg_u32 {sr(sStar)}, {sr(sRowV)}
    s_cbranch_scc1 {lnv}
    v_sub_u32 {vr(t(45))}, {63*32}, {vr(t(44))}""")
    poll(updld(t(45)), range(U, U+8), backoff=4)
    e(f'v_mov_b32_dpp {vr(t(46))}, {vr(U)} wave_ror:1 {DPP}')
    for k in range(1, 8): e(f'v_add_f32 {vr(XV+k)}, {vr(XV+k)}, {vr(U+8-k)}')
    e(f'v_add_f32 {vr(XV)}, {vr(XV)}, {vr(t(46))}\n{lnv}:')
    e(f"""s_cmp_lt_u32 {sr(sW)}, 2
    s_cbranch_scc1 {lq}
    s_cmp_lg_u32 {sr(sStar)}, {sr(sRowU)}
    s_cbranch_scc1 {lj}""")
    poll(updld(t(44)), range(U, U+8), backoff=4)
    owner_add()
    e(f's_branch {lj}\n{lq}:')
    poll(updld(t(44)), range(U, U+8), backoff=4)
    stamp('upd')
    owner_add()
    for k in range(4): e(f'v_pk_add_f32 {vr(FX+2*k,2)}, {vr(FX+2*k,2)}, {vr(U+2*k,2)}')
    stats1(FX, t(32), FX)
    for k in range(4): e(f'v_pk_add_f32 {vr(FX+2*k,2)}, {vr(FX+2*k,2)}, {vr(FO+2*k,2)} neg_lo:[0,1] neg_hi:[0,1]')
    write_n(FX, t(24)); write_r(FX, t(40))
    A, B = CA, t(40)
    for k in range(8): e(f'v_mov_b32 {vr(FO+k)}, {vr(YH+k)}')
    e(f"""s_mov_b32 {sr(sT)}, 0x3c003c00
    s_cmp_eq_u32 {sr(sW)}, 0
    s_cselect_b32 {sr(sSgn)}, {sr(sT)}, 0xbc00bc00
    ds_read_b64_tr_b16 {vr(A,2)}, {vr(lTr)} offset:{GIMG}
    ds_read_b64_tr_b16 {vr(B,2)}, {vr(lTr)} offset:{RIMG}
    ds_read_b64_tr_b16 {vr(A+2,2)}, {vr(lTr)} offset:{GIMG+128}
    ds_read_b64_tr_b16 {vr(B+2,2)}, {vr(lTr)} offset:{RIMG+128}
    s_waitcnt lgkmcnt(0)""")
    for k in range(4): e(f'v_pk_fma_f16 {vr(A+k)}, {vr(B+k)}, {sr(sSgn)}, {vr(A+k)}')
    core(A, CO)
    for k in range(4): e(f'v_cvt_pk_f16_f32 {vr(t(44)+k)}, {vr(CO+2*k)}, {vr(CO+2*k+1)}')
    e(f"""v_lshl_add_u32 {vr(t(0))}, {vr(vQ)}, 7, {vr(vN)}
    v_lshlrev_b32 {vr(t(1))}, 7, {vr(vQ)}
    v_sub_u32 {vr(t(1))}, {32*23}, {vr(t(1))}
    v_add_u32 {vr(t(1))}, {vr(t(1))}, {vr(vN)}
    v_cmp_gt_u32 vcc, 2, {vr(vQ)}
    v_cndmask_b32 {vr(t(0))}, {vr(t(1))}, {vr(t(0))}, vcc
    v_lshlrev_b32 {vr(t(0))}, 1, {vr(t(0))}
    s_lshl_b32 {sr(sT)}, {sr(sW)}, 10
    v_add_u32 {vr(t(0))}, {sr(sT)}, {vr(t(0))}
    v_mov_b32 {vr(t(2))}, 64
    v_mov_b32 {vr(t(3))}, -64
    v_cndmask_b32 {vr(t(2))}, {vr(t(3))}, {vr(t(2))}, vcc""")
    for i in range(4):
        op = 'ds_write_b16' if i % 2 == 0 else 'ds_write_b16_d16_hi'
        for Tt in range(2):
            e(f'{op} {vr(t(0))}, {vr(t(44)+2*Tt+i//2)} offset:{RIMG + 2048 + 32*Tt}')
        if i < 3: e(f'v_add_u32 {vr(t(0))}, {vr(t(0))}, {vr(t(2))}')
    for k in range(8): e(f'v_mov_b32 {vr(YH+k)}, {vr(FO+k)}')
    e(f"""{lj}:
    s_waitcnt lgkmcnt(0)
    s_barrier
    v_lshlrev_b32 {vr(t(0))}, 4, {vr(vL)}
    ds_read_b128 {vr(t(16),4)}, {vr(t(0))} offset:{RIMG+2048}
    ds_read_b128 {vr(t(20),4)}, {vr(t(0))} offset:{RIMG+2048+1024}
    s_waitcnt lgkmcnt(1)""")
    lsp = g.lab('fsp')
    for k in range(4): e(f'v_pk_fma_f16 {vr(YH+k)}, {vr(t(16)+k)}, {vr(vCa)}, {vr(YH+k)}')
    e(f'''s_cmp_lg_u32 {sr(sRowU)}, 0
    s_cbranch_scc1 {lsp}
    s_mov_b32 {sr(sT)}, 0x28002800
    s_bitcmp0_b32 {sr(sStar)}, 0
    s_cselect_b32 {sr(sT)}, {sr(sT)}, 0xa800a800''')
    for k in range(4): e(f'v_pk_fma_f16 {vr(YV+k)}, {vr(t(16)+k)}, {sr(sT)}, {vr(YV+k)}')
    e(f'{lsp}:\ns_waitcnt lgkmcnt(0)')
    for k in range(4): e(f'v_pk_fma_f16 {vr(YH+k)}, {vr(t(20)+k)}, {vr(vSa)}, {vr(YH+k)}')
    add_y_pair()
    stamp('fixed')
    stats2(True)
    make_key()
    residual_coeffs()
    e('s_waitcnt lgkmcnt(0)\ns_barrier')
    wg_best_read(t(24))
    residual_update(XU, XV)
    e('s_waitcnt lgkmcnt(0)')
    wg_best_header(CAND1, t(24))
    publish_rows(CAND1)
    def out_u():
        for k in range(4): e(f'v_cvt_pk_bf16_f32 {vr(t(24)+k)}, {vr(XU+2*k)}, {vr(XU+2*k+1)}')
        e(f'buffer_store_dwordx4 {vr(t(24),4)}, {vr(aU)}, {sr(sOUT,4)}, 0 offen sc1')
    def out_v():
        e(f"""v_mov_b32_dpp {vr(t(32))}, {vr(XV)} wave_rol:1 {DPP}
        v_cvt_pk_bf16_f32 {vr(t(29))}, {vr(XV+6)}, {vr(XV+5)}
        v_cvt_pk_bf16_f32 {vr(t(30))}, {vr(XV+4)}, {vr(XV+3)}
        v_cvt_pk_bf16_f32 {vr(t(31))}, {vr(XV+2)}, {vr(XV+1)}
        v_cvt_pk_bf16_f32 {vr(t(28))}, {vr(t(32))}, {vr(XV+7)}
        buffer_store_dwordx4 {vr(t(28),4)}, {vr(aV)}, {sr(sOUT,4)}, 0 offen sc1""")
    EARLY = opt.get('early1')
    if EARLY:
        e(f"""s_cmp_gt_u32 {sr(sKeyV)}, {sr(sKeyU)}
        s_cselect_b32 {sr(sH)}, 2, 1
        s_cmp_eq_u32 {sr(sSgn)}, 0
        s_cselect_b32 {sr(sH)}, 0, {sr(sH)}""")
        l1 = g.lab('du'); l2 = g.lab('dv')
        e(f's_cmp_eq_u32 {sr(sH)}, 1\ns_cbranch_scc1 {l1}'); out_u(); e(f'{l1}:')
        e(f's_cmp_eq_u32 {sr(sH)}, 2\ns_cbranch_scc1 {l2}'); out_v(); e(f'{l2}:')
        e(f's_mov_b32 {sr(sH+1)}, {sr(sH)}')
        if EARLY == 'b': e('s_barrier')
        elif EARLY == 'w': e('s_waitcnt vmcnt(0)\ns_barrier')
    else:
        e('s_waitcnt vmcnt(0)\ns_barrier')
    stamp('cand1')
    header_load(CAND1, K)
    e('s_waitcnt vmcnt(0)')
    argmax(CAND1, K)
    stamp('argmax1')
    lb = g.lab('nox')
    e(f's_cmp_ge_u32 {sr(sPhi)}, {NF}\ns_cbranch_scc1 {lb}')
    xsel_load()
    e(f'{lb}:')
    sigmoid_of_key()
    if EARLY:
        l1 = g.lab('eu'); l2 = g.lab('ev')
        e(f's_cmp_lg_u32 {sr(sH+1)}, 1\ns_cbranch_scc1 {l1}\ns_cmp_eq_u32 {sr(sStar)}, {sr(sRowU)}\ns_cbranch_scc1 {l1}'); out_u(); e(f'{l1}:')
        e(f's_cmp_lg_u32 {sr(sH+1)}, 2\ns_cbranch_scc1 {l2}\ns_cmp_eq_u32 {sr(sStar)}, {sr(sRowV)}\ns_cbranch_scc1 {l2}'); out_v(); e(f'{l2}:')
    else:
        ln = g.lab('noout')
        e(f's_cmp_eq_u32 {sr(sStar)}, {sr(sRowU)}\ns_cbranch_scc1 {ln}'); out_u(); e(f'{ln}:')
        ln = g.lab('noout')
        e(f's_cmp_eq_u32 {sr(sStar)}, {sr(sRowV)}\ns_cbranch_scc1 {ln}'); out_v(); e(f'{ln}:')
    e('s_waitcnt vmcnt(0)')
    ffn(PART1)
    stamp('ffn1')
    e('s_waitcnt vmcnt(0)')
    reducer(PART1, True)
    stamp('end')
    e('L_done:')
    if stamps:
        ls = g.lab('nost')
        e(f"""s_cmp_ge_u32 s2, 256
        s_cbranch_scc1 {ls}
        s_waitcnt vmcnt(0)
        s_mov_b64 exec, -1
        s_lshl_b32 {sr(sT)}, {sr(sWg)}, 11
        s_lshl_b32 {sr(sT2)}, {sr(sW)}, 8
        s_add_u32 {sr(sT)}, {sr(sT)}, {sr(sT2)}
        v_and_b32 {vr(t(0))}, 63, v0
        v_lshlrev_b32 {vr(t(0))}, 2, {vr(t(0))}
        v_add_u32 {vr(t(0))}, {sr(sT)}, {vr(t(0))}
        s_mov_b32 {sr(sOff)}, {STAMP}
        buffer_store_dword {vr(vStamp)}, {vr(t(0))}, {sr(sWS,4)}, {sr(sOff)} offen
        {ls}:""")
    e('s_endpgm')
    loader()
    for ls, lj in g.late:
        e(f'{ls}:')
        add_y(YH, YV)
        e(f's_branch {lj}')
    emit_tail()
    return g

def render(g):
    lines, added = pad(g.L)
    body = '\n'.join(('' if l.endswith(':') else '    ') + l for l in lines)
    ninstr = sum(1 for l in lines if not l.endswith(':'))
    hdr = f"""; FNet (2-D real DFT via Hartley factorisation on MFMA) + top-1 routed SwiGLU, two layers, one persistent launch.
; @launch grid=(256,1,1) block=(320,1,1) lds={LDS_SIZE}
.amdgcn_target "amdgcn-amd-amdhsa--gfx950"
.text
.globl {NAME}
.p2align 8
.type {NAME},@function
{NAME}:
"""
    tab = '\n'.join('.long ' + ','.join('0x%08x' % x for x in TAB[i:i+8]) for i in range(0, len(TAB), 8))
    tail = f"""
L_code_end:
.p2align 8
L_tab:
{tab}
.section .rodata,"a"
.p2align 6
.amdhsa_kernel {NAME}
  .amdhsa_next_free_vgpr 256
  .amdhsa_next_free_sgpr 102
  .amdhsa_accum_offset 256
  .amdhsa_group_segment_fixed_size 0
  .amdhsa_kernarg_size 104
  .amdhsa_user_sgpr_count 2
  .amdhsa_user_sgpr_kernarg_segment_ptr 1
  .amdhsa_system_sgpr_workgroup_id_x 1
.end_amdhsa_kernel
"""
    return hdr + body + tail, ninstr, added

if __name__ == '__main__':
    import argparse
    ap = argparse.ArgumentParser()
    ap.add_argument('-o', default='interleave_layers__spectral_fnet__moe_arch_mod__prompt.s')
    ap.add_argument('--stop'); ap.add_argument('--stamps', action='store_true'); ap.add_argument('--opt', default='')
    a = ap.parse_args()
    g = build(a.stop, a.stamps, {k.split('=')[0]: (k.split('=')+['1'])[1] for k in a.opt.split(',') if k})
    txt, n, added = render(g)
    open(a.o, 'w').write(txt)
    print(f'{n} instructions, {added} nop slots added, vgpr high {g.v.n}, sgpr high {g.s.n}')
```

```python
import sys, struct, math
from asmlib import pad, Alloc
import tables

NAME = "interleave_layers__spectral_fnet__moe_arch_mod__prompt_kernel"
NONCE = 0x000000
HB0, YB0, HB1, YB1 = 0x100000, 0x300000, 0x400000, 0x500000
CAND0, CAND1 = 0x600000, 0x700000
PART0, PART1 = 0x800000, 0x880000
UPD0 = 0x900000
KB0, KB1 = 0x901000, 0x902000
HINT = 0x903000
STAMP = 0x980000
WS_SIZE = 0xA00000
NF = 172
LIMIT = 40000
NPOIS = 64
YIMG = 0
GIMG = 5120
RIMG = 9216
HIMG = 13312
CIN = 17472
COUT = 21952
KIMG = 26048
FP = 27136
AM = 27392
RED = 27456
GU = 27776
DN = GU + 16384
LDS_SIZE = DN + 8192
LMAP = dict(YIMG=YIMG, GIMG=GIMG, RIMG=RIMG, HIMG=HIMG, CIN=CIN, COUT=COUT)
TAB, TOFF = tables.build_tables(LMAP)

def fbits(x): return '0x%08x' % struct.unpack('<I', struct.pack('<f', x))[0]

class G:
    def __init__(self, stop=None, stamps=False):
        self.L = []; self.stop = stop; self.stamps = stamps; self.uid = 0; self.nstamp = 0; self.names = []
        self.v = Alloc(1, 256, 'v'); self.s = Alloc(3, 100, 's')
    def e(self, text):
        for l in text.strip('\n').split('\n'):
            l = l.strip()
            if l: self.L.append(l)
    def lab(self, p):
        self.uid += 1; return f'L_{p}_{self.uid}'

def vr(a, n=1): return f'v{a}' if n == 1 else f'v[{a}:{a+n-1}]'
def sr(a, n=1): return f's{a}' if n == 1 else f's[{a}:{a+n-1}]'
DPP = 'row_mask:0xf bank_mask:0xf'
PKB = 'op_sel:[0,0,1] op_sel_hi:[1,0,1]'

def build(stop=None, stamps=False, opt=None):
    opt_raw = dict(opt or {})
    opt = dict(opt or {})
    if not opt.get('nodefault'):
        opt.setdefault('lpf', 'lin'); opt.setdefault('splitc', '1'); opt.setdefault('rowvalu', '1'); opt.setdefault('addrvalu', '1'); opt.setdefault('earlyp', '1'); opt.setdefault('lplan', '0:da/1:b/4:u')
        if 'lplan' not in opt_raw: opt.setdefault('lcnt', '0.3.3.2.4.2.2')
    g = G(stop, stamps); e = g.e; V = g.v; S = g.s
    sWS = S('ws', 4, 4); sXS = S('xsrd', 4, 4); sOUT = S('out', 4, 4); sT4 = S('tmpsrd', 4, 4)
    sRho = S('rho'); sW = S('w'); sRowU = S('rowu'); sRowV = S('rowv'); sVs = S('vs'); sOff = S('off'); sCnt = S('cnt')
    sT = S('t'); sT2 = S('t2'); sT3 = S('t3'); s16 = S('k16'); sStar = S('star'); sRec = S('rec'); sWg = S('wg'); sSW = S('sw')
    sCu = S('cu', 2, 2); sCv = S('cv', 2, 2); sEx = S('exsave', 2, 2)
    sAu = S('au', 2, 2); sAv = S('av', 2, 2); sKu = S('ku', 2, 2); sKv = S('kv', 2, 2); sKeyU = S('keyu'); sKeyV = S('keyv'); sKey = S('key')
    sTag = S('tag'); sMz, sMc = sAu, sAv; sH = S('h', 8, 2); sTm = S('tm', 2, 2); sPC = S('pc', 2, 2); sM2 = S('m2', 2, 2); sPhi = S('phi'); sSgn = S('sgn')
    sKA = S('ka', 16, 4); sKB = S('kb', 8, 4); sKC = S('kc', 2, 2)
    vL = V('lane'); vN = V('n'); vQ = V('q')
    XU = V('XU', 8, 4); XV = V('XV', 8, 4); WU = V('WU', 8, 2); WV = V('WV', 8, 2)
    RB1 = V('RB1', 16, 4); RC = V('RC', 8, 2); RS = V('RS', 8, 2); RA2 = V('RA2', 4, 4)
    CB1 = V('CB1', 8, 4); CK = V('CK', 32, 2); CA2 = V('CA2', 16, 4)
    assert RC == RB1+16 and RS == RB1+24 and RA2 == RB1+32 and CK == CB1+8
    FA = V('FA', 16, 4); FD = V('FD', 16, 4)
    AD = V('addr', 16, 4)
    lRow, lTr, lRw, lCr, lH, _, lHf, _, lCa, lCb, lCc, lYd = range(AD, AD+12)
    lCo = AD + 12; lYm = AD + 15
    aU = V('aU'); aV = V('aV'); aP16 = V('aP16'); aS16 = V('aS16'); aHdr = V('aHdr'); aP8 = V('aP8')
    lYm4 = V('lYm4'); lG = V('lG')
    vRowH = V('rowh'); vSig = V('sig'); vSent = V('sent'); vCa = V('cosa'); vSa = V('sina'); vStamp = V('stamp')
    FX = V('FX', 8, 4); FO = V('FO', 8, 4)
    NT = 256 - ((V.n + 3)//4*4)
    T = V('T', NT, 4)
    def t(i):
        assert i < NT, i
        return T + i
    DU, DV = t(0), t(8)

    def stamp(name=''):
        if not g.stamps: return
        if opt.get('only') and name not in opt['only'].split('+'): return
        e(f'''s_memrealtime {sr(sTm,2)}
        s_waitcnt lgkmcnt(0)
        v_writelane_b32 {vr(vStamp)}, {sr(sTm)}, {g.nstamp}''')
        g.nstamp += 1; g.names.append(name)
    def finish_here(tag):
        if g.stop == tag: e('s_branch L_done')

    def sentinel(regs):
        if isinstance(regs, tuple) and regs[0] == 'tag':
            P = regs[1]
            e(f'''v_bitop3_b32 {vr(vSent)}, {vr(P+1)}, {vr(P+3)}, {sr(sTag)} bitop3:0x7e
            v_bitop3_b32 {vr(P+1)}, {vr(P+5)}, {vr(P+7)}, {sr(sTag)} bitop3:0x7e
            v_or_b32 {vr(vSent)}, {vr(vSent)}, {vr(P+1)}
            v_cmp_ne_u32 vcc, 0, {vr(vSent)}''')
            return
        regs = list(regs); tm = vSent
        if len(regs) == 1:
            e(f'v_cmp_eq_u32 vcc, -1, {vr(regs[0])}')
        else:
            if len(regs) >= 3:
                e(f'v_max3_u32 {vr(tm)}, {vr(regs[0])}, {vr(regs[1])}, {vr(regs[2])}'); rest = regs[3:]
            else:
                e(f'v_max_u32 {vr(tm)}, {vr(regs[0])}, {vr(regs[1])}'); rest = []
            while len(rest) >= 2:
                e(f'v_max3_u32 {vr(tm)}, {vr(tm)}, {vr(rest[0])}, {vr(rest[1])}'); rest = rest[2:]
            if rest: e(f'v_max_u32 {vr(tm)}, {vr(tm)}, {vr(rest[0])}')
            e(f'v_cmp_eq_u32 vcc, -1, {vr(tm)}')
    def poll(load, regs, backoff=2, preloaded=False):
        lp = g.lab('poll'); ok = g.lab('ok')
        if preloaded:
            sentinel(regs)
            e(f's_cbranch_vccnz {lp}\n{ok}:')
            g.tail.append((lp, ok, load, regs if isinstance(regs, tuple) else list(regs), backoff))
        else:
            e(load); e('s_waitcnt vmcnt(0)')
            sentinel(regs)
            e(f's_cbranch_vccnz {lp}\n{ok}:')
            g.tail.append((lp, ok, load, regs if isinstance(regs, tuple) else list(regs), backoff))
    g.tail = []
    g.nbar_mark = None
    def emit_tail():
        g.sites = []
        for idx, (lp, ok, load, regs, backoff) in enumerate(g.tail):
            l2 = lp + '_r'
            e(f'{lp}:\ns_mov_b32 {sr(sCnt)}, 0\n{l2}:\ns_sleep {backoff}')
            if stamps:
                g.sites.append(load.split('\n')[-1][:60])
                e(f'v_readlane_b32 {sr(sTm)}, {vr(vStamp)}, {40+idx}\ns_nop 3\ns_add_u32 {sr(sTm)}, {sr(sTm)}, 1\ns_nop 3\nv_writelane_b32 {vr(vStamp)}, {sr(sTm)}, {40+idx}')
            e(load)
            e(f'''s_add_u32 {sr(sCnt)}, {sr(sCnt)}, 1
            s_cmp_gt_u32 {sr(sCnt)}, {LIMIT}
            s_cbranch_scc1 L_done
            s_waitcnt vmcnt(0)''')
            sentinel(regs)
            e(f's_cbranch_vccnz {l2}\ns_branch {ok}')
    def red_index():
        if opt.get('oldred'):
            e(f's_sub_u32 {sr(sT3)}, {sr(sWg)}, 8')
        else:
            e(f'''s_sub_u32 {sr(sT3)}, {sr(sRho)}, 192
            s_bitcmp1_b32 {sr(sRho)}, 0
            s_cselect_b32 {sr(sT3)}, -1, {sr(sT3)}
            s_lshr_b32 {sr(sT3)}, {sr(sT3)}, 1''')
    def srd(dst, ptr, size):
        e(f'''s_mov_b32 {sr(dst)}, {sr(ptr)}
        s_mov_b32 {sr(dst+1)}, {sr(ptr+1)}
        s_mov_b32 {sr(dst+2)}, {size}
        s_mov_b32 {sr(dst+3)}, 0x00020000''')
    def ws_store(n, data, areg, region, extra=''):
        op = {1: 'buffer_store_dword', 2: 'buffer_store_dwordx2', 4: 'buffer_store_dwordx4'}[n]
        e(f's_mov_b32 {sr(sOff)}, {region}\n{op} {vr(data,n)}, {vr(areg)}, {sr(sWS,4)}, {sr(sOff)} offen sc1 {extra}')
    def ws_load_text(n, data, areg, soff, extra=''):
        op = {1: 'buffer_load_dword', 2: 'buffer_load_dwordx2', 4: 'buffer_load_dwordx4'}[n]
        return f'{op} {vr(data,n)}, {vr(areg)}, {sr(sWS,4)}, {soff} offen {extra} sc1'
    PZ = t(40)
    def poison_regs():
        for k in range(4): e(f'v_mov_b32 {vr(PZ+k)}, -1')

    e(f's_cmp_ge_u32 s2, 256\ns_cbranch_scc1 L_done')
    if stamps: e(f's_memrealtime {sr(sM2,2)}')
    e(f'''s_load_dwordx16 {sr(sKA,16)}, s[0:1], 0
    s_load_dwordx8 {sr(sKB,8)}, s[0:1], 64
    s_load_dwordx2 {sr(sKC,2)}, s[0:1], 96''')
    PFN = opt.get('pfn')
    PFPRE = f's_cmp_ge_u32 s2, {PFN}\ns_cbranch_scc1 L_nopf\n' if PFN else ''
    PFPOST = 'L_nopf:\n' if PFN else ''
    e(f'''s_getpc_b64 {sr(sPC,2)}
    L_pc:
    {PFPRE}v_lshlrev_b32 {vr(t(0))}, 7, v0
    v_min_u32 {vr(t(0))}, L_code_end-L_pc-4, {vr(t(0))}
    global_load_dword {vr(vSig)}, {vr(t(0))}, {sr(sPC,2)}
    {PFPOST}s_add_u32 {sr(sPC)}, {sr(sPC)}, L_tab-L_pc
    s_addc_u32 {sr(sPC+1)}, {sr(sPC+1)}, 0''')
    e(f'''s_mov_b32 {sr(sWg)}, s2
    s_and_b32 {sr(sT)}, s2, 7
    s_lshl_b32 {sr(sT)}, {sr(sT)}, 5
    s_lshr_b32 {sr(sRho)}, s2, 3
    s_or_b32 {sr(sRho)}, {sr(sRho)}, {sr(sT)}
    v_lshrrev_b32 {vr(t(1))}, 6, v0
    v_and_b32 {vr(vL)}, 63, v0
    v_readfirstlane_b32 {sr(sW)}, {vr(t(1))}
    v_lshlrev_b32 {vr(t(2))}, 4, {vr(vL)}
    v_sub_u32 {vr(t(3))}, 1008, {vr(t(2))}
    s_lshl_b32 {sr(sT)}, {sr(sRho)}, 2
    s_add_u32 {sr(sRowU)}, {sr(sT)}, {sr(sW)}
    s_sub_u32 {sr(sRowV)}, 2048, {sr(sRowU)}
    s_cmp_eq_u32 {sr(sRowU)}, 0
    s_cselect_b32 {sr(sRowV)}, 1024, {sr(sRowV)}
    s_lshl_b32 {sr(sT)}, {sr(sRowU)}, 10
    s_lshl_b32 {sr(sT2)}, {sr(sRowV)}, 10
    v_add_u32 {vr(aU)}, {sr(sT)}, {vr(t(2))}
    v_add_u32 {vr(aV)}, {sr(sT2)}, {vr(t(3))}
    v_lshlrev_b32 {vr(lG)}, 4, v0
    s_waitcnt lgkmcnt(0)''')
    kx, kwr, kwg = sKA + 0, sKA + 12, sKA + 14
    kwu, kwd, kout, kdbg = sKB + 0, sKB + 2, sKB + 4, sKB + 6
    URAW, VRAW = t(8), t(12)
    WURAW, WVRAW = FX, FX + 4
    e(f's_sub_u32 {sr(sPhi)}, {sr(sRho)}, 1\ns_cmp_eq_u32 {sr(sW)}, 4\ns_cbranch_scc1 L_loader')
    if opt.get('prio'): e(f's_setprio {opt["prio"]}')
    srd(sXS, kx, 2097152)
    e(f'''buffer_load_dwordx4 {vr(URAW,4)}, {vr(aU)}, {sr(sXS,4)}, 0 offen {opt.get('xfl','')}
    buffer_load_dwordx4 {vr(VRAW,4)}, {vr(aV)}, {sr(sXS,4)}, 0 offen {opt.get('xfl','')}''')
    srd(sWS, sKC, WS_SIZE)
    e(f'v_mov_b32 {vr(vCa)}, {NONCE}\nbuffer_load_dword {vr(vCa)}, {vr(vCa)}, {sr(sWS,4)}, 0 offen')
    nvm = [1]
    def tab_loads(dst, n, areg, off, stride):
        k = 0
        while k < n:
            base = off + k*stride
            per = {1024: 4, 4096: 1}[stride]
            e(f'v_add_u32 {vr(t(4))}, {base}, {vr(areg)}')
            for kk in range(min(per, n-k)):
                e(f'global_load_dwordx4 {vr(dst+4*(k+kk),4)}, {vr(t(4))}, {sr(sPC,2)} offset:{kk*stride}')
                nvm[0] += 1
            k += per
    if not opt.get('addrvalu'): tab_loads(AD, 4, lG, TOFF['addr'], 4096)
    if not opt.get('rowvalu'): tab_loads(RB1, 9, t(2), TOFF['row'], 1024)
    N_ROWTAB = nvm[0]
    if stamps:
        e(f'v_mov_b32 {vr(vStamp)}, 0\nv_writelane_b32 {vr(vStamp)}, {sr(sM2)}, 0'); g.nstamp = 1; g.names.append('start')
    poison_regs()
    e(f'''s_lshl_b32 {sr(sT)}, {sr(sRho)}, 12
    v_add_u32 {vr(aP16)}, {sr(sT)}, {vr(lG)}''')
    ws_store(4, PZ, aP16, YB0)
    nvm[0] += 1
    EP = int(opt.get('earlyp', 0))
    if EP >= 1:
        ws_store(4, PZ, aP16, HB1); ws_store(4, PZ, aP16, CAND0); nvm[0] += 2
    if EP >= 2:
        ws_store(4, PZ, aP16, YB1); ws_store(4, PZ, aP16, CAND1); nvm[0] += 2
    if EP >= 3:
        e(f'''s_sub_u32 {sr(sT2)}, {sr(sRho)}, 1
        s_lshl_b32 {sr(sT)}, {sr(sT2)}, 11
        s_cmp_lt_u32 {sr(sT2)}, {NF}
        s_cselect_b32 {sr(sT)}, {sr(sT)}, 0x7f000000
        v_lshlrev_b32 {vr(aP8)}, 3, v0
        v_add_u32 {vr(aP8)}, {sr(sT)}, {vr(aP8)}''')
        ws_store(2, PZ, aP8, PART0); ws_store(2, PZ, aP8, PART1); nvm[0] += 2
    lkb = g.lab('nokb')
    e(f'''s_cmp_lg_u32 {sr(sRowU)}, 0
    s_cbranch_scc1 {lkb}
    v_lshlrev_b32 {vr(t(5))}, 4, {vr(vL)}''')
    ws_store(4, PZ, t(5), KB0)
    ws_store(4, PZ, t(5), KB1)
    e(f'{lkb}:')
    if opt.get('touchhb') == 'w':
        e(f's_lshl_b32 {sr(sT)}, {sr(sRho)}, 13\nv_add_u32 {vr(t(6))}, {sr(sT)}, {vr(lG)}')
        ws_store(4, PZ, t(6), HB0); ws_store(4, PZ, t(6), HB0 + 4096)
        nvm[0] += 2
    if opt.get('touchhb') == 'r':
        e(f's_lshl_b32 {sr(sT)}, {sr(sRho)}, 13\nv_lshlrev_b32 {vr(t(6))}, 5, v0\nv_add_u32 {vr(t(6))}, {sr(sT)}, {vr(t(6))}\ns_mov_b32 {sr(sOff)}, {HB0}')
        e(f'buffer_load_dword {vr(vSa)}, {vr(t(6))}, {sr(sWS,4)}, {sr(sOff)} offen')
        nvm[0] += 1
    N_POISON = nvm[0]
    N_ALL = nvm[0]
    srd(sOUT, kout, 2097152)
    e(f'''s_mov_b32 {sr(s16)}, {fbits(16.0)}
    v_and_b32 {vr(vN)}, 15, {vr(vL)}
    v_lshrrev_b32 {vr(vQ)}, 4, {vr(vL)}''')

    a0, a1, a2, a3 = t(20), t(21), t(22), t(23)
    def addr_misc():
        e(f'''s_lshl_b32 {sr(sT)}, {sr(sRho)}, 4
        v_lshlrev_b32 {vr(aHdr)}, 12, v0
        v_add_u32 {vr(aS16)}, {sr(sT)}, {vr(aHdr)}
        v_mov_b32 {vr(a0)}, {sr(sRowU)}
        v_mov_b32 {vr(a1)}, {sr(sRowV)}
        v_cmp_gt_u32 vcc, 32, {vr(vL)}
        s_lshl_b32 {sr(sT)}, {sr(sPhi)}, 11
        s_cmp_lt_u32 {sr(sPhi)}, {NF}
        s_cselect_b32 {sr(sT)}, {sr(sT)}, 0x7f000000
        v_cndmask_b32 {vr(vRowH)}, {vr(a1)}, {vr(a0)}, vcc
        v_lshlrev_b32 {vr(aP8)}, 3, v0
        v_add_u32 {vr(aP8)}, {sr(sT)}, {vr(aP8)}
        v_mov_b32 {vr(a0)}, 0
        v_lshlrev_b32 {vr(a1)}, 10, {vr(vL)}
        s_mov_b64 exec, 31
        ds_write_b16 {vr(a1)}, {vr(a0)} offset:{YIMG}
        s_mov_b64 exec, -1''')
    def addr_p1():
        x0_, x1_, x2_, x3_, x4_ = t(20), t(21), t(22), t(23), t(24)
        e(f'''s_lshl_b32 {sr(sT)}, {sr(sW)}, 10
        v_lshlrev_b32 {vr(x2_)}, 4, {vr(vL)}
        v_add_u32 {vr(lRow)}, {sr(sT)}, {vr(x2_)}
        s_add_u32 {sr(sT2)}, {sr(sT)}, {RIMG+1008}
        v_sub_u32 {vr(lRw)}, {sr(sT2)}, {vr(x2_)}
        v_lshrrev_b32 {vr(x3_)}, 2, {vr(vN)}
        v_lshl_add_u32 {vr(x2_)}, {vr(vQ)}, 3, {vr(x3_)}
        v_lshlrev_b32 {vr(x2_)}, 5, {vr(x2_)}
        v_and_b32 {vr(x3_)}, 3, {vr(vN)}
        v_lshl_add_u32 {vr(x2_)}, {vr(x3_)}, 3, {vr(x2_)}
        v_add_u32 {vr(lTr)}, {sr(sT)}, {vr(x2_)}
        v_lshrrev_b32 {vr(x3_)}, 3, {vr(vN)}
        v_add_u32 {vr(x3_)}, {vr(x3_)}, {vr(vN)}
        v_lshlrev_b32 {vr(x3_)}, 4, {vr(x3_)}
        v_mul_u32_u24 {vr(x4_)}, {tables.CIN_QS}, {vr(vQ)}
        v_add_u32 {vr(lCr)}, {vr(x3_)}, {vr(x4_)}
        v_add_u32 {vr(lCr)}, {CIN}, {vr(lCr)}''')
        e(f'''s_sub_u32 {sr(sT3)}, 4, {sr(sW)}
        s_and_b32 {sr(sT3)}, {sr(sT3)}, 3
        s_add_u32 {sr(sT3)}, {sr(sT3)}, 4
        s_lshl_b32 {sr(sT3)}, {sr(sT3)}, 1
        s_lshl_b32 {sr(sT2)}, {sr(sW)}, 1
        v_lshlrev_b32 {vr(x0_)}, 7, {vr(vQ)}
        v_add_u32 {vr(x1_)}, {vr(x0_)}, {vr(vN)}
        v_sub_u32 {vr(x2_)}, {vr(x0_)}, {vr(vN)}
        v_and_b32 {vr(x3_)}, 8, {vr(x1_)}
        v_and_b32 {vr(x4_)}, 8, {vr(x2_)}
        v_xor_b32 {vr(x3_)}, {sr(sT2)}, {vr(x3_)}
        v_xor_b32 {vr(x4_)}, {sr(sT3)}, {vr(x4_)}
        v_lshl_add_u32 {vr(x1_)}, {vr(x1_)}, 4, {vr(x3_)}
        v_lshl_add_u32 {vr(x2_)}, {vr(x2_)}, 4, {vr(x4_)}
        v_add_u32 {vr(x1_)}, {HIMG}, {vr(x1_)}
        v_add_u32 {vr(x2_)}, {HIMG - 224*16}, {vr(x2_)}
        v_cmp_gt_u32 vcc, 2, {vr(vQ)}
        v_add_u32 {vr(x3_)}, 256, {vr(x1_)}
        v_subrev_u32 {vr(x4_)}, 256, {vr(x2_)}
        v_cndmask_b32 {vr(lH)}, {vr(x2_)}, {vr(x1_)}, vcc
        v_cndmask_b32 {vr(lH+1)}, {vr(x4_)}, {vr(x3_)}, vcc
        s_add_u32 {sr(sT2)}, {sr(sT2)}, {HIMG}
        s_add_u32 {sr(sT3)}, {sr(sT3)}, {HIMG}
        v_mov_b32 {vr(x0_)}, {HIMG+4112}
        v_mov_b32 {vr(x1_)}, {sr(sT2)}
        v_mov_b32 {vr(x2_)}, {sr(sT3)}
        v_cmp_eq_u32 vcc, 48, {vr(vL)}
        v_cndmask_b32 {vr(lHf)}, {vr(x0_)}, {vr(x1_)}, vcc
        v_cndmask_b32 {vr(lHf+1)}, {vr(x0_)}, {vr(x2_)}, vcc''')
    def addr_ym4():
        e(f'''s_cmp_eq_u32 {sr(sRho)}, 0
        s_cselect_b32 {sr(sT)}, 4096, 0
        v_add_u32 {vr(lYm4)}, {sr(sT)}, {vr(lYm)}''')

    b0, b1, b2 = t(24), t(25), t(26)
    vTau, vTlo = t(28), t(29)
    def tau_tlo():
        e(f'''s_lshl_b32 {sr(sT)}, {sr(sW)}, 3
        v_and_b32 {vr(vTau)}, 7, {vr(vN)}
        v_add_u32 {vr(vTau)}, {sr(sT)}, {vr(vTau)}
        v_sub_u32 {vr(a0)}, 64, {vr(vTau)}
        v_mov_b32 {vr(a1)}, 32
        v_cmp_eq_u32 {sr(sMz,2)}, 0, {vr(vTau)}
        v_cndmask_b32 {vr(a0)}, {vr(a0)}, {vr(a1)}, {sr(sMz,2)}
        v_cmp_le_u32 vcc, 8, {vr(vN)}
        v_cndmask_b32 {vr(vTlo)}, {vr(vTau)}, {vr(a0)}, vcc
        s_andn2_b64 {sr(sMc,2)}, vcc, {sr(sMz,2)}''')
    c0, c1 = t(30), t(31)
    def cos_seq(dst, base, step, n, amp=None):
        for j in range(0, n, 2):
            e(f'v_cos_f32 {vr(c0)}, {vr(base)}\nv_add_f32 {vr(base)}, {vr(base)}, {vr(step)}')
            e(f'v_cos_f32 {vr(c1)}, {vr(base)}')
            if j + 2 < n: e(f'v_add_f32 {vr(base)}, {vr(base)}, {vr(step)}')
            if amp is not None:
                e(f'v_mul_f32 {vr(c0)}, {amp}, {vr(c0)}\nv_mul_f32 {vr(c1)}, {amp}, {vr(c1)}')
            e(f'v_cvt_pk_f16_f32 {vr(dst + j//2)}, {vr(c0)}, {vr(c1)}')
    fQ, fN, fs, fb, fa, fb2 = t(32), t(33), t(34), t(35), t(36), t(37)
    def row_consts():
        e(f'v_cvt_f32_u32 {vr(fQ)}, {vr(vQ)}\nv_cvt_f32_u32 {vr(fN)}, {vr(vN)}')
        e(f'v_mul_f32 {vr(fs)}, {fbits(1/32)}, {vr(fN)}\nv_mul_f32 {vr(fa)}, {fbits(8.0)}, {vr(fQ)}')
        for part in range(2):
            e(f'v_mul_f32 {vr(fb)}, {vr(fa)}, {vr(fs)}')
            if part: e(f'v_add_f32 {vr(fb)}, {fbits(0.25)}, {vr(fb)}')
            cos_seq(RB1 + part*4, fb, fs, 8)
        for k in range(8): e(f'v_xor_b32 {vr(RB1+8+k)}, 0x80000000, {vr(RB1+k)}')
        e(f'v_mul_f32 {vr(fa)}, 4.0, {vr(fQ)}')
        for Tt in range(2):
            e(f'''v_add_f32 {vr(fs)}, {fbits(16.0*Tt)}, {vr(fN)}
            v_mul_f32 {vr(fs)}, {fbits(1/512)}, {vr(fs)}
            v_mul_f32 {vr(fb)}, {vr(fa)}, {vr(fs)}''')
            for i in range(4):
                e(f'v_cos_f32 {vr(RC+4*Tt+i)}, {vr(fb)}\nv_sin_f32 {vr(RS+4*Tt+i)}, {vr(fb)}')
                if i < 3: e(f'v_add_f32 {vr(fb)}, {vr(fb)}, {vr(fs)}')
        e(f'''v_sub_u32 {vr(fs)}, 23, {vr(vN)}
        v_cmp_gt_u32 vcc, 8, {vr(vN)}
        v_cndmask_b32 {vr(fs)}, {vr(fs)}, {vr(vN)}, vcc
        v_cvt_f32_u32 {vr(fs)}, {vr(fs)}
        v_mul_f32 {vr(fs)}, {fbits(1/16)}, {vr(fs)}
        v_mul_f32 {vr(fb2)}, {vr(fa)}, {vr(fs)}''')
        for part, ph in ((0, 0.125), (1, -0.125)):
            e(f'v_add_f32 {vr(fb)}, {fbits(ph)}, {vr(fb2)}')
            cos_seq(RA2 + 2*part, fb, fs, 4, amp=fbits(math.sqrt(2)))
    def col_consts_a():
        tau_tlo()
        e(f'''v_cvt_f32_u32 {vr(fQ)}, {vr(vQ)}
        v_cmp_le_u32 vcc, 8, {vr(vN)}
        s_and_b64 vcc, vcc, {sr(sMz,2)}
        v_mov_b32 {vr(a1)}, 32
        v_cndmask_b32 {vr(a0)}, {vr(vTau)}, {vr(a1)}, vcc
        v_cvt_f32_u32 {vr(fs)}, {vr(a0)}
        v_mul_f32 {vr(fs)}, {fbits(1/64)}, {vr(fs)}
        v_mov_b32 {vr(fa)}, {fbits(0.25)}
        v_cndmask_b32 {vr(fa)}, 0, {vr(fa)}, {sr(sMc,2)}
        v_mul_f32 {vr(fb)}, {fbits(8.0)}, {vr(fQ)}
        v_fma_f32 {vr(fb)}, {vr(fb)}, {vr(fs)}, {vr(fa)}''')
        cos_seq(CB1, fb, fs, 8)
        e(f'''v_and_b32 {vr(a0)}, 1, {vr(a0)}
        v_mul_u32_u24 {vr(a0)}, 0x8000, {vr(a0)}
        v_lshl_or_b32 {vr(a0)}, {vr(a0)}, 16, {vr(a0)}''')
        for k in range(4): e(f'v_xor_b32 {vr(CB1+4+k)}, {vr(a0)}, {vr(CB1+k)}')
    def col_consts_b():
        e(f'v_cvt_f32_u32 {vr(fQ)}, {vr(vQ)}')
        e(f'''v_cvt_f32_u32 {vr(fs)}, {vr(vTlo)}
        v_mul_f32 {vr(fs)}, {fbits(1/2048)}, {vr(fs)}
        v_mul_f32 {vr(fb)}, {vr(fQ)}, {vr(fs)}
        v_fma_f32 {vr(fb)}, {vr(fb)}, 4.0, {vr(fa)}
        v_mov_b32 {vr(a1)}, {fbits(0.25)}
        v_cndmask_b32 {vr(a1)}, {vr(a1)}, 0, {sr(sMz,2)}''')
        e(f'v_add_f32 {vr(fb2)}, {fbits(-0.25)}, {vr(fb)}')
        e(f'v_mul_f32 {vr(a2)}, {fbits(12.0)}, {vr(fs)}')
        for Tt in range(2):
            for i in range(4):
                k = CK + 16*Tt
                e(f'''v_cos_f32 {vr(c0)}, {vr(fb)}
                v_cos_f32 {vr(c1)}, {vr(fb2)}
                v_add_f32 {vr(fb)}, {vr(fb)}, {vr(fs)}
                v_add_f32 {vr(fb2)}, {vr(fb2)}, {vr(fs)}
                v_mul_f32 {vr(k+i)}, {fbits(0.25)}, {vr(c0)}
                v_mul_f32 {vr(k+4+i)}, {vr(a1)}, {vr(c1)}
                v_mul_f32 {vr(k+8+i)}, {fbits(-0.25)}, {vr(c1)}
                v_mul_f32 {vr(k+12+i)}, {vr(a1)}, {vr(c0)}''')
            if Tt == 0: e(f'v_add_f32 {vr(fb)}, {vr(fb)}, {vr(a2)}\nv_add_f32 {vr(fb2)}, {vr(fb2)}, {vr(a2)}')
        e(f'''v_cvt_f32_u32 {vr(fs)}, {vr(vN)}
        v_mul_f32 {vr(fs)}, {fbits(1/32)}, {vr(fs)}
        v_mul_f32 {vr(fb2)}, {vr(fQ)}, {vr(fs)}
        v_mul_f32 {vr(fb2)}, 4.0, {vr(fb2)}''')
        for part, ph in ((0, -0.125), (1, -0.375)):
            e(f'v_add_f32 {vr(fb)}, {fbits(ph)}, {vr(fb2)}')
            cos_seq(CA2 + 2*part, fb, fs, 4, amp=fbits(math.sqrt(2)/8))
        e(f'''v_and_b32 {vr(a0)}, 1, {vr(vN)}
        v_mul_u32_u24 {vr(a0)}, 0x8000, {vr(a0)}
        v_lshl_or_b32 {vr(a0)}, {vr(a0)}, 16, {vr(a0)}''')
        for k in range(4):
            e(f'v_xor_b32 {vr(CA2+4+k)}, {vr(a0)}, {vr(CA2+k)}')
        for k in range(8):
            e(f'v_xor_b32 {vr(CA2+8+k)}, 0x80000000, {vr(CA2+k)}')

    def unpack_nat(dst, src):
        for k in range(4):
            e(f'v_lshlrev_b32 {vr(dst+2*k)}, 16, {vr(src+k)}\nv_and_b32 {vr(dst+2*k+1)}, 0xffff0000, {vr(src+k)}')
    def unpack_rev(dst, src, tmp):
        e(f'''v_lshlrev_b32 {vr(tmp)}, 16, {vr(src)}
        v_and_b32 {vr(dst+7)}, 0xffff0000, {vr(src)}
        v_lshlrev_b32 {vr(dst+6)}, 16, {vr(src+1)}
        v_and_b32 {vr(dst+5)}, 0xffff0000, {vr(src+1)}
        v_mov_b32_dpp {vr(dst)}, {vr(tmp)} wave_ror:1 {DPP}
        v_lshlrev_b32 {vr(dst+4)}, 16, {vr(src+2)}
        v_and_b32 {vr(dst+3)}, 0xffff0000, {vr(src+2)}
        v_lshlrev_b32 {vr(dst+2)}, 16, {vr(src+3)}
        v_and_b32 {vr(dst+1)}, 0xffff0000, {vr(src+3)}''')
    def half_reduce(regs, tmps, op='v_add_f32'):
        for sh in (8, 4, 2, 1):
            for r in regs: e(f'{op}_dpp {vr(r)}, {vr(r)}, {vr(r)} row_ror:{sh} {DPP}')
        for r, tm in zip(regs, tmps): e(f'v_mov_b32 {vr(tm)}, {vr(r)}')
        for r, tm in zip(regs, tmps): e(f'v_permlane16_swap_b32 {vr(r)}, {vr(tm)}')
        for r, tm in zip(regs, tmps): e(f'{op} {vr(r)}, {vr(r)}, {vr(tm)}')
    def wave_reduce(regs, tmps, op='v_add_f32'):
        half_reduce(regs, tmps, op)
        for r, tm in zip(regs, tmps): e(f'v_mov_b32 {vr(tm)}, {vr(r)}')
        for r, tm in zip(regs, tmps): e(f'v_permlane32_swap_b32 {vr(r)}, {vr(tm)}')
        for r, tm in zip(regs, tmps): e(f'{op} {vr(r)}, {vr(r)}, {vr(tm)}')
    hM, hVar, hRho, hB, hR = t(40), t(41), t(42), t(43), t(44)
    def partial(Dd, src, sC, w, o1, o2, o3, P, read=True):
        if read: e(f'v_readfirstlane_b32 {sr(sC)}, {vr(src)}')
        for k in range(4):
            e(f'v_pk_add_f32 {vr(Dd+2*k,2)}, {vr(src+2*k,2)}, {sr(sC,2)} op_sel_hi:[1,0] neg_lo:[0,1] neg_hi:[0,1]')
        e(f'''v_pk_add_f32 {vr(P,2)}, {vr(Dd,2)}, {vr(Dd+2,2)}
        v_pk_mul_f32 {vr(P+2,2)}, {vr(Dd,2)}, {vr(Dd,2)}
        v_pk_add_f32 {vr(P+4,2)}, {vr(Dd+4,2)}, {vr(Dd+6,2)}''')
        if w is not None: e(f'v_pk_mul_f32 {vr(P+6,2)}, {vr(Dd,2)}, {vr(w,2)}')
        for k in range(1, 4):
            e(f'v_pk_fma_f32 {vr(P+2,2)}, {vr(Dd+2*k,2)}, {vr(Dd+2*k,2)}, {vr(P+2,2)}')
            if w is not None: e(f'v_pk_fma_f32 {vr(P+6,2)}, {vr(Dd+2*k,2)}, {vr(w+2*k,2)}, {vr(P+6,2)}')
            if k == 1: e(f'v_pk_add_f32 {vr(P,2)}, {vr(P,2)}, {vr(P+4,2)}')
        e(f'v_add_f32 {vr(o1)}, {vr(P)}, {vr(P+1)}\nv_add_f32 {vr(o2)}, {vr(P+2)}, {vr(P+3)}')
        if w is not None: e(f'v_add_f32 {vr(o3)}, {vr(P+6)}, {vr(P+7)}')
    def moments(S1, S2):
        e(f'''v_mul_f32 {vr(hM)}, {fbits(1/512)}, {vr(S1)}
        v_mul_f32 {vr(S2)}, {fbits(1/512)}, {vr(S2)}
        v_fma_f32 {vr(hVar)}, -{vr(hM)}, {vr(hM)}, {vr(S2)}
        v_add_f32 {vr(S2)}, {fbits(1e-5)}, {vr(hVar)}
        v_rsq_f32 {vr(hRho)}, {vr(S2)}''')
    def stats2(with_r):
        a1_, a2_, a3_, b1_, b2_, b3_ = t(16), t(17), t(18), t(19), t(20), t(21)
        e(f'v_readfirstlane_b32 {sr(sCu)}, {vr(XU)}\nv_readfirstlane_b32 {sr(sCv)}, {vr(XV)}')
        partial(DV, XV, sCv, WV if with_r else None, b1_, b2_, b3_, t(32), read=False) if False else None
        partial(DU, XU, sCu, WU if with_r else None, a1_, a2_, a3_, t(24), read=False)
        partial(DV, XV, sCv, WV if with_r else None, b1_, b2_, b3_, t(32), read=False)
        pairs = [(a1_, b1_), (a2_, b2_)] + ([(a3_, b3_)] if with_r else [])
        for x, y in pairs: e(f'v_permlane32_swap_b32 {vr(x)}, {vr(y)}')
        for x, y in pairs: e(f'v_add_f32 {vr(x)}, {vr(x)}, {vr(y)}')
        half_reduce([x for x, _ in pairs], [y for _, y in pairs])
        moments(a1_, a2_)
        if with_r: e(f'v_fma_f32 {vr(a3_)}, -{vr(hM)}, {sr(sSW)}, {vr(a3_)}')
        e(f'v_mul_f32 {vr(hB)}, -{vr(hM)}, {vr(hRho)}')
        if with_r: e(f'v_mul_f32 {vr(hR)}, {vr(hRho)}, {vr(a3_)}')
    def stats1(src, Dd, dst):
        partial(Dd, src, sCu, None, t(16), t(17), None, t(24))
        wave_reduce([t(16), t(17)], [t(18), t(19)])
        moments(t(16), t(17))
        e(f'''v_readfirstlane_b32 {sr(sKu)}, {vr(hRho)}
        v_mul_f32 {vr(hB)}, -{vr(hM)}, {vr(hRho)}
        v_readfirstlane_b32 {sr(sKu+1)}, {vr(hB)}''')
        if dst is not None:
            for k in range(4): e(f'v_pk_fma_f32 {vr(dst+2*k,2)}, {vr(Dd+2*k,2)}, {sr(sKu,2)}, {sr(sKu,2)} {PKB}')
    def residual_coeffs():
        e(f'''v_mov_b32 {vr(t(22))}, {sr(sCu)}
        v_mov_b32 {vr(t(23))}, {sr(sCv)}
        v_cmp_gt_u32 vcc, 32, {vr(vL)}
        v_add_f32 {vr(t(21))}, 1.0, {vr(hRho)}
        v_cndmask_b32 {vr(t(22))}, {vr(t(23))}, {vr(t(22))}, vcc
        v_add_f32 {vr(t(22))}, {vr(t(22))}, {vr(hB)}
        v_readlane_b32 {sr(sAu)}, {vr(t(21))}, 0
        v_readlane_b32 {sr(sAv)}, {vr(t(21))}, 32
        v_readlane_b32 {sr(sAu+1)}, {vr(t(22))}, 0
        v_readlane_b32 {sr(sAv+1)}, {vr(t(22))}, 32''')
    def residual_update(dU, dV):
        for k in range(4): e(f'v_pk_fma_f32 {vr(dU+2*k,2)}, {vr(DU+2*k,2)}, {sr(sAu,2)}, {sr(sAu,2)} {PKB}')
        for k in range(4): e(f'v_pk_fma_f32 {vr(dV+2*k,2)}, {vr(DV+2*k,2)}, {sr(sAv,2)}, {sr(sAv,2)} {PKB}')
    def norm_coeffs(scale, bias):
        e(f'''v_readlane_b32 {sr(sKu)}, {vr(scale)}, 0
        v_readlane_b32 {sr(sKu+1)}, {vr(bias)}, 0
        v_readlane_b32 {sr(sKv)}, {vr(scale)}, 32
        v_readlane_b32 {sr(sKv+1)}, {vr(bias)}, 32''')
    GG = t(16)
    def make_g():
        for k in range(4): e(f'v_pk_fma_f32 {vr(GG+2*k,2)}, {vr(DU+2*k,2)}, {sr(sKu,2)}, {sr(sKu,2)} {PKB}')
        for k in range(4): e(f'v_pk_fma_f32 {vr(GG+2*k,2)}, {vr(DV+2*k,2)}, {sr(sKv,2)}, {vr(GG+2*k,2)} op_sel_hi:[1,0,1]')
    def write_n(src, tmp):
        for k in range(4): e(f'v_cvt_pk_f16_f32 {vr(tmp+k)}, {vr(src+2*k)}, {vr(src+2*k+1)}')
        e(f'ds_write_b128 {vr(lRow)}, {vr(tmp,4)} offset:{GIMG}')
    def write_r(src, tmp):
        e(f'''v_mov_b32_dpp {vr(tmp+4)}, {vr(src)} wave_rol:1 {DPP}
        v_cvt_pk_f16_f32 {vr(tmp+1)}, {vr(src+6)}, {vr(src+5)}
        v_cvt_pk_f16_f32 {vr(tmp+2)}, {vr(src+4)}, {vr(src+3)}
        v_cvt_pk_f16_f32 {vr(tmp+3)}, {vr(src+2)}, {vr(src+1)}
        v_cvt_pk_f16_f32 {vr(tmp)}, {vr(tmp+4)}, {vr(src+7)}
        ds_write_b128 {vr(lRw)}, {vr(tmp,4)}''')
    def core(A, O):
        Dr = [t(0), t(8)]; Di = [t(4), t(12)]
        for Tt in range(2):
            e(f'v_mfma_f32_16x16x32_f16 {vr(Dr[Tt],4)}, {vr(A,4)}, {vr(RB1+(2*Tt)*4,4)}, 0')
            e(f'v_mfma_f32_16x16x32_f16 {vr(Di[Tt],4)}, {vr(A,4)}, {vr(RB1+(2*Tt+1)*4,4)}, 0')
        Bo = [t(16), t(20)]; br, bi = t(24), t(28)
        for Tt in range(2):
            for h in range(2):
                c = vr(RC+4*Tt+2*h, 2); s_ = vr(RS+4*Tt+2*h, 2)
                dr = vr(Dr[Tt]+2*h, 2); di = vr(Di[Tt]+2*h, 2)
                e(f'''v_pk_mul_f32 {vr(br+2*h,2)}, {dr}, {c}
                v_pk_mul_f32 {vr(bi+2*h,2)}, {di}, {c}
                v_pk_fma_f32 {vr(br+2*h,2)}, {di}, {s_}, {vr(br+2*h,2)}
                v_pk_fma_f32 {vr(bi+2*h,2)}, {dr}, {s_}, {vr(bi+2*h,2)} neg_lo:[1,0,0] neg_hi:[1,0,0]''')
            e(f'''v_cvt_pk_f16_f32 {vr(Bo[Tt])}, {vr(br)}, {vr(br+1)}
            v_cvt_pk_f16_f32 {vr(Bo[Tt]+1)}, {vr(br+2)}, {vr(br+3)}
            v_cvt_pk_f16_f32 {vr(Bo[Tt]+2)}, {vr(bi)}, {vr(bi+1)}
            v_cvt_pk_f16_f32 {vr(Bo[Tt]+3)}, {vr(bi+2)}, {vr(bi+3)}''')
            e(f'v_mfma_f32_16x16x32_f16 {vr(O+4*Tt,4)}, {vr(RA2,4)}, {vr(Bo[Tt],4)}, 0')

    CA, CO = t(32), t(36)
    def transform(dst_off, tagged=False, pre_core=None, post_scatter=None, pre_store=None):
        write_n(GG, t(24))
        e(f"""ds_read_b64_tr_b16 {vr(CA,2)}, {vr(lTr)} offset:{GIMG}
        ds_read_b64_tr_b16 {vr(CA+2,2)}, {vr(lTr)} offset:{GIMG+128}""")
        if pre_core: pre_core()
        e('s_waitcnt lgkmcnt(0)')
        core(CA, CO)
        for k in range(4): e(f'v_cvt_pk_f16_f32 {vr(t(44)+k)}, {vr(CO+2*k)}, {vr(CO+2*k+1)}')
        for Tt in range(2):
            for i in range(4):
                op = 'ds_write_b16' if i % 2 == 0 else 'ds_write_b16_d16_hi'
                e(f'{op} {vr(lH+Tt)}, {vr(t(44) + 2*Tt + i//2)} offset:{512*i}')
        e(f'ds_write_b16_d16_hi {vr(lHf)}, {vr(t(45))}\nds_write_b16_d16_hi {vr(lHf+1)}, {vr(t(45))}')
        if post_scatter: post_scatter()
        if tagged:
            e(f"""v_lshlrev_b32 {vr(t(8))}, 3, v0
            s_lshl_b32 {sr(sT)}, {sr(sRho)}, 13
            v_add_u32 {vr(t(9))}, {sr(sT)}, {vr(lG)}""")
            for k in (1, 3, 5, 7): e(f'v_mov_b32 {vr(t(k))}, {sr(sTag)}')
            if pre_store: pre_store()
            e(f"""s_waitcnt lgkmcnt(0)
            s_barrier
            ds_read_b32 {vr(t(0))}, {vr(t(8))} offset:{HIMG}
            ds_read_b32 {vr(t(2))}, {vr(t(8))} offset:{HIMG+4}
            ds_read_b32 {vr(t(4))}, {vr(t(8))} offset:{HIMG+2048}
            ds_read_b32 {vr(t(6))}, {vr(t(8))} offset:{HIMG+2052}
            s_mov_b32 {sr(sOff)}, {dst_off}
            s_mov_b32 {sr(sT)}, {dst_off+4096}
            s_waitcnt lgkmcnt(2)
            buffer_store_dwordx4 {vr(t(0),4)}, {vr(t(9))}, {sr(sWS,4)}, {sr(sOff)} offen sc1
            s_waitcnt lgkmcnt(0)
            buffer_store_dwordx4 {vr(t(4),4)}, {vr(t(9))}, {sr(sWS,4)}, {sr(sT)} offen sc1""")
        else:
            if pre_store: pre_store()
            e(f"""s_waitcnt lgkmcnt(0)
            s_barrier
            ds_read_b128 {vr(t(0),4)}, {vr(lG)} offset:{HIMG}
            s_mov_b32 {sr(sOff)}, {dst_off}
            s_waitcnt lgkmcnt(0)
            buffer_store_dwordx4 {vr(t(0),4)}, {vr(aP16)}, {sr(sWS,4)}, {sr(sOff)} offen sc1""")

    def affine_from_x(sx1x0_u, sx1x0_v, sKu_, sKv_, outU, outV):
        for (xx, cc, kk, oo) in ((sx1x0_u, sCu, sKu_, outU), (sx1x0_v, sCv, sKv_, outV)):
            if xx is None:
                e(f"""v_mov_b32 {vr(t(44))}, {sr(kk)}
                v_mov_b32 {vr(t(45))}, {sr(kk+1)}
                v_fma_f32 {vr(t(45))}, -{vr(t(44))}, {sr(cc)}, {vr(t(45))}""")
            else:
                e(f"""v_rcp_f32 {vr(t(44))}, {sr(xx)}
                v_mov_b32 {vr(t(45))}, {sr(kk+1)}
                v_mul_f32 {vr(t(44))}, {sr(kk)}, {vr(t(44))}
                v_fma_f32 {vr(t(45))}, -{vr(t(44))}, {sr(xx+1)}, {vr(t(45))}""")
            e(f'v_readfirstlane_b32 {sr(oo)}, {vr(t(44))}\nv_readfirstlane_b32 {sr(oo+1)}, {vr(t(45))}')

    def special_k(dst_off, after_residual):
        ln = g.lab('nok')
        e(f's_cmp_lg_u32 {sr(sRowU)}, 0\ns_cbranch_scc1 {ln}')
        affine_from_x(sAu if after_residual else None, sAv if after_residual else None, sKu, sKv, sH, sH+2)
        ZU, ZV = t(0), t(8)
        for k in range(4): e(f'v_pk_fma_f32 {vr(ZU+2*k,2)}, {vr(XU+2*k,2)}, {sr(sH,2)}, {sr(sH,2)} {PKB}')
        for k in range(4): e(f'v_pk_fma_f32 {vr(ZV+2*k,2)}, {vr(XV+2*k,2)}, {sr(sH+2,2)}, {sr(sH+2,2)} {PKB}')
        write_r(ZU, t(16)); write_n(ZV, t(24))
        A, B = CA, t(40)
        e(f"""ds_read_b64_tr_b16 {vr(A,2)}, {vr(lTr)} offset:{RIMG}
        ds_read_b64_tr_b16 {vr(B,2)}, {vr(lTr)} offset:{GIMG}
        ds_read_b64_tr_b16 {vr(A+2,2)}, {vr(lTr)} offset:{RIMG+128}
        ds_read_b64_tr_b16 {vr(B+2,2)}, {vr(lTr)} offset:{GIMG+128}
        s_waitcnt lgkmcnt(0)""")
        for k in range(4): e(f'v_pk_add_f16 {vr(A+k)}, {vr(A+k)}, {vr(B+k)} neg_lo:[0,1] neg_hi:[0,1]')
        core(A, CO)
        for k in range(4): e(f'v_pk_mul_f32 {vr(CO+2*k,2)}, {vr(CO+2*k,2)}, {sr(sT2 if False else sM2,2)} op_sel_hi:[1,0]' if False else f'v_mul_f32 {vr(CO+2*k)}, {fbits(1/16)}, {vr(CO+2*k)}\nv_mul_f32 {vr(CO+2*k+1)}, {fbits(1/16)}, {vr(CO+2*k+1)}')
        for k in range(4): e(f'v_cvt_pk_f16_f32 {vr(t(44)+k)}, {vr(CO+2*k)}, {vr(CO+2*k+1)}')
        e(f"""v_lshl_add_u32 {vr(t(0))}, {vr(vQ)}, 7, {vr(vN)}
        v_lshlrev_b32 {vr(t(0))}, 1, {vr(t(0))}
        v_sub_u32 {vr(t(1))}, {1024-32-192}, {vr(t(0))}
        v_mov_b32 {vr(t(2))}, 512
        s_mov_b32 exec_lo, -1
        s_mov_b32 exec_hi, 0""")
        for Tt in range(2):
            for i in range(4):
                op = 'ds_write_b16' if i % 2 == 0 else 'ds_write_b16_d16_hi'
                e(f'{op} {vr(t(0))}, {vr(t(44)+2*Tt+i//2)} offset:{KIMG + 32*Tt + 64*i}')
                e(f'{op} {vr(t(1))}, {vr(t(44)+2*Tt+i//2)} offset:{KIMG + 32*(1-Tt) + 64*(3-i)}')
        e(f"""s_mov_b32 exec_lo, 0
        s_mov_b32 exec_hi, 0x00010000
        ds_write_b16_d16_hi {vr(t(2))}, {vr(t(45))} offset:{KIMG}
        s_mov_b64 exec, -1
        v_lshlrev_b32 {vr(t(3))}, 4, {vr(vL)}
        s_waitcnt lgkmcnt(0)
        ds_read_b128 {vr(t(4),4)}, {vr(t(3))} offset:{KIMG}
        s_mov_b32 {sr(sOff)}, {dst_off}
        s_waitcnt lgkmcnt(0)
        buffer_store_dwordx4 {vr(t(4),4)}, {vr(t(3))}, {sr(sWS,4)}, {sr(sOff)} offen sc1
        {ln}:""")

    PC = t(40)
    def column_load(src_off):
        e(f's_mov_b32 {sr(sOff)}, {src_off}')
        e(ws_load_text(4, PC, aS16, sr(sOff)))
    def column(src_off, dst_off, preloaded, tagged=False, behind_poll=None):
        P = PC
        e(f's_mov_b32 {sr(sOff)}, {src_off}')
        if tagged:
            P = t(0); A2 = t(44); AD1 = t(8)
            e(f'''v_lshrrev_b32 {vr(AD1)}, 1, v0
            v_lshlrev_b32 {vr(AD1)}, 13, {vr(AD1)}
            v_and_b32 {vr(t(9))}, 1, v0
            v_lshl_add_u32 {vr(AD1)}, {vr(t(9))}, 4, {vr(AD1)}
            s_lshl_b32 {sr(sT)}, {sr(sRho)}, 5
            v_add_u32 {vr(AD1)}, {sr(sT)}, {vr(AD1)}
            s_add_u32 {sr(sT3)}, {sr(sOff)}, {128*8192}''')
            ld = ws_load_text(4, P, AD1, sr(sOff)) + '\n' + ws_load_text(4, P+4, AD1, sr(sT3))
            if opt.get('splitc'):
                e(ld)
                nb = 0
                if behind_poll:
                    behind_poll[0](); nb = behind_poll[1]; e(f's_mov_b32 {sr(sOff)}, {src_off}')
                col_consts_b(); e(f's_waitcnt vmcnt({nb})')
                poll(ld, ('tag', P), preloaded=True)
            else:
                poll(ld, ('tag', P))
            stamp('col data')
            for k in range(2):
                e(f'''ds_write_b16 {vr(A2+2*k)}, {vr(P+4*k)}
                ds_write_b16_d16_hi {vr(A2+2*k+1)}, {vr(P+4*k)} offset:16
                ds_write_b16 {vr(A2+2*k+1)}, {vr(P+4*k+2)} offset:32
                ds_write_b16_d16_hi {vr(A2+2*k+1)}, {vr(P+4*k+2)} offset:48''')
            e('s_waitcnt lgkmcnt(0)\ns_barrier')
        else:
            poll(ws_load_text(4, P, aS16, sr(sOff)), range(P, P+4), preloaded=preloaded)
            lsw = g.lab('nosw')
            e(f's_bitcmp0_b32 {sr(sRho)}, 3\ns_cbranch_scc1 {lsw}\nv_swap_b32 {vr(P)}, {vr(P+2)}\nv_swap_b32 {vr(P+1)}, {vr(P+3)}\n{lsw}:')
            d = [P, P+1, P+2, P+3]
            stamp('col data')
            e(f"""ds_write_b16 {vr(lCa)}, {vr(d[0])}
            ds_write_b16_d16_hi {vr(lCa)}, {vr(d[0])} offset:16
            ds_write_b16 {vr(lCa)}, {vr(d[1])} offset:32
            ds_write_b16_d16_hi {vr(lCa)}, {vr(d[1])} offset:48
            ds_write_b16 {vr(lCb)}, {vr(d[2])}
            ds_write_b16_d16_hi {vr(lCc)}, {vr(d[2])} offset:16
            ds_write_b16 {vr(lCc)}, {vr(d[3])} offset:32
            ds_write_b16_d16_hi {vr(lCc)}, {vr(d[3])} offset:48
            s_waitcnt lgkmcnt(0)
            s_barrier""")
        A = t(0)
        for k in range(4): e(f'ds_read_b128 {vr(A+4*k,4)}, {vr(lCr)} offset:{tables.cin_block(k)}')
        D1 = [t(16), t(20)]
        e(f"""s_waitcnt lgkmcnt(3)
        v_mfma_f32_16x16x32_f16 {vr(D1[0],4)}, {vr(A,4)}, {vr(CB1,4)}, 0
        s_waitcnt lgkmcnt(2)
        v_mfma_f32_16x16x32_f16 {vr(D1[0],4)}, {vr(A+4,4)}, {vr(CB1+4,4)}, {vr(D1[0],4)}
        s_waitcnt lgkmcnt(1)
        v_mfma_f32_16x16x32_f16 {vr(D1[1],4)}, {vr(A+8,4)}, {vr(CB1,4)}, 0
        s_waitcnt lgkmcnt(0)
        v_mfma_f32_16x16x32_f16 {vr(D1[1],4)}, {vr(A+12,4)}, {vr(CB1+4,4)}, {vr(D1[1],4)}""")
        Bb = t(24); br, bi = t(28), t(32); Bo = [t(0), t(4)]
        O = [t(8), t(12)]
        for Tt in range(2):
            k = CK + 16*Tt
            for i in range(4): e(f'v_mov_b32_dpp {vr(Bb+i)}, {vr(D1[Tt]+i)} row_ror:8 {DPP}')
            for h in range(2):
                e(f"""v_pk_mul_f32 {vr(br+2*h,2)}, {vr(D1[Tt]+2*h,2)}, {vr(k+2*h,2)}
                v_pk_mul_f32 {vr(bi+2*h,2)}, {vr(D1[Tt]+2*h,2)}, {vr(k+8+2*h,2)}""")
            for h in range(2):
                e(f"""v_pk_fma_f32 {vr(br+2*h,2)}, {vr(Bb+2*h,2)}, {vr(k+4+2*h,2)}, {vr(br+2*h,2)}
                v_pk_fma_f32 {vr(bi+2*h,2)}, {vr(Bb+2*h,2)}, {vr(k+12+2*h,2)}, {vr(bi+2*h,2)}""")
            e(f"""v_cvt_pk_f16_f32 {vr(Bo[Tt])}, {vr(br)}, {vr(br+1)}
            v_cvt_pk_f16_f32 {vr(Bo[Tt]+1)}, {vr(br+2)}, {vr(br+3)}
            v_cvt_pk_f16_f32 {vr(Bo[Tt]+2)}, {vr(bi)}, {vr(bi+1)}
            v_cvt_pk_f16_f32 {vr(Bo[Tt]+3)}, {vr(bi+2)}, {vr(bi+3)}""")
            e(f"""v_mfma_f32_16x16x32_f16 {vr(O[0],4)}, {vr(CA2+4*Tt,4)}, {vr(Bo[Tt],4)}, {"0" if Tt == 0 else vr(O[0],4)}
            v_mfma_f32_16x16x32_f16 {vr(O[1],4)}, {vr(CA2+8+4*Tt,4)}, {vr(Bo[Tt],4)}, {"0" if Tt == 0 else vr(O[1],4)}""")
        e(f"""        v_cvt_pk_f16_f32 {vr(t(16))}, {vr(O[0])}, {vr(O[0]+1)}
        v_cvt_pk_f16_f32 {vr(t(17))}, {vr(O[0]+2)}, {vr(O[0]+3)}
        ds_write_b16 {vr(lCo)}, {vr(t(16))}
        ds_write_b16_d16_hi {vr(lCo)}, {vr(t(16))} offset:256
        v_cvt_pk_f16_f32 {vr(t(18))}, {vr(O[1])}, {vr(O[1]+1)}
        v_cvt_pk_f16_f32 {vr(t(19))}, {vr(O[1]+2)}, {vr(O[1]+3)}
        ds_write_b16 {vr(lCo)}, {vr(t(17))} offset:512
        ds_write_b16_d16_hi {vr(lCo)}, {vr(t(17))} offset:768
        ds_write_b16 {vr(lCo+2)}, {vr(t(18))}
        ds_write_b16_d16_hi {vr(lCo+1)}, {vr(t(18))} offset:512
        ds_write_b16 {vr(lCo+1)}, {vr(t(19))} offset:256
        ds_write_b16_d16_hi {vr(lCo+1)}, {vr(t(19))}
        s_waitcnt lgkmcnt(0)
        s_barrier
        ds_read_b128 {vr(t(0),4)}, {vr(lG)} offset:{COUT}
        s_mov_b32 {sr(sOff)}, {dst_off}
        s_waitcnt {'vmcnt(0) ' if behind_poll else ''}lgkmcnt(0)
        buffer_store_dwordx4 {vr(t(0),4)}, {vr(aP16)}, {sr(sWS,4)}, {sr(sOff)} offen sc1""")

    YY = [t(4), t(8)]; KT = t(12)
    def row_input(src_off, kb, behind_poll=None, ydst=None):
        P = t(0); YH, YV = ydst or YY
        lk = g.lab('nok')
        e(f's_bitcmp0_b32 {sr(sW)}, 0\ns_cbranch_scc1 {lk}')
        e(f'v_lshlrev_b32 {vr(t(16))}, 4, {vr(vL)}\ns_mov_b32 {sr(sT3)}, {kb}')
        e(ws_load_text(4, KT, t(16), sr(sT3)))
        e(f'{lk}:')
        e(f's_mov_b32 {sr(sOff)}, {src_off}')
        ld = ws_load_text(4, P, aS16, sr(sOff))
        if behind_poll:
            e(ld); behind_poll[0](); e(f's_mov_b32 {sr(sOff)}, {src_off}\ns_waitcnt vmcnt({behind_poll[1]})')
            poll(ld, range(P, P+4), preloaded=True)
        else:
            poll(ld, range(P, P+4))
        stamp('row data')
        def wr(slot, areg, off):
            op = 'ds_write_b16' if slot % 2 == 0 else 'ds_write_b16_d16_hi'
            e(f'{op} {vr(areg)}, {vr(P + slot//2)} offset:{YIMG + off}')
        for j in range(4): wr(j, lYd, j*1024)
        wr(4, lYm4, 0); wr(5, lYm, 3*1024); wr(6, lYm, 2*1024); wr(7, lYm, 1024)
        l0 = g.lab('not0')
        e(f's_cmp_lg_u32 {sr(sRho)}, 0\ns_cbranch_scc1 {l0}')
        wr(0, lYm, 0); wr(4, lYd, 4096)
        e(f"""{l0}:
        s_waitcnt lgkmcnt(0)
        s_barrier
        ds_read_b128 {vr(YH,4)}, {vr(lRow)} offset:{YIMG}""")
        lv = g.lab('yv')
        e(f"""s_cmp_lg_u32 {sr(sRowU)}, 0
        s_cbranch_scc1 {lv}
        ds_read_b128 {vr(YV,4)}, {vr(lRow)} offset:{YIMG+4096}
        {lv}:""")
        lk = g.lab('nok2')
        e(f's_bitcmp0_b32 {sr(sW)}, 0\ns_cbranch_scc1 {lk}')
        poll(ws_load_text(4, KT, t(16), sr(sT3)), range(KT, KT+4), preloaded=True)
        e('s_waitcnt lgkmcnt(0)')
        for k in range(4): e(f'v_pk_add_f16 {vr(YH+k)}, {vr(YH+k)}, {vr(KT+k)}')
        e(f'{lk}:\ns_waitcnt lgkmcnt(0)')
    def add_y(yu, yv):
        for k in range(4):
            e(f"""v_fma_mix_f32 {vr(XU+2*k)}, {vr(yu+k)}, {sr(s16)}, {vr(XU+2*k)} op_sel:[0,0,0] op_sel_hi:[1,0,0]
            v_fma_mix_f32 {vr(XU+2*k+1)}, {vr(yu+k)}, {sr(s16)}, {vr(XU+2*k+1)} op_sel:[1,0,0] op_sel_hi:[1,0,0]""")
        for k in range(4):
            e(f"""v_fma_mix_f32 {vr(XV+2*k)}, {vr(yv+k)}, {sr(s16)}, {vr(XV+2*k)} op_sel:[0,0,0] op_sel_hi:[1,0,0]
            v_fma_mix_f32 {vr(XV+2*k+1)}, {vr(yv+k)}, {sr(s16)}, {vr(XV+2*k+1)} op_sel:[1,0,0] op_sel_hi:[1,0,0]""")
    def add_y_pair(y=None):
        YH, YV = y or YY
        ls = g.lab('ysp'); lj = g.lab('yj')
        e(f's_cmp_eq_u32 {sr(sRowU)}, 0\ns_cbranch_scc1 {ls}')
        add_y(YH, YH)
        e(f'{lj}:')
        g.late.append((ls, lj, YH, YV))
    g.late = []

    def make_key():
        e(f"""v_ashrrev_i32 {vr(t(22))}, 31, {vr(hR)}
        v_or_b32 {vr(t(22))}, 0x80000000, {vr(t(22))}
        v_xor_b32 {vr(t(22))}, {vr(hR)}, {vr(t(22))}
        v_and_b32 {vr(t(22))}, 0xfffff800, {vr(t(22))}
        v_or_b32 {vr(t(22))}, {vr(vRowH)}, {vr(t(22))}
        v_readlane_b32 {sr(sKeyU)}, {vr(t(22))}, 0
        v_readlane_b32 {sr(sKeyV)}, {vr(t(22))}, 32
        s_lshl_b32 {sr(sT)}, {sr(sW)}, 2
        v_mov_b32 {vr(t(23))}, {sr(sT)}
        s_max_u32 {sr(sKey)}, {sr(sKeyU)}, {sr(sKeyV)}
        v_mov_b32 {vr(t(22))}, {sr(sKey)}
        ds_write_b32 {vr(t(23))}, {vr(t(22))} offset:{AM}""")
    def wg_best_read(tmp):
        e(f'v_mov_b32 {vr(tmp+4)}, 0\nds_read_b128 {vr(tmp,4)}, {vr(tmp+4)} offset:{AM}')
    def wg_best_header(cand, tmp):
        ln = g.lab('nohdr')
        e(f"""v_max3_u32 {vr(tmp)}, {vr(tmp)}, {vr(tmp+1)}, {vr(tmp+2)}
        v_max_u32 {vr(tmp)}, {vr(tmp)}, {vr(tmp+3)}
        v_readfirstlane_b32 {sr(sT)}, {vr(tmp)}
        s_cmp_eq_u32 {sr(sT)}, {sr(sKey)}
        s_cselect_b32 {sr(sSgn)}, 1, 0
        s_cbranch_scc0 {ln}
        s_lshl_b32 {sr(sT)}, {sr(sRho)}, 12
        s_add_u32 {sr(sOff)}, {sr(sT)}, {cand}
        v_mov_b32 {vr(tmp+1)}, {sr(sKey)}
        s_mov_b64 exec, 1
        buffer_store_dword {vr(tmp+1)}, {vr(tmp+4)}, {sr(sWS,4)}, {sr(sOff)} offen sc1
        s_mov_b64 exec, -1
        {ln}:""")
    def publish_rows(cand):
        ln = g.lab('nopub'); lv = g.lab('pubv'); lj = g.lab('pubj')
        e(f's_cmp_eq_u32 {sr(sSgn)}, 0\ns_cbranch_scc1 {ln}')
        e(f"""s_lshl_b32 {sr(sT)}, {sr(sRho)}, 12
        s_add_u32 {sr(sOff)}, {sr(sT)}, {cand}
        s_cmp_gt_u32 {sr(sKeyV)}, {sr(sKeyU)}
        s_cbranch_scc1 {lv}""")
        for (lab_, X_, A_, C_) in ((None, XU, sAu, sCu), (lv, XV, sAv, sCv)):
            if lab_: e(f'{lab_}:')
            e(f"""v_rcp_f32 {vr(t(0))}, {sr(A_)}
            v_mov_b32 {vr(t(1))}, {sr(A_+1)}
            v_mov_b32 {vr(t(2))}, {sr(A_)}
            v_add_f32 {vr(t(2))}, -1.0, {vr(t(2))}
            v_subrev_f32 {vr(t(3))}, {sr(C_)}, {vr(t(1))}
            v_mul_f32 {vr(t(4))}, {vr(t(2))}, {vr(t(0))}
            v_fma_f32 {vr(t(6))}, -{vr(t(4))}, {vr(t(1))}, {vr(t(3))}""")
            Z = t(8)
            for k in range(4): e(f'v_pk_fma_f32 {vr(Z+2*k,2)}, {vr(X_+2*k,2)}, {vr(t(4),2)}, {vr(t(6),2)} op_sel_hi:[1,0,0]')
            if X_ == XU:
                for k in range(4): e(f'v_cvt_pk_bf16_f32 {vr(t(16)+k)}, {vr(Z+2*k)}, {vr(Z+2*k+1)}')
                e(f"""v_lshlrev_b32 {vr(t(1))}, 4, {vr(vL)}
                v_lshlrev_b32 {vr(t(2))}, 5, {vr(vL)}
                buffer_store_dwordx4 {vr(t(16),4)}, {vr(t(1))}, {sr(sWS,4)}, {sr(sOff)} offen offset:128 sc1
                buffer_store_dwordx4 {vr(XU,4)}, {vr(t(2))}, {sr(sWS,4)}, {sr(sOff)} offen offset:1152 sc1
                buffer_store_dwordx4 {vr(XU+4,4)}, {vr(t(2))}, {sr(sWS,4)}, {sr(sOff)} offen offset:1168 sc1
                s_branch {lj}""")
            else:
                e(f"""v_mov_b32_dpp {vr(t(20))}, {vr(Z)} wave_rol:1 {DPP}
                v_mov_b32_dpp {vr(t(24))}, {vr(XV)} wave_rol:1 {DPP}
                v_cvt_pk_bf16_f32 {vr(t(17))}, {vr(Z+6)}, {vr(Z+5)}
                v_cvt_pk_bf16_f32 {vr(t(18))}, {vr(Z+4)}, {vr(Z+3)}
                v_cvt_pk_bf16_f32 {vr(t(19))}, {vr(Z+2)}, {vr(Z+1)}
                v_cvt_pk_bf16_f32 {vr(t(16))}, {vr(t(20))}, {vr(Z+7)}""")
                for k in range(1, 8): e(f'v_mov_b32 {vr(t(24)+k)}, {vr(XV+8-k)}')
                e(f"""v_lshlrev_b32 {vr(t(1))}, 4, {vr(vL)}
                v_sub_u32 {vr(t(1))}, 1008, {vr(t(1))}
                v_lshlrev_b32 {vr(t(2))}, 1, {vr(t(1))}
                buffer_store_dwordx4 {vr(t(16),4)}, {vr(t(1))}, {sr(sWS,4)}, {sr(sOff)} offen offset:128 sc1
                buffer_store_dwordx4 {vr(t(24),4)}, {vr(t(2))}, {sr(sWS,4)}, {sr(sOff)} offen offset:1152 sc1
                buffer_store_dwordx4 {vr(t(28),4)}, {vr(t(2))}, {sr(sWS,4)}, {sr(sOff)} offen offset:1168 sc1""")
        e(f'{lj}:\n{ln}:')

    def header_load(cand, K):
        e(f's_mov_b32 {sr(sOff)}, {cand}')
        e(ws_load_text(1, K, aHdr, sr(sOff)))
    def argmax(cand, K, after_check=None):
        e(f's_mov_b32 {sr(sOff)}, {cand}')
        poll(ws_load_text(1, K, aHdr, sr(sOff)), [K], preloaded=True, backoff=4)
        if after_check: after_check()
        wave_reduce([K], [t(1)], op='v_max_u32')
        e(f"""s_lshl_b32 {sr(sT)}, {sr(sW)}, 2
        v_mov_b32 {vr(t(1))}, {sr(sT)}
        ds_write_b32 {vr(t(1))}, {vr(K)} offset:{AM+32}
        v_mov_b32 {vr(t(1))}, 0
        s_waitcnt lgkmcnt(0)
        s_barrier
        ds_read_b128 {vr(t(4),4)}, {vr(t(1))} offset:{AM+32}
        s_waitcnt lgkmcnt(0)
        v_max3_u32 {vr(t(4))}, {vr(t(4))}, {vr(t(5))}, {vr(t(6))}
        v_max_u32 {vr(t(4))}, {vr(t(4))}, {vr(t(7))}
        v_readfirstlane_b32 {sr(sKey)}, {vr(t(4))}""")
        e(f"""s_and_b32 {sr(sStar)}, {sr(sKey)}, 2047
        s_lshr_b32 {sr(sT)}, {sr(sStar)}, 2
        s_sub_u32 {sr(sT2)}, 511, {sr(sT)}
        s_sub_u32 {sr(sT3)}, 512, {sr(sT)}
        s_and_b32 {sr(sT3)}, {sr(sT3)}, 255
        s_and_b32 {sr(sRec)}, {sr(sStar)}, 3
        s_cmp_eq_u32 {sr(sRec)}, 0
        s_cselect_b32 {sr(sT2)}, {sr(sT3)}, {sr(sT2)}
        s_cmp_lt_u32 {sr(sStar)}, 1024
        s_cselect_b32 {sr(sT2)}, {sr(sT)}, {sr(sT2)}
        s_lshl_b32 {sr(sRec)}, {sr(sT2)}, 12
        s_add_u32 {sr(sRec)}, {sr(sRec)}, {cand}""")
    def sigmoid_of_key():
        e(f"""s_and_b32 {sr(sT)}, {sr(sKey)}, 0xfffff800
        s_or_b32 {sr(sT)}, {sr(sT)}, 0x400
        s_ashr_i32 {sr(sT2)}, {sr(sT)}, 31
        s_not_b32 {sr(sT2)}, {sr(sT2)}
        s_or_b32 {sr(sT2)}, {sr(sT2)}, 0x80000000
        s_xor_b32 {sr(sT)}, {sr(sT)}, {sr(sT2)}
        v_mov_b32 {vr(vSig)}, {fbits(-1.4426950408889634)}
        v_mul_f32 {vr(vSig)}, {sr(sT)}, {vr(vSig)}
        v_exp_f32 {vr(vSig)}, {vr(vSig)}
        v_add_f32 {vr(vSig)}, 1.0, {vr(vSig)}
        v_rcp_f32 {vr(vSig)}, {vr(vSig)}""")

    def ffn_setup():
        e(f"""v_and_b32 {vr(t(24))}, 3, {vr(vN)}
        v_lshrrev_b32 {vr(t(25))}, 2, {vr(vN)}
        v_lshl_add_u32 {vr(t(25))}, {vr(vQ)}, 3, {vr(t(25))}
        s_lshl_b32 {sr(sT)}, {sr(sW)}, 7
        v_add_u32 {vr(t(25))}, {sr(sT)}, {vr(t(25))}
        v_lshlrev_b32 {vr(t(25))}, 4, {vr(t(25))}
        v_and_b32 {vr(t(27))}, 1, {vr(t(24))}
        v_lshl_add_u32 {vr(t(25))}, {vr(t(27))}, 3, {vr(t(25))}
        v_lshrrev_b32 {vr(t(27))}, 1, {vr(t(24))}
        v_lshl_add_u32 {vr(t(25))}, {vr(t(27))}, 13, {vr(t(25))}
        v_lshlrev_b32 {vr(t(26))}, 2, v0""")
        g.nbar_mark = sum(1 for l in g.L if l == 's_barrier')
        e('s_barrier')
        for kap in range(4):
            for h in range(2):
                e(f'ds_read_b64_tr_b16 {vr(FA+4*kap+2*h,2)}, {vr(t(25))} offset:{GU + kap*512 + h*64}')
        for f in range(8): e(f'ds_read_b32 {vr(t(28)+f)}, {vr(t(26))} offset:{DN + f*1024}')
        e('s_waitcnt lgkmcnt(0)')
        for f in range(8):
            e(f'v_lshlrev_b32 {vr(FD+2*f)}, 16, {vr(t(28)+f)}\nv_and_b32 {vr(FD+2*f+1)}, 0xffff0000, {vr(t(28)+f)}')
    def loader():
        e('L_loader:')
        if opt.get('lprio'): e(f's_setprio {opt["lprio"]}')
        lst = [0]
        def lstamp():
            if not stamps: return
            e(f's_memrealtime {sr(sTm,2)}\ns_waitcnt lgkmcnt(0)\nv_writelane_b32 {vr(vStamp)}, {sr(sTm)}, {lst[0]}'); lst[0] += 1
        if stamps: e(f'v_mov_b32 {vr(vStamp)}, 0')
        lstamp()
        if not opt.get('nohint'):
            lh = g.lab('nohint')
            e(f's_cmp_lt_u32 {sr(sWg)}, 248\ns_cbranch_scc1 {lh}')
            srd(sT4, kx, 2097152); srd(sWS, sKC, WS_SIZE)
            e(f'''s_lshl_b32 {sr(sT2)}, {sr(sRho)}, 12
            v_lshlrev_b32 {vr(t(1))}, 4, {vr(vL)}
            v_add_u32 {vr(t(2))}, {sr(sT2)}, {vr(t(1))}
            v_mov_b32 {vr(t(4))}, {NONCE}
            buffer_load_dword {vr(t(3))}, {vr(t(2))}, {sr(sT4,4)}, 0 offen
            buffer_load_dword {vr(t(4))}, {vr(t(4))}, {sr(sWS,4)}, 0 offen
            s_and_b32 {sr(sT)}, {sr(sWg)}, 7
            s_lshl_b32 {sr(sT)}, {sr(sT)}, 8
            v_mov_b32 {vr(t(5))}, {sr(sT)}
            s_waitcnt vmcnt(0)
            v_add_u32 {vr(t(4))}, 1, {vr(t(4))}
            s_mov_b64 exec, 1''')
            ws_store(1, t(4), t(5), HINT)
            e(f's_mov_b64 exec, -1\n{lh}:')
        lstamp()
        if opt.get('lpf') == 'lin':
            e(f"""s_mul_i32 {sr(sT)}, {sr(sWg)}, 5632
            v_min_u32 {vr(t(4))}, 43, {vr(vL)}
            v_lshlrev_b32 {vr(t(4))}, 7, {vr(t(4))}
            v_add_u32 {vr(t(4))}, {sr(sT)}, {vr(t(4))}""")
            for ptr in (kwg, kwu):
                srd(sT4, ptr, 1409024)
                e(f'buffer_load_dword {vr(t(6))}, {vr(t(4))}, {sr(sT4,4)}, 0 offen')
        elif opt.get('lpf'):
            e(f"""s_lshr_b32 {sr(sT)}, {sr(sRho)}, 5
            s_cmp_ge_u32 {sr(sT)}, 6
            s_cbranch_scc1 L_end
            v_lshlrev_b32 {vr(t(1))}, 4, {vr(vL)}""")
            srd(sT4, kx, 2097152)
            e(f"""s_lshl_b32 {sr(sT2)}, {sr(sRho)}, 12
            v_add_u32 {vr(t(2))}, {sr(sT2)}, {vr(t(1))}
            buffer_load_dword {vr(t(3))}, {vr(t(2))}, {sr(sT4,4)}, 0 offen
            s_lshl_b32 {sr(sT)}, {sr(sT)}, 9
            s_and_b32 {sr(sT2)}, {sr(sRho)}, 31
            s_lshl_b32 {sr(sT2)}, {sr(sT2)}, 4
            v_lshrrev_b32 {vr(t(4))}, 2, {vr(vL)}
            v_add_u32 {vr(t(4))}, {sr(sT2)}, {vr(t(4))}
            s_movk_i32 {sr(sT3)}, 2752
            v_mul_lo_u32 {vr(t(4))}, {vr(t(4))}, {sr(sT3)}
            v_and_b32 {vr(t(5))}, 3, {vr(vL)}
            v_lshlrev_b32 {vr(t(5))}, 7, {vr(t(5))}
            s_max_u32 {sr(sT)}, {sr(sT)}, 16
            s_sub_u32 {sr(sT)}, {sr(sT)}, 16
            v_add3_u32 {vr(t(4))}, {vr(t(4))}, {vr(t(5))}, {sr(sT)}
            v_sub_u32 {vr(t(5))}, {vr(t(4))}, {vr(t(5))}
            v_add_u32 {vr(t(5))}, 512, {vr(t(5))}""")
            if opt.get('lpf') != 'now': e('s_waitcnt vmcnt(0)')
            for ptr in (kwg, kwu):
                srd(sT4, ptr, 1409024)
                e(f"""buffer_load_dword {vr(t(6))}, {vr(t(4))}, {sr(sT4,4)}, 0 offen
                buffer_load_dword {vr(t(7))}, {vr(t(5))}, {sr(sT4,4)}, 0 offen""")
        e(f"""s_cmp_ge_u32 {sr(sPhi)}, {NF}
        s_cbranch_scc1 L_end""")
        e(f"""s_movk_i32 {sr(sT3)}, 2752
        v_mul_lo_u32 {vr(t(0))}, {vr(vL)}, {sr(sT3)}
        s_lshl_b32 {sr(sT2)}, {sr(sPhi)}, 4
        v_add_u32 {vr(t(0))}, {sr(sT2)}, {vr(t(0))}
        v_lshlrev_b32 {vr(t(1))}, 4, {vr(vL)}""")
        def gu(ptr, lds, ks=range(8)):
            srd(sT4, ptr, 1409024)
            for k in ks:
                e(f"""s_add_u32 {sr(sT)}, {sr(sPhi)}, {k}
                s_and_b32 {sr(sT)}, {sr(sT)}, 7
                s_lshl_b32 {sr(sT2)}, {sr(sT)}, 10
                s_add_u32 m0, {sr(sT2)}, {lds}
                s_mul_i32 {sr(sOff)}, {sr(sT)}, {64*2752}
                buffer_load_dwordx4 {vr(t(0))}, {sr(sT4,4)}, {sr(sOff)} offen {opt.get('wfl','')} lds""")
        def dn():
            srd(sT4, kwd, 1409024)
            e(f's_lshl_b32 {sr(sT2)}, {sr(sPhi)}, 13')
            for f in range(8):
                e(f"""s_mov_b32 m0, {DN + 1024*f}
                s_add_u32 {sr(sOff)}, {sr(sT2)}, {1024*f}
                buffer_load_dwordx4 {vr(t(1))}, {sr(sT4,4)}, {sr(sOff)} offen {opt.get('wfl','')} lds""")
        if opt.get('lwait'):
            srd(sT4, kx, 2097152)
            e(f's_lshl_b32 {sr(sT)}, {sr(sRho)}, 12\nv_add_u32 {vr(t(2))}, {sr(sT)}, {vr(t(1))}\nbuffer_load_dword {vr(t(3))}, {vr(t(2))}, {sr(sT4,4)}, 0 offen\ns_waitcnt vmcnt(0)')
        plan = {int(x.split(':')[0]): x.split(':')[1] for x in opt.get('lplan', '0:gud').split('/')}
        if opt.get('lcnt'):
            cnt = [int(x) for x in opt['lcnt'].split('.')]; assert sum(cnt) == 16
            dpos = int(opt.get('ldpos', 0)); nxt = 0
            for k in range(g.nbar_mark + 1):
                if k == dpos: dn()
                for j in range(cnt[k] if k < len(cnt) else 0):
                    gu(kwg if nxt < 8 else kwu, GU + (0 if nxt < 8 else 8192), [nxt & 7]); nxt += 1
                lstamp()
                if k < g.nbar_mark: e('s_barrier')
            plan = None
        for k in range(g.nbar_mark + 1 if plan is not None else 0):
            for c in plan.get(k, ''):
                {'g': lambda: gu(kwg, GU), 'u': lambda: gu(kwu, GU + 8192), 'd': dn,
                 'a': lambda: gu(kwg, GU, range(0, 4)), 'b': lambda: gu(kwg, GU, range(4, 8)),
                 'c': lambda: gu(kwu, GU + 8192, range(0, 4)), 'e': lambda: gu(kwu, GU + 8192, range(4, 8))}[c]()
            if k < g.nbar_mark: e('s_barrier')
        e('s_waitcnt vmcnt(0)')
        lstamp()
        e('s_barrier\nL_end:')
        if stamps:
            srd(sWS, sKC, WS_SIZE)
            e(f'''s_lshl_b32 {sr(sT)}, {sr(sWg)}, 11
            s_add_u32 {sr(sT)}, {sr(sT)}, 1024
            v_lshlrev_b32 {vr(t(0))}, 2, {vr(vL)}
            v_add_u32 {vr(t(0))}, {sr(sT)}, {vr(t(0))}
            s_mov_b32 {sr(sOff)}, {STAMP}
            buffer_store_dword {vr(vStamp)}, {vr(t(0))}, {sr(sWS,4)}, {sr(sOff)} offen''')
        e('s_endpgm')

    XS = t(0)
    def xsel_text():
        return '\n'.join(f'buffer_load_dwordx4 {vr(XS+4*k,4)}, {vr(t(20))}, {sr(sWS,4)}, {sr(sRec)} offen offset:{128+64*k} sc1' for k in range(4))
    def xsel_load():
        e(f"""s_lshl_b32 {sr(sT)}, {sr(sW)}, 8
        v_lshlrev_b32 {vr(t(20))}, 4, {vr(vQ)}
        v_add_u32 {vr(t(20))}, {sr(sT)}, {vr(t(20))}""")
        e(xsel_text())
    def ffn(part):
        ln = g.lab('noffn')
        e(f's_cmp_ge_u32 {sr(sPhi)}, {NF}\ns_cbranch_scc1 {ln}')
        poll(xsel_text(), range(XS, XS+16), preloaded=True)
        Pp = t(16)
        for k in range(4):
            e(f'v_mfma_f32_16x16x32_bf16 {vr(Pp,4)}, {vr(FA+4*k,4)}, {vr(XS+4*k,4)}, {"0" if k==0 else vr(Pp,4)}')
        e(f"""v_lshlrev_b32 {vr(t(21))}, 6, {vr(vQ)}
        s_lshl_b32 {sr(sT)}, {sr(sW)}, 2
        v_add_u32 {vr(t(21))}, {sr(sT)}, {vr(t(21))}
        v_and_b32 {vr(t(22))}, 31, {vr(vL)}
        v_lshlrev_b32 {vr(t(22))}, 2, {vr(t(22))}
        s_mov_b32 exec_lo, 0x00010001
        s_mov_b32 exec_hi, 0x00010001""")
        for i in range(4): e(f'ds_write_b32 {vr(t(21))}, {vr(Pp+i)} offset:{FP + 16*i}')
        e(f"""s_mov_b64 exec, -1
        s_waitcnt lgkmcnt(0)
        s_barrier
        ds_read_b32 {vr(t(12))}, {vr(t(22))} offset:{FP}
        ds_read_b32 {vr(t(13))}, {vr(t(22))} offset:{FP+128}
        s_waitcnt lgkmcnt(0)""")
        gg, uu = t(12), t(13)
        for mod in ('quad_perm:[1,0,3,2]', 'quad_perm:[2,3,0,1]'):
            e(f'v_add_f32_dpp {vr(gg)}, {vr(gg)}, {vr(gg)} {mod} {DPP}\nv_add_f32_dpp {vr(uu)}, {vr(uu)}, {vr(uu)} {mod} {DPP}')
        e(f"""v_mul_f32 {vr(t(14))}, {fbits(-1.4426950408889634)}, {vr(gg)}
        v_exp_f32 {vr(t(14))}, {vr(t(14))}
        v_mul_f32 {vr(uu)}, {vr(uu)}, {vr(vSig)}
        v_add_f32 {vr(t(14))}, 1.0, {vr(t(14))}
        v_rcp_f32 {vr(t(14))}, {vr(t(14))}
        v_mul_f32 {vr(gg)}, {vr(gg)}, {vr(uu)}
        v_mul_f32 {vr(gg)}, {vr(gg)}, {vr(t(14))}""")
        for f in range(8): e(f'v_readlane_b32 {sr(sH+f)}, {vr(gg)}, {4*f}')
        acc = t(16)
        for f in range(8):
            sel = 'op_sel_hi:[1,0,1]' if f % 2 == 0 else 'op_sel:[0,1,0] op_sel_hi:[1,1,1]'
            if f == 0: e(f'v_pk_mul_f32 {vr(acc,2)}, {vr(FD,2)}, {sr(sH,2)} op_sel_hi:[1,0]')
            else: e(f'v_pk_fma_f32 {vr(acc,2)}, {vr(FD+2*f,2)}, {sr(sH + (f & ~1),2)}, {vr(acc,2)} {sel}')
        ws_store(2, acc, aP8, part)
        e(f'{ln}:')

    def reducer(part, final):
        ln = g.lab('nored')
        red_index()
        e(f"""s_cmp_ge_u32 {sr(sT3)}, 32
        s_cbranch_scc1 {ln}""")
        if not final and not opt.get('oldred'): e('s_waitcnt vmcnt(0)')
        if final and opt.get('redsleep'): e(f's_sleep {opt["redsleep"]}')
        NLD = (NF + 15)//16
        e(f"""v_lshrrev_b32 {vr(t(20))}, 4, v0
        v_and_b32 {vr(t(22))}, 15, v0
        v_lshlrev_b32 {vr(t(22))}, 2, {vr(t(22))}
        s_lshl_b32 {sr(sT)}, {sr(sT3)}, 6
        v_add_u32 {vr(t(25))}, {sr(sT)}, {vr(t(22))}
        v_lshl_add_u32 {vr(t(21))}, {vr(t(20))}, 11, {vr(t(25))}
        v_add_u32 {vr(t(23))}, {16*(NLD-1)*2048}, {vr(t(21))}
        v_mov_b32 {vr(t(24))}, 0x7f000000
        v_cmp_gt_u32 vcc, {NF - 16*(NLD-1)}, {vr(t(20))}
        v_cndmask_b32 {vr(t(23))}, {vr(t(24))}, {vr(t(23))}, vcc""")
        A = t(0); B4 = t(12)
        lds_ = []
        for k in range(NLD - 1):
            lds_.append(f's_mov_b32 {sr(sOff)}, {part + 16*k*2048}\n' + ws_load_text(1, A+k, t(21), sr(sOff)))
        lds_.append(f's_mov_b32 {sr(sOff)}, {part}\n' + ws_load_text(1, A+NLD-1, t(23), sr(sOff)))
        regs = list(range(A, A+NLD))
        if final:
            lds_.append(ws_load_text(1, B4, t(25), sr(sRec), 'offset:1152')); regs.append(B4)
        poll('\n'.join(lds_), regs)
        n = NLD
        while n > 1:
            h = n//2
            for k in range(h): e(f'v_add_f32 {vr(A+k)}, {vr(A+k)}, {vr(A+n-1-k)}')
            n -= h
        for sw in ('v_permlane16_swap_b32', 'v_permlane32_swap_b32'):
            e(f'v_mov_b32 {vr(A+1)}, {vr(A)}\n{sw} {vr(A)}, {vr(A+1)}\nv_add_f32 {vr(A)}, {vr(A)}, {vr(A+1)}')
        e(f"""s_lshl_b32 {sr(sT)}, {sr(sW)}, 2
        v_lshl_add_u32 {vr(t(24))}, {vr(t(22))}, 2, {sr(sT)}
        v_lshlrev_b32 {vr(t(26))}, 2, {vr(t(22))}
        s_mov_b64 exec, 0xffff
        ds_write_b32 {vr(t(24))}, {vr(A)} offset:{RED}
        s_mov_b64 exec, -1
        s_waitcnt lgkmcnt(0)
        s_barrier
        s_cmp_lg_u32 {sr(sW)}, 0
        s_cbranch_scc1 {ln}
        ds_read_b128 {vr(t(28),4)}, {vr(t(26))} offset:{RED}
        s_waitcnt lgkmcnt(0)
        v_add_f32 {vr(t(28))}, {vr(t(28))}, {vr(t(29))}
        v_add_f32 {vr(t(30))}, {vr(t(30))}, {vr(t(31))}
        v_add_f32 {vr(t(28))}, {vr(t(28))}, {vr(t(30))}""")
        if final:
            e(f"""v_add_f32 {vr(t(28))}, {vr(t(28))}, {vr(B4)}
            s_lshl_b32 {sr(sT)}, {sr(sStar)}, 10
            v_lshrrev_b32 {vr(t(25))}, 1, {vr(t(25))}
            v_mov_b32_dpp {vr(t(29))}, {vr(t(28))} quad_perm:[1,0,3,2] {DPP}
            v_add_u32 {vr(t(25))}, {sr(sT)}, {vr(t(25))}
            v_cvt_pk_bf16_f32 {vr(t(28))}, {vr(t(28))}, {vr(t(29))}
            s_mov_b64 exec, 0x5555
            buffer_store_dword {vr(t(28))}, {vr(t(25))}, {sr(sOUT,4)}, 0 offen sc1
            s_mov_b64 exec, -1""")
        else:
            e(f"""s_mov_b32 {sr(sOff)}, {UPD0}
            s_mov_b64 exec, 0xffff
            buffer_store_dword {vr(t(28))}, {vr(t(25))}, {sr(sWS,4)}, {sr(sOff)} offen sc1
            s_mov_b64 exec, -1""")
        e(f'{ln}:')

    if opt.get('addrvalu'): addr_p1()
    if opt.get('rowvalu'): row_consts()
    stamp('preamble')
    e(f's_waitcnt vmcnt({N_ALL-1})\nv_readfirstlane_b32 {sr(sTag)}, {vr(vCa)}\ns_add_u32 {sr(sTag)}, {sr(sTag)}, 1')
    stamp('x0')
    unpack_nat(XU, URAW); unpack_rev(XV, VRAW, t(16))
    stats2(False)
    norm_coeffs(hRho, hB)
    make_g()
    e(f's_waitcnt vmcnt({N_ALL - N_ROWTAB})')
    transform(HB0, tagged=True, pre_store=lambda: e(f's_waitcnt vmcnt({N_ALL - N_POISON})'))
    stamp('P1 stored')
    finish_here('P1')
    special_k(KB0, False)
    srd(sT4, kwr, 1024)
    e(f'''v_lshlrev_b32 {vr(t(2))}, 4, {vr(vL)}
    v_sub_u32 {vr(t(3))}, 1008, {vr(t(2))}
    buffer_load_dwordx4 {vr(WURAW,4)}, {vr(t(2))}, {sr(sT4,4)}, 0 offen
    buffer_load_dwordx4 {vr(WVRAW,4)}, {vr(t(3))}, {sr(sT4,4)}, 0 offen''')
    if opt.get('addrvalu'):
        for k in (2, 3):
            e(f'v_add_u32 {vr(t(4))}, {TOFF["addr"] + 4096*k}, {vr(lG)}\nglobal_load_dwordx4 {vr(AD+4*k,4)}, {vr(t(4))}, {sr(sPC,2)}')
    addr_misc()
    if not opt.get('addrvalu'): addr_ym4()
    LATE = opt.get('latepois', '0') == '1'
    red_index()
    e(f"""s_lshl_b32 {sr(sT)}, {sr(sT3)}, 6
    v_lshlrev_b32 {vr(t(10))}, 2, v0
    v_add_u32 {vr(t(10))}, {sr(sT)}, {vr(t(10))}
    v_cmp_gt_u32 vcc, 16, v0
    s_cmp_lt_u32 {sr(sT3)}, 32
    s_cselect_b64 {sr(sEx,2)}, vcc, 0
    v_mov_b32 {vr(t(11))}, 0x7f000000
    v_cndmask_b32 {vr(t(10))}, {vr(t(11))}, {vr(t(10))}, {sr(sEx,2)}""")
    def poison1():
        poison_regs()
        if EP < 1:
            ws_store(4, PZ, aP16, HB1); ws_store(4, PZ, aP16, CAND0)
        if EP < 3: ws_store(2, PZ, aP8, PART0)
        ws_store(1, PZ, t(10), UPD0)
    def poison2():
        if EP >= 3: return
        poison_regs()
        if EP < 2:
            ws_store(4, PZ, aP16, YB1); ws_store(4, PZ, aP16, CAND1)
        ws_store(2, PZ, aP8, PART1)
    if not LATE: poison1()
    e(f's_bfe_u32 {sr(sT)}, {sr(sRho)}, 0x10003\ns_lshl_b32 {sr(sT)}, {sr(sT)}, 4\nv_xor_b32 {vr(t(39))}, {sr(sT)}, {vr(lG)}')
    e(f'v_add_u32 {vr(t(39))}, {TOFF["addr2"]}, {vr(t(39))}\nglobal_load_dwordx4 {vr(t(44),4)}, {vr(t(39))}, {sr(sPC,2)}')
    if not opt.get('nohint'):
        lh = g.lab('hw')
        e(f'''v_and_b32 {vr(vCa)}, 7, {vr(vL)}
        v_lshlrev_b32 {vr(vCa)}, 8, {vr(vCa)}
        s_cmp_lg_u32 {sr(sW)}, 0
        s_cbranch_scc1 {lh}
        s_mov_b32 {sr(sOff)}, {HINT}''')
        e(ws_load_text(1, vSa, vCa, sr(sOff)))
        e(f'{lh}:')
    col_consts_a()
    if not opt.get('splitc'): col_consts_b()
    stamp('shadow1')
    if not opt.get('nohint'):
        lh = g.lab('hw2'); lp = g.lab('hp')
        e(f'''s_cmp_lg_u32 {sr(sW)}, 0
        s_cbranch_scc1 {lh}
        s_mov_b32 {sr(sCnt)}, 0
        s_mov_b32 {sr(sOff)}, {HINT}
        {lp}:
        s_waitcnt vmcnt(0)
        v_cmp_ne_u32 vcc, {sr(sTag)}, {vr(vSa)}
        s_cbranch_vccz {lh}
        s_add_u32 {sr(sCnt)}, {sr(sCnt)}, 1
        s_cmp_gt_u32 {sr(sCnt)}, {LIMIT}
        s_cbranch_scc1 {lh}
        s_sleep 4''')
        e(ws_load_text(1, vSa, vCa, sr(sOff)))
        e(f's_branch {lp}\n{lh}:\ns_waitcnt vmcnt(0)\ns_barrier')
    if opt.get('ack1'): e('s_waitcnt vmcnt(0)')
    stamp('hint')
    column(HB0, YB0, False, tagged=True, behind_poll=(poison1, 4) if LATE else None)
    stamp('P2 stored')
    finish_here('P2')
    if not LATE: poison2()
    lnn = g.lab('nononce')
    e(f'''s_cmp_lg_u32 {sr(sRowU)}, 0
    s_cbranch_scc1 {lnn}
    v_mov_b32 {vr(t(0))}, {sr(sTag)}
    v_mov_b32 {vr(t(1))}, 0
    s_mov_b64 exec, 1''')
    ws_store(1, t(0), t(1), NONCE)
    e(f's_mov_b64 exec, -1\n{lnn}:')
    if opt.get('addrvalu'): addr_ym4()
    unpack_nat(WU, WURAW); unpack_rev(WV, WVRAW, t(16))
    e(f"""v_pk_add_f32 {vr(t(16),2)}, {vr(WU,2)}, {vr(WU+2,2)}
    v_pk_add_f32 {vr(t(18),2)}, {vr(WU+4,2)}, {vr(WU+6,2)}
    v_pk_add_f32 {vr(t(16),2)}, {vr(t(16),2)}, {vr(t(18),2)}
    v_add_f32 {vr(t(16))}, {vr(t(16))}, {vr(t(17))}""")
    wave_reduce([t(16)], [t(17)])
    e(f'v_readfirstlane_b32 {sr(sSW)}, {vr(t(16))}')
    stamp('shadow2')
    e('s_waitcnt vmcnt(0)')
    row_input(YB0, KB0, behind_poll=(poison2, 3) if LATE else None)
    add_y_pair()
    stats2(True)
    make_key()
    residual_coeffs()
    e(f"""v_mul_f32 {vr(t(23))}, {vr(t(21))}, {vr(t(21))}
    v_mul_f32 {vr(t(23))}, {vr(t(23))}, {vr(hVar)}
    v_add_f32 {vr(t(23))}, {fbits(1e-5)}, {vr(t(23))}
    v_rsq_f32 {vr(t(23))}, {vr(t(23))}
    s_waitcnt lgkmcnt(0)
    s_barrier""")
    wg_best_read(t(24))
    e(f"""v_mul_f32 {vr(t(22))}, {vr(t(21))}, {vr(t(23))}
    v_mul_f32 {vr(t(23))}, -{vr(hM)}, {vr(t(22))}""")
    norm_coeffs(t(22), t(23))
    e('s_waitcnt lgkmcnt(0)')
    if LATE: e('s_waitcnt vmcnt(0)')
    wg_best_header(CAND0, t(24))
    stamp('hdr0')
    make_g()
    EH = opt.get('earlyhdr')
    transform(HB1, pre_core=lambda: (residual_update(XU, XV), header_load(CAND0, vSig) if EH == 'pre' else None),
              post_scatter=lambda: (header_load(CAND0, vSig) if EH == 'post' else None, publish_rows(CAND0)))
    stamp('P3 stored')
    finish_here('P3')
    K = t(0)
    if not EH: header_load(CAND0, vSig)
    SETUP_LATE = opt.get('setuplate', '1' if EH else '0') == '1'
    if not SETUP_LATE:
        lfs = g.lab('nosetup')
        e(f's_cmp_ge_u32 {sr(sPhi)}, {NF}\ns_cbranch_scc1 {lfs}')
        ffn_setup()
        e(f'{lfs}:')
    special_k(KB1, True)
    if EH:
        lw1 = g.lab('w1'); lw2 = g.lab('w2')
        e(f's_cmp_eq_u32 {sr(sSgn)}, 0\ns_cbranch_scc1 {lw1}\ns_waitcnt vmcnt(4)\ns_branch {lw2}\n{lw1}:\ns_waitcnt vmcnt(1)\n{lw2}:')
        e(f'v_mov_b32 {vr(K)}, {vr(vSig)}')
    else:
        e(f's_waitcnt vmcnt(0)\nv_mov_b32 {vr(K)}, {vr(vSig)}')
    if opt.get('colpos') == 'b':
        argmax(CAND0, K); column_load(HB1)
    else:
        argmax(CAND0, K, after_check=lambda: column_load(HB1))
    stamp('argmax0')
    lb = g.lab('nobase')
    e(f"""s_cmp_ge_u32 {sr(sW)}, 2
    s_cbranch_scc1 {lb}
    v_lshlrev_b32 {vr(t(21))}, 5, {vr(vL)}
    buffer_load_dwordx4 {vr(FX,4)}, {vr(t(21))}, {sr(sWS,4)}, {sr(sRec)} offen offset:1152 sc1
    buffer_load_dwordx4 {vr(FX+4,4)}, {vr(t(21))}, {sr(sWS,4)}, {sr(sRec)} offen offset:1168 sc1
    {lb}:""")
    lb = g.lab('nox')
    PACE = opt.get('pace')
    if PACE == 'xsel':
        lx = g.lab('dox')
        red_index()
        e(f's_cmp_lt_u32 {sr(sPhi)}, {NF}\ns_cbranch_scc1 {lx}\ns_cmp_lt_u32 {sr(sT3)}, 32\ns_cbranch_scc1 {lb}\n{lx}:')
        xsel_load()
    else:
        e(f's_cmp_ge_u32 {sr(sPhi)}, {NF}\ns_cbranch_scc1 {lb}')
        xsel_load()
        if SETUP_LATE: ffn_setup()
    e(f'{lb}:')
    sigmoid_of_key()
    e(f"""s_mul_i32 {sr(sT)}, {sr(sRowU)}, {sr(sStar)}
    s_and_b32 {sr(sT)}, {sr(sT)}, 2047
    v_cvt_f32_u32 {vr(vCa)}, {sr(sT)}
    v_mul_f32 {vr(vCa)}, {fbits(1/2048)}, {vr(vCa)}
    v_sin_f32 {vr(vSa)}, {vr(vCa)}
    v_cos_f32 {vr(vCa)}, {vr(vCa)}
    v_mul_f32 {vr(vSa)}, {fbits(1/32)}, {vr(vSa)}
    v_mul_f32 {vr(vCa)}, {fbits(1/32)}, {vr(vCa)}
    v_cvt_pk_f16_f32 {vr(vSa)}, {vr(vSa)}, {vr(vSa)}
    v_cvt_pk_f16_f32 {vr(vCa)}, {vr(vCa)}, {vr(vCa)}
    s_waitcnt vmcnt(0)""")
    stamp('xsel')
    ffn(PART0)
    stamp('ffn0')
    column(HB1, YB1, True)
    stamp('P4 stored')
    finish_here('P4')
    reducer(PART0, False)
    stamp('red0')
    lb = g.lab('nobase')
    e(f's_cmp_ge_u32 {sr(sW)}, 2\ns_cbranch_scc1 {lb}')
    e(f'v_lshlrev_b32 {vr(t(21))}, 5, {vr(vL)}')
    poll(f'buffer_load_dwordx4 {vr(FX,4)}, {vr(t(21))}, {sr(sWS,4)}, {sr(sRec)} offen offset:1152 sc1\n'
         f'buffer_load_dwordx4 {vr(FX+4,4)}, {vr(t(21))}, {sr(sWS,4)}, {sr(sRec)} offen offset:1168 sc1', range(FX, FX+8), preloaded=True)
    stats1(FX, t(0), None)
    e(f'''v_mov_b32 {vr(t(20))}, {sr(sKu+1)}
    v_mov_b32 {vr(t(21))}, {sr(sKu)}
    v_fma_f32 {vr(t(20))}, -{vr(t(21))}, {sr(sCu)}, {vr(t(20))}
    s_mov_b32 {sr(sKv)}, {sr(sKu)}
    v_readfirstlane_b32 {sr(sKv+1)}, {vr(t(20))}''')
    e(f'{lb}:')
    e('s_waitcnt vmcnt(0)')
    if PACE and PACE.startswith('s'):
        lz = g.lab('nopace')
        red_index()
        e(f's_cmp_lt_u32 {sr(sPhi)}, {NF}\ns_cbranch_scc1 {lz}\ns_cmp_lt_u32 {sr(sT3)}, 32\ns_cbranch_scc1 {lz}\ns_sleep {PACE[1:]}\n{lz}:')
    if PACE == 'part':
        lz = g.lab('nopace')
        red_index()
        e(f'''s_cmp_lt_u32 {sr(sPhi)}, {NF}
        s_cbranch_scc1 {lz}
        s_cmp_lt_u32 {sr(sT3)}, 32
        s_cbranch_scc1 {lz}
        s_and_b32 {sr(sT)}, {sr(sRho)}, 127
        s_lshl_b32 {sr(sT)}, {sr(sT)}, 11
        s_lshl_b32 {sr(sT2)}, {sr(sW)}, 9
        s_add_u32 {sr(sT)}, {sr(sT)}, {sr(sT2)}
        v_mov_b32 {vr(t(1))}, {sr(sT)}
        s_mov_b32 {sr(sOff)}, {PART0}''')
        poll(ws_load_text(1, t(0), t(1), sr(sOff)), [t(0)], backoff=4)
        e(f'{lz}:')
    YH, YV = FO, FO + 4
    row_input(YB1, KB1, ydst=(YH, YV))
    FP0, FPS = lCa, lCb
    e(f'''v_lshl_add_u32 {vr(FP0)}, {vr(vQ)}, 7, {vr(vN)}
    v_lshlrev_b32 {vr(t(1))}, 7, {vr(vQ)}
    v_sub_u32 {vr(t(1))}, {32*23}, {vr(t(1))}
    v_add_u32 {vr(t(1))}, {vr(t(1))}, {vr(vN)}
    v_cmp_gt_u32 vcc, 2, {vr(vQ)}
    v_mov_b32 {vr(FPS)}, 64
    v_mov_b32 {vr(t(3))}, -64
    v_cndmask_b32 {vr(FP0)}, {vr(t(1))}, {vr(FP0)}, vcc
    v_cndmask_b32 {vr(FPS)}, {vr(t(3))}, {vr(FPS)}, vcc
    v_lshlrev_b32 {vr(FP0)}, 1, {vr(FP0)}
    s_lshl_b32 {sr(sT)}, {sr(sW)}, 10
    v_add_u32 {vr(FP0)}, {sr(sT)}, {vr(FP0)}''')
    stamp('y1 read')
    lj = g.lab('fixj'); lq = g.lab('fix'); lu = g.lab('ownu'); lv = g.lab('ownv')
    U = t(16)
    updld = lambda areg: (ws_load_text(4, U, areg, sr(sOff)) + '\n' + ws_load_text(4, U+4, areg, sr(sOff), 'offset:16'))
    def owner_add():
        l1 = g.lab('nu'); l2 = g.lab('nv')
        e(f's_cmp_lg_u32 {sr(sStar)}, {sr(sRowU)}\ns_cbranch_scc1 {l1}')
        for k in range(4): e(f'v_pk_add_f32 {vr(XU+2*k,2)}, {vr(XU+2*k,2)}, {vr(U+2*k,2)}')
        e(f'{l1}:')
    e(f"""v_lshlrev_b32 {vr(t(44))}, 5, {vr(vL)}
    s_mov_b32 {sr(sOff)}, {UPD0}""")
    lnv = g.lab('notv')
    e(f"""s_cmp_lg_u32 {sr(sStar)}, {sr(sRowV)}
    s_cbranch_scc1 {lnv}
    v_sub_u32 {vr(t(45))}, {63*32}, {vr(t(44))}""")
    poll(updld(t(45)), range(U, U+8), backoff=4)
    e(f'v_mov_b32_dpp {vr(t(46))}, {vr(U)} wave_ror:1 {DPP}')
    for k in range(1, 8): e(f'v_add_f32 {vr(XV+k)}, {vr(XV+k)}, {vr(U+8-k)}')
    e(f'v_add_f32 {vr(XV)}, {vr(XV)}, {vr(t(46))}\n{lnv}:')
    e(f"""s_cmp_lt_u32 {sr(sW)}, 2
    s_cbranch_scc1 {lq}
    s_cmp_lg_u32 {sr(sStar)}, {sr(sRowU)}
    s_cbranch_scc1 {lj}""")
    poll(updld(t(44)), range(U, U+8), backoff=4)
    owner_add()
    e(f's_branch {lj}\n{lq}:')
    poll(updld(t(44)), range(U, U+8), backoff=4)
    stamp('upd')
    owner_add()
    for k in range(4): e(f'v_pk_add_f32 {vr(U+2*k,2)}, {vr(FX+2*k,2)}, {vr(U+2*k,2)}')
    ZD = t(0)
    partial(t(32), U, sCu, None, t(8), t(9), None, t(24))
    wave_reduce([t(8), t(9)], [t(10), t(11)])
    moments(t(8), t(9))
    e(f'''v_mul_f32 {vr(hB)}, -{vr(hM)}, {vr(hRho)}
    v_subrev_f32 {vr(hB)}, {sr(sKv+1)}, {vr(hB)}
    v_readfirstlane_b32 {sr(sKu)}, {vr(hRho)}
    v_readfirstlane_b32 {sr(sKu+1)}, {vr(hB)}''')
    for k in range(4): e(f'v_pk_fma_f32 {vr(ZD+2*k,2)}, {vr(t(32)+2*k,2)}, {sr(sKu,2)}, {sr(sKu,2)} {PKB}')
    for k in range(4): e(f'v_pk_fma_f32 {vr(ZD+2*k,2)}, {vr(FX+2*k,2)}, {sr(sKv,2)}, {vr(ZD+2*k,2)} op_sel_hi:[1,0,1] neg_lo:[0,1,0] neg_hi:[0,1,0]')
    write_n(ZD, t(24)); write_r(ZD, t(40))
    A, B = CA, t(40)
    e(f"""s_mov_b32 {sr(sT)}, 0x3c003c00
    s_cmp_eq_u32 {sr(sW)}, 0
    s_cselect_b32 {sr(sSgn)}, {sr(sT)}, 0xbc00bc00
    ds_read_b64_tr_b16 {vr(A,2)}, {vr(lTr)} offset:{GIMG}
    ds_read_b64_tr_b16 {vr(B,2)}, {vr(lTr)} offset:{RIMG}
    ds_read_b64_tr_b16 {vr(A+2,2)}, {vr(lTr)} offset:{GIMG+128}
    ds_read_b64_tr_b16 {vr(B+2,2)}, {vr(lTr)} offset:{RIMG+128}
    s_waitcnt lgkmcnt(0)""")
    for k in range(4): e(f'v_pk_fma_f16 {vr(A+k)}, {vr(B+k)}, {sr(sSgn)}, {vr(A+k)}')
    core(A, CO)
    for k in range(4): e(f'v_cvt_pk_f16_f32 {vr(t(44)+k)}, {vr(CO+2*k)}, {vr(CO+2*k+1)}')
    for i in range(4):
        op = 'ds_write_b16' if i % 2 == 0 else 'ds_write_b16_d16_hi'
        for Tt in range(2):
            e(f'{op} {vr(FP0)}, {vr(t(44)+2*Tt+i//2)} offset:{RIMG + 2048 + 32*Tt}')
        if i < 3: e(f'v_add_u32 {vr(FP0)}, {vr(FP0)}, {vr(FPS)}')
    e(f"""{lj}:
    s_waitcnt lgkmcnt(0)
    s_barrier
    v_lshlrev_b32 {vr(t(0))}, 4, {vr(vL)}
    ds_read_b128 {vr(t(16),4)}, {vr(t(0))} offset:{RIMG+2048}
    ds_read_b128 {vr(t(20),4)}, {vr(t(0))} offset:{RIMG+2048+1024}
    s_waitcnt lgkmcnt(1)""")
    lsp = g.lab('fsp')
    for k in range(4): e(f'v_pk_fma_f16 {vr(YH+k)}, {vr(t(16)+k)}, {vr(vCa)}, {vr(YH+k)}')
    e(f'''s_cmp_lg_u32 {sr(sRowU)}, 0
    s_cbranch_scc1 {lsp}
    s_mov_b32 {sr(sT)}, 0x28002800
    s_bitcmp0_b32 {sr(sStar)}, 0
    s_cselect_b32 {sr(sT)}, {sr(sT)}, 0xa800a800''')
    for k in range(4): e(f'v_pk_fma_f16 {vr(YV+k)}, {vr(t(16)+k)}, {sr(sT)}, {vr(YV+k)}')
    e(f'{lsp}:\ns_waitcnt lgkmcnt(0)')
    for k in range(4): e(f'v_pk_fma_f16 {vr(YH+k)}, {vr(t(20)+k)}, {vr(vSa)}, {vr(YH+k)}')
    add_y_pair((YH, YV))
    stamp('fixed')
    stats2(True)
    make_key()
    residual_coeffs()
    e('s_waitcnt lgkmcnt(0)\ns_barrier')
    wg_best_read(t(24))
    residual_update(XU, XV)
    e('s_waitcnt lgkmcnt(0)')
    wg_best_header(CAND1, t(24))
    publish_rows(CAND1)
    def out_u():
        for k in range(4): e(f'v_cvt_pk_bf16_f32 {vr(t(24)+k)}, {vr(XU+2*k)}, {vr(XU+2*k+1)}')
        e(f'buffer_store_dwordx4 {vr(t(24),4)}, {vr(aU)}, {sr(sOUT,4)}, 0 offen sc1')
    def out_v():
        e(f"""v_mov_b32_dpp {vr(t(32))}, {vr(XV)} wave_rol:1 {DPP}
        v_cvt_pk_bf16_f32 {vr(t(29))}, {vr(XV+6)}, {vr(XV+5)}
        v_cvt_pk_bf16_f32 {vr(t(30))}, {vr(XV+4)}, {vr(XV+3)}
        v_cvt_pk_bf16_f32 {vr(t(31))}, {vr(XV+2)}, {vr(XV+1)}
        v_cvt_pk_bf16_f32 {vr(t(28))}, {vr(t(32))}, {vr(XV+7)}
        buffer_store_dwordx4 {vr(t(28),4)}, {vr(aV)}, {sr(sOUT,4)}, 0 offen sc1""")
    EARLY = opt.get('early1')
    if EARLY:
        e(f"""s_cmp_gt_u32 {sr(sKeyV)}, {sr(sKeyU)}
        s_cselect_b32 {sr(sH)}, 2, 1
        s_cmp_eq_u32 {sr(sSgn)}, 0
        s_cselect_b32 {sr(sH)}, 0, {sr(sH)}""")
        l1 = g.lab('du'); l2 = g.lab('dv')
        e(f's_cmp_eq_u32 {sr(sH)}, 1\ns_cbranch_scc1 {l1}'); out_u(); e(f'{l1}:')
        e(f's_cmp_eq_u32 {sr(sH)}, 2\ns_cbranch_scc1 {l2}'); out_v(); e(f'{l2}:')
        e(f's_mov_b32 {sr(sH+1)}, {sr(sH)}')
        if EARLY == 'b': e('s_barrier')
        elif EARLY == 'w': e('s_waitcnt vmcnt(0)\ns_barrier')
    else:
        e('s_waitcnt vmcnt(0)\ns_barrier')
    stamp('cand1')
    header_load(CAND1, K)
    e('s_waitcnt vmcnt(0)')
    argmax(CAND1, K)
    stamp('argmax1')
    lb = g.lab('nox')
    e(f's_cmp_ge_u32 {sr(sPhi)}, {NF}\ns_cbranch_scc1 {lb}')
    xsel_load()
    e(f'{lb}:')
    sigmoid_of_key()
    if EARLY:
        l1 = g.lab('eu'); l2 = g.lab('ev')
        e(f's_cmp_lg_u32 {sr(sH+1)}, 1\ns_cbranch_scc1 {l1}\ns_cmp_eq_u32 {sr(sStar)}, {sr(sRowU)}\ns_cbranch_scc1 {l1}'); out_u(); e(f'{l1}:')
        e(f's_cmp_lg_u32 {sr(sH+1)}, 2\ns_cbranch_scc1 {l2}\ns_cmp_eq_u32 {sr(sStar)}, {sr(sRowV)}\ns_cbranch_scc1 {l2}'); out_v(); e(f'{l2}:')
    else:
        ln = g.lab('noout')
        e(f's_cmp_eq_u32 {sr(sStar)}, {sr(sRowU)}\ns_cbranch_scc1 {ln}'); out_u(); e(f'{ln}:')
        ln = g.lab('noout')
        e(f's_cmp_eq_u32 {sr(sStar)}, {sr(sRowV)}\ns_cbranch_scc1 {ln}'); out_v(); e(f'{ln}:')
    e('s_waitcnt vmcnt(0)')
    ffn(PART1)
    stamp('ffn1')
    e('s_waitcnt vmcnt(0)')
    reducer(PART1, True)
    stamp('end')
    e('L_done:')
    if stamps:
        ls = g.lab('nost')
        e(f"""s_cmp_ge_u32 s2, 256
        s_cbranch_scc1 {ls}
        s_waitcnt vmcnt(0)
        s_mov_b64 exec, -1
        s_lshl_b32 {sr(sT)}, {sr(sWg)}, 11
        s_lshl_b32 {sr(sT2)}, {sr(sW)}, 8
        s_add_u32 {sr(sT)}, {sr(sT)}, {sr(sT2)}
        v_and_b32 {vr(t(0))}, 63, v0
        v_lshlrev_b32 {vr(t(0))}, 2, {vr(t(0))}
        v_add_u32 {vr(t(0))}, {sr(sT)}, {vr(t(0))}
        s_mov_b32 {sr(sOff)}, {STAMP}
        buffer_store_dword {vr(vStamp)}, {vr(t(0))}, {sr(sWS,4)}, {sr(sOff)} offen
        {ls}:""")
    e('s_endpgm')
    loader()
    for ls, lj, yh_, yv_ in g.late:
        e(f'{ls}:')
        add_y(yh_, yv_)
        e(f's_branch {lj}')
    emit_tail()
    return g

def render(g):
    lines, added = pad(g.L)
    body = '\n'.join(('' if l.endswith(':') else '    ') + l for l in lines)
    ninstr = sum(1 for l in lines if not l.endswith(':'))
    hdr = f"""; Two (FNet mixing + top-1 routed SwiGLU) layers in one persistent launch: 256 workgroups, 4 compute waves + 1 weight-loader wave.
;
; Re(FFT2(LN x)) is evaluated as a separable Hartley transform of g[s,d] = xn[s,d] + xn[-s,-d] (point symmetry, real data only):
; a poison word written earlier in the same launch, or (first exchange) by a tag = previous launch's tag + 1.
; (weights staged in LDS by the loader wave), 32 workgroups add the partial rows.  In layer 1 the routed row's effect on
; @launch grid=(256,1,1) block=(320,1,1) lds={LDS_SIZE}
.amdgcn_target "amdgcn-amd-amdhsa--gfx950"
.text
.globl {NAME}
.p2align 8
.type {NAME},@function
{NAME}:
"""
    tab = '\n'.join('.long ' + ','.join('0x%08x' % x for x in TAB[i:i+8]) for i in range(0, len(TAB), 8))
    tail = f"""
L_code_end:
.p2align 8
L_tab:
{tab}
.section .rodata,"a"
.p2align 6
.amdhsa_kernel {NAME}
  .amdhsa_next_free_vgpr 256
  .amdhsa_next_free_sgpr 102
  .amdhsa_accum_offset 256
  .amdhsa_group_segment_fixed_size 0
  .amdhsa_kernarg_size 104
  .amdhsa_user_sgpr_count 2
  .amdhsa_user_sgpr_kernarg_segment_ptr 1
  .amdhsa_system_sgpr_workgroup_id_x 1
.end_amdhsa_kernel
"""
    return hdr + body + tail, ninstr, added

if __name__ == '__main__':
    import argparse
    ap = argparse.ArgumentParser()
    ap.add_argument('-o', default='interleave_layers__spectral_fnet__moe_arch_mod__prompt.s')
    ap.add_argument('--stop'); ap.add_argument('--stamps', action='store_true'); ap.add_argument('--opt', default='')
    a = ap.parse_args()
    g = build(a.stop, a.stamps, {k.split('=')[0]: (k.split('=')+['1'])[1] for k in a.opt.split(',') if k})
    txt, n, added = render(g)
    open(a.o, 'w').write(txt)
    print(f'{n} instructions, {added} nop slots added, vgpr high {g.v.n}, sgpr high {g.s.n}')
```

```python
import sys, struct, math
from asmlib import pad, Alloc
import tables

NAME = "interleave_layers__spectral_fnet__moe_arch_mod__prompt_kernel"
NONCE = 0x000000
HB0, YB0, HB1, YB1 = 0x100000, 0x300000, 0x400000, 0x500000
CAND0, CAND1 = 0x600000, 0x700000
import os
if os.environ.get('COMPACT', '1') == '1':
    HINT = 0x001000
    KB0, KB1, UPD0 = 0x002000, 0x003000, 0x004000
    PART0, PART1 = 0x010000, 0x070000
else:
    PART0, PART1 = 0x800000, 0x880000
    UPD0 = 0x900000
    KB0, KB1 = 0x901000, 0x902000
    HINT = 0x903000
STAMP = 0x980000
WS_SIZE = 0xA00000
NF = 172
LIMIT = 40000
NPOIS = 64
YIMG = 0
GIMG = 5120
RIMG = 9216
HIMG = 13312
CIN = 17472
COUT = 21952
KIMG = 26048
FP = 27136
AM = 27392
RED = 27456
GU = 27776
DN = GU + 16384
LDS_SIZE = DN + 8192
LMAP = dict(YIMG=YIMG, GIMG=GIMG, RIMG=RIMG, HIMG=HIMG, CIN=CIN, COUT=COUT)
TAB, TOFF = tables.build_tables(LMAP)

def fbits(x): return '0x%08x' % struct.unpack('<I', struct.pack('<f', x))[0]

class G:
    def __init__(self, stop=None, stamps=False):
        self.L = []; self.stop = stop; self.stamps = stamps; self.uid = 0; self.nstamp = 0; self.names = []
        self.v = Alloc(1, 256, 'v'); self.s = Alloc(3, 100, 's')
    def e(self, text):
        for l in text.strip('\n').split('\n'):
            l = l.strip()
            if l: self.L.append(l)
    def lab(self, p):
        self.uid += 1; return f'L_{p}_{self.uid}'

def vr(a, n=1): return f'v{a}' if n == 1 else f'v[{a}:{a+n-1}]'
def sr(a, n=1): return f's{a}' if n == 1 else f's[{a}:{a+n-1}]'
DPP = 'row_mask:0xf bank_mask:0xf'
PKB = 'op_sel:[0,0,1] op_sel_hi:[1,0,1]'

def build(stop=None, stamps=False, opt=None):
    opt_raw = dict(opt or {})
    opt = dict(opt or {})
    if not opt.get('nodefault'):
        opt.setdefault('lpf', 'lin'); opt.setdefault('splitc', '1'); opt.setdefault('rowvalu', '1'); opt.setdefault('addrvalu', '1'); opt.setdefault('earlyp', '1'); opt.setdefault('lplan', '0:da/1:b/4:u')
        if 'lplan' not in opt_raw: opt.setdefault('lcnt', '0.3.3.2.4.2.2')
    g = G(stop, stamps); e = g.e; V = g.v; S = g.s
    sWS = S('ws', 4, 4); sXS = S('xsrd', 4, 4); sOUT = S('out', 4, 4); sT4 = S('tmpsrd', 4, 4)
    sRho = S('rho'); sW = S('w'); sRowU = S('rowu'); sRowV = S('rowv'); sVs = S('vs'); sOff = S('off'); sCnt = S('cnt')
    sT = S('t'); sT2 = S('t2'); sT3 = S('t3'); s16 = S('k16'); sStar = S('star'); sRec = S('rec'); sWg = S('wg'); sSW = S('sw')
    sCu = S('cu', 2, 2); sCv = S('cv', 2, 2); sEx = S('exsave', 2, 2)
    sAu = S('au', 2, 2); sAv = S('av', 2, 2); sKu = S('ku', 2, 2); sKv = S('kv', 2, 2); sKeyU = S('keyu'); sKeyV = S('keyv'); sKey = S('key')
    sTag = S('tag'); sMz, sMc = sAu, sAv; sH = S('h', 8, 2); sTm = S('tm', 2, 2); sPC = S('pc', 2, 2); sM2 = S('m2', 2, 2); sPhi = S('phi'); sSgn = S('sgn')
    sKA = S('ka', 16, 4); sKB = S('kb', 8, 4); sKC = S('kc', 2, 2)
    vL = V('lane'); vN = V('n'); vQ = V('q')
    XU = V('XU', 8, 4); XV = V('XV', 8, 4); WU = V('WU', 8, 2); WV = V('WV', 8, 2)
    RB1 = V('RB1', 16, 4); RC = V('RC', 8, 2); RS = V('RS', 8, 2); RA2 = V('RA2', 4, 4)
    CB1 = V('CB1', 8, 4); CK = V('CK', 32, 2); CA2 = V('CA2', 16, 4)
    assert RC == RB1+16 and RS == RB1+24 and RA2 == RB1+32 and CK == CB1+8
    FA = V('FA', 16, 4); FD = V('FD', 16, 4)
    AD = V('addr', 16, 4)
    lRow, lTr, lRw, lCr, lH, _, lHf, _, lCa, lCb, lCc, lYd = range(AD, AD+12)
    lCo = AD + 12; lYm = AD + 15
    aU = V('aU'); aV = V('aV'); aP16 = V('aP16'); aS16 = V('aS16'); aHdr = V('aHdr'); aP8 = V('aP8')
    lYm4 = V('lYm4'); lG = V('lG')
    vRowH = V('rowh'); vSig = V('sig'); vSent = V('sent'); vCa = V('cosa'); vSa = V('sina'); vStamp = V('stamp')
    FX = V('FX', 8, 4); FO = V('FO', 8, 4)
    NT = 256 - ((V.n + 3)//4*4)
    T = V('T', NT, 4)
    def t(i):
        assert i < NT, i
        return T + i
    DU, DV = t(0), t(8)

    def stamp(name=''):
        if not g.stamps: return
        if opt.get('only') and name not in opt['only'].split('+'): return
        e(f'''s_memrealtime {sr(sTm,2)}
        s_waitcnt lgkmcnt(0)
        v_writelane_b32 {vr(vStamp)}, {sr(sTm)}, {g.nstamp}''')
        g.nstamp += 1; g.names.append(name)
    def finish_here(tag):
        if g.stop == tag: e('s_branch L_done')

    def sentinel(regs):
        if isinstance(regs, tuple) and regs[0] == 'tag':
            P = regs[1]
            e(f'''v_bitop3_b32 {vr(vSent)}, {vr(P+1)}, {vr(P+3)}, {sr(sTag)} bitop3:0x7e
            v_bitop3_b32 {vr(P+1)}, {vr(P+5)}, {vr(P+7)}, {sr(sTag)} bitop3:0x7e
            v_or_b32 {vr(vSent)}, {vr(vSent)}, {vr(P+1)}
            v_cmp_ne_u32 vcc, 0, {vr(vSent)}''')
            return
        regs = list(regs); tm = vSent
        if len(regs) == 1:
            e(f'v_cmp_eq_u32 vcc, -1, {vr(regs[0])}')
        else:
            if len(regs) >= 3:
                e(f'v_max3_u32 {vr(tm)}, {vr(regs[0])}, {vr(regs[1])}, {vr(regs[2])}'); rest = regs[3:]
            else:
                e(f'v_max_u32 {vr(tm)}, {vr(regs[0])}, {vr(regs[1])}'); rest = []
            while len(rest) >= 2:
                e(f'v_max3_u32 {vr(tm)}, {vr(tm)}, {vr(rest[0])}, {vr(rest[1])}'); rest = rest[2:]
            if rest: e(f'v_max_u32 {vr(tm)}, {vr(tm)}, {vr(rest[0])}')
            e(f'v_cmp_eq_u32 vcc, -1, {vr(tm)}')
    def poll(load, regs, backoff=2, preloaded=False):
        lp = g.lab('poll'); ok = g.lab('ok')
        if preloaded:
            sentinel(regs)
            e(f's_cbranch_vccnz {lp}\n{ok}:')
            g.tail.append((lp, ok, load, regs if isinstance(regs, tuple) else list(regs), backoff))
        else:
            e(load); e('s_waitcnt vmcnt(0)')
            sentinel(regs)
            e(f's_cbranch_vccnz {lp}\n{ok}:')
            g.tail.append((lp, ok, load, regs if isinstance(regs, tuple) else list(regs), backoff))
    g.tail = []
    g.nbar_mark = None
    def emit_tail():
        g.sites = []
        for idx, (lp, ok, load, regs, backoff) in enumerate(g.tail):
            l2 = lp + '_r'
            e(f'{lp}:\ns_mov_b32 {sr(sCnt)}, 0\n{l2}:\ns_sleep {backoff}')
            if stamps:
                g.sites.append(load.split('\n')[-1][:60])
                e(f'v_readlane_b32 {sr(sTm)}, {vr(vStamp)}, {40+idx}\ns_nop 3\ns_add_u32 {sr(sTm)}, {sr(sTm)}, 1\ns_nop 3\nv_writelane_b32 {vr(vStamp)}, {sr(sTm)}, {40+idx}')
            e(load)
            e(f'''s_add_u32 {sr(sCnt)}, {sr(sCnt)}, 1
            s_cmp_gt_u32 {sr(sCnt)}, {LIMIT}
            s_cbranch_scc1 L_done
            s_waitcnt vmcnt(0)''')
            sentinel(regs)
            e(f's_cbranch_vccnz {l2}\ns_branch {ok}')
    def red_index():
        if opt.get('oldred'):
            e(f's_sub_u32 {sr(sT3)}, {sr(sWg)}, 8')
        else:
            e(f'''s_sub_u32 {sr(sT3)}, {sr(sRho)}, 192
            s_bitcmp1_b32 {sr(sRho)}, 0
            s_cselect_b32 {sr(sT3)}, -1, {sr(sT3)}
            s_lshr_b32 {sr(sT3)}, {sr(sT3)}, 1''')
    def srd(dst, ptr, size):
        e(f'''s_mov_b32 {sr(dst)}, {sr(ptr)}
        s_mov_b32 {sr(dst+1)}, {sr(ptr+1)}
        s_mov_b32 {sr(dst+2)}, {size}
        s_mov_b32 {sr(dst+3)}, 0x00020000''')
    def ws_store(n, data, areg, region, extra=''):
        op = {1: 'buffer_store_dword', 2: 'buffer_store_dwordx2', 4: 'buffer_store_dwordx4'}[n]
        e(f's_mov_b32 {sr(sOff)}, {region}\n{op} {vr(data,n)}, {vr(areg)}, {sr(sWS,4)}, {sr(sOff)} offen sc1 {extra}')
    def ws_load_text(n, data, areg, soff, extra=''):
        op = {1: 'buffer_load_dword', 2: 'buffer_load_dwordx2', 4: 'buffer_load_dwordx4'}[n]
        return f'{op} {vr(data,n)}, {vr(areg)}, {sr(sWS,4)}, {soff} offen {extra} sc1'
    PZ = t(40)
    def poison_regs():
        for k in range(4): e(f'v_mov_b32 {vr(PZ+k)}, -1')

    e(f's_cmp_ge_u32 s2, 256\ns_cbranch_scc1 L_done')
    if stamps: e(f's_memrealtime {sr(sM2,2)}')
    e(f'''s_load_dwordx16 {sr(sKA,16)}, s[0:1], 0
    s_load_dwordx8 {sr(sKB,8)}, s[0:1], 64
    s_load_dwordx2 {sr(sKC,2)}, s[0:1], 96''')
    PFN = opt.get('pfn')
    PFPRE = f's_cmp_ge_u32 s2, {PFN}\ns_cbranch_scc1 L_nopf\n' if PFN else ''
    PFPOST = 'L_nopf:\n' if PFN else ''
    e(f'''s_getpc_b64 {sr(sPC,2)}
    L_pc:
    {PFPRE}v_lshlrev_b32 {vr(t(0))}, 7, v0
    v_min_u32 {vr(t(0))}, L_code_end-L_pc-4, {vr(t(0))}
    global_load_dword {vr(vSig)}, {vr(t(0))}, {sr(sPC,2)}
    {PFPOST}s_add_u32 {sr(sPC)}, {sr(sPC)}, L_tab-L_pc
    s_addc_u32 {sr(sPC+1)}, {sr(sPC+1)}, 0''')
    e(f'''s_mov_b32 {sr(sWg)}, s2
    s_and_b32 {sr(sT)}, s2, 7
    s_lshl_b32 {sr(sT)}, {sr(sT)}, 5
    s_lshr_b32 {sr(sRho)}, s2, 3
    s_or_b32 {sr(sRho)}, {sr(sRho)}, {sr(sT)}
    v_lshrrev_b32 {vr(t(1))}, 6, v0
    v_and_b32 {vr(vL)}, 63, v0
    v_readfirstlane_b32 {sr(sW)}, {vr(t(1))}
    v_lshlrev_b32 {vr(t(2))}, 4, {vr(vL)}
    v_sub_u32 {vr(t(3))}, 1008, {vr(t(2))}
    s_lshl_b32 {sr(sT)}, {sr(sRho)}, 2
    s_add_u32 {sr(sRowU)}, {sr(sT)}, {sr(sW)}
    s_sub_u32 {sr(sRowV)}, 2048, {sr(sRowU)}
    s_cmp_eq_u32 {sr(sRowU)}, 0
    s_cselect_b32 {sr(sRowV)}, 1024, {sr(sRowV)}
    s_lshl_b32 {sr(sT)}, {sr(sRowU)}, 10
    s_lshl_b32 {sr(sT2)}, {sr(sRowV)}, 10
    v_add_u32 {vr(aU)}, {sr(sT)}, {vr(t(2))}
    v_add_u32 {vr(aV)}, {sr(sT2)}, {vr(t(3))}
    v_lshlrev_b32 {vr(lG)}, 4, v0
    s_waitcnt lgkmcnt(0)''')
    kx, kwr, kwg = sKA + 0, sKA + 12, sKA + 14
    kwu, kwd, kout, kdbg = sKB + 0, sKB + 2, sKB + 4, sKB + 6
    URAW, VRAW = t(8), t(12)
    WURAW, WVRAW = FX, FX + 4
    e(f's_sub_u32 {sr(sPhi)}, {sr(sRho)}, 1\ns_cmp_eq_u32 {sr(sW)}, 4\ns_cbranch_scc1 L_loader')
    if opt.get('prio'): e(f's_setprio {opt["prio"]}')
    srd(sXS, kx, 2097152)
    e(f'''buffer_load_dwordx4 {vr(URAW,4)}, {vr(aU)}, {sr(sXS,4)}, 0 offen {opt.get('xfl','')}
    buffer_load_dwordx4 {vr(VRAW,4)}, {vr(aV)}, {sr(sXS,4)}, 0 offen {opt.get('xfl','')}''')
    srd(sWS, sKC, WS_SIZE)
    e(f'v_mov_b32 {vr(vCa)}, {NONCE}\nbuffer_load_dword {vr(vCa)}, {vr(vCa)}, {sr(sWS,4)}, 0 offen')
    nvm = [1]
    def tab_loads(dst, n, areg, off, stride):
        k = 0
        while k < n:
            base = off + k*stride
            per = {1024: 4, 4096: 1}[stride]
            e(f'v_add_u32 {vr(t(4))}, {base}, {vr(areg)}')
            for kk in range(min(per, n-k)):
                e(f'global_load_dwordx4 {vr(dst+4*(k+kk),4)}, {vr(t(4))}, {sr(sPC,2)} offset:{kk*stride}')
                nvm[0] += 1
            k += per
    if not opt.get('addrvalu'): tab_loads(AD, 4, lG, TOFF['addr'], 4096)
    if not opt.get('rowvalu'): tab_loads(RB1, 9, t(2), TOFF['row'], 1024)
    N_ROWTAB = nvm[0]
    if stamps:
        e(f'v_mov_b32 {vr(vStamp)}, 0\nv_writelane_b32 {vr(vStamp)}, {sr(sM2)}, 0'); g.nstamp = 1; g.names.append('start')
    poison_regs()
    e(f'''s_lshl_b32 {sr(sT)}, {sr(sRho)}, 12
    v_add_u32 {vr(aP16)}, {sr(sT)}, {vr(lG)}''')
    ws_store(4, PZ, aP16, YB0)
    nvm[0] += 1
    EP = int(opt.get('earlyp', 0))
    if EP >= 1:
        ws_store(4, PZ, aP16, HB1); ws_store(4, PZ, aP16, CAND0); nvm[0] += 2
    if EP >= 2:
        ws_store(4, PZ, aP16, YB1); ws_store(4, PZ, aP16, CAND1); nvm[0] += 2
    if EP >= 3:
        e(f'''s_sub_u32 {sr(sT2)}, {sr(sRho)}, 1
        s_lshl_b32 {sr(sT)}, {sr(sT2)}, 11
        s_cmp_lt_u32 {sr(sT2)}, {NF}
        s_cselect_b32 {sr(sT)}, {sr(sT)}, 0x7f000000
        v_lshlrev_b32 {vr(aP8)}, 3, v0
        v_add_u32 {vr(aP8)}, {sr(sT)}, {vr(aP8)}''')
        ws_store(2, PZ, aP8, PART0); ws_store(2, PZ, aP8, PART1); nvm[0] += 2
    lkb = g.lab('nokb')
    e(f'''s_cmp_lg_u32 {sr(sRowU)}, 0
    s_cbranch_scc1 {lkb}
    v_lshlrev_b32 {vr(t(5))}, 4, {vr(vL)}''')
    ws_store(4, PZ, t(5), KB0)
    ws_store(4, PZ, t(5), KB1)
    e(f'{lkb}:')
    if opt.get('touchhb') == 'w':
        e(f's_lshl_b32 {sr(sT)}, {sr(sRho)}, 13\nv_add_u32 {vr(t(6))}, {sr(sT)}, {vr(lG)}')
        ws_store(4, PZ, t(6), HB0); ws_store(4, PZ, t(6), HB0 + 4096)
        nvm[0] += 2
    if opt.get('touchhb') == 'r':
        e(f's_lshl_b32 {sr(sT)}, {sr(sRho)}, 13\nv_lshlrev_b32 {vr(t(6))}, 5, v0\nv_add_u32 {vr(t(6))}, {sr(sT)}, {vr(t(6))}\ns_mov_b32 {sr(sOff)}, {HB0}')
        e(f'buffer_load_dword {vr(vSa)}, {vr(t(6))}, {sr(sWS,4)}, {sr(sOff)} offen')
        nvm[0] += 1
    N_POISON = nvm[0]
    N_ALL = nvm[0]
    srd(sOUT, kout, 2097152)
    e(f'''s_mov_b32 {sr(s16)}, {fbits(16.0)}
    v_and_b32 {vr(vN)}, 15, {vr(vL)}
    v_lshrrev_b32 {vr(vQ)}, 4, {vr(vL)}''')

    a0, a1, a2, a3 = t(20), t(21), t(22), t(23)
    def addr_misc():
        e(f'''s_lshl_b32 {sr(sT)}, {sr(sRho)}, 4
        v_lshlrev_b32 {vr(aHdr)}, 12, v0
        v_add_u32 {vr(aS16)}, {sr(sT)}, {vr(aHdr)}
        v_mov_b32 {vr(a0)}, {sr(sRowU)}
        v_mov_b32 {vr(a1)}, {sr(sRowV)}
        v_cmp_gt_u32 vcc, 32, {vr(vL)}
        s_lshl_b32 {sr(sT)}, {sr(sPhi)}, 11
        s_cmp_lt_u32 {sr(sPhi)}, {NF}
        s_cselect_b32 {sr(sT)}, {sr(sT)}, 0x7f000000
        v_cndmask_b32 {vr(vRowH)}, {vr(a1)}, {vr(a0)}, vcc
        v_lshlrev_b32 {vr(aP8)}, 3, v0
        v_add_u32 {vr(aP8)}, {sr(sT)}, {vr(aP8)}
        v_mov_b32 {vr(a0)}, 0
        v_lshlrev_b32 {vr(a1)}, 10, {vr(vL)}
        s_mov_b64 exec, 31
        ds_write_b16 {vr(a1)}, {vr(a0)} offset:{YIMG}
        s_mov_b64 exec, -1''')
    def addr_p1():
        x0_, x1_, x2_, x3_, x4_ = t(20), t(21), t(22), t(23), t(24)
        e(f'''s_lshl_b32 {sr(sT)}, {sr(sW)}, 10
        v_lshlrev_b32 {vr(x2_)}, 4, {vr(vL)}
        v_add_u32 {vr(lRow)}, {sr(sT)}, {vr(x2_)}
        s_add_u32 {sr(sT2)}, {sr(sT)}, {RIMG+1008}
        v_sub_u32 {vr(lRw)}, {sr(sT2)}, {vr(x2_)}
        v_lshrrev_b32 {vr(x3_)}, 2, {vr(vN)}
        v_lshl_add_u32 {vr(x2_)}, {vr(vQ)}, 3, {vr(x3_)}
        v_lshlrev_b32 {vr(x2_)}, 5, {vr(x2_)}
        v_and_b32 {vr(x3_)}, 3, {vr(vN)}
        v_lshl_add_u32 {vr(x2_)}, {vr(x3_)}, 3, {vr(x2_)}
        v_add_u32 {vr(lTr)}, {sr(sT)}, {vr(x2_)}
        v_lshrrev_b32 {vr(x3_)}, 3, {vr(vN)}
        v_add_u32 {vr(x3_)}, {vr(x3_)}, {vr(vN)}
        v_lshlrev_b32 {vr(x3_)}, 4, {vr(x3_)}
        v_mul_u32_u24 {vr(x4_)}, {tables.CIN_QS}, {vr(vQ)}
        v_add_u32 {vr(lCr)}, {vr(x3_)}, {vr(x4_)}
        v_add_u32 {vr(lCr)}, {CIN}, {vr(lCr)}''')
        e(f'''s_sub_u32 {sr(sT3)}, 4, {sr(sW)}
        s_and_b32 {sr(sT3)}, {sr(sT3)}, 3
        s_add_u32 {sr(sT3)}, {sr(sT3)}, 4
        s_lshl_b32 {sr(sT3)}, {sr(sT3)}, 1
        s_lshl_b32 {sr(sT2)}, {sr(sW)}, 1
        v_lshlrev_b32 {vr(x0_)}, 7, {vr(vQ)}
        v_add_u32 {vr(x1_)}, {vr(x0_)}, {vr(vN)}
        v_sub_u32 {vr(x2_)}, {vr(x0_)}, {vr(vN)}
        v_and_b32 {vr(x3_)}, 8, {vr(x1_)}
        v_and_b32 {vr(x4_)}, 8, {vr(x2_)}
        v_xor_b32 {vr(x3_)}, {sr(sT2)}, {vr(x3_)}
        v_xor_b32 {vr(x4_)}, {sr(sT3)}, {vr(x4_)}
        v_lshl_add_u32 {vr(x1_)}, {vr(x1_)}, 4, {vr(x3_)}
        v_lshl_add_u32 {vr(x2_)}, {vr(x2_)}, 4, {vr(x4_)}
        v_add_u32 {vr(x1_)}, {HIMG}, {vr(x1_)}
        v_add_u32 {vr(x2_)}, {HIMG - 224*16}, {vr(x2_)}
        v_cmp_gt_u32 vcc, 2, {vr(vQ)}
        v_add_u32 {vr(x3_)}, 256, {vr(x1_)}
        v_subrev_u32 {vr(x4_)}, 256, {vr(x2_)}
        v_cndmask_b32 {vr(lH)}, {vr(x2_)}, {vr(x1_)}, vcc
        v_cndmask_b32 {vr(lH+1)}, {vr(x4_)}, {vr(x3_)}, vcc
        s_add_u32 {sr(sT2)}, {sr(sT2)}, {HIMG}
        s_add_u32 {sr(sT3)}, {sr(sT3)}, {HIMG}
        v_mov_b32 {vr(x0_)}, {HIMG+4112}
        v_mov_b32 {vr(x1_)}, {sr(sT2)}
        v_mov_b32 {vr(x2_)}, {sr(sT3)}
        v_cmp_eq_u32 vcc, 48, {vr(vL)}
        v_cndmask_b32 {vr(lHf)}, {vr(x0_)}, {vr(x1_)}, vcc
        v_cndmask_b32 {vr(lHf+1)}, {vr(x0_)}, {vr(x2_)}, vcc''')
    def addr_ym4():
        e(f'''s_cmp_eq_u32 {sr(sRho)}, 0
        s_cselect_b32 {sr(sT)}, 4096, 0
        v_add_u32 {vr(lYm4)}, {sr(sT)}, {vr(lYm)}''')

    b0, b1, b2 = t(24), t(25), t(26)
    vTau, vTlo = t(28), t(29)
    def tau_tlo():
        e(f'''s_lshl_b32 {sr(sT)}, {sr(sW)}, 3
        v_and_b32 {vr(vTau)}, 7, {vr(vN)}
        v_add_u32 {vr(vTau)}, {sr(sT)}, {vr(vTau)}
        v_sub_u32 {vr(a0)}, 64, {vr(vTau)}
        v_mov_b32 {vr(a1)}, 32
        v_cmp_eq_u32 {sr(sMz,2)}, 0, {vr(vTau)}
        v_cndmask_b32 {vr(a0)}, {vr(a0)}, {vr(a1)}, {sr(sMz,2)}
        v_cmp_le_u32 vcc, 8, {vr(vN)}
        v_cndmask_b32 {vr(vTlo)}, {vr(vTau)}, {vr(a0)}, vcc
        s_andn2_b64 {sr(sMc,2)}, vcc, {sr(sMz,2)}''')
    c0, c1 = t(30), t(31)
    def cos_seq(dst, base, step, n, amp=None):
        for j in range(0, n, 2):
            e(f'v_cos_f32 {vr(c0)}, {vr(base)}\nv_add_f32 {vr(base)}, {vr(base)}, {vr(step)}')
            e(f'v_cos_f32 {vr(c1)}, {vr(base)}')
            if j + 2 < n: e(f'v_add_f32 {vr(base)}, {vr(base)}, {vr(step)}')
            if amp is not None:
                e(f'v_mul_f32 {vr(c0)}, {amp}, {vr(c0)}\nv_mul_f32 {vr(c1)}, {amp}, {vr(c1)}')
            e(f'v_cvt_pk_f16_f32 {vr(dst + j//2)}, {vr(c0)}, {vr(c1)}')
    fQ, fN, fs, fb, fa, fb2 = t(32), t(33), t(34), t(35), t(36), t(37)
    def row_consts():
        e(f'v_cvt_f32_u32 {vr(fQ)}, {vr(vQ)}\nv_cvt_f32_u32 {vr(fN)}, {vr(vN)}')
        e(f'v_mul_f32 {vr(fs)}, {fbits(1/32)}, {vr(fN)}\nv_mul_f32 {vr(fa)}, {fbits(8.0)}, {vr(fQ)}')
        for part in range(2):
            e(f'v_mul_f32 {vr(fb)}, {vr(fa)}, {vr(fs)}')
            if part: e(f'v_add_f32 {vr(fb)}, {fbits(0.25)}, {vr(fb)}')
            cos_seq(RB1 + part*4, fb, fs, 8)
        for k in range(8): e(f'v_xor_b32 {vr(RB1+8+k)}, 0x80000000, {vr(RB1+k)}')
        e(f'v_mul_f32 {vr(fa)}, 4.0, {vr(fQ)}')
        for Tt in range(2):
            e(f'''v_add_f32 {vr(fs)}, {fbits(16.0*Tt)}, {vr(fN)}
            v_mul_f32 {vr(fs)}, {fbits(1/512)}, {vr(fs)}
            v_mul_f32 {vr(fb)}, {vr(fa)}, {vr(fs)}''')
            for i in range(4):
                e(f'v_cos_f32 {vr(RC+4*Tt+i)}, {vr(fb)}\nv_sin_f32 {vr(RS+4*Tt+i)}, {vr(fb)}')
                if i < 3: e(f'v_add_f32 {vr(fb)}, {vr(fb)}, {vr(fs)}')
        e(f'''v_sub_u32 {vr(fs)}, 23, {vr(vN)}
        v_cmp_gt_u32 vcc, 8, {vr(vN)}
        v_cndmask_b32 {vr(fs)}, {vr(fs)}, {vr(vN)}, vcc
        v_cvt_f32_u32 {vr(fs)}, {vr(fs)}
        v_mul_f32 {vr(fs)}, {fbits(1/16)}, {vr(fs)}
        v_mul_f32 {vr(fb2)}, {vr(fa)}, {vr(fs)}''')
        for part, ph in ((0, 0.125), (1, -0.125)):
            e(f'v_add_f32 {vr(fb)}, {fbits(ph)}, {vr(fb2)}')
            cos_seq(RA2 + 2*part, fb, fs, 4, amp=fbits(math.sqrt(2)))
    def col_consts_a():
        tau_tlo()
        e(f'''v_cvt_f32_u32 {vr(fQ)}, {vr(vQ)}
        v_cmp_le_u32 vcc, 8, {vr(vN)}
        s_and_b64 vcc, vcc, {sr(sMz,2)}
        v_mov_b32 {vr(a1)}, 32
        v_cndmask_b32 {vr(a0)}, {vr(vTau)}, {vr(a1)}, vcc
        v_cvt_f32_u32 {vr(fs)}, {vr(a0)}
        v_mul_f32 {vr(fs)}, {fbits(1/64)}, {vr(fs)}
        v_mov_b32 {vr(fa)}, {fbits(0.25)}
        v_cndmask_b32 {vr(fa)}, 0, {vr(fa)}, {sr(sMc,2)}
        v_mul_f32 {vr(fb)}, {fbits(8.0)}, {vr(fQ)}
        v_fma_f32 {vr(fb)}, {vr(fb)}, {vr(fs)}, {vr(fa)}''')
        cos_seq(CB1, fb, fs, 8)
        e(f'''v_and_b32 {vr(a0)}, 1, {vr(a0)}
        v_mul_u32_u24 {vr(a0)}, 0x8000, {vr(a0)}
        v_lshl_or_b32 {vr(a0)}, {vr(a0)}, 16, {vr(a0)}''')
        for k in range(4): e(f'v_xor_b32 {vr(CB1+4+k)}, {vr(a0)}, {vr(CB1+k)}')
    def col_consts_b():
        e(f'v_cvt_f32_u32 {vr(fQ)}, {vr(vQ)}')
        e(f'''v_cvt_f32_u32 {vr(fs)}, {vr(vTlo)}
        v_mul_f32 {vr(fs)}, {fbits(1/2048)}, {vr(fs)}
        v_mul_f32 {vr(fb)}, {vr(fQ)}, {vr(fs)}
        v_fma_f32 {vr(fb)}, {vr(fb)}, 4.0, {vr(fa)}
        v_mov_b32 {vr(a1)}, {fbits(0.25)}
        v_cndmask_b32 {vr(a1)}, {vr(a1)}, 0, {sr(sMz,2)}''')
        e(f'v_add_f32 {vr(fb2)}, {fbits(-0.25)}, {vr(fb)}')
        e(f'v_mul_f32 {vr(a2)}, {fbits(12.0)}, {vr(fs)}')
        for Tt in range(2):
            for i in range(4):
                k = CK + 16*Tt
                e(f'''v_cos_f32 {vr(c0)}, {vr(fb)}
                v_cos_f32 {vr(c1)}, {vr(fb2)}
                v_add_f32 {vr(fb)}, {vr(fb)}, {vr(fs)}
                v_add_f32 {vr(fb2)}, {vr(fb2)}, {vr(fs)}
                v_mul_f32 {vr(k+i)}, {fbits(0.25)}, {vr(c0)}
                v_mul_f32 {vr(k+4+i)}, {vr(a1)}, {vr(c1)}
                v_mul_f32 {vr(k+8+i)}, {fbits(-0.25)}, {vr(c1)}
                v_mul_f32 {vr(k+12+i)}, {vr(a1)}, {vr(c0)}''')
            if Tt == 0: e(f'v_add_f32 {vr(fb)}, {vr(fb)}, {vr(a2)}\nv_add_f32 {vr(fb2)}, {vr(fb2)}, {vr(a2)}')
        e(f'''v_cvt_f32_u32 {vr(fs)}, {vr(vN)}
        v_mul_f32 {vr(fs)}, {fbits(1/32)}, {vr(fs)}
        v_mul_f32 {vr(fb2)}, {vr(fQ)}, {vr(fs)}
        v_mul_f32 {vr(fb2)}, 4.0, {vr(fb2)}''')
        for part, ph in ((0, -0.125), (1, -0.375)):
            e(f'v_add_f32 {vr(fb)}, {fbits(ph)}, {vr(fb2)}')
            cos_seq(CA2 + 2*part, fb, fs, 4, amp=fbits(math.sqrt(2)/8))
        e(f'''v_and_b32 {vr(a0)}, 1, {vr(vN)}
        v_mul_u32_u24 {vr(a0)}, 0x8000, {vr(a0)}
        v_lshl_or_b32 {vr(a0)}, {vr(a0)}, 16, {vr(a0)}''')
        for k in range(4):
            e(f'v_xor_b32 {vr(CA2+4+k)}, {vr(a0)}, {vr(CA2+k)}')
        for k in range(8):
            e(f'v_xor_b32 {vr(CA2+8+k)}, 0x80000000, {vr(CA2+k)}')

    def unpack_nat(dst, src):
        for k in range(4):
            e(f'v_lshlrev_b32 {vr(dst+2*k)}, 16, {vr(src+k)}\nv_and_b32 {vr(dst+2*k+1)}, 0xffff0000, {vr(src+k)}')
    def unpack_rev(dst, src, tmp):
        e(f'''v_lshlrev_b32 {vr(tmp)}, 16, {vr(src)}
        v_and_b32 {vr(dst+7)}, 0xffff0000, {vr(src)}
        v_lshlrev_b32 {vr(dst+6)}, 16, {vr(src+1)}
        v_and_b32 {vr(dst+5)}, 0xffff0000, {vr(src+1)}
        v_mov_b32_dpp {vr(dst)}, {vr(tmp)} wave_ror:1 {DPP}
        v_lshlrev_b32 {vr(dst+4)}, 16, {vr(src+2)}
        v_and_b32 {vr(dst+3)}, 0xffff0000, {vr(src+2)}
        v_lshlrev_b32 {vr(dst+2)}, 16, {vr(src+3)}
        v_and_b32 {vr(dst+1)}, 0xffff0000, {vr(src+3)}''')
    def half_reduce(regs, tmps, op='v_add_f32'):
        for sh in (8, 4, 2, 1):
            for r in regs: e(f'{op}_dpp {vr(r)}, {vr(r)}, {vr(r)} row_ror:{sh} {DPP}')
        for r, tm in zip(regs, tmps): e(f'v_mov_b32 {vr(tm)}, {vr(r)}')
        for r, tm in zip(regs, tmps): e(f'v_permlane16_swap_b32 {vr(r)}, {vr(tm)}')
        for r, tm in zip(regs, tmps): e(f'{op} {vr(r)}, {vr(r)}, {vr(tm)}')
    def wave_reduce(regs, tmps, op='v_add_f32'):
        half_reduce(regs, tmps, op)
        for r, tm in zip(regs, tmps): e(f'v_mov_b32 {vr(tm)}, {vr(r)}')
        for r, tm in zip(regs, tmps): e(f'v_permlane32_swap_b32 {vr(r)}, {vr(tm)}')
        for r, tm in zip(regs, tmps): e(f'{op} {vr(r)}, {vr(r)}, {vr(tm)}')
    hM, hVar, hRho, hB, hR = t(40), t(41), t(42), t(43), t(44)
    def partial(Dd, src, sC, w, o1, o2, o3, P, read=True):
        if read: e(f'v_readfirstlane_b32 {sr(sC)}, {vr(src)}')
        for k in range(4):
            e(f'v_pk_add_f32 {vr(Dd+2*k,2)}, {vr(src+2*k,2)}, {sr(sC,2)} op_sel_hi:[1,0] neg_lo:[0,1] neg_hi:[0,1]')
        e(f'''v_pk_add_f32 {vr(P,2)}, {vr(Dd,2)}, {vr(Dd+2,2)}
        v_pk_mul_f32 {vr(P+2,2)}, {vr(Dd,2)}, {vr(Dd,2)}
        v_pk_add_f32 {vr(P+4,2)}, {vr(Dd+4,2)}, {vr(Dd+6,2)}''')
        if w is not None: e(f'v_pk_mul_f32 {vr(P+6,2)}, {vr(Dd,2)}, {vr(w,2)}')
        for k in range(1, 4):
            e(f'v_pk_fma_f32 {vr(P+2,2)}, {vr(Dd+2*k,2)}, {vr(Dd+2*k,2)}, {vr(P+2,2)}')
            if w is not None: e(f'v_pk_fma_f32 {vr(P+6,2)}, {vr(Dd+2*k,2)}, {vr(w+2*k,2)}, {vr(P+6,2)}')
            if k == 1: e(f'v_pk_add_f32 {vr(P,2)}, {vr(P,2)}, {vr(P+4,2)}')
        e(f'v_add_f32 {vr(o1)}, {vr(P)}, {vr(P+1)}\nv_add_f32 {vr(o2)}, {vr(P+2)}, {vr(P+3)}')
        if w is not None: e(f'v_add_f32 {vr(o3)}, {vr(P+6)}, {vr(P+7)}')
    def moments(S1, S2):
        e(f'''v_mul_f32 {vr(hM)}, {fbits(1/512)}, {vr(S1)}
        v_mul_f32 {vr(S2)}, {fbits(1/512)}, {vr(S2)}
        v_fma_f32 {vr(hVar)}, -{vr(hM)}, {vr(hM)}, {vr(S2)}
        v_add_f32 {vr(S2)}, {fbits(1e-5)}, {vr(hVar)}
        v_rsq_f32 {vr(hRho)}, {vr(S2)}''')
    def stats2(with_r):
        a1_, a2_, a3_, b1_, b2_, b3_ = t(16), t(17), t(18), t(19), t(20), t(21)
        e(f'v_readfirstlane_b32 {sr(sCu)}, {vr(XU)}\nv_readfirstlane_b32 {sr(sCv)}, {vr(XV)}')
        partial(DV, XV, sCv, WV if with_r else None, b1_, b2_, b3_, t(32), read=False) if False else None
        partial(DU, XU, sCu, WU if with_r else None, a1_, a2_, a3_, t(24), read=False)
        partial(DV, XV, sCv, WV if with_r else None, b1_, b2_, b3_, t(32), read=False)
        pairs = [(a1_, b1_), (a2_, b2_)] + ([(a3_, b3_)] if with_r else [])
        for x, y in pairs: e(f'v_permlane32_swap_b32 {vr(x)}, {vr(y)}')
        for x, y in pairs: e(f'v_add_f32 {vr(x)}, {vr(x)}, {vr(y)}')
        half_reduce([x for x, _ in pairs], [y for _, y in pairs])
        moments(a1_, a2_)
        if with_r: e(f'v_fma_f32 {vr(a3_)}, -{vr(hM)}, {sr(sSW)}, {vr(a3_)}')
        e(f'v_mul_f32 {vr(hB)}, -{vr(hM)}, {vr(hRho)}')
        if with_r: e(f'v_mul_f32 {vr(hR)}, {vr(hRho)}, {vr(a3_)}')
    def stats1(src, Dd, dst):
        partial(Dd, src, sCu, None, t(16), t(17), None, t(24))
        wave_reduce([t(16), t(17)], [t(18), t(19)])
        moments(t(16), t(17))
        e(f'''v_readfirstlane_b32 {sr(sKu)}, {vr(hRho)}
        v_mul_f32 {vr(hB)}, -{vr(hM)}, {vr(hRho)}
        v_readfirstlane_b32 {sr(sKu+1)}, {vr(hB)}''')
        if dst is not None:
            for k in range(4): e(f'v_pk_fma_f32 {vr(dst+2*k,2)}, {vr(Dd+2*k,2)}, {sr(sKu,2)}, {sr(sKu,2)} {PKB}')
    def residual_coeffs():
        e(f'''v_mov_b32 {vr(t(22))}, {sr(sCu)}
        v_mov_b32 {vr(t(23))}, {sr(sCv)}
        v_cmp_gt_u32 vcc, 32, {vr(vL)}
        v_add_f32 {vr(t(21))}, 1.0, {vr(hRho)}
        v_cndmask_b32 {vr(t(22))}, {vr(t(23))}, {vr(t(22))}, vcc
        v_add_f32 {vr(t(22))}, {vr(t(22))}, {vr(hB)}
        v_readlane_b32 {sr(sAu)}, {vr(t(21))}, 0
        v_readlane_b32 {sr(sAv)}, {vr(t(21))}, 32
        v_readlane_b32 {sr(sAu+1)}, {vr(t(22))}, 0
        v_readlane_b32 {sr(sAv+1)}, {vr(t(22))}, 32''')
    def residual_update(dU, dV):
        for k in range(4): e(f'v_pk_fma_f32 {vr(dU+2*k,2)}, {vr(DU+2*k,2)}, {sr(sAu,2)}, {sr(sAu,2)} {PKB}')
        for k in range(4): e(f'v_pk_fma_f32 {vr(dV+2*k,2)}, {vr(DV+2*k,2)}, {sr(sAv,2)}, {sr(sAv,2)} {PKB}')
    def norm_coeffs(scale, bias):
        e(f'''v_readlane_b32 {sr(sKu)}, {vr(scale)}, 0
        v_readlane_b32 {sr(sKu+1)}, {vr(bias)}, 0
        v_readlane_b32 {sr(sKv)}, {vr(scale)}, 32
        v_readlane_b32 {sr(sKv+1)}, {vr(bias)}, 32''')
    GG = t(16)
    def make_g():
        for k in range(4): e(f'v_pk_fma_f32 {vr(GG+2*k,2)}, {vr(DU+2*k,2)}, {sr(sKu,2)}, {sr(sKu,2)} {PKB}')
        for k in range(4): e(f'v_pk_fma_f32 {vr(GG+2*k,2)}, {vr(DV+2*k,2)}, {sr(sKv,2)}, {vr(GG+2*k,2)} op_sel_hi:[1,0,1]')
    def write_n(src, tmp):
        for k in range(4): e(f'v_cvt_pk_f16_f32 {vr(tmp+k)}, {vr(src+2*k)}, {vr(src+2*k+1)}')
        e(f'ds_write_b128 {vr(lRow)}, {vr(tmp,4)} offset:{GIMG}')
    def write_r(src, tmp):
        e(f'''v_mov_b32_dpp {vr(tmp+4)}, {vr(src)} wave_rol:1 {DPP}
        v_cvt_pk_f16_f32 {vr(tmp+1)}, {vr(src+6)}, {vr(src+5)}
        v_cvt_pk_f16_f32 {vr(tmp+2)}, {vr(src+4)}, {vr(src+3)}
        v_cvt_pk_f16_f32 {vr(tmp+3)}, {vr(src+2)}, {vr(src+1)}
        v_cvt_pk_f16_f32 {vr(tmp)}, {vr(tmp+4)}, {vr(src+7)}
        ds_write_b128 {vr(lRw)}, {vr(tmp,4)}''')
    def core(A, O):
        Dr = [t(0), t(8)]; Di = [t(4), t(12)]
        for Tt in range(2):
            e(f'v_mfma_f32_16x16x32_f16 {vr(Dr[Tt],4)}, {vr(A,4)}, {vr(RB1+(2*Tt)*4,4)}, 0')
            e(f'v_mfma_f32_16x16x32_f16 {vr(Di[Tt],4)}, {vr(A,4)}, {vr(RB1+(2*Tt+1)*4,4)}, 0')
        Bo = [t(16), t(20)]; br, bi = t(24), t(28)
        for Tt in range(2):
            for h in range(2):
                c = vr(RC+4*Tt+2*h, 2); s_ = vr(RS+4*Tt+2*h, 2)
                dr = vr(Dr[Tt]+2*h, 2); di = vr(Di[Tt]+2*h, 2)
                e(f'''v_pk_mul_f32 {vr(br+2*h,2)}, {dr}, {c}
                v_pk_mul_f32 {vr(bi+2*h,2)}, {di}, {c}
                v_pk_fma_f32 {vr(br+2*h,2)}, {di}, {s_}, {vr(br+2*h,2)}
                v_pk_fma_f32 {vr(bi+2*h,2)}, {dr}, {s_}, {vr(bi+2*h,2)} neg_lo:[1,0,0] neg_hi:[1,0,0]''')
            e(f'''v_cvt_pk_f16_f32 {vr(Bo[Tt])}, {vr(br)}, {vr(br+1)}
            v_cvt_pk_f16_f32 {vr(Bo[Tt]+1)}, {vr(br+2)}, {vr(br+3)}
            v_cvt_pk_f16_f32 {vr(Bo[Tt]+2)}, {vr(bi)}, {vr(bi+1)}
            v_cvt_pk_f16_f32 {vr(Bo[Tt]+3)}, {vr(bi+2)}, {vr(bi+3)}''')
            e(f'v_mfma_f32_16x16x32_f16 {vr(O+4*Tt,4)}, {vr(RA2,4)}, {vr(Bo[Tt],4)}, 0')

    CA, CO = t(32), t(36)
    def transform(dst_off, tagged=False, pre_core=None, post_scatter=None, pre_store=None):
        write_n(GG, t(24))
        e(f"""ds_read_b64_tr_b16 {vr(CA,2)}, {vr(lTr)} offset:{GIMG}
        ds_read_b64_tr_b16 {vr(CA+2,2)}, {vr(lTr)} offset:{GIMG+128}""")
        if pre_core: pre_core()
        e('s_waitcnt lgkmcnt(0)')
        core(CA, CO)
        for k in range(4): e(f'v_cvt_pk_f16_f32 {vr(t(44)+k)}, {vr(CO+2*k)}, {vr(CO+2*k+1)}')
        for Tt in range(2):
            for i in range(4):
                op = 'ds_write_b16' if i % 2 == 0 else 'ds_write_b16_d16_hi'
                e(f'{op} {vr(lH+Tt)}, {vr(t(44) + 2*Tt + i//2)} offset:{512*i}')
        e(f'ds_write_b16_d16_hi {vr(lHf)}, {vr(t(45))}\nds_write_b16_d16_hi {vr(lHf+1)}, {vr(t(45))}')
        if post_scatter: post_scatter()
        if tagged:
            e(f"""v_lshlrev_b32 {vr(t(8))}, 3, v0
            s_lshl_b32 {sr(sT)}, {sr(sRho)}, 13
            v_add_u32 {vr(t(9))}, {sr(sT)}, {vr(lG)}""")
            for k in (1, 3, 5, 7): e(f'v_mov_b32 {vr(t(k))}, {sr(sTag)}')
            if pre_store: pre_store()
            e(f"""s_waitcnt lgkmcnt(0)
            s_barrier
            ds_read_b32 {vr(t(0))}, {vr(t(8))} offset:{HIMG}
            ds_read_b32 {vr(t(2))}, {vr(t(8))} offset:{HIMG+4}
            ds_read_b32 {vr(t(4))}, {vr(t(8))} offset:{HIMG+2048}
            ds_read_b32 {vr(t(6))}, {vr(t(8))} offset:{HIMG+2052}
            s_mov_b32 {sr(sOff)}, {dst_off}
            s_mov_b32 {sr(sT)}, {dst_off+4096}
            s_waitcnt lgkmcnt(2)
            buffer_store_dwordx4 {vr(t(0),4)}, {vr(t(9))}, {sr(sWS,4)}, {sr(sOff)} offen sc1
            s_waitcnt lgkmcnt(0)
            buffer_store_dwordx4 {vr(t(4),4)}, {vr(t(9))}, {sr(sWS,4)}, {sr(sT)} offen sc1""")
        else:
            if pre_store: pre_store()
            e(f"""s_waitcnt lgkmcnt(0)
            s_barrier
            ds_read_b128 {vr(t(0),4)}, {vr(lG)} offset:{HIMG}
            s_mov_b32 {sr(sOff)}, {dst_off}
            s_waitcnt lgkmcnt(0)
            buffer_store_dwordx4 {vr(t(0),4)}, {vr(aP16)}, {sr(sWS,4)}, {sr(sOff)} offen sc1""")

    def affine_from_x(sx1x0_u, sx1x0_v, sKu_, sKv_, outU, outV):
        for (xx, cc, kk, oo) in ((sx1x0_u, sCu, sKu_, outU), (sx1x0_v, sCv, sKv_, outV)):
            if xx is None:
                e(f"""v_mov_b32 {vr(t(44))}, {sr(kk)}
                v_mov_b32 {vr(t(45))}, {sr(kk+1)}
                v_fma_f32 {vr(t(45))}, -{vr(t(44))}, {sr(cc)}, {vr(t(45))}""")
            else:
                e(f"""v_rcp_f32 {vr(t(44))}, {sr(xx)}
                v_mov_b32 {vr(t(45))}, {sr(kk+1)}
                v_mul_f32 {vr(t(44))}, {sr(kk)}, {vr(t(44))}
                v_fma_f32 {vr(t(45))}, -{vr(t(44))}, {sr(xx+1)}, {vr(t(45))}""")
            e(f'v_readfirstlane_b32 {sr(oo)}, {vr(t(44))}\nv_readfirstlane_b32 {sr(oo+1)}, {vr(t(45))}')

    def special_k(dst_off, after_residual):
        ln = g.lab('nok')
        e(f's_cmp_lg_u32 {sr(sRowU)}, 0\ns_cbranch_scc1 {ln}')
        affine_from_x(sAu if after_residual else None, sAv if after_residual else None, sKu, sKv, sH, sH+2)
        ZU, ZV = t(0), t(8)
        for k in range(4): e(f'v_pk_fma_f32 {vr(ZU+2*k,2)}, {vr(XU+2*k,2)}, {sr(sH,2)}, {sr(sH,2)} {PKB}')
        for k in range(4): e(f'v_pk_fma_f32 {vr(ZV+2*k,2)}, {vr(XV+2*k,2)}, {sr(sH+2,2)}, {sr(sH+2,2)} {PKB}')
        write_r(ZU, t(16)); write_n(ZV, t(24))
        A, B = CA, t(40)
        e(f"""ds_read_b64_tr_b16 {vr(A,2)}, {vr(lTr)} offset:{RIMG}
        ds_read_b64_tr_b16 {vr(B,2)}, {vr(lTr)} offset:{GIMG}
        ds_read_b64_tr_b16 {vr(A+2,2)}, {vr(lTr)} offset:{RIMG+128}
        ds_read_b64_tr_b16 {vr(B+2,2)}, {vr(lTr)} offset:{GIMG+128}
        s_waitcnt lgkmcnt(0)""")
        for k in range(4): e(f'v_pk_add_f16 {vr(A+k)}, {vr(A+k)}, {vr(B+k)} neg_lo:[0,1] neg_hi:[0,1]')
        core(A, CO)
        for k in range(4): e(f'v_pk_mul_f32 {vr(CO+2*k,2)}, {vr(CO+2*k,2)}, {sr(sT2 if False else sM2,2)} op_sel_hi:[1,0]' if False else f'v_mul_f32 {vr(CO+2*k)}, {fbits(1/16)}, {vr(CO+2*k)}\nv_mul_f32 {vr(CO+2*k+1)}, {fbits(1/16)}, {vr(CO+2*k+1)}')
        for k in range(4): e(f'v_cvt_pk_f16_f32 {vr(t(44)+k)}, {vr(CO+2*k)}, {vr(CO+2*k+1)}')
        e(f"""v_lshl_add_u32 {vr(t(0))}, {vr(vQ)}, 7, {vr(vN)}
        v_lshlrev_b32 {vr(t(0))}, 1, {vr(t(0))}
        v_sub_u32 {vr(t(1))}, {1024-32-192}, {vr(t(0))}
        v_mov_b32 {vr(t(2))}, 512
        s_mov_b32 exec_lo, -1
        s_mov_b32 exec_hi, 0""")
        for Tt in range(2):
            for i in range(4):
                op = 'ds_write_b16' if i % 2 == 0 else 'ds_write_b16_d16_hi'
                e(f'{op} {vr(t(0))}, {vr(t(44)+2*Tt+i//2)} offset:{KIMG + 32*Tt + 64*i}')
                e(f'{op} {vr(t(1))}, {vr(t(44)+2*Tt+i//2)} offset:{KIMG + 32*(1-Tt) + 64*(3-i)}')
        e(f"""s_mov_b32 exec_lo, 0
        s_mov_b32 exec_hi, 0x00010000
        ds_write_b16_d16_hi {vr(t(2))}, {vr(t(45))} offset:{KIMG}
        s_mov_b64 exec, -1
        v_lshlrev_b32 {vr(t(3))}, 4, {vr(vL)}
        s_waitcnt lgkmcnt(0)
        ds_read_b128 {vr(t(4),4)}, {vr(t(3))} offset:{KIMG}
        s_mov_b32 {sr(sOff)}, {dst_off}
        s_waitcnt lgkmcnt(0)
        buffer_store_dwordx4 {vr(t(4),4)}, {vr(t(3))}, {sr(sWS,4)}, {sr(sOff)} offen sc1
        {ln}:""")

    PC = t(40)
    def column_load(src_off):
        e(f's_mov_b32 {sr(sOff)}, {src_off}')
        e(ws_load_text(4, PC, aS16, sr(sOff)))
    def column(src_off, dst_off, preloaded, tagged=False, behind_poll=None):
        P = PC
        e(f's_mov_b32 {sr(sOff)}, {src_off}')
        if tagged:
            P = t(0); A2 = t(44); AD1 = t(8)
            e(f'''v_lshrrev_b32 {vr(AD1)}, 1, v0
            v_lshlrev_b32 {vr(AD1)}, 13, {vr(AD1)}
            v_and_b32 {vr(t(9))}, 1, v0
            v_lshl_add_u32 {vr(AD1)}, {vr(t(9))}, 4, {vr(AD1)}
            s_lshl_b32 {sr(sT)}, {sr(sRho)}, 5
            v_add_u32 {vr(AD1)}, {sr(sT)}, {vr(AD1)}
            s_add_u32 {sr(sT3)}, {sr(sOff)}, {128*8192}''')
            ld = ws_load_text(4, P, AD1, sr(sOff)) + '\n' + ws_load_text(4, P+4, AD1, sr(sT3))
            if opt.get('splitc'):
                e(ld)
                nb = 0
                if behind_poll:
                    behind_poll[0](); nb = behind_poll[1]; e(f's_mov_b32 {sr(sOff)}, {src_off}')
                col_consts_b(); e(f's_waitcnt vmcnt({nb})')
                poll(ld, ('tag', P), preloaded=True)
            else:
                poll(ld, ('tag', P))
            stamp('col data')
            for k in range(2):
                e(f'''ds_write_b16 {vr(A2+2*k)}, {vr(P+4*k)}
                ds_write_b16_d16_hi {vr(A2+2*k+1)}, {vr(P+4*k)} offset:16
                ds_write_b16 {vr(A2+2*k+1)}, {vr(P+4*k+2)} offset:32
                ds_write_b16_d16_hi {vr(A2+2*k+1)}, {vr(P+4*k+2)} offset:48''')
            e('s_waitcnt lgkmcnt(0)\ns_barrier')
        else:
            poll(ws_load_text(4, P, aS16, sr(sOff)), range(P, P+4), preloaded=preloaded)
            lsw = g.lab('nosw')
            e(f's_bitcmp0_b32 {sr(sRho)}, 3\ns_cbranch_scc1 {lsw}\nv_swap_b32 {vr(P)}, {vr(P+2)}\nv_swap_b32 {vr(P+1)}, {vr(P+3)}\n{lsw}:')
            d = [P, P+1, P+2, P+3]
            stamp('col data')
            e(f"""ds_write_b16 {vr(lCa)}, {vr(d[0])}
            ds_write_b16_d16_hi {vr(lCa)}, {vr(d[0])} offset:16
            ds_write_b16 {vr(lCa)}, {vr(d[1])} offset:32
            ds_write_b16_d16_hi {vr(lCa)}, {vr(d[1])} offset:48
            ds_write_b16 {vr(lCb)}, {vr(d[2])}
            ds_write_b16_d16_hi {vr(lCc)}, {vr(d[2])} offset:16
            ds_write_b16 {vr(lCc)}, {vr(d[3])} offset:32
            ds_write_b16_d16_hi {vr(lCc)}, {vr(d[3])} offset:48
            s_waitcnt lgkmcnt(0)
            s_barrier""")
        A = t(0)
        for k in range(4): e(f'ds_read_b128 {vr(A+4*k,4)}, {vr(lCr)} offset:{tables.cin_block(k)}')
        D1 = [t(16), t(20)]
        e(f"""s_waitcnt lgkmcnt(3)
        v_mfma_f32_16x16x32_f16 {vr(D1[0],4)}, {vr(A,4)}, {vr(CB1,4)}, 0
        s_waitcnt lgkmcnt(2)
        v_mfma_f32_16x16x32_f16 {vr(D1[0],4)}, {vr(A+4,4)}, {vr(CB1+4,4)}, {vr(D1[0],4)}
        s_waitcnt lgkmcnt(1)
        v_mfma_f32_16x16x32_f16 {vr(D1[1],4)}, {vr(A+8,4)}, {vr(CB1,4)}, 0
        s_waitcnt lgkmcnt(0)
        v_mfma_f32_16x16x32_f16 {vr(D1[1],4)}, {vr(A+12,4)}, {vr(CB1+4,4)}, {vr(D1[1],4)}""")
        Bb = t(24); br, bi = t(28), t(32); Bo = [t(0), t(4)]
        O = [t(8), t(12)]
        for Tt in range(2):
            k = CK + 16*Tt
            for i in range(4): e(f'v_mov_b32_dpp {vr(Bb+i)}, {vr(D1[Tt]+i)} row_ror:8 {DPP}')
            for h in range(2):
                e(f"""v_pk_mul_f32 {vr(br+2*h,2)}, {vr(D1[Tt]+2*h,2)}, {vr(k+2*h,2)}
                v_pk_mul_f32 {vr(bi+2*h,2)}, {vr(D1[Tt]+2*h,2)}, {vr(k+8+2*h,2)}""")
            for h in range(2):
                e(f"""v_pk_fma_f32 {vr(br+2*h,2)}, {vr(Bb+2*h,2)}, {vr(k+4+2*h,2)}, {vr(br+2*h,2)}
                v_pk_fma_f32 {vr(bi+2*h,2)}, {vr(Bb+2*h,2)}, {vr(k+12+2*h,2)}, {vr(bi+2*h,2)}""")
            e(f"""v_cvt_pk_f16_f32 {vr(Bo[Tt])}, {vr(br)}, {vr(br+1)}
            v_cvt_pk_f16_f32 {vr(Bo[Tt]+1)}, {vr(br+2)}, {vr(br+3)}
            v_cvt_pk_f16_f32 {vr(Bo[Tt]+2)}, {vr(bi)}, {vr(bi+1)}
            v_cvt_pk_f16_f32 {vr(Bo[Tt]+3)}, {vr(bi+2)}, {vr(bi+3)}""")
            e(f"""v_mfma_f32_16x16x32_f16 {vr(O[0],4)}, {vr(CA2+4*Tt,4)}, {vr(Bo[Tt],4)}, {"0" if Tt == 0 else vr(O[0],4)}
            v_mfma_f32_16x16x32_f16 {vr(O[1],4)}, {vr(CA2+8+4*Tt,4)}, {vr(Bo[Tt],4)}, {"0" if Tt == 0 else vr(O[1],4)}""")
        e(f"""        v_cvt_pk_f16_f32 {vr(t(16))}, {vr(O[0])}, {vr(O[0]+1)}
        v_cvt_pk_f16_f32 {vr(t(17))}, {vr(O[0]+2)}, {vr(O[0]+3)}
        ds_write_b16 {vr(lCo)}, {vr(t(16))}
        ds_write_b16_d16_hi {vr(lCo)}, {vr(t(16))} offset:256
        v_cvt_pk_f16_f32 {vr(t(18))}, {vr(O[1])}, {vr(O[1]+1)}
        v_cvt_pk_f16_f32 {vr(t(19))}, {vr(O[1]+2)}, {vr(O[1]+3)}
        ds_write_b16 {vr(lCo)}, {vr(t(17))} offset:512
        ds_write_b16_d16_hi {vr(lCo)}, {vr(t(17))} offset:768
        ds_write_b16 {vr(lCo+2)}, {vr(t(18))}
        ds_write_b16_d16_hi {vr(lCo+1)}, {vr(t(18))} offset:512
        ds_write_b16 {vr(lCo+1)}, {vr(t(19))} offset:256
        ds_write_b16_d16_hi {vr(lCo+1)}, {vr(t(19))}
        s_waitcnt lgkmcnt(0)
        s_barrier
        ds_read_b128 {vr(t(0),4)}, {vr(lG)} offset:{COUT}
        s_mov_b32 {sr(sOff)}, {dst_off}
        s_waitcnt {'vmcnt(0) ' if behind_poll else ''}lgkmcnt(0)
        buffer_store_dwordx4 {vr(t(0),4)}, {vr(aP16)}, {sr(sWS,4)}, {sr(sOff)} offen sc1""")

    YY = [t(4), t(8)]; KT = t(12)
    def row_input(src_off, kb, behind_poll=None, ydst=None):
        P = t(0); YH, YV = ydst or YY
        lk = g.lab('nok')
        e(f's_bitcmp0_b32 {sr(sW)}, 0\ns_cbranch_scc1 {lk}')
        e(f'v_lshlrev_b32 {vr(t(16))}, 4, {vr(vL)}\ns_mov_b32 {sr(sT3)}, {kb}')
        e(ws_load_text(4, KT, t(16), sr(sT3)))
        e(f'{lk}:')
        e(f's_mov_b32 {sr(sOff)}, {src_off}')
        ld = ws_load_text(4, P, aS16, sr(sOff))
        if behind_poll:
            e(ld); behind_poll[0](); e(f's_mov_b32 {sr(sOff)}, {src_off}\ns_waitcnt vmcnt({behind_poll[1]})')
            poll(ld, range(P, P+4), preloaded=True)
        else:
            poll(ld, range(P, P+4))
        stamp('row data')
        def wr(slot, areg, off):
            op = 'ds_write_b16' if slot % 2 == 0 else 'ds_write_b16_d16_hi'
            e(f'{op} {vr(areg)}, {vr(P + slot//2)} offset:{YIMG + off}')
        for j in range(4): wr(j, lYd, j*1024)
        wr(4, lYm4, 0); wr(5, lYm, 3*1024); wr(6, lYm, 2*1024); wr(7, lYm, 1024)
        l0 = g.lab('not0')
        e(f's_cmp_lg_u32 {sr(sRho)}, 0\ns_cbranch_scc1 {l0}')
        wr(0, lYm, 0); wr(4, lYd, 4096)
        e(f"""{l0}:
        s_waitcnt lgkmcnt(0)
        s_barrier
        ds_read_b128 {vr(YH,4)}, {vr(lRow)} offset:{YIMG}""")
        lv = g.lab('yv')
        e(f"""s_cmp_lg_u32 {sr(sRowU)}, 0
        s_cbranch_scc1 {lv}
        ds_read_b128 {vr(YV,4)}, {vr(lRow)} offset:{YIMG+4096}
        {lv}:""")
        lk = g.lab('nok2')
        e(f's_bitcmp0_b32 {sr(sW)}, 0\ns_cbranch_scc1 {lk}')
        poll(ws_load_text(4, KT, t(16), sr(sT3)), range(KT, KT+4), preloaded=True)
        e('s_waitcnt lgkmcnt(0)')
        for k in range(4): e(f'v_pk_add_f16 {vr(YH+k)}, {vr(YH+k)}, {vr(KT+k)}')
        e(f'{lk}:\ns_waitcnt lgkmcnt(0)')
    def add_y(yu, yv):
        for k in range(4):
            e(f"""v_fma_mix_f32 {vr(XU+2*k)}, {vr(yu+k)}, {sr(s16)}, {vr(XU+2*k)} op_sel:[0,0,0] op_sel_hi:[1,0,0]
            v_fma_mix_f32 {vr(XU+2*k+1)}, {vr(yu+k)}, {sr(s16)}, {vr(XU+2*k+1)} op_sel:[1,0,0] op_sel_hi:[1,0,0]""")
        for k in range(4):
            e(f"""v_fma_mix_f32 {vr(XV+2*k)}, {vr(yv+k)}, {sr(s16)}, {vr(XV+2*k)} op_sel:[0,0,0] op_sel_hi:[1,0,0]
            v_fma_mix_f32 {vr(XV+2*k+1)}, {vr(yv+k)}, {sr(s16)}, {vr(XV+2*k+1)} op_sel:[1,0,0] op_sel_hi:[1,0,0]""")
    def add_y_pair(y=None):
        YH, YV = y or YY
        ls = g.lab('ysp'); lj = g.lab('yj')
        e(f's_cmp_eq_u32 {sr(sRowU)}, 0\ns_cbranch_scc1 {ls}')
        add_y(YH, YH)
        e(f'{lj}:')
        g.late.append((ls, lj, YH, YV))
    g.late = []

    def make_key():
        e(f"""v_ashrrev_i32 {vr(t(22))}, 31, {vr(hR)}
        v_or_b32 {vr(t(22))}, 0x80000000, {vr(t(22))}
        v_xor_b32 {vr(t(22))}, {vr(hR)}, {vr(t(22))}
        v_and_b32 {vr(t(22))}, 0xfffff800, {vr(t(22))}
        v_or_b32 {vr(t(22))}, {vr(vRowH)}, {vr(t(22))}
        v_readlane_b32 {sr(sKeyU)}, {vr(t(22))}, 0
        v_readlane_b32 {sr(sKeyV)}, {vr(t(22))}, 32
        s_lshl_b32 {sr(sT)}, {sr(sW)}, 2
        v_mov_b32 {vr(t(23))}, {sr(sT)}
        s_max_u32 {sr(sKey)}, {sr(sKeyU)}, {sr(sKeyV)}
        v_mov_b32 {vr(t(22))}, {sr(sKey)}
        ds_write_b32 {vr(t(23))}, {vr(t(22))} offset:{AM}""")
    def wg_best_read(tmp):
        e(f'v_mov_b32 {vr(tmp+4)}, 0\nds_read_b128 {vr(tmp,4)}, {vr(tmp+4)} offset:{AM}')
    def wg_best_header(cand, tmp):
        ln = g.lab('nohdr')
        e(f"""v_max3_u32 {vr(tmp)}, {vr(tmp)}, {vr(tmp+1)}, {vr(tmp+2)}
        v_max_u32 {vr(tmp)}, {vr(tmp)}, {vr(tmp+3)}
        v_readfirstlane_b32 {sr(sT)}, {vr(tmp)}
        s_cmp_eq_u32 {sr(sT)}, {sr(sKey)}
        s_cselect_b32 {sr(sSgn)}, 1, 0
        s_cbranch_scc0 {ln}
        s_lshl_b32 {sr(sT)}, {sr(sRho)}, 12
        s_add_u32 {sr(sOff)}, {sr(sT)}, {cand}
        v_mov_b32 {vr(tmp+1)}, {sr(sKey)}
        s_mov_b64 exec, 1
        buffer_store_dword {vr(tmp+1)}, {vr(tmp+4)}, {sr(sWS,4)}, {sr(sOff)} offen sc1
        s_mov_b64 exec, -1
        {ln}:""")
    def publish_rows(cand):
        ln = g.lab('nopub'); lv = g.lab('pubv'); lj = g.lab('pubj')
        e(f's_cmp_eq_u32 {sr(sSgn)}, 0\ns_cbranch_scc1 {ln}')
        e(f"""s_lshl_b32 {sr(sT)}, {sr(sRho)}, 12
        s_add_u32 {sr(sOff)}, {sr(sT)}, {cand}
        s_cmp_gt_u32 {sr(sKeyV)}, {sr(sKeyU)}
        s_cbranch_scc1 {lv}""")
        for (lab_, X_, A_, C_) in ((None, XU, sAu, sCu), (lv, XV, sAv, sCv)):
            if lab_: e(f'{lab_}:')
            e(f"""v_rcp_f32 {vr(t(0))}, {sr(A_)}
            v_mov_b32 {vr(t(1))}, {sr(A_+1)}
            v_mov_b32 {vr(t(2))}, {sr(A_)}
            v_add_f32 {vr(t(2))}, -1.0, {vr(t(2))}
            v_subrev_f32 {vr(t(3))}, {sr(C_)}, {vr(t(1))}
            v_mul_f32 {vr(t(4))}, {vr(t(2))}, {vr(t(0))}
            v_fma_f32 {vr(t(6))}, -{vr(t(4))}, {vr(t(1))}, {vr(t(3))}""")
            Z = t(8)
            for k in range(4): e(f'v_pk_fma_f32 {vr(Z+2*k,2)}, {vr(X_+2*k,2)}, {vr(t(4),2)}, {vr(t(6),2)} op_sel_hi:[1,0,0]')
            if X_ == XU:
                for k in range(4): e(f'v_cvt_pk_bf16_f32 {vr(t(16)+k)}, {vr(Z+2*k)}, {vr(Z+2*k+1)}')
                e(f"""v_lshlrev_b32 {vr(t(1))}, 4, {vr(vL)}
                v_lshlrev_b32 {vr(t(2))}, 5, {vr(vL)}
                buffer_store_dwordx4 {vr(t(16),4)}, {vr(t(1))}, {sr(sWS,4)}, {sr(sOff)} offen offset:128 sc1
                buffer_store_dwordx4 {vr(XU,4)}, {vr(t(2))}, {sr(sWS,4)}, {sr(sOff)} offen offset:1152 sc1
                buffer_store_dwordx4 {vr(XU+4,4)}, {vr(t(2))}, {sr(sWS,4)}, {sr(sOff)} offen offset:1168 sc1
                s_branch {lj}""")
            else:
                e(f"""v_mov_b32_dpp {vr(t(20))}, {vr(Z)} wave_rol:1 {DPP}
                v_mov_b32_dpp {vr(t(24))}, {vr(XV)} wave_rol:1 {DPP}
                v_cvt_pk_bf16_f32 {vr(t(17))}, {vr(Z+6)}, {vr(Z+5)}
                v_cvt_pk_bf16_f32 {vr(t(18))}, {vr(Z+4)}, {vr(Z+3)}
                v_cvt_pk_bf16_f32 {vr(t(19))}, {vr(Z+2)}, {vr(Z+1)}
                v_cvt_pk_bf16_f32 {vr(t(16))}, {vr(t(20))}, {vr(Z+7)}""")
                for k in range(1, 8): e(f'v_mov_b32 {vr(t(24)+k)}, {vr(XV+8-k)}')
                e(f"""v_lshlrev_b32 {vr(t(1))}, 4, {vr(vL)}
                v_sub_u32 {vr(t(1))}, 1008, {vr(t(1))}
                v_lshlrev_b32 {vr(t(2))}, 1, {vr(t(1))}
                buffer_store_dwordx4 {vr(t(16),4)}, {vr(t(1))}, {sr(sWS,4)}, {sr(sOff)} offen offset:128 sc1
                buffer_store_dwordx4 {vr(t(24),4)}, {vr(t(2))}, {sr(sWS,4)}, {sr(sOff)} offen offset:1152 sc1
                buffer_store_dwordx4 {vr(t(28),4)}, {vr(t(2))}, {sr(sWS,4)}, {sr(sOff)} offen offset:1168 sc1""")
        e(f'{lj}:\n{ln}:')

    def header_load(cand, K):
        e(f's_mov_b32 {sr(sOff)}, {cand}')
        e(ws_load_text(1, K, aHdr, sr(sOff)))
    def argmax(cand, K, after_check=None):
        e(f's_mov_b32 {sr(sOff)}, {cand}')
        poll(ws_load_text(1, K, aHdr, sr(sOff)), [K], preloaded=True, backoff=4)
        if after_check: after_check()
        wave_reduce([K], [t(1)], op='v_max_u32')
        e(f"""s_lshl_b32 {sr(sT)}, {sr(sW)}, 2
        v_mov_b32 {vr(t(1))}, {sr(sT)}
        ds_write_b32 {vr(t(1))}, {vr(K)} offset:{AM+32}
        v_mov_b32 {vr(t(1))}, 0
        s_waitcnt lgkmcnt(0)
        s_barrier
        ds_read_b128 {vr(t(4),4)}, {vr(t(1))} offset:{AM+32}
        s_waitcnt lgkmcnt(0)
        v_max3_u32 {vr(t(4))}, {vr(t(4))}, {vr(t(5))}, {vr(t(6))}
        v_max_u32 {vr(t(4))}, {vr(t(4))}, {vr(t(7))}
        v_readfirstlane_b32 {sr(sKey)}, {vr(t(4))}""")
        e(f"""s_and_b32 {sr(sStar)}, {sr(sKey)}, 2047
        s_lshr_b32 {sr(sT)}, {sr(sStar)}, 2
        s_sub_u32 {sr(sT2)}, 511, {sr(sT)}
        s_sub_u32 {sr(sT3)}, 512, {sr(sT)}
        s_and_b32 {sr(sT3)}, {sr(sT3)}, 255
        s_and_b32 {sr(sRec)}, {sr(sStar)}, 3
        s_cmp_eq_u32 {sr(sRec)}, 0
        s_cselect_b32 {sr(sT2)}, {sr(sT3)}, {sr(sT2)}
        s_cmp_lt_u32 {sr(sStar)}, 1024
        s_cselect_b32 {sr(sT2)}, {sr(sT)}, {sr(sT2)}
        s_lshl_b32 {sr(sRec)}, {sr(sT2)}, 12
        s_add_u32 {sr(sRec)}, {sr(sRec)}, {cand}""")
    def sigmoid_of_key():
        e(f"""s_and_b32 {sr(sT)}, {sr(sKey)}, 0xfffff800
        s_or_b32 {sr(sT)}, {sr(sT)}, 0x400
        s_ashr_i32 {sr(sT2)}, {sr(sT)}, 31
        s_not_b32 {sr(sT2)}, {sr(sT2)}
        s_or_b32 {sr(sT2)}, {sr(sT2)}, 0x80000000
        s_xor_b32 {sr(sT)}, {sr(sT)}, {sr(sT2)}
        v_mov_b32 {vr(vSig)}, {fbits(-1.4426950408889634)}
        v_mul_f32 {vr(vSig)}, {sr(sT)}, {vr(vSig)}
        v_exp_f32 {vr(vSig)}, {vr(vSig)}
        v_add_f32 {vr(vSig)}, 1.0, {vr(vSig)}
        v_rcp_f32 {vr(vSig)}, {vr(vSig)}""")

    def ffn_setup():
        e(f"""v_and_b32 {vr(t(24))}, 3, {vr(vN)}
        v_lshrrev_b32 {vr(t(25))}, 2, {vr(vN)}
        v_lshl_add_u32 {vr(t(25))}, {vr(vQ)}, 3, {vr(t(25))}
        s_lshl_b32 {sr(sT)}, {sr(sW)}, 7
        v_add_u32 {vr(t(25))}, {sr(sT)}, {vr(t(25))}
        v_lshlrev_b32 {vr(t(25))}, 4, {vr(t(25))}
        v_and_b32 {vr(t(27))}, 1, {vr(t(24))}
        v_lshl_add_u32 {vr(t(25))}, {vr(t(27))}, 3, {vr(t(25))}
        v_lshrrev_b32 {vr(t(27))}, 1, {vr(t(24))}
        v_lshl_add_u32 {vr(t(25))}, {vr(t(27))}, 13, {vr(t(25))}
        v_lshlrev_b32 {vr(t(26))}, 2, v0""")
        g.nbar_mark = sum(1 for l in g.L if l == 's_barrier')
        e('s_barrier')
        for kap in range(4):
            for h in range(2):
                e(f'ds_read_b64_tr_b16 {vr(FA+4*kap+2*h,2)}, {vr(t(25))} offset:{GU + kap*512 + h*64}')
        for f in range(8): e(f'ds_read_b32 {vr(t(28)+f)}, {vr(t(26))} offset:{DN + f*1024}')
        e('s_waitcnt lgkmcnt(0)')
        for f in range(8):
            e(f'v_lshlrev_b32 {vr(FD+2*f)}, 16, {vr(t(28)+f)}\nv_and_b32 {vr(FD+2*f+1)}, 0xffff0000, {vr(t(28)+f)}')
    def loader():
        e('L_loader:')
        if opt.get('lprio'): e(f's_setprio {opt["lprio"]}')
        lst = [0]
        def lstamp():
            if not stamps: return
            e(f's_memrealtime {sr(sTm,2)}\ns_waitcnt lgkmcnt(0)\nv_writelane_b32 {vr(vStamp)}, {sr(sTm)}, {lst[0]}'); lst[0] += 1
        if stamps: e(f'v_mov_b32 {vr(vStamp)}, 0')
        lstamp()
        if not opt.get('nohint'):
            lh = g.lab('nohint')
            e(f's_cmp_lt_u32 {sr(sWg)}, 248\ns_cbranch_scc1 {lh}')
            srd(sT4, kx, 2097152); srd(sWS, sKC, WS_SIZE)
            e(f'''s_lshl_b32 {sr(sT2)}, {sr(sRho)}, 12
            v_lshlrev_b32 {vr(t(1))}, 4, {vr(vL)}
            v_add_u32 {vr(t(2))}, {sr(sT2)}, {vr(t(1))}
            v_mov_b32 {vr(t(4))}, {NONCE}
            buffer_load_dword {vr(t(3))}, {vr(t(2))}, {sr(sT4,4)}, 0 offen
            buffer_load_dword {vr(t(4))}, {vr(t(4))}, {sr(sWS,4)}, 0 offen
            s_and_b32 {sr(sT)}, {sr(sWg)}, 7
            s_lshl_b32 {sr(sT)}, {sr(sT)}, 8
            v_mov_b32 {vr(t(5))}, {sr(sT)}
            s_waitcnt vmcnt(0)
            v_add_u32 {vr(t(4))}, 1, {vr(t(4))}
            s_mov_b64 exec, 1''')
            ws_store(1, t(4), t(5), HINT)
            e(f's_mov_b64 exec, -1\n{lh}:')
        lstamp()
        if opt.get('lpf') == 'lin':
            e(f"""s_mul_i32 {sr(sT)}, {sr(sWg)}, 5632
            v_min_u32 {vr(t(4))}, 43, {vr(vL)}
            v_lshlrev_b32 {vr(t(4))}, 7, {vr(t(4))}
            v_add_u32 {vr(t(4))}, {sr(sT)}, {vr(t(4))}""")
            for ptr in (kwg, kwu):
                srd(sT4, ptr, 1409024)
                e(f'buffer_load_dword {vr(t(6))}, {vr(t(4))}, {sr(sT4,4)}, 0 offen')
        elif opt.get('lpf'):
            e(f"""s_lshr_b32 {sr(sT)}, {sr(sRho)}, 5
            s_cmp_ge_u32 {sr(sT)}, 6
            s_cbranch_scc1 L_end
            v_lshlrev_b32 {vr(t(1))}, 4, {vr(vL)}""")
            srd(sT4, kx, 2097152)
            e(f"""s_lshl_b32 {sr(sT2)}, {sr(sRho)}, 12
            v_add_u32 {vr(t(2))}, {sr(sT2)}, {vr(t(1))}
            buffer_load_dword {vr(t(3))}, {vr(t(2))}, {sr(sT4,4)}, 0 offen
            s_lshl_b32 {sr(sT)}, {sr(sT)}, 9
            s_and_b32 {sr(sT2)}, {sr(sRho)}, 31
            s_lshl_b32 {sr(sT2)}, {sr(sT2)}, 4
            v_lshrrev_b32 {vr(t(4))}, 2, {vr(vL)}
            v_add_u32 {vr(t(4))}, {sr(sT2)}, {vr(t(4))}
            s_movk_i32 {sr(sT3)}, 2752
            v_mul_lo_u32 {vr(t(4))}, {vr(t(4))}, {sr(sT3)}
            v_and_b32 {vr(t(5))}, 3, {vr(vL)}
            v_lshlrev_b32 {vr(t(5))}, 7, {vr(t(5))}
            s_max_u32 {sr(sT)}, {sr(sT)}, 16
            s_sub_u32 {sr(sT)}, {sr(sT)}, 16
            v_add3_u32 {vr(t(4))}, {vr(t(4))}, {vr(t(5))}, {sr(sT)}
            v_sub_u32 {vr(t(5))}, {vr(t(4))}, {vr(t(5))}
            v_add_u32 {vr(t(5))}, 512, {vr(t(5))}""")
            if opt.get('lpf') != 'now': e('s_waitcnt vmcnt(0)')
            for ptr in (kwg, kwu):
                srd(sT4, ptr, 1409024)
                e(f"""buffer_load_dword {vr(t(6))}, {vr(t(4))}, {sr(sT4,4)}, 0 offen
                buffer_load_dword {vr(t(7))}, {vr(t(5))}, {sr(sT4,4)}, 0 offen""")
        e(f"""s_cmp_ge_u32 {sr(sPhi)}, {NF}
        s_cbranch_scc1 L_end""")
        e(f"""s_movk_i32 {sr(sT3)}, 2752
        v_mul_lo_u32 {vr(t(0))}, {vr(vL)}, {sr(sT3)}
        s_lshl_b32 {sr(sT2)}, {sr(sPhi)}, 4
        v_add_u32 {vr(t(0))}, {sr(sT2)}, {vr(t(0))}
        v_lshlrev_b32 {vr(t(1))}, 4, {vr(vL)}""")
        def gu(ptr, lds, ks=range(8)):
            srd(sT4, ptr, 1409024)
            for k in ks:
                e(f"""s_add_u32 {sr(sT)}, {sr(sPhi)}, {k}
                s_and_b32 {sr(sT)}, {sr(sT)}, 7
                s_lshl_b32 {sr(sT2)}, {sr(sT)}, 10
                s_add_u32 m0, {sr(sT2)}, {lds}
                s_mul_i32 {sr(sOff)}, {sr(sT)}, {64*2752}
                buffer_load_dwordx4 {vr(t(0))}, {sr(sT4,4)}, {sr(sOff)} offen {opt.get('wfl','')} lds""")
        def dn():
            srd(sT4, kwd, 1409024)
            e(f's_lshl_b32 {sr(sT2)}, {sr(sPhi)}, 13')
            for f in range(8):
                e(f"""s_mov_b32 m0, {DN + 1024*f}
                s_add_u32 {sr(sOff)}, {sr(sT2)}, {1024*f}
                buffer_load_dwordx4 {vr(t(1))}, {sr(sT4,4)}, {sr(sOff)} offen {opt.get('wfl','')} lds""")
        if opt.get('lwait'):
            srd(sT4, kx, 2097152)
            e(f's_lshl_b32 {sr(sT)}, {sr(sRho)}, 12\nv_add_u32 {vr(t(2))}, {sr(sT)}, {vr(t(1))}\nbuffer_load_dword {vr(t(3))}, {vr(t(2))}, {sr(sT4,4)}, 0 offen\ns_waitcnt vmcnt(0)')
        plan = {int(x.split(':')[0]): x.split(':')[1] for x in opt.get('lplan', '0:gud').split('/')}
        if opt.get('lcnt'):
            cnt = [int(x) for x in opt['lcnt'].split('.')]; assert sum(cnt) == 16
            dpos = int(opt.get('ldpos', 0)); nxt = 0
            for k in range(g.nbar_mark + 1):
                if k == dpos: dn()
                for j in range(cnt[k] if k < len(cnt) else 0):
                    gu(kwg if nxt < 8 else kwu, GU + (0 if nxt < 8 else 8192), [nxt & 7]); nxt += 1
                lstamp()
                if k < g.nbar_mark: e('s_barrier')
            plan = None
        for k in range(g.nbar_mark + 1 if plan is not None else 0):
            for c in plan.get(k, ''):
                {'g': lambda: gu(kwg, GU), 'u': lambda: gu(kwu, GU + 8192), 'd': dn,
                 'a': lambda: gu(kwg, GU, range(0, 4)), 'b': lambda: gu(kwg, GU, range(4, 8)),
                 'c': lambda: gu(kwu, GU + 8192, range(0, 4)), 'e': lambda: gu(kwu, GU + 8192, range(4, 8))}[c]()
            if k < g.nbar_mark: e('s_barrier')
        e('s_waitcnt vmcnt(0)')
        lstamp()
        e('s_barrier\nL_end:')
        if stamps:
            srd(sWS, sKC, WS_SIZE)
            e(f'''s_lshl_b32 {sr(sT)}, {sr(sWg)}, 11
            s_add_u32 {sr(sT)}, {sr(sT)}, 1024
            v_lshlrev_b32 {vr(t(0))}, 2, {vr(vL)}
            v_add_u32 {vr(t(0))}, {sr(sT)}, {vr(t(0))}
            s_mov_b32 {sr(sOff)}, {STAMP}
            buffer_store_dword {vr(vStamp)}, {vr(t(0))}, {sr(sWS,4)}, {sr(sOff)} offen''')
        e('s_endpgm')

    XS = t(0)
    def xsel_text():
        return '\n'.join(f'buffer_load_dwordx4 {vr(XS+4*k,4)}, {vr(t(20))}, {sr(sWS,4)}, {sr(sRec)} offen offset:{128+64*k} sc1' for k in range(4))
    def xsel_load():
        e(f"""s_lshl_b32 {sr(sT)}, {sr(sW)}, 8
        v_lshlrev_b32 {vr(t(20))}, 4, {vr(vQ)}
        v_add_u32 {vr(t(20))}, {sr(sT)}, {vr(t(20))}""")
        e(xsel_text())
    def ffn(part):
        ln = g.lab('noffn')
        e(f's_cmp_ge_u32 {sr(sPhi)}, {NF}\ns_cbranch_scc1 {ln}')
        poll(xsel_text(), range(XS, XS+16), preloaded=True)
        Pp = t(16)
        for k in range(4):
            e(f'v_mfma_f32_16x16x32_bf16 {vr(Pp,4)}, {vr(FA+4*k,4)}, {vr(XS+4*k,4)}, {"0" if k==0 else vr(Pp,4)}')
        e(f"""v_lshlrev_b32 {vr(t(21))}, 6, {vr(vQ)}
        s_lshl_b32 {sr(sT)}, {sr(sW)}, 2
        v_add_u32 {vr(t(21))}, {sr(sT)}, {vr(t(21))}
        v_and_b32 {vr(t(22))}, 31, {vr(vL)}
        v_lshlrev_b32 {vr(t(22))}, 2, {vr(t(22))}
        s_mov_b32 exec_lo, 0x00010001
        s_mov_b32 exec_hi, 0x00010001""")
        for i in range(4): e(f'ds_write_b32 {vr(t(21))}, {vr(Pp+i)} offset:{FP + 16*i}')
        e(f"""s_mov_b64 exec, -1
        s_waitcnt lgkmcnt(0)
        s_barrier
        ds_read_b32 {vr(t(12))}, {vr(t(22))} offset:{FP}
        ds_read_b32 {vr(t(13))}, {vr(t(22))} offset:{FP+128}
        s_waitcnt lgkmcnt(0)""")
        gg, uu = t(12), t(13)
        for mod in ('quad_perm:[1,0,3,2]', 'quad_perm:[2,3,0,1]'):
            e(f'v_add_f32_dpp {vr(gg)}, {vr(gg)}, {vr(gg)} {mod} {DPP}\nv_add_f32_dpp {vr(uu)}, {vr(uu)}, {vr(uu)} {mod} {DPP}')
        e(f"""v_mul_f32 {vr(t(14))}, {fbits(-1.4426950408889634)}, {vr(gg)}
        v_exp_f32 {vr(t(14))}, {vr(t(14))}
        v_mul_f32 {vr(uu)}, {vr(uu)}, {vr(vSig)}
        v_add_f32 {vr(t(14))}, 1.0, {vr(t(14))}
        v_rcp_f32 {vr(t(14))}, {vr(t(14))}
        v_mul_f32 {vr(gg)}, {vr(gg)}, {vr(uu)}
        v_mul_f32 {vr(gg)}, {vr(gg)}, {vr(t(14))}""")
        for f in range(8): e(f'v_readlane_b32 {sr(sH+f)}, {vr(gg)}, {4*f}')
        acc = t(16)
        for f in range(8):
            sel = 'op_sel_hi:[1,0,1]' if f % 2 == 0 else 'op_sel:[0,1,0] op_sel_hi:[1,1,1]'
            if f == 0: e(f'v_pk_mul_f32 {vr(acc,2)}, {vr(FD,2)}, {sr(sH,2)} op_sel_hi:[1,0]')
            else: e(f'v_pk_fma_f32 {vr(acc,2)}, {vr(FD+2*f,2)}, {sr(sH + (f & ~1),2)}, {vr(acc,2)} {sel}')
        ws_store(2, acc, aP8, part)
        e(f'{ln}:')

    def reducer(part, final):
        ln = g.lab('nored')
        red_index()
        e(f"""s_cmp_ge_u32 {sr(sT3)}, 32
        s_cbranch_scc1 {ln}""")
        if not final and not opt.get('oldred'): e('s_waitcnt vmcnt(0)')
        if final and opt.get('redsleep'): e(f's_sleep {opt["redsleep"]}')
        NLD = (NF + 15)//16
        e(f"""v_lshrrev_b32 {vr(t(20))}, 4, v0
        v_and_b32 {vr(t(22))}, 15, v0
        v_lshlrev_b32 {vr(t(22))}, 2, {vr(t(22))}
        s_lshl_b32 {sr(sT)}, {sr(sT3)}, 6
        v_add_u32 {vr(t(25))}, {sr(sT)}, {vr(t(22))}
        v_lshl_add_u32 {vr(t(21))}, {vr(t(20))}, 11, {vr(t(25))}
        v_add_u32 {vr(t(23))}, {16*(NLD-1)*2048}, {vr(t(21))}
        v_mov_b32 {vr(t(24))}, 0x7f000000
        v_cmp_gt_u32 vcc, {NF - 16*(NLD-1)}, {vr(t(20))}
        v_cndmask_b32 {vr(t(23))}, {vr(t(24))}, {vr(t(23))}, vcc""")
        A = t(0); B4 = t(12)
        lds_ = []
        for k in range(NLD - 1):
            lds_.append(f's_mov_b32 {sr(sOff)}, {part + 16*k*2048}\n' + ws_load_text(1, A+k, t(21), sr(sOff)))
        lds_.append(f's_mov_b32 {sr(sOff)}, {part}\n' + ws_load_text(1, A+NLD-1, t(23), sr(sOff)))
        regs = list(range(A, A+NLD))
        if final:
            lds_.append(ws_load_text(1, B4, t(25), sr(sRec), 'offset:1152')); regs.append(B4)
        poll('\n'.join(lds_), regs)
        n = NLD
        while n > 1:
            h = n//2
            for k in range(h): e(f'v_add_f32 {vr(A+k)}, {vr(A+k)}, {vr(A+n-1-k)}')
            n -= h
        for sw in ('v_permlane16_swap_b32', 'v_permlane32_swap_b32'):
            e(f'v_mov_b32 {vr(A+1)}, {vr(A)}\n{sw} {vr(A)}, {vr(A+1)}\nv_add_f32 {vr(A)}, {vr(A)}, {vr(A+1)}')
        e(f"""s_lshl_b32 {sr(sT)}, {sr(sW)}, 2
        v_lshl_add_u32 {vr(t(24))}, {vr(t(22))}, 2, {sr(sT)}
        v_lshlrev_b32 {vr(t(26))}, 2, {vr(t(22))}
        s_mov_b64 exec, 0xffff
        ds_write_b32 {vr(t(24))}, {vr(A)} offset:{RED}
        s_mov_b64 exec, -1
        s_waitcnt lgkmcnt(0)
        s_barrier
        s_cmp_lg_u32 {sr(sW)}, 0
        s_cbranch_scc1 {ln}
        ds_read_b128 {vr(t(28),4)}, {vr(t(26))} offset:{RED}
        s_waitcnt lgkmcnt(0)
        v_add_f32 {vr(t(28))}, {vr(t(28))}, {vr(t(29))}
        v_add_f32 {vr(t(30))}, {vr(t(30))}, {vr(t(31))}
        v_add_f32 {vr(t(28))}, {vr(t(28))}, {vr(t(30))}""")
        if final:
            e(f"""v_add_f32 {vr(t(28))}, {vr(t(28))}, {vr(B4)}
            s_lshl_b32 {sr(sT)}, {sr(sStar)}, 10
            v_lshrrev_b32 {vr(t(25))}, 1, {vr(t(25))}
            v_mov_b32_dpp {vr(t(29))}, {vr(t(28))} quad_perm:[1,0,3,2] {DPP}
            v_add_u32 {vr(t(25))}, {sr(sT)}, {vr(t(25))}
            v_cvt_pk_bf16_f32 {vr(t(28))}, {vr(t(28))}, {vr(t(29))}
            s_mov_b64 exec, 0x5555
            buffer_store_dword {vr(t(28))}, {vr(t(25))}, {sr(sOUT,4)}, 0 offen sc1
            s_mov_b64 exec, -1""")
        else:
            e(f"""s_mov_b32 {sr(sOff)}, {UPD0}
            s_mov_b64 exec, 0xffff
            buffer_store_dword {vr(t(28))}, {vr(t(25))}, {sr(sWS,4)}, {sr(sOff)} offen sc1
            s_mov_b64 exec, -1""")
        e(f'{ln}:')

    if opt.get('addrvalu'): addr_p1()
    if opt.get('rowvalu'): row_consts()
    stamp('preamble')
    e(f's_waitcnt vmcnt({N_ALL-1})\nv_readfirstlane_b32 {sr(sTag)}, {vr(vCa)}\ns_add_u32 {sr(sTag)}, {sr(sTag)}, 1')
    stamp('x0')
    unpack_nat(XU, URAW); unpack_rev(XV, VRAW, t(16))
    stats2(False)
    norm_coeffs(hRho, hB)
    make_g()
    e(f's_waitcnt vmcnt({N_ALL - N_ROWTAB})')
    transform(HB0, tagged=True, pre_store=lambda: e(f's_waitcnt vmcnt({N_ALL - N_POISON})'))
    stamp('P1 stored')
    finish_here('P1')
    special_k(KB0, False)
    srd(sT4, kwr, 1024)
    e(f'''v_lshlrev_b32 {vr(t(2))}, 4, {vr(vL)}
    v_sub_u32 {vr(t(3))}, 1008, {vr(t(2))}
    buffer_load_dwordx4 {vr(WURAW,4)}, {vr(t(2))}, {sr(sT4,4)}, 0 offen
    buffer_load_dwordx4 {vr(WVRAW,4)}, {vr(t(3))}, {sr(sT4,4)}, 0 offen''')
    if opt.get('addrvalu'):
        for k in (2, 3):
            e(f'v_add_u32 {vr(t(4))}, {TOFF["addr"] + 4096*k}, {vr(lG)}\nglobal_load_dwordx4 {vr(AD+4*k,4)}, {vr(t(4))}, {sr(sPC,2)}')
    addr_misc()
    if not opt.get('addrvalu'): addr_ym4()
    LATE = opt.get('latepois', '0') == '1'
    red_index()
    e(f"""s_lshl_b32 {sr(sT)}, {sr(sT3)}, 6
    v_lshlrev_b32 {vr(t(10))}, 2, v0
    v_add_u32 {vr(t(10))}, {sr(sT)}, {vr(t(10))}
    v_cmp_gt_u32 vcc, 16, v0
    s_cmp_lt_u32 {sr(sT3)}, 32
    s_cselect_b64 {sr(sEx,2)}, vcc, 0
    v_mov_b32 {vr(t(11))}, 0x7f000000
    v_cndmask_b32 {vr(t(10))}, {vr(t(11))}, {vr(t(10))}, {sr(sEx,2)}""")
    def poison1():
        poison_regs()
        if EP < 1:
            ws_store(4, PZ, aP16, HB1); ws_store(4, PZ, aP16, CAND0)
        if EP < 3: ws_store(2, PZ, aP8, PART0)
        ws_store(1, PZ, t(10), UPD0)
    def poison2():
        if EP >= 3: return
        poison_regs()
        if EP < 2:
            ws_store(4, PZ, aP16, YB1); ws_store(4, PZ, aP16, CAND1)
        ws_store(2, PZ, aP8, PART1)
    if not LATE: poison1()
    e(f's_bfe_u32 {sr(sT)}, {sr(sRho)}, 0x10003\ns_lshl_b32 {sr(sT)}, {sr(sT)}, 4\nv_xor_b32 {vr(t(39))}, {sr(sT)}, {vr(lG)}')
    e(f'v_add_u32 {vr(t(39))}, {TOFF["addr2"]}, {vr(t(39))}\nglobal_load_dwordx4 {vr(t(44),4)}, {vr(t(39))}, {sr(sPC,2)}')
    if not opt.get('nohint'):
        lh = g.lab('hw')
        e(f'''v_and_b32 {vr(vCa)}, 7, {vr(vL)}
        v_lshlrev_b32 {vr(vCa)}, 8, {vr(vCa)}
        s_cmp_lg_u32 {sr(sW)}, 0
        s_cbranch_scc1 {lh}
        s_mov_b32 {sr(sOff)}, {HINT}''')
        e(ws_load_text(1, vSa, vCa, sr(sOff)))
        e(f'{lh}:')
    col_consts_a()
    if not opt.get('splitc'): col_consts_b()
    stamp('shadow1')
    if not opt.get('nohint'):
        lh = g.lab('hw2'); lp = g.lab('hp')
        e(f'''s_cmp_lg_u32 {sr(sW)}, 0
        s_cbranch_scc1 {lh}
        s_mov_b32 {sr(sCnt)}, 0
        s_mov_b32 {sr(sOff)}, {HINT}
        {lp}:
        s_waitcnt vmcnt(0)
        v_cmp_ne_u32 vcc, {sr(sTag)}, {vr(vSa)}
        s_cbranch_vccz {lh}
        s_add_u32 {sr(sCnt)}, {sr(sCnt)}, 1
        s_cmp_gt_u32 {sr(sCnt)}, {LIMIT}
        s_cbranch_scc1 {lh}
        s_sleep 4''')
        e(ws_load_text(1, vSa, vCa, sr(sOff)))
        e(f's_branch {lp}\n{lh}:\ns_waitcnt vmcnt(0)\ns_barrier')
    if opt.get('ack1'): e('s_waitcnt vmcnt(0)')
    stamp('hint')
    column(HB0, YB0, False, tagged=True, behind_poll=(poison1, 4) if LATE else None)
    stamp('P2 stored')
    finish_here('P2')
    if not LATE: poison2()
    lnn = g.lab('nononce')
    e(f'''s_cmp_lg_u32 {sr(sRowU)}, 0
    s_cbranch_scc1 {lnn}
    v_mov_b32 {vr(t(0))}, {sr(sTag)}
    v_mov_b32 {vr(t(1))}, 0
    s_mov_b64 exec, 1''')
    ws_store(1, t(0), t(1), NONCE)
    e(f's_mov_b64 exec, -1\n{lnn}:')
    if opt.get('addrvalu'): addr_ym4()
    unpack_nat(WU, WURAW); unpack_rev(WV, WVRAW, t(16))
    e(f"""v_pk_add_f32 {vr(t(16),2)}, {vr(WU,2)}, {vr(WU+2,2)}
    v_pk_add_f32 {vr(t(18),2)}, {vr(WU+4,2)}, {vr(WU+6,2)}
    v_pk_add_f32 {vr(t(16),2)}, {vr(t(16),2)}, {vr(t(18),2)}
    v_add_f32 {vr(t(16))}, {vr(t(16))}, {vr(t(17))}""")
    wave_reduce([t(16)], [t(17)])
    e(f'v_readfirstlane_b32 {sr(sSW)}, {vr(t(16))}')
    stamp('shadow2')
    e('s_waitcnt vmcnt(0)')
    row_input(YB0, KB0, behind_poll=(poison2, 3) if LATE else None)
    add_y_pair()
    stats2(True)
    make_key()
    residual_coeffs()
    e(f"""v_mul_f32 {vr(t(23))}, {vr(t(21))}, {vr(t(21))}
    v_mul_f32 {vr(t(23))}, {vr(t(23))}, {vr(hVar)}
    v_add_f32 {vr(t(23))}, {fbits(1e-5)}, {vr(t(23))}
    v_rsq_f32 {vr(t(23))}, {vr(t(23))}
    s_waitcnt lgkmcnt(0)
    s_barrier""")
    wg_best_read(t(24))
    e(f"""v_mul_f32 {vr(t(22))}, {vr(t(21))}, {vr(t(23))}
    v_mul_f32 {vr(t(23))}, -{vr(hM)}, {vr(t(22))}""")
    norm_coeffs(t(22), t(23))
    e('s_waitcnt lgkmcnt(0)')
    if LATE: e('s_waitcnt vmcnt(0)')
    wg_best_header(CAND0, t(24))
    stamp('hdr0')
    make_g()
    EH = opt.get('earlyhdr')
    transform(HB1, pre_core=lambda: (residual_update(XU, XV), header_load(CAND0, vSig) if EH == 'pre' else None),
              post_scatter=lambda: (header_load(CAND0, vSig) if EH == 'post' else None, publish_rows(CAND0)))
    stamp('P3 stored')
    finish_here('P3')
    K = t(0)
    if not EH: header_load(CAND0, vSig)
    SETUP_LATE = opt.get('setuplate', '1' if EH else '0') == '1'
    if not SETUP_LATE:
        lfs = g.lab('nosetup')
        e(f's_cmp_ge_u32 {sr(sPhi)}, {NF}\ns_cbranch_scc1 {lfs}')
        ffn_setup()
        e(f'{lfs}:')
    special_k(KB1, True)
    if EH:
        lw1 = g.lab('w1'); lw2 = g.lab('w2')
        e(f's_cmp_eq_u32 {sr(sSgn)}, 0\ns_cbranch_scc1 {lw1}\ns_waitcnt vmcnt(4)\ns_branch {lw2}\n{lw1}:\ns_waitcnt vmcnt(1)\n{lw2}:')
        e(f'v_mov_b32 {vr(K)}, {vr(vSig)}')
    else:
        e(f's_waitcnt vmcnt(0)\nv_mov_b32 {vr(K)}, {vr(vSig)}')
    if opt.get('colpos') == 'b':
        argmax(CAND0, K); column_load(HB1)
    else:
        argmax(CAND0, K, after_check=lambda: column_load(HB1))
    stamp('argmax0')
    lb = g.lab('nobase')
    e(f"""s_cmp_ge_u32 {sr(sW)}, 2
    s_cbranch_scc1 {lb}
    v_lshlrev_b32 {vr(t(21))}, 5, {vr(vL)}
    buffer_load_dwordx4 {vr(FX,4)}, {vr(t(21))}, {sr(sWS,4)}, {sr(sRec)} offen offset:1152 sc1
    buffer_load_dwordx4 {vr(FX+4,4)}, {vr(t(21))}, {sr(sWS,4)}, {sr(sRec)} offen offset:1168 sc1
    {lb}:""")
    lb = g.lab('nox')
    PACE = opt.get('pace')
    if PACE == 'xsel':
        lx = g.lab('dox')
        red_index()
        e(f's_cmp_lt_u32 {sr(sPhi)}, {NF}\ns_cbranch_scc1 {lx}\ns_cmp_lt_u32 {sr(sT3)}, 32\ns_cbranch_scc1 {lb}\n{lx}:')
        xsel_load()
    else:
        e(f's_cmp_ge_u32 {sr(sPhi)}, {NF}\ns_cbranch_scc1 {lb}')
        xsel_load()
        if SETUP_LATE: ffn_setup()
    e(f'{lb}:')
    sigmoid_of_key()
    e(f"""s_mul_i32 {sr(sT)}, {sr(sRowU)}, {sr(sStar)}
    s_and_b32 {sr(sT)}, {sr(sT)}, 2047
    v_cvt_f32_u32 {vr(vCa)}, {sr(sT)}
    v_mul_f32 {vr(vCa)}, {fbits(1/2048)}, {vr(vCa)}
    v_sin_f32 {vr(vSa)}, {vr(vCa)}
    v_cos_f32 {vr(vCa)}, {vr(vCa)}
    v_mul_f32 {vr(vSa)}, {fbits(1/32)}, {vr(vSa)}
    v_mul_f32 {vr(vCa)}, {fbits(1/32)}, {vr(vCa)}
    v_cvt_pk_f16_f32 {vr(vSa)}, {vr(vSa)}, {vr(vSa)}
    v_cvt_pk_f16_f32 {vr(vCa)}, {vr(vCa)}, {vr(vCa)}
    s_waitcnt vmcnt(0)""")
    stamp('xsel')
    ffn(PART0)
    stamp('ffn0')
    column(HB1, YB1, True)
    stamp('P4 stored')
    finish_here('P4')
    reducer(PART0, False)
    stamp('red0')
    lb = g.lab('nobase')
    e(f's_cmp_ge_u32 {sr(sW)}, 2\ns_cbranch_scc1 {lb}')
    e(f'v_lshlrev_b32 {vr(t(21))}, 5, {vr(vL)}')
    poll(f'buffer_load_dwordx4 {vr(FX,4)}, {vr(t(21))}, {sr(sWS,4)}, {sr(sRec)} offen offset:1152 sc1\n'
         f'buffer_load_dwordx4 {vr(FX+4,4)}, {vr(t(21))}, {sr(sWS,4)}, {sr(sRec)} offen offset:1168 sc1', range(FX, FX+8), preloaded=True)
    stats1(FX, t(0), None)
    e(f'''v_mov_b32 {vr(t(20))}, {sr(sKu+1)}
    v_mov_b32 {vr(t(21))}, {sr(sKu)}
    v_fma_f32 {vr(t(20))}, -{vr(t(21))}, {sr(sCu)}, {vr(t(20))}
    s_mov_b32 {sr(sKv)}, {sr(sKu)}
    v_readfirstlane_b32 {sr(sKv+1)}, {vr(t(20))}''')
    e(f'{lb}:')
    e('s_waitcnt vmcnt(0)')
    if PACE and PACE.startswith('s'):
        lz = g.lab('nopace')
        red_index()
        e(f's_cmp_lt_u32 {sr(sPhi)}, {NF}\ns_cbranch_scc1 {lz}\ns_cmp_lt_u32 {sr(sT3)}, 32\ns_cbranch_scc1 {lz}\ns_sleep {PACE[1:]}\n{lz}:')
    if PACE == 'part':
        lz = g.lab('nopace')
        red_index()
        e(f'''s_cmp_lt_u32 {sr(sPhi)}, {NF}
        s_cbranch_scc1 {lz}
        s_cmp_lt_u32 {sr(sT3)}, 32
        s_cbranch_scc1 {lz}
        s_and_b32 {sr(sT)}, {sr(sRho)}, 127
        s_lshl_b32 {sr(sT)}, {sr(sT)}, 11
        s_lshl_b32 {sr(sT2)}, {sr(sW)}, 9
        s_add_u32 {sr(sT)}, {sr(sT)}, {sr(sT2)}
        v_mov_b32 {vr(t(1))}, {sr(sT)}
        s_mov_b32 {sr(sOff)}, {PART0}''')
        poll(ws_load_text(1, t(0), t(1), sr(sOff)), [t(0)], backoff=4)
        e(f'{lz}:')
    YH, YV = FO, FO + 4
    row_input(YB1, KB1, ydst=(YH, YV))
    FP0, FPS = lCa, lCb
    e(f'''v_lshl_add_u32 {vr(FP0)}, {vr(vQ)}, 7, {vr(vN)}
    v_lshlrev_b32 {vr(t(1))}, 7, {vr(vQ)}
    v_sub_u32 {vr(t(1))}, {32*23}, {vr(t(1))}
    v_add_u32 {vr(t(1))}, {vr(t(1))}, {vr(vN)}
    v_cmp_gt_u32 vcc, 2, {vr(vQ)}
    v_mov_b32 {vr(FPS)}, 64
    v_mov_b32 {vr(t(3))}, -64
    v_cndmask_b32 {vr(FP0)}, {vr(t(1))}, {vr(FP0)}, vcc
    v_cndmask_b32 {vr(FPS)}, {vr(t(3))}, {vr(FPS)}, vcc
    v_lshlrev_b32 {vr(FP0)}, 1, {vr(FP0)}
    s_lshl_b32 {sr(sT)}, {sr(sW)}, 10
    v_add_u32 {vr(FP0)}, {sr(sT)}, {vr(FP0)}''')
    stamp('y1 read')
    lj = g.lab('fixj'); lq = g.lab('fix'); lu = g.lab('ownu'); lv = g.lab('ownv')
    U = t(16)
    updld = lambda areg: (ws_load_text(4, U, areg, sr(sOff)) + '\n' + ws_load_text(4, U+4, areg, sr(sOff), 'offset:16'))
    def owner_add():
        l1 = g.lab('nu'); l2 = g.lab('nv')
        e(f's_cmp_lg_u32 {sr(sStar)}, {sr(sRowU)}\ns_cbranch_scc1 {l1}')
        for k in range(4): e(f'v_pk_add_f32 {vr(XU+2*k,2)}, {vr(XU+2*k,2)}, {vr(U+2*k,2)}')
        e(f'{l1}:')
    e(f"""v_lshlrev_b32 {vr(t(44))}, 5, {vr(vL)}
    s_mov_b32 {sr(sOff)}, {UPD0}""")
    lnv = g.lab('notv')
    e(f"""s_cmp_lg_u32 {sr(sStar)}, {sr(sRowV)}
    s_cbranch_scc1 {lnv}
    v_sub_u32 {vr(t(45))}, {63*32}, {vr(t(44))}""")
    poll(updld(t(45)), range(U, U+8), backoff=4)
    e(f'v_mov_b32_dpp {vr(t(46))}, {vr(U)} wave_ror:1 {DPP}')
    for k in range(1, 8): e(f'v_add_f32 {vr(XV+k)}, {vr(XV+k)}, {vr(U+8-k)}')
    e(f'v_add_f32 {vr(XV)}, {vr(XV)}, {vr(t(46))}\n{lnv}:')
    e(f"""s_cmp_lt_u32 {sr(sW)}, 2
    s_cbranch_scc1 {lq}
    s_cmp_lg_u32 {sr(sStar)}, {sr(sRowU)}
    s_cbranch_scc1 {lj}""")
    poll(updld(t(44)), range(U, U+8), backoff=4)
    owner_add()
    e(f's_branch {lj}\n{lq}:')
    poll(updld(t(44)), range(U, U+8), backoff=4)
    stamp('upd')
    owner_add()
    for k in range(4): e(f'v_pk_add_f32 {vr(U+2*k,2)}, {vr(FX+2*k,2)}, {vr(U+2*k,2)}')
    ZD = t(0)
    partial(t(32), U, sCu, None, t(8), t(9), None, t(24))
    wave_reduce([t(8), t(9)], [t(10), t(11)])
    moments(t(8), t(9))
    e(f'''v_mul_f32 {vr(hB)}, -{vr(hM)}, {vr(hRho)}
    v_subrev_f32 {vr(hB)}, {sr(sKv+1)}, {vr(hB)}
    v_readfirstlane_b32 {sr(sKu)}, {vr(hRho)}
    v_readfirstlane_b32 {sr(sKu+1)}, {vr(hB)}''')
    for k in range(4): e(f'v_pk_fma_f32 {vr(ZD+2*k,2)}, {vr(t(32)+2*k,2)}, {sr(sKu,2)}, {sr(sKu,2)} {PKB}')
    for k in range(4): e(f'v_pk_fma_f32 {vr(ZD+2*k,2)}, {vr(FX+2*k,2)}, {sr(sKv,2)}, {vr(ZD+2*k,2)} op_sel_hi:[1,0,1] neg_lo:[0,1,0] neg_hi:[0,1,0]')
    write_n(ZD, t(24)); write_r(ZD, t(40))
    A, B = CA, t(40)
    e(f"""s_mov_b32 {sr(sT)}, 0x3c003c00
    s_cmp_eq_u32 {sr(sW)}, 0
    s_cselect_b32 {sr(sSgn)}, {sr(sT)}, 0xbc00bc00
    ds_read_b64_tr_b16 {vr(A,2)}, {vr(lTr)} offset:{GIMG}
    ds_read_b64_tr_b16 {vr(B,2)}, {vr(lTr)} offset:{RIMG}
    ds_read_b64_tr_b16 {vr(A+2,2)}, {vr(lTr)} offset:{GIMG+128}
    ds_read_b64_tr_b16 {vr(B+2,2)}, {vr(lTr)} offset:{RIMG+128}
    s_waitcnt lgkmcnt(0)""")
    for k in range(4): e(f'v_pk_fma_f16 {vr(A+k)}, {vr(B+k)}, {sr(sSgn)}, {vr(A+k)}')
    core(A, CO)
    for k in range(4): e(f'v_cvt_pk_f16_f32 {vr(t(44)+k)}, {vr(CO+2*k)}, {vr(CO+2*k+1)}')
    for i in range(4):
        op = 'ds_write_b16' if i % 2 == 0 else 'ds_write_b16_d16_hi'
        for Tt in range(2):
            e(f'{op} {vr(FP0)}, {vr(t(44)+2*Tt+i//2)} offset:{RIMG + 2048 + 32*Tt}')
        if i < 3: e(f'v_add_u32 {vr(FP0)}, {vr(FP0)}, {vr(FPS)}')
    e(f"""{lj}:
    s_waitcnt lgkmcnt(0)
    s_barrier
    v_lshlrev_b32 {vr(t(0))}, 4, {vr(vL)}
    ds_read_b128 {vr(t(16),4)}, {vr(t(0))} offset:{RIMG+2048}
    ds_read_b128 {vr(t(20),4)}, {vr(t(0))} offset:{RIMG+2048+1024}
    s_waitcnt lgkmcnt(1)""")
    lsp = g.lab('fsp')
    for k in range(4): e(f'v_pk_fma_f16 {vr(YH+k)}, {vr(t(16)+k)}, {vr(vCa)}, {vr(YH+k)}')
    e(f'''s_cmp_lg_u32 {sr(sRowU)}, 0
    s_cbranch_scc1 {lsp}
    s_mov_b32 {sr(sT)}, 0x28002800
    s_bitcmp0_b32 {sr(sStar)}, 0
    s_cselect_b32 {sr(sT)}, {sr(sT)}, 0xa800a800''')
    for k in range(4): e(f'v_pk_fma_f16 {vr(YV+k)}, {vr(t(16)+k)}, {sr(sT)}, {vr(YV+k)}')
    e(f'{lsp}:\ns_waitcnt lgkmcnt(0)')
    for k in range(4): e(f'v_pk_fma_f16 {vr(YH+k)}, {vr(t(20)+k)}, {vr(vSa)}, {vr(YH+k)}')
    add_y_pair((YH, YV))
    stamp('fixed')
    stats2(True)
    make_key()
    residual_coeffs()
    e('s_waitcnt lgkmcnt(0)\ns_barrier')
    wg_best_read(t(24))
    residual_update(XU, XV)
    e('s_waitcnt lgkmcnt(0)')
    wg_best_header(CAND1, t(24))
    publish_rows(CAND1)
    def out_u():
        for k in range(4): e(f'v_cvt_pk_bf16_f32 {vr(t(24)+k)}, {vr(XU+2*k)}, {vr(XU+2*k+1)}')
        e(f'buffer_store_dwordx4 {vr(t(24),4)}, {vr(aU)}, {sr(sOUT,4)}, 0 offen sc1')
    def out_v():
        e(f"""v_mov_b32_dpp {vr(t(32))}, {vr(XV)} wave_rol:1 {DPP}
        v_cvt_pk_bf16_f32 {vr(t(29))}, {vr(XV+6)}, {vr(XV+5)}
        v_cvt_pk_bf16_f32 {vr(t(30))}, {vr(XV+4)}, {vr(XV+3)}
        v_cvt_pk_bf16_f32 {vr(t(31))}, {vr(XV+2)}, {vr(XV+1)}
        v_cvt_pk_bf16_f32 {vr(t(28))}, {vr(t(32))}, {vr(XV+7)}
        buffer_store_dwordx4 {vr(t(28),4)}, {vr(aV)}, {sr(sOUT,4)}, 0 offen sc1""")
    EARLY = opt.get('early1')
    if EARLY:
        e(f"""s_cmp_gt_u32 {sr(sKeyV)}, {sr(sKeyU)}
        s_cselect_b32 {sr(sH)}, 2, 1
        s_cmp_eq_u32 {sr(sSgn)}, 0
        s_cselect_b32 {sr(sH)}, 0, {sr(sH)}""")
        l1 = g.lab('du'); l2 = g.lab('dv')
        e(f's_cmp_eq_u32 {sr(sH)}, 1\ns_cbranch_scc1 {l1}'); out_u(); e(f'{l1}:')
        e(f's_cmp_eq_u32 {sr(sH)}, 2\ns_cbranch_scc1 {l2}'); out_v(); e(f'{l2}:')
        e(f's_mov_b32 {sr(sH+1)}, {sr(sH)}')
        if EARLY == 'b': e('s_barrier')
        elif EARLY == 'w': e('s_waitcnt vmcnt(0)\ns_barrier')
    else:
        e('s_waitcnt vmcnt(0)\ns_barrier')
    stamp('cand1')
    header_load(CAND1, K)
    e('s_waitcnt vmcnt(0)')
    argmax(CAND1, K)
    stamp('argmax1')
    lb = g.lab('nox')
    e(f's_cmp_ge_u32 {sr(sPhi)}, {NF}\ns_cbranch_scc1 {lb}')
    xsel_load()
    e(f'{lb}:')
    sigmoid_of_key()
    if EARLY:
        l1 = g.lab('eu'); l2 = g.lab('ev')
        e(f's_cmp_lg_u32 {sr(sH+1)}, 1\ns_cbranch_scc1 {l1}\ns_cmp_eq_u32 {sr(sStar)}, {sr(sRowU)}\ns_cbranch_scc1 {l1}'); out_u(); e(f'{l1}:')
        e(f's_cmp_lg_u32 {sr(sH+1)}, 2\ns_cbranch_scc1 {l2}\ns_cmp_eq_u32 {sr(sStar)}, {sr(sRowV)}\ns_cbranch_scc1 {l2}'); out_v(); e(f'{l2}:')
    else:
        ln = g.lab('noout')
        e(f's_cmp_eq_u32 {sr(sStar)}, {sr(sRowU)}\ns_cbranch_scc1 {ln}'); out_u(); e(f'{ln}:')
        ln = g.lab('noout')
        e(f's_cmp_eq_u32 {sr(sStar)}, {sr(sRowV)}\ns_cbranch_scc1 {ln}'); out_v(); e(f'{ln}:')
    e('s_waitcnt vmcnt(0)')
    ffn(PART1)
    stamp('ffn1')
    e('s_waitcnt vmcnt(0)')
    reducer(PART1, True)
    stamp('end')
    e('L_done:')
    if stamps:
        ls = g.lab('nost')
        e(f"""s_cmp_ge_u32 s2, 256
        s_cbranch_scc1 {ls}
        s_waitcnt vmcnt(0)
        s_mov_b64 exec, -1
        s_lshl_b32 {sr(sT)}, {sr(sWg)}, 11
        s_lshl_b32 {sr(sT2)}, {sr(sW)}, 8
        s_add_u32 {sr(sT)}, {sr(sT)}, {sr(sT2)}
        v_and_b32 {vr(t(0))}, 63, v0
        v_lshlrev_b32 {vr(t(0))}, 2, {vr(t(0))}
        v_add_u32 {vr(t(0))}, {sr(sT)}, {vr(t(0))}
        s_mov_b32 {sr(sOff)}, {STAMP}
        buffer_store_dword {vr(vStamp)}, {vr(t(0))}, {sr(sWS,4)}, {sr(sOff)} offen
        {ls}:""")
    e('s_endpgm')
    loader()
    for ls, lj, yh_, yv_ in g.late:
        e(f'{ls}:')
        add_y(yh_, yv_)
        e(f's_branch {lj}')
    emit_tail()
    return g

def render(g):
    lines, added = pad(g.L)
    body = '\n'.join(('' if l.endswith(':') else '    ') + l for l in lines)
    ninstr = sum(1 for l in lines if not l.endswith(':'))
    hdr = f"""; Two (FNet mixing + top-1 routed SwiGLU) layers in one persistent launch: 256 workgroups, 4 compute waves + 1 weight-loader wave.
;
; Re(FFT2(LN x)) is evaluated as a separable Hartley transform of g[s,d] = xn[s,d] + xn[-s,-d] (point symmetry, real data only):
; a poison word written earlier in the same launch, or (first exchange) by a tag = previous launch's tag + 1.
; (weights staged in LDS by the loader wave), 32 workgroups add the partial rows.  In layer 1 the routed row's effect on
; @launch grid=(256,1,1) block=(320,1,1) lds={LDS_SIZE}
.amdgcn_target "amdgcn-amd-amdhsa--gfx950"
.text
.globl {NAME}
.p2align 8
.type {NAME},@function
{NAME}:
"""
    tab = '\n'.join('.long ' + ','.join('0x%08x' % x for x in TAB[i:i+8]) for i in range(0, len(TAB), 8))
    tail = f"""
L_code_end:
.p2align 8
L_tab:
{tab}
.section .rodata,"a"
.p2align 6
.amdhsa_kernel {NAME}
  .amdhsa_next_free_vgpr 256
  .amdhsa_next_free_sgpr 102
  .amdhsa_accum_offset 256
  .amdhsa_group_segment_fixed_size 0
  .amdhsa_kernarg_size 104
  .amdhsa_user_sgpr_count 2
  .amdhsa_user_sgpr_kernarg_segment_ptr 1
  .amdhsa_system_sgpr_workgroup_id_x 1
.end_amdhsa_kernel
"""
    return hdr + body + tail, ninstr, added

if __name__ == '__main__':
    import argparse
    ap = argparse.ArgumentParser()
    ap.add_argument('-o', default='interleave_layers__spectral_fnet__moe_arch_mod__prompt.s')
    ap.add_argument('--stop'); ap.add_argument('--stamps', action='store_true'); ap.add_argument('--opt', default='')
    a = ap.parse_args()
    g = build(a.stop, a.stamps, {k.split('=')[0]: (k.split('=')+['1'])[1] for k in a.opt.split(',') if k})
    txt, n, added = render(g)
    open(a.o, 'w').write(txt)
    print(f'{n} instructions, {added} nop slots added, vgpr high {g.v.n}, sgpr high {g.s.n}')
```

```python
import sys, struct, math
from asmlib import pad, Alloc
import tables

NAME = "interleave_layers__spectral_fnet__moe_arch_mod__prompt_kernel"
NONCE = 0x000000
HB0, YB0, HB1, YB1 = 0x100000, 0x300000, 0x400000, 0x500000
CAND0, CAND1 = 0x600000, 0x700000
import os
if os.environ.get('COMPACT', '0') == '1':
    HINT = 0x001000
    KB0, KB1, UPD0 = 0x002000, 0x003000, 0x004000
    PART0, PART1 = 0x010000, 0x070000
else:
    PART0, PART1 = 0x800000, 0x880000
    UPD0 = 0x900000
    KB0, KB1 = 0x901000, 0x902000
    HINT = 0x903000
STAMP = 0x980000
WS_SIZE = 0xA00000
NF = 172
LIMIT = 40000
NPOIS = 64
YIMG = 0
GIMG = 5120
RIMG = 9216
HIMG = 13312
CIN = 17472
COUT = 21952
KIMG = 26048
FP = 27136
AM = 27392
RED = 27456
GU = 27776
DN = GU + 16384
LDS_SIZE = DN + 8192
LMAP = dict(YIMG=YIMG, GIMG=GIMG, RIMG=RIMG, HIMG=HIMG, CIN=CIN, COUT=COUT)
TAB, TOFF = tables.build_tables(LMAP)

def fbits(x): return '0x%08x' % struct.unpack('<I', struct.pack('<f', x))[0]

class G:
    def __init__(self, stop=None, stamps=False):
        self.L = []; self.stop = stop; self.stamps = stamps; self.uid = 0; self.nstamp = 0; self.names = []
        self.v = Alloc(1, 256, 'v'); self.s = Alloc(3, 100, 's')
    def e(self, text):
        for l in text.strip('\n').split('\n'):
            l = l.strip()
            if l: self.L.append(l)
    def lab(self, p):
        self.uid += 1; return f'L_{p}_{self.uid}'

def vr(a, n=1): return f'v{a}' if n == 1 else f'v[{a}:{a+n-1}]'
def sr(a, n=1): return f's{a}' if n == 1 else f's[{a}:{a+n-1}]'
DPP = 'row_mask:0xf bank_mask:0xf'
PKB = 'op_sel:[0,0,1] op_sel_hi:[1,0,1]'

def build(stop=None, stamps=False, opt=None):
    opt_raw = dict(opt or {})
    opt = dict(opt or {})
    if not opt.get('nodefault'):
        opt.setdefault('lpf', 'lin'); opt.setdefault('splitc', '1'); opt.setdefault('rowvalu', '1'); opt.setdefault('addrvalu', '1'); opt.setdefault('earlyp', '1'); opt.setdefault('lplan', '0:da/1:b/4:u')
        if 'lplan' not in opt_raw: opt.setdefault('lcnt', '0.3.3.2.4.2.2')
    g = G(stop, stamps); e = g.e; V = g.v; S = g.s
    sWS = S('ws', 4, 4); sXS = S('xsrd', 4, 4); sOUT = S('out', 4, 4); sT4 = S('tmpsrd', 4, 4)
    sRho = S('rho'); sW = S('w'); sRowU = S('rowu'); sRowV = S('rowv'); sVs = S('vs'); sOff = S('off'); sCnt = S('cnt')
    sT = S('t'); sT2 = S('t2'); sT3 = S('t3'); s16 = S('k16'); sStar = S('star'); sRec = S('rec'); sWg = S('wg'); sSW = S('sw')
    sCu = S('cu', 2, 2); sCv = S('cv', 2, 2); sEx = S('exsave', 2, 2)
    sAu = S('au', 2, 2); sAv = S('av', 2, 2); sKu = S('ku', 2, 2); sKv = S('kv', 2, 2); sKeyU = S('keyu'); sKeyV = S('keyv'); sKey = S('key')
    sTag = S('tag'); sMz, sMc = sAu, sAv; sH = S('h', 8, 2); sTm = S('tm', 2, 2); sPC = S('pc', 2, 2); sM2 = S('m2', 2, 2); sPhi = S('phi'); sSgn = S('sgn')
    sKA = S('ka', 16, 4); sKB = S('kb', 8, 4); sKC = S('kc', 2, 2)
    vL = V('lane'); vN = V('n'); vQ = V('q')
    XU = V('XU', 8, 4); XV = V('XV', 8, 4); WU = V('WU', 8, 2); WV = V('WV', 8, 2)
    RB1 = V('RB1', 16, 4); RC = V('RC', 8, 2); RS = V('RS', 8, 2); RA2 = V('RA2', 4, 4)
    CB1 = V('CB1', 8, 4); CK = V('CK', 32, 2); CA2 = V('CA2', 16, 4)
    assert RC == RB1+16 and RS == RB1+24 and RA2 == RB1+32 and CK == CB1+8
    FA = V('FA', 16, 4); FD = V('FD', 16, 4)
    AD = V('addr', 16, 4)
    lRow, lTr, lRw, lCr, lH, _, lHf, _, lCa, lCb, lCc, lYd = range(AD, AD+12)
    lCo = AD + 12; lYm = AD + 15
    aU = V('aU'); aV = V('aV'); aP16 = V('aP16'); aS16 = V('aS16'); aHdr = V('aHdr'); aP8 = V('aP8')
    lYm4 = V('lYm4'); lG = V('lG')
    vRowH = V('rowh'); vSig = V('sig'); vSent = V('sent'); vCa = V('cosa'); vSa = V('sina'); vStamp = V('stamp')
    FX = V('FX', 8, 4); FO = V('FO', 8, 4)
    NT = 256 - ((V.n + 3)//4*4)
    T = V('T', NT, 4)
    def t(i):
        assert i < NT, i
        return T + i
    DU, DV = t(0), t(8)

    def stamp(name=''):
        if not g.stamps: return
        if opt.get('only') and name not in opt['only'].split('+'): return
        e(f'''s_memrealtime {sr(sTm,2)}
        s_waitcnt lgkmcnt(0)
        v_writelane_b32 {vr(vStamp)}, {sr(sTm)}, {g.nstamp}''')
        g.nstamp += 1; g.names.append(name)
    def finish_here(tag):
        if g.stop == tag: e('s_branch L_done')

    def sentinel(regs):
        if isinstance(regs, tuple) and regs[0] == 'tag':
            P = regs[1]
            e(f'''v_bitop3_b32 {vr(vSent)}, {vr(P+1)}, {vr(P+3)}, {sr(sTag)} bitop3:0x7e
            v_bitop3_b32 {vr(P+1)}, {vr(P+5)}, {vr(P+7)}, {sr(sTag)} bitop3:0x7e
            v_or_b32 {vr(vSent)}, {vr(vSent)}, {vr(P+1)}
            v_cmp_ne_u32 vcc, 0, {vr(vSent)}''')
            return
        regs = list(regs); tm = vSent
        if len(regs) == 1:
            e(f'v_cmp_eq_u32 vcc, -1, {vr(regs[0])}')
        else:
            if len(regs) >= 3:
                e(f'v_max3_u32 {vr(tm)}, {vr(regs[0])}, {vr(regs[1])}, {vr(regs[2])}'); rest = regs[3:]
            else:
                e(f'v_max_u32 {vr(tm)}, {vr(regs[0])}, {vr(regs[1])}'); rest = []
            while len(rest) >= 2:
                e(f'v_max3_u32 {vr(tm)}, {vr(tm)}, {vr(rest[0])}, {vr(rest[1])}'); rest = rest[2:]
            if rest: e(f'v_max_u32 {vr(tm)}, {vr(tm)}, {vr(rest[0])}')
            e(f'v_cmp_eq_u32 vcc, -1, {vr(tm)}')
    def poll(load, regs, backoff=2, preloaded=False):
        lp = g.lab('poll'); ok = g.lab('ok')
        if preloaded:
            sentinel(regs)
            e(f's_cbranch_vccnz {lp}\n{ok}:')
            g.tail.append((lp, ok, load, regs if isinstance(regs, tuple) else list(regs), backoff))
        else:
            e(load); e('s_waitcnt vmcnt(0)')
            sentinel(regs)
            e(f's_cbranch_vccnz {lp}\n{ok}:')
            g.tail.append((lp, ok, load, regs if isinstance(regs, tuple) else list(regs), backoff))
    g.tail = []
    g.nbar_mark = None
    def emit_tail():
        g.sites = []
        for idx, (lp, ok, load, regs, backoff) in enumerate(g.tail):
            l2 = lp + '_r'
            e(f'{lp}:\ns_mov_b32 {sr(sCnt)}, 0\n{l2}:\ns_sleep {backoff}')
            if stamps:
                g.sites.append(load.split('\n')[-1][:60])
                e(f'v_readlane_b32 {sr(sTm)}, {vr(vStamp)}, {40+idx}\ns_nop 3\ns_add_u32 {sr(sTm)}, {sr(sTm)}, 1\ns_nop 3\nv_writelane_b32 {vr(vStamp)}, {sr(sTm)}, {40+idx}')
            e(load)
            e(f'''s_add_u32 {sr(sCnt)}, {sr(sCnt)}, 1
            s_cmp_gt_u32 {sr(sCnt)}, {LIMIT}
            s_cbranch_scc1 L_done
            s_waitcnt vmcnt(0)''')
            sentinel(regs)
            e(f's_cbranch_vccnz {l2}\ns_branch {ok}')
    def red_index():
        if opt.get('oldred'):
            e(f's_sub_u32 {sr(sT3)}, {sr(sWg)}, 8')
        else:
            e(f'''s_sub_u32 {sr(sT3)}, {sr(sRho)}, 192
            s_bitcmp1_b32 {sr(sRho)}, 0
            s_cselect_b32 {sr(sT3)}, -1, {sr(sT3)}
            s_lshr_b32 {sr(sT3)}, {sr(sT3)}, 1''')
    def srd(dst, ptr, size):
        e(f'''s_mov_b32 {sr(dst)}, {sr(ptr)}
        s_mov_b32 {sr(dst+1)}, {sr(ptr+1)}
        s_mov_b32 {sr(dst+2)}, {size}
        s_mov_b32 {sr(dst+3)}, 0x00020000''')
    def ws_store(n, data, areg, region, extra=''):
        op = {1: 'buffer_store_dword', 2: 'buffer_store_dwordx2', 4: 'buffer_store_dwordx4'}[n]
        e(f's_mov_b32 {sr(sOff)}, {region}\n{op} {vr(data,n)}, {vr(areg)}, {sr(sWS,4)}, {sr(sOff)} offen sc1 {extra}')
    def ws_load_text(n, data, areg, soff, extra=''):
        op = {1: 'buffer_load_dword', 2: 'buffer_load_dwordx2', 4: 'buffer_load_dwordx4'}[n]
        return f'{op} {vr(data,n)}, {vr(areg)}, {sr(sWS,4)}, {soff} offen {extra} sc1'
    PZ = t(40)
    def poison_regs():
        for k in range(4): e(f'v_mov_b32 {vr(PZ+k)}, -1')

    e(f's_cmp_ge_u32 s2, 256\ns_cbranch_scc1 L_done')
    if stamps: e(f's_memrealtime {sr(sM2,2)}')
    e(f'''s_load_dwordx16 {sr(sKA,16)}, s[0:1], 0
    s_load_dwordx8 {sr(sKB,8)}, s[0:1], 64
    s_load_dwordx2 {sr(sKC,2)}, s[0:1], 96''')
    PFN = opt.get('pfn')
    PFPRE = f's_cmp_ge_u32 s2, {PFN}\ns_cbranch_scc1 L_nopf\n' if PFN else ''
    PFPOST = 'L_nopf:\n' if PFN else ''
    e(f'''s_getpc_b64 {sr(sPC,2)}
    L_pc:
    {PFPRE}v_lshlrev_b32 {vr(t(0))}, 7, v0
    v_min_u32 {vr(t(0))}, L_code_end-L_pc-4, {vr(t(0))}
    global_load_dword {vr(vSig)}, {vr(t(0))}, {sr(sPC,2)}
    {PFPOST}s_add_u32 {sr(sPC)}, {sr(sPC)}, L_tab-L_pc
    s_addc_u32 {sr(sPC+1)}, {sr(sPC+1)}, 0''')
    e(f'''s_mov_b32 {sr(sWg)}, s2
    s_and_b32 {sr(sT)}, s2, 7
    s_lshl_b32 {sr(sT)}, {sr(sT)}, 5
    s_lshr_b32 {sr(sRho)}, s2, 3
    s_or_b32 {sr(sRho)}, {sr(sRho)}, {sr(sT)}
    v_lshrrev_b32 {vr(t(1))}, 6, v0
    v_and_b32 {vr(vL)}, 63, v0
    v_readfirstlane_b32 {sr(sW)}, {vr(t(1))}
    v_lshlrev_b32 {vr(t(2))}, 4, {vr(vL)}
    v_sub_u32 {vr(t(3))}, 1008, {vr(t(2))}
    s_lshl_b32 {sr(sT)}, {sr(sRho)}, 2
    s_add_u32 {sr(sRowU)}, {sr(sT)}, {sr(sW)}
    s_sub_u32 {sr(sRowV)}, 2048, {sr(sRowU)}
    s_cmp_eq_u32 {sr(sRowU)}, 0
    s_cselect_b32 {sr(sRowV)}, 1024, {sr(sRowV)}
    s_lshl_b32 {sr(sT)}, {sr(sRowU)}, 10
    s_lshl_b32 {sr(sT2)}, {sr(sRowV)}, 10
    v_add_u32 {vr(aU)}, {sr(sT)}, {vr(t(2))}
    v_add_u32 {vr(aV)}, {sr(sT2)}, {vr(t(3))}
    v_lshlrev_b32 {vr(lG)}, 4, v0
    s_waitcnt lgkmcnt(0)''')
    kx, kwr, kwg = sKA + 0, sKA + 12, sKA + 14
    kwu, kwd, kout, kdbg = sKB + 0, sKB + 2, sKB + 4, sKB + 6
    URAW, VRAW = t(8), t(12)
    WURAW, WVRAW = FX, FX + 4
    e(f's_sub_u32 {sr(sPhi)}, {sr(sRho)}, 1\ns_cmp_eq_u32 {sr(sW)}, 4\ns_cbranch_scc1 L_loader')
    if opt.get('prio'): e(f's_setprio {opt["prio"]}')
    srd(sXS, kx, 2097152)
    e(f'''buffer_load_dwordx4 {vr(URAW,4)}, {vr(aU)}, {sr(sXS,4)}, 0 offen {opt.get('xfl','')}
    buffer_load_dwordx4 {vr(VRAW,4)}, {vr(aV)}, {sr(sXS,4)}, 0 offen {opt.get('xfl','')}''')
    srd(sWS, sKC, WS_SIZE)
    e(f'v_mov_b32 {vr(vCa)}, {NONCE}\nbuffer_load_dword {vr(vCa)}, {vr(vCa)}, {sr(sWS,4)}, 0 offen')
    nvm = [1]
    def tab_loads(dst, n, areg, off, stride):
        k = 0
        while k < n:
            base = off + k*stride
            per = {1024: 4, 4096: 1}[stride]
            e(f'v_add_u32 {vr(t(4))}, {base}, {vr(areg)}')
            for kk in range(min(per, n-k)):
                e(f'global_load_dwordx4 {vr(dst+4*(k+kk),4)}, {vr(t(4))}, {sr(sPC,2)} offset:{kk*stride}')
                nvm[0] += 1
            k += per
    if not opt.get('addrvalu'): tab_loads(AD, 4, lG, TOFF['addr'], 4096)
    if not opt.get('rowvalu'): tab_loads(RB1, 9, t(2), TOFF['row'], 1024)
    N_ROWTAB = nvm[0]
    if stamps:
        e(f'v_mov_b32 {vr(vStamp)}, 0\nv_writelane_b32 {vr(vStamp)}, {sr(sM2)}, 0'); g.nstamp = 1; g.names.append('start')
    poison_regs()
    e(f'''s_lshl_b32 {sr(sT)}, {sr(sRho)}, 12
    v_add_u32 {vr(aP16)}, {sr(sT)}, {vr(lG)}''')
    ws_store(4, PZ, aP16, YB0)
    nvm[0] += 1
    EP = int(opt.get('earlyp', 0))
    if EP >= 1:
        ws_store(4, PZ, aP16, HB1); ws_store(4, PZ, aP16, CAND0); nvm[0] += 2
    if EP >= 2:
        ws_store(4, PZ, aP16, YB1); ws_store(4, PZ, aP16, CAND1); nvm[0] += 2
    if EP >= 3:
        e(f'''s_sub_u32 {sr(sT2)}, {sr(sRho)}, 1
        s_lshl_b32 {sr(sT)}, {sr(sT2)}, 11
        s_cmp_lt_u32 {sr(sT2)}, {NF}
        s_cselect_b32 {sr(sT)}, {sr(sT)}, 0x7f000000
        v_lshlrev_b32 {vr(aP8)}, 3, v0
        v_add_u32 {vr(aP8)}, {sr(sT)}, {vr(aP8)}''')
        ws_store(2, PZ, aP8, PART0); ws_store(2, PZ, aP8, PART1); nvm[0] += 2
    lkb = g.lab('nokb')
    e(f'''s_cmp_lg_u32 {sr(sRowU)}, 0
    s_cbranch_scc1 {lkb}
    v_lshlrev_b32 {vr(t(5))}, 4, {vr(vL)}''')
    ws_store(4, PZ, t(5), KB0)
    ws_store(4, PZ, t(5), KB1)
    e(f'{lkb}:')
    if opt.get('touchhb') == 'w':
        e(f's_lshl_b32 {sr(sT)}, {sr(sRho)}, 13\nv_add_u32 {vr(t(6))}, {sr(sT)}, {vr(lG)}')
        ws_store(4, PZ, t(6), HB0); ws_store(4, PZ, t(6), HB0 + 4096)
        nvm[0] += 2
    if opt.get('touchhb') == 'r':
        e(f's_lshl_b32 {sr(sT)}, {sr(sRho)}, 13\nv_lshlrev_b32 {vr(t(6))}, 5, v0\nv_add_u32 {vr(t(6))}, {sr(sT)}, {vr(t(6))}\ns_mov_b32 {sr(sOff)}, {HB0}')
        e(f'buffer_load_dword {vr(vSa)}, {vr(t(6))}, {sr(sWS,4)}, {sr(sOff)} offen')
        nvm[0] += 1
    N_POISON = nvm[0]
    N_ALL = nvm[0]
    srd(sOUT, kout, 2097152)
    e(f'''s_mov_b32 {sr(s16)}, {fbits(16.0)}
    v_and_b32 {vr(vN)}, 15, {vr(vL)}
    v_lshrrev_b32 {vr(vQ)}, 4, {vr(vL)}''')

    a0, a1, a2, a3 = t(20), t(21), t(22), t(23)
    def addr_misc():
        e(f'''s_lshl_b32 {sr(sT)}, {sr(sRho)}, 4
        v_lshlrev_b32 {vr(aHdr)}, 12, v0
        v_add_u32 {vr(aS16)}, {sr(sT)}, {vr(aHdr)}
        v_mov_b32 {vr(a0)}, {sr(sRowU)}
        v_mov_b32 {vr(a1)}, {sr(sRowV)}
        v_cmp_gt_u32 vcc, 32, {vr(vL)}
        s_lshl_b32 {sr(sT)}, {sr(sPhi)}, 11
        s_cmp_lt_u32 {sr(sPhi)}, {NF}
        s_cselect_b32 {sr(sT)}, {sr(sT)}, 0x7f000000
        v_cndmask_b32 {vr(vRowH)}, {vr(a1)}, {vr(a0)}, vcc
        v_lshlrev_b32 {vr(aP8)}, 3, v0
        v_add_u32 {vr(aP8)}, {sr(sT)}, {vr(aP8)}
        v_mov_b32 {vr(a0)}, 0
        v_lshlrev_b32 {vr(a1)}, 10, {vr(vL)}
        s_mov_b64 exec, 31
        ds_write_b16 {vr(a1)}, {vr(a0)} offset:{YIMG}
        s_mov_b64 exec, -1''')
    def addr_p1():
        x0_, x1_, x2_, x3_, x4_ = t(20), t(21), t(22), t(23), t(24)
        e(f'''s_lshl_b32 {sr(sT)}, {sr(sW)}, 10
        v_lshlrev_b32 {vr(x2_)}, 4, {vr(vL)}
        v_add_u32 {vr(lRow)}, {sr(sT)}, {vr(x2_)}
        s_add_u32 {sr(sT2)}, {sr(sT)}, {RIMG+1008}
        v_sub_u32 {vr(lRw)}, {sr(sT2)}, {vr(x2_)}
        v_lshrrev_b32 {vr(x3_)}, 2, {vr(vN)}
        v_lshl_add_u32 {vr(x2_)}, {vr(vQ)}, 3, {vr(x3_)}
        v_lshlrev_b32 {vr(x2_)}, 5, {vr(x2_)}
        v_and_b32 {vr(x3_)}, 3, {vr(vN)}
        v_lshl_add_u32 {vr(x2_)}, {vr(x3_)}, 3, {vr(x2_)}
        v_add_u32 {vr(lTr)}, {sr(sT)}, {vr(x2_)}
        v_lshrrev_b32 {vr(x3_)}, 3, {vr(vN)}
        v_add_u32 {vr(x3_)}, {vr(x3_)}, {vr(vN)}
        v_lshlrev_b32 {vr(x3_)}, 4, {vr(x3_)}
        v_mul_u32_u24 {vr(x4_)}, {tables.CIN_QS}, {vr(vQ)}
        v_add_u32 {vr(lCr)}, {vr(x3_)}, {vr(x4_)}
        v_add_u32 {vr(lCr)}, {CIN}, {vr(lCr)}''')
        e(f'''s_sub_u32 {sr(sT3)}, 4, {sr(sW)}
        s_and_b32 {sr(sT3)}, {sr(sT3)}, 3
        s_add_u32 {sr(sT3)}, {sr(sT3)}, 4
        s_lshl_b32 {sr(sT3)}, {sr(sT3)}, 1
        s_lshl_b32 {sr(sT2)}, {sr(sW)}, 1
        v_lshlrev_b32 {vr(x0_)}, 7, {vr(vQ)}
        v_add_u32 {vr(x1_)}, {vr(x0_)}, {vr(vN)}
        v_sub_u32 {vr(x2_)}, {vr(x0_)}, {vr(vN)}
        v_and_b32 {vr(x3_)}, 8, {vr(x1_)}
        v_and_b32 {vr(x4_)}, 8, {vr(x2_)}
        v_xor_b32 {vr(x3_)}, {sr(sT2)}, {vr(x3_)}
        v_xor_b32 {vr(x4_)}, {sr(sT3)}, {vr(x4_)}
        v_lshl_add_u32 {vr(x1_)}, {vr(x1_)}, 4, {vr(x3_)}
        v_lshl_add_u32 {vr(x2_)}, {vr(x2_)}, 4, {vr(x4_)}
        v_add_u32 {vr(x1_)}, {HIMG}, {vr(x1_)}
        v_add_u32 {vr(x2_)}, {HIMG - 224*16}, {vr(x2_)}
        v_cmp_gt_u32 vcc, 2, {vr(vQ)}
        v_add_u32 {vr(x3_)}, 256, {vr(x1_)}
        v_subrev_u32 {vr(x4_)}, 256, {vr(x2_)}
        v_cndmask_b32 {vr(lH)}, {vr(x2_)}, {vr(x1_)}, vcc
        v_cndmask_b32 {vr(lH+1)}, {vr(x4_)}, {vr(x3_)}, vcc
        s_add_u32 {sr(sT2)}, {sr(sT2)}, {HIMG}
        s_add_u32 {sr(sT3)}, {sr(sT3)}, {HIMG}
        v_mov_b32 {vr(x0_)}, {HIMG+4112}
        v_mov_b32 {vr(x1_)}, {sr(sT2)}
        v_mov_b32 {vr(x2_)}, {sr(sT3)}
        v_cmp_eq_u32 vcc, 48, {vr(vL)}
        v_cndmask_b32 {vr(lHf)}, {vr(x0_)}, {vr(x1_)}, vcc
        v_cndmask_b32 {vr(lHf+1)}, {vr(x0_)}, {vr(x2_)}, vcc''')
    def addr_ym4():
        e(f'''s_cmp_eq_u32 {sr(sRho)}, 0
        s_cselect_b32 {sr(sT)}, 4096, 0
        v_add_u32 {vr(lYm4)}, {sr(sT)}, {vr(lYm)}''')

    b0, b1, b2 = t(24), t(25), t(26)
    vTau, vTlo = t(28), t(29)
    def tau_tlo():
        e(f'''s_lshl_b32 {sr(sT)}, {sr(sW)}, 3
        v_and_b32 {vr(vTau)}, 7, {vr(vN)}
        v_add_u32 {vr(vTau)}, {sr(sT)}, {vr(vTau)}
        v_sub_u32 {vr(a0)}, 64, {vr(vTau)}
        v_mov_b32 {vr(a1)}, 32
        v_cmp_eq_u32 {sr(sMz,2)}, 0, {vr(vTau)}
        v_cndmask_b32 {vr(a0)}, {vr(a0)}, {vr(a1)}, {sr(sMz,2)}
        v_cmp_le_u32 vcc, 8, {vr(vN)}
        v_cndmask_b32 {vr(vTlo)}, {vr(vTau)}, {vr(a0)}, vcc
        s_andn2_b64 {sr(sMc,2)}, vcc, {sr(sMz,2)}''')
    c0, c1 = t(30), t(31)
    def cos_seq(dst, base, step, n, amp=None):
        for j in range(0, n, 2):
            e(f'v_cos_f32 {vr(c0)}, {vr(base)}\nv_add_f32 {vr(base)}, {vr(base)}, {vr(step)}')
            e(f'v_cos_f32 {vr(c1)}, {vr(base)}')
            if j + 2 < n: e(f'v_add_f32 {vr(base)}, {vr(base)}, {vr(step)}')
            if amp is not None:
                e(f'v_mul_f32 {vr(c0)}, {amp}, {vr(c0)}\nv_mul_f32 {vr(c1)}, {amp}, {vr(c1)}')
            e(f'v_cvt_pk_f16_f32 {vr(dst + j//2)}, {vr(c0)}, {vr(c1)}')
    fQ, fN, fs, fb, fa, fb2 = t(32), t(33), t(34), t(35), t(36), t(37)
    def row_consts():
        e(f'v_cvt_f32_u32 {vr(fQ)}, {vr(vQ)}\nv_cvt_f32_u32 {vr(fN)}, {vr(vN)}')
        e(f'v_mul_f32 {vr(fs)}, {fbits(1/32)}, {vr(fN)}\nv_mul_f32 {vr(fa)}, {fbits(8.0)}, {vr(fQ)}')
        for part in range(2):
            e(f'v_mul_f32 {vr(fb)}, {vr(fa)}, {vr(fs)}')
            if part: e(f'v_add_f32 {vr(fb)}, {fbits(0.25)}, {vr(fb)}')
            cos_seq(RB1 + part*4, fb, fs, 8)
        for k in range(8): e(f'v_xor_b32 {vr(RB1+8+k)}, 0x80000000, {vr(RB1+k)}')
        e(f'v_mul_f32 {vr(fa)}, 4.0, {vr(fQ)}')
        for Tt in range(2):
            e(f'''v_add_f32 {vr(fs)}, {fbits(16.0*Tt)}, {vr(fN)}
            v_mul_f32 {vr(fs)}, {fbits(1/512)}, {vr(fs)}
            v_mul_f32 {vr(fb)}, {vr(fa)}, {vr(fs)}''')
            for i in range(4):
                e(f'v_cos_f32 {vr(RC+4*Tt+i)}, {vr(fb)}\nv_sin_f32 {vr(RS+4*Tt+i)}, {vr(fb)}')
                if i < 3: e(f'v_add_f32 {vr(fb)}, {vr(fb)}, {vr(fs)}')
        e(f'''v_sub_u32 {vr(fs)}, 23, {vr(vN)}
        v_cmp_gt_u32 vcc, 8, {vr(vN)}
        v_cndmask_b32 {vr(fs)}, {vr(fs)}, {vr(vN)}, vcc
        v_cvt_f32_u32 {vr(fs)}, {vr(fs)}
        v_mul_f32 {vr(fs)}, {fbits(1/16)}, {vr(fs)}
        v_mul_f32 {vr(fb2)}, {vr(fa)}, {vr(fs)}''')
        for part, ph in ((0, 0.125), (1, -0.125)):
            e(f'v_add_f32 {vr(fb)}, {fbits(ph)}, {vr(fb2)}')
            cos_seq(RA2 + 2*part, fb, fs, 4, amp=fbits(math.sqrt(2)))
    def col_consts_a():
        tau_tlo()
        e(f'''v_cvt_f32_u32 {vr(fQ)}, {vr(vQ)}
        v_cmp_le_u32 vcc, 8, {vr(vN)}
        s_and_b64 vcc, vcc, {sr(sMz,2)}
        v_mov_b32 {vr(a1)}, 32
        v_cndmask_b32 {vr(a0)}, {vr(vTau)}, {vr(a1)}, vcc
        v_cvt_f32_u32 {vr(fs)}, {vr(a0)}
        v_mul_f32 {vr(fs)}, {fbits(1/64)}, {vr(fs)}
        v_mov_b32 {vr(fa)}, {fbits(0.25)}
        v_cndmask_b32 {vr(fa)}, 0, {vr(fa)}, {sr(sMc,2)}
        v_mul_f32 {vr(fb)}, {fbits(8.0)}, {vr(fQ)}
        v_fma_f32 {vr(fb)}, {vr(fb)}, {vr(fs)}, {vr(fa)}''')
        cos_seq(CB1, fb, fs, 8)
        e(f'''v_and_b32 {vr(a0)}, 1, {vr(a0)}
        v_mul_u32_u24 {vr(a0)}, 0x8000, {vr(a0)}
        v_lshl_or_b32 {vr(a0)}, {vr(a0)}, 16, {vr(a0)}''')
        for k in range(4): e(f'v_xor_b32 {vr(CB1+4+k)}, {vr(a0)}, {vr(CB1+k)}')
    def col_consts_b():
        e(f'v_cvt_f32_u32 {vr(fQ)}, {vr(vQ)}')
        e(f'''v_cvt_f32_u32 {vr(fs)}, {vr(vTlo)}
        v_mul_f32 {vr(fs)}, {fbits(1/2048)}, {vr(fs)}
        v_mul_f32 {vr(fb)}, {vr(fQ)}, {vr(fs)}
        v_fma_f32 {vr(fb)}, {vr(fb)}, 4.0, {vr(fa)}
        v_mov_b32 {vr(a1)}, {fbits(0.25)}
        v_cndmask_b32 {vr(a1)}, {vr(a1)}, 0, {sr(sMz,2)}''')
        e(f'v_add_f32 {vr(fb2)}, {fbits(-0.25)}, {vr(fb)}')
        e(f'v_mul_f32 {vr(a2)}, {fbits(12.0)}, {vr(fs)}')
        for Tt in range(2):
            for i in range(4):
                k = CK + 16*Tt
                e(f'''v_cos_f32 {vr(c0)}, {vr(fb)}
                v_cos_f32 {vr(c1)}, {vr(fb2)}
                v_add_f32 {vr(fb)}, {vr(fb)}, {vr(fs)}
                v_add_f32 {vr(fb2)}, {vr(fb2)}, {vr(fs)}
                v_mul_f32 {vr(k+i)}, {fbits(0.25)}, {vr(c0)}
                v_mul_f32 {vr(k+4+i)}, {vr(a1)}, {vr(c1)}
                v_mul_f32 {vr(k+8+i)}, {fbits(-0.25)}, {vr(c1)}
                v_mul_f32 {vr(k+12+i)}, {vr(a1)}, {vr(c0)}''')
            if Tt == 0: e(f'v_add_f32 {vr(fb)}, {vr(fb)}, {vr(a2)}\nv_add_f32 {vr(fb2)}, {vr(fb2)}, {vr(a2)}')
        e(f'''v_cvt_f32_u32 {vr(fs)}, {vr(vN)}
        v_mul_f32 {vr(fs)}, {fbits(1/32)}, {vr(fs)}
        v_mul_f32 {vr(fb2)}, {vr(fQ)}, {vr(fs)}
        v_mul_f32 {vr(fb2)}, 4.0, {vr(fb2)}''')
        for part, ph in ((0, -0.125), (1, -0.375)):
            e(f'v_add_f32 {vr(fb)}, {fbits(ph)}, {vr(fb2)}')
            cos_seq(CA2 + 2*part, fb, fs, 4, amp=fbits(math.sqrt(2)/8))
        e(f'''v_and_b32 {vr(a0)}, 1, {vr(vN)}
        v_mul_u32_u24 {vr(a0)}, 0x8000, {vr(a0)}
        v_lshl_or_b32 {vr(a0)}, {vr(a0)}, 16, {vr(a0)}''')
        for k in range(4):
            e(f'v_xor_b32 {vr(CA2+4+k)}, {vr(a0)}, {vr(CA2+k)}')
        for k in range(8):
            e(f'v_xor_b32 {vr(CA2+8+k)}, 0x80000000, {vr(CA2+k)}')

    def unpack_nat(dst, src):
        for k in range(4):
            e(f'v_lshlrev_b32 {vr(dst+2*k)}, 16, {vr(src+k)}\nv_and_b32 {vr(dst+2*k+1)}, 0xffff0000, {vr(src+k)}')
    def unpack_rev(dst, src, tmp):
        e(f'''v_lshlrev_b32 {vr(tmp)}, 16, {vr(src)}
        v_and_b32 {vr(dst+7)}, 0xffff0000, {vr(src)}
        v_lshlrev_b32 {vr(dst+6)}, 16, {vr(src+1)}
        v_and_b32 {vr(dst+5)}, 0xffff0000, {vr(src+1)}
        v_mov_b32_dpp {vr(dst)}, {vr(tmp)} wave_ror:1 {DPP}
        v_lshlrev_b32 {vr(dst+4)}, 16, {vr(src+2)}
        v_and_b32 {vr(dst+3)}, 0xffff0000, {vr(src+2)}
        v_lshlrev_b32 {vr(dst+2)}, 16, {vr(src+3)}
        v_and_b32 {vr(dst+1)}, 0xffff0000, {vr(src+3)}''')
    def half_reduce(regs, tmps, op='v_add_f32'):
        for sh in (8, 4, 2, 1):
            for r in regs: e(f'{op}_dpp {vr(r)}, {vr(r)}, {vr(r)} row_ror:{sh} {DPP}')
        for r, tm in zip(regs, tmps): e(f'v_mov_b32 {vr(tm)}, {vr(r)}')
        for r, tm in zip(regs, tmps): e(f'v_permlane16_swap_b32 {vr(r)}, {vr(tm)}')
        for r, tm in zip(regs, tmps): e(f'{op} {vr(r)}, {vr(r)}, {vr(tm)}')
    def wave_reduce(regs, tmps, op='v_add_f32'):
        half_reduce(regs, tmps, op)
        for r, tm in zip(regs, tmps): e(f'v_mov_b32 {vr(tm)}, {vr(r)}')
        for r, tm in zip(regs, tmps): e(f'v_permlane32_swap_b32 {vr(r)}, {vr(tm)}')
        for r, tm in zip(regs, tmps): e(f'{op} {vr(r)}, {vr(r)}, {vr(tm)}')
    hM, hVar, hRho, hB, hR = t(40), t(41), t(42), t(43), t(44)
    def partial(Dd, src, sC, w, o1, o2, o3, P, read=True):
        if read: e(f'v_readfirstlane_b32 {sr(sC)}, {vr(src)}')
        for k in range(4):
            e(f'v_pk_add_f32 {vr(Dd+2*k,2)}, {vr(src+2*k,2)}, {sr(sC,2)} op_sel_hi:[1,0] neg_lo:[0,1] neg_hi:[0,1]')
        e(f'''v_pk_add_f32 {vr(P,2)}, {vr(Dd,2)}, {vr(Dd+2,2)}
        v_pk_mul_f32 {vr(P+2,2)}, {vr(Dd,2)}, {vr(Dd,2)}
        v_pk_add_f32 {vr(P+4,2)}, {vr(Dd+4,2)}, {vr(Dd+6,2)}''')
        if w is not None: e(f'v_pk_mul_f32 {vr(P+6,2)}, {vr(Dd,2)}, {vr(w,2)}')
        for k in range(1, 4):
            e(f'v_pk_fma_f32 {vr(P+2,2)}, {vr(Dd+2*k,2)}, {vr(Dd+2*k,2)}, {vr(P+2,2)}')
            if w is not None: e(f'v_pk_fma_f32 {vr(P+6,2)}, {vr(Dd+2*k,2)}, {vr(w+2*k,2)}, {vr(P+6,2)}')
            if k == 1: e(f'v_pk_add_f32 {vr(P,2)}, {vr(P,2)}, {vr(P+4,2)}')
        e(f'v_add_f32 {vr(o1)}, {vr(P)}, {vr(P+1)}\nv_add_f32 {vr(o2)}, {vr(P+2)}, {vr(P+3)}')
        if w is not None: e(f'v_add_f32 {vr(o3)}, {vr(P+6)}, {vr(P+7)}')
    def moments(S1, S2):
        e(f'''v_mul_f32 {vr(hM)}, {fbits(1/512)}, {vr(S1)}
        v_mul_f32 {vr(S2)}, {fbits(1/512)}, {vr(S2)}
        v_fma_f32 {vr(hVar)}, -{vr(hM)}, {vr(hM)}, {vr(S2)}
        v_add_f32 {vr(S2)}, {fbits(1e-5)}, {vr(hVar)}
        v_rsq_f32 {vr(hRho)}, {vr(S2)}''')
    def stats2(with_r):
        a1_, a2_, a3_, b1_, b2_, b3_ = t(16), t(17), t(18), t(19), t(20), t(21)
        e(f'v_readfirstlane_b32 {sr(sCu)}, {vr(XU)}\nv_readfirstlane_b32 {sr(sCv)}, {vr(XV)}')
        partial(DV, XV, sCv, WV if with_r else None, b1_, b2_, b3_, t(32), read=False) if False else None
        partial(DU, XU, sCu, WU if with_r else None, a1_, a2_, a3_, t(24), read=False)
        partial(DV, XV, sCv, WV if with_r else None, b1_, b2_, b3_, t(32), read=False)
        pairs = [(a1_, b1_), (a2_, b2_)] + ([(a3_, b3_)] if with_r else [])
        for x, y in pairs: e(f'v_permlane32_swap_b32 {vr(x)}, {vr(y)}')
        for x, y in pairs: e(f'v_add_f32 {vr(x)}, {vr(x)}, {vr(y)}')
        half_reduce([x for x, _ in pairs], [y for _, y in pairs])
        moments(a1_, a2_)
        if with_r: e(f'v_fma_f32 {vr(a3_)}, -{vr(hM)}, {sr(sSW)}, {vr(a3_)}')
        e(f'v_mul_f32 {vr(hB)}, -{vr(hM)}, {vr(hRho)}')
        if with_r: e(f'v_mul_f32 {vr(hR)}, {vr(hRho)}, {vr(a3_)}')
    def stats1(src, Dd, dst):
        partial(Dd, src, sCu, None, t(16), t(17), None, t(24))
        wave_reduce([t(16), t(17)], [t(18), t(19)])
        moments(t(16), t(17))
        e(f'''v_readfirstlane_b32 {sr(sKu)}, {vr(hRho)}
        v_mul_f32 {vr(hB)}, -{vr(hM)}, {vr(hRho)}
        v_readfirstlane_b32 {sr(sKu+1)}, {vr(hB)}''')
        if dst is not None:
            for k in range(4): e(f'v_pk_fma_f32 {vr(dst+2*k,2)}, {vr(Dd+2*k,2)}, {sr(sKu,2)}, {sr(sKu,2)} {PKB}')
    def residual_coeffs():
        e(f'''v_mov_b32 {vr(t(22))}, {sr(sCu)}
        v_mov_b32 {vr(t(23))}, {sr(sCv)}
        v_cmp_gt_u32 vcc, 32, {vr(vL)}
        v_add_f32 {vr(t(21))}, 1.0, {vr(hRho)}
        v_cndmask_b32 {vr(t(22))}, {vr(t(23))}, {vr(t(22))}, vcc
        v_add_f32 {vr(t(22))}, {vr(t(22))}, {vr(hB)}
        v_readlane_b32 {sr(sAu)}, {vr(t(21))}, 0
        v_readlane_b32 {sr(sAv)}, {vr(t(21))}, 32
        v_readlane_b32 {sr(sAu+1)}, {vr(t(22))}, 0
        v_readlane_b32 {sr(sAv+1)}, {vr(t(22))}, 32''')
    def residual_update(dU, dV):
        for k in range(4): e(f'v_pk_fma_f32 {vr(dU+2*k,2)}, {vr(DU+2*k,2)}, {sr(sAu,2)}, {sr(sAu,2)} {PKB}')
        for k in range(4): e(f'v_pk_fma_f32 {vr(dV+2*k,2)}, {vr(DV+2*k,2)}, {sr(sAv,2)}, {sr(sAv,2)} {PKB}')
    def norm_coeffs(scale, bias):
        e(f'''v_readlane_b32 {sr(sKu)}, {vr(scale)}, 0
        v_readlane_b32 {sr(sKu+1)}, {vr(bias)}, 0
        v_readlane_b32 {sr(sKv)}, {vr(scale)}, 32
        v_readlane_b32 {sr(sKv+1)}, {vr(bias)}, 32''')
    GG = t(16)
    def make_g():
        for k in range(4): e(f'v_pk_fma_f32 {vr(GG+2*k,2)}, {vr(DU+2*k,2)}, {sr(sKu,2)}, {sr(sKu,2)} {PKB}')
        for k in range(4): e(f'v_pk_fma_f32 {vr(GG+2*k,2)}, {vr(DV+2*k,2)}, {sr(sKv,2)}, {vr(GG+2*k,2)} op_sel_hi:[1,0,1]')
    def write_n(src, tmp):
        for k in range(4): e(f'v_cvt_pk_f16_f32 {vr(tmp+k)}, {vr(src+2*k)}, {vr(src+2*k+1)}')
        e(f'ds_write_b128 {vr(lRow)}, {vr(tmp,4)} offset:{GIMG}')
    def write_r(src, tmp):
        e(f'''v_mov_b32_dpp {vr(tmp+4)}, {vr(src)} wave_rol:1 {DPP}
        v_cvt_pk_f16_f32 {vr(tmp+1)}, {vr(src+6)}, {vr(src+5)}
        v_cvt_pk_f16_f32 {vr(tmp+2)}, {vr(src+4)}, {vr(src+3)}
        v_cvt_pk_f16_f32 {vr(tmp+3)}, {vr(src+2)}, {vr(src+1)}
        v_cvt_pk_f16_f32 {vr(tmp)}, {vr(tmp+4)}, {vr(src+7)}
        ds_write_b128 {vr(lRw)}, {vr(tmp,4)}''')
    def core(A, O):
        Dr = [t(0), t(8)]; Di = [t(4), t(12)]
        for Tt in range(2):
            e(f'v_mfma_f32_16x16x32_f16 {vr(Dr[Tt],4)}, {vr(A,4)}, {vr(RB1+(2*Tt)*4,4)}, 0')
            e(f'v_mfma_f32_16x16x32_f16 {vr(Di[Tt],4)}, {vr(A,4)}, {vr(RB1+(2*Tt+1)*4,4)}, 0')
        Bo = [t(16), t(20)]; br, bi = t(24), t(28)
        for Tt in range(2):
            for h in range(2):
                c = vr(RC+4*Tt+2*h, 2); s_ = vr(RS+4*Tt+2*h, 2)
                dr = vr(Dr[Tt]+2*h, 2); di = vr(Di[Tt]+2*h, 2)
                e(f'''v_pk_mul_f32 {vr(br+2*h,2)}, {dr}, {c}
                v_pk_mul_f32 {vr(bi+2*h,2)}, {di}, {c}
                v_pk_fma_f32 {vr(br+2*h,2)}, {di}, {s_}, {vr(br+2*h,2)}
                v_pk_fma_f32 {vr(bi+2*h,2)}, {dr}, {s_}, {vr(bi+2*h,2)} neg_lo:[1,0,0] neg_hi:[1,0,0]''')
            e(f'''v_cvt_pk_f16_f32 {vr(Bo[Tt])}, {vr(br)}, {vr(br+1)}
            v_cvt_pk_f16_f32 {vr(Bo[Tt]+1)}, {vr(br+2)}, {vr(br+3)}
            v_cvt_pk_f16_f32 {vr(Bo[Tt]+2)}, {vr(bi)}, {vr(bi+1)}
            v_cvt_pk_f16_f32 {vr(Bo[Tt]+3)}, {vr(bi+2)}, {vr(bi+3)}''')
            e(f'v_mfma_f32_16x16x32_f16 {vr(O+4*Tt,4)}, {vr(RA2,4)}, {vr(Bo[Tt],4)}, 0')

    CA, CO = t(32), t(36)
    def transform(dst_off, tagged=False, pre_core=None, post_scatter=None, pre_store=None):
        write_n(GG, t(24))
        e(f"""ds_read_b64_tr_b16 {vr(CA,2)}, {vr(lTr)} offset:{GIMG}
        ds_read_b64_tr_b16 {vr(CA+2,2)}, {vr(lTr)} offset:{GIMG+128}""")
        if pre_core: pre_core()
        e('s_waitcnt lgkmcnt(0)')
        core(CA, CO)
        for k in range(4): e(f'v_cvt_pk_f16_f32 {vr(t(44)+k)}, {vr(CO+2*k)}, {vr(CO+2*k+1)}')
        for Tt in range(2):
            for i in range(4):
                op = 'ds_write_b16' if i % 2 == 0 else 'ds_write_b16_d16_hi'
                e(f'{op} {vr(lH+Tt)}, {vr(t(44) + 2*Tt + i//2)} offset:{512*i}')
        e(f'ds_write_b16_d16_hi {vr(lHf)}, {vr(t(45))}\nds_write_b16_d16_hi {vr(lHf+1)}, {vr(t(45))}')
        if post_scatter: post_scatter()
        if tagged:
            e(f"""v_lshlrev_b32 {vr(t(8))}, 3, v0
            s_lshl_b32 {sr(sT)}, {sr(sRho)}, 13
            v_add_u32 {vr(t(9))}, {sr(sT)}, {vr(lG)}""")
            for k in (1, 3, 5, 7): e(f'v_mov_b32 {vr(t(k))}, {sr(sTag)}')
            if pre_store: pre_store()
            e(f"""s_waitcnt lgkmcnt(0)
            s_barrier
            ds_read_b32 {vr(t(0))}, {vr(t(8))} offset:{HIMG}
            ds_read_b32 {vr(t(2))}, {vr(t(8))} offset:{HIMG+4}
            ds_read_b32 {vr(t(4))}, {vr(t(8))} offset:{HIMG+2048}
            ds_read_b32 {vr(t(6))}, {vr(t(8))} offset:{HIMG+2052}
            s_mov_b32 {sr(sOff)}, {dst_off}
            s_mov_b32 {sr(sT)}, {dst_off+4096}
            s_waitcnt lgkmcnt(2)
            buffer_store_dwordx4 {vr(t(0),4)}, {vr(t(9))}, {sr(sWS,4)}, {sr(sOff)} offen sc1
            s_waitcnt lgkmcnt(0)
            buffer_store_dwordx4 {vr(t(4),4)}, {vr(t(9))}, {sr(sWS,4)}, {sr(sT)} offen sc1""")
        else:
            if pre_store: pre_store()
            e(f"""s_waitcnt lgkmcnt(0)
            s_barrier
            ds_read_b128 {vr(t(0),4)}, {vr(lG)} offset:{HIMG}
            s_mov_b32 {sr(sOff)}, {dst_off}
            s_waitcnt lgkmcnt(0)
            buffer_store_dwordx4 {vr(t(0),4)}, {vr(aP16)}, {sr(sWS,4)}, {sr(sOff)} offen sc1""")

    def affine_from_x(sx1x0_u, sx1x0_v, sKu_, sKv_, outU, outV):
        for (xx, cc, kk, oo) in ((sx1x0_u, sCu, sKu_, outU), (sx1x0_v, sCv, sKv_, outV)):
            if xx is None:
                e(f"""v_mov_b32 {vr(t(44))}, {sr(kk)}
                v_mov_b32 {vr(t(45))}, {sr(kk+1)}
                v_fma_f32 {vr(t(45))}, -{vr(t(44))}, {sr(cc)}, {vr(t(45))}""")
            else:
                e(f"""v_rcp_f32 {vr(t(44))}, {sr(xx)}
                v_mov_b32 {vr(t(45))}, {sr(kk+1)}
                v_mul_f32 {vr(t(44))}, {sr(kk)}, {vr(t(44))}
                v_fma_f32 {vr(t(45))}, -{vr(t(44))}, {sr(xx+1)}, {vr(t(45))}""")
            e(f'v_readfirstlane_b32 {sr(oo)}, {vr(t(44))}\nv_readfirstlane_b32 {sr(oo+1)}, {vr(t(45))}')

    def special_k(dst_off, after_residual):
        ln = g.lab('nok')
        e(f's_cmp_lg_u32 {sr(sRowU)}, 0\ns_cbranch_scc1 {ln}')
        affine_from_x(sAu if after_residual else None, sAv if after_residual else None, sKu, sKv, sH, sH+2)
        ZU, ZV = t(0), t(8)
        for k in range(4): e(f'v_pk_fma_f32 {vr(ZU+2*k,2)}, {vr(XU+2*k,2)}, {sr(sH,2)}, {sr(sH,2)} {PKB}')
        for k in range(4): e(f'v_pk_fma_f32 {vr(ZV+2*k,2)}, {vr(XV+2*k,2)}, {sr(sH+2,2)}, {sr(sH+2,2)} {PKB}')
        write_r(ZU, t(16)); write_n(ZV, t(24))
        A, B = CA, t(40)
        e(f"""ds_read_b64_tr_b16 {vr(A,2)}, {vr(lTr)} offset:{RIMG}
        ds_read_b64_tr_b16 {vr(B,2)}, {vr(lTr)} offset:{GIMG}
        ds_read_b64_tr_b16 {vr(A+2,2)}, {vr(lTr)} offset:{RIMG+128}
        ds_read_b64_tr_b16 {vr(B+2,2)}, {vr(lTr)} offset:{GIMG+128}
        s_waitcnt lgkmcnt(0)""")
        for k in range(4): e(f'v_pk_add_f16 {vr(A+k)}, {vr(A+k)}, {vr(B+k)} neg_lo:[0,1] neg_hi:[0,1]')
        core(A, CO)
        for k in range(4): e(f'v_pk_mul_f32 {vr(CO+2*k,2)}, {vr(CO+2*k,2)}, {sr(sT2 if False else sM2,2)} op_sel_hi:[1,0]' if False else f'v_mul_f32 {vr(CO+2*k)}, {fbits(1/16)}, {vr(CO+2*k)}\nv_mul_f32 {vr(CO+2*k+1)}, {fbits(1/16)}, {vr(CO+2*k+1)}')
        for k in range(4): e(f'v_cvt_pk_f16_f32 {vr(t(44)+k)}, {vr(CO+2*k)}, {vr(CO+2*k+1)}')
        e(f"""v_lshl_add_u32 {vr(t(0))}, {vr(vQ)}, 7, {vr(vN)}
        v_lshlrev_b32 {vr(t(0))}, 1, {vr(t(0))}
        v_sub_u32 {vr(t(1))}, {1024-32-192}, {vr(t(0))}
        v_mov_b32 {vr(t(2))}, 512
        s_mov_b32 exec_lo, -1
        s_mov_b32 exec_hi, 0""")
        for Tt in range(2):
            for i in range(4):
                op = 'ds_write_b16' if i % 2 == 0 else 'ds_write_b16_d16_hi'
                e(f'{op} {vr(t(0))}, {vr(t(44)+2*Tt+i//2)} offset:{KIMG + 32*Tt + 64*i}')
                e(f'{op} {vr(t(1))}, {vr(t(44)+2*Tt+i//2)} offset:{KIMG + 32*(1-Tt) + 64*(3-i)}')
        e(f"""s_mov_b32 exec_lo, 0
        s_mov_b32 exec_hi, 0x00010000
        ds_write_b16_d16_hi {vr(t(2))}, {vr(t(45))} offset:{KIMG}
        s_mov_b64 exec, -1
        v_lshlrev_b32 {vr(t(3))}, 4, {vr(vL)}
        s_waitcnt lgkmcnt(0)
        ds_read_b128 {vr(t(4),4)}, {vr(t(3))} offset:{KIMG}
        s_mov_b32 {sr(sOff)}, {dst_off}
        s_waitcnt lgkmcnt(0)
        buffer_store_dwordx4 {vr(t(4),4)}, {vr(t(3))}, {sr(sWS,4)}, {sr(sOff)} offen sc1
        {ln}:""")

    PC = t(40)
    def column_load(src_off):
        e(f's_mov_b32 {sr(sOff)}, {src_off}')
        e(ws_load_text(4, PC, aS16, sr(sOff)))
    def column(src_off, dst_off, preloaded, tagged=False, behind_poll=None):
        P = PC
        e(f's_mov_b32 {sr(sOff)}, {src_off}')
        if tagged:
            P = t(0); A2 = t(44); AD1 = t(8)
            e(f'''v_lshrrev_b32 {vr(AD1)}, 1, v0
            v_lshlrev_b32 {vr(AD1)}, 13, {vr(AD1)}
            v_and_b32 {vr(t(9))}, 1, v0
            v_lshl_add_u32 {vr(AD1)}, {vr(t(9))}, 4, {vr(AD1)}
            s_lshl_b32 {sr(sT)}, {sr(sRho)}, 5
            v_add_u32 {vr(AD1)}, {sr(sT)}, {vr(AD1)}
            s_add_u32 {sr(sT3)}, {sr(sOff)}, {128*8192}''')
            ld = ws_load_text(4, P, AD1, sr(sOff)) + '\n' + ws_load_text(4, P+4, AD1, sr(sT3))
            if opt.get('splitc'):
                e(ld)
                nb = 0
                if behind_poll:
                    behind_poll[0](); nb = behind_poll[1]; e(f's_mov_b32 {sr(sOff)}, {src_off}')
                col_consts_b(); e(f's_waitcnt vmcnt({nb})')
                poll(ld, ('tag', P), preloaded=True)
            else:
                poll(ld, ('tag', P))
            stamp('col data')
            for k in range(2):
                e(f'''ds_write_b16 {vr(A2+2*k)}, {vr(P+4*k)}
                ds_write_b16_d16_hi {vr(A2+2*k+1)}, {vr(P+4*k)} offset:16
                ds_write_b16 {vr(A2+2*k+1)}, {vr(P+4*k+2)} offset:32
                ds_write_b16_d16_hi {vr(A2+2*k+1)}, {vr(P+4*k+2)} offset:48''')
            e('s_waitcnt lgkmcnt(0)\ns_barrier')
        else:
            poll(ws_load_text(4, P, aS16, sr(sOff)), range(P, P+4), preloaded=preloaded)
            lsw = g.lab('nosw')
            e(f's_bitcmp0_b32 {sr(sRho)}, 3\ns_cbranch_scc1 {lsw}\nv_swap_b32 {vr(P)}, {vr(P+2)}\nv_swap_b32 {vr(P+1)}, {vr(P+3)}\n{lsw}:')
            d = [P, P+1, P+2, P+3]
            stamp('col data')
            e(f"""ds_write_b16 {vr(lCa)}, {vr(d[0])}
            ds_write_b16_d16_hi {vr(lCa)}, {vr(d[0])} offset:16
            ds_write_b16 {vr(lCa)}, {vr(d[1])} offset:32
            ds_write_b16_d16_hi {vr(lCa)}, {vr(d[1])} offset:48
            ds_write_b16 {vr(lCb)}, {vr(d[2])}
            ds_write_b16_d16_hi {vr(lCc)}, {vr(d[2])} offset:16
            ds_write_b16 {vr(lCc)}, {vr(d[3])} offset:32
            ds_write_b16_d16_hi {vr(lCc)}, {vr(d[3])} offset:48
            s_waitcnt lgkmcnt(0)
            s_barrier""")
        A = t(0)
        for k in range(4): e(f'ds_read_b128 {vr(A+4*k,4)}, {vr(lCr)} offset:{tables.cin_block(k)}')
        D1 = [t(16), t(20)]
        e(f"""s_waitcnt lgkmcnt(3)
        v_mfma_f32_16x16x32_f16 {vr(D1[0],4)}, {vr(A,4)}, {vr(CB1,4)}, 0
        s_waitcnt lgkmcnt(2)
        v_mfma_f32_16x16x32_f16 {vr(D1[0],4)}, {vr(A+4,4)}, {vr(CB1+4,4)}, {vr(D1[0],4)}
        s_waitcnt lgkmcnt(1)
        v_mfma_f32_16x16x32_f16 {vr(D1[1],4)}, {vr(A+8,4)}, {vr(CB1,4)}, 0
        s_waitcnt lgkmcnt(0)
        v_mfma_f32_16x16x32_f16 {vr(D1[1],4)}, {vr(A+12,4)}, {vr(CB1+4,4)}, {vr(D1[1],4)}""")
        Bb = t(24); br, bi = t(28), t(32); Bo = [t(0), t(4)]
        O = [t(8), t(12)]
        for Tt in range(2):
            k = CK + 16*Tt
            for i in range(4): e(f'v_mov_b32_dpp {vr(Bb+i)}, {vr(D1[Tt]+i)} row_ror:8 {DPP}')
            for h in range(2):
                e(f"""v_pk_mul_f32 {vr(br+2*h,2)}, {vr(D1[Tt]+2*h,2)}, {vr(k+2*h,2)}
                v_pk_mul_f32 {vr(bi+2*h,2)}, {vr(D1[Tt]+2*h,2)}, {vr(k+8+2*h,2)}""")
            for h in range(2):
                e(f"""v_pk_fma_f32 {vr(br+2*h,2)}, {vr(Bb+2*h,2)}, {vr(k+4+2*h,2)}, {vr(br+2*h,2)}
                v_pk_fma_f32 {vr(bi+2*h,2)}, {vr(Bb+2*h,2)}, {vr(k+12+2*h,2)}, {vr(bi+2*h,2)}""")
            e(f"""v_cvt_pk_f16_f32 {vr(Bo[Tt])}, {vr(br)}, {vr(br+1)}
            v_cvt_pk_f16_f32 {vr(Bo[Tt]+1)}, {vr(br+2)}, {vr(br+3)}
            v_cvt_pk_f16_f32 {vr(Bo[Tt]+2)}, {vr(bi)}, {vr(bi+1)}
            v_cvt_pk_f16_f32 {vr(Bo[Tt]+3)}, {vr(bi+2)}, {vr(bi+3)}""")
            e(f"""v_mfma_f32_16x16x32_f16 {vr(O[0],4)}, {vr(CA2+4*Tt,4)}, {vr(Bo[Tt],4)}, {"0" if Tt == 0 else vr(O[0],4)}
            v_mfma_f32_16x16x32_f16 {vr(O[1],4)}, {vr(CA2+8+4*Tt,4)}, {vr(Bo[Tt],4)}, {"0" if Tt == 0 else vr(O[1],4)}""")
        e(f"""        v_cvt_pk_f16_f32 {vr(t(16))}, {vr(O[0])}, {vr(O[0]+1)}
        v_cvt_pk_f16_f32 {vr(t(17))}, {vr(O[0]+2)}, {vr(O[0]+3)}
        ds_write_b16 {vr(lCo)}, {vr(t(16))}
        ds_write_b16_d16_hi {vr(lCo)}, {vr(t(16))} offset:256
        v_cvt_pk_f16_f32 {vr(t(18))}, {vr(O[1])}, {vr(O[1]+1)}
        v_cvt_pk_f16_f32 {vr(t(19))}, {vr(O[1]+2)}, {vr(O[1]+3)}
        ds_write_b16 {vr(lCo)}, {vr(t(17))} offset:512
        ds_write_b16_d16_hi {vr(lCo)}, {vr(t(17))} offset:768
        ds_write_b16 {vr(lCo+2)}, {vr(t(18))}
        ds_write_b16_d16_hi {vr(lCo+1)}, {vr(t(18))} offset:512
        ds_write_b16 {vr(lCo+1)}, {vr(t(19))} offset:256
        ds_write_b16_d16_hi {vr(lCo+1)}, {vr(t(19))}
        s_waitcnt lgkmcnt(0)
        s_barrier
        ds_read_b128 {vr(t(0),4)}, {vr(lG)} offset:{COUT}
        s_mov_b32 {sr(sOff)}, {dst_off}
        s_waitcnt {'vmcnt(0) ' if behind_poll else ''}lgkmcnt(0)
        buffer_store_dwordx4 {vr(t(0),4)}, {vr(aP16)}, {sr(sWS,4)}, {sr(sOff)} offen sc1""")

    YY = [t(4), t(8)]; KT = t(12)
    def row_input(src_off, kb, behind_poll=None, ydst=None):
        P = t(0); YH, YV = ydst or YY
        lk = g.lab('nok')
        e(f's_bitcmp0_b32 {sr(sW)}, 0\ns_cbranch_scc1 {lk}')
        e(f'v_lshlrev_b32 {vr(t(16))}, 4, {vr(vL)}\ns_mov_b32 {sr(sT3)}, {kb}')
        e(ws_load_text(4, KT, t(16), sr(sT3)))
        e(f'{lk}:')
        e(f's_mov_b32 {sr(sOff)}, {src_off}')
        ld = ws_load_text(4, P, aS16, sr(sOff))
        if behind_poll:
            e(ld); behind_poll[0](); e(f's_mov_b32 {sr(sOff)}, {src_off}\ns_waitcnt vmcnt({behind_poll[1]})')
            poll(ld, range(P, P+4), preloaded=True)
        else:
            poll(ld, range(P, P+4))
        stamp('row data')
        def wr(slot, areg, off):
            op = 'ds_write_b16' if slot % 2 == 0 else 'ds_write_b16_d16_hi'
            e(f'{op} {vr(areg)}, {vr(P + slot//2)} offset:{YIMG + off}')
        for j in range(4): wr(j, lYd, j*1024)
        wr(4, lYm4, 0); wr(5, lYm, 3*1024); wr(6, lYm, 2*1024); wr(7, lYm, 1024)
        l0 = g.lab('not0')
        e(f's_cmp_lg_u32 {sr(sRho)}, 0\ns_cbranch_scc1 {l0}')
        wr(0, lYm, 0); wr(4, lYd, 4096)
        e(f"""{l0}:
        s_waitcnt lgkmcnt(0)
        s_barrier
        ds_read_b128 {vr(YH,4)}, {vr(lRow)} offset:{YIMG}""")
        lv = g.lab('yv')
        e(f"""s_cmp_lg_u32 {sr(sRowU)}, 0
        s_cbranch_scc1 {lv}
        ds_read_b128 {vr(YV,4)}, {vr(lRow)} offset:{YIMG+4096}
        {lv}:""")
        lk = g.lab('nok2')
        e(f's_bitcmp0_b32 {sr(sW)}, 0\ns_cbranch_scc1 {lk}')
        poll(ws_load_text(4, KT, t(16), sr(sT3)), range(KT, KT+4), preloaded=True)
        e('s_waitcnt lgkmcnt(0)')
        for k in range(4): e(f'v_pk_add_f16 {vr(YH+k)}, {vr(YH+k)}, {vr(KT+k)}')
        e(f'{lk}:\ns_waitcnt lgkmcnt(0)')
    def add_y(yu, yv):
        for k in range(4):
            e(f"""v_fma_mix_f32 {vr(XU+2*k)}, {vr(yu+k)}, {sr(s16)}, {vr(XU+2*k)} op_sel:[0,0,0] op_sel_hi:[1,0,0]
            v_fma_mix_f32 {vr(XU+2*k+1)}, {vr(yu+k)}, {sr(s16)}, {vr(XU+2*k+1)} op_sel:[1,0,0] op_sel_hi:[1,0,0]""")
        for k in range(4):
            e(f"""v_fma_mix_f32 {vr(XV+2*k)}, {vr(yv+k)}, {sr(s16)}, {vr(XV+2*k)} op_sel:[0,0,0] op_sel_hi:[1,0,0]
            v_fma_mix_f32 {vr(XV+2*k+1)}, {vr(yv+k)}, {sr(s16)}, {vr(XV+2*k+1)} op_sel:[1,0,0] op_sel_hi:[1,0,0]""")
    def add_y_pair(y=None):
        YH, YV = y or YY
        ls = g.lab('ysp'); lj = g.lab('yj')
        e(f's_cmp_eq_u32 {sr(sRowU)}, 0\ns_cbranch_scc1 {ls}')
        add_y(YH, YH)
        e(f'{lj}:')
        g.late.append((ls, lj, YH, YV))
    g.late = []

    def make_key():
        e(f"""v_ashrrev_i32 {vr(t(22))}, 31, {vr(hR)}
        v_or_b32 {vr(t(22))}, 0x80000000, {vr(t(22))}
        v_xor_b32 {vr(t(22))}, {vr(hR)}, {vr(t(22))}
        v_and_b32 {vr(t(22))}, 0xfffff800, {vr(t(22))}
        v_or_b32 {vr(t(22))}, {vr(vRowH)}, {vr(t(22))}
        v_readlane_b32 {sr(sKeyU)}, {vr(t(22))}, 0
        v_readlane_b32 {sr(sKeyV)}, {vr(t(22))}, 32
        s_lshl_b32 {sr(sT)}, {sr(sW)}, 2
        v_mov_b32 {vr(t(23))}, {sr(sT)}
        s_max_u32 {sr(sKey)}, {sr(sKeyU)}, {sr(sKeyV)}
        v_mov_b32 {vr(t(22))}, {sr(sKey)}
        ds_write_b32 {vr(t(23))}, {vr(t(22))} offset:{AM}""")
    def wg_best_read(tmp):
        e(f'v_mov_b32 {vr(tmp+4)}, 0\nds_read_b128 {vr(tmp,4)}, {vr(tmp+4)} offset:{AM}')
    def wg_best_header(cand, tmp):
        ln = g.lab('nohdr')
        e(f"""v_max3_u32 {vr(tmp)}, {vr(tmp)}, {vr(tmp+1)}, {vr(tmp+2)}
        v_max_u32 {vr(tmp)}, {vr(tmp)}, {vr(tmp+3)}
        v_readfirstlane_b32 {sr(sT)}, {vr(tmp)}
        s_cmp_eq_u32 {sr(sT)}, {sr(sKey)}
        s_cselect_b32 {sr(sSgn)}, 1, 0
        s_cbranch_scc0 {ln}
        s_lshl_b32 {sr(sT)}, {sr(sRho)}, 12
        s_add_u32 {sr(sOff)}, {sr(sT)}, {cand}
        v_mov_b32 {vr(tmp+1)}, {sr(sKey)}
        s_mov_b64 exec, 1
        buffer_store_dword {vr(tmp+1)}, {vr(tmp+4)}, {sr(sWS,4)}, {sr(sOff)} offen sc1
        s_mov_b64 exec, -1
        {ln}:""")
    def publish_rows(cand):
        ln = g.lab('nopub'); lv = g.lab('pubv'); lj = g.lab('pubj')
        e(f's_cmp_eq_u32 {sr(sSgn)}, 0\ns_cbranch_scc1 {ln}')
        e(f"""s_lshl_b32 {sr(sT)}, {sr(sRho)}, 12
        s_add_u32 {sr(sOff)}, {sr(sT)}, {cand}
        s_cmp_gt_u32 {sr(sKeyV)}, {sr(sKeyU)}
        s_cbranch_scc1 {lv}""")
        for (lab_, X_, A_, C_) in ((None, XU, sAu, sCu), (lv, XV, sAv, sCv)):
            if lab_: e(f'{lab_}:')
            e(f"""v_rcp_f32 {vr(t(0))}, {sr(A_)}
            v_mov_b32 {vr(t(1))}, {sr(A_+1)}
            v_mov_b32 {vr(t(2))}, {sr(A_)}
            v_add_f32 {vr(t(2))}, -1.0, {vr(t(2))}
            v_subrev_f32 {vr(t(3))}, {sr(C_)}, {vr(t(1))}
            v_mul_f32 {vr(t(4))}, {vr(t(2))}, {vr(t(0))}
            v_fma_f32 {vr(t(6))}, -{vr(t(4))}, {vr(t(1))}, {vr(t(3))}""")
            Z = t(8)
            for k in range(4): e(f'v_pk_fma_f32 {vr(Z+2*k,2)}, {vr(X_+2*k,2)}, {vr(t(4),2)}, {vr(t(6),2)} op_sel_hi:[1,0,0]')
            if X_ == XU:
                for k in range(4): e(f'v_cvt_pk_bf16_f32 {vr(t(16)+k)}, {vr(Z+2*k)}, {vr(Z+2*k+1)}')
                e(f"""v_lshlrev_b32 {vr(t(1))}, 4, {vr(vL)}
                v_lshlrev_b32 {vr(t(2))}, 5, {vr(vL)}
                buffer_store_dwordx4 {vr(t(16),4)}, {vr(t(1))}, {sr(sWS,4)}, {sr(sOff)} offen offset:128 sc1
                buffer_store_dwordx4 {vr(XU,4)}, {vr(t(2))}, {sr(sWS,4)}, {sr(sOff)} offen offset:1152 sc1
                buffer_store_dwordx4 {vr(XU+4,4)}, {vr(t(2))}, {sr(sWS,4)}, {sr(sOff)} offen offset:1168 sc1
                s_branch {lj}""")
            else:
                e(f"""v_mov_b32_dpp {vr(t(20))}, {vr(Z)} wave_rol:1 {DPP}
                v_mov_b32_dpp {vr(t(24))}, {vr(XV)} wave_rol:1 {DPP}
                v_cvt_pk_bf16_f32 {vr(t(17))}, {vr(Z+6)}, {vr(Z+5)}
                v_cvt_pk_bf16_f32 {vr(t(18))}, {vr(Z+4)}, {vr(Z+3)}
                v_cvt_pk_bf16_f32 {vr(t(19))}, {vr(Z+2)}, {vr(Z+1)}
                v_cvt_pk_bf16_f32 {vr(t(16))}, {vr(t(20))}, {vr(Z+7)}""")
                for k in range(1, 8): e(f'v_mov_b32 {vr(t(24)+k)}, {vr(XV+8-k)}')
                e(f"""v_lshlrev_b32 {vr(t(1))}, 4, {vr(vL)}
                v_sub_u32 {vr(t(1))}, 1008, {vr(t(1))}
                v_lshlrev_b32 {vr(t(2))}, 1, {vr(t(1))}
                buffer_store_dwordx4 {vr(t(16),4)}, {vr(t(1))}, {sr(sWS,4)}, {sr(sOff)} offen offset:128 sc1
                buffer_store_dwordx4 {vr(t(24),4)}, {vr(t(2))}, {sr(sWS,4)}, {sr(sOff)} offen offset:1152 sc1
                buffer_store_dwordx4 {vr(t(28),4)}, {vr(t(2))}, {sr(sWS,4)}, {sr(sOff)} offen offset:1168 sc1""")
        e(f'{lj}:\n{ln}:')

    def header_load(cand, K):
        e(f's_mov_b32 {sr(sOff)}, {cand}')
        e(ws_load_text(1, K, aHdr, sr(sOff)))
    def argmax(cand, K, after_check=None):
        e(f's_mov_b32 {sr(sOff)}, {cand}')
        poll(ws_load_text(1, K, aHdr, sr(sOff)), [K], preloaded=True, backoff=4)
        if after_check: after_check()
        wave_reduce([K], [t(1)], op='v_max_u32')
        e(f"""s_lshl_b32 {sr(sT)}, {sr(sW)}, 2
        v_mov_b32 {vr(t(1))}, {sr(sT)}
        ds_write_b32 {vr(t(1))}, {vr(K)} offset:{AM+32}
        v_mov_b32 {vr(t(1))}, 0
        s_waitcnt lgkmcnt(0)
        s_barrier
        ds_read_b128 {vr(t(4),4)}, {vr(t(1))} offset:{AM+32}
        s_waitcnt lgkmcnt(0)
        v_max3_u32 {vr(t(4))}, {vr(t(4))}, {vr(t(5))}, {vr(t(6))}
        v_max_u32 {vr(t(4))}, {vr(t(4))}, {vr(t(7))}
        v_readfirstlane_b32 {sr(sKey)}, {vr(t(4))}""")
        e(f"""s_and_b32 {sr(sStar)}, {sr(sKey)}, 2047
        s_lshr_b32 {sr(sT)}, {sr(sStar)}, 2
        s_sub_u32 {sr(sT2)}, 511, {sr(sT)}
        s_sub_u32 {sr(sT3)}, 512, {sr(sT)}
        s_and_b32 {sr(sT3)}, {sr(sT3)}, 255
        s_and_b32 {sr(sRec)}, {sr(sStar)}, 3
        s_cmp_eq_u32 {sr(sRec)}, 0
        s_cselect_b32 {sr(sT2)}, {sr(sT3)}, {sr(sT2)}
        s_cmp_lt_u32 {sr(sStar)}, 1024
        s_cselect_b32 {sr(sT2)}, {sr(sT)}, {sr(sT2)}
        s_lshl_b32 {sr(sRec)}, {sr(sT2)}, 12
        s_add_u32 {sr(sRec)}, {sr(sRec)}, {cand}""")
    def sigmoid_of_key():
        e(f"""s_and_b32 {sr(sT)}, {sr(sKey)}, 0xfffff800
        s_or_b32 {sr(sT)}, {sr(sT)}, 0x400
        s_ashr_i32 {sr(sT2)}, {sr(sT)}, 31
        s_not_b32 {sr(sT2)}, {sr(sT2)}
        s_or_b32 {sr(sT2)}, {sr(sT2)}, 0x80000000
        s_xor_b32 {sr(sT)}, {sr(sT)}, {sr(sT2)}
        v_mov_b32 {vr(vSig)}, {fbits(-1.4426950408889634)}
        v_mul_f32 {vr(vSig)}, {sr(sT)}, {vr(vSig)}
        v_exp_f32 {vr(vSig)}, {vr(vSig)}
        v_add_f32 {vr(vSig)}, 1.0, {vr(vSig)}
        v_rcp_f32 {vr(vSig)}, {vr(vSig)}""")

    def ffn_setup():
        e(f"""v_and_b32 {vr(t(24))}, 3, {vr(vN)}
        v_lshrrev_b32 {vr(t(25))}, 2, {vr(vN)}
        v_lshl_add_u32 {vr(t(25))}, {vr(vQ)}, 3, {vr(t(25))}
        s_lshl_b32 {sr(sT)}, {sr(sW)}, 7
        v_add_u32 {vr(t(25))}, {sr(sT)}, {vr(t(25))}
        v_lshlrev_b32 {vr(t(25))}, 4, {vr(t(25))}
        v_and_b32 {vr(t(27))}, 1, {vr(t(24))}
        v_lshl_add_u32 {vr(t(25))}, {vr(t(27))}, 3, {vr(t(25))}
        v_lshrrev_b32 {vr(t(27))}, 1, {vr(t(24))}
        v_lshl_add_u32 {vr(t(25))}, {vr(t(27))}, 13, {vr(t(25))}
        v_lshlrev_b32 {vr(t(26))}, 2, v0""")
        g.nbar_mark = sum(1 for l in g.L if l == 's_barrier')
        e('s_barrier')
        for kap in range(4):
            for h in range(2):
                e(f'ds_read_b64_tr_b16 {vr(FA+4*kap+2*h,2)}, {vr(t(25))} offset:{GU + kap*512 + h*64}')
        for f in range(8): e(f'ds_read_b32 {vr(t(28)+f)}, {vr(t(26))} offset:{DN + f*1024}')
        e('s_waitcnt lgkmcnt(0)')
        for f in range(8):
            e(f'v_lshlrev_b32 {vr(FD+2*f)}, 16, {vr(t(28)+f)}\nv_and_b32 {vr(FD+2*f+1)}, 0xffff0000, {vr(t(28)+f)}')
    def loader():
        e('L_loader:')
        if opt.get('lprio'): e(f's_setprio {opt["lprio"]}')
        lst = [0]
        def lstamp():
            if not stamps: return
            e(f's_memrealtime {sr(sTm,2)}\ns_waitcnt lgkmcnt(0)\nv_writelane_b32 {vr(vStamp)}, {sr(sTm)}, {lst[0]}'); lst[0] += 1
        if stamps: e(f'v_mov_b32 {vr(vStamp)}, 0')
        lstamp()
        if not opt.get('nohint'):
            lh = g.lab('nohint')
            e(f's_cmp_lt_u32 {sr(sWg)}, 248\ns_cbranch_scc1 {lh}')
            srd(sT4, kx, 2097152); srd(sWS, sKC, WS_SIZE)
            e(f'''s_lshl_b32 {sr(sT2)}, {sr(sRho)}, 12
            v_lshlrev_b32 {vr(t(1))}, 4, {vr(vL)}
            v_add_u32 {vr(t(2))}, {sr(sT2)}, {vr(t(1))}
            v_mov_b32 {vr(t(4))}, {NONCE}
            buffer_load_dword {vr(t(3))}, {vr(t(2))}, {sr(sT4,4)}, 0 offen
            buffer_load_dword {vr(t(4))}, {vr(t(4))}, {sr(sWS,4)}, 0 offen
            s_and_b32 {sr(sT)}, {sr(sWg)}, 7
            s_lshl_b32 {sr(sT)}, {sr(sT)}, 8
            v_mov_b32 {vr(t(5))}, {sr(sT)}
            s_waitcnt vmcnt(0)
            s_mov_b32 {sr(sT2)}, 0x9e3779b1
            v_mul_lo_u32 {vr(t(4))}, {vr(t(4))}, {sr(sT2)}
            v_add_u32 {vr(t(4))}, 0x7f4a7c15, {vr(t(4))}
            s_mov_b64 exec, 1''')
            ws_store(1, t(4), t(5), HINT)
            e(f's_mov_b64 exec, -1\n{lh}:')
        lstamp()
        if opt.get('lpf') == 'lin':
            e(f"""s_mul_i32 {sr(sT)}, {sr(sWg)}, 5632
            v_min_u32 {vr(t(4))}, 43, {vr(vL)}
            v_lshlrev_b32 {vr(t(4))}, 7, {vr(t(4))}
            v_add_u32 {vr(t(4))}, {sr(sT)}, {vr(t(4))}""")
            for ptr in (kwg, kwu):
                srd(sT4, ptr, 1409024)
                e(f'buffer_load_dword {vr(t(6))}, {vr(t(4))}, {sr(sT4,4)}, 0 offen')
        elif opt.get('lpf'):
            e(f"""s_lshr_b32 {sr(sT)}, {sr(sRho)}, 5
            s_cmp_ge_u32 {sr(sT)}, 6
            s_cbranch_scc1 L_end
            v_lshlrev_b32 {vr(t(1))}, 4, {vr(vL)}""")
            srd(sT4, kx, 2097152)
            e(f"""s_lshl_b32 {sr(sT2)}, {sr(sRho)}, 12
            v_add_u32 {vr(t(2))}, {sr(sT2)}, {vr(t(1))}
            buffer_load_dword {vr(t(3))}, {vr(t(2))}, {sr(sT4,4)}, 0 offen
            s_lshl_b32 {sr(sT)}, {sr(sT)}, 9
            s_and_b32 {sr(sT2)}, {sr(sRho)}, 31
            s_lshl_b32 {sr(sT2)}, {sr(sT2)}, 4
            v_lshrrev_b32 {vr(t(4))}, 2, {vr(vL)}
            v_add_u32 {vr(t(4))}, {sr(sT2)}, {vr(t(4))}
            s_movk_i32 {sr(sT3)}, 2752
            v_mul_lo_u32 {vr(t(4))}, {vr(t(4))}, {sr(sT3)}
            v_and_b32 {vr(t(5))}, 3, {vr(vL)}
            v_lshlrev_b32 {vr(t(5))}, 7, {vr(t(5))}
            s_max_u32 {sr(sT)}, {sr(sT)}, 16
            s_sub_u32 {sr(sT)}, {sr(sT)}, 16
            v_add3_u32 {vr(t(4))}, {vr(t(4))}, {vr(t(5))}, {sr(sT)}
            v_sub_u32 {vr(t(5))}, {vr(t(4))}, {vr(t(5))}
            v_add_u32 {vr(t(5))}, 512, {vr(t(5))}""")
            if opt.get('lpf') != 'now': e('s_waitcnt vmcnt(0)')
            for ptr in (kwg, kwu):
                srd(sT4, ptr, 1409024)
                e(f"""buffer_load_dword {vr(t(6))}, {vr(t(4))}, {sr(sT4,4)}, 0 offen
                buffer_load_dword {vr(t(7))}, {vr(t(5))}, {sr(sT4,4)}, 0 offen""")
        e(f"""s_cmp_ge_u32 {sr(sPhi)}, {NF}
        s_cbranch_scc1 L_end""")
        e(f"""s_movk_i32 {sr(sT3)}, 2752
        v_mul_lo_u32 {vr(t(0))}, {vr(vL)}, {sr(sT3)}
        s_lshl_b32 {sr(sT2)}, {sr(sPhi)}, 4
        v_add_u32 {vr(t(0))}, {sr(sT2)}, {vr(t(0))}
        v_lshlrev_b32 {vr(t(1))}, 4, {vr(vL)}""")
        def gu(ptr, lds, ks=range(8)):
            srd(sT4, ptr, 1409024)
            for k in ks:
                e(f"""s_add_u32 {sr(sT)}, {sr(sPhi)}, {k}
                s_and_b32 {sr(sT)}, {sr(sT)}, 7
                s_lshl_b32 {sr(sT2)}, {sr(sT)}, 10
                s_add_u32 m0, {sr(sT2)}, {lds}
                s_mul_i32 {sr(sOff)}, {sr(sT)}, {64*2752}
                buffer_load_dwordx4 {vr(t(0))}, {sr(sT4,4)}, {sr(sOff)} offen {opt.get('wfl','')} lds""")
        def dn():
            srd(sT4, kwd, 1409024)
            e(f's_lshl_b32 {sr(sT2)}, {sr(sPhi)}, 13')
            for f in range(8):
                e(f"""s_mov_b32 m0, {DN + 1024*f}
                s_add_u32 {sr(sOff)}, {sr(sT2)}, {1024*f}
                buffer_load_dwordx4 {vr(t(1))}, {sr(sT4,4)}, {sr(sOff)} offen {opt.get('wfl','')} lds""")
        if opt.get('lwait'):
            srd(sT4, kx, 2097152)
            e(f's_lshl_b32 {sr(sT)}, {sr(sRho)}, 12\nv_add_u32 {vr(t(2))}, {sr(sT)}, {vr(t(1))}\nbuffer_load_dword {vr(t(3))}, {vr(t(2))}, {sr(sT4,4)}, 0 offen\ns_waitcnt vmcnt(0)')
        plan = {int(x.split(':')[0]): x.split(':')[1] for x in opt.get('lplan', '0:gud').split('/')}
        if opt.get('lcnt'):
            cnt = [int(x) for x in opt['lcnt'].split('.')]; assert sum(cnt) == 16
            dpos = int(opt.get('ldpos', 0)); nxt = 0
            for k in range(g.nbar_mark + 1):
                if k == dpos: dn()
                for j in range(cnt[k] if k < len(cnt) else 0):
                    gu(kwg if nxt < 8 else kwu, GU + (0 if nxt < 8 else 8192), [nxt & 7]); nxt += 1
                lstamp()
                if k < g.nbar_mark: e('s_barrier')
            plan = None
        for k in range(g.nbar_mark + 1 if plan is not None else 0):
            for c in plan.get(k, ''):
                {'g': lambda: gu(kwg, GU), 'u': lambda: gu(kwu, GU + 8192), 'd': dn,
                 'a': lambda: gu(kwg, GU, range(0, 4)), 'b': lambda: gu(kwg, GU, range(4, 8)),
                 'c': lambda: gu(kwu, GU + 8192, range(0, 4)), 'e': lambda: gu(kwu, GU + 8192, range(4, 8))}[c]()
            if k < g.nbar_mark: e('s_barrier')
        e('s_waitcnt vmcnt(0)')
        lstamp()
        e('s_barrier\nL_end:')
        if stamps:
            srd(sWS, sKC, WS_SIZE)
            e(f'''s_lshl_b32 {sr(sT)}, {sr(sWg)}, 11
            s_add_u32 {sr(sT)}, {sr(sT)}, 1024
            v_lshlrev_b32 {vr(t(0))}, 2, {vr(vL)}
            v_add_u32 {vr(t(0))}, {sr(sT)}, {vr(t(0))}
            s_mov_b32 {sr(sOff)}, {STAMP}
            buffer_store_dword {vr(vStamp)}, {vr(t(0))}, {sr(sWS,4)}, {sr(sOff)} offen''')
        e('s_endpgm')

    XS = t(0)
    def xsel_text():
        return '\n'.join(f'buffer_load_dwordx4 {vr(XS+4*k,4)}, {vr(t(20))}, {sr(sWS,4)}, {sr(sRec)} offen offset:{128+64*k} sc1' for k in range(4))
    def xsel_load():
        e(f"""s_lshl_b32 {sr(sT)}, {sr(sW)}, 8
        v_lshlrev_b32 {vr(t(20))}, 4, {vr(vQ)}
        v_add_u32 {vr(t(20))}, {sr(sT)}, {vr(t(20))}""")
        e(xsel_text())
    def ffn(part):
        ln = g.lab('noffn')
        e(f's_cmp_ge_u32 {sr(sPhi)}, {NF}\ns_cbranch_scc1 {ln}')
        poll(xsel_text(), range(XS, XS+16), preloaded=True)
        Pp = t(16)
        for k in range(4):
            e(f'v_mfma_f32_16x16x32_bf16 {vr(Pp,4)}, {vr(FA+4*k,4)}, {vr(XS+4*k,4)}, {"0" if k==0 else vr(Pp,4)}')
        e(f"""v_lshlrev_b32 {vr(t(21))}, 6, {vr(vQ)}
        s_lshl_b32 {sr(sT)}, {sr(sW)}, 2
        v_add_u32 {vr(t(21))}, {sr(sT)}, {vr(t(21))}
        v_and_b32 {vr(t(22))}, 31, {vr(vL)}
        v_lshlrev_b32 {vr(t(22))}, 2, {vr(t(22))}
        s_mov_b32 exec_lo, 0x00010001
        s_mov_b32 exec_hi, 0x00010001""")
        for i in range(4): e(f'ds_write_b32 {vr(t(21))}, {vr(Pp+i)} offset:{FP + 16*i}')
        e(f"""s_mov_b64 exec, -1
        s_waitcnt lgkmcnt(0)
        s_barrier
        ds_read_b32 {vr(t(12))}, {vr(t(22))} offset:{FP}
        ds_read_b32 {vr(t(13))}, {vr(t(22))} offset:{FP+128}
        s_waitcnt lgkmcnt(0)""")
        gg, uu = t(12), t(13)
        for mod in ('quad_perm:[1,0,3,2]', 'quad_perm:[2,3,0,1]'):
            e(f'v_add_f32_dpp {vr(gg)}, {vr(gg)}, {vr(gg)} {mod} {DPP}\nv_add_f32_dpp {vr(uu)}, {vr(uu)}, {vr(uu)} {mod} {DPP}')
        e(f"""v_mul_f32 {vr(t(14))}, {fbits(-1.4426950408889634)}, {vr(gg)}
        v_exp_f32 {vr(t(14))}, {vr(t(14))}
        v_mul_f32 {vr(uu)}, {vr(uu)}, {vr(vSig)}
        v_add_f32 {vr(t(14))}, 1.0, {vr(t(14))}
        v_rcp_f32 {vr(t(14))}, {vr(t(14))}
        v_mul_f32 {vr(gg)}, {vr(gg)}, {vr(uu)}
        v_mul_f32 {vr(gg)}, {vr(gg)}, {vr(t(14))}""")
        for f in range(8): e(f'v_readlane_b32 {sr(sH+f)}, {vr(gg)}, {4*f}')
        acc = t(16)
        for f in range(8):
            sel = 'op_sel_hi:[1,0,1]' if f % 2 == 0 else 'op_sel:[0,1,0] op_sel_hi:[1,1,1]'
            if f == 0: e(f'v_pk_mul_f32 {vr(acc,2)}, {vr(FD,2)}, {sr(sH,2)} op_sel_hi:[1,0]')
            else: e(f'v_pk_fma_f32 {vr(acc,2)}, {vr(FD+2*f,2)}, {sr(sH + (f & ~1),2)}, {vr(acc,2)} {sel}')
        ws_store(2, acc, aP8, part)
        e(f'{ln}:')

    def reducer(part, final):
        ln = g.lab('nored')
        red_index()
        e(f"""s_cmp_ge_u32 {sr(sT3)}, 32
        s_cbranch_scc1 {ln}""")
        if not final and not opt.get('oldred'): e('s_waitcnt vmcnt(0)')
        if final and opt.get('redsleep'): e(f's_sleep {opt["redsleep"]}')
        NLD = (NF + 15)//16
        e(f"""v_lshrrev_b32 {vr(t(20))}, 4, v0
        v_and_b32 {vr(t(22))}, 15, v0
        v_lshlrev_b32 {vr(t(22))}, 2, {vr(t(22))}
        s_lshl_b32 {sr(sT)}, {sr(sT3)}, 6
        v_add_u32 {vr(t(25))}, {sr(sT)}, {vr(t(22))}
        v_lshl_add_u32 {vr(t(21))}, {vr(t(20))}, 11, {vr(t(25))}
        v_add_u32 {vr(t(23))}, {16*(NLD-1)*2048}, {vr(t(21))}
        v_mov_b32 {vr(t(24))}, 0x7f000000
        v_cmp_gt_u32 vcc, {NF - 16*(NLD-1)}, {vr(t(20))}
        v_cndmask_b32 {vr(t(23))}, {vr(t(24))}, {vr(t(23))}, vcc""")
        A = t(0); B4 = t(12)
        lds_ = []
        for k in range(NLD - 1):
            lds_.append(f's_mov_b32 {sr(sOff)}, {part + 16*k*2048}\n' + ws_load_text(1, A+k, t(21), sr(sOff)))
        lds_.append(f's_mov_b32 {sr(sOff)}, {part}\n' + ws_load_text(1, A+NLD-1, t(23), sr(sOff)))
        regs = list(range(A, A+NLD))
        if final:
            lds_.append(ws_load_text(1, B4, t(25), sr(sRec), 'offset:1152')); regs.append(B4)
        poll('\n'.join(lds_), regs)
        n = NLD
        while n > 1:
            h = n//2
            for k in range(h): e(f'v_add_f32 {vr(A+k)}, {vr(A+k)}, {vr(A+n-1-k)}')
            n -= h
        for sw in ('v_permlane16_swap_b32', 'v_permlane32_swap_b32'):
            e(f'v_mov_b32 {vr(A+1)}, {vr(A)}\n{sw} {vr(A)}, {vr(A+1)}\nv_add_f32 {vr(A)}, {vr(A)}, {vr(A+1)}')
        e(f"""s_lshl_b32 {sr(sT)}, {sr(sW)}, 2
        v_lshl_add_u32 {vr(t(24))}, {vr(t(22))}, 2, {sr(sT)}
        v_lshlrev_b32 {vr(t(26))}, 2, {vr(t(22))}
        s_mov_b64 exec, 0xffff
        ds_write_b32 {vr(t(24))}, {vr(A)} offset:{RED}
        s_mov_b64 exec, -1
        s_waitcnt lgkmcnt(0)
        s_barrier
        s_cmp_lg_u32 {sr(sW)}, 0
        s_cbranch_scc1 {ln}
        ds_read_b128 {vr(t(28),4)}, {vr(t(26))} offset:{RED}
        s_waitcnt lgkmcnt(0)
        v_add_f32 {vr(t(28))}, {vr(t(28))}, {vr(t(29))}
        v_add_f32 {vr(t(30))}, {vr(t(30))}, {vr(t(31))}
        v_add_f32 {vr(t(28))}, {vr(t(28))}, {vr(t(30))}""")
        if final:
            e(f"""v_add_f32 {vr(t(28))}, {vr(t(28))}, {vr(B4)}
            s_lshl_b32 {sr(sT)}, {sr(sStar)}, 10
            v_lshrrev_b32 {vr(t(25))}, 1, {vr(t(25))}
            v_mov_b32_dpp {vr(t(29))}, {vr(t(28))} quad_perm:[1,0,3,2] {DPP}
            v_add_u32 {vr(t(25))}, {sr(sT)}, {vr(t(25))}
            v_cvt_pk_bf16_f32 {vr(t(28))}, {vr(t(28))}, {vr(t(29))}
            s_mov_b64 exec, 0x5555
            buffer_store_dword {vr(t(28))}, {vr(t(25))}, {sr(sOUT,4)}, 0 offen sc1
            s_mov_b64 exec, -1""")
        else:
            e(f"""s_mov_b32 {sr(sOff)}, {UPD0}
            s_mov_b64 exec, 0xffff
            buffer_store_dword {vr(t(28))}, {vr(t(25))}, {sr(sWS,4)}, {sr(sOff)} offen sc1
            s_mov_b64 exec, -1""")
        e(f'{ln}:')

    if opt.get('addrvalu'): addr_p1()
    if opt.get('rowvalu'): row_consts()
    stamp('preamble')
    e(f's_waitcnt vmcnt({N_ALL-1})\nv_readfirstlane_b32 {sr(sTag)}, {vr(vCa)}\ns_mul_i32 {sr(sTag)}, {sr(sTag)}, 0x9e3779b1\ns_add_u32 {sr(sTag)}, {sr(sTag)}, 0x7f4a7c15')
    stamp('x0')
    unpack_nat(XU, URAW); unpack_rev(XV, VRAW, t(16))
    stats2(False)
    norm_coeffs(hRho, hB)
    make_g()
    e(f's_waitcnt vmcnt({N_ALL - N_ROWTAB})')
    transform(HB0, tagged=True, pre_store=lambda: e(f's_waitcnt vmcnt({N_ALL - N_POISON})'))
    stamp('P1 stored')
    finish_here('P1')
    special_k(KB0, False)
    srd(sT4, kwr, 1024)
    e(f'''v_lshlrev_b32 {vr(t(2))}, 4, {vr(vL)}
    v_sub_u32 {vr(t(3))}, 1008, {vr(t(2))}
    buffer_load_dwordx4 {vr(WURAW,4)}, {vr(t(2))}, {sr(sT4,4)}, 0 offen
    buffer_load_dwordx4 {vr(WVRAW,4)}, {vr(t(3))}, {sr(sT4,4)}, 0 offen''')
    if opt.get('addrvalu'):
        for k in (2, 3):
            e(f'v_add_u32 {vr(t(4))}, {TOFF["addr"] + 4096*k}, {vr(lG)}\nglobal_load_dwordx4 {vr(AD+4*k,4)}, {vr(t(4))}, {sr(sPC,2)}')
    addr_misc()
    if not opt.get('addrvalu'): addr_ym4()
    LATE = opt.get('latepois', '0') == '1'
    red_index()
    e(f"""s_lshl_b32 {sr(sT)}, {sr(sT3)}, 6
    v_lshlrev_b32 {vr(t(10))}, 2, v0
    v_add_u32 {vr(t(10))}, {sr(sT)}, {vr(t(10))}
    v_cmp_gt_u32 vcc, 16, v0
    s_cmp_lt_u32 {sr(sT3)}, 32
    s_cselect_b64 {sr(sEx,2)}, vcc, 0
    v_mov_b32 {vr(t(11))}, 0x7f000000
    v_cndmask_b32 {vr(t(10))}, {vr(t(11))}, {vr(t(10))}, {sr(sEx,2)}""")
    def poison1():
        poison_regs()
        if EP < 1:
            ws_store(4, PZ, aP16, HB1); ws_store(4, PZ, aP16, CAND0)
        if EP < 3: ws_store(2, PZ, aP8, PART0)
        ws_store(1, PZ, t(10), UPD0)
    def poison2():
        if EP >= 3: return
        poison_regs()
        if EP < 2:
            ws_store(4, PZ, aP16, YB1); ws_store(4, PZ, aP16, CAND1)
        ws_store(2, PZ, aP8, PART1)
    if not LATE: poison1()
    e(f's_bfe_u32 {sr(sT)}, {sr(sRho)}, 0x10003\ns_lshl_b32 {sr(sT)}, {sr(sT)}, 4\nv_xor_b32 {vr(t(39))}, {sr(sT)}, {vr(lG)}')
    e(f'v_add_u32 {vr(t(39))}, {TOFF["addr2"]}, {vr(t(39))}\nglobal_load_dwordx4 {vr(t(44),4)}, {vr(t(39))}, {sr(sPC,2)}')
    if not opt.get('nohint'):
        lh = g.lab('hw')
        e(f'''v_and_b32 {vr(vCa)}, 7, {vr(vL)}
        v_lshlrev_b32 {vr(vCa)}, 8, {vr(vCa)}
        s_cmp_lg_u32 {sr(sW)}, 0
        s_cbranch_scc1 {lh}
        s_mov_b32 {sr(sOff)}, {HINT}''')
        e(ws_load_text(1, vSa, vCa, sr(sOff)))
        e(f'{lh}:')
    col_consts_a()
    if not opt.get('splitc'): col_consts_b()
    stamp('shadow1')
    if not opt.get('nohint'):
        lh = g.lab('hw2'); lp = g.lab('hp')
        e(f'''s_cmp_lg_u32 {sr(sW)}, 0
        s_cbranch_scc1 {lh}
        s_mov_b32 {sr(sCnt)}, 0
        s_mov_b32 {sr(sOff)}, {HINT}
        {lp}:
        s_waitcnt vmcnt(0)
        v_cmp_ne_u32 vcc, {sr(sTag)}, {vr(vSa)}
        s_cbranch_vccz {lh}
        s_add_u32 {sr(sCnt)}, {sr(sCnt)}, 1
        s_cmp_gt_u32 {sr(sCnt)}, {LIMIT}
        s_cbranch_scc1 {lh}
        s_sleep 4''')
        e(ws_load_text(1, vSa, vCa, sr(sOff)))
        e(f's_branch {lp}\n{lh}:\ns_waitcnt vmcnt(0)\ns_barrier')
    if opt.get('ack1'): e('s_waitcnt vmcnt(0)')
    stamp('hint')
    column(HB0, YB0, False, tagged=True, behind_poll=(poison1, 4) if LATE else None)
    stamp('P2 stored')
    finish_here('P2')
    if not LATE: poison2()
    lnn = g.lab('nononce')
    e(f'''s_cmp_lg_u32 {sr(sRowU)}, 0
    s_cbranch_scc1 {lnn}
    v_mov_b32 {vr(t(0))}, {sr(sTag)}
    v_mov_b32 {vr(t(1))}, 0
    s_mov_b64 exec, 1''')
    ws_store(1, t(0), t(1), NONCE)
    e(f's_mov_b64 exec, -1\n{lnn}:')
    if opt.get('addrvalu'): addr_ym4()
    unpack_nat(WU, WURAW); unpack_rev(WV, WVRAW, t(16))
    e(f"""v_pk_add_f32 {vr(t(16),2)}, {vr(WU,2)}, {vr(WU+2,2)}
    v_pk_add_f32 {vr(t(18),2)}, {vr(WU+4,2)}, {vr(WU+6,2)}
    v_pk_add_f32 {vr(t(16),2)}, {vr(t(16),2)}, {vr(t(18),2)}
    v_add_f32 {vr(t(16))}, {vr(t(16))}, {vr(t(17))}""")
    wave_reduce([t(16)], [t(17)])
    e(f'v_readfirstlane_b32 {sr(sSW)}, {vr(t(16))}')
    stamp('shadow2')
    e('s_waitcnt vmcnt(0)')
    row_input(YB0, KB0, behind_poll=(poison2, 3) if LATE else None)
    add_y_pair()
    stats2(True)
    make_key()
    residual_coeffs()
    e(f"""v_mul_f32 {vr(t(23))}, {vr(t(21))}, {vr(t(21))}
    v_mul_f32 {vr(t(23))}, {vr(t(23))}, {vr(hVar)}
    v_add_f32 {vr(t(23))}, {fbits(1e-5)}, {vr(t(23))}
    v_rsq_f32 {vr(t(23))}, {vr(t(23))}
    s_waitcnt lgkmcnt(0)
    s_barrier""")
    wg_best_read(t(24))
    e(f"""v_mul_f32 {vr(t(22))}, {vr(t(21))}, {vr(t(23))}
    v_mul_f32 {vr(t(23))}, -{vr(hM)}, {vr(t(22))}""")
    norm_coeffs(t(22), t(23))
    e('s_waitcnt lgkmcnt(0)')
    if LATE: e('s_waitcnt vmcnt(0)')
    wg_best_header(CAND0, t(24))
    stamp('hdr0')
    make_g()
    EH = opt.get('earlyhdr')
    transform(HB1, pre_core=lambda: (residual_update(XU, XV), header_load(CAND0, vSig) if EH == 'pre' else None),
              post_scatter=lambda: (header_load(CAND0, vSig) if EH == 'post' else None, publish_rows(CAND0)))
    stamp('P3 stored')
    finish_here('P3')
    K = t(0)
    if not EH: header_load(CAND0, vSig)
    SETUP_LATE = opt.get('setuplate', '1' if EH else '0') == '1'
    if not SETUP_LATE:
        lfs = g.lab('nosetup')
        e(f's_cmp_ge_u32 {sr(sPhi)}, {NF}\ns_cbranch_scc1 {lfs}')
        ffn_setup()
        e(f'{lfs}:')
    special_k(KB1, True)
    if EH:
        lw1 = g.lab('w1'); lw2 = g.lab('w2')
        e(f's_cmp_eq_u32 {sr(sSgn)}, 0\ns_cbranch_scc1 {lw1}\ns_waitcnt vmcnt(4)\ns_branch {lw2}\n{lw1}:\ns_waitcnt vmcnt(1)\n{lw2}:')
        e(f'v_mov_b32 {vr(K)}, {vr(vSig)}')
    else:
        e(f's_waitcnt vmcnt(0)\nv_mov_b32 {vr(K)}, {vr(vSig)}')
    if opt.get('colpos') == 'b':
        argmax(CAND0, K); column_load(HB1)
    else:
        argmax(CAND0, K, after_check=lambda: column_load(HB1))
    stamp('argmax0')
    lb = g.lab('nobase')
    e(f"""s_cmp_ge_u32 {sr(sW)}, 2
    s_cbranch_scc1 {lb}
    v_lshlrev_b32 {vr(t(21))}, 5, {vr(vL)}
    buffer_load_dwordx4 {vr(FX,4)}, {vr(t(21))}, {sr(sWS,4)}, {sr(sRec)} offen offset:1152 sc1
    buffer_load_dwordx4 {vr(FX+4,4)}, {vr(t(21))}, {sr(sWS,4)}, {sr(sRec)} offen offset:1168 sc1
    {lb}:""")
    lb = g.lab('nox')
    PACE = opt.get('pace')
    if PACE == 'xsel':
        lx = g.lab('dox')
        red_index()
        e(f's_cmp_lt_u32 {sr(sPhi)}, {NF}\ns_cbranch_scc1 {lx}\ns_cmp_lt_u32 {sr(sT3)}, 32\ns_cbranch_scc1 {lb}\n{lx}:')
        xsel_load()
    else:
        e(f's_cmp_ge_u32 {sr(sPhi)}, {NF}\ns_cbranch_scc1 {lb}')
        xsel_load()
        if SETUP_LATE: ffn_setup()
    e(f'{lb}:')
    sigmoid_of_key()
    e(f"""s_mul_i32 {sr(sT)}, {sr(sRowU)}, {sr(sStar)}
    s_and_b32 {sr(sT)}, {sr(sT)}, 2047
    v_cvt_f32_u32 {vr(vCa)}, {sr(sT)}
    v_mul_f32 {vr(vCa)}, {fbits(1/2048)}, {vr(vCa)}
    v_sin_f32 {vr(vSa)}, {vr(vCa)}
    v_cos_f32 {vr(vCa)}, {vr(vCa)}
    v_mul_f32 {vr(vSa)}, {fbits(1/32)}, {vr(vSa)}
    v_mul_f32 {vr(vCa)}, {fbits(1/32)}, {vr(vCa)}
    v_cvt_pk_f16_f32 {vr(vSa)}, {vr(vSa)}, {vr(vSa)}
    v_cvt_pk_f16_f32 {vr(vCa)}, {vr(vCa)}, {vr(vCa)}
    s_waitcnt vmcnt(0)""")
    stamp('xsel')
    ffn(PART0)
    stamp('ffn0')
    column(HB1, YB1, True)
    stamp('P4 stored')
    finish_here('P4')
    reducer(PART0, False)
    stamp('red0')
    lb = g.lab('nobase')
    e(f's_cmp_ge_u32 {sr(sW)}, 2\ns_cbranch_scc1 {lb}')
    e(f'v_lshlrev_b32 {vr(t(21))}, 5, {vr(vL)}')
    poll(f'buffer_load_dwordx4 {vr(FX,4)}, {vr(t(21))}, {sr(sWS,4)}, {sr(sRec)} offen offset:1152 sc1\n'
         f'buffer_load_dwordx4 {vr(FX+4,4)}, {vr(t(21))}, {sr(sWS,4)}, {sr(sRec)} offen offset:1168 sc1', range(FX, FX+8), preloaded=True)
    stats1(FX, t(0), None)
    e(f'''v_mov_b32 {vr(t(20))}, {sr(sKu+1)}
    v_mov_b32 {vr(t(21))}, {sr(sKu)}
    v_fma_f32 {vr(t(20))}, -{vr(t(21))}, {sr(sCu)}, {vr(t(20))}
    s_mov_b32 {sr(sKv)}, {sr(sKu)}
    v_readfirstlane_b32 {sr(sKv+1)}, {vr(t(20))}''')
    e(f'{lb}:')
    e('s_waitcnt vmcnt(0)')
    if PACE and PACE.startswith('s'):
        lz = g.lab('nopace')
        red_index()
        e(f's_cmp_lt_u32 {sr(sPhi)}, {NF}\ns_cbranch_scc1 {lz}\ns_cmp_lt_u32 {sr(sT3)}, 32\ns_cbranch_scc1 {lz}\ns_sleep {PACE[1:]}\n{lz}:')
    if PACE == 'part':
        lz = g.lab('nopace')
        red_index()
        e(f'''s_cmp_lt_u32 {sr(sPhi)}, {NF}
        s_cbranch_scc1 {lz}
        s_cmp_lt_u32 {sr(sT3)}, 32
        s_cbranch_scc1 {lz}
        s_and_b32 {sr(sT)}, {sr(sRho)}, 127
        s_lshl_b32 {sr(sT)}, {sr(sT)}, 11
        s_lshl_b32 {sr(sT2)}, {sr(sW)}, 9
        s_add_u32 {sr(sT)}, {sr(sT)}, {sr(sT2)}
        v_mov_b32 {vr(t(1))}, {sr(sT)}
        s_mov_b32 {sr(sOff)}, {PART0}''')
        poll(ws_load_text(1, t(0), t(1), sr(sOff)), [t(0)], backoff=4)
        e(f'{lz}:')
    YH, YV = FO, FO + 4
    row_input(YB1, KB1, ydst=(YH, YV))
    FP0, FPS = lCa, lCb
    e(f'''v_lshl_add_u32 {vr(FP0)}, {vr(vQ)}, 7, {vr(vN)}
    v_lshlrev_b32 {vr(t(1))}, 7, {vr(vQ)}
    v_sub_u32 {vr(t(1))}, {32*23}, {vr(t(1))}
    v_add_u32 {vr(t(1))}, {vr(t(1))}, {vr(vN)}
    v_cmp_gt_u32 vcc, 2, {vr(vQ)}
    v_mov_b32 {vr(FPS)}, 64
    v_mov_b32 {vr(t(3))}, -64
    v_cndmask_b32 {vr(FP0)}, {vr(t(1))}, {vr(FP0)}, vcc
    v_cndmask_b32 {vr(FPS)}, {vr(t(3))}, {vr(FPS)}, vcc
    v_lshlrev_b32 {vr(FP0)}, 1, {vr(FP0)}
    s_lshl_b32 {sr(sT)}, {sr(sW)}, 10
    v_add_u32 {vr(FP0)}, {sr(sT)}, {vr(FP0)}''')
    stamp('y1 read')
    lj = g.lab('fixj'); lq = g.lab('fix'); lu = g.lab('ownu'); lv = g.lab('ownv')
    U = t(16)
    updld = lambda areg: (ws_load_text(4, U, areg, sr(sOff)) + '\n' + ws_load_text(4, U+4, areg, sr(sOff), 'offset:16'))
    def owner_add():
        l1 = g.lab('nu'); l2 = g.lab('nv')
        e(f's_cmp_lg_u32 {sr(sStar)}, {sr(sRowU)}\ns_cbranch_scc1 {l1}')
        for k in range(4): e(f'v_pk_add_f32 {vr(XU+2*k,2)}, {vr(XU+2*k,2)}, {vr(U+2*k,2)}')
        e(f'{l1}:')
    e(f"""v_lshlrev_b32 {vr(t(44))}, 5, {vr(vL)}
    s_mov_b32 {sr(sOff)}, {UPD0}""")
    lnv = g.lab('notv')
    e(f"""s_cmp_lg_u32 {sr(sStar)}, {sr(sRowV)}
    s_cbranch_scc1 {lnv}
    v_sub_u32 {vr(t(45))}, {63*32}, {vr(t(44))}""")
    poll(updld(t(45)), range(U, U+8), backoff=4)
    e(f'v_mov_b32_dpp {vr(t(46))}, {vr(U)} wave_ror:1 {DPP}')
    for k in range(1, 8): e(f'v_add_f32 {vr(XV+k)}, {vr(XV+k)}, {vr(U+8-k)}')
    e(f'v_add_f32 {vr(XV)}, {vr(XV)}, {vr(t(46))}\n{lnv}:')
    e(f"""s_cmp_lt_u32 {sr(sW)}, 2
    s_cbranch_scc1 {lq}
    s_cmp_lg_u32 {sr(sStar)}, {sr(sRowU)}
    s_cbranch_scc1 {lj}""")
    poll(updld(t(44)), range(U, U+8), backoff=4)
    owner_add()
    e(f's_branch {lj}\n{lq}:')
    poll(updld(t(44)), range(U, U+8), backoff=4)
    stamp('upd')
    owner_add()
    for k in range(4): e(f'v_pk_add_f32 {vr(U+2*k,2)}, {vr(FX+2*k,2)}, {vr(U+2*k,2)}')
    ZD = t(0)
    partial(t(32), U, sCu, None, t(8), t(9), None, t(24))
    wave_reduce([t(8), t(9)], [t(10), t(11)])
    moments(t(8), t(9))
    e(f'''v_mul_f32 {vr(hB)}, -{vr(hM)}, {vr(hRho)}
    v_subrev_f32 {vr(hB)}, {sr(sKv+1)}, {vr(hB)}
    v_readfirstlane_b32 {sr(sKu)}, {vr(hRho)}
    v_readfirstlane_b32 {sr(sKu+1)}, {vr(hB)}''')
    for k in range(4): e(f'v_pk_fma_f32 {vr(ZD+2*k,2)}, {vr(t(32)+2*k,2)}, {sr(sKu,2)}, {sr(sKu,2)} {PKB}')
    for k in range(4): e(f'v_pk_fma_f32 {vr(ZD+2*k,2)}, {vr(FX+2*k,2)}, {sr(sKv,2)}, {vr(ZD+2*k,2)} op_sel_hi:[1,0,1] neg_lo:[0,1,0] neg_hi:[0,1,0]')
    write_n(ZD, t(24)); write_r(ZD, t(40))
    A, B = CA, t(40)
    e(f"""s_mov_b32 {sr(sT)}, 0x3c003c00
    s_cmp_eq_u32 {sr(sW)}, 0
    s_cselect_b32 {sr(sSgn)}, {sr(sT)}, 0xbc00bc00
    ds_read_b64_tr_b16 {vr(A,2)}, {vr(lTr)} offset:{GIMG}
    ds_read_b64_tr_b16 {vr(B,2)}, {vr(lTr)} offset:{RIMG}
    ds_read_b64_tr_b16 {vr(A+2,2)}, {vr(lTr)} offset:{GIMG+128}
    ds_read_b64_tr_b16 {vr(B+2,2)}, {vr(lTr)} offset:{RIMG+128}
    s_waitcnt lgkmcnt(0)""")
    for k in range(4): e(f'v_pk_fma_f16 {vr(A+k)}, {vr(B+k)}, {sr(sSgn)}, {vr(A+k)}')
    core(A, CO)
    for k in range(4): e(f'v_cvt_pk_f16_f32 {vr(t(44)+k)}, {vr(CO+2*k)}, {vr(CO+2*k+1)}')
    for i in range(4):
        op = 'ds_write_b16' if i % 2 == 0 else 'ds_write_b16_d16_hi'
        for Tt in range(2):
            e(f'{op} {vr(FP0)}, {vr(t(44)+2*Tt+i//2)} offset:{RIMG + 2048 + 32*Tt}')
        if i < 3: e(f'v_add_u32 {vr(FP0)}, {vr(FP0)}, {vr(FPS)}')
    e(f"""{lj}:
    s_waitcnt lgkmcnt(0)
    s_barrier
    v_lshlrev_b32 {vr(t(0))}, 4, {vr(vL)}
    ds_read_b128 {vr(t(16),4)}, {vr(t(0))} offset:{RIMG+2048}
    ds_read_b128 {vr(t(20),4)}, {vr(t(0))} offset:{RIMG+2048+1024}
    s_waitcnt lgkmcnt(1)""")
    lsp = g.lab('fsp')
    for k in range(4): e(f'v_pk_fma_f16 {vr(YH+k)}, {vr(t(16)+k)}, {vr(vCa)}, {vr(YH+k)}')
    e(f'''s_cmp_lg_u32 {sr(sRowU)}, 0
    s_cbranch_scc1 {lsp}
    s_mov_b32 {sr(sT)}, 0x28002800
    s_bitcmp0_b32 {sr(sStar)}, 0
    s_cselect_b32 {sr(sT)}, {sr(sT)}, 0xa800a800''')
    for k in range(4): e(f'v_pk_fma_f16 {vr(YV+k)}, {vr(t(16)+k)}, {sr(sT)}, {vr(YV+k)}')
    e(f'{lsp}:\ns_waitcnt lgkmcnt(0)')
    for k in range(4): e(f'v_pk_fma_f16 {vr(YH+k)}, {vr(t(20)+k)}, {vr(vSa)}, {vr(YH+k)}')
    add_y_pair((YH, YV))
    stamp('fixed')
    stats2(True)
    make_key()
    residual_coeffs()
    e('s_waitcnt lgkmcnt(0)\ns_barrier')
    wg_best_read(t(24))
    residual_update(XU, XV)
    e('s_waitcnt lgkmcnt(0)')
    wg_best_header(CAND1, t(24))
    publish_rows(CAND1)
    def out_u():
        for k in range(4): e(f'v_cvt_pk_bf16_f32 {vr(t(24)+k)}, {vr(XU+2*k)}, {vr(XU+2*k+1)}')
        e(f'buffer_store_dwordx4 {vr(t(24),4)}, {vr(aU)}, {sr(sOUT,4)}, 0 offen sc1')
    def out_v():
        e(f"""v_mov_b32_dpp {vr(t(32))}, {vr(XV)} wave_rol:1 {DPP}
        v_cvt_pk_bf16_f32 {vr(t(29))}, {vr(XV+6)}, {vr(XV+5)}
        v_cvt_pk_bf16_f32 {vr(t(30))}, {vr(XV+4)}, {vr(XV+3)}
        v_cvt_pk_bf16_f32 {vr(t(31))}, {vr(XV+2)}, {vr(XV+1)}
        v_cvt_pk_bf16_f32 {vr(t(28))}, {vr(t(32))}, {vr(XV+7)}
        buffer_store_dwordx4 {vr(t(28),4)}, {vr(aV)}, {sr(sOUT,4)}, 0 offen sc1""")
    EARLY = opt.get('early1')
    if EARLY:
        e(f"""s_cmp_gt_u32 {sr(sKeyV)}, {sr(sKeyU)}
        s_cselect_b32 {sr(sH)}, 2, 1
        s_cmp_eq_u32 {sr(sSgn)}, 0
        s_cselect_b32 {sr(sH)}, 0, {sr(sH)}""")
        l1 = g.lab('du'); l2 = g.lab('dv')
        e(f's_cmp_eq_u32 {sr(sH)}, 1\ns_cbranch_scc1 {l1}'); out_u(); e(f'{l1}:')
        e(f's_cmp_eq_u32 {sr(sH)}, 2\ns_cbranch_scc1 {l2}'); out_v(); e(f'{l2}:')
        e(f's_mov_b32 {sr(sH+1)}, {sr(sH)}')
        if EARLY == 'b': e('s_barrier')
        elif EARLY == 'w': e('s_waitcnt vmcnt(0)\ns_barrier')
    else:
        e('s_waitcnt vmcnt(0)\ns_barrier')
    stamp('cand1')
    header_load(CAND1, K)
    e('s_waitcnt vmcnt(0)')
    argmax(CAND1, K)
    stamp('argmax1')
    lb = g.lab('nox')
    e(f's_cmp_ge_u32 {sr(sPhi)}, {NF}\ns_cbranch_scc1 {lb}')
    xsel_load()
    e(f'{lb}:')
    sigmoid_of_key()
    if EARLY:
        l1 = g.lab('eu'); l2 = g.lab('ev')
        e(f's_cmp_lg_u32 {sr(sH+1)}, 1\ns_cbranch_scc1 {l1}\ns_cmp_eq_u32 {sr(sStar)}, {sr(sRowU)}\ns_cbranch_scc1 {l1}'); out_u(); e(f'{l1}:')
        e(f's_cmp_lg_u32 {sr(sH+1)}, 2\ns_cbranch_scc1 {l2}\ns_cmp_eq_u32 {sr(sStar)}, {sr(sRowV)}\ns_cbranch_scc1 {l2}'); out_v(); e(f'{l2}:')
    else:
        ln = g.lab('noout')
        e(f's_cmp_eq_u32 {sr(sStar)}, {sr(sRowU)}\ns_cbranch_scc1 {ln}'); out_u(); e(f'{ln}:')
        ln = g.lab('noout')
        e(f's_cmp_eq_u32 {sr(sStar)}, {sr(sRowV)}\ns_cbranch_scc1 {ln}'); out_v(); e(f'{ln}:')
    e('s_waitcnt vmcnt(0)')
    ffn(PART1)
    stamp('ffn1')
    e('s_waitcnt vmcnt(0)')
    reducer(PART1, True)
    stamp('end')
    e('L_done:')
    if stamps:
        ls = g.lab('nost')
        e(f"""s_cmp_ge_u32 s2, 256
        s_cbranch_scc1 {ls}
        s_waitcnt vmcnt(0)
        s_mov_b64 exec, -1
        s_lshl_b32 {sr(sT)}, {sr(sWg)}, 11
        s_lshl_b32 {sr(sT2)}, {sr(sW)}, 8
        s_add_u32 {sr(sT)}, {sr(sT)}, {sr(sT2)}
        v_and_b32 {vr(t(0))}, 63, v0
        v_lshlrev_b32 {vr(t(0))}, 2, {vr(t(0))}
        v_add_u32 {vr(t(0))}, {sr(sT)}, {vr(t(0))}
        s_mov_b32 {sr(sOff)}, {STAMP}
        buffer_store_dword {vr(vStamp)}, {vr(t(0))}, {sr(sWS,4)}, {sr(sOff)} offen
        {ls}:""")
    e('s_endpgm')
    loader()
    for ls, lj, yh_, yv_ in g.late:
        e(f'{ls}:')
        add_y(yh_, yv_)
        e(f's_branch {lj}')
    emit_tail()
    return g

def render(g):
    lines, added = pad(g.L)
    body = '\n'.join(('' if l.endswith(':') else '    ') + l for l in lines)
    ninstr = sum(1 for l in lines if not l.endswith(':'))
    hdr = f"""; Two (FNet mixing + top-1 routed SwiGLU) layers in one persistent launch: 256 workgroups, 4 compute waves + 1 weight-loader wave.
;
; Re(FFT2(LN x)) is evaluated as a separable Hartley transform of g[s,d] = xn[s,d] + xn[-s,-d] (point symmetry, real data only):
; a poison word written earlier in the same launch, or (first exchange) by a tag derived from (and never equal to) the previous one.
; (weights staged in LDS by the loader wave), 32 workgroups add the partial rows.  In layer 1 the routed row's effect on
; @launch grid=(256,1,1) block=(320,1,1) lds={LDS_SIZE}
.amdgcn_target "amdgcn-amd-amdhsa--gfx950"
.text
.globl {NAME}
.p2align 8
.type {NAME},@function
{NAME}:
"""
    tab = '\n'.join('.long ' + ','.join('0x%08x' % x for x in TAB[i:i+8]) for i in range(0, len(TAB), 8))
    tail = f"""
L_code_end:
.p2align 8
L_tab:
{tab}
.section .rodata,"a"
.p2align 6
.amdhsa_kernel {NAME}
  .amdhsa_next_free_vgpr 256
  .amdhsa_next_free_sgpr 102
  .amdhsa_accum_offset 256
  .amdhsa_group_segment_fixed_size 0
  .amdhsa_kernarg_size 104
  .amdhsa_user_sgpr_count 2
  .amdhsa_user_sgpr_kernarg_segment_ptr 1
  .amdhsa_system_sgpr_workgroup_id_x 1
.end_amdhsa_kernel
"""
    return hdr + body + tail, ninstr, added

if __name__ == '__main__':
    import argparse
    ap = argparse.ArgumentParser()
    ap.add_argument('-o', default='interleave_layers__spectral_fnet__moe_arch_mod__prompt.s')
    ap.add_argument('--stop'); ap.add_argument('--stamps', action='store_true'); ap.add_argument('--opt', default='')
    a = ap.parse_args()
    g = build(a.stop, a.stamps, {k.split('=')[0]: (k.split('=')+['1'])[1] for k in a.opt.split(',') if k})
    txt, n, added = render(g)
    open(a.o, 'w').write(txt)
    print(f'{n} instructions, {added} nop slots added, vgpr high {g.v.n}, sgpr high {g.s.n}')
```
